```python
import torch

def _softmax(x, axis=-1):
    return torch.softmax(x, dim=axis)

def _gelu(x):
    return torch.nn.functional.gelu(x, approximate='tanh')

def _silu(x):
    return torch.nn.functional.silu(x)

def _sigmoid(x):
    return torch.sigmoid(x)

def _layernorm(x, axis=-1, eps=1e-05):
    m = x.mean(dim=axis, keepdim=True)
    v = x.var(dim=axis, keepdim=True, unbiased=False)
    return (x - m) / torch.sqrt(v + eps)

def _scatter_add(tgt, idx, src, axis=0):
    return tgt.clone().index_add_(axis, idx, src)

def _segment_sum(src, seg, n):
    out = torch.zeros((n,) + src.shape[1:], dtype=src.dtype)
    return out.index_add_(0, seg, src)

def _pad(x, pw):
    flat = tuple((v for pair in reversed(pw) for v in pair))
    return torch.nn.functional.pad(x, flat)
kernel_name = 'adaLN_cond__spectral_gfnet__glu_gated_bilinear__prompt'

def setup_inputs():

    _w = lambda a: (lambda t: t.to(torch.bfloat16) if t.is_floating_point() else t)(torch.as_tensor(a))

    def _A_setup():
        B, S, D = (1, 2048, 640)
        Df = D // 2 + 1
        return {'x': _w((lambda *s: torch.randn(*s, dtype=torch.bfloat16) * 0.05)(B, S, D)), 'w_r': _w((lambda *s: torch.randn(*s, dtype=torch.bfloat16) * 1.6)(S, Df) * 0.02), 'w_i': _w((lambda *s: torch.randn(*s, dtype=torch.bfloat16) * 1.6)(S, Df) * 0.02)}
    _A_in = _A_setup()

    def _B_setup():
        B, S, D, F = (1, 2048, 640, 1536)
        return {'x': _w((lambda *s: torch.randn(*s, dtype=torch.bfloat16) * 0.05)(B, S, D)), 'w_gate': _w((lambda *s: torch.randn(*s, dtype=torch.bfloat16) * 0.4)(D, F) * D ** (-0.5)), 'w_up': _w((lambda *s: torch.randn(*s, dtype=torch.bfloat16) * 0.4)(D, F) * D ** (-0.5)), 'w_down': _w((lambda *s: torch.randn(*s, dtype=torch.bfloat16) * 0.4)(F, D) * F ** (-0.5))}
    _B_in = _B_setup()
    return {'A_x': _A_in['x'], 'A_w_r': _A_in['w_r'], 'A_w_i': _A_in['w_i'], 'B_x': _B_in['x'], 'B_w_gate': _B_in['w_gate'], 'B_w_up': _B_in['w_up'], 'B_w_down': _B_in['w_down'], 'c': _w((lambda *s: torch.randn(*s, dtype=torch.bfloat16) * 0.1)(1, 640) * 8.0), 'w_mod': _w((lambda *s: torch.randn(*s, dtype=torch.bfloat16) * 0.1)(640, 6 * 640) * 640 ** (-0.5) * 8.0)}

def reference(A_x, A_w_r, A_w_i, B_x, B_w_gate, B_w_up, B_w_down, c, w_mod):

    def _A_ref(x, w_r, w_i):
        B, S, D = x.shape
        X = (lambda x, axes=(-2, -1): torch.fft.rfft2(x.float(), dim=axes))(x, axes=(-2, -1))
        W = w_r + 1j * w_i
        X = X * W
        y = (lambda x, s, axes=(-2, -1): torch.fft.irfft2(x, s=s, dim=axes).to(torch.bfloat16))(X, (S, D), axes=(-2, -1))
        return y

    def _B_ref(x, w_gate, w_up, w_down):
        g = torch.einsum('bsd,df->bsf', x, w_gate)
        u = torch.einsum('bsd,df->bsf', x, w_up)
        h = g * u
        return torch.einsum('bsf,fd->bsd', h, w_down)
    x = A_x
    mod = (_silu(c) @ w_mod).reshape(c.shape[0], 6, 1, -1)
    sa, ca, ga, sb, cb, gb = (mod[:, 0].clone(), mod[:, 1].clone(), mod[:, 2].clone(), mod[:, 3].clone(), mod[:, 4].clone(), mod[:, 5].clone())
    h = _layernorm(x, axis=-1) * (1 + ca) + sa
    x = x + ga * _A_ref(h, A_w_r, A_w_i)
    h = _layernorm(x, axis=-1) * (1 + cb) + sb
    x = x + gb * _B_ref(h, B_w_gate, B_w_up, B_w_down)
    return x
```

```python
import re

TRANS = ('v_exp_f32', 'v_log_f32', 'v_rcp_f32', 'v_rsq_f32', 'v_sqrt_f32', 'v_sin_f32', 'v_cos_f32', 'v_rcp_iflag_f32')
REG_RE = re.compile(r'^(-|abs\()?(\|)?([vas])(?:(\d+)|\[(\d+):(\d+)\])\|?\)?$')

def parse_reg(tok):
    tok = tok.strip()
    if tok in ('vcc', 'vcc_lo', 'vcc_hi'): return [('vcc', 0)]
    if tok in ('exec', 'exec_lo', 'exec_hi'): return [('exec', 0)]
    if tok == 'm0': return [('m0', 0)]
    m = REG_RE.match(tok)
    if not m: return []
    k = m.group(3)
    if m.group(4) is not None: return [(k, int(m.group(4)))]
    return [(k, i) for i in range(int(m.group(5)), int(m.group(6)) + 1)]

def split_ops(s):
    out, depth, cur = [], 0, ''
    for ch in s:
        if ch in '[(': depth += 1
        if ch in '])': depth -= 1
        if ch == ',' and depth == 0:
            out.append(cur.strip()); cur = ''
        else: cur += ch
    if cur.strip(): out.append(cur.strip())
    return out

class Ins:
    __slots__ = ('text', 'op', 'rd', 'wr', 'cls', 'srcc', 'ab', 'passes', 'dpp', 'data', 'lds_dma', 'states', 'tag')
    def __init__(self, text):
        self.text = text
        t = text.split(';')[0].strip()
        parts = t.split(None, 1)
        self.op = op = parts[0]
        rest = parts[1] if len(parts) > 1 else ''
        ops = split_ops(rest)
        mods = ''
        if ops:
            last = ops[-1]
            depth = 0
            for i, ch in enumerate(last):
                if ch in '[(': depth += 1
                if ch in '])': depth -= 1
                if ch == ' ' and depth == 0:
                    mods = last[i + 1:]; ops[-1] = last[:i]; break
        self.rd, self.wr = [], []
        self.srcc, self.ab, self.passes, self.dpp, self.data, self.lds_dma = [], [], 0, False, [], False
        self.states = 1
        self.tag = None
        R = [parse_reg(o) for o in ops]
        base = op.replace('_e32', '').replace('_e64', '').replace('_dpp', '').replace('_sdwa', '')
        if op.startswith('v_mfma'):
            self.cls = 'mfma'
            self.wr = R[0]; self.ab = R[1] + R[2]; self.srcc = R[3]
            self.rd = self.ab + self.srcc
            self.passes = 8 if '32x32x16' in op else 4
            assert '32x32x16' in op or '16x16x32' in op, op
        elif op.startswith('v_'):
            self.cls = 'trans' if base in TRANS else 'valu'
            self.dpp = op.endswith('_dpp') or 'row_' in mods or 'quad_perm' in mods
            if base.startswith('v_cmpx'):
                self.wr = R[0] + [('exec', 0)]; self.rd = sum(R[1:], [])
            elif base.startswith('v_cmp'):
                self.wr = R[0]; self.rd = sum(R[1:], [])
            elif base in ('v_add_co_u32', 'v_sub_co_u32', 'v_subrev_co_u32', 'v_addc_co_u32', 'v_subb_co_u32', 'v_mad_u64_u32', 'v_div_scale_f32'):
                self.wr = R[0] + R[1]; self.rd = sum(R[2:], [])
            elif base.startswith('v_permlane') and 'swap' in base:
                self.wr = R[0] + R[1]; self.rd = R[0] + R[1]; self.cls = 'permlane'
            elif base in ('v_readlane_b32', 'v_readfirstlane_b32'):
                self.wr = R[0]; self.rd = sum(R[1:], []); self.cls = 'readlane'
            elif base == 'v_nop':
                pass
            else:
                self.wr = R[0]; self.rd = sum(R[1:], [])
                if base in ('v_fmac_f32', 'v_dot2c_f32_bf16', 'v_writelane_b32', 'v_pk_fmac_f16') or self.dpp:
                    self.rd = self.rd + R[0]
                if base == 'v_cndmask_b32' and len(ops) == 3: self.rd = self.rd + [('vcc', 0)]
        elif op.startswith('buffer_') or op.startswith('global_'):
            self.cls = 'vmem'
            toks = mods.split()
            if op.startswith('buffer_load') and 'lds' in toks:
                self.lds_dma = True; self.rd = sum(R, []) + [('m0', 0)]
            elif op.startswith('global_load_lds'):
                self.lds_dma = True; self.rd = sum(R, []) + [('m0', 0)]
            elif '_load' in op:
                self.wr = R[0]; self.rd = sum(R[1:], [])
                if 'd16' in op: self.rd = self.rd + R[0]
            elif op.startswith('buffer_store'):
                self.rd = sum(R, []); self.data = R[0]
            elif op.startswith('global_store'):
                self.rd = sum(R, []); self.data = R[1]
            elif op.startswith('buffer_atomic'):
                self.rd = sum(R, [])
                if 'sc0' in toks: self.wr = R[0]
            elif op in ('buffer_wbl2', 'buffer_inv'):
                pass
            else:
                raise ValueError('unhandled vmem ' + text)
        elif op.startswith('ds_'):
            self.cls = 'ds'
            if op.startswith('ds_read') or op.startswith('ds_bpermute') or op.startswith('ds_swizzle') or op.startswith('ds_permute') or '_rtn' in op:
                self.wr = R[0]; self.rd = sum(R[1:], [])
            else:
                self.rd = sum(R, [])
        elif op.startswith('s_load') or op.startswith('s_buffer_load') or op in ('s_memtime', 's_memrealtime'):
            self.cls = 'smem'; self.wr = R[0]; self.rd = sum(R[1:], [])
        elif op == 's_nop':
            self.cls = 'nop'; self.states = int(ops[0], 0) + 1
        elif op == 's_waitcnt':
            self.cls = 'wait'
        elif op in ('s_barrier', 's_endpgm', 's_sleep', 's_setprio'):
            self.cls = 'misc'
        elif op.startswith('s_cbranch') or op == 's_branch':
            self.cls = 'branch'
        elif op.startswith('s_cmp') or op.startswith('s_bitcmp'):
            self.cls = 'salu'; self.rd = sum(R, [])
        elif op.startswith('s_'):
            self.cls = 'salu'; self.wr = R[0]; self.rd = sum(R[1:], [])
            if 'saveexec' in op: self.wr = self.wr + [('exec', 0)]; self.rd = self.rd + [('exec', 0)]
            if op in ('s_addk_i32', 's_mulk_i32'): self.rd = self.rd + R[0]
        else:
            raise ValueError('unhandled ' + text)

VALUISH = ('valu', 'trans', 'permlane', 'readlane')

def need_states(p, c):
    n = 0
    pw = set(p.wr); cr = set(c.rd); cw = set(c.wr)
    pwv = {r for r in pw if r[0] in 'va'}
    pws = {r for r in pw if r[0] in ('s', 'vcc')}
    if p.cls in VALUISH:
        if c.cls == 'mfma' and pwv & cr: n = max(n, 2)
        if c.cls in VALUISH and c.dpp and pwv & cr: n = max(n, 2)
        if c.cls == 'readlane' and pwv & cr: n = max(n, 1)
        if c.cls == 'permlane' and pwv & cr: n = max(n, 2)
        if p.cls == 'trans' and c.cls in VALUISH and c.cls != 'trans' and pwv & cr: n = max(n, 1)
        if p.cls == 'trans' and c.cls in ('vmem', 'ds') and pwv & cr: n = max(n, 1)
        if pws & cr:
            if c.cls == 'vmem': n = max(n, 5)
            elif c.cls == 'readlane' or c.op.startswith('v_writelane'): n = max(n, 4)
            elif c.cls in VALUISH or c.cls == 'mfma': n = max(n, 2)
            elif c.cls in ('salu', 'smem'): n = max(n, 1)
        if ('vcc', 0) in pw and c.op in ('s_cbranch_vccz', 's_cbranch_vccnz'): n = max(n, 5)
        if ('exec', 0) in pw:
            if c.cls in VALUISH and c.dpp: n = max(n, 5)
            if c.cls in ('mfma', 'permlane', 'readlane'): n = max(n, 4)
            if ('exec', 0) in cr: n = max(n, 2)
            if c.op in ('s_cbranch_execz', 's_cbranch_execnz'): n = max(n, 5)
    if p.cls == 'mfma':
        big = {4: 8, 8: 12}[p.passes]
        if c.cls == 'mfma':
            if pw & set(c.ab): n = max(n, big)
            if pw & set(c.srcc):
                if list(p.wr) == list(c.srcc) and p.passes == c.passes: pass
                else: n = max(n, {4: 6, 8: 10}[p.passes])
            elif pw & cw: n = max(n, big)
        elif c.cls in VALUISH or c.cls in ('vmem', 'ds'):
            if pw & (cr | cw): n = max(n, big)
            if set(p.srcc) & cw: n = max(n, {4: 3, 8: 7}[p.passes])
    if p.cls == 'vmem' and len(p.data) >= 3 and set(p.data) & cw:
        n = max(n, 2 if c.cls in VALUISH else 1)
    if p.cls == 'salu' and ('m0', 0) in pw and c.cls == 'vmem' and c.lds_dma: n = max(n, 1)
    return n

class Kernel:
    def __init__(self, name):
        self.name = name
        self.out = []
        self.hist = []
        self.vm = []
        self.lg = []
        self.maxv = -1; self.maxs = -1; self.maxa = -1
        self.auto = True
        self.nins = 0
    def raw(self, s): self.out.append(s)
    def comment(self, s): self.out.append('    ; ' + s)
    def _push(self, ins):
        self.out.append('    ' + ins.text)
        self.hist.append(ins)
        if len(self.hist) > 24: self.hist.pop(0)
        self.nins += 1
    def _nop(self, n):
        while n > 0:
            k = min(n, 16)
            self._push(Ins(f's_nop {k - 1}')); n -= k
    def _hazard(self, ins):
        need = 0; dist = 0
        for p in reversed(self.hist):
            n = need_states(p, ins)
            if n > dist: need = max(need, n - dist)
            dist += p.states
            if dist >= 20: break
        if need: self._nop(need)
    def waitcnt(self, vm=None, lgkm=None):
        parts = []
        if vm is not None:
            vm = min(vm, 63)
            parts.append(f'vmcnt({vm})')
            if len(self.vm) > vm: self.vm = self.vm[len(self.vm) - vm:] if vm else []
        if lgkm is not None:
            lgkm = min(lgkm, 15)
            parts.append(f'lgkmcnt({lgkm})')
            if len(self.lg) > lgkm: self.lg = self.lg[len(self.lg) - lgkm:] if lgkm else []
        self._push(Ins('s_waitcnt ' + ' '.join(parts)))
    def wait_tag(self, tag):
        idx = [i for i, (_, t) in enumerate(self.vm) if t == tag]
        if idx: self.waitcnt(vm=len(self.vm) - 1 - idx[-1])
    def I(self, text, tag=None):
        ins = Ins(text)
        for k, n in ins.rd + ins.wr:
            if k == 'v': self.maxv = max(self.maxv, n)
            if k == 's': self.maxs = max(self.maxs, n)
            if k == 'a': self.maxa = max(self.maxa, n)
        assert ins.cls != 'wait', 'use waitcnt()'
        if self.auto:
            touched = set(ins.rd) | set(ins.wr)
            vmw = None; lgw = None
            for i in range(len(self.vm) - 1, -1, -1):
                if self.vm[i][0] & touched:
                    vmw = len(self.vm) - 1 - i; break
            for i in range(len(self.lg) - 1, -1, -1):
                if self.lg[i][0] & touched:
                    lgw = len(self.lg) - 1 - i
                    if any(s for _, s in self.lg): lgw = 0
                    break
            if vmw is not None or lgw is not None: self.waitcnt(vm=vmw, lgkm=lgw)
        if ins.cls == 'branch':
            self.flush()
        self._hazard(ins)
        self._push(ins)
        if ins.cls == 'vmem' and ins.op not in ('buffer_wbl2', 'buffer_inv'): self.vm.append((set(ins.wr), tag))
        elif ins.cls == 'vmem': self.vm.append((set(), tag))
        if ins.cls == 'ds': self.lg.append((set(ins.wr), False))
        if ins.cls == 'smem': self.lg.append((set(ins.wr), True))
    def flush(self):
        need = 0; dist = 0
        for p in reversed(self.hist):
            w = 0
            if p.cls == 'mfma': w = {4: 8, 8: 12}[p.passes]
            elif p.cls in VALUISH:
                w = 5 if any(r[0] in ('s', 'vcc', 'exec') for r in p.wr) else 2
            elif p.cls == 'vmem' and len(p.data) >= 3: w = 2
            elif p.cls == 'salu' and ('m0', 0) in p.wr: w = 1
            if w > dist: need = max(need, w - dist)
            dist += p.states
            if dist >= 20: break
        if need > 1: self._nop(need - 1)
    def label(self, name, fresh=False):
        if not fresh:
            self.flush(); self._nop(1) if False else None
        self.out.append(name + ':')
        if fresh: self.hist = []
    def save_state(self): return (list(self.vm), list(self.lg))
    def restore_state(self, st): self.vm, self.lg = list(st[0]), list(st[1])
    def barrier(self, vm=None, lgkm=0):
        self.waitcnt(vm=vm, lgkm=lgkm)
        self.I('s_barrier')
    def srd(self, d, base, nbytes, off=0):
        if off:
            self.I(f's_add_u32 s{d}, s{base}, {off}')
            self.I(f's_addc_u32 s{d+1}, s{base+1}, 0')
        else:
            self.I(f's_mov_b32 s{d}, s{base}')
            self.I(f's_mov_b32 s{d+1}, s{base+1}')
        self.I(f's_mov_b32 s{d+2}, {nbytes}')
        self.I(f's_mov_b32 s{d+3}, 0x00020000')
    def text(self):
        hdr = f'.globl {self.name}\n.p2align 8\n.type {self.name},@function\n{self.name}:\n'
        return hdr + '\n'.join(self.out) + '\n'
    def descriptor(self, min_vgpr=0):
        nv = max(self.maxv + 1, 4)
        acc = (nv + 3) // 4 * 4
        tot = acc + self.maxa + 1 if self.maxa >= 0 else nv
        tot = max(tot, min_vgpr)
        assert acc <= 256 and tot <= 512, (self.name, acc, tot)
        return f""".p2align 6
.amdhsa_kernel {self.name}
  .amdhsa_next_free_vgpr {tot}
  .amdhsa_next_free_sgpr {max(self.maxs + 1, 16)}
  .amdhsa_accum_offset {acc}
  .amdhsa_group_segment_fixed_size 0
  .amdhsa_kernarg_size 96
  .amdhsa_user_sgpr_count 2
  .amdhsa_user_sgpr_kernarg_segment_ptr 1
  .amdhsa_system_sgpr_workgroup_id_x 1
.end_amdhsa_kernel
"""

class VAlloc:
    def __init__(self, start=1, limit=256): self.n = start; self.limit = limit
    def get(self, cnt=1, align=1):
        if cnt >= 2 and align == 1: align = 2
        self.n = (self.n + align - 1) // align * align
        r = self.n; self.n += cnt
        assert self.n <= self.limit, 'out of vgprs'
        return r

def vr(a, n): return f'v[{a}:{a+n-1}]' if n > 1 else f'v{a}'
def ar(a, n): return f'a[{a}:{a+n-1}]' if n > 1 else f'a{a}'
import struct
def fhex(f): return '0x%08x' % struct.unpack('<I', struct.pack('<f', f))[0]
```

```python
import sys, math
from asmlib import *

S, D, F = 2048, 640, 1536
KA = dict(x=0, wr=8, wi=16, bx=24, wg=32, wu=40, wd=48, c=56, wmod=64, out=72, dbg=80, ws=88)
MODN = 0
MODB = 16384
STAMP = 0x8000
XT = 0x10000;  XT_SZ = 321 * 8192
WT = 0x2A0000
H2 = 0x540000
X1 = 0x7C0000
HH = 0xA40000
WD = 0x1040000
WS_END = 0x1220000
STAMPS = False

def stamp_begin(k):
    if STAMPS: k.I('s_memrealtime s[96:97]')
def stamp_end(k, idx, ws_pair):
    if not STAMPS: return
    k.I('s_mov_b64 exec, -1')
    k.waitcnt(vm=0, lgkm=0)
    k.I('s_memrealtime s[98:99]')
    k.srd(92, ws_pair, 0x10000000)
    k.I('s_lshl_b32 s91, s2, 6')
    k.I(f's_add_u32 s91, s91, {0x2000000 + idx * 0x10000}')
    k.I('v_lshrrev_b32 v1, 6, v0')
    k.I('v_lshlrev_b32 v1, 3, v1')
    k.I('v_mov_b32 v2, s96')
    k.I('v_mov_b32 v3, s98')
    k.I('s_mov_b64 exec, 1')
    k.I('buffer_store_dwordx2 v[2:3], v1, s[92:95], s91 offen')

def wave_reduce_to_sgpr(k, regs, sregs):
    for mod in ('quad_perm:[1,0,3,2] row_mask:0xf bank_mask:0xf', 'quad_perm:[2,3,0,1] row_mask:0xf bank_mask:0xf',
                'row_half_mirror row_mask:0xf bank_mask:0xf', 'row_mirror row_mask:0xf bank_mask:0xf',
                'row_bcast:15 row_mask:0xa bank_mask:0xf', 'row_bcast:31 row_mask:0xc bank_mask:0xf'):
        for r in regs:
            k.I(f'v_add_f32_dpp v{r}, v{r}, v{r} {mod}')
    for r, s in zip(regs, sregs):
        k.I(f'v_readlane_b32 s{s}, v{r}, 63')

def ln_scalars(k, s_sum, s_sq, v_r, v_nmr, tmp):
    t = tmp
    k.I(f'v_mov_b32 v{t}, {fhex(1.0 / D)}')
    k.I(f'v_pk_mul_f32 {vr(t+2,2)}, s[{s_sum}:{s_sum+1}], {vr(t,2)} op_sel_hi:[1,0]')
    k.I(f'v_pk_mul_f32 {vr(v_r,2)}, s[{s_sq}:{s_sq+1}], {vr(t,2)} op_sel_hi:[1,0]')
    k.I(f'v_pk_fma_f32 {vr(v_r,2)}, {vr(t+2,2)}, {vr(t+2,2)}, {vr(v_r,2)} neg_lo:[1,0,0] neg_hi:[1,0,0]')
    k.I(f'v_max_f32 v{v_r}, 0, v{v_r}')
    k.I(f'v_max_f32 v{v_r+1}, 0, v{v_r+1}')
    k.I(f'v_add_f32 v{v_r}, {fhex(1e-5)}, v{v_r}')
    k.I(f'v_add_f32 v{v_r+1}, {fhex(1e-5)}, v{v_r+1}')
    k.I(f'v_rsq_f32 v{v_r}, v{v_r}')
    k.I(f'v_rsq_f32 v{v_r+1}, v{v_r+1}')
    k.I(f'v_pk_mul_f32 {vr(v_nmr,2)}, {vr(t+2,2)}, {vr(v_r,2)} neg_lo:[1,0] neg_hi:[1,0]')

def cmul4(k, re, im, cs, sn, out, tmp, conj):
    n1 = '' if not conj else ' neg_lo:[0,1,0] neg_hi:[0,1,0]'
    n2 = ' neg_lo:[0,1,0] neg_hi:[0,1,0]' if not conj else ''
    for p in (0, 2):
        k.I(f'v_pk_mul_f32 {vr(tmp+p,2)}, {vr(re+p,2)}, {vr(cs+p,2)}')
        k.I(f'v_pk_mul_f32 {vr(tmp+4+p,2)}, {vr(im+p,2)}, {vr(cs+p,2)}')
    for p in (0, 2):
        k.I(f'v_pk_fma_f32 {vr(tmp+p,2)}, {vr(im+p,2)}, {vr(sn+p,2)}, {vr(tmp+p,2)}{n1}')
        k.I(f'v_pk_fma_f32 {vr(tmp+4+p,2)}, {vr(re+p,2)}, {vr(sn+p,2)}, {vr(tmp+4+p,2)}{n2}')
    for j in range(4):
        k.I(f'v_cvt_pk_bf16_f32 v{out+j}, v{tmp+2*j}, v{tmp+2*j+1}')

MF16 = 'v_mfma_f32_16x16x32_bf16'
MF32 = 'v_mfma_f32_32x32x16_bf16'

A_NMOD, A_NWT, A_NWD = 120, 161, 60
def gen_A():
    k = Kernel('ka_kernel')
    stamp_begin(k)
    k.I(f's_load_dwordx2 s[4:5], s[0:1], {KA["ws"]}')
    k.I(f's_load_dwordx4 s[8:11], s[0:1], {KA["c"]}')
    k.I(f's_load_dwordx4 s[12:15], s[0:1], {KA["wr"]}')
    k.I(f's_load_dwordx2 s[6:7], s[0:1], {KA["wd"]}')
    k.I(f's_cmp_ge_u32 s2, {A_NMOD}')
    st = k.save_state()
    k.I('s_cbranch_scc1 LA_wt')
    k.I('s_and_b32 s20, s2, 7')
    k.I('s_lshr_b32 s21, s2, 3')
    k.I('s_and_b32 s22, s21, 1')
    k.I('s_lshr_b32 s21, s21, 1')
    k.I('s_lshl_b32 s21, s21, 4')
    k.I('s_lshl_b32 s20, s20, 1')
    k.I('s_add_u32 s20, s20, s21')
    k.I('s_add_u32 s20, s20, s22')
    k.I('s_cmp_ge_u32 s2, 112')
    k.I('s_cselect_b32 s20, s2, s20')
    va = VAlloc()
    vrw = va.get(); voff = va.get(); vc = va.get(5); vw = va.get(20, 4); acc = va.get(8, 4); t0 = va.get(); t1 = va.get(); vco = va.get()
    k.I(f'v_lshrrev_b32 v{vrw}, 2, v0')
    k.I(f'v_mul_u32_u24 v{voff}, 7680, v{vrw}')
    k.I(f'v_and_b32 v{t0}, 3, v0')
    k.I(f'v_lshl_add_u32 v{voff}, v{t0}, 4, v{voff}')
    k.I(f'v_lshlrev_b32 v{vco}, 1, v{vrw}')
    k.I('s_lshl_b32 s23, s20, 6')
    k.srd(24, 10, D * 6 * D * 2)
    k.srd(28, 8, D * 2)
    for i in range(5):
        k.I(f'buffer_load_ushort v{vc+i}, v{vco}, s[28:31], 0 offen offset:{256*i}')
    for i in range(5):
        k.I(f'buffer_load_dwordx4 {vr(vw+4*i,4)}, v{voff}, s[24:27], s23 offen')
        if i < 4: k.I(f's_add_u32 s23, s23, {128*7680}')
    k.srd(32, 4, 0x8000)
    for j in range(8): k.I(f'v_mov_b32 v{acc+j}, 0')
    tt = va.get(5)
    for i in range(5): k.I(f'v_lshlrev_b32 v{vc+i}, 16, v{vc+i}')
    for i in range(5): k.I(f'v_mul_f32 v{tt+i}, {fhex(-math.log2(math.e))}, v{vc+i}')
    for i in range(5): k.I(f'v_exp_f32 v{tt+i}, v{tt+i}')
    for i in range(5): k.I(f'v_add_f32 v{tt+i}, 1.0, v{tt+i}')
    for i in range(5): k.I(f'v_rcp_f32 v{tt+i}, v{tt+i}')
    for i in range(5): k.I(f'v_mul_f32 v{vc+i}, v{vc+i}, v{tt+i}')
    for i in range(5): k.I(f'v_cvt_pk_bf16_f32 v{vc+i}, v{vc+i}, v{vc+i}')
    for i in range(5): k.I(f'v_and_b32 v{vc+i}, 0xffff0000, v{vc+i}')
    for i in range(5):
        for j in range(4):
            k.I(f'v_lshlrev_b32 v{t0}, 16, v{vw+4*i+j}')
            k.I(f'v_and_b32 v{t1}, 0xffff0000, v{vw+4*i+j}')
            k.I(f'v_fmac_f32 v{acc+2*j}, v{vc+i}, v{t0}')
            k.I(f'v_fmac_f32 v{acc+2*j+1}, v{vc+i}, v{t1}')
    for m in (4, 8):
        for j in range(8): k.I(f'v_add_f32_dpp v{acc+j}, v{acc+j}, v{acc+j} row_ror:{m} row_mask:0xf bank_mask:0xf')
    k.I(f'v_lshrrev_b32 v{t0}, 4, v0')
    k.I(f'v_lshlrev_b32 v{t0}, 7, v{t0}')
    k.I(f'v_and_b32 v{t1}, 3, v0')
    k.I(f'v_lshl_add_u32 v{t0}, v{t1}, 5, v{t0}')
    k.I('s_mov_b32 s36, 0x000f000f')
    k.I('s_mov_b32 s37, 0x000f000f')
    k.I('s_mov_b64 exec, s[36:37]')
    k.I(f'ds_write_b128 v{t0}, {vr(acc,4)}')
    k.I(f'ds_write_b128 v{t0}, {vr(acc+4,4)} offset:16')
    k.I('s_mov_b64 exec, -1')
    k.barrier()
    k.I('v_readfirstlane_b32 s38, v0')
    k.I('s_cmp_lg_u32 s38, 0')
    k.I('s_cbranch_scc1 LA_end')
    k.I(f'v_lshlrev_b32 v{t0}, 2, v0')
    for j in range(8):
        k.I(f'ds_read2st64_b32 {vr(vw+2*j,2)}, v{t0} offset0:{2*j} offset1:{2*j+1}')
    k.I('s_mul_i32 s39, s20, 205')
    k.I('s_lshr_b32 s39, s39, 12')
    k.I('s_mul_i32 s40, s39, 20')
    k.I('s_sub_u32 s40, s20, s40')
    k.I('s_cmp_eq_u32 s39, 1')
    k.I('s_cselect_b32 s41, 1.0, 0')
    k.I('s_cmp_eq_u32 s39, 4')
    k.I('s_cselect_b32 s41, 1.0, s41')
    k.I('s_cmp_eq_u32 s39, 2')
    k.I(f's_cselect_b32 s42, {fhex(1.0 / (2.0 * S * D))}, 1.0')
    for j in range(4): k.I(f'v_pk_add_f32 {vr(vw+2*j,2)}, {vr(vw+2*j,2)}, {vr(vw+8+2*j,2)}')
    for j in range(2): k.I(f'v_pk_add_f32 {vr(vw+2*j,2)}, {vr(vw+2*j,2)}, {vr(vw+4+2*j,2)}')
    k.I(f'v_pk_add_f32 {vr(vw,2)}, {vr(vw,2)}, {vr(vw+2,2)}')
    k.I(f'v_add_f32 v{vw}, v{vw}, v{vw+1}')
    k.I(f'v_mov_b32 v{vw+1}, v{vw}')
    k.I(f'v_permlane32_swap_b32 v{vw+1}, v{vw}')
    k.I(f'v_add_f32 v{vw}, v{vw}, v{vw+1}')
    k.I(f'v_cvt_pk_bf16_f32 v{vw}, v{vw}, v{vw}')
    k.I(f'v_and_b32 v{vw}, 0xffff0000, v{vw}')
    k.I(f'v_add_f32 v{vw}, s41, v{vw}')
    k.I(f'v_cvt_pk_bf16_f32 v{vw}, v{vw}, v{vw}')
    k.I(f'v_and_b32 v{vw}, 0xffff0000, v{vw}')
    k.I(f'v_mul_f32 v{vw}, s42, v{vw}')
    k.I('s_lshr_b32 s43, s40, 2')
    k.I('s_lshl_b32 s43, s43, 10')
    k.I('s_and_b32 s44, s40, 1')
    k.I('s_lshl_b32 s44, s44, 9')
    k.I('s_add_u32 s43, s43, s44')
    k.I('s_and_b32 s44, s40, 2')
    k.I('s_lshl_b32 s44, s44, 2')
    k.I('s_add_u32 s43, s43, s44')
    k.I(f's_add_u32 s43, s43, {MODB}')
    k.I('s_cmp_eq_u32 s39, 0')
    k.I('s_cselect_b32 s44, 4, 0')
    k.I('s_add_u32 s43, s43, s44')
    k.I('s_cmp_ge_u32 s39, 2')
    k.I('s_cselect_b32 s43, 0x100000, s43')
    k.I('s_lshl_b32 s45, s20, 7')
    k.I(f'v_and_b32 v{t1}, 31, v0')
    k.I(f'v_lshl_add_u32 v{t0}, v{t1}, 2, s45')
    k.I(f'v_lshl_add_u32 v{t1}, v{t1}, 4, s43')
    k.I('v_cmp_gt_u32 vcc, 32, v0')
    k.I(f'v_cndmask_b32 v{t0}, v{t1}, v{t0}, vcc')
    k.I(f'buffer_store_dword v{vw}, v{t0}, s[32:35], 0 offen')
    k.label('LA_end')
    stamp_end(k, 0, 4)
    k.I('s_endpgm')
    k.label('LA_wt', fresh=True); k.restore_state(st)
    k.I(f's_cmp_ge_u32 s2, {A_NMOD + A_NWT}')
    k.I('s_cbranch_scc1 LA_wd')
    va = VAlloc()
    idx = va.get(); g = va.get(); t = va.get(); a0 = va.get(); a1 = va.get(); src = va.get(); dst = va.get()
    lr = va.get(8, 4); li = va.get(8, 4)
    k.I(f's_sub_u32 s20, s2, {A_NMOD}')
    k.I('s_lshl_b32 s20, s20, 9')
    k.I(f'v_add_u32 v{idx}, s20, v0')
    k.I(f's_mov_b32 s21, {(2**32 + 320) // 321}')
    k.I(f'v_mul_hi_u32 v{g}, v{idx}, s21')
    k.I(f'v_mul_u32_u24 v{a0}, 321, v{g}')
    k.I(f'v_sub_u32 v{t}, v{idx}, v{a0}')
    k.I(f'v_lshrrev_b32 v{a0}, 5, v{g}')
    k.I(f'v_and_b32 v{a1}, 31, v{g}')
    k.I(f'v_lshlrev_b32 v{src}, 7, v{a0}')
    k.I(f'v_add_u32 v{src}, v{src}, v{a1}')
    k.I(f'v_mul_u32_u24 v{src}, 1284, v{src}')
    k.I(f'v_lshl_add_u32 v{src}, v{t}, 1, v{src}')
    k.srd(24, 12, S * 321 * 2)
    k.srd(28, 14, S * 321 * 2)
    for r in range(1, 4): k.I(f's_mov_b32 s{40+r}, {41088*r}')
    for i in range(2):
        for r in range(4):
            so = f's{40+r}' if r else '0'
            k.I(f'buffer_load_ushort v{lr+4*i+r}, v{src}, s[24:27], {so} offen offset:{642*i}')
            k.I(f'buffer_load_ushort v{li+4*i+r}, v{src}, s[28:31], {so} offen offset:{642*i}')
    k.srd(32, 4, XT_SZ, WT)
    k.I(f'v_lshlrev_b32 v{dst}, 13, v{t}')
    k.I(f'v_lshl_add_u32 v{dst}, v{a0}, 8, v{dst}')
    k.I(f'v_lshrrev_b32 v{a0}, 3, v{a1}')
    k.I(f'v_lshl_add_u32 v{dst}, v{a0}, 11, v{dst}')
    k.I(f'v_and_b32 v{a1}, 7, v{a1}')
    k.I(f'v_lshl_add_u32 v{dst}, v{a1}, 5, v{dst}')
    k.I(f'v_cmp_gt_u32 vcc, 0x100, v{g}')
    k.I(f'v_cndmask_b32 v{dst}, -1, v{dst}, vcc')
    k.I(f'v_min_u32 v{dst}, 0x7fffff00, v{dst}')
    for i in range(2):
        for r in range(4):
            k.I(f'v_lshl_or_b32 v{lr+4*i+r}, v{li+4*i+r}, 16, v{lr+4*i+r}')
        k.I(f'buffer_store_dwordx4 {vr(lr+4*i,4)}, v{dst}, s[32:35], 0 offen offset:{16*i}')
    stamp_end(k, 0, 4)
    k.I('s_endpgm')
    k.label('LA_wd', fresh=True); k.restore_state(st)
    k.I(f's_cmp_ge_u32 s2, {A_NMOD + A_NWT + A_NWD}')
    k.I('s_cbranch_scc1 LA_exit')
    va = VAlloc()
    idx = va.get(); ch = va.get(); d4 = va.get(); a0 = va.get(); a1 = va.get(); a2 = va.get(); src = va.get(); dst = va.get()
    ld = va.get(16, 4); o = va.get(16, 4)
    k.I(f's_sub_u32 s20, s2, {A_NMOD + A_NWT}')
    k.I('s_lshl_b32 s20, s20, 9')
    k.I(f'v_add_u32 v{idx}, s20, v0')
    k.I(f's_mov_b32 s21, {(2**32 + 159) // 160}')
    k.I(f'v_mul_hi_u32 v{ch}, v{idx}, s21')
    k.I(f'v_mul_u32_u24 v{a0}, 160, v{ch}')
    k.I(f'v_sub_u32 v{d4}, v{idx}, v{a0}')
    k.I(f'v_lshrrev_b32 v{a0}, 1, v{ch}')
    k.I(f'v_and_b32 v{a1}, 1, v{ch}')
    k.I(f'v_lshl_add_u32 v{a0}, v{a0}, 2, v{a1}')
    k.I(f'v_mul_u32_u24 v{src}, 5120, v{a0}')
    k.I(f'v_lshl_add_u32 v{src}, v{d4}, 3, v{src}')
    k.srd(24, 6, F * D * 2)
    k.I(f's_mov_b32 s40, {8*1280}')
    for j in range(8):
        so = 's40' if j >= 4 else '0'
        k.I(f'buffer_load_dwordx2 {vr(ld+2*j,2)}, v{src}, s[24:27], {so} offen offset:{1280*(j&3)}')
    k.srd(32, 4, F * D * 2, WD)
    k.I(f'v_mul_u32_u24 v{a0}, 205, v{d4}')
    k.I(f'v_lshrrev_b32 v{a1}, 10, v{a0}')
    k.I(f'v_mul_u32_u24 v{a0}, 5, v{a1}')
    k.I(f'v_sub_u32 v{a0}, v{d4}, v{a0}')
    k.I(f'v_lshlrev_b32 v{dst}, 10, v{a0}')
    k.I(f'v_and_b32 v{a0}, 3, v{a1}')
    k.I(f'v_lshl_add_u32 v{dst}, v{a0}, 6, v{dst}')
    k.I(f'v_lshrrev_b32 v{a1}, 2, v{a1}')
    k.I(f'v_mul_u32_u24 v{a1}, 48, v{a1}')
    k.I(f'v_lshrrev_b32 v{a0}, 2, v{ch}')
    k.I(f'v_add_u32 v{a1}, v{a1}, v{a0}')
    k.I(f'v_mul_u32_u24 v{a1}, 5120, v{a1}')
    k.I(f'v_add_u32 v{dst}, v{dst}, v{a1}')
    k.I(f'v_and_b32 v{a0}, 3, v{ch}')
    k.I(f'v_lshl_add_u32 v{dst}, v{a0}, 8, v{dst}')
    k.I('s_mov_b32 s41, 0x05040100')
    k.I('s_mov_b32 s42, 0x07060302')
    for r in range(4):
        sel = 's41' if r % 2 == 0 else 's42'
        for jp in range(4):
            k.I(f'v_perm_b32 v{o+4*r+jp}, v{ld+2*(2*jp+1)+r//2}, v{ld+2*(2*jp)+r//2}, {sel}')
        k.I(f'buffer_store_dwordx4 {vr(o+4*r,4)}, v{dst}, s[32:35], 0 offen offset:{16*r}')
    stamp_end(k, 0, 4)
    k.I('s_endpgm')
    k.label('LA_exit', fresh=True)
    k.I('s_endpgm')
    return k, (A_NMOD + A_NWT + A_NWD, 512, 4096)

def bd_ids(k, vl):
    k.I('v_lshrrev_b32 v1, 6, v0')
    k.I(f'v_and_b32 v{vl}, 63, v0')
    k.I('v_readfirstlane_b32 s22, v1')
    k.I('s_and_b32 s20, s2, 7')
    k.I('s_lshr_b32 s21, s2, 2')
    k.I('s_and_b32 s21, s21, 8')
    k.I('s_add_u32 s20, s20, s21')
    k.I('s_lshr_b32 s21, s2, 3')
    k.I('s_and_b32 s21, s21, 3')
    k.I('s_lshr_b32 s24, s2, 6')
    k.I('s_lshl_b32 s24, s24, 2')
    k.I('s_add_u32 s21, s21, s24')
    k.I('s_lshl_b32 s23, s20, 7')
    k.I('s_lshl_b32 s24, s21, 1')
    k.I('s_add_u32 s23, s23, s24')
    k.I('s_and_b32 s24, s22, 1')
    k.I('s_lshl_b32 s24, s24, 6')
    k.I('s_add_u32 s23, s23, s24')
    k.I('s_lshr_b32 s24, s22, 1')
    k.I('s_add_u32 s23, s23, s24')
    k.I('s_lshr_b32 s25, s20, 2')
    k.I('s_lshl_b32 s25, s25, 11')
    k.I('s_lshr_b32 s24, s21, 3')
    k.I('s_lshl_b32 s24, s24, 10')
    k.I('s_add_u32 s25, s25, s24')
    k.I('s_and_b32 s24, s20, 3')
    k.I('s_lshl_b32 s24, s24, 8')
    k.I('s_add_u32 s25, s25, s24')
    k.I('s_and_b32 s24, s21, 7')
    k.I('s_lshl_b32 s24, s24, 5')
    k.I('s_add_u32 s25, s25, s24')
    k.I(f's_add_u32 s26, s25, {128*8192}')
    k.I(f's_add_u32 s27, s25, {256*8192}')

def gen_f40(k, va, fi, fq, inverse):
    base = va.get(62, 2)
    ta = va.get(4); tc = va.get(2); ts = va.get(2)
    k.I(f'v_mov_b32 v{base+60}, 0'); k.I(f'v_mov_b32 v{base+61}, 0')
    for T in range(3):
        k.I(f'v_add_f32 v{ta}, {fhex(16.0*T)}, v{fi}')
        k.I(f'v_mul_f32 v{ta}, {fhex(1.0/40)}, v{ta}')
        k.I(f'v_mul_f32 v{ta+1}, v{fq}, v{ta}')
        for e in range(10):
            p = e & 1
            k.I(f'v_fmamk_f32 v{ta+2+p}, v{ta}, {fhex(4.0*e)}, v{ta+1}')
            k.I(f'v_cos_f32 v{tc+p}, v{ta+2+p}')
            k.I(f'v_sin_f32 v{ts+p}, v{ta+2+p}')
            if e >= 1:
                gen_f40_pack(k, base, T, e - 1, tc, ts, inverse)
        gen_f40_pack(k, base, T, 9, tc, ts, inverse)
    return base
def gen_f40_pack(k, base, T, e, tc, ts, inverse):
    p = e & 1
    if not inverse:
        k.I(f'v_cvt_pk_bf16_f32 v{base+(2*T)*10+e}, v{tc+p}, v{ts+p}')
        k.I(f'v_cvt_pk_bf16_f32 v{base+(2*T+1)*10+e}, -v{ts+p}, v{tc+p}')
    else:
        k.I(f'v_cvt_pk_bf16_f32 v{base+(2*T)*10+e}, v{tc+p}, -v{ts+p}')
        k.I(f'v_cvt_pk_bf16_f32 v{base+(2*T+1)*10+e}, v{ts+p}, v{tc+p}')

def gen_tw640(k, va, fi, fq4):
    cs = va.get(12, 2); sn = va.get(12, 2); ta = va.get(2)
    for T in range(3):
        k.I(f'v_add_f32 v{ta}, {fhex(16.0*T)}, v{fi}')
        k.I(f'v_mul_f32 v{ta}, {fhex(1.0/640)}, v{ta}')
        k.I(f'v_mul_f32 v{ta+1}, v{fq4}, v{ta}')
        for r in range(4):
            if r == 0: k.I(f'v_mov_b32 v{sn+4*T}, v{ta+1}')
            else: k.I(f'v_fmamk_f32 v{sn+4*T+r}, v{ta}, {fhex(float(r))}, v{ta+1}')
        for r in range(4):
            k.I(f'v_cos_f32 v{cs+4*T+r}, v{sn+4*T+r}')
            k.I(f'v_sin_f32 v{sn+4*T+r}, v{sn+4*T+r}')
    return cs, sn

def gen_B():
    k = Kernel('kb_kernel')
    PL = 5184
    stamp_begin(k)
    k.I('s_cmp_ge_u32 s2, 256')
    k.I('s_cbranch_scc1 LB_exit')
    k.I(f's_load_dwordx2 s[4:5], s[0:1], {KA["ws"]}')
    k.I(f's_load_dwordx2 s[6:7], s[0:1], {KA["x"]}')
    va = VAlloc(2)
    vl = va.get(); xs = va.get(20, 2); md = va.get(20, 4); vo = va.get(); vo16 = va.get()
    for i in range(20): k.I(f'v_mov_b32 v{xs+i}, 0')
    bd_ids(k, vl)
    k.I('s_mul_i32 s28, s23, 1280')
    k.I(f's_add_u32 s29, s28, {32*1280}')
    k.I(f'v_lshlrev_b32 v{vo}, 1, v{vl}')
    k.I(f'v_lshlrev_b32 v{vo16}, 4, v{vl}')
    k.srd(8, 6, S * D * 2)
    k.srd(12, 4, 5120, MODB)
    for e in range(10):
        k.I(f'buffer_load_short_d16_hi v{xs+2*e}, v{vo}, s[8:11], s28 offen offset:{128*e}')
        k.I(f'buffer_load_short_d16_hi v{xs+2*e+1}, v{vo}, s[8:11], s29 offen offset:{128*e}')
    k.I('s_movk_i32 s30, 0x1000')
    for g in range(5):
        if g < 4: k.I(f'buffer_load_dwordx4 {vr(md+4*g,4)}, v{vo16}, s[12:15], 0 offen offset:{1024*g}')
        else: k.I(f'buffer_load_dwordx4 {vr(md+4*g,4)}, v{vo16}, s[12:15], s30 offen')
    k.srd(16, 4, XT_SZ, XT)
    fi = va.get(); fq = va.get(); fq4 = va.get(); vi = va.get(); vq = va.get()
    k.I(f'v_and_b32 v{vi}, 15, v{vl}')
    k.I(f'v_lshrrev_b32 v{vq}, 4, v{vl}')
    k.I(f'v_cvt_f32_u32 v{fi}, v{vi}')
    k.I(f'v_cvt_f32_u32 v{fq}, v{vq}')
    k.I(f'v_mul_f32 v{fq4}, 4.0, v{fq}')
    f40 = gen_f40(k, va, fi, fq, False)
    cs, sn = gen_tw640(k, va, fi, fq4)
    f16 = va.get(8, 2); tmp = va.get(8, 2); ta = va.get(4)
    k.I(f'v_lshrrev_b32 v{ta}, 1, v{vi}')
    k.I(f'v_cvt_f32_u32 v{ta}, v{ta}')
    k.I(f'v_and_b32 v{ta+1}, 1, v{vi}')
    k.I(f'v_cvt_f32_u32 v{ta+1}, v{ta+1}')
    k.I(f'v_mul_f32 v{ta+1}, 0x3e800000, v{ta+1}')
    for U in range(2):
        k.I(f'v_add_f32 v{ta+2}, {fhex(8.0*U)}, v{ta}')
        k.I(f'v_mul_f32 v{ta+2}, {fhex(1.0/16)}, v{ta+2}')
        k.I(f'v_fma_f32 v{ta+3}, v{fq4}, v{ta+2}, v{ta+1}')
        for j in range(4):
            k.I(f'v_fmamk_f32 v{tmp+4+j}, v{ta+2}, {fhex(float(j))}, v{ta+3}')
        for j in range(4):
            k.I(f'v_cos_f32 v{tmp+j}, v{tmp+4+j}')
            k.I(f'v_sin_f32 v{tmp+4+j}, v{tmp+4+j}')
        for j in range(4):
            k.I(f'v_cvt_pk_bf16_f32 v{f16+4*U+j}, v{tmp+2*j}, v{tmp+2*j+1}')
    wa = va.get(); ru = va.get(); rv = va.get(); so = va.get()
    k.I(f'v_mul_u32_u24 v{wa}, 80, v{vq}')
    k.I(f'v_add_lshl_u32 v{wa}, v{wa}, v{vi}, 3')
    k.I(f's_mul_i32 s31, s22, {PL}')
    k.I(f'v_add_u32 v{wa}, s31, v{wa}')
    k.I(f'v_and_b32 v{ta}, 1, v0')
    k.I(f'v_lshrrev_b32 v{ta+1}, 1, v0')
    k.I(f'v_mul_u32_u24 v{ru}, {2*PL}, v{ta}')
    k.I(f'v_sub_u32 v{rv}, 384, v{ta+1}')
    k.I(f'v_lshl_add_u32 v{rv}, v{rv}, 3, v{ru}')
    k.I(f'v_lshl_add_u32 v{ru}, v{ta+1}, 3, v{ru}')
    k.I(f'v_lshlrev_b32 v{so}, 13, v{ta+1}')
    k.I(f'v_lshl_add_u32 v{so}, v{ta}, 4, v{so}')
    dat = va.get(12, 2)
    k.I(f'v_mov_b32 v{dat+10}, 0'); k.I(f'v_mov_b32 v{dat+11}, 0')
    sm = va.get(2, 2); sq = va.get(2, 2); rr = va.get(2, 2); nmr = va.get(2, 2)
    k.I(f'v_pk_add_f32 {vr(sm,2)}, {vr(xs,2)}, {vr(xs+2,2)}')
    k.I(f'v_pk_mul_f32 {vr(sq,2)}, {vr(xs,2)}, {vr(xs,2)}')
    k.I(f'v_pk_fma_f32 {vr(sq,2)}, {vr(xs+2,2)}, {vr(xs+2,2)}, {vr(sq,2)}')
    for e in range(2, 10):
        k.I(f'v_pk_add_f32 {vr(sm,2)}, {vr(sm,2)}, {vr(xs+2*e,2)}')
        k.I(f'v_pk_fma_f32 {vr(sq,2)}, {vr(xs+2*e,2)}, {vr(xs+2*e,2)}, {vr(sq,2)}')
    wave_reduce_to_sgpr(k, [sm, sm+1, sq, sq+1], [32, 33, 34, 35])
    ln_scalars(k, 32, 34, rr, nmr, tmp)
    for e in range(10):
        k.I(f'v_pk_fma_f32 {vr(xs+2*e,2)}, {vr(xs+2*e,2)}, {vr(rr,2)}, {vr(nmr,2)}')
    for e in range(10):
        k.I(f'v_pk_fma_f32 {vr(xs+2*e,2)}, {vr(xs+2*e,2)}, {vr(md+2*e,2)}, {vr(md+2*e,2)} op_sel:[0,0,1] op_sel_hi:[1,0,1]')
    for e in range(10):
        k.I(f'v_cvt_pk_bf16_f32 v{dat+e}, v{xs+2*e}, v{xs+2*e+1}')
    d1 = va.get(24, 4)
    for T in range(3):
        for kap in range(3):
            for c in range(2):
                dd = vr(d1 + (2*T+c)*4, 4)
                k.I(f'{MF16} {dd}, {vr(dat+4*kap,4)}, {vr(f40+(2*T+c)*10+4*kap,4)}, {dd if kap else 0}')
    b2 = va.get(12, 2); d2 = va.get(24, 4)
    for T in range(3):
        cmul4(k, d1+8*T, d1+8*T+4, cs+4*T, sn+4*T, b2+4*T, tmp, False)
        for U in range(2):
            k.I(f'{MF16} {vr(d2+(2*T+U)*4,4)}, {vr(f16+4*U,4)}, {vr(b2+4*T,4)}, 0')
    k.I('s_mov_b32 s36, 0x00ff00ff')
    k.I('s_mov_b32 s37, 0x00ff00ff')
    for T in range(3):
        if T == 2: k.I('s_mov_b64 exec, s[36:37]')
        for U in range(2):
            for h in range(2):
                k.I(f'ds_write_b64 v{wa}, {vr(d2+(2*T+U)*4+2*h,2)} offset:{(16*T+320*U+40*h)*8}')
    k.I('s_mov_b64 exec, 1')
    k.I(f'ds_write_b64 v{wa}, {vr(d2,2)} offset:5120')
    k.I('s_mov_b64 exec, -1')
    k.barrier()
    rd = d1; oc = b2
    for rho in range(3):
        for pr in range(2):
            k.I(f'ds_read_b64 {vr(rd+8*rho+4*pr,2)}, v{ru} offset:{pr*PL+1024*rho}')
            k.I(f'ds_read_b64 {vr(rd+8*rho+4*pr+2,2)}, v{rv} offset:{pr*PL+1024*(2-rho)}')
    for rho in range(3):
        for pr in range(2):
            u = rd+8*rho+4*pr; v = u+2
            k.I(f'v_pk_add_f32 {vr(tmp+4*pr,2)}, {vr(u,2)}, {vr(v,2)}')
            k.I(f'v_pk_add_f32 {vr(tmp+4*pr+2,2)}, {vr(u,2)}, {vr(v,2)} neg_lo:[0,1] neg_hi:[0,1]')
        for pr in range(2):
            k.I(f'v_cvt_pk_bf16_f32 v{oc+4*rho+pr}, v{tmp+4*pr}, v{tmp+4*pr+1}')
            k.I(f'v_cvt_pk_bf16_f32 v{oc+4*rho+2+pr}, v{tmp+4*pr+3}, -v{tmp+4*pr+2}')
        k.I(f'buffer_store_dwordx4 {vr(oc+4*rho,4)}, v{so}, s[16:19], s{25+rho} offen')
    stamp_end(k, 1, 4)
    k.label('LB_exit')
    k.I('s_endpgm')
    return k, (256, 256, 4 * PL)

def pack_window(k, base, cs, sn, alt):
    def op(r, j, neg):
        n = neg ^ (alt and (j & 1))
        return ('-' if n else '') + f'v{r+j}'
    for p in range(2):
        k.I(f'v_cvt_pk_bf16_f32 v{base+p}, {op(sn,2*p,False)}, {op(sn,2*p+1,False)}')
        k.I(f'v_cvt_pk_bf16_f32 v{base+2+p}, {op(cs,2*p,False)}, {op(cs,2*p+1,False)}')
        k.I(f'v_cvt_pk_bf16_f32 v{base+4+p}, {op(sn,2*p,True)}, {op(sn,2*p+1,True)}')
    k.I(f'v_mov_b64 {vr(base+6,2)}, {vr(base+2,2)}')
    k.I(f'v_mov_b64 {vr(base+8,2)}, {vr(base,2)}')
W_INV_IM, W_INV_RE, W_FWD_IM, W_FWD_RE = 0, 2, 4, 6

def gen_C():
    k = Kernel('kc_kernel')
    stamp_begin(k)
    k.I('s_cmp_ge_u32 s2, 321')
    k.I('s_cbranch_scc1 LC_exit')
    k.I(f's_load_dwordx2 s[4:5], s[0:1], {KA["ws"]}')
    va = VAlloc(2)
    vl = va.get(); vo16 = va.get(); wq = va.get(8, 4)
    k.I('v_lshrrev_b32 v1, 6, v0')
    k.I(f'v_and_b32 v{vl}, 63, v0')
    k.I('v_readfirstlane_b32 s22, v1')
    k.I(f'v_lshlrev_b32 v{vo16}, 4, v{vl}')
    k.I('s_lshl_b32 s23, s22, 11')
    k.I('s_lshl_b32 s24, s2, 13')
    k.I('s_add_u32 s24, s24, s23')
    k.I('s_mov_b32 m0, s23')
    k.srd(8, 4, XT_SZ, XT)
    k.srd(12, 4, XT_SZ, WT)
    k.I(f'buffer_load_dwordx4 v{vo16}, s[8:11], s24 offen lds', tag='x')
    k.I(f'buffer_load_dwordx4 v{vo16}, s[8:11], s24 offen offset:1024 lds', tag='x')
    k.I(f'buffer_load_dwordx4 {vr(wq,4)}, v{vo16}, s[12:15], s24 offen')
    k.I(f'buffer_load_dwordx4 {vr(wq+4,4)}, v{vo16}, s[12:15], s24 offen offset:1024')
    k.I('s_cmp_eq_u32 s2, 0')
    k.I('s_cselect_b32 s25, 0, 1.0')
    k.I('s_cmp_eq_u32 s2, 320')
    k.I('s_cselect_b32 s25, 0, s25')
    fi = va.get(); fq4 = va.get(); fk = va.get(); sg = va.get(); fw16 = va.get()
    ta = va.get(2); tc = va.get(4, 2); ts = va.get(4, 2); tmp = va.get(8, 2)
    k.I(f'v_and_b32 v{fi}, 15, v{vl}')
    k.I(f'v_lshlrev_b32 v{sg}, 31, v{fi}')
    k.I(f'v_or_b32 v{sg}, 1.0, v{sg}')
    k.I(f'v_cvt_f32_u32 v{fi}, v{fi}')
    k.I(f'v_lshrrev_b32 v{fq4}, 4, v{vl}')
    k.I(f'v_lshlrev_b32 v{fq4}, 2, v{fq4}')
    k.I(f'v_cvt_f32_u32 v{fq4}, v{fq4}')
    k.I(f'v_lshlrev_b32 v{fw16}, 4, v1')
    k.I(f'v_cvt_f32_u32 v{fw16}, v{fw16}')
    k.I(f'v_add_f32 v{fk}, v{fw16}, v{fi}')
    def angles(step_expr_reg, scale, base_add, dst):
        k.I(f'v_mul_f32 v{ta}, {fhex(scale)}, v{step_expr_reg}')
        k.I(f'v_mul_f32 v{ta+1}, v{fq4}, v{ta}')
        for j in range(4):
            k.I(f'v_fmamk_f32 v{dst+j}, v{ta}, {fhex(float(base_add + j))}, v{ta+1}')
    def sincos(c, s):
        for j in range(4):
            k.I(f'v_cos_f32 v{c+j}, v{s+j}')
            k.I(f'v_sin_f32 v{s+j}, v{s+j}')
    def flip(c, s):
        for p in (0, 2):
            k.I(f'v_pk_mul_f32 {vr(c+p,2)}, {vr(c+p,2)}, {vr(sg2,2)} op_sel_hi:[1,0]')
            k.I(f'v_pk_mul_f32 {vr(s+p,2)}, {vr(s+p,2)}, {vr(sg2,2)} op_sel_hi:[1,0]')
    sg2 = va.get(2, 2)
    k.I(f'v_mov_b32 v{sg2}, v{sg}')
    f64 = va.get(40, 2); f32 = va.get(40, 2)
    for kap in range(2):
        angles(fk, 1.0/64, 16*kap, ts); sincos(tc, ts)
        pack_window(k, f64+10*kap, tc, ts, False)
        flip(tc, ts)
        pack_window(k, f64+10*(kap+2), tc, ts, False)
    c1 = va.get(8, 2); s1 = va.get(8, 2); c2 = va.get(8, 2); s2 = va.get(8, 2)
    for N in range(2):
        angles(fk, 1.0/2048, 16*N, s1+4*N); sincos(c1+4*N, s1+4*N)
    angles(fi, 1.0/32, 0, ts); sincos(tc, ts)
    pack_window(k, f32+0, tc, ts, False)
    pack_window(k, f32+20, tc, ts, True)
    flip(tc, ts)
    pack_window(k, f32+10, tc, ts, False)
    pack_window(k, f32+30, tc, ts, True)
    k.wait_tag('x')
    k.I('s_barrier')
    dat = va.get(32, 4)
    for kap in range(4):
        for N in range(2):
            k.I(f'ds_read_b128 {vr(dat+(2*kap+N)*4,4)}, v{vo16} offset:{2048*kap+1024*N}')
    acc = va.get(16, 4); acc2 = va.get(16, 4); pk = va.get(8, 4)
    for kap in range(4):
        for N in range(2):
            for c in range(2):
                dd = vr(acc+(2*N+c)*4, 4)
                k.I(f'{MF16} {dd}, {vr(dat+(2*kap+N)*4,4)}, {vr(f64+10*kap+(W_FWD_IM if c else W_FWD_RE),4)}, {dd if kap else 0}')
    fkq = va.get()
    k.I(f'v_add_f32 v{fkq}, v{fw16}, v{fq4}')
    for N in range(2):
        k.I(f'v_add_f32 v{ta}, {fhex(16.0*N)}, v{fi}')
        k.I(f'v_mul_f32 v{ta}, {fhex(1.0/2048)}, v{ta}')
        k.I(f'v_mul_f32 v{ta+1}, v{fkq}, v{ta}')
        for j in range(4):
            k.I(f'v_fmamk_f32 v{s2+4*N+j}, v{ta}, {fhex(float(j))}, v{ta+1}')
        sincos(c2+4*N, s2+4*N)
    for N in range(2):
        cmul4(k, acc+8*N, acc+8*N+4, c1+4*N, s1+4*N, pk+4*N, tmp, False)
    for N in range(2):
        for V in range(2):
            for c in range(2):
                dd = vr(acc2+(2*V+c)*4, 4)
                k.I(f'{MF16} {dd}, {vr(f32+(2*V+N)*10+(W_FWD_IM if c else W_FWD_RE),4)}, {vr(pk+4*N,4)}, {dd if N else 0}')
    wr_ = c1; wi_ = s1
    for j in range(8):
        k.I(f'v_lshlrev_b32 v{wr_+j}, 16, v{wq+j}')
        k.I(f'v_and_b32 v{wi_+j}, 0xffff0000, v{wq+j}')
    pk2 = va.get(8, 4)
    for V in range(2):
        cmul4(k, acc2+8*V, acc2+8*V+4, wr_+4*V, wi_+4*V, pk2+4*V, tmp, True)
    for V in range(2):
        for N in range(2):
            for c in range(2):
                dd = vr(acc+(2*N+c)*4, 4)
                k.I(f'{MF16} {dd}, {vr(pk2+4*V,4)}, {vr(f32+(2*N+V)*10+(W_INV_IM if c else W_INV_RE),4)}, {dd if V else 0}')
    wa = va.get()
    k.I(f'v_add_u32 v{wa}, s23, v{vo16}')
    for N in range(2):
        cmul4(k, acc+8*N, acc+8*N+4, c2+4*N, s2+4*N, pk+4*N, tmp, True)
        k.I(f'ds_write_b128 v{wa}, {vr(pk+4*N,4)} offset:{8192+1024*N}')
    k.barrier()
    for kap in range(4):
        for N in range(2):
            k.I(f'ds_read_b128 {vr(dat+(2*kap+N)*4,4)}, v{vo16} offset:{8192+2048*kap+1024*N}')
    for kap in range(4):
        for N in range(2):
            for c in range(2):
                dd = vr(acc2+(2*N+c)*4, 4)
                k.I(f'{MF16} {dd}, {vr(f64+10*kap+(W_INV_IM if c else W_INV_RE),4)}, {vr(dat+(2*kap+N)*4,4)}, {dd if kap else 0}')
    for N in range(2):
        re = acc2+8*N; im = re+4
        for p in range(2):
            a, b = 2*p, 2*p+1
            k.I(f'v_fma_f32 v{tmp+4*p+0}, -s25, v{im+b}, v{re+a}')
            k.I(f'v_fma_f32 v{tmp+4*p+1}, s25, v{im+a}, v{re+b}')
            k.I(f'v_fma_f32 v{tmp+4*p+2}, s25, v{im+b}, v{re+a}')
            k.I(f'v_fma_f32 v{tmp+4*p+3}, -s25, v{im+a}, v{re+b}')
        for j in range(4):
            k.I(f'v_cvt_pk_bf16_f32 v{pk2+4*N+j}, v{tmp+2*j}, v{tmp+2*j+1}')
        k.I(f'buffer_store_dwordx4 {vr(pk2+4*N,4)}, v{vo16}, s[8:11], s24 offen offset:{1024*N}')
    stamp_end(k, 2, 4)
    k.label('LC_exit')
    k.I('s_endpgm')
    return k, (321, 256, 16384)

def gen_D():
    k = Kernel('kd_kernel')
    PL = 2592
    stamp_begin(k)
    k.I('s_cmp_ge_u32 s2, 256')
    k.I('s_cbranch_scc1 LD_exit')
    k.I(f's_load_dwordx2 s[4:5], s[0:1], {KA["ws"]}')
    k.I(f's_load_dwordx2 s[6:7], s[0:1], {KA["x"]}')
    va = VAlloc(2)
    vl = va.get(); so = va.get(); ta = va.get(4); vi = va.get(); vq = va.get()
    ch = va.get(12, 4); xr = va.get(12, 2); mg = va.get(12, 4); mc = va.get(12, 4); ms = va.get(12, 4)
    xo = va.get(); xo2 = va.get(); mo = va.get()
    bd_ids(k, vl)
    k.I(f'v_and_b32 v{ta}, 1, v0')
    k.I(f'v_lshrrev_b32 v{ta+1}, 1, v0')
    k.I(f'v_lshlrev_b32 v{so}, 13, v{ta+1}')
    k.I(f'v_lshl_add_u32 v{so}, v{ta}, 4, v{so}')
    k.I(f'v_and_b32 v{vi}, 15, v{vl}')
    k.I(f'v_lshrrev_b32 v{vq}, 4, v{vl}')
    k.I(f'v_mul_u32_u24 v{xo}, 80, v{vi}')
    k.I(f'v_lshl_add_u32 v{xo}, v{vq}, 3, v{xo}')
    k.I(f'v_lshlrev_b32 v{mo}, 1, v{xo}')
    k.I(f'v_cmp_gt_u32 vcc, 32, v{vl}')
    k.I(f'v_mov_b32 v{xo2}, 0x7fff0000')
    k.I(f'v_cndmask_b32 v{xo2}, v{xo2}, v{xo}, vcc')
    k.I('s_mul_i32 s28, s23, 1280')
    k.I(f's_add_u32 s29, s28, {32*1280}')
    k.srd(16, 4, XT_SZ, XT)
    for rho in range(3):
        k.I(f'buffer_load_dwordx4 {vr(ch+4*rho,4)}, v{so}, s[16:19], s{25+rho} offen')
    k.srd(8, 6, S * D * 2)
    k.srd(12, 4, 6 * D * 4, MODN)
    for T in range(3):
        for c in range(2):
            k.I(f'buffer_load_dwordx2 {vr(xr+(2*T+c)*2,2)}, v{xo2 if T == 2 else xo}, s[8:11], s{28+c} offen offset:{32*T}')
    k.I(f's_movk_i32 s30, {2*2560}')
    k.I(f's_movk_i32 s31, {3*2560}')
    k.I(f's_movk_i32 s32, {4*2560}')
    for T in range(3):
        k.I(f'buffer_load_dwordx4 {vr(mg+4*T,4)}, v{mo}, s[12:15], s30 offen offset:{64*T}')
        k.I(f'buffer_load_dwordx4 {vr(ms+4*T,4)}, v{mo}, s[12:15], s31 offen offset:{64*T}')
        k.I(f'buffer_load_dwordx4 {vr(mc+4*T,4)}, v{mo}, s[12:15], s32 offen offset:{64*T}')
    fi = va.get(); fq = va.get(); fq4 = va.get()
    k.I(f'v_cvt_f32_u32 v{fi}, v{vi}')
    k.I(f'v_cvt_f32_u32 v{fq}, v{vq}')
    k.I(f'v_mul_f32 v{fq4}, 4.0, v{fq}')
    wu = va.get(); wv = va.get(); ra = va.get()
    k.I(f'v_mul_u32_u24 v{wu}, {2*PL}, v{ta}')
    k.I(f'v_sub_u32 v{wv}, 384, v{ta+1}')
    k.I(f'v_lshl_add_u32 v{wv}, v{wv}, 2, v{wu}')
    k.I(f'v_lshl_add_u32 v{wu}, v{ta+1}, 2, v{wu}')
    k.I(f's_mul_i32 s33, s22, {PL}')
    k.I(f'v_lshl_add_u32 v{ra}, v{vl}, 2, s33')
    k.I(f'v_cmp_ge_u32 s[34:35], 64, v{ta+1}')
    f40 = gen_f40(k, va, fi, fq, True)
    for rho in range(3):
        if rho == 2: k.I('s_mov_b64 exec, s[34:35]')
        for pr in range(2):
            k.I(f'ds_write_b32 v{wu}, v{ch+4*rho+2*pr} offset:{pr*PL+512*rho}')
            k.I(f'ds_write_b32 v{wv}, v{ch+4*rho+2*pr+1} offset:{pr*PL+512*(2-rho)}')
    k.I('s_mov_b64 exec, -1')
    k.barrier()
    dat = va.get(12, 2)
    for p in range(5):
        k.I(f'ds_read2st64_b32 {vr(dat+2*p,2)}, v{ra} offset0:{2*p} offset1:{2*p+1}')
    k.I(f'v_mov_b32 v{dat+10}, 0'); k.I(f'v_mov_b32 v{dat+11}, 0')
    d1 = va.get(24, 4)
    for T in range(3):
        for kap in range(3):
            for c in range(2):
                dd = vr(d1 + (2*T+c)*4, 4)
                k.I(f'{MF16} {dd}, {vr(dat+4*kap,4)}, {vr(f40+(2*T+c)*10+4*kap,4)}, {dd if kap else 0}')
    cs, sn = gen_tw640(k, va, fi, fq4)
    k.I(f'v_cmp_gt_u32 vcc, 8, v{vi}')
    for r in range(4):
        k.I(f'v_cndmask_b32 v{cs+8+r}, 0, v{cs+8+r}, vcc')
        k.I(f'v_cndmask_b32 v{sn+8+r}, 0, v{sn+8+r}, vcc')
    f16 = va.get(6, 2); tmp = va.get(8, 2)
    k.I(f'v_mul_f32 v{ta+2}, {fhex(1.0/16)}, v{fi}')
    k.I(f'v_mul_f32 v{ta+3}, v{fq4}, v{ta+2}')
    for j in range(4): k.I(f'v_fmamk_f32 v{tmp+4+j}, v{ta+2}, {fhex(float(j))}, v{ta+3}')
    for j in range(4):
        k.I(f'v_cos_f32 v{tmp+j}, v{tmp+4+j}')
        k.I(f'v_sin_f32 v{tmp+4+j}, v{tmp+4+j}')
    for p in range(2):
        k.I(f'v_cvt_pk_bf16_f32 v{f16+p}, v{tmp+4+2*p}, v{tmp+5+2*p}')
        k.I(f'v_cvt_pk_bf16_f32 v{f16+2+p}, v{tmp+2*p}, v{tmp+1+2*p}')
        k.I(f'v_cvt_pk_bf16_f32 v{f16+4+p}, -v{tmp+4+2*p}, -v{tmp+5+2*p}')
    a2 = ch; d2 = va.get(24, 4); xf = f40
    for T in range(3):
        cmul4(k, d1+8*T, d1+8*T+4, cs+4*T, sn+4*T, a2+4*T, tmp, True)
        for c in range(2):
            k.I(f'{MF16} {vr(d2+(2*T+c)*4,4)}, {vr(a2+4*T,4)}, {vr(f16+(0 if c else 2),4)}, 0')
    for i in range(12):
        k.I(f'v_lshlrev_b32 v{xf+2*i}, 16, v{xr+i}')
        k.I(f'v_and_b32 v{xf+2*i+1}, 0xffff0000, v{xr+i}')
    oh = va.get(); ox = va.get()
    k.I(f'v_lshrrev_b32 v{ta}, 1, v{vq}')
    k.I(f'v_and_b32 v{ta+1}, 1, v{vq}')
    k.I(f'v_mad_u32_u24 v{oh}, v{vi}, 5, v{ta}')
    k.I(f'v_lshlrev_b32 v{ox}, 4, v{oh}')
    k.I(f'v_lshlrev_b32 v{oh}, 9, v{oh}')
    k.I(f'v_lshl_add_u32 v{oh}, v{ta+1}, 4, v{oh}')
    k.I(f'v_mul_u32_u24 v{ta+1}, {32*1280}, v{ta+1}')
    k.I(f'v_add_u32 v{ox}, v{ox}, v{ta+1}')
    k.srd(36, 4, S * D * 2, H2)
    k.srd(40, 4, S * D * 2, X1)
    k.I('s_lshl_b32 s44, s20, 2')
    k.I('s_lshr_b32 s45, s21, 2')
    k.I('s_add_u32 s44, s44, s45')
    k.I('s_mul_i32 s44, s44, 40960')
    k.I('s_and_b32 s45, s21, 3')
    k.I('s_lshl_b32 s45, s45, 7')
    k.I('s_add_u32 s44, s44, s45')
    k.I('s_lshl_b32 s45, s22, 5')
    k.I('s_add_u32 s44, s44, s45')
    for T in range(3):
        for c in range(2):
            for p in (0, 2):
                r = (2*T+c)*4+p
                k.I(f'v_pk_fma_f32 {vr(xf+r,2)}, {vr(d2+r,2)}, {vr(mg+4*T+p,2)}, {vr(xf+r,2)}')
    st_ = f40 + 24
    first = True
    for T in range(3):
        for p in (0, 2):
            for c in range(2):
                r = xf+(2*T+c)*4+p
                if first:
                    k.I(f'v_mov_b64 {vr(st_+2*c,2)}, {vr(r,2)}')
                    k.I(f'v_pk_mul_f32 {vr(st_+4+2*c,2)}, {vr(r,2)}, {vr(r,2)}')
                else:
                    k.I(f'v_pk_add_f32 {vr(st_+2*c,2)}, {vr(st_+2*c,2)}, {vr(r,2)}')
                    k.I(f'v_pk_fma_f32 {vr(st_+4+2*c,2)}, {vr(r,2)}, {vr(r,2)}, {vr(st_+4+2*c,2)}')
            first = False
    for i in range(4): k.I(f'v_add_f32 v{st_+2*i}, v{st_+2*i}, v{st_+2*i+1}')
    wave_reduce_to_sgpr(k, [st_, st_+2, st_+4, st_+6], [46, 47, 48, 49])
    po = d1; ph = d1 + 12
    rr = f40 + 32; nmr = f40 + 34
    ln_scalars(k, 46, 48, rr, nmr, tmp)
    for T in range(3):
        for j in range(4):
            k.I(f'v_cvt_pk_bf16_f32 v{po+4*T+j}, v{xf+8*T+2*j}, v{xf+8*T+2*j+1}')
    for T in range(3):
        for c in range(2):
            for p in (0, 2):
                r = xf+(2*T+c)*4+p
                k.I(f'v_pk_fma_f32 {vr(r,2)}, {vr(r,2)}, {vr(rr,2)}, {vr(nmr,2)} op_sel:[0,{c},{c}] op_sel_hi:[1,{c},{c}]')
    for T in range(3):
        k.I(f'v_permlane16_swap_b32 v{po+4*T}, v{po+4*T+2}')
        k.I(f'v_permlane16_swap_b32 v{po+4*T+1}, v{po+4*T+3}')
    for T in range(3):
        for c in range(2):
            for p in (0, 2):
                r = xf+(2*T+c)*4+p
                k.I(f'v_pk_fma_f32 {vr(r,2)}, {vr(r,2)}, {vr(mc+4*T+p,2)}, {vr(ms+4*T+p,2)}')
    for T in range(3):
        for j in range(4):
            k.I(f'v_cvt_pk_bf16_f32 v{ph+4*T+j}, v{xf+8*T+2*j}, v{xf+8*T+2*j+1}')
    for T in range(3):
        k.I(f'v_permlane16_swap_b32 v{ph+4*T}, v{ph+4*T+2}')
        k.I(f'v_permlane16_swap_b32 v{ph+4*T+1}, v{ph+4*T+3}')
    for T in range(3):
        if T == 2: k.I('s_mov_b32 exec_hi, 0')
        k.I(f'buffer_store_dwordx4 {vr(ph+4*T,4)}, v{oh}, s[36:39], s44 offen offset:{1024*T}')
        k.I(f'buffer_store_dwordx4 {vr(po+4*T,4)}, v{ox}, s[40:43], s28 offen offset:{32*T}')
    stamp_end(k, 3, 4)
    k.label('LD_exit')
    k.I('s_endpgm')
    return k, (256, 256, 4 * PL)

E_NS = 7; E_ST = 20480
def gen_E():
    k = Kernel('ke_kernel')
    stamp_begin(k)
    k.I('s_cmp_ge_u32 s2, 256')
    k.I('s_cbranch_scc1 LE_exit')
    k.I(f's_load_dwordx2 s[4:5], s[0:1], {KA["ws"]}')
    k.I(f's_load_dwordx4 s[8:11], s[0:1], {KA["wg"]}')
    k.I('v_lshrrev_b32 v1, 6, v0')
    k.I('v_and_b32 v2, 63, v0')
    k.I('v_readfirstlane_b32 s22, v1')
    k.I('s_and_b32 s20, s2, 1')
    k.I('s_lshl_b32 s20, s20, 3')
    k.I('s_lshr_b32 s23, s2, 3')
    k.I('s_and_b32 s23, s23, 7')
    k.I('s_add_u32 s20, s20, s23')
    k.I('s_and_b32 s21, s2, 6')
    k.I('s_lshl_b32 s21, s21, 1')
    k.I('s_lshr_b32 s23, s2, 6')
    k.I('s_add_u32 s21, s21, s23')
    k.I('s_cmp_ge_u32 s22, 4')
    st = k.save_state()
    k.I('s_cbranch_scc1 LE_load')
    va = VAlloc(3)
    aa = va.get(); ao = va.get(); ab = va.get(); t0 = va.get(); t1 = va.get(); t2 = va.get()
    fr = [va.get(20, 4), va.get(20, 4)]
    acc = va.get(96, 4)
    k.I('s_and_b32 s24, s22, 1')
    k.I('s_lshr_b32 s25, s22, 1')
    k.I(f'v_lshrrev_b32 v{t0}, 5, v2')
    k.I(f'v_bfe_u32 v{t1}, v2, 2, 2')
    k.I(f'v_lshl_add_u32 v{t0}, v{t0}, 3, v{t1}')
    k.I(f'v_mul_u32_u24 v{aa}, 192, v{t0}')
    k.I(f'v_and_b32 v{t1}, 3, v2')
    k.I(f'v_lshl_add_u32 v{aa}, v{t1}, 3, v{aa}')
    k.I(f'v_bfe_u32 v{t1}, v2, 4, 1')
    k.I(f'v_mul_u32_u24 v{t2}, {6144+32}, v{t1}')
    k.I(f'v_add_u32 v{aa}, v{aa}, v{t2}')
    k.I('s_mul_i32 s26, s24, 96')
    k.I(f'v_add_u32 v{aa}, s26, v{aa}')
    k.I('s_mul_i32 s26, s24, 192')
    k.I(f'v_mul_u32_u24 v{t2}, s26, v{t1}')
    k.I(f'v_sub_u32 v{ao}, v{aa}, v{t2}')
    k.I(f'v_lshlrev_b32 v{ab}, 4, v2')
    k.I('s_lshl_b32 s26, s25, 12')
    k.I(f's_add_u32 s26, s26, 12288')
    k.I(f'v_add_u32 v{ab}, s26, v{ab}')
    aa2 = va.get(); ao2 = va.get(); ab2 = va.get(); aa3 = va.get(); ao3 = va.get(); ab3 = va.get()
    for (d_, s_) in ((aa2, aa), (ao2, ao), (ab2, ab)): k.I(f'v_add_u32 v{d_}, {3*E_ST}, v{s_}')
    for (d_, s_) in ((aa3, aa), (ao3, ao), (ab3, ab)): k.I(f'v_add_u32 v{d_}, {6*E_ST}, v{s_}')
    bases = [(aa, ao, ab), (aa2, ao2, ab2), (aa3, ao3, ab3)]
    def reads(sig, kap):
        slot = sig % E_NS
        ba, bo, bb = bases[slot // 3]; off = (slot % 3) * E_ST
        f = fr[kap]
        out = []
        for nt in range(2):
            out.append(f'ds_read_b128 {vr(f+12+4*nt,4)}, v{bb} offset:{off+2048*nt+1024*kap}')
        for mt in range(3):
            for hf in range(2):
                out.insert(len(out) if (mt or hf) else 1, f'ds_read_b64_tr_b16 {vr(f+4*mt+2*hf,2)}, v{bo if mt == 2 else ba} offset:{off+(16*kap+4*hf)*192+32*mt}')
        return out
    def mfmas(kap, first):
        f = fr[kap]; out = []
        for mt in range(3):
            for nt in range(2):
                dd = vr(acc+(2*mt+nt)*16, 16)
                out.append(f'{MF32} {dd}, {vr(f+4*mt,4)}, {vr(f+12+4*nt,4)}, {0 if first else dd}')
        return out
    oo = va.get()
    k.I(f'v_bfe_u32 v{t0}, v2, 4, 1')
    k.I(f'v_mul_u32_u24 v{oo}, 49152, v{t0}')
    k.I(f'v_lshrrev_b32 v{t0}, 5, v2')
    k.I(f'v_lshl_add_u32 v{oo}, v{t0}, 8, v{oo}')
    k.I(f'v_and_b32 v{t0}, 15, v2')
    k.I(f'v_lshl_add_u32 v{oo}, v{t0}, 4, v{oo}')
    k.srd(12, 4, S * F * 2, HH)
    k.I('s_lshl_b32 s27, s20, 1')
    k.I('s_add_u32 s27, s27, s25')
    k.I(f's_mul_i32 s27, s27, {4*49152}')
    k.I('s_lshl_b32 s28, s21, 1')
    k.I('s_add_u32 s28, s28, s24')
    k.I(f's_mul_i32 s28, s28, {3*512}')
    k.I('s_add_u32 s27, s27, s28')
    k.I(f's_add_u32 s28, s27, {2*49152}')
    def interleave(ms, rs, barrier_after=None):
        ri = 0
        for i, m in enumerate(ms):
            k.I(m)
            n = 2 if ri + 2 <= len(rs) else len(rs) - ri
            for _ in range(n):
                k.I(rs[ri]); ri += 1
            if barrier_after == i: k.barrier()
    k.I('s_barrier')
    for r in reads(0, 0): k.I(r)
    for sig in range(20):
        interleave(mfmas(0, sig == 0), reads(sig, 1), barrier_after=5 if sig < 19 else None)
        interleave(mfmas(1, False), reads(sig + 1, 0) if sig < 19 else [])
    pk = fr[0]
    for mt in range(3):
        for nt in range(2):
            a = acc+(2*mt+nt)*16
            for p in range(4):
                k.I(f'v_pk_mul_f32 {vr(a+2*p,2)}, {vr(a+2*p,2)}, {vr(a+8+2*p,2)}')
            for p in range(4):
                k.I(f'v_cvt_pk_bf16_f32 v{a+8+p}, v{a+2*p}, v{a+2*p+1}')
            k.I(f'buffer_store_dwordx4 {vr(a+8,4)}, v{oo}, s[12:15], s{27+nt} offen offset:{512*mt}')
    stamp_end(k, 4, 4)
    k.I('s_endpgm')
    k.label('LE_load', fresh=True); k.restore_state(st)
    k.I('s_sub_u32 s22, s22, 4')
    va = VAlloc(3)
    wo = va.get(3); ho = va.get(); t0 = va.get(); t1 = va.get(); t2 = va.get()
    k.I('s_lshr_b32 s24, s22, 1')
    k.I('s_mul_i32 s25, s24, 10')
    for p in range(3):
        k.I(f'v_add_u32 v{t0}, {64*p}, v2')
        k.I(f'v_mul_u32_u24 v{t1}, 171, v{t0}')
        k.I(f'v_lshrrev_b32 v{t1}, 11, v{t1}')
        k.I(f'v_mul_u32_u24 v{t2}, 12, v{t1}')
        k.I(f'v_sub_u32 v{t0}, v{t0}, v{t2}')
        k.I(f'v_add_u32 v{t0}, s25, v{t0}')
        k.I(f'v_subrev_u32 v{t2}, 12, v{t0}')
        k.I(f'v_min_u32 v{t0}, v{t0}, v{t2}')
        k.I(f'v_mul_u32_u24 v{wo+p}, 3072, v{t1}')
        k.I(f'v_lshl_add_u32 v{wo+p}, v{t0}, 4, v{wo+p}')
        if p: k.I(f'v_subrev_u32 v{wo+p}, {1024*p}, v{wo+p}')
    k.I(f'v_lshlrev_b32 v{ho}, 4, v2')
    k.I('s_cmp_eq_u32 s24, 0')
    k.I('s_cselect_b32 s12, s8, s10')
    k.I('s_cselect_b32 s13, s9, s11')
    k.I(f's_mov_b32 s14, {D*F*2}')
    k.I('s_mov_b32 s15, 0x00020000')
    k.srd(16, 4, S * D * 2, H2)
    k.I('s_and_b32 s26, s22, 1')
    k.I(f's_mul_i32 s26, s26, {16*3072}')
    k.I('s_mul_i32 s27, s21, 192')
    k.I('s_add_u32 s26, s26, s27')
    k.I('s_lshl_b32 s27, s20, 2')
    k.I('s_add_u32 s27, s27, s22')
    k.I('s_mul_i32 s27, s27, 40960')
    k.I('s_mul_i32 s28, s22, 3072')
    k.I('s_lshl_b32 s29, s22, 11')
    k.I('s_add_u32 s29, s29, 12288')
    def issue(sig):
        slot = sig % E_NS
        k.I(f's_add_u32 m0, s29, {slot*E_ST}')
        k.I(f'buffer_load_dwordx4 v{ho}, s[16:19], s27 offen lds', tag=sig)
        k.I(f'buffer_load_dwordx4 v{ho}, s[16:19], s27 offen offset:1024 lds', tag=sig)
        k.I(f's_add_u32 m0, s28, {slot*E_ST}')
        k.I('s_add_u32 s27, s27, 2048')
        for p in range(3):
            k.I(f'buffer_load_dwordx4 v{wo+p}, s[12:15], s26 offen offset:{1024*p} lds', tag=sig)
        k.I(f's_add_u32 s26, s26, {32*3072}')
    for sig in range(E_NS): issue(sig)
    for sig in range(20):
        k.wait_tag(sig)
        k.I('s_barrier')
        if sig >= 1 and sig - 1 + E_NS < 20: issue(sig - 1 + E_NS)
    k.label('LE_exit')
    k.I('s_endpgm')
    return k, (256, 512, E_NS * E_ST)

F_DEPTH = 6
def gen_F():
    k = Kernel('kf_kernel')
    stamp_begin(k)
    k.I('s_cmp_ge_u32 s2, 256')
    k.I('s_cbranch_scc1 LF_exit')
    k.I(f's_load_dwordx2 s[4:5], s[0:1], {KA["ws"]}')
    k.I(f's_load_dwordx2 s[6:7], s[0:1], {KA["out"]}')
    k.I('v_lshrrev_b32 v1, 6, v0')
    k.I('v_and_b32 v2, 63, v0')
    k.I('v_readfirstlane_b32 s22, v1')
    k.I('s_and_b32 s20, s2, 7')
    k.I('s_lshl_b32 s20, s20, 2')
    k.I('s_lshr_b32 s23, s2, 6')
    k.I('s_add_u32 s20, s20, s23')
    k.I('s_lshr_b32 s21, s2, 3')
    k.I('s_and_b32 s21, s21, 7')
    va = VAlloc(3)
    vo = va.get(); t0 = va.get(); t1 = va.get(); t2 = va.get(); oo = va.get(); go = va.get()
    x1r = va.get(10, 2); gb = va.get(20, 4)
    buf = [va.get(36, 4) for _ in range(F_DEPTH)]
    k.I(f'v_lshlrev_b32 v{vo}, 4, v2')
    for i in range(4):
        k.I(f's_add_u32 s{24+i}, s22, {i}')
        k.I(f's_and_b32 s{24+i}, s{24+i}, 3')
        k.I(f's_lshl_b32 s23, s20, 2')
        k.I(f's_add_u32 s{24+i}, s{24+i}, s23')
        k.I(f's_mul_i32 s{24+i}, s{24+i}, 49152')
        k.I(f's_mul_i32 s23, s22, {12*1024}')
        k.I(f's_add_u32 s{24+i}, s{24+i}, s23')
    k.I('s_mul_i32 s28, s21, 48')
    k.I('s_mul_i32 s23, s22, 12')
    k.I('s_add_u32 s28, s28, s23')
    k.I('s_mul_i32 s28, s28, 5120')
    k.I('s_add_u32 s29, s28, 4096')
    k.srd(8, 4, S * F * 2, HH)
    k.srd(12, 4, F * D * 2, WD)
    def loads(kp):
        b = buf[kp % F_DEPTH]; out = []
        for i in range(4):
            out.append(f'buffer_load_dwordx4 {vr(b+20+4*i,4)}, v{vo}, s[8:11], s{24+i} offen offset:{1024*(kp%4)}')
        for dt in range(5):
            if dt < 4: out.insert(min(2*dt, len(out)), f'buffer_load_dwordx4 {vr(b+4*dt,4)}, v{vo}, s[12:15], s28 offen offset:{1024*dt}')
            else: out.append(f'buffer_load_dwordx4 {vr(b+4*dt,4)}, v{vo}, s[12:15], s29 offen')
        out.append('s_add_u32 s28, s28, 5120')
        out.append('s_add_u32 s29, s29, 5120')
        if kp % 4 == 3:
            for i in range(4): out.append(f's_add_u32 s{24+i}, s{24+i}, 4096')
        return out
    for kp in range(F_DEPTH):
        for l in loads(kp): k.I(l)
    k.I('s_lshl_b32 s30, s20, 2')
    k.I('s_add_u32 s30, s30, s22')
    k.I('s_lshr_b32 s31, s30, 3')
    k.I('s_lshl_b32 s31, s31, 7')
    k.I('s_and_b32 s30, s30, 7')
    k.I('s_lshl_b32 s30, s30, 2')
    k.I('s_add_u32 s31, s31, s30')
    k.I('s_mul_i32 s31, s31, 1280')
    k.I('s_mul_i32 s30, s21, 160')
    k.I('s_add_u32 s31, s31, s30')
    k.I(f'v_and_b32 v{t0}, 3, v2')
    k.I(f'v_lshlrev_b32 v{t0}, 5, v{t0}')
    k.I(f'v_bfe_u32 v{t1}, v2, 2, 2')
    k.I(f'v_add_u32 v{t0}, v{t0}, v{t1}')
    k.I(f'v_mul_u32_u24 v{oo}, 1280, v{t0}')
    k.I(f'v_lshrrev_b32 v{t1}, 4, v2')
    k.I(f'v_mul_u32_u24 v{go}, 40, v{t1}')
    k.I(f'v_add_u32 v{oo}, v{oo}, v{go}')
    k.I(f'v_lshlrev_b32 v{go}, 1, v{go}')
    k.srd(16, 4, S * D * 2, X1)
    k.srd(32, 4, 6 * D * 4, MODN)
    k.srd(36, 6, S * D * 2)
    k.I('s_lshl_b32 s30, s30, 1')
    k.I(f's_add_u32 s30, s30, {5*2560}')
    epi = [f'buffer_load_dwordx4 {vr(x1r,4)}, v{oo}, s[16:19], s31 offen',
           f'buffer_load_dwordx4 {vr(x1r+4,4)}, v{oo}, s[16:19], s31 offen offset:16',
           f'buffer_load_dwordx2 {vr(x1r+8,2)}, v{oo}, s[16:19], s31 offen offset:32']
    epi += [f'buffer_load_dwordx4 {vr(gb+4*dt,4)}, v{go}, s[32:35], s30 offen offset:{16*dt}' for dt in range(5)]
    for kp in range(12):
        b = buf[kp % F_DEPTH]
        nxt = loads(kp - 1 + F_DEPTH) if (kp >= 1 and kp - 1 + F_DEPTH < 12) else (epi if kp == 12 - F_DEPTH + 1 else [])
        li = 0; n = 0
        for i in range(4):
            for dt in range(5):
                dd = ar((5*i+dt)*4, 4)
                k.I(f'{MF16} {dd}, {vr(b+4*dt,4)}, {vr(b+20+4*i,4)}, {dd if kp else 0}')
                n += 1
                if n % 2 == 0 and li < len(nxt):
                    k.I(nxt[li]); li += 1
        while li < len(nxt): k.I(nxt[li]); li += 1
    for i in range(1, 4):
        k.I(f's_add_u32 s40, s22, {i}')
        k.I('s_and_b32 s40, s40, 3')
        k.I(f's_mul_i32 s40, s40, {15*1024}')
        k.I(f'v_add_u32 v{t0}, s40, v{vo}')
        for dt in range(5):
            k.I(f'ds_write_b128 v{t0}, {ar((5*i+dt)*4,4)} offset:{((i-1)*5+dt)*1024}')
    k.I(f's_mul_i32 s40, s22, {15*1024}')
    k.I(f'v_add_u32 v{t0}, s40, v{vo}')
    own = buf[0]; xf = buf[1]
    for j in range(20): k.I(f'v_accvgpr_read_b32 v{own+j}, a{j}')
    for j in range(10):
        k.I(f'v_lshlrev_b32 v{xf+2*j}, 16, v{x1r+j}')
        k.I(f'v_and_b32 v{xf+2*j+1}, 0xffff0000, v{x1r+j}')
    k.barrier()
    rd = buf[2]
    for dt in range(5):
        for i in range(3):
            k.I(f'ds_read_b128 {vr(rd+(3*dt+i)*4,4)}, v{t0} offset:{(i*5+dt)*1024}')
    for dt in range(5):
        for p in (0, 2):
            o_ = own+4*dt+p
            k.I(f'v_pk_add_f32 {vr(o_,2)}, {vr(o_,2)}, {vr(rd+(3*dt)*4+p,2)}')
            k.I(f'v_pk_add_f32 {vr(rd+(3*dt+1)*4+p,2)}, {vr(rd+(3*dt+1)*4+p,2)}, {vr(rd+(3*dt+2)*4+p,2)}')
        for p in (0, 2):
            o_ = own+4*dt+p
            k.I(f'v_pk_add_f32 {vr(o_,2)}, {vr(o_,2)}, {vr(rd+(3*dt+1)*4+p,2)}')
        for p in (0, 2):
            o_ = own+4*dt+p
            k.I(f'v_pk_fma_f32 {vr(o_,2)}, {vr(o_,2)}, {vr(gb+4*dt+p,2)}, {vr(xf+4*dt+p,2)}')
        for p in (0, 2):
            k.I(f'v_cvt_pk_bf16_f32 v{x1r+2*dt+p//2}, v{own+4*dt+p}, v{own+4*dt+p+1}')
    k.I(f'buffer_store_dwordx4 {vr(x1r,4)}, v{oo}, s[36:39], s31 offen')
    k.I(f'buffer_store_dwordx4 {vr(x1r+4,4)}, v{oo}, s[36:39], s31 offen offset:16')
    k.I(f'buffer_store_dwordx2 {vr(x1r+8,2)}, v{oo}, s[36:39], s31 offen offset:32')
    stamp_end(k, 5, 4)
    k.label('LF_exit')
    k.I('s_endpgm')
    return k, (256, 256, 60 * 1024)

HEADER = open('adaLN_cond__spectral_gfnet__glu_gated_bilinear__prompt.s.ref').read().split('; Override launch')[0]

def build(path, gens=None):
    ks = [g() for g in (gens or (gen_A, gen_B, gen_C, gen_D, gen_E, gen_F))]
    s = HEADER
    for k, (g, b, l) in ks:
        s += f'; @launch kernel={k.name} grid=({g},1,1) block=({b},1,1) lds={l}\n'
    s += '.amdgcn_target "amdgcn-amd-amdhsa--gfx950"\n.text\n'
    for k, _ in ks: s += k.text()
    s += '.section .rodata,"a"\n'
    for k, _ in ks: s += k.descriptor()
    open(path, 'w').write(s)
    for k, cfg in ks: print(k.name, cfg, 'instrs', k.nins, 'vgpr', k.maxv + 1, 'agpr', k.maxa + 1, 'sgpr', k.maxs + 1)

if __name__ == '__main__':
    out = sys.argv[1] if len(sys.argv) > 1 else 'adaLN_cond__spectral_gfnet__glu_gated_bilinear__prompt.s'
    if len(sys.argv) > 2 and sys.argv[2] == 'stamps': STAMPS = True
    build(out)
```

```python
import sys, math
from asmlib import *

S, D, F = 2048, 640, 1536
KA = dict(x=0, wr=8, wi=16, bx=24, wg=32, wu=40, wd=48, c=56, wmod=64, out=72, dbg=80, ws=88)
MODN = 0
MODB = 16384
STAMP = 0x8000
XT = 0x10000;  XT_SZ = 321 * 8192
WT = 0x2A0000
H2 = 0x540000
X1 = 0x7C0000
HH = 0xA40000
WD = 0x1040000
WS_END = 0x1220000
STAMPS = False

def stamp_begin(k):
    k.nmarks = 0
    if STAMPS:
        k.I('s_memrealtime s[96:97]')
        for i in range(12): k.I(f's_mov_b32 s{64+2*i}, 0')
        mark(k, 0)
def mark(k, i, wait=True):
    if STAMPS:
        k.I(f's_memtime s[{64+2*i}:{65+2*i}]')
        if wait: k.waitcnt(lgkm=0)
def stamp_end(k, idx, ws_pair):
    if not STAMPS: return
    k.I('s_mov_b64 exec, -1')
    mark(k, 10)
    k.waitcnt(vm=0, lgkm=0)
    mark(k, 11)
    k.I('s_memrealtime s[98:99]')
    k.srd(92, ws_pair, 0x10000000)
    k.I('s_lshl_b32 s91, s2, 9')
    k.I(f's_add_u32 s91, s91, {0x2000000 + idx * 0x80000}')
    k.I('v_lshrrev_b32 v1, 6, v0')
    k.I('v_lshlrev_b32 v1, 6, v1')
    k.I('s_mov_b64 exec, 1')
    k.I('v_mov_b32 v4, s96')
    k.I('v_mov_b32 v5, s98')
    k.I('buffer_store_dwordx2 v[4:5], v1, s[92:95], s91 offen')
    for g in range(3):
        for j in range(4): k.I(f'v_mov_b32 v{8+4*g+j}, s{64+2*(4*g+j)}')
        k.I(f'buffer_store_dwordx4 {vr(8+4*g,4)}, v1, s[92:95], s91 offen offset:{16+16*g}')

def wave_reduce_to_sgpr(k, regs, sregs):
    for mod in ('quad_perm:[1,0,3,2] row_mask:0xf bank_mask:0xf', 'quad_perm:[2,3,0,1] row_mask:0xf bank_mask:0xf',
                'row_half_mirror row_mask:0xf bank_mask:0xf', 'row_mirror row_mask:0xf bank_mask:0xf',
                'row_bcast:15 row_mask:0xa bank_mask:0xf', 'row_bcast:31 row_mask:0xc bank_mask:0xf'):
        for r in regs:
            k.I(f'v_add_f32_dpp v{r}, v{r}, v{r} {mod}')
    for r, s in zip(regs, sregs):
        k.I(f'v_readlane_b32 s{s}, v{r}, 63')

def ln_scalars(k, s_sum, s_sq, v_r, v_nmr, tmp):
    t = tmp
    k.I(f'v_mov_b32 v{t}, {fhex(1.0 / D)}')
    k.I(f'v_pk_mul_f32 {vr(t+2,2)}, s[{s_sum}:{s_sum+1}], {vr(t,2)} op_sel_hi:[1,0]')
    k.I(f'v_pk_mul_f32 {vr(v_r,2)}, s[{s_sq}:{s_sq+1}], {vr(t,2)} op_sel_hi:[1,0]')
    k.I(f'v_pk_fma_f32 {vr(v_r,2)}, {vr(t+2,2)}, {vr(t+2,2)}, {vr(v_r,2)} neg_lo:[1,0,0] neg_hi:[1,0,0]')
    k.I(f'v_max_f32 v{v_r}, 0, v{v_r}')
    k.I(f'v_max_f32 v{v_r+1}, 0, v{v_r+1}')
    k.I(f'v_add_f32 v{v_r}, {fhex(1e-5)}, v{v_r}')
    k.I(f'v_add_f32 v{v_r+1}, {fhex(1e-5)}, v{v_r+1}')
    k.I(f'v_rsq_f32 v{v_r}, v{v_r}')
    k.I(f'v_rsq_f32 v{v_r+1}, v{v_r+1}')
    k.I(f'v_pk_mul_f32 {vr(v_nmr,2)}, {vr(t+2,2)}, {vr(v_r,2)} neg_lo:[1,0] neg_hi:[1,0]')

def cmul4(k, re, im, cs, sn, out, tmp, conj):
    n1 = '' if not conj else ' neg_lo:[0,1,0] neg_hi:[0,1,0]'
    n2 = ' neg_lo:[0,1,0] neg_hi:[0,1,0]' if not conj else ''
    for p in (0, 2):
        k.I(f'v_pk_mul_f32 {vr(tmp+p,2)}, {vr(re+p,2)}, {vr(cs+p,2)}')
        k.I(f'v_pk_mul_f32 {vr(tmp+4+p,2)}, {vr(im+p,2)}, {vr(cs+p,2)}')
    for p in (0, 2):
        k.I(f'v_pk_fma_f32 {vr(tmp+p,2)}, {vr(im+p,2)}, {vr(sn+p,2)}, {vr(tmp+p,2)}{n1}')
        k.I(f'v_pk_fma_f32 {vr(tmp+4+p,2)}, {vr(re+p,2)}, {vr(sn+p,2)}, {vr(tmp+4+p,2)}{n2}')
    for j in range(4):
        k.I(f'v_cvt_pk_bf16_f32 v{out+j}, v{tmp+2*j}, v{tmp+2*j+1}')

MF16 = 'v_mfma_f32_16x16x32_bf16'
MF32 = 'v_mfma_f32_32x32x16_bf16'

A_NMOD, A_NWT, A_NWD = 120, 161, 60
def gen_A():
    k = Kernel('ka_kernel')
    stamp_begin(k)
    k.I(f's_load_dwordx2 s[4:5], s[0:1], {KA["ws"]}')
    k.I(f's_load_dwordx4 s[8:11], s[0:1], {KA["c"]}')
    k.I(f's_load_dwordx4 s[12:15], s[0:1], {KA["wr"]}')
    k.I(f's_load_dwordx2 s[6:7], s[0:1], {KA["wd"]}')
    k.I(f's_cmp_ge_u32 s2, {A_NMOD}')
    st = k.save_state()
    k.I('s_cbranch_scc1 LA_wt')
    k.I('s_and_b32 s20, s2, 7')
    k.I('s_lshr_b32 s21, s2, 3')
    k.I('s_and_b32 s22, s21, 1')
    k.I('s_lshr_b32 s21, s21, 1')
    k.I('s_lshl_b32 s21, s21, 4')
    k.I('s_lshl_b32 s20, s20, 1')
    k.I('s_add_u32 s20, s20, s21')
    k.I('s_add_u32 s20, s20, s22')
    k.I('s_cmp_ge_u32 s2, 112')
    k.I('s_cselect_b32 s20, s2, s20')
    va = VAlloc()
    vrw = va.get(); voff = va.get(); vc = va.get(5); vw = va.get(20, 4); acc = va.get(8, 4); t0 = va.get(); t1 = va.get(); vco = va.get()
    k.I(f'v_lshrrev_b32 v{vrw}, 2, v0')
    k.I(f'v_mul_u32_u24 v{voff}, 7680, v{vrw}')
    k.I(f'v_and_b32 v{t0}, 3, v0')
    k.I(f'v_lshl_add_u32 v{voff}, v{t0}, 4, v{voff}')
    k.I(f'v_lshlrev_b32 v{vco}, 1, v{vrw}')
    k.I('s_lshl_b32 s23, s20, 6')
    k.srd(24, 10, D * 6 * D * 2)
    k.srd(28, 8, D * 2)
    for i in range(5):
        k.I(f'buffer_load_ushort v{vc+i}, v{vco}, s[28:31], 0 offen offset:{256*i}')
    for i in range(5):
        k.I(f'buffer_load_dwordx4 {vr(vw+4*i,4)}, v{voff}, s[24:27], s23 offen')
        if i < 4: k.I(f's_add_u32 s23, s23, {128*7680}')
    k.srd(32, 4, 0x8000)
    for j in range(8): k.I(f'v_mov_b32 v{acc+j}, 0')
    tt = va.get(5)
    for i in range(5): k.I(f'v_lshlrev_b32 v{vc+i}, 16, v{vc+i}')
    for i in range(5): k.I(f'v_mul_f32 v{tt+i}, {fhex(-math.log2(math.e))}, v{vc+i}')
    for i in range(5): k.I(f'v_exp_f32 v{tt+i}, v{tt+i}')
    for i in range(5): k.I(f'v_add_f32 v{tt+i}, 1.0, v{tt+i}')
    for i in range(5): k.I(f'v_rcp_f32 v{tt+i}, v{tt+i}')
    for i in range(5): k.I(f'v_mul_f32 v{vc+i}, v{vc+i}, v{tt+i}')
    for i in range(5): k.I(f'v_cvt_pk_bf16_f32 v{vc+i}, v{vc+i}, v{vc+i}')
    for i in range(5): k.I(f'v_and_b32 v{vc+i}, 0xffff0000, v{vc+i}')
    for i in range(5):
        for j in range(4):
            k.I(f'v_lshlrev_b32 v{t0}, 16, v{vw+4*i+j}')
            k.I(f'v_and_b32 v{t1}, 0xffff0000, v{vw+4*i+j}')
            k.I(f'v_fmac_f32 v{acc+2*j}, v{vc+i}, v{t0}')
            k.I(f'v_fmac_f32 v{acc+2*j+1}, v{vc+i}, v{t1}')
    for m in (4, 8):
        for j in range(8): k.I(f'v_add_f32_dpp v{acc+j}, v{acc+j}, v{acc+j} row_ror:{m} row_mask:0xf bank_mask:0xf')
    k.I(f'v_lshrrev_b32 v{t0}, 4, v0')
    k.I(f'v_lshlrev_b32 v{t0}, 7, v{t0}')
    k.I(f'v_and_b32 v{t1}, 3, v0')
    k.I(f'v_lshl_add_u32 v{t0}, v{t1}, 5, v{t0}')
    k.I('s_mov_b32 s36, 0x000f000f')
    k.I('s_mov_b32 s37, 0x000f000f')
    k.I('s_mov_b64 exec, s[36:37]')
    k.I(f'ds_write_b128 v{t0}, {vr(acc,4)}')
    k.I(f'ds_write_b128 v{t0}, {vr(acc+4,4)} offset:16')
    k.I('s_mov_b64 exec, -1')
    k.barrier()
    k.I('v_readfirstlane_b32 s38, v0')
    k.I('s_cmp_lg_u32 s38, 0')
    k.I('s_cbranch_scc1 LA_end')
    k.I(f'v_lshlrev_b32 v{t0}, 2, v0')
    for j in range(8):
        k.I(f'ds_read2st64_b32 {vr(vw+2*j,2)}, v{t0} offset0:{2*j} offset1:{2*j+1}')
    k.I('s_mul_i32 s39, s20, 205')
    k.I('s_lshr_b32 s39, s39, 12')
    k.I('s_mul_i32 s40, s39, 20')
    k.I('s_sub_u32 s40, s20, s40')
    k.I('s_cmp_eq_u32 s39, 1')
    k.I('s_cselect_b32 s41, 1.0, 0')
    k.I('s_cmp_eq_u32 s39, 4')
    k.I('s_cselect_b32 s41, 1.0, s41')
    k.I('s_cmp_eq_u32 s39, 2')
    k.I(f's_cselect_b32 s42, {fhex(1.0 / (2.0 * S * D))}, 1.0')
    for j in range(4): k.I(f'v_pk_add_f32 {vr(vw+2*j,2)}, {vr(vw+2*j,2)}, {vr(vw+8+2*j,2)}')
    for j in range(2): k.I(f'v_pk_add_f32 {vr(vw+2*j,2)}, {vr(vw+2*j,2)}, {vr(vw+4+2*j,2)}')
    k.I(f'v_pk_add_f32 {vr(vw,2)}, {vr(vw,2)}, {vr(vw+2,2)}')
    k.I(f'v_add_f32 v{vw}, v{vw}, v{vw+1}')
    k.I(f'v_mov_b32 v{vw+1}, v{vw}')
    k.I(f'v_permlane32_swap_b32 v{vw+1}, v{vw}')
    k.I(f'v_add_f32 v{vw}, v{vw}, v{vw+1}')
    k.I(f'v_cvt_pk_bf16_f32 v{vw}, v{vw}, v{vw}')
    k.I(f'v_and_b32 v{vw}, 0xffff0000, v{vw}')
    k.I(f'v_add_f32 v{vw}, s41, v{vw}')
    k.I(f'v_cvt_pk_bf16_f32 v{vw}, v{vw}, v{vw}')
    k.I(f'v_and_b32 v{vw}, 0xffff0000, v{vw}')
    k.I(f'v_mul_f32 v{vw}, s42, v{vw}')
    k.I('s_lshr_b32 s43, s40, 2')
    k.I('s_lshl_b32 s43, s43, 10')
    k.I('s_and_b32 s44, s40, 1')
    k.I('s_lshl_b32 s44, s44, 9')
    k.I('s_add_u32 s43, s43, s44')
    k.I('s_and_b32 s44, s40, 2')
    k.I('s_lshl_b32 s44, s44, 2')
    k.I('s_add_u32 s43, s43, s44')
    k.I(f's_add_u32 s43, s43, {MODB}')
    k.I('s_cmp_eq_u32 s39, 0')
    k.I('s_cselect_b32 s44, 4, 0')
    k.I('s_add_u32 s43, s43, s44')
    k.I('s_cmp_ge_u32 s39, 2')
    k.I('s_cselect_b32 s43, 0x100000, s43')
    k.I('s_lshl_b32 s45, s20, 7')
    k.I(f'v_and_b32 v{t1}, 31, v0')
    k.I(f'v_lshl_add_u32 v{t0}, v{t1}, 2, s45')
    k.I(f'v_lshl_add_u32 v{t1}, v{t1}, 4, s43')
    k.I('v_cmp_gt_u32 vcc, 32, v0')
    k.I(f'v_cndmask_b32 v{t0}, v{t1}, v{t0}, vcc')
    k.I(f'buffer_store_dword v{vw}, v{t0}, s[32:35], 0 offen')
    k.label('LA_end')
    stamp_end(k, 0, 4)
    k.I('s_endpgm')
    k.label('LA_wt', fresh=True); k.restore_state(st)
    k.I(f's_cmp_ge_u32 s2, {A_NMOD + A_NWT}')
    k.I('s_cbranch_scc1 LA_wd')
    va = VAlloc()
    idx = va.get(); g = va.get(); t = va.get(); a0 = va.get(); a1 = va.get(); src = va.get(); dst = va.get()
    lr = va.get(8, 4); li = va.get(8, 4)
    k.I(f's_sub_u32 s20, s2, {A_NMOD}')
    k.I('s_lshl_b32 s20, s20, 9')
    k.I(f'v_add_u32 v{idx}, s20, v0')
    k.I(f's_mov_b32 s21, {(2**32 + 320) // 321}')
    k.I(f'v_mul_hi_u32 v{g}, v{idx}, s21')
    k.I(f'v_mul_u32_u24 v{a0}, 321, v{g}')
    k.I(f'v_sub_u32 v{t}, v{idx}, v{a0}')
    k.I(f'v_lshrrev_b32 v{a0}, 5, v{g}')
    k.I(f'v_and_b32 v{a1}, 31, v{g}')
    k.I(f'v_lshlrev_b32 v{src}, 7, v{a0}')
    k.I(f'v_add_u32 v{src}, v{src}, v{a1}')
    k.I(f'v_mul_u32_u24 v{src}, 1284, v{src}')
    k.I(f'v_lshl_add_u32 v{src}, v{t}, 1, v{src}')
    k.srd(24, 12, S * 321 * 2)
    k.srd(28, 14, S * 321 * 2)
    for r in range(1, 4): k.I(f's_mov_b32 s{40+r}, {41088*r}')
    for i in range(2):
        for r in range(4):
            so = f's{40+r}' if r else '0'
            k.I(f'buffer_load_ushort v{lr+4*i+r}, v{src}, s[24:27], {so} offen offset:{642*i}')
            k.I(f'buffer_load_ushort v{li+4*i+r}, v{src}, s[28:31], {so} offen offset:{642*i}')
    k.srd(32, 4, XT_SZ, WT)
    k.I(f'v_lshlrev_b32 v{dst}, 13, v{t}')
    k.I(f'v_lshl_add_u32 v{dst}, v{a0}, 8, v{dst}')
    k.I(f'v_lshrrev_b32 v{a0}, 3, v{a1}')
    k.I(f'v_lshl_add_u32 v{dst}, v{a0}, 11, v{dst}')
    k.I(f'v_and_b32 v{a1}, 7, v{a1}')
    k.I(f'v_lshl_add_u32 v{dst}, v{a1}, 5, v{dst}')
    k.I(f'v_cmp_gt_u32 vcc, 0x100, v{g}')
    k.I(f'v_cndmask_b32 v{dst}, -1, v{dst}, vcc')
    k.I(f'v_min_u32 v{dst}, 0x7fffff00, v{dst}')
    for i in range(2):
        for r in range(4):
            k.I(f'v_lshl_or_b32 v{lr+4*i+r}, v{li+4*i+r}, 16, v{lr+4*i+r}')
        k.I(f'buffer_store_dwordx4 {vr(lr+4*i,4)}, v{dst}, s[32:35], 0 offen offset:{16*i}')
    stamp_end(k, 0, 4)
    k.I('s_endpgm')
    k.label('LA_wd', fresh=True); k.restore_state(st)
    k.I(f's_cmp_ge_u32 s2, {A_NMOD + A_NWT + A_NWD}')
    k.I('s_cbranch_scc1 LA_exit')
    va = VAlloc()
    idx = va.get(); ch = va.get(); d4 = va.get(); a0 = va.get(); a1 = va.get(); a2 = va.get(); src = va.get(); dst = va.get()
    ld = va.get(16, 4); o = va.get(16, 4)
    k.I(f's_sub_u32 s20, s2, {A_NMOD + A_NWT}')
    k.I('s_lshl_b32 s20, s20, 9')
    k.I(f'v_add_u32 v{idx}, s20, v0')
    k.I(f's_mov_b32 s21, {(2**32 + 159) // 160}')
    k.I(f'v_mul_hi_u32 v{ch}, v{idx}, s21')
    k.I(f'v_mul_u32_u24 v{a0}, 160, v{ch}')
    k.I(f'v_sub_u32 v{d4}, v{idx}, v{a0}')
    k.I(f'v_lshrrev_b32 v{a0}, 1, v{ch}')
    k.I(f'v_and_b32 v{a1}, 1, v{ch}')
    k.I(f'v_lshl_add_u32 v{a0}, v{a0}, 2, v{a1}')
    k.I(f'v_mul_u32_u24 v{src}, 5120, v{a0}')
    k.I(f'v_lshl_add_u32 v{src}, v{d4}, 3, v{src}')
    k.srd(24, 6, F * D * 2)
    k.I(f's_mov_b32 s40, {8*1280}')
    for j in range(8):
        so = 's40' if j >= 4 else '0'
        k.I(f'buffer_load_dwordx2 {vr(ld+2*j,2)}, v{src}, s[24:27], {so} offen offset:{1280*(j&3)}')
    k.srd(32, 4, F * D * 2, WD)
    k.I(f'v_mul_u32_u24 v{a0}, 205, v{d4}')
    k.I(f'v_lshrrev_b32 v{a1}, 10, v{a0}')
    k.I(f'v_mul_u32_u24 v{a0}, 5, v{a1}')
    k.I(f'v_sub_u32 v{a0}, v{d4}, v{a0}')
    k.I(f'v_lshlrev_b32 v{dst}, 10, v{a0}')
    k.I(f'v_and_b32 v{a0}, 3, v{a1}')
    k.I(f'v_lshl_add_u32 v{dst}, v{a0}, 6, v{dst}')
    k.I(f'v_lshrrev_b32 v{a1}, 2, v{a1}')
    k.I(f'v_mul_u32_u24 v{a1}, 48, v{a1}')
    k.I(f'v_lshrrev_b32 v{a0}, 2, v{ch}')
    k.I(f'v_add_u32 v{a1}, v{a1}, v{a0}')
    k.I(f'v_mul_u32_u24 v{a1}, 5120, v{a1}')
    k.I(f'v_add_u32 v{dst}, v{dst}, v{a1}')
    k.I(f'v_and_b32 v{a0}, 3, v{ch}')
    k.I(f'v_lshl_add_u32 v{dst}, v{a0}, 8, v{dst}')
    k.I('s_mov_b32 s41, 0x05040100')
    k.I('s_mov_b32 s42, 0x07060302')
    for r in range(4):
        sel = 's41' if r % 2 == 0 else 's42'
        for jp in range(4):
            k.I(f'v_perm_b32 v{o+4*r+jp}, v{ld+2*(2*jp+1)+r//2}, v{ld+2*(2*jp)+r//2}, {sel}')
        k.I(f'buffer_store_dwordx4 {vr(o+4*r,4)}, v{dst}, s[32:35], 0 offen offset:{16*r}')
    stamp_end(k, 0, 4)
    k.I('s_endpgm')
    k.label('LA_exit', fresh=True)
    k.I('s_endpgm')
    return k, (A_NMOD + A_NWT + A_NWD, 512, 4096)

def bd_ids(k, vl):
    k.I('v_lshrrev_b32 v1, 6, v0')
    k.I(f'v_and_b32 v{vl}, 63, v0')
    k.I('v_readfirstlane_b32 s22, v1')
    k.I('s_and_b32 s20, s2, 7')
    k.I('s_lshr_b32 s21, s2, 2')
    k.I('s_and_b32 s21, s21, 8')
    k.I('s_add_u32 s20, s20, s21')
    k.I('s_lshr_b32 s21, s2, 3')
    k.I('s_and_b32 s21, s21, 3')
    k.I('s_lshr_b32 s24, s2, 6')
    k.I('s_lshl_b32 s24, s24, 2')
    k.I('s_add_u32 s21, s21, s24')
    k.I('s_lshl_b32 s23, s20, 7')
    k.I('s_lshl_b32 s24, s21, 1')
    k.I('s_add_u32 s23, s23, s24')
    k.I('s_and_b32 s24, s22, 1')
    k.I('s_lshl_b32 s24, s24, 6')
    k.I('s_add_u32 s23, s23, s24')
    k.I('s_lshr_b32 s24, s22, 1')
    k.I('s_add_u32 s23, s23, s24')
    k.I('s_lshr_b32 s25, s20, 2')
    k.I('s_lshl_b32 s25, s25, 11')
    k.I('s_lshr_b32 s24, s21, 3')
    k.I('s_lshl_b32 s24, s24, 10')
    k.I('s_add_u32 s25, s25, s24')
    k.I('s_and_b32 s24, s20, 3')
    k.I('s_lshl_b32 s24, s24, 8')
    k.I('s_add_u32 s25, s25, s24')
    k.I('s_and_b32 s24, s21, 7')
    k.I('s_lshl_b32 s24, s24, 5')
    k.I('s_add_u32 s25, s25, s24')
    k.I(f's_add_u32 s26, s25, {128*8192}')
    k.I(f's_add_u32 s27, s25, {256*8192}')

def gen_f40(k, va, fi, fq, inverse):
    base = va.get(62, 2)
    ta = va.get(4); tc = va.get(2); ts = va.get(2)
    k.I(f'v_mov_b32 v{base+60}, 0'); k.I(f'v_mov_b32 v{base+61}, 0')
    for T in range(3):
        k.I(f'v_add_f32 v{ta}, {fhex(16.0*T)}, v{fi}')
        k.I(f'v_mul_f32 v{ta}, {fhex(1.0/40)}, v{ta}')
        k.I(f'v_mul_f32 v{ta+1}, v{fq}, v{ta}')
        for e in range(10):
            p = e & 1
            k.I(f'v_fmamk_f32 v{ta+2+p}, v{ta}, {fhex(4.0*e)}, v{ta+1}')
            k.I(f'v_cos_f32 v{tc+p}, v{ta+2+p}')
            k.I(f'v_sin_f32 v{ts+p}, v{ta+2+p}')
            if e >= 1:
                gen_f40_pack(k, base, T, e - 1, tc, ts, inverse)
        gen_f40_pack(k, base, T, 9, tc, ts, inverse)
    return base
def gen_f40_pack(k, base, T, e, tc, ts, inverse):
    p = e & 1
    if not inverse:
        k.I(f'v_cvt_pk_bf16_f32 v{base+(2*T)*10+e}, v{tc+p}, v{ts+p}')
        k.I(f'v_cvt_pk_bf16_f32 v{base+(2*T+1)*10+e}, -v{ts+p}, v{tc+p}')
    else:
        k.I(f'v_cvt_pk_bf16_f32 v{base+(2*T)*10+e}, v{tc+p}, -v{ts+p}')
        k.I(f'v_cvt_pk_bf16_f32 v{base+(2*T+1)*10+e}, v{ts+p}, v{tc+p}')

def gen_tw640(k, va, fi, fq4):
    cs = va.get(12, 2); sn = va.get(12, 2); ta = va.get(2)
    for T in range(3):
        k.I(f'v_add_f32 v{ta}, {fhex(16.0*T)}, v{fi}')
        k.I(f'v_mul_f32 v{ta}, {fhex(1.0/640)}, v{ta}')
        k.I(f'v_mul_f32 v{ta+1}, v{fq4}, v{ta}')
        for r in range(4):
            if r == 0: k.I(f'v_mov_b32 v{sn+4*T}, v{ta+1}')
            else: k.I(f'v_fmamk_f32 v{sn+4*T+r}, v{ta}, {fhex(float(r))}, v{ta+1}')
        for r in range(4):
            k.I(f'v_cos_f32 v{cs+4*T+r}, v{sn+4*T+r}')
            k.I(f'v_sin_f32 v{sn+4*T+r}, v{sn+4*T+r}')
    return cs, sn

def gen_B():
    k = Kernel('kb_kernel')
    PL = 5184
    stamp_begin(k)
    k.I('s_cmp_ge_u32 s2, 256')
    k.I('s_cbranch_scc1 LB_exit')
    k.I(f's_load_dwordx2 s[4:5], s[0:1], {KA["ws"]}')
    k.I(f's_load_dwordx2 s[6:7], s[0:1], {KA["x"]}')
    va = VAlloc(2)
    vl = va.get(); xs = va.get(20, 2); md = va.get(20, 4); vo = va.get(); vo16 = va.get()
    for i in range(20): k.I(f'v_mov_b32 v{xs+i}, 0')
    bd_ids(k, vl)
    k.I('s_mul_i32 s28, s23, 1280')
    k.I(f's_add_u32 s29, s28, {32*1280}')
    k.I(f'v_lshlrev_b32 v{vo}, 1, v{vl}')
    k.I(f'v_lshlrev_b32 v{vo16}, 4, v{vl}')
    k.srd(8, 6, S * D * 2)
    k.srd(12, 4, 5120, MODB)
    for e in range(10):
        k.I(f'buffer_load_short_d16_hi v{xs+2*e}, v{vo}, s[8:11], s28 offen offset:{128*e} nt')
        k.I(f'buffer_load_short_d16_hi v{xs+2*e+1}, v{vo}, s[8:11], s29 offen offset:{128*e} nt')
    k.I('s_movk_i32 s30, 0x1000')
    for g in range(5):
        if g < 4: k.I(f'buffer_load_dwordx4 {vr(md+4*g,4)}, v{vo16}, s[12:15], 0 offen offset:{1024*g}')
        else: k.I(f'buffer_load_dwordx4 {vr(md+4*g,4)}, v{vo16}, s[12:15], s30 offen')
    mark(k, 1)
    k.srd(16, 4, XT_SZ, XT)
    fi = va.get(); fq = va.get(); fq4 = va.get(); vi = va.get(); vq = va.get()
    k.I(f'v_and_b32 v{vi}, 15, v{vl}')
    k.I(f'v_lshrrev_b32 v{vq}, 4, v{vl}')
    k.I(f'v_cvt_f32_u32 v{fi}, v{vi}')
    k.I(f'v_cvt_f32_u32 v{fq}, v{vq}')
    k.I(f'v_mul_f32 v{fq4}, 4.0, v{fq}')
    f40 = gen_f40(k, va, fi, fq, False)
    cs, sn = gen_tw640(k, va, fi, fq4)
    f16 = va.get(8, 2); tmp = va.get(8, 2); ta = va.get(4)
    k.I(f'v_lshrrev_b32 v{ta}, 1, v{vi}')
    k.I(f'v_cvt_f32_u32 v{ta}, v{ta}')
    k.I(f'v_and_b32 v{ta+1}, 1, v{vi}')
    k.I(f'v_cvt_f32_u32 v{ta+1}, v{ta+1}')
    k.I(f'v_mul_f32 v{ta+1}, 0x3e800000, v{ta+1}')
    for U in range(2):
        k.I(f'v_add_f32 v{ta+2}, {fhex(8.0*U)}, v{ta}')
        k.I(f'v_mul_f32 v{ta+2}, {fhex(1.0/16)}, v{ta+2}')
        k.I(f'v_fma_f32 v{ta+3}, v{fq4}, v{ta+2}, v{ta+1}')
        for j in range(4):
            k.I(f'v_fmamk_f32 v{tmp+4+j}, v{ta+2}, {fhex(float(j))}, v{ta+3}')
        for j in range(4):
            k.I(f'v_cos_f32 v{tmp+j}, v{tmp+4+j}')
            k.I(f'v_sin_f32 v{tmp+4+j}, v{tmp+4+j}')
        for j in range(4):
            k.I(f'v_cvt_pk_bf16_f32 v{f16+4*U+j}, v{tmp+2*j}, v{tmp+2*j+1}')
    wa = va.get(); ru = va.get(); rv = va.get(); so = va.get()
    k.I(f'v_mul_u32_u24 v{wa}, 80, v{vq}')
    k.I(f'v_add_lshl_u32 v{wa}, v{wa}, v{vi}, 3')
    k.I(f's_mul_i32 s31, s22, {PL}')
    k.I(f'v_add_u32 v{wa}, s31, v{wa}')
    k.I(f'v_and_b32 v{ta}, 1, v0')
    k.I(f'v_lshrrev_b32 v{ta+1}, 1, v0')
    k.I(f'v_mul_u32_u24 v{ru}, {2*PL}, v{ta}')
    k.I(f'v_sub_u32 v{rv}, 384, v{ta+1}')
    k.I(f'v_lshl_add_u32 v{rv}, v{rv}, 3, v{ru}')
    k.I(f'v_lshl_add_u32 v{ru}, v{ta+1}, 3, v{ru}')
    k.I(f'v_lshlrev_b32 v{so}, 13, v{ta+1}')
    k.I(f'v_lshl_add_u32 v{so}, v{ta}, 4, v{so}')
    dat = va.get(12, 2)
    k.I(f'v_mov_b32 v{dat+10}, 0'); k.I(f'v_mov_b32 v{dat+11}, 0')
    mark(k, 2)
    if STAMPS: k.waitcnt(vm=0)
    mark(k, 3)
    sm = va.get(2, 2); sq = va.get(2, 2); rr = va.get(2, 2); nmr = va.get(2, 2)
    k.I(f'v_pk_add_f32 {vr(sm,2)}, {vr(xs,2)}, {vr(xs+2,2)}')
    k.I(f'v_pk_mul_f32 {vr(sq,2)}, {vr(xs,2)}, {vr(xs,2)}')
    k.I(f'v_pk_fma_f32 {vr(sq,2)}, {vr(xs+2,2)}, {vr(xs+2,2)}, {vr(sq,2)}')
    for e in range(2, 10):
        k.I(f'v_pk_add_f32 {vr(sm,2)}, {vr(sm,2)}, {vr(xs+2*e,2)}')
        k.I(f'v_pk_fma_f32 {vr(sq,2)}, {vr(xs+2*e,2)}, {vr(xs+2*e,2)}, {vr(sq,2)}')
    wave_reduce_to_sgpr(k, [sm, sm+1, sq, sq+1], [32, 33, 34, 35])
    ln_scalars(k, 32, 34, rr, nmr, tmp)
    for e in range(10):
        k.I(f'v_pk_fma_f32 {vr(xs+2*e,2)}, {vr(xs+2*e,2)}, {vr(rr,2)}, {vr(nmr,2)}')
    for e in range(10):
        k.I(f'v_pk_fma_f32 {vr(xs+2*e,2)}, {vr(xs+2*e,2)}, {vr(md+2*e,2)}, {vr(md+2*e,2)} op_sel:[0,0,1] op_sel_hi:[1,0,1]')
    for e in range(10):
        k.I(f'v_cvt_pk_bf16_f32 v{dat+e}, v{xs+2*e}, v{xs+2*e+1}')
    mark(k, 4)
    d1 = va.get(24, 4)
    for T in range(3):
        for kap in range(3):
            for c in range(2):
                dd = vr(d1 + (2*T+c)*4, 4)
                k.I(f'{MF16} {dd}, {vr(dat+4*kap,4)}, {vr(f40+(2*T+c)*10+4*kap,4)}, {dd if kap else 0}')
    b2 = va.get(12, 2); d2 = va.get(24, 4)
    for T in range(3):
        cmul4(k, d1+8*T, d1+8*T+4, cs+4*T, sn+4*T, b2+4*T, tmp, False)
        for U in range(2):
            k.I(f'{MF16} {vr(d2+(2*T+U)*4,4)}, {vr(f16+4*U,4)}, {vr(b2+4*T,4)}, 0')
    mark(k, 5)
    k.I('s_mov_b32 s36, 0x00ff00ff')
    k.I('s_mov_b32 s37, 0x00ff00ff')
    for T in range(3):
        if T == 2: k.I('s_mov_b64 exec, s[36:37]')
        for U in range(2):
            for h in range(2):
                k.I(f'ds_write_b64 v{wa}, {vr(d2+(2*T+U)*4+2*h,2)} offset:{(16*T+320*U+40*h)*8}')
    k.I('s_mov_b64 exec, 1')
    k.I(f'ds_write_b64 v{wa}, {vr(d2,2)} offset:5120')
    k.I('s_mov_b64 exec, -1')
    k.barrier()
    mark(k, 6)
    rd = d1; oc = b2
    for rho in range(3):
        for pr in range(2):
            k.I(f'ds_read_b64 {vr(rd+8*rho+4*pr,2)}, v{ru} offset:{pr*PL+1024*rho}')
            k.I(f'ds_read_b64 {vr(rd+8*rho+4*pr+2,2)}, v{rv} offset:{pr*PL+1024*(2-rho)}')
    for rho in range(3):
        for pr in range(2):
            u = rd+8*rho+4*pr; v = u+2
            k.I(f'v_pk_add_f32 {vr(tmp+4*pr,2)}, {vr(u,2)}, {vr(v,2)}')
            k.I(f'v_pk_add_f32 {vr(tmp+4*pr+2,2)}, {vr(u,2)}, {vr(v,2)} neg_lo:[0,1] neg_hi:[0,1]')
        for pr in range(2):
            k.I(f'v_cvt_pk_bf16_f32 v{oc+4*rho+pr}, v{tmp+4*pr}, v{tmp+4*pr+1}')
            k.I(f'v_cvt_pk_bf16_f32 v{oc+4*rho+2+pr}, v{tmp+4*pr+3}, -v{tmp+4*pr+2}')
        k.I(f'buffer_store_dwordx4 {vr(oc+4*rho,4)}, v{so}, s[16:19], s{25+rho} offen')
    stamp_end(k, 1, 4)
    k.label('LB_exit')
    k.I('s_endpgm')
    return k, (256, 256, 4 * PL)

def pack_window(k, base, cs, sn, alt):
    def op(r, j, neg):
        n = neg ^ (alt and (j & 1))
        return ('-' if n else '') + f'v{r+j}'
    for p in range(2):
        k.I(f'v_cvt_pk_bf16_f32 v{base+p}, {op(sn,2*p,False)}, {op(sn,2*p+1,False)}')
        k.I(f'v_cvt_pk_bf16_f32 v{base+2+p}, {op(cs,2*p,False)}, {op(cs,2*p+1,False)}')
        k.I(f'v_cvt_pk_bf16_f32 v{base+4+p}, {op(sn,2*p,True)}, {op(sn,2*p+1,True)}')
    k.I(f'v_mov_b64 {vr(base+6,2)}, {vr(base+2,2)}')
    k.I(f'v_mov_b64 {vr(base+8,2)}, {vr(base,2)}')
W_INV_IM, W_INV_RE, W_FWD_IM, W_FWD_RE = 0, 2, 4, 6

def gen_C():
    k = Kernel('kc_kernel')
    stamp_begin(k)
    k.I('s_cmp_ge_u32 s2, 321')
    k.I('s_cbranch_scc1 LC_exit')
    k.I(f's_load_dwordx2 s[4:5], s[0:1], {KA["ws"]}')
    va = VAlloc(2)
    vl = va.get(); vo16 = va.get(); wq = va.get(8, 4)
    k.I('v_lshrrev_b32 v1, 6, v0')
    k.I(f'v_and_b32 v{vl}, 63, v0')
    k.I('v_readfirstlane_b32 s22, v1')
    k.I(f'v_lshlrev_b32 v{vo16}, 4, v{vl}')
    k.I('s_lshl_b32 s23, s22, 11')
    k.I('s_lshl_b32 s24, s2, 13')
    k.I('s_add_u32 s24, s24, s23')
    k.I('s_mov_b32 m0, s23')
    k.srd(8, 4, XT_SZ, XT)
    k.srd(12, 4, XT_SZ, WT)
    k.I(f'buffer_load_dwordx4 v{vo16}, s[8:11], s24 offen lds', tag='x')
    k.I(f'buffer_load_dwordx4 v{vo16}, s[8:11], s24 offen offset:1024 lds', tag='x')
    k.I(f'buffer_load_dwordx4 {vr(wq,4)}, v{vo16}, s[12:15], s24 offen')
    k.I(f'buffer_load_dwordx4 {vr(wq+4,4)}, v{vo16}, s[12:15], s24 offen offset:1024')
    mark(k, 1)
    k.I('s_cmp_eq_u32 s2, 0')
    k.I('s_cselect_b32 s25, 0, 1.0')
    k.I('s_cmp_eq_u32 s2, 320')
    k.I('s_cselect_b32 s25, 0, s25')
    fi = va.get(); fq4 = va.get(); fk = va.get(); sg = va.get(); fw16 = va.get()
    ta = va.get(2); tc = va.get(4, 2); ts = va.get(4, 2); tmp = va.get(8, 2)
    k.I(f'v_and_b32 v{fi}, 15, v{vl}')
    k.I(f'v_lshlrev_b32 v{sg}, 31, v{fi}')
    k.I(f'v_or_b32 v{sg}, 1.0, v{sg}')
    k.I(f'v_cvt_f32_u32 v{fi}, v{fi}')
    k.I(f'v_lshrrev_b32 v{fq4}, 4, v{vl}')
    k.I(f'v_lshlrev_b32 v{fq4}, 2, v{fq4}')
    k.I(f'v_cvt_f32_u32 v{fq4}, v{fq4}')
    k.I(f'v_lshlrev_b32 v{fw16}, 4, v1')
    k.I(f'v_cvt_f32_u32 v{fw16}, v{fw16}')
    k.I(f'v_add_f32 v{fk}, v{fw16}, v{fi}')
    def angles(step_expr_reg, scale, base_add, dst):
        k.I(f'v_mul_f32 v{ta}, {fhex(scale)}, v{step_expr_reg}')
        k.I(f'v_mul_f32 v{ta+1}, v{fq4}, v{ta}')
        for j in range(4):
            k.I(f'v_fmamk_f32 v{dst+j}, v{ta}, {fhex(float(base_add + j))}, v{ta+1}')
    def sincos(c, s):
        for j in range(4):
            k.I(f'v_cos_f32 v{c+j}, v{s+j}')
            k.I(f'v_sin_f32 v{s+j}, v{s+j}')
    def flip(c, s):
        for p in (0, 2):
            k.I(f'v_pk_mul_f32 {vr(c+p,2)}, {vr(c+p,2)}, {vr(sg2,2)} op_sel_hi:[1,0]')
            k.I(f'v_pk_mul_f32 {vr(s+p,2)}, {vr(s+p,2)}, {vr(sg2,2)} op_sel_hi:[1,0]')
    sg2 = va.get(2, 2)
    k.I(f'v_mov_b32 v{sg2}, v{sg}')
    f64 = va.get(40, 2); f32 = va.get(40, 2)
    for kap in range(2):
        angles(fk, 1.0/64, 16*kap, ts); sincos(tc, ts)
        pack_window(k, f64+10*kap, tc, ts, False)
        flip(tc, ts)
        pack_window(k, f64+10*(kap+2), tc, ts, False)
    c1 = va.get(8, 2); s1 = va.get(8, 2); c2 = va.get(8, 2); s2 = va.get(8, 2)
    for N in range(2):
        angles(fk, 1.0/2048, 16*N, s1+4*N); sincos(c1+4*N, s1+4*N)
    angles(fi, 1.0/32, 0, ts); sincos(tc, ts)
    pack_window(k, f32+0, tc, ts, False)
    pack_window(k, f32+20, tc, ts, True)
    flip(tc, ts)
    pack_window(k, f32+10, tc, ts, False)
    pack_window(k, f32+30, tc, ts, True)
    mark(k, 2)
    k.wait_tag('x')
    k.I('s_barrier')
    mark(k, 3)
    dat = va.get(32, 4)
    for kap in range(4):
        for N in range(2):
            k.I(f'ds_read_b128 {vr(dat+(2*kap+N)*4,4)}, v{vo16} offset:{2048*kap+1024*N}')
    acc = va.get(16, 4); acc2 = va.get(16, 4); pk = va.get(8, 4)
    for kap in range(4):
        for N in range(2):
            for c in range(2):
                dd = vr(acc+(2*N+c)*4, 4)
                k.I(f'{MF16} {dd}, {vr(dat+(2*kap+N)*4,4)}, {vr(f64+10*kap+(W_FWD_IM if c else W_FWD_RE),4)}, {dd if kap else 0}')
    fkq = va.get()
    k.I(f'v_add_f32 v{fkq}, v{fw16}, v{fq4}')
    for N in range(2):
        k.I(f'v_add_f32 v{ta}, {fhex(16.0*N)}, v{fi}')
        k.I(f'v_mul_f32 v{ta}, {fhex(1.0/2048)}, v{ta}')
        k.I(f'v_mul_f32 v{ta+1}, v{fkq}, v{ta}')
        for j in range(4):
            k.I(f'v_fmamk_f32 v{s2+4*N+j}, v{ta}, {fhex(float(j))}, v{ta+1}')
        sincos(c2+4*N, s2+4*N)
    for N in range(2):
        cmul4(k, acc+8*N, acc+8*N+4, c1+4*N, s1+4*N, pk+4*N, tmp, False)
    for N in range(2):
        for V in range(2):
            for c in range(2):
                dd = vr(acc2+(2*V+c)*4, 4)
                k.I(f'{MF16} {dd}, {vr(f32+(2*V+N)*10+(W_FWD_IM if c else W_FWD_RE),4)}, {vr(pk+4*N,4)}, {dd if N else 0}')
    mark(k, 4)
    wr_ = c1; wi_ = s1
    for j in range(8):
        k.I(f'v_lshlrev_b32 v{wr_+j}, 16, v{wq+j}')
        k.I(f'v_and_b32 v{wi_+j}, 0xffff0000, v{wq+j}')
    pk2 = va.get(8, 4)
    for V in range(2):
        cmul4(k, acc2+8*V, acc2+8*V+4, wr_+4*V, wi_+4*V, pk2+4*V, tmp, True)
    for V in range(2):
        for N in range(2):
            for c in range(2):
                dd = vr(acc+(2*N+c)*4, 4)
                k.I(f'{MF16} {dd}, {vr(pk2+4*V,4)}, {vr(f32+(2*N+V)*10+(W_INV_IM if c else W_INV_RE),4)}, {dd if V else 0}')
    mark(k, 5)
    wa = va.get()
    k.I(f'v_add_u32 v{wa}, s23, v{vo16}')
    for N in range(2):
        cmul4(k, acc+8*N, acc+8*N+4, c2+4*N, s2+4*N, pk+4*N, tmp, True)
        k.I(f'ds_write_b128 v{wa}, {vr(pk+4*N,4)} offset:{8192+1024*N}')
    k.barrier()
    mark(k, 6)
    for kap in range(4):
        for N in range(2):
            k.I(f'ds_read_b128 {vr(dat+(2*kap+N)*4,4)}, v{vo16} offset:{8192+2048*kap+1024*N}')
    for kap in range(4):
        for N in range(2):
            for c in range(2):
                dd = vr(acc2+(2*N+c)*4, 4)
                k.I(f'{MF16} {dd}, {vr(f64+10*kap+(W_INV_IM if c else W_INV_RE),4)}, {vr(dat+(2*kap+N)*4,4)}, {dd if kap else 0}')
    for N in range(2):
        re = acc2+8*N; im = re+4
        for p in range(2):
            a, b = 2*p, 2*p+1
            k.I(f'v_fma_f32 v{tmp+4*p+0}, -s25, v{im+b}, v{re+a}')
            k.I(f'v_fma_f32 v{tmp+4*p+1}, s25, v{im+a}, v{re+b}')
            k.I(f'v_fma_f32 v{tmp+4*p+2}, s25, v{im+b}, v{re+a}')
            k.I(f'v_fma_f32 v{tmp+4*p+3}, -s25, v{im+a}, v{re+b}')
        for j in range(4):
            k.I(f'v_cvt_pk_bf16_f32 v{pk2+4*N+j}, v{tmp+2*j}, v{tmp+2*j+1}')
        k.I(f'buffer_store_dwordx4 {vr(pk2+4*N,4)}, v{vo16}, s[8:11], s24 offen offset:{1024*N}')
    stamp_end(k, 2, 4)
    k.label('LC_exit')
    k.I('s_endpgm')
    return k, (321, 256, 16384)

def gen_D():
    k = Kernel('kd_kernel')
    PL = 2592
    stamp_begin(k)
    k.I('s_cmp_ge_u32 s2, 256')
    k.I('s_cbranch_scc1 LD_exit')
    k.I(f's_load_dwordx2 s[4:5], s[0:1], {KA["ws"]}')
    k.I(f's_load_dwordx2 s[6:7], s[0:1], {KA["x"]}')
    va = VAlloc(2)
    vl = va.get(); so = va.get(); ta = va.get(4); vi = va.get(); vq = va.get()
    ch = va.get(12, 4); xr = va.get(12, 2); mg = va.get(12, 4); mc = va.get(12, 4); ms = va.get(12, 4)
    xo = va.get(); xo2 = va.get(); mo = va.get()
    bd_ids(k, vl)
    k.I(f'v_and_b32 v{ta}, 1, v0')
    k.I(f'v_lshrrev_b32 v{ta+1}, 1, v0')
    k.I(f'v_lshlrev_b32 v{so}, 13, v{ta+1}')
    k.I(f'v_lshl_add_u32 v{so}, v{ta}, 4, v{so}')
    k.I(f'v_and_b32 v{vi}, 15, v{vl}')
    k.I(f'v_lshrrev_b32 v{vq}, 4, v{vl}')
    k.I(f'v_mul_u32_u24 v{xo}, 80, v{vi}')
    k.I(f'v_lshl_add_u32 v{xo}, v{vq}, 3, v{xo}')
    k.I(f'v_lshlrev_b32 v{mo}, 1, v{xo}')
    k.I(f'v_cmp_gt_u32 vcc, 32, v{vl}')
    k.I(f'v_mov_b32 v{xo2}, 0x7fff0000')
    k.I(f'v_cndmask_b32 v{xo2}, v{xo2}, v{xo}, vcc')
    k.I('s_mul_i32 s28, s23, 1280')
    k.I(f's_add_u32 s29, s28, {32*1280}')
    k.srd(16, 4, XT_SZ, XT)
    for rho in range(3):
        k.I(f'buffer_load_dwordx4 {vr(ch+4*rho,4)}, v{so}, s[16:19], s{25+rho} offen')
    k.srd(8, 6, S * D * 2)
    k.srd(12, 4, 6 * D * 4, MODN)
    for T in range(3):
        for c in range(2):
            k.I(f'buffer_load_dwordx2 {vr(xr+(2*T+c)*2,2)}, v{xo2 if T == 2 else xo}, s[8:11], s{28+c} offen offset:{32*T}')
    k.I(f's_movk_i32 s30, {2*2560}')
    k.I(f's_movk_i32 s31, {3*2560}')
    k.I(f's_movk_i32 s32, {4*2560}')
    for T in range(3):
        k.I(f'buffer_load_dwordx4 {vr(mg+4*T,4)}, v{mo}, s[12:15], s30 offen offset:{64*T}')
        k.I(f'buffer_load_dwordx4 {vr(ms+4*T,4)}, v{mo}, s[12:15], s31 offen offset:{64*T}')
        k.I(f'buffer_load_dwordx4 {vr(mc+4*T,4)}, v{mo}, s[12:15], s32 offen offset:{64*T}')
    mark(k, 1)
    fi = va.get(); fq = va.get(); fq4 = va.get()
    k.I(f'v_cvt_f32_u32 v{fi}, v{vi}')
    k.I(f'v_cvt_f32_u32 v{fq}, v{vq}')
    k.I(f'v_mul_f32 v{fq4}, 4.0, v{fq}')
    wu = va.get(); wv = va.get(); ra = va.get()
    k.I(f'v_mul_u32_u24 v{wu}, {2*PL}, v{ta}')
    k.I(f'v_sub_u32 v{wv}, 384, v{ta+1}')
    k.I(f'v_lshl_add_u32 v{wv}, v{wv}, 2, v{wu}')
    k.I(f'v_lshl_add_u32 v{wu}, v{ta+1}, 2, v{wu}')
    k.I(f's_mul_i32 s33, s22, {PL}')
    k.I(f'v_lshl_add_u32 v{ra}, v{vl}, 2, s33')
    k.I(f'v_cmp_ge_u32 s[34:35], 64, v{ta+1}')
    f40 = gen_f40(k, va, fi, fq, True)
    mark(k, 2)
    if STAMPS: k.waitcnt(vm=15)
    mark(k, 3)
    for rho in range(3):
        if rho == 2: k.I('s_mov_b64 exec, s[34:35]')
        for pr in range(2):
            k.I(f'ds_write_b32 v{wu}, v{ch+4*rho+2*pr} offset:{pr*PL+512*rho}')
            k.I(f'ds_write_b32 v{wv}, v{ch+4*rho+2*pr+1} offset:{pr*PL+512*(2-rho)}')
    k.I('s_mov_b64 exec, -1')
    k.barrier()
    mark(k, 4)
    dat = va.get(12, 2)
    for p in range(5):
        k.I(f'ds_read2st64_b32 {vr(dat+2*p,2)}, v{ra} offset0:{2*p} offset1:{2*p+1}')
    k.I(f'v_mov_b32 v{dat+10}, 0'); k.I(f'v_mov_b32 v{dat+11}, 0')
    d1 = va.get(24, 4)
    for T in range(3):
        for kap in range(3):
            for c in range(2):
                dd = vr(d1 + (2*T+c)*4, 4)
                k.I(f'{MF16} {dd}, {vr(dat+4*kap,4)}, {vr(f40+(2*T+c)*10+4*kap,4)}, {dd if kap else 0}')
    cs, sn = gen_tw640(k, va, fi, fq4)
    k.I(f'v_cmp_gt_u32 vcc, 8, v{vi}')
    for r in range(4):
        k.I(f'v_cndmask_b32 v{cs+8+r}, 0, v{cs+8+r}, vcc')
        k.I(f'v_cndmask_b32 v{sn+8+r}, 0, v{sn+8+r}, vcc')
    f16 = va.get(6, 2); tmp = va.get(8, 2)
    k.I(f'v_mul_f32 v{ta+2}, {fhex(1.0/16)}, v{fi}')
    k.I(f'v_mul_f32 v{ta+3}, v{fq4}, v{ta+2}')
    for j in range(4): k.I(f'v_fmamk_f32 v{tmp+4+j}, v{ta+2}, {fhex(float(j))}, v{ta+3}')
    for j in range(4):
        k.I(f'v_cos_f32 v{tmp+j}, v{tmp+4+j}')
        k.I(f'v_sin_f32 v{tmp+4+j}, v{tmp+4+j}')
    for p in range(2):
        k.I(f'v_cvt_pk_bf16_f32 v{f16+p}, v{tmp+4+2*p}, v{tmp+5+2*p}')
        k.I(f'v_cvt_pk_bf16_f32 v{f16+2+p}, v{tmp+2*p}, v{tmp+1+2*p}')
        k.I(f'v_cvt_pk_bf16_f32 v{f16+4+p}, -v{tmp+4+2*p}, -v{tmp+5+2*p}')
    mark(k, 5)
    a2 = ch; d2 = va.get(24, 4); xf = f40
    for T in range(3):
        cmul4(k, d1+8*T, d1+8*T+4, cs+4*T, sn+4*T, a2+4*T, tmp, True)
        for c in range(2):
            k.I(f'{MF16} {vr(d2+(2*T+c)*4,4)}, {vr(a2+4*T,4)}, {vr(f16+(0 if c else 2),4)}, 0')
    for i in range(12):
        k.I(f'v_lshlrev_b32 v{xf+2*i}, 16, v{xr+i}')
        k.I(f'v_and_b32 v{xf+2*i+1}, 0xffff0000, v{xr+i}')
    oh = va.get(); ox = va.get()
    k.I(f'v_lshrrev_b32 v{ta}, 1, v{vq}')
    k.I(f'v_and_b32 v{ta+1}, 1, v{vq}')
    k.I(f'v_mad_u32_u24 v{oh}, v{vi}, 5, v{ta}')
    k.I(f'v_lshlrev_b32 v{ox}, 4, v{oh}')
    k.I(f'v_lshlrev_b32 v{oh}, 9, v{oh}')
    k.I(f'v_lshl_add_u32 v{oh}, v{ta+1}, 4, v{oh}')
    k.I(f'v_mul_u32_u24 v{ta+1}, {32*1280}, v{ta+1}')
    k.I(f'v_add_u32 v{ox}, v{ox}, v{ta+1}')
    k.srd(36, 4, S * D * 2, H2)
    k.srd(40, 4, S * D * 2, X1)
    k.I('s_lshl_b32 s44, s20, 2')
    k.I('s_lshr_b32 s45, s21, 2')
    k.I('s_add_u32 s44, s44, s45')
    k.I('s_mul_i32 s44, s44, 40960')
    k.I('s_and_b32 s45, s21, 3')
    k.I('s_lshl_b32 s45, s45, 7')
    k.I('s_add_u32 s44, s44, s45')
    k.I('s_lshl_b32 s45, s22, 5')
    k.I('s_add_u32 s44, s44, s45')
    mark(k, 6)
    for T in range(3):
        for c in range(2):
            for p in (0, 2):
                r = (2*T+c)*4+p
                k.I(f'v_pk_fma_f32 {vr(xf+r,2)}, {vr(d2+r,2)}, {vr(mg+4*T+p,2)}, {vr(xf+r,2)}')
    st_ = f40 + 24
    first = True
    for T in range(3):
        for p in (0, 2):
            for c in range(2):
                r = xf+(2*T+c)*4+p
                if first:
                    k.I(f'v_mov_b64 {vr(st_+2*c,2)}, {vr(r,2)}')
                    k.I(f'v_pk_mul_f32 {vr(st_+4+2*c,2)}, {vr(r,2)}, {vr(r,2)}')
                else:
                    k.I(f'v_pk_add_f32 {vr(st_+2*c,2)}, {vr(st_+2*c,2)}, {vr(r,2)}')
                    k.I(f'v_pk_fma_f32 {vr(st_+4+2*c,2)}, {vr(r,2)}, {vr(r,2)}, {vr(st_+4+2*c,2)}')
            first = False
    for i in range(4): k.I(f'v_add_f32 v{st_+2*i}, v{st_+2*i}, v{st_+2*i+1}')
    wave_reduce_to_sgpr(k, [st_, st_+2, st_+4, st_+6], [46, 47, 48, 49])
    mark(k, 7)
    po = d1; ph = d1 + 12
    rr = f40 + 32; nmr = f40 + 34
    ln_scalars(k, 46, 48, rr, nmr, tmp)
    for T in range(3):
        for j in range(4):
            k.I(f'v_cvt_pk_bf16_f32 v{po+4*T+j}, v{xf+8*T+2*j}, v{xf+8*T+2*j+1}')
    for T in range(3):
        for c in range(2):
            for p in (0, 2):
                r = xf+(2*T+c)*4+p
                k.I(f'v_pk_fma_f32 {vr(r,2)}, {vr(r,2)}, {vr(rr,2)}, {vr(nmr,2)} op_sel:[0,{c},{c}] op_sel_hi:[1,{c},{c}]')
    for T in range(3):
        k.I(f'v_permlane16_swap_b32 v{po+4*T}, v{po+4*T+2}')
        k.I(f'v_permlane16_swap_b32 v{po+4*T+1}, v{po+4*T+3}')
    for T in range(3):
        for c in range(2):
            for p in (0, 2):
                r = xf+(2*T+c)*4+p
                k.I(f'v_pk_fma_f32 {vr(r,2)}, {vr(r,2)}, {vr(mc+4*T+p,2)}, {vr(ms+4*T+p,2)}')
    for T in range(3):
        for j in range(4):
            k.I(f'v_cvt_pk_bf16_f32 v{ph+4*T+j}, v{xf+8*T+2*j}, v{xf+8*T+2*j+1}')
    for T in range(3):
        k.I(f'v_permlane16_swap_b32 v{ph+4*T}, v{ph+4*T+2}')
        k.I(f'v_permlane16_swap_b32 v{ph+4*T+1}, v{ph+4*T+3}')
    for T in range(3):
        if T == 2: k.I('s_mov_b32 exec_hi, 0')
        k.I(f'buffer_store_dwordx4 {vr(ph+4*T,4)}, v{oh}, s[36:39], s44 offen offset:{1024*T}')
        k.I(f'buffer_store_dwordx4 {vr(po+4*T,4)}, v{ox}, s[40:43], s28 offen offset:{32*T}')
    stamp_end(k, 3, 4)
    k.label('LD_exit')
    k.I('s_endpgm')
    return k, (256, 256, 4 * PL)

import os
E_NS = 7; E_ST = 20480; E_LEAD = int(os.environ.get('E_LEAD', 3))
def gen_E():
    k = Kernel('ke_kernel')
    stamp_begin(k)
    k.I('s_cmp_ge_u32 s2, 256')
    k.I('s_cbranch_scc1 LE_exit')
    k.I(f's_load_dwordx2 s[4:5], s[0:1], {KA["ws"]}')
    k.I(f's_load_dwordx4 s[8:11], s[0:1], {KA["wg"]}')
    k.I('v_lshrrev_b32 v1, 6, v0')
    k.I('v_and_b32 v2, 63, v0')
    k.I('v_readfirstlane_b32 s22, v1')
    k.I('s_and_b32 s20, s2, 1')
    k.I('s_lshl_b32 s20, s20, 3')
    k.I('s_lshr_b32 s23, s2, 3')
    k.I('s_and_b32 s23, s23, 7')
    k.I('s_add_u32 s20, s20, s23')
    k.I('s_and_b32 s21, s2, 6')
    k.I('s_lshl_b32 s21, s21, 1')
    k.I('s_lshr_b32 s23, s2, 6')
    k.I('s_add_u32 s21, s21, s23')
    k.I('s_cmp_ge_u32 s22, 4')
    st = k.save_state()
    k.I('s_cbranch_scc1 LE_load')
    va = VAlloc(3)
    aa = va.get(); ao = va.get(); ab = va.get(); t0 = va.get(); t1 = va.get(); t2 = va.get()
    fr = [va.get(20, 4), va.get(20, 4)]
    acc = va.get(96, 4)
    k.I('s_and_b32 s24, s22, 1')
    k.I('s_lshr_b32 s25, s22, 1')
    k.I(f'v_lshrrev_b32 v{t0}, 5, v2')
    k.I(f'v_bfe_u32 v{t1}, v2, 2, 2')
    k.I(f'v_lshl_add_u32 v{t0}, v{t0}, 3, v{t1}')
    k.I(f'v_mul_u32_u24 v{aa}, 192, v{t0}')
    k.I(f'v_and_b32 v{t1}, 3, v2')
    k.I(f'v_lshl_add_u32 v{aa}, v{t1}, 3, v{aa}')
    k.I(f'v_bfe_u32 v{t1}, v2, 4, 1')
    k.I(f'v_mul_u32_u24 v{t2}, {6144+32}, v{t1}')
    k.I(f'v_add_u32 v{aa}, v{aa}, v{t2}')
    k.I('s_mul_i32 s26, s24, 96')
    k.I(f'v_add_u32 v{aa}, s26, v{aa}')
    k.I('s_mul_i32 s26, s24, 192')
    k.I(f'v_mul_u32_u24 v{t2}, s26, v{t1}')
    k.I(f'v_sub_u32 v{ao}, v{aa}, v{t2}')
    k.I(f'v_lshlrev_b32 v{ab}, 4, v2')
    k.I('s_lshl_b32 s26, s25, 12')
    k.I(f's_add_u32 s26, s26, 12288')
    k.I(f'v_add_u32 v{ab}, s26, v{ab}')
    aa2 = va.get(); ao2 = va.get(); ab2 = va.get(); aa3 = va.get(); ao3 = va.get(); ab3 = va.get()
    for (d_, s_) in ((aa2, aa), (ao2, ao), (ab2, ab)): k.I(f'v_add_u32 v{d_}, {3*E_ST}, v{s_}')
    for (d_, s_) in ((aa3, aa), (ao3, ao), (ab3, ab)): k.I(f'v_add_u32 v{d_}, {6*E_ST}, v{s_}')
    bases = [(aa, ao, ab), (aa2, ao2, ab2), (aa3, ao3, ab3)]
    def reads(sig, kap):
        slot = sig % E_NS
        ba, bo, bb = bases[slot // 3]; off = (slot % 3) * E_ST
        f = fr[kap]
        out = []
        for nt in range(2):
            out.append(f'ds_read_b128 {vr(f+12+4*nt,4)}, v{bb} offset:{off+2048*nt+1024*kap}')
        for mt in range(3):
            for hf in range(2):
                out.insert(len(out) if (mt or hf) else 1, f'ds_read_b64_tr_b16 {vr(f+4*mt+2*hf,2)}, v{bo if mt == 2 else ba} offset:{off+(16*kap+4*hf)*192+32*mt}')
        return out
    def mfmas(kap, first):
        f = fr[kap]; out = []
        for mt in range(3):
            for nt in range(2):
                dd = vr(acc+(2*mt+nt)*16, 16)
                out.append(f'{MF32} {dd}, {vr(f+4*mt,4)}, {vr(f+12+4*nt,4)}, {0 if first else dd}')
        return out
    oo = va.get()
    k.I(f'v_bfe_u32 v{t0}, v2, 4, 1')
    k.I(f'v_mul_u32_u24 v{oo}, 49152, v{t0}')
    k.I(f'v_lshrrev_b32 v{t0}, 5, v2')
    k.I(f'v_lshl_add_u32 v{oo}, v{t0}, 8, v{oo}')
    k.I(f'v_and_b32 v{t0}, 15, v2')
    k.I(f'v_lshl_add_u32 v{oo}, v{t0}, 4, v{oo}')
    k.srd(12, 4, S * F * 2, HH)
    k.I('s_lshl_b32 s27, s20, 1')
    k.I('s_add_u32 s27, s27, s25')
    k.I(f's_mul_i32 s27, s27, {4*49152}')
    k.I('s_lshl_b32 s28, s21, 1')
    k.I('s_add_u32 s28, s28, s24')
    k.I(f's_mul_i32 s28, s28, {3*512}')
    k.I('s_add_u32 s27, s27, s28')
    k.I(f's_add_u32 s28, s27, {2*49152}')
    def interleave(ms, rs, barrier_after=None):
        ri = 0
        for i, m in enumerate(ms):
            k.I(m)
            n = 2 if ri + 2 <= len(rs) else len(rs) - ri
            for _ in range(n):
                k.I(rs[ri]); ri += 1
            if barrier_after == i: k.barrier()
    mark(k, 1)
    k.I('s_barrier')
    mark(k, 2)
    for r in reads(0, 0): k.I(r)
    for sig in range(20):
        interleave(mfmas(0, sig == 0), reads(sig, 1), barrier_after=5 if sig < 19 else None)
        if sig in (4, 9, 14): mark(k, 3 + sig // 5)
        interleave(mfmas(1, False), reads(sig + 1, 0) if sig < 19 else [])
    mark(k, 6)
    pk = fr[0]
    for mt in range(3):
        for nt in range(2):
            a = acc+(2*mt+nt)*16
            for p in range(4):
                k.I(f'v_pk_mul_f32 {vr(a+2*p,2)}, {vr(a+2*p,2)}, {vr(a+8+2*p,2)}')
            for p in range(4):
                k.I(f'v_cvt_pk_bf16_f32 v{a+8+p}, v{a+2*p}, v{a+2*p+1}')
            k.I(f'buffer_store_dwordx4 {vr(a+8,4)}, v{oo}, s[12:15], s{27+nt} offen offset:{512*mt}')
    stamp_end(k, 4, 4)
    k.I('s_endpgm')
    k.label('LE_load', fresh=True); k.restore_state(st)
    k.I('s_sub_u32 s22, s22, 4')
    va = VAlloc(3)
    wo = va.get(3); ho = va.get(); t0 = va.get(); t1 = va.get(); t2 = va.get()
    k.I('s_lshr_b32 s24, s22, 1')
    k.I('s_mul_i32 s25, s24, 10')
    for p in range(3):
        k.I(f'v_add_u32 v{t0}, {64*p}, v2')
        k.I(f'v_mul_u32_u24 v{t1}, 171, v{t0}')
        k.I(f'v_lshrrev_b32 v{t1}, 11, v{t1}')
        k.I(f'v_mul_u32_u24 v{t2}, 12, v{t1}')
        k.I(f'v_sub_u32 v{t0}, v{t0}, v{t2}')
        k.I(f'v_add_u32 v{t0}, s25, v{t0}')
        k.I(f'v_subrev_u32 v{t2}, 12, v{t0}')
        k.I(f'v_min_u32 v{t0}, v{t0}, v{t2}')
        k.I(f'v_mul_u32_u24 v{wo+p}, 3072, v{t1}')
        k.I(f'v_lshl_add_u32 v{wo+p}, v{t0}, 4, v{wo+p}')
        if p: k.I(f'v_subrev_u32 v{wo+p}, {1024*p}, v{wo+p}')
    k.I(f'v_lshlrev_b32 v{ho}, 4, v2')
    k.I('s_cmp_eq_u32 s24, 0')
    k.I('s_cselect_b32 s12, s8, s10')
    k.I('s_cselect_b32 s13, s9, s11')
    k.I(f's_mov_b32 s14, {D*F*2}')
    k.I('s_mov_b32 s15, 0x00020000')
    k.srd(16, 4, S * D * 2, H2)
    k.I('s_and_b32 s26, s22, 1')
    k.I(f's_mul_i32 s26, s26, {16*3072}')
    k.I('s_mul_i32 s27, s21, 192')
    k.I('s_add_u32 s26, s26, s27')
    k.I('s_lshl_b32 s27, s20, 2')
    k.I('s_add_u32 s27, s27, s22')
    k.I('s_mul_i32 s27, s27, 40960')
    k.I('s_mul_i32 s28, s22, 3072')
    k.I('s_lshl_b32 s29, s22, 11')
    k.I('s_add_u32 s29, s29, 12288')
    def issue(sig):
        slot = sig % E_NS
        k.I(f's_add_u32 m0, s29, {slot*E_ST}')
        k.I(f'buffer_load_dwordx4 v{ho}, s[16:19], s27 offen lds', tag=sig)
        k.I(f'buffer_load_dwordx4 v{ho}, s[16:19], s27 offen offset:1024 lds', tag=sig)
        k.I(f's_add_u32 m0, s28, {slot*E_ST}')
        k.I('s_add_u32 s27, s27, 2048')
        for p in range(3):
            k.I(f'buffer_load_dwordx4 v{wo+p}, s[12:15], s26 offen offset:{1024*p} lds', tag=sig)
        k.I(f's_add_u32 s26, s26, {32*3072}')
    for sig in range(E_LEAD): issue(sig)
    for sig in range(20):
        k.wait_tag(sig)
        k.I('s_barrier')
        if sig + E_LEAD < 20: issue(sig + E_LEAD)
    k.label('LE_exit')
    k.I('s_endpgm')
    return k, (256, 512, E_NS * E_ST)

F_DEPTH = int(os.environ.get('F_DEPTH', 3))
def gen_F():
    k = Kernel('kf_kernel')
    stamp_begin(k)
    k.I('s_cmp_ge_u32 s2, 256')
    k.I('s_cbranch_scc1 LF_exit')
    k.I(f's_load_dwordx2 s[4:5], s[0:1], {KA["ws"]}')
    k.I(f's_load_dwordx2 s[6:7], s[0:1], {KA["out"]}')
    k.I('v_lshrrev_b32 v1, 6, v0')
    k.I('v_and_b32 v2, 63, v0')
    k.I('v_readfirstlane_b32 s22, v1')
    k.I('s_and_b32 s20, s2, 7')
    k.I('s_lshl_b32 s20, s20, 2')
    k.I('s_lshr_b32 s23, s2, 6')
    k.I('s_add_u32 s20, s20, s23')
    k.I('s_lshr_b32 s21, s2, 3')
    k.I('s_and_b32 s21, s21, 7')
    va = VAlloc(3)
    vo = va.get(); t0 = va.get(); t1 = va.get(); t2 = va.get(); oo = va.get(); go = va.get()
    x1r = va.get(10, 2); gb = va.get(20, 4)
    buf = [va.get(36, 4) for _ in range(max(F_DEPTH, 4))]
    k.I(f'v_lshlrev_b32 v{vo}, 4, v2')
    for i in range(4):
        k.I(f's_add_u32 s{24+i}, s22, {i}')
        k.I(f's_and_b32 s{24+i}, s{24+i}, 3')
        k.I(f's_lshl_b32 s23, s20, 2')
        k.I(f's_add_u32 s{24+i}, s{24+i}, s23')
        k.I(f's_mul_i32 s{24+i}, s{24+i}, 49152')
        k.I(f's_mul_i32 s23, s22, {12*1024}')
        k.I(f's_add_u32 s{24+i}, s{24+i}, s23')
    k.I('s_mul_i32 s28, s21, 48')
    k.I('s_mul_i32 s23, s22, 12')
    k.I('s_add_u32 s28, s28, s23')
    k.I('s_mul_i32 s28, s28, 5120')
    k.I('s_add_u32 s29, s28, 4096')
    k.srd(8, 4, S * F * 2, HH)
    k.srd(12, 4, F * D * 2, WD)
    def loads(kp):
        b = buf[kp % F_DEPTH]; out = []
        for i in range(4):
            out.append(f'buffer_load_dwordx4 {vr(b+20+4*i,4)}, v{vo}, s[8:11], s{24+i} offen offset:{1024*(kp%4)}')
        for dt in range(5):
            if dt < 4: out.insert(min(2*dt, len(out)), f'buffer_load_dwordx4 {vr(b+4*dt,4)}, v{vo}, s[12:15], s28 offen offset:{1024*dt}')
            else: out.append(f'buffer_load_dwordx4 {vr(b+4*dt,4)}, v{vo}, s[12:15], s29 offen')
        out.append('s_add_u32 s28, s28, 5120')
        out.append('s_add_u32 s29, s29, 5120')
        if kp % 4 == 3:
            for i in range(4): out.append(f's_add_u32 s{24+i}, s{24+i}, 4096')
        return out
    for kp in range(F_DEPTH):
        for l in loads(kp): k.I(l)
    mark(k, 1)
    k.I('s_lshl_b32 s30, s20, 2')
    k.I('s_add_u32 s30, s30, s22')
    k.I('s_lshr_b32 s31, s30, 3')
    k.I('s_lshl_b32 s31, s31, 7')
    k.I('s_and_b32 s30, s30, 7')
    k.I('s_lshl_b32 s30, s30, 2')
    k.I('s_add_u32 s31, s31, s30')
    k.I('s_mul_i32 s31, s31, 1280')
    k.I('s_mul_i32 s30, s21, 160')
    k.I('s_add_u32 s31, s31, s30')
    k.I(f'v_and_b32 v{t0}, 3, v2')
    k.I(f'v_lshlrev_b32 v{t0}, 5, v{t0}')
    k.I(f'v_bfe_u32 v{t1}, v2, 2, 2')
    k.I(f'v_add_u32 v{t0}, v{t0}, v{t1}')
    k.I(f'v_mul_u32_u24 v{oo}, 1280, v{t0}')
    k.I(f'v_lshrrev_b32 v{t1}, 4, v2')
    k.I(f'v_mul_u32_u24 v{go}, 40, v{t1}')
    k.I(f'v_add_u32 v{oo}, v{oo}, v{go}')
    k.I(f'v_lshlrev_b32 v{go}, 1, v{go}')
    k.srd(16, 4, S * D * 2, X1)
    k.srd(32, 4, 6 * D * 4, MODN)
    k.srd(36, 6, S * D * 2)
    k.I('s_lshl_b32 s30, s30, 1')
    k.I(f's_add_u32 s30, s30, {5*2560}')
    epi = [f'buffer_load_dwordx4 {vr(x1r,4)}, v{oo}, s[16:19], s31 offen',
           f'buffer_load_dwordx4 {vr(x1r+4,4)}, v{oo}, s[16:19], s31 offen offset:16',
           f'buffer_load_dwordx2 {vr(x1r+8,2)}, v{oo}, s[16:19], s31 offen offset:32']
    epi += [f'buffer_load_dwordx4 {vr(gb+4*dt,4)}, v{go}, s[32:35], s30 offen offset:{16*dt}' for dt in range(5)]
    for kp in range(12):
        b = buf[kp % F_DEPTH]
        if kp in (1, 4, 8): mark(k, 2 + (kp // 4))
        nxt = loads(kp - 1 + F_DEPTH) if (kp >= 1 and kp - 1 + F_DEPTH < 12) else (epi if kp == 12 - F_DEPTH + 1 else [])
        li = 0; n = 0
        for i in range(4):
            for dt in range(5):
                dd = ar((5*i+dt)*4, 4)
                k.I(f'{MF16} {dd}, {vr(b+4*dt,4)}, {vr(b+20+4*i,4)}, {dd if kp else 0}')
                n += 1
                if n % 2 == 0 and li < len(nxt):
                    k.I(nxt[li]); li += 1
        while li < len(nxt): k.I(nxt[li]); li += 1
    mark(k, 5)
    for i in range(1, 4):
        k.I(f's_add_u32 s40, s22, {i}')
        k.I('s_and_b32 s40, s40, 3')
        k.I(f's_mul_i32 s40, s40, {15*1024}')
        k.I(f'v_add_u32 v{t0}, s40, v{vo}')
        for dt in range(5):
            k.I(f'ds_write_b128 v{t0}, {ar((5*i+dt)*4,4)} offset:{((i-1)*5+dt)*1024}')
    k.I(f's_mul_i32 s40, s22, {15*1024}')
    k.I(f'v_add_u32 v{t0}, s40, v{vo}')
    own = buf[0]; xf = buf[1]
    for j in range(20): k.I(f'v_accvgpr_read_b32 v{own+j}, a{j}')
    for j in range(10):
        k.I(f'v_lshlrev_b32 v{xf+2*j}, 16, v{x1r+j}')
        k.I(f'v_and_b32 v{xf+2*j+1}, 0xffff0000, v{x1r+j}')
    k.barrier()
    mark(k, 6)
    rd = buf[2]
    for dt in range(5):
        for i in range(3):
            k.I(f'ds_read_b128 {vr(rd+(3*dt+i)*4,4)}, v{t0} offset:{(i*5+dt)*1024}')
    for dt in range(5):
        for p in (0, 2):
            o_ = own+4*dt+p
            k.I(f'v_pk_add_f32 {vr(o_,2)}, {vr(o_,2)}, {vr(rd+(3*dt)*4+p,2)}')
            k.I(f'v_pk_add_f32 {vr(rd+(3*dt+1)*4+p,2)}, {vr(rd+(3*dt+1)*4+p,2)}, {vr(rd+(3*dt+2)*4+p,2)}')
        for p in (0, 2):
            o_ = own+4*dt+p
            k.I(f'v_pk_add_f32 {vr(o_,2)}, {vr(o_,2)}, {vr(rd+(3*dt+1)*4+p,2)}')
        for p in (0, 2):
            o_ = own+4*dt+p
            k.I(f'v_pk_fma_f32 {vr(o_,2)}, {vr(o_,2)}, {vr(gb+4*dt+p,2)}, {vr(xf+4*dt+p,2)}')
        for p in (0, 2):
            k.I(f'v_cvt_pk_bf16_f32 v{x1r+2*dt+p//2}, v{own+4*dt+p}, v{own+4*dt+p+1}')
    k.I(f'buffer_store_dwordx4 {vr(x1r,4)}, v{oo}, s[36:39], s31 offen')
    k.I(f'buffer_store_dwordx4 {vr(x1r+4,4)}, v{oo}, s[36:39], s31 offen offset:16')
    k.I(f'buffer_store_dwordx2 {vr(x1r+8,2)}, v{oo}, s[36:39], s31 offen offset:32')
    stamp_end(k, 5, 4)
    k.label('LF_exit')
    k.I('s_endpgm')
    return k, (256, 256, 60 * 1024)

HEADER = open('adaLN_cond__spectral_gfnet__glu_gated_bilinear__prompt.s.ref').read().split('; Override launch')[0]

def build(path, gens=None):
    ks = [g() for g in (gens or (gen_A, gen_B, gen_C, gen_D, gen_E, gen_F))]
    s = HEADER
    for k, (g, b, l) in ks:
        s += f'; @launch kernel={k.name} grid=({g},1,1) block=({b},1,1) lds={l}\n'
    s += '.amdgcn_target "amdgcn-amd-amdhsa--gfx950"\n.text\n'
    for k, _ in ks: s += k.text()
    s += 'Lcode_end:\n'
    s += '.section .rodata,"a"\n'
    for k, _ in ks: s += k.descriptor()
    open(path, 'w').write(s)
    for k, cfg in ks: print(k.name, cfg, 'instrs', k.nins, 'vgpr', k.maxv + 1, 'agpr', k.maxa + 1, 'sgpr', k.maxs + 1)

if __name__ == '__main__':
    out = sys.argv[1] if len(sys.argv) > 1 else 'adaLN_cond__spectral_gfnet__glu_gated_bilinear__prompt.s'
    if len(sys.argv) > 2 and sys.argv[2] == 'stamps': STAMPS = True
    build(out)
```

```python
import gen
from gen import *
def mk_rd(name, off, nload, src='ws', write=False):
    k = Kernel(name)
    k.I('s_cmp_ge_u32 s2, 256')
    k.I(f's_cbranch_scc1 L{name}')
    k.I(f's_load_dwordx2 s[4:5], s[0:1], {KA[src]}')
    k.I('v_lshlrev_b32 v3, 4, v0')
    k.I(f's_mul_i32 s23, s2, {nload*4096}')
    k.srd(8, 4, 256*nload*4096 if src == 'ws' else S*D*2, off)
    for i in range(nload):
        if write: k.I(f'buffer_store_dwordx4 v[4:7], v3, s[8:11], s23 offen')
        else: k.I(f'buffer_load_dwordx4 {vr(4+4*i,4)}, v3, s[8:11], s23 offen')
        k.I('s_add_u32 s23, s23, 4096')
    k.waitcnt(vm=0)
    k.label(f'L{name}')
    k.I('s_endpgm')
    return k, (256, 256, 0)
base = (gen_A, gen_B, gen_C, gen_D, gen_E, gen_F)
build('p_base.s', base)
build('p_rd64.s', (lambda: mk_rd('kz_kernel', 64 << 20, 16),) + base)
build('p_rd240.s', (lambda: mk_rd('kz_kernel', 240 << 20, 16),) + base)
build('p_wr64.s', (lambda: mk_rd('kz_kernel', 64 << 20, 16, write=True),) + base)
build('p_bx.s', (lambda: mk_rd('kz_kernel', 0, 3, src='bx'),) + base)
build('p_rd0.s', (lambda: mk_rd('kz_kernel', 64 << 20, 0),) + base)
```

```python
import re

TRANS = ('v_exp_f32', 'v_log_f32', 'v_rcp_f32', 'v_rsq_f32', 'v_sqrt_f32', 'v_sin_f32', 'v_cos_f32', 'v_rcp_iflag_f32')
REG_RE = re.compile(r'^(-|abs\()?(\|)?([vas])(?:(\d+)|\[(\d+):(\d+)\])\|?\)?$')

def parse_reg(tok):
    tok = tok.strip()
    if tok in ('vcc', 'vcc_lo', 'vcc_hi'): return [('vcc', 0)]
    if tok in ('exec', 'exec_lo', 'exec_hi'): return [('exec', 0)]
    if tok == 'm0': return [('m0', 0)]
    m = REG_RE.match(tok)
    if not m: return []
    k = m.group(3)
    if m.group(4) is not None: return [(k, int(m.group(4)))]
    return [(k, i) for i in range(int(m.group(5)), int(m.group(6)) + 1)]

def split_ops(s):
    out, depth, cur = [], 0, ''
    for ch in s:
        if ch in '[(': depth += 1
        if ch in '])': depth -= 1
        if ch == ',' and depth == 0:
            out.append(cur.strip()); cur = ''
        else: cur += ch
    if cur.strip(): out.append(cur.strip())
    return out

class Ins:
    __slots__ = ('text', 'op', 'rd', 'wr', 'cls', 'srcc', 'ab', 'passes', 'dpp', 'data', 'lds_dma', 'states', 'tag')
    def __init__(self, text):
        self.text = text
        t = text.split(';')[0].strip()
        parts = t.split(None, 1)
        self.op = op = parts[0]
        rest = parts[1] if len(parts) > 1 else ''
        ops = split_ops(rest)
        mods = ''
        if ops:
            last = ops[-1]
            depth = 0
            for i, ch in enumerate(last):
                if ch in '[(': depth += 1
                if ch in '])': depth -= 1
                if ch == ' ' and depth == 0:
                    mods = last[i + 1:]; ops[-1] = last[:i]; break
        self.rd, self.wr = [], []
        self.srcc, self.ab, self.passes, self.dpp, self.data, self.lds_dma = [], [], 0, False, [], False
        self.states = 1
        self.tag = None
        R = [parse_reg(o) for o in ops]
        base = op.replace('_e32', '').replace('_e64', '').replace('_dpp', '').replace('_sdwa', '')
        if op.startswith('v_mfma'):
            self.cls = 'mfma'
            self.wr = R[0]; self.ab = R[1] + R[2]; self.srcc = R[3]
            self.rd = self.ab + self.srcc
            self.passes = 8 if '32x32x16' in op else 4
            assert '32x32x16' in op or '16x16x32' in op, op
        elif op.startswith('v_'):
            self.cls = 'trans' if base in TRANS else 'valu'
            self.dpp = op.endswith('_dpp') or 'row_' in mods or 'quad_perm' in mods
            if base.startswith('v_cmpx'):
                self.wr = R[0] + [('exec', 0)]; self.rd = sum(R[1:], [])
            elif base.startswith('v_cmp'):
                self.wr = R[0]; self.rd = sum(R[1:], [])
            elif base in ('v_add_co_u32', 'v_sub_co_u32', 'v_subrev_co_u32', 'v_addc_co_u32', 'v_subb_co_u32', 'v_mad_u64_u32', 'v_div_scale_f32'):
                self.wr = R[0] + R[1]; self.rd = sum(R[2:], [])
            elif base.startswith('v_permlane') and 'swap' in base:
                self.wr = R[0] + R[1]; self.rd = R[0] + R[1]; self.cls = 'permlane'
            elif base in ('v_readlane_b32', 'v_readfirstlane_b32'):
                self.wr = R[0]; self.rd = sum(R[1:], []); self.cls = 'readlane'
            elif base == 'v_nop':
                pass
            else:
                self.wr = R[0]; self.rd = sum(R[1:], [])
                if base in ('v_fmac_f32', 'v_dot2c_f32_bf16', 'v_writelane_b32', 'v_pk_fmac_f16') or self.dpp:
                    self.rd = self.rd + R[0]
                if base == 'v_cndmask_b32' and len(ops) == 3: self.rd = self.rd + [('vcc', 0)]
        elif op.startswith('buffer_') or op.startswith('global_'):
            self.cls = 'vmem'
            toks = mods.split()
            if op.startswith('buffer_load') and 'lds' in toks:
                self.lds_dma = True; self.rd = sum(R, []) + [('m0', 0)]
            elif op.startswith('global_load_lds'):
                self.lds_dma = True; self.rd = sum(R, []) + [('m0', 0)]
            elif '_load' in op:
                self.wr = R[0]; self.rd = sum(R[1:], [])
                if 'd16' in op: self.rd = self.rd + R[0]
            elif op.startswith('buffer_store'):
                self.rd = sum(R, []); self.data = R[0]
            elif op.startswith('global_store'):
                self.rd = sum(R, []); self.data = R[1]
            elif op.startswith('buffer_atomic'):
                self.rd = sum(R, [])
                if 'sc0' in toks: self.wr = R[0]
            elif op in ('buffer_wbl2', 'buffer_inv'):
                pass
            else:
                raise ValueError('unhandled vmem ' + text)
        elif op.startswith('ds_'):
            self.cls = 'ds'
            if op.startswith('ds_read') or op.startswith('ds_bpermute') or op.startswith('ds_swizzle') or op.startswith('ds_permute') or '_rtn' in op:
                self.wr = R[0]; self.rd = sum(R[1:], [])
            else:
                self.rd = sum(R, [])
        elif op.startswith('s_load') or op.startswith('s_buffer_load') or op in ('s_memtime', 's_memrealtime'):
            self.cls = 'smem'; self.wr = R[0]; self.rd = sum(R[1:], [])
        elif op == 's_nop':
            self.cls = 'nop'; self.states = int(ops[0], 0) + 1
        elif op == 's_waitcnt':
            self.cls = 'wait'
        elif op in ('s_barrier', 's_endpgm', 's_sleep', 's_setprio'):
            self.cls = 'misc'
        elif op.startswith('s_cbranch') or op == 's_branch':
            self.cls = 'branch'
        elif op.startswith('s_cmp') or op.startswith('s_bitcmp'):
            self.cls = 'salu'; self.rd = sum(R, [])
        elif op.startswith('s_'):
            self.cls = 'salu'; self.wr = R[0]; self.rd = sum(R[1:], [])
            if 'saveexec' in op: self.wr = self.wr + [('exec', 0)]; self.rd = self.rd + [('exec', 0)]
            if op in ('s_addk_i32', 's_mulk_i32'): self.rd = self.rd + R[0]
        else:
            raise ValueError('unhandled ' + text)

VALUISH = ('valu', 'trans', 'permlane', 'readlane')

def need_states(p, c):
    n = 0
    pw = set(p.wr); cr = set(c.rd); cw = set(c.wr)
    pwv = {r for r in pw if r[0] in 'va'}
    pws = {r for r in pw if r[0] in ('s', 'vcc')}
    if p.cls in VALUISH:
        if c.cls == 'mfma' and pwv & cr: n = max(n, 2)
        if c.cls in VALUISH and c.dpp and pwv & cr: n = max(n, 2)
        if c.cls == 'readlane' and pwv & cr: n = max(n, 1)
        if c.cls == 'permlane' and pwv & cr: n = max(n, 2)
        if p.cls == 'trans' and c.cls in VALUISH and c.cls != 'trans' and pwv & cr: n = max(n, 1)
        if p.cls == 'trans' and c.cls in ('vmem', 'ds') and pwv & cr: n = max(n, 1)
        if pws & cr:
            if c.cls == 'vmem': n = max(n, 5)
            elif c.cls == 'readlane' or c.op.startswith('v_writelane'): n = max(n, 4)
            elif c.cls in VALUISH or c.cls == 'mfma': n = max(n, 2)
            elif c.cls in ('salu', 'smem'): n = max(n, 1)
        if ('vcc', 0) in pw and c.op in ('s_cbranch_vccz', 's_cbranch_vccnz'): n = max(n, 5)
        if ('exec', 0) in pw:
            if c.cls in VALUISH and c.dpp: n = max(n, 5)
            if c.cls in ('mfma', 'permlane', 'readlane'): n = max(n, 4)
            if ('exec', 0) in cr: n = max(n, 2)
            if c.op in ('s_cbranch_execz', 's_cbranch_execnz'): n = max(n, 5)
    if p.cls == 'mfma':
        big = {4: 8, 8: 12}[p.passes]
        if c.cls == 'mfma':
            if pw & set(c.ab): n = max(n, big)
            if pw & set(c.srcc):
                if list(p.wr) == list(c.srcc) and p.passes == c.passes: pass
                else: n = max(n, {4: 6, 8: 10}[p.passes])
            elif pw & cw: n = max(n, big)
        elif c.cls in VALUISH or c.cls in ('vmem', 'ds'):
            if pw & (cr | cw): n = max(n, big)
            if set(p.srcc) & cw: n = max(n, {4: 3, 8: 7}[p.passes])
    if p.cls == 'vmem' and len(p.data) >= 3 and set(p.data) & cw:
        n = max(n, 2 if c.cls in VALUISH else 1)
    if p.cls == 'salu' and ('m0', 0) in pw and c.cls == 'vmem' and c.lds_dma: n = max(n, 1)
    return n

class Kernel:
    def __init__(self, name):
        self.name = name
        self.out = []
        self.hist = []
        self.vm = []
        self.lg = []
        self.maxv = -1; self.maxs = -1; self.maxa = -1
        self.auto = True
        self.nins = 0
        self.bg = []; self.bg_every = 0; self.bg_cnt = 0; self._in_bg = False
    def raw(self, s): self.out.append(s)
    def comment(self, s): self.out.append('    ; ' + s)
    def _push(self, ins):
        self.out.append('    ' + ins.text)
        self.hist.append(ins)
        if len(self.hist) > 24: self.hist.pop(0)
        self.nins += 1
    def _nop(self, n):
        while n > 0:
            k = min(n, 16)
            self._push(Ins(f's_nop {k - 1}')); n -= k
    def _hazard(self, ins):
        need = 0; dist = 0
        for p in reversed(self.hist):
            n = need_states(p, ins)
            if n > dist: need = max(need, n - dist)
            dist += p.states
            if dist >= 20: break
        if need: self._nop(need)
    def waitcnt(self, vm=None, lgkm=None):
        parts = []
        if vm is not None:
            vm = min(vm, 63)
            parts.append(f'vmcnt({vm})')
            if len(self.vm) > vm: self.vm = self.vm[len(self.vm) - vm:] if vm else []
        if lgkm is not None:
            lgkm = min(lgkm, 15)
            parts.append(f'lgkmcnt({lgkm})')
            if len(self.lg) > lgkm: self.lg = self.lg[len(self.lg) - lgkm:] if lgkm else []
        self._push(Ins('s_waitcnt ' + ' '.join(parts)))
    def wait_tag(self, tag):
        idx = [i for i, (_, t) in enumerate(self.vm) if t == tag]
        if idx: self.waitcnt(vm=len(self.vm) - 1 - idx[-1])
    def I(self, text, tag=None, noflush=False):
        ins = Ins(text)
        for k, n in ins.rd + ins.wr:
            if k == 'v': self.maxv = max(self.maxv, n)
            if k == 's': self.maxs = max(self.maxs, n)
            if k == 'a': self.maxa = max(self.maxa, n)
        assert ins.cls != 'wait', 'use waitcnt()'
        if self.auto:
            touched = set(ins.rd) | set(ins.wr)
            vmw = None; lgw = None
            for i in range(len(self.vm) - 1, -1, -1):
                if self.vm[i][0] & touched:
                    vmw = len(self.vm) - 1 - i; break
            for i in range(len(self.lg) - 1, -1, -1):
                if self.lg[i][0] & touched:
                    lgw = len(self.lg) - 1 - i
                    if any(s for _, s in self.lg): lgw = 0
                    break
            if vmw is not None or lgw is not None: self.waitcnt(vm=vmw, lgkm=lgw)
        if ins.cls == 'branch' and not noflush:
            self.flush()
        self._hazard(ins)
        self._push(ins)
        if ins.cls == 'vmem' and ins.op not in ('buffer_wbl2', 'buffer_inv'): self.vm.append((set(ins.wr), tag))
        elif ins.cls == 'vmem': self.vm.append((set(), tag))
        if ins.cls == 'ds': self.lg.append((set(ins.wr), False))
        if ins.cls == 'smem': self.lg.append((set(ins.wr), True))
        if self.bg and self.bg_every and not self._in_bg and ins.cls not in ('branch',):
            self.bg_cnt += 1
            if self.bg_cnt >= self.bg_every:
                self.bg_cnt = 0
                self.emit_bg(1)
    def emit_bg(self, n):
        self._in_bg = True
        for _ in range(n):
            if not self.bg: break
            grp = self.bg.pop(0)
            for t in grp: self.I(t)
        self._in_bg = False
    def flush(self):
        need = 0; dist = 0
        for p in reversed(self.hist):
            w = 0
            if p.cls == 'mfma': w = {4: 8, 8: 12}[p.passes]
            elif p.cls in VALUISH:
                w = 5 if any(r[0] in ('s', 'vcc', 'exec') for r in p.wr) else 2
            elif p.cls == 'vmem' and len(p.data) >= 3: w = 2
            elif p.cls == 'salu' and ('m0', 0) in p.wr: w = 1
            if w > dist: need = max(need, w - dist)
            dist += p.states
            if dist >= 20: break
        if need > 1: self._nop(need - 1)
    def label(self, name, fresh=False):
        if not fresh:
            self.flush(); self._nop(1) if False else None
        self.out.append(name + ':')
        if fresh: self.hist = []
    def save_state(self): return (list(self.vm), list(self.lg))
    def restore_state(self, st): self.vm, self.lg = list(st[0]), list(st[1])
    def barrier(self, vm=None, lgkm=0):
        self.waitcnt(vm=vm, lgkm=lgkm)
        self.I('s_barrier')
    def srd(self, d, base, nbytes, off=0):
        if off:
            self.I(f's_add_u32 s{d}, s{base}, {off}')
            self.I(f's_addc_u32 s{d+1}, s{base+1}, 0')
        else:
            self.I(f's_mov_b32 s{d}, s{base}')
            self.I(f's_mov_b32 s{d+1}, s{base+1}')
        self.I(f's_mov_b32 s{d+2}, {nbytes}')
        self.I(f's_mov_b32 s{d+3}, 0x00020000')
    def text(self):
        hdr = f'.globl {self.name}\n.p2align 8\n.type {self.name},@function\n{self.name}:\n'
        return hdr + '\n'.join(self.out) + '\n'
    def descriptor(self, min_vgpr=0):
        nv = max(self.maxv + 1, 4)
        acc = (nv + 3) // 4 * 4
        tot = acc + self.maxa + 1 if self.maxa >= 0 else nv
        tot = max(tot, min_vgpr)
        assert acc <= 256 and tot <= 512, (self.name, acc, tot)
        return f""".p2align 6
.amdhsa_kernel {self.name}
  .amdhsa_next_free_vgpr {tot}
  .amdhsa_next_free_sgpr {max(self.maxs + 1, 16)}
  .amdhsa_accum_offset {acc}
  .amdhsa_group_segment_fixed_size 0
  .amdhsa_kernarg_size 96
  .amdhsa_user_sgpr_count 2
  .amdhsa_user_sgpr_kernarg_segment_ptr 1
  .amdhsa_system_sgpr_workgroup_id_x 1
.end_amdhsa_kernel
"""

class VAlloc:
    def __init__(self, start=1, limit=256): self.n = start; self.limit = limit
    def get(self, cnt=1, align=1):
        if cnt >= 2 and align == 1: align = 2
        self.n = (self.n + align - 1) // align * align
        r = self.n; self.n += cnt
        assert self.n <= self.limit, 'out of vgprs'
        return r

def vr(a, n): return f'v[{a}:{a+n-1}]' if n > 1 else f'v{a}'
def ar(a, n): return f'a[{a}:{a+n-1}]' if n > 1 else f'a{a}'
import struct
def fhex(f): return '0x%08x' % struct.unpack('<I', struct.pack('<f', f))[0]
```

```python
import sys, math, os
import gen
from gen import *
from gen import mark, stamp_begin, stamp_end

WGU = 0x1220000
FLAGS = 0x9000
WS_END2 = WGU + D * 2 * F * 2

def env(n, d): return int(os.environ.get(n, d))

def role_mod(k, s_c, s_wmod, lexit):
    va = VAlloc(1)
    vrw = va.get(); voff = va.get(); vc = va.get(10); vw = va.get(40, 4); acc = va.get(8, 4); t0 = va.get(); t1 = va.get(); vco = va.get()
    k.I(f'v_lshrrev_b32 v{vrw}, 2, v0')
    k.I(f'v_mul_u32_u24 v{voff}, 7680, v{vrw}')
    k.I(f'v_and_b32 v{t0}, 3, v0')
    k.I(f'v_lshl_add_u32 v{voff}, v{t0}, 4, v{voff}')
    k.I(f'v_lshlrev_b32 v{vco}, 1, v{vrw}')
    k.I('s_lshl_b32 s23, s20, 6')
    k.srd(24, s_wmod, D * 6 * D * 2)
    k.srd(28, s_c, D * 2)
    for i in range(10):
        k.I(f'buffer_load_dwordx4 {vr(vw+4*i,4)}, v{voff}, s[24:27], s23 offen')
        if i < 9: k.I(f's_add_u32 s23, s23, {64*7680}')
        if i == 0:
            for j in range(10): k.I(f'buffer_load_ushort v{vc+j}, v{vco}, s[28:31], 0 offen offset:{128*j}')
    k.srd(32, 4, 0x8000)
    for j in range(8): k.I(f'v_mov_b32 v{acc+j}, 0')
    tt = va.get(10)
    R = range(10)
    for i in R: k.I(f'v_lshlrev_b32 v{vc+i}, 16, v{vc+i}')
    for i in R: k.I(f'v_mul_f32 v{tt+i}, {fhex(-math.log2(math.e))}, v{vc+i}')
    for i in R: k.I(f'v_exp_f32 v{tt+i}, v{tt+i}')
    for i in R: k.I(f'v_add_f32 v{tt+i}, 1.0, v{tt+i}')
    for i in R: k.I(f'v_rcp_f32 v{tt+i}, v{tt+i}')
    for i in R: k.I(f'v_mul_f32 v{vc+i}, v{vc+i}, v{tt+i}')
    for i in R: k.I(f'v_cvt_pk_bf16_f32 v{vc+i}, v{vc+i}, v{vc+i}')
    for i in R: k.I(f'v_and_b32 v{vc+i}, 0xffff0000, v{vc+i}')
    for i in R:
        for j in range(4):
            k.I(f'v_lshlrev_b32 v{t0}, 16, v{vw+4*i+j}')
            k.I(f'v_and_b32 v{t1}, 0xffff0000, v{vw+4*i+j}')
            k.I(f'v_fmac_f32 v{acc+2*j}, v{vc+i}, v{t0}')
            k.I(f'v_fmac_f32 v{acc+2*j+1}, v{vc+i}, v{t1}')
    for m in (4, 8):
        for j in range(8): k.I(f'v_add_f32_dpp v{acc+j}, v{acc+j}, v{acc+j} row_ror:{m} row_mask:0xf bank_mask:0xf')
    k.I(f'v_lshrrev_b32 v{t0}, 4, v0')
    k.I(f'v_lshlrev_b32 v{t0}, 7, v{t0}')
    k.I(f'v_and_b32 v{t1}, 3, v0')
    k.I(f'v_lshl_add_u32 v{t0}, v{t1}, 5, v{t0}')
    k.I('s_mov_b32 s36, 0x000f000f')
    k.I('s_mov_b32 s37, 0x000f000f')
    k.I('s_mov_b64 exec, s[36:37]')
    k.I(f'ds_write_b128 v{t0}, {vr(acc,4)}')
    k.I(f'ds_write_b128 v{t0}, {vr(acc+4,4)} offset:16')
    k.I('s_mov_b64 exec, -1')
    k.barrier()
    k.I('v_readfirstlane_b32 s38, v0')
    k.I('s_cmp_lg_u32 s38, 0')
    k.I(f's_cbranch_scc1 {lexit}')
    k.I(f'v_lshlrev_b32 v{t0}, 2, v0')
    for j in range(4):
        k.I(f'ds_read2st64_b32 {vr(vw+2*j,2)}, v{t0} offset0:{2*j} offset1:{2*j+1}')
    k.I('s_mul_i32 s39, s20, 205')
    k.I('s_lshr_b32 s39, s39, 12')
    k.I('s_mul_i32 s40, s39, 20')
    k.I('s_sub_u32 s40, s20, s40')
    k.I('s_cmp_eq_u32 s39, 1')
    k.I('s_cselect_b32 s41, 1.0, 0')
    k.I('s_cmp_eq_u32 s39, 4')
    k.I('s_cselect_b32 s41, 1.0, s41')
    k.I('s_cmp_eq_u32 s39, 2')
    k.I(f's_cselect_b32 s42, {fhex(1.0 / (2.0 * S * D))}, 1.0')
    for j in range(2): k.I(f'v_pk_add_f32 {vr(vw+2*j,2)}, {vr(vw+2*j,2)}, {vr(vw+4+2*j,2)}')
    k.I(f'v_pk_add_f32 {vr(vw,2)}, {vr(vw,2)}, {vr(vw+2,2)}')
    k.I(f'v_add_f32 v{vw}, v{vw}, v{vw+1}')
    k.I(f'v_mov_b32 v{vw+1}, v{vw}')
    k.I(f'v_permlane32_swap_b32 v{vw+1}, v{vw}')
    k.I(f'v_add_f32 v{vw}, v{vw}, v{vw+1}')
    k.I(f'v_cvt_pk_bf16_f32 v{vw}, v{vw}, v{vw}')
    k.I(f'v_and_b32 v{vw}, 0xffff0000, v{vw}')
    k.I(f'v_add_f32 v{vw}, s41, v{vw}')
    k.I(f'v_cvt_pk_bf16_f32 v{vw}, v{vw}, v{vw}')
    k.I(f'v_and_b32 v{vw}, 0xffff0000, v{vw}')
    k.I(f'v_mul_f32 v{vw}, s42, v{vw}')
    return vw, t0, t1

def role_mod_store_plain(k, vw, t0, t1):
    k.I('s_lshr_b32 s43, s40, 2')
    k.I('s_lshl_b32 s43, s43, 10')
    k.I('s_and_b32 s44, s40, 1')
    k.I('s_lshl_b32 s44, s44, 9')
    k.I('s_add_u32 s43, s43, s44')
    k.I('s_and_b32 s44, s40, 2')
    k.I('s_lshl_b32 s44, s44, 2')
    k.I('s_add_u32 s43, s43, s44')
    k.I(f's_add_u32 s43, s43, {MODB}')
    k.I('s_cmp_eq_u32 s39, 0')
    k.I('s_cselect_b32 s44, 4, 0')
    k.I('s_add_u32 s43, s43, s44')
    k.I('s_cmp_ge_u32 s39, 2')
    k.I('s_cselect_b32 s43, 0x100000, s43')
    k.I('s_lshl_b32 s45, s20, 7')
    k.I(f'v_and_b32 v{t1}, 31, v0')
    k.I(f'v_lshl_add_u32 v{t0}, v{t1}, 2, s45')
    k.I(f'v_lshl_add_u32 v{t1}, v{t1}, 4, s43')
    k.I('v_cmp_gt_u32 vcc, 32, v0')
    k.I(f'v_cndmask_b32 v{t0}, v{t1}, v{t0}, vcc')
    k.I(f'buffer_store_dword v{vw}, v{t0}, s[32:35], 0 offen')

N_WT = 161
def role_wt(k, s_wr, s_wi):
    va = VAlloc(1)
    idx = va.get(); g = va.get(); t = va.get(); a0 = va.get(); a1 = va.get(); src = va.get(); dst = va.get()
    lr = va.get(16, 4); li = va.get(16, 4)
    k.I('s_lshl_b32 s20, s20, 8')
    k.I(f'v_add_u32 v{idx}, s20, v0')
    k.I(f's_mov_b32 s21, {(2**32 + 320) // 321}')
    k.I(f'v_mul_hi_u32 v{g}, v{idx}, s21')
    k.I(f'v_mul_u32_u24 v{a0}, 321, v{g}')
    k.I(f'v_sub_u32 v{t}, v{idx}, v{a0}')
    k.I(f'v_lshrrev_b32 v{a0}, 4, v{g}')
    k.I(f'v_and_b32 v{a1}, 15, v{g}')
    k.I(f'v_lshlrev_b32 v{src}, 6, v{a0}')
    k.I(f'v_add_u32 v{src}, v{src}, v{a1}')
    k.I(f'v_mul_u32_u24 v{src}, 2568, v{src}')
    k.I(f'v_lshl_add_u32 v{src}, v{t}, 1, v{src}')
    k.srd(24, s_wr, S * 321 * 2)
    k.srd(28, s_wi, S * 321 * 2)
    for r in range(1, 4): k.I(f's_mov_b32 s{40+r}, {41088*r}')
    for i in range(4):
        for r in range(4):
            so = f's{40+r}' if r else '0'
            k.I(f'buffer_load_ushort v{lr+4*i+r}, v{src}, s[24:27], {so} offen offset:{642*i}')
            k.I(f'buffer_load_ushort v{li+4*i+r}, v{src}, s[28:31], {so} offen offset:{642*i}')
    k.srd(32, 4, XT_SZ, WT)
    k.I(f'v_lshlrev_b32 v{dst}, 13, v{t}')
    k.I(f'v_lshl_add_u32 v{dst}, v{a0}, 8, v{dst}')
    k.I(f'v_lshrrev_b32 v{a0}, 2, v{a1}')
    k.I(f'v_lshl_add_u32 v{dst}, v{a0}, 11, v{dst}')
    k.I(f'v_and_b32 v{a1}, 3, v{a1}')
    k.I(f'v_lshl_add_u32 v{dst}, v{a1}, 6, v{dst}')
    k.I(f'v_cmp_gt_u32 vcc, 0x80, v{g}')
    k.I(f'v_cndmask_b32 v{dst}, -1, v{dst}, vcc')
    k.I(f'v_min_u32 v{dst}, 0x7fffff00, v{dst}')
    for i in range(4):
        for r in range(4):
            k.I(f'v_lshl_or_b32 v{lr+4*i+r}, v{li+4*i+r}, 16, v{lr+4*i+r}')
        k.I(f'buffer_store_dwordx4 {vr(lr+4*i,4)}, v{dst}, s[32:35], 0 offen offset:{16*i}')

N_WGU = 160
def role_wgu(k, s_wg, s_wu):
    va = VAlloc(1)
    vl = va.get(); wo = va.get(3); t0 = va.get(); t1 = va.get(); t2 = va.get(); ra = va.get(); r2 = va.get(); vo = va.get()
    o = va.get(24, 4)
    k.I('v_lshrrev_b32 v1, 6, v0')
    k.I('v_readfirstlane_b32 s22, v1')
    k.I(f'v_and_b32 v{vl}, 63, v0')
    k.I('s_and_b32 s21, s20, 15')
    k.I('s_lshr_b32 s20, s20, 4')
    for p in range(3):
        k.I(f'v_add_u32 v{t0}, {64*p}, v{vl}')
        k.I(f'v_mul_u32_u24 v{t1}, 171, v{t0}')
        k.I(f'v_lshrrev_b32 v{t1}, 11, v{t1}')
        k.I(f'v_mul_u32_u24 v{t2}, 12, v{t1}')
        k.I(f'v_sub_u32 v{t0}, v{t0}, v{t2}')
        k.I(f'v_mul_u32_u24 v{wo+p}, 3072, v{t1}')
        k.I(f'v_lshl_add_u32 v{wo+p}, v{t0}, 4, v{wo+p}')
        if p: k.I(f'v_subrev_u32 v{wo+p}, {1024*p}, v{wo+p}')
    k.I('s_lshl_b32 s23, s20, 2')
    k.I('s_add_u32 s23, s23, s22')
    k.I(f's_mul_i32 s23, s23, {16*3072}')
    k.I('s_mul_i32 s24, s21, 192')
    k.I('s_add_u32 s23, s23, s24')
    k.I('s_mul_i32 s24, s22, 3072')
    k.I('s_mov_b32 m0, s24')
    k.srd(28, s_wg, D * F * 2)
    k.srd(32, s_wu, D * F * 2)
    for p in range(3): k.I(f'buffer_load_dwordx4 v{wo+p}, s[28:31], s23 offen offset:{1024*p} lds')
    k.I('s_add_u32 m0, s24, 12288')
    for p in range(3): k.I(f'buffer_load_dwordx4 v{wo+p}, s[32:35], s23 offen offset:{1024*p} lds')
    k.I(f'v_lshrrev_b32 v{t0}, 4, v{vl}')
    k.I(f'v_bfe_u32 v{t1}, v{vl}, 2, 2')
    k.I(f'v_lshl_add_u32 v{t0}, v{t0}, 3, v{t1}')
    k.I(f'v_mul_u32_u24 v{ra}, 192, v{t0}')
    k.I('s_mul_i32 s25, s22, 48')
    k.I(f'v_add_u32 v{ra}, s25, v{ra}')
    k.I(f'v_and_b32 v{t0}, 1, v{vl}')
    k.I(f'v_lshl_add_u32 v{r2}, v{t0}, 3, v{ra}')
    k.I(f'v_bfe_u32 v{t0}, v{vl}, 1, 1')
    k.I(f'v_mul_u32_u24 v{t0}, 12288, v{t0}')
    k.I(f'v_add_u32 v{r2}, v{r2}, v{t0}')
    k.I(f'v_and_b32 v{t0}, 3, v{vl}')
    k.I(f'v_lshl_add_u32 v{ra}, v{t0}, 3, v{ra}')
    k.I(f'v_lshlrev_b32 v{vo}, 4, v{vl}')
    k.srd(36, 4, D * 2 * F * 2, WGU)
    k.I('s_lshl_b32 s26, s21, 2')
    k.I('s_add_u32 s26, s26, s22')
    k.I('s_mul_i32 s26, s26, 10')
    k.I('s_add_u32 s26, s26, s20')
    k.I('s_mul_i32 s26, s26, 6144')
    k.I('s_add_u32 s27, s26, 3072')
    k.barrier(vm=0)
    for kk in range(2):
        for mt in range(3):
            for hf in range(2):
                off = (32*kk + 4*hf) * 192 + (12288 if mt == 1 else 0) + (32 if mt == 2 else 0)
                k.I(f'ds_read_b64_tr_b16 {vr(o+(3*kk+mt)*4+2*hf,2)}, v{r2 if mt == 2 else ra} offset:{off}')
    for kk in range(2):
        for mt in range(3):
            k.I(f'buffer_store_dwordx4 {vr(o+(3*kk+mt)*4,4)}, v{vo}, s[36:39], s{26+kk} offen offset:{1024*mt}')

N_WD = 48
def role_wd(k, s_wd):
    va = VAlloc(1)
    vl = va.get(); t0 = va.get(); t1 = va.get(); ra = va.get(); vo = va.get()
    o = va.get(40, 4)
    k.I('v_lshrrev_b32 v1, 6, v0')
    k.I('v_readfirstlane_b32 s22, v1')
    k.I(f'v_and_b32 v{vl}, 63, v0')
    k.I(f'v_lshlrev_b32 v{vo}, 4, v{vl}')
    k.I('s_mul_i32 s24, s22, 10240')
    k.I('s_mul_i32 s23, s20, 40960')
    k.I(f's_add_u32 s28, s{s_wd}, s23')
    k.I(f's_addc_u32 s29, s{s_wd+1}, 0')
    k.I('s_mov_b32 s30, 40960')
    k.I('s_mov_b32 s31, 0x00020000')
    for i in range(10):
        if i % 4 == 0: k.I(f's_add_u32 m0, s24, {4096*(i//4)}')
        k.I(f'buffer_load_dwordx4 v{vo}, s[28:31], m0 offen offset:{1024*(i%4)} lds')
    k.I(f'v_lshrrev_b32 v{t0}, 4, v{vl}')
    k.I(f'v_bfe_u32 v{t1}, v{vl}, 2, 2')
    k.I(f'v_lshl_add_u32 v{t0}, v{t0}, 3, v{t1}')
    k.I(f'v_mul_u32_u24 v{ra}, 1280, v{t0}')
    k.I(f'v_and_b32 v{t0}, 3, v{vl}')
    k.I(f'v_mul_u32_u24 v{t0}, 40, v{t0}')
    k.I('s_mul_i32 s25, s22, 320')
    k.I(f'v_add3_u32 v{ra}, v{ra}, v{t0}, s25')
    k.srd(36, 4, F * D * 2, WD)
    k.I('s_mul_i32 s26, s22, 96')
    k.I('s_add_u32 s26, s26, s20')
    k.I('s_mul_i32 s40, s26, 5120')
    k.I('s_add_u32 s41, s40, 4096')
    k.I(f's_add_u32 s42, s40, {48*5120}')
    k.I(f's_add_u32 s43, s40, {48*5120+4096}')
    k.barrier(vm=0)
    for j in range(2):
        for dt in range(5):
            for hf in range(2):
                k.I(f'ds_read_b64_tr_b16 {vr(o+(5*j+dt)*4+2*hf,2)}, v{ra} offset:{4*hf*1280+160*j+8*dt}')
    for j in range(2):
        for dt in range(5):
            k.I(f'buffer_store_dwordx4 {vr(o+(5*j+dt)*4,4)}, v{vo}, s[36:39], s{40+2*j+(dt//4)} offen offset:{1024*(dt%4)}')

def gen_A2():
    k = Kernel('ka_kernel')
    stamp_begin(k)
    k.I(f's_load_dwordx2 s[4:5], s[0:1], {KA["ws"]}')
    k.I(f's_load_dwordx4 s[8:11], s[0:1], {KA["c"]}')
    k.I(f's_load_dwordx4 s[12:15], s[0:1], {KA["wr"]}')
    k.I(f's_load_dwordx4 s[16:19], s[0:1], {KA["wg"]}')
    k.I(f's_load_dwordx2 s[6:7], s[0:1], {KA["wd"]}')
    n0 = 120; n1 = n0 + N_WD; n2 = n1 + N_WGU; n3 = n2 + N_WT; n4 = n3 + 1
    k.I(f's_cmp_ge_u32 s2, {n0}')
    st = k.save_state()
    k.I('s_cbranch_scc1 LA_1')
    k.I('s_and_b32 s20, s2, 7')
    k.I('s_lshr_b32 s21, s2, 3')
    k.I('s_and_b32 s22, s21, 1')
    k.I('s_lshr_b32 s21, s21, 1')
    k.I('s_lshl_b32 s21, s21, 4')
    k.I('s_lshl_b32 s20, s20, 1')
    k.I('s_add_u32 s20, s20, s21')
    k.I('s_add_u32 s20, s20, s22')
    k.I('s_cmp_ge_u32 s2, 112')
    k.I('s_cselect_b32 s20, s2, s20')
    vw, t0, t1 = role_mod(k, 8, 10, 'LA_end')
    role_mod_store_plain(k, vw, t0, t1)
    k.label('LA_end')
    stamp_end(k, 0, 4)
    k.I('s_endpgm')
    for lab, nxt, lo, hi, fn in (('LA_1', 'LA_2', n0, n1, lambda: role_wd(k, 6)), ('LA_2', 'LA_3', n1, n2, lambda: role_wgu(k, 16, 18)),
                                 ('LA_3', 'LA_4', n2, n3, lambda: role_wt(k, 12, 14))):
        k.label(lab, fresh=True); k.restore_state(st)
        k.I(f's_cmp_ge_u32 s2, {hi}')
        k.I(f's_cbranch_scc1 {nxt}')
        k.I(f's_sub_u32 s20, s2, {lo}')
        fn()
        stamp_end(k, 0, 4)
        k.I('s_endpgm')
    k.label('LA_4', fresh=True); k.restore_state(st)
    k.I(f's_cmp_ge_u32 s2, {n4}')
    k.I('s_cbranch_scc1 LA_5')
    k.srd(24, 4, 32 * 256, FLAGS)
    k.I('v_lshlrev_b32 v1, 8, v0')
    k.I('v_mov_b32 v2, 0')
    k.I('buffer_store_dword v2, v1, s[24:27], 0 offen')
    k.label('LA_5')
    k.I('s_endpgm')
    return k, (n4, 256, 40960)

def ids2(k, vl):
    k.I('v_lshrrev_b32 v1, 6, v0')
    k.I(f'v_and_b32 v{vl}, 63, v0')
    k.I('v_readfirstlane_b32 s22, v1')
    k.I('s_and_b32 s20, s2, 6')
    k.I('s_lshl_b32 s20, s20, 1')
    k.I('s_lshr_b32 s21, s2, 6')
    k.I('s_add_u32 s20, s20, s21')
    k.I('s_lshr_b32 s21, s2, 3')
    k.I('s_and_b32 s21, s21, 7')
    k.I('s_and_b32 s24, s2, 1')
    k.I('s_lshl_b32 s24, s24, 3')
    k.I('s_add_u32 s21, s21, s24')
    k.I('s_lshl_b32 s23, s20, 7')
    k.I('s_lshl_b32 s24, s21, 1')
    k.I('s_add_u32 s23, s23, s24')
    k.I('s_and_b32 s24, s22, 1')
    k.I('s_lshl_b32 s24, s24, 6')
    k.I('s_add_u32 s23, s23, s24')
    k.I('s_lshr_b32 s24, s22, 1')
    k.I('s_add_u32 s23, s23, s24')
    k.I('s_lshr_b32 s25, s20, 2')
    k.I('s_lshl_b32 s25, s25, 11')
    k.I('s_lshr_b32 s24, s21, 3')
    k.I('s_lshl_b32 s24, s24, 10')
    k.I('s_add_u32 s25, s25, s24')
    k.I('s_and_b32 s24, s20, 3')
    k.I('s_lshl_b32 s24, s24, 8')
    k.I('s_add_u32 s25, s25, s24')
    k.I('s_and_b32 s24, s21, 7')
    k.I('s_lshl_b32 s24, s24, 5')
    k.I('s_add_u32 s25, s25, s24')
    k.I(f's_add_u32 s26, s25, {128*8192}')
    k.I(f's_add_u32 s27, s25, {256*8192}')
gen.bd_ids = ids2

def handoff(k, name, cnt_off_sgpr, vtmp):
    k.I('s_barrier')
    st = k.save_state()
    k.I('s_cmp_lg_u32 s22, 0')
    k.I(f's_cbranch_scc1 L{name}_done')
    k.I(f'v_mov_b32 v{vtmp}, 0')
    k.I(f'v_mov_b32 v{vtmp+1}, 1')
    k.I('s_mov_b64 exec, 1')
    k.I(f'buffer_atomic_add v{vtmp+1}, v{vtmp}, s[12:15], s{cnt_off_sgpr} offen sc1')
    k.I('s_mov_b32 s24, 0x100000')
    k.label(f'L{name}_poll')
    k.I(f'buffer_load_dword v{vtmp+1}, v{vtmp}, s[12:15], s{cnt_off_sgpr} offen sc1')
    k.waitcnt(vm=0)
    k.I(f'v_readfirstlane_b32 s33, v{vtmp+1}')
    k.I('s_sub_u32 s24, s24, 1')
    k.I(f's_cbranch_scc1 L{name}_out')
    k.I('s_cmp_lt_u32 s33, 16')
    k.I(f's_cbranch_scc1 L{name}_poll')
    k.label(f'L{name}_out')
    k.I('s_mov_b64 exec, -1')
    k.label(f'L{name}_done')
    k.restore_state(st)
    k.I('s_barrier')

def gen_DEF():
    k = Kernel('kd_kernel')
    PL = 2592
    W_EARLY = env('W_EARLY', 42)
    stamp_begin(k)
    k.I('s_cmp_ge_u32 s2, 256')
    k.I('s_cbranch_scc1 LD_exit')
    k.I(f's_load_dwordx2 s[4:5], s[0:1], {KA["ws"]}')
    k.I(f's_load_dwordx2 s[6:7], s[0:1], {KA["x"]}')
    k.I(f's_load_dwordx2 s[40:41], s[0:1], {KA["out"]}')
    va = VAlloc(2)
    vl = va.get(); vo16 = va.get(); vW = va.get(); vi = va.get(); vq = va.get(); hs = va.get(2, 2)
    keep = va.n
    so = va.get(); ta = va.get(4)
    ch = va.get(12, 4); xr = va.get(12, 2); mg = va.get(12, 4); mc = va.get(12, 4); ms = va.get(12, 4)
    xo = va.get(); xo2 = va.get(); mo = va.get()
    ids2(k, vl)
    k.I(f'v_lshlrev_b32 v{vo16}, 4, v{vl}')
    k.I(f'v_and_b32 v{ta}, 1, v0')
    k.I(f'v_lshrrev_b32 v{ta+1}, 1, v0')
    k.I(f'v_lshlrev_b32 v{so}, 13, v{ta+1}')
    k.I(f'v_lshl_add_u32 v{so}, v{ta}, 4, v{so}')
    k.I(f'v_and_b32 v{vi}, 15, v{vl}')
    k.I(f'v_lshrrev_b32 v{vq}, 4, v{vl}')
    k.I(f'v_mul_u32_u24 v{xo}, 80, v{vi}')
    k.I(f'v_lshl_add_u32 v{xo}, v{vq}, 3, v{xo}')
    k.I(f'v_lshlrev_b32 v{mo}, 1, v{xo}')
    k.I(f'v_cmp_gt_u32 vcc, 32, v{vl}')
    k.I(f'v_mov_b32 v{xo2}, 0x7fff0000')
    k.I(f'v_cndmask_b32 v{xo2}, v{xo2}, v{xo}, vcc')
    k.I('s_mul_i32 s28, s23, 1280')
    k.I(f's_add_u32 s29, s28, {32*1280}')
    k.I('s_lshl_b32 s24, s21, 2')
    k.I('s_add_u32 s24, s24, s22')
    k.I('s_mul_i32 s24, s24, 61440')
    k.I(f's_add_u32 s24, s24, {WGU}')
    k.I(f'v_add_u32 v{vW}, s24, v{vo16}')
    fi = va.get(); fq = va.get(); fq4 = va.get()
    k.I(f'v_cvt_f32_u32 v{fi}, v{vi}')
    k.I(f'v_cvt_f32_u32 v{fq}, v{vq}')
    k.I(f'v_mul_f32 v{fq4}, 4.0, v{fq}')
    wu = va.get(); wv = va.get(); ra = va.get()
    k.I(f'v_mul_u32_u24 v{wu}, {2*PL}, v{ta}')
    k.I(f'v_sub_u32 v{wv}, 384, v{ta+1}')
    k.I(f'v_lshl_add_u32 v{wv}, v{wv}, 2, v{wu}')
    k.I(f'v_lshl_add_u32 v{wu}, v{ta+1}, 2, v{wu}')
    k.I(f's_mul_i32 s33, s22, {PL}')
    k.I(f'v_lshl_add_u32 v{ra}, v{vl}, 2, s33')
    k.I(f'v_cmp_ge_u32 s[34:35], 64, v{ta+1}')
    cs, sn = gen_tw640(k, va, fi, fq4)
    k.I(f'v_cmp_gt_u32 vcc, 8, v{vi}')
    for r in range(4):
        k.I(f'v_cndmask_b32 v{cs+8+r}, 0, v{cs+8+r}, vcc')
        k.I(f'v_cndmask_b32 v{sn+8+r}, 0, v{sn+8+r}, vcc')
    k.srd(16, 4, XT_SZ, XT)
    for rho in range(3):
        k.I(f'buffer_load_dwordx4 {vr(ch+4*rho,4)}, v{so}, s[16:19], s{25+rho} offen')
    k.srd(8, 6, S * D * 2)
    k.srd(12, 4, WS_END2)
    k.srd(36, 40, S * D * 2)
    k.I(f's_movk_i32 s30, {2*2560}')
    k.I(f's_movk_i32 s31, {3*2560}')
    k.I(f's_movk_i32 s32, {4*2560}')
    def wload(n):
        g = [f'buffer_load_dwordx4 {ar(4*n,4)}, v{vW}, s[12:15], 0 offen offset:{1024*(n%4)}']
        if n % 4 == 3: g.append(f'v_add_u32 v{vW}, 0x1000, v{vW}')
        return g
    side = []
    for T in range(3):
        for c in range(2):
            side.append([f'buffer_load_dwordx2 {vr(xr+(2*T+c)*2,2)}, v{xo2 if T == 2 else xo}, s[8:11], s{28+c} offen offset:{32*T}'])
    for T in range(3):
        side.append([f'buffer_load_dwordx4 {vr(mg+4*T,4)}, v{mo}, s[12:15], s30 offen offset:{64*T}'])
    for T in range(3):
        side.append([f'buffer_load_dwordx4 {vr(ms+4*T,4)}, v{mo}, s[12:15], s31 offen offset:{64*T}'])
        side.append([f'buffer_load_dwordx4 {vr(mc+4*T,4)}, v{mo}, s[12:15], s32 offen offset:{64*T}'])
    k.bg = side + [wload(n) for n in range(W_EARLY)]
    k.bg_every = env('BG1', 6)
    mark(k, 1)
    f40 = gen_f40(k, va, fi, fq, True)
    f16 = va.get(6, 2); tmp = va.get(8, 2)
    k.I(f'v_mul_f32 v{ta+2}, {fhex(1.0/16)}, v{fi}')
    k.I(f'v_mul_f32 v{ta+3}, v{fq4}, v{ta+2}')
    for j in range(4): k.I(f'v_fmamk_f32 v{tmp+4+j}, v{ta+2}, {fhex(float(j))}, v{ta+3}')
    for j in range(4):
        k.I(f'v_cos_f32 v{tmp+j}, v{tmp+4+j}')
        k.I(f'v_sin_f32 v{tmp+4+j}, v{tmp+4+j}')
    for p in range(2):
        k.I(f'v_cvt_pk_bf16_f32 v{f16+p}, v{tmp+4+2*p}, v{tmp+5+2*p}')
        k.I(f'v_cvt_pk_bf16_f32 v{f16+2+p}, v{tmp+2*p}, v{tmp+1+2*p}')
        k.I(f'v_cvt_pk_bf16_f32 v{f16+4+p}, -v{tmp+4+2*p}, -v{tmp+5+2*p}')
    dat = va.get(12, 2)
    k.I(f'v_mov_b32 v{dat+10}, 0'); k.I(f'v_mov_b32 v{dat+11}, 0')
    mark(k, 2)
    be = k.bg_every; k.bg_every = 0
    for rho in range(3):
        if rho == 2: k.I('s_mov_b64 exec, s[34:35]')
        for pr in range(2):
            k.I(f'ds_write_b32 v{wu}, v{ch+4*rho+2*pr} offset:{pr*PL+512*rho}')
            k.I(f'ds_write_b32 v{wv}, v{ch+4*rho+2*pr+1} offset:{pr*PL+512*(2-rho)}')
    k.I('s_mov_b64 exec, -1')
    k.barrier()
    mark(k, 3)
    for p in range(5):
        k.I(f'ds_read2st64_b32 {vr(dat+2*p,2)}, v{ra} offset0:{2*p} offset1:{2*p+1}')
    k.bg_every = env('BG2', 8)
    d1 = va.get(24, 4)
    for T in range(3):
        for kap in range(3):
            for c in range(2):
                dd = vr(d1 + (2*T+c)*4, 4)
                k.I(f'{MF16} {dd}, {vr(dat+4*kap,4)}, {vr(f40+(2*T+c)*10+4*kap,4)}, {dd if kap else 0}')
    a2 = ch; d2 = va.get(24, 4); xf = f40
    for T in range(3):
        cmul4(k, d1+8*T, d1+8*T+4, cs+4*T, sn+4*T, a2+4*T, tmp, True)
        for c in range(2):
            k.I(f'{MF16} {vr(d2+(2*T+c)*4,4)}, {vr(a2+4*T,4)}, {vr(f16+(0 if c else 2),4)}, 0')
    for i in range(12):
        k.I(f'v_lshlrev_b32 v{xf+2*i}, 16, v{xr+i}')
        k.I(f'v_and_b32 v{xf+2*i+1}, 0xffff0000, v{xr+i}')
    for T in range(3):
        for c in range(2):
            for p in (0, 2):
                r = (2*T+c)*4+p
                k.I(f'v_pk_fma_f32 {vr(xf+r,2)}, {vr(d2+r,2)}, {vr(mg+4*T+p,2)}, {vr(xf+r,2)}')
    st_ = f40 + 24
    first = True
    for T in range(3):
        for p in (0, 2):
            for c in range(2):
                r = xf+(2*T+c)*4+p
                if first:
                    k.I(f'v_mov_b64 {vr(st_+2*c,2)}, {vr(r,2)}')
                    k.I(f'v_pk_mul_f32 {vr(st_+4+2*c,2)}, {vr(r,2)}, {vr(r,2)}')
                else:
                    k.I(f'v_pk_add_f32 {vr(st_+2*c,2)}, {vr(st_+2*c,2)}, {vr(r,2)}')
                    k.I(f'v_pk_fma_f32 {vr(st_+4+2*c,2)}, {vr(r,2)}, {vr(r,2)}, {vr(st_+4+2*c,2)}')
            first = False
    for i in range(4): k.I(f'v_add_f32 v{st_+2*i}, v{st_+2*i}, v{st_+2*i+1}')
    wave_reduce_to_sgpr(k, [st_, st_+2, st_+4, st_+6], [46, 47, 48, 49])
    po = d1; ph = d1 + 12
    rr = f40 + 32; nmr = f40 + 34
    ln_scalars(k, 46, 48, rr, nmr, tmp)
    HB = 12288; XB = HB + 10240
    wh = f40 + 36; wx = f40 + 39; g0 = f40 + 40; g2 = f40 + 41; g3 = f40 + 42; tk = f40 + 43; cb_ = f40 + 44; tq = f40 + 45; tid16 = f40 + 46
    for T in range(3):
        for j in range(4):
            k.I(f'v_cvt_pk_bf16_f32 v{po+4*T+j}, v{xf+8*T+2*j}, v{xf+8*T+2*j+1}')
    for T in range(3):
        for c in range(2):
            for p in (0, 2):
                r = xf+(2*T+c)*4+p
                k.I(f'v_pk_fma_f32 {vr(r,2)}, {vr(r,2)}, {vr(rr,2)}, {vr(nmr,2)} op_sel:[0,{c},{c}] op_sel_hi:[1,{c},{c}]')
    for T in range(3):
        for c in range(2):
            for p in (0, 2):
                r = xf+(2*T+c)*4+p
                k.I(f'v_pk_fma_f32 {vr(r,2)}, {vr(r,2)}, {vr(mc+4*T+p,2)}, {vr(ms+4*T+p,2)}')
    for T in range(3):
        for j in range(4):
            k.I(f'v_cvt_pk_bf16_f32 v{ph+4*T+j}, v{xf+8*T+2*j}, v{xf+8*T+2*j+1}')
    k.I(f'v_lshrrev_b32 v{tq}, 1, v{vq}')
    k.I(f'v_mad_u32_u24 v{cb_}, v{vi}, 5, v{tq}')
    k.I(f'v_and_b32 v{tk}, 1, v{vq}')
    k.I('s_lshl_b32 s24, s22, 1')
    k.I(f'v_add_u32 v{tk}, s24, v{tk}')
    for T in range(3):
        k.I(f'v_permlane16_swap_b32 v{ph+4*T}, v{ph+4*T+2}')
        k.I(f'v_permlane16_swap_b32 v{ph+4*T+1}, v{ph+4*T+3}')
        k.I(f'v_add_u32 v{tq}, {2*T}, v{cb_}')
        k.I(f'v_xor_b32 v{wh+T}, v{tq}, v{tk}')
        k.I(f'v_and_b32 v{wh+T}, 7, v{wh+T}')
        k.I(f'v_lshl_add_u32 v{wh+T}, v{tq}, 3, v{wh+T}')
        k.I(f'v_lshlrev_b32 v{wh+T}, 4, v{wh+T}')
    k.bg_every = 0
    for T in range(3):
        if T == 2: k.I('s_mov_b32 exec_hi, 0')
        k.I(f'ds_write_b128 v{wh+T}, {vr(ph+4*T,4)} offset:{HB}')
    k.I('s_mov_b64 exec, -1')
    for T in range(3):
        k.I(f'v_permlane16_swap_b32 v{po+4*T}, v{po+4*T+2}')
        k.I(f'v_permlane16_swap_b32 v{po+4*T+1}, v{po+4*T+3}')
    k.I(f'v_mul_u32_u24 v{wx}, 1280, v{tk}')
    k.I(f'v_lshl_add_u32 v{wx}, v{cb_}, 4, v{wx}')
    for T in range(3):
        if T == 2: k.I('s_mov_b32 exec_hi, 0')
        k.I(f'ds_write_b128 v{wx}, {vr(po+4*T,4)} offset:{XB+32*T}')
    k.I('s_mov_b64 exec, -1')
    k.I(f'v_lshlrev_b32 v{tid16}, 4, v0')
    k.I(f'v_lshrrev_b32 v{tq}, 3, v0')
    k.I(f'v_xor_b32 v{g0}, v{tq}, v0')
    k.I(f'v_and_b32 v{g0}, 7, v{g0}')
    k.I(f'v_lshlrev_b32 v{g0}, 4, v{g0}')
    k.I(f'v_lshl_add_u32 v{g0}, v{tq}, 8, v{g0}')
    k.I('s_lshl_b32 s42, s20, 3')
    k.I('s_lshr_b32 s24, s21, 1')
    k.I('s_add_u32 s42, s42, s24')
    k.I('s_mul_i32 s42, s42, 20480')
    k.I('s_and_b32 s24, s21, 1')
    k.I('s_lshl_b32 s24, s24, 7')
    k.I('s_add_u32 s42, s42, s24')
    k.I(f's_add_u32 s42, s42, {H2}')
    k.I('s_lshl_b32 s43, s20, 4')
    k.I('s_add_u32 s43, s43, s21')
    k.I('s_mul_i32 s43, s43, 10240')
    k.I(f's_add_u32 s43, s43, {X1 - 2048}')
    k.I('s_add_u32 s44, s42, 8192')
    k.I('s_add_u32 s45, s42, 16384')
    k.I('s_cmp_lt_u32 s22, 2')
    k.I('s_cselect_b32 s45, s45, s43')
    k.I('s_cselect_b64 vcc, -1, 0')
    k.I(f'v_cndmask_b32 v{g2}, v{tid16}, v{g0}, vcc')
    k.I('s_add_u32 s50, s43, 4096')
    k.I('s_add_u32 s51, s43, 8192')
    k.barrier()
    mark(k, 4)
    sd = d2
    for rho in range(5):
        k.I(f'ds_read_b128 {vr(sd+4*rho,4)}, v{tid16} offset:{HB+4096*rho}')
    k.I(f'buffer_store_dwordx4 {vr(sd,4)}, v{g0}, s[12:15], s42 offen sc1', tag='h2')
    k.I(f'buffer_store_dwordx4 {vr(sd+4,4)}, v{g0}, s[12:15], s44 offen sc1', tag='h2')
    k.I(f'buffer_store_dwordx4 {vr(sd+8,4)}, v{g2}, s[12:15], s45 offen sc1', tag='h2')
    k.I(f'buffer_store_dwordx4 {vr(sd+12,4)}, v{tid16}, s[12:15], s50 offen sc1')
    k.I(f'buffer_store_dwordx4 {vr(sd+16,4)}, v{tid16}, s[12:15], s51 offen sc1')
    k.emit_bg(100)
    k.I('s_mul_i32 s24, s20, 163840')
    k.I(f's_add_u32 s24, s24, {H2}')
    k.I('s_add_u32 s16, s4, s24')
    k.I('s_addc_u32 s17, s5, 0')
    k.I('s_mov_b32 s18, 163840')
    k.I('s_mov_b32 s19, 0x00020000')
    k.I('s_mul_i32 s52, s22, 40960')
    k.I('s_add_u32 s53, s52, 20480')
    k.I('s_lshl_b32 s54, s20, 8')
    k.I(f's_add_u32 s54, s54, {FLAGS}')
    k.I('s_add_u32 s55, s54, 4096')
    k.wait_tag('h2')
    mark(k, 5)
    handoff(k, 'H1', 54, hs)
    mark(k, 6)
    va = VAlloc(keep)
    rb = [va.get(), va.get(), va.get()]
    act = va.get(32, 4); acc = va.get(96, 4)
    def dma(g):
        out = []
        for j in range(2):
            out.append([f's_add_u32 m0, s{52+j}, {2048*g}',
                        (f'buffer_load_dwordx4 v{vo16}, s[16:19], m0 offen sc1 lds', ('a', g))])
            out.append([(f'buffer_load_dwordx4 v{vo16}, s[16:19], m0 offen offset:1024 sc1 lds', ('a', g))])
        return out
    def emit(grp):
        for t in grp:
            if isinstance(t, tuple): k.I(t[0], tag=t[1])
            else: k.I(t)
    NPRE = env('E_PRE', 3)
    for g in range(NPRE):
        for grp in dma(g): emit(grp)
    k.I(f'v_mov_b32 v{rb[0]}, v{vo16}')
    k.I(f'v_add_u32 v{rb[1]}, {3*20480}, v{vo16}')
    k.I(f'v_add_u32 v{rb[2]}, {6*20480}, v{vo16}')
    def aread(nt, kap): return f'ds_read_b128 {vr(act+4*nt,4)}, v{rb[nt//3]} offset:{(nt%3)*20480+1024*kap}'
    vD = va.get()
    k.I('s_and_b32 s56, s21, 7')
    k.I('s_lshr_b32 s57, s21, 3')
    k.I('s_lshl_b32 s24, s56, 2')
    k.I('s_add_u32 s24, s24, s22')
    k.I('s_mul_i32 s24, s24, 61440')
    k.I(f's_add_u32 s24, s24, {WD}')
    k.I(f'v_add_u32 v{vD}, s24, v{vo16}')
    def dload(n):
        g = [f'buffer_load_dwordx4 {ar(4*n,4)}, v{vD}, s[12:15], 0 offen offset:{1024*(n%4)}']
        if n % 4 == 3: g.append(f'v_add_u32 v{vD}, 0x1000, v{vD}')
        return g
    k.wait_tag(('a', 0))
    k.I('s_barrier')
    mark(k, 7)
    for nt in range(8): k.I(aread(nt, 0))
    queue = []
    for g in range(NPRE, 10): queue += dma(g)
    queue += [wload(n) for n in range(W_EARLY, 60)]
    nd = 0
    bars = {1: 1, 3: 3, 7: 7, 15: 9}
    PER = env('E_PER', 5)
    for kap in range(20):
        if kap in bars:
            k.wait_tag(('a', bars[kap]))
            k.I('s_barrier')
        slots = PER
        for nt in range(8):
            for mt in range(3):
                dd = vr(acc+(mt*8+nt)*4, 4)
                k.I(f'{MF16} {dd}, {ar((3*kap+mt)*4,4)}, {vr(act+4*nt,4)}, {dd if kap else 0}')
            if kap < 19: k.I(aread(nt, kap + 1))
            if slots and nt >= 1:
                if queue: emit(queue.pop(0)); slots -= 1
                elif nd < 3 * kap: emit(dload(nd)); nd += 1; slots -= 1
    mark(k, 8)
    oh = va.get(); oh2 = va.get(); t0 = va.get()
    k.I(f'v_and_b32 v{t0}, 1, v{vq}')
    k.I(f'v_mul_u32_u24 v{oh}, 49152, v{t0}')
    k.I(f'v_lshl_add_u32 v{oh2}, v{oh}, 1, 0')
    k.I(f'v_lshrrev_b32 v{t0}, 1, v{vq}')
    k.I(f'v_lshl_add_u32 v{oh}, v{t0}, 8, v{oh}')
    k.I(f'v_lshl_add_u32 v{oh}, v{vi}, 4, v{oh}')
    k.I(f'v_mul_u32_u24 v{t0}, 49152, v{t0}')
    k.I(f'v_add_u32 v{oh2}, v{oh2}, v{t0}')
    k.I(f'v_lshl_add_u32 v{oh2}, v{vi}, 4, v{oh2}')
    k.I(f's_mul_i32 s42, s20, {8*49152}')
    k.I('s_lshl_b32 s24, s21, 2')
    k.I('s_add_u32 s24, s24, s22')
    k.I('s_mul_i32 s24, s24, 768')
    k.I('s_add_u32 s42, s42, s24')
    k.I(f's_add_u32 s42, s42, {HH}')
    for i in range(1, 4): k.I(f's_add_u32 s{42+i}, s42, {2*i*49152}')
    pk = act
    for pr in range(4):
        for j in range(2):
            nt = 2*pr + j
            g_ = acc + nt*4; u_ = acc + (8+nt)*4
            for p in (0, 2): k.I(f'v_pk_mul_f32 {vr(g_+p,2)}, {vr(g_+p,2)}, {vr(u_+p,2)}')
        a_ = acc + (16+2*pr)*4; b_ = a_ + 4
        for r in range(4): k.I(f'v_permlane32_swap_b32 v{a_+r}, v{b_+r}')
        for j in range(2):
            g_ = acc + (2*pr+j)*4
            for p in (0, 2): k.I(f'v_cvt_pk_bf16_f32 v{pk+4*pr+2*j+p//2}, v{g_+p}, v{g_+p+1}')
        for p in (0, 2): k.I(f'v_pk_mul_f32 {vr(a_+p,2)}, {vr(a_+p,2)}, {vr(b_+p,2)}')
        k.I(f'v_permlane16_swap_b32 v{pk+4*pr}, v{pk+4*pr+2}')
        k.I(f'v_permlane16_swap_b32 v{pk+4*pr+1}, v{pk+4*pr+3}')
        for p in (0, 2): k.I(f'v_cvt_pk_bf16_f32 v{pk+16+2*pr+p//2}, v{a_+p}, v{a_+p+1}')
        k.I(f'buffer_store_dwordx4 {vr(pk+4*pr,4)}, v{oh}, s[12:15], s{42+pr} offen sc1', tag='h')
        if pr & 1:
            q_ = pk + 16 + 2*(pr-1)
            k.I(f'v_permlane16_swap_b32 v{q_}, v{q_+2}')
            k.I(f'v_permlane16_swap_b32 v{q_+1}, v{q_+3}')
            k.I(f'buffer_store_dwordx4 {vr(q_,4)}, v{oh2}, s[12:15], s{42+pr-1} offen offset:512 sc1', tag='h')
    while nd < 60: emit(dload(nd)); nd += 1
    va = VAlloc(keep)
    oo = va.get(); ox = va.get(); go = va.get(); t0 = va.get(); t1 = va.get(); lw = va.get()
    va.n = max(va.n, pk + 24)
    gb = va.get(20, 4); x1r = va.get(10, 2); xf = va.get(20, 2)
    fa = [va.get(20, 4), va.get(20, 4)]
    NB = 24
    hb = va.get(4 * NB, 4)
    for i in range(4):
        k.I(f's_add_u32 s{58+i}, s22, {i}')
        k.I(f's_and_b32 s{58+i}, s{58+i}, 3')
    k.I('s_lshl_b32 s24, s20, 1')
    k.I('s_add_u32 s24, s24, s57')
    k.I('s_lshl_b32 s24, s24, 2')
    k.I(f's_mul_i32 s33, s22, {12*1024}')
    k.I(f's_add_u32 s33, s33, {HH}')
    for i in range(4):
        k.I(f's_add_u32 s{42+i}, s{58+i}, s24')
        k.I(f's_mul_i32 s{42+i}, s{42+i}, 49152')
        k.I(f's_add_u32 s{42+i}, s{42+i}, s33')
    k.I('s_add_u32 s30, s24, s22')
    k.I(f's_mul_i32 s50, s30, {16*1280}')
    k.I('s_lshr_b32 s31, s30, 3')
    k.I('s_lshl_b32 s31, s31, 7')
    k.I('s_and_b32 s30, s30, 7')
    k.I('s_lshl_b32 s30, s30, 2')
    k.I('s_add_u32 s31, s31, s30')
    k.I('s_mul_i32 s31, s31, 1280')
    k.I('s_mul_i32 s30, s56, 160')
    k.I('s_add_u32 s31, s31, s30')
    k.I('s_add_u32 s50, s50, s30')
    k.I(f's_add_u32 s50, s50, {X1}')
    k.I(f'v_and_b32 v{t0}, 3, v{vl}')
    k.I(f'v_lshlrev_b32 v{t0}, 5, v{t0}')
    k.I(f'v_bfe_u32 v{t1}, v{vl}, 2, 2')
    k.I(f'v_add_u32 v{t0}, v{t0}, v{t1}')
    k.I(f'v_mul_u32_u24 v{oo}, 1280, v{t0}')
    k.I(f'v_mul_u32_u24 v{go}, 40, v{vq}')
    k.I(f'v_add_u32 v{oo}, v{oo}, v{go}')
    k.I(f'v_mul_u32_u24 v{ox}, 1280, v{vi}')
    k.I(f'v_add_u32 v{ox}, v{ox}, v{go}')
    k.I(f'v_lshlrev_b32 v{go}, 1, v{go}')
    k.I('s_lshl_b32 s30, s30, 1')
    k.I(f's_add_u32 s30, s30, {5*2560}')
    for dt in range(5): k.I(f'buffer_load_dwordx4 {vr(gb+4*dt,4)}, v{go}, s[12:15], s30 offen offset:{16*dt}')
    k.wait_tag('h')
    handoff(k, 'H2', 55, hs)
    mark(k, 9)
    order = [1, 2, 3, 0]
    hl = []
    for oi, i in enumerate(order):
        for kp in range(12):
            n = 12*oi + kp
            g = [f'buffer_load_dwordx4 {vr(hb+4*(n%NB),4)}, v{vo16}, s[12:15], s{42+i} offen offset:{1024*(kp%4)} sc1']
            if kp % 4 == 3: g.append(f's_add_u32 s{42+i}, s{42+i}, 4096')
            hl.append(g)
    xl = [[f'buffer_load_dwordx4 {vr(x1r,4)}, v{ox}, s[12:15], s50 offen sc1'],
          [f'buffer_load_dwordx4 {vr(x1r+4,4)}, v{ox}, s[12:15], s50 offen offset:16 sc1'],
          [f'buffer_load_dwordx2 {vr(x1r+8,2)}, v{ox}, s[12:15], s50 offen offset:32 sc1']]
    hl += xl
    FPRE = env('F_PRE', 14)
    for _ in range(FPRE): emit(hl.pop(0))
    rd = va.get(0)
    for oi, i in enumerate(order):
        a = fa[oi & 1]
        extra = []
        if oi >= 1:
            pi = order[oi-1]; pa = fa[(oi-1) & 1]
            extra.append([f's_mul_i32 s24, s{58+pi}, {15*1024}', f'v_add_u32 v{lw}, s24, v{vo16}'])
            for dt in range(5): extra.append([f'ds_write_b128 v{lw}, {vr(pa+4*dt,4)} offset:{((pi-1)*5+dt)*1024}'])
        for kp in range(12):
            n = 12*oi + kp
            for dt in range(5):
                dd = vr(a+4*dt, 4)
                k.I(f'{MF16} {dd}, {ar((5*kp+dt)*4,4)}, {vr(hb+4*(n%NB),4)}, {dd if kp else 0}')
                if dt == 1 and kp >= 1 and extra: emit(extra.pop(0))
                if dt == 3 and kp >= 1 and extra: emit(extra.pop(0))
            if hl: emit(hl.pop(0))
            if oi == 3 and kp == 4:
                k.I(f's_mul_i32 s24, s22, {15*1024}')
                k.I(f'v_add_u32 v{lw}, s24, v{vo16}')
                k.barrier()
                r0 = fa[0]; r1 = hb; r2 = hb + 20
                for dt in range(5):
                    extra.append([f'ds_read_b128 {vr(r0+4*dt,4)}, v{lw} offset:{(0*5+dt)*1024}',
                                  f'ds_read_b128 {vr(r1+4*dt,4)}, v{lw} offset:{(1*5+dt)*1024}',
                                  f'ds_read_b128 {vr(r2+4*dt,4)}, v{lw} offset:{(2*5+dt)*1024}'])
                for dt in range(5):
                    g = []
                    for p in (0, 2): g.append(f'v_pk_add_f32 {vr(r0+4*dt+p,2)}, {vr(r0+4*dt+p,2)}, {vr(r1+4*dt+p,2)}')
                    for p in (0, 2): g.append(f'v_pk_add_f32 {vr(r0+4*dt+p,2)}, {vr(r0+4*dt+p,2)}, {vr(r2+4*dt+p,2)}')
                    extra.append(g)
                for h_ in range(2):
                    g = []
                    for j in range(5*h_, 5*h_+5):
                        g.append(f'v_lshlrev_b32 v{xf+2*j}, 16, v{x1r+j}')
                        g.append(f'v_and_b32 v{xf+2*j+1}, 0xffff0000, v{x1r+j}')
                    extra.append(g)
        while extra: emit(extra.pop(0))
    own = fa[1]; r0 = fa[0]
    for dt in range(5):
        for p in (0, 2): k.I(f'v_pk_add_f32 {vr(own+4*dt+p,2)}, {vr(own+4*dt+p,2)}, {vr(r0+4*dt+p,2)}')
    for dt in range(5):
        for p in (0, 2): k.I(f'v_pk_fma_f32 {vr(own+4*dt+p,2)}, {vr(own+4*dt+p,2)}, {vr(gb+4*dt+p,2)}, {vr(xf+4*dt+p,2)}')
    for dt in range(5):
        for p in (0, 2): k.I(f'v_cvt_pk_bf16_f32 v{x1r+2*dt+p//2}, v{own+4*dt+p}, v{own+4*dt+p+1}')
    k.I(f'buffer_store_dwordx4 {vr(x1r,4)}, v{oo}, s[36:39], s31 offen')
    k.I(f'buffer_store_dwordx4 {vr(x1r+4,4)}, v{oo}, s[36:39], s31 offen offset:16')
    k.I(f'buffer_store_dwordx2 {vr(x1r+8,2)}, v{oo}, s[36:39], s31 offen offset:32')
    stamp_end(k, 3, 4)
    k.label('LD_exit')
    k.I('s_endpgm')
    return k, (256, 256, 163840)

if __name__ == '__main__':
    out = sys.argv[1] if len(sys.argv) > 1 else 'adaLN_cond__spectral_gfnet__glu_gated_bilinear__prompt.s'
    if len(sys.argv) > 2 and sys.argv[2] == 'stamps': gen.STAMPS = True
    build(out, (gen_A2, gen_B, gen_C, gen_DEF))
```

```python
import sys, math, os
import gen
from gen import *
from gen import mark, stamp_begin, stamp_end

WGU = 0x1220000
FLAGS = 0x9000
WS_END2 = WGU + D * 2 * F * 2

def env(n, d): return int(os.environ.get(n, d))

def role_mod(k, s_c, s_wmod, lexit):
    va = VAlloc(1)
    vrw = va.get(); voff = va.get(); vc = va.get(10); vw = va.get(40, 4); acc = va.get(8, 4); t0 = va.get(); t1 = va.get(); vco = va.get()
    k.I(f'v_lshrrev_b32 v{vrw}, 2, v0')
    k.I(f'v_mul_u32_u24 v{voff}, 7680, v{vrw}')
    k.I(f'v_and_b32 v{t0}, 3, v0')
    k.I(f'v_lshl_add_u32 v{voff}, v{t0}, 4, v{voff}')
    k.I(f'v_lshlrev_b32 v{vco}, 1, v{vrw}')
    k.I('s_lshl_b32 s23, s20, 6')
    k.srd(24, s_wmod, D * 6 * D * 2)
    k.srd(28, s_c, D * 2)
    for i in range(10):
        k.I(f'buffer_load_dwordx4 {vr(vw+4*i,4)}, v{voff}, s[24:27], s23 offen nt')
        if i < 9: k.I(f's_add_u32 s23, s23, {64*7680}')
        if i == 0:
            for j in range(10): k.I(f'buffer_load_ushort v{vc+j}, v{vco}, s[28:31], 0 offen offset:{128*j}')
    k.srd(32, 4, 0x8000)
    for j in range(8): k.I(f'v_mov_b32 v{acc+j}, 0')
    tt = va.get(10)
    R = range(10)
    for i in R: k.I(f'v_lshlrev_b32 v{vc+i}, 16, v{vc+i}')
    for i in R: k.I(f'v_mul_f32 v{tt+i}, {fhex(-math.log2(math.e))}, v{vc+i}')
    for i in R: k.I(f'v_exp_f32 v{tt+i}, v{tt+i}')
    for i in R: k.I(f'v_add_f32 v{tt+i}, 1.0, v{tt+i}')
    for i in R: k.I(f'v_rcp_f32 v{tt+i}, v{tt+i}')
    for i in R: k.I(f'v_mul_f32 v{vc+i}, v{vc+i}, v{tt+i}')
    for i in R: k.I(f'v_cvt_pk_bf16_f32 v{vc+i}, v{vc+i}, v{vc+i}')
    for i in R: k.I(f'v_and_b32 v{vc+i}, 0xffff0000, v{vc+i}')
    for i in R:
        for j in range(4):
            k.I(f'v_lshlrev_b32 v{t0}, 16, v{vw+4*i+j}')
            k.I(f'v_and_b32 v{t1}, 0xffff0000, v{vw+4*i+j}')
            k.I(f'v_fmac_f32 v{acc+2*j}, v{vc+i}, v{t0}')
            k.I(f'v_fmac_f32 v{acc+2*j+1}, v{vc+i}, v{t1}')
    for m in (4, 8):
        for j in range(8): k.I(f'v_add_f32_dpp v{acc+j}, v{acc+j}, v{acc+j} row_ror:{m} row_mask:0xf bank_mask:0xf')
    k.I(f'v_lshrrev_b32 v{t0}, 4, v0')
    k.I(f'v_lshlrev_b32 v{t0}, 7, v{t0}')
    k.I(f'v_and_b32 v{t1}, 3, v0')
    k.I(f'v_lshl_add_u32 v{t0}, v{t1}, 5, v{t0}')
    k.I('s_mov_b32 s36, 0x000f000f')
    k.I('s_mov_b32 s37, 0x000f000f')
    k.I('s_mov_b64 exec, s[36:37]')
    k.I(f'ds_write_b128 v{t0}, {vr(acc,4)}')
    k.I(f'ds_write_b128 v{t0}, {vr(acc+4,4)} offset:16')
    k.I('s_mov_b64 exec, -1')
    k.barrier()
    k.I('v_readfirstlane_b32 s38, v0')
    k.I('s_cmp_lg_u32 s38, 0')
    k.I(f's_cbranch_scc1 {lexit}')
    k.I(f'v_lshlrev_b32 v{t0}, 2, v0')
    for j in range(4):
        k.I(f'ds_read2st64_b32 {vr(vw+2*j,2)}, v{t0} offset0:{2*j} offset1:{2*j+1}')
    k.I('s_mul_i32 s39, s20, 205')
    k.I('s_lshr_b32 s39, s39, 12')
    k.I('s_mul_i32 s40, s39, 20')
    k.I('s_sub_u32 s40, s20, s40')
    k.I('s_cmp_eq_u32 s39, 1')
    k.I('s_cselect_b32 s41, 1.0, 0')
    k.I('s_cmp_eq_u32 s39, 4')
    k.I('s_cselect_b32 s41, 1.0, s41')
    k.I('s_cmp_eq_u32 s39, 2')
    k.I(f's_cselect_b32 s42, {fhex(1.0 / (2.0 * S * D))}, 1.0')
    for j in range(2): k.I(f'v_pk_add_f32 {vr(vw+2*j,2)}, {vr(vw+2*j,2)}, {vr(vw+4+2*j,2)}')
    k.I(f'v_pk_add_f32 {vr(vw,2)}, {vr(vw,2)}, {vr(vw+2,2)}')
    k.I(f'v_add_f32 v{vw}, v{vw}, v{vw+1}')
    k.I(f'v_mov_b32 v{vw+1}, v{vw}')
    k.I(f'v_permlane32_swap_b32 v{vw+1}, v{vw}')
    k.I(f'v_add_f32 v{vw}, v{vw}, v{vw+1}')
    k.I(f'v_cvt_pk_bf16_f32 v{vw}, v{vw}, v{vw}')
    k.I(f'v_and_b32 v{vw}, 0xffff0000, v{vw}')
    k.I(f'v_add_f32 v{vw}, s41, v{vw}')
    k.I(f'v_cvt_pk_bf16_f32 v{vw}, v{vw}, v{vw}')
    k.I(f'v_and_b32 v{vw}, 0xffff0000, v{vw}')
    k.I(f'v_mul_f32 v{vw}, s42, v{vw}')
    return vw, t0, t1

def role_mod_store_plain(k, vw, t0, t1):
    k.I('s_lshr_b32 s43, s40, 2')
    k.I('s_lshl_b32 s43, s43, 10')
    k.I('s_and_b32 s44, s40, 1')
    k.I('s_lshl_b32 s44, s44, 9')
    k.I('s_add_u32 s43, s43, s44')
    k.I('s_and_b32 s44, s40, 2')
    k.I('s_lshl_b32 s44, s44, 2')
    k.I('s_add_u32 s43, s43, s44')
    k.I(f's_add_u32 s43, s43, {MODB}')
    k.I('s_cmp_eq_u32 s39, 0')
    k.I('s_cselect_b32 s44, 4, 0')
    k.I('s_add_u32 s43, s43, s44')
    k.I('s_cmp_ge_u32 s39, 2')
    k.I('s_cselect_b32 s43, 0x100000, s43')
    k.I('s_lshl_b32 s45, s20, 7')
    k.I(f'v_and_b32 v{t1}, 31, v0')
    k.I(f'v_lshl_add_u32 v{t0}, v{t1}, 2, s45')
    k.I(f'v_lshl_add_u32 v{t1}, v{t1}, 4, s43')
    k.I('v_cmp_gt_u32 vcc, 32, v0')
    k.I(f'v_cndmask_b32 v{t0}, v{t1}, v{t0}, vcc')
    k.I(f'buffer_store_dword v{vw}, v{t0}, s[32:35], 0 offen')

N_WT = 161
def role_wt(k, s_wr, s_wi):
    va = VAlloc(1)
    idx = va.get(); g = va.get(); t = va.get(); a0 = va.get(); a1 = va.get(); src = va.get(); dst = va.get()
    lr = va.get(16, 4); li = va.get(16, 4)
    k.I('s_lshl_b32 s20, s20, 8')
    k.I(f'v_add_u32 v{idx}, s20, v0')
    k.I(f's_mov_b32 s21, {(2**32 + 320) // 321}')
    k.I(f'v_mul_hi_u32 v{g}, v{idx}, s21')
    k.I(f'v_mul_u32_u24 v{a0}, 321, v{g}')
    k.I(f'v_sub_u32 v{t}, v{idx}, v{a0}')
    k.I(f'v_lshrrev_b32 v{a0}, 4, v{g}')
    k.I(f'v_and_b32 v{a1}, 15, v{g}')
    k.I(f'v_lshlrev_b32 v{src}, 6, v{a0}')
    k.I(f'v_add_u32 v{src}, v{src}, v{a1}')
    k.I(f'v_mul_u32_u24 v{src}, 2568, v{src}')
    k.I(f'v_lshl_add_u32 v{src}, v{t}, 1, v{src}')
    k.srd(24, s_wr, S * 321 * 2)
    k.srd(28, s_wi, S * 321 * 2)
    for r in range(1, 4): k.I(f's_mov_b32 s{40+r}, {41088*r}')
    for i in range(4):
        for r in range(4):
            so = f's{40+r}' if r else '0'
            k.I(f'buffer_load_ushort v{lr+4*i+r}, v{src}, s[24:27], {so} offen offset:{642*i} nt')
            k.I(f'buffer_load_ushort v{li+4*i+r}, v{src}, s[28:31], {so} offen offset:{642*i} nt')
    k.srd(32, 4, XT_SZ, WT)
    k.I(f'v_lshlrev_b32 v{dst}, 13, v{t}')
    k.I(f'v_lshl_add_u32 v{dst}, v{a0}, 8, v{dst}')
    k.I(f'v_lshrrev_b32 v{a0}, 2, v{a1}')
    k.I(f'v_lshl_add_u32 v{dst}, v{a0}, 11, v{dst}')
    k.I(f'v_and_b32 v{a1}, 3, v{a1}')
    k.I(f'v_lshl_add_u32 v{dst}, v{a1}, 6, v{dst}')
    k.I(f'v_cmp_gt_u32 vcc, 0x80, v{g}')
    k.I(f'v_cndmask_b32 v{dst}, -1, v{dst}, vcc')
    k.I(f'v_min_u32 v{dst}, 0x7fffff00, v{dst}')
    for i in range(4):
        for r in range(4):
            k.I(f'v_lshl_or_b32 v{lr+4*i+r}, v{li+4*i+r}, 16, v{lr+4*i+r}')
        k.I(f'buffer_store_dwordx4 {vr(lr+4*i,4)}, v{dst}, s[32:35], 0 offen offset:{16*i}')

N_WGU = 160
def role_wgu(k, s_wg, s_wu):
    va = VAlloc(1)
    vl = va.get(); wo = va.get(3); t0 = va.get(); t1 = va.get(); t2 = va.get(); ra = va.get(); r2 = va.get(); vo = va.get()
    o = va.get(24, 4)
    k.I('v_lshrrev_b32 v1, 6, v0')
    k.I('v_readfirstlane_b32 s22, v1')
    k.I(f'v_and_b32 v{vl}, 63, v0')
    k.I('s_and_b32 s21, s20, 15')
    k.I('s_lshr_b32 s20, s20, 4')
    for p in range(3):
        k.I(f'v_add_u32 v{t0}, {64*p}, v{vl}')
        k.I(f'v_mul_u32_u24 v{t1}, 171, v{t0}')
        k.I(f'v_lshrrev_b32 v{t1}, 11, v{t1}')
        k.I(f'v_mul_u32_u24 v{t2}, 12, v{t1}')
        k.I(f'v_sub_u32 v{t0}, v{t0}, v{t2}')
        k.I(f'v_mul_u32_u24 v{wo+p}, 3072, v{t1}')
        k.I(f'v_lshl_add_u32 v{wo+p}, v{t0}, 4, v{wo+p}')
        if p: k.I(f'v_subrev_u32 v{wo+p}, {1024*p}, v{wo+p}')
    k.I('s_lshl_b32 s23, s20, 2')
    k.I('s_add_u32 s23, s23, s22')
    k.I(f's_mul_i32 s23, s23, {16*3072}')
    k.I('s_mul_i32 s24, s21, 192')
    k.I('s_add_u32 s23, s23, s24')
    k.I('s_mul_i32 s24, s22, 3072')
    k.I('s_mov_b32 m0, s24')
    k.srd(28, s_wg, D * F * 2)
    k.srd(32, s_wu, D * F * 2)
    for p in range(3): k.I(f'buffer_load_dwordx4 v{wo+p}, s[28:31], s23 offen offset:{1024*p} nt lds')
    k.I('s_add_u32 m0, s24, 12288')
    for p in range(3): k.I(f'buffer_load_dwordx4 v{wo+p}, s[32:35], s23 offen offset:{1024*p} nt lds')
    k.I(f'v_lshrrev_b32 v{t0}, 4, v{vl}')
    k.I(f'v_bfe_u32 v{t1}, v{vl}, 2, 2')
    k.I(f'v_lshl_add_u32 v{t0}, v{t0}, 3, v{t1}')
    k.I(f'v_mul_u32_u24 v{ra}, 192, v{t0}')
    k.I('s_mul_i32 s25, s22, 48')
    k.I(f'v_add_u32 v{ra}, s25, v{ra}')
    k.I(f'v_and_b32 v{t0}, 1, v{vl}')
    k.I(f'v_lshl_add_u32 v{r2}, v{t0}, 3, v{ra}')
    k.I(f'v_bfe_u32 v{t0}, v{vl}, 1, 1')
    k.I(f'v_mul_u32_u24 v{t0}, 12288, v{t0}')
    k.I(f'v_add_u32 v{r2}, v{r2}, v{t0}')
    k.I(f'v_and_b32 v{t0}, 3, v{vl}')
    k.I(f'v_lshl_add_u32 v{ra}, v{t0}, 3, v{ra}')
    k.I(f'v_lshlrev_b32 v{vo}, 4, v{vl}')
    k.srd(36, 4, D * 2 * F * 2, WGU)
    k.I('s_lshl_b32 s26, s21, 2')
    k.I('s_add_u32 s26, s26, s22')
    k.I('s_mul_i32 s26, s26, 10')
    k.I('s_add_u32 s26, s26, s20')
    k.I('s_mul_i32 s26, s26, 6144')
    k.I('s_add_u32 s27, s26, 3072')
    k.barrier(vm=0)
    for kk in range(2):
        for mt in range(3):
            for hf in range(2):
                off = (32*kk + 4*hf) * 192 + (12288 if mt == 1 else 0) + (32 if mt == 2 else 0)
                k.I(f'ds_read_b64_tr_b16 {vr(o+(3*kk+mt)*4+2*hf,2)}, v{r2 if mt == 2 else ra} offset:{off}')
    for kk in range(2):
        for mt in range(3):
            k.I(f'buffer_store_dwordx4 {vr(o+(3*kk+mt)*4,4)}, v{vo}, s[36:39], s{26+kk} offen offset:{1024*mt}')

N_WD = 48
def role_wd(k, s_wd):
    va = VAlloc(1)
    vl = va.get(); t0 = va.get(); t1 = va.get(); ra = va.get(); vo = va.get()
    o = va.get(40, 4)
    k.I('v_lshrrev_b32 v1, 6, v0')
    k.I('v_readfirstlane_b32 s22, v1')
    k.I(f'v_and_b32 v{vl}, 63, v0')
    k.I(f'v_lshlrev_b32 v{vo}, 4, v{vl}')
    k.I('s_mul_i32 s24, s22, 10240')
    k.I('s_mul_i32 s23, s20, 40960')
    k.I(f's_add_u32 s28, s{s_wd}, s23')
    k.I(f's_addc_u32 s29, s{s_wd+1}, 0')
    k.I('s_mov_b32 s30, 40960')
    k.I('s_mov_b32 s31, 0x00020000')
    for i in range(10):
        if i % 4 == 0: k.I(f's_add_u32 m0, s24, {4096*(i//4)}')
        k.I(f'buffer_load_dwordx4 v{vo}, s[28:31], m0 offen offset:{1024*(i%4)} nt lds')
    k.I(f'v_lshrrev_b32 v{t0}, 4, v{vl}')
    k.I(f'v_bfe_u32 v{t1}, v{vl}, 2, 2')
    k.I(f'v_lshl_add_u32 v{t0}, v{t0}, 3, v{t1}')
    k.I(f'v_mul_u32_u24 v{ra}, 1280, v{t0}')
    k.I(f'v_and_b32 v{t0}, 3, v{vl}')
    k.I(f'v_mul_u32_u24 v{t0}, 40, v{t0}')
    k.I('s_mul_i32 s25, s22, 320')
    k.I(f'v_add3_u32 v{ra}, v{ra}, v{t0}, s25')
    k.srd(36, 4, F * D * 2, WD)
    k.I('s_mul_i32 s26, s22, 96')
    k.I('s_add_u32 s26, s26, s20')
    k.I('s_mul_i32 s40, s26, 5120')
    k.I('s_add_u32 s41, s40, 4096')
    k.I(f's_add_u32 s42, s40, {48*5120}')
    k.I(f's_add_u32 s43, s40, {48*5120+4096}')
    k.barrier(vm=0)
    for j in range(2):
        for dt in range(5):
            for hf in range(2):
                k.I(f'ds_read_b64_tr_b16 {vr(o+(5*j+dt)*4+2*hf,2)}, v{ra} offset:{4*hf*1280+160*j+8*dt}')
    for j in range(2):
        for dt in range(5):
            k.I(f'buffer_store_dwordx4 {vr(o+(5*j+dt)*4,4)}, v{vo}, s[36:39], s{40+2*j+(dt//4)} offen offset:{1024*(dt%4)}')

def gen_A2():
    k = Kernel('ka_kernel')
    stamp_begin(k)
    k.I(f's_load_dwordx2 s[4:5], s[0:1], {KA["ws"]}')
    k.I(f's_load_dwordx4 s[8:11], s[0:1], {KA["c"]}')
    k.I(f's_load_dwordx4 s[12:15], s[0:1], {KA["wr"]}')
    k.I(f's_load_dwordx4 s[16:19], s[0:1], {KA["wg"]}')
    k.I(f's_load_dwordx2 s[6:7], s[0:1], {KA["wd"]}')
    n0 = 120; n1 = n0 + N_WD; n2 = n1 + N_WGU; n3 = n2 + N_WT; n4 = n3 + 1
    k.I(f's_cmp_ge_u32 s2, {n0}')
    st = k.save_state()
    k.I('s_cbranch_scc1 LA_1')
    k.I('s_and_b32 s20, s2, 7')
    k.I('s_lshr_b32 s21, s2, 3')
    k.I('s_and_b32 s22, s21, 1')
    k.I('s_lshr_b32 s21, s21, 1')
    k.I('s_lshl_b32 s21, s21, 4')
    k.I('s_lshl_b32 s20, s20, 1')
    k.I('s_add_u32 s20, s20, s21')
    k.I('s_add_u32 s20, s20, s22')
    k.I('s_cmp_ge_u32 s2, 112')
    k.I('s_cselect_b32 s20, s2, s20')
    vw, t0, t1 = role_mod(k, 8, 10, 'LA_end')
    role_mod_store_plain(k, vw, t0, t1)
    k.label('LA_end')
    stamp_end(k, 0, 4)
    k.I('s_endpgm')
    for lab, nxt, lo, hi, fn in (('LA_1', 'LA_2', n0, n1, lambda: role_wd(k, 6)), ('LA_2', 'LA_3', n1, n2, lambda: role_wgu(k, 16, 18)),
                                 ('LA_3', 'LA_4', n2, n3, lambda: role_wt(k, 12, 14))):
        k.label(lab, fresh=True); k.restore_state(st)
        k.I(f's_cmp_ge_u32 s2, {hi}')
        k.I(f's_cbranch_scc1 {nxt}')
        k.I(f's_sub_u32 s20, s2, {lo}')
        fn()
        stamp_end(k, 0, 4)
        k.I('s_endpgm')
    k.label('LA_4', fresh=True); k.restore_state(st)
    k.I(f's_cmp_ge_u32 s2, {n4}')
    k.I('s_cbranch_scc1 LA_5')
    k.srd(24, 4, 32 * 256, FLAGS)
    k.I('v_lshlrev_b32 v1, 8, v0')
    k.I('v_mov_b32 v2, 0')
    k.I('buffer_store_dword v2, v1, s[24:27], 0 offen')
    k.label('LA_5')
    k.I('s_endpgm')
    return k, (n4, 256, 40960)

def ids2(k, vl):
    k.I('v_lshrrev_b32 v1, 6, v0')
    k.I(f'v_and_b32 v{vl}, 63, v0')
    k.I('v_readfirstlane_b32 s22, v1')
    k.I('s_and_b32 s20, s2, 6')
    k.I('s_lshl_b32 s20, s20, 1')
    k.I('s_lshr_b32 s21, s2, 6')
    k.I('s_add_u32 s20, s20, s21')
    k.I('s_lshr_b32 s21, s2, 3')
    k.I('s_and_b32 s21, s21, 7')
    k.I('s_and_b32 s24, s2, 1')
    k.I('s_lshl_b32 s24, s24, 3')
    k.I('s_add_u32 s21, s21, s24')
    k.I('s_lshl_b32 s23, s20, 7')
    k.I('s_lshl_b32 s24, s21, 1')
    k.I('s_add_u32 s23, s23, s24')
    k.I('s_and_b32 s24, s22, 1')
    k.I('s_lshl_b32 s24, s24, 6')
    k.I('s_add_u32 s23, s23, s24')
    k.I('s_lshr_b32 s24, s22, 1')
    k.I('s_add_u32 s23, s23, s24')
    k.I('s_lshr_b32 s25, s20, 2')
    k.I('s_lshl_b32 s25, s25, 11')
    k.I('s_lshr_b32 s24, s21, 3')
    k.I('s_lshl_b32 s24, s24, 10')
    k.I('s_add_u32 s25, s25, s24')
    k.I('s_and_b32 s24, s20, 3')
    k.I('s_lshl_b32 s24, s24, 8')
    k.I('s_add_u32 s25, s25, s24')
    k.I('s_and_b32 s24, s21, 7')
    k.I('s_lshl_b32 s24, s24, 5')
    k.I('s_add_u32 s25, s25, s24')
    k.I(f's_add_u32 s26, s25, {128*8192}')
    k.I(f's_add_u32 s27, s25, {256*8192}')
gen.bd_ids = ids2

def handoff(k, name, cnt_off_sgpr, vtmp):
    k.I('s_barrier')
    st = k.save_state()
    k.I('s_cmp_lg_u32 s22, 0')
    k.I(f's_cbranch_scc1 L{name}_done')
    k.I(f'v_mov_b32 v{vtmp}, 0')
    k.I(f'v_mov_b32 v{vtmp+1}, 1')
    k.I('s_mov_b64 exec, 1')
    k.I(f'buffer_atomic_add v{vtmp+1}, v{vtmp}, s[12:15], s{cnt_off_sgpr} offen sc1')
    k.I('s_mov_b32 s24, 0x100000')
    k.label(f'L{name}_poll')
    k.I(f'buffer_load_dword v{vtmp+1}, v{vtmp}, s[12:15], s{cnt_off_sgpr} offen sc1')
    k.waitcnt(vm=0)
    k.I(f'v_readfirstlane_b32 s33, v{vtmp+1}')
    k.I('s_sub_u32 s24, s24, 1')
    k.I(f's_cbranch_scc1 L{name}_out')
    k.I('s_cmp_lt_u32 s33, 16')
    k.I(f's_cbranch_scc1 L{name}_poll')
    k.label(f'L{name}_out')
    k.I('s_mov_b64 exec, -1')
    k.label(f'L{name}_done')
    k.restore_state(st)
    k.I('s_barrier')

def gen_DEF():
    k = Kernel('kd_kernel')
    PL = 2592
    W_EARLY = env('W_EARLY', 42)
    stamp_begin(k)
    k.I('s_cmp_ge_u32 s2, 256')
    k.I('s_cbranch_scc1 LD_exit')
    k.I(f's_load_dwordx2 s[4:5], s[0:1], {KA["ws"]}')
    k.I(f's_load_dwordx2 s[6:7], s[0:1], {KA["x"]}')
    k.I(f's_load_dwordx2 s[40:41], s[0:1], {KA["out"]}')
    va = VAlloc(2)
    vl = va.get(); vo16 = va.get(); vW = va.get(); vi = va.get(); vq = va.get(); hs = va.get(2, 2)
    keep = va.n
    so = va.get(); ta = va.get(4)
    ch = va.get(12, 4); xr = va.get(12, 2); mg = va.get(12, 4); mc = va.get(12, 4); ms = va.get(12, 4)
    xo = va.get(); xo2 = va.get(); mo = va.get()
    ids2(k, vl)
    k.I(f'v_lshlrev_b32 v{vo16}, 4, v{vl}')
    k.I(f'v_and_b32 v{ta}, 1, v0')
    k.I(f'v_lshrrev_b32 v{ta+1}, 1, v0')
    k.I(f'v_lshlrev_b32 v{so}, 13, v{ta+1}')
    k.I(f'v_lshl_add_u32 v{so}, v{ta}, 4, v{so}')
    k.I(f'v_and_b32 v{vi}, 15, v{vl}')
    k.I(f'v_lshrrev_b32 v{vq}, 4, v{vl}')
    k.I(f'v_mul_u32_u24 v{xo}, 80, v{vi}')
    k.I(f'v_lshl_add_u32 v{xo}, v{vq}, 3, v{xo}')
    k.I(f'v_lshlrev_b32 v{mo}, 1, v{xo}')
    k.I(f'v_cmp_gt_u32 vcc, 32, v{vl}')
    k.I(f'v_mov_b32 v{xo2}, 0x7fff0000')
    k.I(f'v_cndmask_b32 v{xo2}, v{xo2}, v{xo}, vcc')
    k.I('s_mul_i32 s28, s23, 1280')
    k.I(f's_add_u32 s29, s28, {32*1280}')
    k.I('s_lshl_b32 s24, s21, 2')
    k.I('s_add_u32 s24, s24, s22')
    k.I('s_mul_i32 s24, s24, 61440')
    k.I(f's_add_u32 s24, s24, {WGU}')
    k.I(f'v_add_u32 v{vW}, s24, v{vo16}')
    fi = va.get(); fq = va.get(); fq4 = va.get()
    k.I(f'v_cvt_f32_u32 v{fi}, v{vi}')
    k.I(f'v_cvt_f32_u32 v{fq}, v{vq}')
    k.I(f'v_mul_f32 v{fq4}, 4.0, v{fq}')
    wu = va.get(); wv = va.get(); ra = va.get()
    k.I(f'v_mul_u32_u24 v{wu}, {2*PL}, v{ta}')
    k.I(f'v_sub_u32 v{wv}, 384, v{ta+1}')
    k.I(f'v_lshl_add_u32 v{wv}, v{wv}, 2, v{wu}')
    k.I(f'v_lshl_add_u32 v{wu}, v{ta+1}, 2, v{wu}')
    k.I(f's_mul_i32 s33, s22, {PL}')
    k.I(f'v_lshl_add_u32 v{ra}, v{vl}, 2, s33')
    k.I(f'v_cmp_ge_u32 s[34:35], 64, v{ta+1}')
    cs, sn = gen_tw640(k, va, fi, fq4)
    k.I(f'v_cmp_gt_u32 vcc, 8, v{vi}')
    for r in range(4):
        k.I(f'v_cndmask_b32 v{cs+8+r}, 0, v{cs+8+r}, vcc')
        k.I(f'v_cndmask_b32 v{sn+8+r}, 0, v{sn+8+r}, vcc')
    k.srd(16, 4, XT_SZ, XT)
    for rho in range(3):
        k.I(f'buffer_load_dwordx4 {vr(ch+4*rho,4)}, v{so}, s[16:19], s{25+rho} offen')
    k.srd(8, 6, S * D * 2)
    k.srd(12, 4, WS_END2)
    k.srd(36, 40, S * D * 2)
    k.I(f's_movk_i32 s30, {2*2560}')
    k.I(f's_movk_i32 s31, {3*2560}')
    k.I(f's_movk_i32 s32, {4*2560}')
    def wload(n):
        g = [f'buffer_load_dwordx4 {ar(4*n,4)}, v{vW}, s[12:15], 0 offen offset:{1024*(n%4)}']
        if n % 4 == 3: g.append(f'v_add_u32 v{vW}, 0x1000, v{vW}')
        return g
    side = []
    for T in range(3):
        for c in range(2):
            side.append([f'buffer_load_dwordx2 {vr(xr+(2*T+c)*2,2)}, v{xo2 if T == 2 else xo}, s[8:11], s{28+c} offen offset:{32*T} nt'])
    for T in range(3):
        side.append([f'buffer_load_dwordx4 {vr(mg+4*T,4)}, v{mo}, s[12:15], s30 offen offset:{64*T}'])
    for T in range(3):
        side.append([f'buffer_load_dwordx4 {vr(ms+4*T,4)}, v{mo}, s[12:15], s31 offen offset:{64*T}'])
        side.append([f'buffer_load_dwordx4 {vr(mc+4*T,4)}, v{mo}, s[12:15], s32 offen offset:{64*T}'])
    k.bg = side + [wload(n) for n in range(W_EARLY)]
    k.bg_every = env('BG1', 6)
    mark(k, 1)
    f40 = gen_f40(k, va, fi, fq, True)
    f16 = va.get(6, 2); tmp = va.get(8, 2)
    k.I(f'v_mul_f32 v{ta+2}, {fhex(1.0/16)}, v{fi}')
    k.I(f'v_mul_f32 v{ta+3}, v{fq4}, v{ta+2}')
    for j in range(4): k.I(f'v_fmamk_f32 v{tmp+4+j}, v{ta+2}, {fhex(float(j))}, v{ta+3}')
    for j in range(4):
        k.I(f'v_cos_f32 v{tmp+j}, v{tmp+4+j}')
        k.I(f'v_sin_f32 v{tmp+4+j}, v{tmp+4+j}')
    for p in range(2):
        k.I(f'v_cvt_pk_bf16_f32 v{f16+p}, v{tmp+4+2*p}, v{tmp+5+2*p}')
        k.I(f'v_cvt_pk_bf16_f32 v{f16+2+p}, v{tmp+2*p}, v{tmp+1+2*p}')
        k.I(f'v_cvt_pk_bf16_f32 v{f16+4+p}, -v{tmp+4+2*p}, -v{tmp+5+2*p}')
    dat = va.get(12, 2)
    k.I(f'v_mov_b32 v{dat+10}, 0'); k.I(f'v_mov_b32 v{dat+11}, 0')
    mark(k, 2)
    be = k.bg_every; k.bg_every = 0
    for rho in range(3):
        if rho == 2: k.I('s_mov_b64 exec, s[34:35]')
        for pr in range(2):
            k.I(f'ds_write_b32 v{wu}, v{ch+4*rho+2*pr} offset:{pr*PL+512*rho}')
            k.I(f'ds_write_b32 v{wv}, v{ch+4*rho+2*pr+1} offset:{pr*PL+512*(2-rho)}')
    k.I('s_mov_b64 exec, -1')
    k.barrier()
    mark(k, 3)
    for p in range(5):
        k.I(f'ds_read2st64_b32 {vr(dat+2*p,2)}, v{ra} offset0:{2*p} offset1:{2*p+1}')
    k.bg_every = env('BG2', 8)
    d1 = va.get(24, 4)
    for T in range(3):
        for kap in range(3):
            for c in range(2):
                dd = vr(d1 + (2*T+c)*4, 4)
                k.I(f'{MF16} {dd}, {vr(dat+4*kap,4)}, {vr(f40+(2*T+c)*10+4*kap,4)}, {dd if kap else 0}')
    a2 = ch; d2 = va.get(24, 4); xf = f40
    for T in range(3):
        cmul4(k, d1+8*T, d1+8*T+4, cs+4*T, sn+4*T, a2+4*T, tmp, True)
        for c in range(2):
            k.I(f'{MF16} {vr(d2+(2*T+c)*4,4)}, {vr(a2+4*T,4)}, {vr(f16+(0 if c else 2),4)}, 0')
    for i in range(12):
        k.I(f'v_lshlrev_b32 v{xf+2*i}, 16, v{xr+i}')
        k.I(f'v_and_b32 v{xf+2*i+1}, 0xffff0000, v{xr+i}')
    for T in range(3):
        for c in range(2):
            for p in (0, 2):
                r = (2*T+c)*4+p
                k.I(f'v_pk_fma_f32 {vr(xf+r,2)}, {vr(d2+r,2)}, {vr(mg+4*T+p,2)}, {vr(xf+r,2)}')
    st_ = f40 + 24
    first = True
    for T in range(3):
        for p in (0, 2):
            for c in range(2):
                r = xf+(2*T+c)*4+p
                if first:
                    k.I(f'v_mov_b64 {vr(st_+2*c,2)}, {vr(r,2)}')
                    k.I(f'v_pk_mul_f32 {vr(st_+4+2*c,2)}, {vr(r,2)}, {vr(r,2)}')
                else:
                    k.I(f'v_pk_add_f32 {vr(st_+2*c,2)}, {vr(st_+2*c,2)}, {vr(r,2)}')
                    k.I(f'v_pk_fma_f32 {vr(st_+4+2*c,2)}, {vr(r,2)}, {vr(r,2)}, {vr(st_+4+2*c,2)}')
            first = False
    for i in range(4): k.I(f'v_add_f32 v{st_+2*i}, v{st_+2*i}, v{st_+2*i+1}')
    wave_reduce_to_sgpr(k, [st_, st_+2, st_+4, st_+6], [46, 47, 48, 49])
    po = d1; ph = d1 + 12
    rr = f40 + 32; nmr = f40 + 34
    ln_scalars(k, 46, 48, rr, nmr, tmp)
    HB = 12288; XB = HB + 10240
    wh = f40 + 36; wx = f40 + 39; g0 = f40 + 40; g2 = f40 + 41; g3 = f40 + 42; tk = f40 + 43; cb_ = f40 + 44; tq = f40 + 45; tid16 = f40 + 46
    for T in range(3):
        for j in range(4):
            k.I(f'v_cvt_pk_bf16_f32 v{po+4*T+j}, v{xf+8*T+2*j}, v{xf+8*T+2*j+1}')
    for T in range(3):
        for c in range(2):
            for p in (0, 2):
                r = xf+(2*T+c)*4+p
                k.I(f'v_pk_fma_f32 {vr(r,2)}, {vr(r,2)}, {vr(rr,2)}, {vr(nmr,2)} op_sel:[0,{c},{c}] op_sel_hi:[1,{c},{c}]')
    for T in range(3):
        for c in range(2):
            for p in (0, 2):
                r = xf+(2*T+c)*4+p
                k.I(f'v_pk_fma_f32 {vr(r,2)}, {vr(r,2)}, {vr(mc+4*T+p,2)}, {vr(ms+4*T+p,2)}')
    for T in range(3):
        for j in range(4):
            k.I(f'v_cvt_pk_bf16_f32 v{ph+4*T+j}, v{xf+8*T+2*j}, v{xf+8*T+2*j+1}')
    k.I(f'v_lshrrev_b32 v{tq}, 1, v{vq}')
    k.I(f'v_mad_u32_u24 v{cb_}, v{vi}, 5, v{tq}')
    k.I(f'v_and_b32 v{tk}, 1, v{vq}')
    k.I('s_lshl_b32 s24, s22, 1')
    k.I(f'v_add_u32 v{tk}, s24, v{tk}')
    for T in range(3):
        k.I(f'v_permlane16_swap_b32 v{ph+4*T}, v{ph+4*T+2}')
        k.I(f'v_permlane16_swap_b32 v{ph+4*T+1}, v{ph+4*T+3}')
        k.I(f'v_add_u32 v{tq}, {2*T}, v{cb_}')
        k.I(f'v_xor_b32 v{wh+T}, v{tq}, v{tk}')
        k.I(f'v_and_b32 v{wh+T}, 7, v{wh+T}')
        k.I(f'v_lshl_add_u32 v{wh+T}, v{tq}, 3, v{wh+T}')
        k.I(f'v_lshlrev_b32 v{wh+T}, 4, v{wh+T}')
    k.bg_every = 0
    for T in range(3):
        if T == 2: k.I('s_mov_b32 exec_hi, 0')
        k.I(f'ds_write_b128 v{wh+T}, {vr(ph+4*T,4)} offset:{HB}')
    k.I('s_mov_b64 exec, -1')
    for T in range(3):
        k.I(f'v_permlane16_swap_b32 v{po+4*T}, v{po+4*T+2}')
        k.I(f'v_permlane16_swap_b32 v{po+4*T+1}, v{po+4*T+3}')
    k.I(f'v_mul_u32_u24 v{wx}, 1280, v{tk}')
    k.I(f'v_lshl_add_u32 v{wx}, v{cb_}, 4, v{wx}')
    for T in range(3):
        if T == 2: k.I('s_mov_b32 exec_hi, 0')
        k.I(f'ds_write_b128 v{wx}, {vr(po+4*T,4)} offset:{XB+32*T}')
    k.I('s_mov_b64 exec, -1')
    k.I(f'v_lshlrev_b32 v{tid16}, 4, v0')
    k.I(f'v_lshrrev_b32 v{tq}, 3, v0')
    k.I(f'v_xor_b32 v{g0}, v{tq}, v0')
    k.I(f'v_and_b32 v{g0}, 7, v{g0}')
    k.I(f'v_lshlrev_b32 v{g0}, 4, v{g0}')
    k.I(f'v_lshl_add_u32 v{g0}, v{tq}, 8, v{g0}')
    k.I('s_lshl_b32 s42, s20, 3')
    k.I('s_lshr_b32 s24, s21, 1')
    k.I('s_add_u32 s42, s42, s24')
    k.I('s_mul_i32 s42, s42, 20480')
    k.I('s_and_b32 s24, s21, 1')
    k.I('s_lshl_b32 s24, s24, 7')
    k.I('s_add_u32 s42, s42, s24')
    k.I(f's_add_u32 s42, s42, {H2}')
    k.I('s_lshl_b32 s43, s20, 4')
    k.I('s_add_u32 s43, s43, s21')
    k.I('s_mul_i32 s43, s43, 10240')
    k.I(f's_add_u32 s43, s43, {X1 - 2048}')
    k.I('s_add_u32 s44, s42, 8192')
    k.I('s_add_u32 s45, s42, 16384')
    k.I('s_cmp_lt_u32 s22, 2')
    k.I('s_cselect_b32 s45, s45, s43')
    k.I('s_cselect_b64 vcc, -1, 0')
    k.I(f'v_cndmask_b32 v{g2}, v{tid16}, v{g0}, vcc')
    k.I('s_add_u32 s50, s43, 4096')
    k.I('s_add_u32 s51, s43, 8192')
    k.barrier()
    mark(k, 4)
    sd = d2
    for rho in range(5):
        k.I(f'ds_read_b128 {vr(sd+4*rho,4)}, v{tid16} offset:{HB+4096*rho}')
    k.I(f'buffer_store_dwordx4 {vr(sd,4)}, v{g0}, s[12:15], s42 offen sc1', tag='h2')
    k.I(f'buffer_store_dwordx4 {vr(sd+4,4)}, v{g0}, s[12:15], s44 offen sc1', tag='h2')
    k.I(f'buffer_store_dwordx4 {vr(sd+8,4)}, v{g2}, s[12:15], s45 offen sc1', tag='h2')
    k.I(f'buffer_store_dwordx4 {vr(sd+12,4)}, v{tid16}, s[12:15], s50 offen sc1')
    k.I(f'buffer_store_dwordx4 {vr(sd+16,4)}, v{tid16}, s[12:15], s51 offen sc1')
    k.emit_bg(100)
    k.I('s_mul_i32 s24, s20, 163840')
    k.I(f's_add_u32 s24, s24, {H2}')
    k.I('s_add_u32 s16, s4, s24')
    k.I('s_addc_u32 s17, s5, 0')
    k.I('s_mov_b32 s18, 163840')
    k.I('s_mov_b32 s19, 0x00020000')
    k.I('s_mul_i32 s52, s22, 40960')
    k.I('s_add_u32 s53, s52, 20480')
    k.I('s_lshl_b32 s54, s20, 8')
    k.I(f's_add_u32 s54, s54, {FLAGS}')
    k.I('s_add_u32 s55, s54, 4096')
    k.wait_tag('h2')
    mark(k, 5)
    handoff(k, 'H1', 54, hs)
    mark(k, 6)
    va = VAlloc(keep)
    rb = [va.get(), va.get(), va.get()]
    act = va.get(32, 4); acc = va.get(96, 4)
    def dma(g):
        out = []
        for j in range(2):
            out.append([f's_add_u32 m0, s{52+j}, {2048*g}',
                        (f'buffer_load_dwordx4 v{vo16}, s[16:19], m0 offen sc1 lds', ('a', g))])
            out.append([(f'buffer_load_dwordx4 v{vo16}, s[16:19], m0 offen offset:1024 sc1 lds', ('a', g))])
        return out
    def emit(grp):
        for t in grp:
            if isinstance(t, tuple): k.I(t[0], tag=t[1])
            else: k.I(t)
    NPRE = env('E_PRE', 3)
    for g in range(NPRE):
        for grp in dma(g): emit(grp)
    k.I(f'v_mov_b32 v{rb[0]}, v{vo16}')
    k.I(f'v_add_u32 v{rb[1]}, {3*20480}, v{vo16}')
    k.I(f'v_add_u32 v{rb[2]}, {6*20480}, v{vo16}')
    def aread(nt, kap): return f'ds_read_b128 {vr(act+4*nt,4)}, v{rb[nt//3]} offset:{(nt%3)*20480+1024*kap}'
    vD = va.get()
    k.I('s_and_b32 s56, s21, 7')
    k.I('s_lshr_b32 s57, s21, 3')
    k.I('s_lshl_b32 s24, s56, 2')
    k.I('s_add_u32 s24, s24, s22')
    k.I('s_mul_i32 s24, s24, 61440')
    k.I(f's_add_u32 s24, s24, {WD}')
    k.I(f'v_add_u32 v{vD}, s24, v{vo16}')
    def dload(n):
        g = [f'buffer_load_dwordx4 {ar(4*n,4)}, v{vD}, s[12:15], 0 offen offset:{1024*(n%4)}']
        if n % 4 == 3: g.append(f'v_add_u32 v{vD}, 0x1000, v{vD}')
        return g
    k.wait_tag(('a', 0))
    k.I('s_barrier')
    mark(k, 7)
    for nt in range(8): k.I(aread(nt, 0))
    queue = []
    for g in range(NPRE, 10): queue += dma(g)
    queue += [wload(n) for n in range(W_EARLY, 60)]
    nd = 0
    bars = {1: 1, 3: 3, 7: 7, 15: 9}
    PER = env('E_PER', 5)
    for kap in range(20):
        if kap in bars:
            k.wait_tag(('a', bars[kap]))
            k.I('s_barrier')
        slots = PER
        for nt in range(8):
            for mt in range(3):
                dd = vr(acc+(mt*8+nt)*4, 4)
                k.I(f'{MF16} {dd}, {ar((3*kap+mt)*4,4)}, {vr(act+4*nt,4)}, {dd if kap else 0}')
            if kap < 19: k.I(aread(nt, kap + 1))
            if slots and nt >= 1:
                if queue: emit(queue.pop(0)); slots -= 1
                elif nd < 3 * kap: emit(dload(nd)); nd += 1; slots -= 1
    mark(k, 8)
    oh = va.get(); oh2 = va.get(); t0 = va.get()
    k.I(f'v_and_b32 v{t0}, 1, v{vq}')
    k.I(f'v_mul_u32_u24 v{oh}, 49152, v{t0}')
    k.I(f'v_lshl_add_u32 v{oh2}, v{oh}, 1, 0')
    k.I(f'v_lshrrev_b32 v{t0}, 1, v{vq}')
    k.I(f'v_lshl_add_u32 v{oh}, v{t0}, 8, v{oh}')
    k.I(f'v_lshl_add_u32 v{oh}, v{vi}, 4, v{oh}')
    k.I(f'v_mul_u32_u24 v{t0}, 49152, v{t0}')
    k.I(f'v_add_u32 v{oh2}, v{oh2}, v{t0}')
    k.I(f'v_lshl_add_u32 v{oh2}, v{vi}, 4, v{oh2}')
    k.I(f's_mul_i32 s42, s20, {8*49152}')
    k.I('s_lshl_b32 s24, s21, 2')
    k.I('s_add_u32 s24, s24, s22')
    k.I('s_mul_i32 s24, s24, 768')
    k.I('s_add_u32 s42, s42, s24')
    k.I(f's_add_u32 s42, s42, {HH}')
    for i in range(1, 4): k.I(f's_add_u32 s{42+i}, s42, {2*i*49152}')
    pk = act
    for pr in range(4):
        for j in range(2):
            nt = 2*pr + j
            g_ = acc + nt*4; u_ = acc + (8+nt)*4
            for p in (0, 2): k.I(f'v_pk_mul_f32 {vr(g_+p,2)}, {vr(g_+p,2)}, {vr(u_+p,2)}')
        a_ = acc + (16+2*pr)*4; b_ = a_ + 4
        for r in range(4): k.I(f'v_permlane32_swap_b32 v{a_+r}, v{b_+r}')
        for j in range(2):
            g_ = acc + (2*pr+j)*4
            for p in (0, 2): k.I(f'v_cvt_pk_bf16_f32 v{pk+4*pr+2*j+p//2}, v{g_+p}, v{g_+p+1}')
        for p in (0, 2): k.I(f'v_pk_mul_f32 {vr(a_+p,2)}, {vr(a_+p,2)}, {vr(b_+p,2)}')
        k.I(f'v_permlane16_swap_b32 v{pk+4*pr}, v{pk+4*pr+2}')
        k.I(f'v_permlane16_swap_b32 v{pk+4*pr+1}, v{pk+4*pr+3}')
        for p in (0, 2): k.I(f'v_cvt_pk_bf16_f32 v{pk+16+2*pr+p//2}, v{a_+p}, v{a_+p+1}')
        k.I(f'buffer_store_dwordx4 {vr(pk+4*pr,4)}, v{oh}, s[12:15], s{42+pr} offen sc1', tag='h')
        if pr & 1:
            q_ = pk + 16 + 2*(pr-1)
            k.I(f'v_permlane16_swap_b32 v{q_}, v{q_+2}')
            k.I(f'v_permlane16_swap_b32 v{q_+1}, v{q_+3}')
            k.I(f'buffer_store_dwordx4 {vr(q_,4)}, v{oh2}, s[12:15], s{42+pr-1} offen offset:512 sc1', tag='h')
    while nd < 60: emit(dload(nd)); nd += 1
    va = VAlloc(keep)
    oo = va.get(); ox = va.get(); go = va.get(); t0 = va.get(); t1 = va.get(); lw = va.get()
    va.n = max(va.n, pk + 24)
    gb = va.get(20, 4); x1r = va.get(10, 2); xf = va.get(20, 2)
    fa = [va.get(20, 4), va.get(20, 4)]
    NB = 24
    hb = va.get(4 * NB, 4)
    for i in range(4):
        k.I(f's_add_u32 s{58+i}, s22, {i}')
        k.I(f's_and_b32 s{58+i}, s{58+i}, 3')
    k.I('s_lshl_b32 s24, s20, 1')
    k.I('s_add_u32 s24, s24, s57')
    k.I('s_lshl_b32 s24, s24, 2')
    k.I(f's_mul_i32 s33, s22, {12*1024}')
    k.I(f's_add_u32 s33, s33, {HH}')
    for i in range(4):
        k.I(f's_add_u32 s{42+i}, s{58+i}, s24')
        k.I(f's_mul_i32 s{42+i}, s{42+i}, 49152')
        k.I(f's_add_u32 s{42+i}, s{42+i}, s33')
    k.I('s_add_u32 s30, s24, s22')
    k.I(f's_mul_i32 s50, s30, {16*1280}')
    k.I('s_lshr_b32 s31, s30, 3')
    k.I('s_lshl_b32 s31, s31, 7')
    k.I('s_and_b32 s30, s30, 7')
    k.I('s_lshl_b32 s30, s30, 2')
    k.I('s_add_u32 s31, s31, s30')
    k.I('s_mul_i32 s31, s31, 1280')
    k.I('s_mul_i32 s30, s56, 160')
    k.I('s_add_u32 s31, s31, s30')
    k.I('s_add_u32 s50, s50, s30')
    k.I(f's_add_u32 s50, s50, {X1}')
    k.I(f'v_and_b32 v{t0}, 3, v{vl}')
    k.I(f'v_lshlrev_b32 v{t0}, 5, v{t0}')
    k.I(f'v_bfe_u32 v{t1}, v{vl}, 2, 2')
    k.I(f'v_add_u32 v{t0}, v{t0}, v{t1}')
    k.I(f'v_mul_u32_u24 v{oo}, 1280, v{t0}')
    k.I(f'v_mul_u32_u24 v{go}, 40, v{vq}')
    k.I(f'v_add_u32 v{oo}, v{oo}, v{go}')
    k.I(f'v_mul_u32_u24 v{ox}, 1280, v{vi}')
    k.I(f'v_add_u32 v{ox}, v{ox}, v{go}')
    k.I(f'v_lshlrev_b32 v{go}, 1, v{go}')
    k.I('s_lshl_b32 s30, s30, 1')
    k.I(f's_add_u32 s30, s30, {5*2560}')
    for dt in range(5): k.I(f'buffer_load_dwordx4 {vr(gb+4*dt,4)}, v{go}, s[12:15], s30 offen offset:{16*dt}')
    k.wait_tag('h')
    handoff(k, 'H2', 55, hs)
    mark(k, 9)
    order = [1, 2, 3, 0]
    hl = []
    for oi, i in enumerate(order):
        for kp in range(12):
            n = 12*oi + kp
            g = [f'buffer_load_dwordx4 {vr(hb+4*(n%NB),4)}, v{vo16}, s[12:15], s{42+i} offen offset:{1024*(kp%4)} sc1']
            if kp % 4 == 3: g.append(f's_add_u32 s{42+i}, s{42+i}, 4096')
            hl.append(g)
    xl = [[f'buffer_load_dwordx4 {vr(x1r,4)}, v{ox}, s[12:15], s50 offen sc1'],
          [f'buffer_load_dwordx4 {vr(x1r+4,4)}, v{ox}, s[12:15], s50 offen offset:16 sc1'],
          [f'buffer_load_dwordx2 {vr(x1r+8,2)}, v{ox}, s[12:15], s50 offen offset:32 sc1']]
    hl += xl
    FPRE = env('F_PRE', 14)
    for _ in range(FPRE): emit(hl.pop(0))
    rd = va.get(0)
    for oi, i in enumerate(order):
        a = fa[oi & 1]
        extra = []
        if oi >= 1:
            pi = order[oi-1]; pa = fa[(oi-1) & 1]
            extra.append([f's_mul_i32 s24, s{58+pi}, {15*1024}', f'v_add_u32 v{lw}, s24, v{vo16}'])
            for dt in range(5): extra.append([f'ds_write_b128 v{lw}, {vr(pa+4*dt,4)} offset:{((pi-1)*5+dt)*1024}'])
        for kp in range(12):
            n = 12*oi + kp
            for dt in range(5):
                dd = vr(a+4*dt, 4)
                k.I(f'{MF16} {dd}, {ar((5*kp+dt)*4,4)}, {vr(hb+4*(n%NB),4)}, {dd if kp else 0}')
                if dt == 1 and kp >= 1 and extra: emit(extra.pop(0))
                if dt == 3 and kp >= 1 and extra: emit(extra.pop(0))
            if hl: emit(hl.pop(0))
            if oi == 3 and kp == 4:
                k.I(f's_mul_i32 s24, s22, {15*1024}')
                k.I(f'v_add_u32 v{lw}, s24, v{vo16}')
                k.barrier()
                r0 = fa[0]; r1 = hb; r2 = hb + 20
                for dt in range(5):
                    extra.append([f'ds_read_b128 {vr(r0+4*dt,4)}, v{lw} offset:{(0*5+dt)*1024}',
                                  f'ds_read_b128 {vr(r1+4*dt,4)}, v{lw} offset:{(1*5+dt)*1024}',
                                  f'ds_read_b128 {vr(r2+4*dt,4)}, v{lw} offset:{(2*5+dt)*1024}'])
                for dt in range(5):
                    g = []
                    for p in (0, 2): g.append(f'v_pk_add_f32 {vr(r0+4*dt+p,2)}, {vr(r0+4*dt+p,2)}, {vr(r1+4*dt+p,2)}')
                    for p in (0, 2): g.append(f'v_pk_add_f32 {vr(r0+4*dt+p,2)}, {vr(r0+4*dt+p,2)}, {vr(r2+4*dt+p,2)}')
                    extra.append(g)
                for h_ in range(2):
                    g = []
                    for j in range(5*h_, 5*h_+5):
                        g.append(f'v_lshlrev_b32 v{xf+2*j}, 16, v{x1r+j}')
                        g.append(f'v_and_b32 v{xf+2*j+1}, 0xffff0000, v{x1r+j}')
                    extra.append(g)
        while extra: emit(extra.pop(0))
    own = fa[1]; r0 = fa[0]
    for dt in range(5):
        for p in (0, 2): k.I(f'v_pk_add_f32 {vr(own+4*dt+p,2)}, {vr(own+4*dt+p,2)}, {vr(r0+4*dt+p,2)}')
    for dt in range(5):
        for p in (0, 2): k.I(f'v_pk_fma_f32 {vr(own+4*dt+p,2)}, {vr(own+4*dt+p,2)}, {vr(gb+4*dt+p,2)}, {vr(xf+4*dt+p,2)}')
    for dt in range(5):
        for p in (0, 2): k.I(f'v_cvt_pk_bf16_f32 v{x1r+2*dt+p//2}, v{own+4*dt+p}, v{own+4*dt+p+1}')
    k.I(f'buffer_store_dwordx4 {vr(x1r,4)}, v{oo}, s[36:39], s31 offen')
    k.I(f'buffer_store_dwordx4 {vr(x1r+4,4)}, v{oo}, s[36:39], s31 offen offset:16')
    k.I(f'buffer_store_dwordx2 {vr(x1r+8,2)}, v{oo}, s[36:39], s31 offen offset:32')
    stamp_end(k, 3, 4)
    k.label('LD_exit')
    k.I('s_endpgm')
    return k, (256, 256, 163840)

if __name__ == '__main__':
    out = sys.argv[1] if len(sys.argv) > 1 else 'adaLN_cond__spectral_gfnet__glu_gated_bilinear__prompt.s'
    if len(sys.argv) > 2 and sys.argv[2] == 'stamps': gen.STAMPS = True
    build(out, (gen_A2, gen_B, gen_C, gen_DEF))
```

```python
import sys, gen, importlib
g2 = importlib.import_module(sys.argv[2] if len(sys.argv) > 2 else 'gen2')
from gen import *
ORDER = {}
def sb(k):
    k.I('s_memrealtime s[96:97]')
    k.I(f's_load_dwordx2 s[94:95], s[0:1], {KA["dbg"]}')
def se(k, idx, ws_pair):
    li = ORDER.setdefault(k.name, len(ORDER))
    k.nlab = getattr(k, 'nlab', 0) + 1
    lab = f'Ldbg_{k.name}_{k.nlab}'
    k.I('s_and_b32 s91, s2, 15')
    k.I('s_cmp_lg_u32 s91, 0')
    k.I(f's_cbranch_scc1 {lab}')
    k.waitcnt(vm=0, lgkm=0)
    k.I('s_memrealtime s[98:99]')
    k.I(f's_add_u32 s88, s94, {512*(len(g2.KERNELS)-1-li)}')
    k.I('s_addc_u32 s89, s95, 0')
    k.I('s_mov_b32 s90, 256')
    k.I('s_mov_b32 s91, 0x00020000')
    k.I('s_mov_b64 exec, 1')
    k.I('v_mov_b32 v1, 0')
    k.I('s_not_b32 s96, s96')
    k.I('v_mov_b32 v4, s96')
    k.I('v_mov_b32 v5, s98')
    k.I(f'buffer_atomic_umax v4, v1, s[88:91], 0 offen offset:{8*li} sc1')
    k.I(f'buffer_atomic_umax v5, v1, s[88:91], 0 offen offset:{8*li+4} sc1')
    k.label(lab)
gen.stamp_begin = sb; gen.stamp_end = se; g2.stamp_begin = sb; g2.stamp_end = se
build(sys.argv[1], g2.KERNELS)
```

```python
import sys, math, os
import gen
from gen import *
from gen import mark, stamp_begin, stamp_end

WGU = 0x1220000
FLAGS = 0x9000
WS_END2 = WGU + D * 2 * F * 2

def env(n, d): return int(os.environ.get(n, d))
SIDE_ST = os.environ.get('SIDE_ST', ' sc1')
WT_ST = os.environ.get('WT_ST', '')

def role_mod(k, s_c, s_wmod, lexit):
    va = VAlloc(1)
    vrw = va.get(); voff = va.get(); vc = va.get(10); vw = va.get(40, 4); acc = va.get(8, 4); t0 = va.get(); t1 = va.get(); vco = va.get()
    k.I(f'v_lshrrev_b32 v{vrw}, 2, v0')
    k.I(f'v_mul_u32_u24 v{voff}, 7680, v{vrw}')
    k.I(f'v_and_b32 v{t0}, 3, v0')
    k.I(f'v_lshl_add_u32 v{voff}, v{t0}, 4, v{voff}')
    k.I(f'v_lshlrev_b32 v{vco}, 1, v{vrw}')
    k.I('s_lshl_b32 s23, s20, 6')
    k.srd(24, s_wmod, D * 6 * D * 2)
    k.srd(28, s_c, D * 2)
    mark(k, 1)
    for i in range(10):
        k.I(f'buffer_load_dwordx4 {vr(vw+4*i,4)}, v{voff}, s[24:27], s23 offen nt')
        if i < 9: k.I(f's_add_u32 s23, s23, {64*7680}')
        if i == 0:
            for j in range(10): k.I(f'buffer_load_ushort v{vc+j}, v{vco}, s[28:31], 0 offen offset:{128*j}')
    mark(k, 2)
    k.srd(32, 4, 0x8000)
    for j in range(8): k.I(f'v_mov_b32 v{acc+j}, 0')
    tt = va.get(10)
    R = range(10)
    for i in R: k.I(f'v_lshlrev_b32 v{vc+i}, 16, v{vc+i}')
    for i in R: k.I(f'v_mul_f32 v{tt+i}, {fhex(-math.log2(math.e))}, v{vc+i}')
    for i in R: k.I(f'v_exp_f32 v{tt+i}, v{tt+i}')
    for i in R: k.I(f'v_add_f32 v{tt+i}, 1.0, v{tt+i}')
    for i in R: k.I(f'v_rcp_f32 v{tt+i}, v{tt+i}')
    for i in R: k.I(f'v_mul_f32 v{vc+i}, v{vc+i}, v{tt+i}')
    for i in R: k.I(f'v_cvt_pk_bf16_f32 v{vc+i}, v{vc+i}, v{vc+i}')
    for i in R: k.I(f'v_and_b32 v{vc+i}, 0xffff0000, v{vc+i}')
    mark(k, 3)
    if gen.STAMPS and env('WAITALL', 0): k.waitcnt(vm=0)
    mark(k, 4)
    for i in R:
        for j in range(4):
            k.I(f'v_lshlrev_b32 v{t0}, 16, v{vw+4*i+j}')
            k.I(f'v_and_b32 v{t1}, 0xffff0000, v{vw+4*i+j}')
            k.I(f'v_fmac_f32 v{acc+2*j}, v{vc+i}, v{t0}')
            k.I(f'v_fmac_f32 v{acc+2*j+1}, v{vc+i}, v{t1}')
    mark(k, 5)
    for m in (4, 8):
        for j in range(8): k.I(f'v_add_f32_dpp v{acc+j}, v{acc+j}, v{acc+j} row_ror:{m} row_mask:0xf bank_mask:0xf')
    k.I(f'v_lshrrev_b32 v{t0}, 4, v0')
    k.I(f'v_lshlrev_b32 v{t0}, 7, v{t0}')
    k.I(f'v_and_b32 v{t1}, 3, v0')
    k.I(f'v_lshl_add_u32 v{t0}, v{t1}, 5, v{t0}')
    k.I('s_mov_b32 s36, 0x000f000f')
    k.I('s_mov_b32 s37, 0x000f000f')
    k.I('s_mov_b64 exec, s[36:37]')
    k.I(f'ds_write_b128 v{t0}, {vr(acc,4)}')
    k.I(f'ds_write_b128 v{t0}, {vr(acc+4,4)} offset:16')
    k.I('s_mov_b64 exec, -1')
    k.barrier()
    mark(k, 6)
    k.I('v_readfirstlane_b32 s38, v0')
    k.I('s_cmp_lg_u32 s38, 0')
    k.I(f's_cbranch_scc1 {lexit}')
    k.I(f'v_lshlrev_b32 v{t0}, 2, v0')
    for j in range(4):
        k.I(f'ds_read2st64_b32 {vr(vw+2*j,2)}, v{t0} offset0:{2*j} offset1:{2*j+1}')
    k.I('s_mul_i32 s39, s20, 205')
    k.I('s_lshr_b32 s39, s39, 12')
    k.I('s_mul_i32 s40, s39, 20')
    k.I('s_sub_u32 s40, s20, s40')
    k.I('s_cmp_eq_u32 s39, 1')
    k.I('s_cselect_b32 s41, 1.0, 0')
    k.I('s_cmp_eq_u32 s39, 4')
    k.I('s_cselect_b32 s41, 1.0, s41')
    k.I('s_cmp_eq_u32 s39, 2')
    k.I(f's_cselect_b32 s42, {fhex(1.0 / (2.0 * S * D))}, 1.0')
    for j in range(2): k.I(f'v_pk_add_f32 {vr(vw+2*j,2)}, {vr(vw+2*j,2)}, {vr(vw+4+2*j,2)}')
    k.I(f'v_pk_add_f32 {vr(vw,2)}, {vr(vw,2)}, {vr(vw+2,2)}')
    k.I(f'v_add_f32 v{vw}, v{vw}, v{vw+1}')
    k.I(f'v_mov_b32 v{vw+1}, v{vw}')
    k.I(f'v_permlane32_swap_b32 v{vw+1}, v{vw}')
    k.I(f'v_add_f32 v{vw}, v{vw}, v{vw+1}')
    k.I(f'v_cvt_pk_bf16_f32 v{vw}, v{vw}, v{vw}')
    k.I(f'v_and_b32 v{vw}, 0xffff0000, v{vw}')
    k.I(f'v_add_f32 v{vw}, s41, v{vw}')
    k.I(f'v_cvt_pk_bf16_f32 v{vw}, v{vw}, v{vw}')
    k.I(f'v_and_b32 v{vw}, 0xffff0000, v{vw}')
    k.I(f'v_mul_f32 v{vw}, s42, v{vw}')
    return vw, t0, t1

def role_mod_store_plain(k, vw, t0, t1):
    k.I('s_lshr_b32 s43, s40, 2')
    k.I('s_lshl_b32 s43, s43, 10')
    k.I('s_and_b32 s44, s40, 1')
    k.I('s_lshl_b32 s44, s44, 9')
    k.I('s_add_u32 s43, s43, s44')
    k.I('s_and_b32 s44, s40, 2')
    k.I('s_lshl_b32 s44, s44, 2')
    k.I('s_add_u32 s43, s43, s44')
    k.I(f's_add_u32 s43, s43, {MODB}')
    k.I('s_cmp_eq_u32 s39, 0')
    k.I('s_cselect_b32 s44, 4, 0')
    k.I('s_add_u32 s43, s43, s44')
    k.I('s_cmp_ge_u32 s39, 2')
    k.I('s_cselect_b32 s43, 0x100000, s43')
    k.I('s_lshl_b32 s45, s20, 7')
    k.I(f'v_and_b32 v{t1}, 31, v0')
    k.I(f'v_lshl_add_u32 v{t0}, v{t1}, 2, s45')
    k.I(f'v_lshl_add_u32 v{t1}, v{t1}, 4, s43')
    k.I('v_cmp_gt_u32 vcc, 32, v0')
    k.I(f'v_cndmask_b32 v{t0}, v{t1}, v{t0}, vcc')
    k.I(f'buffer_store_dword v{vw}, v{t0}, s[32:35], 0 offen')

N_WT = 161
def role_wt(k, s_wr, s_wi):
    va = VAlloc(1)
    idx = va.get(); g = va.get(); t = va.get(); a0 = va.get(); a1 = va.get(); src = va.get(); dst = va.get()
    lr = va.get(16, 4); li = va.get(16, 4)
    k.I('s_lshl_b32 s20, s20, 8')
    k.I(f'v_add_u32 v{idx}, s20, v0')
    k.I(f's_mov_b32 s21, {(2**32 + 320) // 321}')
    k.I(f'v_mul_hi_u32 v{g}, v{idx}, s21')
    k.I(f'v_mul_u32_u24 v{a0}, 321, v{g}')
    k.I(f'v_sub_u32 v{t}, v{idx}, v{a0}')
    k.I(f'v_lshrrev_b32 v{a0}, 4, v{g}')
    k.I(f'v_and_b32 v{a1}, 15, v{g}')
    k.I(f'v_lshlrev_b32 v{src}, 6, v{a0}')
    k.I(f'v_add_u32 v{src}, v{src}, v{a1}')
    k.I(f'v_mul_u32_u24 v{src}, 2568, v{src}')
    k.I(f'v_lshl_add_u32 v{src}, v{t}, 1, v{src}')
    k.srd(24, s_wr, S * 321 * 2)
    k.srd(28, s_wi, S * 321 * 2)
    for r in range(1, 4): k.I(f's_mov_b32 s{40+r}, {41088*r}')
    for i in range(4):
        for r in range(4):
            so = f's{40+r}' if r else '0'
            k.I(f'buffer_load_ushort v{lr+4*i+r}, v{src}, s[24:27], {so} offen offset:{642*i} nt')
            k.I(f'buffer_load_ushort v{li+4*i+r}, v{src}, s[28:31], {so} offen offset:{642*i} nt')
    k.srd(32, 4, XT_SZ, WT)
    k.I(f'v_lshlrev_b32 v{dst}, 13, v{t}')
    k.I(f'v_lshl_add_u32 v{dst}, v{a0}, 8, v{dst}')
    k.I(f'v_lshrrev_b32 v{a0}, 2, v{a1}')
    k.I(f'v_lshl_add_u32 v{dst}, v{a0}, 11, v{dst}')
    k.I(f'v_and_b32 v{a1}, 3, v{a1}')
    k.I(f'v_lshl_add_u32 v{dst}, v{a1}, 6, v{dst}')
    k.I(f'v_cmp_gt_u32 vcc, 0x80, v{g}')
    k.I(f'v_cndmask_b32 v{dst}, -1, v{dst}, vcc')
    k.I(f'v_min_u32 v{dst}, 0x7fffff00, v{dst}')
    for i in range(4):
        for r in range(4):
            k.I(f'v_lshl_or_b32 v{lr+4*i+r}, v{li+4*i+r}, 16, v{lr+4*i+r}')
        k.I(f'buffer_store_dwordx4 {vr(lr+4*i,4)}, v{dst}, s[32:35], 0 offen offset:{16*i}')

N_WGU = 160
def role_wgu(k, s_wg, s_wu):
    va = VAlloc(1)
    vl = va.get(); wo = va.get(3); t0 = va.get(); t1 = va.get(); t2 = va.get(); ra = va.get(); r2 = va.get(); vo = va.get()
    o = va.get(24, 4)
    k.I('v_lshrrev_b32 v1, 6, v0')
    k.I('v_readfirstlane_b32 s22, v1')
    k.I(f'v_and_b32 v{vl}, 63, v0')
    k.I('s_and_b32 s21, s20, 15')
    k.I('s_lshr_b32 s20, s20, 4')
    for p in range(3):
        k.I(f'v_add_u32 v{t0}, {64*p}, v{vl}')
        k.I(f'v_mul_u32_u24 v{t1}, 171, v{t0}')
        k.I(f'v_lshrrev_b32 v{t1}, 11, v{t1}')
        k.I(f'v_mul_u32_u24 v{t2}, 12, v{t1}')
        k.I(f'v_sub_u32 v{t0}, v{t0}, v{t2}')
        k.I(f'v_mul_u32_u24 v{wo+p}, 3072, v{t1}')
        k.I(f'v_lshl_add_u32 v{wo+p}, v{t0}, 4, v{wo+p}')
        if p: k.I(f'v_subrev_u32 v{wo+p}, {1024*p}, v{wo+p}')
    k.I('s_lshl_b32 s23, s20, 2')
    k.I('s_add_u32 s23, s23, s22')
    k.I(f's_mul_i32 s23, s23, {16*3072}')
    k.I('s_mul_i32 s24, s21, 192')
    k.I('s_add_u32 s23, s23, s24')
    k.I('s_mul_i32 s24, s22, 3072')
    k.I('s_mov_b32 m0, s24')
    k.srd(28, s_wg, D * F * 2)
    k.srd(32, s_wu, D * F * 2)
    for p in range(3): k.I(f'buffer_load_dwordx4 v{wo+p}, s[28:31], s23 offen offset:{1024*p} nt lds')
    k.I('s_add_u32 m0, s24, 12288')
    for p in range(3): k.I(f'buffer_load_dwordx4 v{wo+p}, s[32:35], s23 offen offset:{1024*p} nt lds')
    k.I(f'v_lshrrev_b32 v{t0}, 4, v{vl}')
    k.I(f'v_bfe_u32 v{t1}, v{vl}, 2, 2')
    k.I(f'v_lshl_add_u32 v{t0}, v{t0}, 3, v{t1}')
    k.I(f'v_mul_u32_u24 v{ra}, 192, v{t0}')
    k.I('s_mul_i32 s25, s22, 48')
    k.I(f'v_add_u32 v{ra}, s25, v{ra}')
    k.I(f'v_and_b32 v{t0}, 1, v{vl}')
    k.I(f'v_lshl_add_u32 v{r2}, v{t0}, 3, v{ra}')
    k.I(f'v_bfe_u32 v{t0}, v{vl}, 1, 1')
    k.I(f'v_mul_u32_u24 v{t0}, 12288, v{t0}')
    k.I(f'v_add_u32 v{r2}, v{r2}, v{t0}')
    k.I(f'v_and_b32 v{t0}, 3, v{vl}')
    k.I(f'v_lshl_add_u32 v{ra}, v{t0}, 3, v{ra}')
    k.I(f'v_lshlrev_b32 v{vo}, 4, v{vl}')
    k.srd(36, 4, D * 2 * F * 2, WGU)
    k.I('s_lshl_b32 s26, s21, 2')
    k.I('s_add_u32 s26, s26, s22')
    k.I('s_mul_i32 s26, s26, 10')
    k.I('s_add_u32 s26, s26, s20')
    k.I('s_mul_i32 s26, s26, 6144')
    k.I('s_add_u32 s27, s26, 3072')
    k.barrier(vm=0)
    for kk in range(2):
        for mt in range(3):
            for hf in range(2):
                off = (32*kk + 4*hf) * 192 + (12288 if mt == 1 else 0) + (32 if mt == 2 else 0)
                k.I(f'ds_read_b64_tr_b16 {vr(o+(3*kk+mt)*4+2*hf,2)}, v{r2 if mt == 2 else ra} offset:{off}')
    for kk in range(2):
        for mt in range(3):
            k.I(f'buffer_store_dwordx4 {vr(o+(3*kk+mt)*4,4)}, v{vo}, s[36:39], s{26+kk} offen offset:{1024*mt}{SIDE_ST}')

N_WD = 48
def role_wd(k, s_wd):
    va = VAlloc(1)
    vl = va.get(); t0 = va.get(); t1 = va.get(); ra = va.get(); vo = va.get()
    o = va.get(40, 4)
    k.I('v_lshrrev_b32 v1, 6, v0')
    k.I('v_readfirstlane_b32 s22, v1')
    k.I(f'v_and_b32 v{vl}, 63, v0')
    k.I(f'v_lshlrev_b32 v{vo}, 4, v{vl}')
    k.I('s_mul_i32 s24, s22, 10240')
    k.I('s_mul_i32 s23, s20, 40960')
    k.I(f's_add_u32 s28, s{s_wd}, s23')
    k.I(f's_addc_u32 s29, s{s_wd+1}, 0')
    k.I('s_mov_b32 s30, 40960')
    k.I('s_mov_b32 s31, 0x00020000')
    for i in range(10):
        if i % 4 == 0: k.I(f's_add_u32 m0, s24, {4096*(i//4)}')
        k.I(f'buffer_load_dwordx4 v{vo}, s[28:31], m0 offen offset:{1024*(i%4)} nt lds')
    k.I(f'v_lshrrev_b32 v{t0}, 4, v{vl}')
    k.I(f'v_bfe_u32 v{t1}, v{vl}, 2, 2')
    k.I(f'v_lshl_add_u32 v{t0}, v{t0}, 3, v{t1}')
    k.I(f'v_mul_u32_u24 v{ra}, 1280, v{t0}')
    k.I(f'v_and_b32 v{t0}, 3, v{vl}')
    k.I(f'v_mul_u32_u24 v{t0}, 40, v{t0}')
    k.I('s_mul_i32 s25, s22, 320')
    k.I(f'v_add3_u32 v{ra}, v{ra}, v{t0}, s25')
    k.srd(36, 4, F * D * 2, WD)
    k.I('s_mul_i32 s26, s22, 96')
    k.I('s_add_u32 s26, s26, s20')
    k.I('s_mul_i32 s40, s26, 5120')
    k.I('s_add_u32 s41, s40, 4096')
    k.I(f's_add_u32 s42, s40, {48*5120}')
    k.I(f's_add_u32 s43, s40, {48*5120+4096}')
    k.barrier(vm=0)
    for j in range(2):
        for dt in range(5):
            for hf in range(2):
                k.I(f'ds_read_b64_tr_b16 {vr(o+(5*j+dt)*4+2*hf,2)}, v{ra} offset:{4*hf*1280+160*j+8*dt}')
    for j in range(2):
        for dt in range(5):
            k.I(f'buffer_store_dwordx4 {vr(o+(5*j+dt)*4,4)}, v{vo}, s[36:39], s{40+2*j+(dt//4)} offen offset:{1024*(dt%4)}')

def gen_A2():
    k = Kernel('ka_kernel')
    stamp_begin(k)
    k.I(f's_load_dwordx2 s[4:5], s[0:1], {KA["ws"]}')
    k.I(f's_load_dwordx4 s[8:11], s[0:1], {KA["c"]}')
    k.I(f's_load_dwordx4 s[12:15], s[0:1], {KA["wr"]}')
    k.I(f's_load_dwordx4 s[16:19], s[0:1], {KA["wg"]}')
    k.I(f's_load_dwordx2 s[6:7], s[0:1], {KA["wd"]}')
    n0 = 120; n1 = n0 + N_WD; n2 = n1 + N_WGU; n3 = n2 + N_WT; n4 = n3 + 1
    k.I(f's_cmp_ge_u32 s2, {n0}')
    st = k.save_state()
    k.I('s_cbranch_scc1 LA_1')
    k.I('s_and_b32 s20, s2, 7')
    k.I('s_lshr_b32 s21, s2, 3')
    k.I('s_and_b32 s22, s21, 1')
    k.I('s_lshr_b32 s21, s21, 1')
    k.I('s_lshl_b32 s21, s21, 4')
    k.I('s_lshl_b32 s20, s20, 1')
    k.I('s_add_u32 s20, s20, s21')
    k.I('s_add_u32 s20, s20, s22')
    k.I('s_cmp_ge_u32 s2, 112')
    k.I('s_cselect_b32 s20, s2, s20')
    vw, t0, t1 = role_mod(k, 8, 10, 'LA_end')
    role_mod_store_plain(k, vw, t0, t1)
    k.label('LA_end')
    stamp_end(k, 0, 4)
    k.I('s_endpgm')
    for lab, nxt, lo, hi, fn in (('LA_1', 'LA_2', n0, n1, lambda: role_wd(k, 6)), ('LA_2', 'LA_3', n1, n2, lambda: role_wgu(k, 16, 18)),
                                 ('LA_3', 'LA_4', n2, n3, lambda: role_wt(k, 12, 14))):
        k.label(lab, fresh=True); k.restore_state(st)
        k.I(f's_cmp_ge_u32 s2, {hi}')
        k.I(f's_cbranch_scc1 {nxt}')
        k.I(f's_sub_u32 s20, s2, {lo}')
        fn()
        stamp_end(k, 0, 4)
        k.I('s_endpgm')
    k.label('LA_4', fresh=True); k.restore_state(st)
    k.I(f's_cmp_ge_u32 s2, {n4}')
    k.I('s_cbranch_scc1 LA_5')
    k.srd(24, 4, 32 * 256, FLAGS)
    k.I('v_lshlrev_b32 v1, 8, v0')
    k.I('v_mov_b32 v2, 0')
    k.I('buffer_store_dword v2, v1, s[24:27], 0 offen')
    k.label('LA_5')
    k.I('s_endpgm')
    return k, (n4, 256, 40960)

def ids2(k, vl):
    k.I('v_lshrrev_b32 v1, 6, v0')
    k.I(f'v_and_b32 v{vl}, 63, v0')
    k.I('v_readfirstlane_b32 s22, v1')
    k.I('s_and_b32 s20, s2, 6')
    k.I('s_lshl_b32 s20, s20, 1')
    k.I('s_lshr_b32 s21, s2, 6')
    k.I('s_add_u32 s20, s20, s21')
    k.I('s_lshr_b32 s21, s2, 3')
    k.I('s_and_b32 s21, s21, 7')
    k.I('s_and_b32 s24, s2, 1')
    k.I('s_lshl_b32 s24, s24, 3')
    k.I('s_add_u32 s21, s21, s24')
    k.I('s_lshl_b32 s23, s20, 7')
    k.I('s_lshl_b32 s24, s21, 1')
    k.I('s_add_u32 s23, s23, s24')
    k.I('s_and_b32 s24, s22, 1')
    k.I('s_lshl_b32 s24, s24, 6')
    k.I('s_add_u32 s23, s23, s24')
    k.I('s_lshr_b32 s24, s22, 1')
    k.I('s_add_u32 s23, s23, s24')
    k.I('s_lshr_b32 s25, s20, 2')
    k.I('s_lshl_b32 s25, s25, 11')
    k.I('s_lshr_b32 s24, s21, 3')
    k.I('s_lshl_b32 s24, s24, 10')
    k.I('s_add_u32 s25, s25, s24')
    k.I('s_and_b32 s24, s20, 3')
    k.I('s_lshl_b32 s24, s24, 8')
    k.I('s_add_u32 s25, s25, s24')
    k.I('s_and_b32 s24, s21, 7')
    k.I('s_lshl_b32 s24, s24, 5')
    k.I('s_add_u32 s25, s25, s24')
    k.I(f's_add_u32 s26, s25, {128*8192}')
    k.I(f's_add_u32 s27, s25, {256*8192}')
gen.bd_ids = ids2

def handoff(k, name, cnt_off_sgpr, vtmp):
    k.I('s_barrier')
    st = k.save_state()
    k.I('s_cmp_lg_u32 s22, 0')
    k.I(f's_cbranch_scc1 L{name}_done')
    k.I(f'v_mov_b32 v{vtmp}, 0')
    k.I(f'v_mov_b32 v{vtmp+1}, 1')
    k.I('s_mov_b64 exec, 1')
    k.I(f'buffer_atomic_add v{vtmp+1}, v{vtmp}, s[12:15], s{cnt_off_sgpr} offen sc1')
    k.I('s_mov_b32 s24, 0x100000')
    k.label(f'L{name}_poll')
    k.I(f'buffer_load_dword v{vtmp+1}, v{vtmp}, s[12:15], s{cnt_off_sgpr} offen sc1')
    k.waitcnt(vm=0)
    k.I(f'v_readfirstlane_b32 s33, v{vtmp+1}')
    k.I('s_sub_u32 s24, s24, 1')
    k.I(f's_cbranch_scc1 L{name}_out')
    k.I('s_cmp_lt_u32 s33, 16')
    k.I(f's_cbranch_scc1 L{name}_poll')
    k.label(f'L{name}_out')
    k.I('s_mov_b64 exec, -1')
    k.label(f'L{name}_done')
    k.restore_state(st)
    k.I('s_barrier')

def gen_DEF():
    k = Kernel('kd_kernel')
    PL = 2592
    W_EARLY = env('W_EARLY', 42)
    stamp_begin(k)
    k.I('s_cmp_ge_u32 s2, 256')
    k.I('s_cbranch_scc1 LD_exit')
    k.I(f's_load_dwordx2 s[4:5], s[0:1], {KA["ws"]}')
    k.I(f's_load_dwordx2 s[6:7], s[0:1], {KA["x"]}')
    k.I(f's_load_dwordx2 s[40:41], s[0:1], {KA["out"]}')
    va = VAlloc(2)
    vl = va.get(); vo16 = va.get(); vW = va.get(); vi = va.get(); vq = va.get(); hs = va.get(2, 2)
    keep = va.n
    so = va.get(); ta = va.get(4)
    ch = va.get(12, 4); xr = va.get(12, 2); mg = va.get(12, 4); mc = va.get(12, 4); ms = va.get(12, 4)
    xo = va.get(); xo2 = va.get(); mo = va.get()
    ids2(k, vl)
    k.I(f'v_lshlrev_b32 v{vo16}, 4, v{vl}')
    k.I(f'v_and_b32 v{ta}, 1, v0')
    k.I(f'v_lshrrev_b32 v{ta+1}, 1, v0')
    k.I(f'v_lshlrev_b32 v{so}, 13, v{ta+1}')
    k.I(f'v_lshl_add_u32 v{so}, v{ta}, 4, v{so}')
    k.I(f'v_and_b32 v{vi}, 15, v{vl}')
    k.I(f'v_lshrrev_b32 v{vq}, 4, v{vl}')
    k.I(f'v_mul_u32_u24 v{xo}, 80, v{vi}')
    k.I(f'v_lshl_add_u32 v{xo}, v{vq}, 3, v{xo}')
    k.I(f'v_lshlrev_b32 v{mo}, 1, v{xo}')
    k.I(f'v_cmp_gt_u32 vcc, 32, v{vl}')
    k.I(f'v_mov_b32 v{xo2}, 0x7fff0000')
    k.I(f'v_cndmask_b32 v{xo2}, v{xo2}, v{xo}, vcc')
    k.I('s_mul_i32 s28, s23, 1280')
    k.I(f's_add_u32 s29, s28, {32*1280}')
    k.I('s_lshl_b32 s24, s21, 2')
    k.I('s_add_u32 s24, s24, s22')
    k.I('s_mul_i32 s24, s24, 61440')
    k.I(f's_add_u32 s24, s24, {WGU}')
    k.I(f'v_add_u32 v{vW}, s24, v{vo16}')
    fi = va.get(); fq = va.get(); fq4 = va.get()
    k.I(f'v_cvt_f32_u32 v{fi}, v{vi}')
    k.I(f'v_cvt_f32_u32 v{fq}, v{vq}')
    k.I(f'v_mul_f32 v{fq4}, 4.0, v{fq}')
    wu = va.get(); wv = va.get(); ra = va.get()
    k.I(f'v_mul_u32_u24 v{wu}, {2*PL}, v{ta}')
    k.I(f'v_sub_u32 v{wv}, 384, v{ta+1}')
    k.I(f'v_lshl_add_u32 v{wv}, v{wv}, 2, v{wu}')
    k.I(f'v_lshl_add_u32 v{wu}, v{ta+1}, 2, v{wu}')
    k.I(f's_mul_i32 s33, s22, {PL}')
    k.I(f'v_lshl_add_u32 v{ra}, v{vl}, 2, s33')
    k.I(f'v_cmp_ge_u32 s[34:35], 64, v{ta+1}')
    cs, sn = gen_tw640(k, va, fi, fq4)
    k.I(f'v_cmp_gt_u32 vcc, 8, v{vi}')
    for r in range(4):
        k.I(f'v_cndmask_b32 v{cs+8+r}, 0, v{cs+8+r}, vcc')
        k.I(f'v_cndmask_b32 v{sn+8+r}, 0, v{sn+8+r}, vcc')
    k.srd(16, 4, XT_SZ, XT)
    for rho in range(3):
        k.I(f'buffer_load_dwordx4 {vr(ch+4*rho,4)}, v{so}, s[16:19], s{25+rho} offen')
    k.srd(8, 6, S * D * 2)
    k.srd(12, 4, WS_END2)
    k.srd(36, 40, S * D * 2)
    k.I(f's_movk_i32 s30, {2*2560}')
    k.I(f's_movk_i32 s31, {3*2560}')
    k.I(f's_movk_i32 s32, {4*2560}')
    def wload(n):
        g = [f'buffer_load_dwordx4 {ar(4*n,4)}, v{vW}, s[12:15], 0 offen offset:{1024*(n%4)}']
        if n % 4 == 3: g.append(f'v_add_u32 v{vW}, 0x1000, v{vW}')
        return g
    side = []
    for T in range(3):
        for c in range(2):
            side.append([f'buffer_load_dwordx2 {vr(xr+(2*T+c)*2,2)}, v{xo2 if T == 2 else xo}, s[8:11], s{28+c} offen offset:{32*T} nt'])
    for T in range(3):
        side.append([f'buffer_load_dwordx4 {vr(mg+4*T,4)}, v{mo}, s[12:15], s30 offen offset:{64*T}'])
    for T in range(3):
        side.append([f'buffer_load_dwordx4 {vr(ms+4*T,4)}, v{mo}, s[12:15], s31 offen offset:{64*T}'])
        side.append([f'buffer_load_dwordx4 {vr(mc+4*T,4)}, v{mo}, s[12:15], s32 offen offset:{64*T}'])
    k.bg = side + [wload(n) for n in range(W_EARLY)]
    k.bg_every = env('BG1', 6)
    mark(k, 1)
    f40 = gen_f40(k, va, fi, fq, True)
    f16 = va.get(6, 2); tmp = va.get(8, 2)
    k.I(f'v_mul_f32 v{ta+2}, {fhex(1.0/16)}, v{fi}')
    k.I(f'v_mul_f32 v{ta+3}, v{fq4}, v{ta+2}')
    for j in range(4): k.I(f'v_fmamk_f32 v{tmp+4+j}, v{ta+2}, {fhex(float(j))}, v{ta+3}')
    for j in range(4):
        k.I(f'v_cos_f32 v{tmp+j}, v{tmp+4+j}')
        k.I(f'v_sin_f32 v{tmp+4+j}, v{tmp+4+j}')
    for p in range(2):
        k.I(f'v_cvt_pk_bf16_f32 v{f16+p}, v{tmp+4+2*p}, v{tmp+5+2*p}')
        k.I(f'v_cvt_pk_bf16_f32 v{f16+2+p}, v{tmp+2*p}, v{tmp+1+2*p}')
        k.I(f'v_cvt_pk_bf16_f32 v{f16+4+p}, -v{tmp+4+2*p}, -v{tmp+5+2*p}')
    dat = va.get(12, 2)
    k.I(f'v_mov_b32 v{dat+10}, 0'); k.I(f'v_mov_b32 v{dat+11}, 0')
    mark(k, 2)
    be = k.bg_every; k.bg_every = 0
    for rho in range(3):
        if rho == 2: k.I('s_mov_b64 exec, s[34:35]')
        for pr in range(2):
            k.I(f'ds_write_b32 v{wu}, v{ch+4*rho+2*pr} offset:{pr*PL+512*rho}')
            k.I(f'ds_write_b32 v{wv}, v{ch+4*rho+2*pr+1} offset:{pr*PL+512*(2-rho)}')
    k.I('s_mov_b64 exec, -1')
    k.barrier()
    mark(k, 3)
    for p in range(5):
        k.I(f'ds_read2st64_b32 {vr(dat+2*p,2)}, v{ra} offset0:{2*p} offset1:{2*p+1}')
    k.bg_every = env('BG2', 8)
    d1 = va.get(24, 4)
    for T in range(3):
        for kap in range(3):
            for c in range(2):
                dd = vr(d1 + (2*T+c)*4, 4)
                k.I(f'{MF16} {dd}, {vr(dat+4*kap,4)}, {vr(f40+(2*T+c)*10+4*kap,4)}, {dd if kap else 0}')
    a2 = ch; d2 = va.get(24, 4); xf = f40
    for T in range(3):
        cmul4(k, d1+8*T, d1+8*T+4, cs+4*T, sn+4*T, a2+4*T, tmp, True)
        for c in range(2):
            k.I(f'{MF16} {vr(d2+(2*T+c)*4,4)}, {vr(a2+4*T,4)}, {vr(f16+(0 if c else 2),4)}, 0')
    for i in range(12):
        k.I(f'v_lshlrev_b32 v{xf+2*i}, 16, v{xr+i}')
        k.I(f'v_and_b32 v{xf+2*i+1}, 0xffff0000, v{xr+i}')
    for T in range(3):
        for c in range(2):
            for p in (0, 2):
                r = (2*T+c)*4+p
                k.I(f'v_pk_fma_f32 {vr(xf+r,2)}, {vr(d2+r,2)}, {vr(mg+4*T+p,2)}, {vr(xf+r,2)}')
    st_ = f40 + 24
    first = True
    for T in range(3):
        for p in (0, 2):
            for c in range(2):
                r = xf+(2*T+c)*4+p
                if first:
                    k.I(f'v_mov_b64 {vr(st_+2*c,2)}, {vr(r,2)}')
                    k.I(f'v_pk_mul_f32 {vr(st_+4+2*c,2)}, {vr(r,2)}, {vr(r,2)}')
                else:
                    k.I(f'v_pk_add_f32 {vr(st_+2*c,2)}, {vr(st_+2*c,2)}, {vr(r,2)}')
                    k.I(f'v_pk_fma_f32 {vr(st_+4+2*c,2)}, {vr(r,2)}, {vr(r,2)}, {vr(st_+4+2*c,2)}')
            first = False
    for i in range(4): k.I(f'v_add_f32 v{st_+2*i}, v{st_+2*i}, v{st_+2*i+1}')
    wave_reduce_to_sgpr(k, [st_, st_+2, st_+4, st_+6], [46, 47, 48, 49])
    po = d1; ph = d1 + 12
    rr = f40 + 32; nmr = f40 + 34
    ln_scalars(k, 46, 48, rr, nmr, tmp)
    HB = 12288; XB = HB + 10240
    wh = f40 + 36; wx = f40 + 39; g0 = f40 + 40; g2 = f40 + 41; g3 = f40 + 42; tk = f40 + 43; cb_ = f40 + 44; tq = f40 + 45; tid16 = f40 + 46
    for T in range(3):
        for j in range(4):
            k.I(f'v_cvt_pk_bf16_f32 v{po+4*T+j}, v{xf+8*T+2*j}, v{xf+8*T+2*j+1}')
    for T in range(3):
        for c in range(2):
            for p in (0, 2):
                r = xf+(2*T+c)*4+p
                k.I(f'v_pk_fma_f32 {vr(r,2)}, {vr(r,2)}, {vr(rr,2)}, {vr(nmr,2)} op_sel:[0,{c},{c}] op_sel_hi:[1,{c},{c}]')
    for T in range(3):
        for c in range(2):
            for p in (0, 2):
                r = xf+(2*T+c)*4+p
                k.I(f'v_pk_fma_f32 {vr(r,2)}, {vr(r,2)}, {vr(mc+4*T+p,2)}, {vr(ms+4*T+p,2)}')
    for T in range(3):
        for j in range(4):
            k.I(f'v_cvt_pk_bf16_f32 v{ph+4*T+j}, v{xf+8*T+2*j}, v{xf+8*T+2*j+1}')
    k.I(f'v_lshrrev_b32 v{tq}, 1, v{vq}')
    k.I(f'v_mad_u32_u24 v{cb_}, v{vi}, 5, v{tq}')
    k.I(f'v_and_b32 v{tk}, 1, v{vq}')
    k.I('s_lshl_b32 s24, s22, 1')
    k.I(f'v_add_u32 v{tk}, s24, v{tk}')
    for T in range(3):
        k.I(f'v_permlane16_swap_b32 v{ph+4*T}, v{ph+4*T+2}')
        k.I(f'v_permlane16_swap_b32 v{ph+4*T+1}, v{ph+4*T+3}')
        k.I(f'v_add_u32 v{tq}, {2*T}, v{cb_}')
        k.I(f'v_xor_b32 v{wh+T}, v{tq}, v{tk}')
        k.I(f'v_and_b32 v{wh+T}, 7, v{wh+T}')
        k.I(f'v_lshl_add_u32 v{wh+T}, v{tq}, 3, v{wh+T}')
        k.I(f'v_lshlrev_b32 v{wh+T}, 4, v{wh+T}')
    k.bg_every = 0
    for T in range(3):
        if T == 2: k.I('s_mov_b32 exec_hi, 0')
        k.I(f'ds_write_b128 v{wh+T}, {vr(ph+4*T,4)} offset:{HB}')
    k.I('s_mov_b64 exec, -1')
    for T in range(3):
        k.I(f'v_permlane16_swap_b32 v{po+4*T}, v{po+4*T+2}')
        k.I(f'v_permlane16_swap_b32 v{po+4*T+1}, v{po+4*T+3}')
    k.I(f'v_mul_u32_u24 v{wx}, 1280, v{tk}')
    k.I(f'v_lshl_add_u32 v{wx}, v{cb_}, 4, v{wx}')
    for T in range(3):
        if T == 2: k.I('s_mov_b32 exec_hi, 0')
        k.I(f'ds_write_b128 v{wx}, {vr(po+4*T,4)} offset:{XB+32*T}')
    k.I('s_mov_b64 exec, -1')
    k.I(f'v_lshlrev_b32 v{tid16}, 4, v0')
    k.I(f'v_lshrrev_b32 v{tq}, 3, v0')
    k.I(f'v_xor_b32 v{g0}, v{tq}, v0')
    k.I(f'v_and_b32 v{g0}, 7, v{g0}')
    k.I(f'v_lshlrev_b32 v{g0}, 4, v{g0}')
    k.I(f'v_lshl_add_u32 v{g0}, v{tq}, 8, v{g0}')
    k.I('s_lshl_b32 s42, s20, 3')
    k.I('s_lshr_b32 s24, s21, 1')
    k.I('s_add_u32 s42, s42, s24')
    k.I('s_mul_i32 s42, s42, 20480')
    k.I('s_and_b32 s24, s21, 1')
    k.I('s_lshl_b32 s24, s24, 7')
    k.I('s_add_u32 s42, s42, s24')
    k.I(f's_add_u32 s42, s42, {H2}')
    k.I('s_lshl_b32 s43, s20, 4')
    k.I('s_add_u32 s43, s43, s21')
    k.I('s_mul_i32 s43, s43, 10240')
    k.I(f's_add_u32 s43, s43, {X1 - 2048}')
    k.I('s_add_u32 s44, s42, 8192')
    k.I('s_add_u32 s45, s42, 16384')
    k.I('s_cmp_lt_u32 s22, 2')
    k.I('s_cselect_b32 s45, s45, s43')
    k.I('s_cselect_b64 vcc, -1, 0')
    k.I(f'v_cndmask_b32 v{g2}, v{tid16}, v{g0}, vcc')
    k.I('s_add_u32 s50, s43, 4096')
    k.I('s_add_u32 s51, s43, 8192')
    k.barrier()
    mark(k, 4)
    sd = d2
    for rho in range(5):
        k.I(f'ds_read_b128 {vr(sd+4*rho,4)}, v{tid16} offset:{HB+4096*rho}')
    k.I(f'buffer_store_dwordx4 {vr(sd,4)}, v{g0}, s[12:15], s42 offen sc1', tag='h2')
    k.I(f'buffer_store_dwordx4 {vr(sd+4,4)}, v{g0}, s[12:15], s44 offen sc1', tag='h2')
    k.I(f'buffer_store_dwordx4 {vr(sd+8,4)}, v{g2}, s[12:15], s45 offen sc1', tag='h2')
    k.I(f'buffer_store_dwordx4 {vr(sd+12,4)}, v{tid16}, s[12:15], s50 offen sc1')
    k.I(f'buffer_store_dwordx4 {vr(sd+16,4)}, v{tid16}, s[12:15], s51 offen sc1')
    k.emit_bg(100)
    k.I('s_mul_i32 s24, s20, 163840')
    k.I(f's_add_u32 s24, s24, {H2}')
    k.I('s_add_u32 s16, s4, s24')
    k.I('s_addc_u32 s17, s5, 0')
    k.I('s_mov_b32 s18, 163840')
    k.I('s_mov_b32 s19, 0x00020000')
    k.I('s_mul_i32 s52, s22, 40960')
    k.I('s_add_u32 s53, s52, 20480')
    k.I('s_lshl_b32 s54, s20, 8')
    k.I(f's_add_u32 s54, s54, {FLAGS}')
    k.I('s_add_u32 s55, s54, 4096')
    k.wait_tag('h2')
    mark(k, 5)
    handoff(k, 'H1', 54, hs)
    mark(k, 6)
    va = VAlloc(keep)
    rb = [va.get(), va.get(), va.get()]
    act = va.get(32, 4); acc = va.get(96, 4)
    def dma(g):
        out = []
        for j in range(2):
            out.append([f's_add_u32 m0, s{52+j}, {2048*g}',
                        (f'buffer_load_dwordx4 v{vo16}, s[16:19], m0 offen sc1 lds', ('a', g))])
            out.append([(f'buffer_load_dwordx4 v{vo16}, s[16:19], m0 offen offset:1024 sc1 lds', ('a', g))])
        return out
    def emit(grp):
        for t in grp:
            if isinstance(t, tuple): k.I(t[0], tag=t[1])
            else: k.I(t)
    NPRE = env('E_PRE', 3)
    for g in range(NPRE):
        for grp in dma(g): emit(grp)
    k.I(f'v_mov_b32 v{rb[0]}, v{vo16}')
    k.I(f'v_add_u32 v{rb[1]}, {3*20480}, v{vo16}')
    k.I(f'v_add_u32 v{rb[2]}, {6*20480}, v{vo16}')
    def aread(nt, kap): return f'ds_read_b128 {vr(act+4*nt,4)}, v{rb[nt//3]} offset:{(nt%3)*20480+1024*kap}'
    vD = va.get()
    k.I('s_and_b32 s56, s21, 7')
    k.I('s_lshr_b32 s57, s21, 3')
    k.I('s_lshl_b32 s24, s56, 2')
    k.I('s_add_u32 s24, s24, s22')
    k.I('s_mul_i32 s24, s24, 61440')
    k.I(f's_add_u32 s24, s24, {WD}')
    k.I(f'v_add_u32 v{vD}, s24, v{vo16}')
    def dload(n):
        g = [f'buffer_load_dwordx4 {ar(4*n,4)}, v{vD}, s[12:15], 0 offen offset:{1024*(n%4)}']
        if n % 4 == 3: g.append(f'v_add_u32 v{vD}, 0x1000, v{vD}')
        return g
    k.wait_tag(('a', 0))
    k.I('s_barrier')
    mark(k, 7)
    for nt in range(8): k.I(aread(nt, 0))
    queue = []
    for g in range(NPRE, 10): queue += dma(g)
    queue += [wload(n) for n in range(W_EARLY, 60)]
    nd = 0
    bars = {1: 1, 3: 3, 7: 7, 15: 9}
    PER = env('E_PER', 5)
    for kap in range(20):
        if kap in bars:
            k.wait_tag(('a', bars[kap]))
            k.I('s_barrier')
        slots = PER
        for nt in range(8):
            for mt in range(3):
                dd = vr(acc+(mt*8+nt)*4, 4)
                k.I(f'{MF16} {dd}, {ar((3*kap+mt)*4,4)}, {vr(act+4*nt,4)}, {dd if kap else 0}')
            if kap < 19: k.I(aread(nt, kap + 1))
            if slots and nt >= 1:
                if queue: emit(queue.pop(0)); slots -= 1
                elif nd < 3 * kap: emit(dload(nd)); nd += 1; slots -= 1
    mark(k, 8)
    oh = va.get(); oh2 = va.get(); t0 = va.get()
    k.I(f'v_and_b32 v{t0}, 1, v{vq}')
    k.I(f'v_mul_u32_u24 v{oh}, 49152, v{t0}')
    k.I(f'v_lshl_add_u32 v{oh2}, v{oh}, 1, 0')
    k.I(f'v_lshrrev_b32 v{t0}, 1, v{vq}')
    k.I(f'v_lshl_add_u32 v{oh}, v{t0}, 8, v{oh}')
    k.I(f'v_lshl_add_u32 v{oh}, v{vi}, 4, v{oh}')
    k.I(f'v_mul_u32_u24 v{t0}, 49152, v{t0}')
    k.I(f'v_add_u32 v{oh2}, v{oh2}, v{t0}')
    k.I(f'v_lshl_add_u32 v{oh2}, v{vi}, 4, v{oh2}')
    k.I(f's_mul_i32 s42, s20, {8*49152}')
    k.I('s_lshl_b32 s24, s21, 2')
    k.I('s_add_u32 s24, s24, s22')
    k.I('s_mul_i32 s24, s24, 768')
    k.I('s_add_u32 s42, s42, s24')
    k.I(f's_add_u32 s42, s42, {HH}')
    for i in range(1, 4): k.I(f's_add_u32 s{42+i}, s42, {2*i*49152}')
    pk = act
    for pr in range(4):
        for j in range(2):
            nt = 2*pr + j
            g_ = acc + nt*4; u_ = acc + (8+nt)*4
            for p in (0, 2): k.I(f'v_pk_mul_f32 {vr(g_+p,2)}, {vr(g_+p,2)}, {vr(u_+p,2)}')
        a_ = acc + (16+2*pr)*4; b_ = a_ + 4
        for r in range(4): k.I(f'v_permlane32_swap_b32 v{a_+r}, v{b_+r}')
        for j in range(2):
            g_ = acc + (2*pr+j)*4
            for p in (0, 2): k.I(f'v_cvt_pk_bf16_f32 v{pk+4*pr+2*j+p//2}, v{g_+p}, v{g_+p+1}')
        for p in (0, 2): k.I(f'v_pk_mul_f32 {vr(a_+p,2)}, {vr(a_+p,2)}, {vr(b_+p,2)}')
        k.I(f'v_permlane16_swap_b32 v{pk+4*pr}, v{pk+4*pr+2}')
        k.I(f'v_permlane16_swap_b32 v{pk+4*pr+1}, v{pk+4*pr+3}')
        for p in (0, 2): k.I(f'v_cvt_pk_bf16_f32 v{pk+16+2*pr+p//2}, v{a_+p}, v{a_+p+1}')
        k.I(f'buffer_store_dwordx4 {vr(pk+4*pr,4)}, v{oh}, s[12:15], s{42+pr} offen sc1', tag='h')
        if pr & 1:
            q_ = pk + 16 + 2*(pr-1)
            k.I(f'v_permlane16_swap_b32 v{q_}, v{q_+2}')
            k.I(f'v_permlane16_swap_b32 v{q_+1}, v{q_+3}')
            k.I(f'buffer_store_dwordx4 {vr(q_,4)}, v{oh2}, s[12:15], s{42+pr-1} offen offset:512 sc1', tag='h')
    while nd < 60: emit(dload(nd)); nd += 1
    va = VAlloc(keep)
    oo = va.get(); ox = va.get(); go = va.get(); t0 = va.get(); t1 = va.get(); lw = va.get()
    va.n = max(va.n, pk + 24)
    gb = va.get(20, 4); x1r = va.get(10, 2); xf = va.get(20, 2)
    fa = [va.get(20, 4), va.get(20, 4)]
    NB = 24
    hb = va.get(4 * NB, 4)
    for i in range(4):
        k.I(f's_add_u32 s{58+i}, s22, {i}')
        k.I(f's_and_b32 s{58+i}, s{58+i}, 3')
    k.I('s_lshl_b32 s24, s20, 1')
    k.I('s_add_u32 s24, s24, s57')
    k.I('s_lshl_b32 s24, s24, 2')
    k.I(f's_mul_i32 s33, s22, {12*1024}')
    k.I(f's_add_u32 s33, s33, {HH}')
    for i in range(4):
        k.I(f's_add_u32 s{42+i}, s{58+i}, s24')
        k.I(f's_mul_i32 s{42+i}, s{42+i}, 49152')
        k.I(f's_add_u32 s{42+i}, s{42+i}, s33')
    k.I('s_add_u32 s30, s24, s22')
    k.I(f's_mul_i32 s50, s30, {16*1280}')
    k.I('s_lshr_b32 s31, s30, 3')
    k.I('s_lshl_b32 s31, s31, 7')
    k.I('s_and_b32 s30, s30, 7')
    k.I('s_lshl_b32 s30, s30, 2')
    k.I('s_add_u32 s31, s31, s30')
    k.I('s_mul_i32 s31, s31, 1280')
    k.I('s_mul_i32 s30, s56, 160')
    k.I('s_add_u32 s31, s31, s30')
    k.I('s_add_u32 s50, s50, s30')
    k.I(f's_add_u32 s50, s50, {X1}')
    k.I(f'v_and_b32 v{t0}, 3, v{vl}')
    k.I(f'v_lshlrev_b32 v{t0}, 5, v{t0}')
    k.I(f'v_bfe_u32 v{t1}, v{vl}, 2, 2')
    k.I(f'v_add_u32 v{t0}, v{t0}, v{t1}')
    k.I(f'v_mul_u32_u24 v{oo}, 1280, v{t0}')
    k.I(f'v_mul_u32_u24 v{go}, 40, v{vq}')
    k.I(f'v_add_u32 v{oo}, v{oo}, v{go}')
    k.I(f'v_mul_u32_u24 v{ox}, 1280, v{vi}')
    k.I(f'v_add_u32 v{ox}, v{ox}, v{go}')
    k.I(f'v_lshlrev_b32 v{go}, 1, v{go}')
    k.I('s_lshl_b32 s30, s30, 1')
    k.I(f's_add_u32 s30, s30, {5*2560}')
    for dt in range(5): k.I(f'buffer_load_dwordx4 {vr(gb+4*dt,4)}, v{go}, s[12:15], s30 offen offset:{16*dt}')
    k.wait_tag('h')
    handoff(k, 'H2', 55, hs)
    mark(k, 9)
    order = [1, 2, 3, 0]
    hl = []
    for oi, i in enumerate(order):
        for kp in range(12):
            n = 12*oi + kp
            g = [f'buffer_load_dwordx4 {vr(hb+4*(n%NB),4)}, v{vo16}, s[12:15], s{42+i} offen offset:{1024*(kp%4)} sc1']
            if kp % 4 == 3: g.append(f's_add_u32 s{42+i}, s{42+i}, 4096')
            hl.append(g)
    xl = [[f'buffer_load_dwordx4 {vr(x1r,4)}, v{ox}, s[12:15], s50 offen sc1'],
          [f'buffer_load_dwordx4 {vr(x1r+4,4)}, v{ox}, s[12:15], s50 offen offset:16 sc1'],
          [f'buffer_load_dwordx2 {vr(x1r+8,2)}, v{ox}, s[12:15], s50 offen offset:32 sc1']]
    hl += xl
    FPRE = env('F_PRE', 14)
    for _ in range(FPRE): emit(hl.pop(0))
    rd = va.get(0)
    for oi, i in enumerate(order):
        a = fa[oi & 1]
        extra = []
        if oi >= 1:
            pi = order[oi-1]; pa = fa[(oi-1) & 1]
            extra.append([f's_mul_i32 s24, s{58+pi}, {15*1024}', f'v_add_u32 v{lw}, s24, v{vo16}'])
            for dt in range(5): extra.append([f'ds_write_b128 v{lw}, {vr(pa+4*dt,4)} offset:{((pi-1)*5+dt)*1024}'])
        for kp in range(12):
            n = 12*oi + kp
            for dt in range(5):
                dd = vr(a+4*dt, 4)
                k.I(f'{MF16} {dd}, {ar((5*kp+dt)*4,4)}, {vr(hb+4*(n%NB),4)}, {dd if kp else 0}')
                if dt == 1 and kp >= 1 and extra: emit(extra.pop(0))
                if dt == 3 and kp >= 1 and extra: emit(extra.pop(0))
            if hl: emit(hl.pop(0))
            if oi == 3 and kp == 4:
                k.I(f's_mul_i32 s24, s22, {15*1024}')
                k.I(f'v_add_u32 v{lw}, s24, v{vo16}')
                k.barrier()
                r0 = fa[0]; r1 = hb; r2 = hb + 20
                for dt in range(5):
                    extra.append([f'ds_read_b128 {vr(r0+4*dt,4)}, v{lw} offset:{(0*5+dt)*1024}',
                                  f'ds_read_b128 {vr(r1+4*dt,4)}, v{lw} offset:{(1*5+dt)*1024}',
                                  f'ds_read_b128 {vr(r2+4*dt,4)}, v{lw} offset:{(2*5+dt)*1024}'])
                for dt in range(5):
                    g = []
                    for p in (0, 2): g.append(f'v_pk_add_f32 {vr(r0+4*dt+p,2)}, {vr(r0+4*dt+p,2)}, {vr(r1+4*dt+p,2)}')
                    for p in (0, 2): g.append(f'v_pk_add_f32 {vr(r0+4*dt+p,2)}, {vr(r0+4*dt+p,2)}, {vr(r2+4*dt+p,2)}')
                    extra.append(g)
                for h_ in range(2):
                    g = []
                    for j in range(5*h_, 5*h_+5):
                        g.append(f'v_lshlrev_b32 v{xf+2*j}, 16, v{x1r+j}')
                        g.append(f'v_and_b32 v{xf+2*j+1}, 0xffff0000, v{x1r+j}')
                    extra.append(g)
        while extra: emit(extra.pop(0))
    own = fa[1]; r0 = fa[0]
    for dt in range(5):
        for p in (0, 2): k.I(f'v_pk_add_f32 {vr(own+4*dt+p,2)}, {vr(own+4*dt+p,2)}, {vr(r0+4*dt+p,2)}')
    for dt in range(5):
        for p in (0, 2): k.I(f'v_pk_fma_f32 {vr(own+4*dt+p,2)}, {vr(own+4*dt+p,2)}, {vr(gb+4*dt+p,2)}, {vr(xf+4*dt+p,2)}')
    for dt in range(5):
        for p in (0, 2): k.I(f'v_cvt_pk_bf16_f32 v{x1r+2*dt+p//2}, v{own+4*dt+p}, v{own+4*dt+p+1}')
    k.I(f'buffer_store_dwordx4 {vr(x1r,4)}, v{oo}, s[36:39], s31 offen')
    k.I(f'buffer_store_dwordx4 {vr(x1r+4,4)}, v{oo}, s[36:39], s31 offen offset:16')
    k.I(f'buffer_store_dwordx2 {vr(x1r+8,2)}, v{oo}, s[36:39], s31 offen offset:32')
    stamp_end(k, 3, 4)
    k.label('LD_exit')
    k.I('s_endpgm')
    return k, (256, 256, 163840)

KERNELS = (gen_A2, gen_B, gen_C, gen_DEF)
if __name__ == '__main__':
    out = sys.argv[1] if len(sys.argv) > 1 else 'adaLN_cond__spectral_gfnet__glu_gated_bilinear__prompt.s'
    if len(sys.argv) > 2 and sys.argv[2] == 'stamps': gen.STAMPS = True
    build(out, KERNELS)
```

```python
import os, math
import gen
from gen import *
from gen2 import *
from gen4 import YT, YT_ST, WS_END4
from gen import mark, stamp_begin, stamp_end

def gen_DEF5():
    k = Kernel('kd_kernel')
    PL = 2592
    W_EARLY = env('W_EARLY', 42)
    stamp_begin(k)
    k.I('s_cmp_ge_u32 s2, 256')
    k.I('s_cbranch_scc1 LD_exit')
    k.I(f's_load_dwordx2 s[4:5], s[0:1], {KA["ws"]}')
    k.I(f's_load_dwordx2 s[6:7], s[0:1], {KA["x"]}')
    k.I(f's_load_dwordx2 s[40:41], s[0:1], {KA["out"]}')
    va = VAlloc(2)
    vl = va.get(); vo16 = va.get(); vW = va.get(); vi = va.get(); vq = va.get(); hs = va.get(2, 2)
    keep = va.n
    so = va.get(); ta = va.get(4)
    ch = va.get(12, 4); xr = va.get(12, 2); mg = va.get(12, 4); mc = va.get(12, 4); ms = va.get(12, 4)
    xo = va.get(); mo = va.get()
    XL = 32768; MLD = XL + 4 * 2560
    ids2(k, vl)
    k.I(f'v_lshlrev_b32 v{vo16}, 4, v{vl}')
    k.I(f'v_and_b32 v{ta}, 1, v0')
    k.I(f'v_lshrrev_b32 v{ta+1}, 1, v0')
    k.I(f'v_lshlrev_b32 v{so}, 4, v0')
    k.I('s_lshl_b32 s25, s20, 4')
    k.I('s_add_u32 s25, s25, s21')
    k.I(f's_mul_i32 s25, s25, {YT_ST}')
    k.I('s_add_u32 s26, s25, 4096')
    k.I('s_add_u32 s27, s25, 8192')
    k.I(f'v_and_b32 v{vi}, 15, v{vl}')
    k.I(f'v_lshrrev_b32 v{vq}, 4, v{vl}')
    k.I(f'v_mul_u32_u24 v{xo}, 80, v{vi}')
    k.I(f'v_lshl_add_u32 v{xo}, v{vq}, 3, v{xo}')
    k.I(f'v_lshlrev_b32 v{mo}, 1, v{xo}')
    k.I(f's_mul_i32 s30, s22, 2560')
    k.I(f's_add_u32 s30, s30, {XL}')
    k.I(f'v_add_u32 v{xo}, s30, v{xo}')
    for j in range(8, 12): k.I(f'v_mov_b32 v{xr+j}, 0')
    k.I('s_mul_i32 s28, s23, 1280')
    k.I(f's_add_u32 s29, s28, {32*1280}')
    k.I('s_lshl_b32 s24, s21, 2')
    k.I('s_add_u32 s24, s24, s22')
    k.I('s_mul_i32 s24, s24, 61440')
    k.I(f's_add_u32 s24, s24, {WGU}')
    k.I(f'v_add_u32 v{vW}, s24, v{vo16}')
    fi = va.get(); fq = va.get(); fq4 = va.get()
    k.I(f'v_cvt_f32_u32 v{fi}, v{vi}')
    k.I(f'v_cvt_f32_u32 v{fq}, v{vq}')
    k.I(f'v_mul_f32 v{fq4}, 4.0, v{fq}')
    wu = va.get(); wv = va.get(); ra = va.get()
    k.I(f'v_mul_u32_u24 v{wu}, {2*PL}, v{ta}')
    k.I(f'v_sub_u32 v{wv}, 384, v{ta+1}')
    k.I(f'v_lshl_add_u32 v{wv}, v{wv}, 2, v{wu}')
    k.I(f'v_lshl_add_u32 v{wu}, v{ta+1}, 2, v{wu}')
    k.I(f's_mul_i32 s33, s22, {PL}')
    k.I(f'v_lshl_add_u32 v{ra}, v{vl}, 2, s33')
    k.I(f'v_cmp_ge_u32 s[34:35], 64, v{ta+1}')
    cs, sn = gen_tw640(k, va, fi, fq4)
    k.I(f'v_cmp_gt_u32 vcc, 8, v{vi}')
    for r in range(4):
        k.I(f'v_cndmask_b32 v{cs+8+r}, 0, v{cs+8+r}, vcc')
        k.I(f'v_cndmask_b32 v{sn+8+r}, 0, v{sn+8+r}, vcc')
    k.srd(16, 4, 256 * YT_ST, YT)
    for rho in range(3):
        if rho == 2: k.I('s_mov_b64 exec, s[34:35]')
        k.I(f'buffer_load_dwordx4 {vr(ch+4*rho,4)}, v{so}, s[16:19], s{25+rho} offen')
    k.I('s_mov_b64 exec, -1')
    k.srd(12, 4, WS_END4)
    k.I('s_lshl_b32 s31, s22, 11')
    k.I(f's_add_u32 m0, s31, {MLD}')
    k.I(f's_add_u32 s31, s31, {MODN + 2*2560}')
    k.I(f'buffer_load_dwordx4 v{vo16}, s[12:15], s31 offen lds', tag='md')
    k.I(f'buffer_load_dwordx4 v{vo16}, s[12:15], s31 offen offset:1024 lds', tag='md')
    k.srd(8, 6, S * D * 2)
    for c in range(2):
        k.I(f's_add_u32 m0, s30, {1280*c}')
        k.I(f'buffer_load_dwordx4 v{vo16}, s[8:11], s{28+c} offen nt lds', tag='xx')
        k.I('s_mov_b64 exec, 0xffff')
        k.I(f'buffer_load_dwordx4 v{vo16}, s[8:11], s{28+c} offen offset:1024 nt lds', tag='xx')
        k.I('s_mov_b64 exec, -1')
    k.srd(36, 40, S * D * 2)
    def wload(n):
        g = [f'buffer_load_dwordx4 {ar(4*n,4)}, v{vW}, s[12:15], 0 offen offset:{1024*(n%4)}']
        if n % 4 == 3: g.append(f'v_add_u32 v{vW}, 0x1000, v{vW}')
        return g
    k.bg = [wload(n) for n in range(W_EARLY)]
    k.bg_every = env('BG1', 12)
    mark(k, 1)
    f40 = gen_f40(k, va, fi, fq, True)
    f16 = va.get(6, 2); tmp = va.get(8, 2)
    k.I(f'v_mul_f32 v{ta+2}, {fhex(1.0/16)}, v{fi}')
    k.I(f'v_mul_f32 v{ta+3}, v{fq4}, v{ta+2}')
    for j in range(4): k.I(f'v_fmamk_f32 v{tmp+4+j}, v{ta+2}, {fhex(float(j))}, v{ta+3}')
    for j in range(4):
        k.I(f'v_cos_f32 v{tmp+j}, v{tmp+4+j}')
        k.I(f'v_sin_f32 v{tmp+4+j}, v{tmp+4+j}')
    for p in range(2):
        k.I(f'v_cvt_pk_bf16_f32 v{f16+p}, v{tmp+4+2*p}, v{tmp+5+2*p}')
        k.I(f'v_cvt_pk_bf16_f32 v{f16+2+p}, v{tmp+2*p}, v{tmp+1+2*p}')
        k.I(f'v_cvt_pk_bf16_f32 v{f16+4+p}, -v{tmp+4+2*p}, -v{tmp+5+2*p}')
    dat = va.get(12, 2)
    k.I(f'v_mov_b32 v{dat+10}, 0'); k.I(f'v_mov_b32 v{dat+11}, 0')
    mark(k, 2)
    be = k.bg_every; k.bg_every = 0
    for rho in range(3):
        if rho == 2: k.I('s_mov_b64 exec, s[34:35]')
        for pr in range(2):
            k.I(f'ds_write_b32 v{wu}, v{ch+4*rho+2*pr} offset:{pr*PL+512*rho}')
            k.I(f'ds_write_b32 v{wv}, v{ch+4*rho+2*pr+1} offset:{pr*PL+512*(2-rho)}')
    k.I('s_mov_b64 exec, -1')
    k.wait_tag('md')
    k.barrier()
    mark(k, 3)
    for p in range(5):
        k.I(f'ds_read2st64_b32 {vr(dat+2*p,2)}, v{ra} offset0:{2*p} offset1:{2*p+1}')
    k.bg_every = env('BG2', 12)
    d1 = va.get(24, 4)
    for T in range(3):
        for kap in range(3):
            for c in range(2):
                dd = vr(d1 + (2*T+c)*4, 4)
                k.I(f'{MF16} {dd}, {vr(dat+4*kap,4)}, {vr(f40+(2*T+c)*10+4*kap,4)}, {dd if kap else 0}')
    k.bg_every = 0
    for T in range(3):
        k.I(f'ds_read_b128 {vr(mg+4*T,4)}, v{mo} offset:{MLD+64*T}')
    k.wait_tag('xx')
    for T in range(3):
        if T == 2: k.I('s_mov_b32 exec_hi, 0')
        for c in range(2):
            k.I(f'ds_read_b64 {vr(xr+(2*T+c)*2,2)}, v{xo} offset:{1280*c+32*T}')
    k.I('s_mov_b64 exec, -1')
    for T in range(3):
        k.I(f'ds_read_b128 {vr(ms+4*T,4)}, v{mo} offset:{MLD+2560+64*T}')
        k.I(f'ds_read_b128 {vr(mc+4*T,4)}, v{mo} offset:{MLD+5120+64*T}')
    k.bg_every = env('BG2', 12)
    a2 = ch; d2 = va.get(24, 4); xf = f40
    for T in range(3):
        cmul4(k, d1+8*T, d1+8*T+4, cs+4*T, sn+4*T, a2+4*T, tmp, True)
        for c in range(2):
            k.I(f'{MF16} {vr(d2+(2*T+c)*4,4)}, {vr(a2+4*T,4)}, {vr(f16+(0 if c else 2),4)}, 0')
    for i in range(12):
        k.I(f'v_lshlrev_b32 v{xf+2*i}, 16, v{xr+i}')
        k.I(f'v_and_b32 v{xf+2*i+1}, 0xffff0000, v{xr+i}')
    for T in range(3):
        for c in range(2):
            for p in (0, 2):
                r = (2*T+c)*4+p
                k.I(f'v_pk_fma_f32 {vr(xf+r,2)}, {vr(d2+r,2)}, {vr(mg+4*T+p,2)}, {vr(xf+r,2)}')
    st_ = f40 + 24
    first = True
    for T in range(3):
        for p in (0, 2):
            for c in range(2):
                r = xf+(2*T+c)*4+p
                if first:
                    k.I(f'v_mov_b64 {vr(st_+2*c,2)}, {vr(r,2)}')
                    k.I(f'v_pk_mul_f32 {vr(st_+4+2*c,2)}, {vr(r,2)}, {vr(r,2)}')
                else:
                    k.I(f'v_pk_add_f32 {vr(st_+2*c,2)}, {vr(st_+2*c,2)}, {vr(r,2)}')
                    k.I(f'v_pk_fma_f32 {vr(st_+4+2*c,2)}, {vr(r,2)}, {vr(r,2)}, {vr(st_+4+2*c,2)}')
            first = False
    for i in range(4): k.I(f'v_add_f32 v{st_+2*i}, v{st_+2*i}, v{st_+2*i+1}')
    wave_reduce_to_sgpr(k, [st_, st_+2, st_+4, st_+6], [46, 47, 48, 49])
    po = d1; ph = d1 + 12
    rr = f40 + 32; nmr = f40 + 34
    ln_scalars(k, 46, 48, rr, nmr, tmp)
    HB = 12288; XB = HB + 10240
    wh = f40 + 36; wx = f40 + 39; g0 = f40 + 40; g2 = f40 + 41; g3 = f40 + 42; tk = f40 + 43; cb_ = f40 + 44; tq = f40 + 45; tid16 = f40 + 46
    for T in range(3):
        for j in range(4):
            k.I(f'v_cvt_pk_bf16_f32 v{po+4*T+j}, v{xf+8*T+2*j}, v{xf+8*T+2*j+1}')
    for T in range(3):
        for c in range(2):
            for p in (0, 2):
                r = xf+(2*T+c)*4+p
                k.I(f'v_pk_fma_f32 {vr(r,2)}, {vr(r,2)}, {vr(rr,2)}, {vr(nmr,2)} op_sel:[0,{c},{c}] op_sel_hi:[1,{c},{c}]')
    for T in range(3):
        for c in range(2):
            for p in (0, 2):
                r = xf+(2*T+c)*4+p
                k.I(f'v_pk_fma_f32 {vr(r,2)}, {vr(r,2)}, {vr(mc+4*T+p,2)}, {vr(ms+4*T+p,2)}')
    for T in range(3):
        for j in range(4):
            k.I(f'v_cvt_pk_bf16_f32 v{ph+4*T+j}, v{xf+8*T+2*j}, v{xf+8*T+2*j+1}')
    k.I(f'v_lshrrev_b32 v{tq}, 1, v{vq}')
    k.I(f'v_mad_u32_u24 v{cb_}, v{vi}, 5, v{tq}')
    k.I(f'v_and_b32 v{tk}, 1, v{vq}')
    k.I('s_lshl_b32 s24, s22, 1')
    k.I(f'v_add_u32 v{tk}, s24, v{tk}')
    for T in range(3):
        k.I(f'v_permlane16_swap_b32 v{ph+4*T}, v{ph+4*T+2}')
        k.I(f'v_permlane16_swap_b32 v{ph+4*T+1}, v{ph+4*T+3}')
        k.I(f'v_add_u32 v{tq}, {2*T}, v{cb_}')
        k.I(f'v_xor_b32 v{wh+T}, v{tq}, v{tk}')
        k.I(f'v_and_b32 v{wh+T}, 7, v{wh+T}')
        k.I(f'v_lshl_add_u32 v{wh+T}, v{tq}, 3, v{wh+T}')
        k.I(f'v_lshlrev_b32 v{wh+T}, 4, v{wh+T}')
    k.bg_every = 0
    for T in range(3):
        if T == 2: k.I('s_mov_b32 exec_hi, 0')
        k.I(f'ds_write_b128 v{wh+T}, {vr(ph+4*T,4)} offset:{HB}')
    k.I('s_mov_b64 exec, -1')
    for T in range(3):
        k.I(f'v_permlane16_swap_b32 v{po+4*T}, v{po+4*T+2}')
        k.I(f'v_permlane16_swap_b32 v{po+4*T+1}, v{po+4*T+3}')
    k.I(f'v_mul_u32_u24 v{wx}, 1280, v{tk}')
    k.I(f'v_lshl_add_u32 v{wx}, v{cb_}, 4, v{wx}')
    for T in range(3):
        if T == 2: k.I('s_mov_b32 exec_hi, 0')
        k.I(f'ds_write_b128 v{wx}, {vr(po+4*T,4)} offset:{XB+32*T}')
    k.I('s_mov_b64 exec, -1')
    k.I(f'v_lshlrev_b32 v{tid16}, 4, v0')
    k.I(f'v_lshrrev_b32 v{tq}, 3, v0')
    k.I(f'v_xor_b32 v{g0}, v{tq}, v0')
    k.I(f'v_and_b32 v{g0}, 7, v{g0}')
    k.I(f'v_lshlrev_b32 v{g0}, 4, v{g0}')
    k.I(f'v_lshl_add_u32 v{g0}, v{tq}, 8, v{g0}')
    k.I('s_lshl_b32 s42, s20, 3')
    k.I('s_lshr_b32 s24, s21, 1')
    k.I('s_add_u32 s42, s42, s24')
    k.I('s_mul_i32 s42, s42, 20480')
    k.I('s_and_b32 s24, s21, 1')
    k.I('s_lshl_b32 s24, s24, 7')
    k.I('s_add_u32 s42, s42, s24')
    k.I(f's_add_u32 s42, s42, {H2}')
    k.I('s_lshl_b32 s43, s20, 4')
    k.I('s_add_u32 s43, s43, s21')
    k.I('s_mul_i32 s43, s43, 10240')
    k.I(f's_add_u32 s43, s43, {X1 - 2048}')
    k.I('s_add_u32 s44, s42, 8192')
    k.I('s_add_u32 s45, s42, 16384')
    k.I('s_cmp_lt_u32 s22, 2')
    k.I('s_cselect_b32 s45, s45, s43')
    k.I('s_cselect_b64 vcc, -1, 0')
    k.I(f'v_cndmask_b32 v{g2}, v{tid16}, v{g0}, vcc')
    k.I('s_add_u32 s50, s43, 4096')
    k.I('s_add_u32 s51, s43, 8192')
    k.barrier()
    mark(k, 4)
    sd = d2
    for rho in range(5):
        k.I(f'ds_read_b128 {vr(sd+4*rho,4)}, v{tid16} offset:{HB+4096*rho}')
    k.I(f'buffer_store_dwordx4 {vr(sd,4)}, v{g0}, s[12:15], s42 offen sc1', tag='h2')
    k.I(f'buffer_store_dwordx4 {vr(sd+4,4)}, v{g0}, s[12:15], s44 offen sc1', tag='h2')
    k.I(f'buffer_store_dwordx4 {vr(sd+8,4)}, v{g2}, s[12:15], s45 offen sc1', tag='h2')
    k.I(f'buffer_store_dwordx4 {vr(sd+12,4)}, v{tid16}, s[12:15], s50 offen sc1')
    k.I(f'buffer_store_dwordx4 {vr(sd+16,4)}, v{tid16}, s[12:15], s51 offen sc1')
    k.emit_bg(100)
    k.I('s_mul_i32 s24, s20, 163840')
    k.I(f's_add_u32 s24, s24, {H2}')
    k.I('s_add_u32 s16, s4, s24')
    k.I('s_addc_u32 s17, s5, 0')
    k.I('s_mov_b32 s18, 163840')
    k.I('s_mov_b32 s19, 0x00020000')
    k.I('s_mul_i32 s52, s22, 40960')
    k.I('s_add_u32 s53, s52, 20480')
    k.I('s_lshl_b32 s54, s20, 8')
    k.I(f's_add_u32 s54, s54, {FLAGS}')
    k.I('s_add_u32 s55, s54, 4096')
    k.wait_tag('h2')
    mark(k, 5)
    handoff(k, 'H1', 54, hs)
    mark(k, 6)
    va = VAlloc(keep)
    rb = [va.get(), va.get(), va.get()]
    act = va.get(32, 4); acc = va.get(96, 4)
    def dma(g):
        out = []
        for j in range(2):
            out.append([f's_add_u32 m0, s{52+j}, {2048*g}',
                        (f'buffer_load_dwordx4 v{vo16}, s[16:19], m0 offen sc1 lds', ('a', g))])
            out.append([(f'buffer_load_dwordx4 v{vo16}, s[16:19], m0 offen offset:1024 sc1 lds', ('a', g))])
        return out
    def emit(grp):
        for t in grp:
            if isinstance(t, tuple): k.I(t[0], tag=t[1])
            else: k.I(t)
    NPRE = env('E_PRE', 3)
    for g in range(NPRE):
        for grp in dma(g): emit(grp)
    k.I(f'v_mov_b32 v{rb[0]}, v{vo16}')
    k.I(f'v_add_u32 v{rb[1]}, {3*20480}, v{vo16}')
    k.I(f'v_add_u32 v{rb[2]}, {6*20480}, v{vo16}')
    def aread(nt, kap): return f'ds_read_b128 {vr(act+4*nt,4)}, v{rb[nt//3]} offset:{(nt%3)*20480+1024*kap}'
    vD = va.get()
    k.I('s_and_b32 s56, s21, 7')
    k.I('s_lshr_b32 s57, s21, 3')
    k.I('s_lshl_b32 s24, s56, 2')
    k.I('s_add_u32 s24, s24, s22')
    k.I('s_mul_i32 s24, s24, 61440')
    k.I(f's_add_u32 s24, s24, {WD}')
    k.I(f'v_add_u32 v{vD}, s24, v{vo16}')
    def dload(n):
        g = [f'buffer_load_dwordx4 {ar(4*n,4)}, v{vD}, s[12:15], 0 offen offset:{1024*(n%4)}']
        if n % 4 == 3: g.append(f'v_add_u32 v{vD}, 0x1000, v{vD}')
        return g
    k.wait_tag(('a', 0))
    k.I('s_barrier')
    mark(k, 7)
    for nt in range(8): k.I(aread(nt, 0))
    queue = []
    for g in range(NPRE, 10): queue += dma(g)
    queue += [wload(n) for n in range(W_EARLY, 60)]
    nd = 0
    bars = {1: 1, 3: 3, 7: 7, 15: 9}
    PER = env('E_PER', 5)
    for kap in range(20):
        if kap in bars:
            k.wait_tag(('a', bars[kap]))
            k.I('s_barrier')
        slots = PER
        for nt in range(8):
            for mt in range(3):
                dd = vr(acc+(mt*8+nt)*4, 4)
                k.I(f'{MF16} {dd}, {ar((3*kap+mt)*4,4)}, {vr(act+4*nt,4)}, {dd if kap else 0}')
            if kap < 19: k.I(aread(nt, kap + 1))
            if slots and nt >= 1:
                if queue: emit(queue.pop(0)); slots -= 1
                elif nd < 3 * kap: emit(dload(nd)); nd += 1; slots -= 1
    mark(k, 8)
    oh = va.get(); oh2 = va.get(); t0 = va.get()
    k.I(f'v_and_b32 v{t0}, 1, v{vq}')
    k.I(f'v_mul_u32_u24 v{oh}, 49152, v{t0}')
    k.I(f'v_lshl_add_u32 v{oh2}, v{oh}, 1, 0')
    k.I(f'v_lshrrev_b32 v{t0}, 1, v{vq}')
    k.I(f'v_lshl_add_u32 v{oh}, v{t0}, 8, v{oh}')
    k.I(f'v_lshl_add_u32 v{oh}, v{vi}, 4, v{oh}')
    k.I(f'v_mul_u32_u24 v{t0}, 49152, v{t0}')
    k.I(f'v_add_u32 v{oh2}, v{oh2}, v{t0}')
    k.I(f'v_lshl_add_u32 v{oh2}, v{vi}, 4, v{oh2}')
    k.I(f's_mul_i32 s42, s20, {8*49152}')
    k.I('s_lshl_b32 s24, s21, 2')
    k.I('s_add_u32 s24, s24, s22')
    k.I('s_mul_i32 s24, s24, 768')
    k.I('s_add_u32 s42, s42, s24')
    k.I(f's_add_u32 s42, s42, {HH}')
    for i in range(1, 4): k.I(f's_add_u32 s{42+i}, s42, {2*i*49152}')
    pk = act
    for pr in range(4):
        for j in range(2):
            nt = 2*pr + j
            g_ = acc + nt*4; u_ = acc + (8+nt)*4
            for p in (0, 2): k.I(f'v_pk_mul_f32 {vr(g_+p,2)}, {vr(g_+p,2)}, {vr(u_+p,2)}')
        a_ = acc + (16+2*pr)*4; b_ = a_ + 4
        for r in range(4): k.I(f'v_permlane32_swap_b32 v{a_+r}, v{b_+r}')
        for j in range(2):
            g_ = acc + (2*pr+j)*4
            for p in (0, 2): k.I(f'v_cvt_pk_bf16_f32 v{pk+4*pr+2*j+p//2}, v{g_+p}, v{g_+p+1}')
        for p in (0, 2): k.I(f'v_pk_mul_f32 {vr(a_+p,2)}, {vr(a_+p,2)}, {vr(b_+p,2)}')
        k.I(f'v_permlane16_swap_b32 v{pk+4*pr}, v{pk+4*pr+2}')
        k.I(f'v_permlane16_swap_b32 v{pk+4*pr+1}, v{pk+4*pr+3}')
        for p in (0, 2): k.I(f'v_cvt_pk_bf16_f32 v{pk+16+2*pr+p//2}, v{a_+p}, v{a_+p+1}')
        k.I(f'buffer_store_dwordx4 {vr(pk+4*pr,4)}, v{oh}, s[12:15], s{42+pr} offen sc1', tag='h')
        if pr & 1:
            q_ = pk + 16 + 2*(pr-1)
            k.I(f'v_permlane16_swap_b32 v{q_}, v{q_+2}')
            k.I(f'v_permlane16_swap_b32 v{q_+1}, v{q_+3}')
            k.I(f'buffer_store_dwordx4 {vr(q_,4)}, v{oh2}, s[12:15], s{42+pr-1} offen offset:512 sc1', tag='h')
    while nd < 60: emit(dload(nd)); nd += 1
    va = VAlloc(keep)
    oo = va.get(); ox = va.get(); go = va.get(); t0 = va.get(); t1 = va.get(); lw = va.get()
    va.n = max(va.n, pk + 24)
    gb = va.get(20, 4); x1r = va.get(10, 2); xf = va.get(20, 2)
    fa = [va.get(20, 4), va.get(20, 4)]
    NB = 24
    hb = va.get(4 * NB, 4)
    for i in range(4):
        k.I(f's_add_u32 s{58+i}, s22, {i}')
        k.I(f's_and_b32 s{58+i}, s{58+i}, 3')
    k.I('s_lshl_b32 s24, s20, 1')
    k.I('s_add_u32 s24, s24, s57')
    k.I('s_lshl_b32 s24, s24, 2')
    k.I(f's_mul_i32 s33, s22, {12*1024}')
    k.I(f's_add_u32 s33, s33, {HH}')
    for i in range(4):
        k.I(f's_add_u32 s{42+i}, s{58+i}, s24')
        k.I(f's_mul_i32 s{42+i}, s{42+i}, 49152')
        k.I(f's_add_u32 s{42+i}, s{42+i}, s33')
    k.I('s_add_u32 s30, s24, s22')
    k.I(f's_mul_i32 s50, s30, {16*1280}')
    k.I('s_lshr_b32 s31, s30, 3')
    k.I('s_lshl_b32 s31, s31, 7')
    k.I('s_and_b32 s30, s30, 7')
    k.I('s_lshl_b32 s30, s30, 2')
    k.I('s_add_u32 s31, s31, s30')
    k.I('s_mul_i32 s31, s31, 1280')
    k.I('s_mul_i32 s30, s56, 160')
    k.I('s_add_u32 s31, s31, s30')
    k.I('s_add_u32 s50, s50, s30')
    k.I(f's_add_u32 s50, s50, {X1}')
    k.I(f'v_and_b32 v{t0}, 3, v{vl}')
    k.I(f'v_lshlrev_b32 v{t0}, 5, v{t0}')
    k.I(f'v_bfe_u32 v{t1}, v{vl}, 2, 2')
    k.I(f'v_add_u32 v{t0}, v{t0}, v{t1}')
    k.I(f'v_mul_u32_u24 v{oo}, 1280, v{t0}')
    k.I(f'v_mul_u32_u24 v{go}, 40, v{vq}')
    k.I(f'v_add_u32 v{oo}, v{oo}, v{go}')
    k.I(f'v_mul_u32_u24 v{ox}, 1280, v{vi}')
    k.I(f'v_add_u32 v{ox}, v{ox}, v{go}')
    k.I(f'v_lshlrev_b32 v{go}, 1, v{go}')
    k.I('s_lshl_b32 s30, s30, 1')
    k.I(f's_add_u32 s30, s30, {5*2560}')
    for dt in range(5): k.I(f'buffer_load_dwordx4 {vr(gb+4*dt,4)}, v{go}, s[12:15], s30 offen offset:{16*dt}')
    k.wait_tag('h')
    handoff(k, 'H2', 55, hs)
    mark(k, 9)
    order = [1, 2, 3, 0]
    hl = []
    for oi, i in enumerate(order):
        for kp in range(12):
            n = 12*oi + kp
            g = [f'buffer_load_dwordx4 {vr(hb+4*(n%NB),4)}, v{vo16}, s[12:15], s{42+i} offen offset:{1024*(kp%4)} sc1']
            if kp % 4 == 3: g.append(f's_add_u32 s{42+i}, s{42+i}, 4096')
            hl.append(g)
    xl = [[f'buffer_load_dwordx4 {vr(x1r,4)}, v{ox}, s[12:15], s50 offen sc1'],
          [f'buffer_load_dwordx4 {vr(x1r+4,4)}, v{ox}, s[12:15], s50 offen offset:16 sc1'],
          [f'buffer_load_dwordx2 {vr(x1r+8,2)}, v{ox}, s[12:15], s50 offen offset:32 sc1']]
    hl += xl
    FPRE = env('F_PRE', 14)
    for _ in range(FPRE): emit(hl.pop(0))
    rd = va.get(0)
    for oi, i in enumerate(order):
        a = fa[oi & 1]
        extra = []
        if oi >= 1:
            pi = order[oi-1]; pa = fa[(oi-1) & 1]
            extra.append([f's_mul_i32 s24, s{58+pi}, {15*1024}', f'v_add_u32 v{lw}, s24, v{vo16}'])
            for dt in range(5): extra.append([f'ds_write_b128 v{lw}, {vr(pa+4*dt,4)} offset:{((pi-1)*5+dt)*1024}'])
        for kp in range(12):
            n = 12*oi + kp
            for dt in range(5):
                dd = vr(a+4*dt, 4)
                k.I(f'{MF16} {dd}, {ar((5*kp+dt)*4,4)}, {vr(hb+4*(n%NB),4)}, {dd if kp else 0}')
                if dt == 1 and kp >= 1 and extra: emit(extra.pop(0))
                if dt == 3 and kp >= 1 and extra: emit(extra.pop(0))
            if hl: emit(hl.pop(0))
            if oi == 3 and kp == 4:
                k.I(f's_mul_i32 s24, s22, {15*1024}')
                k.I(f'v_add_u32 v{lw}, s24, v{vo16}')
                k.barrier()
                r0 = fa[0]; r1 = hb; r2 = hb + 20
                for dt in range(5):
                    extra.append([f'ds_read_b128 {vr(r0+4*dt,4)}, v{lw} offset:{(0*5+dt)*1024}',
                                  f'ds_read_b128 {vr(r1+4*dt,4)}, v{lw} offset:{(1*5+dt)*1024}',
                                  f'ds_read_b128 {vr(r2+4*dt,4)}, v{lw} offset:{(2*5+dt)*1024}'])
                for dt in range(5):
                    g = []
                    for p in (0, 2): g.append(f'v_pk_add_f32 {vr(r0+4*dt+p,2)}, {vr(r0+4*dt+p,2)}, {vr(r1+4*dt+p,2)}')
                    for p in (0, 2): g.append(f'v_pk_add_f32 {vr(r0+4*dt+p,2)}, {vr(r0+4*dt+p,2)}, {vr(r2+4*dt+p,2)}')
                    extra.append(g)
                for h_ in range(2):
                    g = []
                    for j in range(5*h_, 5*h_+5):
                        g.append(f'v_lshlrev_b32 v{xf+2*j}, 16, v{x1r+j}')
                        g.append(f'v_and_b32 v{xf+2*j+1}, 0xffff0000, v{x1r+j}')
                    extra.append(g)
        while extra: emit(extra.pop(0))
    own = fa[1]; r0 = fa[0]
    for dt in range(5):
        for p in (0, 2): k.I(f'v_pk_add_f32 {vr(own+4*dt+p,2)}, {vr(own+4*dt+p,2)}, {vr(r0+4*dt+p,2)}')
    for dt in range(5):
        for p in (0, 2): k.I(f'v_pk_fma_f32 {vr(own+4*dt+p,2)}, {vr(own+4*dt+p,2)}, {vr(gb+4*dt+p,2)}, {vr(xf+4*dt+p,2)}')
    for dt in range(5):
        for p in (0, 2): k.I(f'v_cvt_pk_bf16_f32 v{x1r+2*dt+p//2}, v{own+4*dt+p}, v{own+4*dt+p+1}')
    k.I(f'buffer_store_dwordx4 {vr(x1r,4)}, v{oo}, s[36:39], s31 offen')
    k.I(f'buffer_store_dwordx4 {vr(x1r+4,4)}, v{oo}, s[36:39], s31 offen offset:16')
    k.I(f'buffer_store_dwordx2 {vr(x1r+8,2)}, v{oo}, s[36:39], s31 offen offset:32')
    stamp_end(k, 3, 4)
    k.label('LD_exit')
    k.I('s_endpgm')
    return k, (256, 256, 163840)
```

```python
import os, math
import gen
from gen import *
from gen2 import *
from gen4 import YT, YT_ST, WS_END4
from gen import mark, stamp_begin, stamp_end

class Rec:
    def __init__(self): self.l = []
    def I(self, t, **kw): self.l.append(t)
def rec(fn, *a):
    r = Rec(); fn(r, *a); return r.l
def merge(k, main, fill, per):
    fill = list(fill)
    for m in main:
        k.I(m)
        for _ in range(per):
            if fill: k.I(fill.pop(0))
    return fill

def signal(k, name, cnt_sgpr, vtmp, noflush=False):
    k.I('s_barrier')
    st = k.save_state()
    k.I('s_cmp_lg_u32 s22, 0')
    k.I(f's_cbranch_scc1 L{name}_sig', noflush=noflush)
    k.I('s_mov_b64 exec, 1')
    k.I(f'buffer_atomic_add v{vtmp+1}, v{vtmp}, s[12:15], s{cnt_sgpr} offen sc1')
    k.I('s_mov_b64 exec, -1')
    if noflush: k.raw(f'L{name}_sig:')
    else: k.label(f'L{name}_sig')
    k.restore_state(st)
    k.vm.append((set(), None)) if False else None
def poll(k, name, cnt_sgpr, vtmp, vres):
    st = k.save_state()
    k.I('s_cmp_lg_u32 s22, 3')
    k.I(f's_cbranch_scc1 L{name}_done')
    k.I('s_mov_b32 s24, 0x100000')
    k.label(f'L{name}_poll')
    k.I(f'buffer_load_dword v{vres}, v{vtmp}, s[12:15], s{cnt_sgpr} offen sc1')
    k.waitcnt(vm=0)
    k.I(f'v_readfirstlane_b32 s33, v{vres}')
    k.I('s_sub_u32 s24, s24, 1')
    k.I(f's_cbranch_scc1 L{name}_done')
    k.I('s_cmp_lt_u32 s33, 16')
    k.I(f's_cbranch_scc1 L{name}_poll')
    k.label(f'L{name}_done')
    k.restore_state(st)
    k.I('s_barrier')

TAB = WS_END4
WS_END6 = TAB + 24 * 1024
class Fix:
    def __init__(self, seq): self.seq = list(seq)
    def get(self, *a): return self.seq.pop(0)
def role_tab(k):
    c0 = 24; f40 = c0; f16 = c0 + 62; cs = c0 + 68; sn = c0 + 80
    vi, vq, fi, fq, fq4, vo, t8, tmp = 2, 3, 4, 5, 6, 7, 8, 16
    k.I(f'v_and_b32 v{vi}, 15, v0')
    k.I(f'v_lshrrev_b32 v{vq}, 4, v0')
    k.I(f'v_cvt_f32_u32 v{fi}, v{vi}')
    k.I(f'v_cvt_f32_u32 v{fq}, v{vq}')
    k.I(f'v_mul_f32 v{fq4}, 4.0, v{fq}')
    k.I(f'v_lshlrev_b32 v{vo}, 4, v0')
    gen_f40(k, Fix([f40, t8, t8+4, t8+6]), fi, fq, True)
    gen_tw640(k, Fix([cs, sn, t8]), fi, fq4)
    k.I(f'v_cmp_gt_u32 vcc, 8, v{vi}')
    for r in range(4):
        k.I(f'v_cndmask_b32 v{cs+8+r}, 0, v{cs+8+r}, vcc')
        k.I(f'v_cndmask_b32 v{sn+8+r}, 0, v{sn+8+r}, vcc')
    k.I(f'v_mul_f32 v{t8}, {fhex(1.0/16)}, v{fi}')
    k.I(f'v_mul_f32 v{t8+1}, v{fq4}, v{t8}')
    for j in range(4): k.I(f'v_fmamk_f32 v{tmp+4+j}, v{t8}, {fhex(float(j))}, v{t8+1}')
    for j in range(4):
        k.I(f'v_cos_f32 v{tmp+j}, v{tmp+4+j}')
        k.I(f'v_sin_f32 v{tmp+4+j}, v{tmp+4+j}')
    for p in range(2):
        k.I(f'v_cvt_pk_bf16_f32 v{f16+p}, v{tmp+4+2*p}, v{tmp+5+2*p}')
        k.I(f'v_cvt_pk_bf16_f32 v{f16+2+p}, v{tmp+2*p}, v{tmp+1+2*p}')
        k.I(f'v_cvt_pk_bf16_f32 v{f16+4+p}, -v{tmp+4+2*p}, -v{tmp+5+2*p}')
    k.srd(24, 4, 23 * 1024, TAB)
    for i in range(23):
        if i % 4 == 0: k.I(f's_mov_b32 s28, {1024*i}')
        k.I(f'buffer_store_dwordx4 {vr(c0+4*i,4)}, v{vo}, s[24:27], s28 offen offset:{1024*(i%4)}')

XNT = os.environ.get('XNT', '')
def gen_DEF7():
    k = Kernel('kd_kernel')
    PL = 2592
    HB = 12288; XB = HB + 10240; XL = 32768; MLD = XL + 4 * 2560; TL = MLD + 8192
    W_ST = env('W_ST', 8); W_PL = env('W_PL', 6); W_A = env('W_A', 4)
    stamp_begin(k)
    k.I('s_cmp_ge_u32 s2, 256')
    k.I('s_cbranch_scc1 LD_exit')
    k.I(f's_load_dwordx2 s[4:5], s[0:1], {KA["ws"]}')
    k.I(f's_load_dwordx2 s[6:7], s[0:1], {KA["x"]}')
    k.I(f's_load_dwordx2 s[40:41], s[0:1], {KA["out"]}')
    va = VAlloc(2)
    hs = va.get(2, 2); vl = va.get(); vo16 = va.get(); vW = va.get(); vi = va.get(); vq = va.get(); oh = va.get(); oh2 = va.get(); hr = va.get()
    keep = va.n
    so = va.get(); wu = va.get(); wv = va.get(); ra = va.get(); xo = va.get(); mo = va.get(); wh = va.get(3); wx = va.get(); g0 = va.get(); g2 = va.get()
    ch = va.get(12, 4); xr = va.get(12, 2); mg = va.get(12, 4); mc = va.get(12, 4); ms = va.get(12, 4)
    d1 = va.get(24, 4); d2 = va.get(24, 4); dat = va.get(12, 2); tmp = va.get(8, 2)
    f40 = va.get(92, 4); f16 = f40 + 62; cs = f40 + 68; sn = f40 + 80
    tv = VAlloc(d1, d1 + 48)
    ta = tv.get(4); tk = tv.get(); cb_ = tv.get(); tq = tv.get(); pz = tv.get(4, 4)
    k.I('v_lshrrev_b32 v1, 6, v0')
    k.I(f'v_and_b32 v{vl}, 63, v0')
    k.I('v_readfirstlane_b32 s22, v1')
    k.I('s_and_b32 s20, s2, 6')
    k.I('s_lshl_b32 s20, s20, 1')
    k.I('s_lshr_b32 s21, s2, 6')
    k.I('s_add_u32 s20, s20, s21')
    k.I('s_bfe_u32 s56, s2, 0x30003')
    k.I('s_and_b32 s57, s2, 1')
    k.I('s_lshl_b32 s21, s57, 3')
    k.I('s_add_u32 s21, s21, s56')
    k.I('s_lshl_b32 s25, s20, 4')
    k.I('s_add_u32 s3, s25, s21')
    k.I(f's_mul_i32 s25, s3, {YT_ST}')
    k.I('s_add_u32 s26, s25, 4096')
    k.I('s_add_u32 s27, s25, 8192')
    k.I(f'v_lshlrev_b32 v{so}, 4, v0')
    k.I(f'v_lshlrev_b32 v{vo16}, 4, v{vl}')
    k.I(f'v_lshrrev_b32 v{ta+1}, 1, v0')
    k.I(f'v_cmp_ge_u32 s[34:35], 64, v{ta+1}')
    k.I('s_lshl_b32 s23, s20, 7')
    k.I('s_lshl_b32 s24, s21, 1')
    k.I('s_add_u32 s23, s23, s24')
    k.I('s_and_b32 s24, s22, 1')
    k.I('s_lshl_b32 s24, s24, 6')
    k.I('s_add_u32 s23, s23, s24')
    k.I('s_lshr_b32 s24, s22, 1')
    k.I('s_add_u32 s23, s23, s24')
    k.I('s_mul_i32 s28, s23, 1280')
    k.I(f's_add_u32 s29, s28, {32*1280}')
    k.I(f's_mul_i32 s30, s22, 2560')
    k.I(f's_add_u32 s30, s30, {XL}')
    k.I('s_lshl_b32 s31, s22, 11')
    k.I('s_lshl_b32 s32, s21, 2')
    k.I('s_add_u32 s32, s32, s22')
    k.I('s_mul_i32 s24, s32, 61440')
    k.I(f's_add_u32 s24, s24, {WGU}')
    k.I(f'v_add_u32 v{vW}, s24, v{vo16}')
    k.I(f'v_and_b32 v{vi}, 15, v{vl}')
    k.I(f'v_lshrrev_b32 v{vq}, 4, v{vl}')
    addr = []
    A = addr.append
    A(f'v_lshrrev_b32 v{tq}, 1, v{vq}')
    A(f'v_mad_u32_u24 v{cb_}, v{vi}, 5, v{tq}')
    A(f'v_and_b32 v{tk}, 1, v{vq}')
    A(f'v_mul_u32_u24 v{oh}, 49152, v{tk}')
    A(f'v_lshlrev_b32 v{oh2}, 2, v{oh}')
    A(f'v_lshl_add_u32 v{oh}, v{tq}, 8, v{oh}')
    A(f'v_lshl_add_u32 v{oh}, v{vi}, 4, v{oh}')
    A(f'v_mul_u32_u24 v{tq}, 49152, v{tq}')
    A(f'v_add_u32 v{oh2}, v{oh2}, v{tq}')
    A(f'v_lshl_add_u32 v{oh2}, v{vi}, 4, v{oh2}')
    A(f'v_lshl_add_u32 v{tk}, v1, 1, v{tk}')
    for T in range(3):
        A(f'v_add_u32 v{tq}, {2*T}, v{cb_}')
        A(f'v_xor_b32 v{wh+T}, v{tq}, v{tk}')
        A(f'v_and_b32 v{wh+T}, 7, v{wh+T}')
        A(f'v_lshl_add_u32 v{wh+T}, v{tq}, 3, v{wh+T}')
        A(f'v_lshlrev_b32 v{wh+T}, 4, v{wh+T}')
    A(f'v_mul_u32_u24 v{wx}, 1280, v{tk}')
    A(f'v_lshl_add_u32 v{wx}, v{cb_}, 4, v{wx}')
    A(f'v_lshrrev_b32 v{tq}, 3, v0')
    A(f'v_xor_b32 v{g0}, v{tq}, v0')
    A(f'v_and_b32 v{g0}, 7, v{g0}')
    A(f'v_lshlrev_b32 v{g0}, 4, v{g0}')
    A(f'v_lshl_add_u32 v{g0}, v{tq}, 8, v{g0}')
    for t in addr: k.I(t)
    k.I(f'v_and_b32 v{ta}, 1, v0')
    k.I(f'v_mul_u32_u24 v{wu}, {2*PL}, v{ta}')
    k.I(f'v_sub_u32 v{wv}, 384, v{ta+1}')
    k.I(f'v_lshl_add_u32 v{wv}, v{wv}, 2, v{wu}')
    k.I(f'v_lshl_add_u32 v{wu}, v{ta+1}, 2, v{wu}')
    k.I(f's_mul_i32 s33, s22, {PL}')
    k.I(f'v_lshl_add_u32 v{ra}, v{vl}, 2, s33')
    k.I(f'v_mov_b32 v{dat+10}, 0'); k.I(f'v_mov_b32 v{dat+11}, 0')
    k.I(f'v_mul_u32_u24 v{xo}, 80, v{vi}')
    k.I(f'v_lshl_add_u32 v{xo}, v{vq}, 3, v{xo}')
    k.I(f'v_lshlrev_b32 v{mo}, 1, v{xo}')
    k.I(f'v_add_u32 v{xo}, s30, v{xo}')
    for j in range(8, 12): k.I(f'v_mov_b32 v{xr+j}, 0')
    k.I(f's_mul_i32 s58, s20, {8*49152}')
    k.I('s_mul_i32 s24, s32, 768')
    k.I('s_add_u32 s58, s58, s24')
    k.I(f's_add_u32 s58, s58, {HH}')
    for i in range(1, 4): k.I(f's_add_u32 s{58+i}, s58, {2*i*49152}')
    k.I('s_mul_i32 s42, s22, 6144')
    k.srd(16, 4, 256 * YT_ST, YT)
    for rho in range(3):
        if rho == 2: k.I('s_mov_b64 exec, s[34:35]')
        k.I(f'buffer_load_dwordx4 {vr(ch+4*rho,4)}, v{so}, s[16:19], s{25+rho} offen')
    k.I('s_mov_b64 exec, -1')
    k.srd(12, 4, WS_END6)
    k.I(f's_add_u32 m0, s42, {TL}')
    k.I(f's_add_u32 s43, s42, {TAB}')
    for i in range(4): k.I(f'buffer_load_dwordx4 v{vo16}, s[12:15], s43 offen offset:{1024*i} lds', tag='md')
    k.I(f's_add_u32 m0, s42, {TL+4096}')
    k.I(f's_add_u32 s43, s43, 4096')
    for i in range(2): k.I(f'buffer_load_dwordx4 v{vo16}, s[12:15], s43 offen offset:{1024*i} lds', tag='md')
    k.I(f's_add_u32 m0, s31, {MLD}')
    k.I(f's_add_u32 s31, s31, {MODN + 2*2560}')
    k.I(f'buffer_load_dwordx4 v{vo16}, s[12:15], s31 offen lds', tag='md')
    k.I(f'buffer_load_dwordx4 v{vo16}, s[12:15], s31 offen offset:1024 lds', tag='md')
    mark(k, 1)
    def wload(n):
        if env('NO_W', 0): return [f'v_add_u32 v{vW}, 0, v{vW}']
        g = [f'buffer_load_dwordx4 {ar(4*n,4)}, v{vW}, s[12:15], 0 offen offset:{1024*(n%4)}']
        if n % 4 == 3: g.append(f'v_add_u32 v{vW}, 0x1000, v{vW}')
        return g
    k.bg = [wload(n) for n in range(60)]
    k.emit_bg(env('W_00', 8))
    tb_ = g2
    k.I(f'v_add_u32 v{tb_}, {TL}, v{vo16}')
    mark(k, 2)
    be = k.bg_every; k.bg_every = 0
    for rho in range(3):
        if rho == 2: k.I('s_mov_b64 exec, s[34:35]')
        for pr in range(2):
            k.I(f'ds_write_b32 v{wu}, v{ch+4*rho+2*pr} offset:{pr*PL+512*rho}')
            k.I(f'ds_write_b32 v{wv}, v{ch+4*rho+2*pr+1} offset:{pr*PL+512*(2-rho)}')
    k.I('s_mov_b64 exec, -1')
    k.srd(8, 6, S * D * 2)
    for c in range(2):
        k.I(f's_add_u32 m0, s30, {1280*c}')
        k.I(f'buffer_load_dwordx4 v{vo16}, s[8:11], s{28+c} offen{XNT} lds', tag='xx')
        k.I('s_mov_b64 exec, 0xffff')
        k.I(f'buffer_load_dwordx4 v{vo16}, s[8:11], s{28+c} offen offset:1024{XNT} lds', tag='xx')
        k.I('s_mov_b64 exec, -1')
    k.emit_bg(env('W_0', 2))
    k.wait_tag('md')
    k.barrier()
    mark(k, 3)
    for p in range(5):
        k.I(f'ds_read2st64_b32 {vr(dat+2*p,2)}, v{ra} offset0:{2*p} offset1:{2*p+1}')
    def s1(T):
        o = []
        for kap in range(3):
            for c in range(2):
                dd = vr(d1 + (2*T+c)*4, 4)
                o.append(f'{MF16} {dd}, {vr(dat+4*kap,4)}, {vr(f40+(2*T+c)*10+4*kap,4)}, {dd if kap else 0}')
        return o
    tl = [f'ds_read_b128 {vr(f40+4*i,4)}, v{tb_} offset:{1024*i}' for i in range(23)]
    for t in tl[:9]: k.I(t)
    k.bg_every = env('BG2', 12)
    rest = merge(k, s1(0) + s1(1), tl[9:], 1)
    for t in rest: k.I(t)
    k.bg_every = 0
    for T in range(3): k.I(f'ds_read_b128 {vr(mg+4*T,4)}, v{mo} offset:{MLD+64*T}')
    a2 = ch; xf = f40
    cm = [rec(cmul4, d1+8*T, d1+8*T+4, cs+4*T, sn+4*T, a2+4*T, tmp, True) for T in range(3)]
    def s2(T): return [f'{MF16} {vr(d2+(2*T+c)*4,4)}, {vr(a2+4*T,4)}, {vr(f16+(0 if c else 2),4)}, 0' for c in range(2)]
    rest = merge(k, s1(2), cm[0], 2)
    for t in rest: k.I(t)
    k.wait_tag('xx')
    for T in range(3):
        if T == 2: k.I('s_mov_b32 exec_hi, 0')
        for c in range(2):
            k.I(f'ds_read_b64 {vr(xr+(2*T+c)*2,2)}, v{xo} offset:{1280*c+32*T}')
    k.I('s_mov_b64 exec, -1')
    k.bg_every = env('BG2', 12)
    for t in s2(0) + cm[1] + s2(1) + cm[2] + s2(2): k.I(t)
    for T in range(3):
        k.I(f'ds_read_b128 {vr(ms+4*T,4)}, v{mo} offset:{MLD+2560+64*T}')
        k.I(f'ds_read_b128 {vr(mc+4*T,4)}, v{mo} offset:{MLD+5120+64*T}')
    st_ = f40 + 24
    for T in range(3):
        for i in range(4*T, 4*T+4):
            k.I(f'v_lshlrev_b32 v{xf+2*i}, 16, v{xr+i}')
            k.I(f'v_and_b32 v{xf+2*i+1}, 0xffff0000, v{xr+i}')
        for c in range(2):
            for p in (0, 2):
                r = (2*T+c)*4+p
                k.I(f'v_pk_fma_f32 {vr(xf+r,2)}, {vr(d2+r,2)}, {vr(mg+4*T+p,2)}, {vr(xf+r,2)}')
        for c in range(2):
            r = xf+(2*T+c)*4
            if T == 0:
                k.I(f'v_pk_add_f32 {vr(st_+2*c,2)}, {vr(r,2)}, {vr(r+2,2)}')
                k.I(f'v_pk_mul_f32 {vr(st_+4+2*c,2)}, {vr(r,2)}, {vr(r,2)}')
            else:
                k.I(f'v_pk_add_f32 {vr(st_+2*c,2)}, {vr(st_+2*c,2)}, {vr(r,2)}')
                k.I(f'v_pk_fma_f32 {vr(st_+4+2*c,2)}, {vr(r,2)}, {vr(r,2)}, {vr(st_+4+2*c,2)}')
        for c in range(2):
            r = xf+(2*T+c)*4+2
            if T: k.I(f'v_pk_add_f32 {vr(st_+2*c,2)}, {vr(st_+2*c,2)}, {vr(r,2)}')
            k.I(f'v_pk_fma_f32 {vr(st_+4+2*c,2)}, {vr(r,2)}, {vr(r,2)}, {vr(st_+4+2*c,2)}')
    for i in range(4): k.I(f'v_add_f32 v{st_+2*i}, v{st_+2*i}, v{st_+2*i+1}')
    wave_reduce_to_sgpr(k, [st_, st_+2, st_+4, st_+6], [46, 47, 48, 49])
    po = d1; ph = d1 + 12; hn = d2
    rr = f40 + 32; nmr = f40 + 34
    ln_scalars(k, 46, 48, rr, nmr, tmp)
    for T in range(3):
        for c in range(2):
            for p in (0, 2):
                r = (2*T+c)*4+p
                k.I(f'v_pk_fma_f32 {vr(hn+r,2)}, {vr(xf+r,2)}, {vr(rr,2)}, {vr(nmr,2)} op_sel:[0,{c},{c}] op_sel_hi:[1,{c},{c}]')
        for c in range(2):
            for p in (0, 2):
                r = hn+(2*T+c)*4+p
                k.I(f'v_pk_fma_f32 {vr(r,2)}, {vr(r,2)}, {vr(mc+4*T+p,2)}, {vr(ms+4*T+p,2)}')
        for j in range(4):
            k.I(f'v_cvt_pk_bf16_f32 v{ph+4*T+j}, v{hn+8*T+2*j}, v{hn+8*T+2*j+1}')
        if T:
            k.I(f'v_permlane16_swap_b32 v{ph+4*T-4}, v{ph+4*T-2}')
            k.I(f'v_permlane16_swap_b32 v{ph+4*T-3}, v{ph+4*T-1}')
            k.I(f'ds_write_b128 v{wh+T-1}, {vr(ph+4*T-4,4)} offset:{HB}')
    k.bg_every = 0
    for j in range(2): k.I(f'v_cvt_pk_bf16_f32 v{po+j}, v{xf+2*j}, v{xf+2*j+1}')
    k.I(f'v_permlane16_swap_b32 v{ph+8}, v{ph+10}')
    k.I(f'v_permlane16_swap_b32 v{ph+9}, v{ph+11}')
    k.I('s_mov_b32 exec_hi, 0')
    k.I(f'ds_write_b128 v{wh+2}, {vr(ph+8,4)} offset:{HB}')
    k.I('s_mov_b64 exec, -1')
    k.I('s_lshr_b32 s42, s3, 1')
    k.I('s_mul_i32 s42, s42, 20480')
    k.I('s_and_b32 s24, s21, 1')
    k.I('s_lshl_b32 s24, s24, 7')
    k.I('s_add_u32 s42, s42, s24')
    k.I(f's_add_u32 s42, s42, {H2}')
    k.I('s_add_u32 s44, s42, 8192')
    k.I('s_add_u32 s45, s42, 16384')
    k.barrier()
    mark(k, 4)
    sd = mg
    for rho in range(3):
        k.I(f'ds_read_b128 {vr(sd+4*rho,4)}, v{so} offset:{HB+4096*rho}')
    for j in range(2, 12): k.I(f'v_cvt_pk_bf16_f32 v{po+j}, v{xf+2*j}, v{xf+2*j+1}')
    k.I(f'buffer_store_dwordx4 {vr(sd,4)}, v{g0}, s[12:15], s42 offen sc1', tag='h2')
    k.I(f'buffer_store_dwordx4 {vr(sd+4,4)}, v{g0}, s[12:15], s44 offen sc1', tag='h2')
    k.I('s_cmp_lt_u32 s22, 2')
    k.I('s_cselect_b64 exec, -1, 0')
    k.I(f'buffer_store_dwordx4 {vr(sd+8,4)}, v{g0}, s[12:15], s45 offen sc1', tag='h2')
    k.I('s_mov_b64 exec, -1')
    for T in range(3):
        k.I(f'v_permlane16_swap_b32 v{po+4*T}, v{po+4*T+2}')
        k.I(f'v_permlane16_swap_b32 v{po+4*T+1}, v{po+4*T+3}')
    for T in range(3):
        if T == 2: k.I('s_mov_b32 exec_hi, 0')
        k.I(f'ds_write_b128 v{wx}, {vr(po+4*T,4)} offset:{XB+32*T}')
    k.I('s_mov_b64 exec, -1')
    k.I(f's_sub_u32 s24, s30, {XL - XB}')
    k.I(f'v_add_u32 v{g2}, s24, v{vo16}')
    k.I('s_mul_i32 s43, s3, 10240')
    k.I(f's_add_u32 s43, s43, s30')
    k.I(f's_add_u32 s43, s43, {X1 - XL}')
    k.waitcnt(lgkm=0)
    sx = mc
    for i in range(3): k.I(f'ds_read_b128 {vr(sx+4*i,4)}, v{g2} offset:{1024*i}')
    for i in range(3):
        if i == 2: k.I('s_mov_b32 exec_hi, 0')
        k.I(f'buffer_store_dwordx4 {vr(sx+4*i,4)}, v{vo16}, s[12:15], s43 offen offset:{1024*i} sc1')
    k.I('s_mov_b64 exec, -1')
    k.emit_bg(W_ST)
    k.I('s_mul_i32 s24, s20, 163840')
    k.I(f's_add_u32 s24, s24, {H2}')
    k.I('s_add_u32 s16, s4, s24')
    k.I('s_addc_u32 s17, s5, 0')
    k.I('s_mov_b32 s18, 163840')
    k.I('s_mov_b32 s19, 0x00020000')
    k.I('s_and_b32 s52, s22, 2')
    k.I('s_add_u32 s52, s52, s22')
    k.I('s_mul_i32 s52, s52, 20480')
    k.I('s_add_u32 s53, s52, 40960')
    k.I('s_lshl_b32 s54, s20, 8')
    k.I(f's_add_u32 s54, s54, {FLAGS}')
    k.I('s_add_u32 s55, s54, 4096')
    k.I('s_add_u32 s51, s54, 128')
    k.srd(36, 40, S * D * 2)
    k.I(f'v_mov_b32 v{hs}, 0')
    k.I(f'v_mov_b32 v{hs+1}, 1')
    k.wait_tag('h2')
    mark(k, 5)
    signal(k, 'H1', 54, hs)
    k.emit_bg(W_PL)
    poll(k, 'H1', 54, hs, hr)
    mark(k, 6)
    va = VAlloc(keep)
    rb = [va.get(), va.get()]; vD = va.get()
    oo = va.get(); ox = va.get(); lw = va.get(); lr = va.get(); t0 = va.get(); t1 = va.get()
    act = va.get(32, 4); accs = [va.get(48, 4), va.get(48, 4)]; pk = va.get(12, 4)
    gb = va.get(8, 4); x1r = va.get(16, 4)
    NV = (256 - va.n) // 4
    wdv = va.get(4 * NV, 4)
    def wdreg(n): return vr(wdv + 4*n, 4) if n < NV else ar(4*(n - NV), 4)
    def emit(grp):
        for t in grp:
            if isinstance(t, tuple): k.I(t[0], tag=t[1])
            else: k.I(t)
    def dma(ps, g):
        out = []
        for j in range(4):
            gr = [(f'buffer_load_dwordx4 v{vo16}, s[16:19], m0 offen offset:{1024*j} sc1 lds', ('a', ps, g, j // 2))]
            if j == 0: gr = [f's_add_u32 m0, s{52+ps}, {4096*g}'] + gr
            out.append(gr)
        return out
    NPRE = env('E_PRE', 2)
    for g in range(NPRE):
        for grp in dma(0, g): emit(grp)
    k.emit_bg(W_A)
    late = list(k.bg); k.bg = []
    print('late weight loads', len(late), 'NV', NV)
    k.I(f'v_mov_b32 v{rb[0]}, v{vo16}')
    k.I(f'v_add_u32 v{rb[1]}, {4*20480}, v{vo16}')
    def aread(ps, i, kap):
        off = ((i & 1) + 2*ps) * 20480 + 1024*kap
        base = rb[i >> 1]
        return f'ds_read_b128 {vr(act+16*(kap&1)+4*i,4)}, v{base} offset:{off - (40960 if ps else 0)}'
    k.I('s_lshl_b32 s24, s56, 2')
    k.I('s_add_u32 s24, s24, s22')
    k.I('s_mul_i32 s24, s24, 61440')
    k.I(f's_add_u32 s24, s24, {WD}')
    k.I(f'v_add_u32 v{vD}, s24, v{vo16}')
    def dload(n):
        if env('NO_WD', 0): return [f'v_add_u32 v{vD}, 0, v{vD}']
        g = [f'buffer_load_dwordx4 {wdreg(n)}, v{vD}, s[12:15], 0 offen offset:{1024*(n%4)}']
        if n % 4 == 3: g.append(f'v_add_u32 v{vD}, 0x1000, v{vD}')
        return g
    RS = 336; PT = 16 * RS
    k.I('s_lshl_b32 s24, s20, 1')
    k.I('s_add_u32 s24, s24, s57')
    k.I('s_lshl_b32 s24, s24, 2')
    k.I(f's_mul_i32 s33, s22, {12*1024}')
    k.I(f's_add_u32 s33, s33, {HH}')
    k.I('s_mul_i32 s42, s24, 49152')
    k.I('s_add_u32 s42, s42, s33')
    for i in range(1, 4): k.I(f's_add_u32 s{42+i}, s42, {49152*i}')
    k.I(f'v_mul_u32_u24 v{t0}, 26, v{vl}')
    k.I(f'v_lshrrev_b32 v{t0}, 8, v{t0}')
    k.I(f'v_mul_u32_u24 v{t1}, 10, v{t0}')
    k.I(f'v_sub_u32 v{t1}, v{vl}, v{t1}')
    k.I(f'v_mul_u32_u24 v{lr}, {RS}, v{t0}')
    k.I(f'v_lshl_add_u32 v{lr}, v{t1}, 5, v{lr}')
    k.I(f's_mul_i32 s25, s22, {4*RS}')
    k.I(f'v_add_u32 v{lr}, s25, v{lr}')
    k.I(f'v_mul_u32_u24 v{ox}, 1280, v{t0}')
    k.I(f'v_lshl_add_u32 v{ox}, v{t1}, 4, v{ox}')
    k.I(f'v_mul_u32_u24 v{oo}, {32*1280}, v{t0}')
    k.I(f'v_lshl_add_u32 v{oo}, v{t1}, 4, v{oo}')
    k.I(f'v_lshlrev_b32 v{t1}, 5, v{t1}')
    k.I(f'v_mul_u32_u24 v{lw}, {RS}, v{vi}')
    k.I(f'v_mul_u32_u24 v{t0}, 80, v{vq}')
    k.I(f's_mul_i32 s25, s22, {PT}')
    k.I(f'v_add3_u32 v{lw}, v{lw}, v{t0}, s25')
    k.I('s_mul_i32 s30, s56, 160')
    k.I('s_lshl_b32 s25, s24, 2')
    k.I('s_add_u32 s25, s25, s22')
    k.I(f's_mul_i32 s46, s25, {4*1280}')
    k.I('s_add_u32 s46, s46, s30')
    k.I(f's_add_u32 s46, s46, {X1}')
    for i in range(1, 4): k.I(f's_add_u32 s{46+i}, s46, {16*1280*i}')
    k.I('s_lshl_b32 s25, s20, 7')
    k.I('s_lshl_b32 s26, s57, 4')
    k.I('s_add_u32 s25, s25, s26')
    k.I('s_add_u32 s25, s25, s22')
    k.I('s_mul_i32 s25, s25, 1280')
    k.I('s_add_u32 s25, s25, s30')
    for i in range(1, 4): k.I(f's_add_u32 s{25+i}, s25, {4*1280*i}')
    k.I('s_lshl_b32 s30, s30, 1')
    k.I(f's_add_u32 s30, s30, {5*2560}')
    k.I('s_mov_b32 s34, -1')
    k.I('s_mov_b32 s35, 0xff')
    k.wait_tag(('a', 0, 0, 1))
    k.I('s_barrier')
    mark(k, 7)
    for kp_ in range(2):
        for i in range(4): k.I(aread(0, i, kp_))
    def epi(ps):
        acc = accs[ps]; o = []
        for pr in range(2):
            for j in range(2):
                i = 2*pr + j
                g_ = acc + i*4; u_ = acc + (4+i)*4
                for p in (0, 2): o.append(f'v_pk_mul_f32 {vr(g_+p,2)}, {vr(g_+p,2)}, {vr(u_+p,2)}')
            a_ = acc + (8+2*pr)*4; b_ = a_ + 4
            for r in range(4): o.append(f'v_permlane32_swap_b32 v{a_+r}, v{b_+r}')
            for j in range(2):
                g_ = acc + (2*pr+j)*4
                for p in (0, 2): o.append(f'v_cvt_pk_bf16_f32 v{pk+4*pr+2*j+p//2}, v{g_+p}, v{g_+p+1}')
            for p in (0, 2): o.append(f'v_pk_mul_f32 {vr(a_+p,2)}, {vr(a_+p,2)}, {vr(b_+p,2)}')
            o.append(f'v_permlane16_swap_b32 v{pk+4*pr}, v{pk+4*pr+2}')
            o.append(f'v_permlane16_swap_b32 v{pk+4*pr+1}, v{pk+4*pr+3}')
            for p in (0, 2): o.append(f'v_cvt_pk_bf16_f32 v{pk+8+2*pr+p//2}, v{a_+p}, v{a_+p+1}')
            o.append((f'buffer_store_dwordx4 {vr(pk+4*pr,4)}, v{oh}, s[12:15], s{58+2*pr+ps} offen sc1', ('h', ps)))
        o.append(f'v_permlane16_swap_b32 v{pk+8}, v{pk+10}')
        o.append(f'v_permlane16_swap_b32 v{pk+9}, v{pk+11}')
        o.append((f'buffer_store_dwordx4 {vr(pk+8,4)}, v{oh2}, s[12:15], s{58+ps} offen offset:512 sc1', ('h', ps)))
        return o
    slots_h = [vr(accs[0] + 4*i, 4) for i in range(12)] + [ar(240 + 4*i, 4) for i in range(4)] + [ar(4*i, 4) for i in range(60 - NV, 60)]
    NH = len(slots_h)
    horder = [(t, kp) for kp in range(12) for t in (0, 1)] + [(t, kp) for t in (2, 3) for kp in range(12)]
    def hload(n):
        t, kp = horder[n]
        g = [f'buffer_load_dwordx4 {slots_h[n % NH]}, v{vo16}, s[12:15], s{42+t} offen offset:{1024*(kp%4)} sc1']
        if kp % 4 == 3: g.append(f's_add_u32 s{42+t}, s{42+t}, 4096')
        return g
    def check(name, cnt):
        k.I(f'v_readfirstlane_b32 s33, v{hr}')
        k.I('s_cmp_ge_u32 s33, 16')
        k.I(f's_cbranch_scc0 L{name}_spin', noflush=True)
        k.raw(f'L{name}_ok:')
        spins.append((name, cnt))
    spins = []
    q1 = []
    for g in range(NPRE, 5): q1 += dma(0, g)
    q1 += late
    for g in range(5): q1 += dma(1, g)
    q1 += [[f'buffer_load_dwordx4 {vr(gb+4*j,4)}, v{t1}, s[12:15], s30 offen offset:{16*j}'] for j in range(2)]
    nd = 0; nh = 0
    bars = {(0, 2): ('a', 0, 1, 1), (0, 6): ('a', 0, 2, 1), (0, 10): ('a', 0, 4, 1), (0, 18): ('a', 1, 1, 1), (1, 6): ('a', 1, 4, 1), (1, env('K_SA', 12)): None}
    VRATE = env('VRATE', 28) / 120.0
    credit = 1.0
    KA_, KC_ = env('K_A', 17), 20
    ep = []
    fl = []
    since = 99
    def isvm(t): return (t[0] if isinstance(t, tuple) else t).startswith('buffer_')
    for ps in range(2):
        for kap in range(20):
            pend = list(fl) + [t for g in q1 for t in g]
            for mt in range(3):
                assert ps or not any(isinstance(t, str) and t.startswith(f'buffer_load_dwordx4 {ar((3*kap+mt)*4,4)},') for t in pend), ('weight late', kap)
            if (ps, kap) in bars:
                if bars[(ps, kap)]:
                    assert not any(isinstance(t, tuple) and t[1] <= bars[(ps, kap)] for t in pend), ('dma late', ps, kap)
                    k.wait_tag(bars[(ps, kap)])
                if not bars[(ps, kap)]:
                    assert not ep
                    k.wait_tag(('h', 0))
                    signal(k, 'HA', 55, hs, noflush=True)
                else: k.I('s_barrier')
            if ps == 0 and kap == 18:
                k.I(f'v_add_u32 v{rb[0]}, 40960, v{rb[0]}')
                k.I(f'v_add_u32 v{rb[1]}, 40960, v{rb[1]}')
            if ps == 1 and kap == 1:
                for t in fl: emit([t])
                fl = []; ep = epi(0)
            if ps == 1 and kap == KA_: fl.insert(0 if not fl or isvm(fl[0]) else 1, f'buffer_load_dword v{hr}, v{hs}, s[12:15], s55 offen sc1') if False else k.I(f'buffer_load_dword v{hr}, v{hs}, s[12:15], s55 offen sc1')
            for j in range(12):
                i, mt = divmod(j, 3)
                dd = vr(accs[ps]+(mt*4+i)*4, 4)
                k.I(f'{MF16} {dd}, {ar((3*kap+mt)*4,4)}, {vr(act+16*(kap&1)+4*i,4)}, {dd if kap else 0}')
                since += 1; credit = min(credit + VRATE, 1.6)
                rd = None
                if mt == 2:
                    if kap < 18: rd = aread(ps, i, kap + 2)
                    elif ps == 0: rd = aread(1, i, kap - 18)
                if rd: k.I(rd); continue
                if j == 10 and len(k.lg) > 3: k.waitcnt(lgkm=3); continue
                if j == 10 and ps == 1 and kap == 18: k.waitcnt(lgkm=0); continue
                if ep: emit([ep.pop(0)]); continue
                if not fl:
                    free = NV + (3 * kap if ps else 0)
                    if q1: fl = list(q1.pop(0))
                    elif nd < min(free, 60): fl = list(dload(nd)); nd += 1
                if fl and (not isvm(fl[0]) or (since >= 3 and credit >= 1.0)):
                    t = fl.pop(0)
                    if isvm(t): since = 0; credit -= 1.0
                    emit([t])
        if ps == 0 and not env('MD', 0): mark(k, 2)
    for t in fl: emit([t])
    assert not q1
    print('after E: wd loaded', nd, 'h loaded', nh)
    mark(k, 8)
    fq = []
    def need_order():
        o = []; d = nd; h = nh
        for kp in range(12):
            while d < 5*(kp+1): o.append(dload(d)); d += 1
            while h < 2*(kp+1): o.append(hload(h)); h += 1
        return o
    fq = need_order()
    full = list(fq)
    def sorted_q(a_, b_):
        rest = [g for g in b_ if g not in full]
        return [g for g in full if g in a_ or g in b_] + rest
    fq += [['s_mov_b64 exec, s[34:35]', f'buffer_load_dwordx4 {vr(x1r+4*t,4)}, v{ox}, s[12:15], s{46+t} offen sc1', 's_mov_b64 exec, -1'] for t in range(4)]
    pre = [g for g in fq if f'v{vD},' in g[0]] if KC_ >= 20 else []
    fq = [g for g in fq if g not in pre]
    for j, t in enumerate(epi(1)):
        emit([t])
        if j % 6 == 5 and (pre or KC_ < 20): emit((pre or fq).pop(0))
    if KC_ >= 20: check('HA', 55)
    fq = fq[:4] + pre + fq[4:] if False else sorted_q(pre, fq)
    for _ in range(env('F_PRE1', 14)):
        if fq: emit(fq.pop(0))
    mark(k, 9)
    fa = accs[1]
    SL = [0, 81920, 40960, 122880]
    lwb = {0: (lw, 0), 1: (t0, 0), 2: (lw, 40960), 3: (t0, 40960)}
    lrb = {0: (lr, 0), 1: (vD, 0), 2: (lr, 40960), 3: (vD, 40960)}
    def pwrite(t, a): return [f'ds_write_b128 v{lwb[t][0]}, {vr(a+4*dt,4)} offset:{lwb[t][1]+16*dt}' for dt in range(5)]
    def fin_reads(t, r): return [f'ds_read_b128 {vr(r+8*src+4*h_,4)}, v{lrb[t][0]} offset:{lrb[t][1]+PT*src+16*h_}' for src in range(4) for h_ in range(2)]
    def fin_valu(t, r, xf):
        o = []
        for j in range(4):
            o.append(f'v_lshlrev_b32 v{xf+2*j}, 16, v{x1r+4*t+j}')
            o.append(f'v_and_b32 v{xf+2*j+1}, 0xffff0000, v{x1r+4*t+j}')
        for p in range(4): o.append(f'v_pk_add_f32 {vr(r+2*p,2)}, {vr(r+2*p,2)}, {vr(r+8+2*p,2)}')
        for p in range(4): o.append(f'v_pk_add_f32 {vr(r+16+2*p,2)}, {vr(r+16+2*p,2)}, {vr(r+24+2*p,2)}')
        for p in range(4): o.append(f'v_pk_add_f32 {vr(r+2*p,2)}, {vr(r+2*p,2)}, {vr(r+16+2*p,2)}')
        for p in range(4): o.append(f'v_pk_fma_f32 {vr(r+2*p,2)}, {vr(r+2*p,2)}, {vr(gb+2*p,2)}, {vr(xf+2*p,2)}')
        for p in range(4): o.append(f'v_cvt_pk_bf16_f32 v{x1r+4*t+p}, v{r+2*p}, v{r+2*p+1}')
        return o
    OST = os.environ.get('OUT_ST', '')
    def fin_store(t): return ['s_mov_b64 exec, s[34:35]', f'buffer_store_dwordx4 {vr(x1r+4*t,4)}, v{oo}, s[36:39], s{25+t} offen{OST}', 's_mov_b64 exec, -1']
    KB_ = env('K_B', 0)
    fl = []
    def gap(pool):
        nonlocal fl
        if not fl and pool:
            g = pool.pop(0)
            if isinstance(g[0], str) and g[0].startswith('s_mov_b64 exec'): emit(g); return
            fl = list(g)
        if fl: emit([fl.pop(0)])
    for kp in range(12):
        if kp == KB_:
            k.wait_tag(('h', 1))
            signal(k, 'HB', 51, hs, noflush=True)
        for t in range(2):
            for dt in range(5):
                dd = vr(fa+20*t+4*dt, 4)
                k.I(f'{MF16} {dd}, {wdreg(5*kp+dt)}, {slots_h[(2*kp+t) % NH]}, {dd if kp else 0}')
                if dt == 0 or (dt == 1 and fl) or dt == 2 or (dt == 3 and fl): gap(fq)
                if kp == env('K_BL', 10) and t == 1 and dt == 1: k.I(f'buffer_load_dword v{hr}, v{hs}, s[12:15], s51 offen sc1')
    for t in fl: emit([t])
    fl = []
    while fq: emit(fq.pop(0))
    k.I(f'v_add_u32 v{t0}, 81920, v{lw}')
    k.I(f'v_add_u32 v{vD}, 81920, v{lr}')
    if not env('MD', 0): mark(k, 3)
    for t in range(2):
        for w_ in pwrite(t, fa+20*t): k.I(w_)
    k.barrier()
    rA = accs[0]; xfA = act
    for t in range(2):
        for r_ in fin_reads(t, rA if t == 0 else fa): k.I(r_)
    fv = [fin_valu(t, rA if t == 0 else fa, xfA + 8*t) for t in range(2)]
    for v_ in fv[0]: k.I(v_)
    check('HB', 51)
    if not env('MD', 0): mark(k, 4)
    nh = 24
    FP = env('F_PRE', 8)
    for j, v_ in enumerate(fv[1]):
        k.I(v_)
        if j % 3 == 0 and nh < 24 + FP: emit(hload(nh)); nh += 1
    late_st = [fin_store(0), fin_store(1)]
    rB = act
    extra = []
    hq = [hload(n) for n in range(nh, 48)] + late_st
    for t in (2, 3):
        a = fa + 20*(t - 2)
        if t == 3: extra = [[w_] for w_ in pwrite(2, fa)]
        for kp in range(12):
            n = 24 + 12*(t-2) + kp
            for dt in range(5):
                dd = vr(a+4*dt, 4)
                k.I(f'{MF16} {dd}, {wdreg(5*kp+dt)}, {slots_h[n % NH]}, {dd if kp else 0}')
                if dt == 4 and (hq or fl or n < 44): continue
                if (hq or fl) and (dt in (0, 2) or fl): gap(hq)
                elif kp >= 1 and extra: emit(extra.pop(0))
            if t == 3 and kp == 3:
                assert not extra
                k.barrier()
                extra = [[r_] for r_ in fin_reads(2, wdv)] + [[v_] for v_ in fin_valu(2, wdv, xfA)] + [fin_store(2)]
    while extra: emit(extra.pop(0))
    for w_ in pwrite(3, fa + 20): k.I(w_)
    xl = fin_valu(3, wdv + 32, xfA + 8)
    for v_ in xl[:8]: k.I(v_)
    k.barrier()
    for r_ in fin_reads(3, wdv + 32): k.I(r_)
    for v_ in xl[8:]: k.I(v_)
    emit(fin_store(3))
    stamp_end(k, 3, 4)
    k.label('LD_exit')
    k.I('s_endpgm')
    for name, cnt in spins:
        k.label(f'L{name}_spin', fresh=True); k.vm = []; k.lg = []
        k.I('s_mov_b32 s24, 0x100000')
        k.label(f'L{name}_loop')
        k.I(f'buffer_load_dword v{hr}, v{hs}, s[12:15], s{cnt} offen sc1')
        k.waitcnt(vm=0)
        k.I(f'v_readfirstlane_b32 s33, v{hr}')
        k.I('s_sub_u32 s24, s24, 1')
        k.I(f's_cbranch_scc1 L{name}_ok')
        k.I('s_cmp_lt_u32 s33, 16')
        k.I(f's_cbranch_scc1 L{name}_loop')
        k.I(f's_branch L{name}_ok')
    return k, (256, 256, 163840)
```

```python
import sys, math, os
import gen, gen2
from gen import *
from gen2 import *
from gen import mark, stamp_begin, stamp_end

GR = WS_END2
YT = GR + 0x10000
YT_ST = 10496
WS_END4 = YT + 256 * YT_ST
EPOCH = 0x8000
NPF = 7
XNT = os.environ.get('XNT', '')

def tag_issue(k, srd, vz, vt):
    k.I(f'buffer_load_dwordx2 {vr(vt,2)}, v{vz}, s[{srd}:{srd+3}], 0 offen sc1')
def tag_check(k, name, srd, vz, vt, s_tag):
    k.I('s_mov_b32 s3, 0x40000')
    k.waitcnt(vm=0)
    k.label(f'L{name}')
    k.I(f'v_readfirstlane_b32 s{s_tag+1}, v{vt+1}')
    k.I(f'v_readfirstlane_b32 s{s_tag}, v{vt}')
    k.I(f's_cmp_eq_u32 s{s_tag+1}, 1')
    k.I(f's_cbranch_scc1 L{name}_o')
    k.I('s_sub_u32 s3, s3, 1')
    k.I(f's_cbranch_scc1 L{name}_o')
    k.I('s_sleep 2')
    tag_issue(k, srd, vz, vt)
    k.waitcnt(vm=0)
    k.I(f's_branch L{name}')
    k.label(f'L{name}_o')

def role_mod4(k, lexit):
    va = VAlloc(1)
    vrw = va.get(); voff = va.get(); vc = va.get(5); vw = va.get(20, 4); acc = va.get(8, 4); t0 = va.get(); t1 = va.get(); vco = va.get()
    vz = va.get(); vt = va.get(2, 2)
    k.I(f'v_lshrrev_b32 v{vrw}, 3, v0')
    k.I(f'v_mul_u32_u24 v{voff}, 7680, v{vrw}')
    k.I(f'v_and_b32 v{t0}, 7, v0')
    k.I(f'v_lshl_add_u32 v{voff}, v{t0}, 4, v{voff}')
    k.I(f'v_lshlrev_b32 v{vco}, 1, v{vrw}')
    k.I(f'v_mov_b32 v{vz}, 0')
    k.I('s_lshl_b32 s23, s20, 7')
    k.I(f's_mul_i32 s22, s21, {160*7680}')
    k.I('s_add_u32 s23, s23, s22')
    k.I('s_mul_i32 s22, s21, 320')
    k.srd(24, 10, D * 6 * D * 2)
    k.srd(28, 8, D * 2)
    mark(k, 1)
    for i in range(5):
        k.I(f'buffer_load_dwordx4 {vr(vw+4*i,4)}, v{voff}, s[24:27], s23 offen nt')
        if i < 4: k.I(f's_add_u32 s23, s23, {32*7680}')
    for j in range(5): k.I(f'buffer_load_ushort v{vc+j}, v{vco}, s[28:31], s22 offen offset:{64*j}')
    mark(k, 2)
    k.srd(32, 4, 4 * 960 * 16, GR)
    k.srd(52, 56, 256)
    for j in range(8): k.I(f'v_mov_b32 v{acc+j}, 0')
    up = va.get(40, 2)
    for i in range(20):
        k.I(f'v_lshlrev_b32 v{up+2*i}, 16, v{vw+i}')
        k.I(f'v_and_b32 v{up+2*i+1}, 0xffff0000, v{vw+i}')
    tt = va.get(5)
    R = range(5)
    for i in R: k.I(f'v_lshlrev_b32 v{vc+i}, 16, v{vc+i}')
    tag_issue(k, 52, vz, vt)
    mark(k, 3)
    for i in R: k.I(f'v_mul_f32 v{tt+i}, {fhex(-math.log2(math.e))}, v{vc+i}')
    for i in R: k.I(f'v_exp_f32 v{tt+i}, v{tt+i}')
    for i in R: k.I(f'v_add_f32 v{tt+i}, 1.0, v{tt+i}')
    for i in R: k.I(f'v_rcp_f32 v{tt+i}, v{tt+i}')
    for i in R: k.I(f'v_mul_f32 v{vc+i}, v{vc+i}, v{tt+i}')
    for i in R: k.I(f'v_cvt_pk_bf16_f32 v{vc+i}, v{vc+i}, v{vc+i}')
    for i in R: k.I(f'v_and_b32 v{vc+i}, 0xffff0000, v{vc+i}')
    for i in R:
        for j in range(8): k.I(f'v_fmac_f32 v{acc+j}, v{vc+i}, v{up+8*i+j}')
    for j in range(8): k.I(f'v_add_f32_dpp v{acc+j}, v{acc+j}, v{acc+j} row_ror:8 row_mask:0xf bank_mask:0xf')
    k.I(f'v_lshrrev_b32 v{t1}, 4, v0')
    k.I(f'v_lshlrev_b32 v{t1}, 8, v{t1}')
    k.I(f'v_lshl_add_u32 v{t1}, v{t0}, 5, v{t1}')
    k.I('s_mov_b32 exec_lo, 0x00ff00ff')
    k.I('s_mov_b32 exec_hi, 0x00ff00ff')
    k.I(f'ds_write_b128 v{t1}, {vr(acc,4)}')
    k.I(f'ds_write_b128 v{t1}, {vr(acc+4,4)} offset:16')
    k.I('s_mov_b64 exec, -1')
    k.I('v_readfirstlane_b32 s38, v0')
    k.I(f'v_lshlrev_b32 v{t0}, 2, v0')
    k.barrier()
    mark(k, 4)
    k.I('s_cmp_lg_u32 s38, 0')
    k.I(f's_cbranch_scc1 {lexit}')
    for j in range(8):
        k.I(f'ds_read2st64_b32 {vr(vw+2*j,2)}, v{t0} offset0:{2*j} offset1:{2*j+1}')
    k.I('s_sub_u32 s39, s20, 10')
    k.I('s_cmp_lt_u32 s39, 10')
    k.I('s_cselect_b32 s41, 1.0, 0')
    k.I('s_cmp_eq_u32 s21, 0')
    k.I('s_cselect_b32 s41, s41, 0')
    k.I(f's_mul_i32 s45, s21, {960*16}')
    k.I('s_lshl_b32 s44, s20, 8')
    k.I('s_add_u32 s45, s45, s44')
    k.I('s_mov_b32 s40, 0x07060503')
    k.I('s_mov_b32 s42, 0x07060502')
    k.I('s_mov_b32 s43, 0x07060501')
    for j in range(4): k.I(f'v_pk_add_f32 {vr(vw+2*j,2)}, {vr(vw+2*j,2)}, {vr(vw+8+2*j,2)}')
    for j in range(2): k.I(f'v_pk_add_f32 {vr(vw+2*j,2)}, {vr(vw+2*j,2)}, {vr(vw+4+2*j,2)}')
    k.I(f'v_pk_add_f32 {vr(vw,2)}, {vr(vw,2)}, {vr(vw+2,2)}')
    k.I(f'v_add_f32 v{vw}, v{vw}, v{vw+1}')
    k.I(f'v_add_f32 v{vw}, s41, v{vw}')
    for j in range(1, 4): k.I(f'v_mov_b32_dpp v{vw+j}, v{vw} quad_perm:[{j},{j},{j},{j}] row_mask:0xf bank_mask:0xf')
    for j, sel in enumerate((40, 42, 43)): k.I(f'v_perm_b32 v{vw+j}, v{vw+j}, v{vw+3}, s{sel}')
    mark(k, 5)
    tag_check(k, 'A_tag', 52, vz, vt, 58)
    mark(k, 6)
    k.I(f'v_mov_b32 v{vw+3}, s58')
    k.I('s_mov_b32 exec_lo, 0x11111111')
    k.I('s_mov_b32 exec_hi, 0x11111111')
    k.I(f'buffer_store_dwordx4 {vr(vw,4)}, v{t0}, s[32:35], s45 offen sc1')

def unpack_gran(k, g, t, s1, s2):
    k.I(f'v_perm_b32 v{t}, v{g}, v{g+1}, s{s1}')
    k.I(f'v_perm_b32 v{g+3}, v{t}, v{g+2}, s{s2}')

def role_B4(k, boff):
    PL = 5184; ML = 4 * PL
    k.I(f's_sub_u32 s2, s2, {boff}')
    va = VAlloc(2)
    vl = va.get(); xs = va.get(20, 4); md = va.get(20, 4); vo = va.get()
    for i in range(20): k.I(f'v_mov_b32 v{xs+i}, 0')
    ids2(k, vl)
    k.I('s_mul_i32 s28, s23, 1280')
    k.I(f's_add_u32 s29, s28, {32*1280}')
    k.I(f'v_lshlrev_b32 v{vo}, 1, v{vl}')
    k.srd(40, 6, S * D * 2)
    for e in range(10):
        k.I(f'buffer_load_short_d16_hi v{xs+2*e}, v{vo}, s[40:43], s28 offen offset:{128*e}{XNT}')
        k.I(f'buffer_load_short_d16_hi v{xs+2*e+1}, v{vo}, s[40:43], s29 offen offset:{128*e}{XNT}')
    mark(k, 1)
    k.srd(44, 4, XT_SZ, XT)
    k.srd(48, 4, 4 * 960 * 16, GR)
    k.srd(52, 56, 256)
    fi = va.get(); fq = va.get(); fq4 = va.get(); vi = va.get(); vq = va.get()
    k.I(f'v_and_b32 v{vi}, 15, v{vl}')
    k.I(f'v_lshrrev_b32 v{vq}, 4, v{vl}')
    k.I(f'v_cvt_f32_u32 v{fi}, v{vi}')
    k.I(f'v_cvt_f32_u32 v{fq}, v{vq}')
    k.I(f'v_mul_f32 v{fq4}, 4.0, v{fq}')
    va.n = (va.n + 3) // 4 * 4
    f40 = gen_f40(k, va, fi, fq, False)
    va.n = f40 + 62
    cs, sn = gen_tw640(k, va, fi, fq4)
    va.n = sn + 12
    f16 = va.get(8, 2); tmp = va.get(8, 2); ta = md
    dat = va.get(12, 2)
    k.I(f'v_mov_b32 v{dat+10}, 0'); k.I(f'v_mov_b32 v{dat+11}, 0')
    tag_issue(k, 52, dat + 10, dat)
    k.I(f'v_lshrrev_b32 v{ta}, 1, v{vi}')
    k.I(f'v_cvt_f32_u32 v{ta}, v{ta}')
    k.I(f'v_and_b32 v{ta+1}, 1, v{vi}')
    k.I(f'v_cvt_f32_u32 v{ta+1}, v{ta+1}')
    k.I(f'v_mul_f32 v{ta+1}, 0x3e800000, v{ta+1}')
    for U in range(2):
        k.I(f'v_add_f32 v{ta+2}, {fhex(8.0*U)}, v{ta}')
        k.I(f'v_mul_f32 v{ta+2}, {fhex(1.0/16)}, v{ta+2}')
        k.I(f'v_fma_f32 v{ta+3}, v{fq4}, v{ta+2}, v{ta+1}')
        for j in range(4): k.I(f'v_fmamk_f32 v{tmp+4+j}, v{ta+2}, {fhex(float(j))}, v{ta+3}')
        for j in range(4):
            k.I(f'v_cos_f32 v{tmp+j}, v{tmp+4+j}')
            k.I(f'v_sin_f32 v{tmp+4+j}, v{tmp+4+j}')
        for j in range(4): k.I(f'v_cvt_pk_bf16_f32 v{f16+4*U+j}, v{tmp+2*j}, v{tmp+2*j+1}')
    wa = fi; ru = fq; rv = fq4; so = vo
    k.I(f'v_mul_u32_u24 v{wa}, 80, v{vq}')
    k.I(f'v_add_lshl_u32 v{wa}, v{wa}, v{vi}, 3')
    k.I(f's_mul_i32 s31, s22, {PL}')
    k.I(f'v_add_u32 v{wa}, s31, v{wa}')
    k.I(f'v_and_b32 v{ta}, 1, v0')
    k.I(f'v_lshrrev_b32 v{ta+1}, 1, v0')
    k.I(f'v_mul_u32_u24 v{ru}, {2*PL}, v{ta}')
    k.I(f'v_sub_u32 v{rv}, 384, v{ta+1}')
    k.I(f'v_lshl_add_u32 v{rv}, v{rv}, 3, v{ru}')
    k.I(f'v_lshl_add_u32 v{ru}, v{ta+1}, 3, v{ru}')
    k.I(f'v_lshlrev_b32 v{so}, 13, v{ta+1}')
    k.I(f'v_lshl_add_u32 v{so}, v{ta}, 4, v{so}')
    gA = 1; gB = vq; lB = vi; rm = vl
    k.I('s_mul_i32 s31, s22, 1280')
    k.I(f'v_lshl_add_u32 v{gA}, v{vl}, 4, s31')
    k.I('s_add_u32 s31, s31, 1024')
    k.I(f'v_lshl_add_u32 v{lB}, v{vi}, 4, s31')
    k.I(f'v_mul_u32_u24 v{gB}, {960*16}, v{vq}')
    k.I(f'v_add_u32 v{gB}, v{gB}, v{lB}')
    k.I(f'v_lshlrev_b32 v{rm}, 2, v{vl}')
    k.I(f'v_add_u32 v{rm}, {ML}, v{rm}')
    for p in range(1, 4): k.I(f's_mov_b32 s{35+p}, {960*16*p}')
    k.I('s_mov_b32 s60, 0x04000c0c')
    k.I('s_mov_b32 s61, 0x0706000c')
    mark(k, 2)
    sm = md; sq = md + 2; rr = md + 4; nmr = md + 6
    k.I(f'v_pk_add_f32 {vr(sm,2)}, {vr(xs,2)}, {vr(xs+2,2)}')
    k.I(f'v_pk_mul_f32 {vr(sq,2)}, {vr(xs,2)}, {vr(xs,2)}')
    k.I(f'v_pk_fma_f32 {vr(sq,2)}, {vr(xs+2,2)}, {vr(xs+2,2)}, {vr(sq,2)}')
    for e in range(2, 10):
        k.I(f'v_pk_add_f32 {vr(sm,2)}, {vr(sm,2)}, {vr(xs+2*e,2)}')
        k.I(f'v_pk_fma_f32 {vr(sq,2)}, {vr(xs+2*e,2)}, {vr(xs+2*e,2)}, {vr(sq,2)}')
    wave_reduce_to_sgpr(k, [sm, sm+1, sq, sq+1], [32, 33, 34, 35])
    ln_scalars(k, 32, 34, rr, nmr, tmp)
    for e in range(10):
        k.I(f'v_pk_fma_f32 {vr(xs+2*e,2)}, {vr(xs+2*e,2)}, {vr(rr,2)}, {vr(nmr,2)}')
    mark(k, 3)
    tag_check(k, 'B_tag', 52, dat + 10, dat, 58)
    mark(k, 4)
    tx = tmp
    k.I('s_mov_b32 s3, 0x40000')
    k.label('LB_poll')
    for p in range(4):
        k.I(f'buffer_load_dwordx4 {vr(md+4*p,4)}, v{gA}, s[48:51], {"s%d" % (35+p) if p else 0} offen sc1')
    k.I(f'buffer_load_dwordx4 {vr(md+16,4)}, v{gB}, s[48:51], 0 offen sc1')
    for p in range(5): k.I(f'v_xor_b32 v{tx+p}, s58, v{md+4*p+3}')
    k.I(f'v_or3_b32 v{tx}, v{tx}, v{tx+1}, v{tx+2}')
    k.I(f'v_or3_b32 v{tx}, v{tx}, v{tx+3}, v{tx+4}')
    k.I(f'v_cmp_ne_u32 vcc, 0, v{tx}')
    for p in (4, 0, 1, 2, 3): unpack_gran(k, md+4*p, tx+1+p, 60, 61)
    k.I('s_cbranch_vccz LB_go')
    k.I(f's_sleep {env("SLEEP", 2)}')
    k.I('s_sub_u32 s3, s3, 1')
    k.I('s_cbranch_scc0 LB_poll')
    k.label('LB_go')
    mark(k, 5)
    b_ = md + 16
    for j in range(4): k.I(f'v_mov_b32 v{tx+j}, v{b_+j}')
    for p in (0, 2):
        k.I(f'v_pk_add_f32 {vr(md+p,2)}, {vr(md+p,2)}, {vr(md+4+p,2)}')
        k.I(f'v_pk_add_f32 {vr(md+8+p,2)}, {vr(md+8+p,2)}, {vr(md+12+p,2)}')
    for j in range(4): k.I(f'v_permlane32_swap_b32 v{tx+j}, v{b_+j}')
    for p in (0, 2): k.I(f'v_pk_add_f32 {vr(md+p,2)}, {vr(md+p,2)}, {vr(md+8+p,2)}')
    for p in (0, 2): k.I(f'v_pk_add_f32 {vr(b_+p,2)}, {vr(b_+p,2)}, {vr(tx+p,2)}')
    k.I(f'ds_write_b128 v{gA}, {vr(md,4)} offset:{ML}')
    for j in range(4): k.I(f'v_mov_b32 v{tx+j}, v{b_+j}')
    for j in range(4): k.I(f'v_permlane16_swap_b32 v{tx+j}, v{b_+j}')
    for p in (0, 2): k.I(f'v_pk_add_f32 {vr(b_+p,2)}, {vr(b_+p,2)}, {vr(tx+p,2)}')
    k.I(f'ds_write_b128 v{lB}, {vr(b_,4)} offset:{ML}')
    k.barrier()
    mark(k, 6)
    for p in range(5):
        k.I(f'ds_read2st64_b32 {vr(md+4*p,2)}, v{rm} offset0:{10+2*p} offset1:{11+2*p}')
        k.I(f'ds_read2st64_b32 {vr(md+4*p+2,2)}, v{rm} offset0:{2*p} offset1:{2*p+1}')
    for e in range(10):
        h_ = e & 1; p = e // 2
        k.I(f'v_pk_fma_f32 {vr(xs+2*e,2)}, {vr(xs+2*e,2)}, {vr(md+4*p,2)}, {vr(md+4*p+2,2)} op_sel:[0,{h_},{h_}] op_sel_hi:[1,{h_},{h_}]')
        if e >= 1: k.I(f'v_cvt_pk_bf16_f32 v{dat+e-1}, v{xs+2*e-2}, v{xs+2*e-1}')
    k.I(f'v_cvt_pk_bf16_f32 v{dat+9}, v{xs+18}, v{xs+19}')
    d1 = xs
    for T in range(3):
        for kap in range(3):
            for c in range(2):
                dd = vr(d1 + (2*T+c)*4, 4)
                k.I(f'{MF16} {dd}, {vr(dat+4*kap,4)}, {vr(f40+(2*T+c)*10+4*kap,4)}, {dd if kap else 0}')
    b2 = xs + 24; d2 = f40
    for T in range(3):
        cmul4(k, d1+8*T, d1+8*T+4, cs+4*T, sn+4*T, b2+4*T, tmp, False)
        for U in range(2):
            k.I(f'{MF16} {vr(d2+(2*T+U)*4,4)}, {vr(f16+4*U,4)}, {vr(b2+4*T,4)}, 0')
    mark(k, 7)
    for T in range(3):
        if T == 2:
            k.I('s_mov_b32 exec_lo, 0x00ff00ff')
            k.I('s_mov_b32 exec_hi, 0x00ff00ff')
        for U in range(2):
            for h in range(2):
                k.I(f'ds_write_b64 v{wa}, {vr(d2+(2*T+U)*4+2*h,2)} offset:{(16*T+320*U+40*h)*8}')
    k.I('s_mov_b64 exec, 1')
    k.I(f'ds_write_b64 v{wa}, {vr(d2,2)} offset:5120')
    k.I('s_mov_b64 exec, -1')
    k.barrier()
    mark(k, 8)
    rd = d1; oc = b2
    for rho in range(3):
        for pr in range(2):
            k.I(f'ds_read_b64 {vr(rd+8*rho+4*pr,2)}, v{ru} offset:{pr*PL+1024*rho}')
            k.I(f'ds_read_b64 {vr(rd+8*rho+4*pr+2,2)}, v{rv} offset:{pr*PL+1024*(2-rho)}')
    for rho in range(3):
        for pr in range(2):
            u = rd+8*rho+4*pr; v = u+2
            k.I(f'v_pk_add_f32 {vr(tmp+4*pr,2)}, {vr(u,2)}, {vr(v,2)}')
            k.I(f'v_pk_add_f32 {vr(tmp+4*pr+2,2)}, {vr(u,2)}, {vr(v,2)} neg_lo:[0,1] neg_hi:[0,1]')
        for pr in range(2):
            k.I(f'v_cvt_pk_bf16_f32 v{oc+4*rho+pr}, v{tmp+4*pr}, v{tmp+4*pr+1}')
            k.I(f'v_cvt_pk_bf16_f32 v{oc+4*rho+2+pr}, v{tmp+4*pr+3}, -v{tmp+4*pr+2}')
        k.I(f'buffer_store_dwordx4 {vr(oc+4*rho,4)}, v{so}, s[44:47], s{25+rho} offen')
    if gen.STAMPS: k.I(f's_add_u32 s2, s2, {boff}')

CNT = dict(modr=160, wt=N_WT, wgu=N_WGU, wd=N_WD)
K1_SIDE = os.environ.get('K1_SIDE', 'wt,modr').split(',')
C_SIDE = [r for r in ('wgu', 'wd') if r not in K1_SIDE]

MISC_EXTRA = []
def gen_K1():
    k = Kernel('ka_kernel')
    stamp_begin(k)
    k.I(f's_load_dwordx4 s[56:59], s[0:1], {KA["dbg"]}')
    k.I(f's_load_dwordx4 s[8:11], s[0:1], {KA["c"]}')
    k.I(f's_load_dwordx2 s[4:5], s[0:1], {KA["ws"]}')
    k.I(f's_load_dwordx2 s[6:7], s[0:1], {KA["x"]}')
    k.I(f's_load_dwordx4 s[12:15], s[0:1], {KA["wr"]}')
    if 'wgu' in K1_SIDE: k.I(f's_load_dwordx4 s[16:19], s[0:1], {KA["wg"]}')
    if 'wd' in K1_SIDE: k.I(f's_load_dwordx2 s[62:63], s[0:1], {KA["wd"]}')
    boff = 88; n = boff + 256; lo = {}
    for r in K1_SIDE:
        lo[r] = n; n += CNT[r]
    total = n
    st = k.save_state()
    k.I('s_cmp_lg_u32 s2, 0')
    k.I('s_cbranch_scc1 LA_n0')
    k.I('v_mov_b32 v2, 0')
    k.I(f'v_mov_b32 v3, {EPOCH}')
    k.I('v_mov_b32 v5, 1')
    k.srd(24, 58, 0x10000)
    k.I('buffer_load_dword v4, v3, s[24:27], 0 offen sc1')
    k.srd(52, 56, 256)
    k.I('v_cmp_eq_u32 vcc, 0, v0')
    k.I('s_and_saveexec_b64 s[30:31], vcc')
    k.I('s_cbranch_execz LA_misc')
    k.I('v_add_u32 v4, 1, v4')
    k.I('buffer_store_dwordx2 v[4:5], v2, s[52:55], 0 offen sc1')
    k.I('buffer_store_dword v4, v3, s[24:27], 0 offen sc1')
    k.I('s_branch LA_misc')
    k.label('LA_n0', fresh=True); k.restore_state(st)
    k.I('s_cmp_lt_u32 s2, 8')
    k.I('s_cbranch_scc1 LA_misc')
    k.I(f's_sub_u32 s20, s2, {boff}')
    k.I('s_cmp_lt_u32 s20, 256')
    k.I('s_cbranch_scc1 LA_B')
    for r in K1_SIDE:
        if r == 'modr': continue
        k.I(f's_sub_u32 s20, s2, {lo[r]}')
        k.I(f's_cmp_lt_u32 s20, {CNT[r]}')
        k.I(f's_cbranch_scc1 LA_{r}')
    k.I(f's_cmp_ge_u32 s2, {total}')
    k.I('s_cbranch_scc1 LA_exit')
    k.I('s_sub_u32 s20, s2, 8')
    k.I(f's_sub_u32 s21, s2, {lo["modr"] - 80}')
    k.I(f's_cmp_lt_u32 s2, {boff}')
    k.I('s_cselect_b32 s20, s20, s21')
    k.I('s_and_b32 s21, s20, 3')
    k.I('s_lshr_b32 s20, s20, 2')
    role_mod4(k, 'LA_end')
    k.label('LA_end')
    stamp_end(k, 0, 4)
    k.label('LA_exit')
    k.I('s_endpgm')
    k.label('LA_B', fresh=True); k.restore_state(st)
    role_B4(k, boff)
    stamp_end(k, 0, 4)
    k.I('s_endpgm')
    fns = dict(wd=lambda: role_wd(k, 62), wgu=lambda: role_wgu(k, 16, 18), wt=lambda: role_wt(k, 12, 14))
    for r in K1_SIDE:
        if r == 'modr': continue
        k.label(f'LA_{r}', fresh=True); k.restore_state(st)
        fns[r]()
        stamp_end(k, 0, 4)
        k.I('s_endpgm')
    k.label('LA_misc', fresh=True); k.restore_state(st)
    k.I('s_mov_b64 exec, -1')
    k.I('s_getpc_b64 s[28:29]')
    k.raw('LA_pc:')
    k.I('s_add_u32 s28, s28, kc_kernel-LA_pc')
    k.I('s_addc_u32 s29, s29, 0')
    k.I('v_lshlrev_b32 v40, 4, v0')
    k.I('v_mov_b32 v41, s29')
    for i in range(NPF):
        k.I('v_min_u32 v6, Lcode_end-kc_kernel-16, v40')
        k.I('v_add_co_u32 v6, vcc, s28, v6')
        k.I('v_addc_co_u32 v7, vcc, 0, v41, vcc')
        k.I(f'global_load_dwordx4 {vr(8+4*i,4)}, v[6:7], off')
        k.I('v_add_u32 v40, 0x1000, v40')
    k.waitcnt(vm=0, lgkm=0)
    if MISC_EXTRA:
        k.I('v_readfirstlane_b32 s30, v0')
        k.I('s_lshl_b32 s31, s2, 8')
        k.I('s_add_u32 s30, s30, s31')
        k.I('s_cmp_lg_u32 s30, 0x100')
        k.I('s_cbranch_scc1 LA_mend')
        MISC_EXTRA[0](k)
        k.label('LA_mend')
    stamp_end(k, 0, 4)
    k.I('s_endpgm')
    print('K1 roles', lo, total)
    return k, (total, 256, 40960 if 'wd' in K1_SIDE else 26112)

def role_modfin(k):
    k.I('s_lshl_b32 s20, s20, 8')
    k.I('v_add_u32 v1, s20, v0')
    k.I('v_lshlrev_b32 v2, 4, v1')
    k.srd(24, 4, 4 * 960 * 16, GR)
    for p in range(4):
        k.I(f's_mov_b32 s21, {960*16*p + 320*16}')
        k.I(f'buffer_load_dwordx4 {vr(4+4*p,4)}, v2, s[24:27], s21 offen')
    k.srd(28, 4, 32 * 256, FLAGS)
    k.I('v_lshlrev_b32 v3, 7, v1')
    k.I('v_mov_b32 v20, 0')
    k.I('buffer_store_dword v20, v3, s[28:31], 0 offen')
    k.srd(32, 4, 4 * D * 4, MODN + 2 * D * 4)
    k.I('s_mov_b32 s60, 0x04000c0c')
    k.I('s_mov_b32 s61, 0x0706000c')
    k.I(f'v_mov_b32 v22, {fhex(1.0 / (2.0 * S * D))}')
    k.I('v_cmp_gt_u32 vcc, 0xa0, v1')
    k.I('v_cndmask_b32 v22, 1.0, v22, vcc')
    k.I('v_subrev_u32 v21, 0x140, v1')
    k.I('v_cmp_gt_u32 vcc, 0xa0, v21')
    k.I('v_mov_b32 v23, 1.0')
    k.I('v_cndmask_b32 v23, 0, v23, vcc')
    for p in range(4): unpack_gran(k, 4+4*p, 21, 60, 61)
    for p in (0, 2):
        k.I(f'v_pk_add_f32 {vr(4+p,2)}, {vr(4+p,2)}, {vr(8+p,2)}')
        k.I(f'v_pk_add_f32 {vr(12+p,2)}, {vr(12+p,2)}, {vr(16+p,2)}')
    for p in (0, 2): k.I(f'v_pk_add_f32 {vr(4+p,2)}, {vr(4+p,2)}, {vr(12+p,2)}')
    for j in range(4): k.I(f'v_cvt_pk_bf16_f32 v{4+j}, v{4+j}, v{4+j}')
    for j in range(4): k.I(f'v_and_b32 v{4+j}, 0xffff0000, v{4+j}')
    for j in range(4): k.I(f'v_add_f32 v{4+j}, v23, v{4+j}')
    for j in range(4): k.I(f'v_cvt_pk_bf16_f32 v{4+j}, v{4+j}, v{4+j}')
    for j in range(4): k.I(f'v_and_b32 v{4+j}, 0xffff0000, v{4+j}')
    for j in range(4): k.I(f'v_mul_f32 v{4+j}, v22, v{4+j}')
    k.I('buffer_store_dwordx4 v[4:7], v2, s[32:35], 0 offen')

def gen_C4():
    k, (g, b, l) = gen_C()
    assert k.out[-2] == 'LC_exit:'
    k.out.pop(); k.out.pop()
    k.I('s_endpgm')
    k.label('LC_exit', fresh=True); k.vm = []; k.lg = []
    k.I(f's_load_dwordx2 s[4:5], s[0:1], {KA["ws"]}')
    k.I(f's_load_dwordx4 s[16:19], s[0:1], {KA["wg"]}')
    k.I(f's_load_dwordx2 s[62:63], s[0:1], {KA["wd"]}')
    st = k.save_state()
    n = 328; lo = {}
    for r in C_SIDE:
        lo[r] = n; n += CNT[r]
        k.I(f's_sub_u32 s20, s2, {lo[r]}')
        k.I(f's_cmp_lt_u32 s20, {CNT[r]}')
        k.I(f's_cbranch_scc1 LC_{r}')
    k.I('s_sub_u32 s20, s2, 321')
    k.I('s_cmp_ge_u32 s20, 3')
    k.I('s_cbranch_scc1 LC_x')
    role_modfin(k)
    k.label('LC_x')
    k.I('s_endpgm')
    fns = dict(wd=lambda: role_wd(k, 62), wgu=lambda: role_wgu(k, 16, 18))
    for r in C_SIDE:
        k.label(f'LC_{r}', fresh=True); k.restore_state(st)
        fns[r]()
        stamp_end(k, 2, 4)
        k.I('s_endpgm')
    print('C roles', lo, n)
    return k, (n if C_SIDE else 324, b, 40960 if 'wd' in C_SIDE else max(l, 24576))

KERNELS = (gen_K1, gen_C4, gen_DEF)
if __name__ == '__main__':
    out = sys.argv[1] if len(sys.argv) > 1 else 'adaLN_cond__spectral_gfnet__glu_gated_bilinear__prompt.s'
    if len(sys.argv) > 2 and sys.argv[2] == 'stamps': gen.STAMPS = True
    build(out, KERNELS)
```

```python
import sys, math, os
import gen, gen2, gen4
from gen import *
from gen2 import *
from gen4 import *
from gen import mark, stamp_begin, stamp_end

N_WT5 = 128
def role_wt5(k, s_wr, s_wi):
    BS = 5136
    va = VAlloc(1)
    vl = va.get(); vo = va.get(); ra = va.get(); dst = va.get(); t0 = va.get()
    lo = va.get(24, 4); hi = va.get(24, 4)
    k.I('v_lshrrev_b32 v1, 6, v0')
    k.I('v_readfirstlane_b32 s22, v1')
    k.I(f'v_and_b32 v{vl}, 63, v0')
    k.I(f'v_lshlrev_b32 v{vo}, 4, v{vl}')
    k.I('s_and_b32 s21, s20, 7')
    k.I('s_bfe_u32 s23, s20, 0x10003')
    k.I('s_bfe_u32 s24, s20, 0x20004')
    k.I('s_lshr_b32 s25, s20, 6')
    k.I('s_lshl_b32 s26, s21, 2')
    k.I('s_add_u32 s26, s26, s22')
    k.I('s_lshl_b32 s26, s26, 3')
    k.I('s_lshl_b32 s27, s24, 1')
    k.I('s_add_u32 s26, s26, s27')
    k.I('s_add_u32 s26, s26, s23')
    k.I(f's_mul_i32 s26, s26, {BS}')
    k.I(f's_mul_i32 s27, s22, {BS}')
    k.I('s_mov_b32 m0, s27')
    k.I('s_cmp_eq_u32 s25, 0')
    k.I(f's_cselect_b32 s28, s{s_wr}, s{s_wi}')
    k.I(f's_cselect_b32 s29, s{s_wr+1}, s{s_wi+1}')
    k.I(f's_mov_b32 s30, {S * 321 * 2}')
    k.I('s_mov_b32 s31, 0x00020000')
    for i in range(4): k.I(f'buffer_load_dwordx4 v{vo}, s[28:31], s26 offen offset:{1024*i} nt lds')
    k.I('s_add_u32 m0, s27, 4096')
    k.I('s_add_u32 s26, s26, 4096')
    k.I(f'buffer_load_dwordx4 v{vo}, s[28:31], s26 offen nt lds')
    k.I('s_mov_b64 exec, 1')
    k.I(f'buffer_load_dwordx4 v{vo}, s[28:31], s26 offen offset:1024 nt lds')
    k.I('s_mov_b64 exec, -1')
    k.I(f'v_and_b32 v{t0}, 3, v0')
    k.I(f'v_mul_u32_u24 v{ra}, 1284, v{t0}')
    k.I(f'v_lshlrev_b32 v{dst}, 4, v{t0}')
    k.I(f'v_lshrrev_b32 v{t0}, 2, v0')
    k.I(f'v_lshl_add_u32 v{ra}, v{t0}, 1, v{ra}')
    k.I(f'v_lshl_add_u32 v{dst}, v{t0}, 13, v{dst}')
    k.srd(32, 4, XT_SZ, WT)
    k.I('s_lshl_b32 s36, s25, 12')
    k.I('s_lshl_b32 s37, s24, 10')
    k.I('s_add_u32 s36, s36, s37')
    k.I('s_lshl_b32 s37, s21, 7')
    k.I('s_add_u32 s36, s36, s37')
    k.I('s_lshl_b32 s37, s23, 6')
    k.I('s_add_u32 s36, s36, s37')
    k.barrier(vm=0)
    def rnd(rho):
        for ii in range(2):
            for rp in range(2):
                j = 4*rho + 2*ii + rp
                k.I(f'ds_read_u16 v{lo+j}, v{ra} offset:{(2*rp)*BS + 642*ii + 128*rho}')
                k.I(f'ds_read_u16 v{hi+j}, v{ra} offset:{(2*rp+1)*BS + 642*ii + 128*rho}')
    def fin(rho):
        for j in range(4): k.I(f'v_lshl_or_b32 v{lo+4*rho+j}, v{hi+4*rho+j}, 16, v{lo+4*rho+j}')
        k.I(f'buffer_store_dwordx4 {vr(lo+4*rho,4)}, v{dst}, s[32:35], s36 offen{WT_ST}')
        k.I(f's_add_u32 s36, s36, {64*8192}')
    rnd(0)
    for rho in range(5):
        if rho < 4: rnd(rho + 1)
        fin(rho)
    k.nlab = getattr(k, 'nlab', 0) + 1
    k.I('s_cmp_lg_u32 s22, 0')
    k.I('s_cbranch_scc1 Lwt_done')
    k.I('s_mov_b64 exec, 15')
    rnd(5); fin(5)
    k.label('Lwt_done')

N_WD5 = 96
def role_wd5(k, s_wd):
    va = VAlloc(1)
    vl = va.get(); t0 = va.get(); t1 = va.get(); ra = va.get(); vo = va.get(); so = va.get(5)
    o = va.get(20, 4)
    k.I('v_lshrrev_b32 v1, 6, v0')
    k.I('v_readfirstlane_b32 s22, v1')
    k.I(f'v_and_b32 v{vl}, 63, v0')
    k.I(f'v_lshlrev_b32 v{vo}, 4, v{vl}')
    k.I('s_and_b32 s21, s20, 1')
    k.I('s_lshr_b32 s20, s20, 1')
    for p in range(5):
        k.I(f'v_add_u32 v{t0}, {64*p}, v{vl}')
        k.I(f'v_mul_u32_u24 v{t1}, 205, v{t0}')
        k.I(f'v_lshrrev_b32 v{t1}, 13, v{t1}')
        k.I(f'v_mul_u32_u24 v{t1}, 640, v{t1}')
        k.I(f'v_add_u32 v{so+p}, v{t1}, v{vo}')
    k.I('s_lshl_b32 s23, s20, 2')
    k.I('s_add_u32 s23, s23, s22')
    k.I('s_mul_i32 s23, s23, 10240')
    k.I('s_mul_i32 s24, s21, 640')
    k.I('s_add_u32 s23, s23, s24')
    k.I('s_mul_i32 s24, s22, 5120')
    k.I('s_mov_b32 m0, s24')
    k.srd(28, s_wd, F * D * 2)
    for p in range(4): k.I(f'buffer_load_dwordx4 v{so+p}, s[28:31], s23 offen offset:{1024*p} nt lds')
    k.I('s_add_u32 m0, s24, 4096')
    k.I('s_add_u32 s23, s23, 4096')
    k.I(f'buffer_load_dwordx4 v{so+4}, s[28:31], s23 offen nt lds')
    k.I(f'v_lshrrev_b32 v{t0}, 4, v{vl}')
    k.I(f'v_bfe_u32 v{t1}, v{vl}, 2, 2')
    k.I(f'v_lshl_add_u32 v{t0}, v{t0}, 3, v{t1}')
    k.I(f'v_mul_u32_u24 v{ra}, 640, v{t0}')
    k.I(f'v_and_b32 v{t0}, 3, v{vl}')
    k.I(f'v_mul_u32_u24 v{t0}, 40, v{t0}')
    k.I('s_mul_i32 s25, s22, 160')
    k.I(f'v_add3_u32 v{ra}, v{ra}, v{t0}, s25')
    k.srd(36, 4, F * D * 2, WD)
    k.I('s_lshl_b32 s26, s21, 2')
    k.I('s_add_u32 s26, s26, s22')
    k.I('s_mul_i32 s26, s26, 48')
    k.I('s_add_u32 s26, s26, s20')
    k.I('s_mul_i32 s40, s26, 5120')
    k.I('s_add_u32 s41, s40, 4096')
    k.barrier(vm=0)
    for dt in range(5):
        for hf in range(2):
            k.I(f'ds_read_b64_tr_b16 {vr(o+dt*4+2*hf,2)}, v{ra} offset:{4*hf*640+8*dt}')
    for dt in range(5):
        k.I(f'buffer_store_dwordx4 {vr(o+dt*4,4)}, v{vo}, s[36:39], s{40+(dt//4)} offen offset:{1024*(dt%4)}{SIDE_ST}')

gen4.role_wt = role_wt5; gen4.role_wd = role_wd5
gen4.CNT.update(wt=N_WT5, wd=N_WD5)

def pack6(k, base, cs, sn, alt):
    def op(r, j, neg):
        n = neg ^ (alt and (j & 1))
        return ('-' if n else '') + f'v{r+j}'
    for p in range(2):
        k.I(f'v_cvt_pk_bf16_f32 v{base+p}, {op(sn,2*p,True)}, {op(sn,2*p+1,True)}')
        k.I(f'v_cvt_pk_bf16_f32 v{base+2+p}, {op(cs,2*p,False)}, {op(cs,2*p+1,False)}')
        k.I(f'v_cvt_pk_bf16_f32 v{base+4+p}, {op(sn,2*p,False)}, {op(sn,2*p+1,False)}')
def flip6(base): return [f'v_xor_b32 v{base+j}, s26, v{base+j}' for j in (0, 1, 4, 5)]
WIM, WRE = 0, 2

def zipemit(k, main, fill, per):
    fill = list(fill)
    for m in main:
        k.I(m)
        for _ in range(per):
            if fill: k.I(fill.pop(0))
    for f in fill: k.I(f)

def gen_C5main():
    k = Kernel('kc_kernel')
    stamp_begin(k)
    k.I('s_cmp_ge_u32 s2, 321')
    k.I('s_cbranch_scc1 LC_exit')
    k.I(f's_load_dwordx2 s[4:5], s[0:1], {KA["ws"]}')
    va = VAlloc(2)
    vl = va.get(); vo16 = va.get(); vo8 = va.get(); yo = va.get(); wq = va.get(8, 2)
    k.I('v_lshrrev_b32 v1, 6, v0')
    k.I(f'v_and_b32 v{vl}, 63, v0')
    k.I('v_readfirstlane_b32 s22, v1')
    k.I(f'v_lshlrev_b32 v{vo16}, 4, v{vl}')
    k.I(f'v_lshlrev_b32 v{vo8}, 3, v{vl}')
    k.I('s_and_b32 s20, s2, 7')
    k.I('s_lshl_b32 s20, s20, 2')
    k.I('s_bfe_u32 s21, s2, 0x20003')
    k.I('s_add_u32 s20, s20, s21')
    k.I('s_and_b32 s21, s2, 0x1e0')
    k.I('s_add_u32 s20, s20, s21')
    k.I('s_lshl_b32 s23, s22, 11')
    k.I('s_lshl_b32 s24, s20, 13')
    k.I('s_lshl_b32 s27, s22, 10')
    k.I('s_add_u32 s27, s27, s24')
    k.I('s_add_u32 s28, s27, 4096')
    k.I('s_add_u32 s24, s24, s23')
    k.I('s_mov_b32 m0, s23')
    k.I('s_cmp_eq_u32 s20, 0')
    k.I('s_cselect_b32 s25, 0, 1.0')
    k.I('s_cmp_eq_u32 s20, 320')
    k.I('s_cselect_b32 s25, 0, s25')
    k.I('s_mov_b32 s26, 0x80008000')
    fi = va.get(); fq4 = va.get(); fk = va.get(); fw16 = va.get()
    ta = va.get(2); sg2 = va.get(2, 2); tmp = va.get(8, 2); tc = tmp; ts = tmp + 4
    k.I(f'v_and_b32 v{fi}, 15, v{vl}')
    k.I(f'v_lshrrev_b32 v{yo}, 1, v{fi}')
    k.I(f'v_and_b32 v{fq4}, 0x30, v{vl}')
    k.I(f'v_add_u32 v{yo}, v{yo}, v{fq4}')
    k.I(f'v_mul_u32_u24 v{yo}, {YT_ST}, v{yo}')
    k.I(f'v_and_b32 v{ta}, 1, v{fi}')
    k.I(f'v_lshl_add_u32 v{yo}, v{ta}, 4, v{yo}')
    k.I(f's_mul_i32 s29, s22, {64*YT_ST}')
    k.I('s_lshl_b32 s30, s20, 5')
    k.I('s_add_u32 s29, s29, s30')
    k.I(f's_add_u32 s30, s29, {8*YT_ST}')
    k.I(f'v_lshlrev_b32 v{sg2}, 31, v{fi}')
    k.I(f'v_or_b32 v{sg2}, 1.0, v{sg2}')
    k.I(f'v_cvt_f32_u32 v{fi}, v{fi}')
    k.I(f'v_lshrrev_b32 v{fq4}, 2, v{fq4}')
    k.I(f'v_cvt_f32_u32 v{fq4}, v{fq4}')
    k.I(f'v_lshlrev_b32 v{fw16}, 4, v1')
    k.I(f'v_cvt_f32_u32 v{fw16}, v{fw16}')
    k.I(f'v_add_f32 v{fk}, v{fw16}, v{fi}')
    def angles(step_reg, scale, base_add, dst, q=None):
        k.I(f'v_mul_f32 v{ta}, {fhex(scale)}, v{step_reg}')
        k.I(f'v_mul_f32 v{ta+1}, v{fq4 if q is None else q}, v{ta}')
        for j in range(4): k.I(f'v_fmamk_f32 v{dst+j}, v{ta}, {fhex(float(base_add + j))}, v{ta+1}')
    def sincos(c, s):
        for j in range(4):
            k.I(f'v_cos_f32 v{c+j}, v{s+j}')
            k.I(f'v_sin_f32 v{s+j}, v{s+j}')
    def flip(c, s):
        for p in (0, 2):
            k.I(f'v_pk_mul_f32 {vr(c+p,2)}, {vr(c+p,2)}, {vr(sg2,2)} op_sel_hi:[1,0]')
            k.I(f'v_pk_mul_f32 {vr(s+p,2)}, {vr(s+p,2)}, {vr(sg2,2)} op_sel_hi:[1,0]')
    f64 = va.get(24, 2); f32 = va.get(24, 2)
    c1 = va.get(8, 2); s1 = va.get(8, 2); c2 = va.get(8, 2); s2 = va.get(8, 2)
    for kap in range(2):
        angles(fk, 1.0/64, 16*kap, ts); sincos(tc, ts)
        pack6(k, f64+6*kap, tc, ts, False)
        flip(tc, ts)
        pack6(k, f64+6*(kap+2), tc, ts, False)
        if kap == 0:
            k.srd(8, 4, XT_SZ, XT)
            k.srd(12, 4, XT_SZ, WT)
            k.I(f'buffer_load_dwordx4 v{vo16}, s[8:11], s24 offen lds', tag='x')
            k.I(f'buffer_load_dwordx4 v{vo16}, s[8:11], s24 offen offset:1024 lds', tag='x')
            for V in range(2):
                k.I(f'buffer_load_dwordx2 {vr(wq+2*V,2)}, v{vo8}, s[12:15], s27 offen offset:{512*V}')
                k.I(f'buffer_load_dwordx2 {vr(wq+4+2*V,2)}, v{vo8}, s[12:15], s28 offen offset:{512*V}')
            k.srd(16, 4, 256 * YT_ST, YT)
            mark(k, 1)
    for N in range(2):
        angles(fk, 1.0/2048, 16*N, s1+4*N); sincos(c1+4*N, s1+4*N)
    angles(fi, 1.0/32, 0, ts); sincos(tc, ts)
    pack6(k, f32+0, tc, ts, False)
    pack6(k, f32+12, tc, ts, True)
    flip(tc, ts)
    pack6(k, f32+6, tc, ts, False)
    pack6(k, f32+18, tc, ts, True)
    k.I(f'v_add_f32 v{fw16}, v{fw16}, v{fq4}')
    for N in range(2):
        if N: k.I(f'v_add_f32 v{fi}, {fhex(16.0)}, v{fi}')
        angles(fi, 1.0/2048, 0, s2+4*N, q=fw16); sincos(c2+4*N, s2+4*N)
    wa = fk
    k.I(f'v_add_u32 v{wa}, s23, v{vo16}')
    mark(k, 2)
    k.wait_tag('x')
    k.I('s_barrier')
    mark(k, 3)
    dat = va.get(32, 4); acc = va.get(16, 4); pk = va.get(8, 4)
    acc2 = dat; pk2 = dat + 16
    for N in range(2):
        for kap in range(4):
            k.I(f'ds_read_b128 {vr(dat+(2*kap+N)*4,4)}, v{vo16} offset:{2048*kap+1024*N}')
    for N in range(2):
        for kap in range(4):
            for c in range(2):
                dd = vr(acc+(2*N+c)*4, 4)
                k.I(f'{MF16} {dd}, {vr(dat+(2*kap+N)*4,4)}, {vr(f64+6*kap+(WIM if c else WRE),4)}, {dd if kap else 0}')
    for N in range(2):
        cmul4(k, acc+8*N, acc+8*N+4, c1+4*N, s1+4*N, pk+4*N, tmp, False)
        if N == 0: continue
    ms = []
    for N in range(2):
        for V in range(2):
            for c in range(2):
                dd = vr(acc2+(2*V+c)*4, 4)
                ms.append(f'{MF16} {dd}, {vr(f32+(2*V+N)*6+(WIM if c else WRE),4)}, {vr(pk+4*N,4)}, {dd if N else 0}')
    wr_ = c1; wi_ = s1
    fl = []
    for j in range(4):
        fl.append(f'v_lshlrev_b32 v{wr_+2*j}, 16, v{wq+j}')
        fl.append(f'v_and_b32 v{wr_+2*j+1}, 0xffff0000, v{wq+j}')
        fl.append(f'v_lshlrev_b32 v{wi_+2*j}, 16, v{wq+4+j}')
        fl.append(f'v_and_b32 v{wi_+2*j+1}, 0xffff0000, v{wq+4+j}')
    zipemit(k, ms, fl, 2)
    mark(k, 4)
    for w_ in range(4):
        for f in flip6(f32+6*w_)[:2 if w_ >= 2 else 4]: k.I(f)
    for V in range(2):
        cmul4(k, acc2+8*V, acc2+8*V+4, wr_+4*V, wi_+4*V, pk2+4*V, tmp, True)
        if V == 0:
            for w_ in (2, 3):
                for f in flip6(f32+6*w_)[2:]: k.I(f)
    ms = []
    for V in range(2):
        for N in range(2):
            for c in range(2):
                dd = vr(acc+(2*N+c)*4, 4)
                ms.append(f'{MF16} {dd}, {vr(pk2+4*V,4)}, {vr(f32+(2*N+V)*6+(WIM if c else WRE),4)}, {dd if V else 0}')
    fl = []
    for kap in range(4): fl += flip6(f64+6*kap)
    zipemit(k, ms, fl, 2)
    mark(k, 5)
    for N in range(2):
        cmul4(k, acc+8*N, acc+8*N+4, c2+4*N, s2+4*N, pk+4*N, tmp, True)
        k.I(f'ds_write_b128 v{wa}, {vr(pk+4*N,4)} offset:{8192+1024*N}')
    k.barrier()
    mark(k, 6)
    for N in range(2):
        for kap in range(4):
            k.I(f'ds_read_b128 {vr(dat+(2*kap+N)*4,4)}, v{vo16} offset:{8192+2048*kap+1024*N}')
    for N in range(2):
        for kap in range(4):
            for c in range(2):
                dd = vr(acc+(2*N+c)*4, 4)
                k.I(f'{MF16} {dd}, {vr(f64+6*kap+(WIM if c else WRE),4)}, {vr(dat+(2*kap+N)*4,4)}, {dd if kap else 0}')
    for N in range(2):
        re = acc+8*N; im = re+4
        for p in range(2):
            a, b = 2*p, 2*p+1
            k.I(f'v_fma_f32 v{tmp+4*p+0}, -s25, v{im+b}, v{re+a}')
            k.I(f'v_fma_f32 v{tmp+4*p+1}, s25, v{im+a}, v{re+b}')
            k.I(f'v_fma_f32 v{tmp+4*p+2}, s25, v{im+b}, v{re+a}')
            k.I(f'v_fma_f32 v{tmp+4*p+3}, -s25, v{im+a}, v{re+b}')
        for j in range(4):
            k.I(f'v_cvt_pk_bf16_f32 v{pk+4*N+j}, v{tmp+2*j}, v{tmp+2*j+1}')
        k.I(f'buffer_store_dwordx4 {vr(pk+4*N,4)}, v{yo}, s[16:19], s{29+N} offen')
    stamp_end(k, 2, 4)
    k.label('LC_exit')
    k.I('s_endpgm')
    return k, (321, 256, 16384)
gen4.gen_C = gen_C5main
def gen_C5():
    k, (g, b, l) = gen4.gen_C4()
    return k, (g, b, 24576)
def gen_K15():
    k, (g, b, l) = gen4.gen_K1()
    return k, (g, b, env('K1_LDS', 26112))

from def5 import gen_DEF5
from def7 import gen_DEF7, role_tab
gen4.MISC_EXTRA.append(role_tab)
KERNELS = (gen_K15, gen_C5, gen_DEF7)
if __name__ == '__main__':
    out = sys.argv[1] if len(sys.argv) > 1 else 'adaLN_cond__spectral_gfnet__glu_gated_bilinear__prompt.s'
    if len(sys.argv) > 2 and sys.argv[2] == 'stamps': gen.STAMPS = True
    build(out, KERNELS)
```

```python
import os, math
import gen
from gen import *
from gen2 import *
from gen4 import YT, YT_ST, WS_END4
from gen import mark, stamp_begin, stamp_end

class Rec:
    def __init__(self): self.l = []
    def I(self, t, **kw): self.l.append(t)
def rec(fn, *a):
    r = Rec(); fn(r, *a); return r.l
def merge(k, main, fill, per):
    fill = list(fill)
    for m in main:
        k.I(m)
        for _ in range(per):
            if fill: k.I(fill.pop(0))
    return fill

import re as _re
def unpk(t):
    if isinstance(t, tuple) or not t.startswith('v_pk_'): return [t]
    m = _re.match(r'v_pk_(\w+)_f32 (.*)$', t)
    regs = [int(x) for x in _re.findall(r'v\[(\d+):\d+\]', m.group(2))]
    if m.group(1) == 'fma' and regs[0] == regs[3]: return [f'v_fmac_f32 v{regs[0]+j}, v{regs[1]+j}, v{regs[2]+j}' for j in range(2)]
    if m.group(1) == 'fma': return [f'v_fma_f32 v{regs[0]+j}, v{regs[1]+j}, v{regs[2]+j}, v{regs[3]+j}' for j in range(2)]
    return [f'v_{m.group(1)}_f32 v{regs[0]+j}, v{regs[1]+j}, v{regs[2]+j}' for j in range(2)]
def pairs(lst):
    out = []
    for t in lst:
        u = unpk(t)
        if len(u) == 2 and 'v_fma_' in u[0]: out += [[u[0]], [u[1]]]
        else: out.append(u)
    return out
def signal(k, name, cnt_sgpr, vtmp, noflush=False):
    k.I('s_barrier')
    st = k.save_state()
    k.I('s_cmp_lg_u32 s22, 0')
    k.I(f's_cbranch_scc1 L{name}_sig', noflush=noflush)
    k.I('s_mov_b64 exec, 1')
    k.I(f'buffer_atomic_add v{vtmp+1}, v{vtmp}, s[12:15], s{cnt_sgpr} offen sc1')
    k.I('s_mov_b64 exec, -1')
    if noflush: k.raw(f'L{name}_sig:')
    else: k.label(f'L{name}_sig')
    k.restore_state(st)
    k.vm.append((set(), None)) if False else None
def poll(k, name, cnt_sgpr, vtmp, vres):
    st = k.save_state()
    k.I('s_cmp_lg_u32 s22, 3')
    k.I(f's_cbranch_scc1 L{name}_done')
    k.I('s_mov_b32 s24, 0x100000')
    k.label(f'L{name}_poll')
    k.I(f'buffer_load_dword v{vres}, v{vtmp}, s[12:15], s{cnt_sgpr} offen sc1')
    k.waitcnt(vm=0)
    k.I(f'v_readfirstlane_b32 s33, v{vres}')
    k.I('s_sub_u32 s24, s24, 1')
    k.I(f's_cbranch_scc1 L{name}_done')
    k.I('s_cmp_lt_u32 s33, 16')
    k.I(f's_cbranch_scc1 L{name}_poll')
    k.label(f'L{name}_done')
    k.restore_state(st)
    k.I('s_barrier')

TAB = WS_END4
WS_END6 = TAB + 24 * 1024
class Fix:
    def __init__(self, seq): self.seq = list(seq)
    def get(self, *a): return self.seq.pop(0)
def role_tab(k):
    c0 = 24; f40 = c0; f16 = c0 + 62; cs = c0 + 68; sn = c0 + 80
    vi, vq, fi, fq, fq4, vo, t8, tmp = 2, 3, 4, 5, 6, 7, 8, 16
    k.I(f'v_and_b32 v{vi}, 15, v0')
    k.I(f'v_lshrrev_b32 v{vq}, 4, v0')
    k.I(f'v_cvt_f32_u32 v{fi}, v{vi}')
    k.I(f'v_cvt_f32_u32 v{fq}, v{vq}')
    k.I(f'v_mul_f32 v{fq4}, 4.0, v{fq}')
    k.I(f'v_lshlrev_b32 v{vo}, 4, v0')
    gen_f40(k, Fix([f40, t8, t8+4, t8+6]), fi, fq, True)
    gen_tw640(k, Fix([cs, sn, t8]), fi, fq4)
    k.I(f'v_cmp_gt_u32 vcc, 8, v{vi}')
    for r in range(4):
        k.I(f'v_cndmask_b32 v{cs+8+r}, 0, v{cs+8+r}, vcc')
        k.I(f'v_cndmask_b32 v{sn+8+r}, 0, v{sn+8+r}, vcc')
    k.I(f'v_mul_f32 v{t8}, {fhex(1.0/16)}, v{fi}')
    k.I(f'v_mul_f32 v{t8+1}, v{fq4}, v{t8}')
    for j in range(4): k.I(f'v_fmamk_f32 v{tmp+4+j}, v{t8}, {fhex(float(j))}, v{t8+1}')
    for j in range(4):
        k.I(f'v_cos_f32 v{tmp+j}, v{tmp+4+j}')
        k.I(f'v_sin_f32 v{tmp+4+j}, v{tmp+4+j}')
    for p in range(2):
        k.I(f'v_cvt_pk_bf16_f32 v{f16+p}, v{tmp+4+2*p}, v{tmp+5+2*p}')
        k.I(f'v_cvt_pk_bf16_f32 v{f16+2+p}, v{tmp+2*p}, v{tmp+1+2*p}')
        k.I(f'v_cvt_pk_bf16_f32 v{f16+4+p}, -v{tmp+4+2*p}, -v{tmp+5+2*p}')
    k.srd(24, 4, 23 * 1024, TAB)
    for i in range(23):
        if i % 4 == 0: k.I(f's_mov_b32 s28, {1024*i}')
        k.I(f'buffer_store_dwordx4 {vr(c0+4*i,4)}, v{vo}, s[24:27], s28 offen offset:{1024*(i%4)}')

XNT = ' nt' if os.environ.get('XNT') == '1' else ''
_mark = mark
def mark(k, i):
    if not env('MF', 0): _mark(k, i)
def fm(k, i):
    if env('MF', 0) == 1: _mark(k, i)
def em(k, i):
    if env('MF', 0) == 2: _mark(k, i)
def gen_DEF7():
    k = Kernel('kd_kernel')
    PL = 2592
    HB = 12288; XB = HB + 10240; XL = 32768; MLD = XL + 4 * 2560; TL = MLD + 8192
    W_ST = env('W_ST', 8); W_PL = env('W_PL', 6); W_A = env('W_A', 4)
    stamp_begin(k)
    k.I('s_cmp_ge_u32 s2, 256')
    k.I('s_cbranch_scc1 LD_exit')
    k.I(f's_load_dwordx2 s[4:5], s[0:1], {KA["ws"]}')
    k.I(f's_load_dwordx2 s[6:7], s[0:1], {KA["x"]}')
    k.I(f's_load_dwordx2 s[40:41], s[0:1], {KA["out"]}')
    va = VAlloc(2)
    hs = va.get(2, 2); vl = va.get(); vo16 = va.get(); vW = va.get(); vi = va.get(); vq = va.get(); oh = va.get(); oh2 = va.get(); hr = va.get()
    keep = va.n
    so = va.get(); wu = va.get(); wv = va.get(); ra = va.get(); xo = va.get(); mo = va.get(); wh = va.get(3); wx = va.get(); g0 = va.get(); g2 = va.get()
    ch = va.get(12, 4); xr = va.get(12, 2); mg = va.get(12, 4); mc = va.get(12, 4); ms = va.get(12, 4)
    d1 = va.get(24, 4); d2 = va.get(24, 4); dat = va.get(12, 2); tmp = va.get(8, 2)
    f40 = va.get(92, 4); f16 = f40 + 62; cs = f40 + 68; sn = f40 + 80
    tv = VAlloc(d1, d1 + 48)
    ta = tv.get(4); tk = tv.get(); cb_ = tv.get(); tq = tv.get(); pz = tv.get(4, 4)
    k.I('v_lshrrev_b32 v1, 6, v0')
    k.I(f'v_and_b32 v{vl}, 63, v0')
    k.I('v_readfirstlane_b32 s22, v1')
    k.I('s_and_b32 s20, s2, 6')
    k.I('s_lshl_b32 s20, s20, 1')
    k.I('s_lshr_b32 s21, s2, 6')
    k.I('s_add_u32 s20, s20, s21')
    k.I('s_bfe_u32 s56, s2, 0x30003')
    k.I('s_and_b32 s57, s2, 1')
    k.I('s_lshl_b32 s21, s57, 3')
    k.I('s_add_u32 s21, s21, s56')
    k.I('s_lshl_b32 s25, s20, 4')
    k.I('s_add_u32 s3, s25, s21')
    k.I(f's_mul_i32 s25, s3, {YT_ST}')
    k.I('s_add_u32 s26, s25, 4096')
    k.I('s_add_u32 s27, s25, 8192')
    k.I(f'v_lshlrev_b32 v{so}, 4, v0')
    k.I(f'v_lshlrev_b32 v{vo16}, 4, v{vl}')
    k.I(f'v_lshrrev_b32 v{ta+1}, 1, v0')
    k.I(f'v_cmp_ge_u32 s[34:35], 64, v{ta+1}')
    k.I('s_lshl_b32 s23, s20, 7')
    k.I('s_lshl_b32 s24, s21, 1')
    k.I('s_add_u32 s23, s23, s24')
    k.I('s_and_b32 s24, s22, 1')
    k.I('s_lshl_b32 s24, s24, 6')
    k.I('s_add_u32 s23, s23, s24')
    k.I('s_lshr_b32 s24, s22, 1')
    k.I('s_add_u32 s23, s23, s24')
    k.I('s_mul_i32 s28, s23, 1280')
    k.I(f's_add_u32 s29, s28, {32*1280}')
    k.I(f's_mul_i32 s30, s22, 2560')
    k.I(f's_add_u32 s30, s30, {XL}')
    k.I('s_lshl_b32 s31, s22, 11')
    k.I('s_lshl_b32 s32, s21, 2')
    k.I('s_add_u32 s32, s32, s22')
    k.I('s_mul_i32 s24, s32, 61440' if not env('W_SAME', 0) & 1 else 's_mul_i32 s24, s22, 61440')
    k.I(f's_add_u32 s24, s24, {WGU}')
    k.I(f'v_add_u32 v{vW}, s24, v{vo16}')
    k.I(f'v_and_b32 v{vi}, 15, v{vl}')
    k.I(f'v_lshrrev_b32 v{vq}, 4, v{vl}')
    addr = []
    A = addr.append
    A(f'v_lshrrev_b32 v{tq}, 1, v{vq}')
    A(f'v_mad_u32_u24 v{cb_}, v{vi}, 5, v{tq}')
    A(f'v_and_b32 v{tk}, 1, v{vq}')
    A(f'v_mul_u32_u24 v{oh}, 49152, v{tk}')
    A(f'v_lshlrev_b32 v{oh2}, 2, v{oh}')
    A(f'v_lshl_add_u32 v{oh}, v{tq}, 8, v{oh}')
    A(f'v_lshl_add_u32 v{oh}, v{vi}, 4, v{oh}')
    A(f'v_mul_u32_u24 v{tq}, 49152, v{tq}')
    A(f'v_add_u32 v{oh2}, v{oh2}, v{tq}')
    A(f'v_lshl_add_u32 v{oh2}, v{vi}, 4, v{oh2}')
    A(f'v_lshl_add_u32 v{tk}, v1, 1, v{tk}')
    for T in range(3):
        A(f'v_add_u32 v{tq}, {2*T}, v{cb_}')
        A(f'v_xor_b32 v{wh+T}, v{tq}, v{tk}')
        A(f'v_and_b32 v{wh+T}, 7, v{wh+T}')
        A(f'v_lshl_add_u32 v{wh+T}, v{tq}, 3, v{wh+T}')
        A(f'v_lshlrev_b32 v{wh+T}, 4, v{wh+T}')
    A(f'v_mul_u32_u24 v{wx}, 1280, v{tk}')
    A(f'v_lshl_add_u32 v{wx}, v{cb_}, 4, v{wx}')
    A(f'v_lshrrev_b32 v{tq}, 3, v0')
    A(f'v_xor_b32 v{g0}, v{tq}, v0')
    A(f'v_and_b32 v{g0}, 7, v{g0}')
    A(f'v_lshlrev_b32 v{g0}, 4, v{g0}')
    A(f'v_lshl_add_u32 v{g0}, v{tq}, 8, v{g0}')
    for t in addr: k.I(t)
    k.I(f'v_and_b32 v{ta}, 1, v0')
    k.I(f'v_mul_u32_u24 v{wu}, {2*PL}, v{ta}')
    k.I(f'v_sub_u32 v{wv}, 384, v{ta+1}')
    k.I(f'v_lshl_add_u32 v{wv}, v{wv}, 2, v{wu}')
    k.I(f'v_lshl_add_u32 v{wu}, v{ta+1}, 2, v{wu}')
    k.I(f's_mul_i32 s33, s22, {PL}')
    k.I(f'v_lshl_add_u32 v{ra}, v{vl}, 2, s33')
    k.I(f'v_mov_b32 v{dat+10}, 0'); k.I(f'v_mov_b32 v{dat+11}, 0')
    k.I(f'v_mul_u32_u24 v{xo}, 80, v{vi}')
    k.I(f'v_lshl_add_u32 v{xo}, v{vq}, 3, v{xo}')
    k.I(f'v_lshlrev_b32 v{mo}, 1, v{xo}')
    k.I(f'v_add_u32 v{xo}, s30, v{xo}')
    for j in range(8, 12): k.I(f'v_mov_b32 v{xr+j}, 0')
    k.I(f's_mul_i32 s58, s20, {8*49152}')
    k.I('s_mul_i32 s24, s32, 768')
    k.I('s_add_u32 s58, s58, s24')
    k.I(f's_add_u32 s58, s58, {HH}')
    for i in range(1, 4): k.I(f's_add_u32 s{58+i}, s58, {2*i*49152}')
    k.I('s_mul_i32 s42, s22, 6144')
    k.srd(16, 4, 256 * YT_ST, YT)
    for rho in range(3):
        if rho == 2: k.I('s_mov_b64 exec, s[34:35]')
        k.I(f'buffer_load_dwordx4 {vr(ch+4*rho,4)}, v{so}, s[16:19], s{25+rho} offen')
    k.I('s_mov_b64 exec, -1')
    k.srd(12, 4, WS_END6)
    k.I(f's_add_u32 m0, s42, {TL}')
    k.I(f's_add_u32 s43, s42, {TAB}')
    for i in range(4): k.I(f'buffer_load_dwordx4 v{vo16}, s[12:15], s43 offen offset:{1024*i} lds', tag='md')
    k.I(f's_add_u32 m0, s42, {TL+4096}')
    k.I(f's_add_u32 s43, s43, 4096')
    for i in range(2): k.I(f'buffer_load_dwordx4 v{vo16}, s[12:15], s43 offen offset:{1024*i} lds', tag='md')
    k.I(f's_add_u32 m0, s31, {MLD}')
    k.I(f's_add_u32 s31, s31, {MODN + 2*2560}')
    k.I(f'buffer_load_dwordx4 v{vo16}, s[12:15], s31 offen lds', tag='md')
    k.I(f'buffer_load_dwordx4 v{vo16}, s[12:15], s31 offen offset:1024 lds', tag='md')
    mark(k, 1)
    def wload(n):
        if env('NO_W', 0): return [f'v_add_u32 v{vW}, 0, v{vW}']
        g = [f'buffer_load_dwordx4 {ar(4*n,4)}, v{vW}, s[12:15], 0 offen offset:{1024*(n%4)}']
        if n % 4 == 3: g.append(f'v_add_u32 v{vW}, 0x1000, v{vW}')
        return g
    k.bg = [wload(n) for n in range(60)]
    k.emit_bg(env('W_00', 8))
    tb_ = g2
    k.I(f'v_add_u32 v{tb_}, {TL}, v{vo16}')
    mark(k, 2)
    be = k.bg_every; k.bg_every = 0
    for rho in range(3):
        if rho == 2: k.I('s_mov_b64 exec, s[34:35]')
        for pr in range(2):
            k.I(f'ds_write_b32 v{wu}, v{ch+4*rho+2*pr} offset:{pr*PL+512*rho}')
            k.I(f'ds_write_b32 v{wv}, v{ch+4*rho+2*pr+1} offset:{pr*PL+512*(2-rho)}')
    k.I('s_mov_b64 exec, -1')
    k.srd(8, 6, S * D * 2)
    for c in range(2):
        k.I(f's_add_u32 m0, s30, {1280*c}')
        k.I(f'buffer_load_dwordx4 v{vo16}, s[8:11], s{28+c} offen{XNT} lds', tag='xx')
        k.I('s_mov_b64 exec, 0xffff')
        k.I(f'buffer_load_dwordx4 v{vo16}, s[8:11], s{28+c} offen offset:1024{XNT} lds', tag='xx')
        k.I('s_mov_b64 exec, -1')
    k.emit_bg(env('W_0', 2))
    k.wait_tag('md')
    k.barrier()
    mark(k, 3)
    for p in range(5):
        k.I(f'ds_read2st64_b32 {vr(dat+2*p,2)}, v{ra} offset0:{2*p} offset1:{2*p+1}')
    def s1(T):
        o = []
        for kap in range(3):
            for c in range(2):
                dd = vr(d1 + (2*T+c)*4, 4)
                o.append(f'{MF16} {dd}, {vr(dat+4*kap,4)}, {vr(f40+(2*T+c)*10+4*kap,4)}, {dd if kap else 0}')
        return o
    tl = [f'ds_read_b128 {vr(f40+4*i,4)}, v{tb_} offset:{1024*i}' for i in range(23)]
    for t in tl[:9]: k.I(t)
    k.bg_every = env('BG2', 12)
    rest = merge(k, s1(0) + s1(1), tl[9:], 1)
    for t in rest: k.I(t)
    k.bg_every = 0
    for T in range(3): k.I(f'ds_read_b128 {vr(mg+4*T,4)}, v{mo} offset:{MLD+64*T}')
    a2 = ch; xf = f40
    cm = [rec(cmul4, d1+8*T, d1+8*T+4, cs+4*T, sn+4*T, a2+4*T, tmp, True) for T in range(3)]
    def s2(T): return [f'{MF16} {vr(d2+(2*T+c)*4,4)}, {vr(a2+4*T,4)}, {vr(f16+(0 if c else 2),4)}, 0' for c in range(2)]
    rest = merge(k, s1(2), cm[0], 2)
    for t in rest: k.I(t)
    k.wait_tag('xx')
    for T in range(3):
        if T == 2: k.I('s_mov_b32 exec_hi, 0')
        for c in range(2):
            k.I(f'ds_read_b64 {vr(xr+(2*T+c)*2,2)}, v{xo} offset:{1280*c+32*T}')
    k.I('s_mov_b64 exec, -1')
    k.bg_every = env('BG2', 12)
    for t in s2(0) + cm[1] + s2(1) + cm[2] + s2(2): k.I(t)
    for T in range(3):
        k.I(f'ds_read_b128 {vr(ms+4*T,4)}, v{mo} offset:{MLD+2560+64*T}')
        k.I(f'ds_read_b128 {vr(mc+4*T,4)}, v{mo} offset:{MLD+5120+64*T}')
    st_ = f40 + 24
    for T in range(3):
        for i in range(4*T, 4*T+4):
            k.I(f'v_lshlrev_b32 v{xf+2*i}, 16, v{xr+i}')
            k.I(f'v_and_b32 v{xf+2*i+1}, 0xffff0000, v{xr+i}')
        for c in range(2):
            for p in (0, 2):
                r = (2*T+c)*4+p
                k.I(f'v_pk_fma_f32 {vr(xf+r,2)}, {vr(d2+r,2)}, {vr(mg+4*T+p,2)}, {vr(xf+r,2)}')
        for c in range(2):
            r = xf+(2*T+c)*4
            if T == 0:
                k.I(f'v_pk_add_f32 {vr(st_+2*c,2)}, {vr(r,2)}, {vr(r+2,2)}')
                k.I(f'v_pk_mul_f32 {vr(st_+4+2*c,2)}, {vr(r,2)}, {vr(r,2)}')
            else:
                k.I(f'v_pk_add_f32 {vr(st_+2*c,2)}, {vr(st_+2*c,2)}, {vr(r,2)}')
                k.I(f'v_pk_fma_f32 {vr(st_+4+2*c,2)}, {vr(r,2)}, {vr(r,2)}, {vr(st_+4+2*c,2)}')
        for c in range(2):
            r = xf+(2*T+c)*4+2
            if T: k.I(f'v_pk_add_f32 {vr(st_+2*c,2)}, {vr(st_+2*c,2)}, {vr(r,2)}')
            k.I(f'v_pk_fma_f32 {vr(st_+4+2*c,2)}, {vr(r,2)}, {vr(r,2)}, {vr(st_+4+2*c,2)}')
    for i in range(4): k.I(f'v_add_f32 v{st_+2*i}, v{st_+2*i}, v{st_+2*i+1}')
    wave_reduce_to_sgpr(k, [st_, st_+2, st_+4, st_+6], [46, 47, 48, 49])
    po = d1; ph = d1 + 12; hn = d2
    rr = f40 + 32; nmr = f40 + 34
    ln_scalars(k, 46, 48, rr, nmr, tmp)
    for T in range(3):
        for c in range(2):
            for p in (0, 2):
                r = (2*T+c)*4+p
                k.I(f'v_pk_fma_f32 {vr(hn+r,2)}, {vr(xf+r,2)}, {vr(rr,2)}, {vr(nmr,2)} op_sel:[0,{c},{c}] op_sel_hi:[1,{c},{c}]')
        for c in range(2):
            for p in (0, 2):
                r = hn+(2*T+c)*4+p
                k.I(f'v_pk_fma_f32 {vr(r,2)}, {vr(r,2)}, {vr(mc+4*T+p,2)}, {vr(ms+4*T+p,2)}')
        for j in range(4):
            k.I(f'v_cvt_pk_bf16_f32 v{ph+4*T+j}, v{hn+8*T+2*j}, v{hn+8*T+2*j+1}')
        if T:
            k.I(f'v_permlane16_swap_b32 v{ph+4*T-4}, v{ph+4*T-2}')
            k.I(f'v_permlane16_swap_b32 v{ph+4*T-3}, v{ph+4*T-1}')
            k.I(f'ds_write_b128 v{wh+T-1}, {vr(ph+4*T-4,4)} offset:{HB}')
    k.bg_every = 0
    for j in range(2): k.I(f'v_cvt_pk_bf16_f32 v{po+j}, v{xf+2*j}, v{xf+2*j+1}')
    k.I(f'v_permlane16_swap_b32 v{ph+8}, v{ph+10}')
    k.I(f'v_permlane16_swap_b32 v{ph+9}, v{ph+11}')
    k.I('s_mov_b32 exec_hi, 0')
    k.I(f'ds_write_b128 v{wh+2}, {vr(ph+8,4)} offset:{HB}')
    k.I('s_mov_b64 exec, -1')
    k.I('s_lshr_b32 s42, s3, 1')
    k.I('s_mul_i32 s42, s42, 20480')
    k.I('s_and_b32 s24, s21, 1')
    k.I('s_lshl_b32 s24, s24, 7')
    k.I('s_add_u32 s42, s42, s24')
    k.I(f's_add_u32 s42, s42, {H2}')
    k.I('s_add_u32 s44, s42, 8192')
    k.I('s_add_u32 s45, s42, 16384')
    k.barrier()
    mark(k, 4)
    sd = mg
    for rho in range(3):
        k.I(f'ds_read_b128 {vr(sd+4*rho,4)}, v{so} offset:{HB+4096*rho}')
    for j in range(2, 12): k.I(f'v_cvt_pk_bf16_f32 v{po+j}, v{xf+2*j}, v{xf+2*j+1}')
    k.I(f'buffer_store_dwordx4 {vr(sd,4)}, v{g0}, s[12:15], s42 offen sc1', tag='h2')
    k.I(f'buffer_store_dwordx4 {vr(sd+4,4)}, v{g0}, s[12:15], s44 offen sc1', tag='h2')
    k.I('s_cmp_lt_u32 s22, 2')
    k.I('s_cselect_b64 exec, -1, 0')
    k.I(f'buffer_store_dwordx4 {vr(sd+8,4)}, v{g0}, s[12:15], s45 offen sc1', tag='h2')
    k.I('s_mov_b64 exec, -1')
    for T in range(3):
        k.I(f'v_permlane16_swap_b32 v{po+4*T}, v{po+4*T+2}')
        k.I(f'v_permlane16_swap_b32 v{po+4*T+1}, v{po+4*T+3}')
    for T in range(3):
        if T == 2: k.I('s_mov_b32 exec_hi, 0')
        k.I(f'ds_write_b128 v{wx}, {vr(po+4*T,4)} offset:{XB+32*T}')
    k.I('s_mov_b64 exec, -1')
    k.I(f's_sub_u32 s24, s30, {XL - XB}')
    k.I(f'v_add_u32 v{g2}, s24, v{vo16}')
    k.I('s_mul_i32 s43, s3, 10240')
    k.I(f's_add_u32 s43, s43, s30')
    k.I(f's_add_u32 s43, s43, {X1 - XL}')
    k.waitcnt(lgkm=0)
    sx = mc
    for i in range(3): k.I(f'ds_read_b128 {vr(sx+4*i,4)}, v{g2} offset:{1024*i}')
    for i in range(3):
        if i == 2: k.I('s_mov_b32 exec_hi, 0')
        k.I(f'buffer_store_dwordx4 {vr(sx+4*i,4)}, v{vo16}, s[12:15], s43 offen offset:{1024*i} sc1')
    k.I('s_mov_b64 exec, -1')
    k.emit_bg(W_ST)
    k.I('s_mul_i32 s24, s20, 163840')
    k.I(f's_add_u32 s24, s24, {H2}')
    k.I('s_add_u32 s16, s4, s24')
    k.I('s_addc_u32 s17, s5, 0')
    k.I('s_mov_b32 s18, 163840')
    k.I('s_mov_b32 s19, 0x00020000')
    k.I('s_and_b32 s52, s22, 2')
    k.I('s_add_u32 s52, s52, s22')
    k.I('s_mul_i32 s52, s52, 20480')
    k.I('s_add_u32 s53, s52, 40960')
    k.I('s_lshl_b32 s54, s20, 8')
    k.I(f's_add_u32 s54, s54, {FLAGS}')
    k.I('s_add_u32 s55, s54, 4096')
    k.I('s_add_u32 s51, s54, 128')
    k.srd(36, 40, S * D * 2)
    k.I(f'v_mov_b32 v{hs}, 0')
    k.I(f'v_mov_b32 v{hs+1}, 1')
    k.wait_tag('h2')
    mark(k, 5)
    signal(k, 'H1', 54, hs)
    k.emit_bg(W_PL)
    poll(k, 'H1', 54, hs, hr)
    mark(k, 6)
    va = VAlloc(keep)
    rb = [va.get(), va.get()]; vD = va.get()
    oo = va.get(); ox = va.get(); lw = va.get(); lr = va.get(); t0 = va.get(); t1 = va.get()
    act = va.get(32, 4); accs = [va.get(48, 4), va.get(48, 4)]; pk = va.get(12, 4)
    gb = va.get(8, 4); x1r = va.get(16, 4)
    NV = (256 - va.n) // 4
    wdv = va.get(4 * NV, 4)
    def wdreg(n): return vr(wdv + 4*n, 4) if n < NV else ar(4*(n - NV), 4)
    def emit(grp):
        for t in grp:
            if isinstance(t, tuple): k.I(t[0], tag=t[1])
            else: k.I(t)
    def dma(ps, g):
        out = []
        for j in range(4):
            gr = [(f'buffer_load_dwordx4 v{vo16}, s[16:19], m0 offen offset:{1024*j} sc1 lds', ('a', ps, g, j // 2))]
            if j == 0: gr = [f's_add_u32 m0, s{52+ps}, {4096*g}'] + gr
            out.append(gr)
        return out
    NPRE = env('E_PRE', 2)
    for g in range(NPRE):
        for grp in dma(0, g): emit(grp)
    k.emit_bg(W_A)
    late = list(k.bg); k.bg = []
    print('late weight loads', len(late), 'NV', NV)
    k.I(f'v_mov_b32 v{rb[0]}, v{vo16}')
    k.I(f'v_add_u32 v{rb[1]}, {4*20480}, v{vo16}')
    def aread(ps, i, kap):
        off = ((i & 1) + 2*ps) * 20480 + 1024*kap
        base = rb[i >> 1]
        return f'ds_read_b128 {vr(act+16*(kap&1)+4*i,4)}, v{base} offset:{off - (40960 if ps else 0)}'
    k.I('s_lshl_b32 s24, s56, 2')
    k.I('s_add_u32 s24, s24, s22')
    k.I('s_mul_i32 s24, s24, 61440' if not env('W_SAME', 0) & 2 else 's_mul_i32 s24, s22, 61440')
    k.I(f's_add_u32 s24, s24, {WD}')
    k.I(f'v_add_u32 v{vD}, s24, v{vo16}')
    def dload(n):
        if env('NO_WD', 0): return [f'v_add_u32 v{vD}, 0, v{vD}']
        g = [f'buffer_load_dwordx4 {wdreg(n)}, v{vD}, s[12:15], 0 offen offset:{1024*(n%4)}']
        if n % 4 == 3: g.append(f'v_add_u32 v{vD}, 0x1000, v{vD}')
        return g
    RS = 336; PT = 16 * RS
    k.I('s_lshl_b32 s24, s20, 1')
    k.I('s_add_u32 s24, s24, s57')
    k.I('s_lshl_b32 s24, s24, 2')
    k.I(f's_mul_i32 s33, s22, {12*1024}')
    k.I(f's_add_u32 s33, s33, {HH}')
    k.I('s_mul_i32 s42, s24, 49152')
    k.I('s_add_u32 s42, s42, s33')
    for i in range(1, 4): k.I(f's_add_u32 s{42+i}, s42, {49152*i}')
    k.I(f'v_mul_u32_u24 v{t0}, 26, v{vl}')
    k.I(f'v_lshrrev_b32 v{t0}, 8, v{t0}')
    k.I(f'v_mul_u32_u24 v{t1}, 10, v{t0}')
    k.I(f'v_sub_u32 v{t1}, v{vl}, v{t1}')
    k.I(f'v_mul_u32_u24 v{lr}, {RS}, v{t0}')
    k.I(f'v_lshl_add_u32 v{lr}, v{t1}, 4, v{lr}')
    k.I(f's_mul_i32 s25, s22, {4*RS}')
    k.I(f'v_add_u32 v{lr}, s25, v{lr}')
    k.I(f'v_mul_u32_u24 v{ox}, 1280, v{t0}')
    k.I(f'v_lshl_add_u32 v{ox}, v{t1}, 4, v{ox}')
    k.I(f'v_mul_u32_u24 v{oo}, {32*1280}, v{t0}')
    k.I(f'v_lshl_add_u32 v{oo}, v{t1}, 4, v{oo}')
    k.I(f'v_lshlrev_b32 v{t1}, 5, v{t1}')
    k.I(f'v_mul_u32_u24 v{lw}, {RS}, v{vi}')
    k.I(f's_mul_i32 s25, s22, {PT}')
    k.I(f'v_add_u32 v{lw}, s25, v{lw}')
    lw2 = t0
    k.I(f'v_mul_u32_u24 v{hr}, 5, v{vq}')
    k.I(f'v_add_u32 v{lw2}, 1, v{hr}')
    k.I(f'v_lshrrev_b32 v{lw2}, 1, v{lw2}')
    k.I(f'v_lshl_add_u32 v{lw2}, v{lw2}, 4, v{lw}')
    k.I(f'v_lshrrev_b32 v{hr}, 1, v{hr}')
    k.I(f'v_lshl_add_u32 v{lw}, v{hr}, 4, v{lw}')
    k.I(f'v_and_b32 v{hr}, 1, v{vq}')
    k.I(f'v_mul_u32_u24 v{hr}, 160, v{hr}')
    k.I(f'v_add_u32 v{lw}, v{lw}, v{hr}')
    k.I(f'v_sub_u32 v{lw2}, v{lw2}, v{hr}')
    k.I(f'v_add_u32 v{lw2}, 160, v{lw2}')
    k.I('s_mul_i32 s30, s56, 160')
    k.I('s_lshl_b32 s25, s24, 2')
    k.I('s_add_u32 s25, s25, s22')
    k.I(f's_mul_i32 s46, s25, {4*1280}')
    k.I('s_add_u32 s46, s46, s30')
    k.I(f's_add_u32 s46, s46, {X1}')
    for i in range(1, 4): k.I(f's_add_u32 s{46+i}, s46, {16*1280*i}')
    k.I('s_lshl_b32 s25, s20, 7')
    k.I('s_lshl_b32 s26, s57, 4')
    k.I('s_add_u32 s25, s25, s26')
    k.I('s_add_u32 s25, s25, s22')
    k.I('s_mul_i32 s25, s25, 1280')
    k.I('s_add_u32 s25, s25, s30')
    for i in range(1, 4): k.I(f's_add_u32 s{25+i}, s25, {4*1280*i}')
    k.I('s_lshl_b32 s30, s30, 1')
    k.I(f's_add_u32 s30, s30, {5*2560}')
    k.I('s_mov_b32 s34, -1')
    k.I('s_mov_b32 s35, 0xff')
    k.wait_tag(('a', 0, 0, 1))
    k.I('s_barrier')
    mark(k, 7)
    for kp_ in range(2):
        for i in range(4): k.I(aread(0, i, kp_))
    def epi(ps):
        acc = accs[ps]; o = []
        for pr in range(2):
            for j in range(2):
                i = 2*pr + j
                g_ = acc + i*4; u_ = acc + (4+i)*4
                for p in (0, 2): o.append(f'v_pk_mul_f32 {vr(g_+p,2)}, {vr(g_+p,2)}, {vr(u_+p,2)}')
            a_ = acc + (8+2*pr)*4; b_ = a_ + 4
            for r in range(4): o.append(f'v_permlane32_swap_b32 v{a_+r}, v{b_+r}')
            for j in range(2):
                g_ = acc + (2*pr+j)*4
                for p in (0, 2): o.append(f'v_cvt_pk_bf16_f32 v{pk+4*pr+2*j+p//2}, v{g_+p}, v{g_+p+1}')
            for p in (0, 2): o.append(f'v_pk_mul_f32 {vr(a_+p,2)}, {vr(a_+p,2)}, {vr(b_+p,2)}')
            o.append(f'v_permlane16_swap_b32 v{pk+4*pr}, v{pk+4*pr+2}')
            o.append(f'v_permlane16_swap_b32 v{pk+4*pr+1}, v{pk+4*pr+3}')
            for p in (0, 2): o.append(f'v_cvt_pk_bf16_f32 v{pk+8+2*pr+p//2}, v{a_+p}, v{a_+p+1}')
            o.append((f'buffer_store_dwordx4 {vr(pk+4*pr,4)}, v{oh}, s[12:15], s{58+2*pr+ps} offen sc1', ('h', ps)))
        o.append(f'v_permlane16_swap_b32 v{pk+8}, v{pk+10}')
        o.append(f'v_permlane16_swap_b32 v{pk+9}, v{pk+11}')
        o.append((f'buffer_store_dwordx4 {vr(pk+8,4)}, v{oh2}, s[12:15], s{58+ps} offen offset:512 sc1', ('h', ps)))
        return o
    slots_h = [vr(accs[0] + 4*i, 4) for i in range(12)] + [ar(240 + 4*i, 4) for i in range(4)] + [ar(4*i, 4) for i in range(60 - NV, 60)]
    NH = len(slots_h)
    horder = [(t, kp) for kp in range(12) for t in (0, 1)] + [(t, kp) for t in (2, 3) for kp in range(12)]
    def hload(n):
        t, kp = horder[n]
        if env('NO_H', 0): return [f's_add_u32 s{42+t}, s{42+t}, {n}']
        g = [f'buffer_load_dwordx4 {slots_h[n % NH]}, v{vo16}, s[12:15], s{42+t} offen offset:{1024*(kp%4)} sc1']
        if kp % 4 == 3: g.append(f's_add_u32 s{42+t}, s{42+t}, 4096')
        return g
    def check(name, cnt):
        k.I(f'v_readfirstlane_b32 s33, v{hr}')
        k.I('s_cmp_ge_u32 s33, 16')
        k.I(f's_cbranch_scc0 L{name}_spin', noflush=True)
        k.raw(f'L{name}_ok:')
        spins.append((name, cnt))
    spins = []
    q1 = []
    for g in range(NPRE, 5): q1 += dma(0, g)
    q1 += late
    for g in range(5): q1 += dma(1, g)
    q1 += [[f'buffer_load_dwordx4 {vr(gb+4*j,4)}, v{t1}, s[12:15], s30 offen offset:{16*j}'] for j in range(2)]
    nd = 0; nh = 0
    bars = {(0, 2): ('a', 0, 1, 1), (0, 6): ('a', 0, 2, 1), (0, 10): ('a', 0, 4, 1), (0, 18): ('a', 1, 1, 1), (1, 6): ('a', 1, 4, 1), (1, env('K_SA', 9)): None}
    VRATE = env('VRATE', 25) / 120.0
    credit = 1.0
    KA_, KC_ = env('K_A', 13), env('K_C', 16)
    ep = []
    fl = []
    since = 99
    def isvm(t): return (t[0] if isinstance(t, tuple) else t).startswith('buffer_')
    for ps in range(2):
        for kap in range(20):
            pend = list(fl) + [t for g in q1 for t in g]
            for mt in range(3):
                assert ps or not any(isinstance(t, str) and t.startswith(f'buffer_load_dwordx4 {ar((3*kap+mt)*4,4)},') for t in pend), ('weight late', kap)
            if (ps, kap) in bars:
                if bars[(ps, kap)]:
                    assert not any(isinstance(t, tuple) and t[1] <= bars[(ps, kap)] for t in pend), ('dma late', ps, kap)
                    k.wait_tag(bars[(ps, kap)])
                if not bars[(ps, kap)]:
                    assert not ep
                    em(k, 3)
                    k.wait_tag(('h', 0))
                    signal(k, 'HA', 55, hs, noflush=True)
                    em(k, 4)
                else: k.I('s_barrier')
            if ps == 0 and kap == 18:
                k.I(f'v_add_u32 v{rb[0]}, 40960, v{rb[0]}')
                k.I(f'v_add_u32 v{rb[1]}, 40960, v{rb[1]}')
            if ps == 1 and kap == 1:
                if env('EP_SERIAL', 1):
                    em(k, 1)
                    for t in epi(0): emit([t])
                    em(k, 2)
                else: ep = pairs(epi(0))
            if ps == 1 and kap == KA_: fl.insert(0 if not fl or isvm(fl[0]) else 1, f'buffer_load_dword v{hr}, v{hs}, s[12:15], s55 offen sc1') if False else k.I(f'buffer_load_dword v{hr}, v{hs}, s[12:15], s55 offen sc1')
            if ps == 1 and kap == KC_: em(k, 5); check('HA', 55); em(k, 6)
            for j in range(12):
                i, mt = divmod(j, 3)
                dd = vr(accs[ps]+(mt*4+i)*4, 4)
                k.I(f'{MF16} {dd}, {ar((3*kap+mt)*4,4)}, {vr(act+16*(kap&1)+4*i,4)}, {dd if kap else 0}')
                since += 1; credit = min(credit + VRATE, 1.6)
                rd = None
                if mt == 2:
                    if kap < 18: rd = aread(ps, i, kap + 2)
                    elif ps == 0: rd = aread(1, i, kap - 18)
                if rd: k.I(rd); continue
                if j == 10 and len(k.lg) > 3: k.waitcnt(lgkm=3); continue
                if j == 10 and ps == 1 and kap == 18: k.waitcnt(lgkm=0); continue
                if not fl:
                    free = NV + (3 * kap if ps else 0)
                    if q1: fl = list(q1.pop(0))
                    elif ps == 1 and kap >= KC_ and nh < 16 and (nh // 2) * 5 < nd: fl = list(hload(nh)); nh += 1
                    elif nd < min(free, 60): fl = list(dload(nd)); nd += 1
                if ep and isvm(ep[0][0]):
                    emit(ep.pop(0)); since = 0; credit -= 1.0
                elif fl and (not isvm(fl[0]) or (since >= 3 and credit >= 1.0)):
                    t = fl.pop(0)
                    if isvm(t): since = 0; credit -= 1.0
                    emit([t])
                elif ep:
                    g_ = ep.pop(0); emit(g_)
                    if ep and len(g_) == 1 and len(ep[0]) == 1 and not isvm(ep[0][0]): emit(ep.pop(0))
        if ps == 0 and not env('MD', 0): mark(k, 2)
    for t in fl: emit([t])
    assert not q1
    print('after E: wd loaded', nd, 'h loaded', nh)
    NHE = nh
    mark(k, 8); fm(k, 1); em(k, 7)
    fq = []
    def need_order():
        o = []; d = nd; h = nh
        for kp in range(12):
            while d < 5*(kp+1): o.append(dload(d)); d += 1
            while h < 2*(kp+1): o.append(hload(h)); h += 1
        return o
    fq = need_order()
    full = list(fq)
    def sorted_q(a_, b_):
        rest = [g for g in b_ if g not in full]
        return [g for g in full if g in a_ or g in b_] + rest
    fq += [['s_mov_b64 exec, s[34:35]', f'buffer_load_dwordx4 {vr(x1r+4*t,4)}, v{ox}, s[12:15], s{46+t} offen sc1', 's_mov_b64 exec, -1'] for t in range(4)]
    for t in epi(1): emit([t])
    fm(k, 2)
    if KC_ >= 20: check('HA', 55)
    fm(k, 3)
    for _ in range(env('F_PRE1', 0)):
        if fq: emit(fq.pop(0))
    mark(k, 9); fm(k, 4)
    fa = accs[1]
    SL = [0, 4*PT, 8*PT, 0]
    def pwrite(t, a): return [f'ds_write_b128 v{lw2 if dt & 1 else lw}, {vr(a+4*dt,4)} offset:{SL[t]+16*(dt//2)}' for dt in range(5)]
    def fin_reads(t, r): return [f'ds_read_b128 {vr(r+8*src+4*h_,4)}, v{lr} offset:{SL[t]+PT*src+160*h_}' for src in range(4) for h_ in range(2)]
    def fin_valu(t, r, xf):
        o = []
        for j in range(4):
            o.append(f'v_lshlrev_b32 v{xf+2*j}, 16, v{x1r+4*t+j}')
            o.append(f'v_and_b32 v{xf+2*j+1}, 0xffff0000, v{x1r+4*t+j}')
        for p in range(4): o.append(f'v_pk_add_f32 {vr(r+2*p,2)}, {vr(r+2*p,2)}, {vr(r+8+2*p,2)}')
        for p in range(4): o.append(f'v_pk_add_f32 {vr(r+16+2*p,2)}, {vr(r+16+2*p,2)}, {vr(r+24+2*p,2)}')
        for p in range(4): o.append(f'v_pk_add_f32 {vr(r+2*p,2)}, {vr(r+2*p,2)}, {vr(r+16+2*p,2)}')
        for p in range(4): o.append(f'v_pk_fma_f32 {vr(xf+2*p,2)}, {vr(r+2*p,2)}, {vr(gb+2*p,2)}, {vr(xf+2*p,2)}')
        for p in range(4): o.append(f'v_cvt_pk_bf16_f32 v{x1r+4*t+p}, v{xf+2*p}, v{xf+2*p+1}')
        return o
    OST = os.environ.get('OUT_ST', '')
    def fin_store(t): return ['s_mov_b64 exec, s[34:35]', f'buffer_store_dwordx4 {vr(x1r+4*t,4)}, v{oo}, s[36:39], s{25+t} offen{OST}', 's_mov_b64 exec, -1']
    KB_ = env('K_B', 3)
    fl = []
    def gap(pool):
        nonlocal fl
        if not fl and pool:
            g = pool.pop(0)
            if isinstance(g[0], str) and g[0].startswith('s_mov_b64 exec'): emit(g); return
            fl = list(g)
        if fl: emit([fl.pop(0)])
    FG = env('F_GAP', 5)
    KBL, KBC = env('K_BL', 8), env('K_BC', 11)
    since = 99; nh = 24
    hq = [hload(n) for n in range(24, 48)]
    for kp in range(12):
        if kp == KB_:
            k.wait_tag(('h', 1))
            signal(k, 'HB', 51, hs, noflush=True)
            fm(k, 5)
        if kp == KBL: fq.insert(0, [f'buffer_load_dword v{hr}, v{hs}, s[12:15], s51 offen sc1'])
        if kp == KBC:
            while fq or fl: gap(fq)
            check('HB', 51); fm(k, 7)
            fq = hq
        for t in range(2):
            need = [wdreg(5*kp+dt) for dt in range(5)] + [slots_h[(2*kp+t) % NH]]
            while fq is not hq and any(g[0].startswith(f'buffer_load_dwordx4 {r},') for g in fq for r in need): gap(fq)
            for dt in range(5):
                dd = vr(fa+20*t+4*dt, 4)
                k.I(f'{MF16} {dd}, {wdreg(5*kp+dt)}, {slots_h[(2*kp+t) % NH]}, {dd if kp else 0}')
                since += 1
                if dt == 4: continue
                if fl: gap(fq)
                elif since >= (FG if fq is hq else env('F_GAP1', 2)) and fq: gap(fq); since = 0
    while fl: gap(fq)
    if KBC >= 12:
        while fq: gap(fq)
    if not env('MD', 0): mark(k, 3)
    fm(k, 6); em(k, 8)
    def sprinkle(lst, every):
        for j, v_ in enumerate(lst):
            k.I(v_)
            if j % every == every - 1 and hq: emit(hq.pop(0))
    if KBC >= 12: check('HB', 51); fm(k, 7)
    sprinkle(pwrite(0, fa) + pwrite(1, fa + 20), env('SPR', 2))
    k.barrier()
    em(k, 9)
    xfA = pk
    sprinkle(fin_reads(0, fa) + fin_reads(1, act), 8)
    sprinkle(fin_valu(0, fa, pk), 14)
    if not env('MD', 0): mark(k, 4)
    late_st = [fin_store(0), fin_store(1)]
    extra0 = pairs(fin_valu(1, act, fa + 40))
    rB = act
    extra = extra0
    hq = hq + late_st
    since = 99
    for t in (2, 3):
        a = fa + 20*(t - 2)
        if t == 3:
            assert not extra
            extra = [[w_] for w_ in pwrite(2, fa)]
        for kp in range(12):
            n = 24 + 12*(t-2) + kp
            if n == 25: fm(k, 8)
            assert not any(g[0].startswith(f'buffer_load_dwordx4 {slots_h[n % NH]},') for g in hq)
            for dt in range(5):
                dd = vr(a+4*dt, 4)
                k.I(f'{MF16} {dd}, {wdreg(5*kp+dt)}, {slots_h[n % NH]}, {dd if kp else 0}')
                since += 1
                if dt == 4 and n < 46: continue
                if fl: gap(hq)
                elif hq and since >= FG and not (extra is extra0 and extra and hq[0] is late_st[1]): gap(hq); since = 0
                elif (kp >= 1 or t == 2) and extra: emit(extra.pop(0))
            if t == 3 and kp == 3:
                assert not extra
                k.barrier()
                extra = [[r_] for r_ in fin_reads(2, wdv)] + pairs(fin_valu(2, wdv, xfA)) + [fin_store(2)]
    fm(k, 9)
    while extra: emit(extra.pop(0))
    for w_ in pwrite(3, fa + 20): k.I(w_)
    xl = fin_valu(3, wdv + 32, act)
    for v_ in xl[:8]: k.I(v_)
    k.barrier()
    for r_ in fin_reads(3, wdv + 32): k.I(r_)
    for v_ in xl[8:]: k.I(v_)
    emit(fin_store(3))
    stamp_end(k, 3, 4)
    k.label('LD_exit')
    k.I('s_endpgm')
    for name, cnt in spins:
        k.label(f'L{name}_spin', fresh=True); k.vm = []; k.lg = []
        k.I('s_mov_b32 s24, 0x100000')
        k.label(f'L{name}_loop')
        k.I(f'buffer_load_dword v{hr}, v{hs}, s[12:15], s{cnt} offen sc1')
        k.waitcnt(vm=0)
        k.I(f'v_readfirstlane_b32 s33, v{hr}')
        k.I('s_sub_u32 s24, s24, 1')
        k.I(f's_cbranch_scc1 L{name}_ok')
        k.I('s_cmp_lt_u32 s33, 16')
        k.I(f's_cbranch_scc1 L{name}_loop')
        k.I(f's_branch L{name}_ok')
    return k, (256, 256, 163840)
```

```python
import sys, math, os
import gen, gen2
from gen import *
from gen2 import *
from gen import mark, stamp_begin, stamp_end

GR = WS_END2
YT = GR + 0x10000
YT_ST = 10496
WS_END4 = YT + 256 * YT_ST
EPOCH = 0x8000
NPF = 9
XNT = ' nt' if os.environ.get('XNT') == '1' else ''

def tag_issue(k, srd, vz, vt):
    k.I(f'buffer_load_dwordx2 {vr(vt,2)}, v{vz}, s[{srd}:{srd+3}], 0 offen sc1')
def tag_check(k, name, srd, vz, vt, s_tag):
    k.I('s_mov_b32 s3, 0x40000')
    k.waitcnt(vm=0)
    k.label(f'L{name}')
    k.I(f'v_readfirstlane_b32 s{s_tag+1}, v{vt+1}')
    k.I(f'v_readfirstlane_b32 s{s_tag}, v{vt}')
    k.I(f's_cmp_eq_u32 s{s_tag+1}, 1')
    k.I(f's_cbranch_scc1 L{name}_o')
    k.I('s_sub_u32 s3, s3, 1')
    k.I(f's_cbranch_scc1 L{name}_o')
    k.I('s_sleep 2')
    tag_issue(k, srd, vz, vt)
    k.waitcnt(vm=0)
    k.I(f's_branch L{name}')
    k.label(f'L{name}_o')

def role_mod4(k, lexit):
    va = VAlloc(1)
    vrw = va.get(); voff = va.get(); vc = va.get(5); vw = va.get(20, 4); acc = va.get(8, 4); t0 = va.get(); t1 = va.get(); vco = va.get()
    vz = va.get(); vt = va.get(2, 2)
    k.I(f'v_lshrrev_b32 v{vrw}, 3, v0')
    k.I(f'v_mul_u32_u24 v{voff}, 7680, v{vrw}')
    k.I(f'v_and_b32 v{t0}, 7, v0')
    k.I(f'v_lshl_add_u32 v{voff}, v{t0}, 4, v{voff}')
    k.I(f'v_lshlrev_b32 v{vco}, 1, v{vrw}')
    k.I(f'v_mov_b32 v{vz}, 0')
    k.I('s_lshl_b32 s23, s20, 7')
    k.I(f's_mul_i32 s22, s21, {160*7680}')
    k.I('s_add_u32 s23, s23, s22')
    k.I('s_mul_i32 s22, s21, 320')
    k.srd(24, 10, D * 6 * D * 2)
    k.srd(28, 8, D * 2)
    mark(k, 1)
    for i in range(5):
        k.I(f'buffer_load_dwordx4 {vr(vw+4*i,4)}, v{voff}, s[24:27], s23 offen nt')
        if i < 4: k.I(f's_add_u32 s23, s23, {32*7680}')
        if i == 0:
            for j in range(5): k.I(f'buffer_load_ushort v{vc+j}, v{vco}, s[28:31], s22 offen offset:{64*j}')
    mark(k, 2)
    k.srd(32, 4, 4 * 960 * 16, GR)
    k.srd(52, 56, 256)
    up = va.get(8, 2)
    tt = va.get(5)
    R = range(5)
    for i in R: k.I(f'v_lshlrev_b32 v{vc+i}, 16, v{vc+i}')
    tag_issue(k, 52, vz, vt)
    mark(k, 3)
    for i in R: k.I(f'v_mul_f32 v{tt+i}, {fhex(-math.log2(math.e))}, v{vc+i}')
    for i in R: k.I(f'v_exp_f32 v{tt+i}, v{tt+i}')
    for i in R: k.I(f'v_add_f32 v{tt+i}, 1.0, v{tt+i}')
    for i in R: k.I(f'v_rcp_f32 v{tt+i}, v{tt+i}')
    for i in R: k.I(f'v_mul_f32 v{vc+i}, v{vc+i}, v{tt+i}')
    for i in R: k.I(f'v_cvt_pk_bf16_f32 v{vc+i}, v{vc+i}, v{vc+i}')
    sv = va.get(10, 2)
    for i in R: k.I(f'v_and_b32 v{sv+2*i}, 0xffff0000, v{vc+i}')
    for i in R:
        for j in range(4):
            k.I(f'v_lshlrev_b32 v{up+2*j}, 16, v{vw+4*i+j}')
            k.I(f'v_and_b32 v{up+2*j+1}, 0xffff0000, v{vw+4*i+j}')
        for j in range(4):
            if i == 0: k.I(f'v_pk_mul_f32 {vr(acc+2*j,2)}, {vr(up+2*j,2)}, {vr(sv,2)} op_sel_hi:[1,0]')
            else: k.I(f'v_pk_fma_f32 {vr(acc+2*j,2)}, {vr(up+2*j,2)}, {vr(sv+2*i,2)}, {vr(acc+2*j,2)} op_sel_hi:[1,0,1]')
    for j in range(8): k.I(f'v_add_f32_dpp v{acc+j}, v{acc+j}, v{acc+j} row_ror:8 row_mask:0xf bank_mask:0xf')
    k.I(f'v_lshrrev_b32 v{t1}, 4, v0')
    k.I(f'v_lshlrev_b32 v{t1}, 8, v{t1}')
    k.I(f'v_lshl_add_u32 v{t1}, v{t0}, 5, v{t1}')
    k.I('s_mov_b32 exec_lo, 0x00ff00ff')
    k.I('s_mov_b32 exec_hi, 0x00ff00ff')
    k.I(f'ds_write_b128 v{t1}, {vr(acc,4)}')
    k.I(f'ds_write_b128 v{t1}, {vr(acc+4,4)} offset:16')
    k.I('s_mov_b64 exec, -1')
    k.I('v_readfirstlane_b32 s38, v0')
    k.I(f'v_lshlrev_b32 v{t0}, 2, v0')
    k.barrier()
    mark(k, 4)
    k.I('s_cmp_lg_u32 s38, 0')
    k.I(f's_cbranch_scc1 {lexit}')
    for j in range(8):
        k.I(f'ds_read2st64_b32 {vr(vw+2*j,2)}, v{t0} offset0:{2*j} offset1:{2*j+1}')
    k.I('s_sub_u32 s39, s20, 10')
    k.I('s_cmp_lt_u32 s39, 10')
    k.I('s_cselect_b32 s41, 1.0, 0')
    k.I('s_cmp_eq_u32 s21, 0')
    k.I('s_cselect_b32 s41, s41, 0')
    k.I(f's_mul_i32 s45, s21, {960*16}')
    k.I('s_lshl_b32 s44, s20, 8')
    k.I('s_add_u32 s45, s45, s44')
    k.I('s_mov_b32 s40, 0x07060503')
    k.I('s_mov_b32 s42, 0x07060502')
    k.I('s_mov_b32 s43, 0x07060501')
    for j in range(4): k.I(f'v_pk_add_f32 {vr(vw+2*j,2)}, {vr(vw+2*j,2)}, {vr(vw+8+2*j,2)}')
    for j in range(2): k.I(f'v_pk_add_f32 {vr(vw+2*j,2)}, {vr(vw+2*j,2)}, {vr(vw+4+2*j,2)}')
    k.I(f'v_pk_add_f32 {vr(vw,2)}, {vr(vw,2)}, {vr(vw+2,2)}')
    k.I(f'v_add_f32 v{vw}, v{vw}, v{vw+1}')
    k.I(f'v_add_f32 v{vw}, s41, v{vw}')
    for j in range(1, 4): k.I(f'v_mov_b32_dpp v{vw+j}, v{vw} quad_perm:[{j},{j},{j},{j}] row_mask:0xf bank_mask:0xf')
    for j, sel in enumerate((40, 42, 43)): k.I(f'v_perm_b32 v{vw+j}, v{vw+j}, v{vw+3}, s{sel}')
    mark(k, 5)
    tag_check(k, 'A_tag', 52, vz, vt, 58)
    mark(k, 6)
    k.I(f'v_mov_b32 v{vw+3}, s58')
    k.I('s_mov_b32 exec_lo, 0x11111111')
    k.I('s_mov_b32 exec_hi, 0x11111111')
    k.I(f'buffer_store_dwordx4 {vr(vw,4)}, v{t0}, s[32:35], s45 offen sc1')

def unpack_gran(k, g, t, s1, s2):
    k.I(f'v_perm_b32 v{t}, v{g}, v{g+1}, s{s1}')
    k.I(f'v_perm_b32 v{g+3}, v{t}, v{g+2}, s{s2}')

class Rec:
    def __init__(self): self.l = []
    def I(self, t, **kw): self.l.append(t)
def rec(fn, *a):
    r = Rec(); fn(r, *a); return r.l
def merge(k, main, fill, per):
    fill = list(fill)
    for m in main:
        k.I(m)
        for _ in range(per):
            if fill: k.I(fill.pop(0))
    for t in fill: k.I(t)

def role_B4(k, boff):
    PL = 5184; ML = 4 * PL
    k.I(f's_sub_u32 s2, s2, {boff}')
    va = VAlloc(2)
    vl = va.get(); xs = va.get(20, 4); md = va.get(20, 4); vo = va.get()
    for i in range(20): k.I(f'v_mov_b32 v{xs+i}, 0')
    ids2(k, vl)
    k.I('s_mul_i32 s28, s23, 1280')
    k.I(f's_add_u32 s29, s28, {32*1280}')
    k.I(f'v_lshlrev_b32 v{vo}, 1, v{vl}')
    def xloads():
        k.srd(40, 6, S * D * 2)
        for e in range(10):
            k.I(f'buffer_load_short_d16_hi v{xs+2*e}, v{vo}, s[40:43], s28 offen offset:{128*e}{XNT}')
            k.I(f'buffer_load_short_d16_hi v{xs+2*e+1}, v{vo}, s[40:43], s29 offen offset:{128*e}{XNT}')
    fi = va.get(); fq = va.get(); fq4 = va.get(); vi = va.get(); vq = va.get()
    k.I(f'v_and_b32 v{vi}, 15, v{vl}')
    k.I(f'v_lshrrev_b32 v{vq}, 4, v{vl}')
    k.I(f'v_cvt_f32_u32 v{fi}, v{vi}')
    k.I(f'v_cvt_f32_u32 v{fq}, v{vq}')
    k.I(f'v_mul_f32 v{fq4}, 4.0, v{fq}')
    va.n = (va.n + 3) // 4 * 4
    r_ = Rec(); f40 = gen_f40(r_, va, fi, fq, False)
    XA = env('X_AT', 160)
    for t in r_.l[:XA]: k.I(t)
    xloads()
    for t in r_.l[XA:]: k.I(t)
    va.n = f40 + 62
    mark(k, 1)
    k.srd(44, 4, XT_SZ, XT)
    k.srd(48, 4, 4 * 960 * 16, GR)
    k.srd(52, 56, 256)
    cs, sn = gen_tw640(k, va, fi, fq4)
    va.n = sn + 12
    f16 = va.get(8, 2); tmp = va.get(8, 2); ta = md
    dat = va.get(12, 2)
    k.I(f'v_mov_b32 v{dat+10}, 0'); k.I(f'v_mov_b32 v{dat+11}, 0')
    tag_issue(k, 52, dat + 10, dat)
    k.I(f'v_lshrrev_b32 v{ta}, 1, v{vi}')
    k.I(f'v_cvt_f32_u32 v{ta}, v{ta}')
    k.I(f'v_and_b32 v{ta+1}, 1, v{vi}')
    k.I(f'v_cvt_f32_u32 v{ta+1}, v{ta+1}')
    k.I(f'v_mul_f32 v{ta+1}, 0x3e800000, v{ta+1}')
    for U in range(2):
        k.I(f'v_add_f32 v{ta+2}, {fhex(8.0*U)}, v{ta}')
        k.I(f'v_mul_f32 v{ta+2}, {fhex(1.0/16)}, v{ta+2}')
        k.I(f'v_fma_f32 v{ta+3}, v{fq4}, v{ta+2}, v{ta+1}')
        for j in range(4): k.I(f'v_fmamk_f32 v{tmp+4+j}, v{ta+2}, {fhex(float(j))}, v{ta+3}')
        for j in range(4):
            k.I(f'v_cos_f32 v{tmp+j}, v{tmp+4+j}')
            k.I(f'v_sin_f32 v{tmp+4+j}, v{tmp+4+j}')
        for j in range(4): k.I(f'v_cvt_pk_bf16_f32 v{f16+4*U+j}, v{tmp+2*j}, v{tmp+2*j+1}')
    wa = fi; ru = fq; rv = fq4; so = vo
    k.I(f'v_mul_u32_u24 v{wa}, 80, v{vq}')
    k.I(f'v_add_lshl_u32 v{wa}, v{wa}, v{vi}, 3')
    k.I(f's_mul_i32 s31, s22, {PL}')
    k.I(f'v_add_u32 v{wa}, s31, v{wa}')
    k.I(f'v_and_b32 v{ta}, 1, v0')
    k.I(f'v_lshrrev_b32 v{ta+1}, 1, v0')
    k.I(f'v_mul_u32_u24 v{ru}, {2*PL}, v{ta}')
    k.I(f'v_sub_u32 v{rv}, 384, v{ta+1}')
    k.I(f'v_lshl_add_u32 v{rv}, v{rv}, 3, v{ru}')
    k.I(f'v_lshl_add_u32 v{ru}, v{ta+1}, 3, v{ru}')
    k.I(f'v_lshlrev_b32 v{so}, 13, v{ta+1}')
    k.I(f'v_lshl_add_u32 v{so}, v{ta}, 4, v{so}')
    gA = 1; gB = vq; lB = vi; rm = vl
    k.I('s_mul_i32 s31, s22, 1280')
    k.I(f'v_lshl_add_u32 v{gA}, v{vl}, 4, s31')
    k.I('s_add_u32 s31, s31, 1024')
    k.I(f'v_lshl_add_u32 v{lB}, v{vi}, 4, s31')
    k.I(f'v_mul_u32_u24 v{gB}, {960*16}, v{vq}')
    k.I(f'v_add_u32 v{gB}, v{gB}, v{lB}')
    k.I(f'v_lshlrev_b32 v{rm}, 2, v{vl}')
    k.I(f'v_add_u32 v{rm}, {ML}, v{rm}')
    for p in range(1, 4): k.I(f's_mov_b32 s{35+p}, {960*16*p}')
    k.I('s_mov_b32 s60, 0x04000c0c')
    k.I('s_mov_b32 s61, 0x0706000c')
    mark(k, 2)
    sm = md; sq = md + 2; rr = md + 4; nmr = md + 6
    k.I(f'v_pk_add_f32 {vr(sm,2)}, {vr(xs,2)}, {vr(xs+2,2)}')
    k.I(f'v_pk_mul_f32 {vr(sq,2)}, {vr(xs,2)}, {vr(xs,2)}')
    k.I(f'v_pk_fma_f32 {vr(sq,2)}, {vr(xs+2,2)}, {vr(xs+2,2)}, {vr(sq,2)}')
    for e in range(2, 10):
        k.I(f'v_pk_add_f32 {vr(sm,2)}, {vr(sm,2)}, {vr(xs+2*e,2)}')
        k.I(f'v_pk_fma_f32 {vr(sq,2)}, {vr(xs+2*e,2)}, {vr(xs+2*e,2)}, {vr(sq,2)}')
    wave_reduce_to_sgpr(k, [sm, sm+1, sq, sq+1], [32, 33, 34, 35])
    ln_scalars(k, 32, 34, rr, nmr, tmp)
    for e in range(10):
        k.I(f'v_pk_fma_f32 {vr(xs+2*e,2)}, {vr(xs+2*e,2)}, {vr(rr,2)}, {vr(nmr,2)}')
    mark(k, 3)
    tag_check(k, 'B_tag', 52, dat + 10, dat, 58)
    mark(k, 4)
    tx = tmp
    k.I('s_mov_b32 s3, 0x40000')
    k.label('LB_poll')
    for p in range(4):
        k.I(f'buffer_load_dwordx4 {vr(md+4*p,4)}, v{gA}, s[48:51], {"s%d" % (35+p) if p else 0} offen sc1')
    k.I(f'buffer_load_dwordx4 {vr(md+16,4)}, v{gB}, s[48:51], 0 offen sc1')
    for p in range(5): k.I(f'v_xor_b32 v{tx+p}, s58, v{md+4*p+3}')
    k.I(f'v_or3_b32 v{tx}, v{tx}, v{tx+1}, v{tx+2}')
    k.I(f'v_or3_b32 v{tx}, v{tx}, v{tx+3}, v{tx+4}')
    k.I(f'v_cmp_ne_u32 vcc, 0, v{tx}')
    for p in (4, 0, 1, 2, 3): unpack_gran(k, md+4*p, tx+1+p, 60, 61)
    k.I('s_cbranch_vccz LB_go')
    k.I(f's_sleep {env("SLEEP", 2)}')
    k.I('s_sub_u32 s3, s3, 1')
    k.I('s_cbranch_scc0 LB_poll')
    k.label('LB_go')
    mark(k, 5)
    b_ = md + 16
    for j in range(4): k.I(f'v_mov_b32 v{tx+j}, v{b_+j}')
    for p in (0, 2):
        k.I(f'v_pk_add_f32 {vr(md+p,2)}, {vr(md+p,2)}, {vr(md+4+p,2)}')
        k.I(f'v_pk_add_f32 {vr(md+8+p,2)}, {vr(md+8+p,2)}, {vr(md+12+p,2)}')
    for j in range(4): k.I(f'v_permlane32_swap_b32 v{tx+j}, v{b_+j}')
    for p in (0, 2): k.I(f'v_pk_add_f32 {vr(md+p,2)}, {vr(md+p,2)}, {vr(md+8+p,2)}')
    for p in (0, 2): k.I(f'v_pk_add_f32 {vr(b_+p,2)}, {vr(b_+p,2)}, {vr(tx+p,2)}')
    k.I(f'ds_write_b128 v{gA}, {vr(md,4)} offset:{ML}')
    for j in range(4): k.I(f'v_mov_b32 v{tx+j}, v{b_+j}')
    for j in range(4): k.I(f'v_permlane16_swap_b32 v{tx+j}, v{b_+j}')
    for p in (0, 2): k.I(f'v_pk_add_f32 {vr(b_+p,2)}, {vr(b_+p,2)}, {vr(tx+p,2)}')
    k.I(f'ds_write_b128 v{lB}, {vr(b_,4)} offset:{ML}')
    k.barrier()
    mark(k, 6)
    for p in range(5):
        k.I(f'ds_read2st64_b32 {vr(md+4*p,2)}, v{rm} offset0:{10+2*p} offset1:{11+2*p}')
        k.I(f'ds_read2st64_b32 {vr(md+4*p+2,2)}, v{rm} offset0:{2*p} offset1:{2*p+1}')
    for e in range(10):
        h_ = e & 1; p = e // 2
        k.I(f'v_pk_fma_f32 {vr(xs+2*e,2)}, {vr(xs+2*e,2)}, {vr(md+4*p,2)}, {vr(md+4*p+2,2)} op_sel:[0,{h_},{h_}] op_sel_hi:[1,{h_},{h_}]')
        if e >= 1: k.I(f'v_cvt_pk_bf16_f32 v{dat+e-1}, v{xs+2*e-2}, v{xs+2*e-1}')
    k.I(f'v_cvt_pk_bf16_f32 v{dat+9}, v{xs+18}, v{xs+19}')
    d1 = xs; b2 = xs + 24; d2 = f40
    def s1(T):
        o = []
        for kap in range(3):
            for c in range(2):
                dd = vr(d1 + (2*T+c)*4, 4)
                o.append(f'{MF16} {dd}, {vr(dat+4*kap,4)}, {vr(f40+(2*T+c)*10+4*kap,4)}, {dd if kap else 0}')
        return o
    cm = [rec(cmul4, d1+8*T, d1+8*T+4, cs+4*T, sn+4*T, b2+4*T, tmp, False) for T in range(3)]
    def s2(T): return [f'{MF16} {vr(d2+(2*T+U)*4,4)}, {vr(f16+4*U,4)}, {vr(b2+4*T,4)}, 0' for U in range(2)]
    def wr(T): return [f'ds_write_b64 v{wa}, {vr(d2+(2*T+U)*4+2*h,2)} offset:{(16*T+320*U+40*h)*8}' for U in range(2) for h in range(2)]
    for t in s1(0) + s1(1) + s1(2) + cm[0] + s2(0) + cm[1] + s2(1) + wr(0) + cm[2] + s2(2) + wr(1): k.I(t)
    mark(k, 7)
    k.I('s_mov_b64 exec, 1')
    k.I(f'ds_write_b64 v{wa}, {vr(d2,2)} offset:5120')
    k.I('s_mov_b32 exec_lo, 0x00ff00ff')
    k.I('s_mov_b32 exec_hi, 0x00ff00ff')
    for t in wr(2): k.I(t)
    k.I('s_mov_b64 exec, -1')
    k.barrier()
    mark(k, 8)
    rd = d1; oc = b2
    for rho in range(3):
        for pr in range(2):
            k.I(f'ds_read_b64 {vr(rd+8*rho+4*pr,2)}, v{ru} offset:{pr*PL+1024*rho}')
            k.I(f'ds_read_b64 {vr(rd+8*rho+4*pr+2,2)}, v{rv} offset:{pr*PL+1024*(2-rho)}')
    for rho in range(3):
        for pr in range(2):
            u = rd+8*rho+4*pr; v = u+2
            k.I(f'v_pk_add_f32 {vr(tmp+4*pr,2)}, {vr(u,2)}, {vr(v,2)}')
            k.I(f'v_pk_add_f32 {vr(tmp+4*pr+2,2)}, {vr(u,2)}, {vr(v,2)} neg_lo:[0,1] neg_hi:[0,1]')
        for pr in range(2):
            k.I(f'v_cvt_pk_bf16_f32 v{oc+4*rho+pr}, v{tmp+4*pr}, v{tmp+4*pr+1}')
            k.I(f'v_cvt_pk_bf16_f32 v{oc+4*rho+2+pr}, v{tmp+4*pr+3}, -v{tmp+4*pr+2}')
        k.I(f'buffer_store_dwordx4 {vr(oc+4*rho,4)}, v{so}, s[44:47], s{25+rho} offen')
    if gen.STAMPS: k.I(f's_add_u32 s2, s2, {boff}')

CNT = dict(modr=160, wt=N_WT, wgu=N_WGU, wd=N_WD)
K1_SIDE = os.environ.get('K1_SIDE', 'wt,modr').split(',')
C_SIDE = [r for r in ('wgu', 'wd') if r not in K1_SIDE]

MISC_EXTRA = []
def gen_K1():
    k = Kernel('ka_kernel')
    stamp_begin(k)
    k.I(f's_load_dwordx4 s[56:59], s[0:1], {KA["dbg"]}')
    k.I(f's_load_dwordx4 s[8:11], s[0:1], {KA["c"]}')
    k.I(f's_load_dwordx2 s[4:5], s[0:1], {KA["ws"]}')
    k.I(f's_load_dwordx2 s[6:7], s[0:1], {KA["x"]}')
    k.I(f's_load_dwordx4 s[12:15], s[0:1], {KA["wr"]}')
    if 'wgu' in K1_SIDE: k.I(f's_load_dwordx4 s[16:19], s[0:1], {KA["wg"]}')
    if 'wd' in K1_SIDE: k.I(f's_load_dwordx2 s[62:63], s[0:1], {KA["wd"]}')
    boff = 88; n = boff + 256; lo = {}
    for r in K1_SIDE:
        lo[r] = n; n += CNT[r]
    total = n
    st = k.save_state()
    k.I('s_cmp_lg_u32 s2, 0')
    k.I('s_cbranch_scc1 LA_n0')
    k.I('v_mov_b32 v2, 0')
    k.I(f'v_mov_b32 v3, {EPOCH}')
    k.I('v_mov_b32 v5, 1')
    k.I(f's_load_dword s30, s[58:59], {EPOCH}')
    k.srd(24, 58, 0x10000)
    k.srd(52, 56, 256)
    k.I('v_cmp_eq_u32 vcc, 0, v0')
    k.I('s_and_b64 exec, exec, vcc')
    k.I('s_cbranch_execz LA_misc')
    k.I('s_add_u32 s30, s30, 1')
    k.I('v_mov_b32 v4, s30')
    k.I('buffer_store_dwordx2 v[4:5], v2, s[52:55], 0 offen sc1')
    k.I('buffer_store_dword v4, v3, s[24:27], 0 offen sc1')
    k.I('s_branch LA_misc')
    k.label('LA_n0', fresh=True); k.restore_state(st)
    k.I('s_cmp_lt_u32 s2, 8')
    k.I('s_cbranch_scc1 LA_misc')
    k.I(f's_sub_u32 s20, s2, {boff}')
    k.I('s_cmp_lt_u32 s20, 256')
    k.I('s_cbranch_scc1 LA_B')
    for r in K1_SIDE:
        if r == 'modr': continue
        k.I(f's_sub_u32 s20, s2, {lo[r]}')
        k.I(f's_cmp_lt_u32 s20, {CNT[r]}')
        k.I(f's_cbranch_scc1 LA_{r}')
    k.I(f's_cmp_ge_u32 s2, {total}')
    k.I('s_cbranch_scc1 LA_exit')
    k.I('s_sub_u32 s20, s2, 8')
    k.I(f's_sub_u32 s21, s2, {lo["modr"] - 80}')
    k.I(f's_cmp_lt_u32 s2, {boff}')
    k.I('s_cselect_b32 s20, s20, s21')
    k.I('s_and_b32 s21, s20, 3')
    k.I('s_lshr_b32 s20, s20, 2')
    role_mod4(k, 'LA_end')
    k.label('LA_end')
    stamp_end(k, 0, 4)
    k.label('LA_exit')
    k.I('s_endpgm')
    k.label('LA_B', fresh=True); k.restore_state(st)
    role_B4(k, boff)
    stamp_end(k, 0, 4)
    k.I('s_endpgm')
    fns = dict(wd=lambda: role_wd(k, 62), wgu=lambda: role_wgu(k, 16, 18), wt=lambda: role_wt(k, 12, 14))
    for r in K1_SIDE:
        if r == 'modr': continue
        k.label(f'LA_{r}', fresh=True); k.restore_state(st)
        fns[r]()
        stamp_end(k, 0, 4)
        k.I('s_endpgm')
    k.label('LA_misc', fresh=True); k.restore_state(st)
    k.I('s_mov_b64 exec, -1')
    k.I('s_getpc_b64 s[28:29]')
    k.raw('LA_pc:')
    k.I('s_sub_u32 s28, s28, LA_pc-ka_kernel')
    k.I('s_subb_u32 s29, s29, 0')
    k.I('v_lshlrev_b32 v60, 4, v0')
    k.I('v_mov_b32 v61, s29')
    for i in range(NPF):
        k.I('v_min_u32 v6, Lcode_end-ka_kernel-16, v60')
        k.I('v_add_co_u32 v6, vcc, s28, v6')
        k.I('v_addc_co_u32 v7, vcc, 0, v61, vcc')
        k.I(f'global_load_dwordx4 {vr(8+4*i,4)}, v[6:7], off')
        k.I('v_add_u32 v60, 0x1000, v60')
    k.waitcnt(vm=0, lgkm=0)
    if MISC_EXTRA:
        k.I('v_readfirstlane_b32 s30, v0')
        k.I('s_lshl_b32 s31, s2, 8')
        k.I('s_add_u32 s30, s30, s31')
        k.I('s_cmp_lg_u32 s30, 0x100')
        k.I('s_cbranch_scc1 LA_mend')
        MISC_EXTRA[0](k)
        k.label('LA_mend')
    stamp_end(k, 0, 4)
    k.I('s_endpgm')
    print('K1 roles', lo, total)
    return k, (total, 256, 40960 if 'wd' in K1_SIDE else 26112)

def role_modfin(k):
    k.I('s_lshl_b32 s20, s20, 8')
    k.I('v_add_u32 v1, s20, v0')
    k.I('v_lshlrev_b32 v2, 4, v1')
    k.srd(24, 4, 4 * 960 * 16, GR)
    for p in range(4):
        k.I(f's_mov_b32 s21, {960*16*p + 320*16}')
        k.I(f'buffer_load_dwordx4 {vr(4+4*p,4)}, v2, s[24:27], s21 offen')
    k.srd(28, 4, 32 * 256, FLAGS)
    k.I('v_lshlrev_b32 v3, 7, v1')
    k.I('v_mov_b32 v20, 0')
    k.I('buffer_store_dword v20, v3, s[28:31], 0 offen')
    k.srd(32, 4, 4 * D * 4, MODN + 2 * D * 4)
    k.I('s_mov_b32 s60, 0x04000c0c')
    k.I('s_mov_b32 s61, 0x0706000c')
    k.I(f'v_mov_b32 v22, {fhex(1.0 / (2.0 * S * D))}')
    k.I('v_cmp_gt_u32 vcc, 0xa0, v1')
    k.I('v_cndmask_b32 v22, 1.0, v22, vcc')
    k.I('v_subrev_u32 v21, 0x140, v1')
    k.I('v_cmp_gt_u32 vcc, 0xa0, v21')
    k.I('v_mov_b32 v23, 1.0')
    k.I('v_cndmask_b32 v23, 0, v23, vcc')
    for p in range(4): unpack_gran(k, 4+4*p, 21, 60, 61)
    for p in (0, 2):
        k.I(f'v_pk_add_f32 {vr(4+p,2)}, {vr(4+p,2)}, {vr(8+p,2)}')
        k.I(f'v_pk_add_f32 {vr(12+p,2)}, {vr(12+p,2)}, {vr(16+p,2)}')
    for p in (0, 2): k.I(f'v_pk_add_f32 {vr(4+p,2)}, {vr(4+p,2)}, {vr(12+p,2)}')
    for j in range(4): k.I(f'v_cvt_pk_bf16_f32 v{4+j}, v{4+j}, v{4+j}')
    for j in range(4): k.I(f'v_and_b32 v{4+j}, 0xffff0000, v{4+j}')
    for j in range(4): k.I(f'v_add_f32 v{4+j}, v23, v{4+j}')
    for j in range(4): k.I(f'v_cvt_pk_bf16_f32 v{4+j}, v{4+j}, v{4+j}')
    for j in range(4): k.I(f'v_and_b32 v{4+j}, 0xffff0000, v{4+j}')
    for j in range(4): k.I(f'v_mul_f32 v{4+j}, v22, v{4+j}')
    k.I('buffer_store_dwordx4 v[4:7], v2, s[32:35], 0 offen')

def gen_C4():
    k, (g, b, l) = gen_C()
    assert k.out[-2] == 'LC_exit:'
    k.out.pop(); k.out.pop()
    k.I('s_endpgm')
    k.label('LC_exit', fresh=True); k.vm = []; k.lg = []
    k.I(f's_load_dwordx2 s[4:5], s[0:1], {KA["ws"]}')
    k.I(f's_load_dwordx4 s[16:19], s[0:1], {KA["wg"]}')
    k.I(f's_load_dwordx2 s[62:63], s[0:1], {KA["wd"]}')
    st = k.save_state()
    n = 328; lo = {}
    for r in C_SIDE:
        lo[r] = n; n += CNT[r]
        k.I(f's_sub_u32 s20, s2, {lo[r]}')
        k.I(f's_cmp_lt_u32 s20, {CNT[r]}')
        k.I(f's_cbranch_scc1 LC_{r}')
    k.I('s_sub_u32 s20, s2, 321')
    k.I('s_cmp_ge_u32 s20, 3')
    k.I('s_cbranch_scc1 LC_x')
    role_modfin(k)
    k.label('LC_x')
    k.I('s_endpgm')
    fns = dict(wd=lambda: role_wd(k, 62), wgu=lambda: role_wgu(k, 16, 18))
    for r in C_SIDE:
        k.label(f'LC_{r}', fresh=True); k.restore_state(st)
        fns[r]()
        stamp_end(k, 2, 4)
        k.I('s_endpgm')
    print('C roles', lo, n)
    return k, (n if C_SIDE else 324, b, 40960 if 'wd' in C_SIDE else max(l, 24576))

KERNELS = (gen_K1, gen_C4, gen_DEF)
if __name__ == '__main__':
    out = sys.argv[1] if len(sys.argv) > 1 else 'adaLN_cond__spectral_gfnet__glu_gated_bilinear__prompt.s'
    if len(sys.argv) > 2 and sys.argv[2] == 'stamps': gen.STAMPS = True
    build(out, KERNELS)
```

```python
import os, math
import gen
from gen import *
from gen2 import *
from gen4 import YT, YT_ST, WS_END4
from gen import mark, stamp_begin, stamp_end

class Rec:
    def __init__(self): self.l = []
    def I(self, t, **kw): self.l.append(t)
def rec(fn, *a):
    r = Rec(); fn(r, *a); return r.l
def merge(k, main, fill, per):
    fill = list(fill)
    for m in main:
        k.I(m)
        for _ in range(per):
            if fill: k.I(fill.pop(0))
    return fill

import re as _re
def unpk(t):
    if isinstance(t, tuple) or not t.startswith('v_pk_'): return [t]
    m = _re.match(r'v_pk_(\w+)_f32 (.*)$', t)
    regs = [int(x) for x in _re.findall(r'v\[(\d+):\d+\]', m.group(2))]
    if m.group(1) == 'fma' and regs[0] == regs[3]: return [f'v_fmac_f32 v{regs[0]+j}, v{regs[1]+j}, v{regs[2]+j}' for j in range(2)]
    if m.group(1) == 'fma': return [f'v_fma_f32 v{regs[0]+j}, v{regs[1]+j}, v{regs[2]+j}, v{regs[3]+j}' for j in range(2)]
    return [f'v_{m.group(1)}_f32 v{regs[0]+j}, v{regs[1]+j}, v{regs[2]+j}' for j in range(2)]
def pairs(lst):
    out = []
    for t in lst:
        u = unpk(t)
        if len(u) == 2 and 'v_fma_' in u[0]: out += [[u[0]], [u[1]]]
        else: out.append(u)
    return out
def signal(k, name, cnt_sgpr, vtmp, noflush=False):
    k.I('s_barrier')
    st = k.save_state()
    k.I('s_cmp_lg_u32 s22, 0')
    k.I(f's_cbranch_scc1 L{name}_sig', noflush=noflush)
    k.I('s_mov_b64 exec, 1')
    k.I(f'buffer_atomic_add v{vtmp+1}, v{vtmp}, s[12:15], s{cnt_sgpr} offen sc1')
    k.I('s_mov_b64 exec, -1')
    if noflush: k.raw(f'L{name}_sig:')
    else: k.label(f'L{name}_sig')
    k.restore_state(st)
    k.vm.append((set(), None)) if False else None
def poll(k, name, cnt_sgpr, vtmp, vres):
    st = k.save_state()
    k.I('s_cmp_lg_u32 s22, 3')
    k.I(f's_cbranch_scc1 L{name}_done')
    k.I('s_mov_b32 s24, 0x100000')
    k.label(f'L{name}_poll')
    k.I(f'buffer_load_dword v{vres}, v{vtmp}, s[12:15], s{cnt_sgpr} offen sc1')
    k.waitcnt(vm=0)
    k.I(f'v_readfirstlane_b32 s33, v{vres}')
    k.I('s_sub_u32 s24, s24, 1')
    k.I(f's_cbranch_scc1 L{name}_done')
    k.I('s_cmp_lt_u32 s33, 16')
    k.I(f's_cbranch_scc1 L{name}_poll')
    k.label(f'L{name}_done')
    k.restore_state(st)
    k.I('s_barrier')

TAB = WS_END4
WS_END6 = TAB + 24 * 1024
class Fix:
    def __init__(self, seq): self.seq = list(seq)
    def get(self, *a): return self.seq.pop(0)
def role_tab(k):
    c0 = 24; f40 = c0; f16 = c0 + 62; cs = c0 + 68; sn = c0 + 80
    vi, vq, fi, fq, fq4, vo, t8, tmp = 2, 3, 4, 5, 6, 7, 8, 16
    k.I(f'v_and_b32 v{vi}, 15, v0')
    k.I(f'v_lshrrev_b32 v{vq}, 4, v0')
    k.I(f'v_cvt_f32_u32 v{fi}, v{vi}')
    k.I(f'v_cvt_f32_u32 v{fq}, v{vq}')
    k.I(f'v_mul_f32 v{fq4}, 4.0, v{fq}')
    k.I(f'v_lshlrev_b32 v{vo}, 4, v0')
    gen_f40(k, Fix([f40, t8, t8+4, t8+6]), fi, fq, True)
    gen_tw640(k, Fix([cs, sn, t8]), fi, fq4)
    k.I(f'v_cmp_gt_u32 vcc, 8, v{vi}')
    for r in range(4):
        k.I(f'v_cndmask_b32 v{cs+8+r}, 0, v{cs+8+r}, vcc')
        k.I(f'v_cndmask_b32 v{sn+8+r}, 0, v{sn+8+r}, vcc')
    k.I(f'v_mul_f32 v{t8}, {fhex(1.0/16)}, v{fi}')
    k.I(f'v_mul_f32 v{t8+1}, v{fq4}, v{t8}')
    for j in range(4): k.I(f'v_fmamk_f32 v{tmp+4+j}, v{t8}, {fhex(float(j))}, v{t8+1}')
    for j in range(4):
        k.I(f'v_cos_f32 v{tmp+j}, v{tmp+4+j}')
        k.I(f'v_sin_f32 v{tmp+4+j}, v{tmp+4+j}')
    for p in range(2):
        k.I(f'v_cvt_pk_bf16_f32 v{f16+p}, v{tmp+4+2*p}, v{tmp+5+2*p}')
        k.I(f'v_cvt_pk_bf16_f32 v{f16+2+p}, v{tmp+2*p}, v{tmp+1+2*p}')
        k.I(f'v_cvt_pk_bf16_f32 v{f16+4+p}, -v{tmp+4+2*p}, -v{tmp+5+2*p}')
    k.srd(24, 4, 23 * 1024, TAB)
    for i in range(23):
        if i % 4 == 0: k.I(f's_mov_b32 s28, {1024*i}')
        k.I(f'buffer_store_dwordx4 {vr(c0+4*i,4)}, v{vo}, s[24:27], s28 offen offset:{1024*(i%4)}')

XNT = ' nt' if os.environ.get('XNT') == '1' else ''
_mark = mark
def mark(k, i):
    if not env('MF', 0): _mark(k, i)
def fm(k, i):
    if env('MF', 0) == 1: _mark(k, i)
def pm(k, i):
    if env('MF', 0) == 3: _mark(k, i)
def em(k, i):
    if env('MF', 0) == 2: _mark(k, i)
def gen_DEF7():
    k = Kernel('kd_kernel')
    PL = 2592
    HB = 12288; XB = HB + 10240; XL = 32768; MLD = XL + 4 * 2560; TL = MLD + 8192
    W_ST = env('W_ST', 8); W_PL = env('W_PL', 6); W_A = env('W_A', 4)
    stamp_begin(k)
    k.I('s_cmp_ge_u32 s2, 256')
    k.I('s_cbranch_scc1 LD_exit')
    k.I(f's_load_dwordx2 s[4:5], s[0:1], {KA["ws"]}')
    k.I(f's_load_dwordx2 s[6:7], s[0:1], {KA["x"]}')
    k.I(f's_load_dwordx2 s[40:41], s[0:1], {KA["out"]}')
    va = VAlloc(2)
    hs = va.get(2, 2); vl = va.get(); vo16 = va.get(); vW = va.get(); vi = va.get(); vq = va.get(); oh = va.get(); oh2 = va.get(); hr = va.get()
    keep = va.n
    so = va.get(); wu = va.get(); wv = va.get(); ra = va.get(); xo = va.get(); mo = va.get(); wh = va.get(3); wx = va.get(); g0 = va.get(); g2 = va.get()
    ch = va.get(12, 4); xr = va.get(12, 2); mg = va.get(12, 4); mc = va.get(12, 4); ms = va.get(12, 4)
    d1 = va.get(24, 4); d2 = va.get(24, 4); dat = va.get(12, 2); tmp = va.get(8, 2)
    f40 = va.get(92, 4); f16 = f40 + 62; cs = f40 + 68; sn = f40 + 80
    tv = VAlloc(d1, d1 + 48)
    ta = tv.get(4); tk = tv.get(); cb_ = tv.get(); tq = tv.get(); pz = tv.get(4, 4)
    k.I('v_lshrrev_b32 v1, 6, v0')
    k.I(f'v_and_b32 v{vl}, 63, v0')
    k.I('v_readfirstlane_b32 s22, v1')
    k.I('s_and_b32 s20, s2, 6')
    k.I('s_lshl_b32 s20, s20, 1')
    k.I('s_lshr_b32 s21, s2, 6')
    k.I('s_add_u32 s20, s20, s21')
    k.I('s_bfe_u32 s56, s2, 0x30003')
    k.I('s_and_b32 s57, s2, 1')
    k.I('s_lshl_b32 s21, s57, 3')
    k.I('s_add_u32 s21, s21, s56')
    k.I('s_lshl_b32 s25, s20, 4')
    k.I('s_add_u32 s3, s25, s21')
    k.I(f's_mul_i32 s25, s3, {YT_ST}')
    k.I('s_add_u32 s26, s25, 4096')
    k.I('s_add_u32 s27, s25, 8192')
    k.I(f'v_lshlrev_b32 v{so}, 4, v0')
    k.I(f'v_lshlrev_b32 v{vo16}, 4, v{vl}')
    k.I(f'v_lshrrev_b32 v{ta+1}, 1, v0')
    k.I(f'v_cmp_ge_u32 s[34:35], 64, v{ta+1}')
    k.I('s_lshl_b32 s23, s20, 7')
    k.I('s_lshl_b32 s24, s21, 1')
    k.I('s_add_u32 s23, s23, s24')
    k.I('s_and_b32 s24, s22, 1')
    k.I('s_lshl_b32 s24, s24, 6')
    k.I('s_add_u32 s23, s23, s24')
    k.I('s_lshr_b32 s24, s22, 1')
    k.I('s_add_u32 s23, s23, s24')
    k.I('s_mul_i32 s28, s23, 1280')
    k.I(f's_add_u32 s29, s28, {32*1280}')
    k.I(f's_mul_i32 s30, s22, 2560')
    k.I(f's_add_u32 s30, s30, {XL}')
    k.I('s_lshl_b32 s31, s22, 11')
    k.I('s_lshl_b32 s32, s21, 2')
    k.I('s_add_u32 s32, s32, s22')
    k.I('s_mul_i32 s24, s32, 61440' if not env('W_SAME', 0) & 1 else 's_mul_i32 s24, s22, 61440')
    k.I(f's_add_u32 s24, s24, {WGU}')
    k.I(f'v_add_u32 v{vW}, s24, v{vo16}')
    k.I(f'v_and_b32 v{vi}, 15, v{vl}')
    k.I(f'v_lshrrev_b32 v{vq}, 4, v{vl}')
    addr = []
    A = addr.append
    A(f'v_lshrrev_b32 v{tq}, 1, v{vq}')
    A(f'v_mad_u32_u24 v{cb_}, v{vi}, 5, v{tq}')
    A(f'v_and_b32 v{tk}, 1, v{vq}')
    A(f'v_mul_u32_u24 v{oh}, 49152, v{tk}')
    A(f'v_lshlrev_b32 v{oh2}, 2, v{oh}')
    A(f'v_lshl_add_u32 v{oh}, v{tq}, 8, v{oh}')
    A(f'v_lshl_add_u32 v{oh}, v{vi}, 4, v{oh}')
    A(f'v_mul_u32_u24 v{tq}, 49152, v{tq}')
    A(f'v_add_u32 v{oh2}, v{oh2}, v{tq}')
    A(f'v_lshl_add_u32 v{oh2}, v{vi}, 4, v{oh2}')
    A(f'v_lshl_add_u32 v{tk}, v1, 1, v{tk}')
    for T in range(3):
        A(f'v_add_u32 v{tq}, {2*T}, v{cb_}')
        A(f'v_xor_b32 v{wh+T}, v{tq}, v{tk}')
        A(f'v_and_b32 v{wh+T}, 7, v{wh+T}')
        A(f'v_lshl_add_u32 v{wh+T}, v{tq}, 3, v{wh+T}')
        A(f'v_lshlrev_b32 v{wh+T}, 4, v{wh+T}')
    A(f'v_mul_u32_u24 v{wx}, 1280, v{tk}')
    A(f'v_lshl_add_u32 v{wx}, v{cb_}, 4, v{wx}')
    A(f'v_lshrrev_b32 v{tq}, 3, v0')
    A(f'v_xor_b32 v{g0}, v{tq}, v0')
    A(f'v_and_b32 v{g0}, 7, v{g0}')
    A(f'v_lshlrev_b32 v{g0}, 4, v{g0}')
    A(f'v_lshl_add_u32 v{g0}, v{tq}, 8, v{g0}')
    for t in addr: k.I(t)
    k.I(f'v_and_b32 v{ta}, 1, v0')
    k.I(f'v_mul_u32_u24 v{wu}, {2*PL}, v{ta}')
    k.I(f'v_sub_u32 v{wv}, 384, v{ta+1}')
    k.I(f'v_lshl_add_u32 v{wv}, v{wv}, 2, v{wu}')
    k.I(f'v_lshl_add_u32 v{wu}, v{ta+1}, 2, v{wu}')
    k.I(f's_mul_i32 s33, s22, {PL}')
    k.I(f'v_lshl_add_u32 v{ra}, v{vl}, 2, s33')
    k.I(f'v_mov_b32 v{dat+10}, 0'); k.I(f'v_mov_b32 v{dat+11}, 0')
    k.I(f'v_mul_u32_u24 v{xo}, 80, v{vi}')
    k.I(f'v_lshl_add_u32 v{xo}, v{vq}, 3, v{xo}')
    k.I(f'v_lshlrev_b32 v{mo}, 1, v{xo}')
    k.I(f'v_add_u32 v{xo}, s30, v{xo}')
    for j in range(8, 12): k.I(f'v_mov_b32 v{xr+j}, 0')
    k.I(f's_mul_i32 s58, s20, {8*49152}')
    k.I('s_mul_i32 s24, s32, 768')
    k.I('s_add_u32 s58, s58, s24')
    k.I(f's_add_u32 s58, s58, {HH}')
    for i in range(1, 4): k.I(f's_add_u32 s{58+i}, s58, {2*i*49152}')
    k.I('s_mul_i32 s42, s22, 6144')
    k.srd(16, 4, 256 * YT_ST, YT)
    for rho in range(3):
        if rho == 2: k.I('s_mov_b64 exec, s[34:35]')
        k.I(f'buffer_load_dwordx4 {vr(ch+4*rho,4)}, v{so}, s[16:19], s{25+rho} offen')
    k.I('s_mov_b64 exec, -1')
    k.srd(12, 4, WS_END6)
    k.I(f's_add_u32 m0, s42, {TL}')
    k.I(f's_add_u32 s43, s42, {TAB}')
    for i in range(4): k.I(f'buffer_load_dwordx4 v{vo16}, s[12:15], s43 offen offset:{1024*i} lds', tag='md')
    k.I(f's_add_u32 m0, s42, {TL+4096}')
    k.I(f's_add_u32 s43, s43, 4096')
    for i in range(2): k.I(f'buffer_load_dwordx4 v{vo16}, s[12:15], s43 offen offset:{1024*i} lds', tag='md')
    k.I(f's_add_u32 m0, s31, {MLD}')
    k.I(f's_add_u32 s31, s31, {MODN + 2*2560}')
    k.I(f'buffer_load_dwordx4 v{vo16}, s[12:15], s31 offen lds', tag='md')
    k.I(f'buffer_load_dwordx4 v{vo16}, s[12:15], s31 offen offset:1024 lds', tag='md')
    mark(k, 1)
    def wload(n):
        if env('NO_W', 0): return [f'v_add_u32 v{vW}, 0, v{vW}']
        g = [f'buffer_load_dwordx4 {ar(4*n,4)}, v{vW}, s[12:15], 0 offen offset:{1024*(n%4)}']
        if n % 4 == 3: g.append(f'v_add_u32 v{vW}, 0x1000, v{vW}')
        return g
    k.bg = [wload(n) for n in range(60)]
    k.emit_bg(env('W_00', 8))
    tb_ = g2
    k.I(f'v_add_u32 v{tb_}, {TL}, v{vo16}')
    mark(k, 2)
    be = k.bg_every; k.bg_every = 0
    for rho in range(3):
        if rho == 2: k.I('s_mov_b64 exec, s[34:35]')
        for pr in range(2):
            k.I(f'ds_write_b32 v{wu}, v{ch+4*rho+2*pr} offset:{pr*PL+512*rho}')
            k.I(f'ds_write_b32 v{wv}, v{ch+4*rho+2*pr+1} offset:{pr*PL+512*(2-rho)}')
    k.I('s_mov_b64 exec, -1')
    k.srd(8, 6, S * D * 2)
    for c in range(2):
        k.I(f's_add_u32 m0, s30, {1280*c}')
        k.I(f'buffer_load_dwordx4 v{vo16}, s[8:11], s{28+c} offen{XNT} lds', tag='xx')
        k.I('s_mov_b64 exec, 0xffff')
        k.I(f'buffer_load_dwordx4 v{vo16}, s[8:11], s{28+c} offen offset:1024{XNT} lds', tag='xx')
        k.I('s_mov_b64 exec, -1')
    k.emit_bg(env('W_0', 2))
    k.wait_tag('md')
    k.barrier()
    mark(k, 3)
    for p in range(5):
        k.I(f'ds_read2st64_b32 {vr(dat+2*p,2)}, v{ra} offset0:{2*p} offset1:{2*p+1}')
    def s1(T):
        o = []
        for kap in range(3):
            for c in range(2):
                dd = vr(d1 + (2*T+c)*4, 4)
                o.append(f'{MF16} {dd}, {vr(dat+4*kap,4)}, {vr(f40+(2*T+c)*10+4*kap,4)}, {dd if kap else 0}')
        return o
    tl = [f'ds_read_b128 {vr(f40+4*i,4)}, v{tb_} offset:{1024*i}' for i in range(23)]
    for t in tl[:9]: k.I(t)
    k.bg_every = env('BG2', 12)
    rest = merge(k, s1(0) + s1(1), tl[9:], 1)
    for t in rest: k.I(t)
    k.bg_every = 0
    for T in range(3): k.I(f'ds_read_b128 {vr(mg+4*T,4)}, v{mo} offset:{MLD+64*T}')
    a2 = ch; xf = f40
    cm = [rec(cmul4, d1+8*T, d1+8*T+4, cs+4*T, sn+4*T, a2+4*T, tmp, True) for T in range(3)]
    def s2(T): return [f'{MF16} {vr(d2+(2*T+c)*4,4)}, {vr(a2+4*T,4)}, {vr(f16+(0 if c else 2),4)}, 0' for c in range(2)]
    rest = merge(k, s1(2), cm[0], 2)
    for t in rest: k.I(t)
    k.wait_tag('xx')
    for T in range(3):
        if T == 2: k.I('s_mov_b32 exec_hi, 0')
        for c in range(2):
            k.I(f'ds_read_b64 {vr(xr+(2*T+c)*2,2)}, v{xo} offset:{1280*c+32*T}')
    k.I('s_mov_b64 exec, -1')
    k.bg_every = env('BG2', 12)
    for t in s2(0) + cm[1] + s2(1) + cm[2] + s2(2): k.I(t)
    for T in range(3):
        k.I(f'ds_read_b128 {vr(ms+4*T,4)}, v{mo} offset:{MLD+2560+64*T}')
        k.I(f'ds_read_b128 {vr(mc+4*T,4)}, v{mo} offset:{MLD+5120+64*T}')
    st_ = f40 + 24
    for T in range(3):
        for i in range(4*T, 4*T+4):
            k.I(f'v_lshlrev_b32 v{xf+2*i}, 16, v{xr+i}')
            k.I(f'v_and_b32 v{xf+2*i+1}, 0xffff0000, v{xr+i}')
        for c in range(2):
            for p in (0, 2):
                r = (2*T+c)*4+p
                k.I(f'v_pk_fma_f32 {vr(xf+r,2)}, {vr(d2+r,2)}, {vr(mg+4*T+p,2)}, {vr(xf+r,2)}')
        for c in range(2):
            r = xf+(2*T+c)*4
            if T == 0:
                k.I(f'v_pk_add_f32 {vr(st_+2*c,2)}, {vr(r,2)}, {vr(r+2,2)}')
                k.I(f'v_pk_mul_f32 {vr(st_+4+2*c,2)}, {vr(r,2)}, {vr(r,2)}')
            else:
                k.I(f'v_pk_add_f32 {vr(st_+2*c,2)}, {vr(st_+2*c,2)}, {vr(r,2)}')
                k.I(f'v_pk_fma_f32 {vr(st_+4+2*c,2)}, {vr(r,2)}, {vr(r,2)}, {vr(st_+4+2*c,2)}')
        for c in range(2):
            r = xf+(2*T+c)*4+2
            if T: k.I(f'v_pk_add_f32 {vr(st_+2*c,2)}, {vr(st_+2*c,2)}, {vr(r,2)}')
            k.I(f'v_pk_fma_f32 {vr(st_+4+2*c,2)}, {vr(r,2)}, {vr(r,2)}, {vr(st_+4+2*c,2)}')
    for i in range(4): k.I(f'v_add_f32 v{st_+2*i}, v{st_+2*i}, v{st_+2*i+1}')
    wave_reduce_to_sgpr(k, [st_, st_+2, st_+4, st_+6], [46, 47, 48, 49])
    po = d1; ph = d1 + 12; hn = d2
    rr = f40 + 32; nmr = f40 + 34
    ln_scalars(k, 46, 48, rr, nmr, tmp)
    for T in range(3):
        for c in range(2):
            for p in (0, 2):
                r = (2*T+c)*4+p
                k.I(f'v_pk_fma_f32 {vr(hn+r,2)}, {vr(xf+r,2)}, {vr(rr,2)}, {vr(nmr,2)} op_sel:[0,{c},{c}] op_sel_hi:[1,{c},{c}]')
        for c in range(2):
            for p in (0, 2):
                r = hn+(2*T+c)*4+p
                k.I(f'v_pk_fma_f32 {vr(r,2)}, {vr(r,2)}, {vr(mc+4*T+p,2)}, {vr(ms+4*T+p,2)}')
        for j in range(4):
            k.I(f'v_cvt_pk_bf16_f32 v{ph+4*T+j}, v{hn+8*T+2*j}, v{hn+8*T+2*j+1}')
        if T:
            k.I(f'v_permlane16_swap_b32 v{ph+4*T-4}, v{ph+4*T-2}')
            k.I(f'v_permlane16_swap_b32 v{ph+4*T-3}, v{ph+4*T-1}')
            k.I(f'ds_write_b128 v{wh+T-1}, {vr(ph+4*T-4,4)} offset:{HB}')
    k.bg_every = 0
    for j in range(2): k.I(f'v_cvt_pk_bf16_f32 v{po+j}, v{xf+2*j}, v{xf+2*j+1}')
    k.I(f'v_permlane16_swap_b32 v{ph+8}, v{ph+10}')
    k.I(f'v_permlane16_swap_b32 v{ph+9}, v{ph+11}')
    k.I('s_mov_b32 exec_hi, 0')
    k.I(f'ds_write_b128 v{wh+2}, {vr(ph+8,4)} offset:{HB}')
    k.I('s_mov_b64 exec, -1')
    k.I('s_lshr_b32 s42, s3, 1')
    k.I('s_mul_i32 s42, s42, 20480')
    k.I('s_and_b32 s24, s21, 1')
    k.I('s_lshl_b32 s24, s24, 7')
    k.I('s_add_u32 s42, s42, s24')
    k.I(f's_add_u32 s42, s42, {H2}')
    k.I('s_add_u32 s44, s42, 8192')
    k.I('s_add_u32 s45, s42, 16384')
    k.barrier()
    mark(k, 4)
    sd = mg
    for rho in range(3):
        k.I(f'ds_read_b128 {vr(sd+4*rho,4)}, v{so} offset:{HB+4096*rho}')
    for j in range(2, 12): k.I(f'v_cvt_pk_bf16_f32 v{po+j}, v{xf+2*j}, v{xf+2*j+1}')
    k.I(f'buffer_store_dwordx4 {vr(sd,4)}, v{g0}, s[12:15], s42 offen sc1', tag='h2')
    k.I(f'buffer_store_dwordx4 {vr(sd+4,4)}, v{g0}, s[12:15], s44 offen sc1', tag='h2')
    k.I('s_cmp_lt_u32 s22, 2')
    k.I('s_cselect_b64 exec, -1, 0')
    k.I(f'buffer_store_dwordx4 {vr(sd+8,4)}, v{g0}, s[12:15], s45 offen sc1', tag='h2')
    k.I('s_mov_b64 exec, -1')
    for T in range(3):
        k.I(f'v_permlane16_swap_b32 v{po+4*T}, v{po+4*T+2}')
        k.I(f'v_permlane16_swap_b32 v{po+4*T+1}, v{po+4*T+3}')
    for T in range(3):
        if T == 2: k.I('s_mov_b32 exec_hi, 0')
        k.I(f'ds_write_b128 v{wx}, {vr(po+4*T,4)} offset:{XB+32*T}')
    k.I('s_mov_b64 exec, -1')
    k.I(f's_sub_u32 s24, s30, {XL - XB}')
    k.I(f'v_add_u32 v{g2}, s24, v{vo16}')
    k.I('s_mul_i32 s43, s3, 10240')
    k.I(f's_add_u32 s43, s43, s30')
    k.I(f's_add_u32 s43, s43, {X1 - XL}')
    k.waitcnt(lgkm=0)
    sx = mc
    for i in range(3): k.I(f'ds_read_b128 {vr(sx+4*i,4)}, v{g2} offset:{1024*i}')
    def x1st():
        for i in range(3):
            if i == 2: k.I('s_mov_b32 exec_hi, 0')
            k.I(f'buffer_store_dwordx4 {vr(sx+4*i,4)}, v{vo16}, s[12:15], s43 offen offset:{1024*i} sc1')
        k.I('s_mov_b64 exec, -1')
    if not env('X1_LATE', 1): x1st()
    k.emit_bg(W_ST)
    k.I('s_mul_i32 s24, s20, 163840')
    k.I(f's_add_u32 s24, s24, {H2}')
    k.I('s_add_u32 s16, s4, s24')
    k.I('s_addc_u32 s17, s5, 0')
    k.I('s_mov_b32 s18, 163840')
    k.I('s_mov_b32 s19, 0x00020000')
    k.I('s_and_b32 s52, s22, 2')
    k.I('s_add_u32 s52, s52, s22')
    k.I('s_mul_i32 s52, s52, 20480')
    k.I('s_add_u32 s53, s52, 40960')
    k.I('s_lshl_b32 s54, s20, 8')
    k.I(f's_add_u32 s54, s54, {FLAGS}')
    k.I('s_add_u32 s55, s54, 4096')
    k.I('s_add_u32 s51, s54, 128')
    k.srd(36, 40, S * D * 2)
    k.I(f'v_mov_b32 v{hs}, 0')
    k.I(f'v_mov_b32 v{hs+1}, 1')
    k.wait_tag('h2')
    mark(k, 5)
    signal(k, 'H1', 54, hs)
    if env('X1_LATE', 1): x1st()
    k.emit_bg(W_PL)
    poll(k, 'H1', 54, hs, hr)
    mark(k, 6)
    va = VAlloc(keep)
    rb = [va.get(), va.get()]; vD = va.get()
    oo = va.get(); ox = va.get(); lw = va.get(); lr = va.get(); t0 = va.get(); t1 = va.get()
    act = va.get(32, 4); accs = [va.get(48, 4), va.get(48, 4)]; pk = va.get(12, 4)
    gb = va.get(8, 4); x1r = va.get(16, 4)
    NV = (256 - va.n) // 4
    wdv = va.get(4 * NV, 4)
    def wdreg(n): return vr(wdv + 4*n, 4) if n < NV else ar(4*(n - NV), 4)
    def emit(grp):
        for t in grp:
            if isinstance(t, tuple): k.I(t[0], tag=t[1])
            else: k.I(t)
    def dma(ps, g):
        out = []
        for j in range(4):
            gr = [(f'buffer_load_dwordx4 v{vo16}, s[16:19], m0 offen offset:{1024*j} sc1 lds', ('a', ps, g, j // 2))]
            if j == 0: gr = [f's_add_u32 m0, s{52+ps}, {4096*g}'] + gr
            out.append(gr)
        return out
    NPRE = env('E_PRE', 2)
    for g in range(NPRE):
        for grp in dma(0, g): emit(grp)
    k.emit_bg(W_A)
    late = list(k.bg); k.bg = []
    print('late weight loads', len(late), 'NV', NV)
    k.I(f'v_mov_b32 v{rb[0]}, v{vo16}')
    k.I(f'v_add_u32 v{rb[1]}, {4*20480}, v{vo16}')
    def aread(ps, i, kap):
        off = ((i & 1) + 2*ps) * 20480 + 1024*kap
        base = rb[i >> 1]
        return f'ds_read_b128 {vr(act+16*(kap&1)+4*i,4)}, v{base} offset:{off - (40960 if ps else 0)}'
    k.I('s_lshl_b32 s24, s56, 2')
    k.I('s_add_u32 s24, s24, s22')
    k.I('s_mul_i32 s24, s24, 61440' if not env('W_SAME', 0) & 2 else 's_mul_i32 s24, s22, 61440')
    k.I(f's_add_u32 s24, s24, {WD}')
    k.I(f'v_add_u32 v{vD}, s24, v{vo16}')
    def dload(n):
        if env('NO_WD', 0): return [f'v_add_u32 v{vD}, 0, v{vD}']
        g = [f'buffer_load_dwordx4 {wdreg(n)}, v{vD}, s[12:15], 0 offen offset:{1024*(n%4)}']
        if n % 4 == 3: g.append(f'v_add_u32 v{vD}, 0x1000, v{vD}')
        return g
    RS = 336; PT = 16 * RS
    k.I('s_lshl_b32 s24, s20, 1')
    k.I('s_add_u32 s24, s24, s57')
    k.I('s_lshl_b32 s24, s24, 2')
    k.I(f's_mul_i32 s33, s22, {12*1024}')
    k.I(f's_add_u32 s33, s33, {HH}')
    k.I('s_mul_i32 s42, s24, 49152')
    k.I('s_add_u32 s42, s42, s33')
    for i in range(1, 4): k.I(f's_add_u32 s{42+i}, s42, {49152*i}')
    k.I(f'v_mul_u32_u24 v{t0}, 26, v{vl}')
    k.I(f'v_lshrrev_b32 v{t0}, 8, v{t0}')
    k.I(f'v_mul_u32_u24 v{t1}, 10, v{t0}')
    k.I(f'v_sub_u32 v{t1}, v{vl}, v{t1}')
    k.I(f'v_mul_u32_u24 v{lr}, {RS}, v{t0}')
    k.I(f'v_lshl_add_u32 v{lr}, v{t1}, 4, v{lr}')
    k.I(f's_mul_i32 s25, s22, {4*RS}')
    k.I(f'v_add_u32 v{lr}, s25, v{lr}')
    k.I(f'v_mul_u32_u24 v{ox}, 1280, v{t0}')
    k.I(f'v_lshl_add_u32 v{ox}, v{t1}, 4, v{ox}')
    k.I(f'v_mul_u32_u24 v{oo}, {32*1280}, v{t0}')
    k.I(f'v_lshl_add_u32 v{oo}, v{t1}, 4, v{oo}')
    k.I(f'v_lshlrev_b32 v{t1}, 5, v{t1}')
    k.I(f'v_mul_u32_u24 v{lw}, {RS}, v{vi}')
    k.I(f's_mul_i32 s25, s22, {PT}')
    k.I(f'v_add_u32 v{lw}, s25, v{lw}')
    lw2 = t0
    k.I(f'v_mul_u32_u24 v{hr}, 5, v{vq}')
    k.I(f'v_add_u32 v{lw2}, 1, v{hr}')
    k.I(f'v_lshrrev_b32 v{lw2}, 1, v{lw2}')
    k.I(f'v_lshl_add_u32 v{lw2}, v{lw2}, 4, v{lw}')
    k.I(f'v_lshrrev_b32 v{hr}, 1, v{hr}')
    k.I(f'v_lshl_add_u32 v{lw}, v{hr}, 4, v{lw}')
    k.I(f'v_and_b32 v{hr}, 1, v{vq}')
    k.I(f'v_mul_u32_u24 v{hr}, 160, v{hr}')
    k.I(f'v_add_u32 v{lw}, v{lw}, v{hr}')
    k.I(f'v_sub_u32 v{lw2}, v{lw2}, v{hr}')
    k.I(f'v_add_u32 v{lw2}, 160, v{lw2}')
    k.I('s_mul_i32 s30, s56, 160')
    k.I('s_lshl_b32 s25, s24, 2')
    k.I('s_add_u32 s25, s25, s22')
    k.I(f's_mul_i32 s46, s25, {4*1280}')
    k.I('s_add_u32 s46, s46, s30')
    k.I(f's_add_u32 s46, s46, {X1}')
    for i in range(1, 4): k.I(f's_add_u32 s{46+i}, s46, {16*1280*i}')
    k.I('s_lshl_b32 s25, s20, 7')
    k.I('s_lshl_b32 s26, s57, 4')
    k.I('s_add_u32 s25, s25, s26')
    k.I('s_add_u32 s25, s25, s22')
    k.I('s_mul_i32 s25, s25, 1280')
    k.I('s_add_u32 s25, s25, s30')
    for i in range(1, 4): k.I(f's_add_u32 s{25+i}, s25, {4*1280*i}')
    k.I('s_lshl_b32 s30, s30, 1')
    k.I(f's_add_u32 s30, s30, {5*2560}')
    k.I('s_mov_b32 s34, -1')
    k.I('s_mov_b32 s35, 0xff')
    k.wait_tag(('a', 0, 0, 1))
    k.I('s_barrier')
    mark(k, 7)
    for kp_ in range(2):
        for i in range(4): k.I(aread(0, i, kp_))
    def epi(ps):
        acc = accs[ps]; o = []
        for pr in range(2):
            for j in range(2):
                i = 2*pr + j
                g_ = acc + i*4; u_ = acc + (4+i)*4
                for p in (0, 2): o.append(f'v_pk_mul_f32 {vr(g_+p,2)}, {vr(g_+p,2)}, {vr(u_+p,2)}')
            a_ = acc + (8+2*pr)*4; b_ = a_ + 4
            for r in range(4): o.append(f'v_permlane32_swap_b32 v{a_+r}, v{b_+r}')
            for j in range(2):
                g_ = acc + (2*pr+j)*4
                for p in (0, 2): o.append(f'v_cvt_pk_bf16_f32 v{pk+4*pr+2*j+p//2}, v{g_+p}, v{g_+p+1}')
            for p in (0, 2): o.append(f'v_pk_mul_f32 {vr(a_+p,2)}, {vr(a_+p,2)}, {vr(b_+p,2)}')
            o.append(f'v_permlane16_swap_b32 v{pk+4*pr}, v{pk+4*pr+2}')
            o.append(f'v_permlane16_swap_b32 v{pk+4*pr+1}, v{pk+4*pr+3}')
            for p in (0, 2): o.append(f'v_cvt_pk_bf16_f32 v{pk+8+2*pr+p//2}, v{a_+p}, v{a_+p+1}')
            o.append((f'buffer_store_dwordx4 {vr(pk+4*pr,4)}, v{oh}, s[12:15], s{58+2*pr+ps} offen sc1', ('h', ps)))
        o.append(f'v_permlane16_swap_b32 v{pk+8}, v{pk+10}')
        o.append(f'v_permlane16_swap_b32 v{pk+9}, v{pk+11}')
        o.append((f'buffer_store_dwordx4 {vr(pk+8,4)}, v{oh2}, s[12:15], s{58+ps} offen offset:512 sc1', ('h', ps)))
        return o
    slots_h = [vr(accs[0] + 4*i, 4) for i in range(12)] + [ar(240 + 4*i, 4) for i in range(4)] + [ar(4*i, 4) for i in range(60 - NV, 60)]
    NH = len(slots_h)
    horder = [(t, kp) for kp in range(12) for t in (0, 1)] + [(t, kp) for t in (2, 3) for kp in range(12)]
    def hload(n):
        t, kp = horder[n]
        if env('NO_H', 0): return [f's_add_u32 s{42+t}, s{42+t}, {n}']
        g = [f'buffer_load_dwordx4 {slots_h[n % NH]}, v{vo16}, s[12:15], s{42+t} offen offset:{1024*(kp%4)} sc1']
        if kp % 4 == 3: g.append(f's_add_u32 s{42+t}, s{42+t}, 4096')
        return g
    def check(name, cnt):
        k.I(f'v_readfirstlane_b32 s33, v{hr}')
        k.I('s_cmp_ge_u32 s33, 16')
        k.I(f's_cbranch_scc0 L{name}_spin', noflush=True)
        k.raw(f'L{name}_ok:')
        spins.append((name, cnt))
    spins = []
    q1 = []
    for g in range(NPRE, 5): q1 += dma(0, g)
    q1 += late
    for g in range(5): q1 += dma(1, g)
    q1 += [[f'buffer_load_dwordx4 {vr(gb+4*j,4)}, v{t1}, s[12:15], s30 offen offset:{16*j}'] for j in range(2)]
    nd = 0; nh = 0
    bars = {(0, 2): ('a', 0, 1, 1), (0, 6): ('a', 0, 2, 1), (0, 10): ('a', 0, 4, 1), (0, 18): ('a', 1, 1, 1), (1, 6): ('a', 1, 4, 1), (1, env('K_SA', 9)): None}
    VRATE = env('VRATE', 25) / 120.0
    credit = 1.0
    KA_, KC_ = env('K_A', 14), env('K_C', 17)
    ep = []
    fl = []
    since = 99
    def isvm(t): return (t[0] if isinstance(t, tuple) else t).startswith('buffer_')
    for ps in range(2):
        for kap in range(20):
            pend = list(fl) + [t for g in q1 for t in g]
            for mt in range(3):
                assert ps or not any(isinstance(t, str) and t.startswith(f'buffer_load_dwordx4 {ar((3*kap+mt)*4,4)},') for t in pend), ('weight late', kap)
            if (ps, kap) in bars:
                if bars[(ps, kap)]:
                    assert not any(isinstance(t, tuple) and t[1] <= bars[(ps, kap)] for t in pend), ('dma late', ps, kap)
                    k.wait_tag(bars[(ps, kap)])
                if not bars[(ps, kap)]:
                    assert not ep
                    em(k, 3)
                    k.wait_tag(('h', 0))
                    signal(k, 'HA', 55, hs, noflush=True)
                    em(k, 4)
                else: k.I('s_barrier')
            if ps == 0 and kap == 18:
                k.I(f'v_add_u32 v{rb[0]}, 40960, v{rb[0]}')
                k.I(f'v_add_u32 v{rb[1]}, 40960, v{rb[1]}')
            if ps == 1 and kap == 1:
                if env('EP_SERIAL', 1):
                    em(k, 1)
                    for t in epi(0): emit([t])
                    em(k, 2)
                else: ep = pairs(epi(0))
            if ps == 1 and kap == KA_: fl.insert(0 if not fl or isvm(fl[0]) else 1, f'buffer_load_dword v{hr}, v{hs}, s[12:15], s55 offen sc1') if False else k.I(f'buffer_load_dword v{hr}, v{hs}, s[12:15], s55 offen sc1')
            if ps == 1 and kap == KC_: em(k, 5); check('HA', 55); em(k, 6)
            for j in range(12):
                i, mt = divmod(j, 3)
                dd = vr(accs[ps]+(mt*4+i)*4, 4)
                k.I(f'{MF16} {dd}, {ar((3*kap+mt)*4,4)}, {vr(act+16*(kap&1)+4*i,4)}, {dd if kap else 0}')
                since += 1; credit = min(credit + VRATE, 1.6)
                rd = None
                if mt == 2:
                    if kap < 18: rd = aread(ps, i, kap + 2)
                    elif ps == 0: rd = aread(1, i, kap - 18)
                if rd: k.I(rd); continue
                if j == 10 and len(k.lg) > 3: k.waitcnt(lgkm=3); continue
                if j == 10 and ps == 1 and kap == 18: k.waitcnt(lgkm=0); continue
                if not fl:
                    free = NV + (3 * kap if ps else 0)
                    if q1: fl = list(q1.pop(0))
                    elif ps == 1 and kap >= KC_ and nh < 16 and (nh // 2) * 5 < nd: fl = list(hload(nh)); nh += 1
                    elif nd < min(free, 60): fl = list(dload(nd)); nd += 1
                if ep and isvm(ep[0][0]):
                    emit(ep.pop(0)); since = 0; credit -= 1.0
                elif fl and (not isvm(fl[0]) or (since >= 3 and credit >= 1.0)):
                    t = fl.pop(0)
                    if isvm(t): since = 0; credit -= 1.0
                    emit([t])
                elif ep:
                    g_ = ep.pop(0); emit(g_)
                    if ep and len(g_) == 1 and len(ep[0]) == 1 and not isvm(ep[0][0]): emit(ep.pop(0))
        if ps == 0 and not env('MD', 0): mark(k, 2)
    for t in fl: emit([t])
    assert not q1
    print('after E: wd loaded', nd, 'h loaded', nh)
    NHE = nh
    mark(k, 8); fm(k, 1); em(k, 7); pm(k, 1)
    fq = []
    def need_order():
        o = []; d = nd; h = nh
        for kp in range(12):
            while d < 5*(kp+1): o.append(dload(d)); d += 1
            while h < 2*(kp+1): o.append(hload(h)); h += 1
        return o
    fq = need_order()
    full = list(fq)
    def sorted_q(a_, b_):
        rest = [g for g in b_ if g not in full]
        return [g for g in full if g in a_ or g in b_] + rest
    fq += [['s_mov_b64 exec, s[34:35]', f'buffer_load_dwordx4 {vr(x1r+4*t,4)}, v{ox}, s[12:15], s{46+t} offen sc1', 's_mov_b64 exec, -1'] for t in range(4)]
    for t in epi(1): emit([t])
    fm(k, 2)
    if KC_ >= 20: check('HA', 55)
    fm(k, 3)
    for _ in range(env('F_PRE1', 0)):
        if fq: emit(fq.pop(0))
    mark(k, 9); fm(k, 4)
    fa = accs[1]
    SL = [0, 4*PT, 8*PT, 0]
    def pwrite(t, a): return [f'ds_write_b128 v{lw2 if dt & 1 else lw}, {vr(a+4*dt,4)} offset:{SL[t]+16*(dt//2)}' for dt in range(5)]
    def fin_reads(t, r): return [f'ds_read_b128 {vr(r+8*src+4*h_,4)}, v{lr} offset:{SL[t]+PT*src+160*h_}' for src in range(4) for h_ in range(2)]
    def fin_valu(t, r, xf):
        o = []
        for j in range(4):
            o.append(f'v_lshlrev_b32 v{xf+2*j}, 16, v{x1r+4*t+j}')
            o.append(f'v_and_b32 v{xf+2*j+1}, 0xffff0000, v{x1r+4*t+j}')
        for p in range(4): o.append(f'v_pk_add_f32 {vr(r+2*p,2)}, {vr(r+2*p,2)}, {vr(r+8+2*p,2)}')
        for p in range(4): o.append(f'v_pk_add_f32 {vr(r+16+2*p,2)}, {vr(r+16+2*p,2)}, {vr(r+24+2*p,2)}')
        for p in range(4): o.append(f'v_pk_add_f32 {vr(r+2*p,2)}, {vr(r+2*p,2)}, {vr(r+16+2*p,2)}')
        for p in range(4): o.append(f'v_pk_fma_f32 {vr(xf+2*p,2)}, {vr(r+2*p,2)}, {vr(gb+2*p,2)}, {vr(xf+2*p,2)}')
        for p in range(4): o.append(f'v_cvt_pk_bf16_f32 v{x1r+4*t+p}, v{xf+2*p}, v{xf+2*p+1}')
        return o
    OST = os.environ.get('OUT_ST', '')
    def fin_store(t): return ['s_mov_b64 exec, s[34:35]', f'buffer_store_dwordx4 {vr(x1r+4*t,4)}, v{oo}, s[36:39], s{25+t} offen{OST}', 's_mov_b64 exec, -1']
    KB_ = env('K_B', 3)
    fl = []
    def gap(pool):
        nonlocal fl
        if not fl and pool:
            g = pool.pop(0)
            if isinstance(g[0], str) and g[0].startswith('s_mov_b64 exec'): emit(g); return
            fl = list(g)
        if fl: emit([fl.pop(0)])
    FG = env('F_GAP', 5)
    KBL, KBC = env('K_BL', 8), env('K_BC', 11)
    since = 99; nh = 24
    hq = [hload(n) for n in range(24, 48)]
    for kp in range(12):
        if kp % 2 == 0: pm(k, 2 + kp // 2)
        if kp == KB_:
            k.wait_tag(('h', 1))
            signal(k, 'HB', 51, hs, noflush=True)
            fm(k, 5)
        if kp == KBL: fq.insert(0, [f'buffer_load_dword v{hr}, v{hs}, s[12:15], s51 offen sc1'])
        if kp == KBC:
            while fq or fl: gap(fq)
            check('HB', 51); fm(k, 7)
            fq = hq
        for t in range(2):
            need = [wdreg(5*kp+dt) for dt in range(5)] + [slots_h[(2*kp+t) % NH]]
            while fq is not hq and any(g[0].startswith(f'buffer_load_dwordx4 {r},') for g in fq for r in need): gap(fq)
            for dt in range(5):
                dd = vr(fa+20*t+4*dt, 4)
                k.I(f'{MF16} {dd}, {wdreg(5*kp+dt)}, {slots_h[(2*kp+t) % NH]}, {dd if kp else 0}')
                since += 1
                if dt == 4: continue
                if fl: gap(fq)
                elif since >= (env('F_GAP2', 5) if fq is hq else env('F_GAP1', 2)) and fq: gap(fq); since = 0
    pm(k, 8)
    while fl: gap(fq)
    if KBC >= 12:
        while fq: gap(fq)
    if not env('MD', 0): mark(k, 3)
    fm(k, 6); em(k, 8); pm(k, 9)
    def sprinkle(lst, every):
        for j, v_ in enumerate(lst):
            k.I(v_)
            if j % every == every - 1 and hq: emit(hq.pop(0))
    if KBC == 12: check('HB', 51); fm(k, 7)
    sprinkle(pwrite(0, fa) + pwrite(1, fa + 20), env('SPR', 2) if KBC <= 12 else 99)
    k.barrier()
    if KBC == 13:
        check('HB', 51); fm(k, 7)
        for _ in range(4): emit(hq.pop(0))
    em(k, 9)
    xfA = pk
    sprinkle(fin_reads(0, fa) + fin_reads(1, act), env('SPR2', 8))
    sprinkle(fin_valu(0, fa, pk), env('SPR3', 14))
    if not env('MD', 0): mark(k, 4)
    late_st = [fin_store(0), fin_store(1)]
    extra0 = pairs(fin_valu(1, act, fa + 40))
    rB = act
    extra = extra0
    hq = hq + late_st
    since = 99
    for t in (2, 3):
        a = fa + 20*(t - 2)
        if t == 3:
            assert not extra
            extra = [[w_] for w_ in pwrite(2, fa)]
        for kp in range(12):
            n = 24 + 12*(t-2) + kp
            if n == 25: fm(k, 8)
            assert not any(g[0].startswith(f'buffer_load_dwordx4 {slots_h[n % NH]},') for g in hq)
            for dt in range(5):
                dd = vr(a+4*dt, 4)
                k.I(f'{MF16} {dd}, {wdreg(5*kp+dt)}, {slots_h[n % NH]}, {dd if kp else 0}')
                since += 1
                if dt == 4 and n < 46: continue
                if fl: gap(hq)
                elif hq and since >= FG and not (extra is extra0 and extra and hq[0] is late_st[1]): gap(hq); since = 0
                elif (kp >= 1 or t == 2) and extra: emit(extra.pop(0))
            if t == 3 and kp == 3:
                assert not extra
                k.barrier()
                extra = [[r_] for r_ in fin_reads(2, wdv)] + pairs(fin_valu(2, wdv, xfA)) + [fin_store(2)]
    fm(k, 9)
    while extra: emit(extra.pop(0))
    for w_ in pwrite(3, fa + 20): k.I(w_)
    xl = fin_valu(3, wdv + 32, act)
    for v_ in xl[:8]: k.I(v_)
    k.barrier()
    for r_ in fin_reads(3, wdv + 32): k.I(r_)
    for v_ in xl[8:]: k.I(v_)
    emit(fin_store(3))
    stamp_end(k, 3, 4)
    k.label('LD_exit')
    k.I('s_endpgm')
    for name, cnt in spins:
        k.label(f'L{name}_spin', fresh=True); k.vm = []; k.lg = []
        k.I('s_mov_b32 s24, 0x100000')
        k.label(f'L{name}_loop')
        k.I(f'buffer_load_dword v{hr}, v{hs}, s[12:15], s{cnt} offen sc1')
        k.waitcnt(vm=0)
        k.I(f'v_readfirstlane_b32 s33, v{hr}')
        k.I('s_sub_u32 s24, s24, 1')
        k.I(f's_cbranch_scc1 L{name}_ok')
        k.I('s_cmp_lt_u32 s33, 16')
        k.I(f's_cbranch_scc1 L{name}_loop')
        k.I(f's_branch L{name}_ok')
    return k, (256, 256, 163840)
```

```python
import sys, os, gen, gen5
from gen import *
T = int(os.environ.get('SPIN_T', 9000))
NAME = 'adaLN_cond__spectral_gfnet__glu_gated_bilinear__prompt_kernel'
ks = [g() for g in gen5.KERNELS]
N = [c[0] for _, c in ks]
def wait(ph, tgt):
    return f"""    s_load_dwordx2 s[88:89], s[0:1], 80
    s_waitcnt lgkmcnt(0)
    s_mov_b32 s90, 256
    s_mov_b32 s91, 0x00020000
    v_mov_b32 v2, 0
    s_mov_b32 s93, 0x200000
Lw{ph}:
    s_sleep 16
    buffer_load_dword v3, v2, s[88:91], 0 offen offset:{128+64*ph} sc1
    s_waitcnt vmcnt(0)
    v_readfirstlane_b32 s92, v3
    s_sub_u32 s93, s93, 1
    s_cbranch_scc1 Lw{ph}o
    s_cmp_lt_u32 s92, {tgt}
    s_cbranch_scc1 Lw{ph}
Lw{ph}o:
    buffer_inv sc1
    s_waitcnt vmcnt(0)
"""
def fin(ph):
    return f"""Lfin{ph}:
    s_nop 15
    s_mov_b64 exec, -1
    s_load_dwordx2 s[88:89], s[0:1], 80
    s_waitcnt vmcnt(0) lgkmcnt(0)
    buffer_wbl2 sc1
    s_waitcnt vmcnt(0)
    s_mov_b32 s90, 256
    s_mov_b32 s91, 0x00020000
    v_mov_b32 v2, 0
    v_mov_b32 v3, 1
    s_mov_b64 exec, 1
    buffer_atomic_add v3, v2, s[88:91], 0 offen offset:{128+64*ph} sc1
    s_waitcnt vmcnt(0)
    s_cmp_lg_u32 s95, 2
    s_cbranch_scc1 Lfin{ph}e
Lsp{ph}:
    s_memrealtime s[98:99]
    s_waitcnt lgkmcnt(0)
    s_sub_u32 s98, s98, s96
    s_cmp_lt_u32 s98, 0
    s_cbranch_scc1 Lsp{ph}
Lfin{ph}e:
    s_endpgm
"""
body = f""".globl {NAME}
.p2align 8
.type {NAME},@function
{NAME}:
    s_memrealtime s[96:97]
    s_mov_b32 s95, s2
    s_waitcnt lgkmcnt(0)
    s_cmp_lt_u32 s2, {N[0]}
    s_cbranch_scc1 ka_kernel
    s_sub_u32 s2, s2, {N[0]}
    s_cmp_lt_u32 s2, {N[1]}
    s_cbranch_scc0 Lph2
{wait(0, 4*N[0])}    s_branch kc_kernel
Lph2:
    s_sub_u32 s2, s2, {N[1]}
    s_cmp_lt_u32 s2, {N[2]}
    s_cbranch_scc0 Lend
{wait(1, 4*N[1])}    s_branch kd_kernel
Lend:
    s_endpgm
"""
for i, (k, c) in enumerate(ks):
    t = k.name + ':\n' + '\n'.join(k.out) + '\n'
    if i < 2: t = t.replace('s_endpgm', f's_branch Lfin{i}') + fin(i)
    else:
        t = t.replace('LD_exit:\n', f"""    s_cmp_lg_u32 s2, 0
    s_cbranch_scc1 LD_exit
    s_load_dwordx2 s[88:89], s[0:1], 80
    s_waitcnt vmcnt(0) lgkmcnt(0)
    s_mov_b32 s90, 256
    s_mov_b32 s91, 0x00020000
    v_mov_b32 v2, 0
    buffer_load_dword v3, v2, s[88:91], 0 offen offset:64 sc1
    s_waitcnt vmcnt(0)
    v_readfirstlane_b32 s96, v3
Lspx:
    s_memrealtime s[98:99]
    s_waitcnt lgkmcnt(0)
    s_sub_u32 s98, s98, s96
    s_cmp_lt_u32 s98, {T}
    s_cbranch_scc1 Lspx
LD_exit:
""")
    body += t
body = body.replace("    s_cmp_lg_u32 s95, 2\n    s_cbranch_scc1 Lfin0e\n", "    s_cmp_lg_u32 s95, 2\n    s_cbranch_scc1 Lfin0e\n    v_mov_b32 v3, s96\n    buffer_store_dword v3, v2, s[88:91], 0 offen offset:64 sc1\n", 1)
ks[2][0].name = NAME; ks[2][0].maxs = 100
form = os.environ.get('FORM', 'plain')
line = f'; @launch grid=({sum(N)},1,1) block=(256,1,1) lds=163840\n' if form == 'plain' else f'; @launch kernel={NAME} grid=({sum(N)},1,1) block=(256,1,1) lds=163840\n'
s = HEADER + line + '.amdgcn_target "amdgcn-amd-amdhsa--gfx950"\n.text\n' + body + 'Lcode_end:\n.section .rodata,"a"\n' + ks[2][0].descriptor()
open(sys.argv[1], 'w').write(s)
```

```python
import os, math
import gen
from gen import *
from gen2 import *
from gen4 import YT, YT_ST, WS_END4
from gen import mark, stamp_begin, stamp_end

class Rec:
    def __init__(self): self.l = []
    def I(self, t, **kw): self.l.append(t)
def rec(fn, *a):
    r = Rec(); fn(r, *a); return r.l
def merge(k, main, fill, per):
    fill = list(fill)
    for m in main:
        k.I(m)
        for _ in range(per):
            if fill: k.I(fill.pop(0))
    return fill

import re as _re
def unpk(t):
    if isinstance(t, tuple) or not t.startswith('v_pk_'): return [t]
    m = _re.match(r'v_pk_(\w+)_f32 (.*)$', t)
    regs = [int(x) for x in _re.findall(r'v\[(\d+):\d+\]', m.group(2))]
    if m.group(1) == 'fma' and regs[0] == regs[3]: return [f'v_fmac_f32 v{regs[0]+j}, v{regs[1]+j}, v{regs[2]+j}' for j in range(2)]
    if m.group(1) == 'fma': return [f'v_fma_f32 v{regs[0]+j}, v{regs[1]+j}, v{regs[2]+j}, v{regs[3]+j}' for j in range(2)]
    return [f'v_{m.group(1)}_f32 v{regs[0]+j}, v{regs[1]+j}, v{regs[2]+j}' for j in range(2)]
def pairs(lst):
    out = []
    for t in lst:
        u = unpk(t)
        if len(u) == 2 and 'v_fma_' in u[0]: out += [[u[0]], [u[1]]]
        else: out.append(u)
    return out
def signal(k, name, cnt_sgpr, vtmp, noflush=False):
    k.I('s_barrier')
    st = k.save_state()
    k.I('s_cmp_lg_u32 s22, 0')
    k.I(f's_cbranch_scc1 L{name}_sig', noflush=noflush)
    k.I('s_mov_b64 exec, 1')
    k.I(f'buffer_atomic_add v{vtmp+1}, v{vtmp}, s[12:15], s{cnt_sgpr} offen sc1')
    k.I('s_mov_b64 exec, -1')
    if noflush: k.raw(f'L{name}_sig:')
    else: k.label(f'L{name}_sig')
    k.restore_state(st)
    k.vm.append((set(), None)) if False else None
def poll(k, name, cnt_sgpr, vtmp, vres):
    st = k.save_state()
    k.I('s_cmp_lg_u32 s22, 3')
    k.I(f's_cbranch_scc1 L{name}_done')
    k.I('s_mov_b32 s24, 0x100000')
    k.label(f'L{name}_poll')
    k.I(f'buffer_load_dword v{vres}, v{vtmp}, s[12:15], s{cnt_sgpr} offen sc1')
    k.waitcnt(vm=0)
    k.I(f'v_readfirstlane_b32 s33, v{vres}')
    k.I('s_sub_u32 s24, s24, 1')
    k.I(f's_cbranch_scc1 L{name}_done')
    k.I('s_cmp_lt_u32 s33, 16')
    k.I(f's_cbranch_scc1 L{name}_poll')
    k.label(f'L{name}_done')
    k.restore_state(st)
    k.I('s_barrier')

TAB = WS_END4
WS_END6 = TAB + 24 * 1024
class Fix:
    def __init__(self, seq): self.seq = list(seq)
    def get(self, *a): return self.seq.pop(0)
def role_tab(k):
    c0 = 24; f40 = c0; f16 = c0 + 62; cs = c0 + 68; sn = c0 + 80
    vi, vq, fi, fq, fq4, vo, t8, tmp = 2, 3, 4, 5, 6, 7, 8, 16
    k.I(f'v_and_b32 v{vi}, 15, v0')
    k.I(f'v_lshrrev_b32 v{vq}, 4, v0')
    k.I(f'v_cvt_f32_u32 v{fi}, v{vi}')
    k.I(f'v_cvt_f32_u32 v{fq}, v{vq}')
    k.I(f'v_mul_f32 v{fq4}, 4.0, v{fq}')
    k.I(f'v_lshlrev_b32 v{vo}, 4, v0')
    gen_f40(k, Fix([f40, t8, t8+4, t8+6]), fi, fq, True)
    gen_tw640(k, Fix([cs, sn, t8]), fi, fq4)
    k.I(f'v_cmp_gt_u32 vcc, 8, v{vi}')
    for r in range(4):
        k.I(f'v_cndmask_b32 v{cs+8+r}, 0, v{cs+8+r}, vcc')
        k.I(f'v_cndmask_b32 v{sn+8+r}, 0, v{sn+8+r}, vcc')
    k.I(f'v_mul_f32 v{t8}, {fhex(1.0/16)}, v{fi}')
    k.I(f'v_mul_f32 v{t8+1}, v{fq4}, v{t8}')
    for j in range(4): k.I(f'v_fmamk_f32 v{tmp+4+j}, v{t8}, {fhex(float(j))}, v{t8+1}')
    for j in range(4):
        k.I(f'v_cos_f32 v{tmp+j}, v{tmp+4+j}')
        k.I(f'v_sin_f32 v{tmp+4+j}, v{tmp+4+j}')
    for p in range(2):
        k.I(f'v_cvt_pk_bf16_f32 v{f16+p}, v{tmp+4+2*p}, v{tmp+5+2*p}')
        k.I(f'v_cvt_pk_bf16_f32 v{f16+2+p}, v{tmp+2*p}, v{tmp+1+2*p}')
        k.I(f'v_cvt_pk_bf16_f32 v{f16+4+p}, -v{tmp+4+2*p}, -v{tmp+5+2*p}')
    k.srd(24, 4, 23 * 1024, TAB)
    for i in range(23):
        if i % 4 == 0: k.I(f's_mov_b32 s28, {1024*i}')
        k.I(f'buffer_store_dwordx4 {vr(c0+4*i,4)}, v{vo}, s[24:27], s28 offen offset:{1024*(i%4)}')

XNT = ' nt' if os.environ.get('XNT') == '1' else ''
_mark = mark
def mark(k, i):
    if not env('MF', 0): _mark(k, i)
def fm(k, i):
    if env('MF', 0) == 1: _mark(k, i)
def pm(k, i):
    if env('MF', 0) == 3: _mark(k, i)
def em(k, i):
    if env('MF', 0) == 2: _mark(k, i)
def gen_DEF8():
    k = Kernel('kd_kernel')
    PL = 2592
    HB = 0; XB = 10240; SB = 122880; XL = 32768; MLD = XL + 4 * 2560; TL = MLD + 8192
    W_ST = env('W_ST', 8); W_PL = env('W_PL', 6); W_A = env('W_A', 4)
    stamp_begin(k)
    k.I('s_cmp_ge_u32 s2, 256')
    k.I('s_cbranch_scc1 LD_exit')
    k.I(f's_load_dwordx2 s[4:5], s[0:1], {KA["ws"]}')
    k.I(f's_load_dwordx2 s[6:7], s[0:1], {KA["x"]}')
    k.I(f's_load_dwordx2 s[40:41], s[0:1], {KA["out"]}')
    va = VAlloc(2)
    hs = va.get(2, 2); vl = va.get(); vo16 = va.get(); vW = va.get(); vi = va.get(); vq = va.get(); oh = va.get(); oh2 = va.get(); hr = va.get()
    keep = va.n
    so = va.get(); wu = va.get(); wv = va.get(); ra = va.get(); xo = va.get(); mo = va.get(); wh = va.get(3); wx = va.get(); g0 = va.get(); g2 = va.get()
    ch = va.get(12, 4); xr = va.get(12, 2); mg = va.get(12, 4); mc = va.get(12, 4); ms = va.get(12, 4)
    d1 = va.get(24, 4); d2 = va.get(24, 4); dat = va.get(12, 2); tmp = va.get(8, 2)
    f40 = va.get(92, 4); f16 = f40 + 62; cs = f40 + 68; sn = f40 + 80
    tv = VAlloc(d1, d1 + 48)
    ta = tv.get(4); tk = tv.get(); cb_ = tv.get(); tq = tv.get(); pz = tv.get(4, 4)
    k.I('v_lshrrev_b32 v1, 6, v0')
    k.I(f'v_and_b32 v{vl}, 63, v0')
    k.I('v_readfirstlane_b32 s22, v1')
    k.I('s_and_b32 s20, s2, 6')
    k.I('s_lshl_b32 s20, s20, 1')
    k.I('s_lshr_b32 s21, s2, 6')
    k.I('s_add_u32 s20, s20, s21')
    k.I('s_bfe_u32 s56, s2, 0x30003')
    k.I('s_and_b32 s57, s2, 1')
    k.I('s_lshl_b32 s21, s57, 3')
    k.I('s_add_u32 s21, s21, s56')
    k.I('s_lshl_b32 s25, s20, 4')
    k.I('s_add_u32 s3, s25, s21')
    k.I(f's_mul_i32 s25, s3, {YT_ST}')
    k.I('s_add_u32 s26, s25, 4096')
    k.I('s_add_u32 s27, s25, 8192')
    k.I(f'v_lshlrev_b32 v{so}, 4, v0')
    k.I(f'v_lshlrev_b32 v{vo16}, 4, v{vl}')
    k.I(f'v_lshrrev_b32 v{ta+1}, 1, v0')
    k.I(f'v_cmp_ge_u32 s[34:35], 64, v{ta+1}')
    k.I('s_lshl_b32 s23, s20, 7')
    k.I('s_lshl_b32 s24, s21, 1')
    k.I('s_add_u32 s23, s23, s24')
    k.I('s_and_b32 s24, s22, 1')
    k.I('s_lshl_b32 s24, s24, 6')
    k.I('s_add_u32 s23, s23, s24')
    k.I('s_lshr_b32 s24, s22, 1')
    k.I('s_add_u32 s23, s23, s24')
    k.I('s_mul_i32 s28, s23, 1280')
    k.I(f's_add_u32 s29, s28, {32*1280}')
    k.I(f's_mul_i32 s30, s22, 2560')
    k.I(f's_add_u32 s30, s30, {XL}')
    k.I('s_lshl_b32 s31, s22, 11')
    k.I('s_lshl_b32 s32, s21, 2')
    k.I('s_add_u32 s32, s32, s22')
    k.I('s_mul_i32 s24, s32, 61440' if not env('W_SAME', 0) & 1 else 's_mul_i32 s24, s22, 61440')
    k.I(f's_add_u32 s24, s24, {WGU}')
    k.I(f'v_add_u32 v{vW}, s24, v{vo16}')
    k.I(f'v_and_b32 v{vi}, 15, v{vl}')
    k.I(f'v_lshrrev_b32 v{vq}, 4, v{vl}')
    addr = []
    A = addr.append
    A(f'v_lshrrev_b32 v{tq}, 1, v{vq}')
    A(f'v_mad_u32_u24 v{cb_}, v{vi}, 5, v{tq}')
    A(f'v_and_b32 v{tk}, 1, v{vq}')
    A(f'v_mul_u32_u24 v{oh}, 49152, v{tk}')
    A(f'v_lshlrev_b32 v{oh2}, 2, v{oh}')
    A(f'v_lshl_add_u32 v{oh}, v{tq}, 8, v{oh}')
    A(f'v_lshl_add_u32 v{oh}, v{vi}, 4, v{oh}')
    A(f'v_mul_u32_u24 v{tq}, 49152, v{tq}')
    A(f'v_add_u32 v{oh2}, v{oh2}, v{tq}')
    A(f'v_lshl_add_u32 v{oh2}, v{vi}, 4, v{oh2}')
    A(f'v_lshl_add_u32 v{tk}, v1, 1, v{tk}')
    for T in range(3):
        A(f'v_add_u32 v{tq}, {2*T}, v{cb_}')
        A(f'v_xor_b32 v{wh+T}, v{tq}, v{tk}')
        A(f'v_and_b32 v{wh+T}, 7, v{wh+T}')
        A(f'v_lshl_add_u32 v{wh+T}, v{tq}, 3, v{wh+T}')
        A(f'v_lshlrev_b32 v{wh+T}, 4, v{wh+T}')
        A(f'v_add_u32 v{wh+T}, {SB}, v{wh+T}')
    A(f'v_mul_u32_u24 v{wx}, 1280, v{tk}')
    A(f'v_lshl_add_u32 v{wx}, v{cb_}, 4, v{wx}')
    A(f'v_add_u32 v{wx}, {SB}, v{wx}')
    A(f'v_lshrrev_b32 v{tq}, 3, v0')
    A(f'v_xor_b32 v{g0}, v{tq}, v0')
    A(f'v_and_b32 v{g0}, 7, v{g0}')
    A(f'v_lshlrev_b32 v{g0}, 4, v{g0}')
    A(f'v_lshl_add_u32 v{g0}, v{tq}, 8, v{g0}')
    for t in addr: k.I(t)
    k.I(f'v_and_b32 v{ta}, 1, v0')
    k.I(f'v_mul_u32_u24 v{wu}, {2*PL}, v{ta}')
    k.I(f'v_sub_u32 v{wv}, 384, v{ta+1}')
    k.I(f'v_lshl_add_u32 v{wv}, v{wv}, 2, v{wu}')
    k.I(f'v_lshl_add_u32 v{wu}, v{ta+1}, 2, v{wu}')
    k.I(f's_mul_i32 s33, s22, {PL}')
    k.I(f'v_lshl_add_u32 v{ra}, v{vl}, 2, s33')
    k.I(f'v_mov_b32 v{dat+10}, 0'); k.I(f'v_mov_b32 v{dat+11}, 0')
    k.I(f'v_mul_u32_u24 v{xo}, 80, v{vi}')
    k.I(f'v_lshl_add_u32 v{xo}, v{vq}, 3, v{xo}')
    k.I(f'v_lshlrev_b32 v{mo}, 1, v{xo}')
    k.I(f'v_add_u32 v{xo}, s30, v{xo}')
    for j in range(8, 12): k.I(f'v_mov_b32 v{xr+j}, 0')
    k.I(f's_mul_i32 s58, s20, {8*49152}')
    k.I('s_mul_i32 s24, s32, 768')
    k.I('s_add_u32 s58, s58, s24')
    k.I(f's_add_u32 s58, s58, {HH}')
    for i in range(1, 4): k.I(f's_add_u32 s{58+i}, s58, {2*i*49152}')
    k.I('s_mul_i32 s42, s22, 6144')
    k.srd(16, 4, 256 * YT_ST, YT)
    for rho in range(3):
        if rho == 2: k.I('s_mov_b64 exec, s[34:35]')
        k.I(f'buffer_load_dwordx4 {vr(ch+4*rho,4)}, v{so}, s[16:19], s{25+rho} offen')
    k.I('s_mov_b64 exec, -1')
    k.srd(12, 4, WS_END6)
    k.I(f's_add_u32 m0, s42, {TL}')
    k.I(f's_add_u32 s43, s42, {TAB}')
    for i in range(4): k.I(f'buffer_load_dwordx4 v{vo16}, s[12:15], s43 offen offset:{1024*i} lds', tag='md')
    k.I(f's_add_u32 m0, s42, {TL+4096}')
    k.I(f's_add_u32 s43, s43, 4096')
    for i in range(2): k.I(f'buffer_load_dwordx4 v{vo16}, s[12:15], s43 offen offset:{1024*i} lds', tag='md')
    k.I(f's_add_u32 m0, s31, {MLD}')
    k.I(f's_add_u32 s31, s31, {MODN + 2*2560}')
    k.I(f'buffer_load_dwordx4 v{vo16}, s[12:15], s31 offen lds', tag='md')
    k.I(f'buffer_load_dwordx4 v{vo16}, s[12:15], s31 offen offset:1024 lds', tag='md')
    mark(k, 1)
    def wload(n):
        if env('NO_W', 0): return [f'v_add_u32 v{vW}, 0, v{vW}']
        g = [f'buffer_load_dwordx4 {ar(4*n,4)}, v{vW}, s[12:15], 0 offen offset:{1024*(n%4)}']
        if n % 4 == 3: g.append(f'v_add_u32 v{vW}, 0x1000, v{vW}')
        return g
    k.bg = [wload(n) for n in range(60)]
    k.emit_bg(env('W_00', 8))
    k.I(f'v_add_u32 v{so}, {SB}, v{so}')
    tb_ = g2
    k.I(f'v_add_u32 v{tb_}, {TL}, v{vo16}')
    mark(k, 2)
    be = k.bg_every; k.bg_every = 0
    for rho in range(3):
        if rho == 2: k.I('s_mov_b64 exec, s[34:35]')
        for pr in range(2):
            k.I(f'ds_write_b32 v{wu}, v{ch+4*rho+2*pr} offset:{pr*PL+512*rho}')
            k.I(f'ds_write_b32 v{wv}, v{ch+4*rho+2*pr+1} offset:{pr*PL+512*(2-rho)}')
    k.I('s_mov_b64 exec, -1')
    k.srd(8, 6, S * D * 2)
    for c in range(2):
        k.I(f's_add_u32 m0, s30, {1280*c}')
        k.I(f'buffer_load_dwordx4 v{vo16}, s[8:11], s{28+c} offen{XNT} lds', tag='xx')
        k.I('s_mov_b64 exec, 0xffff')
        k.I(f'buffer_load_dwordx4 v{vo16}, s[8:11], s{28+c} offen offset:1024{XNT} lds', tag='xx')
        k.I('s_mov_b64 exec, -1')
    k.emit_bg(env('W_0', 2))
    k.wait_tag('md')
    k.barrier()
    mark(k, 3)
    for p in range(5):
        k.I(f'ds_read2st64_b32 {vr(dat+2*p,2)}, v{ra} offset0:{2*p} offset1:{2*p+1}')
    def s1(T):
        o = []
        for kap in range(3):
            for c in range(2):
                dd = vr(d1 + (2*T+c)*4, 4)
                o.append(f'{MF16} {dd}, {vr(dat+4*kap,4)}, {vr(f40+(2*T+c)*10+4*kap,4)}, {dd if kap else 0}')
        return o
    tl = [f'ds_read_b128 {vr(f40+4*i,4)}, v{tb_} offset:{1024*i}' for i in range(23)]
    for t in tl[:9]: k.I(t)
    k.bg_every = env('BG2', 12)
    rest = merge(k, s1(0) + s1(1), tl[9:], 1)
    for t in rest: k.I(t)
    k.bg_every = 0
    for T in range(3): k.I(f'ds_read_b128 {vr(mg+4*T,4)}, v{mo} offset:{MLD+64*T}')
    a2 = ch; xf = f40
    cm = [rec(cmul4, d1+8*T, d1+8*T+4, cs+4*T, sn+4*T, a2+4*T, tmp, True) for T in range(3)]
    def s2(T): return [f'{MF16} {vr(d2+(2*T+c)*4,4)}, {vr(a2+4*T,4)}, {vr(f16+(0 if c else 2),4)}, 0' for c in range(2)]
    rest = merge(k, s1(2), cm[0], 2)
    for t in rest: k.I(t)
    k.wait_tag('xx')
    for T in range(3):
        if T == 2: k.I('s_mov_b32 exec_hi, 0')
        for c in range(2):
            k.I(f'ds_read_b64 {vr(xr+(2*T+c)*2,2)}, v{xo} offset:{1280*c+32*T}')
    k.I('s_mov_b64 exec, -1')
    k.bg_every = env('BG2', 12)
    for t in s2(0) + cm[1] + s2(1) + cm[2] + s2(2): k.I(t)
    for T in range(3):
        k.I(f'ds_read_b128 {vr(ms+4*T,4)}, v{mo} offset:{MLD+2560+64*T}')
        k.I(f'ds_read_b128 {vr(mc+4*T,4)}, v{mo} offset:{MLD+5120+64*T}')
    st_ = f40 + 24
    for T in range(3):
        for i in range(4*T, 4*T+4):
            k.I(f'v_lshlrev_b32 v{xf+2*i}, 16, v{xr+i}')
            k.I(f'v_and_b32 v{xf+2*i+1}, 0xffff0000, v{xr+i}')
        for c in range(2):
            for p in (0, 2):
                r = (2*T+c)*4+p
                k.I(f'v_pk_fma_f32 {vr(xf+r,2)}, {vr(d2+r,2)}, {vr(mg+4*T+p,2)}, {vr(xf+r,2)}')
        for c in range(2):
            r = xf+(2*T+c)*4
            if T == 0:
                k.I(f'v_pk_add_f32 {vr(st_+2*c,2)}, {vr(r,2)}, {vr(r+2,2)}')
                k.I(f'v_pk_mul_f32 {vr(st_+4+2*c,2)}, {vr(r,2)}, {vr(r,2)}')
            else:
                k.I(f'v_pk_add_f32 {vr(st_+2*c,2)}, {vr(st_+2*c,2)}, {vr(r,2)}')
                k.I(f'v_pk_fma_f32 {vr(st_+4+2*c,2)}, {vr(r,2)}, {vr(r,2)}, {vr(st_+4+2*c,2)}')
        for c in range(2):
            r = xf+(2*T+c)*4+2
            if T: k.I(f'v_pk_add_f32 {vr(st_+2*c,2)}, {vr(st_+2*c,2)}, {vr(r,2)}')
            k.I(f'v_pk_fma_f32 {vr(st_+4+2*c,2)}, {vr(r,2)}, {vr(r,2)}, {vr(st_+4+2*c,2)}')
    for i in range(4): k.I(f'v_add_f32 v{st_+2*i}, v{st_+2*i}, v{st_+2*i+1}')
    wave_reduce_to_sgpr(k, [st_, st_+2, st_+4, st_+6], [46, 47, 48, 49])
    po = d1; ph = d1 + 12; hn = d2
    rr = f40 + 32; nmr = f40 + 34
    ln_scalars(k, 46, 48, rr, nmr, tmp)
    for T in range(3):
        for c in range(2):
            for p in (0, 2):
                r = (2*T+c)*4+p
                k.I(f'v_pk_fma_f32 {vr(hn+r,2)}, {vr(xf+r,2)}, {vr(rr,2)}, {vr(nmr,2)} op_sel:[0,{c},{c}] op_sel_hi:[1,{c},{c}]')
        for c in range(2):
            for p in (0, 2):
                r = hn+(2*T+c)*4+p
                k.I(f'v_pk_fma_f32 {vr(r,2)}, {vr(r,2)}, {vr(mc+4*T+p,2)}, {vr(ms+4*T+p,2)}')
        for j in range(4):
            k.I(f'v_cvt_pk_bf16_f32 v{ph+4*T+j}, v{hn+8*T+2*j}, v{hn+8*T+2*j+1}')
        if T:
            k.I(f'v_permlane16_swap_b32 v{ph+4*T-4}, v{ph+4*T-2}')
            k.I(f'v_permlane16_swap_b32 v{ph+4*T-3}, v{ph+4*T-1}')
            k.I(f'ds_write_b128 v{wh+T-1}, {vr(ph+4*T-4,4)} offset:{HB}')
    k.bg_every = 0
    for j in range(2): k.I(f'v_cvt_pk_bf16_f32 v{po+j}, v{xf+2*j}, v{xf+2*j+1}')
    k.I(f'v_permlane16_swap_b32 v{ph+8}, v{ph+10}')
    k.I(f'v_permlane16_swap_b32 v{ph+9}, v{ph+11}')
    k.I('s_mov_b32 exec_hi, 0')
    k.I(f'ds_write_b128 v{wh+2}, {vr(ph+8,4)} offset:{HB}')
    k.I('s_mov_b64 exec, -1')
    k.I('s_lshr_b32 s42, s3, 1')
    k.I('s_mul_i32 s42, s42, 20480')
    k.I('s_and_b32 s24, s21, 1')
    k.I('s_lshl_b32 s24, s24, 7')
    k.I('s_add_u32 s42, s42, s24')
    k.I(f's_add_u32 s42, s42, {H2}')
    k.I('s_add_u32 s44, s42, 8192')
    k.I('s_add_u32 s45, s42, 16384')
    k.barrier()
    mark(k, 4)
    sd = mg
    for rho in range(3):
        k.I(f'ds_read_b128 {vr(sd+4*rho,4)}, v{so} offset:{HB+4096*rho}')
    for j in range(2, 12): k.I(f'v_cvt_pk_bf16_f32 v{po+j}, v{xf+2*j}, v{xf+2*j+1}')
    k.I(f'buffer_store_dwordx4 {vr(sd,4)}, v{g0}, s[12:15], s42 offen sc1', tag='h2')
    k.I(f'buffer_store_dwordx4 {vr(sd+4,4)}, v{g0}, s[12:15], s44 offen sc1', tag='h2')
    k.I('s_cmp_lt_u32 s22, 2')
    k.I('s_cselect_b64 exec, -1, 0')
    k.I(f'buffer_store_dwordx4 {vr(sd+8,4)}, v{g0}, s[12:15], s45 offen sc1', tag='h2')
    k.I('s_mov_b64 exec, -1')
    for T in range(3):
        k.I(f'v_permlane16_swap_b32 v{po+4*T}, v{po+4*T+2}')
        k.I(f'v_permlane16_swap_b32 v{po+4*T+1}, v{po+4*T+3}')
    for T in range(3):
        if T == 2: k.I('s_mov_b32 exec_hi, 0')
        k.I(f'ds_write_b128 v{wx}, {vr(po+4*T,4)} offset:{XB+32*T}')
    k.I('s_mov_b64 exec, -1')
    k.I(f's_add_u32 s24, s30, {SB + XB - XL}')
    k.I(f'v_add_u32 v{g2}, s24, v{vo16}')
    k.I('s_mul_i32 s43, s3, 10240')
    k.I(f's_add_u32 s43, s43, s30')
    k.I(f's_add_u32 s29, s43, {X1 - XL}')
    k.waitcnt(lgkm=0)
    sx = 244
    for i in range(3): k.I(f'ds_read_b128 {vr(sx+4*i,4)}, v{g2} offset:{1024*i}')
    def x1st():
        for i in range(3):
            if i == 2: k.I('s_mov_b32 exec_hi, 0')
            k.I(f'buffer_store_dwordx4 {vr(sx+4*i,4)}, v{vo16}, s[12:15], s43 offen offset:{1024*i} sc1')
        k.I('s_mov_b64 exec, -1')
    k.I('s_mul_i32 s24, s20, 163840')
    k.I(f's_add_u32 s24, s24, {H2}')
    k.I('s_add_u32 s16, s4, s24')
    k.I('s_addc_u32 s17, s5, 0')
    k.I('s_mov_b32 s18, 163840')
    k.I('s_mov_b32 s19, 0x00020000')
    k.I('s_and_b32 s52, s22, 2')
    k.I('s_add_u32 s52, s52, s22')
    k.I('s_mul_i32 s52, s52, 20480')
    k.I('s_add_u32 s53, s52, 40960')
    k.I('s_lshl_b32 s54, s20, 8')
    k.I(f's_add_u32 s54, s54, {FLAGS}')
    k.I('s_add_u32 s55, s54, 4096')
    k.I('s_add_u32 s51, s54, 128')
    k.srd(36, 40, S * D * 2)
    k.I(f'v_mov_b32 v{hs}, 0')
    k.I(f'v_mov_b32 v{hs+1}, 1')
    k.emit_bg(W_ST)
    va = VAlloc(keep)
    rb = [va.get(), va.get()]; vD = va.get()
    oo = va.get(); ox = va.get(); lw = va.get(); lr = va.get(); t0 = va.get(); t1 = va.get()
    act = va.get(32, 4); accs = [va.get(48, 4), va.get(48, 4)]; pk = va.get(12, 4)
    gb = va.get(8, 4); x1r = va.get(16, 4)
    NV = (256 - va.n) // 4
    wdv = va.get(4 * NV, 4)
    def wdreg(n): return vr(wdv + 4*n, 4) if n < NV else ar(4*(n - NV), 4)
    def emit(grp):
        for t in grp:
            if isinstance(t, tuple): k.I(t[0], tag=t[1])
            else: k.I(t)
    def dma(ps, g):
        out = []
        for j in range(4):
            gr = [(f'buffer_load_dwordx4 v{vo16}, s[16:19], m0 offen offset:{1024*j} sc1 lds', ('a', ps, g, j // 2))]
            if j == 0: gr = [f's_add_u32 m0, s{52+ps}, {4096*g}'] + gr
            out.append(gr)
        return out
    NPRE = 2
    for g in range(NPRE):
        for grp in dma(0, g): emit(grp)
    k.emit_bg(W_A)
    late = list(k.bg); k.bg = []
    print('late weight loads', len(late), 'NV', NV)
    k.I(f'v_mov_b32 v{rb[0]}, v{vo16}')
    k.I(f'v_add_u32 v{rb[1]}, {4*20480}, v{vo16}')
    def aread(ps, i, kap):
        off = ((i & 1) + 2*ps) * 20480 + 1024*kap
        base = rb[i >> 1]
        return f'ds_read_b128 {vr(act+16*(kap&1)+4*i,4)}, v{base} offset:{off - (40960 if ps else 0)}'
    k.I('s_lshl_b32 s24, s56, 2')
    k.I('s_add_u32 s24, s24, s22')
    k.I('s_mul_i32 s24, s24, 61440' if not env('W_SAME', 0) & 2 else 's_mul_i32 s24, s22, 61440')
    k.I(f's_add_u32 s24, s24, {WD}')
    k.I(f'v_add_u32 v{vD}, s24, v{vo16}')
    def dload(n):
        if env('NO_WD', 0): return [f'v_add_u32 v{vD}, 0, v{vD}']
        g = [f'buffer_load_dwordx4 {wdreg(n)}, v{vD}, s[12:15], 0 offen offset:{1024*(n%4)}']
        if n % 4 == 3: g.append(f'v_add_u32 v{vD}, 0x1000, v{vD}')
        return g
    RS = 336; PT = 16 * RS
    k.I('s_lshl_b32 s24, s20, 1')
    k.I('s_add_u32 s24, s24, s57')
    k.I('s_lshl_b32 s24, s24, 2')
    k.I(f's_mul_i32 s33, s22, {12*1024}')
    k.I(f's_add_u32 s33, s33, {HH}')
    k.I('s_mul_i32 s42, s24, 49152')
    k.I('s_add_u32 s42, s42, s33')
    for i in range(1, 4): k.I(f's_add_u32 s{42+i}, s42, {49152*i}')
    k.I(f'v_mul_u32_u24 v{t0}, 26, v{vl}')
    k.I(f'v_lshrrev_b32 v{t0}, 8, v{t0}')
    k.I(f'v_mul_u32_u24 v{t1}, 10, v{t0}')
    k.I(f'v_sub_u32 v{t1}, v{vl}, v{t1}')
    k.I(f'v_mul_u32_u24 v{lr}, {RS}, v{t0}')
    k.I(f'v_lshl_add_u32 v{lr}, v{t1}, 4, v{lr}')
    k.I(f's_mul_i32 s25, s22, {4*RS}')
    k.I(f'v_add_u32 v{lr}, s25, v{lr}')
    k.I(f'v_mul_u32_u24 v{ox}, 1280, v{t0}')
    k.I(f'v_lshl_add_u32 v{ox}, v{t1}, 4, v{ox}')
    k.I(f'v_mul_u32_u24 v{oo}, {32*1280}, v{t0}')
    k.I(f'v_lshl_add_u32 v{oo}, v{t1}, 4, v{oo}')
    k.I(f'v_lshlrev_b32 v{t1}, 5, v{t1}')
    k.I(f'v_mul_u32_u24 v{lw}, {RS}, v{vi}')
    k.I(f's_mul_i32 s25, s22, {PT}')
    k.I(f'v_add_u32 v{lw}, s25, v{lw}')
    lw2 = t0
    k.I(f'v_mul_u32_u24 v{hr}, 5, v{vq}')
    k.I(f'v_add_u32 v{lw2}, 1, v{hr}')
    k.I(f'v_lshrrev_b32 v{lw2}, 1, v{lw2}')
    k.I(f'v_lshl_add_u32 v{lw2}, v{lw2}, 4, v{lw}')
    k.I(f'v_lshrrev_b32 v{hr}, 1, v{hr}')
    k.I(f'v_lshl_add_u32 v{lw}, v{hr}, 4, v{lw}')
    k.I(f'v_and_b32 v{hr}, 1, v{vq}')
    k.I(f'v_mul_u32_u24 v{hr}, 160, v{hr}')
    k.I(f'v_add_u32 v{lw}, v{lw}, v{hr}')
    k.I(f'v_sub_u32 v{lw2}, v{lw2}, v{hr}')
    k.I(f'v_add_u32 v{lw2}, 160, v{lw2}')
    k.I('s_mul_i32 s30, s56, 160')
    k.I('s_lshl_b32 s25, s24, 2')
    k.I('s_add_u32 s25, s25, s22')
    k.I(f's_mul_i32 s46, s25, {4*1280}')
    k.I('s_add_u32 s46, s46, s30')
    k.I(f's_add_u32 s46, s46, {X1}')
    for i in range(1, 4): k.I(f's_add_u32 s{46+i}, s46, {16*1280*i}')
    k.I('s_lshl_b32 s25, s20, 7')
    k.I('s_lshl_b32 s26, s57, 4')
    k.I('s_add_u32 s25, s25, s26')
    k.I('s_add_u32 s25, s25, s22')
    k.I('s_mul_i32 s25, s25, 1280')
    k.I('s_add_u32 s25, s25, s30')
    for i in range(1, 4): k.I(f's_add_u32 s{25+i}, s25, {4*1280*i}')
    k.I('s_lshl_b32 s30, s30, 1')
    k.I(f's_add_u32 s30, s30, {5*2560}')
    vx3 = x1r + 14
    k.I(f'v_cmp_gt_u32 vcc, 32, v{vl}')
    k.I(f'v_mov_b32 v{vx3}, 0x7ff00000')
    k.I(f'v_cndmask_b32 v{vx3}, v{vx3}, v{vo16}, vcc')
    k.I('s_mov_b32 s34, -1')
    k.I('s_mov_b32 s35, 0xff')
    vck = x1r; vad = x1r + 15
    k.I(f'v_add_u32 v{vad}, s52, v{vo16}')
    slow = []
    def validate(name, groups):
        o = []; n = 0
        for g in groups:
            for j in range(2):
                o.append([f'ds_read2st64_b32 {vr(vck+n,2)}, v{vad} offset0:{16*g+8*j} offset1:{16*g+8*j+4}']); n += 2
        o.append([f'v_max3_u32 v{vck}, v{vck}, v{vck+1}, v{vck+2}'])
        i = 3
        while i < n:
            if i + 1 < n: o.append([f'v_max3_u32 v{vck}, v{vck}, v{vck+i}, v{vck+i+1}']); i += 2
            else: o.append([f'v_max_u32 v{vck}, v{vck}, v{vck+i}']); i += 1
        o.append([f'v_cmp_eq_u32 s[62:63], -1, v{vck}'])
        o.append(['s_nop 0'])
        o.append(['s_cmp_lg_u64 s[62:63], 0', ('BR', f's_cbranch_scc1 L{name}_slow', f'L{name}_ok')])
        slow.append((name, groups))
        return o
    _emit = emit
    def emit(grp):
        for t in grp:
            if isinstance(t, tuple) and t[0] == 'BR':
                k.I(t[1], noflush=True); k.raw(t[2] + ':')
            else: _emit([t])
    k.I('s_mov_b32 s50, 0')
    k.wait_tag('h2')
    mark(k, 5)
    signal(k, 'H1', 54, hs)
    k.wait_tag(('a', 0, 1, 1))
    mark(k, 6)
    for g in validate('V0', [0, 1]): emit(g)
    k.I('s_barrier')
    mark(k, 7)
    for kp_ in range(2):
        for i in range(4): k.I(aread(0, i, kp_))
    def epi(ps):
        acc = accs[ps]; o = []
        for pr in range(2):
            for j in range(2):
                i = 2*pr + j
                g_ = acc + i*4; u_ = acc + (4+i)*4
                for p in (0, 2): o.append(f'v_pk_mul_f32 {vr(g_+p,2)}, {vr(g_+p,2)}, {vr(u_+p,2)}')
            a_ = acc + (8+2*pr)*4; b_ = a_ + 4
            for r in range(4): o.append(f'v_permlane32_swap_b32 v{a_+r}, v{b_+r}')
            for j in range(2):
                g_ = acc + (2*pr+j)*4
                for p in (0, 2): o.append(f'v_cvt_pk_bf16_f32 v{pk+4*pr+2*j+p//2}, v{g_+p}, v{g_+p+1}')
            for p in (0, 2): o.append(f'v_pk_mul_f32 {vr(a_+p,2)}, {vr(a_+p,2)}, {vr(b_+p,2)}')
            o.append(f'v_permlane16_swap_b32 v{pk+4*pr}, v{pk+4*pr+2}')
            o.append(f'v_permlane16_swap_b32 v{pk+4*pr+1}, v{pk+4*pr+3}')
            for p in (0, 2): o.append(f'v_cvt_pk_bf16_f32 v{pk+8+2*pr+p//2}, v{a_+p}, v{a_+p+1}')
            o.append((f'buffer_store_dwordx4 {vr(pk+4*pr,4)}, v{oh}, s[12:15], s{58+2*pr+ps} offen sc1', ('h', ps)))
        o.append(f'v_permlane16_swap_b32 v{pk+8}, v{pk+10}')
        o.append(f'v_permlane16_swap_b32 v{pk+9}, v{pk+11}')
        o.append((f'buffer_store_dwordx4 {vr(pk+8,4)}, v{oh2}, s[12:15], s{58+ps} offen offset:512 sc1', ('h', ps)))
        return o
    slots_h = [vr(accs[0] + 4*i, 4) for i in range(12)] + [ar(240 + 4*i, 4) for i in range(4)] + [ar(4*i, 4) for i in range(60 - NV, 60)]
    NH = len(slots_h)
    horder = [(t, kp) for kp in range(12) for t in (0, 1)] + [(t, kp) for t in (2, 3) for kp in range(12)]
    def hload(n):
        t, kp = horder[n]
        if env('NO_H', 0): return [f's_add_u32 s{42+t}, s{42+t}, {n}']
        g = [f'buffer_load_dwordx4 {slots_h[n % NH]}, v{vo16}, s[12:15], s{42+t} offen offset:{1024*(kp%4)} sc1']
        if kp % 4 == 3: g.append(f's_add_u32 s{42+t}, s{42+t}, 4096')
        return g
    def check(name, cnt):
        k.I(f'v_readfirstlane_b32 s33, v{hr}')
        k.I('s_cmp_ge_u32 s33, 16')
        k.I(f's_cbranch_scc0 L{name}_spin', noflush=True)
        k.raw(f'L{name}_ok:')
        spins.append((name, cnt))
    spins = []
    q1 = []
    for g in range(NPRE, 5): q1 += dma(0, g)
    xs_ = []
    for i in range(3):
        xs_.append([f'buffer_store_dwordx4 {vr(sx+4*i,4)}, v{vo16 if i < 2 else vx3}, s[12:15], s29 offen offset:{1024*i} sc1'])
    q1 += late[:-6] + [[f'buffer_load_dword v{hr}, v{hs}, s[12:15], s54 offen sc1']] + late[-6:] + xs_ + [['CHECK']]
    for g in range(5): q1 += dma(1, g)
    q1 += [[f'buffer_load_dwordx4 {vr(gb+4*j,4)}, v{t1}, s[12:15], s30 offen offset:{16*j}'] for j in range(2)]
    nd = 0; nh = 0
    bars = {(0, 6): ('a', 0, 2, 1), (0, 10): ('a', 0, 4, 1), (0, 18): ('a', 1, 1, 1), (1, 6): ('a', 1, 4, 1), (1, env('K_SA', 9)): None}
    VRATE = env('VRATE', 25) / 120.0
    credit = 1.0
    KA_, KC_ = env('K_A', 14), env('K_C', 17)
    ep = []; vq_ = []
    fl = []
    since = 99
    def isvm(t): return (t[0] if isinstance(t, tuple) else t).startswith('buffer_')
    for ps in range(2):
        for kap in range(20):
            pend = list(fl) + [t for g in q1 for t in g]
            if ps == 0 and kap in (env('V2_AT', 4), env('V3_AT', 7)): assert not any(isinstance(t, tuple) and t[1] <= ('a', 0, 2 if kap == env('V2_AT', 4) else 4, 1) for t in pend), 'val early'
            for mt in range(3):
                assert ps or not any(isinstance(t, str) and t.startswith(f'buffer_load_dwordx4 {ar((3*kap+mt)*4,4)},') for t in pend), ('weight late', kap)
            if (ps, kap) in bars:
                if bars[(ps, kap)]:
                    assert not any(isinstance(t, tuple) and t[1] <= bars[(ps, kap)] for t in pend), ('dma late', ps, kap)
                    k.wait_tag(bars[(ps, kap)])
                if not bars[(ps, kap)]:
                    assert not ep
                    em(k, 3)
                    k.wait_tag(('h', 0))
                    signal(k, 'HA', 55, hs, noflush=True)
                    em(k, 4)
                else: k.I('s_barrier')
            if ps == 0 and kap in (6, 10): assert not vq_
            if ps == 0 and kap == env('V2_AT', 4): k.wait_tag(('a', 0, 2, 1)); vq_ = validate('V2', [2])
            if ps == 0 and kap == env('V3_AT', 7): k.wait_tag(('a', 0, 4, 1)); vq_ = validate('V3', [3, 4])
            if ps == 0 and kap == 18:
                k.I(f'v_add_u32 v{rb[0]}, 40960, v{rb[0]}')
                k.I(f'v_add_u32 v{rb[1]}, 40960, v{rb[1]}')
            if ps == 1 and kap == 1:
                if env('EP_SERIAL', 1):
                    em(k, 1)
                    for t in epi(0): emit([t])
                    em(k, 2)
                else: ep = pairs(epi(0))
            if ps == 1 and kap == KA_: fl.insert(0 if not fl or isvm(fl[0]) else 1, f'buffer_load_dword v{hr}, v{hs}, s[12:15], s55 offen sc1') if False else k.I(f'buffer_load_dword v{hr}, v{hs}, s[12:15], s55 offen sc1')
            if ps == 1 and kap == KC_: em(k, 5); check('HA', 55); em(k, 6)
            for j in range(12):
                i, mt = divmod(j, 3)
                dd = vr(accs[ps]+(mt*4+i)*4, 4)
                k.I(f'{MF16} {dd}, {ar((3*kap+mt)*4,4)}, {vr(act+16*(kap&1)+4*i,4)}, {dd if kap else 0}')
                since += 1; credit = min(credit + VRATE, 1.6)
                rd = None
                if mt == 2:
                    if kap < 18: rd = aread(ps, i, kap + 2)
                    elif ps == 0: rd = aread(1, i, kap - 18)
                if rd: k.I(rd); continue
                if j == 10 and len(k.lg) > 3: k.waitcnt(lgkm=3); continue
                if j == 10 and ps == 1 and kap == 18: k.waitcnt(lgkm=0); continue
                if not fl:
                    free = NV + (3 * kap if ps else 0)
                    if q1 and q1[0] == ['CHECK']: q1.pop(0); check('H1', 54); continue
                    if q1: fl = list(q1.pop(0))
                    elif ps == 1 and kap >= KC_ and nh < 16 and (nh // 2) * 5 < nd: fl = list(hload(nh)); nh += 1
                    elif nd < min(free, 60): fl = list(dload(nd)); nd += 1
                if ep and isvm(ep[0][0]):
                    emit(ep.pop(0)); since = 0; credit -= 1.0
                elif fl and (not isvm(fl[0]) or (since >= 3 and credit >= 1.0)):
                    t = fl.pop(0)
                    if isvm(t): since = 0; credit -= 1.0
                    emit([t])
                elif vq_: emit(vq_.pop(0))
                elif ep:
                    g_ = ep.pop(0); emit(g_)
                    if ep and len(g_) == 1 and len(ep[0]) == 1 and not isvm(ep[0][0]): emit(ep.pop(0))
        if ps == 0 and not env('MD', 0): mark(k, 2)
    for t in fl: emit([t])
    assert not q1
    print('after E: wd loaded', nd, 'h loaded', nh)
    NHE = nh
    mark(k, 8); fm(k, 1); em(k, 7); pm(k, 1)
    fq = []
    def need_order():
        o = []; d = nd; h = nh
        for kp in range(12):
            while d < 5*(kp+1): o.append(dload(d)); d += 1
            while h < 2*(kp+1): o.append(hload(h)); h += 1
        return o
    fq = need_order()
    full = list(fq)
    def sorted_q(a_, b_):
        rest = [g for g in b_ if g not in full]
        return [g for g in full if g in a_ or g in b_] + rest
    fq += [['s_mov_b64 exec, s[34:35]', f'buffer_load_dwordx4 {vr(x1r+4*t,4)}, v{ox}, s[12:15], s{46+t} offen sc1', 's_mov_b64 exec, -1'] for t in range(4)]
    for t in epi(1): emit([t])
    fm(k, 2)
    if KC_ >= 20: check('HA', 55)
    fm(k, 3)
    for _ in range(env('F_PRE1', 0)):
        if fq: emit(fq.pop(0))
    mark(k, 9); fm(k, 4)
    fa = accs[1]
    SL = [0, 4*PT, 8*PT, 0]
    def pwrite(t, a): return [f'ds_write_b128 v{lw2 if dt & 1 else lw}, {vr(a+4*dt,4)} offset:{SL[t]+16*(dt//2)}' for dt in range(5)]
    def fin_reads(t, r): return [f'ds_read_b128 {vr(r+8*src+4*h_,4)}, v{lr} offset:{SL[t]+PT*src+160*h_}' for src in range(4) for h_ in range(2)]
    def fin_valu(t, r, xf):
        o = []
        for j in range(4):
            o.append(f'v_lshlrev_b32 v{xf+2*j}, 16, v{x1r+4*t+j}')
            o.append(f'v_and_b32 v{xf+2*j+1}, 0xffff0000, v{x1r+4*t+j}')
        for p in range(4): o.append(f'v_pk_add_f32 {vr(r+2*p,2)}, {vr(r+2*p,2)}, {vr(r+8+2*p,2)}')
        for p in range(4): o.append(f'v_pk_add_f32 {vr(r+16+2*p,2)}, {vr(r+16+2*p,2)}, {vr(r+24+2*p,2)}')
        for p in range(4): o.append(f'v_pk_add_f32 {vr(r+2*p,2)}, {vr(r+2*p,2)}, {vr(r+16+2*p,2)}')
        for p in range(4): o.append(f'v_pk_fma_f32 {vr(xf+2*p,2)}, {vr(r+2*p,2)}, {vr(gb+2*p,2)}, {vr(xf+2*p,2)}')
        for p in range(4): o.append(f'v_cvt_pk_bf16_f32 v{x1r+4*t+p}, v{xf+2*p}, v{xf+2*p+1}')
        return o
    OST = os.environ.get('OUT_ST', '')
    def fin_store(t): return ['s_mov_b64 exec, s[34:35]', f'buffer_store_dwordx4 {vr(x1r+4*t,4)}, v{oo}, s[36:39], s{25+t} offen{OST}', 's_mov_b64 exec, -1']
    KB_ = env('K_B', 3)
    fl = []
    def gap(pool):
        nonlocal fl
        if not fl and pool:
            g = pool.pop(0)
            if isinstance(g[0], str) and g[0].startswith('s_mov_b64 exec'): emit(g); return
            fl = list(g)
        if fl: emit([fl.pop(0)])
    FG = env('F_GAP', 5)
    KBL, KBC = env('K_BL', 8), env('K_BC', 11)
    since = 99; nh = 24
    hq = [hload(n) for n in range(24, 48)]
    for kp in range(12):
        if kp % 2 == 0: pm(k, 2 + kp // 2)
        if kp == KB_:
            k.wait_tag(('h', 1))
            signal(k, 'HB', 51, hs, noflush=True)
            fm(k, 5)
        if kp == KBL: fq.insert(0, [f'buffer_load_dword v{hr}, v{hs}, s[12:15], s51 offen sc1'])
        if kp == KBC:
            while fq or fl: gap(fq)
            check('HB', 51); fm(k, 7)
            fq = hq
        for t in range(2):
            need = [wdreg(5*kp+dt) for dt in range(5)] + [slots_h[(2*kp+t) % NH]]
            while fq is not hq and any(g[0].startswith(f'buffer_load_dwordx4 {r},') for g in fq for r in need): gap(fq)
            for dt in range(5):
                dd = vr(fa+20*t+4*dt, 4)
                k.I(f'{MF16} {dd}, {wdreg(5*kp+dt)}, {slots_h[(2*kp+t) % NH]}, {dd if kp else 0}')
                since += 1
                if dt == 4: continue
                if fl: gap(fq)
                elif since >= (env('F_GAP2', 5) if fq is hq else env('F_GAP1', 2)) and fq: gap(fq); since = 0
    pm(k, 8)
    while fl: gap(fq)
    if KBC >= 12:
        while fq: gap(fq)
    if not env('MD', 0): mark(k, 3)
    fm(k, 6); em(k, 8); pm(k, 9)
    def sprinkle(lst, every):
        for j, v_ in enumerate(lst):
            k.I(v_)
            if j % every == every - 1 and hq: emit(hq.pop(0))
    if KBC == 12: check('HB', 51); fm(k, 7)
    sprinkle(pwrite(0, fa) + pwrite(1, fa + 20), env('SPR', 2) if KBC <= 12 else 99)
    k.barrier()
    if KBC == 13:
        check('HB', 51); fm(k, 7)
        for _ in range(4): emit(hq.pop(0))
    em(k, 9)
    xfA = pk
    sprinkle(fin_reads(0, fa) + fin_reads(1, act), env('SPR2', 8))
    sprinkle(fin_valu(0, fa, pk), env('SPR3', 14))
    if not env('MD', 0): mark(k, 4)
    late_st = [fin_store(0), fin_store(1)]
    extra0 = pairs(fin_valu(1, act, fa + 40))
    rB = act
    extra = extra0
    hq = hq + late_st
    since = 99
    for t in (2, 3):
        a = fa + 20*(t - 2)
        if t == 3:
            assert not extra
            extra = [[w_] for w_ in pwrite(2, fa)]
        for kp in range(12):
            n = 24 + 12*(t-2) + kp
            if n == 25: fm(k, 8)
            assert not any(g[0].startswith(f'buffer_load_dwordx4 {slots_h[n % NH]},') for g in hq)
            for dt in range(5):
                dd = vr(a+4*dt, 4)
                k.I(f'{MF16} {dd}, {wdreg(5*kp+dt)}, {slots_h[n % NH]}, {dd if kp else 0}')
                since += 1
                if dt == 4 and n < 46: continue
                if fl: gap(hq)
                elif hq and since >= FG and not (extra is extra0 and extra and hq[0] is late_st[1]): gap(hq); since = 0
                elif (kp >= 1 or t == 2) and extra: emit(extra.pop(0))
            if t == 3 and kp == 3:
                assert not extra
                k.barrier()
                extra = [[r_] for r_ in fin_reads(2, wdv)] + pairs(fin_valu(2, wdv, xfA)) + [fin_store(2)]
    fm(k, 9)
    while extra: emit(extra.pop(0))
    for w_ in pwrite(3, fa + 20): k.I(w_)
    xl = fin_valu(3, wdv + 32, act)
    for v_ in xl[:8]: k.I(v_)
    k.barrier()
    for r_ in fin_reads(3, wdv + 32): k.I(r_)
    for v_ in xl[8:]: k.I(v_)
    emit(fin_store(3))
    if gen.STAMPS and not env('MF', 0): k.I('s_add_u32 s66, s50, s64')
    stamp_end(k, 3, 4)
    k.label('LD_exit')
    k.I('s_endpgm')
    for name, groups in slow:
        k.label(f'L{name}_slow', fresh=True); k.vm = []; k.lg = []
        k.I('s_mov_b32 s32, m0')
        k.I('s_mov_b32 s24, 0x40000')
        k.label(f'L{name}_loop')
        k.I('s_add_u32 s50, s50, 1')
        k.I(f'buffer_load_dword v{vck+8}, v{hs}, s[12:15], s54 offen sc1')
        k.waitcnt(vm=0)
        for g in groups:
            for grp in dma(0, g): _emit(grp)
        k.I(f'v_readfirstlane_b32 s33, v{vck+8}')
        k.I('s_mov_b32 m0, s32')
        k.waitcnt(vm=0)
        k.I('s_cmp_ge_u32 s33, 16')
        k.I(f's_cbranch_scc1 L{name}_ok')
        k.I('s_sub_u32 s24, s24, 1')
        k.I(f's_cbranch_scc1 L{name}_ok')
        sl_ = list(slow)
        for g in validate(name + 'r', groups)[:-1]: _emit(g)
        slow[:] = sl_
        k.I('s_cmp_lg_u64 s[62:63], 0')
        k.I(f's_cbranch_scc1 L{name}_loop')
        k.I(f's_branch L{name}_ok')
    for name, cnt in spins:
        k.label(f'L{name}_spin', fresh=True); k.vm = []; k.lg = []
        k.I('s_mov_b32 s24, 0x100000')
        k.label(f'L{name}_loop')
        k.I(f'buffer_load_dword v{hr}, v{hs}, s[12:15], s{cnt} offen sc1')
        k.waitcnt(vm=0)
        k.I(f'v_readfirstlane_b32 s33, v{hr}')
        k.I('s_sub_u32 s24, s24, 1')
        k.I(f's_cbranch_scc1 L{name}_ok')
        k.I('s_cmp_lt_u32 s33, 16')
        k.I(f's_cbranch_scc1 L{name}_loop')
        k.I(f's_branch L{name}_ok')
    return k, (256, 256, 163840)
```

```python
import os, math
import gen
from gen import *
from gen2 import *
from gen4 import YT, YT_ST, WS_END4, GR, unpack_gran
from gen import mark, stamp_begin, stamp_end

class Rec:
    def __init__(self): self.l = []
    def I(self, t, **kw): self.l.append(t)
def rec(fn, *a):
    r = Rec(); fn(r, *a); return r.l
def merge(k, main, fill, per):
    fill = list(fill)
    for m in main:
        k.I(m)
        for _ in range(per):
            if fill: k.I(fill.pop(0))
    return fill

import re as _re
def unpk(t):
    if isinstance(t, tuple) or not t.startswith('v_pk_'): return [t]
    m = _re.match(r'v_pk_(\w+)_f32 (.*)$', t)
    regs = [int(x) for x in _re.findall(r'v\[(\d+):\d+\]', m.group(2))]
    if m.group(1) == 'fma' and regs[0] == regs[3]: return [f'v_fmac_f32 v{regs[0]+j}, v{regs[1]+j}, v{regs[2]+j}' for j in range(2)]
    if m.group(1) == 'fma': return [f'v_fma_f32 v{regs[0]+j}, v{regs[1]+j}, v{regs[2]+j}, v{regs[3]+j}' for j in range(2)]
    return [f'v_{m.group(1)}_f32 v{regs[0]+j}, v{regs[1]+j}, v{regs[2]+j}' for j in range(2)]
def pairs(lst):
    out = []
    for t in lst:
        u = unpk(t)
        if len(u) == 2 and 'v_fma_' in u[0]: out += [[u[0]], [u[1]]]
        else: out.append(u)
    return out
def signal(k, name, cnt_sgpr, vtmp, noflush=False):
    k.I('s_barrier')
    st = k.save_state()
    k.I('s_cmp_lg_u32 s22, 0')
    k.I(f's_cbranch_scc1 L{name}_sig', noflush=noflush)
    k.I('s_mov_b64 exec, 1')
    k.I(f'buffer_atomic_add v{vtmp+1}, v{vtmp}, s[12:15], s{cnt_sgpr} offen sc1')
    k.I('s_mov_b64 exec, -1')
    if noflush: k.raw(f'L{name}_sig:')
    else: k.label(f'L{name}_sig')
    k.restore_state(st)
    k.vm.append((set(), None)) if False else None
def poll(k, name, cnt_sgpr, vtmp, vres):
    st = k.save_state()
    k.I('s_cmp_lg_u32 s22, 3')
    k.I(f's_cbranch_scc1 L{name}_done')
    k.I('s_mov_b32 s24, 0x100000')
    k.label(f'L{name}_poll')
    k.I(f'buffer_load_dword v{vres}, v{vtmp}, s[12:15], s{cnt_sgpr} offen sc1')
    k.waitcnt(vm=0)
    k.I(f'v_readfirstlane_b32 s33, v{vres}')
    k.I('s_sub_u32 s24, s24, 1')
    k.I(f's_cbranch_scc1 L{name}_done')
    k.I('s_cmp_lt_u32 s33, 16')
    k.I(f's_cbranch_scc1 L{name}_poll')
    k.label(f'L{name}_done')
    k.restore_state(st)
    k.I('s_barrier')

TAB = WS_END4
WS_END6 = TAB + 24 * 1024
class Fix:
    def __init__(self, seq): self.seq = list(seq)
    def get(self, *a): return self.seq.pop(0)
def role_tab(k):
    c0 = 24; f40 = c0; f16 = c0 + 62; cs = c0 + 68; sn = c0 + 80
    vi, vq, fi, fq, fq4, vo, t8, tmp = 2, 3, 4, 5, 6, 7, 8, 16
    k.I(f'v_and_b32 v{vi}, 15, v0')
    k.I(f'v_lshrrev_b32 v{vq}, 4, v0')
    k.I(f'v_cvt_f32_u32 v{fi}, v{vi}')
    k.I(f'v_cvt_f32_u32 v{fq}, v{vq}')
    k.I(f'v_mul_f32 v{fq4}, 4.0, v{fq}')
    k.I(f'v_lshlrev_b32 v{vo}, 4, v0')
    gen_f40(k, Fix([f40, t8, t8+4, t8+6]), fi, fq, True)
    gen_tw640(k, Fix([cs, sn, t8]), fi, fq4)
    k.I(f'v_cmp_gt_u32 vcc, 8, v{vi}')
    for r in range(4):
        k.I(f'v_cndmask_b32 v{cs+8+r}, 0, v{cs+8+r}, vcc')
        k.I(f'v_cndmask_b32 v{sn+8+r}, 0, v{sn+8+r}, vcc')
    k.I(f'v_mul_f32 v{t8}, {fhex(1.0/16)}, v{fi}')
    k.I(f'v_mul_f32 v{t8+1}, v{fq4}, v{t8}')
    for j in range(4): k.I(f'v_fmamk_f32 v{tmp+4+j}, v{t8}, {fhex(float(j))}, v{t8+1}')
    for j in range(4):
        k.I(f'v_cos_f32 v{tmp+j}, v{tmp+4+j}')
        k.I(f'v_sin_f32 v{tmp+4+j}, v{tmp+4+j}')
    for p in range(2):
        k.I(f'v_cvt_pk_bf16_f32 v{f16+p}, v{tmp+4+2*p}, v{tmp+5+2*p}')
        k.I(f'v_cvt_pk_bf16_f32 v{f16+2+p}, v{tmp+2*p}, v{tmp+1+2*p}')
        k.I(f'v_cvt_pk_bf16_f32 v{f16+4+p}, -v{tmp+4+2*p}, -v{tmp+5+2*p}')
    k.srd(24, 4, 23 * 1024, TAB)
    for i in range(23):
        if i % 4 == 0: k.I(f's_mov_b32 s28, {1024*i}')
        k.I(f'buffer_store_dwordx4 {vr(c0+4*i,4)}, v{vo}, s[24:27], s28 offen offset:{1024*(i%4)}')

XNT = ' nt' if os.environ.get('XNT') == '1' else ''
_mark = mark
def mark(k, i):
    if not env('MF', 0): _mark(k, i)
def fm(k, i):
    if env('MF', 0) == 1: _mark(k, i)
def pm(k, i):
    if env('MF', 0) == 3: _mark(k, i)
def em(k, i):
    if env('MF', 0) == 2: _mark(k, i)
def pack6(k, base, cs, sn, alt):
    def op(r, j, neg):
        n = neg ^ (alt and (j & 1))
        return ('-' if n else '') + f'v{r+j}'
    for p in range(2):
        k.I(f'v_cvt_pk_bf16_f32 v{base+p}, {op(sn,2*p,True)}, {op(sn,2*p+1,True)}')
        k.I(f'v_cvt_pk_bf16_f32 v{base+2+p}, {op(cs,2*p,False)}, {op(cs,2*p+1,False)}')
        k.I(f'v_cvt_pk_bf16_f32 v{base+4+p}, {op(sn,2*p,False)}, {op(sn,2*p+1,False)}')
WIM, WRE = 0, 2
F0 = FLAGS + 8192
YFL = ['sc1', 'sc1 nt', 'sc0 sc1', 'sc0 sc1 nt'][env('YFL', 0)]
def cm_(k, i):
    if env('MF', 0) == 4: _mark(k, i)

def gen_DEF9():
    k = Kernel('kd_kernel')
    PL = 2592
    HB = 0; XB = 10240; SB = 122880; XL = 32768; MLD = XL + 4 * 2560; TL = MLD + 8192; CL = 81920
    W_ST = env('W_ST', 4); W_A = env('W_A', 0)
    NB1 = env('NB1', 30); W_J = env('W_J', 28)
    stamp_begin(k)
    k.I('s_cmp_ge_u32 s2, 256')
    k.I('s_cbranch_scc1 LD_exit')
    k.I(f's_load_dwordx2 s[4:5], s[0:1], {KA["ws"]}')
    k.I(f's_load_dwordx2 s[6:7], s[0:1], {KA["x"]}')
    k.I(f's_load_dwordx2 s[40:41], s[0:1], {KA["out"]}')
    k.I(f's_load_dwordx2 s[62:63], s[0:1], {KA["wd"]}')
    va = VAlloc(2)
    hs = va.get(2, 2); vl = va.get(); vo16 = va.get(); vW = va.get(); vi = va.get(); vq = va.get(); oh = va.get(); oh2 = va.get(); hr = va.get()
    keep = va.n
    so = va.get(); wu = va.get(); wv = va.get(); ra = va.get(); xo = va.get(); mo = va.get(); wh = va.get(3); wx = va.get(); g0 = va.get(); g2 = va.get()
    ch = va.get(12, 4); xr = va.get(12, 2); mg = va.get(12, 4); mc = va.get(12, 4); ms = va.get(12, 4)
    d1 = va.get(24, 4); d2 = va.get(24, 4); dat = va.get(12, 2); tmp = va.get(8, 2)
    f40 = va.get(92, 4); f16 = f40 + 62; cs = f40 + 68; sn = f40 + 80
    tv = VAlloc(d1, d1 + 48)
    ta = tv.get(4); tk = tv.get(); cb_ = tv.get(); tq = tv.get(); v8 = tv.get(); vcn = tv.get(); vma = tv.get(); vmk = tv.get(2, 2)
    k.I('v_lshrrev_b32 v1, 6, v0')
    k.I(f'v_and_b32 v{vl}, 63, v0')
    k.I('v_readfirstlane_b32 s22, v1')
    k.I(f'v_lshlrev_b32 v{vo16}, 4, v{vl}')
    k.I(f'v_and_b32 v{vi}, 15, v{vl}')
    k.I(f'v_lshrrev_b32 v{vq}, 4, v{vl}')
    def scalars():
        k.I('s_and_b32 s20, s2, 6')
        k.I('s_lshl_b32 s20, s20, 1')
        k.I('s_lshr_b32 s21, s2, 6')
        k.I('s_add_u32 s20, s20, s21')
        k.I('s_bfe_u32 s56, s2, 0x30003')
        k.I('s_and_b32 s57, s2, 1')
        k.I('s_lshl_b32 s21, s57, 3')
        k.I('s_add_u32 s21, s21, s56')
        k.I('s_lshl_b32 s25, s20, 4')
        k.I('s_add_u32 s3, s25, s21')
        k.I('s_lshr_b32 s25, s20, 2')
        k.I('s_lshl_b32 s25, s25, 12')
        k.I('s_lshl_b32 s24, s57, 11')
        k.I('s_add_u32 s25, s25, s24')
        k.I('s_and_b32 s24, s21, 1')
        k.I('s_lshl_b32 s24, s24, 10')
        k.I('s_add_u32 s25, s25, s24')
        k.I('s_and_b32 s24, s20, 3')
        k.I('s_lshl_b32 s24, s24, 8')
        k.I('s_add_u32 s25, s25, s24')
        k.I('s_and_b32 s24, s21, 6')
        k.I('s_lshl_b32 s24, s24, 5')
        k.I('s_add_u32 s25, s25, s24')
        k.I(f's_add_u32 s26, s25, {64*16384}')
        k.I(f's_add_u32 s27, s25, {128*16384}')
        k.I('s_lshl_b32 s23, s20, 7')
        k.I('s_lshl_b32 s24, s21, 1')
        k.I('s_add_u32 s23, s23, s24')
        k.I('s_and_b32 s24, s22, 1')
        k.I('s_lshl_b32 s24, s24, 6')
        k.I('s_add_u32 s23, s23, s24')
        k.I('s_lshr_b32 s24, s22, 1')
        k.I('s_add_u32 s23, s23, s24')
        k.I('s_mul_i32 s28, s23, 1280')
        k.I(f's_add_u32 s29, s28, {32*1280}')
        k.I(f's_mul_i32 s30, s22, 2560')
        k.I(f's_add_u32 s30, s30, {XL}')
        k.I('s_add_u32 s23, s30, 1280')
        k.I('s_lshl_b32 s31, s22, 11')
        k.I(f's_add_u32 s88, s31, {MLD}')
        k.I(f's_add_u32 s31, s31, {MODN + 2*2560}')
        k.I('s_lshl_b32 s32, s21, 2')
        k.I('s_add_u32 s32, s32, s22')
        k.I('s_mul_i32 s24, s32, 61440')
        k.I(f's_add_u32 s24, s24, {WGU}')
        k.I(f'v_add_u32 v{vW}, s24, v{vo16}')
        k.I(f's_mul_i32 s58, s20, {8*49152}')
        k.I('s_mul_i32 s24, s32, 768')
        k.I('s_add_u32 s58, s58, s24')
        k.I(f's_add_u32 s58, s58, {HH}')
        for i in range(1, 4): k.I(f's_add_u32 s{58+i}, s58, {2*i*49152}')
        k.I('s_mul_i32 s24, s22, 6144')
        k.I(f's_add_u32 s42, s24, {TL}')
        k.I(f's_add_u32 s43, s24, {TAB}')
        k.I('s_add_u32 s33, s42, 4096')
        k.I('s_add_u32 s55, s43, 4096')
        k.I('s_and_b32 s89, s2, 7')
        k.I('s_lshl_b32 s89, s89, 7')
        k.I(f's_add_u32 s89, s89, {F0}')
        k.srd(12, 4, WS_END6)
        k.srd(8, 6, S * D * 2)
        k.srd(16, 4, 161 * 16384, YT)
    def wload(n):
        g = [f'buffer_load_dwordx4 {ar(4*n,4)}, v{vW}, s[12:15], 0 offen offset:{1024*(n%4)}']
        if n % 4 == 3: g.append(f'v_add_u32 v{vW}, 0x1000, v{vW}')
        return g
    def bglist():
        o = []
        for i in range(6):
            g = [f'buffer_load_dwordx4 v{vo16}, s[12:15], s{43 if i < 4 else 55} offen offset:{1024*(i%4)} lds']
            if i % 4 == 0: g = [f's_mov_b32 m0, s{42 if i < 4 else 33}'] + g
            o.append(g)
        for c in range(2):
            o.append([f's_mov_b32 m0, s{23 if c else 30}', f'buffer_load_dwordx4 v{vo16}, s[8:11], s{28+c} offen{XNT} lds'])
            o.append(['s_mov_b64 exec, 0xffff', f'buffer_load_dwordx4 v{vo16}, s[8:11], s{28+c} offen offset:1024{XNT} lds', 's_mov_b64 exec, -1'])
        w = [wload(n) for n in range(60)]
        WF = env('W_FIRST', 8)
        global AUX_LAST
        AUX_LAST = WF + 10
        return w[:WF] + o + w[WF:]
    NBG = 70
    def topup():
        k.bg_every = 0
        k.emit_bg(max(0, NB1 - (NBG - len(k.bg))))
        assert NBG - len(k.bg) == NB1, (NBG - len(k.bg), NB1)
    k.I('s_cmp_ge_u32 s2, 161')
    st0 = k.save_state()
    k.I('s_cbranch_scc1 LWD')
    vc = VAlloc(keep)
    vo8 = vc.get(); yo = vc.get(); wa = vc.get(); vC = vc.get()
    fi = vc.get(); fq4 = vc.get(); fk = vc.get(); fw16 = vc.get(); cta = vc.get(2); sg2 = vc.get(2, 2)
    f64 = vc.get(24, 2); f32 = vc.get(24, 2)
    c1 = vc.get(8, 2); s1_ = vc.get(8, 2); c2 = vc.get(8, 2); s2_ = vc.get(8, 2)
    TK = []
    for X in range(2):
        TK.append(dict(wq=vc.get(8, 2), dat=vc.get(32, 4), acc=vc.get(16, 4), pk=vc.get(8, 4), tmp=vc.get(8, 2)))
    tc = TK[0]['tmp']; ts = tc + 4
    k.I(f'v_lshlrev_b32 v{vo8}, 3, v{vl}')
    k.I('s_lshl_b32 s48, s2, 14')
    k.I('s_lshl_b32 s49, s22, 10')
    k.I('s_add_u32 s49, s49, s48')
    k.I('s_lshl_b32 s24, s22, 11')
    k.I('s_add_u32 s48, s48, s24')
    k.I(f's_add_u32 s90, s24, {CL}')
    k.I('s_mov_b32 m0, s90')
    k.I('s_cmp_eq_u32 s2, 0')
    k.I('s_cselect_b32 s50, 0, 1.0')
    k.I('s_cmp_eq_u32 s2, 160')
    k.I('s_cselect_b32 s50, 0, s50')
    k.I('s_mov_b32 s52, 0x80008000')
    k.I(f'v_lshlrev_b32 v{sg2}, 31, v{vi}')
    k.I(f'v_or_b32 v{sg2}, 1.0, v{sg2}')
    k.I(f'v_cvt_f32_u32 v{fi}, v{vi}')
    k.I(f'v_lshlrev_b32 v{fq4}, 2, v{vq}')
    k.I(f'v_cvt_f32_u32 v{fq4}, v{fq4}')
    k.I(f'v_lshlrev_b32 v{fw16}, 4, v1')
    k.I(f'v_cvt_f32_u32 v{fw16}, v{fw16}')
    k.I(f'v_add_f32 v{fk}, v{fw16}, v{fi}')
    def angles(step_reg, scale, base_add, dst, q=None):
        k.I(f'v_mul_f32 v{cta}, {fhex(scale)}, v{step_reg}')
        k.I(f'v_mul_f32 v{cta+1}, v{fq4 if q is None else q}, v{cta}')
        for j in range(4): k.I(f'v_fmamk_f32 v{dst+j}, v{cta}, {fhex(float(base_add + j))}, v{cta+1}')
    def sincos(c, s_):
        for j in range(4):
            k.I(f'v_cos_f32 v{c+j}, v{s_+j}')
            k.I(f'v_sin_f32 v{s_+j}, v{s_+j}')
    def flip(c, s_):
        for p in (0, 2):
            k.I(f'v_pk_mul_f32 {vr(c+p,2)}, {vr(c+p,2)}, {vr(sg2,2)} op_sel_hi:[1,0]')
            k.I(f'v_pk_mul_f32 {vr(s_+p,2)}, {vr(s_+p,2)}, {vr(sg2,2)} op_sel_hi:[1,0]')
    def flip6(base): return [f'v_xor_b32 v{base+j}, s52, v{base+j}' for j in (0, 1, 4, 5)]
    for kap in range(2):
        angles(fk, 1.0/64, 16*kap, ts); sincos(tc, ts)
        pack6(k, f64+6*kap, tc, ts, False)
        flip(tc, ts)
        pack6(k, f64+6*(kap+2), tc, ts, False)
        if kap == 0:
            k.srd(36, 4, XT_SZ, XT)
            k.srd(44, 4, XT_SZ, WT)
            for X in range(2):
                if X:
                    k.I('s_add_u32 m0, s90, 8192')
                    k.I('s_add_u32 s48, s48, 8192')
                k.I(f'buffer_load_dwordx4 v{vo16}, s[36:39], s48 offen lds', tag=('x', X))
                k.I(f'buffer_load_dwordx4 v{vo16}, s[36:39], s48 offen offset:1024 lds', tag=('x', X))
            for X in range(2):
                for m_ in range(2):
                    for V in range(2):
                        k.I(f'buffer_load_dwordx2 {vr(TK[X]["wq"]+4*m_+2*V,2)}, v{vo8}, s[44:47], s49 offen offset:{512*V}')
                    k.I('s_add_u32 s49, s49, 4096')
            cm_(k, 1)
            scalars()
            k.I('s_lshl_b32 s53, s22, 12')
            k.I('s_lshl_b32 s24, s2, 14')
            k.I('s_add_u32 s53, s53, s24')
            k.bg = bglist(); k.bg_every = env('BGC1', 18)
    for N in range(2):
        angles(fk, 1.0/2048, 16*N, s1_+4*N); sincos(c1+4*N, s1_+4*N)
    angles(fi, 1.0/32, 0, ts); sincos(tc, ts)
    pack6(k, f32+0, tc, ts, False)
    pack6(k, f32+12, tc, ts, True)
    flip(tc, ts)
    pack6(k, f32+6, tc, ts, False)
    pack6(k, f32+18, tc, ts, True)
    k.I(f'v_add_f32 v{fw16}, v{fw16}, v{fq4}')
    for N in range(2):
        if N: k.I(f'v_add_f32 v{fi}, {fhex(16.0)}, v{fi}')
        angles(fi, 1.0/2048, 0, s2_+4*N, q=fw16); sincos(c2+4*N, s2_+4*N)
    k.I(f'v_add_u32 v{vC}, {CL}, v{vo16}')
    k.I(f'v_add_u32 v{wa}, s90, v{vo16}')
    k.emit_bg(env('W_C0', 0))
    cm_(k, 2)
    k.wait_tag(('x', 1))
    k.I('s_barrier')
    cm_(k, 3)
    k.bg_every = env('BGC2', 20)
    def rd(X, base): return [f'ds_read_b128 {vr(TK[X]["dat"]+(2*kap+N)*4,4)}, v{vC} offset:{base+8192*X+2048*kap+1024*N}' for N in range(2) for kap in range(4)]
    def st1(X, inv):
        o = []; t = TK[X]
        for N in range(2):
            for kap in range(4):
                for c in range(2):
                    dd = vr(t['acc']+(2*N+c)*4, 4); da = vr(t['dat']+(2*kap+N)*4, 4); co = vr(f64+6*kap+(WIM if c else WRE), 4)
                    o.append(f'{MF16} {dd}, {co if inv else da}, {da if inv else co}, {dd if kap else 0}')
        return o
    def st3(X):
        o = []; t = TK[X]
        for N in range(2):
            for V in range(2):
                for c in range(2):
                    dd = vr(t['dat']+(2*V+c)*4, 4)
                    o.append(f'{MF16} {dd}, {vr(f32+(2*V+N)*6+(WIM if c else WRE),4)}, {vr(t["pk"]+4*N,4)}, {dd if N else 0}')
        return o
    def st4(X):
        o = []; t = TK[X]
        for V in range(2):
            for N in range(2):
                for c in range(2):
                    dd = vr(t['acc']+(2*N+c)*4, 4)
                    o.append(f'{MF16} {dd}, {vr(t["dat"]+16+4*V,4)}, {vr(f32+(2*N+V)*6+(WIM if c else WRE),4)}, {dd if V else 0}')
        return o
    def cmx(X, src, cc, ss, dst, conj):
        o = []
        for h_ in range(2): o += rec(cmul4, src+8*h_, src+8*h_+4, cc+4*h_, ss+4*h_, dst+4*h_, TK[X]['tmp'], conj)
        if env('C_SCALAR', 0):
            o2_ = []
            for t in o:
                if 'neg_lo' in t:
                    r4 = [int(x) for x in _re.findall(r'v\[(\d+):\d+\]', t)]
                    o2_ += [f'v_fma_f32 v{r4[0]+j}, v{r4[1]+j}, -v{r4[2]+j}, v{r4[3]+j}' for j in range(2)]
                else: o2_ += unpk(t)
            o = o2_
        return o
    def wun(X):
        t = TK[X]; o = []
        for j in range(8):
            o.append(f'v_lshlrev_b32 v{t["acc"]+2*j}, 16, v{t["wq"]+j}')
            o.append(f'v_and_b32 v{t["acc"]+2*j+1}, 0xffff0000, v{t["wq"]+j}')
        return o
    def outs(X):
        t = TK[X]; o = []; fl_ = 's50' if X == 0 else '1.0'
        for N in range(2):
            re = t['acc']+8*N; im = re+4; tm = t['tmp']
            for p in range(2):
                a_, b_ = 2*p, 2*p+1
                o.append(f'v_fma_f32 v{tm+4*p+0}, -v{im+b_}, {fl_}, v{re+a_}')
                o.append(f'v_fma_f32 v{tm+4*p+1}, v{im+a_}, {fl_}, v{re+b_}')
                o.append(f'v_fma_f32 v{tm+4*p+2}, v{im+b_}, {fl_}, v{re+a_}')
                o.append(f'v_fma_f32 v{tm+4*p+3}, -v{im+a_}, {fl_}, v{re+b_}')
            for j in range(4): o.append(f'v_cvt_pk_bf16_f32 v{t["pk"]+4*N+j}, v{tm+2*j}, v{tm+2*j+1}')
        return o
    def mg_(main, fill, per):
        for t in merge(k, main, fill, per): k.I(t)
    A_, B_ = TK
    PER = env('C_PER', 2); P3 = env('C_P3', 3)
    for t in rd(0, 0): k.I(t)
    mg_(st1(0, False), rd(1, 0), 1)
    mg_(st1(1, False)[:4], [], 0)
    mg_(st1(1, False)[4:], cmx(0, A_['acc'], c1, s1_, A_['pk'], False), PER)
    mg_(st3(0), wun(0) + cmx(1, B_['acc'], c1, s1_, B_['pk'], False), P3)
    cm_(k, 4)
    mg_(st3(1), wun(1) + cmx(0, A_['dat'], A_['acc'], A_['acc']+8, A_['dat']+16, True), P3)
    for w_ in range(4):
        for t in flip6(f32+6*w_): k.I(t)
    mg_(st4(0), cmx(1, B_['dat'], B_['acc'], B_['acc']+8, B_['dat']+16, True), P3)
    fl64 = []
    for kap in range(4): fl64 += flip6(f64+6*kap)
    ca = cmx(0, A_['acc'], c2, s2_, A_['pk'], True)
    mg_(st4(1), fl64[:8] + ca, P3)
    cm_(k, 5)
    for N in range(2): k.I(f'ds_write_b128 v{wa}, {vr(A_["pk"]+4*N,4)} offset:{16384+1024*N}')
    for t in cmx(1, B_['acc'], c2, s2_, B_['pk'], True): k.I(t)
    for N in range(2): k.I(f'ds_write_b128 v{wa}, {vr(B_["pk"]+4*N,4)} offset:{16384+8192+1024*N}')
    for t in fl64[8:]: k.I(t)
    k.barrier()
    cm_(k, 6)
    for t in rd(0, 16384): k.I(t)
    mg_(st1(0, True), rd(1, 16384), 1)
    mg_(st1(1, True)[:4], [], 0)
    mg_(st1(1, True)[4:], outs(0), PER)
    topup()
    for t in outs(1): k.I(t)
    o1 = A_['dat']; o2 = A_['dat'] + 8
    k.I('s_mov_b32 vcc_lo, 0x33333333')
    k.I('s_mov_b32 vcc_hi, 0x33333333')
    for j in range(8): k.I(f'v_cndmask_b32_dpp v{o1+j}, v{B_["pk"]+j}, v{A_["pk"]+j}, vcc quad_perm:[0,1,0,1] row_mask:0xf bank_mask:0xf')
    for N in range(2): k.I(f'buffer_store_dwordx4 {vr(o1+4*N,4)}, v{vo16}, s[16:19], s53 offen offset:{2048*N} sc1', tag='y')
    k.I('s_not_b64 vcc, vcc')
    for j in range(8): k.I(f'v_cndmask_b32_dpp v{o2+j}, v{A_["pk"]+j}, v{B_["pk"]+j}, vcc quad_perm:[2,3,2,3] row_mask:0xf bank_mask:0xf')
    for N in range(2): k.I(f'buffer_store_dwordx4 {vr(o2+4*N,4)}, v{vo16}, s[16:19], s53 offen offset:{2048*N+1024} sc1', tag='y')
    cm_(k, 7)
    k.label('LJOIN')
    stJ = k.save_state(); bgJ = list(k.bg)
    k.bg_every = 0
    k.I(f'v_lshrrev_b32 v{so}, 2, v0')
    k.I(f'v_lshlrev_b32 v{so}, 14, v{so}')
    k.I(f'v_and_b32 v{ta+1}, 3, v0')
    k.I(f'v_lshl_add_u32 v{so}, v{ta+1}, 4, v{so}')
    k.I(f'v_lshrrev_b32 v{ta+1}, 1, v0')
    k.I(f'v_cmp_ge_u32 s[34:35], 64, v{ta+1}')
    k.I(f'v_mov_b32 v{ch+8}, 0')
    k.I(f'v_add_u32 v{vma}, s88, v{vo16}')
    k.I(f'v_and_b32 v{v8}, 7, v0')
    k.I(f'v_lshlrev_b32 v{v8}, 7, v{v8}')
    k.I(f'v_add_u32 v{v8}, {F0}, v{v8}')
    k.I(f'v_mov_b32 v{hs}, 0')
    k.I(f'v_mov_b32 v{hs+1}, 1')
    k.bg_every = 6
    nleft = len(k.bg); hold = k.bg[W_J:]; k.bg = k.bg[:W_J]
    addr = []
    A = addr.append
    A(f'v_lshrrev_b32 v{tq}, 1, v{vq}')
    A(f'v_mad_u32_u24 v{cb_}, v{vi}, 5, v{tq}')
    A(f'v_and_b32 v{tk}, 1, v{vq}')
    A(f'v_mul_u32_u24 v{oh}, 49152, v{tk}')
    A(f'v_lshlrev_b32 v{oh2}, 2, v{oh}')
    A(f'v_lshl_add_u32 v{oh}, v{tq}, 8, v{oh}')
    A(f'v_lshl_add_u32 v{oh}, v{vi}, 4, v{oh}')
    A(f'v_mul_u32_u24 v{tq}, 49152, v{tq}')
    A(f'v_add_u32 v{oh2}, v{oh2}, v{tq}')
    A(f'v_lshl_add_u32 v{oh2}, v{vi}, 4, v{oh2}')
    A(f'v_lshl_add_u32 v{tk}, v1, 1, v{tk}')
    for T in range(3):
        A(f'v_add_u32 v{tq}, {2*T}, v{cb_}')
        A(f'v_xor_b32 v{wh+T}, v{tq}, v{tk}')
        A(f'v_and_b32 v{wh+T}, 7, v{wh+T}')
        A(f'v_lshl_add_u32 v{wh+T}, v{tq}, 3, v{wh+T}')
        A(f'v_lshlrev_b32 v{wh+T}, 4, v{wh+T}')
        A(f'v_add_u32 v{wh+T}, {SB}, v{wh+T}')
    A(f'v_mul_u32_u24 v{wx}, 1280, v{tk}')
    A(f'v_lshl_add_u32 v{wx}, v{cb_}, 4, v{wx}')
    A(f'v_add_u32 v{wx}, {SB}, v{wx}')
    A(f'v_lshrrev_b32 v{tq}, 3, v0')
    A(f'v_xor_b32 v{g0}, v{tq}, v0')
    A(f'v_and_b32 v{g0}, 7, v{g0}')
    A(f'v_lshlrev_b32 v{g0}, 4, v{g0}')
    A(f'v_lshl_add_u32 v{g0}, v{tq}, 8, v{g0}')
    for t in addr: k.I(t)
    k.I(f'v_and_b32 v{ta}, 1, v0')
    k.I(f'v_mul_u32_u24 v{wu}, {2*PL}, v{ta}')
    k.I(f'v_sub_u32 v{wv}, 384, v{ta+1}')
    k.I(f'v_lshl_add_u32 v{wv}, v{wv}, 2, v{wu}')
    k.I(f'v_lshl_add_u32 v{wu}, v{ta+1}, 2, v{wu}')
    k.I(f's_mul_i32 s24, s22, {PL}')
    k.I(f'v_lshl_add_u32 v{ra}, v{vl}, 2, s24')
    k.I(f'v_mov_b32 v{dat+10}, 0'); k.I(f'v_mov_b32 v{dat+11}, 0')
    k.I(f'v_mul_u32_u24 v{xo}, 80, v{vi}')
    k.I(f'v_lshl_add_u32 v{xo}, v{vq}, 3, v{xo}')
    k.I(f'v_lshlrev_b32 v{mo}, 1, v{xo}')
    k.I(f'v_add_u32 v{xo}, s30, v{xo}')
    for j in range(8, 12): k.I(f'v_mov_b32 v{xr+j}, 0')
    k.emit_bg(99); k.bg_every = 0; k.bg = hold
    def yloads():
        k.I('s_mov_b32 m0, s88')
        k.I(f'buffer_load_dwordx4 v{vo16}, s[12:15], s31 offen sc1 lds')
        k.I(f'buffer_load_dwordx4 v{vo16}, s[12:15], s31 offen offset:1024 sc1 lds')
        for rho in range(3):
            if rho == 2: k.I('s_mov_b64 exec, s[34:35]')
            k.I(f'buffer_load_dwordx4 {vr(ch+4*rho,4)}, v{so}, s[16:19], s{25+rho} offen {YFL}')
        k.I('s_mov_b64 exec, -1')
    def ycheck():
        k.I(f'v_max3_u32 v{tq}, v{ch}, v{ch+4}, v{ch+8}')
        k.I(f'ds_read2st64_b32 {vr(vmk,2)}, v{vma} offset0:0 offset1:4')
        k.I(f'v_max3_u32 v{tq}, v{tq}, v{vmk}, v{vmk+1}')
        k.I(f'v_cmp_eq_u32 s[62:63], -1, v{tq}')
        k.I('s_cmp_lg_u64 s[62:63], 0')
    yloads()
    mark(k, 1)
    tb_ = g2
    k.I(f'v_add_u32 v{tb_}, {TL}, v{vo16}')
    k.I('s_mov_b32 s50, 0')
    assert NB1 + W_J >= AUX_LAST
    k.wait_tag('y')
    nyoung = 5 + (NB1 + W_J - AUX_LAST)
    if len(k.vm) > nyoung: k.waitcnt(vm=nyoung)
    signal(k, 'F0', 89, hs)
    tl = [f'ds_read_b128 {vr(f40+4*i,4)}, v{tb_} offset:{1024*i}' for i in range(23)]
    for t in tl: k.I(t)
    cm_(k, 8)
    ycheck()
    k.I('s_cbranch_scc1 LY_slow')
    k.label('LY_ok')
    mark(k, 2); cm_(k, 9)
    for rho in range(3):
        if rho == 2: k.I('s_mov_b64 exec, s[34:35]')
        for pr in range(2):
            k.I(f'ds_write_b32 v{wu}, v{ch+4*rho+2*pr} offset:{pr*PL+512*rho}')
            k.I(f'ds_write_b32 v{wv}, v{ch+4*rho+2*pr+1} offset:{pr*PL+512*(2-rho)}')
    k.I('s_mov_b64 exec, -1')
    k.I(f'v_lshlrev_b32 v{so}, 4, v0')
    k.I(f'v_add_u32 v{so}, {SB}, v{so}')
    k.barrier()
    mark(k, 3)
    for p in range(5):
        k.I(f'ds_read2st64_b32 {vr(dat+2*p,2)}, v{ra} offset0:{2*p} offset1:{2*p+1}')
    def s1(T):
        o = []
        for kap in range(3):
            for c in range(2):
                dd = vr(d1 + (2*T+c)*4, 4)
                o.append(f'{MF16} {dd}, {vr(dat+4*kap,4)}, {vr(f40+(2*T+c)*10+4*kap,4)}, {dd if kap else 0}')
        return o
    k.bg_every = env('BG2', 12)
    rest = merge(k, s1(0) + s1(1), [], 1)
    for t in rest: k.I(t)
    k.bg_every = 0
    for T in range(3): k.I(f'ds_read_b128 {vr(mg+4*T,4)}, v{mo} offset:{MLD+64*T}')
    a2 = ch; xf = f40
    cm = [rec(cmul4, d1+8*T, d1+8*T+4, cs+4*T, sn+4*T, a2+4*T, tmp, True) for T in range(3)]
    def s2(T): return [f'{MF16} {vr(d2+(2*T+c)*4,4)}, {vr(a2+4*T,4)}, {vr(f16+(0 if c else 2),4)}, 0' for c in range(2)]
    rest = merge(k, s1(2), cm[0], 2)
    for t in rest: k.I(t)
    for T in range(3):
        if T == 2: k.I('s_mov_b32 exec_hi, 0')
        for c in range(2):
            k.I(f'ds_read_b64 {vr(xr+(2*T+c)*2,2)}, v{xo} offset:{1280*c+32*T}')
    k.I('s_mov_b64 exec, -1')
    k.bg_every = env('BG2', 12)
    for t in s2(0) + cm[1] + s2(1) + cm[2] + s2(2): k.I(t)
    for T in range(3):
        k.I(f'ds_read_b128 {vr(ms+4*T,4)}, v{mo} offset:{MLD+2560+64*T}')
        k.I(f'ds_read_b128 {vr(mc+4*T,4)}, v{mo} offset:{MLD+5120+64*T}')
    st_ = f40 + 24
    for T in range(3):
        for i in range(4*T, 4*T+4):
            k.I(f'v_lshlrev_b32 v{xf+2*i}, 16, v{xr+i}')
            k.I(f'v_and_b32 v{xf+2*i+1}, 0xffff0000, v{xr+i}')
        for c in range(2):
            for p in (0, 2):
                r = (2*T+c)*4+p
                k.I(f'v_pk_fma_f32 {vr(xf+r,2)}, {vr(d2+r,2)}, {vr(mg+4*T+p,2)}, {vr(xf+r,2)}')
        for c in range(2):
            r = xf+(2*T+c)*4
            if T == 0:
                k.I(f'v_pk_add_f32 {vr(st_+2*c,2)}, {vr(r,2)}, {vr(r+2,2)}')
                k.I(f'v_pk_mul_f32 {vr(st_+4+2*c,2)}, {vr(r,2)}, {vr(r,2)}')
            else:
                k.I(f'v_pk_add_f32 {vr(st_+2*c,2)}, {vr(st_+2*c,2)}, {vr(r,2)}')
                k.I(f'v_pk_fma_f32 {vr(st_+4+2*c,2)}, {vr(r,2)}, {vr(r,2)}, {vr(st_+4+2*c,2)}')
        for c in range(2):
            r = xf+(2*T+c)*4+2
            if T: k.I(f'v_pk_add_f32 {vr(st_+2*c,2)}, {vr(st_+2*c,2)}, {vr(r,2)}')
            k.I(f'v_pk_fma_f32 {vr(st_+4+2*c,2)}, {vr(r,2)}, {vr(r,2)}, {vr(st_+4+2*c,2)}')
    for i in range(4): k.I(f'v_add_f32 v{st_+2*i}, v{st_+2*i}, v{st_+2*i+1}')
    wave_reduce_to_sgpr(k, [st_, st_+2, st_+4, st_+6], [46, 47, 48, 49])
    po = d1; ph = d1 + 12; hn = d2
    rr = f40 + 32; nmr = f40 + 34
    ln_scalars(k, 46, 48, rr, nmr, tmp)
    for T in range(3):
        for c in range(2):
            for p in (0, 2):
                r = (2*T+c)*4+p
                k.I(f'v_pk_fma_f32 {vr(hn+r,2)}, {vr(xf+r,2)}, {vr(rr,2)}, {vr(nmr,2)} op_sel:[0,{c},{c}] op_sel_hi:[1,{c},{c}]')
        for c in range(2):
            for p in (0, 2):
                r = hn+(2*T+c)*4+p
                k.I(f'v_pk_fma_f32 {vr(r,2)}, {vr(r,2)}, {vr(mc+4*T+p,2)}, {vr(ms+4*T+p,2)}')
        for j in range(4):
            k.I(f'v_cvt_pk_bf16_f32 v{ph+4*T+j}, v{hn+8*T+2*j}, v{hn+8*T+2*j+1}')
        if T:
            k.I(f'v_permlane16_swap_b32 v{ph+4*T-4}, v{ph+4*T-2}')
            k.I(f'v_permlane16_swap_b32 v{ph+4*T-3}, v{ph+4*T-1}')
            k.I(f'ds_write_b128 v{wh+T-1}, {vr(ph+4*T-4,4)} offset:{HB}')
    k.bg_every = 0
    for j in range(2): k.I(f'v_cvt_pk_bf16_f32 v{po+j}, v{xf+2*j}, v{xf+2*j+1}')
    k.I(f'v_permlane16_swap_b32 v{ph+8}, v{ph+10}')
    k.I(f'v_permlane16_swap_b32 v{ph+9}, v{ph+11}')
    k.I('s_mov_b32 exec_hi, 0')
    k.I(f'ds_write_b128 v{wh+2}, {vr(ph+8,4)} offset:{HB}')
    k.I('s_mov_b64 exec, -1')
    k.I('s_lshr_b32 s42, s3, 1')
    k.I('s_mul_i32 s42, s42, 20480')
    k.I('s_and_b32 s24, s21, 1')
    k.I('s_lshl_b32 s24, s24, 7')
    k.I('s_add_u32 s42, s42, s24')
    k.I(f's_add_u32 s42, s42, {H2}')
    k.I('s_add_u32 s44, s42, 8192')
    k.I('s_add_u32 s45, s42, 16384')
    k.barrier()
    mark(k, 4)
    sd = mg
    for rho in range(3):
        k.I(f'ds_read_b128 {vr(sd+4*rho,4)}, v{so} offset:{HB+4096*rho}')
    for j in range(2, 12): k.I(f'v_cvt_pk_bf16_f32 v{po+j}, v{xf+2*j}, v{xf+2*j+1}')
    k.I(f'buffer_store_dwordx4 {vr(sd,4)}, v{g0}, s[12:15], s42 offen sc1', tag='h2')
    k.I(f'buffer_store_dwordx4 {vr(sd+4,4)}, v{g0}, s[12:15], s44 offen sc1', tag='h2')
    k.I('s_cmp_lt_u32 s22, 2')
    k.I('s_cselect_b64 exec, -1, 0')
    k.I(f'buffer_store_dwordx4 {vr(sd+8,4)}, v{g0}, s[12:15], s45 offen sc1', tag='h2')
    k.I('s_mov_b64 exec, -1')
    for T in range(3):
        k.I(f'v_permlane16_swap_b32 v{po+4*T}, v{po+4*T+2}')
        k.I(f'v_permlane16_swap_b32 v{po+4*T+1}, v{po+4*T+3}')
    for T in range(3):
        if T == 2: k.I('s_mov_b32 exec_hi, 0')
        k.I(f'ds_write_b128 v{wx}, {vr(po+4*T,4)} offset:{XB+32*T}')
    k.I('s_mov_b64 exec, -1')
    k.I(f's_add_u32 s24, s30, {SB + XB - XL}')
    k.I(f'v_add_u32 v{g2}, s24, v{vo16}')
    k.I('s_mul_i32 s43, s3, 10240')
    k.I(f's_add_u32 s43, s43, s30')
    k.I(f's_add_u32 s29, s43, {X1 - XL}')
    k.waitcnt(lgkm=0)
    sx = 244
    for i in range(3): k.I(f'ds_read_b128 {vr(sx+4*i,4)}, v{g2} offset:{1024*i}')
    def x1st():
        for i in range(3):
            if i == 2: k.I('s_mov_b32 exec_hi, 0')
            k.I(f'buffer_store_dwordx4 {vr(sx+4*i,4)}, v{vo16}, s[12:15], s43 offen offset:{1024*i} sc1')
        k.I('s_mov_b64 exec, -1')
    k.I('s_mul_i32 s24, s20, 163840')
    k.I(f's_add_u32 s24, s24, {H2}')
    k.I('s_add_u32 s16, s4, s24')
    k.I('s_addc_u32 s17, s5, 0')
    k.I('s_mov_b32 s18, 163840')
    k.I('s_mov_b32 s19, 0x00020000')
    k.I('s_and_b32 s52, s22, 2')
    k.I('s_add_u32 s52, s52, s22')
    k.I('s_mul_i32 s52, s52, 20480')
    k.I('s_add_u32 s53, s52, 40960')
    k.I('s_lshl_b32 s54, s20, 8')
    k.I(f's_add_u32 s54, s54, {FLAGS}')
    k.I('s_add_u32 s55, s54, 4096')
    k.I('s_add_u32 s51, s54, 128')
    k.srd(36, 40, S * D * 2)
    k.emit_bg(W_ST)
    va = VAlloc(keep)
    rb = [va.get(), va.get()]; vD = va.get()
    oo = va.get(); ox = va.get(); lw = va.get(); lr = va.get(); t0 = va.get(); t1 = va.get()
    act = va.get(32, 4); accs = [va.get(48, 4), va.get(48, 4)]; pk = va.get(12, 4)
    gb = va.get(8, 4); x1r = va.get(16, 4)
    NV = (256 - va.n) // 4
    wdv = va.get(4 * NV, 4)
    def wdreg(n): return vr(wdv + 4*n, 4) if n < NV else ar(4*(n - NV), 4)
    def emit(grp):
        for t in grp:
            if isinstance(t, tuple): k.I(t[0], tag=t[1])
            else: k.I(t)
    def dma(ps, g):
        out = []
        for j in range(4):
            gr = [(f'buffer_load_dwordx4 v{vo16}, s[16:19], m0 offen offset:{1024*j} sc1 lds', ('a', ps, g, j // 2))]
            if j == 0: gr = [f's_add_u32 m0, s{52+ps}, {4096*g}'] + gr
            out.append(gr)
        return out
    NPRE = 2
    if env('H1_FLAG', 0):
        k.wait_tag('h2')
        signal(k, 'H1', 54, hs)
        k.emit_bg(env('W_PL', 6))
        poll(k, 'H1p', 54, hs, hr)
    for g in range(NPRE):
        for grp in dma(0, g): emit(grp)
    k.emit_bg(W_A)
    late = list(k.bg); k.bg = []
    print('late weight loads', len(late), 'NV', NV)
    k.I(f'v_mov_b32 v{rb[0]}, v{vo16}')
    k.I(f'v_add_u32 v{rb[1]}, {4*20480}, v{vo16}')
    def aread(ps, i, kap):
        off = ((i & 1) + 2*ps) * 20480 + 1024*kap
        base = rb[i >> 1]
        return f'ds_read_b128 {vr(act+16*(kap&1)+4*i,4)}, v{base} offset:{off - (40960 if ps else 0)}'
    k.I('s_lshl_b32 s24, s56, 2')
    k.I('s_add_u32 s24, s24, s22')
    k.I('s_mul_i32 s24, s24, 61440' if not env('W_SAME', 0) & 2 else 's_mul_i32 s24, s22, 61440')
    k.I(f's_add_u32 s24, s24, {WD}')
    k.I(f'v_add_u32 v{vD}, s24, v{vo16}')
    def dload(n):
        if env('NO_WD', 0): return [f'v_add_u32 v{vD}, 0, v{vD}']
        g = [f'buffer_load_dwordx4 {wdreg(n)}, v{vD}, s[12:15], 0 offen offset:{1024*(n%4)} sc1']
        if n % 4 == 3: g.append(f'v_add_u32 v{vD}, 0x1000, v{vD}')
        return g
    RS = 336; PT = 16 * RS
    k.I('s_lshl_b32 s24, s20, 1')
    k.I('s_add_u32 s24, s24, s57')
    k.I('s_lshl_b32 s24, s24, 2')
    k.I(f's_mul_i32 s33, s22, {12*1024}')
    k.I(f's_add_u32 s33, s33, {HH}')
    k.I('s_mul_i32 s42, s24, 49152')
    k.I('s_add_u32 s42, s42, s33')
    for i in range(1, 4): k.I(f's_add_u32 s{42+i}, s42, {49152*i}')
    k.I(f'v_mul_u32_u24 v{t0}, 26, v{vl}')
    k.I(f'v_lshrrev_b32 v{t0}, 8, v{t0}')
    k.I(f'v_mul_u32_u24 v{t1}, 10, v{t0}')
    k.I(f'v_sub_u32 v{t1}, v{vl}, v{t1}')
    k.I(f'v_mul_u32_u24 v{lr}, {RS}, v{t0}')
    k.I(f'v_lshl_add_u32 v{lr}, v{t1}, 4, v{lr}')
    k.I(f's_mul_i32 s25, s22, {4*RS}')
    k.I(f'v_add_u32 v{lr}, s25, v{lr}')
    k.I(f'v_mul_u32_u24 v{ox}, 1280, v{t0}')
    k.I(f'v_lshl_add_u32 v{ox}, v{t1}, 4, v{ox}')
    k.I(f'v_mul_u32_u24 v{oo}, {32*1280}, v{t0}')
    k.I(f'v_lshl_add_u32 v{oo}, v{t1}, 4, v{oo}')
    k.I(f'v_lshlrev_b32 v{t1}, 5, v{t1}')
    k.I(f'v_mul_u32_u24 v{lw}, {RS}, v{vi}')
    k.I(f's_mul_i32 s25, s22, {PT}')
    k.I(f'v_add_u32 v{lw}, s25, v{lw}')
    lw2 = t0
    k.I(f'v_mul_u32_u24 v{hr}, 5, v{vq}')
    k.I(f'v_add_u32 v{lw2}, 1, v{hr}')
    k.I(f'v_lshrrev_b32 v{lw2}, 1, v{lw2}')
    k.I(f'v_lshl_add_u32 v{lw2}, v{lw2}, 4, v{lw}')
    k.I(f'v_lshrrev_b32 v{hr}, 1, v{hr}')
    k.I(f'v_lshl_add_u32 v{lw}, v{hr}, 4, v{lw}')
    k.I(f'v_and_b32 v{hr}, 1, v{vq}')
    k.I(f'v_mul_u32_u24 v{hr}, 160, v{hr}')
    k.I(f'v_add_u32 v{lw}, v{lw}, v{hr}')
    k.I(f'v_sub_u32 v{lw2}, v{lw2}, v{hr}')
    k.I(f'v_add_u32 v{lw2}, 160, v{lw2}')
    k.I('s_mul_i32 s30, s56, 160')
    k.I('s_lshl_b32 s25, s24, 2')
    k.I('s_add_u32 s25, s25, s22')
    k.I(f's_mul_i32 s46, s25, {4*1280}')
    k.I('s_add_u32 s46, s46, s30')
    k.I(f's_add_u32 s46, s46, {X1}')
    for i in range(1, 4): k.I(f's_add_u32 s{46+i}, s46, {16*1280*i}')
    k.I('s_lshl_b32 s25, s20, 7')
    k.I('s_lshl_b32 s26, s57, 4')
    k.I('s_add_u32 s25, s25, s26')
    k.I('s_add_u32 s25, s25, s22')
    k.I('s_mul_i32 s25, s25, 1280')
    k.I('s_add_u32 s25, s25, s30')
    for i in range(1, 4): k.I(f's_add_u32 s{25+i}, s25, {4*1280*i}')
    k.I('s_lshl_b32 s30, s30, 1')
    k.I(f's_add_u32 s30, s30, {5*2560}')
    vx3 = x1r + 14
    k.I(f'v_cmp_gt_u32 vcc, 32, v{vl}')
    k.I(f'v_mov_b32 v{vx3}, 0x7ff00000')
    k.I(f'v_cndmask_b32 v{vx3}, v{vx3}, v{vo16}, vcc')
    k.I('s_mov_b32 s34, -1')
    k.I('s_mov_b32 s35, 0xff')
    vck = x1r; vad = x1r + 15
    k.I(f'v_add_u32 v{vad}, s52, v{vo16}')
    k.I(f'v_and_b32 v{vck+13}, 7, v0')
    k.I(f'v_lshlrev_b32 v{vck+13}, 7, v{vck+13}')
    k.I(f'v_add_u32 v{vck+13}, {F0}, v{vck+13}')
    slow = []
    def validate(name, groups):
        o = []; n = 0
        for g in groups:
            for j in range(2):
                o.append([f'ds_read2st64_b32 {vr(vck+n,2)}, v{vad} offset0:{16*g+8*j} offset1:{16*g+8*j+4}']); n += 2
        o.append([f'v_max3_u32 v{vck}, v{vck}, v{vck+1}, v{vck+2}'])
        i = 3
        while i < n:
            if i + 1 < n: o.append([f'v_max3_u32 v{vck}, v{vck}, v{vck+i}, v{vck+i+1}']); i += 2
            else: o.append([f'v_max_u32 v{vck}, v{vck}, v{vck+i}']); i += 1
        o.append([f'v_cmp_eq_u32 s[62:63], -1, v{vck}'])
        o.append(['s_nop 0'])
        o.append(['s_cmp_lg_u64 s[62:63], 0', ('BR', f's_cbranch_scc1 L{name}_slow', f'L{name}_ok')])
        slow.append((name, groups))
        return o
    _emit = emit
    def emit(grp):
        for t in grp:
            if isinstance(t, tuple) and t[0] == 'GRP': emit(t[1])
            elif isinstance(t, tuple) and t[0] == 'BR':
                k.I(t[1], noflush=True); k.raw(t[2] + ':')
            else: _emit([t])
    k.wait_tag('h2')
    mark(k, 5)
    if not env('H1_FLAG', 0): signal(k, 'H1', 54, hs)
    k.wait_tag(('a', 0, 1, 1))
    mark(k, 6)
    for g in validate('V0', [0, 1]): emit(g)
    k.I('s_barrier')
    mark(k, 7)
    for kp_ in range(2):
        for i in range(4): k.I(aread(0, i, kp_))
    def epi(ps):
        acc = accs[ps]; o = []
        for pr in range(2):
            for j in range(2):
                i = 2*pr + j
                g_ = acc + i*4; u_ = acc + (4+i)*4
                for p in (0, 2): o.append(f'v_pk_mul_f32 {vr(g_+p,2)}, {vr(g_+p,2)}, {vr(u_+p,2)}')
            a_ = acc + (8+2*pr)*4; b_ = a_ + 4
            for r in range(4): o.append(f'v_permlane32_swap_b32 v{a_+r}, v{b_+r}')
            for j in range(2):
                g_ = acc + (2*pr+j)*4
                for p in (0, 2): o.append(f'v_cvt_pk_bf16_f32 v{pk+4*pr+2*j+p//2}, v{g_+p}, v{g_+p+1}')
            for p in (0, 2): o.append(f'v_pk_mul_f32 {vr(a_+p,2)}, {vr(a_+p,2)}, {vr(b_+p,2)}')
            o.append(f'v_permlane16_swap_b32 v{pk+4*pr}, v{pk+4*pr+2}')
            o.append(f'v_permlane16_swap_b32 v{pk+4*pr+1}, v{pk+4*pr+3}')
            for p in (0, 2): o.append(f'v_cvt_pk_bf16_f32 v{pk+8+2*pr+p//2}, v{a_+p}, v{a_+p+1}')
            o.append((f'buffer_store_dwordx4 {vr(pk+4*pr,4)}, v{oh}, s[12:15], s{58+2*pr+ps} offen sc1', ('h', ps)))
        o.append(f'v_permlane16_swap_b32 v{pk+8}, v{pk+10}')
        o.append(f'v_permlane16_swap_b32 v{pk+9}, v{pk+11}')
        o.append((f'buffer_store_dwordx4 {vr(pk+8,4)}, v{oh2}, s[12:15], s{58+ps} offen offset:512 sc1', ('h', ps)))
        return o
    slots_h = [vr(accs[0] + 4*i, 4) for i in range(12)] + [ar(240 + 4*i, 4) for i in range(4)] + [ar(4*i, 4) for i in range(60 - NV, 60)]
    NH = len(slots_h)
    horder = [(t, kp) for kp in range(12) for t in (0, 1)] + [(t, kp) for t in (2, 3) for kp in range(12)]
    def hload(n):
        t, kp = horder[n]
        if env('NO_H', 0): return [f's_add_u32 s{42+t}, s{42+t}, {n}']
        g = [f'buffer_load_dwordx4 {slots_h[n % NH]}, v{vo16}, s[12:15], s{42+t} offen offset:{1024*(kp%4)} sc1']
        if kp % 4 == 3: g.append(f's_add_u32 s{42+t}, s{42+t}, 4096')
        return g
    def check(name, cnt):
        k.I(f'v_readfirstlane_b32 s33, v{hr}')
        k.I('s_cmp_ge_u32 s33, 16')
        k.I(f's_cbranch_scc0 L{name}_spin', noflush=True)
        k.raw(f'L{name}_ok:')
        spins.append((name, cnt))
    spins = []
    q1 = []
    for g in range(NPRE, 5): q1 += dma(0, g)
    xs_ = []
    for i in range(3):
        xs_.append([f'buffer_store_dwordx4 {vr(sx+4*i,4)}, v{vo16 if i < 2 else vx3}, s[12:15], s29 offen offset:{1024*i} sc1'])
    q1 += late[:-6] + [[f'buffer_load_dword v{hr}, v{hs}, s[12:15], s54 offen sc1']] + late[-6:] + xs_ + [['CHECK']]
    for g in range(5): q1 += dma(1, g)
    q1.insert(len(q1) - 8, [f'buffer_load_dword v{vck+12}, v{vck+13}, s[12:15], 0 offen sc1'])
    q1 += [[f'v_cmp_gt_u32 s[62:63], 32, v{vck+12}'], ['s_nop 0'], [('GRP', ['s_cmp_lg_u64 s[62:63], 0', ('BR', 's_cbranch_scc1 LF0_slow', 'LF0_ok')])]]
    q1 += [[f'buffer_load_dwordx4 {vr(gb+4*j,4)}, v{t1}, s[12:15], s30 offen offset:{16*j} sc1'] for j in range(2)]
    nd = 0; nh = 0
    bars = {(0, 6): ('a', 0, 2, 1), (0, 10): ('a', 0, 4, 1), (0, 18): ('a', 1, 1, 1), (1, 6): ('a', 1, 4, 1), (1, env('K_SA', 9)): None}
    VRATE = env('VRATE', 25) / 120.0
    credit = 1.0
    KA_, KC_ = env('K_A', 14), env('K_C', 17)
    ep = []; vq_ = []
    fl = []
    since = 99
    def isvm(t): return (t[0] if isinstance(t, tuple) else t).startswith('buffer_')
    for ps in range(2):
        for kap in range(20):
            pend = list(fl) + [t for g in q1 for t in g]
            if ps == 0 and kap in (env('V2_AT', 4), env('V3_AT', 7)): assert not any(isinstance(t, tuple) and t[0] != 'GRP' and t[1] <= ('a', 0, 2 if kap == env('V2_AT', 4) else 4, 1) for t in pend), 'val early'
            for mt in range(3):
                assert ps or not any(isinstance(t, str) and t.startswith(f'buffer_load_dwordx4 {ar((3*kap+mt)*4,4)},') for t in pend), ('weight late', kap)
            if (ps, kap) in bars:
                if bars[(ps, kap)]:
                    assert not any(isinstance(t, tuple) and t[0] != 'GRP' and t[1] <= bars[(ps, kap)] for t in pend), ('dma late', ps, kap)
                    k.wait_tag(bars[(ps, kap)])
                if not bars[(ps, kap)]:
                    assert not ep
                    em(k, 3)
                    k.wait_tag(('h', 0))
                    signal(k, 'HA', 55, hs, noflush=True)
                    em(k, 4)
                else: k.I('s_barrier')
            if ps == 0 and kap in (6, 10): assert not vq_
            if ps == 0 and kap == env('V2_AT', 4): k.wait_tag(('a', 0, 2, 1)); vq_ = validate('V2', [2])
            if ps == 0 and kap == env('V3_AT', 7): k.wait_tag(('a', 0, 4, 1)); vq_ = validate('V3', [3, 4])
            if ps == 0 and kap == 18:
                k.I(f'v_add_u32 v{rb[0]}, 40960, v{rb[0]}')
                k.I(f'v_add_u32 v{rb[1]}, 40960, v{rb[1]}')
            if ps == 1 and kap == 1:
                if env('EP_SERIAL', 1):
                    em(k, 1)
                    for t in epi(0): emit([t])
                    em(k, 2)
                else: ep = pairs(epi(0))
            if ps == 1 and kap == KA_: fl.insert(0 if not fl or isvm(fl[0]) else 1, f'buffer_load_dword v{hr}, v{hs}, s[12:15], s55 offen sc1') if False else k.I(f'buffer_load_dword v{hr}, v{hs}, s[12:15], s55 offen sc1')
            if ps == 1 and kap == KC_: em(k, 5); check('HA', 55); em(k, 6)
            for j in range(12):
                i, mt = divmod(j, 3)
                dd = vr(accs[ps]+(mt*4+i)*4, 4)
                k.I(f'{MF16} {dd}, {ar((3*kap+mt)*4,4)}, {vr(act+16*(kap&1)+4*i,4)}, {dd if kap else 0}')
                since += 1; credit = min(credit + VRATE, 1.6)
                rd = None
                if mt == 2:
                    if kap < 18: rd = aread(ps, i, kap + 2)
                    elif ps == 0: rd = aread(1, i, kap - 18)
                if rd: k.I(rd); continue
                if j == 10 and len(k.lg) > 3: k.waitcnt(lgkm=3); continue
                if j == 10 and ps == 1 and kap == 18: k.waitcnt(lgkm=0); continue
                if not fl:
                    free = NV + (3 * kap if ps else 0)
                    if q1 and q1[0] == ['CHECK']: q1.pop(0); check('H1', 54); continue
                    if q1: fl = list(q1.pop(0))
                    elif ps == 1 and kap >= KC_ and nh < 16 and (nh // 2) * 5 < nd: fl = list(hload(nh)); nh += 1
                    elif nd < min(free, 60): fl = list(dload(nd)); nd += 1
                if ep and isvm(ep[0][0]):
                    emit(ep.pop(0)); since = 0; credit -= 1.0
                elif fl and (not isvm(fl[0]) or (since >= 3 and credit >= 1.0)):
                    t = fl.pop(0)
                    if isvm(t): since = 0; credit -= 1.0
                    emit([t])
                elif vq_: emit(vq_.pop(0))
                elif ep:
                    g_ = ep.pop(0); emit(g_)
                    if ep and len(g_) == 1 and len(ep[0]) == 1 and not isvm(ep[0][0]): emit(ep.pop(0))
        if ps == 0 and not env('MD', 0): mark(k, 2)
    for t in fl: emit([t])
    assert not q1
    print('after E: wd loaded', nd, 'h loaded', nh)
    NHE = nh
    mark(k, 8); fm(k, 1); em(k, 7); pm(k, 1)
    fq = []
    def need_order():
        o = []; d = nd; h = nh
        for kp in range(12):
            while d < 5*(kp+1): o.append(dload(d)); d += 1
            while h < 2*(kp+1): o.append(hload(h)); h += 1
        return o
    fq = need_order()
    full = list(fq)
    def sorted_q(a_, b_):
        rest = [g for g in b_ if g not in full]
        return [g for g in full if g in a_ or g in b_] + rest
    fq += [['s_mov_b64 exec, s[34:35]', f'buffer_load_dwordx4 {vr(x1r+4*t,4)}, v{ox}, s[12:15], s{46+t} offen sc1', 's_mov_b64 exec, -1'] for t in range(4)]
    for t in epi(1): emit([t])
    fm(k, 2)
    if KC_ >= 20: check('HA', 55)
    fm(k, 3)
    for _ in range(env('F_PRE1', 0)):
        if fq: emit(fq.pop(0))
    mark(k, 9); fm(k, 4)
    fa = accs[1]
    SL = [0, 4*PT, 8*PT, 0]
    def pwrite(t, a): return [f'ds_write_b128 v{lw2 if dt & 1 else lw}, {vr(a+4*dt,4)} offset:{SL[t]+16*(dt//2)}' for dt in range(5)]
    def fin_reads(t, r): return [f'ds_read_b128 {vr(r+8*src+4*h_,4)}, v{lr} offset:{SL[t]+PT*src+160*h_}' for src in range(4) for h_ in range(2)]
    def fin_valu(t, r, xf):
        o = []
        for j in range(4):
            o.append(f'v_lshlrev_b32 v{xf+2*j}, 16, v{x1r+4*t+j}')
            o.append(f'v_and_b32 v{xf+2*j+1}, 0xffff0000, v{x1r+4*t+j}')
        for p in range(4): o.append(f'v_pk_add_f32 {vr(r+2*p,2)}, {vr(r+2*p,2)}, {vr(r+8+2*p,2)}')
        for p in range(4): o.append(f'v_pk_add_f32 {vr(r+16+2*p,2)}, {vr(r+16+2*p,2)}, {vr(r+24+2*p,2)}')
        for p in range(4): o.append(f'v_pk_add_f32 {vr(r+2*p,2)}, {vr(r+2*p,2)}, {vr(r+16+2*p,2)}')
        for p in range(4): o.append(f'v_pk_fma_f32 {vr(xf+2*p,2)}, {vr(r+2*p,2)}, {vr(gb+2*p,2)}, {vr(xf+2*p,2)}')
        for p in range(4): o.append(f'v_cvt_pk_bf16_f32 v{x1r+4*t+p}, v{xf+2*p}, v{xf+2*p+1}')
        return o
    OST = os.environ.get('OUT_ST', '')
    def fin_store(t): return ['s_mov_b64 exec, s[34:35]', f'buffer_store_dwordx4 {vr(x1r+4*t,4)}, v{oo}, s[36:39], s{25+t} offen{OST}', 's_mov_b64 exec, -1']
    KB_ = env('K_B', 3)
    fl = []
    def gap(pool):
        nonlocal fl
        if not fl and pool:
            g = pool.pop(0)
            if isinstance(g[0], str) and g[0].startswith('s_mov_b64 exec'): emit(g); return
            fl = list(g)
        if fl: emit([fl.pop(0)])
    FG = env('F_GAP', 5)
    KBL, KBC = env('K_BL', 8), env('K_BC', 11)
    since = 99; nh = 24
    hq = [hload(n) for n in range(24, 48)]
    for kp in range(12):
        if kp % 2 == 0: pm(k, 2 + kp // 2)
        if kp == KB_:
            k.wait_tag(('h', 1))
            signal(k, 'HB', 51, hs, noflush=True)
            fm(k, 5)
        if kp == KBL: fq.insert(0, [f'buffer_load_dword v{hr}, v{hs}, s[12:15], s51 offen sc1'])
        if kp == KBC:
            while fq or fl: gap(fq)
            check('HB', 51); fm(k, 7)
            fq = hq
        for t in range(2):
            need = [wdreg(5*kp+dt) for dt in range(5)] + [slots_h[(2*kp+t) % NH]]
            while fq is not hq and any(g[0].startswith(f'buffer_load_dwordx4 {r},') for g in fq for r in need): gap(fq)
            for dt in range(5):
                dd = vr(fa+20*t+4*dt, 4)
                k.I(f'{MF16} {dd}, {wdreg(5*kp+dt)}, {slots_h[(2*kp+t) % NH]}, {dd if kp else 0}')
                since += 1
                if dt == 4: continue
                if fl: gap(fq)
                elif since >= (env('F_GAP2', 5) if fq is hq else env('F_GAP1', 2)) and fq: gap(fq); since = 0
    pm(k, 8)
    while fl: gap(fq)
    if KBC >= 12:
        while fq: gap(fq)
    if not env('MD', 0): mark(k, 3)
    fm(k, 6); em(k, 8); pm(k, 9)
    def sprinkle(lst, every):
        for j, v_ in enumerate(lst):
            k.I(v_)
            if j % every == every - 1 and hq: emit(hq.pop(0))
    if KBC == 12: check('HB', 51); fm(k, 7)
    sprinkle(pwrite(0, fa) + pwrite(1, fa + 20), env('SPR', 2) if KBC <= 12 else 99)
    k.barrier()
    if KBC == 13:
        check('HB', 51); fm(k, 7)
        for _ in range(4): emit(hq.pop(0))
    em(k, 9)
    xfA = pk
    sprinkle(fin_reads(0, fa) + fin_reads(1, act), env('SPR2', 8))
    sprinkle(fin_valu(0, fa, pk), env('SPR3', 14))
    if not env('MD', 0): mark(k, 4)
    late_st = [fin_store(0), fin_store(1)]
    extra0 = pairs(fin_valu(1, act, fa + 40))
    rB = act
    extra = extra0
    hq = hq + late_st
    since = 99
    for t in (2, 3):
        a = fa + 20*(t - 2)
        if t == 3:
            assert not extra
            extra = [[w_] for w_ in pwrite(2, fa)]
        for kp in range(12):
            n = 24 + 12*(t-2) + kp
            if n == 25: fm(k, 8)
            assert not any(g[0].startswith(f'buffer_load_dwordx4 {slots_h[n % NH]},') for g in hq)
            for dt in range(5):
                dd = vr(a+4*dt, 4)
                k.I(f'{MF16} {dd}, {wdreg(5*kp+dt)}, {slots_h[n % NH]}, {dd if kp else 0}')
                since += 1
                if dt == 4 and n < 46: continue
                if fl: gap(hq)
                elif hq and since >= FG and not (extra is extra0 and extra and hq[0] is late_st[1]): gap(hq); since = 0
                elif (kp >= 1 or t == 2) and extra: emit(extra.pop(0))
            if t == 3 and kp == 3:
                assert not extra
                k.barrier()
                extra = [[r_] for r_ in fin_reads(2, wdv)] + pairs(fin_valu(2, wdv, xfA)) + [fin_store(2)]
    fm(k, 9)
    while extra: emit(extra.pop(0))
    for w_ in pwrite(3, fa + 20): k.I(w_)
    xl = fin_valu(3, wdv + 32, act)
    for v_ in xl[:8]: k.I(v_)
    k.barrier()
    for r_ in fin_reads(3, wdv + 32): k.I(r_)
    for v_ in xl[8:]: k.I(v_)
    emit(fin_store(3))
    if gen.STAMPS and not env('MF', 0): k.I('s_add_u32 s66, s50, s64')
    stamp_end(k, 3, 4)
    k.label('LD_exit')
    k.I('s_endpgm')
    k.label('LY_slow', fresh=True); k.vm = []; k.lg = []
    k.I('s_mov_b32 s24, 0x40000')
    k.I('s_mov_b64 s[36:37], -1')
    k.label('LY_loop')
    k.I('s_add_u32 s50, s50, 1')
    k.I(f's_sleep {env("Y_SLEEP", 2)}')
    k.I(f'buffer_load_dword v{vcn}, v{v8}, s[12:15], 0 offen sc1')
    yloads()
    k.waitcnt(vm=0)
    k.I('s_cmp_eq_u64 s[36:37], 0')
    k.I('s_cbranch_scc1 LY_ok')
    k.I('s_sub_u32 s24, s24, 1')
    k.I('s_cbranch_scc1 LY_ok')
    k.I(f'v_cmp_gt_u32 s[36:37], 32, v{vcn}')
    ycheck()
    k.I('s_cbranch_scc1 LY_loop')
    k.I('s_branch LY_ok')
    k.label('LF0_slow', fresh=True); k.vm = []; k.lg = []
    k.I('s_mov_b32 s24, 0x40000')
    k.label('LF0_loop')
    k.I(f'buffer_load_dword v{vck+12}, v{vck+13}, s[12:15], 0 offen sc1')
    k.waitcnt(vm=0)
    k.I('s_sub_u32 s24, s24, 1')
    k.I('s_cbranch_scc1 LF0_ok')
    k.I(f'v_cmp_gt_u32 s[62:63], 32, v{vck+12}')
    k.I('s_cmp_lg_u64 s[62:63], 0')
    k.I('s_cbranch_scc1 LF0_loop')
    k.I('s_branch LF0_ok')
    k.label('LWD', fresh=True); k.restore_state(st0)
    vc = VAlloc(keep)
    t0_ = vc.get(); t1_ = vc.get(); ra_ = vc.get(); so_ = vc.get(5); o_ = vc.get(20, 4)
    for p in range(5):
        k.I(f'v_add_u32 v{t0_}, {64*p}, v{vl}')
        k.I(f'v_mul_u32_u24 v{t1_}, 205, v{t0_}')
        k.I(f'v_lshrrev_b32 v{t1_}, 13, v{t1_}')
        k.I(f'v_mul_u32_u24 v{t1_}, 640, v{t1_}')
        k.I(f'v_add_u32 v{so_+p}, v{t1_}, v{vo16}')
    k.I(f'v_bfe_u32 v{t1_}, v{vl}, 2, 2')
    k.I(f'v_lshl_add_u32 v{t0_}, v{vq}, 3, v{t1_}')
    k.I(f'v_mul_u32_u24 v{ra_}, 640, v{t0_}')
    k.I(f'v_and_b32 v{t0_}, 3, v{vl}')
    k.I(f'v_mul_u32_u24 v{t0_}, 40, v{t0_}')
    k.I('s_mul_i32 s24, s22, 160')
    k.I(f's_add_u32 s24, s24, {CL}')
    k.I(f'v_add3_u32 v{ra_}, v{ra_}, v{t0_}, s24')
    k.I('s_mul_i32 s90, s22, 5120')
    k.I(f's_add_u32 s90, s90, {CL}')
    k.srd(36, 62, F * D * 2)
    k.srd(44, 4, F * D * 2, WD)
    def wd_in(sj):
        k.I(f's_and_b32 s49, s{sj}, 1')
        k.I(f's_lshr_b32 s50, s{sj}, 1')
        k.I('s_lshl_b32 s51, s50, 2')
        k.I('s_add_u32 s51, s51, s22')
        k.I('s_mul_i32 s51, s51, 10240')
        k.I('s_mul_i32 s24, s49, 640')
        k.I('s_add_u32 s51, s51, s24')
        k.I('s_mov_b32 m0, s90')
        for p in range(4): k.I(f'buffer_load_dwordx4 v{so_+p}, s[36:39], s51 offen offset:{1024*p} nt lds', tag='r')
        k.I('s_add_u32 m0, s90, 4096')
        k.I('s_add_u32 s51, s51, 4096')
        k.I(f'buffer_load_dwordx4 v{so_+4}, s[36:39], s51 offen nt lds', tag='r')
        k.I('s_lshl_b32 s52, s49, 2')
        k.I('s_add_u32 s52, s52, s22')
        k.I('s_mul_i32 s52, s52, 48')
        k.I('s_add_u32 s52, s52, s50')
        k.I('s_mul_i32 s52, s52, 5120')
        k.I('s_add_u32 s53, s52, 4096')
    def wd_out():
        k.wait_tag('r')
        k.I('s_barrier')
        for dt in range(5):
            for hf in range(2): k.I(f'ds_read_b64_tr_b16 {vr(o_+dt*4+2*hf,2)}, v{ra_} offset:{4*hf*640+8*dt}')
        for dt in range(5):
            k.I(f'buffer_store_dwordx4 {vr(o_+dt*4,4)}, v{vo16}, s[44:47], s{52+(dt//4)} offen offset:{1024*(dt%4)} sc1', tag='y')
    k.I('s_sub_u32 s48, s2, 162')
    k.I('s_cmp_ge_u32 s48, 3')
    k.I('s_cbranch_scc1 LWD0')
    m0_ = 60
    k.I('s_lshl_b32 s48, s48, 8')
    k.I(f'v_add_u32 v{m0_}, s48, v0')
    k.I(f'v_lshlrev_b32 v{m0_+1}, 4, v{m0_}')
    k.srd(8, 4, 4 * 960 * 16, GR)
    for p in range(4):
        k.I(f's_mov_b32 s49, {960*16*p + 320*16}')
        k.I(f'buffer_load_dwordx4 {vr(m0_+4+4*p,4)}, v{m0_+1}, s[8:11], s49 offen')
    k.srd(12, 4, 4 * D * 4, MODN + 2 * D * 4)
    k.I('s_mov_b32 s50, 0x04000c0c')
    k.I('s_mov_b32 s51, 0x0706000c')
    k.I(f'v_mov_b32 v{m0_+22}, {fhex(1.0 / (2.0 * S * D))}')
    k.I(f'v_cmp_gt_u32 vcc, 0xa0, v{m0_}')
    k.I(f'v_cndmask_b32 v{m0_+22}, 1.0, v{m0_+22}, vcc')
    k.I(f'v_subrev_u32 v{m0_+21}, 0x140, v{m0_}')
    k.I(f'v_cmp_gt_u32 vcc, 0xa0, v{m0_+21}')
    k.I(f'v_mov_b32 v{m0_+23}, 1.0')
    k.I(f'v_cndmask_b32 v{m0_+23}, 0, v{m0_+23}, vcc')
    g_ = m0_ + 4
    for p in range(4): unpack_gran(k, g_+4*p, m0_+21, 50, 51)
    for p in (0, 2):
        k.I(f'v_pk_add_f32 {vr(g_+p,2)}, {vr(g_+p,2)}, {vr(g_+4+p,2)}')
        k.I(f'v_pk_add_f32 {vr(g_+8+p,2)}, {vr(g_+8+p,2)}, {vr(g_+12+p,2)}')
    for p in (0, 2): k.I(f'v_pk_add_f32 {vr(g_+p,2)}, {vr(g_+p,2)}, {vr(g_+8+p,2)}')
    for j in range(4): k.I(f'v_cvt_pk_bf16_f32 v{g_+j}, v{g_+j}, v{g_+j}')
    for j in range(4): k.I(f'v_and_b32 v{g_+j}, 0xffff0000, v{g_+j}')
    for j in range(4): k.I(f'v_add_f32 v{g_+j}, v{m0_+23}, v{g_+j}')
    for j in range(4): k.I(f'v_cvt_pk_bf16_f32 v{g_+j}, v{g_+j}, v{g_+j}')
    for j in range(4): k.I(f'v_and_b32 v{g_+j}, 0xffff0000, v{g_+j}')
    for j in range(4): k.I(f'v_mul_f32 v{g_+j}, v{m0_+22}, v{g_+j}')
    k.I(f'buffer_store_dwordx4 {vr(g_,4)}, v{m0_+1}, s[12:15], 0 offen sc1')
    k.label('LWD0')
    k.vm = []
    k.I('s_cmp_lg_u32 s2, 161')
    k.I('s_cbranch_scc1 LWD1')
    k.I('s_movk_i32 s48, 95')
    wd_in(48); wd_out()
    k.barrier(vm=0)
    k.label('LWD1')
    k.vm = []
    k.I('s_sub_u32 s48, s2, 161')
    wd_in(48)
    scalars()
    k.bg = bglist(); topup()
    wd_out()
    if env('CANARY', 1):
        k.I('s_lshl_b32 s48, s48, 14')
        k.I('s_add_u32 s48, s48, s25')
        k.I(f'v_mov_b32 v{t0_}, 0')
        k.I('s_mov_b32 s24, 0x400')
        k.I('s_cmp_lg_u32 s22, 0')
        k.I('s_cbranch_scc1 LCAN_o')
        k.label('LCAN')
        k.I('s_sleep 4')
        k.I(f'buffer_load_dword v{t1_}, v{t0_}, s[16:19], s48 offen sc1')
        k.waitcnt(vm=0)
        k.I(f'v_readfirstlane_b32 s49, v{t1_}')
        k.I('s_sub_u32 s24, s24, 1')
        k.I('s_cbranch_scc1 LCAN_o')
        k.I('s_cmp_eq_u32 s49, -1')
        k.I('s_cbranch_scc1 LCAN')
        k.label('LCAN_o')
        k.I('s_barrier')
    k.I('s_branch LJOIN')
    for name, groups in slow:
        k.label(f'L{name}_slow', fresh=True); k.vm = []; k.lg = []
        k.I('s_mov_b32 s32, m0')
        k.I('s_mov_b32 s24, 0x40000')
        k.label(f'L{name}_loop')
        k.I('s_add_u32 s50, s50, 1')
        k.I(f'buffer_load_dword v{vck+8}, v{hs}, s[12:15], s54 offen sc1')
        k.waitcnt(vm=0)
        for g in groups:
            for grp in dma(0, g): _emit(grp)
        k.I(f'v_readfirstlane_b32 s33, v{vck+8}')
        k.I('s_mov_b32 m0, s32')
        k.waitcnt(vm=0)
        k.I('s_cmp_ge_u32 s33, 16')
        k.I(f's_cbranch_scc1 L{name}_ok')
        k.I('s_sub_u32 s24, s24, 1')
        k.I(f's_cbranch_scc1 L{name}_ok')
        sl_ = list(slow)
        for g in validate(name + 'r', groups)[:-1]: _emit(g)
        slow[:] = sl_
        k.I('s_cmp_lg_u64 s[62:63], 0')
        k.I(f's_cbranch_scc1 L{name}_loop')
        k.I(f's_branch L{name}_ok')
    for name, cnt in spins:
        k.label(f'L{name}_spin', fresh=True); k.vm = []; k.lg = []
        k.I('s_mov_b32 s24, 0x100000')
        k.label(f'L{name}_loop')
        k.I(f'buffer_load_dword v{hr}, v{hs}, s[12:15], s{cnt} offen sc1')
        k.waitcnt(vm=0)
        k.I(f'v_readfirstlane_b32 s33, v{hr}')
        k.I('s_sub_u32 s24, s24, 1')
        k.I(f's_cbranch_scc1 L{name}_ok')
        k.I('s_cmp_lt_u32 s33, 16')
        k.I(f's_cbranch_scc1 L{name}_loop')
        k.I(f's_branch L{name}_ok')
    return k, (256, 256, 163840)
```

```python
import sys, math, os
import gen, gen2
from gen import *
from gen2 import *
from gen import mark, stamp_begin, stamp_end

GR = WS_END2
YT = GR + 0x10000
YT_ST = 10496
WS_END4 = YT + 256 * YT_ST
EPOCH = 0x8000
NPF = 9
XNT = ' nt' if os.environ.get('XNT') == '1' else ''

def tag_issue(k, srd, vz, vt):
    k.I(f'buffer_load_dwordx2 {vr(vt,2)}, v{vz}, s[{srd}:{srd+3}], 0 offen sc1')
def tag_check(k, name, srd, vz, vt, s_tag):
    k.I('s_mov_b32 s3, 0x40000')
    k.waitcnt(vm=0)
    k.label(f'L{name}')
    k.I(f'v_readfirstlane_b32 s{s_tag+1}, v{vt+1}')
    k.I(f'v_readfirstlane_b32 s{s_tag}, v{vt}')
    k.I(f's_cmp_eq_u32 s{s_tag+1}, 1')
    k.I(f's_cbranch_scc1 L{name}_o')
    k.I('s_sub_u32 s3, s3, 1')
    k.I(f's_cbranch_scc1 L{name}_o')
    k.I('s_sleep 2')
    tag_issue(k, srd, vz, vt)
    k.waitcnt(vm=0)
    k.I(f's_branch L{name}')
    k.label(f'L{name}_o')

def role_mod4(k, lexit):
    va = VAlloc(1)
    vrw = va.get(); voff = va.get(); vc = va.get(5); vw = va.get(20, 4); acc = va.get(8, 4); t0 = va.get(); t1 = va.get(); vco = va.get()
    vz = va.get(); vt = va.get(2, 2)
    k.I(f'v_lshrrev_b32 v{vrw}, 3, v0')
    k.I(f'v_mul_u32_u24 v{voff}, 7680, v{vrw}')
    k.I(f'v_and_b32 v{t0}, 7, v0')
    k.I(f'v_lshl_add_u32 v{voff}, v{t0}, 4, v{voff}')
    k.I(f'v_lshlrev_b32 v{vco}, 1, v{vrw}')
    k.I(f'v_mov_b32 v{vz}, 0')
    k.I('s_lshl_b32 s23, s20, 7')
    k.I(f's_mul_i32 s22, s21, {160*7680}')
    k.I('s_add_u32 s23, s23, s22')
    k.I('s_mul_i32 s22, s21, 320')
    k.srd(24, 10, D * 6 * D * 2)
    k.srd(28, 8, D * 2)
    mark(k, 1)
    for i in range(5):
        k.I(f'buffer_load_dwordx4 {vr(vw+4*i,4)}, v{voff}, s[24:27], s23 offen nt')
        if i < 4: k.I(f's_add_u32 s23, s23, {32*7680}')
        if i == 0:
            for j in range(5): k.I(f'buffer_load_ushort v{vc+j}, v{vco}, s[28:31], s22 offen offset:{64*j}')
    mark(k, 2)
    k.srd(32, 4, 4 * 960 * 16, GR)
    k.srd(52, 56, 256)
    up = va.get(8, 2)
    tt = va.get(5)
    R = range(5)
    for i in R: k.I(f'v_lshlrev_b32 v{vc+i}, 16, v{vc+i}')
    tag_issue(k, 52, vz, vt)
    mark(k, 3)
    for i in R: k.I(f'v_mul_f32 v{tt+i}, {fhex(-math.log2(math.e))}, v{vc+i}')
    for i in R: k.I(f'v_exp_f32 v{tt+i}, v{tt+i}')
    for i in R: k.I(f'v_add_f32 v{tt+i}, 1.0, v{tt+i}')
    for i in R: k.I(f'v_rcp_f32 v{tt+i}, v{tt+i}')
    for i in R: k.I(f'v_mul_f32 v{vc+i}, v{vc+i}, v{tt+i}')
    for i in R: k.I(f'v_cvt_pk_bf16_f32 v{vc+i}, v{vc+i}, v{vc+i}')
    sv = va.get(10, 2)
    for i in R: k.I(f'v_and_b32 v{sv+2*i}, 0xffff0000, v{vc+i}')
    for i in R:
        for j in range(4):
            k.I(f'v_lshlrev_b32 v{up+2*j}, 16, v{vw+4*i+j}')
            k.I(f'v_and_b32 v{up+2*j+1}, 0xffff0000, v{vw+4*i+j}')
        for j in range(4):
            if i == 0: k.I(f'v_pk_mul_f32 {vr(acc+2*j,2)}, {vr(up+2*j,2)}, {vr(sv,2)} op_sel_hi:[1,0]')
            else: k.I(f'v_pk_fma_f32 {vr(acc+2*j,2)}, {vr(up+2*j,2)}, {vr(sv+2*i,2)}, {vr(acc+2*j,2)} op_sel_hi:[1,0,1]')
    for j in range(8): k.I(f'v_add_f32_dpp v{acc+j}, v{acc+j}, v{acc+j} row_ror:8 row_mask:0xf bank_mask:0xf')
    k.I(f'v_lshrrev_b32 v{t1}, 4, v0')
    k.I(f'v_lshlrev_b32 v{t1}, 8, v{t1}')
    k.I(f'v_lshl_add_u32 v{t1}, v{t0}, 5, v{t1}')
    k.I('s_mov_b32 exec_lo, 0x00ff00ff')
    k.I('s_mov_b32 exec_hi, 0x00ff00ff')
    k.I(f'ds_write_b128 v{t1}, {vr(acc,4)}')
    k.I(f'ds_write_b128 v{t1}, {vr(acc+4,4)} offset:16')
    k.I('s_mov_b64 exec, -1')
    k.I('v_readfirstlane_b32 s38, v0')
    k.I(f'v_lshlrev_b32 v{t0}, 2, v0')
    k.barrier()
    mark(k, 4)
    k.I('s_cmp_lg_u32 s38, 0')
    k.I(f's_cbranch_scc1 {lexit}')
    for j in range(8):
        k.I(f'ds_read2st64_b32 {vr(vw+2*j,2)}, v{t0} offset0:{2*j} offset1:{2*j+1}')
    k.I('s_sub_u32 s39, s20, 10')
    k.I('s_cmp_lt_u32 s39, 10')
    k.I('s_cselect_b32 s41, 1.0, 0')
    k.I('s_cmp_eq_u32 s21, 0')
    k.I('s_cselect_b32 s41, s41, 0')
    k.I(f's_mul_i32 s45, s21, {960*16}')
    k.I('s_lshl_b32 s44, s20, 8')
    k.I('s_add_u32 s45, s45, s44')
    k.I('s_mov_b32 s40, 0x07060503')
    k.I('s_mov_b32 s42, 0x07060502')
    k.I('s_mov_b32 s43, 0x07060501')
    for j in range(4): k.I(f'v_pk_add_f32 {vr(vw+2*j,2)}, {vr(vw+2*j,2)}, {vr(vw+8+2*j,2)}')
    for j in range(2): k.I(f'v_pk_add_f32 {vr(vw+2*j,2)}, {vr(vw+2*j,2)}, {vr(vw+4+2*j,2)}')
    k.I(f'v_pk_add_f32 {vr(vw,2)}, {vr(vw,2)}, {vr(vw+2,2)}')
    k.I(f'v_add_f32 v{vw}, v{vw}, v{vw+1}')
    k.I(f'v_add_f32 v{vw}, s41, v{vw}')
    for j in range(1, 4): k.I(f'v_mov_b32_dpp v{vw+j}, v{vw} quad_perm:[{j},{j},{j},{j}] row_mask:0xf bank_mask:0xf')
    for j, sel in enumerate((40, 42, 43)): k.I(f'v_perm_b32 v{vw+j}, v{vw+j}, v{vw+3}, s{sel}')
    mark(k, 5)
    tag_check(k, 'A_tag', 52, vz, vt, 58)
    mark(k, 6)
    k.I(f'v_mov_b32 v{vw+3}, s58')
    k.I('s_mov_b32 exec_lo, 0x11111111')
    k.I('s_mov_b32 exec_hi, 0x11111111')
    k.I(f'buffer_store_dwordx4 {vr(vw,4)}, v{t0}, s[32:35], s45 offen sc1')

def unpack_gran(k, g, t, s1, s2):
    k.I(f'v_perm_b32 v{t}, v{g}, v{g+1}, s{s1}')
    k.I(f'v_perm_b32 v{g+3}, v{t}, v{g+2}, s{s2}')

class Rec:
    def __init__(self): self.l = []
    def I(self, t, **kw): self.l.append(t)
def rec(fn, *a):
    r = Rec(); fn(r, *a); return r.l
def merge(k, main, fill, per):
    fill = list(fill)
    for m in main:
        k.I(m)
        for _ in range(per):
            if fill: k.I(fill.pop(0))
    for t in fill: k.I(t)

def role_B4(k, boff):
    PL = 5184; ML = 4 * PL
    k.I(f's_sub_u32 s2, s2, {boff}')
    va = VAlloc(2)
    vl = va.get(); xs = va.get(20, 4); md = va.get(20, 4); vo = va.get()
    for i in range(20): k.I(f'v_mov_b32 v{xs+i}, 0')
    ids2(k, vl)
    k.I('s_mul_i32 s28, s23, 1280')
    k.I(f's_add_u32 s29, s28, {32*1280}')
    k.I(f'v_lshlrev_b32 v{vo}, 1, v{vl}')
    def xloads():
        k.srd(40, 6, S * D * 2)
        for e in range(10):
            k.I(f'buffer_load_short_d16_hi v{xs+2*e}, v{vo}, s[40:43], s28 offen offset:{128*e}{XNT}')
            k.I(f'buffer_load_short_d16_hi v{xs+2*e+1}, v{vo}, s[40:43], s29 offen offset:{128*e}{XNT}')
    fi = va.get(); fq = va.get(); fq4 = va.get(); vi = va.get(); vq = va.get()
    k.I(f'v_and_b32 v{vi}, 15, v{vl}')
    k.I(f'v_lshrrev_b32 v{vq}, 4, v{vl}')
    k.I(f'v_cvt_f32_u32 v{fi}, v{vi}')
    k.I(f'v_cvt_f32_u32 v{fq}, v{vq}')
    k.I(f'v_mul_f32 v{fq4}, 4.0, v{fq}')
    va.n = (va.n + 3) // 4 * 4
    r_ = Rec(); f40 = gen_f40(r_, va, fi, fq, False)
    XA = env('X_AT', 160)
    def poison():
        if not env('POISON', 1): return
        for j in range(4): k.I(f'v_mov_b32 v{md+j}, -1')
        k.I(f'v_lshlrev_b32 v{md+4}, 4, v0')
        k.I('s_lshr_b32 s30, s21, 2')
        k.I('s_and_b32 s31, s30, 2')
        k.I('s_add_u32 s30, s30, s31')
        k.I('s_lshl_b32 s31, s20, 3')
        k.I('s_add_u32 s30, s30, s31')
        k.I('s_lshl_b32 s30, s30, 2')
        k.I('s_and_b32 s31, s21, 3')
        k.I('s_add_u32 s30, s30, s31')
        k.I('s_mul_i32 s30, s30, 5120')
        k.I(f's_add_u32 s30, s30, {H2}')
        k.I('s_add_u32 s40, s4, s30')
        k.I('s_addc_u32 s41, s5, 0')
        k.I('s_mov_b32 s42, 5120')
        k.I('s_mov_b32 s43, 0x00020000')
        k.I('s_movk_i32 s30, 0x1000')
        PST = ' sc1' if env('P_SC1', 1) else ''
        k.I(f'buffer_store_dwordx4 {vr(md,4)}, v{md+4}, s[40:43], 0 offen{PST}')
        k.I(f'buffer_store_dwordx4 {vr(md,4)}, v{md+4}, s[40:43], s30 offen{PST}')
        if G6:
            k.I('s_lshl_b32 s31, s20, 4')
            k.I('s_add_u32 s31, s31, s21')
            k.I('s_mul_i32 s31, s31, 10304')
            k.I(f's_add_u32 s31, s31, {YT}')
            k.I('s_add_u32 s40, s4, s31')
            k.I('s_addc_u32 s41, s5, 0')
            k.I('s_mov_b32 s42, 10304')
            k.I('s_mov_b32 s43, 0x00020000')
            k.I('s_movk_i32 s31, 0x2000')
            for so_ in ('0', 's30', 's31'): k.I(f'buffer_store_dwordx4 {vr(md,4)}, v{md+4}, s[40:43], {so_} offen{PST}')
    PA = env('P_AT', 160)
    for t in r_.l[:min(PA, XA)]: k.I(t)
    if PA <= XA: poison()
    for t in r_.l[min(PA, XA):XA]: k.I(t)
    xloads()
    for t in r_.l[XA:]: k.I(t)
    va.n = f40 + 62
    mark(k, 1)
    k.srd(44, 4, XT_SZ, XT)
    k.srd(48, 4, 4 * 960 * 16, GR)
    k.srd(52, 56, 256)
    cs, sn = gen_tw640(k, va, fi, fq4)
    va.n = sn + 12
    f16 = va.get(8, 2); tmp = va.get(8, 2); ta = md
    dat = va.get(12, 2)
    k.I(f'v_mov_b32 v{dat+10}, 0'); k.I(f'v_mov_b32 v{dat+11}, 0')
    tag_issue(k, 52, dat + 10, dat)
    k.I(f'v_lshrrev_b32 v{ta}, 1, v{vi}')
    k.I(f'v_cvt_f32_u32 v{ta}, v{ta}')
    k.I(f'v_and_b32 v{ta+1}, 1, v{vi}')
    k.I(f'v_cvt_f32_u32 v{ta+1}, v{ta+1}')
    k.I(f'v_mul_f32 v{ta+1}, 0x3e800000, v{ta+1}')
    for U in range(2):
        k.I(f'v_add_f32 v{ta+2}, {fhex(8.0*U)}, v{ta}')
        k.I(f'v_mul_f32 v{ta+2}, {fhex(1.0/16)}, v{ta+2}')
        k.I(f'v_fma_f32 v{ta+3}, v{fq4}, v{ta+2}, v{ta+1}')
        for j in range(4): k.I(f'v_fmamk_f32 v{tmp+4+j}, v{ta+2}, {fhex(float(j))}, v{ta+3}')
        for j in range(4):
            k.I(f'v_cos_f32 v{tmp+j}, v{tmp+4+j}')
            k.I(f'v_sin_f32 v{tmp+4+j}, v{tmp+4+j}')
        for j in range(4): k.I(f'v_cvt_pk_bf16_f32 v{f16+4*U+j}, v{tmp+2*j}, v{tmp+2*j+1}')
    wa = fi; ru = fq; rv = fq4; so = vo
    k.I(f'v_mul_u32_u24 v{wa}, 80, v{vq}')
    k.I(f'v_add_lshl_u32 v{wa}, v{wa}, v{vi}, 3')
    k.I(f's_mul_i32 s31, s22, {PL}')
    k.I(f'v_add_u32 v{wa}, s31, v{wa}')
    k.I(f'v_and_b32 v{ta}, 1, v0')
    k.I(f'v_lshrrev_b32 v{ta+1}, 1, v0')
    k.I(f'v_mul_u32_u24 v{ru}, {2*PL}, v{ta}')
    k.I(f'v_sub_u32 v{rv}, 384, v{ta+1}')
    k.I(f'v_lshl_add_u32 v{rv}, v{rv}, 3, v{ru}')
    k.I(f'v_lshl_add_u32 v{ru}, v{ta+1}, 3, v{ru}')
    k.I(f'v_lshlrev_b32 v{so}, 13, v{ta+1}')
    k.I(f'v_lshl_add_u32 v{so}, v{ta}, 4, v{so}')
    gA = 1; gB = vq; lB = vi; rm = vl
    k.I('s_mul_i32 s31, s22, 1280')
    k.I(f'v_lshl_add_u32 v{gA}, v{vl}, 4, s31')
    k.I('s_add_u32 s31, s31, 1024')
    k.I(f'v_lshl_add_u32 v{lB}, v{vi}, 4, s31')
    k.I(f'v_mul_u32_u24 v{gB}, {960*16}, v{vq}')
    k.I(f'v_add_u32 v{gB}, v{gB}, v{lB}')
    k.I(f'v_lshlrev_b32 v{rm}, 2, v{vl}')
    k.I(f'v_add_u32 v{rm}, {ML}, v{rm}')
    for p in range(1, 4): k.I(f's_mov_b32 s{35+p}, {960*16*p}')
    k.I('s_mov_b32 s60, 0x04000c0c')
    k.I('s_mov_b32 s61, 0x0706000c')
    mark(k, 2)
    sm = md; sq = md + 2; rr = md + 4; nmr = md + 6
    k.I(f'v_pk_add_f32 {vr(sm,2)}, {vr(xs,2)}, {vr(xs+2,2)}')
    k.I(f'v_pk_mul_f32 {vr(sq,2)}, {vr(xs,2)}, {vr(xs,2)}')
    k.I(f'v_pk_fma_f32 {vr(sq,2)}, {vr(xs+2,2)}, {vr(xs+2,2)}, {vr(sq,2)}')
    for e in range(2, 10):
        k.I(f'v_pk_add_f32 {vr(sm,2)}, {vr(sm,2)}, {vr(xs+2*e,2)}')
        k.I(f'v_pk_fma_f32 {vr(sq,2)}, {vr(xs+2*e,2)}, {vr(xs+2*e,2)}, {vr(sq,2)}')
    wave_reduce_to_sgpr(k, [sm, sm+1, sq, sq+1], [32, 33, 34, 35])
    ln_scalars(k, 32, 34, rr, nmr, tmp)
    for e in range(10):
        k.I(f'v_pk_fma_f32 {vr(xs+2*e,2)}, {vr(xs+2*e,2)}, {vr(rr,2)}, {vr(nmr,2)}')
    mark(k, 3)
    tag_check(k, 'B_tag', 52, dat + 10, dat, 58)
    mark(k, 4)
    tx = tmp
    k.I('s_mov_b32 s3, 0x40000')
    k.label('LB_poll')
    for p in range(4):
        k.I(f'buffer_load_dwordx4 {vr(md+4*p,4)}, v{gA}, s[48:51], {"s%d" % (35+p) if p else 0} offen sc1')
    k.I(f'buffer_load_dwordx4 {vr(md+16,4)}, v{gB}, s[48:51], 0 offen sc1')
    for p in range(5): k.I(f'v_xor_b32 v{tx+p}, s58, v{md+4*p+3}')
    k.I(f'v_or3_b32 v{tx}, v{tx}, v{tx+1}, v{tx+2}')
    k.I(f'v_or3_b32 v{tx}, v{tx}, v{tx+3}, v{tx+4}')
    k.I(f'v_cmp_ne_u32 vcc, 0, v{tx}')
    for p in (4, 0, 1, 2, 3): unpack_gran(k, md+4*p, tx+1+p, 60, 61)
    k.I('s_cbranch_vccz LB_go')
    k.I(f's_sleep {env("SLEEP", 2)}')
    k.I('s_sub_u32 s3, s3, 1')
    k.I('s_cbranch_scc0 LB_poll')
    k.label('LB_go')
    mark(k, 5)
    b_ = md + 16
    for j in range(4): k.I(f'v_mov_b32 v{tx+j}, v{b_+j}')
    for p in (0, 2):
        k.I(f'v_pk_add_f32 {vr(md+p,2)}, {vr(md+p,2)}, {vr(md+4+p,2)}')
        k.I(f'v_pk_add_f32 {vr(md+8+p,2)}, {vr(md+8+p,2)}, {vr(md+12+p,2)}')
    for j in range(4): k.I(f'v_permlane32_swap_b32 v{tx+j}, v{b_+j}')
    for p in (0, 2): k.I(f'v_pk_add_f32 {vr(md+p,2)}, {vr(md+p,2)}, {vr(md+8+p,2)}')
    for p in (0, 2): k.I(f'v_pk_add_f32 {vr(b_+p,2)}, {vr(b_+p,2)}, {vr(tx+p,2)}')
    k.I(f'ds_write_b128 v{gA}, {vr(md,4)} offset:{ML}')
    for j in range(4): k.I(f'v_mov_b32 v{tx+j}, v{b_+j}')
    for j in range(4): k.I(f'v_permlane16_swap_b32 v{tx+j}, v{b_+j}')
    for p in (0, 2): k.I(f'v_pk_add_f32 {vr(b_+p,2)}, {vr(b_+p,2)}, {vr(tx+p,2)}')
    k.I(f'ds_write_b128 v{lB}, {vr(b_,4)} offset:{ML}')
    k.barrier()
    mark(k, 6)
    for p in range(5):
        k.I(f'ds_read2st64_b32 {vr(md+4*p,2)}, v{rm} offset0:{10+2*p} offset1:{11+2*p}')
        k.I(f'ds_read2st64_b32 {vr(md+4*p+2,2)}, v{rm} offset0:{2*p} offset1:{2*p+1}')
    for e in range(10):
        h_ = e & 1; p = e // 2
        k.I(f'v_pk_fma_f32 {vr(xs+2*e,2)}, {vr(xs+2*e,2)}, {vr(md+4*p,2)}, {vr(md+4*p+2,2)} op_sel:[0,{h_},{h_}] op_sel_hi:[1,{h_},{h_}]')
        if e >= 1: k.I(f'v_cvt_pk_bf16_f32 v{dat+e-1}, v{xs+2*e-2}, v{xs+2*e-1}')
    k.I(f'v_cvt_pk_bf16_f32 v{dat+9}, v{xs+18}, v{xs+19}')
    d1 = xs; b2 = xs + 24; d2 = f40
    def s1(T):
        o = []
        for kap in range(3):
            for c in range(2):
                dd = vr(d1 + (2*T+c)*4, 4)
                o.append(f'{MF16} {dd}, {vr(dat+4*kap,4)}, {vr(f40+(2*T+c)*10+4*kap,4)}, {dd if kap else 0}')
        return o
    cm = [rec(cmul4, d1+8*T, d1+8*T+4, cs+4*T, sn+4*T, b2+4*T, tmp, False) for T in range(3)]
    def s2(T): return [f'{MF16} {vr(d2+(2*T+U)*4,4)}, {vr(f16+4*U,4)}, {vr(b2+4*T,4)}, 0' for U in range(2)]
    def wr(T): return [f'ds_write_b64 v{wa}, {vr(d2+(2*T+U)*4+2*h,2)} offset:{(16*T+320*U+40*h)*8}' for U in range(2) for h in range(2)]
    for t in s1(0) + s1(1) + s1(2) + cm[0] + s2(0) + cm[1] + s2(1) + wr(0) + cm[2] + s2(2) + wr(1): k.I(t)
    mark(k, 7)
    k.I('s_mov_b64 exec, 1')
    k.I(f'ds_write_b64 v{wa}, {vr(d2,2)} offset:5120')
    k.I('s_mov_b32 exec_lo, 0x00ff00ff')
    k.I('s_mov_b32 exec_hi, 0x00ff00ff')
    for t in wr(2): k.I(t)
    k.I('s_mov_b64 exec, -1')
    k.barrier()
    mark(k, 8)
    rd = d1; oc = b2
    for rho in range(3):
        for pr in range(2):
            k.I(f'ds_read_b64 {vr(rd+8*rho+4*pr,2)}, v{ru} offset:{pr*PL+1024*rho}')
            k.I(f'ds_read_b64 {vr(rd+8*rho+4*pr+2,2)}, v{rv} offset:{pr*PL+1024*(2-rho)}')
    for rho in range(3):
        for pr in range(2):
            u = rd+8*rho+4*pr; v = u+2
            k.I(f'v_pk_add_f32 {vr(tmp+4*pr,2)}, {vr(u,2)}, {vr(v,2)}')
            k.I(f'v_pk_add_f32 {vr(tmp+4*pr+2,2)}, {vr(u,2)}, {vr(v,2)} neg_lo:[0,1] neg_hi:[0,1]')
        for pr in range(2):
            k.I(f'v_cvt_pk_bf16_f32 v{oc+4*rho+pr}, v{tmp+4*pr}, v{tmp+4*pr+1}')
            k.I(f'v_cvt_pk_bf16_f32 v{oc+4*rho+2+pr}, v{tmp+4*pr+3}, -v{tmp+4*pr+2}')
        k.I(f'buffer_store_dwordx4 {vr(oc+4*rho,4)}, v{so}, s[44:47], s{25+rho} offen{" sc1" if env("XT_SC1", 0) else ""}')
    if PA > XA:
        md = f40
        poison()
    if gen.STAMPS: k.I(f's_add_u32 s2, s2, {boff}')

G6 = env('GEN6', 0)
OLDM = env('OLD_MODR', 0)
CNT = dict(modr=80 if OLDM else 160, wt=N_WT, wgu=N_WGU, wd=N_WD)
K1_SIDE = os.environ.get('K1_SIDE', 'wt,modr').split(',')
C_SIDE = [r for r in ('wgu', 'wd') if r not in K1_SIDE]

MISC_EXTRA = []
def gen_K1():
    k = Kernel('ka_kernel')
    stamp_begin(k)
    k.I(f's_load_dwordx4 s[56:59], s[0:1], {KA["dbg"]}')
    k.I(f's_load_dwordx4 s[8:11], s[0:1], {KA["c"]}')
    k.I(f's_load_dwordx2 s[4:5], s[0:1], {KA["ws"]}')
    k.I(f's_load_dwordx2 s[6:7], s[0:1], {KA["x"]}')
    k.I(f's_load_dwordx4 s[12:15], s[0:1], {KA["wr"]}')
    if 'wgu' in K1_SIDE or env('RAW_PF', 0): k.I(f's_load_dwordx4 s[16:19], s[0:1], {KA["wg"]}')
    if 'wd' in K1_SIDE or env('RAW_PF', 0): k.I(f's_load_dwordx2 s[62:63], s[0:1], {KA["wd"]}')
    boff = 88; n = boff + 256; lo = {}
    for r in K1_SIDE:
        lo[r] = n; n += CNT[r]
    total = n
    st = k.save_state()
    k.I('s_cmp_lg_u32 s2, 0')
    k.I('s_cbranch_scc1 LA_n0')
    k.I('v_mov_b32 v2, 0')
    k.I(f'v_mov_b32 v3, {EPOCH}')
    k.I('v_mov_b32 v5, 1')
    k.I(f's_load_dword s30, s[58:59], {EPOCH}')
    k.srd(24, 58, 0x10000)
    k.srd(52, 56, 256)
    k.I('v_cmp_eq_u32 vcc, 0, v0')
    k.I('s_and_b64 exec, exec, vcc')
    k.I('s_cbranch_execz LA_misc')
    k.I('s_add_u32 s30, s30, 1')
    k.I('v_mov_b32 v4, s30')
    k.I('buffer_store_dwordx2 v[4:5], v2, s[52:55], 0 offen sc1')
    k.I('buffer_store_dword v4, v3, s[24:27], 0 offen sc1')
    k.I('s_branch LA_misc')
    k.label('LA_n0', fresh=True); k.restore_state(st)
    k.I('s_sub_u32 s20, s2, 8')
    k.I('s_cmp_lt_u32 s20, 80')
    k.I('s_cbranch_scc0 LA_disp')
    k.raw('LA_mod:')
    k.I('s_and_b32 s21, s20, 3')
    k.I('s_lshr_b32 s20, s20, 2')
    role_mod4(k, 'LA_end')
    k.label('LA_end')
    stamp_end(k, 0, 4)
    k.label('LA_exit')
    k.I('s_endpgm')
    k.label('LA_disp', fresh=True); k.restore_state(st)
    k.I('s_cmp_lt_u32 s2, 8')
    k.I('s_cbranch_scc1 LA_misc')
    k.I(f's_sub_u32 s20, s2, {boff}')
    k.I('s_cmp_lt_u32 s20, 256')
    k.I('s_cbranch_scc1 LA_B')
    for r in K1_SIDE:
        if r == 'modr' and not OLDM: continue
        k.I(f's_sub_u32 s20, s2, {lo[r]}')
        k.I(f's_cmp_lt_u32 s20, {CNT[r]}')
        k.I(f's_cbranch_scc1 LA_{r}')
    k.I(f's_cmp_ge_u32 s2, {total}')
    k.I('s_cbranch_scc1 LA_exit')
    k.I(f's_sub_u32 s20, s2, {lo["modr"] - 80}')
    k.I('s_branch LA_mod')
    k.label('LA_B', fresh=True); k.restore_state(st)
    role_B4(k, boff)
    stamp_end(k, 0, 4)
    k.I('s_endpgm')
    def modr6():
        k.I('s_and_b32 s21, s20, 7')
        k.I('s_lshl_b32 s21, s21, 1')
        k.I('s_bfe_u32 s22, s20, 0x10003')
        k.I('s_add_u32 s21, s21, s22')
        k.I('s_and_b32 s20, s20, 0x70')
        k.I('s_add_u32 s20, s20, s21')
        k.I('s_add_u32 s20, s20, 40')
        vw, t0, t1 = role_mod(k, 8, 10, 'LA_mr_end')
        k.I('s_lshl_b32 s45, s20, 7')
        k.I(f'v_lshl_add_u32 v{t0}, v0, 2, s45')
        k.I('s_mov_b32 exec_hi, 0')
        k.I(f'buffer_store_dword v{vw}, v{t0}, s[32:35], 0 offen')
        k.label('LA_mr_end')
    fns = dict(wd=lambda: role_wd(k, 62), wgu=lambda: role_wgu(k, 16, 18), wt=lambda: role_wt(k, 12, 14), modr=modr6)
    for r in K1_SIDE:
        if r == 'modr' and not OLDM: continue
        k.label(f'LA_{r}', fresh=True); k.restore_state(st)
        fns[r]()
        if r == 'wt' and env('RAW_PF', 0):
            k.I('s_mov_b64 exec, -1')
            k.I(f's_sub_u32 s20, s2, {lo["wt"]}')
            k.I('s_cmp_ge_u32 s20, 96')
            k.I('s_cbranch_scc1 LA_wt2')
            role_wd(k, 62, pf=True)
            k.label('LA_wt2')
        stamp_end(k, 0, 4)
        k.I('s_endpgm')
    k.label('LA_misc', fresh=True); k.restore_state(st)
    k.I('s_mov_b64 exec, -1')
    if G6:
        k.srd(24, 4, 72 * 128, FLAGS)
        k.I('v_lshlrev_b32 v3, 7, v0')
        k.I('v_mov_b32 v2, 0')
        k.I('buffer_store_dword v2, v3, s[24:27], 0 offen')
        k.srd(32, 4, 4 * D * 4, MODN + 2 * D * 4)
        for j in range(4): k.I(f'v_mov_b32 v{48+j}, -1')
        k.I('v_lshlrev_b32 v3, 4, v0')
        k.I('s_lshl_b32 s30, s2, 12')
        k.I('buffer_store_dwordx4 v[48:51], v3, s[32:35], s30 offen sc1')
    k.I('s_getpc_b64 s[28:29]')
    k.raw('LA_pc:')
    k.I('s_sub_u32 s28, s28, LA_pc-ka_kernel')
    k.I('s_subb_u32 s29, s29, 0')
    k.I('v_lshlrev_b32 v60, 4, v0')
    k.I('v_mov_b32 v61, s29')
    for i in range(NPF):
        k.I('v_min_u32 v6, Lcode_end-ka_kernel-16, v60')
        k.I('v_add_co_u32 v6, vcc, s28, v6')
        k.I('v_addc_co_u32 v7, vcc, 0, v61, vcc')
        k.I(f'global_load_dwordx4 {vr(8+4*i,4)}, v[6:7], off')
        k.I('v_add_u32 v60, 0x1000, v60')
    k.waitcnt(vm=0, lgkm=0)
    if MISC_EXTRA:
        k.I('v_readfirstlane_b32 s30, v0')
        k.I('s_lshl_b32 s31, s2, 8')
        k.I('s_add_u32 s30, s30, s31')
        k.I('s_cmp_lg_u32 s30, 0x100')
        k.I('s_cbranch_scc1 LA_mend')
        MISC_EXTRA[0](k)
        k.label('LA_mend')
    stamp_end(k, 0, 4)
    k.I('s_endpgm')
    print('K1 roles', lo, total)
    return k, (total, 256, 40960 if 'wd' in K1_SIDE else 26112)

def role_modfin(k):
    k.I('s_lshl_b32 s20, s20, 8')
    k.I('v_add_u32 v1, s20, v0')
    k.I('v_lshlrev_b32 v2, 4, v1')
    k.srd(24, 4, 4 * 960 * 16, GR)
    for p in range(4):
        k.I(f's_mov_b32 s21, {960*16*p + 320*16}')
        k.I(f'buffer_load_dwordx4 {vr(4+4*p,4)}, v2, s[24:27], s21 offen')
    k.srd(28, 4, 32 * 256, FLAGS)
    k.I('v_lshlrev_b32 v3, 7, v1')
    k.I('v_mov_b32 v20, 0')
    k.I('buffer_store_dword v20, v3, s[28:31], 0 offen')
    k.srd(32, 4, 4 * D * 4, MODN + 2 * D * 4)
    k.I('s_mov_b32 s60, 0x04000c0c')
    k.I('s_mov_b32 s61, 0x0706000c')
    k.I(f'v_mov_b32 v22, {fhex(1.0 / (2.0 * S * D))}')
    k.I('v_cmp_gt_u32 vcc, 0xa0, v1')
    k.I('v_cndmask_b32 v22, 1.0, v22, vcc')
    k.I('v_subrev_u32 v21, 0x140, v1')
    k.I('v_cmp_gt_u32 vcc, 0xa0, v21')
    k.I('v_mov_b32 v23, 1.0')
    k.I('v_cndmask_b32 v23, 0, v23, vcc')
    for p in range(4): unpack_gran(k, 4+4*p, 21, 60, 61)
    for p in (0, 2):
        k.I(f'v_pk_add_f32 {vr(4+p,2)}, {vr(4+p,2)}, {vr(8+p,2)}')
        k.I(f'v_pk_add_f32 {vr(12+p,2)}, {vr(12+p,2)}, {vr(16+p,2)}')
    for p in (0, 2): k.I(f'v_pk_add_f32 {vr(4+p,2)}, {vr(4+p,2)}, {vr(12+p,2)}')
    for j in range(4): k.I(f'v_cvt_pk_bf16_f32 v{4+j}, v{4+j}, v{4+j}')
    for j in range(4): k.I(f'v_and_b32 v{4+j}, 0xffff0000, v{4+j}')
    for j in range(4): k.I(f'v_add_f32 v{4+j}, v23, v{4+j}')
    for j in range(4): k.I(f'v_cvt_pk_bf16_f32 v{4+j}, v{4+j}, v{4+j}')
    for j in range(4): k.I(f'v_and_b32 v{4+j}, 0xffff0000, v{4+j}')
    for j in range(4): k.I(f'v_mul_f32 v{4+j}, v22, v{4+j}')
    k.I('buffer_store_dwordx4 v[4:7], v2, s[32:35], 0 offen')

def gen_C4():
    k, (g, b, l) = gen_C()
    assert k.out[-2] == 'LC_exit:'
    k.out.pop(); k.out.pop()
    k.I('s_endpgm')
    k.label('LC_exit', fresh=True); k.vm = []; k.lg = []
    k.I(f's_load_dwordx2 s[4:5], s[0:1], {KA["ws"]}')
    k.I(f's_load_dwordx4 s[16:19], s[0:1], {KA["wg"]}')
    k.I(f's_load_dwordx2 s[62:63], s[0:1], {KA["wd"]}')
    st = k.save_state()
    n = 328; lo = {}
    for r in C_SIDE:
        lo[r] = n; n += CNT[r]
        k.I(f's_sub_u32 s20, s2, {lo[r]}')
        k.I(f's_cmp_lt_u32 s20, {CNT[r]}')
        k.I(f's_cbranch_scc1 LC_{r}')
    k.I('s_sub_u32 s20, s2, 321')
    k.I('s_cmp_ge_u32 s20, 3')
    k.I('s_cbranch_scc1 LC_x')
    role_modfin(k)
    k.label('LC_x')
    k.I('s_endpgm')
    fns = dict(wd=lambda: role_wd(k, 62), wgu=lambda: role_wgu(k, 16, 18))
    for r in C_SIDE:
        k.label(f'LC_{r}', fresh=True); k.restore_state(st)
        fns[r]()
        stamp_end(k, 2, 4)
        k.I('s_endpgm')
    print('C roles', lo, n)
    return k, (n if C_SIDE else 324, b, 40960 if 'wd' in C_SIDE else max(l, 24576))

KERNELS = (gen_K1, gen_C4, gen_DEF)
if __name__ == '__main__':
    out = sys.argv[1] if len(sys.argv) > 1 else 'adaLN_cond__spectral_gfnet__glu_gated_bilinear__prompt.s'
    if len(sys.argv) > 2 and sys.argv[2] == 'stamps': gen.STAMPS = True
    build(out, KERNELS)
```

```python
import sys, math, os
import gen, gen2, gen4
from gen import *
from gen2 import *
from gen4 import *
from gen import mark, stamp_begin, stamp_end

N_WT5 = 128
def role_wt5(k, s_wr, s_wi):
    BS = 5136
    va = VAlloc(1)
    vl = va.get(); vo = va.get(); ra = va.get(); dst = va.get(); t0 = va.get()
    lo = va.get(24, 4); hi = va.get(24, 4)
    k.I('v_lshrrev_b32 v1, 6, v0')
    k.I('v_readfirstlane_b32 s22, v1')
    k.I(f'v_and_b32 v{vl}, 63, v0')
    k.I(f'v_lshlrev_b32 v{vo}, 4, v{vl}')
    k.I('s_and_b32 s21, s20, 7')
    k.I('s_bfe_u32 s23, s20, 0x10003')
    k.I('s_bfe_u32 s24, s20, 0x20004')
    k.I('s_lshr_b32 s25, s20, 6')
    k.I('s_lshl_b32 s26, s21, 2')
    k.I('s_add_u32 s26, s26, s22')
    k.I('s_lshl_b32 s26, s26, 3')
    k.I('s_lshl_b32 s27, s24, 1')
    k.I('s_add_u32 s26, s26, s27')
    k.I('s_add_u32 s26, s26, s23')
    k.I(f's_mul_i32 s26, s26, {BS}')
    k.I(f's_mul_i32 s27, s22, {BS}')
    k.I('s_mov_b32 m0, s27')
    k.I('s_cmp_eq_u32 s25, 0')
    k.I(f's_cselect_b32 s28, s{s_wr}, s{s_wi}')
    k.I(f's_cselect_b32 s29, s{s_wr+1}, s{s_wi+1}')
    k.I(f's_mov_b32 s30, {S * 321 * 2}')
    k.I('s_mov_b32 s31, 0x00020000')
    for i in range(4): k.I(f'buffer_load_dwordx4 v{vo}, s[28:31], s26 offen offset:{1024*i} nt lds')
    k.I('s_add_u32 m0, s27, 4096')
    k.I('s_add_u32 s26, s26, 4096')
    k.I(f'buffer_load_dwordx4 v{vo}, s[28:31], s26 offen nt lds')
    k.I('s_mov_b64 exec, 1')
    k.I(f'buffer_load_dwordx4 v{vo}, s[28:31], s26 offen offset:1024 nt lds')
    k.I('s_mov_b64 exec, -1')
    k.I(f'v_and_b32 v{t0}, 3, v0')
    k.I(f'v_mul_u32_u24 v{ra}, 1284, v{t0}')
    k.I(f'v_lshlrev_b32 v{dst}, 4, v{t0}')
    k.I(f'v_lshrrev_b32 v{t0}, 2, v0')
    k.I(f'v_lshl_add_u32 v{ra}, v{t0}, 1, v{ra}')
    k.I(f'v_lshl_add_u32 v{dst}, v{t0}, 13, v{dst}')
    k.srd(32, 4, XT_SZ, WT)
    k.I('s_lshl_b32 s36, s25, 12')
    k.I('s_lshl_b32 s37, s24, 10')
    k.I('s_add_u32 s36, s36, s37')
    k.I('s_lshl_b32 s37, s21, 7')
    k.I('s_add_u32 s36, s36, s37')
    k.I('s_lshl_b32 s37, s23, 6')
    k.I('s_add_u32 s36, s36, s37')
    k.barrier(vm=0)
    def rnd(rho):
        for ii in range(2):
            for rp in range(2):
                j = 4*rho + 2*ii + rp
                k.I(f'ds_read_u16 v{lo+j}, v{ra} offset:{(2*rp)*BS + 642*ii + 128*rho}')
                k.I(f'ds_read_u16 v{hi+j}, v{ra} offset:{(2*rp+1)*BS + 642*ii + 128*rho}')
    def fin(rho):
        for j in range(4): k.I(f'v_lshl_or_b32 v{lo+4*rho+j}, v{hi+4*rho+j}, 16, v{lo+4*rho+j}')
        k.I(f'buffer_store_dwordx4 {vr(lo+4*rho,4)}, v{dst}, s[32:35], s36 offen{WT_ST}')
        k.I(f's_add_u32 s36, s36, {64*8192}')
    rnd(0)
    for rho in range(5):
        if rho < 4: rnd(rho + 1)
        fin(rho)
    k.nlab = getattr(k, 'nlab', 0) + 1
    k.I('s_cmp_lg_u32 s22, 0')
    k.I('s_cbranch_scc1 Lwt_done')
    k.I('s_mov_b64 exec, 15')
    rnd(5); fin(5)
    k.label('Lwt_done')

N_WD5 = 96
def role_wd5(k, s_wd, pf=False):
    va = VAlloc(100 if pf else 1)
    vl = va.get(); t0 = va.get(); t1 = va.get(); ra = va.get(); vo = va.get(); so = va.get(5)
    o = va.get(20, 4)
    k.I(f'v_lshrrev_b32 v{t0}, 6, v0')
    k.I(f'v_and_b32 v{vl}, 63, v0')
    k.I(f'v_readfirstlane_b32 s22, v{t0}')
    k.I(f'v_lshlrev_b32 v{vo}, 4, v{vl}')
    k.I('s_and_b32 s21, s20, 1')
    k.I('s_lshr_b32 s20, s20, 1')
    for p in range(5):
        k.I(f'v_add_u32 v{t0}, {64*p}, v{vl}')
        k.I(f'v_mul_u32_u24 v{t1}, 205, v{t0}')
        k.I(f'v_lshrrev_b32 v{t1}, 13, v{t1}')
        k.I(f'v_mul_u32_u24 v{t1}, 640, v{t1}')
        k.I(f'v_add_u32 v{so+p}, v{t1}, v{vo}')
    k.I('s_lshl_b32 s23, s20, 2')
    k.I('s_add_u32 s23, s23, s22')
    k.I('s_mul_i32 s23, s23, 10240')
    k.I('s_mul_i32 s24, s21, 640')
    k.I('s_add_u32 s23, s23, s24')
    k.I('s_mul_i32 s24, s22, 5120')
    k.I('s_mov_b32 m0, s24')
    k.srd(28, s_wd, F * D * 2)
    if pf:
        for p in range(4): k.I(f'buffer_load_dwordx4 {vr(o+4*p,4)}, v{so+p}, s[28:31], s23 offen offset:{1024*p}')
        k.I('s_add_u32 s23, s23, 4096')
        k.I(f'buffer_load_dwordx4 {vr(o+16,4)}, v{so+4}, s[28:31], s23 offen')
        return
    for p in range(4): k.I(f'buffer_load_dwordx4 v{so+p}, s[28:31], s23 offen offset:{1024*p}{RAW_NT} lds')
    k.I('s_add_u32 m0, s24, 4096')
    k.I('s_add_u32 s23, s23, 4096')
    k.I(f'buffer_load_dwordx4 v{so+4}, s[28:31], s23 offen{RAW_NT} lds')
    k.I(f'v_lshrrev_b32 v{t0}, 4, v{vl}')
    k.I(f'v_bfe_u32 v{t1}, v{vl}, 2, 2')
    k.I(f'v_lshl_add_u32 v{t0}, v{t0}, 3, v{t1}')
    k.I(f'v_mul_u32_u24 v{ra}, 640, v{t0}')
    k.I(f'v_and_b32 v{t0}, 3, v{vl}')
    k.I(f'v_mul_u32_u24 v{t0}, 40, v{t0}')
    k.I('s_mul_i32 s25, s22, 160')
    k.I(f'v_add3_u32 v{ra}, v{ra}, v{t0}, s25')
    k.srd(36, 4, F * D * 2, WD)
    k.I('s_lshl_b32 s26, s21, 2')
    k.I('s_add_u32 s26, s26, s22')
    k.I('s_mul_i32 s26, s26, 48')
    k.I('s_add_u32 s26, s26, s20')
    k.I('s_mul_i32 s40, s26, 5120')
    k.I('s_add_u32 s41, s40, 4096')
    k.barrier(vm=0)
    for dt in range(5):
        for hf in range(2):
            k.I(f'ds_read_b64_tr_b16 {vr(o+dt*4+2*hf,2)}, v{ra} offset:{4*hf*640+8*dt}')
    for dt in range(5):
        k.I(f'buffer_store_dwordx4 {vr(o+dt*4,4)}, v{vo}, s[36:39], s{40+(dt//4)} offen offset:{1024*(dt%4)}{SIDE_ST}')

RAW_NT = '' if env('RAW_PF', 0) else ' nt'
def role_wgu5(k, s_wg, s_wu, pf=False):
    va = VAlloc(100 if pf else 1)
    vl = va.get(); wo = va.get(3); t0 = va.get(); t1 = va.get(); t2 = va.get(); ra = va.get(); r2 = va.get(); vo = va.get()
    o = va.get(24, 4)
    k.I(f'v_lshrrev_b32 v{t0}, 6, v0')
    k.I(f'v_and_b32 v{vl}, 63, v0')
    k.I(f'v_readfirstlane_b32 s22, v{t0}')
    k.I('s_and_b32 s21, s20, 7')
    k.I('s_lshr_b32 s20, s20, 3')
    for p in range(3):
        k.I(f'v_add_u32 v{t0}, {64*p}, v{vl}')
        k.I(f'v_mul_u32_u24 v{t1}, 171, v{t0}')
        k.I(f'v_lshrrev_b32 v{t1}, 12, v{t1}')
        k.I(f'v_mul_u32_u24 v{t1}, 2688, v{t1}')
        k.I(f'v_lshl_add_u32 v{wo+p}, v{vl}, 4, v{t1}')
    k.I('s_lshl_b32 s23, s20, 2')
    k.I('s_add_u32 s23, s23, s22')
    k.I(f's_mul_i32 s23, s23, {8*3072}')
    k.I('s_mul_i32 s24, s21, 384')
    k.I('s_add_u32 s23, s23, s24')
    k.srd(28, s_wg, D * F * 2)
    k.srd(32, s_wu, D * F * 2)
    if pf:
        for p in range(3): k.I(f'buffer_load_dwordx4 {vr(o+4*p,4)}, v{wo+p}, s[28:31], s23 offen offset:{1024*p}')
        for p in range(3): k.I(f'buffer_load_dwordx4 {vr(o+12+4*p,4)}, v{wo+p}, s[32:35], s23 offen offset:{1024*p}')
        return
    k.I('s_mul_i32 s24, s22, 3072')
    k.I('s_mov_b32 m0, s24')
    for p in range(3): k.I(f'buffer_load_dwordx4 v{wo+p}, s[28:31], s23 offen offset:{1024*p}{RAW_NT} lds')
    k.I('s_add_u32 m0, s24, 12288')
    for p in range(3): k.I(f'buffer_load_dwordx4 v{wo+p}, s[32:35], s23 offen offset:{1024*p}{RAW_NT} lds')
    k.I(f'v_lshrrev_b32 v{t0}, 4, v{vl}')
    k.I(f'v_bfe_u32 v{t1}, v{vl}, 2, 2')
    k.I(f'v_lshl_add_u32 v{t0}, v{t0}, 3, v{t1}')
    k.I(f'v_mul_u32_u24 v{ra}, 384, v{t0}')
    k.I('s_mul_i32 s25, s22, 48')
    k.I(f'v_add_u32 v{ra}, s25, v{ra}')
    k.I(f'v_and_b32 v{t0}, 1, v{vl}')
    k.I(f'v_lshl_add_u32 v{r2}, v{t0}, 3, v{ra}')
    k.I(f'v_bfe_u32 v{t0}, v{vl}, 1, 1')
    k.I(f'v_mul_u32_u24 v{t0}, 12288, v{t0}')
    k.I(f'v_add_u32 v{r2}, v{r2}, v{t0}')
    k.I(f'v_and_b32 v{t0}, 3, v{vl}')
    k.I(f'v_lshl_add_u32 v{ra}, v{t0}, 3, v{ra}')
    k.I(f'v_lshlrev_b32 v{vo}, 4, v{vl}')
    k.srd(36, 4, D * 2 * F * 2, WGU)
    k.I('s_lshl_b32 s26, s21, 3')
    k.I('s_add_u32 s26, s26, s22')
    k.I('s_mul_i32 s26, s26, 20')
    k.I('s_add_u32 s26, s26, s20')
    k.I('s_mul_i32 s26, s26, 3072')
    k.I(f's_add_u32 s27, s26, {4*20*3072}')
    k.barrier(vm=0)
    for j in range(2):
        for mt in range(3):
            for hf in range(2):
                off = 4*hf*384 + 192*j + (12288 if mt == 1 else 0) + (32 if mt == 2 else 0)
                k.I(f'ds_read_b64_tr_b16 {vr(o+(3*j+mt)*4+2*hf,2)}, v{r2 if mt == 2 else ra} offset:{off}')
    for j in range(2):
        for mt in range(3):
            k.I(f'buffer_store_dwordx4 {vr(o+(3*j+mt)*4,4)}, v{vo}, s[36:39], s{26+j} offen offset:{1024*mt}{SIDE_ST}')
gen4.role_wgu = role_wgu5

gen4.role_wt = role_wt5; gen4.role_wd = role_wd5
gen4.CNT.update(wt=N_WT5, wd=N_WD5)

def pack6(k, base, cs, sn, alt):
    def op(r, j, neg):
        n = neg ^ (alt and (j & 1))
        return ('-' if n else '') + f'v{r+j}'
    for p in range(2):
        k.I(f'v_cvt_pk_bf16_f32 v{base+p}, {op(sn,2*p,True)}, {op(sn,2*p+1,True)}')
        k.I(f'v_cvt_pk_bf16_f32 v{base+2+p}, {op(cs,2*p,False)}, {op(cs,2*p+1,False)}')
        k.I(f'v_cvt_pk_bf16_f32 v{base+4+p}, {op(sn,2*p,False)}, {op(sn,2*p+1,False)}')
def flip6(base): return [f'v_xor_b32 v{base+j}, s26, v{base+j}' for j in (0, 1, 4, 5)]
WIM, WRE = 0, 2

def zipemit(k, main, fill, per):
    fill = list(fill)
    for m in main:
        k.I(m)
        for _ in range(per):
            if fill: k.I(fill.pop(0))
    for f in fill: k.I(f)

def gen_C5main():
    k = Kernel('kc_kernel')
    stamp_begin(k)
    k.I('s_cmp_ge_u32 s2, 321')
    k.I('s_cbranch_scc1 LC_exit')
    k.I(f's_load_dwordx2 s[4:5], s[0:1], {KA["ws"]}')
    va = VAlloc(2)
    vl = va.get(); vo16 = va.get(); vo8 = va.get(); yo = va.get(); wq = va.get(8, 2)
    k.I('v_lshrrev_b32 v1, 6, v0')
    k.I(f'v_and_b32 v{vl}, 63, v0')
    k.I('v_readfirstlane_b32 s22, v1')
    k.I(f'v_lshlrev_b32 v{vo16}, 4, v{vl}')
    k.I(f'v_lshlrev_b32 v{vo8}, 3, v{vl}')
    k.I('s_and_b32 s20, s2, 7')
    k.I('s_lshl_b32 s20, s20, 2')
    k.I('s_bfe_u32 s21, s2, 0x20003')
    k.I('s_add_u32 s20, s20, s21')
    k.I('s_and_b32 s21, s2, 0x1e0')
    k.I('s_add_u32 s20, s20, s21')
    k.I('s_lshl_b32 s23, s22, 11')
    k.I('s_lshl_b32 s24, s20, 13')
    k.I('s_lshl_b32 s27, s22, 10')
    k.I('s_add_u32 s27, s27, s24')
    k.I('s_add_u32 s28, s27, 4096')
    k.I('s_add_u32 s24, s24, s23')
    k.I('s_mov_b32 m0, s23')
    k.I('s_cmp_eq_u32 s20, 0')
    k.I('s_cselect_b32 s25, 0, 1.0')
    k.I('s_cmp_eq_u32 s20, 320')
    k.I('s_cselect_b32 s25, 0, s25')
    k.I('s_mov_b32 s26, 0x80008000')
    fi = va.get(); fq4 = va.get(); fk = va.get(); fw16 = va.get()
    ta = va.get(2); sg2 = va.get(2, 2); tmp = va.get(8, 2); tc = tmp; ts = tmp + 4
    k.I(f'v_and_b32 v{fi}, 15, v{vl}')
    k.I(f'v_lshrrev_b32 v{yo}, 1, v{fi}')
    k.I(f'v_and_b32 v{fq4}, 0x30, v{vl}')
    k.I(f'v_add_u32 v{yo}, v{yo}, v{fq4}')
    k.I(f'v_mul_u32_u24 v{yo}, {YT_ST}, v{yo}')
    k.I(f'v_and_b32 v{ta}, 1, v{fi}')
    k.I(f'v_lshl_add_u32 v{yo}, v{ta}, 4, v{yo}')
    k.I(f's_mul_i32 s29, s22, {64*YT_ST}')
    k.I('s_lshl_b32 s30, s20, 5')
    k.I('s_add_u32 s29, s29, s30')
    k.I(f's_add_u32 s30, s29, {8*YT_ST}')
    k.I(f'v_lshlrev_b32 v{sg2}, 31, v{fi}')
    k.I(f'v_or_b32 v{sg2}, 1.0, v{sg2}')
    k.I(f'v_cvt_f32_u32 v{fi}, v{fi}')
    k.I(f'v_lshrrev_b32 v{fq4}, 2, v{fq4}')
    k.I(f'v_cvt_f32_u32 v{fq4}, v{fq4}')
    k.I(f'v_lshlrev_b32 v{fw16}, 4, v1')
    k.I(f'v_cvt_f32_u32 v{fw16}, v{fw16}')
    k.I(f'v_add_f32 v{fk}, v{fw16}, v{fi}')
    def angles(step_reg, scale, base_add, dst, q=None):
        k.I(f'v_mul_f32 v{ta}, {fhex(scale)}, v{step_reg}')
        k.I(f'v_mul_f32 v{ta+1}, v{fq4 if q is None else q}, v{ta}')
        for j in range(4): k.I(f'v_fmamk_f32 v{dst+j}, v{ta}, {fhex(float(base_add + j))}, v{ta+1}')
    def sincos(c, s):
        for j in range(4):
            k.I(f'v_cos_f32 v{c+j}, v{s+j}')
            k.I(f'v_sin_f32 v{s+j}, v{s+j}')
    def flip(c, s):
        for p in (0, 2):
            k.I(f'v_pk_mul_f32 {vr(c+p,2)}, {vr(c+p,2)}, {vr(sg2,2)} op_sel_hi:[1,0]')
            k.I(f'v_pk_mul_f32 {vr(s+p,2)}, {vr(s+p,2)}, {vr(sg2,2)} op_sel_hi:[1,0]')
    f64 = va.get(24, 2); f32 = va.get(24, 2)
    c1 = va.get(8, 2); s1 = va.get(8, 2); c2 = va.get(8, 2); s2 = va.get(8, 2)
    for kap in range(2):
        angles(fk, 1.0/64, 16*kap, ts); sincos(tc, ts)
        pack6(k, f64+6*kap, tc, ts, False)
        flip(tc, ts)
        pack6(k, f64+6*(kap+2), tc, ts, False)
        if kap == 0:
            k.srd(8, 4, XT_SZ, XT)
            k.srd(12, 4, XT_SZ, WT)
            k.I(f'buffer_load_dwordx4 v{vo16}, s[8:11], s24 offen lds', tag='x')
            k.I(f'buffer_load_dwordx4 v{vo16}, s[8:11], s24 offen offset:1024 lds', tag='x')
            for V in range(2):
                k.I(f'buffer_load_dwordx2 {vr(wq+2*V,2)}, v{vo8}, s[12:15], s27 offen offset:{512*V}')
                k.I(f'buffer_load_dwordx2 {vr(wq+4+2*V,2)}, v{vo8}, s[12:15], s28 offen offset:{512*V}')
            k.srd(16, 4, 256 * YT_ST, YT)
            mark(k, 1)
    for N in range(2):
        angles(fk, 1.0/2048, 16*N, s1+4*N); sincos(c1+4*N, s1+4*N)
    angles(fi, 1.0/32, 0, ts); sincos(tc, ts)
    pack6(k, f32+0, tc, ts, False)
    pack6(k, f32+12, tc, ts, True)
    flip(tc, ts)
    pack6(k, f32+6, tc, ts, False)
    pack6(k, f32+18, tc, ts, True)
    k.I(f'v_add_f32 v{fw16}, v{fw16}, v{fq4}')
    for N in range(2):
        if N: k.I(f'v_add_f32 v{fi}, {fhex(16.0)}, v{fi}')
        angles(fi, 1.0/2048, 0, s2+4*N, q=fw16); sincos(c2+4*N, s2+4*N)
    wa = fk
    k.I(f'v_add_u32 v{wa}, s23, v{vo16}')
    mark(k, 2)
    k.wait_tag('x')
    k.I('s_barrier')
    mark(k, 3)
    dat = va.get(32, 4); acc = va.get(16, 4); pk = va.get(8, 4)
    acc2 = dat; pk2 = dat + 16
    for N in range(2):
        for kap in range(4):
            k.I(f'ds_read_b128 {vr(dat+(2*kap+N)*4,4)}, v{vo16} offset:{2048*kap+1024*N}')
    for N in range(2):
        for kap in range(4):
            for c in range(2):
                dd = vr(acc+(2*N+c)*4, 4)
                k.I(f'{MF16} {dd}, {vr(dat+(2*kap+N)*4,4)}, {vr(f64+6*kap+(WIM if c else WRE),4)}, {dd if kap else 0}')
    for N in range(2):
        cmul4(k, acc+8*N, acc+8*N+4, c1+4*N, s1+4*N, pk+4*N, tmp, False)
        if N == 0: continue
    ms = []
    for N in range(2):
        for V in range(2):
            for c in range(2):
                dd = vr(acc2+(2*V+c)*4, 4)
                ms.append(f'{MF16} {dd}, {vr(f32+(2*V+N)*6+(WIM if c else WRE),4)}, {vr(pk+4*N,4)}, {dd if N else 0}')
    wr_ = c1; wi_ = s1
    fl = []
    for j in range(4):
        fl.append(f'v_lshlrev_b32 v{wr_+2*j}, 16, v{wq+j}')
        fl.append(f'v_and_b32 v{wr_+2*j+1}, 0xffff0000, v{wq+j}')
        fl.append(f'v_lshlrev_b32 v{wi_+2*j}, 16, v{wq+4+j}')
        fl.append(f'v_and_b32 v{wi_+2*j+1}, 0xffff0000, v{wq+4+j}')
    zipemit(k, ms, fl, 2)
    mark(k, 4)
    for w_ in range(4):
        for f in flip6(f32+6*w_)[:2 if w_ >= 2 else 4]: k.I(f)
    for V in range(2):
        cmul4(k, acc2+8*V, acc2+8*V+4, wr_+4*V, wi_+4*V, pk2+4*V, tmp, True)
        if V == 0:
            for w_ in (2, 3):
                for f in flip6(f32+6*w_)[2:]: k.I(f)
    ms = []
    for V in range(2):
        for N in range(2):
            for c in range(2):
                dd = vr(acc+(2*N+c)*4, 4)
                ms.append(f'{MF16} {dd}, {vr(pk2+4*V,4)}, {vr(f32+(2*N+V)*6+(WIM if c else WRE),4)}, {dd if V else 0}')
    fl = []
    for kap in range(4): fl += flip6(f64+6*kap)
    zipemit(k, ms, fl, 2)
    mark(k, 5)
    for N in range(2):
        cmul4(k, acc+8*N, acc+8*N+4, c2+4*N, s2+4*N, pk+4*N, tmp, True)
        k.I(f'ds_write_b128 v{wa}, {vr(pk+4*N,4)} offset:{8192+1024*N}')
    k.barrier()
    mark(k, 6)
    for N in range(2):
        for kap in range(4):
            k.I(f'ds_read_b128 {vr(dat+(2*kap+N)*4,4)}, v{vo16} offset:{8192+2048*kap+1024*N}')
    for N in range(2):
        for kap in range(4):
            for c in range(2):
                dd = vr(acc+(2*N+c)*4, 4)
                k.I(f'{MF16} {dd}, {vr(f64+6*kap+(WIM if c else WRE),4)}, {vr(dat+(2*kap+N)*4,4)}, {dd if kap else 0}')
    for N in range(2):
        re = acc+8*N; im = re+4
        for p in range(2):
            a, b = 2*p, 2*p+1
            k.I(f'v_fma_f32 v{tmp+4*p+0}, -s25, v{im+b}, v{re+a}')
            k.I(f'v_fma_f32 v{tmp+4*p+1}, s25, v{im+a}, v{re+b}')
            k.I(f'v_fma_f32 v{tmp+4*p+2}, s25, v{im+b}, v{re+a}')
            k.I(f'v_fma_f32 v{tmp+4*p+3}, -s25, v{im+a}, v{re+b}')
        for j in range(4):
            k.I(f'v_cvt_pk_bf16_f32 v{pk+4*N+j}, v{tmp+2*j}, v{tmp+2*j+1}')
        k.I(f'buffer_store_dwordx4 {vr(pk+4*N,4)}, v{yo}, s[16:19], s{29+N} offen{" sc1" if env("YT_SC1", 0) else ""}')
    stamp_end(k, 2, 4)
    k.label('LC_exit')
    k.I('s_endpgm')
    return k, (321, 256, 16384)
gen4.gen_C = gen_C5main
def gen_C5():
    k, (g, b, l) = gen4.gen_C4()
    return k, (g, b, 24576)
def gen_K15():
    k, (g, b, l) = gen4.gen_K1()
    return k, (g, b, env('K1_LDS', 26112))

from def5 import gen_DEF5
from def7 import gen_DEF7, role_tab
from def8 import gen_DEF8
gen4.MISC_EXTRA.append(role_tab)
KERNELS = (gen_K15, gen_C5, gen_DEF8 if env('POISON', 1) else gen_DEF7)
if __name__ == '__main__':
    out = sys.argv[1] if len(sys.argv) > 1 else 'adaLN_cond__spectral_gfnet__glu_gated_bilinear__prompt.s'
    if len(sys.argv) > 2 and sys.argv[2] == 'stamps': gen.STAMPS = True
    build(out, KERNELS)
```

```python
import sys, os
os.environ.setdefault('K1_SIDE', 'wt,modr,wgu,wd1')
os.environ['GEN6'] = '1'
if os.environ.get('HALF') == '1': os.environ.setdefault('CNT_wgu', '80')
import gen, gen2, gen4, gen5
from gen import *
from def9 import gen_DEF9
KERNELS = (gen5.gen_K15, gen_DEF9)
if __name__ == '__main__':
    out = sys.argv[1] if len(sys.argv) > 1 else 'adaLN_cond__spectral_gfnet__glu_gated_bilinear__prompt.s'
    if len(sys.argv) > 2 and sys.argv[2] == 'stamps': gen.STAMPS = True
    build(out, KERNELS)
```

```python
import re

TRANS = ('v_exp_f32', 'v_log_f32', 'v_rcp_f32', 'v_rsq_f32', 'v_sqrt_f32', 'v_sin_f32', 'v_cos_f32', 'v_rcp_iflag_f32')
REG_RE = re.compile(r'^(-|abs\()?(\|)?([vas])(?:(\d+)|\[(\d+):(\d+)\])\|?\)?$')

def parse_reg(tok):
    tok = tok.strip()
    if tok in ('vcc', 'vcc_lo', 'vcc_hi'): return [('vcc', 0)]
    if tok in ('exec', 'exec_lo', 'exec_hi'): return [('exec', 0)]
    if tok == 'm0': return [('m0', 0)]
    m = REG_RE.match(tok)
    if not m: return []
    k = m.group(3)
    if m.group(4) is not None: return [(k, int(m.group(4)))]
    return [(k, i) for i in range(int(m.group(5)), int(m.group(6)) + 1)]

def split_ops(s):
    out, depth, cur = [], 0, ''
    for ch in s:
        if ch in '[(': depth += 1
        if ch in '])': depth -= 1
        if ch == ',' and depth == 0:
            out.append(cur.strip()); cur = ''
        else: cur += ch
    if cur.strip(): out.append(cur.strip())
    return out

class Ins:
    __slots__ = ('text', 'op', 'rd', 'wr', 'cls', 'srcc', 'ab', 'passes', 'dpp', 'data', 'lds_dma', 'states', 'tag')
    def __init__(self, text):
        self.text = text
        t = text.split(';')[0].strip()
        parts = t.split(None, 1)
        self.op = op = parts[0]
        rest = parts[1] if len(parts) > 1 else ''
        ops = split_ops(rest)
        mods = ''
        if ops:
            last = ops[-1]
            depth = 0
            for i, ch in enumerate(last):
                if ch in '[(': depth += 1
                if ch in '])': depth -= 1
                if ch == ' ' and depth == 0:
                    mods = last[i + 1:]; ops[-1] = last[:i]; break
        self.rd, self.wr = [], []
        self.srcc, self.ab, self.passes, self.dpp, self.data, self.lds_dma = [], [], 0, False, [], False
        self.states = 1
        self.tag = None
        R = [parse_reg(o) for o in ops]
        base = op.replace('_e32', '').replace('_e64', '').replace('_dpp', '').replace('_sdwa', '')
        if op.startswith('v_mfma'):
            self.cls = 'mfma'
            self.wr = R[0]; self.ab = R[1] + R[2]; self.srcc = R[3]
            self.rd = self.ab + self.srcc
            self.passes = 8 if '32x32x16' in op else 4
            assert '32x32x16' in op or '16x16x32' in op, op
        elif op.startswith('v_'):
            self.cls = 'trans' if base in TRANS else 'valu'
            self.dpp = op.endswith('_dpp') or 'row_' in mods or 'quad_perm' in mods
            if base.startswith('v_cmpx'):
                self.wr = R[0] + [('exec', 0)]; self.rd = sum(R[1:], [])
            elif base.startswith('v_cmp'):
                self.wr = R[0]; self.rd = sum(R[1:], [])
            elif base in ('v_add_co_u32', 'v_sub_co_u32', 'v_subrev_co_u32', 'v_addc_co_u32', 'v_subb_co_u32', 'v_mad_u64_u32', 'v_div_scale_f32'):
                self.wr = R[0] + R[1]; self.rd = sum(R[2:], [])
            elif base.startswith('v_permlane') and 'swap' in base:
                self.wr = R[0] + R[1]; self.rd = R[0] + R[1]; self.cls = 'permlane'
            elif base in ('v_readlane_b32', 'v_readfirstlane_b32'):
                self.wr = R[0]; self.rd = sum(R[1:], []); self.cls = 'readlane'
            elif base == 'v_nop':
                pass
            else:
                self.wr = R[0]; self.rd = sum(R[1:], [])
                if base in ('v_fmac_f32', 'v_dot2c_f32_bf16', 'v_writelane_b32', 'v_pk_fmac_f16') or self.dpp:
                    self.rd = self.rd + R[0]
                if base == 'v_cndmask_b32' and len(ops) == 3: self.rd = self.rd + [('vcc', 0)]
        elif op.startswith('buffer_') or op.startswith('global_'):
            self.cls = 'vmem'
            toks = mods.split()
            if op.startswith('buffer_load') and 'lds' in toks:
                self.lds_dma = True; self.rd = sum(R, []) + [('m0', 0)]
            elif op.startswith('global_load_lds'):
                self.lds_dma = True; self.rd = sum(R, []) + [('m0', 0)]
            elif '_load' in op:
                self.wr = R[0]; self.rd = sum(R[1:], [])
                if 'd16' in op: self.rd = self.rd + R[0]
            elif op.startswith('buffer_store'):
                self.rd = sum(R, []); self.data = R[0]
            elif op.startswith('global_store'):
                self.rd = sum(R, []); self.data = R[1]
            elif op.startswith('buffer_atomic'):
                self.rd = sum(R, [])
                if 'sc0' in toks: self.wr = R[0]
            elif op in ('buffer_wbl2', 'buffer_inv'):
                pass
            else:
                raise ValueError('unhandled vmem ' + text)
        elif op.startswith('ds_'):
            self.cls = 'ds'
            if op.startswith('ds_read') or op.startswith('ds_bpermute') or op.startswith('ds_swizzle') or op.startswith('ds_permute') or '_rtn' in op:
                self.wr = R[0]; self.rd = sum(R[1:], [])
                if 'd16' in op: self.rd = self.rd + R[0]
            else:
                self.rd = sum(R, [])
        elif op.startswith('s_load') or op.startswith('s_buffer_load') or op in ('s_memtime', 's_memrealtime'):
            self.cls = 'smem'; self.wr = R[0]; self.rd = sum(R[1:], [])
        elif op == 's_nop':
            self.cls = 'nop'; self.states = int(ops[0], 0) + 1
        elif op == 's_waitcnt':
            self.cls = 'wait'
        elif op in ('s_barrier', 's_endpgm', 's_sleep', 's_setprio'):
            self.cls = 'misc'
        elif op.startswith('s_cbranch') or op == 's_branch':
            self.cls = 'branch'
        elif op.startswith('s_cmp') or op.startswith('s_bitcmp'):
            self.cls = 'salu'; self.rd = sum(R, [])
        elif op.startswith('s_'):
            self.cls = 'salu'; self.wr = R[0]; self.rd = sum(R[1:], [])
            if 'saveexec' in op: self.wr = self.wr + [('exec', 0)]; self.rd = self.rd + [('exec', 0)]
            if op in ('s_addk_i32', 's_mulk_i32'): self.rd = self.rd + R[0]
        else:
            raise ValueError('unhandled ' + text)

VALUISH = ('valu', 'trans', 'permlane', 'readlane')

def need_states(p, c):
    n = 0
    pw = set(p.wr); cr = set(c.rd); cw = set(c.wr)
    pwv = {r for r in pw if r[0] in 'va'}
    pws = {r for r in pw if r[0] in ('s', 'vcc')}
    if p.cls in VALUISH:
        if c.cls == 'mfma' and pwv & cr: n = max(n, 2)
        if c.cls in VALUISH and c.dpp and pwv & cr: n = max(n, 2)
        if c.cls == 'readlane' and pwv & cr: n = max(n, 1)
        if c.cls == 'permlane' and pwv & cr: n = max(n, 2)
        if p.cls == 'trans' and c.cls in VALUISH and c.cls != 'trans' and pwv & cr: n = max(n, 1)
        if p.cls == 'trans' and c.cls in ('vmem', 'ds') and pwv & cr: n = max(n, 1)
        if pws & cr:
            if c.cls == 'vmem': n = max(n, 5)
            elif c.cls == 'readlane' or c.op.startswith('v_writelane'): n = max(n, 4)
            elif c.cls in VALUISH or c.cls == 'mfma': n = max(n, 2)
            elif c.cls in ('salu', 'smem'): n = max(n, 1)
        if ('vcc', 0) in pw and c.op in ('s_cbranch_vccz', 's_cbranch_vccnz'): n = max(n, 5)
        if ('exec', 0) in pw:
            if c.cls in VALUISH and c.dpp: n = max(n, 5)
            if c.cls in ('mfma', 'permlane', 'readlane'): n = max(n, 4)
            if ('exec', 0) in cr: n = max(n, 2)
            if c.op in ('s_cbranch_execz', 's_cbranch_execnz'): n = max(n, 5)
    if p.cls == 'mfma':
        big = {4: 8, 8: 12}[p.passes]
        if c.cls == 'mfma':
            if pw & set(c.ab): n = max(n, big)
            if pw & set(c.srcc):
                if list(p.wr) == list(c.srcc) and p.passes == c.passes: pass
                else: n = max(n, {4: 6, 8: 10}[p.passes])
            elif pw & cw: n = max(n, big)
        elif c.cls in VALUISH or c.cls in ('vmem', 'ds'):
            if pw & (cr | cw): n = max(n, big)
            if set(p.srcc) & cw: n = max(n, {4: 3, 8: 7}[p.passes])
    if p.cls == 'vmem' and len(p.data) >= 3 and set(p.data) & cw:
        n = max(n, 2 if c.cls in VALUISH else 1)
    if p.cls == 'salu' and ('m0', 0) in pw and c.cls == 'vmem' and c.lds_dma: n = max(n, 1)
    return n

class MultiTag:
    def __init__(self, tags):
        self.tags = []
        for t in tags: self.tags += t.tags if isinstance(t, MultiTag) else [t]
    def __eq__(self, o): return o in self.tags
    def __hash__(self): return 0

class Kernel:
    def __init__(self, name):
        self.name = name
        self.out = []
        self.hist = []
        self.vm = []
        self.lg = []
        self.maxv = -1; self.maxs = -1; self.maxa = -1
        self.auto = True
        self.nins = 0
        self.br_state = {}; self.seen_labels = set()
        self.bg = []; self.bg_every = 0; self.bg_cnt = 0; self._in_bg = False
    def raw(self, s): self.out.append(s)
    def comment(self, s): self.out.append('    ; ' + s)
    def _push(self, ins):
        self.out.append('    ' + ins.text)
        self.hist.append(ins)
        if len(self.hist) > 24: self.hist.pop(0)
        self.nins += 1
    def _nop(self, n):
        while n > 0:
            k = min(n, 16)
            self._push(Ins(f's_nop {k - 1}')); n -= k
    def _hazard(self, ins):
        need = 0; dist = 0
        for p in reversed(self.hist):
            n = need_states(p, ins)
            if n > dist: need = max(need, n - dist)
            dist += p.states
            if dist >= 20: break
        if need: self._nop(need)
    def waitcnt(self, vm=None, lgkm=None):
        parts = []
        if vm is not None:
            vm = min(vm, 63)
            parts.append(f'vmcnt({vm})')
            if len(self.vm) > vm: self.vm = self.vm[len(self.vm) - vm:] if vm else []
        if lgkm is not None:
            lgkm = min(lgkm, 15)
            parts.append(f'lgkmcnt({lgkm})')
            if len(self.lg) > lgkm: self.lg = self.lg[len(self.lg) - lgkm:] if lgkm else []
        self._push(Ins('s_waitcnt ' + ' '.join(parts)))
    def wait_tag(self, tag):
        idx = [i for i, (_, t) in enumerate(self.vm) if t == tag]
        if idx: self.waitcnt(vm=len(self.vm) - 1 - idx[-1])
    def I(self, text, tag=None, noflush=False):
        ins = Ins(text)
        for k, n in ins.rd + ins.wr:
            if k == 'v': self.maxv = max(self.maxv, n)
            if k == 's': self.maxs = max(self.maxs, n)
            if k == 'a': self.maxa = max(self.maxa, n)
        assert ins.cls != 'wait', 'use waitcnt()'
        if self.auto:
            touched = set(ins.rd) | set(ins.wr)
            vmw = None; lgw = None
            for i in range(len(self.vm) - 1, -1, -1):
                if self.vm[i][0] & touched:
                    vmw = len(self.vm) - 1 - i; break
            for i in range(len(self.lg) - 1, -1, -1):
                if self.lg[i][0] & touched:
                    lgw = len(self.lg) - 1 - i
                    if any(s for _, s in self.lg): lgw = 0
                    break
            if vmw is not None or lgw is not None: self.waitcnt(vm=vmw, lgkm=lgw)
        if ins.cls == 'branch' and not noflush:
            self.flush()
        self._hazard(ins)
        self._push(ins)
        if ins.cls == 'branch':
            tgt = text.split()[-1]
            if tgt not in self.seen_labels: self.br_state.setdefault(tgt, []).append(self.save_state())
        if ins.cls == 'vmem' and ins.op not in ('buffer_wbl2', 'buffer_inv'): self.vm.append((set(ins.wr), tag))
        elif ins.cls == 'vmem': self.vm.append((set(), tag))
        if ins.cls == 'ds': self.lg.append((set(ins.wr), False))
        if ins.cls == 'smem': self.lg.append((set(ins.wr), True))
        if self.bg and self.bg_every and not self._in_bg and ins.cls not in ('branch',):
            self.bg_cnt += 1
            if self.bg_cnt >= self.bg_every:
                self.bg_cnt = 0
                self.emit_bg(1)
    def emit_bg(self, n):
        self._in_bg = True
        for _ in range(n):
            if not self.bg: break
            grp = self.bg.pop(0)
            for t in grp:
                if isinstance(t, tuple): self.I(t[0], tag=t[1])
                else: self.I(t)
        self._in_bg = False
    def flush(self):
        need = 0; dist = 0
        for p in reversed(self.hist):
            w = 0
            if p.cls == 'mfma': w = {4: 8, 8: 12}[p.passes]
            elif p.cls in VALUISH:
                w = 5 if any(r[0] in ('s', 'vcc', 'exec') for r in p.wr) else 2
            elif p.cls == 'vmem' and len(p.data) >= 3: w = 2
            elif p.cls == 'salu' and ('m0', 0) in p.wr: w = 1
            if w > dist: need = max(need, w - dist)
            dist += p.states
            if dist >= 20: break
        if need > 1: self._nop(need - 1)
    def label(self, name, fresh=False):
        if not fresh:
            self.flush(); self._nop(1) if False else None
        self.out.append(name + ':')
        self.seen_labels.add(name)
        if fresh: self.hist = []
        states = self.br_state.pop(name, [])
        if not fresh: states = states + [self.save_state()]
        if states:
            self.vm = self._merge([st[0] for st in states], (set(), None))
            self.lg = self._merge([st[1] for st in states], (set(), False))
    @staticmethod
    def _merge(lists, pad):
        young = {}; obj = {}
        for l in lists:
            for i, e in enumerate(l):
                y = len(l) - 1 - i
                young[id(e)] = min(young.get(id(e), y), y); obj[id(e)] = e
        if not young: return []
        n = max(young.values()) + 1
        slots = [[] for _ in range(n)]
        for k_, y in young.items(): slots[n - 1 - y].append(obj[k_])
        out = []
        for sl in slots:
            if not sl: out.append((set(), pad[1]))
            elif len(sl) == 1: out.append(sl[0])
            else:
                regs = set().union(*[e[0] for e in sl])
                if pad[1] is False: out.append((regs, any(e[1] for e in sl)))
                else:
                    tags = [e[1] for e in sl if e[1] is not None]
                    out.append((regs, MultiTag(tags) if len(tags) > 1 else (tags[0] if tags else None)))
        return out
    def save_state(self): return (list(self.vm), list(self.lg))
    def restore_state(self, st): self.vm, self.lg = list(st[0]), list(st[1])
    def barrier(self, vm=None, lgkm=0):
        self.waitcnt(vm=vm, lgkm=lgkm)
        self.I('s_barrier')
    def srd(self, d, base, nbytes, off=0):
        if off:
            self.I(f's_add_u32 s{d}, s{base}, {off}')
            self.I(f's_addc_u32 s{d+1}, s{base+1}, 0')
        else:
            self.I(f's_mov_b32 s{d}, s{base}')
            self.I(f's_mov_b32 s{d+1}, s{base+1}')
        self.I(f's_mov_b32 s{d+2}, {nbytes}')
        self.I(f's_mov_b32 s{d+3}, 0x00020000')
    def text(self):
        hdr = f'.globl {self.name}\n.p2align 8\n.type {self.name},@function\n{self.name}:\n'
        return hdr + '\n'.join(self.out) + '\n'
    def descriptor(self, min_vgpr=0):
        nv = max(self.maxv + 1, 4)
        acc = (nv + 3) // 4 * 4
        tot = acc + self.maxa + 1 if self.maxa >= 0 else nv
        tot = max(tot, min_vgpr)
        assert acc <= 256 and tot <= 512, (self.name, acc, tot)
        return f""".p2align 6
.amdhsa_kernel {self.name}
  .amdhsa_next_free_vgpr {tot}
  .amdhsa_next_free_sgpr {max(self.maxs + 1, 16)}
  .amdhsa_accum_offset {acc}
  .amdhsa_group_segment_fixed_size 0
  .amdhsa_kernarg_size 96
  .amdhsa_user_sgpr_count 2
  .amdhsa_user_sgpr_kernarg_segment_ptr 1
  .amdhsa_system_sgpr_workgroup_id_x 1
.end_amdhsa_kernel
"""

class VAlloc:
    def __init__(self, start=1, limit=256): self.n = start; self.limit = limit
    def get(self, cnt=1, align=1):
        if cnt >= 2 and align == 1: align = 2
        self.n = (self.n + align - 1) // align * align
        r = self.n; self.n += cnt
        assert self.n <= self.limit, 'out of vgprs'
        return r

def vr(a, n): return f'v[{a}:{a+n-1}]' if n > 1 else f'v{a}'
def ar(a, n): return f'a[{a}:{a+n-1}]' if n > 1 else f'a{a}'
import struct
def fhex(f): return '0x%08x' % struct.unpack('<I', struct.pack('<f', f))[0]
```

```python
import os, math
import gen
from gen import *
from gen2 import *
from gen4 import YT, YT_ST, WS_END4, GR, unpack_gran
from gen import mark, stamp_begin, stamp_end

class Rec:
    def __init__(self): self.l = []
    def I(self, t, **kw): self.l.append(t)
def rec(fn, *a):
    r = Rec(); fn(r, *a); return r.l
def merge(k, main, fill, per):
    fill = list(fill)
    for m in main:
        k.I(m)
        for _ in range(per):
            if fill: k.I(fill.pop(0))
    return fill

import re as _re
def unpk(t):
    if isinstance(t, tuple) or not t.startswith('v_pk_'): return [t]
    m = _re.match(r'v_pk_(\w+)_f32 (.*)$', t)
    regs = [int(x) for x in _re.findall(r'v\[(\d+):\d+\]', m.group(2))]
    if m.group(1) == 'fma' and regs[0] == regs[3]: return [f'v_fmac_f32 v{regs[0]+j}, v{regs[1]+j}, v{regs[2]+j}' for j in range(2)]
    if m.group(1) == 'fma': return [f'v_fma_f32 v{regs[0]+j}, v{regs[1]+j}, v{regs[2]+j}, v{regs[3]+j}' for j in range(2)]
    return [f'v_{m.group(1)}_f32 v{regs[0]+j}, v{regs[1]+j}, v{regs[2]+j}' for j in range(2)]
def pairs(lst):
    out = []
    for t in lst:
        u = unpk(t)
        if len(u) == 2 and 'v_fma_' in u[0]: out += [[u[0]], [u[1]]]
        else: out.append(u)
    return out
def signal(k, name, cnt_sgpr, vtmp, noflush=False):
    k.I('s_barrier')
    st = k.save_state()
    k.I('s_cmp_lg_u32 s22, 0')
    k.I(f's_cbranch_scc1 L{name}_sig', noflush=noflush)
    k.I('s_mov_b64 exec, 1')
    k.I(f'buffer_atomic_add v{vtmp+1}, v{vtmp}, s[12:15], s{cnt_sgpr} offen sc1')
    k.I('s_mov_b64 exec, -1')
    if noflush: k.raw(f'L{name}_sig:')
    else: k.label(f'L{name}_sig')
    k.restore_state(st)
    k.vm.append((set(), None)) if False else None
def poll(k, name, cnt_sgpr, vtmp, vres):
    st = k.save_state()
    k.I('s_cmp_lg_u32 s22, 3')
    k.I(f's_cbranch_scc1 L{name}_done')
    k.I('s_mov_b32 s24, 0x100000')
    k.label(f'L{name}_poll')
    k.I(f'buffer_load_dword v{vres}, v{vtmp}, s[12:15], s{cnt_sgpr} offen sc1')
    k.waitcnt(vm=0)
    k.I(f'v_readfirstlane_b32 s33, v{vres}')
    k.I('s_sub_u32 s24, s24, 1')
    k.I(f's_cbranch_scc1 L{name}_done')
    k.I('s_cmp_lt_u32 s33, 16')
    k.I(f's_cbranch_scc1 L{name}_poll')
    k.label(f'L{name}_done')
    k.restore_state(st)
    k.I('s_barrier')

TAB = WS_END4
WS_END6 = TAB + 24 * 1024
class Fix:
    def __init__(self, seq): self.seq = list(seq)
    def get(self, *a): return self.seq.pop(0)
def role_tab(k):
    c0 = 24; f40 = c0; f16 = c0 + 62; cs = c0 + 68; sn = c0 + 80
    vi, vq, fi, fq, fq4, vo, t8, tmp = 2, 3, 4, 5, 6, 7, 8, 16
    k.I(f'v_and_b32 v{vi}, 15, v0')
    k.I(f'v_lshrrev_b32 v{vq}, 4, v0')
    k.I(f'v_cvt_f32_u32 v{fi}, v{vi}')
    k.I(f'v_cvt_f32_u32 v{fq}, v{vq}')
    k.I(f'v_mul_f32 v{fq4}, 4.0, v{fq}')
    k.I(f'v_lshlrev_b32 v{vo}, 4, v0')
    gen_f40(k, Fix([f40, t8, t8+4, t8+6]), fi, fq, True)
    gen_tw640(k, Fix([cs, sn, t8]), fi, fq4)
    k.I(f'v_cmp_gt_u32 vcc, 8, v{vi}')
    for r in range(4):
        k.I(f'v_cndmask_b32 v{cs+8+r}, 0, v{cs+8+r}, vcc')
        k.I(f'v_cndmask_b32 v{sn+8+r}, 0, v{sn+8+r}, vcc')
    k.I(f'v_mul_f32 v{t8}, {fhex(1.0/16)}, v{fi}')
    k.I(f'v_mul_f32 v{t8+1}, v{fq4}, v{t8}')
    for j in range(4): k.I(f'v_fmamk_f32 v{tmp+4+j}, v{t8}, {fhex(float(j))}, v{t8+1}')
    for j in range(4):
        k.I(f'v_cos_f32 v{tmp+j}, v{tmp+4+j}')
        k.I(f'v_sin_f32 v{tmp+4+j}, v{tmp+4+j}')
    for p in range(2):
        k.I(f'v_cvt_pk_bf16_f32 v{f16+p}, v{tmp+4+2*p}, v{tmp+5+2*p}')
        k.I(f'v_cvt_pk_bf16_f32 v{f16+2+p}, v{tmp+2*p}, v{tmp+1+2*p}')
        k.I(f'v_cvt_pk_bf16_f32 v{f16+4+p}, -v{tmp+4+2*p}, -v{tmp+5+2*p}')
    k.srd(24, 4, 23 * 1024, TAB)
    for i in range(23):
        if i % 4 == 0: k.I(f's_mov_b32 s28, {1024*i}')
        k.I(f'buffer_store_dwordx4 {vr(c0+4*i,4)}, v{vo}, s[24:27], s28 offen offset:{1024*(i%4)}')

XNT = ' nt' if os.environ.get('XNT') == '1' else ''
_mark = mark
def mark(k, i):
    if not env('MF', 0): _mark(k, i)
def fm(k, i):
    if env('MF', 0) == 1: _mark(k, i)
def pm(k, i):
    if env('MF', 0) == 3: _mark(k, i)
def em(k, i):
    if env('MF', 0) == 2: _mark(k, i)
def pack6(k, base, cs, sn, alt):
    def op(r, j, neg):
        n = neg ^ (alt and (j & 1))
        return ('-' if n else '') + f'v{r+j}'
    for p in range(2):
        k.I(f'v_cvt_pk_bf16_f32 v{base+p}, {op(sn,2*p,True)}, {op(sn,2*p+1,True)}')
        k.I(f'v_cvt_pk_bf16_f32 v{base+2+p}, {op(cs,2*p,False)}, {op(cs,2*p+1,False)}')
        k.I(f'v_cvt_pk_bf16_f32 v{base+4+p}, {op(sn,2*p,False)}, {op(sn,2*p+1,False)}')
WIM, WRE = 0, 2
F0 = FLAGS + 8192
WGU_B = WGU + 64 * 30720
FW = F0 + 1024
YFL = ['sc1', 'sc1 nt', 'sc0 sc1', 'sc0 sc1 nt'][env('YFL', 0)]
def cm_(k, i):
    if env('MF', 0) == 4: _mark(k, i)

HALF = env('HALF', 0)
def gen_DEF9():
    k = Kernel('kd_kernel')
    PL = 2592
    HB = 0; XB = 10240; SB = 122880; XL = 32768; MLD = XL + 4 * 2560; TL = MLD + 8192; CL = 81920
    W_ST = env('W_ST', 8); W_A = env('W_A', 0)
    NB1 = env('NB1', 30); W_J1 = W_J1_ = env('W_J1', 10); W_J = env('W_J', 8)
    stamp_begin(k)
    k.I('s_cmp_ge_u32 s2, 256')
    k.I('s_cbranch_scc1 LD_exit')
    k.I(f's_load_dwordx2 s[4:5], s[0:1], {KA["ws"]}')
    k.I(f's_load_dwordx2 s[6:7], s[0:1], {KA["x"]}')
    k.I(f's_load_dwordx2 s[40:41], s[0:1], {KA["out"]}')
    k.I(f's_load_dwordx2 s[62:63], s[0:1], {KA["wd"]}')
    if HALF: k.I(f's_load_dwordx4 s[36:39], s[0:1], {KA["wg"]}')
    va = VAlloc(2)
    hs = va.get(2, 2); vl = va.get(); vo16 = va.get(); vW = va.get(); vi = va.get(); vq = va.get(); oh = va.get(); oh2 = va.get(); hr = va.get()
    keep = va.n
    so = va.get(); wu = va.get(); wv = va.get(); ra = va.get(); xo = va.get(); mo = va.get(); wh = va.get(3); wx = va.get(); g0 = va.get(); g2 = va.get()
    ch = va.get(12, 4); xr = va.get(12, 2); mg = va.get(12, 4); mc = va.get(12, 4); ms = va.get(12, 4)
    d1 = va.get(24, 4); d2 = va.get(24, 4); dat = va.get(12, 2); tmp = va.get(8, 2)
    f40 = va.get(92, 4); f16 = f40 + 62; cs = f40 + 68; sn = f40 + 80
    tv = VAlloc(d1, d1 + 48)
    ta = tv.get(4); tk = tv.get(); cb_ = tv.get(); tq = tv.get(); v8 = tv.get(); vcn = tv.get(); vma = tv.get(); vmk = tv.get(2, 2)
    k.I('v_lshrrev_b32 v1, 6, v0')
    k.I(f'v_and_b32 v{vl}, 63, v0')
    k.I('v_readfirstlane_b32 s22, v1')
    k.I(f'v_lshlrev_b32 v{vo16}, 4, v{vl}')
    k.I(f'v_and_b32 v{vi}, 15, v{vl}')
    k.I(f'v_lshrrev_b32 v{vq}, 4, v{vl}')
    def scalars():
        k.I('s_and_b32 s20, s2, 6')
        k.I('s_lshl_b32 s20, s20, 1')
        k.I('s_lshr_b32 s21, s2, 6')
        k.I('s_add_u32 s20, s20, s21')
        k.I('s_bfe_u32 s56, s2, 0x30003')
        k.I('s_and_b32 s57, s2, 1')
        k.I('s_lshl_b32 s21, s57, 3')
        k.I('s_add_u32 s21, s21, s56')
        k.I('s_lshl_b32 s25, s20, 4')
        k.I('s_add_u32 s3, s25, s21')
        k.I('s_lshr_b32 s25, s20, 2')
        k.I('s_lshl_b32 s25, s25, 12')
        k.I('s_lshl_b32 s24, s57, 11')
        k.I('s_add_u32 s25, s25, s24')
        k.I('s_and_b32 s24, s21, 1')
        k.I('s_lshl_b32 s24, s24, 10')
        k.I('s_add_u32 s25, s25, s24')
        k.I('s_and_b32 s24, s20, 3')
        k.I('s_lshl_b32 s24, s24, 8')
        k.I('s_add_u32 s25, s25, s24')
        k.I('s_and_b32 s24, s21, 6')
        k.I('s_lshl_b32 s24, s24, 5')
        k.I('s_add_u32 s25, s25, s24')
        k.I(f's_add_u32 s26, s25, {64*16384}')
        k.I(f's_add_u32 s27, s25, {128*16384}')
        k.I('s_lshl_b32 s23, s20, 7')
        k.I('s_lshl_b32 s24, s21, 1')
        k.I('s_add_u32 s23, s23, s24')
        k.I('s_and_b32 s24, s22, 1')
        k.I('s_lshl_b32 s24, s24, 6')
        k.I('s_add_u32 s23, s23, s24')
        k.I('s_lshr_b32 s24, s22, 1')
        k.I('s_add_u32 s23, s23, s24')
        k.I('s_mul_i32 s28, s23, 1280')
        k.I(f's_add_u32 s29, s28, {32*1280}')
        k.I(f's_mul_i32 s30, s22, 2560')
        k.I(f's_add_u32 s30, s30, {XL}')
        k.I('s_add_u32 s23, s30, 1280')
        k.I('s_lshl_b32 s31, s22, 11')
        k.I(f's_add_u32 s88, s31, {MLD}')
        k.I(f's_add_u32 s31, s31, {MODN + 2*2560}')
        k.I('s_lshl_b32 s32, s21, 2')
        k.I('s_add_u32 s32, s32, s22')
        k.I('s_mul_i32 s24, s32, 30720')
        k.I(f's_add_u32 s24, s24, {WGU}')
        k.I(f'v_add_u32 v{vW}, s24, v{vo16}')
        k.I(f's_mul_i32 s58, s20, {8*49152}')
        k.I('s_mul_i32 s24, s32, 768')
        k.I('s_add_u32 s58, s58, s24')
        k.I(f's_add_u32 s58, s58, {HH}')
        for i in range(1, 4): k.I(f's_add_u32 s{58+i}, s58, {2*i*49152}')
        k.I('s_mul_i32 s24, s22, 6144')
        k.I(f's_add_u32 s42, s24, {TL}')
        k.I(f's_add_u32 s43, s24, {TAB}')
        k.I('s_add_u32 s33, s42, 4096')
        k.I('s_add_u32 s55, s43, 4096')
        k.I('s_and_b32 s89, s2, 7')
        k.I('s_lshl_b32 s89, s89, 7')
        k.I(f's_add_u32 s89, s89, {F0}')
        k.srd(12, 4, WS_END6)
        k.srd(8, 6, S * D * 2)
        k.srd(16, 4, 161 * 16384, YT)
    def wload(n):
        m_ = n % 30
        g = [f'buffer_load_dwordx4 {ar(4*n,4)}, v{vW}, s[12:15], 0 offen offset:{1024*(m_%4)}{" sc1" if n >= 30 and HALF else ""}']
        if n == 29: g.append(f'v_add_u32 v{vW}, {WGU_B - WGU - 28672}, v{vW}')
        elif m_ % 4 == 3: g.append(f'v_add_u32 v{vW}, 0x1000, v{vW}')
        return g
    def bglist():
        o = []
        for i in range(6):
            g = [f'buffer_load_dwordx4 v{vo16}, s[12:15], s{43 if i < 4 else 55} offen offset:{1024*(i%4)} lds']
            if i % 4 == 0: g = [f's_mov_b32 m0, s{42 if i < 4 else 33}'] + g
            o.append(g)
        for c in range(2):
            o.append([f's_mov_b32 m0, s{23 if c else 30}', f'buffer_load_dwordx4 v{vo16}, s[8:11], s{28+c} offen{XNT} lds'])
            o.append(['s_mov_b64 exec, 0xffff', f'buffer_load_dwordx4 v{vo16}, s[8:11], s{28+c} offen offset:1024{XNT} lds', 's_mov_b64 exec, -1'])
        w = [wload(n) for n in range(60)]
        WF = env('W_FIRST', 8)
        global AUX_LAST
        AUX_LAST = WF + 10
        return w[:WF] + o + w[WF:]
    NBG = 70
    def topup():
        k.bg_every = 0
        k.emit_bg(max(0, NB1 - (NBG - len(k.bg))))
        assert NBG - len(k.bg) == NB1, (NBG - len(k.bg), NB1)
    k.I('s_cmp_ge_u32 s2, 161')
    st0 = k.save_state()
    k.I('s_cbranch_scc1 LWD')
    vc = VAlloc(keep)
    vo8 = vc.get(); yo = vc.get(); wa = vc.get(); vC = vc.get()
    fi = vc.get(); fq4 = vc.get(); fk = vc.get(); fw16 = vc.get(); cta = vc.get(2); sg2 = vc.get(2, 2)
    f64 = vc.get(24, 2); f32 = vc.get(24, 2)
    c1 = vc.get(8, 2); s1_ = vc.get(8, 2); c2 = vc.get(8, 2); s2_ = vc.get(8, 2)
    TK = []
    for X in range(2):
        TK.append(dict(wq=vc.get(8, 2), dat=vc.get(32, 4), acc=vc.get(16, 4), pk=vc.get(8, 4), tmp=vc.get(8, 2)))
    tc = TK[0]['tmp']; ts = tc + 4
    k.I(f'v_lshlrev_b32 v{vo8}, 3, v{vl}')
    k.I('s_lshl_b32 s48, s2, 14')
    k.I('s_lshl_b32 s49, s22, 10')
    k.I('s_add_u32 s49, s49, s48')
    k.I('s_lshl_b32 s24, s22, 11')
    k.I('s_add_u32 s48, s48, s24')
    k.I(f's_add_u32 s90, s24, {CL}')
    k.I('s_mov_b32 m0, s90')
    k.I('s_cmp_eq_u32 s2, 0')
    k.I('s_cselect_b32 s50, 0, 1.0')
    k.I('s_cmp_eq_u32 s2, 160')
    k.I('s_cselect_b32 s50, 0, s50')
    k.I('s_mov_b32 s52, 0x80008000')
    k.I(f'v_lshlrev_b32 v{sg2}, 31, v{vi}')
    k.I(f'v_or_b32 v{sg2}, 1.0, v{sg2}')
    k.I(f'v_cvt_f32_u32 v{fi}, v{vi}')
    k.I(f'v_lshlrev_b32 v{fq4}, 2, v{vq}')
    k.I(f'v_cvt_f32_u32 v{fq4}, v{fq4}')
    k.I(f'v_lshlrev_b32 v{fw16}, 4, v1')
    k.I(f'v_cvt_f32_u32 v{fw16}, v{fw16}')
    k.I(f'v_add_f32 v{fk}, v{fw16}, v{fi}')
    def angles(step_reg, scale, base_add, dst, q=None):
        k.I(f'v_mul_f32 v{cta}, {fhex(scale)}, v{step_reg}')
        k.I(f'v_mul_f32 v{cta+1}, v{fq4 if q is None else q}, v{cta}')
        for j in range(4): k.I(f'v_fmamk_f32 v{dst+j}, v{cta}, {fhex(float(base_add + j))}, v{cta+1}')
    def sincos(c, s_):
        for j in range(4):
            k.I(f'v_cos_f32 v{c+j}, v{s_+j}')
            k.I(f'v_sin_f32 v{s_+j}, v{s_+j}')
    def flip(c, s_):
        for p in (0, 2):
            k.I(f'v_pk_mul_f32 {vr(c+p,2)}, {vr(c+p,2)}, {vr(sg2,2)} op_sel_hi:[1,0]')
            k.I(f'v_pk_mul_f32 {vr(s_+p,2)}, {vr(s_+p,2)}, {vr(sg2,2)} op_sel_hi:[1,0]')
    def flip6(base): return [f'v_xor_b32 v{base+j}, s52, v{base+j}' for j in (0, 1, 4, 5)]
    for kap in range(2):
        angles(fk, 1.0/64, 16*kap, ts); sincos(tc, ts)
        pack6(k, f64+6*kap, tc, ts, False)
        flip(tc, ts)
        pack6(k, f64+6*(kap+2), tc, ts, False)
        if kap == 0:
            k.srd(36, 4, XT_SZ, XT)
            k.srd(44, 4, XT_SZ, WT)
            for X in range(2):
                if X:
                    k.I('s_add_u32 m0, s90, 8192')
                    k.I('s_add_u32 s48, s48, 8192')
                k.I(f'buffer_load_dwordx4 v{vo16}, s[36:39], s48 offen lds', tag=('x', X))
                k.I(f'buffer_load_dwordx4 v{vo16}, s[36:39], s48 offen offset:1024 lds', tag=('x', X))
            for X in range(2):
                for m_ in range(2):
                    for V in range(2):
                        k.I(f'buffer_load_dwordx2 {vr(TK[X]["wq"]+4*m_+2*V,2)}, v{vo8}, s[44:47], s49 offen offset:{512*V}')
                    k.I('s_add_u32 s49, s49, 4096')
            cm_(k, 1)
            scalars()
            k.I('s_lshl_b32 s53, s22, 12')
            k.I('s_lshl_b32 s24, s2, 14')
            k.I('s_add_u32 s53, s53, s24')
            k.bg = bglist(); k.bg_every = env('BGC1', 18)
    for N in range(2):
        angles(fk, 1.0/2048, 16*N, s1_+4*N); sincos(c1+4*N, s1_+4*N)
    angles(fi, 1.0/32, 0, ts); sincos(tc, ts)
    pack6(k, f32+0, tc, ts, False)
    pack6(k, f32+12, tc, ts, True)
    flip(tc, ts)
    pack6(k, f32+6, tc, ts, False)
    pack6(k, f32+18, tc, ts, True)
    k.I(f'v_add_f32 v{fw16}, v{fw16}, v{fq4}')
    for N in range(2):
        if N: k.I(f'v_add_f32 v{fi}, {fhex(16.0)}, v{fi}')
        angles(fi, 1.0/2048, 0, s2_+4*N, q=fw16); sincos(c2+4*N, s2_+4*N)
    k.I(f'v_add_u32 v{vC}, {CL}, v{vo16}')
    k.I(f'v_add_u32 v{wa}, s90, v{vo16}')
    k.emit_bg(env('W_C0', 0))
    cm_(k, 2)
    k.wait_tag(('x', 1))
    k.I('s_barrier')
    cm_(k, 3)
    k.bg_every = env('BGC2', 20)
    def rd(X, base): return [f'ds_read_b128 {vr(TK[X]["dat"]+(2*kap+N)*4,4)}, v{vC} offset:{base+8192*X+2048*kap+1024*N}' for N in range(2) for kap in range(4)]
    def st1(X, inv):
        o = []; t = TK[X]
        for N in range(2):
            for kap in range(4):
                for c in range(2):
                    dd = vr(t['acc']+(2*N+c)*4, 4); da = vr(t['dat']+(2*kap+N)*4, 4); co = vr(f64+6*kap+(WIM if c else WRE), 4)
                    o.append(f'{MF16} {dd}, {co if inv else da}, {da if inv else co}, {dd if kap else 0}')
        return o
    def st3(X):
        o = []; t = TK[X]
        for N in range(2):
            for V in range(2):
                for c in range(2):
                    dd = vr(t['dat']+(2*V+c)*4, 4)
                    o.append(f'{MF16} {dd}, {vr(f32+(2*V+N)*6+(WIM if c else WRE),4)}, {vr(t["pk"]+4*N,4)}, {dd if N else 0}')
        return o
    def st4(X):
        o = []; t = TK[X]
        for V in range(2):
            for N in range(2):
                for c in range(2):
                    dd = vr(t['acc']+(2*N+c)*4, 4)
                    o.append(f'{MF16} {dd}, {vr(t["dat"]+16+4*V,4)}, {vr(f32+(2*N+V)*6+(WIM if c else WRE),4)}, {dd if V else 0}')
        return o
    def cmx(X, src, cc, ss, dst, conj):
        o = []
        for h_ in range(2): o += rec(cmul4, src+8*h_, src+8*h_+4, cc+4*h_, ss+4*h_, dst+4*h_, TK[X]['tmp'], conj)
        if env('C_SCALAR', 0):
            o2_ = []
            for t in o:
                if 'neg_lo' in t:
                    r4 = [int(x) for x in _re.findall(r'v\[(\d+):\d+\]', t)]
                    o2_ += [f'v_fma_f32 v{r4[0]+j}, v{r4[1]+j}, -v{r4[2]+j}, v{r4[3]+j}' for j in range(2)]
                else: o2_ += unpk(t)
            o = o2_
        return o
    def wun(X):
        t = TK[X]; o = []
        for j in range(8):
            o.append(f'v_lshlrev_b32 v{t["acc"]+2*j}, 16, v{t["wq"]+j}')
            o.append(f'v_and_b32 v{t["acc"]+2*j+1}, 0xffff0000, v{t["wq"]+j}')
        return o
    def outs(X):
        t = TK[X]; o = []; fl_ = 's50' if X == 0 else '1.0'
        for N in range(2):
            re = t['acc']+8*N; im = re+4; tm = t['tmp']
            for p in range(2):
                a_, b_ = 2*p, 2*p+1
                o.append(f'v_fma_f32 v{tm+4*p+0}, -v{im+b_}, {fl_}, v{re+a_}')
                o.append(f'v_fma_f32 v{tm+4*p+1}, v{im+a_}, {fl_}, v{re+b_}')
                o.append(f'v_fma_f32 v{tm+4*p+2}, v{im+b_}, {fl_}, v{re+a_}')
                o.append(f'v_fma_f32 v{tm+4*p+3}, -v{im+a_}, {fl_}, v{re+b_}')
            for j in range(4): o.append(f'v_cvt_pk_bf16_f32 v{t["pk"]+4*N+j}, v{tm+2*j}, v{tm+2*j+1}')
        return o
    def mg_(main, fill, per):
        for t in merge(k, main, fill, per): k.I(t)
    A_, B_ = TK
    PER = env('C_PER', 2); P3 = env('C_P3', 3)
    for t in rd(0, 0): k.I(t)
    mg_(st1(0, False), rd(1, 0), 1)
    mg_(st1(1, False)[:4], [], 0)
    mg_(st1(1, False)[4:], cmx(0, A_['acc'], c1, s1_, A_['pk'], False), PER)
    mg_(st3(0), wun(0) + cmx(1, B_['acc'], c1, s1_, B_['pk'], False), P3)
    cm_(k, 4)
    mg_(st3(1), wun(1) + cmx(0, A_['dat'], A_['acc'], A_['acc']+8, A_['dat']+16, True), P3)
    for w_ in range(4):
        for t in flip6(f32+6*w_): k.I(t)
    mg_(st4(0), cmx(1, B_['dat'], B_['acc'], B_['acc']+8, B_['dat']+16, True), P3)
    fl64 = []
    for kap in range(4): fl64 += flip6(f64+6*kap)
    ca = cmx(0, A_['acc'], c2, s2_, A_['pk'], True)
    mg_(st4(1), fl64[:8] + ca, P3)
    cm_(k, 5)
    for N in range(2): k.I(f'ds_write_b128 v{wa}, {vr(A_["pk"]+4*N,4)} offset:{16384+1024*N}')
    for t in cmx(1, B_['acc'], c2, s2_, B_['pk'], True): k.I(t)
    for N in range(2): k.I(f'ds_write_b128 v{wa}, {vr(B_["pk"]+4*N,4)} offset:{16384+8192+1024*N}')
    for t in fl64[8:]: k.I(t)
    k.barrier()
    cm_(k, 6)
    for t in rd(0, 16384): k.I(t)
    mg_(st1(0, True), rd(1, 16384), 1)
    mg_(st1(1, True)[:4], [], 0)
    mg_(st1(1, True)[4:], outs(0), PER)
    topup()
    for t in outs(1): k.I(t)
    o1 = A_['dat']; o2 = A_['dat'] + 8
    k.I('s_mov_b32 vcc_lo, 0x33333333')
    k.I('s_mov_b32 vcc_hi, 0x33333333')
    for j in range(8): k.I(f'v_cndmask_b32_dpp v{o1+j}, v{B_["pk"]+j}, v{A_["pk"]+j}, vcc quad_perm:[0,1,0,1] row_mask:0xf bank_mask:0xf')
    for N in range(2): k.I(f'buffer_store_dwordx4 {vr(o1+4*N,4)}, v{vo16}, s[16:19], s53 offen offset:{2048*N} sc1', tag='y')
    k.I('s_not_b64 vcc, vcc')
    for j in range(8): k.I(f'v_cndmask_b32_dpp v{o2+j}, v{A_["pk"]+j}, v{B_["pk"]+j}, vcc quad_perm:[2,3,2,3] row_mask:0xf bank_mask:0xf')
    for N in range(2): k.I(f'buffer_store_dwordx4 {vr(o2+4*N,4)}, v{vo16}, s[16:19], s53 offen offset:{2048*N+1024} sc1', tag='y')
    cm_(k, 7)
    k.emit_bg(W_J1)
    k.label('LJOIN')
    assert NB1 + W_J1 + W_J <= 40 or not HALF
    stJ = k.save_state(); bgJ = list(k.bg)
    k.bg_every = 0
    k.I(f'v_lshrrev_b32 v{so}, 2, v0')
    k.I(f'v_lshlrev_b32 v{so}, 14, v{so}')
    k.I(f'v_and_b32 v{ta+1}, 3, v0')
    k.I(f'v_lshl_add_u32 v{so}, v{ta+1}, 4, v{so}')
    k.I(f'v_lshrrev_b32 v{ta+1}, 1, v0')
    k.I(f'v_cmp_ge_u32 s[34:35], 64, v{ta+1}')
    k.I(f'v_mov_b32 v{ch+8}, 0')
    k.I(f'v_add_u32 v{vma}, s88, v{vo16}')
    k.I(f'v_and_b32 v{v8}, 7, v0')
    k.I(f'v_lshlrev_b32 v{v8}, 7, v{v8}')
    k.I(f'v_add_u32 v{v8}, {F0}, v{v8}')
    k.I(f'v_mov_b32 v{hs}, 0')
    k.I(f'v_mov_b32 v{hs+1}, 1')
    k.bg_every = 6
    nleft = len(k.bg); hold = k.bg[W_J:]; k.bg = k.bg[:W_J]
    addr = []
    A = addr.append
    A(f'v_lshrrev_b32 v{tq}, 1, v{vq}')
    A(f'v_mad_u32_u24 v{cb_}, v{vi}, 5, v{tq}')
    A(f'v_and_b32 v{tk}, 1, v{vq}')
    A(f'v_mul_u32_u24 v{oh}, 49152, v{tk}')
    A(f'v_lshlrev_b32 v{oh2}, 2, v{oh}')
    A(f'v_lshl_add_u32 v{oh}, v{tq}, 8, v{oh}')
    A(f'v_lshl_add_u32 v{oh}, v{vi}, 4, v{oh}')
    A(f'v_mul_u32_u24 v{tq}, 49152, v{tq}')
    A(f'v_add_u32 v{oh2}, v{oh2}, v{tq}')
    A(f'v_lshl_add_u32 v{oh2}, v{vi}, 4, v{oh2}')
    A(f'v_lshl_add_u32 v{tk}, v1, 1, v{tk}')
    for T in range(3):
        A(f'v_add_u32 v{tq}, {2*T}, v{cb_}')
        A(f'v_xor_b32 v{wh+T}, v{tq}, v{tk}')
        A(f'v_and_b32 v{wh+T}, 7, v{wh+T}')
        A(f'v_lshl_add_u32 v{wh+T}, v{tq}, 3, v{wh+T}')
        A(f'v_lshlrev_b32 v{wh+T}, 4, v{wh+T}')
        A(f'v_add_u32 v{wh+T}, {SB}, v{wh+T}')
    A(f'v_mul_u32_u24 v{wx}, 1280, v{tk}')
    A(f'v_lshl_add_u32 v{wx}, v{cb_}, 4, v{wx}')
    A(f'v_add_u32 v{wx}, {SB}, v{wx}')
    A(f'v_lshrrev_b32 v{tq}, 3, v0')
    A(f'v_xor_b32 v{g0}, v{tq}, v0')
    A(f'v_and_b32 v{g0}, 7, v{g0}')
    A(f'v_lshlrev_b32 v{g0}, 4, v{g0}')
    A(f'v_lshl_add_u32 v{g0}, v{tq}, 8, v{g0}')
    for t in addr: k.I(t)
    k.I(f'v_and_b32 v{ta}, 1, v0')
    k.I(f'v_mul_u32_u24 v{wu}, {2*PL}, v{ta}')
    k.I(f'v_sub_u32 v{wv}, 384, v{ta+1}')
    k.I(f'v_lshl_add_u32 v{wv}, v{wv}, 2, v{wu}')
    k.I(f'v_lshl_add_u32 v{wu}, v{ta+1}, 2, v{wu}')
    k.I(f's_mul_i32 s24, s22, {PL}')
    k.I(f'v_lshl_add_u32 v{ra}, v{vl}, 2, s24')
    k.I(f'v_mov_b32 v{dat+10}, 0'); k.I(f'v_mov_b32 v{dat+11}, 0')
    k.I(f'v_mul_u32_u24 v{xo}, 80, v{vi}')
    k.I(f'v_lshl_add_u32 v{xo}, v{vq}, 3, v{xo}')
    k.I(f'v_lshlrev_b32 v{mo}, 1, v{xo}')
    k.I(f'v_add_u32 v{xo}, s30, v{xo}')
    for j in range(8, 12): k.I(f'v_mov_b32 v{xr+j}, 0')
    k.emit_bg(99); k.bg_every = 0; k.bg = hold
    def yloads():
        k.I('s_mov_b32 m0, s88')
        k.I(f'buffer_load_dwordx4 v{vo16}, s[12:15], s31 offen sc1 lds')
        k.I(f'buffer_load_dwordx4 v{vo16}, s[12:15], s31 offen offset:1024 sc1 lds')
        for rho in range(3):
            if rho == 2: k.I('s_mov_b64 exec, s[34:35]')
            k.I(f'buffer_load_dwordx4 {vr(ch+4*rho,4)}, v{so}, s[16:19], s{25+rho} offen {YFL}')
        k.I('s_mov_b64 exec, -1')
    def ycheck():
        k.I(f'v_max3_u32 v{tq}, v{ch}, v{ch+4}, v{ch+8}')
        k.I(f'ds_read2st64_b32 {vr(vmk,2)}, v{vma} offset0:0 offset1:4')
        k.I(f'v_max3_u32 v{tq}, v{tq}, v{vmk}, v{vmk+1}')
        k.I(f'v_cmp_eq_u32 s[62:63], -1, v{tq}')
        k.I('s_cmp_lg_u64 s[62:63], 0')
    yloads()
    if HALF: k.I(f'buffer_load_dword v{hr}, v{hs}, s[12:15], s89 offen offset:1024 sc1')
    mark(k, 1)
    tb_ = g2
    k.I(f'v_add_u32 v{tb_}, {TL}, v{vo16}')
    k.I('s_mov_b32 s50, 0')
    assert NB1 + W_J1 + W_J >= AUX_LAST
    k.wait_tag('y')
    nyoung = 5 + HALF + (NB1 + W_J1 + W_J - AUX_LAST)
    if len(k.vm) > nyoung: k.waitcnt(vm=nyoung)
    signal(k, 'F0', 89, hs)
    tl = [f'ds_read_b128 {vr(f40+4*i,4)}, v{tb_} offset:{1024*i}' for i in range(23)]
    for t in tl: k.I(t)
    cm_(k, 8)
    ycheck()
    k.I('s_cbranch_scc1 LY_slow')
    k.label('LY_ok')
    mark(k, 2); cm_(k, 9)
    for rho in range(3):
        if rho == 2: k.I('s_mov_b64 exec, s[34:35]')
        for pr in range(2):
            k.I(f'ds_write_b32 v{wu}, v{ch+4*rho+2*pr} offset:{pr*PL+512*rho}')
            k.I(f'ds_write_b32 v{wv}, v{ch+4*rho+2*pr+1} offset:{pr*PL+512*(2-rho)}')
    k.I('s_mov_b64 exec, -1')
    k.I(f'v_lshlrev_b32 v{so}, 4, v0')
    k.I(f'v_add_u32 v{so}, {SB}, v{so}')
    def gochk():
        k.I(f'v_readfirstlane_b32 s24, v{hr}')
        k.I('s_cmp_lg_u32 s24, 1')
        k.I('s_cbranch_scc1 LF0_slow')
        k.label('LF0_ok')
    if HALF: gochk()
    k.barrier()
    mark(k, 3)
    for p in range(5):
        k.I(f'ds_read2st64_b32 {vr(dat+2*p,2)}, v{ra} offset0:{2*p} offset1:{2*p+1}')
    def s1(T):
        o = []
        for kap in range(3):
            for c in range(2):
                dd = vr(d1 + (2*T+c)*4, 4)
                o.append(f'{MF16} {dd}, {vr(dat+4*kap,4)}, {vr(f40+(2*T+c)*10+4*kap,4)}, {dd if kap else 0}')
        return o
    k.bg_every = env('BG2', 12)
    rest = merge(k, s1(0) + s1(1), [], 1)
    for t in rest: k.I(t)
    k.bg_every = 0
    for T in range(3): k.I(f'ds_read_b128 {vr(mg+4*T,4)}, v{mo} offset:{MLD+64*T}')
    a2 = ch; xf = f40
    cm = [rec(cmul4, d1+8*T, d1+8*T+4, cs+4*T, sn+4*T, a2+4*T, tmp, True) for T in range(3)]
    def s2(T): return [f'{MF16} {vr(d2+(2*T+c)*4,4)}, {vr(a2+4*T,4)}, {vr(f16+(0 if c else 2),4)}, 0' for c in range(2)]
    rest = merge(k, s1(2), cm[0], 2)
    for t in rest: k.I(t)
    for T in range(3):
        if T == 2: k.I('s_mov_b32 exec_hi, 0')
        for c in range(2):
            k.I(f'ds_read_b64 {vr(xr+(2*T+c)*2,2)}, v{xo} offset:{1280*c+32*T}')
    k.I('s_mov_b64 exec, -1')
    k.bg_every = env('BG2', 12)
    for t in s2(0) + cm[1] + s2(1) + cm[2] + s2(2): k.I(t)
    for T in range(3):
        k.I(f'ds_read_b128 {vr(ms+4*T,4)}, v{mo} offset:{MLD+2560+64*T}')
        k.I(f'ds_read_b128 {vr(mc+4*T,4)}, v{mo} offset:{MLD+5120+64*T}')
    st_ = f40 + 24
    for T in range(3):
        for i in range(4*T, 4*T+4):
            k.I(f'v_lshlrev_b32 v{xf+2*i}, 16, v{xr+i}')
            k.I(f'v_and_b32 v{xf+2*i+1}, 0xffff0000, v{xr+i}')
        for c in range(2):
            for p in (0, 2):
                r = (2*T+c)*4+p
                k.I(f'v_pk_fma_f32 {vr(xf+r,2)}, {vr(d2+r,2)}, {vr(mg+4*T+p,2)}, {vr(xf+r,2)}')
        for c in range(2):
            r = xf+(2*T+c)*4
            if T == 0:
                k.I(f'v_pk_add_f32 {vr(st_+2*c,2)}, {vr(r,2)}, {vr(r+2,2)}')
                k.I(f'v_pk_mul_f32 {vr(st_+4+2*c,2)}, {vr(r,2)}, {vr(r,2)}')
            else:
                k.I(f'v_pk_add_f32 {vr(st_+2*c,2)}, {vr(st_+2*c,2)}, {vr(r,2)}')
                k.I(f'v_pk_fma_f32 {vr(st_+4+2*c,2)}, {vr(r,2)}, {vr(r,2)}, {vr(st_+4+2*c,2)}')
        for c in range(2):
            r = xf+(2*T+c)*4+2
            if T: k.I(f'v_pk_add_f32 {vr(st_+2*c,2)}, {vr(st_+2*c,2)}, {vr(r,2)}')
            k.I(f'v_pk_fma_f32 {vr(st_+4+2*c,2)}, {vr(r,2)}, {vr(r,2)}, {vr(st_+4+2*c,2)}')
    for i in range(4): k.I(f'v_add_f32 v{st_+2*i}, v{st_+2*i}, v{st_+2*i+1}')
    wave_reduce_to_sgpr(k, [st_, st_+2, st_+4, st_+6], [46, 47, 48, 49])
    po = d1; ph = d1 + 12; hn = d2
    rr = f40 + 32; nmr = f40 + 34
    ln_scalars(k, 46, 48, rr, nmr, tmp)
    for T in range(3):
        for c in range(2):
            for p in (0, 2):
                r = (2*T+c)*4+p
                k.I(f'v_pk_fma_f32 {vr(hn+r,2)}, {vr(xf+r,2)}, {vr(rr,2)}, {vr(nmr,2)} op_sel:[0,{c},{c}] op_sel_hi:[1,{c},{c}]')
        for c in range(2):
            for p in (0, 2):
                r = hn+(2*T+c)*4+p
                k.I(f'v_pk_fma_f32 {vr(r,2)}, {vr(r,2)}, {vr(mc+4*T+p,2)}, {vr(ms+4*T+p,2)}')
        for j in range(4):
            k.I(f'v_cvt_pk_bf16_f32 v{ph+4*T+j}, v{hn+8*T+2*j}, v{hn+8*T+2*j+1}')
        if T:
            k.I(f'v_permlane16_swap_b32 v{ph+4*T-4}, v{ph+4*T-2}')
            k.I(f'v_permlane16_swap_b32 v{ph+4*T-3}, v{ph+4*T-1}')
            k.I(f'ds_write_b128 v{wh+T-1}, {vr(ph+4*T-4,4)} offset:{HB}')
    k.bg_every = 0
    for j in range(2): k.I(f'v_cvt_pk_bf16_f32 v{po+j}, v{xf+2*j}, v{xf+2*j+1}')
    k.I(f'v_permlane16_swap_b32 v{ph+8}, v{ph+10}')
    k.I(f'v_permlane16_swap_b32 v{ph+9}, v{ph+11}')
    k.I('s_mov_b32 exec_hi, 0')
    k.I(f'ds_write_b128 v{wh+2}, {vr(ph+8,4)} offset:{HB}')
    k.I('s_mov_b64 exec, -1')
    k.I('s_lshr_b32 s42, s3, 1')
    k.I('s_mul_i32 s42, s42, 20480')
    k.I('s_and_b32 s24, s21, 1')
    k.I('s_lshl_b32 s24, s24, 7')
    k.I('s_add_u32 s42, s42, s24')
    k.I(f's_add_u32 s42, s42, {H2}')
    k.I('s_add_u32 s44, s42, 8192')
    k.I('s_add_u32 s45, s42, 16384')
    if not HALF: k.I(f'buffer_load_dword v{hr}, v{hs}, s[12:15], s89 offen offset:1024 sc1')
    k.barrier()
    mark(k, 4)
    sd = mg
    for rho in range(3):
        k.I(f'ds_read_b128 {vr(sd+4*rho,4)}, v{so} offset:{HB+4096*rho}')
    for j in range(2, 12): k.I(f'v_cvt_pk_bf16_f32 v{po+j}, v{xf+2*j}, v{xf+2*j+1}')
    k.I(f'buffer_store_dwordx4 {vr(sd,4)}, v{g0}, s[12:15], s42 offen sc1', tag='h2')
    k.I(f'buffer_store_dwordx4 {vr(sd+4,4)}, v{g0}, s[12:15], s44 offen sc1', tag='h2')
    k.I('s_cmp_lt_u32 s22, 2')
    k.I('s_cselect_b64 exec, -1, 0')
    k.I(f'buffer_store_dwordx4 {vr(sd+8,4)}, v{g0}, s[12:15], s45 offen sc1', tag='h2')
    k.I('s_mov_b64 exec, -1')
    for T in range(3):
        k.I(f'v_permlane16_swap_b32 v{po+4*T}, v{po+4*T+2}')
        k.I(f'v_permlane16_swap_b32 v{po+4*T+1}, v{po+4*T+3}')
    for T in range(3):
        if T == 2: k.I('s_mov_b32 exec_hi, 0')
        k.I(f'ds_write_b128 v{wx}, {vr(po+4*T,4)} offset:{XB+32*T}')
    k.I('s_mov_b64 exec, -1')
    k.I(f's_add_u32 s24, s30, {SB + XB - XL}')
    k.I(f'v_add_u32 v{g2}, s24, v{vo16}')
    k.I('s_mul_i32 s43, s3, 10240')
    k.I(f's_add_u32 s43, s43, s30')
    k.I(f's_add_u32 s29, s43, {X1 - XL}')
    k.waitcnt(lgkm=0)
    sx = 244
    for i in range(3): k.I(f'ds_read_b128 {vr(sx+4*i,4)}, v{g2} offset:{1024*i}')
    def x1st():
        for i in range(3):
            if i == 2: k.I('s_mov_b32 exec_hi, 0')
            k.I(f'buffer_store_dwordx4 {vr(sx+4*i,4)}, v{vo16}, s[12:15], s43 offen offset:{1024*i} sc1')
        k.I('s_mov_b64 exec, -1')
    k.I('s_mul_i32 s24, s20, 163840')
    k.I(f's_add_u32 s24, s24, {H2}')
    k.I('s_add_u32 s16, s4, s24')
    k.I('s_addc_u32 s17, s5, 0')
    k.I('s_mov_b32 s18, 163840')
    k.I('s_mov_b32 s19, 0x00020000')
    k.I('s_and_b32 s52, s22, 2')
    k.I('s_add_u32 s52, s52, s22')
    k.I('s_mul_i32 s52, s52, 20480')
    k.I('s_add_u32 s53, s52, 40960')
    k.I('s_lshl_b32 s54, s20, 8')
    k.I(f's_add_u32 s54, s54, {FLAGS}')
    k.I('s_add_u32 s55, s54, 4096')
    k.I('s_add_u32 s51, s54, 128')
    k.srd(36, 40, S * D * 2)
    k.emit_bg(W_ST)
    if not HALF: gochk()
    va = VAlloc(keep)
    rb = [va.get(), va.get()]; vD = va.get()
    oo = va.get(); ox = va.get(); lw = va.get(); lr = va.get(); t0 = va.get(); t1 = va.get()
    act = va.get(32, 4); accs = [va.get(48, 4), va.get(48, 4)]; pk = va.get(12, 4)
    gb = va.get(8, 4); x1r = va.get(16, 4)
    NV = (256 - va.n) // 4
    wdv = va.get(4 * NV, 4)
    def wdreg(n): return vr(wdv + 4*n, 4) if n < NV else ar(4*(n - NV), 4)
    def emit(grp):
        for t in grp:
            if isinstance(t, tuple): k.I(t[0], tag=t[1])
            else: k.I(t)
    def dma(ps, g):
        out = []
        for j in range(4):
            gr = [(f'buffer_load_dwordx4 v{vo16}, s[16:19], m0 offen offset:{1024*j} sc1 lds', ('a', ps, g, j // 2))]
            if j == 0: gr = [f's_add_u32 m0, s{52+ps}, {4096*g}'] + gr
            out.append(gr)
        return out
    NPRE = 2
    if env('H1_FLAG', 0):
        k.wait_tag('h2')
        signal(k, 'H1', 54, hs)
        k.emit_bg(env('W_PL', 6))
        poll(k, 'H1p', 54, hs, hr)
    for g in range(NPRE):
        for grp in dma(0, g): emit(grp)
    k.emit_bg(W_A)
    late = list(k.bg); k.bg = []
    print('late weight loads', len(late), 'NV', NV)
    k.I(f'v_mov_b32 v{rb[0]}, v{vo16}')
    k.I(f'v_add_u32 v{rb[1]}, {4*20480}, v{vo16}')
    def aread(ps, i, kap):
        off = ((i & 1) + 2*ps) * 20480 + 1024*kap
        base = rb[i >> 1]
        return f'ds_read_b128 {vr(act+16*(kap&1)+4*i,4)}, v{base} offset:{off - (40960 if ps else 0)}'
    k.I('s_lshl_b32 s24, s56, 2')
    k.I('s_add_u32 s24, s24, s22')
    k.I('s_mul_i32 s24, s24, 61440' if not env('W_SAME', 0) & 2 else 's_mul_i32 s24, s22, 61440')
    k.I(f's_add_u32 s24, s24, {WD}')
    k.I(f'v_add_u32 v{vD}, s24, v{vo16}')
    def dload(n):
        if env('NO_WD', 0): return [f'v_add_u32 v{vD}, 0, v{vD}']
        g = [f'buffer_load_dwordx4 {wdreg(n)}, v{vD}, s[12:15], 0 offen offset:{1024*(n%4)} sc1']
        if n % 4 == 3: g.append(f'v_add_u32 v{vD}, 0x1000, v{vD}')
        return g
    RS = 336; PT = 16 * RS
    k.I('s_lshl_b32 s24, s20, 1')
    k.I('s_add_u32 s24, s24, s57')
    k.I('s_lshl_b32 s24, s24, 2')
    k.I(f's_mul_i32 s33, s22, {12*1024}')
    k.I(f's_add_u32 s33, s33, {HH}')
    k.I('s_mul_i32 s42, s24, 49152')
    k.I('s_add_u32 s42, s42, s33')
    for i in range(1, 4): k.I(f's_add_u32 s{42+i}, s42, {49152*i}')
    k.I(f'v_mul_u32_u24 v{t0}, 26, v{vl}')
    k.I(f'v_lshrrev_b32 v{t0}, 8, v{t0}')
    k.I(f'v_mul_u32_u24 v{t1}, 10, v{t0}')
    k.I(f'v_sub_u32 v{t1}, v{vl}, v{t1}')
    k.I(f'v_mul_u32_u24 v{lr}, {RS}, v{t0}')
    k.I(f'v_lshl_add_u32 v{lr}, v{t1}, 4, v{lr}')
    k.I(f's_mul_i32 s25, s22, {4*RS}')
    k.I(f'v_add_u32 v{lr}, s25, v{lr}')
    k.I(f'v_mul_u32_u24 v{ox}, 1280, v{t0}')
    k.I(f'v_lshl_add_u32 v{ox}, v{t1}, 4, v{ox}')
    k.I(f'v_mul_u32_u24 v{oo}, {32*1280}, v{t0}')
    k.I(f'v_lshl_add_u32 v{oo}, v{t1}, 4, v{oo}')
    k.I(f'v_lshlrev_b32 v{t1}, 5, v{t1}')
    k.I(f'v_mul_u32_u24 v{lw}, {RS}, v{vi}')
    k.I(f's_mul_i32 s25, s22, {PT}')
    k.I(f'v_add_u32 v{lw}, s25, v{lw}')
    lw2 = t0
    k.I(f'v_mul_u32_u24 v{hr}, 5, v{vq}')
    k.I(f'v_add_u32 v{lw2}, 1, v{hr}')
    k.I(f'v_lshrrev_b32 v{lw2}, 1, v{lw2}')
    k.I(f'v_lshl_add_u32 v{lw2}, v{lw2}, 4, v{lw}')
    k.I(f'v_lshrrev_b32 v{hr}, 1, v{hr}')
    k.I(f'v_lshl_add_u32 v{lw}, v{hr}, 4, v{lw}')
    k.I(f'v_and_b32 v{hr}, 1, v{vq}')
    k.I(f'v_mul_u32_u24 v{hr}, 160, v{hr}')
    k.I(f'v_add_u32 v{lw}, v{lw}, v{hr}')
    k.I(f'v_sub_u32 v{lw2}, v{lw2}, v{hr}')
    k.I(f'v_add_u32 v{lw2}, 160, v{lw2}')
    k.I('s_mul_i32 s30, s56, 160')
    k.I('s_lshl_b32 s25, s24, 2')
    k.I('s_add_u32 s25, s25, s22')
    k.I(f's_mul_i32 s46, s25, {4*1280}')
    k.I('s_add_u32 s46, s46, s30')
    k.I(f's_add_u32 s46, s46, {X1}')
    for i in range(1, 4): k.I(f's_add_u32 s{46+i}, s46, {16*1280*i}')
    k.I('s_lshl_b32 s25, s20, 7')
    k.I('s_lshl_b32 s26, s57, 4')
    k.I('s_add_u32 s25, s25, s26')
    k.I('s_add_u32 s25, s25, s22')
    k.I('s_mul_i32 s25, s25, 1280')
    k.I('s_add_u32 s25, s25, s30')
    for i in range(1, 4): k.I(f's_add_u32 s{25+i}, s25, {4*1280*i}')
    k.I('s_lshl_b32 s30, s30, 1')
    k.I(f's_add_u32 s30, s30, {5*2560}')
    vx3 = x1r + 14
    k.I(f'v_cmp_gt_u32 vcc, 32, v{vl}')
    k.I(f'v_mov_b32 v{vx3}, 0x7ff00000')
    k.I(f'v_cndmask_b32 v{vx3}, v{vx3}, v{vo16}, vcc')
    k.I('s_mov_b32 s34, -1')
    k.I('s_mov_b32 s35, 0xff')
    vck = x1r; vad = x1r + 15
    k.I(f'v_add_u32 v{vad}, s52, v{vo16}')
    slow = []
    def validate(name, groups):
        o = []; n = 0
        for g in groups:
            for j in range(2):
                o.append([f'ds_read2st64_b32 {vr(vck+n,2)}, v{vad} offset0:{16*g+8*j} offset1:{16*g+8*j+4}']); n += 2
        o.append([f'v_max3_u32 v{vck}, v{vck}, v{vck+1}, v{vck+2}'])
        i = 3
        while i < n:
            if i + 1 < n: o.append([f'v_max3_u32 v{vck}, v{vck}, v{vck+i}, v{vck+i+1}']); i += 2
            else: o.append([f'v_max_u32 v{vck}, v{vck}, v{vck+i}']); i += 1
        o.append([f'v_cmp_eq_u32 s[62:63], -1, v{vck}'])
        o.append(['s_nop 0'])
        o.append(['s_cmp_lg_u64 s[62:63], 0', ('BR', f's_cbranch_scc1 L{name}_slow', f'L{name}_ok')])
        slow.append((name, groups))
        return o
    _emit = emit
    def emit(grp):
        for t in grp:
            if isinstance(t, tuple) and t[0] == 'GRP': emit(t[1])
            elif isinstance(t, tuple) and t[0] == 'BR':
                k.I(t[1], noflush=True); k.raw(t[2] + ':')
            else: _emit([t])
    k.wait_tag('h2')
    mark(k, 5)
    if not env('H1_FLAG', 0): signal(k, 'H1', 54, hs)
    k.wait_tag(('a', 0, 1, 1))
    mark(k, 6)
    for g in validate('V0', [0, 1]): emit(g)
    k.I('s_barrier')
    mark(k, 7)
    for kp_ in range(2):
        for i in range(4): k.I(aread(0, i, kp_))
    def epi(ps):
        acc = accs[ps]; o = []
        for pr in range(2):
            for j in range(2):
                i = 2*pr + j
                g_ = acc + i*4; u_ = acc + (4+i)*4
                for p in (0, 2): o.append(f'v_pk_mul_f32 {vr(g_+p,2)}, {vr(g_+p,2)}, {vr(u_+p,2)}')
            a_ = acc + (8+2*pr)*4; b_ = a_ + 4
            for r in range(4): o.append(f'v_permlane32_swap_b32 v{a_+r}, v{b_+r}')
            for j in range(2):
                g_ = acc + (2*pr+j)*4
                for p in (0, 2): o.append(f'v_cvt_pk_bf16_f32 v{pk+4*pr+2*j+p//2}, v{g_+p}, v{g_+p+1}')
            for p in (0, 2): o.append(f'v_pk_mul_f32 {vr(a_+p,2)}, {vr(a_+p,2)}, {vr(b_+p,2)}')
            o.append(f'v_permlane16_swap_b32 v{pk+4*pr}, v{pk+4*pr+2}')
            o.append(f'v_permlane16_swap_b32 v{pk+4*pr+1}, v{pk+4*pr+3}')
            for p in (0, 2): o.append(f'v_cvt_pk_bf16_f32 v{pk+8+2*pr+p//2}, v{a_+p}, v{a_+p+1}')
            o.append((f'buffer_store_dwordx4 {vr(pk+4*pr,4)}, v{oh}, s[12:15], s{58+2*pr+ps} offen sc1', ('h', ps)))
        o.append(f'v_permlane16_swap_b32 v{pk+8}, v{pk+10}')
        o.append(f'v_permlane16_swap_b32 v{pk+9}, v{pk+11}')
        o.append((f'buffer_store_dwordx4 {vr(pk+8,4)}, v{oh2}, s[12:15], s{58+ps} offen offset:512 sc1', ('h', ps)))
        return o
    slots_h = [vr(accs[0] + 4*i, 4) for i in range(12)] + [ar(240 + 4*i, 4) for i in range(4)] + [ar(4*i, 4) for i in range(60 - NV, 60)]
    NH = len(slots_h)
    horder = [(t, kp) for kp in range(12) for t in (0, 1)] + [(t, kp) for t in (2, 3) for kp in range(12)]
    def hload(n):
        t, kp = horder[n]
        if env('NO_H', 0): return [f's_add_u32 s{42+t}, s{42+t}, {n}']
        g = [f'buffer_load_dwordx4 {slots_h[n % NH]}, v{vo16}, s[12:15], s{42+t} offen offset:{1024*(kp%4)} sc1']
        if kp % 4 == 3: g.append(f's_add_u32 s{42+t}, s{42+t}, 4096')
        return g
    def check(name, cnt):
        k.I(f'v_readfirstlane_b32 s33, v{hr}')
        k.I('s_cmp_ge_u32 s33, 16')
        k.I(f's_cbranch_scc0 L{name}_spin', noflush=True)
        k.raw(f'L{name}_ok:')
        spins.append((name, cnt))
    spins = []
    q1 = []
    for g in range(NPRE, 5): q1 += dma(0, g)
    xs_ = []
    for i in range(3):
        xs_.append([f'buffer_store_dwordx4 {vr(sx+4*i,4)}, v{vo16 if i < 2 else vx3}, s[12:15], s29 offen offset:{1024*i} sc1'])
    q1 += late[:-6] + [[f'buffer_load_dword v{hr}, v{hs}, s[12:15], s54 offen sc1']] + late[-6:] + xs_ + [['CHECK']]
    for g in range(5): q1 += dma(1, g)
    q1 += [[f'buffer_load_dwordx4 {vr(gb+4*j,4)}, v{t1}, s[12:15], s30 offen offset:{16*j} sc1'] for j in range(2)]
    nd = 0; nh = 0
    bars = {(0, 6): ('a', 0, 2, 1), (0, 10): ('a', 0, 4, 1), (0, 18): ('a', 1, 1, 1), (1, 6): ('a', 1, 4, 1), (1, env('K_SA', 9)): None}
    VRATE = env('VRATE', 25) / 120.0
    credit = 1.0
    KA_, KC_ = env('K_A', 14), env('K_C', 17)
    ep = []; vq_ = []
    fl = []
    since = 99
    def isvm(t): return (t[0] if isinstance(t, tuple) else t).startswith('buffer_')
    for ps in range(2):
        for kap in range(20):
            pend = list(fl) + [t for g in q1 for t in g]
            if ps == 0 and kap in (env('V2_AT', 4), env('V3_AT', 7)): assert not any(isinstance(t, tuple) and t[0] != 'GRP' and t[1] <= ('a', 0, 2 if kap == env('V2_AT', 4) else 4, 1) for t in pend), 'val early'
            for mt in range(3):
                assert ps or not any(isinstance(t, str) and t.startswith(f'buffer_load_dwordx4 {ar((3*kap+mt)*4,4)},') for t in pend), ('weight late', kap)
            if (ps, kap) in bars:
                if bars[(ps, kap)]:
                    assert not any(isinstance(t, tuple) and t[0] != 'GRP' and t[1] <= bars[(ps, kap)] for t in pend), ('dma late', ps, kap)
                    k.wait_tag(bars[(ps, kap)])
                if not bars[(ps, kap)]:
                    assert not ep
                    em(k, 3)
                    k.wait_tag(('h', 0))
                    signal(k, 'HA', 55, hs, noflush=True)
                    em(k, 4)
                else: k.I('s_barrier')
            if ps == 0 and kap in (6, 10): assert not vq_
            if ps == 0 and kap == env('V2_AT', 4): k.wait_tag(('a', 0, 2, 1)); vq_ = validate('V2', [2])
            if ps == 0 and kap == env('V3_AT', 7): k.wait_tag(('a', 0, 4, 1)); vq_ = validate('V3', [3, 4])
            if ps == 0 and kap == 18:
                k.I(f'v_add_u32 v{rb[0]}, 40960, v{rb[0]}')
                k.I(f'v_add_u32 v{rb[1]}, 40960, v{rb[1]}')
            if ps == 1 and kap == 1:
                if env('EP_SERIAL', 1):
                    em(k, 1)
                    for t in epi(0): emit([t])
                    em(k, 2)
                else: ep = pairs(epi(0))
            if ps == 1 and kap == KA_: fl.insert(0 if not fl or isvm(fl[0]) else 1, f'buffer_load_dword v{hr}, v{hs}, s[12:15], s55 offen sc1') if False else k.I(f'buffer_load_dword v{hr}, v{hs}, s[12:15], s55 offen sc1')
            if ps == 1 and kap == KC_: em(k, 5); check('HA', 55); em(k, 6)
            for j in range(12):
                i, mt = divmod(j, 3)
                dd = vr(accs[ps]+(mt*4+i)*4, 4)
                k.I(f'{MF16} {dd}, {ar((3*kap+mt)*4,4)}, {vr(act+16*(kap&1)+4*i,4)}, {dd if kap else 0}')
                since += 1; credit = min(credit + VRATE, 1.6)
                rd = None
                if mt == 2:
                    if kap < 18: rd = aread(ps, i, kap + 2)
                    elif ps == 0: rd = aread(1, i, kap - 18)
                if rd: k.I(rd); continue
                if j == 10 and len(k.lg) > 3: k.waitcnt(lgkm=3); continue
                if j == 10 and ps == 1 and kap == 18: k.waitcnt(lgkm=0); continue
                if not fl:
                    free = NV + (3 * kap if ps else 0)
                    if q1 and q1[0] == ['CHECK']: q1.pop(0); check('H1', 54); continue
                    if q1: fl = list(q1.pop(0))
                    elif ps == 1 and kap >= KC_ and nh < 16 and (nh // 2) * 5 < nd: fl = list(hload(nh)); nh += 1
                    elif nd < min(free, 60): fl = list(dload(nd)); nd += 1
                if ep and isvm(ep[0][0]):
                    emit(ep.pop(0)); since = 0; credit -= 1.0
                elif fl and (not isvm(fl[0]) or (since >= 3 and credit >= 1.0)):
                    t = fl.pop(0)
                    if isvm(t): since = 0; credit -= 1.0
                    emit([t])
                elif vq_: emit(vq_.pop(0))
                elif ep:
                    g_ = ep.pop(0); emit(g_)
                    if ep and len(g_) == 1 and len(ep[0]) == 1 and not isvm(ep[0][0]): emit(ep.pop(0))
        if ps == 0 and not env('MD', 0): mark(k, 2)
    for t in fl: emit([t])
    assert not q1
    print('after E: wd loaded', nd, 'h loaded', nh)
    NHE = nh
    mark(k, 8); fm(k, 1); em(k, 7); pm(k, 1)
    fq = []
    def need_order():
        o = []; d = nd; h = nh
        for kp in range(12):
            while d < 5*(kp+1): o.append(dload(d)); d += 1
            while h < 2*(kp+1): o.append(hload(h)); h += 1
        return o
    fq = need_order()
    full = list(fq)
    def sorted_q(a_, b_):
        rest = [g for g in b_ if g not in full]
        return [g for g in full if g in a_ or g in b_] + rest
    fq += [['s_mov_b64 exec, s[34:35]', f'buffer_load_dwordx4 {vr(x1r+4*t,4)}, v{ox}, s[12:15], s{46+t} offen sc1', 's_mov_b64 exec, -1'] for t in range(4)]
    for t in epi(1): emit([t])
    fm(k, 2)
    if KC_ >= 20: check('HA', 55)
    fm(k, 3)
    for _ in range(env('F_PRE1', 0)):
        if fq: emit(fq.pop(0))
    mark(k, 9); fm(k, 4)
    fa = accs[1]
    SL = [0, 4*PT, 8*PT, 0]
    def pwrite(t, a): return [f'ds_write_b128 v{lw2 if dt & 1 else lw}, {vr(a+4*dt,4)} offset:{SL[t]+16*(dt//2)}' for dt in range(5)]
    def fin_reads(t, r): return [f'ds_read_b128 {vr(r+8*src+4*h_,4)}, v{lr} offset:{SL[t]+PT*src+160*h_}' for src in range(4) for h_ in range(2)]
    def fin_valu(t, r, xf):
        o = []
        for j in range(4):
            o.append(f'v_lshlrev_b32 v{xf+2*j}, 16, v{x1r+4*t+j}')
            o.append(f'v_and_b32 v{xf+2*j+1}, 0xffff0000, v{x1r+4*t+j}')
        for p in range(4): o.append(f'v_pk_add_f32 {vr(r+2*p,2)}, {vr(r+2*p,2)}, {vr(r+8+2*p,2)}')
        for p in range(4): o.append(f'v_pk_add_f32 {vr(r+16+2*p,2)}, {vr(r+16+2*p,2)}, {vr(r+24+2*p,2)}')
        for p in range(4): o.append(f'v_pk_add_f32 {vr(r+2*p,2)}, {vr(r+2*p,2)}, {vr(r+16+2*p,2)}')
        for p in range(4): o.append(f'v_pk_fma_f32 {vr(xf+2*p,2)}, {vr(r+2*p,2)}, {vr(gb+2*p,2)}, {vr(xf+2*p,2)}')
        for p in range(4): o.append(f'v_cvt_pk_bf16_f32 v{x1r+4*t+p}, v{xf+2*p}, v{xf+2*p+1}')
        return o
    OST = os.environ.get('OUT_ST', '')
    def fin_store(t): return ['s_mov_b64 exec, s[34:35]', f'buffer_store_dwordx4 {vr(x1r+4*t,4)}, v{oo}, s[36:39], s{25+t} offen{OST}', 's_mov_b64 exec, -1']
    KB_ = env('K_B', 3)
    fl = []
    def gap(pool):
        nonlocal fl
        if not fl and pool:
            g = pool.pop(0)
            if isinstance(g[0], str) and g[0].startswith('s_mov_b64 exec'): emit(g); return
            fl = list(g)
        if fl: emit([fl.pop(0)])
    FG = env('F_GAP', 5)
    KBL, KBC = env('K_BL', 8), env('K_BC', 11)
    since = 99; nh = 24
    hq = [hload(n) for n in range(24, 48)]
    for kp in range(12):
        if kp % 2 == 0: pm(k, 2 + kp // 2)
        if kp == KB_:
            k.wait_tag(('h', 1))
            signal(k, 'HB', 51, hs, noflush=True)
            fm(k, 5)
        if kp == KBL: fq.insert(0, [f'buffer_load_dword v{hr}, v{hs}, s[12:15], s51 offen sc1'])
        if kp == KBC:
            while fq or fl: gap(fq)
            check('HB', 51); fm(k, 7)
            fq = hq
        for t in range(2):
            need = [wdreg(5*kp+dt) for dt in range(5)] + [slots_h[(2*kp+t) % NH]]
            while fq is not hq and any(g[0].startswith(f'buffer_load_dwordx4 {r},') for g in fq for r in need): gap(fq)
            for dt in range(5):
                dd = vr(fa+20*t+4*dt, 4)
                k.I(f'{MF16} {dd}, {wdreg(5*kp+dt)}, {slots_h[(2*kp+t) % NH]}, {dd if kp else 0}')
                since += 1
                if dt == 4: continue
                if fl: gap(fq)
                elif since >= (env('F_GAP2', 5) if fq is hq else env('F_GAP1', 2)) and fq: gap(fq); since = 0
    pm(k, 8)
    while fl: gap(fq)
    if KBC >= 12:
        while fq: gap(fq)
    if not env('MD', 0): mark(k, 3)
    fm(k, 6); em(k, 8); pm(k, 9)
    def sprinkle(lst, every):
        for j, v_ in enumerate(lst):
            k.I(v_)
            if j % every == every - 1 and hq: emit(hq.pop(0))
    if KBC == 12: check('HB', 51); fm(k, 7)
    sprinkle(pwrite(0, fa) + pwrite(1, fa + 20), env('SPR', 2) if KBC <= 12 else 99)
    k.barrier()
    if KBC == 13:
        check('HB', 51); fm(k, 7)
        for _ in range(4): emit(hq.pop(0))
    em(k, 9)
    xfA = pk
    sprinkle(fin_reads(0, fa) + fin_reads(1, act), env('SPR2', 8))
    sprinkle(fin_valu(0, fa, pk), env('SPR3', 14))
    if not env('MD', 0): mark(k, 4)
    late_st = [fin_store(0), fin_store(1)]
    extra0 = pairs(fin_valu(1, act, fa + 40))
    rB = act
    extra = extra0
    hq = hq + late_st
    since = 99
    for t in (2, 3):
        a = fa + 20*(t - 2)
        if t == 3:
            assert not extra
            extra = [[w_] for w_ in pwrite(2, fa)]
        for kp in range(12):
            n = 24 + 12*(t-2) + kp
            if n == 25: fm(k, 8)
            assert not any(g[0].startswith(f'buffer_load_dwordx4 {slots_h[n % NH]},') for g in hq)
            for dt in range(5):
                dd = vr(a+4*dt, 4)
                k.I(f'{MF16} {dd}, {wdreg(5*kp+dt)}, {slots_h[n % NH]}, {dd if kp else 0}')
                since += 1
                if dt == 4 and n < 46: continue
                if fl: gap(hq)
                elif hq and since >= FG and not (extra is extra0 and extra and hq[0] is late_st[1]): gap(hq); since = 0
                elif (kp >= 1 or t == 2) and extra: emit(extra.pop(0))
            if t == 3 and kp == 3:
                assert not extra
                k.barrier()
                extra = [[r_] for r_ in fin_reads(2, wdv)] + pairs(fin_valu(2, wdv, xfA)) + [fin_store(2)]
    fm(k, 9)
    while extra: emit(extra.pop(0))
    for w_ in pwrite(3, fa + 20): k.I(w_)
    xl = fin_valu(3, wdv + 32, act)
    for v_ in xl[:8]: k.I(v_)
    k.barrier()
    for r_ in fin_reads(3, wdv + 32): k.I(r_)
    for v_ in xl[8:]: k.I(v_)
    emit(fin_store(3))
    if gen.STAMPS and not env('MF', 0): k.I('s_add_u32 s66, s50, s64')
    stamp_end(k, 3, 4)
    k.label('LD_exit')
    k.I('s_endpgm')
    k.label('LY_slow', fresh=True); k.vm = []; k.lg = []
    k.I('s_mov_b32 s24, 0x40000')
    k.I('s_mov_b64 s[36:37], -1')
    k.label('LY_loop')
    k.I('s_add_u32 s50, s50, 1')
    k.I(f's_sleep {env("Y_SLEEP", 2)}')
    k.I(f'v_mov_b32 v{vcn}, 0')
    k.I('s_and_b32 s38, s24, 31')
    k.I('s_cmp_eq_u32 s38, 1')
    k.I('s_cselect_b64 exec, -1, 0')
    k.I(f'buffer_load_dword v{vcn}, v{v8}, s[12:15], 0 offen sc1')
    k.I('s_mov_b64 exec, -1')
    yloads()
    k.waitcnt(vm=0)
    k.I('s_cmp_eq_u64 s[36:37], 0')
    k.I('s_cbranch_scc1 LY_ok')
    k.I('s_sub_u32 s24, s24, 1')
    k.I('s_cbranch_scc1 LY_ok')
    k.I(f'v_cmp_gt_u32 s[36:37], 32, v{vcn}')
    ycheck()
    k.I('s_cbranch_scc1 LY_loop')
    k.I('s_branch LY_ok')
    k.label('LF0_slow', fresh=True); k.vm = []; k.lg = []
    k.I('s_mov_b32 s33, 0x40000')
    k.label('LF0_loop')
    k.I('s_sleep 4')
    k.I(f'buffer_load_dword v{hr}, v{hs}, s[12:15], s89 offen offset:1024 sc1')
    k.waitcnt(vm=0)
    k.I('s_sub_u32 s33, s33, 1')
    k.I('s_cbranch_scc1 LF0_ok')
    k.I(f'v_readfirstlane_b32 s24, v{hr}')
    k.I('s_cmp_lg_u32 s24, 1')
    k.I('s_cbranch_scc1 LF0_loop')
    k.I('s_branch LF0_ok')
    k.label('LWD', fresh=True); k.restore_state(st0)
    vc = VAlloc(keep)
    t0_ = vc.get(); t1_ = vc.get(); ra_ = vc.get(); so_ = vc.get(5); o_ = vc.get(20, 4)
    for p in range(5):
        k.I(f'v_add_u32 v{t0_}, {64*p}, v{vl}')
        k.I(f'v_mul_u32_u24 v{t1_}, 205, v{t0_}')
        k.I(f'v_lshrrev_b32 v{t1_}, 13, v{t1_}')
        k.I(f'v_mul_u32_u24 v{t1_}, 640, v{t1_}')
        k.I(f'v_add_u32 v{so_+p}, v{t1_}, v{vo16}')
    k.I(f'v_bfe_u32 v{t1_}, v{vl}, 2, 2')
    k.I(f'v_lshl_add_u32 v{t0_}, v{vq}, 3, v{t1_}')
    k.I(f'v_mul_u32_u24 v{ra_}, 640, v{t0_}')
    k.I(f'v_and_b32 v{t0_}, 3, v{vl}')
    k.I(f'v_mul_u32_u24 v{t0_}, 40, v{t0_}')
    k.I('s_mul_i32 s24, s22, 160')
    k.I(f's_add_u32 s24, s24, {CL}')
    k.I(f'v_add3_u32 v{ra_}, v{ra_}, v{t0_}, s24')
    k.I('s_mul_i32 s90, s22, 5120')
    k.I(f's_add_u32 s90, s90, {CL}')
    k.I('s_sub_u32 s48, s2, 161')
    if HALF:
        GL = CL + 20480
        wo_ = vc.get(3); rg_ = vc.get(); r2_ = vc.get(); og_ = vc.get(24, 4)
        for p in range(3):
            k.I(f'v_add_u32 v{t0_}, {64*p}, v{vl}')
            k.I(f'v_mul_u32_u24 v{t1_}, 171, v{t0_}')
            k.I(f'v_lshrrev_b32 v{t1_}, 12, v{t1_}')
            k.I(f'v_mul_u32_u24 v{t1_}, 2688, v{t1_}')
            k.I(f'v_add_u32 v{wo_+p}, v{t1_}, v{vo16}')
        k.srd(8, 36, D * F * 2)
        k.srd(16, 38, D * F * 2)
        k.I('s_sub_u32 s48, s2, 161')
        k.I('s_and_b32 s49, s48, 7')
        k.I('s_lshr_b32 s50, s48, 3')
        k.I('s_add_u32 s50, s50, 10')
        k.I('s_lshl_b32 s51, s50, 2')
        k.I('s_add_u32 s51, s51, s22')
        k.I(f's_mul_i32 s51, s51, {8*3072}')
        k.I('s_mul_i32 s24, s49, 384')
        k.I('s_add_u32 s51, s51, s24')
        k.I('s_mul_i32 s24, s22, 3072')
        k.I(f's_add_u32 m0, s24, {GL}')
        for p in range(3): k.I(f'buffer_load_dwordx4 v{wo_+p}, s[8:11], s51 offen offset:{1024*p} nt lds')
        k.I(f's_add_u32 m0, s24, {GL+12288}')
        for p in range(3): k.I(f'buffer_load_dwordx4 v{wo_+p}, s[16:19], s51 offen offset:{1024*p} nt lds')
        k.I('s_lshl_b32 s54, s49, 3')
        k.I('s_add_u32 s54, s54, s22')
        k.I('s_mul_i32 s54, s54, 10')
        k.I('s_add_u32 s54, s54, s50')
        k.I('s_mul_i32 s54, s54, 3072')
        k.I(f's_add_u32 s54, s54, {WGU_B - 30720}')
        k.I('s_cmp_lt_u32 s48, 80')
        k.I('s_cselect_b32 s54, s54, 0x7f000000')
        k.I(f's_add_u32 s34, s54, {4*10*3072}')
        k.I(f'v_bfe_u32 v{t1_}, v{vl}, 2, 2')
        k.I(f'v_lshl_add_u32 v{t0_}, v{vq}, 3, v{t1_}')
        k.I(f'v_mul_u32_u24 v{rg_}, 384, v{t0_}')
        k.I('s_mul_i32 s24, s22, 48')
        k.I(f's_add_u32 s24, s24, {GL}')
        k.I(f'v_add_u32 v{rg_}, s24, v{rg_}')
        k.I(f'v_and_b32 v{t0_}, 1, v{vl}')
        k.I(f'v_lshl_add_u32 v{r2_}, v{t0_}, 3, v{rg_}')
        k.I(f'v_bfe_u32 v{t0_}, v{vl}, 1, 1')
        k.I(f'v_mul_u32_u24 v{t0_}, 12288, v{t0_}')
        k.I(f'v_add_u32 v{r2_}, v{r2_}, v{t0_}')
        k.I(f'v_and_b32 v{t0_}, 3, v{vl}')
        k.I(f'v_lshl_add_u32 v{rg_}, v{t0_}, 3, v{rg_}')
    k.srd(36, 62, F * D * 2)
    k.srd(44, 4, F * D * 2, WD)
    def wd_in(sj):
        k.I(f's_and_b32 s49, s{sj}, 1')
        k.I(f's_lshr_b32 s50, s{sj}, 1')
        k.I('s_lshl_b32 s51, s50, 2')
        k.I('s_add_u32 s51, s51, s22')
        k.I('s_mul_i32 s51, s51, 10240')
        k.I('s_mul_i32 s24, s49, 640')
        k.I('s_add_u32 s51, s51, s24')
        k.I('s_mov_b32 m0, s90')
        for p in range(4): k.I(f'buffer_load_dwordx4 v{so_+p}, s[36:39], s51 offen offset:{1024*p} nt lds', tag='r')
        k.I('s_add_u32 m0, s90, 4096')
        k.I('s_add_u32 s51, s51, 4096')
        k.I(f'buffer_load_dwordx4 v{so_+4}, s[36:39], s51 offen nt lds', tag='r')
        k.I('s_lshl_b32 s52, s49, 2')
        k.I('s_add_u32 s52, s52, s22')
        k.I('s_mul_i32 s52, s52, 48')
        k.I('s_add_u32 s52, s52, s50')
        k.I('s_mul_i32 s52, s52, 5120')
        k.I('s_add_u32 s53, s52, 4096')
    def wd_out():
        k.wait_tag('r')
        k.I('s_barrier')
        cm_(k, 3)
        for j in range(2 if HALF else 0):
            for mt in range(3):
                for hf in range(2):
                    off = 4*hf*384 + 192*j + (12288 if mt == 1 else 0) + (32 if mt == 2 else 0)
                    k.I(f'ds_read_b64_tr_b16 {vr(og_+(3*j+mt)*4+2*hf,2)}, v{r2_ if mt == 2 else rg_} offset:{off}')
        for j in range(2 if HALF else 0):
            for mt in range(3):
                k.I(f'buffer_store_dwordx4 {vr(og_+(3*j+mt)*4,4)}, v{vo16}, s[12:15], s{34 if j else 54} offen offset:{1024*mt} sc1', tag='y')
        for dt in range(5):
            for hf in range(2): k.I(f'ds_read_b64_tr_b16 {vr(o_+dt*4+2*hf,2)}, v{ra_} offset:{4*hf*640+8*dt}')
        for dt in range(5):
            k.I(f'buffer_store_dwordx4 {vr(o_+dt*4,4)}, v{vo16}, s[44:47], s{52+(dt//4)} offen offset:{1024*(dt%4)} sc1', tag='y')
    wd_in(48)
    stW = k.save_state()
    k.I('s_sub_u32 s48, s2, 162')
    k.I('s_cmp_ge_u32 s48, 3')
    k.I('s_cbranch_scc1 LWD0')
    m0_ = 100
    k.I('s_lshl_b32 s48, s48, 8')
    k.I(f'v_add_u32 v{m0_}, s48, v0')
    k.I(f'v_lshlrev_b32 v{m0_+1}, 4, v{m0_}')
    k.srd(8, 4, 4 * 960 * 16, GR)
    for p in range(4):
        k.I(f's_mov_b32 s49, {960*16*p + 320*16}')
        k.I(f'buffer_load_dwordx4 {vr(m0_+4+4*p,4)}, v{m0_+1}, s[8:11], s49 offen')
    k.srd(12, 4, 4 * D * 4, MODN + 2 * D * 4)
    k.I('s_mov_b32 s50, 0x04000c0c')
    k.I('s_mov_b32 s51, 0x0706000c')
    k.I(f'v_mov_b32 v{m0_+22}, {fhex(1.0 / (2.0 * S * D))}')
    k.I(f'v_cmp_gt_u32 vcc, 0xa0, v{m0_}')
    k.I(f'v_cndmask_b32 v{m0_+22}, 1.0, v{m0_+22}, vcc')
    k.I(f'v_subrev_u32 v{m0_+21}, 0x140, v{m0_}')
    k.I(f'v_cmp_gt_u32 vcc, 0xa0, v{m0_+21}')
    k.I(f'v_mov_b32 v{m0_+23}, 1.0')
    k.I(f'v_cndmask_b32 v{m0_+23}, 0, v{m0_+23}, vcc')
    g_ = m0_ + 4
    for p in range(4): unpack_gran(k, g_+4*p, m0_+21, 50, 51)
    for p in (0, 2):
        k.I(f'v_pk_add_f32 {vr(g_+p,2)}, {vr(g_+p,2)}, {vr(g_+4+p,2)}')
        k.I(f'v_pk_add_f32 {vr(g_+8+p,2)}, {vr(g_+8+p,2)}, {vr(g_+12+p,2)}')
    for p in (0, 2): k.I(f'v_pk_add_f32 {vr(g_+p,2)}, {vr(g_+p,2)}, {vr(g_+8+p,2)}')
    for j in range(4): k.I(f'v_cvt_pk_bf16_f32 v{g_+j}, v{g_+j}, v{g_+j}')
    for j in range(4): k.I(f'v_and_b32 v{g_+j}, 0xffff0000, v{g_+j}')
    for j in range(4): k.I(f'v_add_f32 v{g_+j}, v{m0_+23}, v{g_+j}')
    for j in range(4): k.I(f'v_cvt_pk_bf16_f32 v{g_+j}, v{g_+j}, v{g_+j}')
    for j in range(4): k.I(f'v_and_b32 v{g_+j}, 0xffff0000, v{g_+j}')
    for j in range(4): k.I(f'v_mul_f32 v{g_+j}, v{m0_+22}, v{g_+j}')
    k.I(f'buffer_store_dwordx4 {vr(g_,4)}, v{m0_+1}, s[12:15], 0 offen sc1')
    k.label('LWD0')
    k.restore_state(stW)
    k.I('s_sub_u32 s48, s2, 161')
    scalars()
    k.I(f'v_mov_b32 v{hs}, 0')
    k.I(f'v_mov_b32 v{hs+1}, 1')
    cm_(k, 1)
    k.bg = bglist(); k.emit_bg(env('WD_B0', 14))
    cm_(k, 2)
    wd_out()
    cm_(k, 4)
    k.emit_bg(env('WD_B1', 10))
    k.wait_tag('y')
    cm_(k, 5)
    k.I('s_barrier')
    stS = k.save_state()
    k.I('s_cmp_lg_u32 s22, 0')
    k.I('s_cbranch_scc1 LFW_s')
    k.I(f'v_mov_b32 v{t0_}, 1')
    k.I(f'v_lshlrev_b32 v{t1_}, 7, v{vl}')
    k.I(f's_mov_b32 s35, {FW + 1024}')
    k.I('s_mov_b64 exec, 1')
    k.I(f'buffer_atomic_add v{t0_}, v{hs}, s[12:15], s35 offen sc0 sc1')
    k.I(f'v_readfirstlane_b32 s35, v{t0_}')
    k.I('s_cmp_eq_u32 s35, 94')
    k.I('s_cselect_b64 exec, 0xff, 0')
    k.I(f's_mov_b32 s35, {FW}')
    k.I(f'buffer_store_dword v{hs+1}, v{t1_}, s[12:15], s35 offen sc1')
    k.I('s_mov_b64 exec, -1')
    k.label('LFW_s')
    topup()
    k.emit_bg(W_J1_)
    cm_(k, 6)
    if env('CANARY', 1):
        k.I('s_lshl_b32 s48, s48, 14')
        k.I('s_add_u32 s48, s48, s25')
        k.I(f'v_mov_b32 v{t0_}, 0')
        k.I('s_mov_b32 s24, 0x400')
        k.I('s_cmp_lg_u32 s22, 0')
        k.I('s_cbranch_scc1 LCAN_o')
        k.label('LCAN')
        k.I('s_sleep 4')
        k.I(f'buffer_load_dword v{t1_}, v{t0_}, s[16:19], s48 offen sc1')
        k.waitcnt(vm=0)
        k.I(f'v_readfirstlane_b32 s49, v{t1_}')
        k.I('s_sub_u32 s24, s24, 1')
        k.I('s_cbranch_scc1 LCAN_o')
        k.I('s_cmp_eq_u32 s49, -1')
        k.I('s_cbranch_scc1 LCAN')
        k.label('LCAN_o')
        k.I('s_barrier')
    cm_(k, 7)
    k.I('s_branch LJOIN')
    for name, groups in slow:
        k.label(f'L{name}_slow', fresh=True); k.vm = []; k.lg = []
        k.I('s_mov_b32 s32, m0')
        k.I('s_mov_b32 s24, 0x40000')
        k.label(f'L{name}_loop')
        k.I('s_add_u32 s50, s50, 1')
        k.I(f'v_mov_b32 v{vck+8}, 0')
        k.I('s_and_b32 s33, s24, 31')
        k.I('s_cmp_lg_u32 s33, 1')
        k.I(f's_cbranch_scc1 L{name}_nc')
        k.I(f'buffer_load_dword v{vck+8}, v{hs}, s[12:15], s54 offen sc1')
        k.waitcnt(vm=0)
        k.label(f'L{name}_nc')
        for g in groups:
            for grp in dma(0, g): _emit(grp)
        k.I(f'v_readfirstlane_b32 s33, v{vck+8}')
        k.I('s_mov_b32 m0, s32')
        k.waitcnt(vm=0)
        k.I('s_cmp_ge_u32 s33, 16')
        k.I(f's_cbranch_scc1 L{name}_ok')
        k.I('s_sub_u32 s24, s24, 1')
        k.I(f's_cbranch_scc1 L{name}_ok')
        sl_ = list(slow)
        for g in validate(name + 'r', groups)[:-1]: _emit(g)
        slow[:] = sl_
        k.I('s_cmp_lg_u64 s[62:63], 0')
        k.I(f's_cbranch_scc1 L{name}_loop')
        k.I(f's_branch L{name}_ok')
    for name, cnt in spins:
        k.label(f'L{name}_spin', fresh=True); k.vm = []; k.lg = []
        k.I('s_mov_b32 s24, 0x100000')
        k.label(f'L{name}_loop')
        k.I(f's_sleep {env("SPIN_SLEEP", 2)}')
        k.I(f'buffer_load_dword v{hr}, v{hs}, s[12:15], s{cnt} offen sc1')
        k.waitcnt(vm=0)
        k.I(f'v_readfirstlane_b32 s33, v{hr}')
        k.I('s_sub_u32 s24, s24, 1')
        k.I(f's_cbranch_scc1 L{name}_ok')
        k.I('s_cmp_lt_u32 s33, 16')
        k.I(f's_cbranch_scc1 L{name}_loop')
        k.I(f's_branch L{name}_ok')
    return k, (256, 256, 163840)
```

```python
import sys, math, os
import gen, gen2
from gen import *
from gen2 import *
from gen import mark, stamp_begin, stamp_end

GR = WS_END2
YT = GR + 0x10000
YT_ST = 10496
WS_END4 = YT + 256 * YT_ST
EPOCH = 0x8000
NPF = 9
XNT = ' nt' if os.environ.get('XNT') == '1' else ''

def tag_issue(k, srd, vz, vt):
    k.I(f'buffer_load_dwordx2 {vr(vt,2)}, v{vz}, s[{srd}:{srd+3}], 0 offen sc1')
def tag_check(k, name, srd, vz, vt, s_tag):
    k.I('s_mov_b32 s3, 0x40000')
    k.waitcnt(vm=0)
    k.label(f'L{name}')
    k.I(f'v_readfirstlane_b32 s{s_tag+1}, v{vt+1}')
    k.I(f'v_readfirstlane_b32 s{s_tag}, v{vt}')
    k.I(f's_cmp_eq_u32 s{s_tag+1}, 1')
    k.I(f's_cbranch_scc1 L{name}_o')
    k.I('s_sub_u32 s3, s3, 1')
    k.I(f's_cbranch_scc1 L{name}_o')
    k.I('s_sleep 2')
    tag_issue(k, srd, vz, vt)
    k.waitcnt(vm=0)
    k.I(f's_branch L{name}')
    k.label(f'L{name}_o')

def role_mod4(k, lexit):
    va = VAlloc(1)
    vrw = va.get(); voff = va.get(); vc = va.get(5); vw = va.get(20, 4); acc = va.get(8, 4); t0 = va.get(); t1 = va.get(); vco = va.get()
    vz = va.get(); vt = va.get(2, 2)
    k.I(f'v_lshrrev_b32 v{vrw}, 3, v0')
    k.I(f'v_mul_u32_u24 v{voff}, 7680, v{vrw}')
    k.I(f'v_and_b32 v{t0}, 7, v0')
    k.I(f'v_lshl_add_u32 v{voff}, v{t0}, 4, v{voff}')
    k.I(f'v_lshlrev_b32 v{vco}, 1, v{vrw}')
    k.I(f'v_mov_b32 v{vz}, 0')
    k.I('s_lshl_b32 s23, s20, 7')
    k.I(f's_mul_i32 s22, s21, {160*7680}')
    k.I('s_add_u32 s23, s23, s22')
    k.I('s_mul_i32 s22, s21, 320')
    k.srd(24, 10, D * 6 * D * 2)
    k.srd(28, 8, D * 2)
    mark(k, 1)
    for i in range(5):
        k.I(f'buffer_load_dwordx4 {vr(vw+4*i,4)}, v{voff}, s[24:27], s23 offen nt')
        if i < 4: k.I(f's_add_u32 s23, s23, {32*7680}')
        if i == 0:
            for j in range(5): k.I(f'buffer_load_ushort v{vc+j}, v{vco}, s[28:31], s22 offen offset:{64*j}')
    mark(k, 2)
    k.srd(32, 4, 4 * 960 * 16, GR)
    k.srd(52, 56, 256)
    up = va.get(8, 2)
    tt = va.get(5)
    R = range(5)
    for i in R: k.I(f'v_lshlrev_b32 v{vc+i}, 16, v{vc+i}')
    tag_issue(k, 52, vz, vt)
    mark(k, 3)
    for i in R: k.I(f'v_mul_f32 v{tt+i}, {fhex(-math.log2(math.e))}, v{vc+i}')
    for i in R: k.I(f'v_exp_f32 v{tt+i}, v{tt+i}')
    for i in R: k.I(f'v_add_f32 v{tt+i}, 1.0, v{tt+i}')
    for i in R: k.I(f'v_rcp_f32 v{tt+i}, v{tt+i}')
    for i in R: k.I(f'v_mul_f32 v{vc+i}, v{vc+i}, v{tt+i}')
    for i in R: k.I(f'v_cvt_pk_bf16_f32 v{vc+i}, v{vc+i}, v{vc+i}')
    sv = va.get(10, 2)
    for i in R: k.I(f'v_and_b32 v{sv+2*i}, 0xffff0000, v{vc+i}')
    for i in R:
        for j in range(4):
            k.I(f'v_lshlrev_b32 v{up+2*j}, 16, v{vw+4*i+j}')
            k.I(f'v_and_b32 v{up+2*j+1}, 0xffff0000, v{vw+4*i+j}')
        for j in range(4):
            if i == 0: k.I(f'v_pk_mul_f32 {vr(acc+2*j,2)}, {vr(up+2*j,2)}, {vr(sv,2)} op_sel_hi:[1,0]')
            else: k.I(f'v_pk_fma_f32 {vr(acc+2*j,2)}, {vr(up+2*j,2)}, {vr(sv+2*i,2)}, {vr(acc+2*j,2)} op_sel_hi:[1,0,1]')
    for j in range(8): k.I(f'v_add_f32_dpp v{acc+j}, v{acc+j}, v{acc+j} row_ror:8 row_mask:0xf bank_mask:0xf')
    k.I(f'v_lshrrev_b32 v{t1}, 4, v0')
    k.I(f'v_lshlrev_b32 v{t1}, 8, v{t1}')
    k.I(f'v_lshl_add_u32 v{t1}, v{t0}, 5, v{t1}')
    k.I('s_mov_b32 exec_lo, 0x00ff00ff')
    k.I('s_mov_b32 exec_hi, 0x00ff00ff')
    k.I(f'ds_write_b128 v{t1}, {vr(acc,4)}')
    k.I(f'ds_write_b128 v{t1}, {vr(acc+4,4)} offset:16')
    k.I('s_mov_b64 exec, -1')
    k.I('v_readfirstlane_b32 s38, v0')
    k.I(f'v_lshlrev_b32 v{t0}, 2, v0')
    k.barrier()
    mark(k, 4)
    k.I('s_cmp_lg_u32 s38, 0')
    k.I(f's_cbranch_scc1 {lexit}')
    for j in range(8):
        k.I(f'ds_read2st64_b32 {vr(vw+2*j,2)}, v{t0} offset0:{2*j} offset1:{2*j+1}')
    k.I('s_sub_u32 s39, s20, 10')
    k.I('s_cmp_lt_u32 s39, 10')
    k.I('s_cselect_b32 s41, 1.0, 0')
    k.I('s_cmp_eq_u32 s21, 0')
    k.I('s_cselect_b32 s41, s41, 0')
    k.I(f's_mul_i32 s45, s21, {960*16}')
    k.I('s_lshl_b32 s44, s20, 8')
    k.I('s_add_u32 s45, s45, s44')
    k.I('s_mov_b32 s40, 0x07060503')
    k.I('s_mov_b32 s42, 0x07060502')
    k.I('s_mov_b32 s43, 0x07060501')
    for j in range(4): k.I(f'v_pk_add_f32 {vr(vw+2*j,2)}, {vr(vw+2*j,2)}, {vr(vw+8+2*j,2)}')
    for j in range(2): k.I(f'v_pk_add_f32 {vr(vw+2*j,2)}, {vr(vw+2*j,2)}, {vr(vw+4+2*j,2)}')
    k.I(f'v_pk_add_f32 {vr(vw,2)}, {vr(vw,2)}, {vr(vw+2,2)}')
    k.I(f'v_add_f32 v{vw}, v{vw}, v{vw+1}')
    k.I(f'v_add_f32 v{vw}, s41, v{vw}')
    for j in range(1, 4): k.I(f'v_mov_b32_dpp v{vw+j}, v{vw} quad_perm:[{j},{j},{j},{j}] row_mask:0xf bank_mask:0xf')
    for j, sel in enumerate((40, 42, 43)): k.I(f'v_perm_b32 v{vw+j}, v{vw+j}, v{vw+3}, s{sel}')
    mark(k, 5)
    tag_check(k, 'A_tag', 52, vz, vt, 58)
    mark(k, 6)
    k.I(f'v_mov_b32 v{vw+3}, s58')
    k.I('s_mov_b32 exec_lo, 0x11111111')
    k.I('s_mov_b32 exec_hi, 0x11111111')
    k.I(f'buffer_store_dwordx4 {vr(vw,4)}, v{t0}, s[32:35], s45 offen sc1')

def unpack_gran(k, g, t, s1, s2):
    k.I(f'v_perm_b32 v{t}, v{g}, v{g+1}, s{s1}')
    k.I(f'v_perm_b32 v{g+3}, v{t}, v{g+2}, s{s2}')

class Rec:
    def __init__(self): self.l = []
    def I(self, t, **kw): self.l.append(t)
def rec(fn, *a):
    r = Rec(); fn(r, *a); return r.l
def merge(k, main, fill, per):
    fill = list(fill)
    for m in main:
        k.I(m)
        for _ in range(per):
            if fill: k.I(fill.pop(0))
    for t in fill: k.I(t)

def role_B4(k, boff):
    PL = 5184; ML = 4 * PL
    k.I(f's_sub_u32 s2, s2, {boff}')
    va = VAlloc(2)
    vl = va.get(); xs = va.get(20, 4); md = va.get(20, 4); vo = va.get()
    for i in range(20): k.I(f'v_mov_b32 v{xs+i}, 0')
    ids2(k, vl)
    k.I('s_mul_i32 s28, s23, 1280')
    k.I(f's_add_u32 s29, s28, {32*1280}')
    k.I(f'v_lshlrev_b32 v{vo}, 1, v{vl}')
    def xloads():
        k.srd(40, 6, S * D * 2)
        for e in range(10):
            k.I(f'buffer_load_short_d16_hi v{xs+2*e}, v{vo}, s[40:43], s28 offen offset:{128*e}{XNT}')
            k.I(f'buffer_load_short_d16_hi v{xs+2*e+1}, v{vo}, s[40:43], s29 offen offset:{128*e}{XNT}')
    fi = va.get(); fq = va.get(); fq4 = va.get(); vi = va.get(); vq = va.get()
    k.I(f'v_and_b32 v{vi}, 15, v{vl}')
    k.I(f'v_lshrrev_b32 v{vq}, 4, v{vl}')
    k.I(f'v_cvt_f32_u32 v{fi}, v{vi}')
    k.I(f'v_cvt_f32_u32 v{fq}, v{vq}')
    k.I(f'v_mul_f32 v{fq4}, 4.0, v{fq}')
    va.n = (va.n + 3) // 4 * 4
    r_ = Rec(); f40 = gen_f40(r_, va, fi, fq, False)
    XA = env('X_AT', 160)
    def poison():
        if not env('POISON', 1) or (G6 and env('P_MODR', 1)): return
        for j in range(4): k.I(f'v_mov_b32 v{md+j}, -1')
        k.I(f'v_lshlrev_b32 v{md+4}, 4, v0')
        k.I('s_lshr_b32 s30, s21, 2')
        k.I('s_and_b32 s31, s30, 2')
        k.I('s_add_u32 s30, s30, s31')
        k.I('s_lshl_b32 s31, s20, 3')
        k.I('s_add_u32 s30, s30, s31')
        k.I('s_lshl_b32 s30, s30, 2')
        k.I('s_and_b32 s31, s21, 3')
        k.I('s_add_u32 s30, s30, s31')
        k.I('s_mul_i32 s30, s30, 5120')
        k.I(f's_add_u32 s30, s30, {H2}')
        k.I('s_add_u32 s40, s4, s30')
        k.I('s_addc_u32 s41, s5, 0')
        k.I('s_mov_b32 s42, 5120')
        k.I('s_mov_b32 s43, 0x00020000')
        k.I('s_movk_i32 s30, 0x1000')
        PST = ' sc1' if env('P_SC1', 1) else ''
        k.I(f'buffer_store_dwordx4 {vr(md,4)}, v{md+4}, s[40:43], 0 offen{PST}')
        k.I(f'buffer_store_dwordx4 {vr(md,4)}, v{md+4}, s[40:43], s30 offen{PST}')
        if G6:
            k.I('s_lshl_b32 s31, s20, 4')
            k.I('s_add_u32 s31, s31, s21')
            k.I('s_mul_i32 s31, s31, 10304')
            k.I(f's_add_u32 s31, s31, {YT}')
            k.I('s_add_u32 s40, s4, s31')
            k.I('s_addc_u32 s41, s5, 0')
            k.I('s_mov_b32 s42, 10304')
            k.I('s_mov_b32 s43, 0x00020000')
            k.I('s_movk_i32 s31, 0x2000')
            for so_ in ('0', 's30', 's31'): k.I(f'buffer_store_dwordx4 {vr(md,4)}, v{md+4}, s[40:43], {so_} offen{PST}')
    PA = env('P_AT', 20)
    for t in r_.l[:min(PA, XA)]: k.I(t)
    if PA <= XA: poison()
    for t in r_.l[min(PA, XA):XA]: k.I(t)
    xloads()
    for t in r_.l[XA:]: k.I(t)
    va.n = f40 + 62
    mark(k, 1)
    k.srd(44, 4, XT_SZ, XT)
    k.srd(48, 4, 4 * 960 * 16, GR)
    k.srd(52, 56, 256)
    cs, sn = gen_tw640(k, va, fi, fq4)
    va.n = sn + 12
    f16 = va.get(8, 2); tmp = va.get(8, 2); ta = md
    dat = va.get(12, 2)
    k.I(f'v_mov_b32 v{dat+10}, 0'); k.I(f'v_mov_b32 v{dat+11}, 0')
    tag_issue(k, 52, dat + 10, dat)
    k.I(f'v_lshrrev_b32 v{ta}, 1, v{vi}')
    k.I(f'v_cvt_f32_u32 v{ta}, v{ta}')
    k.I(f'v_and_b32 v{ta+1}, 1, v{vi}')
    k.I(f'v_cvt_f32_u32 v{ta+1}, v{ta+1}')
    k.I(f'v_mul_f32 v{ta+1}, 0x3e800000, v{ta+1}')
    for U in range(2):
        k.I(f'v_add_f32 v{ta+2}, {fhex(8.0*U)}, v{ta}')
        k.I(f'v_mul_f32 v{ta+2}, {fhex(1.0/16)}, v{ta+2}')
        k.I(f'v_fma_f32 v{ta+3}, v{fq4}, v{ta+2}, v{ta+1}')
        for j in range(4): k.I(f'v_fmamk_f32 v{tmp+4+j}, v{ta+2}, {fhex(float(j))}, v{ta+3}')
        for j in range(4):
            k.I(f'v_cos_f32 v{tmp+j}, v{tmp+4+j}')
            k.I(f'v_sin_f32 v{tmp+4+j}, v{tmp+4+j}')
        for j in range(4): k.I(f'v_cvt_pk_bf16_f32 v{f16+4*U+j}, v{tmp+2*j}, v{tmp+2*j+1}')
    wa = fi; ru = fq; rv = fq4; so = vo
    k.I(f'v_mul_u32_u24 v{wa}, 80, v{vq}')
    k.I(f'v_add_lshl_u32 v{wa}, v{wa}, v{vi}, 3')
    k.I(f's_mul_i32 s31, s22, {PL}')
    k.I(f'v_add_u32 v{wa}, s31, v{wa}')
    k.I(f'v_and_b32 v{ta}, 1, v0')
    k.I(f'v_lshrrev_b32 v{ta+1}, 1, v0')
    k.I(f'v_mul_u32_u24 v{ru}, {2*PL}, v{ta}')
    k.I(f'v_sub_u32 v{rv}, 384, v{ta+1}')
    k.I(f'v_lshl_add_u32 v{rv}, v{rv}, 3, v{ru}')
    k.I(f'v_lshl_add_u32 v{ru}, v{ta+1}, 3, v{ru}')
    k.I(f'v_lshlrev_b32 v{so}, 13, v{ta+1}')
    k.I(f'v_lshl_add_u32 v{so}, v{ta}, 4, v{so}')
    gA = 1; gB = vq; lB = vi; rm = vl
    k.I('s_mul_i32 s31, s22, 1280')
    k.I(f'v_lshl_add_u32 v{gA}, v{vl}, 4, s31')
    k.I('s_add_u32 s31, s31, 1024')
    k.I(f'v_lshl_add_u32 v{lB}, v{vi}, 4, s31')
    k.I(f'v_mul_u32_u24 v{gB}, {960*16}, v{vq}')
    k.I(f'v_add_u32 v{gB}, v{gB}, v{lB}')
    k.I(f'v_lshlrev_b32 v{rm}, 2, v{vl}')
    k.I(f'v_add_u32 v{rm}, {ML}, v{rm}')
    for p in range(1, 4): k.I(f's_mov_b32 s{35+p}, {960*16*p}')
    k.I('s_mov_b32 s60, 0x04000c0c')
    k.I('s_mov_b32 s61, 0x0706000c')
    mark(k, 2)
    sm = md; sq = md + 2; rr = md + 4; nmr = md + 6
    k.I(f'v_pk_add_f32 {vr(sm,2)}, {vr(xs,2)}, {vr(xs+2,2)}')
    k.I(f'v_pk_mul_f32 {vr(sq,2)}, {vr(xs,2)}, {vr(xs,2)}')
    k.I(f'v_pk_fma_f32 {vr(sq,2)}, {vr(xs+2,2)}, {vr(xs+2,2)}, {vr(sq,2)}')
    for e in range(2, 10):
        k.I(f'v_pk_add_f32 {vr(sm,2)}, {vr(sm,2)}, {vr(xs+2*e,2)}')
        k.I(f'v_pk_fma_f32 {vr(sq,2)}, {vr(xs+2*e,2)}, {vr(xs+2*e,2)}, {vr(sq,2)}')
    wave_reduce_to_sgpr(k, [sm, sm+1, sq, sq+1], [32, 33, 34, 35])
    ln_scalars(k, 32, 34, rr, nmr, tmp)
    for e in range(10):
        k.I(f'v_pk_fma_f32 {vr(xs+2*e,2)}, {vr(xs+2*e,2)}, {vr(rr,2)}, {vr(nmr,2)}')
    mark(k, 3)
    tag_check(k, 'B_tag', 52, dat + 10, dat, 58)
    mark(k, 4)
    tx = tmp
    k.I('s_mov_b32 s3, 0x40000')
    k.label('LB_poll')
    for p in range(4):
        k.I(f'buffer_load_dwordx4 {vr(md+4*p,4)}, v{gA}, s[48:51], {"s%d" % (35+p) if p else 0} offen sc1')
    k.I(f'buffer_load_dwordx4 {vr(md+16,4)}, v{gB}, s[48:51], 0 offen sc1')
    for p in range(5): k.I(f'v_xor_b32 v{tx+p}, s58, v{md+4*p+3}')
    k.I(f'v_or3_b32 v{tx}, v{tx}, v{tx+1}, v{tx+2}')
    k.I(f'v_or3_b32 v{tx}, v{tx}, v{tx+3}, v{tx+4}')
    k.I(f'v_cmp_ne_u32 vcc, 0, v{tx}')
    for p in (4, 0, 1, 2, 3): unpack_gran(k, md+4*p, tx+1+p, 60, 61)
    k.I('s_cbranch_vccz LB_go')
    k.I(f's_sleep {env("SLEEP", 2)}')
    k.I('s_sub_u32 s3, s3, 1')
    k.I('s_cbranch_scc0 LB_poll')
    k.label('LB_go')
    mark(k, 5)
    b_ = md + 16
    for j in range(4): k.I(f'v_mov_b32 v{tx+j}, v{b_+j}')
    for p in (0, 2):
        k.I(f'v_pk_add_f32 {vr(md+p,2)}, {vr(md+p,2)}, {vr(md+4+p,2)}')
        k.I(f'v_pk_add_f32 {vr(md+8+p,2)}, {vr(md+8+p,2)}, {vr(md+12+p,2)}')
    for j in range(4): k.I(f'v_permlane32_swap_b32 v{tx+j}, v{b_+j}')
    for p in (0, 2): k.I(f'v_pk_add_f32 {vr(md+p,2)}, {vr(md+p,2)}, {vr(md+8+p,2)}')
    for p in (0, 2): k.I(f'v_pk_add_f32 {vr(b_+p,2)}, {vr(b_+p,2)}, {vr(tx+p,2)}')
    k.I(f'ds_write_b128 v{gA}, {vr(md,4)} offset:{ML}')
    for j in range(4): k.I(f'v_mov_b32 v{tx+j}, v{b_+j}')
    for j in range(4): k.I(f'v_permlane16_swap_b32 v{tx+j}, v{b_+j}')
    for p in (0, 2): k.I(f'v_pk_add_f32 {vr(b_+p,2)}, {vr(b_+p,2)}, {vr(tx+p,2)}')
    k.I(f'ds_write_b128 v{lB}, {vr(b_,4)} offset:{ML}')
    k.barrier()
    mark(k, 6)
    for p in range(5):
        k.I(f'ds_read2st64_b32 {vr(md+4*p,2)}, v{rm} offset0:{10+2*p} offset1:{11+2*p}')
        k.I(f'ds_read2st64_b32 {vr(md+4*p+2,2)}, v{rm} offset0:{2*p} offset1:{2*p+1}')
    for e in range(10):
        h_ = e & 1; p = e // 2
        k.I(f'v_pk_fma_f32 {vr(xs+2*e,2)}, {vr(xs+2*e,2)}, {vr(md+4*p,2)}, {vr(md+4*p+2,2)} op_sel:[0,{h_},{h_}] op_sel_hi:[1,{h_},{h_}]')
        if e >= 1: k.I(f'v_cvt_pk_bf16_f32 v{dat+e-1}, v{xs+2*e-2}, v{xs+2*e-1}')
    k.I(f'v_cvt_pk_bf16_f32 v{dat+9}, v{xs+18}, v{xs+19}')
    d1 = xs; b2 = xs + 24; d2 = f40
    def s1(T):
        o = []
        for kap in range(3):
            for c in range(2):
                dd = vr(d1 + (2*T+c)*4, 4)
                o.append(f'{MF16} {dd}, {vr(dat+4*kap,4)}, {vr(f40+(2*T+c)*10+4*kap,4)}, {dd if kap else 0}')
        return o
    cm = [rec(cmul4, d1+8*T, d1+8*T+4, cs+4*T, sn+4*T, b2+4*T, tmp, False) for T in range(3)]
    def s2(T): return [f'{MF16} {vr(d2+(2*T+U)*4,4)}, {vr(f16+4*U,4)}, {vr(b2+4*T,4)}, 0' for U in range(2)]
    def wr(T): return [f'ds_write_b64 v{wa}, {vr(d2+(2*T+U)*4+2*h,2)} offset:{(16*T+320*U+40*h)*8}' for U in range(2) for h in range(2)]
    for t in s1(0) + s1(1) + s1(2) + cm[0] + s2(0) + cm[1] + s2(1) + wr(0) + cm[2] + s2(2) + wr(1): k.I(t)
    mark(k, 7)
    k.I('s_mov_b64 exec, 1')
    k.I(f'ds_write_b64 v{wa}, {vr(d2,2)} offset:5120')
    k.I('s_mov_b32 exec_lo, 0x00ff00ff')
    k.I('s_mov_b32 exec_hi, 0x00ff00ff')
    for t in wr(2): k.I(t)
    k.I('s_mov_b64 exec, -1')
    k.barrier()
    mark(k, 8)
    rd = d1; oc = b2
    for rho in range(3):
        for pr in range(2):
            k.I(f'ds_read_b64 {vr(rd+8*rho+4*pr,2)}, v{ru} offset:{pr*PL+1024*rho}')
            k.I(f'ds_read_b64 {vr(rd+8*rho+4*pr+2,2)}, v{rv} offset:{pr*PL+1024*(2-rho)}')
    for rho in range(3):
        for pr in range(2):
            u = rd+8*rho+4*pr; v = u+2
            k.I(f'v_pk_add_f32 {vr(tmp+4*pr,2)}, {vr(u,2)}, {vr(v,2)}')
            k.I(f'v_pk_add_f32 {vr(tmp+4*pr+2,2)}, {vr(u,2)}, {vr(v,2)} neg_lo:[0,1] neg_hi:[0,1]')
        for pr in range(2):
            k.I(f'v_cvt_pk_bf16_f32 v{oc+4*rho+pr}, v{tmp+4*pr}, v{tmp+4*pr+1}')
            k.I(f'v_cvt_pk_bf16_f32 v{oc+4*rho+2+pr}, v{tmp+4*pr+3}, -v{tmp+4*pr+2}')
        k.I(f'buffer_store_dwordx4 {vr(oc+4*rho,4)}, v{so}, s[44:47], s{25+rho} offen{" sc1" if env("XT_SC1", 0) else ""}')
    if PA > XA:
        md = f40
        poison()
    if gen.STAMPS: k.I(f's_add_u32 s2, s2, {boff}')

G6 = env('GEN6', 0)
OLDM = env('OLD_MODR', 0)
LOOPM = env('LOOPM', 1) if G6 else 0
CNT = dict(wd1=1, modr=80 if (OLDM or LOOPM) else 160, wt=N_WT, wgu=N_WGU, wd=N_WD)
K1_SIDE = os.environ.get('K1_SIDE', 'wt,modr').split(',')
C_SIDE = [r for r in ('wgu', 'wd') if r not in K1_SIDE]

MISC_EXTRA = []
def gen_K1():
    k = Kernel('ka_kernel')
    stamp_begin(k)
    k.I(f's_load_dwordx4 s[56:59], s[0:1], {KA["dbg"]}')
    k.I(f's_load_dwordx4 s[8:11], s[0:1], {KA["c"]}')
    k.I(f's_load_dwordx2 s[4:5], s[0:1], {KA["ws"]}')
    k.I(f's_load_dwordx2 s[6:7], s[0:1], {KA["x"]}')
    k.I(f's_load_dwordx4 s[12:15], s[0:1], {KA["wr"]}')
    if 'wgu' in K1_SIDE or env('RAW_PF', 0): k.I(f's_load_dwordx4 s[16:19], s[0:1], {KA["wg"]}')
    if 'wd' in K1_SIDE or 'wd1' in K1_SIDE or env('RAW_PF', 0): k.I(f's_load_dwordx2 s[62:63], s[0:1], {KA["wd"]}')
    boff = 88; n = boff + 256; lo = {}
    for r in K1_SIDE:
        lo[r] = n; n += CNT[r]
    total = n
    st = k.save_state()
    k.I('s_cmp_lg_u32 s2, 0')
    k.I('s_cbranch_scc1 LA_n0')
    k.I('v_mov_b32 v2, 0')
    k.I(f'v_mov_b32 v3, {EPOCH}')
    k.I('v_mov_b32 v5, 1')
    k.I(f's_load_dword s30, s[58:59], {EPOCH}')
    k.srd(24, 58, 0x10000)
    k.srd(52, 56, 256)
    k.I('v_cmp_eq_u32 vcc, 0, v0')
    k.I('s_and_b64 exec, exec, vcc')
    k.I('s_cbranch_execz LA_misc')
    k.I('s_add_u32 s30, s30, 1')
    k.I('v_mov_b32 v4, s30')
    k.I('buffer_store_dwordx2 v[4:5], v2, s[52:55], 0 offen sc1')
    k.I('buffer_store_dword v4, v3, s[24:27], 0 offen sc1')
    k.I('s_branch LA_misc')
    k.label('LA_n0', fresh=True); k.restore_state(st)
    k.I('s_sub_u32 s20, s2, 8')
    k.I('s_cmp_lt_u32 s20, 80')
    k.I('s_cbranch_scc0 LA_disp')
    k.raw('LA_mod:')
    k.I('s_mov_b32 s61, s20')
    k.I('s_and_b32 s21, s20, 3')
    k.I('s_lshr_b32 s20, s20, 2')
    def poison_modr():
        k.I('s_mov_b64 exec, -1')
        k.I('s_sub_u32 s46, s61, 80')
        k.I('s_cmp_ge_u32 s46, 160')
        k.I('s_cbranch_scc1 LA_np')
        for j in range(4): k.I(f'v_mov_b32 v{100+j}, -1')
        k.I('v_lshlrev_b32 v104, 4, v0')
        k.srd(48, 4, WS_END4)
        k.I('s_lshl_b32 s47, s46, 14')
        k.I(f's_add_u32 s47, s47, {YT}')
        for j in range(4):
            k.I('buffer_store_dwordx4 v[100:103], v104, s[48:51], s47 offen sc1')
            k.I('s_add_u32 s47, s47, 4096')
        k.I('s_mul_i32 s47, s46, 205')
        k.I('s_lshr_b32 s47, s47, 10')
        k.I('s_mul_i32 s47, s47, 40960')
        k.I('s_lshl_b32 s46, s46, 13')
        k.I('s_add_u32 s47, s47, s46')
        k.I(f's_add_u32 s47, s47, {H2}')
        for j in range(2):
            k.I('buffer_store_dwordx4 v[100:103], v104, s[48:51], s47 offen sc1')
            k.I('s_add_u32 s47, s47, 4096')
        k.label('LA_np')
    PM = env('P_MODR', 1) if G6 else 0
    if PM == 2: poison_modr()
    role_mod4(k, 'LA_end')
    k.label('LA_end')
    if LOOPM:
        k.I('s_mov_b64 exec, -1')
        k.I('s_cmp_ge_u32 s61, 80')
        k.I('s_cbranch_scc1 LA_end1')
        k.I('s_add_u32 s20, s61, 160')
        k.barrier(vm=None)
        k.I('s_branch LA_mod')
        k.label('LA_end1')
    if PM == 1: poison_modr()
    stamp_end(k, 0, 4)
    k.label('LA_exit')
    k.I('s_endpgm')
    k.label('LA_disp', fresh=True); k.restore_state(st)
    k.I('s_cmp_lt_u32 s2, 8')
    k.I('s_cbranch_scc1 LA_misc')
    k.I(f's_sub_u32 s20, s2, {boff}')
    k.I('s_cmp_lt_u32 s20, 256')
    k.I('s_cbranch_scc1 LA_B')
    for r in K1_SIDE:
        if r == 'modr' and not OLDM: continue
        k.I(f's_sub_u32 s20, s2, {lo[r]}')
        k.I(f's_cmp_lt_u32 s20, {CNT[r]}')
        k.I(f's_cbranch_scc1 LA_{r}')
    k.I(f's_cmp_ge_u32 s2, {total}')
    k.I('s_cbranch_scc1 LA_exit')
    k.I(f's_sub_u32 s20, s2, {lo["modr"] - 80}')
    k.I('s_branch LA_mod')
    k.label('LA_B', fresh=True); k.restore_state(st)
    role_B4(k, boff)
    stamp_end(k, 0, 4)
    k.I('s_endpgm')
    def modr6():
        k.I('s_and_b32 s21, s20, 7')
        k.I('s_lshl_b32 s21, s21, 1')
        k.I('s_bfe_u32 s22, s20, 0x10003')
        k.I('s_add_u32 s21, s21, s22')
        k.I('s_and_b32 s20, s20, 0x70')
        k.I('s_add_u32 s20, s20, s21')
        k.I('s_add_u32 s20, s20, 40')
        vw, t0, t1 = role_mod(k, 8, 10, 'LA_mr_end')
        k.I('s_lshl_b32 s45, s20, 7')
        k.I(f'v_lshl_add_u32 v{t0}, v0, 2, s45')
        k.I('s_mov_b32 exec_hi, 0')
        k.I(f'buffer_store_dword v{vw}, v{t0}, s[32:35], 0 offen')
        k.label('LA_mr_end')
    fns = dict(wd=lambda: role_wd(k, 62), wgu=lambda: role_wgu(k, 16, 18), wt=lambda: role_wt(k, 12, 14), modr=modr6,
               wd1=lambda: (k.I('s_movk_i32 s20, 95'), role_wd(k, 62)))
    for r in K1_SIDE:
        if r == 'modr' and not OLDM: continue
        k.label(f'LA_{r}', fresh=True); k.restore_state(st)
        fns[r]()
        if r == 'wt' and env('RAW_PF', 0):
            k.I('s_mov_b64 exec, -1')
            k.I(f's_sub_u32 s20, s2, {lo["wt"]}')
            k.I('s_cmp_ge_u32 s20, 96')
            k.I('s_cbranch_scc1 LA_wt2')
            role_wd(k, 62, pf=True)
            k.label('LA_wt2')
        stamp_end(k, 0, 4)
        k.I('s_endpgm')
    k.label('LA_misc', fresh=True); k.restore_state(st)
    k.I('s_mov_b64 exec, -1')
    if G6:
        k.srd(24, 4, 88 * 128, FLAGS)
        k.I('v_lshlrev_b32 v3, 7, v0')
        k.I('v_mov_b32 v2, 0')
        k.I('buffer_store_dword v2, v3, s[24:27], 0 offen')
        k.srd(32, 4, 4 * D * 4, MODN + 2 * D * 4)
        for j in range(4): k.I(f'v_mov_b32 v{48+j}, -1')
        k.I('v_lshlrev_b32 v3, 4, v0')
        k.I('s_lshl_b32 s30, s2, 12')
        k.I('buffer_store_dwordx4 v[48:51], v3, s[32:35], s30 offen sc1')
        k.srd(32, 4, 16384, YT + 160 * 16384)
        k.I('buffer_store_dwordx4 v[48:51], v3, s[32:35], s30 offen sc1')
    k.I('s_getpc_b64 s[28:29]')
    k.raw('LA_pc:')
    k.I('s_sub_u32 s28, s28, LA_pc-ka_kernel')
    k.I('s_subb_u32 s29, s29, 0')
    k.I('v_lshlrev_b32 v60, 4, v0')
    k.I('v_mov_b32 v61, s29')
    for i in range(NPF):
        k.I('v_min_u32 v6, Lcode_end-ka_kernel-16, v60')
        k.I('v_add_co_u32 v6, vcc, s28, v6')
        k.I('v_addc_co_u32 v7, vcc, 0, v61, vcc')
        k.I(f'global_load_dwordx4 {vr(8+4*i,4)}, v[6:7], off')
        k.I('v_add_u32 v60, 0x1000, v60')
    k.waitcnt(vm=0, lgkm=0)
    if MISC_EXTRA:
        k.I('v_readfirstlane_b32 s30, v0')
        k.I('s_lshl_b32 s31, s2, 8')
        k.I('s_add_u32 s30, s30, s31')
        k.I('s_cmp_lg_u32 s30, 0x100')
        k.I('s_cbranch_scc1 LA_mend')
        MISC_EXTRA[0](k)
        k.label('LA_mend')
    stamp_end(k, 0, 4)
    k.I('s_endpgm')
    print('K1 roles', lo, total)
    return k, (total, 256, 40960 if 'wd' in K1_SIDE else 26112)

def role_modfin(k):
    k.I('s_lshl_b32 s20, s20, 8')
    k.I('v_add_u32 v1, s20, v0')
    k.I('v_lshlrev_b32 v2, 4, v1')
    k.srd(24, 4, 4 * 960 * 16, GR)
    for p in range(4):
        k.I(f's_mov_b32 s21, {960*16*p + 320*16}')
        k.I(f'buffer_load_dwordx4 {vr(4+4*p,4)}, v2, s[24:27], s21 offen')
    k.srd(28, 4, 32 * 256, FLAGS)
    k.I('v_lshlrev_b32 v3, 7, v1')
    k.I('v_mov_b32 v20, 0')
    k.I('buffer_store_dword v20, v3, s[28:31], 0 offen')
    k.srd(32, 4, 4 * D * 4, MODN + 2 * D * 4)
    k.I('s_mov_b32 s60, 0x04000c0c')
    k.I('s_mov_b32 s61, 0x0706000c')
    k.I(f'v_mov_b32 v22, {fhex(1.0 / (2.0 * S * D))}')
    k.I('v_cmp_gt_u32 vcc, 0xa0, v1')
    k.I('v_cndmask_b32 v22, 1.0, v22, vcc')
    k.I('v_subrev_u32 v21, 0x140, v1')
    k.I('v_cmp_gt_u32 vcc, 0xa0, v21')
    k.I('v_mov_b32 v23, 1.0')
    k.I('v_cndmask_b32 v23, 0, v23, vcc')
    for p in range(4): unpack_gran(k, 4+4*p, 21, 60, 61)
    for p in (0, 2):
        k.I(f'v_pk_add_f32 {vr(4+p,2)}, {vr(4+p,2)}, {vr(8+p,2)}')
        k.I(f'v_pk_add_f32 {vr(12+p,2)}, {vr(12+p,2)}, {vr(16+p,2)}')
    for p in (0, 2): k.I(f'v_pk_add_f32 {vr(4+p,2)}, {vr(4+p,2)}, {vr(12+p,2)}')
    for j in range(4): k.I(f'v_cvt_pk_bf16_f32 v{4+j}, v{4+j}, v{4+j}')
    for j in range(4): k.I(f'v_and_b32 v{4+j}, 0xffff0000, v{4+j}')
    for j in range(4): k.I(f'v_add_f32 v{4+j}, v23, v{4+j}')
    for j in range(4): k.I(f'v_cvt_pk_bf16_f32 v{4+j}, v{4+j}, v{4+j}')
    for j in range(4): k.I(f'v_and_b32 v{4+j}, 0xffff0000, v{4+j}')
    for j in range(4): k.I(f'v_mul_f32 v{4+j}, v22, v{4+j}')
    k.I('buffer_store_dwordx4 v[4:7], v2, s[32:35], 0 offen')

def gen_C4():
    k, (g, b, l) = gen_C()
    assert k.out[-2] == 'LC_exit:'
    k.out.pop(); k.out.pop()
    k.I('s_endpgm')
    k.label('LC_exit', fresh=True); k.vm = []; k.lg = []
    k.I(f's_load_dwordx2 s[4:5], s[0:1], {KA["ws"]}')
    k.I(f's_load_dwordx4 s[16:19], s[0:1], {KA["wg"]}')
    k.I(f's_load_dwordx2 s[62:63], s[0:1], {KA["wd"]}')
    st = k.save_state()
    n = 328; lo = {}
    for r in C_SIDE:
        lo[r] = n; n += CNT[r]
        k.I(f's_sub_u32 s20, s2, {lo[r]}')
        k.I(f's_cmp_lt_u32 s20, {CNT[r]}')
        k.I(f's_cbranch_scc1 LC_{r}')
    k.I('s_sub_u32 s20, s2, 321')
    k.I('s_cmp_ge_u32 s20, 3')
    k.I('s_cbranch_scc1 LC_x')
    role_modfin(k)
    k.label('LC_x')
    k.I('s_endpgm')
    fns = dict(wd=lambda: role_wd(k, 62), wgu=lambda: role_wgu(k, 16, 18))
    for r in C_SIDE:
        k.label(f'LC_{r}', fresh=True); k.restore_state(st)
        fns[r]()
        stamp_end(k, 2, 4)
        k.I('s_endpgm')
    print('C roles', lo, n)
    return k, (n if C_SIDE else 324, b, 40960 if 'wd' in C_SIDE else max(l, 24576))

KERNELS = (gen_K1, gen_C4, gen_DEF)
if __name__ == '__main__':
    out = sys.argv[1] if len(sys.argv) > 1 else 'adaLN_cond__spectral_gfnet__glu_gated_bilinear__prompt.s'
    if len(sys.argv) > 2 and sys.argv[2] == 'stamps': gen.STAMPS = True
    build(out, KERNELS)
```

```python
import sys, math, os
import gen, gen2, gen4
from gen import *
from gen2 import *
from gen4 import *
from gen import mark, stamp_begin, stamp_end

N_WT5 = 128
def role_wt5(k, s_wr, s_wi):
    BS = 5136
    va = VAlloc(1)
    vl = va.get(); vo = va.get(); ra = va.get(); dst = va.get(); t0 = va.get()
    lo = va.get(24, 4); hi = va.get(24, 4)
    k.I('v_lshrrev_b32 v1, 6, v0')
    k.I('v_readfirstlane_b32 s22, v1')
    k.I(f'v_and_b32 v{vl}, 63, v0')
    k.I(f'v_lshlrev_b32 v{vo}, 4, v{vl}')
    k.I('s_and_b32 s21, s20, 7')
    k.I('s_bfe_u32 s23, s20, 0x10003')
    k.I('s_bfe_u32 s24, s20, 0x20004')
    k.I('s_lshr_b32 s25, s20, 6')
    k.I('s_lshl_b32 s26, s21, 2')
    k.I('s_add_u32 s26, s26, s22')
    k.I('s_lshl_b32 s26, s26, 3')
    k.I('s_lshl_b32 s27, s24, 1')
    k.I('s_add_u32 s26, s26, s27')
    k.I('s_add_u32 s26, s26, s23')
    k.I(f's_mul_i32 s26, s26, {BS}')
    k.I(f's_mul_i32 s27, s22, {BS}')
    k.I('s_mov_b32 m0, s27')
    k.I('s_cmp_eq_u32 s25, 0')
    k.I(f's_cselect_b32 s28, s{s_wr}, s{s_wi}')
    k.I(f's_cselect_b32 s29, s{s_wr+1}, s{s_wi+1}')
    k.I(f's_mov_b32 s30, {S * 321 * 2}')
    k.I('s_mov_b32 s31, 0x00020000')
    for i in range(4): k.I(f'buffer_load_dwordx4 v{vo}, s[28:31], s26 offen offset:{1024*i} nt lds')
    k.I('s_add_u32 m0, s27, 4096')
    k.I('s_add_u32 s26, s26, 4096')
    k.I(f'buffer_load_dwordx4 v{vo}, s[28:31], s26 offen nt lds')
    k.I('s_mov_b64 exec, 1')
    k.I(f'buffer_load_dwordx4 v{vo}, s[28:31], s26 offen offset:1024 nt lds')
    k.I('s_mov_b64 exec, -1')
    k.I(f'v_and_b32 v{t0}, 3, v0')
    k.I(f'v_mul_u32_u24 v{ra}, 1284, v{t0}')
    k.I(f'v_lshlrev_b32 v{dst}, 4, v{t0}')
    k.I(f'v_lshrrev_b32 v{t0}, 2, v0')
    k.I(f'v_lshl_add_u32 v{ra}, v{t0}, 1, v{ra}')
    k.I(f'v_lshl_add_u32 v{dst}, v{t0}, 13, v{dst}')
    k.srd(32, 4, XT_SZ, WT)
    k.I('s_lshl_b32 s36, s25, 12')
    k.I('s_lshl_b32 s37, s24, 10')
    k.I('s_add_u32 s36, s36, s37')
    k.I('s_lshl_b32 s37, s21, 7')
    k.I('s_add_u32 s36, s36, s37')
    k.I('s_lshl_b32 s37, s23, 6')
    k.I('s_add_u32 s36, s36, s37')
    k.barrier(vm=0)
    def rnd(rho):
        for ii in range(2):
            for rp in range(2):
                j = 4*rho + 2*ii + rp
                k.I(f'ds_read_u16 v{lo+j}, v{ra} offset:{(2*rp)*BS + 642*ii + 128*rho}')
                k.I(f'ds_read_u16 v{hi+j}, v{ra} offset:{(2*rp+1)*BS + 642*ii + 128*rho}')
    def fin(rho):
        for j in range(4): k.I(f'v_lshl_or_b32 v{lo+4*rho+j}, v{hi+4*rho+j}, 16, v{lo+4*rho+j}')
        k.I(f'buffer_store_dwordx4 {vr(lo+4*rho,4)}, v{dst}, s[32:35], s36 offen{WT_ST}')
        k.I(f's_add_u32 s36, s36, {64*8192}')
    rnd(0)
    for rho in range(5):
        if rho < 4: rnd(rho + 1)
        fin(rho)
    k.nlab = getattr(k, 'nlab', 0) + 1
    k.I('s_cmp_lg_u32 s22, 0')
    k.I('s_cbranch_scc1 Lwt_done')
    k.I('s_mov_b64 exec, 15')
    rnd(5); fin(5)
    k.label('Lwt_done')

N_WD5 = 96
def role_wd5(k, s_wd, pf=False):
    va = VAlloc(100 if pf else 1)
    vl = va.get(); t0 = va.get(); t1 = va.get(); ra = va.get(); vo = va.get(); so = va.get(5)
    o = va.get(20, 4)
    k.I(f'v_lshrrev_b32 v{t0}, 6, v0')
    k.I(f'v_and_b32 v{vl}, 63, v0')
    k.I(f'v_readfirstlane_b32 s22, v{t0}')
    k.I(f'v_lshlrev_b32 v{vo}, 4, v{vl}')
    k.I('s_and_b32 s21, s20, 1')
    k.I('s_lshr_b32 s20, s20, 1')
    for p in range(5):
        k.I(f'v_add_u32 v{t0}, {64*p}, v{vl}')
        k.I(f'v_mul_u32_u24 v{t1}, 205, v{t0}')
        k.I(f'v_lshrrev_b32 v{t1}, 13, v{t1}')
        k.I(f'v_mul_u32_u24 v{t1}, 640, v{t1}')
        k.I(f'v_add_u32 v{so+p}, v{t1}, v{vo}')
    k.I('s_lshl_b32 s23, s20, 2')
    k.I('s_add_u32 s23, s23, s22')
    k.I('s_mul_i32 s23, s23, 10240')
    k.I('s_mul_i32 s24, s21, 640')
    k.I('s_add_u32 s23, s23, s24')
    k.I('s_mul_i32 s24, s22, 5120')
    k.I('s_mov_b32 m0, s24')
    k.srd(28, s_wd, F * D * 2)
    if pf:
        for p in range(4): k.I(f'buffer_load_dwordx4 {vr(o+4*p,4)}, v{so+p}, s[28:31], s23 offen offset:{1024*p}')
        k.I('s_add_u32 s23, s23, 4096')
        k.I(f'buffer_load_dwordx4 {vr(o+16,4)}, v{so+4}, s[28:31], s23 offen')
        return
    for p in range(4): k.I(f'buffer_load_dwordx4 v{so+p}, s[28:31], s23 offen offset:{1024*p}{RAW_NT} lds')
    k.I('s_add_u32 m0, s24, 4096')
    k.I('s_add_u32 s23, s23, 4096')
    k.I(f'buffer_load_dwordx4 v{so+4}, s[28:31], s23 offen{RAW_NT} lds')
    k.I(f'v_lshrrev_b32 v{t0}, 4, v{vl}')
    k.I(f'v_bfe_u32 v{t1}, v{vl}, 2, 2')
    k.I(f'v_lshl_add_u32 v{t0}, v{t0}, 3, v{t1}')
    k.I(f'v_mul_u32_u24 v{ra}, 640, v{t0}')
    k.I(f'v_and_b32 v{t0}, 3, v{vl}')
    k.I(f'v_mul_u32_u24 v{t0}, 40, v{t0}')
    k.I('s_mul_i32 s25, s22, 160')
    k.I(f'v_add3_u32 v{ra}, v{ra}, v{t0}, s25')
    k.srd(36, 4, F * D * 2, WD)
    k.I('s_lshl_b32 s26, s21, 2')
    k.I('s_add_u32 s26, s26, s22')
    k.I('s_mul_i32 s26, s26, 48')
    k.I('s_add_u32 s26, s26, s20')
    k.I('s_mul_i32 s40, s26, 5120')
    k.I('s_add_u32 s41, s40, 4096')
    k.barrier(vm=0)
    for dt in range(5):
        for hf in range(2):
            k.I(f'ds_read_b64_tr_b16 {vr(o+dt*4+2*hf,2)}, v{ra} offset:{4*hf*640+8*dt}')
    for dt in range(5):
        k.I(f'buffer_store_dwordx4 {vr(o+dt*4,4)}, v{vo}, s[36:39], s{40+(dt//4)} offen offset:{1024*(dt%4)}{SIDE_ST}')

RAW_NT = '' if env('RAW_PF', 0) else ' nt'
def role_wgu5(k, s_wg, s_wu, pf=False):
    va = VAlloc(100 if pf else 1)
    vl = va.get(); wo = va.get(3); t0 = va.get(); t1 = va.get(); t2 = va.get(); ra = va.get(); r2 = va.get(); vo = va.get()
    o = va.get(24, 4)
    k.I(f'v_lshrrev_b32 v{t0}, 6, v0')
    k.I(f'v_and_b32 v{vl}, 63, v0')
    k.I(f'v_readfirstlane_b32 s22, v{t0}')
    k.I('s_and_b32 s21, s20, 7')
    k.I('s_lshr_b32 s20, s20, 3')
    for p in range(3):
        k.I(f'v_add_u32 v{t0}, {64*p}, v{vl}')
        k.I(f'v_mul_u32_u24 v{t1}, 171, v{t0}')
        k.I(f'v_lshrrev_b32 v{t1}, 12, v{t1}')
        k.I(f'v_mul_u32_u24 v{t1}, 2688, v{t1}')
        k.I(f'v_lshl_add_u32 v{wo+p}, v{vl}, 4, v{t1}')
    k.I('s_lshl_b32 s23, s20, 2')
    k.I('s_add_u32 s23, s23, s22')
    k.I(f's_mul_i32 s23, s23, {8*3072}')
    k.I('s_mul_i32 s24, s21, 384')
    k.I('s_add_u32 s23, s23, s24')
    k.srd(28, s_wg, D * F * 2)
    k.srd(32, s_wu, D * F * 2)
    if pf:
        for p in range(3): k.I(f'buffer_load_dwordx4 {vr(o+4*p,4)}, v{wo+p}, s[28:31], s23 offen offset:{1024*p}')
        for p in range(3): k.I(f'buffer_load_dwordx4 {vr(o+12+4*p,4)}, v{wo+p}, s[32:35], s23 offen offset:{1024*p}')
        return
    k.I('s_mul_i32 s24, s22, 3072')
    k.I('s_mov_b32 m0, s24')
    for p in range(3): k.I(f'buffer_load_dwordx4 v{wo+p}, s[28:31], s23 offen offset:{1024*p}{RAW_NT} lds')
    k.I('s_add_u32 m0, s24, 12288')
    for p in range(3): k.I(f'buffer_load_dwordx4 v{wo+p}, s[32:35], s23 offen offset:{1024*p}{RAW_NT} lds')
    k.I(f'v_lshrrev_b32 v{t0}, 4, v{vl}')
    k.I(f'v_bfe_u32 v{t1}, v{vl}, 2, 2')
    k.I(f'v_lshl_add_u32 v{t0}, v{t0}, 3, v{t1}')
    k.I(f'v_mul_u32_u24 v{ra}, 384, v{t0}')
    k.I('s_mul_i32 s25, s22, 48')
    k.I(f'v_add_u32 v{ra}, s25, v{ra}')
    k.I(f'v_and_b32 v{t0}, 1, v{vl}')
    k.I(f'v_lshl_add_u32 v{r2}, v{t0}, 3, v{ra}')
    k.I(f'v_bfe_u32 v{t0}, v{vl}, 1, 1')
    k.I(f'v_mul_u32_u24 v{t0}, 12288, v{t0}')
    k.I(f'v_add_u32 v{r2}, v{r2}, v{t0}')
    k.I(f'v_and_b32 v{t0}, 3, v{vl}')
    k.I(f'v_lshl_add_u32 v{ra}, v{t0}, 3, v{ra}')
    k.I(f'v_lshlrev_b32 v{vo}, 4, v{vl}')
    k.srd(36, 4, D * 2 * F * 2, WGU)
    k.I('s_lshl_b32 s26, s21, 3')
    k.I('s_add_u32 s26, s26, s22')
    NK = 10 if env('GEN6', 0) else 20
    k.I(f's_mul_i32 s26, s26, {NK}')
    k.I('s_add_u32 s26, s26, s20')
    k.I('s_mul_i32 s26, s26, 3072')
    if NK == 10:
        k.I('s_cmp_ge_u32 s20, 10')
        k.I(f's_cselect_b32 s27, {63*30720}, 0')
        k.I('s_add_u32 s26, s26, s27')
    k.I(f's_add_u32 s27, s26, {4*NK*3072}')
    k.barrier(vm=0)
    for j in range(2):
        for mt in range(3):
            for hf in range(2):
                off = 4*hf*384 + 192*j + (12288 if mt == 1 else 0) + (32 if mt == 2 else 0)
                k.I(f'ds_read_b64_tr_b16 {vr(o+(3*j+mt)*4+2*hf,2)}, v{r2 if mt == 2 else ra} offset:{off}')
    for j in range(2):
        for mt in range(3):
            k.I(f'buffer_store_dwordx4 {vr(o+(3*j+mt)*4,4)}, v{vo}, s[36:39], s{26+j} offen offset:{1024*mt}{SIDE_ST}')
gen4.role_wgu = role_wgu5

gen4.role_wt = role_wt5; gen4.role_wd = role_wd5
gen4.CNT.update(wt=N_WT5, wd=N_WD5)
for _r in ('modr', 'wgu', 'wt'):
    if os.environ.get('CNT_' + _r): gen4.CNT[_r] = int(os.environ['CNT_' + _r])

def pack6(k, base, cs, sn, alt):
    def op(r, j, neg):
        n = neg ^ (alt and (j & 1))
        return ('-' if n else '') + f'v{r+j}'
    for p in range(2):
        k.I(f'v_cvt_pk_bf16_f32 v{base+p}, {op(sn,2*p,True)}, {op(sn,2*p+1,True)}')
        k.I(f'v_cvt_pk_bf16_f32 v{base+2+p}, {op(cs,2*p,False)}, {op(cs,2*p+1,False)}')
        k.I(f'v_cvt_pk_bf16_f32 v{base+4+p}, {op(sn,2*p,False)}, {op(sn,2*p+1,False)}')
def flip6(base): return [f'v_xor_b32 v{base+j}, s26, v{base+j}' for j in (0, 1, 4, 5)]
WIM, WRE = 0, 2

def zipemit(k, main, fill, per):
    fill = list(fill)
    for m in main:
        k.I(m)
        for _ in range(per):
            if fill: k.I(fill.pop(0))
    for f in fill: k.I(f)

def gen_C5main():
    k = Kernel('kc_kernel')
    stamp_begin(k)
    k.I('s_cmp_ge_u32 s2, 321')
    k.I('s_cbranch_scc1 LC_exit')
    k.I(f's_load_dwordx2 s[4:5], s[0:1], {KA["ws"]}')
    va = VAlloc(2)
    vl = va.get(); vo16 = va.get(); vo8 = va.get(); yo = va.get(); wq = va.get(8, 2)
    k.I('v_lshrrev_b32 v1, 6, v0')
    k.I(f'v_and_b32 v{vl}, 63, v0')
    k.I('v_readfirstlane_b32 s22, v1')
    k.I(f'v_lshlrev_b32 v{vo16}, 4, v{vl}')
    k.I(f'v_lshlrev_b32 v{vo8}, 3, v{vl}')
    k.I('s_and_b32 s20, s2, 7')
    k.I('s_lshl_b32 s20, s20, 2')
    k.I('s_bfe_u32 s21, s2, 0x20003')
    k.I('s_add_u32 s20, s20, s21')
    k.I('s_and_b32 s21, s2, 0x1e0')
    k.I('s_add_u32 s20, s20, s21')
    k.I('s_lshl_b32 s23, s22, 11')
    k.I('s_lshl_b32 s24, s20, 13')
    k.I('s_lshl_b32 s27, s22, 10')
    k.I('s_add_u32 s27, s27, s24')
    k.I('s_add_u32 s28, s27, 4096')
    k.I('s_add_u32 s24, s24, s23')
    k.I('s_mov_b32 m0, s23')
    k.I('s_cmp_eq_u32 s20, 0')
    k.I('s_cselect_b32 s25, 0, 1.0')
    k.I('s_cmp_eq_u32 s20, 320')
    k.I('s_cselect_b32 s25, 0, s25')
    k.I('s_mov_b32 s26, 0x80008000')
    fi = va.get(); fq4 = va.get(); fk = va.get(); fw16 = va.get()
    ta = va.get(2); sg2 = va.get(2, 2); tmp = va.get(8, 2); tc = tmp; ts = tmp + 4
    k.I(f'v_and_b32 v{fi}, 15, v{vl}')
    k.I(f'v_lshrrev_b32 v{yo}, 1, v{fi}')
    k.I(f'v_and_b32 v{fq4}, 0x30, v{vl}')
    k.I(f'v_add_u32 v{yo}, v{yo}, v{fq4}')
    k.I(f'v_mul_u32_u24 v{yo}, {YT_ST}, v{yo}')
    k.I(f'v_and_b32 v{ta}, 1, v{fi}')
    k.I(f'v_lshl_add_u32 v{yo}, v{ta}, 4, v{yo}')
    k.I(f's_mul_i32 s29, s22, {64*YT_ST}')
    k.I('s_lshl_b32 s30, s20, 5')
    k.I('s_add_u32 s29, s29, s30')
    k.I(f's_add_u32 s30, s29, {8*YT_ST}')
    k.I(f'v_lshlrev_b32 v{sg2}, 31, v{fi}')
    k.I(f'v_or_b32 v{sg2}, 1.0, v{sg2}')
    k.I(f'v_cvt_f32_u32 v{fi}, v{fi}')
    k.I(f'v_lshrrev_b32 v{fq4}, 2, v{fq4}')
    k.I(f'v_cvt_f32_u32 v{fq4}, v{fq4}')
    k.I(f'v_lshlrev_b32 v{fw16}, 4, v1')
    k.I(f'v_cvt_f32_u32 v{fw16}, v{fw16}')
    k.I(f'v_add_f32 v{fk}, v{fw16}, v{fi}')
    def angles(step_reg, scale, base_add, dst, q=None):
        k.I(f'v_mul_f32 v{ta}, {fhex(scale)}, v{step_reg}')
        k.I(f'v_mul_f32 v{ta+1}, v{fq4 if q is None else q}, v{ta}')
        for j in range(4): k.I(f'v_fmamk_f32 v{dst+j}, v{ta}, {fhex(float(base_add + j))}, v{ta+1}')
    def sincos(c, s):
        for j in range(4):
            k.I(f'v_cos_f32 v{c+j}, v{s+j}')
            k.I(f'v_sin_f32 v{s+j}, v{s+j}')
    def flip(c, s):
        for p in (0, 2):
            k.I(f'v_pk_mul_f32 {vr(c+p,2)}, {vr(c+p,2)}, {vr(sg2,2)} op_sel_hi:[1,0]')
            k.I(f'v_pk_mul_f32 {vr(s+p,2)}, {vr(s+p,2)}, {vr(sg2,2)} op_sel_hi:[1,0]')
    f64 = va.get(24, 2); f32 = va.get(24, 2)
    c1 = va.get(8, 2); s1 = va.get(8, 2); c2 = va.get(8, 2); s2 = va.get(8, 2)
    for kap in range(2):
        angles(fk, 1.0/64, 16*kap, ts); sincos(tc, ts)
        pack6(k, f64+6*kap, tc, ts, False)
        flip(tc, ts)
        pack6(k, f64+6*(kap+2), tc, ts, False)
        if kap == 0:
            k.srd(8, 4, XT_SZ, XT)
            k.srd(12, 4, XT_SZ, WT)
            k.I(f'buffer_load_dwordx4 v{vo16}, s[8:11], s24 offen lds', tag='x')
            k.I(f'buffer_load_dwordx4 v{vo16}, s[8:11], s24 offen offset:1024 lds', tag='x')
            for V in range(2):
                k.I(f'buffer_load_dwordx2 {vr(wq+2*V,2)}, v{vo8}, s[12:15], s27 offen offset:{512*V}')
                k.I(f'buffer_load_dwordx2 {vr(wq+4+2*V,2)}, v{vo8}, s[12:15], s28 offen offset:{512*V}')
            k.srd(16, 4, 256 * YT_ST, YT)
            mark(k, 1)
    for N in range(2):
        angles(fk, 1.0/2048, 16*N, s1+4*N); sincos(c1+4*N, s1+4*N)
    angles(fi, 1.0/32, 0, ts); sincos(tc, ts)
    pack6(k, f32+0, tc, ts, False)
    pack6(k, f32+12, tc, ts, True)
    flip(tc, ts)
    pack6(k, f32+6, tc, ts, False)
    pack6(k, f32+18, tc, ts, True)
    k.I(f'v_add_f32 v{fw16}, v{fw16}, v{fq4}')
    for N in range(2):
        if N: k.I(f'v_add_f32 v{fi}, {fhex(16.0)}, v{fi}')
        angles(fi, 1.0/2048, 0, s2+4*N, q=fw16); sincos(c2+4*N, s2+4*N)
    wa = fk
    k.I(f'v_add_u32 v{wa}, s23, v{vo16}')
    mark(k, 2)
    k.wait_tag('x')
    k.I('s_barrier')
    mark(k, 3)
    dat = va.get(32, 4); acc = va.get(16, 4); pk = va.get(8, 4)
    acc2 = dat; pk2 = dat + 16
    for N in range(2):
        for kap in range(4):
            k.I(f'ds_read_b128 {vr(dat+(2*kap+N)*4,4)}, v{vo16} offset:{2048*kap+1024*N}')
    for N in range(2):
        for kap in range(4):
            for c in range(2):
                dd = vr(acc+(2*N+c)*4, 4)
                k.I(f'{MF16} {dd}, {vr(dat+(2*kap+N)*4,4)}, {vr(f64+6*kap+(WIM if c else WRE),4)}, {dd if kap else 0}')
    for N in range(2):
        cmul4(k, acc+8*N, acc+8*N+4, c1+4*N, s1+4*N, pk+4*N, tmp, False)
        if N == 0: continue
    ms = []
    for N in range(2):
        for V in range(2):
            for c in range(2):
                dd = vr(acc2+(2*V+c)*4, 4)
                ms.append(f'{MF16} {dd}, {vr(f32+(2*V+N)*6+(WIM if c else WRE),4)}, {vr(pk+4*N,4)}, {dd if N else 0}')
    wr_ = c1; wi_ = s1
    fl = []
    for j in range(4):
        fl.append(f'v_lshlrev_b32 v{wr_+2*j}, 16, v{wq+j}')
        fl.append(f'v_and_b32 v{wr_+2*j+1}, 0xffff0000, v{wq+j}')
        fl.append(f'v_lshlrev_b32 v{wi_+2*j}, 16, v{wq+4+j}')
        fl.append(f'v_and_b32 v{wi_+2*j+1}, 0xffff0000, v{wq+4+j}')
    zipemit(k, ms, fl, 2)
    mark(k, 4)
    for w_ in range(4):
        for f in flip6(f32+6*w_)[:2 if w_ >= 2 else 4]: k.I(f)
    for V in range(2):
        cmul4(k, acc2+8*V, acc2+8*V+4, wr_+4*V, wi_+4*V, pk2+4*V, tmp, True)
        if V == 0:
            for w_ in (2, 3):
                for f in flip6(f32+6*w_)[2:]: k.I(f)
    ms = []
    for V in range(2):
        for N in range(2):
            for c in range(2):
                dd = vr(acc+(2*N+c)*4, 4)
                ms.append(f'{MF16} {dd}, {vr(pk2+4*V,4)}, {vr(f32+(2*N+V)*6+(WIM if c else WRE),4)}, {dd if V else 0}')
    fl = []
    for kap in range(4): fl += flip6(f64+6*kap)
    zipemit(k, ms, fl, 2)
    mark(k, 5)
    for N in range(2):
        cmul4(k, acc+8*N, acc+8*N+4, c2+4*N, s2+4*N, pk+4*N, tmp, True)
        k.I(f'ds_write_b128 v{wa}, {vr(pk+4*N,4)} offset:{8192+1024*N}')
    k.barrier()
    mark(k, 6)
    for N in range(2):
        for kap in range(4):
            k.I(f'ds_read_b128 {vr(dat+(2*kap+N)*4,4)}, v{vo16} offset:{8192+2048*kap+1024*N}')
    for N in range(2):
        for kap in range(4):
            for c in range(2):
                dd = vr(acc+(2*N+c)*4, 4)
                k.I(f'{MF16} {dd}, {vr(f64+6*kap+(WIM if c else WRE),4)}, {vr(dat+(2*kap+N)*4,4)}, {dd if kap else 0}')
    for N in range(2):
        re = acc+8*N; im = re+4
        for p in range(2):
            a, b = 2*p, 2*p+1
            k.I(f'v_fma_f32 v{tmp+4*p+0}, -s25, v{im+b}, v{re+a}')
            k.I(f'v_fma_f32 v{tmp+4*p+1}, s25, v{im+a}, v{re+b}')
            k.I(f'v_fma_f32 v{tmp+4*p+2}, s25, v{im+b}, v{re+a}')
            k.I(f'v_fma_f32 v{tmp+4*p+3}, -s25, v{im+a}, v{re+b}')
        for j in range(4):
            k.I(f'v_cvt_pk_bf16_f32 v{pk+4*N+j}, v{tmp+2*j}, v{tmp+2*j+1}')
        k.I(f'buffer_store_dwordx4 {vr(pk+4*N,4)}, v{yo}, s[16:19], s{29+N} offen{" sc1" if env("YT_SC1", 0) else ""}')
    stamp_end(k, 2, 4)
    k.label('LC_exit')
    k.I('s_endpgm')
    return k, (321, 256, 16384)
gen4.gen_C = gen_C5main
def gen_C5():
    k, (g, b, l) = gen4.gen_C4()
    return k, (g, b, 24576)
def gen_K15():
    k, (g, b, l) = gen4.gen_K1()
    return k, (g, b, env('K1_LDS', 26112))

from def5 import gen_DEF5
from def7 import gen_DEF7, role_tab
from def8 import gen_DEF8
gen4.MISC_EXTRA.append(role_tab)
KERNELS = (gen_K15, gen_C5, gen_DEF8 if env('POISON', 1) else gen_DEF7)
if __name__ == '__main__':
    out = sys.argv[1] if len(sys.argv) > 1 else 'adaLN_cond__spectral_gfnet__glu_gated_bilinear__prompt.s'
    if len(sys.argv) > 2 and sys.argv[2] == 'stamps': gen.STAMPS = True
    build(out, KERNELS)
```

```python
import os, math
import gen
from gen import *
from gen2 import *
from gen4 import YT, YT_ST, WS_END4, GR, unpack_gran
from gen import mark, stamp_begin, stamp_end

class Rec:
    def __init__(self): self.l = []
    def I(self, t, **kw): self.l.append(t)
def rec(fn, *a):
    r = Rec(); fn(r, *a); return r.l
def merge(k, main, fill, per):
    fill = list(fill)
    for m in main:
        k.I(m)
        for _ in range(per):
            if fill: k.I(fill.pop(0))
    return fill

import re as _re
def unpk(t):
    if isinstance(t, tuple) or not t.startswith('v_pk_'): return [t]
    m = _re.match(r'v_pk_(\w+)_f32 (.*)$', t)
    regs = [int(x) for x in _re.findall(r'v\[(\d+):\d+\]', m.group(2))]
    if m.group(1) == 'fma' and regs[0] == regs[3]: return [f'v_fmac_f32 v{regs[0]+j}, v{regs[1]+j}, v{regs[2]+j}' for j in range(2)]
    if m.group(1) == 'fma': return [f'v_fma_f32 v{regs[0]+j}, v{regs[1]+j}, v{regs[2]+j}, v{regs[3]+j}' for j in range(2)]
    return [f'v_{m.group(1)}_f32 v{regs[0]+j}, v{regs[1]+j}, v{regs[2]+j}' for j in range(2)]
def pairs(lst):
    out = []
    for t in lst:
        u = unpk(t)
        if len(u) == 2 and 'v_fma_' in u[0]: out += [[u[0]], [u[1]]]
        else: out.append(u)
    return out
def signal(k, name, cnt_sgpr, vtmp, noflush=False):
    k.I('s_barrier')
    st = k.save_state()
    k.I('s_cmp_lg_u32 s22, 0')
    k.I(f's_cbranch_scc1 L{name}_sig', noflush=noflush)
    k.I('s_mov_b64 exec, 1')
    k.I(f'buffer_atomic_add v{vtmp+1}, v{vtmp}, s[12:15], s{cnt_sgpr} offen sc1')
    k.I('s_mov_b64 exec, -1')
    if noflush: k.raw(f'L{name}_sig:')
    else: k.label(f'L{name}_sig')
    k.restore_state(st)
    k.vm.append((set(), None)) if False else None
def poll(k, name, cnt_sgpr, vtmp, vres):
    st = k.save_state()
    k.I('s_cmp_lg_u32 s22, 3')
    k.I(f's_cbranch_scc1 L{name}_done')
    k.I('s_mov_b32 s24, 0x100000')
    k.label(f'L{name}_poll')
    k.I(f'buffer_load_dword v{vres}, v{vtmp}, s[12:15], s{cnt_sgpr} offen sc1')
    k.waitcnt(vm=0)
    k.I(f'v_readfirstlane_b32 s33, v{vres}')
    k.I('s_sub_u32 s24, s24, 1')
    k.I(f's_cbranch_scc1 L{name}_done')
    k.I('s_cmp_lt_u32 s33, 16')
    k.I(f's_cbranch_scc1 L{name}_poll')
    k.label(f'L{name}_done')
    k.restore_state(st)
    k.I('s_barrier')

TAB = WS_END4
WS_END6 = TAB + 24 * 1024
class Fix:
    def __init__(self, seq): self.seq = list(seq)
    def get(self, *a): return self.seq.pop(0)
def role_tab(k):
    c0 = 24; f40 = c0; f16 = c0 + 62; cs = c0 + 68; sn = c0 + 80
    vi, vq, fi, fq, fq4, vo, t8, tmp = 2, 3, 4, 5, 6, 7, 8, 16
    k.I(f'v_and_b32 v{vi}, 15, v0')
    k.I(f'v_lshrrev_b32 v{vq}, 4, v0')
    k.I(f'v_cvt_f32_u32 v{fi}, v{vi}')
    k.I(f'v_cvt_f32_u32 v{fq}, v{vq}')
    k.I(f'v_mul_f32 v{fq4}, 4.0, v{fq}')
    k.I(f'v_lshlrev_b32 v{vo}, 4, v0')
    gen_f40(k, Fix([f40, t8, t8+4, t8+6]), fi, fq, True)
    gen_tw640(k, Fix([cs, sn, t8]), fi, fq4)
    k.I(f'v_cmp_gt_u32 vcc, 8, v{vi}')
    for r in range(4):
        k.I(f'v_cndmask_b32 v{cs+8+r}, 0, v{cs+8+r}, vcc')
        k.I(f'v_cndmask_b32 v{sn+8+r}, 0, v{sn+8+r}, vcc')
    k.I(f'v_mul_f32 v{t8}, {fhex(1.0/16)}, v{fi}')
    k.I(f'v_mul_f32 v{t8+1}, v{fq4}, v{t8}')
    for j in range(4): k.I(f'v_fmamk_f32 v{tmp+4+j}, v{t8}, {fhex(float(j))}, v{t8+1}')
    for j in range(4):
        k.I(f'v_cos_f32 v{tmp+j}, v{tmp+4+j}')
        k.I(f'v_sin_f32 v{tmp+4+j}, v{tmp+4+j}')
    for p in range(2):
        k.I(f'v_cvt_pk_bf16_f32 v{f16+p}, v{tmp+4+2*p}, v{tmp+5+2*p}')
        k.I(f'v_cvt_pk_bf16_f32 v{f16+2+p}, v{tmp+2*p}, v{tmp+1+2*p}')
        k.I(f'v_cvt_pk_bf16_f32 v{f16+4+p}, -v{tmp+4+2*p}, -v{tmp+5+2*p}')
    k.srd(24, 4, 23 * 1024, TAB)
    for i in range(23):
        if i % 4 == 0: k.I(f's_mov_b32 s28, {1024*i}')
        k.I(f'buffer_store_dwordx4 {vr(c0+4*i,4)}, v{vo}, s[24:27], s28 offen offset:{1024*(i%4)}')

XNT = ' nt' if os.environ.get('XNT') == '1' else ''
_mark = mark
def mark(k, i):
    if not env('MF', 0): _mark(k, i)
def fm(k, i):
    if env('MF', 0) == 1: _mark(k, i)
def pm(k, i):
    if env('MF', 0) == 3: _mark(k, i)
def em(k, i):
    if env('MF', 0) == 2: _mark(k, i)
def pack6(k, base, cs, sn, alt):
    def op(r, j, neg):
        n = neg ^ (alt and (j & 1))
        return ('-' if n else '') + f'v{r+j}'
    for p in range(2):
        k.I(f'v_cvt_pk_bf16_f32 v{base+p}, {op(sn,2*p,True)}, {op(sn,2*p+1,True)}')
        k.I(f'v_cvt_pk_bf16_f32 v{base+2+p}, {op(cs,2*p,False)}, {op(cs,2*p+1,False)}')
        k.I(f'v_cvt_pk_bf16_f32 v{base+4+p}, {op(sn,2*p,False)}, {op(sn,2*p+1,False)}')
WIM, WRE = 0, 2
F0 = FLAGS + 8192
WGU_B = WGU + 64 * 30720
FW = F0 + 1024
YFL = ['sc1', 'sc1 nt', 'sc0 sc1', 'sc0 sc1 nt'][env('YFL', 0)]
def cm_(k, i):
    if env('MF', 0) == 4: _mark(k, i)

HALF = env('HALF', 0)
def gen_DEF10():
    k = Kernel('kd_kernel')
    PL = 2592
    HB = 0; XB = 10240; SB = 122880; XL = 32768; MLD = XL + 4 * 2560; TL = MLD + 8192; CL = 81920
    W_ST = env('W_ST', 8); W_A = env('W_A', 0)
    NB1 = env('NB1', 30); W_J1 = W_J1_ = env('W_J1', 6); W_J = env('W_J', 6)
    stamp_begin(k)
    k.I('s_cmp_ge_u32 s2, 256')
    k.I('s_cbranch_scc1 LD_exit')
    k.I(f's_load_dwordx2 s[4:5], s[0:1], {KA["ws"]}')
    k.I(f's_load_dwordx2 s[6:7], s[0:1], {KA["x"]}')
    k.I(f's_load_dwordx2 s[40:41], s[0:1], {KA["out"]}')
    k.I(f's_load_dwordx2 s[62:63], s[0:1], {KA["wd"]}')
    if HALF: k.I(f's_load_dwordx4 s[36:39], s[0:1], {KA["wg"]}')
    va = VAlloc(2)
    hs = va.get(2, 2); vl = va.get(); vo16 = va.get(); vW = va.get(); vi = va.get(); vq = va.get(); oh = va.get(); oh2 = va.get(); hr = va.get()
    keep = va.n
    so = va.get(); wu = va.get(); wv = va.get(); ra = va.get(); xo = va.get(); mo = va.get(); wh = va.get(3); wx = va.get(); g0 = va.get(); g2 = va.get()
    ch = va.get(12, 4); xr = va.get(12, 2); mg = va.get(12, 4); mc = va.get(12, 4); ms = va.get(12, 4)
    d1 = va.get(24, 4); d2 = va.get(24, 4); dat = va.get(12, 2); tmp = va.get(8, 2)
    f40 = va.get(92, 4); f16 = f40 + 62; cs = f40 + 68; sn = f40 + 80
    tv = VAlloc(d1, d1 + 48)
    ta = tv.get(4); tk = tv.get(); cb_ = tv.get(); tq = tv.get(); v8 = tv.get(); vcn = tv.get(); vma = tv.get(); vmk = tv.get(2, 2)
    k.I('v_lshrrev_b32 v1, 6, v0')
    k.I(f'v_and_b32 v{vl}, 63, v0')
    k.I('v_readfirstlane_b32 s22, v1')
    k.I(f'v_lshlrev_b32 v{vo16}, 4, v{vl}')
    k.I(f'v_and_b32 v{vi}, 15, v{vl}')
    k.I(f'v_lshrrev_b32 v{vq}, 4, v{vl}')
    def scalars():
        k.I('s_and_b32 s20, s2, 6')
        k.I('s_lshl_b32 s20, s20, 1')
        k.I('s_lshr_b32 s21, s2, 6')
        k.I('s_add_u32 s20, s20, s21')
        k.I('s_bfe_u32 s56, s2, 0x30003')
        k.I('s_and_b32 s57, s2, 1')
        k.I('s_lshl_b32 s21, s57, 3')
        k.I('s_add_u32 s21, s21, s56')
        k.I('s_lshl_b32 s25, s20, 4')
        k.I('s_add_u32 s3, s25, s21')
        k.I('s_lshr_b32 s25, s20, 2')
        k.I('s_lshl_b32 s25, s25, 12')
        k.I('s_lshl_b32 s24, s57, 11')
        k.I('s_add_u32 s25, s25, s24')
        k.I('s_and_b32 s24, s21, 1')
        k.I('s_lshl_b32 s24, s24, 10')
        k.I('s_add_u32 s25, s25, s24')
        k.I('s_and_b32 s24, s20, 3')
        k.I('s_lshl_b32 s24, s24, 8')
        k.I('s_add_u32 s25, s25, s24')
        k.I('s_and_b32 s24, s21, 6')
        k.I('s_lshl_b32 s24, s24, 5')
        k.I('s_add_u32 s25, s25, s24')
        k.I(f's_add_u32 s26, s25, {64*16384}')
        k.I(f's_add_u32 s27, s25, {128*16384}')
        k.I('s_lshl_b32 s23, s20, 7')
        k.I('s_lshl_b32 s24, s21, 1')
        k.I('s_add_u32 s23, s23, s24')
        k.I('s_and_b32 s24, s22, 1')
        k.I('s_lshl_b32 s24, s24, 6')
        k.I('s_add_u32 s23, s23, s24')
        k.I('s_lshr_b32 s24, s22, 1')
        k.I('s_add_u32 s23, s23, s24')
        k.I('s_mul_i32 s28, s23, 1280')
        k.I(f's_add_u32 s29, s28, {32*1280}')
        k.I(f's_mul_i32 s30, s22, 2560')
        k.I(f's_add_u32 s30, s30, {XL}')
        k.I('s_add_u32 s23, s30, 1280')
        k.I('s_lshl_b32 s31, s22, 11')
        k.I(f's_add_u32 s88, s31, {MLD}')
        k.I(f's_add_u32 s31, s31, {MODN + 2*2560}')
        k.I('s_lshl_b32 s32, s21, 2')
        k.I('s_add_u32 s32, s32, s22')
        k.I('s_mul_i32 s24, s32, 30720')
        k.I(f's_add_u32 s24, s24, {WGU}')
        k.I(f'v_add_u32 v{vW}, s24, v{vo16}')
        k.I(f's_mul_i32 s58, s20, {8*49152}')
        k.I('s_mul_i32 s24, s32, 768')
        k.I('s_add_u32 s58, s58, s24')
        k.I(f's_add_u32 s58, s58, {HH}')
        for i in range(1, 4): k.I(f's_add_u32 s{58+i}, s58, {2*i*49152}')
        k.I('s_mul_i32 s24, s22, 6144')
        k.I(f's_add_u32 s42, s24, {TL}')
        k.I(f's_add_u32 s43, s24, {TAB}')
        k.I('s_add_u32 s33, s42, 4096')
        k.I('s_add_u32 s55, s43, 4096')
        k.I('s_and_b32 s89, s2, 7')
        k.I('s_lshl_b32 s89, s89, 7')
        k.I(f's_add_u32 s89, s89, {F0}')
        k.srd(12, 4, WS_END6)
        k.srd(8, 6, S * D * 2)
        k.srd(16, 4, 161 * 16384, XT)
    def wload(n):
        m_ = n % 30
        g = [f'buffer_load_dwordx4 {ar(4*n,4)}, v{vW}, s[12:15], 0 offen offset:{1024*(m_%4)}{" sc1" if n >= 30 and HALF else ""}']
        if n == 29: g.append(f'v_add_u32 v{vW}, {WGU_B - WGU - 28672}, v{vW}')
        elif m_ % 4 == 3: g.append(f'v_add_u32 v{vW}, 0x1000, v{vW}')
        return g
    def bglist():
        o = []
        for i in range(6):
            g = [f'buffer_load_dwordx4 v{vo16}, s[12:15], s{43 if i < 4 else 55} offen offset:{1024*(i%4)} lds']
            if i % 4 == 0: g = [f's_mov_b32 m0, s{42 if i < 4 else 33}'] + g
            o.append(g)
        for c in range(2):
            o.append([f's_mov_b32 m0, s{23 if c else 30}', f'buffer_load_dwordx4 v{vo16}, s[8:11], s{28+c} offen{XNT} lds'])
            o.append(['s_mov_b64 exec, 0xffff', f'buffer_load_dwordx4 v{vo16}, s[8:11], s{28+c} offen offset:1024{XNT} lds', 's_mov_b64 exec, -1'])
        w = [wload(n) for n in range(60)]
        WF = env('W_FIRST', 8)
        global AUX_LAST
        AUX_LAST = WF + 10
        return w[:WF] + o + w[WF:]
    NBG = 70
    def topup():
        k.bg_every = 0
        k.emit_bg(max(0, NB1 - (NBG - len(k.bg))))
        assert NBG - len(k.bg) == NB1, (NBG - len(k.bg), NB1)
    k.I('s_cmp_ge_u32 s2, 161')
    st0 = k.save_state()
    k.I('s_cbranch_scc1 LWD')
    vc = VAlloc(keep)
    vo8 = vc.get(); yo = vc.get(); wa = vc.get(); vC = vc.get()
    fi = vc.get(); fq4 = vc.get(); fk = vc.get(); fw16 = vc.get(); cta = vc.get(2); sg2 = vc.get(2, 2)
    f64 = vc.get(24, 2); f32 = vc.get(24, 2)
    c1 = vc.get(8, 2); s1_ = vc.get(8, 2); c2 = vc.get(8, 2); s2_ = vc.get(8, 2)
    TK = []
    for X in range(2):
        TK.append(dict(wq=vc.get(8, 2), dat=vc.get(32, 4), acc=vc.get(16, 4), pk=vc.get(8, 4), tmp=vc.get(8, 2)))
    tc = TK[0]['tmp']; ts = tc + 4
    k.I(f'v_lshlrev_b32 v{vo8}, 3, v{vl}')
    k.I('s_lshl_b32 s48, s2, 14')
    k.I('s_lshl_b32 s49, s22, 10')
    k.I('s_add_u32 s49, s49, s48')
    k.I('s_lshl_b32 s24, s22, 11')
    k.I('s_add_u32 s48, s48, s24')
    k.I(f's_add_u32 s90, s24, {CL}')
    k.I('s_mov_b32 m0, s90')
    k.I('s_cmp_eq_u32 s2, 0')
    k.I('s_cselect_b32 s50, 0, 1.0')
    k.I('s_cmp_eq_u32 s2, 160')
    k.I('s_cselect_b32 s50, 0, s50')
    k.I('s_mov_b32 s52, 0x80008000')
    k.I(f'v_lshlrev_b32 v{sg2}, 31, v{vi}')
    k.I(f'v_or_b32 v{sg2}, 1.0, v{sg2}')
    k.I(f'v_cvt_f32_u32 v{fi}, v{vi}')
    k.I(f'v_lshlrev_b32 v{fq4}, 2, v{vq}')
    k.I(f'v_cvt_f32_u32 v{fq4}, v{fq4}')
    k.I(f'v_lshlrev_b32 v{fw16}, 4, v1')
    k.I(f'v_cvt_f32_u32 v{fw16}, v{fw16}')
    k.I(f'v_add_f32 v{fk}, v{fw16}, v{fi}')
    def angles(step_reg, scale, base_add, dst, q=None):
        k.I(f'v_mul_f32 v{cta}, {fhex(scale)}, v{step_reg}')
        k.I(f'v_mul_f32 v{cta+1}, v{fq4 if q is None else q}, v{cta}')
        for j in range(4): k.I(f'v_fmamk_f32 v{dst+j}, v{cta}, {fhex(float(base_add + j))}, v{cta+1}')
    def sincos(c, s_):
        for j in range(4):
            k.I(f'v_cos_f32 v{c+j}, v{s_+j}')
            k.I(f'v_sin_f32 v{s_+j}, v{s_+j}')
    def flip(c, s_):
        for p in (0, 2):
            k.I(f'v_pk_mul_f32 {vr(c+p,2)}, {vr(c+p,2)}, {vr(sg2,2)} op_sel_hi:[1,0]')
            k.I(f'v_pk_mul_f32 {vr(s_+p,2)}, {vr(s_+p,2)}, {vr(sg2,2)} op_sel_hi:[1,0]')
    def flip6(base): return [f'v_xor_b32 v{base+j}, s52, v{base+j}' for j in (0, 1, 4, 5)]
    for kap in range(2):
        angles(fk, 1.0/64, 16*kap, ts); sincos(tc, ts)
        pack6(k, f64+6*kap, tc, ts, False)
        flip(tc, ts)
        pack6(k, f64+6*(kap+2), tc, ts, False)
        if kap == 0:
            k.srd(36, 4, XT_SZ, XT)
            k.srd(44, 4, XT_SZ, WT)
            for X in range(2):
                if X:
                    k.I('s_add_u32 m0, s90, 8192')
                    k.I('s_add_u32 s48, s48, 8192')
                k.I(f'buffer_load_dwordx4 v{vo16}, s[36:39], s48 offen lds', tag=('x', X))
                k.I(f'buffer_load_dwordx4 v{vo16}, s[36:39], s48 offen offset:1024 lds', tag=('x', X))
            for X in range(2):
                for m_ in range(2):
                    for V in range(2):
                        k.I(f'buffer_load_dwordx2 {vr(TK[X]["wq"]+4*m_+2*V,2)}, v{vo8}, s[44:47], s49 offen offset:{512*V}')
                    k.I('s_add_u32 s49, s49, 4096')
            cm_(k, 1)
            scalars()
            k.I('s_lshl_b32 s53, s22, 12')
            k.I('s_lshl_b32 s24, s2, 14')
            k.I('s_add_u32 s53, s53, s24')
            k.bg = bglist(); k.bg_every = env('BGC1', 18)
    for N in range(2):
        angles(fk, 1.0/2048, 16*N, s1_+4*N); sincos(c1+4*N, s1_+4*N)
    angles(fi, 1.0/32, 0, ts); sincos(tc, ts)
    pack6(k, f32+0, tc, ts, False)
    pack6(k, f32+12, tc, ts, True)
    flip(tc, ts)
    pack6(k, f32+6, tc, ts, False)
    pack6(k, f32+18, tc, ts, True)
    k.I(f'v_add_f32 v{fw16}, v{fw16}, v{fq4}')
    for N in range(2):
        if N: k.I(f'v_add_f32 v{fi}, {fhex(16.0)}, v{fi}')
        angles(fi, 1.0/2048, 0, s2_+4*N, q=fw16); sincos(c2+4*N, s2_+4*N)
    k.I(f'v_add_u32 v{vC}, {CL}, v{vo16}')
    k.I(f'v_add_u32 v{wa}, s90, v{vo16}')
    k.emit_bg(env('W_C0', 0))
    cm_(k, 2)
    k.wait_tag(('x', 1))
    k.I('s_barrier')
    cm_(k, 3)
    k.bg_every = env('BGC2', 20)
    def rd(X, base): return [f'ds_read_b128 {vr(TK[X]["dat"]+(2*kap+N)*4,4)}, v{vC} offset:{base+8192*X+2048*kap+1024*N}' for N in range(2) for kap in range(4)]
    def st1(X, inv):
        o = []; t = TK[X]
        for N in range(2):
            for kap in range(4):
                for c in range(2):
                    dd = vr(t['acc']+(2*N+c)*4, 4); da = vr(t['dat']+(2*kap+N)*4, 4); co = vr(f64+6*kap+(WIM if c else WRE), 4)
                    o.append(f'{MF16} {dd}, {co if inv else da}, {da if inv else co}, {dd if kap else 0}')
        return o
    def st3(X):
        o = []; t = TK[X]
        for N in range(2):
            for V in range(2):
                for c in range(2):
                    dd = vr(t['dat']+(2*V+c)*4, 4)
                    o.append(f'{MF16} {dd}, {vr(f32+(2*V+N)*6+(WIM if c else WRE),4)}, {vr(t["pk"]+4*N,4)}, {dd if N else 0}')
        return o
    def st4(X):
        o = []; t = TK[X]
        for V in range(2):
            for N in range(2):
                for c in range(2):
                    dd = vr(t['acc']+(2*N+c)*4, 4)
                    o.append(f'{MF16} {dd}, {vr(t["dat"]+16+4*V,4)}, {vr(f32+(2*N+V)*6+(WIM if c else WRE),4)}, {dd if V else 0}')
        return o
    def cmx(X, src, cc, ss, dst, conj):
        o = []
        for h_ in range(2): o += rec(cmul4, src+8*h_, src+8*h_+4, cc+4*h_, ss+4*h_, dst+4*h_, TK[X]['tmp'], conj)
        if env('C_SCALAR', 0):
            o2_ = []
            for t in o:
                if 'neg_lo' in t:
                    r4 = [int(x) for x in _re.findall(r'v\[(\d+):\d+\]', t)]
                    o2_ += [f'v_fma_f32 v{r4[0]+j}, v{r4[1]+j}, -v{r4[2]+j}, v{r4[3]+j}' for j in range(2)]
                else: o2_ += unpk(t)
            o = o2_
        return o
    def wun(X):
        t = TK[X]; o = []
        for j in range(8):
            o.append(f'v_lshlrev_b32 v{t["acc"]+2*j}, 16, v{t["wq"]+j}')
            o.append(f'v_and_b32 v{t["acc"]+2*j+1}, 0xffff0000, v{t["wq"]+j}')
        return o
    def outs(X):
        t = TK[X]; o = []; fl_ = 's50' if X == 0 else '1.0'
        for N in range(2):
            re = t['acc']+8*N; im = re+4; tm = t['tmp']
            for p in range(2):
                a_, b_ = 2*p, 2*p+1
                o.append(f'v_fma_f32 v{tm+4*p+0}, -v{im+b_}, {fl_}, v{re+a_}')
                o.append(f'v_fma_f32 v{tm+4*p+1}, v{im+a_}, {fl_}, v{re+b_}')
                o.append(f'v_fma_f32 v{tm+4*p+2}, v{im+b_}, {fl_}, v{re+a_}')
                o.append(f'v_fma_f32 v{tm+4*p+3}, -v{im+a_}, {fl_}, v{re+b_}')
            for j in range(4): o.append(f'v_cvt_pk_bf16_f32 v{t["pk"]+4*N+j}, v{tm+2*j}, v{tm+2*j+1}')
        return o
    def mg_(main, fill, per):
        for t in merge(k, main, fill, per): k.I(t)
    A_, B_ = TK
    PER = env('C_PER', 2); P3 = env('C_P3', 3)
    for t in rd(0, 0): k.I(t)
    mg_(st1(0, False), rd(1, 0), 1)
    mg_(st1(1, False)[:4], [], 0)
    mg_(st1(1, False)[4:], cmx(0, A_['acc'], c1, s1_, A_['pk'], False), PER)
    mg_(st3(0), wun(0) + cmx(1, B_['acc'], c1, s1_, B_['pk'], False), P3)
    cm_(k, 4)
    mg_(st3(1), wun(1) + cmx(0, A_['dat'], A_['acc'], A_['acc']+8, A_['dat']+16, True), P3)
    for w_ in range(4):
        for t in flip6(f32+6*w_): k.I(t)
    mg_(st4(0), cmx(1, B_['dat'], B_['acc'], B_['acc']+8, B_['dat']+16, True), P3)
    fl64 = []
    for kap in range(4): fl64 += flip6(f64+6*kap)
    ca = cmx(0, A_['acc'], c2, s2_, A_['pk'], True)
    mg_(st4(1), fl64[:8] + ca, P3)
    cm_(k, 5)
    for N in range(2): k.I(f'ds_write_b128 v{wa}, {vr(A_["pk"]+4*N,4)} offset:{16384+1024*N}')
    for t in cmx(1, B_['acc'], c2, s2_, B_['pk'], True): k.I(t)
    for N in range(2): k.I(f'ds_write_b128 v{wa}, {vr(B_["pk"]+4*N,4)} offset:{16384+8192+1024*N}')
    for t in fl64[8:]: k.I(t)
    k.barrier()
    cm_(k, 6)
    for t in rd(0, 16384): k.I(t)
    mg_(st1(0, True), rd(1, 16384), 1)
    mg_(st1(1, True)[:4], [], 0)
    mg_(st1(1, True)[4:], outs(0), PER)
    topup()
    for t in outs(1): k.I(t)
    o1 = A_['dat']; o2 = A_['dat'] + 8
    k.I('s_mov_b32 vcc_lo, 0x33333333')
    k.I('s_mov_b32 vcc_hi, 0x33333333')
    for j in range(8): k.I(f'v_cndmask_b32_dpp v{o1+j}, v{B_["pk"]+j}, v{A_["pk"]+j}, vcc quad_perm:[0,1,0,1] row_mask:0xf bank_mask:0xf')
    for N in range(2): k.I(f'v_or_b32 v{o1+4*N}, 1, v{o1+4*N}')
    for N in range(2): k.I(f'buffer_store_dwordx4 {vr(o1+4*N,4)}, v{vo16}, s[16:19], s53 offen offset:{2048*N} sc1', tag='y')
    k.I('s_not_b64 vcc, vcc')
    for j in range(8): k.I(f'v_cndmask_b32_dpp v{o2+j}, v{A_["pk"]+j}, v{B_["pk"]+j}, vcc quad_perm:[2,3,2,3] row_mask:0xf bank_mask:0xf')
    for N in range(2): k.I(f'v_or_b32 v{o2+4*N}, 1, v{o2+4*N}')
    for N in range(2): k.I(f'buffer_store_dwordx4 {vr(o2+4*N,4)}, v{vo16}, s[16:19], s53 offen offset:{2048*N+1024} sc1', tag='y')
    cm_(k, 7)
    k.emit_bg(W_J1)
    k.label('LJOIN')
    assert NB1 + W_J1 + W_J <= 40 or not HALF
    stJ = k.save_state(); bgJ = list(k.bg)
    k.bg_every = 0
    k.I(f'v_lshrrev_b32 v{so}, 2, v0')
    k.I(f'v_lshlrev_b32 v{so}, 14, v{so}')
    k.I(f'v_and_b32 v{ta+1}, 3, v0')
    k.I(f'v_lshl_add_u32 v{so}, v{ta+1}, 4, v{so}')
    k.I(f'v_lshrrev_b32 v{ta+1}, 1, v0')
    k.I(f'v_cmp_ge_u32 s[34:35], 64, v{ta+1}')
    k.I(f'v_mov_b32 v{ch+8}, -1')
    k.I(f'v_add_u32 v{vma}, s88, v{vo16}')
    k.I(f'v_mov_b32 v{hs}, 0')
    k.I(f'v_mov_b32 v{hs+1}, 1')
    k.bg_every = 6
    nleft = len(k.bg); hold = k.bg[W_J:]; k.bg = k.bg[:W_J]
    addr = []
    A = addr.append
    A(f'v_lshrrev_b32 v{tq}, 1, v{vq}')
    A(f'v_mad_u32_u24 v{cb_}, v{vi}, 5, v{tq}')
    A(f'v_and_b32 v{tk}, 1, v{vq}')
    A(f'v_mul_u32_u24 v{oh}, 49152, v{tk}')
    A(f'v_lshlrev_b32 v{oh2}, 2, v{oh}')
    A(f'v_lshl_add_u32 v{oh}, v{tq}, 8, v{oh}')
    A(f'v_lshl_add_u32 v{oh}, v{vi}, 4, v{oh}')
    A(f'v_mul_u32_u24 v{tq}, 49152, v{tq}')
    A(f'v_add_u32 v{oh2}, v{oh2}, v{tq}')
    A(f'v_lshl_add_u32 v{oh2}, v{vi}, 4, v{oh2}')
    A(f'v_lshl_add_u32 v{tk}, v1, 1, v{tk}')
    for T in range(3):
        A(f'v_add_u32 v{tq}, {2*T}, v{cb_}')
        A(f'v_xor_b32 v{wh+T}, v{tq}, v{tk}')
        A(f'v_and_b32 v{wh+T}, 7, v{wh+T}')
        A(f'v_lshl_add_u32 v{wh+T}, v{tq}, 3, v{wh+T}')
        A(f'v_lshlrev_b32 v{wh+T}, 4, v{wh+T}')
        A(f'v_add_u32 v{wh+T}, {SB}, v{wh+T}')
    A(f'v_mul_u32_u24 v{wx}, 1280, v{tk}')
    A(f'v_lshl_add_u32 v{wx}, v{cb_}, 4, v{wx}')
    A(f'v_add_u32 v{wx}, {SB}, v{wx}')
    A(f'v_lshrrev_b32 v{tq}, 3, v0')
    A(f'v_xor_b32 v{g0}, v{tq}, v0')
    A(f'v_and_b32 v{g0}, 7, v{g0}')
    A(f'v_lshlrev_b32 v{g0}, 4, v{g0}')
    A(f'v_lshl_add_u32 v{g0}, v{tq}, 8, v{g0}')
    for t in addr: k.I(t)
    k.I(f'v_and_b32 v{ta}, 1, v0')
    k.I(f'v_mul_u32_u24 v{wu}, {2*PL}, v{ta}')
    k.I(f'v_sub_u32 v{wv}, 384, v{ta+1}')
    k.I(f'v_lshl_add_u32 v{wv}, v{wv}, 2, v{wu}')
    k.I(f'v_lshl_add_u32 v{wu}, v{ta+1}, 2, v{wu}')
    k.I(f's_mul_i32 s24, s22, {PL}')
    k.I(f'v_lshl_add_u32 v{ra}, v{vl}, 2, s24')
    k.I(f'v_mov_b32 v{dat+10}, 0'); k.I(f'v_mov_b32 v{dat+11}, 0')
    k.I(f'v_mul_u32_u24 v{xo}, 80, v{vi}')
    k.I(f'v_lshl_add_u32 v{xo}, v{vq}, 3, v{xo}')
    k.I(f'v_lshlrev_b32 v{mo}, 1, v{xo}')
    k.I(f'v_add_u32 v{xo}, s30, v{xo}')
    for j in range(8, 12): k.I(f'v_mov_b32 v{xr+j}, 0')
    k.emit_bg(99); k.bg_every = 0; k.bg = hold
    def yloads():
        k.I('s_mov_b32 m0, s88')
        k.I(f'buffer_load_dwordx4 v{vo16}, s[12:15], s31 offen sc1 lds')
        k.I(f'buffer_load_dwordx4 v{vo16}, s[12:15], s31 offen offset:1024 sc1 lds')
        for rho in range(3):
            if rho == 2: k.I('s_mov_b64 exec, s[34:35]')
            k.I(f'buffer_load_dwordx4 {vr(ch+4*rho,4)}, v{so}, s[16:19], s{25+rho} offen {YFL}')
        k.I('s_mov_b64 exec, -1')
    def ycheck():
        k.I(f'v_and_b32 v{tq}, v{ch}, v{ch+4}')
        k.I(f'ds_read2st64_b32 {vr(vmk,2)}, v{vma} offset0:0 offset1:4')
        k.I(f'v_and_b32 v{tq}, v{tq}, v{ch+8}')
        k.I(f'v_and_b32 v{tq}, 1, v{tq}')
        k.I(f'v_add_u32 v{tq}, -1, v{tq}')
        k.I(f'v_max3_u32 v{tq}, v{tq}, v{vmk}, v{vmk+1}')
        k.I(f'v_cmp_eq_u32 s[62:63], -1, v{tq}')
        k.I('s_cmp_lg_u64 s[62:63], 0')
    yloads()
    if HALF: k.I(f'buffer_load_dword v{hr}, v{hs}, s[12:15], s89 offen offset:1024 sc1')
    mark(k, 1)
    tb_ = g2
    k.I(f'v_add_u32 v{tb_}, {TL}, v{vo16}')
    k.I('s_mov_b32 s50, 0')
    assert NB1 + W_J1 + W_J >= AUX_LAST
    nyoung = 5 + HALF + (NB1 + W_J1 + W_J - AUX_LAST)
    if len(k.vm) > nyoung: k.waitcnt(vm=nyoung)
    k.I('s_barrier')
    tl = [f'ds_read_b128 {vr(f40+4*i,4)}, v{tb_} offset:{1024*i}' for i in range(23)]
    for t in tl: k.I(t)
    cm_(k, 8)
    ycheck()
    k.I('s_cbranch_scc1 LY_slow')
    k.label('LY_ok')
    mark(k, 2); cm_(k, 9)
    for rho in range(3):
        if rho == 2: k.I('s_mov_b64 exec, s[34:35]')
        for pr in range(2):
            k.I(f'ds_write_b32 v{wu}, v{ch+4*rho+2*pr} offset:{pr*PL+512*rho}')
            k.I(f'ds_write_b32 v{wv}, v{ch+4*rho+2*pr+1} offset:{pr*PL+512*(2-rho)}')
    k.I('s_mov_b64 exec, -1')
    k.I(f'v_lshlrev_b32 v{so}, 4, v0')
    k.I(f'v_add_u32 v{so}, {SB}, v{so}')
    def gochk():
        k.I(f'v_readfirstlane_b32 s24, v{hr}')
        k.I('s_cmp_lg_u32 s24, 1')
        k.I('s_cbranch_scc1 LF0_slow')
        k.label('LF0_ok')
    if HALF: gochk()
    else: k.I(f'buffer_load_dword v{hr}, v{hs}, s[12:15], s89 offen offset:1024 sc1')
    k.barrier()
    mark(k, 3)
    for p in range(5):
        k.I(f'ds_read2st64_b32 {vr(dat+2*p,2)}, v{ra} offset0:{2*p} offset1:{2*p+1}')
    def s1(T):
        o = []
        for kap in range(3):
            for c in range(2):
                dd = vr(d1 + (2*T+c)*4, 4)
                o.append(f'{MF16} {dd}, {vr(dat+4*kap,4)}, {vr(f40+(2*T+c)*10+4*kap,4)}, {dd if kap else 0}')
        return o
    k.bg_every = env('BG2', 12)
    rest = merge(k, s1(0) + s1(1), [], 1)
    for t in rest: k.I(t)
    k.bg_every = 0
    for T in range(3): k.I(f'ds_read_b128 {vr(mg+4*T,4)}, v{mo} offset:{MLD+64*T}')
    a2 = ch; xf = f40
    cm = [rec(cmul4, d1+8*T, d1+8*T+4, cs+4*T, sn+4*T, a2+4*T, tmp, True) for T in range(3)]
    def s2(T): return [f'{MF16} {vr(d2+(2*T+c)*4,4)}, {vr(a2+4*T,4)}, {vr(f16+(0 if c else 2),4)}, 0' for c in range(2)]
    rest = merge(k, s1(2), cm[0], 2)
    for t in rest: k.I(t)
    for T in range(3):
        if T == 2: k.I('s_mov_b32 exec_hi, 0')
        for c in range(2):
            k.I(f'ds_read_b64 {vr(xr+(2*T+c)*2,2)}, v{xo} offset:{1280*c+32*T}')
    k.I('s_mov_b64 exec, -1')
    k.bg_every = env('BG2', 12)
    for t in s2(0) + cm[1] + s2(1) + cm[2] + s2(2): k.I(t)
    for T in range(3):
        k.I(f'ds_read_b128 {vr(ms+4*T,4)}, v{mo} offset:{MLD+2560+64*T}')
        k.I(f'ds_read_b128 {vr(mc+4*T,4)}, v{mo} offset:{MLD+5120+64*T}')
    st_ = f40 + 24
    for T in range(3):
        for i in range(4*T, 4*T+4):
            k.I(f'v_lshlrev_b32 v{xf+2*i}, 16, v{xr+i}')
            k.I(f'v_and_b32 v{xf+2*i+1}, 0xffff0000, v{xr+i}')
        for c in range(2):
            for p in (0, 2):
                r = (2*T+c)*4+p
                k.I(f'v_pk_fma_f32 {vr(xf+r,2)}, {vr(d2+r,2)}, {vr(mg+4*T+p,2)}, {vr(xf+r,2)}')
        for c in range(2):
            r = xf+(2*T+c)*4
            if T == 0:
                k.I(f'v_pk_add_f32 {vr(st_+2*c,2)}, {vr(r,2)}, {vr(r+2,2)}')
                k.I(f'v_pk_mul_f32 {vr(st_+4+2*c,2)}, {vr(r,2)}, {vr(r,2)}')
            else:
                k.I(f'v_pk_add_f32 {vr(st_+2*c,2)}, {vr(st_+2*c,2)}, {vr(r,2)}')
                k.I(f'v_pk_fma_f32 {vr(st_+4+2*c,2)}, {vr(r,2)}, {vr(r,2)}, {vr(st_+4+2*c,2)}')
        for c in range(2):
            r = xf+(2*T+c)*4+2
            if T: k.I(f'v_pk_add_f32 {vr(st_+2*c,2)}, {vr(st_+2*c,2)}, {vr(r,2)}')
            k.I(f'v_pk_fma_f32 {vr(st_+4+2*c,2)}, {vr(r,2)}, {vr(r,2)}, {vr(st_+4+2*c,2)}')
    for i in range(4): k.I(f'v_add_f32 v{st_+2*i}, v{st_+2*i}, v{st_+2*i+1}')
    wave_reduce_to_sgpr(k, [st_, st_+2, st_+4, st_+6], [46, 47, 48, 49])
    po = d1; ph = d1 + 12; hn = d2
    rr = f40 + 32; nmr = f40 + 34
    ln_scalars(k, 46, 48, rr, nmr, tmp)
    k.I(f'v_mov_b32 v{rr+4}, v{rr+1}')
    k.I(f'v_mov_b32 v{nmr+4}, v{nmr+1}')
    for T in range(3):
        for c in range(2):
            for p in (0, 2):
                r = (2*T+c)*4+p
                k.I(f'v_pk_fma_f32 {vr(hn+r,2)}, {vr(xf+r,2)}, {vr(rr+4*c,2)}, {vr(nmr+4*c,2)} op_sel_hi:[1,0,0]')
        for c in range(2):
            for p in (0, 2):
                r = hn+(2*T+c)*4+p
                k.I(f'v_pk_fma_f32 {vr(r,2)}, {vr(r,2)}, {vr(mc+4*T+p,2)}, {vr(ms+4*T+p,2)}')
        for j in range(4):
            k.I(f'v_cvt_pk_bf16_f32 v{ph+4*T+j}, v{hn+8*T+2*j}, v{hn+8*T+2*j+1}')
        if T:
            k.I(f'v_permlane16_swap_b32 v{ph+4*T-4}, v{ph+4*T-2}')
            k.I(f'v_permlane16_swap_b32 v{ph+4*T-3}, v{ph+4*T-1}')
            k.I(f'v_or_b32 v{ph+4*T-4}, 1, v{ph+4*T-4}')
            k.I(f'ds_write_b128 v{wh+T-1}, {vr(ph+4*T-4,4)} offset:{HB}')
    k.bg_every = 0
    for j in range(2): k.I(f'v_cvt_pk_bf16_f32 v{po+j}, v{xf+2*j}, v{xf+2*j+1}')
    k.I(f'v_permlane16_swap_b32 v{ph+8}, v{ph+10}')
    k.I(f'v_permlane16_swap_b32 v{ph+9}, v{ph+11}')
    k.I(f'v_or_b32 v{ph+8}, 1, v{ph+8}')
    k.I('s_mov_b32 exec_hi, 0')
    k.I(f'ds_write_b128 v{wh+2}, {vr(ph+8,4)} offset:{HB}')
    k.I('s_mov_b64 exec, -1')
    k.I('s_lshr_b32 s42, s3, 1')
    k.I('s_mul_i32 s42, s42, 20480')
    k.I('s_and_b32 s24, s21, 1')
    k.I('s_lshl_b32 s24, s24, 7')
    k.I('s_add_u32 s42, s42, s24')
    k.I(f's_add_u32 s42, s42, {H2}')
    k.I('s_add_u32 s44, s42, 8192')
    k.I('s_add_u32 s45, s42, 16384')
    if not HALF: gochk()
    k.barrier()
    mark(k, 4)
    sd = mg
    for rho in range(3):
        k.I(f'ds_read_b128 {vr(sd+4*rho,4)}, v{so} offset:{HB+4096*rho}')
    for j in range(2, 12): k.I(f'v_cvt_pk_bf16_f32 v{po+j}, v{xf+2*j}, v{xf+2*j+1}')
    k.I(f'buffer_store_dwordx4 {vr(sd,4)}, v{g0}, s[12:15], s42 offen sc1', tag='h2')
    k.I(f'buffer_store_dwordx4 {vr(sd+4,4)}, v{g0}, s[12:15], s44 offen sc1', tag='h2')
    k.I('s_cmp_lt_u32 s22, 2')
    k.I('s_cselect_b64 exec, -1, 0')
    k.I(f'buffer_store_dwordx4 {vr(sd+8,4)}, v{g0}, s[12:15], s45 offen sc1', tag='h2')
    k.I('s_mov_b64 exec, -1')
    for T in range(3):
        k.I(f'v_permlane16_swap_b32 v{po+4*T}, v{po+4*T+2}')
        k.I(f'v_permlane16_swap_b32 v{po+4*T+1}, v{po+4*T+3}')
    for T in range(3):
        if T == 2: k.I('s_mov_b32 exec_hi, 0')
        k.I(f'ds_write_b128 v{wx}, {vr(po+4*T,4)} offset:{XB+32*T}')
    k.I('s_mov_b64 exec, -1')
    k.I(f's_add_u32 s24, s30, {SB + XB - XL}')
    k.I(f'v_add_u32 v{g2}, s24, v{vo16}')
    k.I('s_mul_i32 s43, s3, 10240')
    k.I(f's_add_u32 s43, s43, s30')
    k.I(f's_add_u32 s29, s43, {X1 - XL}')
    k.waitcnt(lgkm=0)
    sx = 244
    for i in range(3): k.I(f'ds_read_b128 {vr(sx+4*i,4)}, v{g2} offset:{1024*i}')
    def x1st():
        for i in range(3):
            if i == 2: k.I('s_mov_b32 exec_hi, 0')
            k.I(f'buffer_store_dwordx4 {vr(sx+4*i,4)}, v{vo16}, s[12:15], s43 offen offset:{1024*i} sc1')
        k.I('s_mov_b64 exec, -1')
    k.I('s_mul_i32 s24, s20, 163840')
    k.I(f's_add_u32 s24, s24, {H2}')
    k.I('s_add_u32 s16, s4, s24')
    k.I('s_addc_u32 s17, s5, 0')
    k.I('s_mov_b32 s18, 163840')
    k.I('s_mov_b32 s19, 0x00020000')
    k.I('s_and_b32 s52, s22, 2')
    k.I('s_add_u32 s52, s52, s22')
    k.I('s_mul_i32 s52, s52, 20480')
    k.I('s_add_u32 s53, s52, 40960')
    k.I('s_lshl_b32 s54, s20, 8')
    k.I(f's_add_u32 s54, s54, {FLAGS}')
    k.I('s_add_u32 s55, s54, 4096')
    k.I('s_add_u32 s51, s54, 128')
    k.srd(36, 40, S * D * 2)
    k.emit_bg(W_ST)
    va = VAlloc(keep)
    rb = [va.get(), va.get()]; vD = va.get()
    oo = va.get(); ox = va.get(); lw = va.get(); lr = va.get(); t0 = va.get(); t1 = va.get()
    act = va.get(32, 4); accs = [va.get(48, 4), va.get(48, 4)]; pk = va.get(12, 4)
    gb = va.get(8, 4); x1r = va.get(16, 4)
    NV = (256 - va.n) // 4
    wdv = va.get(4 * NV, 4)
    def wdreg(n): return vr(wdv + 4*n, 4) if n < NV else ar(4*(n - NV), 4)
    def emit(grp):
        for t in grp:
            if isinstance(t, tuple): k.I(t[0], tag=t[1])
            else: k.I(t)
    def dma(ps, g):
        out = []
        for j in range(4):
            gr = [(f'buffer_load_dwordx4 v{vo16}, s[16:19], m0 offen offset:{1024*j} sc1 lds', ('a', ps, g, j // 2))]
            if j == 0: gr = [f's_add_u32 m0, s{52+ps}, {4096*g}'] + gr
            out.append(gr)
        return out
    NPRE = 2
    if env('H1_FLAG', 0):
        k.wait_tag('h2')
        signal(k, 'H1', 54, hs)
        k.emit_bg(env('W_PL', 6))
        poll(k, 'H1p', 54, hs, hr)
    for g in range(NPRE):
        for grp in dma(0, g): emit(grp)
    k.emit_bg(W_A)
    late = list(k.bg); k.bg = []
    print('late weight loads', len(late), 'NV', NV)
    k.I(f'v_mov_b32 v{rb[0]}, v{vo16}')
    k.I(f'v_add_u32 v{rb[1]}, {4*20480}, v{vo16}')
    def aread(ps, i, kap):
        off = ((i & 1) + 2*ps) * 20480 + 1024*kap
        base = rb[i >> 1]
        return f'ds_read_b128 {vr(act+16*(kap&1)+4*i,4)}, v{base} offset:{off - (40960 if ps else 0)}'
    k.I('s_lshl_b32 s24, s56, 2')
    k.I('s_add_u32 s24, s24, s22')
    k.I('s_mul_i32 s24, s24, 61440' if not env('W_SAME', 0) & 2 else 's_mul_i32 s24, s22, 61440')
    k.I(f's_add_u32 s24, s24, {WD}')
    k.I(f'v_add_u32 v{vD}, s24, v{vo16}')
    def dload(n):
        if env('NO_WD', 0): return [f'v_add_u32 v{vD}, 0, v{vD}']
        g = [f'buffer_load_dwordx4 {wdreg(n)}, v{vD}, s[12:15], 0 offen offset:{1024*(n%4)} sc1']
        if n % 4 == 3: g.append(f'v_add_u32 v{vD}, 0x1000, v{vD}')
        return g
    RS = 336; PT = 16 * RS
    k.I('s_lshl_b32 s24, s20, 1')
    k.I('s_add_u32 s24, s24, s57')
    k.I('s_lshl_b32 s24, s24, 2')
    k.I(f's_mul_i32 s33, s22, {12*1024}')
    k.I(f's_add_u32 s33, s33, {HH}')
    k.I('s_mul_i32 s42, s24, 49152')
    k.I('s_add_u32 s42, s42, s33')
    for i in range(1, 4): k.I(f's_add_u32 s{42+i}, s42, {49152*i}')
    k.I(f'v_mul_u32_u24 v{t0}, 26, v{vl}')
    k.I(f'v_lshrrev_b32 v{t0}, 8, v{t0}')
    k.I(f'v_mul_u32_u24 v{t1}, 10, v{t0}')
    k.I(f'v_sub_u32 v{t1}, v{vl}, v{t1}')
    k.I(f'v_mul_u32_u24 v{lr}, {RS}, v{t0}')
    k.I(f'v_lshl_add_u32 v{lr}, v{t1}, 4, v{lr}')
    k.I(f's_mul_i32 s25, s22, {4*RS}')
    k.I(f'v_add_u32 v{lr}, s25, v{lr}')
    k.I(f'v_mul_u32_u24 v{ox}, 1280, v{t0}')
    k.I(f'v_lshl_add_u32 v{ox}, v{t1}, 4, v{ox}')
    k.I(f'v_mul_u32_u24 v{oo}, {32*1280}, v{t0}')
    k.I(f'v_lshl_add_u32 v{oo}, v{t1}, 4, v{oo}')
    k.I(f'v_lshlrev_b32 v{t1}, 5, v{t1}')
    k.I(f'v_mul_u32_u24 v{lw}, {RS}, v{vi}')
    k.I(f's_mul_i32 s25, s22, {PT}')
    k.I(f'v_add_u32 v{lw}, s25, v{lw}')
    lw2 = t0
    k.I(f'v_mul_u32_u24 v{hr}, 5, v{vq}')
    k.I(f'v_add_u32 v{lw2}, 1, v{hr}')
    k.I(f'v_lshrrev_b32 v{lw2}, 1, v{lw2}')
    k.I(f'v_lshl_add_u32 v{lw2}, v{lw2}, 4, v{lw}')
    k.I(f'v_lshrrev_b32 v{hr}, 1, v{hr}')
    k.I(f'v_lshl_add_u32 v{lw}, v{hr}, 4, v{lw}')
    k.I(f'v_and_b32 v{hr}, 1, v{vq}')
    k.I(f'v_mul_u32_u24 v{hr}, 160, v{hr}')
    k.I(f'v_add_u32 v{lw}, v{lw}, v{hr}')
    k.I(f'v_sub_u32 v{lw2}, v{lw2}, v{hr}')
    k.I(f'v_add_u32 v{lw2}, 160, v{lw2}')
    k.I('s_mul_i32 s30, s56, 160')
    k.I('s_lshl_b32 s25, s24, 2')
    k.I('s_add_u32 s25, s25, s22')
    k.I(f's_mul_i32 s46, s25, {4*1280}')
    k.I('s_add_u32 s46, s46, s30')
    k.I(f's_add_u32 s46, s46, {X1}')
    for i in range(1, 4): k.I(f's_add_u32 s{46+i}, s46, {16*1280*i}')
    k.I('s_lshl_b32 s25, s20, 7')
    k.I('s_lshl_b32 s26, s57, 4')
    k.I('s_add_u32 s25, s25, s26')
    k.I('s_add_u32 s25, s25, s22')
    k.I('s_mul_i32 s25, s25, 1280')
    k.I('s_add_u32 s25, s25, s30')
    for i in range(1, 4): k.I(f's_add_u32 s{25+i}, s25, {4*1280*i}')
    k.I('s_lshl_b32 s30, s30, 1')
    k.I(f's_add_u32 s30, s30, {5*2560}')
    vx3 = x1r + 14
    k.I(f'v_cmp_gt_u32 vcc, 32, v{vl}')
    k.I(f'v_mov_b32 v{vx3}, 0x7ff00000')
    k.I(f'v_cndmask_b32 v{vx3}, v{vx3}, v{vo16}, vcc')
    k.I('s_mov_b32 s34, -1')
    k.I('s_mov_b32 s35, 0xff')
    vck = x1r; vad = x1r + 15
    k.I(f'v_add_u32 v{vad}, s52, v{vo16}')
    slow = []
    def validate(name, groups):
        o = []; n = 0
        for g in groups:
            for j in range(2):
                o.append([f'ds_read2st64_b32 {vr(vck+n,2)}, v{vad} offset0:{16*g+8*j} offset1:{16*g+8*j+4}']); n += 2
        i = 1
        while i < n:
            if i + 1 < n: o.append([f'v_bitop3_b32 v{vck}, v{vck}, v{vck+i}, v{vck+i+1} bitop3:0x80']); i += 2
            else: o.append([f'v_bitop3_b32 v{vck}, v{vck}, v{vck+i}, 1 bitop3:0x80']); i += 1
        o.append([f'v_cmp_eq_u32 s[62:63], 0, v{vck}'])
        o.append(['s_nop 0'])
        o.append(['s_cmp_lg_u64 s[62:63], 0', ('BR', f's_cbranch_scc1 L{name}_slow', f'L{name}_ok')])
        slow.append((name, groups))
        return o
    _emit = emit
    def emit(grp):
        for t in grp:
            if isinstance(t, tuple) and t[0] == 'GRP': emit(t[1])
            elif isinstance(t, tuple) and t[0] == 'BR':
                k.I(t[1], noflush=True); k.raw(t[2] + ':')
            else: _emit([t])
    k.wait_tag('h2')
    mark(k, 5)
    if not env('H1_FLAG', 0): signal(k, 'H1', 54, hs)
    k.wait_tag(('a', 0, 1, 1))
    mark(k, 6)
    for g in validate('V0', [0, 1]): emit(g)
    k.I('s_barrier')
    mark(k, 7)
    for kp_ in range(2):
        for i in range(4): k.I(aread(0, i, kp_))
    def epi(ps):
        acc = accs[ps]; o = []
        for pr in range(2):
            for j in range(2):
                i = 2*pr + j
                g_ = acc + i*4; u_ = acc + (4+i)*4
                for p in (0, 2): o.append(f'v_pk_mul_f32 {vr(g_+p,2)}, {vr(g_+p,2)}, {vr(u_+p,2)}')
            a_ = acc + (8+2*pr)*4; b_ = a_ + 4
            for r in range(4): o.append(f'v_permlane32_swap_b32 v{a_+r}, v{b_+r}')
            for j in range(2):
                g_ = acc + (2*pr+j)*4
                for p in (0, 2): o.append(f'v_cvt_pk_bf16_f32 v{pk+4*pr+2*j+p//2}, v{g_+p}, v{g_+p+1}')
            for p in (0, 2): o.append(f'v_pk_mul_f32 {vr(a_+p,2)}, {vr(a_+p,2)}, {vr(b_+p,2)}')
            o.append(f'v_permlane16_swap_b32 v{pk+4*pr}, v{pk+4*pr+2}')
            o.append(f'v_permlane16_swap_b32 v{pk+4*pr+1}, v{pk+4*pr+3}')
            for p in (0, 2): o.append(f'v_cvt_pk_bf16_f32 v{pk+8+2*pr+p//2}, v{a_+p}, v{a_+p+1}')
            o.append((f'buffer_store_dwordx4 {vr(pk+4*pr,4)}, v{oh}, s[12:15], s{58+2*pr+ps} offen sc1', ('h', ps)))
        o.append(f'v_permlane16_swap_b32 v{pk+8}, v{pk+10}')
        o.append(f'v_permlane16_swap_b32 v{pk+9}, v{pk+11}')
        o.append((f'buffer_store_dwordx4 {vr(pk+8,4)}, v{oh2}, s[12:15], s{58+ps} offen offset:512 sc1', ('h', ps)))
        return o
    slots_h = [vr(accs[0] + 4*i, 4) for i in range(12)] + [ar(240 + 4*i, 4) for i in range(4)] + [ar(4*i, 4) for i in range(60 - NV, 60)]
    NH = len(slots_h)
    horder = [(t, kp) for kp in range(12) for t in (0, 1)] + [(t, kp) for t in (2, 3) for kp in range(12)]
    def hload(n):
        t, kp = horder[n]
        if env('NO_H', 0): return [f's_add_u32 s{42+t}, s{42+t}, {n}']
        g = [f'buffer_load_dwordx4 {slots_h[n % NH]}, v{vo16}, s[12:15], s{42+t} offen offset:{1024*(kp%4)} sc1']
        if kp % 4 == 3: g.append(f's_add_u32 s{42+t}, s{42+t}, 4096')
        return g
    def check(name, cnt):
        k.I(f'v_readfirstlane_b32 s33, v{hr}')
        k.I('s_cmp_ge_u32 s33, 16')
        k.I(f's_cbranch_scc0 L{name}_spin', noflush=True)
        k.raw(f'L{name}_ok:')
        spins.append((name, cnt))
    spins = []
    q1 = []
    for g in range(NPRE, 5): q1 += dma(0, g)
    xs_ = []
    for i in range(3):
        xs_.append([f'buffer_store_dwordx4 {vr(sx+4*i,4)}, v{vo16 if i < 2 else vx3}, s[12:15], s29 offen offset:{1024*i} sc1'])
    q1 += late[:-6] + [[f'buffer_load_dword v{hr}, v{hs}, s[12:15], s54 offen sc1']] + late[-6:] + xs_ + [['CHECK']]
    for g in range(5): q1 += dma(1, g)
    q1 += [[f'buffer_load_dwordx4 {vr(gb+4*j,4)}, v{t1}, s[12:15], s30 offen offset:{16*j} sc1'] for j in range(2)]
    nd = 0; nh = 0
    bars = {(0, 6): ('a', 0, 2, 1), (0, 10): ('a', 0, 4, 1), (0, 18): ('a', 1, 1, 1), (1, 6): ('a', 1, 4, 1), (1, env('K_SA', 9)): None}
    VRATE = env('VRATE', 25) / 120.0
    credit = 1.0
    KA_, KC_ = env('K_A', 14), env('K_C', 17)
    ep = []; vq_ = []
    fl = []
    since = 99
    def isvm(t): return (t[0] if isinstance(t, tuple) else t).startswith('buffer_')
    for ps in range(2):
        for kap in range(20):
            pend = list(fl) + [t for g in q1 for t in g]
            if ps == 0 and kap in (env('V2_AT', 4), env('V3_AT', 7)): assert not any(isinstance(t, tuple) and t[0] != 'GRP' and t[1] <= ('a', 0, 2 if kap == env('V2_AT', 4) else 4, 1) for t in pend), 'val early'
            for mt in range(3):
                assert ps or not any(isinstance(t, str) and t.startswith(f'buffer_load_dwordx4 {ar((3*kap+mt)*4,4)},') for t in pend), ('weight late', kap)
            if (ps, kap) in bars:
                if bars[(ps, kap)]:
                    assert not any(isinstance(t, tuple) and t[0] != 'GRP' and t[1] <= bars[(ps, kap)] for t in pend), ('dma late', ps, kap)
                    k.wait_tag(bars[(ps, kap)])
                if not bars[(ps, kap)]:
                    assert not ep
                    em(k, 3)
                    k.wait_tag(('h', 0))
                    signal(k, 'HA', 55, hs, noflush=True)
                    em(k, 4)
                else: k.I('s_barrier')
            if ps == 0 and kap in (6, 10): assert not vq_
            if ps == 0 and kap == env('V2_AT', 4): k.wait_tag(('a', 0, 2, 1)); vq_ = validate('V2', [2])
            if ps == 0 and kap == env('V3_AT', 7): k.wait_tag(('a', 0, 4, 1)); vq_ = validate('V3', [3, 4])
            if ps == 0 and kap == 18:
                k.I(f'v_add_u32 v{rb[0]}, 40960, v{rb[0]}')
                k.I(f'v_add_u32 v{rb[1]}, 40960, v{rb[1]}')
            if ps == 1 and kap == 1:
                if env('EP_SERIAL', 1):
                    em(k, 1)
                    for t in epi(0): emit([t])
                    em(k, 2)
                else: ep = pairs(epi(0))
            if ps == 1 and kap == KA_: fl.insert(0 if not fl or isvm(fl[0]) else 1, f'buffer_load_dword v{hr}, v{hs}, s[12:15], s55 offen sc1') if False else k.I(f'buffer_load_dword v{hr}, v{hs}, s[12:15], s55 offen sc1')
            if ps == 1 and kap == KC_: em(k, 5); check('HA', 55); em(k, 6)
            for j in range(12):
                i, mt = divmod(j, 3)
                dd = vr(accs[ps]+(mt*4+i)*4, 4)
                k.I(f'{MF16} {dd}, {ar((3*kap+mt)*4,4)}, {vr(act+16*(kap&1)+4*i,4)}, {dd if kap else 0}')
                since += 1; credit = min(credit + VRATE, 1.6)
                rd = None
                if mt == 2:
                    if kap < 18: rd = aread(ps, i, kap + 2)
                    elif ps == 0: rd = aread(1, i, kap - 18)
                if rd: k.I(rd); continue
                if j == 10 and len(k.lg) > 3: k.waitcnt(lgkm=3); continue
                if j == 10 and ps == 1 and kap == 18: k.waitcnt(lgkm=0); continue
                if not fl:
                    free = NV + (3 * kap if ps else 0)
                    if q1 and q1[0] == ['CHECK']: q1.pop(0); check('H1', 54); continue
                    if q1: fl = list(q1.pop(0))
                    elif ps == 1 and kap >= KC_ and nh < 16 and (nh // 2) * 5 < nd: fl = list(hload(nh)); nh += 1
                    elif nd < min(free, 60): fl = list(dload(nd)); nd += 1
                if ep and isvm(ep[0][0]):
                    emit(ep.pop(0)); since = 0; credit -= 1.0
                elif fl and (not isvm(fl[0]) or (since >= 3 and credit >= 1.0)):
                    t = fl.pop(0)
                    if isvm(t): since = 0; credit -= 1.0
                    emit([t])
                elif vq_: emit(vq_.pop(0))
                elif ep:
                    g_ = ep.pop(0); emit(g_)
                    if ep and len(g_) == 1 and len(ep[0]) == 1 and not isvm(ep[0][0]): emit(ep.pop(0))
        if ps == 0 and not env('MD', 0): mark(k, 2)
    for t in fl: emit([t])
    assert not q1
    print('after E: wd loaded', nd, 'h loaded', nh)
    NHE = nh
    mark(k, 8); fm(k, 1); em(k, 7); pm(k, 1)
    fq = []
    def need_order():
        o = []; d = nd; h = nh
        for kp in range(12):
            while d < 5*(kp+1): o.append(dload(d)); d += 1
            while h < 2*(kp+1): o.append(hload(h)); h += 1
        return o
    fq = need_order()
    full = list(fq)
    def sorted_q(a_, b_):
        rest = [g for g in b_ if g not in full]
        return [g for g in full if g in a_ or g in b_] + rest
    fq += [['s_mov_b64 exec, s[34:35]', f'buffer_load_dwordx4 {vr(x1r+4*t,4)}, v{ox}, s[12:15], s{46+t} offen sc1', 's_mov_b64 exec, -1'] for t in range(4)]
    for t in epi(1): emit([t])
    fm(k, 2)
    if KC_ >= 20: check('HA', 55)
    fm(k, 3)
    for _ in range(env('F_PRE1', 0)):
        if fq: emit(fq.pop(0))
    mark(k, 9); fm(k, 4)
    fa = accs[1]
    SL = [0, 4*PT, 8*PT, 0]
    def pwrite(t, a): return [f'ds_write_b128 v{lw2 if dt & 1 else lw}, {vr(a+4*dt,4)} offset:{SL[t]+16*(dt//2)}' for dt in range(5)]
    def fin_reads(t, r): return [f'ds_read_b128 {vr(r+8*src+4*h_,4)}, v{lr} offset:{SL[t]+PT*src+160*h_}' for src in range(4) for h_ in range(2)]
    def fin_valu(t, r, xf):
        o = []
        for j in range(4):
            o.append(f'v_lshlrev_b32 v{xf+2*j}, 16, v{x1r+4*t+j}')
            o.append(f'v_and_b32 v{xf+2*j+1}, 0xffff0000, v{x1r+4*t+j}')
        for p in range(4): o.append(f'v_pk_add_f32 {vr(r+2*p,2)}, {vr(r+2*p,2)}, {vr(r+8+2*p,2)}')
        for p in range(4): o.append(f'v_pk_add_f32 {vr(r+16+2*p,2)}, {vr(r+16+2*p,2)}, {vr(r+24+2*p,2)}')
        for p in range(4): o.append(f'v_pk_add_f32 {vr(r+2*p,2)}, {vr(r+2*p,2)}, {vr(r+16+2*p,2)}')
        for p in range(4): o.append(f'v_pk_fma_f32 {vr(xf+2*p,2)}, {vr(r+2*p,2)}, {vr(gb+2*p,2)}, {vr(xf+2*p,2)}')
        for p in range(4): o.append(f'v_cvt_pk_bf16_f32 v{x1r+4*t+p}, v{xf+2*p}, v{xf+2*p+1}')
        return o
    OST = os.environ.get('OUT_ST', '')
    def fin_store(t): return ['s_mov_b64 exec, s[34:35]', f'buffer_store_dwordx4 {vr(x1r+4*t,4)}, v{oo}, s[36:39], s{25+t} offen{OST}', 's_mov_b64 exec, -1']
    KB_ = env('K_B', 3)
    fl = []
    def gap(pool):
        nonlocal fl
        if not fl and pool:
            g = pool.pop(0)
            if isinstance(g[0], str) and g[0].startswith('s_mov_b64 exec'): emit(g); return
            fl = list(g)
        if fl: emit([fl.pop(0)])
    FG = env('F_GAP', 5)
    KBL, KBC = env('K_BL', 8), env('K_BC', 11)
    since = 99; nh = 24
    hq = [hload(n) for n in range(24, 48)]
    for kp in range(12):
        if kp % 2 == 0: pm(k, 2 + kp // 2)
        if kp == KB_:
            k.wait_tag(('h', 1))
            signal(k, 'HB', 51, hs, noflush=True)
            fm(k, 5)
        if kp == KBL: fq.insert(0, [f'buffer_load_dword v{hr}, v{hs}, s[12:15], s51 offen sc1'])
        if kp == KBC:
            while fq or fl: gap(fq)
            check('HB', 51); fm(k, 7)
            fq = hq
        for t in range(2):
            need = [wdreg(5*kp+dt) for dt in range(5)] + [slots_h[(2*kp+t) % NH]]
            while fq is not hq and any(g[0].startswith(f'buffer_load_dwordx4 {r},') for g in fq for r in need): gap(fq)
            for dt in range(5):
                dd = vr(fa+20*t+4*dt, 4)
                k.I(f'{MF16} {dd}, {wdreg(5*kp+dt)}, {slots_h[(2*kp+t) % NH]}, {dd if kp else 0}')
                since += 1
                if dt == 4: continue
                if fl: gap(fq)
                elif since >= (env('F_GAP2', 5) if fq is hq else env('F_GAP1', 2)) and fq: gap(fq); since = 0
    pm(k, 8)
    while fl: gap(fq)
    if KBC >= 12:
        while fq: gap(fq)
    if not env('MD', 0): mark(k, 3)
    fm(k, 6); em(k, 8); pm(k, 9)
    def sprinkle(lst, every):
        for j, v_ in enumerate(lst):
            k.I(v_)
            if j % every == every - 1 and hq: emit(hq.pop(0))
    if KBC == 12: check('HB', 51); fm(k, 7)
    sprinkle(pwrite(0, fa) + pwrite(1, fa + 20), env('SPR', 2) if KBC <= 12 else 99)
    k.barrier()
    if KBC == 13:
        check('HB', 51); fm(k, 7)
        for _ in range(4): emit(hq.pop(0))
    em(k, 9)
    xfA = pk
    sprinkle(fin_reads(0, fa) + fin_reads(1, act), env('SPR2', 8))
    sprinkle(fin_valu(0, fa, pk), env('SPR3', 14))
    if not env('MD', 0): mark(k, 4)
    late_st = [fin_store(0), fin_store(1)]
    extra0 = pairs(fin_valu(1, act, fa + 40))
    rB = act
    extra = extra0
    hq = hq + late_st
    since = 99
    for t in (2, 3):
        a = fa + 20*(t - 2)
        if t == 3:
            assert not extra
            extra = [[w_] for w_ in pwrite(2, fa)]
        for kp in range(12):
            n = 24 + 12*(t-2) + kp
            if n == 25: fm(k, 8)
            assert not any(g[0].startswith(f'buffer_load_dwordx4 {slots_h[n % NH]},') for g in hq)
            for dt in range(5):
                dd = vr(a+4*dt, 4)
                k.I(f'{MF16} {dd}, {wdreg(5*kp+dt)}, {slots_h[n % NH]}, {dd if kp else 0}')
                since += 1
                if dt == 4 and n < 46: continue
                if fl: gap(hq)
                elif hq and since >= FG and not (extra is extra0 and extra and hq[0] is late_st[1]): gap(hq); since = 0
                elif (kp >= 1 or t == 2) and extra: emit(extra.pop(0))
            if t == 3 and kp == 3:
                assert not extra
                k.barrier()
                extra = [[r_] for r_ in fin_reads(2, wdv)] + pairs(fin_valu(2, wdv, xfA)) + [fin_store(2)]
    fm(k, 9)
    while extra: emit(extra.pop(0))
    for w_ in pwrite(3, fa + 20): k.I(w_)
    xl = fin_valu(3, wdv + 32, act)
    for v_ in xl[:8]: k.I(v_)
    k.barrier()
    for r_ in fin_reads(3, wdv + 32): k.I(r_)
    for v_ in xl[8:]: k.I(v_)
    emit(fin_store(3))
    if gen.STAMPS and not env('MF', 0): k.I('s_add_u32 s66, s50, s64')
    stamp_end(k, 3, 4)
    k.label('LD_exit')
    k.I('s_endpgm')
    k.label('LY_slow', fresh=True); k.vm = []; k.lg = []
    k.I('s_mov_b32 s24, 0x40000')
    k.label('LY_loop')
    k.I('s_add_u32 s50, s50, 1')
    k.I(f's_sleep {env("Y_SLEEP", 2)}')
    yloads()
    k.waitcnt(vm=0)
    k.I('s_sub_u32 s24, s24, 1')
    k.I('s_cbranch_scc1 LY_ok')
    ycheck()
    k.I('s_cbranch_scc1 LY_loop')
    k.I('s_branch LY_ok')
    k.label('LF0_slow', fresh=True); k.vm = []; k.lg = []
    k.I('s_mov_b32 s33, 0x40000')
    k.label('LF0_loop')
    k.I('s_sleep 4')
    k.I(f'buffer_load_dword v{hr}, v{hs}, s[12:15], s89 offen offset:1024 sc1')
    k.waitcnt(vm=0)
    k.I('s_sub_u32 s33, s33, 1')
    k.I('s_cbranch_scc1 LF0_ok')
    k.I(f'v_readfirstlane_b32 s24, v{hr}')
    k.I('s_cmp_lg_u32 s24, 1')
    k.I('s_cbranch_scc1 LF0_loop')
    k.I('s_branch LF0_ok')
    k.label('LWD', fresh=True); k.restore_state(st0)
    vc = VAlloc(keep)
    t0_ = vc.get(); t1_ = vc.get(); ra_ = vc.get(); so_ = vc.get(5); o_ = vc.get(20, 4)
    for p in range(5):
        k.I(f'v_add_u32 v{t0_}, {64*p}, v{vl}')
        k.I(f'v_mul_u32_u24 v{t1_}, 205, v{t0_}')
        k.I(f'v_lshrrev_b32 v{t1_}, 13, v{t1_}')
        k.I(f'v_mul_u32_u24 v{t1_}, 640, v{t1_}')
        k.I(f'v_add_u32 v{so_+p}, v{t1_}, v{vo16}')
    k.I(f'v_bfe_u32 v{t1_}, v{vl}, 2, 2')
    k.I(f'v_lshl_add_u32 v{t0_}, v{vq}, 3, v{t1_}')
    k.I(f'v_mul_u32_u24 v{ra_}, 640, v{t0_}')
    k.I(f'v_and_b32 v{t0_}, 3, v{vl}')
    k.I(f'v_mul_u32_u24 v{t0_}, 40, v{t0_}')
    k.I('s_mul_i32 s24, s22, 160')
    k.I(f's_add_u32 s24, s24, {CL}')
    k.I(f'v_add3_u32 v{ra_}, v{ra_}, v{t0_}, s24')
    k.I('s_mul_i32 s90, s22, 5120')
    k.I(f's_add_u32 s90, s90, {CL}')
    k.I('s_sub_u32 s48, s2, 161')
    if HALF:
        GL = CL + 20480
        wo_ = vc.get(3); rg_ = vc.get(); r2_ = vc.get(); og_ = vc.get(24, 4)
        for p in range(3):
            k.I(f'v_add_u32 v{t0_}, {64*p}, v{vl}')
            k.I(f'v_mul_u32_u24 v{t1_}, 171, v{t0_}')
            k.I(f'v_lshrrev_b32 v{t1_}, 12, v{t1_}')
            k.I(f'v_mul_u32_u24 v{t1_}, 2688, v{t1_}')
            k.I(f'v_add_u32 v{wo_+p}, v{t1_}, v{vo16}')
        k.srd(8, 36, D * F * 2)
        k.srd(16, 38, D * F * 2)
        k.I('s_sub_u32 s48, s2, 161')
        k.I('s_and_b32 s49, s48, 7')
        k.I('s_lshr_b32 s50, s48, 3')
        k.I('s_add_u32 s50, s50, 10')
        k.I('s_lshl_b32 s51, s50, 2')
        k.I('s_add_u32 s51, s51, s22')
        k.I(f's_mul_i32 s51, s51, {8*3072}')
        k.I('s_mul_i32 s24, s49, 384')
        k.I('s_add_u32 s51, s51, s24')
        k.I('s_mul_i32 s24, s22, 3072')
        k.I(f's_add_u32 m0, s24, {GL}')
        for p in range(3): k.I(f'buffer_load_dwordx4 v{wo_+p}, s[8:11], s51 offen offset:{1024*p} nt lds')
        k.I(f's_add_u32 m0, s24, {GL+12288}')
        for p in range(3): k.I(f'buffer_load_dwordx4 v{wo_+p}, s[16:19], s51 offen offset:{1024*p} nt lds')
        k.I('s_lshl_b32 s54, s49, 3')
        k.I('s_add_u32 s54, s54, s22')
        k.I('s_mul_i32 s54, s54, 10')
        k.I('s_add_u32 s54, s54, s50')
        k.I('s_mul_i32 s54, s54, 3072')
        k.I(f's_add_u32 s54, s54, {WGU_B - 30720}')
        k.I('s_cmp_lt_u32 s48, 80')
        k.I('s_cselect_b32 s54, s54, 0x7f000000')
        k.I(f's_add_u32 s34, s54, {4*10*3072}')
        k.I(f'v_bfe_u32 v{t1_}, v{vl}, 2, 2')
        k.I(f'v_lshl_add_u32 v{t0_}, v{vq}, 3, v{t1_}')
        k.I(f'v_mul_u32_u24 v{rg_}, 384, v{t0_}')
        k.I('s_mul_i32 s24, s22, 48')
        k.I(f's_add_u32 s24, s24, {GL}')
        k.I(f'v_add_u32 v{rg_}, s24, v{rg_}')
        k.I(f'v_and_b32 v{t0_}, 1, v{vl}')
        k.I(f'v_lshl_add_u32 v{r2_}, v{t0_}, 3, v{rg_}')
        k.I(f'v_bfe_u32 v{t0_}, v{vl}, 1, 1')
        k.I(f'v_mul_u32_u24 v{t0_}, 12288, v{t0_}')
        k.I(f'v_add_u32 v{r2_}, v{r2_}, v{t0_}')
        k.I(f'v_and_b32 v{t0_}, 3, v{vl}')
        k.I(f'v_lshl_add_u32 v{rg_}, v{t0_}, 3, v{rg_}')
    k.srd(36, 62, F * D * 2)
    k.srd(44, 4, F * D * 2, WD)
    def wd_in(sj):
        k.I(f's_and_b32 s49, s{sj}, 1')
        k.I(f's_lshr_b32 s50, s{sj}, 1')
        k.I('s_lshl_b32 s51, s50, 2')
        k.I('s_add_u32 s51, s51, s22')
        k.I('s_mul_i32 s51, s51, 10240')
        k.I('s_mul_i32 s24, s49, 640')
        k.I('s_add_u32 s51, s51, s24')
        k.I('s_mov_b32 m0, s90')
        for p in range(4): k.I(f'buffer_load_dwordx4 v{so_+p}, s[36:39], s51 offen offset:{1024*p} nt lds', tag='r')
        k.I('s_add_u32 m0, s90, 4096')
        k.I('s_add_u32 s51, s51, 4096')
        k.I(f'buffer_load_dwordx4 v{so_+4}, s[36:39], s51 offen nt lds', tag='r')
        k.I('s_lshl_b32 s52, s49, 2')
        k.I('s_add_u32 s52, s52, s22')
        k.I('s_mul_i32 s52, s52, 48')
        k.I('s_add_u32 s52, s52, s50')
        k.I('s_mul_i32 s52, s52, 5120')
        k.I('s_add_u32 s53, s52, 4096')
    def wd_out():
        k.wait_tag('r')
        k.I('s_barrier')
        cm_(k, 3)
        for j in range(2 if HALF else 0):
            for mt in range(3):
                for hf in range(2):
                    off = 4*hf*384 + 192*j + (12288 if mt == 1 else 0) + (32 if mt == 2 else 0)
                    k.I(f'ds_read_b64_tr_b16 {vr(og_+(3*j+mt)*4+2*hf,2)}, v{r2_ if mt == 2 else rg_} offset:{off}')
        for j in range(2 if HALF else 0):
            for mt in range(3):
                k.I(f'buffer_store_dwordx4 {vr(og_+(3*j+mt)*4,4)}, v{vo16}, s[12:15], s{34 if j else 54} offen offset:{1024*mt} sc1', tag='y')
        for dt in range(5):
            for hf in range(2): k.I(f'ds_read_b64_tr_b16 {vr(o_+dt*4+2*hf,2)}, v{ra_} offset:{4*hf*640+8*dt}')
        for dt in range(5):
            k.I(f'buffer_store_dwordx4 {vr(o_+dt*4,4)}, v{vo16}, s[44:47], s{52+(dt//4)} offen offset:{1024*(dt%4)} sc1', tag='y')
    wd_in(48)
    stW = k.save_state()
    k.I('s_sub_u32 s48, s2, 162')
    k.I('s_cmp_ge_u32 s48, 3')
    k.I('s_cbranch_scc1 LWD0')
    m0_ = 100
    k.I('s_lshl_b32 s48, s48, 8')
    k.I(f'v_add_u32 v{m0_}, s48, v0')
    k.I(f'v_lshlrev_b32 v{m0_+1}, 4, v{m0_}')
    k.srd(8, 4, 4 * 960 * 16, GR)
    for p in range(4):
        k.I(f's_mov_b32 s49, {960*16*p + 320*16}')
        k.I(f'buffer_load_dwordx4 {vr(m0_+4+4*p,4)}, v{m0_+1}, s[8:11], s49 offen')
    k.srd(12, 4, 4 * D * 4, MODN + 2 * D * 4)
    k.I('s_mov_b32 s50, 0x04000c0c')
    k.I('s_mov_b32 s51, 0x0706000c')
    k.I(f'v_mov_b32 v{m0_+22}, {fhex(1.0 / (2.0 * S * D))}')
    k.I(f'v_cmp_gt_u32 vcc, 0xa0, v{m0_}')
    k.I(f'v_cndmask_b32 v{m0_+22}, 1.0, v{m0_+22}, vcc')
    k.I(f'v_subrev_u32 v{m0_+21}, 0x140, v{m0_}')
    k.I(f'v_cmp_gt_u32 vcc, 0xa0, v{m0_+21}')
    k.I(f'v_mov_b32 v{m0_+23}, 1.0')
    k.I(f'v_cndmask_b32 v{m0_+23}, 0, v{m0_+23}, vcc')
    g_ = m0_ + 4
    for p in range(4): unpack_gran(k, g_+4*p, m0_+21, 50, 51)
    for p in (0, 2):
        k.I(f'v_pk_add_f32 {vr(g_+p,2)}, {vr(g_+p,2)}, {vr(g_+4+p,2)}')
        k.I(f'v_pk_add_f32 {vr(g_+8+p,2)}, {vr(g_+8+p,2)}, {vr(g_+12+p,2)}')
    for p in (0, 2): k.I(f'v_pk_add_f32 {vr(g_+p,2)}, {vr(g_+p,2)}, {vr(g_+8+p,2)}')
    for j in range(4): k.I(f'v_cvt_pk_bf16_f32 v{g_+j}, v{g_+j}, v{g_+j}')
    for j in range(4): k.I(f'v_and_b32 v{g_+j}, 0xffff0000, v{g_+j}')
    for j in range(4): k.I(f'v_add_f32 v{g_+j}, v{m0_+23}, v{g_+j}')
    for j in range(4): k.I(f'v_cvt_pk_bf16_f32 v{g_+j}, v{g_+j}, v{g_+j}')
    for j in range(4): k.I(f'v_and_b32 v{g_+j}, 0xffff0000, v{g_+j}')
    for j in range(4): k.I(f'v_mul_f32 v{g_+j}, v{m0_+22}, v{g_+j}')
    k.I(f'buffer_store_dwordx4 {vr(g_,4)}, v{m0_+1}, s[12:15], 0 offen sc1')
    k.label('LWD0')
    k.restore_state(stW)
    k.I('s_sub_u32 s48, s2, 161')
    scalars()
    k.I(f'v_mov_b32 v{hs}, 0')
    k.I(f'v_mov_b32 v{hs+1}, 1')
    zz = 120
    for j in range(4): k.I(f'v_mov_b32 v{zz+j}, 0')
    k.I(f'v_lshlrev_b32 v{zz+4}, 4, v0')
    for hh in range(2):
        k.I('s_lshl_b32 s49, s48, 1')
        k.I(f's_add_u32 s49, s49, {hh}')
        k.I('s_mul_i32 s50, s49, 205')
        k.I('s_lshr_b32 s50, s50, 10')
        k.I('s_mul_i32 s50, s50, 40960')
        k.I('s_lshl_b32 s49, s49, 13')
        k.I('s_add_u32 s50, s50, s49')
        k.I(f's_add_u32 s50, s50, {H2}')
        k.I('s_cmp_lt_u32 s48, 80')
        k.I('s_cselect_b32 s50, s50, 0x7f000000')
        k.I(f'buffer_store_dwordx4 {vr(zz,4)}, v{zz+4}, s[12:15], s50 offen sc1')
        k.I('s_add_u32 s50, s50, 4096')
        k.I(f'buffer_store_dwordx4 {vr(zz,4)}, v{zz+4}, s[12:15], s50 offen sc1')
    cm_(k, 1)
    k.bg = bglist(); k.emit_bg(env('WD_B0', 14))
    cm_(k, 2)
    wd_out()
    cm_(k, 4)
    k.emit_bg(env('WD_B1', 10))
    k.wait_tag('y')
    cm_(k, 5)
    k.I('s_barrier')
    stS = k.save_state()
    k.I('s_cmp_lg_u32 s22, 0')
    k.I('s_cbranch_scc1 LFW_s')
    k.I(f'v_mov_b32 v{t0_}, 1')
    k.I(f'v_lshlrev_b32 v{t1_}, 7, v{vl}')
    k.I(f's_mov_b32 s35, {FW + 1024}')
    k.I('s_mov_b64 exec, 1')
    k.I(f'buffer_atomic_add v{t0_}, v{hs}, s[12:15], s35 offen sc0 sc1')
    k.I(f'v_readfirstlane_b32 s35, v{t0_}')
    k.I('s_cmp_eq_u32 s35, 94')
    k.I('s_cselect_b64 exec, 0xff, 0')
    k.I(f's_mov_b32 s35, {FW}')
    k.I(f'buffer_store_dword v{hs+1}, v{t1_}, s[12:15], s35 offen sc1')
    k.I('s_mov_b64 exec, -1')
    k.label('LFW_s')
    topup()
    k.emit_bg(W_J1_)
    cm_(k, 6)
    if env('CANARY', 1):
        k.I('s_lshl_b32 s48, s48, 14')
        k.I('s_add_u32 s48, s48, s25')
        k.I(f'v_mov_b32 v{t0_}, 0')
        k.I('s_mov_b32 s24, 0x400')
        k.I('s_cmp_lg_u32 s22, 0')
        k.I('s_cbranch_scc1 LCAN_o')
        k.label('LCAN')
        k.I('s_sleep 4')
        k.I(f'buffer_load_dword v{t1_}, v{t0_}, s[16:19], s48 offen sc1')
        k.waitcnt(vm=0)
        k.I(f'v_readfirstlane_b32 s49, v{t1_}')
        k.I('s_sub_u32 s24, s24, 1')
        k.I('s_cbranch_scc1 LCAN_o')
        k.I('s_bitcmp0_b32 s49, 0')
        k.I('s_cbranch_scc1 LCAN')
        k.label('LCAN_o')
        k.I('s_barrier')
    cm_(k, 7)
    k.I('s_branch LJOIN')
    for name, groups in slow:
        k.label(f'L{name}_slow', fresh=True); k.vm = []; k.lg = []
        k.I('s_mov_b32 s32, m0')
        k.I('s_mov_b32 s24, 0x40000')
        k.label(f'L{name}_loop')
        k.I('s_add_u32 s50, s50, 1')
        for g in groups:
            for grp in dma(0, g): _emit(grp)
        k.I('s_mov_b32 m0, s32')
        k.waitcnt(vm=0)
        k.I('s_sub_u32 s24, s24, 1')
        k.I(f's_cbranch_scc1 L{name}_ok')
        sl_ = list(slow)
        for g in validate(name + 'r', groups)[:-1]: _emit(g)
        slow[:] = sl_
        k.I('s_cmp_lg_u64 s[62:63], 0')
        k.I(f's_cbranch_scc1 L{name}_loop')
        k.I(f's_branch L{name}_ok')
    for name, cnt in spins:
        k.label(f'L{name}_spin', fresh=True); k.vm = []; k.lg = []
        k.I('s_mov_b32 s24, 0x100000')
        k.label(f'L{name}_loop')
        k.I(f's_sleep {env("SPIN_SLEEP", 2)}')
        k.I(f'buffer_load_dword v{hr}, v{hs}, s[12:15], s{cnt} offen sc1')
        k.waitcnt(vm=0)
        k.I(f'v_readfirstlane_b32 s33, v{hr}')
        k.I('s_sub_u32 s24, s24, 1')
        k.I(f's_cbranch_scc1 L{name}_ok')
        k.I('s_cmp_lt_u32 s33, 16')
        k.I(f's_cbranch_scc1 L{name}_loop')
        k.I(f's_branch L{name}_ok')
    return k, (256, 256, 163840)
```

```python
import sys, math, os
from asmlib import *

S, D, F = 2048, 640, 1536
KA = dict(x=0, wr=8, wi=16, bx=24, wg=32, wu=40, wd=48, c=56, wmod=64, out=72, dbg=80, ws=88)
MODN = 0
MODB = 16384
STAMP = 0x8000
XT = 0x10000;  XT_SZ = 321 * 8192
WT = 0x2A0000
H2 = 0x540000
X1 = 0x7C0000
HH = 0xA40000
WD = 0x1040000
WS_END = 0x1220000
STAMPS = False

def stamp_begin(k):
    k.nmarks = 0
    if STAMPS:
        k.I('s_memrealtime s[96:97]')
        for i in range(12): k.I(f's_mov_b32 s{64+2*i}, 0')
        mark(k, 0)
def mark(k, i, wait=True):
    if STAMPS and os.environ.get('LIGHT') and i not in (0, 11): return
    if STAMPS and os.environ.get('LIGHT') and i == 0: wait = False
    if STAMPS:
        k.I(f's_mem{"real" if os.environ.get("RT") else ""}time s[{64+2*i}:{65+2*i}]')
        if wait: k.waitcnt(lgkm=0)
def stamp_end(k, idx, ws_pair):
    if not STAMPS: return
    k.I('s_mov_b64 exec, -1')
    mark(k, 10)
    k.waitcnt(vm=0, lgkm=0)
    mark(k, 11)
    k.I('s_memrealtime s[98:99]')
    k.srd(92, ws_pair, 0x10000000)
    k.I('s_lshl_b32 s91, s2, 9')
    k.I(f's_add_u32 s91, s91, {0x2000000 + idx * 0x80000}')
    k.I('v_lshrrev_b32 v1, 6, v0')
    k.I('v_lshlrev_b32 v1, 6, v1')
    k.I('s_mov_b64 exec, 1')
    k.I('v_mov_b32 v4, s96')
    k.I('v_mov_b32 v5, s98')
    k.I('s_getreg_b32 s100, hwreg(HW_REG_HW_ID)')
    k.I('s_getreg_b32 s101, hwreg(HW_REG_XCC_ID)')
    k.I('v_mov_b32 v6, s100')
    k.I('v_mov_b32 v7, s101')
    k.I('buffer_store_dwordx4 v[4:7], v1, s[92:95], s91 offen')
    for g in range(3):
        for j in range(4): k.I(f'v_mov_b32 v{8+4*g+j}, s{64+2*(4*g+j)}')
        k.I(f'buffer_store_dwordx4 {vr(8+4*g,4)}, v1, s[92:95], s91 offen offset:{16+16*g}')

def wave_reduce_to_sgpr(k, regs, sregs):
    for mod in ('quad_perm:[1,0,3,2] row_mask:0xf bank_mask:0xf', 'quad_perm:[2,3,0,1] row_mask:0xf bank_mask:0xf',
                'row_half_mirror row_mask:0xf bank_mask:0xf', 'row_mirror row_mask:0xf bank_mask:0xf',
                'row_bcast:15 row_mask:0xa bank_mask:0xf', 'row_bcast:31 row_mask:0xc bank_mask:0xf'):
        for r in regs:
            k.I(f'v_add_f32_dpp v{r}, v{r}, v{r} {mod}')
    for r, s in zip(regs, sregs):
        k.I(f'v_readlane_b32 s{s}, v{r}, 63')

def ln_scalars(k, s_sum, s_sq, v_r, v_nmr, tmp):
    t = tmp
    k.I(f'v_mov_b32 v{t}, {fhex(1.0 / D)}')
    k.I(f'v_pk_mul_f32 {vr(t+2,2)}, s[{s_sum}:{s_sum+1}], {vr(t,2)} op_sel_hi:[1,0]')
    k.I(f'v_pk_mul_f32 {vr(v_r,2)}, s[{s_sq}:{s_sq+1}], {vr(t,2)} op_sel_hi:[1,0]')
    k.I(f'v_pk_fma_f32 {vr(v_r,2)}, {vr(t+2,2)}, {vr(t+2,2)}, {vr(v_r,2)} neg_lo:[1,0,0] neg_hi:[1,0,0]')
    k.I(f'v_max_f32 v{v_r}, 0, v{v_r}')
    k.I(f'v_max_f32 v{v_r+1}, 0, v{v_r+1}')
    k.I(f'v_add_f32 v{v_r}, {fhex(1e-5)}, v{v_r}')
    k.I(f'v_add_f32 v{v_r+1}, {fhex(1e-5)}, v{v_r+1}')
    k.I(f'v_rsq_f32 v{v_r}, v{v_r}')
    k.I(f'v_rsq_f32 v{v_r+1}, v{v_r+1}')
    k.I(f'v_pk_mul_f32 {vr(v_nmr,2)}, {vr(t+2,2)}, {vr(v_r,2)} neg_lo:[1,0] neg_hi:[1,0]')

def cmul4(k, re, im, cs, sn, out, tmp, conj):
    n1 = '' if not conj else ' neg_lo:[0,1,0] neg_hi:[0,1,0]'
    n2 = ' neg_lo:[0,1,0] neg_hi:[0,1,0]' if not conj else ''
    for p in (0, 2):
        k.I(f'v_pk_mul_f32 {vr(tmp+p,2)}, {vr(re+p,2)}, {vr(cs+p,2)}')
        k.I(f'v_pk_mul_f32 {vr(tmp+4+p,2)}, {vr(im+p,2)}, {vr(cs+p,2)}')
    for p in (0, 2):
        k.I(f'v_pk_fma_f32 {vr(tmp+p,2)}, {vr(im+p,2)}, {vr(sn+p,2)}, {vr(tmp+p,2)}{n1}')
        k.I(f'v_pk_fma_f32 {vr(tmp+4+p,2)}, {vr(re+p,2)}, {vr(sn+p,2)}, {vr(tmp+4+p,2)}{n2}')
    for j in range(4):
        k.I(f'v_cvt_pk_bf16_f32 v{out+j}, v{tmp+2*j}, v{tmp+2*j+1}')

MF16 = 'v_mfma_f32_16x16x32_bf16'
MF32 = 'v_mfma_f32_32x32x16_bf16'

A_NMOD, A_NWT, A_NWD = 120, 161, 60
def gen_A():
    k = Kernel('ka_kernel')
    stamp_begin(k)
    k.I(f's_load_dwordx2 s[4:5], s[0:1], {KA["ws"]}')
    k.I(f's_load_dwordx4 s[8:11], s[0:1], {KA["c"]}')
    k.I(f's_load_dwordx4 s[12:15], s[0:1], {KA["wr"]}')
    k.I(f's_load_dwordx2 s[6:7], s[0:1], {KA["wd"]}')
    k.I(f's_cmp_ge_u32 s2, {A_NMOD}')
    st = k.save_state()
    k.I('s_cbranch_scc1 LA_wt')
    k.I('s_and_b32 s20, s2, 7')
    k.I('s_lshr_b32 s21, s2, 3')
    k.I('s_and_b32 s22, s21, 1')
    k.I('s_lshr_b32 s21, s21, 1')
    k.I('s_lshl_b32 s21, s21, 4')
    k.I('s_lshl_b32 s20, s20, 1')
    k.I('s_add_u32 s20, s20, s21')
    k.I('s_add_u32 s20, s20, s22')
    k.I('s_cmp_ge_u32 s2, 112')
    k.I('s_cselect_b32 s20, s2, s20')
    va = VAlloc()
    vrw = va.get(); voff = va.get(); vc = va.get(5); vw = va.get(20, 4); acc = va.get(8, 4); t0 = va.get(); t1 = va.get(); vco = va.get()
    k.I(f'v_lshrrev_b32 v{vrw}, 2, v0')
    k.I(f'v_mul_u32_u24 v{voff}, 7680, v{vrw}')
    k.I(f'v_and_b32 v{t0}, 3, v0')
    k.I(f'v_lshl_add_u32 v{voff}, v{t0}, 4, v{voff}')
    k.I(f'v_lshlrev_b32 v{vco}, 1, v{vrw}')
    k.I('s_lshl_b32 s23, s20, 6')
    k.srd(24, 10, D * 6 * D * 2)
    k.srd(28, 8, D * 2)
    for i in range(5):
        k.I(f'buffer_load_ushort v{vc+i}, v{vco}, s[28:31], 0 offen offset:{256*i}')
    for i in range(5):
        k.I(f'buffer_load_dwordx4 {vr(vw+4*i,4)}, v{voff}, s[24:27], s23 offen')
        if i < 4: k.I(f's_add_u32 s23, s23, {128*7680}')
    k.srd(32, 4, 0x8000)
    for j in range(8): k.I(f'v_mov_b32 v{acc+j}, 0')
    tt = va.get(5)
    for i in range(5): k.I(f'v_lshlrev_b32 v{vc+i}, 16, v{vc+i}')
    for i in range(5): k.I(f'v_mul_f32 v{tt+i}, {fhex(-math.log2(math.e))}, v{vc+i}')
    for i in range(5): k.I(f'v_exp_f32 v{tt+i}, v{tt+i}')
    for i in range(5): k.I(f'v_add_f32 v{tt+i}, 1.0, v{tt+i}')
    for i in range(5): k.I(f'v_rcp_f32 v{tt+i}, v{tt+i}')
    for i in range(5): k.I(f'v_mul_f32 v{vc+i}, v{vc+i}, v{tt+i}')
    for i in range(5): k.I(f'v_cvt_pk_bf16_f32 v{vc+i}, v{vc+i}, v{vc+i}')
    for i in range(5): k.I(f'v_and_b32 v{vc+i}, 0xffff0000, v{vc+i}')
    for i in range(5):
        for j in range(4):
            k.I(f'v_lshlrev_b32 v{t0}, 16, v{vw+4*i+j}')
            k.I(f'v_and_b32 v{t1}, 0xffff0000, v{vw+4*i+j}')
            k.I(f'v_fmac_f32 v{acc+2*j}, v{vc+i}, v{t0}')
            k.I(f'v_fmac_f32 v{acc+2*j+1}, v{vc+i}, v{t1}')
    for m in (4, 8):
        for j in range(8): k.I(f'v_add_f32_dpp v{acc+j}, v{acc+j}, v{acc+j} row_ror:{m} row_mask:0xf bank_mask:0xf')
    k.I(f'v_lshrrev_b32 v{t0}, 4, v0')
    k.I(f'v_lshlrev_b32 v{t0}, 7, v{t0}')
    k.I(f'v_and_b32 v{t1}, 3, v0')
    k.I(f'v_lshl_add_u32 v{t0}, v{t1}, 5, v{t0}')
    k.I('s_mov_b32 s36, 0x000f000f')
    k.I('s_mov_b32 s37, 0x000f000f')
    k.I('s_mov_b64 exec, s[36:37]')
    k.I(f'ds_write_b128 v{t0}, {vr(acc,4)}')
    k.I(f'ds_write_b128 v{t0}, {vr(acc+4,4)} offset:16')
    k.I('s_mov_b64 exec, -1')
    k.barrier()
    k.I('v_readfirstlane_b32 s38, v0')
    k.I('s_cmp_lg_u32 s38, 0')
    k.I('s_cbranch_scc1 LA_end')
    k.I(f'v_lshlrev_b32 v{t0}, 2, v0')
    for j in range(8):
        k.I(f'ds_read2st64_b32 {vr(vw+2*j,2)}, v{t0} offset0:{2*j} offset1:{2*j+1}')
    k.I('s_mul_i32 s39, s20, 205')
    k.I('s_lshr_b32 s39, s39, 12')
    k.I('s_mul_i32 s40, s39, 20')
    k.I('s_sub_u32 s40, s20, s40')
    k.I('s_cmp_eq_u32 s39, 1')
    k.I('s_cselect_b32 s41, 1.0, 0')
    k.I('s_cmp_eq_u32 s39, 4')
    k.I('s_cselect_b32 s41, 1.0, s41')
    k.I('s_cmp_eq_u32 s39, 2')
    k.I(f's_cselect_b32 s42, {fhex(1.0 / (2.0 * S * D))}, 1.0')
    for j in range(4): k.I(f'v_pk_add_f32 {vr(vw+2*j,2)}, {vr(vw+2*j,2)}, {vr(vw+8+2*j,2)}')
    for j in range(2): k.I(f'v_pk_add_f32 {vr(vw+2*j,2)}, {vr(vw+2*j,2)}, {vr(vw+4+2*j,2)}')
    k.I(f'v_pk_add_f32 {vr(vw,2)}, {vr(vw,2)}, {vr(vw+2,2)}')
    k.I(f'v_add_f32 v{vw}, v{vw}, v{vw+1}')
    k.I(f'v_mov_b32 v{vw+1}, v{vw}')
    k.I(f'v_permlane32_swap_b32 v{vw+1}, v{vw}')
    k.I(f'v_add_f32 v{vw}, v{vw}, v{vw+1}')
    k.I(f'v_cvt_pk_bf16_f32 v{vw}, v{vw}, v{vw}')
    k.I(f'v_and_b32 v{vw}, 0xffff0000, v{vw}')
    k.I(f'v_add_f32 v{vw}, s41, v{vw}')
    k.I(f'v_cvt_pk_bf16_f32 v{vw}, v{vw}, v{vw}')
    k.I(f'v_and_b32 v{vw}, 0xffff0000, v{vw}')
    k.I(f'v_mul_f32 v{vw}, s42, v{vw}')
    k.I('s_lshr_b32 s43, s40, 2')
    k.I('s_lshl_b32 s43, s43, 10')
    k.I('s_and_b32 s44, s40, 1')
    k.I('s_lshl_b32 s44, s44, 9')
    k.I('s_add_u32 s43, s43, s44')
    k.I('s_and_b32 s44, s40, 2')
    k.I('s_lshl_b32 s44, s44, 2')
    k.I('s_add_u32 s43, s43, s44')
    k.I(f's_add_u32 s43, s43, {MODB}')
    k.I('s_cmp_eq_u32 s39, 0')
    k.I('s_cselect_b32 s44, 4, 0')
    k.I('s_add_u32 s43, s43, s44')
    k.I('s_cmp_ge_u32 s39, 2')
    k.I('s_cselect_b32 s43, 0x100000, s43')
    k.I('s_lshl_b32 s45, s20, 7')
    k.I(f'v_and_b32 v{t1}, 31, v0')
    k.I(f'v_lshl_add_u32 v{t0}, v{t1}, 2, s45')
    k.I(f'v_lshl_add_u32 v{t1}, v{t1}, 4, s43')
    k.I('v_cmp_gt_u32 vcc, 32, v0')
    k.I(f'v_cndmask_b32 v{t0}, v{t1}, v{t0}, vcc')
    k.I(f'buffer_store_dword v{vw}, v{t0}, s[32:35], 0 offen')
    k.label('LA_end')
    stamp_end(k, 0, 4)
    k.I('s_endpgm')
    k.label('LA_wt', fresh=True); k.restore_state(st)
    k.I(f's_cmp_ge_u32 s2, {A_NMOD + A_NWT}')
    k.I('s_cbranch_scc1 LA_wd')
    va = VAlloc()
    idx = va.get(); g = va.get(); t = va.get(); a0 = va.get(); a1 = va.get(); src = va.get(); dst = va.get()
    lr = va.get(8, 4); li = va.get(8, 4)
    k.I(f's_sub_u32 s20, s2, {A_NMOD}')
    k.I('s_lshl_b32 s20, s20, 9')
    k.I(f'v_add_u32 v{idx}, s20, v0')
    k.I(f's_mov_b32 s21, {(2**32 + 320) // 321}')
    k.I(f'v_mul_hi_u32 v{g}, v{idx}, s21')
    k.I(f'v_mul_u32_u24 v{a0}, 321, v{g}')
    k.I(f'v_sub_u32 v{t}, v{idx}, v{a0}')
    k.I(f'v_lshrrev_b32 v{a0}, 5, v{g}')
    k.I(f'v_and_b32 v{a1}, 31, v{g}')
    k.I(f'v_lshlrev_b32 v{src}, 7, v{a0}')
    k.I(f'v_add_u32 v{src}, v{src}, v{a1}')
    k.I(f'v_mul_u32_u24 v{src}, 1284, v{src}')
    k.I(f'v_lshl_add_u32 v{src}, v{t}, 1, v{src}')
    k.srd(24, 12, S * 321 * 2)
    k.srd(28, 14, S * 321 * 2)
    for r in range(1, 4): k.I(f's_mov_b32 s{40+r}, {41088*r}')
    for i in range(2):
        for r in range(4):
            so = f's{40+r}' if r else '0'
            k.I(f'buffer_load_ushort v{lr+4*i+r}, v{src}, s[24:27], {so} offen offset:{642*i}')
            k.I(f'buffer_load_ushort v{li+4*i+r}, v{src}, s[28:31], {so} offen offset:{642*i}')
    k.srd(32, 4, XT_SZ, WT)
    k.I(f'v_lshlrev_b32 v{dst}, 13, v{t}')
    k.I(f'v_lshl_add_u32 v{dst}, v{a0}, 8, v{dst}')
    k.I(f'v_lshrrev_b32 v{a0}, 3, v{a1}')
    k.I(f'v_lshl_add_u32 v{dst}, v{a0}, 11, v{dst}')
    k.I(f'v_and_b32 v{a1}, 7, v{a1}')
    k.I(f'v_lshl_add_u32 v{dst}, v{a1}, 5, v{dst}')
    k.I(f'v_cmp_gt_u32 vcc, 0x100, v{g}')
    k.I(f'v_cndmask_b32 v{dst}, -1, v{dst}, vcc')
    k.I(f'v_min_u32 v{dst}, 0x7fffff00, v{dst}')
    for i in range(2):
        for r in range(4):
            k.I(f'v_lshl_or_b32 v{lr+4*i+r}, v{li+4*i+r}, 16, v{lr+4*i+r}')
        k.I(f'buffer_store_dwordx4 {vr(lr+4*i,4)}, v{dst}, s[32:35], 0 offen offset:{16*i}')
    stamp_end(k, 0, 4)
    k.I('s_endpgm')
    k.label('LA_wd', fresh=True); k.restore_state(st)
    k.I(f's_cmp_ge_u32 s2, {A_NMOD + A_NWT + A_NWD}')
    k.I('s_cbranch_scc1 LA_exit')
    va = VAlloc()
    idx = va.get(); ch = va.get(); d4 = va.get(); a0 = va.get(); a1 = va.get(); a2 = va.get(); src = va.get(); dst = va.get()
    ld = va.get(16, 4); o = va.get(16, 4)
    k.I(f's_sub_u32 s20, s2, {A_NMOD + A_NWT}')
    k.I('s_lshl_b32 s20, s20, 9')
    k.I(f'v_add_u32 v{idx}, s20, v0')
    k.I(f's_mov_b32 s21, {(2**32 + 159) // 160}')
    k.I(f'v_mul_hi_u32 v{ch}, v{idx}, s21')
    k.I(f'v_mul_u32_u24 v{a0}, 160, v{ch}')
    k.I(f'v_sub_u32 v{d4}, v{idx}, v{a0}')
    k.I(f'v_lshrrev_b32 v{a0}, 1, v{ch}')
    k.I(f'v_and_b32 v{a1}, 1, v{ch}')
    k.I(f'v_lshl_add_u32 v{a0}, v{a0}, 2, v{a1}')
    k.I(f'v_mul_u32_u24 v{src}, 5120, v{a0}')
    k.I(f'v_lshl_add_u32 v{src}, v{d4}, 3, v{src}')
    k.srd(24, 6, F * D * 2)
    k.I(f's_mov_b32 s40, {8*1280}')
    for j in range(8):
        so = 's40' if j >= 4 else '0'
        k.I(f'buffer_load_dwordx2 {vr(ld+2*j,2)}, v{src}, s[24:27], {so} offen offset:{1280*(j&3)}')
    k.srd(32, 4, F * D * 2, WD)
    k.I(f'v_mul_u32_u24 v{a0}, 205, v{d4}')
    k.I(f'v_lshrrev_b32 v{a1}, 10, v{a0}')
    k.I(f'v_mul_u32_u24 v{a0}, 5, v{a1}')
    k.I(f'v_sub_u32 v{a0}, v{d4}, v{a0}')
    k.I(f'v_lshlrev_b32 v{dst}, 10, v{a0}')
    k.I(f'v_and_b32 v{a0}, 3, v{a1}')
    k.I(f'v_lshl_add_u32 v{dst}, v{a0}, 6, v{dst}')
    k.I(f'v_lshrrev_b32 v{a1}, 2, v{a1}')
    k.I(f'v_mul_u32_u24 v{a1}, 48, v{a1}')
    k.I(f'v_lshrrev_b32 v{a0}, 2, v{ch}')
    k.I(f'v_add_u32 v{a1}, v{a1}, v{a0}')
    k.I(f'v_mul_u32_u24 v{a1}, 5120, v{a1}')
    k.I(f'v_add_u32 v{dst}, v{dst}, v{a1}')
    k.I(f'v_and_b32 v{a0}, 3, v{ch}')
    k.I(f'v_lshl_add_u32 v{dst}, v{a0}, 8, v{dst}')
    k.I('s_mov_b32 s41, 0x05040100')
    k.I('s_mov_b32 s42, 0x07060302')
    for r in range(4):
        sel = 's41' if r % 2 == 0 else 's42'
        for jp in range(4):
            k.I(f'v_perm_b32 v{o+4*r+jp}, v{ld+2*(2*jp+1)+r//2}, v{ld+2*(2*jp)+r//2}, {sel}')
        k.I(f'buffer_store_dwordx4 {vr(o+4*r,4)}, v{dst}, s[32:35], 0 offen offset:{16*r}')
    stamp_end(k, 0, 4)
    k.I('s_endpgm')
    k.label('LA_exit', fresh=True)
    k.I('s_endpgm')
    return k, (A_NMOD + A_NWT + A_NWD, 512, 4096)

def bd_ids(k, vl):
    k.I('v_lshrrev_b32 v1, 6, v0')
    k.I(f'v_and_b32 v{vl}, 63, v0')
    k.I('v_readfirstlane_b32 s22, v1')
    k.I('s_and_b32 s20, s2, 7')
    k.I('s_lshr_b32 s21, s2, 2')
    k.I('s_and_b32 s21, s21, 8')
    k.I('s_add_u32 s20, s20, s21')
    k.I('s_lshr_b32 s21, s2, 3')
    k.I('s_and_b32 s21, s21, 3')
    k.I('s_lshr_b32 s24, s2, 6')
    k.I('s_lshl_b32 s24, s24, 2')
    k.I('s_add_u32 s21, s21, s24')
    k.I('s_lshl_b32 s23, s20, 7')
    k.I('s_lshl_b32 s24, s21, 1')
    k.I('s_add_u32 s23, s23, s24')
    k.I('s_and_b32 s24, s22, 1')
    k.I('s_lshl_b32 s24, s24, 6')
    k.I('s_add_u32 s23, s23, s24')
    k.I('s_lshr_b32 s24, s22, 1')
    k.I('s_add_u32 s23, s23, s24')
    k.I('s_lshr_b32 s25, s20, 2')
    k.I('s_lshl_b32 s25, s25, 11')
    k.I('s_lshr_b32 s24, s21, 3')
    k.I('s_lshl_b32 s24, s24, 10')
    k.I('s_add_u32 s25, s25, s24')
    k.I('s_and_b32 s24, s20, 3')
    k.I('s_lshl_b32 s24, s24, 8')
    k.I('s_add_u32 s25, s25, s24')
    k.I('s_and_b32 s24, s21, 7')
    k.I('s_lshl_b32 s24, s24, 5')
    k.I('s_add_u32 s25, s25, s24')
    k.I(f's_add_u32 s26, s25, {128*8192}')
    k.I(f's_add_u32 s27, s25, {256*8192}')

def gen_f40(k, va, fi, fq, inverse):
    base = va.get(62, 2)
    ta = va.get(4); tc = va.get(2); ts = va.get(2)
    k.I(f'v_mov_b32 v{base+60}, 0'); k.I(f'v_mov_b32 v{base+61}, 0')
    for T in range(3):
        k.I(f'v_add_f32 v{ta}, {fhex(16.0*T)}, v{fi}')
        k.I(f'v_mul_f32 v{ta}, {fhex(1.0/40)}, v{ta}')
        k.I(f'v_mul_f32 v{ta+1}, v{fq}, v{ta}')
        for e in range(10):
            p = e & 1
            k.I(f'v_fmamk_f32 v{ta+2+p}, v{ta}, {fhex(4.0*e)}, v{ta+1}')
            k.I(f'v_cos_f32 v{tc+p}, v{ta+2+p}')
            k.I(f'v_sin_f32 v{ts+p}, v{ta+2+p}')
            if e >= 1:
                gen_f40_pack(k, base, T, e - 1, tc, ts, inverse)
        gen_f40_pack(k, base, T, 9, tc, ts, inverse)
    return base
def gen_f40_pack(k, base, T, e, tc, ts, inverse):
    p = e & 1
    if not inverse:
        k.I(f'v_cvt_pk_bf16_f32 v{base+(2*T)*10+e}, v{tc+p}, v{ts+p}')
        k.I(f'v_cvt_pk_bf16_f32 v{base+(2*T+1)*10+e}, -v{ts+p}, v{tc+p}')
    else:
        k.I(f'v_cvt_pk_bf16_f32 v{base+(2*T)*10+e}, v{tc+p}, -v{ts+p}')
        k.I(f'v_cvt_pk_bf16_f32 v{base+(2*T+1)*10+e}, v{ts+p}, v{tc+p}')

def gen_tw640(k, va, fi, fq4):
    cs = va.get(12, 2); sn = va.get(12, 2); ta = va.get(2)
    for T in range(3):
        k.I(f'v_add_f32 v{ta}, {fhex(16.0*T)}, v{fi}')
        k.I(f'v_mul_f32 v{ta}, {fhex(1.0/640)}, v{ta}')
        k.I(f'v_mul_f32 v{ta+1}, v{fq4}, v{ta}')
        for r in range(4):
            if r == 0: k.I(f'v_mov_b32 v{sn+4*T}, v{ta+1}')
            else: k.I(f'v_fmamk_f32 v{sn+4*T+r}, v{ta}, {fhex(float(r))}, v{ta+1}')
        for r in range(4):
            k.I(f'v_cos_f32 v{cs+4*T+r}, v{sn+4*T+r}')
            k.I(f'v_sin_f32 v{sn+4*T+r}, v{sn+4*T+r}')
    return cs, sn

def gen_B():
    k = Kernel('kb_kernel')
    PL = 5184
    stamp_begin(k)
    k.I('s_cmp_ge_u32 s2, 256')
    k.I('s_cbranch_scc1 LB_exit')
    k.I(f's_load_dwordx2 s[4:5], s[0:1], {KA["ws"]}')
    k.I(f's_load_dwordx2 s[6:7], s[0:1], {KA["x"]}')
    va = VAlloc(2)
    vl = va.get(); xs = va.get(20, 2); md = va.get(20, 4); vo = va.get(); vo16 = va.get()
    for i in range(20): k.I(f'v_mov_b32 v{xs+i}, 0')
    bd_ids(k, vl)
    k.I('s_mul_i32 s28, s23, 1280')
    k.I(f's_add_u32 s29, s28, {32*1280}')
    k.I(f'v_lshlrev_b32 v{vo}, 1, v{vl}')
    k.I(f'v_lshlrev_b32 v{vo16}, 4, v{vl}')
    k.srd(8, 6, S * D * 2)
    k.srd(12, 4, 5120, MODB)
    for e in range(10):
        k.I(f'buffer_load_short_d16_hi v{xs+2*e}, v{vo}, s[8:11], s28 offen offset:{128*e} nt')
        k.I(f'buffer_load_short_d16_hi v{xs+2*e+1}, v{vo}, s[8:11], s29 offen offset:{128*e} nt')
    k.I('s_movk_i32 s30, 0x1000')
    for g in range(5):
        if g < 4: k.I(f'buffer_load_dwordx4 {vr(md+4*g,4)}, v{vo16}, s[12:15], 0 offen offset:{1024*g}')
        else: k.I(f'buffer_load_dwordx4 {vr(md+4*g,4)}, v{vo16}, s[12:15], s30 offen')
    mark(k, 1)
    k.srd(16, 4, XT_SZ, XT)
    fi = va.get(); fq = va.get(); fq4 = va.get(); vi = va.get(); vq = va.get()
    k.I(f'v_and_b32 v{vi}, 15, v{vl}')
    k.I(f'v_lshrrev_b32 v{vq}, 4, v{vl}')
    k.I(f'v_cvt_f32_u32 v{fi}, v{vi}')
    k.I(f'v_cvt_f32_u32 v{fq}, v{vq}')
    k.I(f'v_mul_f32 v{fq4}, 4.0, v{fq}')
    f40 = gen_f40(k, va, fi, fq, False)
    cs, sn = gen_tw640(k, va, fi, fq4)
    f16 = va.get(8, 2); tmp = va.get(8, 2); ta = va.get(4)
    k.I(f'v_lshrrev_b32 v{ta}, 1, v{vi}')
    k.I(f'v_cvt_f32_u32 v{ta}, v{ta}')
    k.I(f'v_and_b32 v{ta+1}, 1, v{vi}')
    k.I(f'v_cvt_f32_u32 v{ta+1}, v{ta+1}')
    k.I(f'v_mul_f32 v{ta+1}, 0x3e800000, v{ta+1}')
    for U in range(2):
        k.I(f'v_add_f32 v{ta+2}, {fhex(8.0*U)}, v{ta}')
        k.I(f'v_mul_f32 v{ta+2}, {fhex(1.0/16)}, v{ta+2}')
        k.I(f'v_fma_f32 v{ta+3}, v{fq4}, v{ta+2}, v{ta+1}')
        for j in range(4):
            k.I(f'v_fmamk_f32 v{tmp+4+j}, v{ta+2}, {fhex(float(j))}, v{ta+3}')
        for j in range(4):
            k.I(f'v_cos_f32 v{tmp+j}, v{tmp+4+j}')
            k.I(f'v_sin_f32 v{tmp+4+j}, v{tmp+4+j}')
        for j in range(4):
            k.I(f'v_cvt_pk_bf16_f32 v{f16+4*U+j}, v{tmp+2*j}, v{tmp+2*j+1}')
    wa = va.get(); ru = va.get(); rv = va.get(); so = va.get()
    k.I(f'v_mul_u32_u24 v{wa}, 80, v{vq}')
    k.I(f'v_add_lshl_u32 v{wa}, v{wa}, v{vi}, 3')
    k.I(f's_mul_i32 s31, s22, {PL}')
    k.I(f'v_add_u32 v{wa}, s31, v{wa}')
    k.I(f'v_and_b32 v{ta}, 1, v0')
    k.I(f'v_lshrrev_b32 v{ta+1}, 1, v0')
    k.I(f'v_mul_u32_u24 v{ru}, {2*PL}, v{ta}')
    k.I(f'v_sub_u32 v{rv}, 384, v{ta+1}')
    k.I(f'v_lshl_add_u32 v{rv}, v{rv}, 3, v{ru}')
    k.I(f'v_lshl_add_u32 v{ru}, v{ta+1}, 3, v{ru}')
    k.I(f'v_lshlrev_b32 v{so}, 13, v{ta+1}')
    k.I(f'v_lshl_add_u32 v{so}, v{ta}, 4, v{so}')
    dat = va.get(12, 2)
    k.I(f'v_mov_b32 v{dat+10}, 0'); k.I(f'v_mov_b32 v{dat+11}, 0')
    mark(k, 2)
    if STAMPS: k.waitcnt(vm=0)
    mark(k, 3)
    sm = va.get(2, 2); sq = va.get(2, 2); rr = va.get(2, 2); nmr = va.get(2, 2)
    k.I(f'v_pk_add_f32 {vr(sm,2)}, {vr(xs,2)}, {vr(xs+2,2)}')
    k.I(f'v_pk_mul_f32 {vr(sq,2)}, {vr(xs,2)}, {vr(xs,2)}')
    k.I(f'v_pk_fma_f32 {vr(sq,2)}, {vr(xs+2,2)}, {vr(xs+2,2)}, {vr(sq,2)}')
    for e in range(2, 10):
        k.I(f'v_pk_add_f32 {vr(sm,2)}, {vr(sm,2)}, {vr(xs+2*e,2)}')
        k.I(f'v_pk_fma_f32 {vr(sq,2)}, {vr(xs+2*e,2)}, {vr(xs+2*e,2)}, {vr(sq,2)}')
    wave_reduce_to_sgpr(k, [sm, sm+1, sq, sq+1], [32, 33, 34, 35])
    ln_scalars(k, 32, 34, rr, nmr, tmp)
    for e in range(10):
        k.I(f'v_pk_fma_f32 {vr(xs+2*e,2)}, {vr(xs+2*e,2)}, {vr(rr,2)}, {vr(nmr,2)}')
    for e in range(10):
        k.I(f'v_pk_fma_f32 {vr(xs+2*e,2)}, {vr(xs+2*e,2)}, {vr(md+2*e,2)}, {vr(md+2*e,2)} op_sel:[0,0,1] op_sel_hi:[1,0,1]')
    for e in range(10):
        k.I(f'v_cvt_pk_bf16_f32 v{dat+e}, v{xs+2*e}, v{xs+2*e+1}')
    mark(k, 4)
    d1 = va.get(24, 4)
    for T in range(3):
        for kap in range(3):
            for c in range(2):
                dd = vr(d1 + (2*T+c)*4, 4)
                k.I(f'{MF16} {dd}, {vr(dat+4*kap,4)}, {vr(f40+(2*T+c)*10+4*kap,4)}, {dd if kap else 0}')
    b2 = va.get(12, 2); d2 = va.get(24, 4)
    for T in range(3):
        cmul4(k, d1+8*T, d1+8*T+4, cs+4*T, sn+4*T, b2+4*T, tmp, False)
        for U in range(2):
            k.I(f'{MF16} {vr(d2+(2*T+U)*4,4)}, {vr(f16+4*U,4)}, {vr(b2+4*T,4)}, 0')
    mark(k, 5)
    k.I('s_mov_b32 s36, 0x00ff00ff')
    k.I('s_mov_b32 s37, 0x00ff00ff')
    for T in range(3):
        if T == 2: k.I('s_mov_b64 exec, s[36:37]')
        for U in range(2):
            for h in range(2):
                k.I(f'ds_write_b64 v{wa}, {vr(d2+(2*T+U)*4+2*h,2)} offset:{(16*T+320*U+40*h)*8}')
    k.I('s_mov_b64 exec, 1')
    k.I(f'ds_write_b64 v{wa}, {vr(d2,2)} offset:5120')
    k.I('s_mov_b64 exec, -1')
    k.barrier()
    mark(k, 6)
    rd = d1; oc = b2
    for rho in range(3):
        for pr in range(2):
            k.I(f'ds_read_b64 {vr(rd+8*rho+4*pr,2)}, v{ru} offset:{pr*PL+1024*rho}')
            k.I(f'ds_read_b64 {vr(rd+8*rho+4*pr+2,2)}, v{rv} offset:{pr*PL+1024*(2-rho)}')
    for rho in range(3):
        for pr in range(2):
            u = rd+8*rho+4*pr; v = u+2
            k.I(f'v_pk_add_f32 {vr(tmp+4*pr,2)}, {vr(u,2)}, {vr(v,2)}')
            k.I(f'v_pk_add_f32 {vr(tmp+4*pr+2,2)}, {vr(u,2)}, {vr(v,2)} neg_lo:[0,1] neg_hi:[0,1]')
        for pr in range(2):
            k.I(f'v_cvt_pk_bf16_f32 v{oc+4*rho+pr}, v{tmp+4*pr}, v{tmp+4*pr+1}')
            k.I(f'v_cvt_pk_bf16_f32 v{oc+4*rho+2+pr}, v{tmp+4*pr+3}, -v{tmp+4*pr+2}')
        k.I(f'buffer_store_dwordx4 {vr(oc+4*rho,4)}, v{so}, s[16:19], s{25+rho} offen')
    stamp_end(k, 1, 4)
    k.label('LB_exit')
    k.I('s_endpgm')
    return k, (256, 256, 4 * PL)

def pack_window(k, base, cs, sn, alt):
    def op(r, j, neg):
        n = neg ^ (alt and (j & 1))
        return ('-' if n else '') + f'v{r+j}'
    for p in range(2):
        k.I(f'v_cvt_pk_bf16_f32 v{base+p}, {op(sn,2*p,False)}, {op(sn,2*p+1,False)}')
        k.I(f'v_cvt_pk_bf16_f32 v{base+2+p}, {op(cs,2*p,False)}, {op(cs,2*p+1,False)}')
        k.I(f'v_cvt_pk_bf16_f32 v{base+4+p}, {op(sn,2*p,True)}, {op(sn,2*p+1,True)}')
    k.I(f'v_mov_b64 {vr(base+6,2)}, {vr(base+2,2)}')
    k.I(f'v_mov_b64 {vr(base+8,2)}, {vr(base,2)}')
W_INV_IM, W_INV_RE, W_FWD_IM, W_FWD_RE = 0, 2, 4, 6

def gen_C():
    k = Kernel('kc_kernel')
    stamp_begin(k)
    k.I('s_cmp_ge_u32 s2, 321')
    k.I('s_cbranch_scc1 LC_exit')
    k.I(f's_load_dwordx2 s[4:5], s[0:1], {KA["ws"]}')
    va = VAlloc(2)
    vl = va.get(); vo16 = va.get(); wq = va.get(8, 4)
    k.I('v_lshrrev_b32 v1, 6, v0')
    k.I(f'v_and_b32 v{vl}, 63, v0')
    k.I('v_readfirstlane_b32 s22, v1')
    k.I(f'v_lshlrev_b32 v{vo16}, 4, v{vl}')
    k.I('s_lshl_b32 s23, s22, 11')
    k.I('s_lshl_b32 s24, s2, 13')
    k.I('s_add_u32 s24, s24, s23')
    k.I('s_mov_b32 m0, s23')
    k.srd(8, 4, XT_SZ, XT)
    k.srd(12, 4, XT_SZ, WT)
    k.I(f'buffer_load_dwordx4 v{vo16}, s[8:11], s24 offen lds', tag='x')
    k.I(f'buffer_load_dwordx4 v{vo16}, s[8:11], s24 offen offset:1024 lds', tag='x')
    k.I(f'buffer_load_dwordx4 {vr(wq,4)}, v{vo16}, s[12:15], s24 offen')
    k.I(f'buffer_load_dwordx4 {vr(wq+4,4)}, v{vo16}, s[12:15], s24 offen offset:1024')
    mark(k, 1)
    k.I('s_cmp_eq_u32 s2, 0')
    k.I('s_cselect_b32 s25, 0, 1.0')
    k.I('s_cmp_eq_u32 s2, 320')
    k.I('s_cselect_b32 s25, 0, s25')
    fi = va.get(); fq4 = va.get(); fk = va.get(); sg = va.get(); fw16 = va.get()
    ta = va.get(2); tc = va.get(4, 2); ts = va.get(4, 2); tmp = va.get(8, 2)
    k.I(f'v_and_b32 v{fi}, 15, v{vl}')
    k.I(f'v_lshlrev_b32 v{sg}, 31, v{fi}')
    k.I(f'v_or_b32 v{sg}, 1.0, v{sg}')
    k.I(f'v_cvt_f32_u32 v{fi}, v{fi}')
    k.I(f'v_lshrrev_b32 v{fq4}, 4, v{vl}')
    k.I(f'v_lshlrev_b32 v{fq4}, 2, v{fq4}')
    k.I(f'v_cvt_f32_u32 v{fq4}, v{fq4}')
    k.I(f'v_lshlrev_b32 v{fw16}, 4, v1')
    k.I(f'v_cvt_f32_u32 v{fw16}, v{fw16}')
    k.I(f'v_add_f32 v{fk}, v{fw16}, v{fi}')
    def angles(step_expr_reg, scale, base_add, dst):
        k.I(f'v_mul_f32 v{ta}, {fhex(scale)}, v{step_expr_reg}')
        k.I(f'v_mul_f32 v{ta+1}, v{fq4}, v{ta}')
        for j in range(4):
            k.I(f'v_fmamk_f32 v{dst+j}, v{ta}, {fhex(float(base_add + j))}, v{ta+1}')
    def sincos(c, s):
        for j in range(4):
            k.I(f'v_cos_f32 v{c+j}, v{s+j}')
            k.I(f'v_sin_f32 v{s+j}, v{s+j}')
    def flip(c, s):
        for p in (0, 2):
            k.I(f'v_pk_mul_f32 {vr(c+p,2)}, {vr(c+p,2)}, {vr(sg2,2)} op_sel_hi:[1,0]')
            k.I(f'v_pk_mul_f32 {vr(s+p,2)}, {vr(s+p,2)}, {vr(sg2,2)} op_sel_hi:[1,0]')
    sg2 = va.get(2, 2)
    k.I(f'v_mov_b32 v{sg2}, v{sg}')
    f64 = va.get(40, 2); f32 = va.get(40, 2)
    for kap in range(2):
        angles(fk, 1.0/64, 16*kap, ts); sincos(tc, ts)
        pack_window(k, f64+10*kap, tc, ts, False)
        flip(tc, ts)
        pack_window(k, f64+10*(kap+2), tc, ts, False)
    c1 = va.get(8, 2); s1 = va.get(8, 2); c2 = va.get(8, 2); s2 = va.get(8, 2)
    for N in range(2):
        angles(fk, 1.0/2048, 16*N, s1+4*N); sincos(c1+4*N, s1+4*N)
    angles(fi, 1.0/32, 0, ts); sincos(tc, ts)
    pack_window(k, f32+0, tc, ts, False)
    pack_window(k, f32+20, tc, ts, True)
    flip(tc, ts)
    pack_window(k, f32+10, tc, ts, False)
    pack_window(k, f32+30, tc, ts, True)
    mark(k, 2)
    k.wait_tag('x')
    k.I('s_barrier')
    mark(k, 3)
    dat = va.get(32, 4)
    for kap in range(4):
        for N in range(2):
            k.I(f'ds_read_b128 {vr(dat+(2*kap+N)*4,4)}, v{vo16} offset:{2048*kap+1024*N}')
    acc = va.get(16, 4); acc2 = va.get(16, 4); pk = va.get(8, 4)
    for kap in range(4):
        for N in range(2):
            for c in range(2):
                dd = vr(acc+(2*N+c)*4, 4)
                k.I(f'{MF16} {dd}, {vr(dat+(2*kap+N)*4,4)}, {vr(f64+10*kap+(W_FWD_IM if c else W_FWD_RE),4)}, {dd if kap else 0}')
    fkq = va.get()
    k.I(f'v_add_f32 v{fkq}, v{fw16}, v{fq4}')
    for N in range(2):
        k.I(f'v_add_f32 v{ta}, {fhex(16.0*N)}, v{fi}')
        k.I(f'v_mul_f32 v{ta}, {fhex(1.0/2048)}, v{ta}')
        k.I(f'v_mul_f32 v{ta+1}, v{fkq}, v{ta}')
        for j in range(4):
            k.I(f'v_fmamk_f32 v{s2+4*N+j}, v{ta}, {fhex(float(j))}, v{ta+1}')
        sincos(c2+4*N, s2+4*N)
    for N in range(2):
        cmul4(k, acc+8*N, acc+8*N+4, c1+4*N, s1+4*N, pk+4*N, tmp, False)
    for N in range(2):
        for V in range(2):
            for c in range(2):
                dd = vr(acc2+(2*V+c)*4, 4)
                k.I(f'{MF16} {dd}, {vr(f32+(2*V+N)*10+(W_FWD_IM if c else W_FWD_RE),4)}, {vr(pk+4*N,4)}, {dd if N else 0}')
    mark(k, 4)
    wr_ = c1; wi_ = s1
    for j in range(8):
        k.I(f'v_lshlrev_b32 v{wr_+j}, 16, v{wq+j}')
        k.I(f'v_and_b32 v{wi_+j}, 0xffff0000, v{wq+j}')
    pk2 = va.get(8, 4)
    for V in range(2):
        cmul4(k, acc2+8*V, acc2+8*V+4, wr_+4*V, wi_+4*V, pk2+4*V, tmp, True)
    for V in range(2):
        for N in range(2):
            for c in range(2):
                dd = vr(acc+(2*N+c)*4, 4)
                k.I(f'{MF16} {dd}, {vr(pk2+4*V,4)}, {vr(f32+(2*N+V)*10+(W_INV_IM if c else W_INV_RE),4)}, {dd if V else 0}')
    mark(k, 5)
    wa = va.get()
    k.I(f'v_add_u32 v{wa}, s23, v{vo16}')
    for N in range(2):
        cmul4(k, acc+8*N, acc+8*N+4, c2+4*N, s2+4*N, pk+4*N, tmp, True)
        k.I(f'ds_write_b128 v{wa}, {vr(pk+4*N,4)} offset:{8192+1024*N}')
    k.barrier()
    mark(k, 6)
    for kap in range(4):
        for N in range(2):
            k.I(f'ds_read_b128 {vr(dat+(2*kap+N)*4,4)}, v{vo16} offset:{8192+2048*kap+1024*N}')
    for kap in range(4):
        for N in range(2):
            for c in range(2):
                dd = vr(acc2+(2*N+c)*4, 4)
                k.I(f'{MF16} {dd}, {vr(f64+10*kap+(W_INV_IM if c else W_INV_RE),4)}, {vr(dat+(2*kap+N)*4,4)}, {dd if kap else 0}')
    for N in range(2):
        re = acc2+8*N; im = re+4
        for p in range(2):
            a, b = 2*p, 2*p+1
            k.I(f'v_fma_f32 v{tmp+4*p+0}, -s25, v{im+b}, v{re+a}')
            k.I(f'v_fma_f32 v{tmp+4*p+1}, s25, v{im+a}, v{re+b}')
            k.I(f'v_fma_f32 v{tmp+4*p+2}, s25, v{im+b}, v{re+a}')
            k.I(f'v_fma_f32 v{tmp+4*p+3}, -s25, v{im+a}, v{re+b}')
        for j in range(4):
            k.I(f'v_cvt_pk_bf16_f32 v{pk2+4*N+j}, v{tmp+2*j}, v{tmp+2*j+1}')
        k.I(f'buffer_store_dwordx4 {vr(pk2+4*N,4)}, v{vo16}, s[8:11], s24 offen offset:{1024*N}')
    stamp_end(k, 2, 4)
    k.label('LC_exit')
    k.I('s_endpgm')
    return k, (321, 256, 16384)

def gen_D():
    k = Kernel('kd_kernel')
    PL = 2592
    stamp_begin(k)
    k.I('s_cmp_ge_u32 s2, 256')
    k.I('s_cbranch_scc1 LD_exit')
    k.I(f's_load_dwordx2 s[4:5], s[0:1], {KA["ws"]}')
    k.I(f's_load_dwordx2 s[6:7], s[0:1], {KA["x"]}')
    va = VAlloc(2)
    vl = va.get(); so = va.get(); ta = va.get(4); vi = va.get(); vq = va.get()
    ch = va.get(12, 4); xr = va.get(12, 2); mg = va.get(12, 4); mc = va.get(12, 4); ms = va.get(12, 4)
    xo = va.get(); xo2 = va.get(); mo = va.get()
    bd_ids(k, vl)
    k.I(f'v_and_b32 v{ta}, 1, v0')
    k.I(f'v_lshrrev_b32 v{ta+1}, 1, v0')
    k.I(f'v_lshlrev_b32 v{so}, 13, v{ta+1}')
    k.I(f'v_lshl_add_u32 v{so}, v{ta}, 4, v{so}')
    k.I(f'v_and_b32 v{vi}, 15, v{vl}')
    k.I(f'v_lshrrev_b32 v{vq}, 4, v{vl}')
    k.I(f'v_mul_u32_u24 v{xo}, 80, v{vi}')
    k.I(f'v_lshl_add_u32 v{xo}, v{vq}, 3, v{xo}')
    k.I(f'v_lshlrev_b32 v{mo}, 1, v{xo}')
    k.I(f'v_cmp_gt_u32 vcc, 32, v{vl}')
    k.I(f'v_mov_b32 v{xo2}, 0x7fff0000')
    k.I(f'v_cndmask_b32 v{xo2}, v{xo2}, v{xo}, vcc')
    k.I('s_mul_i32 s28, s23, 1280')
    k.I(f's_add_u32 s29, s28, {32*1280}')
    k.srd(16, 4, XT_SZ, XT)
    for rho in range(3):
        k.I(f'buffer_load_dwordx4 {vr(ch+4*rho,4)}, v{so}, s[16:19], s{25+rho} offen')
    k.srd(8, 6, S * D * 2)
    k.srd(12, 4, 6 * D * 4, MODN)
    for T in range(3):
        for c in range(2):
            k.I(f'buffer_load_dwordx2 {vr(xr+(2*T+c)*2,2)}, v{xo2 if T == 2 else xo}, s[8:11], s{28+c} offen offset:{32*T}')
    k.I(f's_movk_i32 s30, {2*2560}')
    k.I(f's_movk_i32 s31, {3*2560}')
    k.I(f's_movk_i32 s32, {4*2560}')
    for T in range(3):
        k.I(f'buffer_load_dwordx4 {vr(mg+4*T,4)}, v{mo}, s[12:15], s30 offen offset:{64*T}')
        k.I(f'buffer_load_dwordx4 {vr(ms+4*T,4)}, v{mo}, s[12:15], s31 offen offset:{64*T}')
        k.I(f'buffer_load_dwordx4 {vr(mc+4*T,4)}, v{mo}, s[12:15], s32 offen offset:{64*T}')
    mark(k, 1)
    fi = va.get(); fq = va.get(); fq4 = va.get()
    k.I(f'v_cvt_f32_u32 v{fi}, v{vi}')
    k.I(f'v_cvt_f32_u32 v{fq}, v{vq}')
    k.I(f'v_mul_f32 v{fq4}, 4.0, v{fq}')
    wu = va.get(); wv = va.get(); ra = va.get()
    k.I(f'v_mul_u32_u24 v{wu}, {2*PL}, v{ta}')
    k.I(f'v_sub_u32 v{wv}, 384, v{ta+1}')
    k.I(f'v_lshl_add_u32 v{wv}, v{wv}, 2, v{wu}')
    k.I(f'v_lshl_add_u32 v{wu}, v{ta+1}, 2, v{wu}')
    k.I(f's_mul_i32 s33, s22, {PL}')
    k.I(f'v_lshl_add_u32 v{ra}, v{vl}, 2, s33')
    k.I(f'v_cmp_ge_u32 s[34:35], 64, v{ta+1}')
    f40 = gen_f40(k, va, fi, fq, True)
    mark(k, 2)
    if STAMPS: k.waitcnt(vm=15)
    mark(k, 3)
    for rho in range(3):
        if rho == 2: k.I('s_mov_b64 exec, s[34:35]')
        for pr in range(2):
            k.I(f'ds_write_b32 v{wu}, v{ch+4*rho+2*pr} offset:{pr*PL+512*rho}')
            k.I(f'ds_write_b32 v{wv}, v{ch+4*rho+2*pr+1} offset:{pr*PL+512*(2-rho)}')
    k.I('s_mov_b64 exec, -1')
    k.barrier()
    mark(k, 4)
    dat = va.get(12, 2)
    for p in range(5):
        k.I(f'ds_read2st64_b32 {vr(dat+2*p,2)}, v{ra} offset0:{2*p} offset1:{2*p+1}')
    k.I(f'v_mov_b32 v{dat+10}, 0'); k.I(f'v_mov_b32 v{dat+11}, 0')
    d1 = va.get(24, 4)
    for T in range(3):
        for kap in range(3):
            for c in range(2):
                dd = vr(d1 + (2*T+c)*4, 4)
                k.I(f'{MF16} {dd}, {vr(dat+4*kap,4)}, {vr(f40+(2*T+c)*10+4*kap,4)}, {dd if kap else 0}')
    cs, sn = gen_tw640(k, va, fi, fq4)
    k.I(f'v_cmp_gt_u32 vcc, 8, v{vi}')
    for r in range(4):
        k.I(f'v_cndmask_b32 v{cs+8+r}, 0, v{cs+8+r}, vcc')
        k.I(f'v_cndmask_b32 v{sn+8+r}, 0, v{sn+8+r}, vcc')
    f16 = va.get(6, 2); tmp = va.get(8, 2)
    k.I(f'v_mul_f32 v{ta+2}, {fhex(1.0/16)}, v{fi}')
    k.I(f'v_mul_f32 v{ta+3}, v{fq4}, v{ta+2}')
    for j in range(4): k.I(f'v_fmamk_f32 v{tmp+4+j}, v{ta+2}, {fhex(float(j))}, v{ta+3}')
    for j in range(4):
        k.I(f'v_cos_f32 v{tmp+j}, v{tmp+4+j}')
        k.I(f'v_sin_f32 v{tmp+4+j}, v{tmp+4+j}')
    for p in range(2):
        k.I(f'v_cvt_pk_bf16_f32 v{f16+p}, v{tmp+4+2*p}, v{tmp+5+2*p}')
        k.I(f'v_cvt_pk_bf16_f32 v{f16+2+p}, v{tmp+2*p}, v{tmp+1+2*p}')
        k.I(f'v_cvt_pk_bf16_f32 v{f16+4+p}, -v{tmp+4+2*p}, -v{tmp+5+2*p}')
    mark(k, 5)
    a2 = ch; d2 = va.get(24, 4); xf = f40
    for T in range(3):
        cmul4(k, d1+8*T, d1+8*T+4, cs+4*T, sn+4*T, a2+4*T, tmp, True)
        for c in range(2):
            k.I(f'{MF16} {vr(d2+(2*T+c)*4,4)}, {vr(a2+4*T,4)}, {vr(f16+(0 if c else 2),4)}, 0')
    for i in range(12):
        k.I(f'v_lshlrev_b32 v{xf+2*i}, 16, v{xr+i}')
        k.I(f'v_and_b32 v{xf+2*i+1}, 0xffff0000, v{xr+i}')
    oh = va.get(); ox = va.get()
    k.I(f'v_lshrrev_b32 v{ta}, 1, v{vq}')
    k.I(f'v_and_b32 v{ta+1}, 1, v{vq}')
    k.I(f'v_mad_u32_u24 v{oh}, v{vi}, 5, v{ta}')
    k.I(f'v_lshlrev_b32 v{ox}, 4, v{oh}')
    k.I(f'v_lshlrev_b32 v{oh}, 9, v{oh}')
    k.I(f'v_lshl_add_u32 v{oh}, v{ta+1}, 4, v{oh}')
    k.I(f'v_mul_u32_u24 v{ta+1}, {32*1280}, v{ta+1}')
    k.I(f'v_add_u32 v{ox}, v{ox}, v{ta+1}')
    k.srd(36, 4, S * D * 2, H2)
    k.srd(40, 4, S * D * 2, X1)
    k.I('s_lshl_b32 s44, s20, 2')
    k.I('s_lshr_b32 s45, s21, 2')
    k.I('s_add_u32 s44, s44, s45')
    k.I('s_mul_i32 s44, s44, 40960')
    k.I('s_and_b32 s45, s21, 3')
    k.I('s_lshl_b32 s45, s45, 7')
    k.I('s_add_u32 s44, s44, s45')
    k.I('s_lshl_b32 s45, s22, 5')
    k.I('s_add_u32 s44, s44, s45')
    mark(k, 6)
    for T in range(3):
        for c in range(2):
            for p in (0, 2):
                r = (2*T+c)*4+p
                k.I(f'v_pk_fma_f32 {vr(xf+r,2)}, {vr(d2+r,2)}, {vr(mg+4*T+p,2)}, {vr(xf+r,2)}')
    st_ = f40 + 24
    first = True
    for T in range(3):
        for p in (0, 2):
            for c in range(2):
                r = xf+(2*T+c)*4+p
                if first:
                    k.I(f'v_mov_b64 {vr(st_+2*c,2)}, {vr(r,2)}')
                    k.I(f'v_pk_mul_f32 {vr(st_+4+2*c,2)}, {vr(r,2)}, {vr(r,2)}')
                else:
                    k.I(f'v_pk_add_f32 {vr(st_+2*c,2)}, {vr(st_+2*c,2)}, {vr(r,2)}')
                    k.I(f'v_pk_fma_f32 {vr(st_+4+2*c,2)}, {vr(r,2)}, {vr(r,2)}, {vr(st_+4+2*c,2)}')
            first = False
    for i in range(4): k.I(f'v_add_f32 v{st_+2*i}, v{st_+2*i}, v{st_+2*i+1}')
    wave_reduce_to_sgpr(k, [st_, st_+2, st_+4, st_+6], [46, 47, 48, 49])
    mark(k, 7)
    po = d1; ph = d1 + 12
    rr = f40 + 32; nmr = f40 + 34
    ln_scalars(k, 46, 48, rr, nmr, tmp)
    for T in range(3):
        for j in range(4):
            k.I(f'v_cvt_pk_bf16_f32 v{po+4*T+j}, v{xf+8*T+2*j}, v{xf+8*T+2*j+1}')
    for T in range(3):
        for c in range(2):
            for p in (0, 2):
                r = xf+(2*T+c)*4+p
                k.I(f'v_pk_fma_f32 {vr(r,2)}, {vr(r,2)}, {vr(rr,2)}, {vr(nmr,2)} op_sel:[0,{c},{c}] op_sel_hi:[1,{c},{c}]')
    for T in range(3):
        k.I(f'v_permlane16_swap_b32 v{po+4*T}, v{po+4*T+2}')
        k.I(f'v_permlane16_swap_b32 v{po+4*T+1}, v{po+4*T+3}')
    for T in range(3):
        for c in range(2):
            for p in (0, 2):
                r = xf+(2*T+c)*4+p
                k.I(f'v_pk_fma_f32 {vr(r,2)}, {vr(r,2)}, {vr(mc+4*T+p,2)}, {vr(ms+4*T+p,2)}')
    for T in range(3):
        for j in range(4):
            k.I(f'v_cvt_pk_bf16_f32 v{ph+4*T+j}, v{xf+8*T+2*j}, v{xf+8*T+2*j+1}')
    for T in range(3):
        k.I(f'v_permlane16_swap_b32 v{ph+4*T}, v{ph+4*T+2}')
        k.I(f'v_permlane16_swap_b32 v{ph+4*T+1}, v{ph+4*T+3}')
    for T in range(3):
        if T == 2: k.I('s_mov_b32 exec_hi, 0')
        k.I(f'buffer_store_dwordx4 {vr(ph+4*T,4)}, v{oh}, s[36:39], s44 offen offset:{1024*T}')
        k.I(f'buffer_store_dwordx4 {vr(po+4*T,4)}, v{ox}, s[40:43], s28 offen offset:{32*T}')
    stamp_end(k, 3, 4)
    k.label('LD_exit')
    k.I('s_endpgm')
    return k, (256, 256, 4 * PL)

import os
E_NS = 7; E_ST = 20480; E_LEAD = int(os.environ.get('E_LEAD', 3))
def gen_E():
    k = Kernel('ke_kernel')
    stamp_begin(k)
    k.I('s_cmp_ge_u32 s2, 256')
    k.I('s_cbranch_scc1 LE_exit')
    k.I(f's_load_dwordx2 s[4:5], s[0:1], {KA["ws"]}')
    k.I(f's_load_dwordx4 s[8:11], s[0:1], {KA["wg"]}')
    k.I('v_lshrrev_b32 v1, 6, v0')
    k.I('v_and_b32 v2, 63, v0')
    k.I('v_readfirstlane_b32 s22, v1')
    k.I('s_and_b32 s20, s2, 1')
    k.I('s_lshl_b32 s20, s20, 3')
    k.I('s_lshr_b32 s23, s2, 3')
    k.I('s_and_b32 s23, s23, 7')
    k.I('s_add_u32 s20, s20, s23')
    k.I('s_and_b32 s21, s2, 6')
    k.I('s_lshl_b32 s21, s21, 1')
    k.I('s_lshr_b32 s23, s2, 6')
    k.I('s_add_u32 s21, s21, s23')
    k.I('s_cmp_ge_u32 s22, 4')
    st = k.save_state()
    k.I('s_cbranch_scc1 LE_load')
    va = VAlloc(3)
    aa = va.get(); ao = va.get(); ab = va.get(); t0 = va.get(); t1 = va.get(); t2 = va.get()
    fr = [va.get(20, 4), va.get(20, 4)]
    acc = va.get(96, 4)
    k.I('s_and_b32 s24, s22, 1')
    k.I('s_lshr_b32 s25, s22, 1')
    k.I(f'v_lshrrev_b32 v{t0}, 5, v2')
    k.I(f'v_bfe_u32 v{t1}, v2, 2, 2')
    k.I(f'v_lshl_add_u32 v{t0}, v{t0}, 3, v{t1}')
    k.I(f'v_mul_u32_u24 v{aa}, 192, v{t0}')
    k.I(f'v_and_b32 v{t1}, 3, v2')
    k.I(f'v_lshl_add_u32 v{aa}, v{t1}, 3, v{aa}')
    k.I(f'v_bfe_u32 v{t1}, v2, 4, 1')
    k.I(f'v_mul_u32_u24 v{t2}, {6144+32}, v{t1}')
    k.I(f'v_add_u32 v{aa}, v{aa}, v{t2}')
    k.I('s_mul_i32 s26, s24, 96')
    k.I(f'v_add_u32 v{aa}, s26, v{aa}')
    k.I('s_mul_i32 s26, s24, 192')
    k.I(f'v_mul_u32_u24 v{t2}, s26, v{t1}')
    k.I(f'v_sub_u32 v{ao}, v{aa}, v{t2}')
    k.I(f'v_lshlrev_b32 v{ab}, 4, v2')
    k.I('s_lshl_b32 s26, s25, 12')
    k.I(f's_add_u32 s26, s26, 12288')
    k.I(f'v_add_u32 v{ab}, s26, v{ab}')
    aa2 = va.get(); ao2 = va.get(); ab2 = va.get(); aa3 = va.get(); ao3 = va.get(); ab3 = va.get()
    for (d_, s_) in ((aa2, aa), (ao2, ao), (ab2, ab)): k.I(f'v_add_u32 v{d_}, {3*E_ST}, v{s_}')
    for (d_, s_) in ((aa3, aa), (ao3, ao), (ab3, ab)): k.I(f'v_add_u32 v{d_}, {6*E_ST}, v{s_}')
    bases = [(aa, ao, ab), (aa2, ao2, ab2), (aa3, ao3, ab3)]
    def reads(sig, kap):
        slot = sig % E_NS
        ba, bo, bb = bases[slot // 3]; off = (slot % 3) * E_ST
        f = fr[kap]
        out = []
        for nt in range(2):
            out.append(f'ds_read_b128 {vr(f+12+4*nt,4)}, v{bb} offset:{off+2048*nt+1024*kap}')
        for mt in range(3):
            for hf in range(2):
                out.insert(len(out) if (mt or hf) else 1, f'ds_read_b64_tr_b16 {vr(f+4*mt+2*hf,2)}, v{bo if mt == 2 else ba} offset:{off+(16*kap+4*hf)*192+32*mt}')
        return out
    def mfmas(kap, first):
        f = fr[kap]; out = []
        for mt in range(3):
            for nt in range(2):
                dd = vr(acc+(2*mt+nt)*16, 16)
                out.append(f'{MF32} {dd}, {vr(f+4*mt,4)}, {vr(f+12+4*nt,4)}, {0 if first else dd}')
        return out
    oo = va.get()
    k.I(f'v_bfe_u32 v{t0}, v2, 4, 1')
    k.I(f'v_mul_u32_u24 v{oo}, 49152, v{t0}')
    k.I(f'v_lshrrev_b32 v{t0}, 5, v2')
    k.I(f'v_lshl_add_u32 v{oo}, v{t0}, 8, v{oo}')
    k.I(f'v_and_b32 v{t0}, 15, v2')
    k.I(f'v_lshl_add_u32 v{oo}, v{t0}, 4, v{oo}')
    k.srd(12, 4, S * F * 2, HH)
    k.I('s_lshl_b32 s27, s20, 1')
    k.I('s_add_u32 s27, s27, s25')
    k.I(f's_mul_i32 s27, s27, {4*49152}')
    k.I('s_lshl_b32 s28, s21, 1')
    k.I('s_add_u32 s28, s28, s24')
    k.I(f's_mul_i32 s28, s28, {3*512}')
    k.I('s_add_u32 s27, s27, s28')
    k.I(f's_add_u32 s28, s27, {2*49152}')
    def interleave(ms, rs, barrier_after=None):
        ri = 0
        for i, m in enumerate(ms):
            k.I(m)
            n = 2 if ri + 2 <= len(rs) else len(rs) - ri
            for _ in range(n):
                k.I(rs[ri]); ri += 1
            if barrier_after == i: k.barrier()
    mark(k, 1)
    k.I('s_barrier')
    mark(k, 2)
    for r in reads(0, 0): k.I(r)
    for sig in range(20):
        interleave(mfmas(0, sig == 0), reads(sig, 1), barrier_after=5 if sig < 19 else None)
        if sig in (4, 9, 14): mark(k, 3 + sig // 5)
        interleave(mfmas(1, False), reads(sig + 1, 0) if sig < 19 else [])
    mark(k, 6)
    pk = fr[0]
    for mt in range(3):
        for nt in range(2):
            a = acc+(2*mt+nt)*16
            for p in range(4):
                k.I(f'v_pk_mul_f32 {vr(a+2*p,2)}, {vr(a+2*p,2)}, {vr(a+8+2*p,2)}')
            for p in range(4):
                k.I(f'v_cvt_pk_bf16_f32 v{a+8+p}, v{a+2*p}, v{a+2*p+1}')
            k.I(f'buffer_store_dwordx4 {vr(a+8,4)}, v{oo}, s[12:15], s{27+nt} offen offset:{512*mt}')
    stamp_end(k, 4, 4)
    k.I('s_endpgm')
    k.label('LE_load', fresh=True); k.restore_state(st)
    k.I('s_sub_u32 s22, s22, 4')
    va = VAlloc(3)
    wo = va.get(3); ho = va.get(); t0 = va.get(); t1 = va.get(); t2 = va.get()
    k.I('s_lshr_b32 s24, s22, 1')
    k.I('s_mul_i32 s25, s24, 10')
    for p in range(3):
        k.I(f'v_add_u32 v{t0}, {64*p}, v2')
        k.I(f'v_mul_u32_u24 v{t1}, 171, v{t0}')
        k.I(f'v_lshrrev_b32 v{t1}, 11, v{t1}')
        k.I(f'v_mul_u32_u24 v{t2}, 12, v{t1}')
        k.I(f'v_sub_u32 v{t0}, v{t0}, v{t2}')
        k.I(f'v_add_u32 v{t0}, s25, v{t0}')
        k.I(f'v_subrev_u32 v{t2}, 12, v{t0}')
        k.I(f'v_min_u32 v{t0}, v{t0}, v{t2}')
        k.I(f'v_mul_u32_u24 v{wo+p}, 3072, v{t1}')
        k.I(f'v_lshl_add_u32 v{wo+p}, v{t0}, 4, v{wo+p}')
        if p: k.I(f'v_subrev_u32 v{wo+p}, {1024*p}, v{wo+p}')
    k.I(f'v_lshlrev_b32 v{ho}, 4, v2')
    k.I('s_cmp_eq_u32 s24, 0')
    k.I('s_cselect_b32 s12, s8, s10')
    k.I('s_cselect_b32 s13, s9, s11')
    k.I(f's_mov_b32 s14, {D*F*2}')
    k.I('s_mov_b32 s15, 0x00020000')
    k.srd(16, 4, S * D * 2, H2)
    k.I('s_and_b32 s26, s22, 1')
    k.I(f's_mul_i32 s26, s26, {16*3072}')
    k.I('s_mul_i32 s27, s21, 192')
    k.I('s_add_u32 s26, s26, s27')
    k.I('s_lshl_b32 s27, s20, 2')
    k.I('s_add_u32 s27, s27, s22')
    k.I('s_mul_i32 s27, s27, 40960')
    k.I('s_mul_i32 s28, s22, 3072')
    k.I('s_lshl_b32 s29, s22, 11')
    k.I('s_add_u32 s29, s29, 12288')
    def issue(sig):
        slot = sig % E_NS
        k.I(f's_add_u32 m0, s29, {slot*E_ST}')
        k.I(f'buffer_load_dwordx4 v{ho}, s[16:19], s27 offen lds', tag=sig)
        k.I(f'buffer_load_dwordx4 v{ho}, s[16:19], s27 offen offset:1024 lds', tag=sig)
        k.I(f's_add_u32 m0, s28, {slot*E_ST}')
        k.I('s_add_u32 s27, s27, 2048')
        for p in range(3):
            k.I(f'buffer_load_dwordx4 v{wo+p}, s[12:15], s26 offen offset:{1024*p} lds', tag=sig)
        k.I(f's_add_u32 s26, s26, {32*3072}')
    for sig in range(E_LEAD): issue(sig)
    for sig in range(20):
        k.wait_tag(sig)
        k.I('s_barrier')
        if sig + E_LEAD < 20: issue(sig + E_LEAD)
    k.label('LE_exit')
    k.I('s_endpgm')
    return k, (256, 512, E_NS * E_ST)

F_DEPTH = int(os.environ.get('F_DEPTH', 3))
def gen_F():
    k = Kernel('kf_kernel')
    stamp_begin(k)
    k.I('s_cmp_ge_u32 s2, 256')
    k.I('s_cbranch_scc1 LF_exit')
    k.I(f's_load_dwordx2 s[4:5], s[0:1], {KA["ws"]}')
    k.I(f's_load_dwordx2 s[6:7], s[0:1], {KA["out"]}')
    k.I('v_lshrrev_b32 v1, 6, v0')
    k.I('v_and_b32 v2, 63, v0')
    k.I('v_readfirstlane_b32 s22, v1')
    k.I('s_and_b32 s20, s2, 7')
    k.I('s_lshl_b32 s20, s20, 2')
    k.I('s_lshr_b32 s23, s2, 6')
    k.I('s_add_u32 s20, s20, s23')
    k.I('s_lshr_b32 s21, s2, 3')
    k.I('s_and_b32 s21, s21, 7')
    va = VAlloc(3)
    vo = va.get(); t0 = va.get(); t1 = va.get(); t2 = va.get(); oo = va.get(); go = va.get()
    x1r = va.get(10, 2); gb = va.get(20, 4)
    buf = [va.get(36, 4) for _ in range(max(F_DEPTH, 4))]
    k.I(f'v_lshlrev_b32 v{vo}, 4, v2')
    for i in range(4):
        k.I(f's_add_u32 s{24+i}, s22, {i}')
        k.I(f's_and_b32 s{24+i}, s{24+i}, 3')
        k.I(f's_lshl_b32 s23, s20, 2')
        k.I(f's_add_u32 s{24+i}, s{24+i}, s23')
        k.I(f's_mul_i32 s{24+i}, s{24+i}, 49152')
        k.I(f's_mul_i32 s23, s22, {12*1024}')
        k.I(f's_add_u32 s{24+i}, s{24+i}, s23')
    k.I('s_mul_i32 s28, s21, 48')
    k.I('s_mul_i32 s23, s22, 12')
    k.I('s_add_u32 s28, s28, s23')
    k.I('s_mul_i32 s28, s28, 5120')
    k.I('s_add_u32 s29, s28, 4096')
    k.srd(8, 4, S * F * 2, HH)
    k.srd(12, 4, F * D * 2, WD)
    def loads(kp):
        b = buf[kp % F_DEPTH]; out = []
        for i in range(4):
            out.append(f'buffer_load_dwordx4 {vr(b+20+4*i,4)}, v{vo}, s[8:11], s{24+i} offen offset:{1024*(kp%4)}')
        for dt in range(5):
            if dt < 4: out.insert(min(2*dt, len(out)), f'buffer_load_dwordx4 {vr(b+4*dt,4)}, v{vo}, s[12:15], s28 offen offset:{1024*dt}')
            else: out.append(f'buffer_load_dwordx4 {vr(b+4*dt,4)}, v{vo}, s[12:15], s29 offen')
        out.append('s_add_u32 s28, s28, 5120')
        out.append('s_add_u32 s29, s29, 5120')
        if kp % 4 == 3:
            for i in range(4): out.append(f's_add_u32 s{24+i}, s{24+i}, 4096')
        return out
    for kp in range(F_DEPTH):
        for l in loads(kp): k.I(l)
    mark(k, 1)
    k.I('s_lshl_b32 s30, s20, 2')
    k.I('s_add_u32 s30, s30, s22')
    k.I('s_lshr_b32 s31, s30, 3')
    k.I('s_lshl_b32 s31, s31, 7')
    k.I('s_and_b32 s30, s30, 7')
    k.I('s_lshl_b32 s30, s30, 2')
    k.I('s_add_u32 s31, s31, s30')
    k.I('s_mul_i32 s31, s31, 1280')
    k.I('s_mul_i32 s30, s21, 160')
    k.I('s_add_u32 s31, s31, s30')
    k.I(f'v_and_b32 v{t0}, 3, v2')
    k.I(f'v_lshlrev_b32 v{t0}, 5, v{t0}')
    k.I(f'v_bfe_u32 v{t1}, v2, 2, 2')
    k.I(f'v_add_u32 v{t0}, v{t0}, v{t1}')
    k.I(f'v_mul_u32_u24 v{oo}, 1280, v{t0}')
    k.I(f'v_lshrrev_b32 v{t1}, 4, v2')
    k.I(f'v_mul_u32_u24 v{go}, 40, v{t1}')
    k.I(f'v_add_u32 v{oo}, v{oo}, v{go}')
    k.I(f'v_lshlrev_b32 v{go}, 1, v{go}')
    k.srd(16, 4, S * D * 2, X1)
    k.srd(32, 4, 6 * D * 4, MODN)
    k.srd(36, 6, S * D * 2)
    k.I('s_lshl_b32 s30, s30, 1')
    k.I(f's_add_u32 s30, s30, {5*2560}')
    epi = [f'buffer_load_dwordx4 {vr(x1r,4)}, v{oo}, s[16:19], s31 offen',
           f'buffer_load_dwordx4 {vr(x1r+4,4)}, v{oo}, s[16:19], s31 offen offset:16',
           f'buffer_load_dwordx2 {vr(x1r+8,2)}, v{oo}, s[16:19], s31 offen offset:32']
    epi += [f'buffer_load_dwordx4 {vr(gb+4*dt,4)}, v{go}, s[32:35], s30 offen offset:{16*dt}' for dt in range(5)]
    for kp in range(12):
        b = buf[kp % F_DEPTH]
        if kp in (1, 4, 8): mark(k, 2 + (kp // 4))
        nxt = loads(kp - 1 + F_DEPTH) if (kp >= 1 and kp - 1 + F_DEPTH < 12) else (epi if kp == 12 - F_DEPTH + 1 else [])
        li = 0; n = 0
        for i in range(4):
            for dt in range(5):
                dd = ar((5*i+dt)*4, 4)
                k.I(f'{MF16} {dd}, {vr(b+4*dt,4)}, {vr(b+20+4*i,4)}, {dd if kp else 0}')
                n += 1
                if n % 2 == 0 and li < len(nxt):
                    k.I(nxt[li]); li += 1
        while li < len(nxt): k.I(nxt[li]); li += 1
    mark(k, 5)
    for i in range(1, 4):
        k.I(f's_add_u32 s40, s22, {i}')
        k.I('s_and_b32 s40, s40, 3')
        k.I(f's_mul_i32 s40, s40, {15*1024}')
        k.I(f'v_add_u32 v{t0}, s40, v{vo}')
        for dt in range(5):
            k.I(f'ds_write_b128 v{t0}, {ar((5*i+dt)*4,4)} offset:{((i-1)*5+dt)*1024}')
    k.I(f's_mul_i32 s40, s22, {15*1024}')
    k.I(f'v_add_u32 v{t0}, s40, v{vo}')
    own = buf[0]; xf = buf[1]
    for j in range(20): k.I(f'v_accvgpr_read_b32 v{own+j}, a{j}')
    for j in range(10):
        k.I(f'v_lshlrev_b32 v{xf+2*j}, 16, v{x1r+j}')
        k.I(f'v_and_b32 v{xf+2*j+1}, 0xffff0000, v{x1r+j}')
    k.barrier()
    mark(k, 6)
    rd = buf[2]
    for dt in range(5):
        for i in range(3):
            k.I(f'ds_read_b128 {vr(rd+(3*dt+i)*4,4)}, v{t0} offset:{(i*5+dt)*1024}')
    for dt in range(5):
        for p in (0, 2):
            o_ = own+4*dt+p
            k.I(f'v_pk_add_f32 {vr(o_,2)}, {vr(o_,2)}, {vr(rd+(3*dt)*4+p,2)}')
            k.I(f'v_pk_add_f32 {vr(rd+(3*dt+1)*4+p,2)}, {vr(rd+(3*dt+1)*4+p,2)}, {vr(rd+(3*dt+2)*4+p,2)}')
        for p in (0, 2):
            o_ = own+4*dt+p
            k.I(f'v_pk_add_f32 {vr(o_,2)}, {vr(o_,2)}, {vr(rd+(3*dt+1)*4+p,2)}')
        for p in (0, 2):
            o_ = own+4*dt+p
            k.I(f'v_pk_fma_f32 {vr(o_,2)}, {vr(o_,2)}, {vr(gb+4*dt+p,2)}, {vr(xf+4*dt+p,2)}')
        for p in (0, 2):
            k.I(f'v_cvt_pk_bf16_f32 v{x1r+2*dt+p//2}, v{own+4*dt+p}, v{own+4*dt+p+1}')
    k.I(f'buffer_store_dwordx4 {vr(x1r,4)}, v{oo}, s[36:39], s31 offen')
    k.I(f'buffer_store_dwordx4 {vr(x1r+4,4)}, v{oo}, s[36:39], s31 offen offset:16')
    k.I(f'buffer_store_dwordx2 {vr(x1r+8,2)}, v{oo}, s[36:39], s31 offen offset:32')
    stamp_end(k, 5, 4)
    k.label('LF_exit')
    k.I('s_endpgm')
    return k, (256, 256, 60 * 1024)

HEADER = open('adaLN_cond__spectral_gfnet__glu_gated_bilinear__prompt.s.ref').read().split('; Override launch')[0]

NOTES = """;
"""
def build(path, gens=None):
    ks = [g() for g in (gens or (gen_A, gen_B, gen_C, gen_D, gen_E, gen_F))]
    s = HEADER
    for k, (g, b, l) in ks:
        s += f'; @launch kernel={k.name} grid=({g},1,1) block=({b},1,1) lds={l}\n'
    s += NOTES
    s += '.amdgcn_target "amdgcn-amd-amdhsa--gfx950"\n.text\n'
    for k, _ in ks: s += k.text()
    s += 'Lcode_end:\n'
    s += '.section .rodata,"a"\n'
    for k, _ in ks: s += k.descriptor()
    open(path, 'w').write(s)
    for k, cfg in ks: print(k.name, cfg, 'instrs', k.nins, 'vgpr', k.maxv + 1, 'agpr', k.maxa + 1, 'sgpr', k.maxs + 1)

if __name__ == '__main__':
    out = sys.argv[1] if len(sys.argv) > 1 else 'adaLN_cond__spectral_gfnet__glu_gated_bilinear__prompt.s'
    if len(sys.argv) > 2 and sys.argv[2] == 'stamps': STAMPS = True
    build(out)
```

```python
import sys, math, os
import gen, gen2
from gen import *
from gen2 import *
from gen import mark, stamp_begin, stamp_end

GR = WS_END2
YT = GR + 0x10000
YT_ST = 10496
WS_END4 = YT + 256 * YT_ST
EPOCH = 0x8000
NPF = 9
XNT = ' nt' if os.environ.get('XNT') == '1' else ''

def tag_issue(k, srd, vz, vt):
    k.I(f'buffer_load_dwordx2 {vr(vt,2)}, v{vz}, s[{srd}:{srd+3}], 0 offen sc1')
def tag_check(k, name, srd, vz, vt, s_tag):
    k.I('s_mov_b32 s3, 0x40000')
    k.waitcnt(vm=0)
    k.label(f'L{name}')
    k.I(f'v_readfirstlane_b32 s{s_tag+1}, v{vt+1}')
    k.I(f'v_readfirstlane_b32 s{s_tag}, v{vt}')
    k.I(f's_cmp_eq_u32 s{s_tag+1}, 1')
    k.I(f's_cbranch_scc1 L{name}_o')
    k.I('s_sub_u32 s3, s3, 1')
    k.I(f's_cbranch_scc1 L{name}_o')
    k.I('s_sleep 2')
    tag_issue(k, srd, vz, vt)
    k.waitcnt(vm=0)
    k.I(f's_branch L{name}')
    k.label(f'L{name}_o')

def role_mod4(k, lexit):
    va = VAlloc(1)
    vrw = va.get(); voff = va.get(); vc = va.get(5); vw = va.get(20, 4); acc = va.get(8, 4); t0 = va.get(); t1 = va.get(); vco = va.get()
    vz = va.get(); vt = va.get(2, 2)
    k.I(f'v_lshrrev_b32 v{vrw}, 3, v0')
    k.I(f'v_mul_u32_u24 v{voff}, 7680, v{vrw}')
    k.I(f'v_and_b32 v{t0}, 7, v0')
    k.I(f'v_lshl_add_u32 v{voff}, v{t0}, 4, v{voff}')
    k.I(f'v_lshlrev_b32 v{vco}, 1, v{vrw}')
    k.I(f'v_mov_b32 v{vz}, 0')
    k.I('s_lshl_b32 s23, s20, 7')
    k.I(f's_mul_i32 s22, s21, {160*7680}')
    k.I('s_add_u32 s23, s23, s22')
    k.I('s_mul_i32 s22, s21, 320')
    k.srd(24, 10, D * 6 * D * 2)
    k.srd(28, 8, D * 2)
    mark(k, 1)
    for i in range(5):
        k.I(f'buffer_load_dwordx4 {vr(vw+4*i,4)}, v{voff}, s[24:27], s23 offen nt')
        if i < 4: k.I(f's_add_u32 s23, s23, {32*7680}')
        if i == 0:
            for j in range(5): k.I(f'buffer_load_ushort v{vc+j}, v{vco}, s[28:31], s22 offen offset:{64*j}')
    mark(k, 2)
    k.srd(32, 4, 4 * 960 * 16, GR)
    k.srd(52, 56, 256)
    up = va.get(8, 2)
    tt = va.get(5)
    R = range(5)
    for i in R: k.I(f'v_lshlrev_b32 v{vc+i}, 16, v{vc+i}')
    tag_issue(k, 52, vz, vt)
    mark(k, 3)
    for i in R: k.I(f'v_mul_f32 v{tt+i}, {fhex(-math.log2(math.e))}, v{vc+i}')
    for i in R: k.I(f'v_exp_f32 v{tt+i}, v{tt+i}')
    for i in R: k.I(f'v_add_f32 v{tt+i}, 1.0, v{tt+i}')
    for i in R: k.I(f'v_rcp_f32 v{tt+i}, v{tt+i}')
    for i in R: k.I(f'v_mul_f32 v{vc+i}, v{vc+i}, v{tt+i}')
    for i in R: k.I(f'v_cvt_pk_bf16_f32 v{vc+i}, v{vc+i}, v{vc+i}')
    sv = va.get(10, 2)
    for i in R: k.I(f'v_and_b32 v{sv+2*i}, 0xffff0000, v{vc+i}')
    for i in R:
        for j in range(4):
            k.I(f'v_lshlrev_b32 v{up+2*j}, 16, v{vw+4*i+j}')
            k.I(f'v_and_b32 v{up+2*j+1}, 0xffff0000, v{vw+4*i+j}')
        for j in range(4):
            if i == 0: k.I(f'v_pk_mul_f32 {vr(acc+2*j,2)}, {vr(up+2*j,2)}, {vr(sv,2)} op_sel_hi:[1,0]')
            else: k.I(f'v_pk_fma_f32 {vr(acc+2*j,2)}, {vr(up+2*j,2)}, {vr(sv+2*i,2)}, {vr(acc+2*j,2)} op_sel_hi:[1,0,1]')
    for j in range(8): k.I(f'v_add_f32_dpp v{acc+j}, v{acc+j}, v{acc+j} row_ror:8 row_mask:0xf bank_mask:0xf')
    k.I(f'v_lshrrev_b32 v{t1}, 4, v0')
    k.I(f'v_lshlrev_b32 v{t1}, 8, v{t1}')
    k.I(f'v_lshl_add_u32 v{t1}, v{t0}, 5, v{t1}')
    k.I('s_mov_b32 exec_lo, 0x00ff00ff')
    k.I('s_mov_b32 exec_hi, 0x00ff00ff')
    k.I(f'ds_write_b128 v{t1}, {vr(acc,4)}')
    k.I(f'ds_write_b128 v{t1}, {vr(acc+4,4)} offset:16')
    k.I('s_mov_b64 exec, -1')
    k.I('v_readfirstlane_b32 s38, v0')
    k.I(f'v_lshlrev_b32 v{t0}, 2, v0')
    k.barrier()
    mark(k, 4)
    k.I('s_cmp_lg_u32 s38, 0')
    k.I(f's_cbranch_scc1 {lexit}')
    for j in range(8):
        k.I(f'ds_read2st64_b32 {vr(vw+2*j,2)}, v{t0} offset0:{2*j} offset1:{2*j+1}')
    k.I('s_sub_u32 s39, s20, 10')
    k.I('s_cmp_lt_u32 s39, 10')
    k.I('s_cselect_b32 s41, 1.0, 0')
    k.I('s_cmp_eq_u32 s21, 0')
    k.I('s_cselect_b32 s41, s41, 0')
    k.I(f's_mul_i32 s45, s21, {960*16}')
    k.I('s_lshl_b32 s44, s20, 8')
    k.I('s_add_u32 s45, s45, s44')
    k.I('s_mov_b32 s40, 0x07060503')
    k.I('s_mov_b32 s42, 0x07060502')
    k.I('s_mov_b32 s43, 0x07060501')
    for j in range(4): k.I(f'v_pk_add_f32 {vr(vw+2*j,2)}, {vr(vw+2*j,2)}, {vr(vw+8+2*j,2)}')
    for j in range(2): k.I(f'v_pk_add_f32 {vr(vw+2*j,2)}, {vr(vw+2*j,2)}, {vr(vw+4+2*j,2)}')
    k.I(f'v_pk_add_f32 {vr(vw,2)}, {vr(vw,2)}, {vr(vw+2,2)}')
    k.I(f'v_add_f32 v{vw}, v{vw}, v{vw+1}')
    k.I(f'v_add_f32 v{vw}, s41, v{vw}')
    for j in range(1, 4): k.I(f'v_mov_b32_dpp v{vw+j}, v{vw} quad_perm:[{j},{j},{j},{j}] row_mask:0xf bank_mask:0xf')
    for j, sel in enumerate((40, 42, 43)): k.I(f'v_perm_b32 v{vw+j}, v{vw+j}, v{vw+3}, s{sel}')
    mark(k, 5)
    tag_check(k, 'A_tag', 52, vz, vt, 58)
    mark(k, 6)
    k.I(f'v_mov_b32 v{vw+3}, s58')
    k.I('s_mov_b32 exec_lo, 0x11111111')
    k.I('s_mov_b32 exec_hi, 0x11111111')
    k.I(f'buffer_store_dwordx4 {vr(vw,4)}, v{t0}, s[32:35], s45 offen sc1')

def unpack_gran(k, g, t, s1, s2):
    k.I(f'v_perm_b32 v{t}, v{g}, v{g+1}, s{s1}')
    k.I(f'v_perm_b32 v{g+3}, v{t}, v{g+2}, s{s2}')

class Rec:
    def __init__(self): self.l = []
    def I(self, t, **kw): self.l.append(t)
def rec(fn, *a):
    r = Rec(); fn(r, *a); return r.l
def merge(k, main, fill, per):
    fill = list(fill)
    for m in main:
        k.I(m)
        for _ in range(per):
            if fill: k.I(fill.pop(0))
    for t in fill: k.I(t)

def role_B4(k, boff):
    PL = 5184; ML = 4 * PL
    if boff is None:
        k.I('s_mov_b32 s39, s2')
        k.I('s_mov_b32 s2, s20')
    else: k.I(f's_sub_u32 s2, s2, {boff}')
    va = VAlloc(2)
    vl = va.get(); xs = va.get(20, 4); md = va.get(20, 4); vo = va.get()
    for i in range(20): k.I(f'v_mov_b32 v{xs+i}, 0')
    ids2(k, vl)
    k.I('s_mul_i32 s28, s23, 1280')
    k.I(f's_add_u32 s29, s28, {32*1280}')
    k.I(f'v_lshlrev_b32 v{vo}, 1, v{vl}')
    def xloads():
        k.srd(40, 6, S * D * 2)
        for e in range(10):
            k.I(f'buffer_load_short_d16_hi v{xs+2*e}, v{vo}, s[40:43], s28 offen offset:{128*e}{XNT}')
            k.I(f'buffer_load_short_d16_hi v{xs+2*e+1}, v{vo}, s[40:43], s29 offen offset:{128*e}{XNT}')
    fi = va.get(); fq = va.get(); fq4 = va.get(); vi = va.get(); vq = va.get()
    k.I(f'v_and_b32 v{vi}, 15, v{vl}')
    k.I(f'v_lshrrev_b32 v{vq}, 4, v{vl}')
    k.I(f'v_cvt_f32_u32 v{fi}, v{vi}')
    k.I(f'v_cvt_f32_u32 v{fq}, v{vq}')
    k.I(f'v_mul_f32 v{fq4}, 4.0, v{fq}')
    va.n = (va.n + 3) // 4 * 4
    r_ = Rec(); f40 = gen_f40(r_, va, fi, fq, False)
    XA = env('X_AT', 160)
    def poison():
        if PAR or not env('POISON', 1) or (G6 and env('P_MODR', 1)): return
        for j in range(4): k.I(f'v_mov_b32 v{md+j}, -1')
        k.I(f'v_lshlrev_b32 v{md+4}, 4, v0')
        k.I('s_lshr_b32 s30, s21, 2')
        k.I('s_and_b32 s31, s30, 2')
        k.I('s_add_u32 s30, s30, s31')
        k.I('s_lshl_b32 s31, s20, 3')
        k.I('s_add_u32 s30, s30, s31')
        k.I('s_lshl_b32 s30, s30, 2')
        k.I('s_and_b32 s31, s21, 3')
        k.I('s_add_u32 s30, s30, s31')
        k.I('s_mul_i32 s30, s30, 5120')
        k.I(f's_add_u32 s30, s30, {H2}')
        k.I('s_add_u32 s40, s4, s30')
        k.I('s_addc_u32 s41, s5, 0')
        k.I('s_mov_b32 s42, 5120')
        k.I('s_mov_b32 s43, 0x00020000')
        k.I('s_movk_i32 s30, 0x1000')
        PST = ' sc1' if env('P_SC1', 1) else ''
        k.I(f'buffer_store_dwordx4 {vr(md,4)}, v{md+4}, s[40:43], 0 offen{PST}')
        k.I(f'buffer_store_dwordx4 {vr(md,4)}, v{md+4}, s[40:43], s30 offen{PST}')
        if G6:
            k.I('s_lshl_b32 s31, s20, 4')
            k.I('s_add_u32 s31, s31, s21')
            k.I('s_mul_i32 s31, s31, 10304')
            k.I(f's_add_u32 s31, s31, {YT}')
            k.I('s_add_u32 s40, s4, s31')
            k.I('s_addc_u32 s41, s5, 0')
            k.I('s_mov_b32 s42, 10304')
            k.I('s_mov_b32 s43, 0x00020000')
            k.I('s_movk_i32 s31, 0x2000')
            for so_ in ('0', 's30', 's31'): k.I(f'buffer_store_dwordx4 {vr(md,4)}, v{md+4}, s[40:43], {so_} offen{PST}')
    PA = env('P_AT', 20)
    for t in r_.l[:min(PA, XA)]: k.I(t)
    if PA <= XA: poison()
    for t in r_.l[min(PA, XA):XA]: k.I(t)
    xloads()
    for t in r_.l[XA:]: k.I(t)
    va.n = f40 + 62
    mark(k, 1)
    k.srd(44, 4, XT_SZ, XT)
    k.srd(48, 4, 4 * 960 * 16, GR)
    k.srd(52, 56, 256)
    cs, sn = gen_tw640(k, va, fi, fq4)
    va.n = sn + 12
    f16 = va.get(8, 2); tmp = va.get(8, 2); ta = md
    dat = va.get(12, 2)
    k.I(f'v_mov_b32 v{dat+10}, 0'); k.I(f'v_mov_b32 v{dat+11}, 0')
    tag_issue(k, 52, dat + 10, dat)
    k.I(f'v_lshrrev_b32 v{ta}, 1, v{vi}')
    k.I(f'v_cvt_f32_u32 v{ta}, v{ta}')
    k.I(f'v_and_b32 v{ta+1}, 1, v{vi}')
    k.I(f'v_cvt_f32_u32 v{ta+1}, v{ta+1}')
    k.I(f'v_mul_f32 v{ta+1}, 0x3e800000, v{ta+1}')
    for U in range(2):
        k.I(f'v_add_f32 v{ta+2}, {fhex(8.0*U)}, v{ta}')
        k.I(f'v_mul_f32 v{ta+2}, {fhex(1.0/16)}, v{ta+2}')
        k.I(f'v_fma_f32 v{ta+3}, v{fq4}, v{ta+2}, v{ta+1}')
        for j in range(4): k.I(f'v_fmamk_f32 v{tmp+4+j}, v{ta+2}, {fhex(float(j))}, v{ta+3}')
        for j in range(4):
            k.I(f'v_cos_f32 v{tmp+j}, v{tmp+4+j}')
            k.I(f'v_sin_f32 v{tmp+4+j}, v{tmp+4+j}')
        for j in range(4): k.I(f'v_cvt_pk_bf16_f32 v{f16+4*U+j}, v{tmp+2*j}, v{tmp+2*j+1}')
    wa = fi; ru = fq; rv = fq4; so = vo
    k.I(f'v_mul_u32_u24 v{wa}, 80, v{vq}')
    k.I(f'v_add_lshl_u32 v{wa}, v{wa}, v{vi}, 3')
    k.I(f's_mul_i32 s31, s22, {PL}')
    k.I(f'v_add_u32 v{wa}, s31, v{wa}')
    k.I(f'v_and_b32 v{ta}, 1, v0')
    k.I(f'v_lshrrev_b32 v{ta+1}, 1, v0')
    k.I(f'v_mul_u32_u24 v{ru}, {2*PL}, v{ta}')
    k.I(f'v_sub_u32 v{rv}, 384, v{ta+1}')
    k.I(f'v_lshl_add_u32 v{rv}, v{rv}, 3, v{ru}')
    k.I(f'v_lshl_add_u32 v{ru}, v{ta+1}, 3, v{ru}')
    k.I(f'v_lshlrev_b32 v{so}, 13, v{ta+1}')
    k.I(f'v_lshl_add_u32 v{so}, v{ta}, 4, v{so}')
    gA = 1; gB = vq; lB = vi; rm = vl
    k.I('s_mul_i32 s31, s22, 1280')
    k.I(f'v_lshl_add_u32 v{gA}, v{vl}, 4, s31')
    k.I('s_add_u32 s31, s31, 1024')
    k.I(f'v_lshl_add_u32 v{lB}, v{vi}, 4, s31')
    k.I(f'v_mul_u32_u24 v{gB}, {960*16}, v{vq}')
    k.I(f'v_add_u32 v{gB}, v{gB}, v{lB}')
    k.I(f'v_lshlrev_b32 v{rm}, 2, v{vl}')
    k.I(f'v_add_u32 v{rm}, {ML}, v{rm}')
    for p in range(1, 4): k.I(f's_mov_b32 s{35+p}, {960*16*p}')
    k.I('s_mov_b32 s60, 0x04000c0c')
    k.I('s_mov_b32 s61, 0x0706000c')
    mark(k, 2)
    sm = md; sq = md + 2; rr = md + 4; nmr = md + 6
    k.I(f'v_pk_add_f32 {vr(sm,2)}, {vr(xs,2)}, {vr(xs+2,2)}')
    k.I(f'v_pk_mul_f32 {vr(sq,2)}, {vr(xs,2)}, {vr(xs,2)}')
    k.I(f'v_pk_fma_f32 {vr(sq,2)}, {vr(xs+2,2)}, {vr(xs+2,2)}, {vr(sq,2)}')
    for e in range(2, 10):
        k.I(f'v_pk_add_f32 {vr(sm,2)}, {vr(sm,2)}, {vr(xs+2*e,2)}')
        k.I(f'v_pk_fma_f32 {vr(sq,2)}, {vr(xs+2*e,2)}, {vr(xs+2*e,2)}, {vr(sq,2)}')
    wave_reduce_to_sgpr(k, [sm, sm+1, sq, sq+1], [32, 33, 34, 35])
    ln_scalars(k, 32, 34, rr, nmr, tmp)
    for e in range(10):
        k.I(f'v_pk_fma_f32 {vr(xs+2*e,2)}, {vr(xs+2*e,2)}, {vr(rr,2)}, {vr(nmr,2)}')
    mark(k, 3)
    tag_check(k, 'B_tag', 52, dat + 10, dat, 58)
    mark(k, 4)
    tx = tmp
    k.I('s_mov_b32 s3, 0x40000')
    k.label('LB_poll')
    for p in range(4):
        k.I(f'buffer_load_dwordx4 {vr(md+4*p,4)}, v{gA}, s[48:51], {"s%d" % (35+p) if p else 0} offen sc1')
    k.I(f'buffer_load_dwordx4 {vr(md+16,4)}, v{gB}, s[48:51], 0 offen sc1')
    for p in range(5): k.I(f'v_xor_b32 v{tx+p}, s58, v{md+4*p+3}')
    k.I(f'v_or3_b32 v{tx}, v{tx}, v{tx+1}, v{tx+2}')
    k.I(f'v_or3_b32 v{tx}, v{tx}, v{tx+3}, v{tx+4}')
    k.I(f'v_cmp_ne_u32 vcc, 0, v{tx}')
    for p in (4, 0, 1, 2, 3): unpack_gran(k, md+4*p, tx+1+p, 60, 61)
    k.I('s_cbranch_vccz LB_go')
    k.I(f's_sleep {env("SLEEP", 2)}')
    k.I('s_sub_u32 s3, s3, 1')
    k.I('s_cbranch_scc0 LB_poll')
    k.label('LB_go')
    mark(k, 5)
    b_ = md + 16
    for j in range(4): k.I(f'v_mov_b32 v{tx+j}, v{b_+j}')
    for p in (0, 2):
        k.I(f'v_pk_add_f32 {vr(md+p,2)}, {vr(md+p,2)}, {vr(md+4+p,2)}')
        k.I(f'v_pk_add_f32 {vr(md+8+p,2)}, {vr(md+8+p,2)}, {vr(md+12+p,2)}')
    for j in range(4): k.I(f'v_permlane32_swap_b32 v{tx+j}, v{b_+j}')
    for p in (0, 2): k.I(f'v_pk_add_f32 {vr(md+p,2)}, {vr(md+p,2)}, {vr(md+8+p,2)}')
    for p in (0, 2): k.I(f'v_pk_add_f32 {vr(b_+p,2)}, {vr(b_+p,2)}, {vr(tx+p,2)}')
    k.I(f'ds_write_b128 v{gA}, {vr(md,4)} offset:{ML}')
    for j in range(4): k.I(f'v_mov_b32 v{tx+j}, v{b_+j}')
    for j in range(4): k.I(f'v_permlane16_swap_b32 v{tx+j}, v{b_+j}')
    for p in (0, 2): k.I(f'v_pk_add_f32 {vr(b_+p,2)}, {vr(b_+p,2)}, {vr(tx+p,2)}')
    k.I(f'ds_write_b128 v{lB}, {vr(b_,4)} offset:{ML}')
    k.barrier()
    mark(k, 6)
    for p in range(5):
        k.I(f'ds_read2st64_b32 {vr(md+4*p,2)}, v{rm} offset0:{10+2*p} offset1:{11+2*p}')
        k.I(f'ds_read2st64_b32 {vr(md+4*p+2,2)}, v{rm} offset0:{2*p} offset1:{2*p+1}')
    for e in range(10):
        h_ = e & 1; p = e // 2
        if h_ == 0: k.I(f'v_pk_fma_f32 {vr(xs+2*e,2)}, {vr(xs+2*e,2)}, {vr(md+4*p,2)}, {vr(md+4*p+2,2)} op_sel_hi:[1,0,0]')
        else:
            for j in range(2): k.I(f'v_fma_f32 v{xs+2*e+j}, v{xs+2*e+j}, v{md+4*p+1}, v{md+4*p+3}')
        if e >= 1: k.I(f'v_cvt_pk_bf16_f32 v{dat+e-1}, v{xs+2*e-2}, v{xs+2*e-1}')
    k.I(f'v_cvt_pk_bf16_f32 v{dat+9}, v{xs+18}, v{xs+19}')
    d1 = xs; b2 = xs + 24; d2 = f40
    def s1(T):
        o = []
        for kap in range(3):
            for c in range(2):
                dd = vr(d1 + (2*T+c)*4, 4)
                o.append(f'{MF16} {dd}, {vr(dat+4*kap,4)}, {vr(f40+(2*T+c)*10+4*kap,4)}, {dd if kap else 0}')
        return o
    cm = [rec(cmul4, d1+8*T, d1+8*T+4, cs+4*T, sn+4*T, b2+4*T, tmp, False) for T in range(3)]
    def s2(T): return [f'{MF16} {vr(d2+(2*T+U)*4,4)}, {vr(f16+4*U,4)}, {vr(b2+4*T,4)}, 0' for U in range(2)]
    def wr(T): return [f'ds_write_b64 v{wa}, {vr(d2+(2*T+U)*4+2*h,2)} offset:{(16*T+320*U+40*h)*8}' for U in range(2) for h in range(2)]
    for t in s1(0) + s1(1) + s1(2) + cm[0] + s2(0) + cm[1] + s2(1) + wr(0) + cm[2] + s2(2) + wr(1): k.I(t)
    mark(k, 7)
    k.I('s_mov_b64 exec, 1')
    k.I(f'ds_write_b64 v{wa}, {vr(d2,2)} offset:5120')
    k.I('s_mov_b32 exec_lo, 0x00ff00ff')
    k.I('s_mov_b32 exec_hi, 0x00ff00ff')
    for t in wr(2): k.I(t)
    k.I('s_mov_b64 exec, -1')
    k.barrier()
    mark(k, 8)
    rd = d1; oc = b2
    for rho in range(3):
        for pr in range(2):
            k.I(f'ds_read_b64 {vr(rd+8*rho+4*pr,2)}, v{ru} offset:{pr*PL+1024*rho}')
            k.I(f'ds_read_b64 {vr(rd+8*rho+4*pr+2,2)}, v{rv} offset:{pr*PL+1024*(2-rho)}')
    for rho in range(3):
        for pr in range(2):
            u = rd+8*rho+4*pr; v = u+2
            k.I(f'v_pk_add_f32 {vr(tmp+4*pr,2)}, {vr(u,2)}, {vr(v,2)}')
            k.I(f'v_pk_add_f32 {vr(tmp+4*pr+2,2)}, {vr(u,2)}, {vr(v,2)} neg_lo:[0,1] neg_hi:[0,1]')
        for pr in range(2):
            k.I(f'v_cvt_pk_bf16_f32 v{oc+4*rho+pr}, v{tmp+4*pr}, v{tmp+4*pr+1}')
            k.I(f'v_cvt_pk_bf16_f32 v{oc+4*rho+2+pr}, v{tmp+4*pr+3}, -v{tmp+4*pr+2}')
        if PAR: k.I(f'v_and_b32 v{oc+4*rho}, -2, v{oc+4*rho}')
        k.I(f'buffer_store_dwordx4 {vr(oc+4*rho,4)}, v{so}, s[44:47], s{25+rho} offen{" sc1" if env("XT_SC1", 0) else ""}')
    if PA > XA:
        md = f40
        poison()
    if gen.STAMPS: k.I(f's_add_u32 s2, s2, {boff}' if boff is not None else 's_mov_b32 s2, s39')

G6 = env('GEN6', 0)
PAR = env('PARITY', 0)
OLDM = env('OLD_MODR', 0)
LOOPM = env('LOOPM', 1) if G6 else 0
CNT = dict(wd1=1, modr=80 if (OLDM or LOOPM) else 160, wt=N_WT, wgu=N_WGU, wd=N_WD)
K1_SIDE = os.environ.get('K1_SIDE', 'wt,modr').split(',')
C_SIDE = [r for r in ('wgu', 'wd') if r not in K1_SIDE]

MISC_EXTRA = []
def gen_K1():
    k = Kernel('ka_kernel')
    stamp_begin(k)
    k.I(f's_load_dwordx4 s[56:59], s[0:1], {KA["dbg"]}')
    k.I(f's_load_dwordx4 s[8:11], s[0:1], {KA["c"]}')
    k.I(f's_load_dwordx2 s[4:5], s[0:1], {KA["ws"]}')
    k.I(f's_load_dwordx2 s[6:7], s[0:1], {KA["x"]}')
    k.I(f's_load_dwordx4 s[12:15], s[0:1], {KA["wr"]}')
    if 'wgu' in K1_SIDE or env('RAW_PF', 0): k.I(f's_load_dwordx4 s[16:19], s[0:1], {KA["wg"]}')
    if 'wd' in K1_SIDE or 'wd1' in K1_SIDE or env('RAW_PF', 0): k.I(f's_load_dwordx2 s[62:63], s[0:1], {KA["wd"]}')
    boff = 88; n = boff + 256; lo = {}
    for r in K1_SIDE:
        lo[r] = n; n += CNT[r]
    total = n
    ISO = env('ISO', 2 if PAR else 0)
    if ISO:
        TABLE = [(256, 128, 'B', 0), (512, 128, 'B', 128), (128, 128, 'wgu', 0), (384, 128, 'wt', 0), (640, 32, 'wgu', 128),
                 (672, 60, 'mod', 120), (732, 1, 'wd1', 0), (0, 8, 'misc', 0)]
        total = 733
        if ISO == 2:
            TABLE = [(256, 128, 'B', 0), (512, 128, 'B', 128), (128, 128, 'wgu', 0), (384, 128, 'wt', 0), (640, 32, 'wgu', 128),
                     (673, 120, 'mod', 120), (672, 1, 'wd1', 0), (0, 8, 'misc', 0)]
            total = 793
        if ISO == 3:
            TABLE = [(256, 128, 'B', 0), (512, 128, 'B', 128), (128, 128, 'wt', 0), (384, 128, 'wgu', 0), (640, 32, 'wgu', 128),
                     (673, 120, 'mod', 120), (672, 1, 'wd1', 0), (0, 8, 'misc', 0)]
            total = 793
    st = k.save_state()
    k.I('s_cmp_lg_u32 s2, 0')
    k.I('s_cbranch_scc1 LA_n0')
    k.I('v_mov_b32 v2, 0')
    k.I(f'v_mov_b32 v3, {EPOCH}')
    k.I('v_mov_b32 v5, 1')
    k.I(f's_load_dword s30, s[58:59], {EPOCH}')
    k.srd(24, 58, 0x10000)
    k.srd(52, 56, 256)
    k.I('v_cmp_eq_u32 vcc, 0, v0')
    k.I('s_and_b64 exec, exec, vcc')
    k.I('s_cbranch_execz LA_misc')
    k.I('s_add_u32 s30, s30, 1')
    k.I('v_mov_b32 v4, s30')
    k.I('buffer_store_dwordx2 v[4:5], v2, s[52:55], 0 offen sc1')
    k.I('buffer_store_dword v4, v3, s[24:27], 0 offen sc1')
    k.I('s_branch LA_misc')
    k.label('LA_n0', fresh=True); k.restore_state(st)
    k.I('s_sub_u32 s20, s2, 8')
    k.I(f's_cmp_lt_u32 s20, {120 if ISO else 80}')
    k.I('s_cbranch_scc0 LA_disp')
    k.raw('LA_mod:')
    k.I('s_mov_b32 s61, s20')
    k.I('s_and_b32 s21, s20, 3')
    k.I('s_lshr_b32 s20, s20, 2')
    def poison_modr():
        k.I('s_mov_b64 exec, -1')
        k.I('s_sub_u32 s46, s61, 80')
        k.I('s_cmp_ge_u32 s46, 160')
        k.I('s_cbranch_scc1 LA_np')
        for j in range(4): k.I(f'v_mov_b32 v{100+j}, -1')
        k.I('v_lshlrev_b32 v104, 4, v0')
        k.srd(48, 4, WS_END4)
        k.I('s_lshl_b32 s47, s46, 14')
        k.I(f's_add_u32 s47, s47, {YT}')
        for j in range(4):
            k.I('buffer_store_dwordx4 v[100:103], v104, s[48:51], s47 offen sc1')
            k.I('s_add_u32 s47, s47, 4096')
        k.I('s_mul_i32 s47, s46, 205')
        k.I('s_lshr_b32 s47, s47, 10')
        k.I('s_mul_i32 s47, s47, 40960')
        k.I('s_lshl_b32 s46, s46, 13')
        k.I('s_add_u32 s47, s47, s46')
        k.I(f's_add_u32 s47, s47, {H2}')
        for j in range(2):
            k.I('buffer_store_dwordx4 v[100:103], v104, s[48:51], s47 offen sc1')
            k.I('s_add_u32 s47, s47, 4096')
        k.label('LA_np')
    PM = env('P_MODR', 1) if G6 and not PAR else 0
    if PM == 2: poison_modr()
    role_mod4(k, 'LA_end')
    k.label('LA_end')
    if LOOPM and ISO < 2:
        k.I('s_mov_b64 exec, -1')
        k.I(f's_sub_u32 s20, s61, {120 if ISO else 0}')
        k.I(f's_cmp_ge_u32 s20, {60 if ISO else 80}')
        k.I('s_cbranch_scc1 LA_end1')
        k.I(f's_add_u32 s20, s61, {60 if ISO else 160}')
        k.barrier(vm=None)
        k.I('s_branch LA_mod')
        k.label('LA_end1')
    if PM == 1: poison_modr()
    stamp_end(k, 0, 4)
    k.label('LA_exit')
    k.I('s_endpgm')
    k.label('LA_disp', fresh=True); k.restore_state(st)
    if ISO:
        for (lo_, n_, role, base) in TABLE:
            k.I(f's_sub_u32 s20, s2, {lo_ - base}')
            k.I(f's_sub_u32 s21, s2, {lo_}')
            k.I(f's_cmp_lt_u32 s21, {n_}')
            k.I(f's_cbranch_scc1 LA_{role}')
        k.I('s_endpgm')
    else:
        k.I('s_cmp_lt_u32 s2, 8')
        k.I('s_cbranch_scc1 LA_misc')
        k.I(f's_sub_u32 s20, s2, {boff}')
        k.I('s_cmp_lt_u32 s20, 256')
        k.I('s_cbranch_scc1 LA_B')
        for r in K1_SIDE:
            if r == 'modr' and not OLDM: continue
            k.I(f's_sub_u32 s20, s2, {lo[r]}')
            k.I(f's_cmp_lt_u32 s20, {CNT[r]}')
            k.I(f's_cbranch_scc1 LA_{r}')
        k.I(f's_cmp_ge_u32 s2, {total}')
        k.I('s_cbranch_scc1 LA_exit')
        k.I(f's_sub_u32 s20, s2, {lo["modr"] - 80}')
        k.I('s_branch LA_mod')
    k.label('LA_B', fresh=True); k.restore_state(st)
    role_B4(k, None if ISO else boff)
    stamp_end(k, 0, 4)
    k.I('s_endpgm')
    def modr6():
        k.I('s_and_b32 s21, s20, 7')
        k.I('s_lshl_b32 s21, s21, 1')
        k.I('s_bfe_u32 s22, s20, 0x10003')
        k.I('s_add_u32 s21, s21, s22')
        k.I('s_and_b32 s20, s20, 0x70')
        k.I('s_add_u32 s20, s20, s21')
        k.I('s_add_u32 s20, s20, 40')
        vw, t0, t1 = role_mod(k, 8, 10, 'LA_mr_end')
        k.I('s_lshl_b32 s45, s20, 7')
        k.I(f'v_lshl_add_u32 v{t0}, v0, 2, s45')
        k.I('s_mov_b32 exec_hi, 0')
        k.I(f'buffer_store_dword v{vw}, v{t0}, s[32:35], 0 offen')
        k.label('LA_mr_end')
    fns = dict(wd=lambda: role_wd(k, 62), wgu=lambda: role_wgu(k, 16, 18), wt=lambda: role_wt(k, 12, 14), modr=modr6,
               wd1=lambda: (k.I('s_movk_i32 s20, 95'), role_wd(k, 62)))
    for r in K1_SIDE:
        if r == 'modr' and not OLDM: continue
        k.label(f'LA_{r}', fresh=True); k.restore_state(st)
        fns[r]()
        if r == 'wt' and env('RAW_PF', 0):
            k.I('s_mov_b64 exec, -1')
            k.I(f's_sub_u32 s20, s2, {lo["wt"]}')
            k.I('s_cmp_ge_u32 s20, 96')
            k.I('s_cbranch_scc1 LA_wt2')
            role_wd(k, 62, pf=True)
            k.label('LA_wt2')
        stamp_end(k, 0, 4)
        k.I('s_endpgm')
    k.label('LA_misc', fresh=True); k.restore_state(st)
    k.I('s_mov_b64 exec, -1')
    if G6:
        k.srd(24, 4, 88 * 128, FLAGS)
        k.I('v_lshlrev_b32 v3, 7, v0')
        k.I('v_mov_b32 v2, 0')
        k.I('buffer_store_dword v2, v3, s[24:27], 0 offen')
        k.srd(32, 4, 4 * D * 4, MODN + 2 * D * 4)
        for j in range(4): k.I(f'v_mov_b32 v{48+j}, -1')
        k.I('v_lshlrev_b32 v3, 4, v0')
        k.I('s_lshl_b32 s30, s2, 12')
        k.I('buffer_store_dwordx4 v[48:51], v3, s[32:35], s30 offen sc1')
        if PAR:
            for j in range(4): k.I(f'v_mov_b32 v{52+j}, 0')
            k.srd(32, 4, 8192, XT + XT_SZ)
            k.I('buffer_store_dwordx4 v[52:55], v3, s[32:35], s30 offen')
        else:
            k.srd(32, 4, 16384, YT + 160 * 16384)
            k.I('buffer_store_dwordx4 v[48:51], v3, s[32:35], s30 offen sc1')
    k.I('s_getpc_b64 s[28:29]')
    k.raw('LA_pc:')
    k.I('s_sub_u32 s28, s28, LA_pc-ka_kernel')
    k.I('s_subb_u32 s29, s29, 0')
    k.I('v_lshlrev_b32 v60, 4, v0')
    k.I('v_mov_b32 v61, s29')
    for i in range(NPF):
        k.I('v_min_u32 v6, Lcode_end-ka_kernel-16, v60')
        k.I('v_add_co_u32 v6, vcc, s28, v6')
        k.I('v_addc_co_u32 v7, vcc, 0, v61, vcc')
        k.I(f'global_load_dwordx4 {vr(8+4*i,4)}, v[6:7], off')
        k.I('v_add_u32 v60, 0x1000, v60')
    k.waitcnt(vm=0, lgkm=0)
    if MISC_EXTRA:
        k.I('v_readfirstlane_b32 s30, v0')
        k.I('s_lshl_b32 s31, s2, 8')
        k.I('s_add_u32 s30, s30, s31')
        k.I('s_cmp_lg_u32 s30, 0x100')
        k.I('s_cbranch_scc1 LA_mend')
        MISC_EXTRA[0](k)
        k.label('LA_mend')
    stamp_end(k, 0, 4)
    k.I('s_endpgm')
    print('K1 roles', lo, total)
    return k, (total, 256, 40960 if 'wd' in K1_SIDE else 26112)

def role_modfin(k):
    k.I('s_lshl_b32 s20, s20, 8')
    k.I('v_add_u32 v1, s20, v0')
    k.I('v_lshlrev_b32 v2, 4, v1')
    k.srd(24, 4, 4 * 960 * 16, GR)
    for p in range(4):
        k.I(f's_mov_b32 s21, {960*16*p + 320*16}')
        k.I(f'buffer_load_dwordx4 {vr(4+4*p,4)}, v2, s[24:27], s21 offen')
    k.srd(28, 4, 32 * 256, FLAGS)
    k.I('v_lshlrev_b32 v3, 7, v1')
    k.I('v_mov_b32 v20, 0')
    k.I('buffer_store_dword v20, v3, s[28:31], 0 offen')
    k.srd(32, 4, 4 * D * 4, MODN + 2 * D * 4)
    k.I('s_mov_b32 s60, 0x04000c0c')
    k.I('s_mov_b32 s61, 0x0706000c')
    k.I(f'v_mov_b32 v22, {fhex(1.0 / (2.0 * S * D))}')
    k.I('v_cmp_gt_u32 vcc, 0xa0, v1')
    k.I('v_cndmask_b32 v22, 1.0, v22, vcc')
    k.I('v_subrev_u32 v21, 0x140, v1')
    k.I('v_cmp_gt_u32 vcc, 0xa0, v21')
    k.I('v_mov_b32 v23, 1.0')
    k.I('v_cndmask_b32 v23, 0, v23, vcc')
    for p in range(4): unpack_gran(k, 4+4*p, 21, 60, 61)
    for p in (0, 2):
        k.I(f'v_pk_add_f32 {vr(4+p,2)}, {vr(4+p,2)}, {vr(8+p,2)}')
        k.I(f'v_pk_add_f32 {vr(12+p,2)}, {vr(12+p,2)}, {vr(16+p,2)}')
    for p in (0, 2): k.I(f'v_pk_add_f32 {vr(4+p,2)}, {vr(4+p,2)}, {vr(12+p,2)}')
    for j in range(4): k.I(f'v_cvt_pk_bf16_f32 v{4+j}, v{4+j}, v{4+j}')
    for j in range(4): k.I(f'v_and_b32 v{4+j}, 0xffff0000, v{4+j}')
    for j in range(4): k.I(f'v_add_f32 v{4+j}, v23, v{4+j}')
    for j in range(4): k.I(f'v_cvt_pk_bf16_f32 v{4+j}, v{4+j}, v{4+j}')
    for j in range(4): k.I(f'v_and_b32 v{4+j}, 0xffff0000, v{4+j}')
    for j in range(4): k.I(f'v_mul_f32 v{4+j}, v22, v{4+j}')
    k.I('buffer_store_dwordx4 v[4:7], v2, s[32:35], 0 offen')

def gen_C4():
    k, (g, b, l) = gen_C()
    assert k.out[-2] == 'LC_exit:'
    k.out.pop(); k.out.pop()
    k.I('s_endpgm')
    k.label('LC_exit', fresh=True); k.vm = []; k.lg = []
    k.I(f's_load_dwordx2 s[4:5], s[0:1], {KA["ws"]}')
    k.I(f's_load_dwordx4 s[16:19], s[0:1], {KA["wg"]}')
    k.I(f's_load_dwordx2 s[62:63], s[0:1], {KA["wd"]}')
    st = k.save_state()
    n = 328; lo = {}
    for r in C_SIDE:
        lo[r] = n; n += CNT[r]
        k.I(f's_sub_u32 s20, s2, {lo[r]}')
        k.I(f's_cmp_lt_u32 s20, {CNT[r]}')
        k.I(f's_cbranch_scc1 LC_{r}')
    k.I('s_sub_u32 s20, s2, 321')
    k.I('s_cmp_ge_u32 s20, 3')
    k.I('s_cbranch_scc1 LC_x')
    role_modfin(k)
    k.label('LC_x')
    k.I('s_endpgm')
    fns = dict(wd=lambda: role_wd(k, 62), wgu=lambda: role_wgu(k, 16, 18))
    for r in C_SIDE:
        k.label(f'LC_{r}', fresh=True); k.restore_state(st)
        fns[r]()
        stamp_end(k, 2, 4)
        k.I('s_endpgm')
    print('C roles', lo, n)
    return k, (n if C_SIDE else 324, b, 40960 if 'wd' in C_SIDE else max(l, 24576))

KERNELS = (gen_K1, gen_C4, gen_DEF)
if __name__ == '__main__':
    out = sys.argv[1] if len(sys.argv) > 1 else 'adaLN_cond__spectral_gfnet__glu_gated_bilinear__prompt.s'
    if len(sys.argv) > 2 and sys.argv[2] == 'stamps': gen.STAMPS = True
    build(out, KERNELS)
```

```python
import sys, os
os.environ.setdefault('K1_SIDE', 'wgu,wt,modr,wd1')
os.environ['GEN6'] = '1'
os.environ['PARITY'] = '1'
if os.environ.get('HALF') == '1': os.environ.setdefault('CNT_wgu', '80')
import gen, gen2, gen4, gen5
from gen import *
from def10 import gen_DEF10
KERNELS = (gen5.gen_K15, gen_DEF10)
if __name__ == '__main__':
    out = sys.argv[1] if len(sys.argv) > 1 else 'adaLN_cond__spectral_gfnet__glu_gated_bilinear__prompt.s'
    if len(sys.argv) > 2 and sys.argv[2] == 'stamps': gen.STAMPS = True
    build(out, KERNELS)
```

```python
import os, math
import gen
from gen import *
from gen2 import *
from gen4 import YT, YT_ST, WS_END4, GR, unpack_gran
from gen import mark, stamp_begin, stamp_end

class Rec:
    def __init__(self): self.l = []
    def I(self, t, **kw): self.l.append(t)
def rec(fn, *a):
    r = Rec(); fn(r, *a); return r.l
def merge(k, main, fill, per):
    fill = list(fill)
    for m in main:
        k.I(m)
        for _ in range(per):
            if fill: k.I(fill.pop(0))
    return fill

import re as _re
def unpk(t):
    if isinstance(t, tuple) or not t.startswith('v_pk_'): return [t]
    m = _re.match(r'v_pk_(\w+)_f32 (.*)$', t)
    regs = [int(x) for x in _re.findall(r'v\[(\d+):\d+\]', m.group(2))]
    if m.group(1) == 'fma' and regs[0] == regs[3]: return [f'v_fmac_f32 v{regs[0]+j}, v{regs[1]+j}, v{regs[2]+j}' for j in range(2)]
    if m.group(1) == 'fma': return [f'v_fma_f32 v{regs[0]+j}, v{regs[1]+j}, v{regs[2]+j}, v{regs[3]+j}' for j in range(2)]
    return [f'v_{m.group(1)}_f32 v{regs[0]+j}, v{regs[1]+j}, v{regs[2]+j}' for j in range(2)]
def pairs(lst):
    out = []
    for t in lst:
        u = unpk(t)
        if len(u) == 2 and 'v_fma_' in u[0]: out += [[u[0]], [u[1]]]
        else: out.append(u)
    return out
def signal(k, name, cnt_sgpr, vtmp, noflush=False):
    k.I('s_barrier')
    st = k.save_state()
    k.I('s_cmp_lg_u32 s22, 0')
    k.I(f's_cbranch_scc1 L{name}_sig', noflush=noflush)
    k.I('s_mov_b64 exec, 1')
    k.I(f'buffer_atomic_add v{vtmp+1}, v{vtmp}, s[12:15], s{cnt_sgpr} offen sc1')
    k.I('s_mov_b64 exec, -1')
    if noflush: k.raw(f'L{name}_sig:')
    else: k.label(f'L{name}_sig')
    k.restore_state(st)
    k.vm.append((set(), None)) if False else None
def poll(k, name, cnt_sgpr, vtmp, vres):
    st = k.save_state()
    k.I('s_cmp_lg_u32 s22, 3')
    k.I(f's_cbranch_scc1 L{name}_done')
    k.I('s_mov_b32 s24, 0x100000')
    k.label(f'L{name}_poll')
    k.I(f'buffer_load_dword v{vres}, v{vtmp}, s[12:15], s{cnt_sgpr} offen sc1')
    k.waitcnt(vm=0)
    k.I(f'v_readfirstlane_b32 s33, v{vres}')
    k.I('s_sub_u32 s24, s24, 1')
    k.I(f's_cbranch_scc1 L{name}_done')
    k.I('s_cmp_lt_u32 s33, 16')
    k.I(f's_cbranch_scc1 L{name}_poll')
    k.label(f'L{name}_done')
    k.restore_state(st)
    k.I('s_barrier')

TAB = WS_END4
WS_END6 = TAB + 24 * 1024
class Fix:
    def __init__(self, seq): self.seq = list(seq)
    def get(self, *a): return self.seq.pop(0)
def role_tab(k):
    c0 = 24; f40 = c0; f16 = c0 + 62; cs = c0 + 68; sn = c0 + 80
    vi, vq, fi, fq, fq4, vo, t8, tmp = 2, 3, 4, 5, 6, 7, 8, 16
    k.I(f'v_and_b32 v{vi}, 15, v0')
    k.I(f'v_lshrrev_b32 v{vq}, 4, v0')
    k.I(f'v_cvt_f32_u32 v{fi}, v{vi}')
    k.I(f'v_cvt_f32_u32 v{fq}, v{vq}')
    k.I(f'v_mul_f32 v{fq4}, 4.0, v{fq}')
    k.I(f'v_lshlrev_b32 v{vo}, 4, v0')
    gen_f40(k, Fix([f40, t8, t8+4, t8+6]), fi, fq, True)
    gen_tw640(k, Fix([cs, sn, t8]), fi, fq4)
    k.I(f'v_cmp_gt_u32 vcc, 8, v{vi}')
    for r in range(4):
        k.I(f'v_cndmask_b32 v{cs+8+r}, 0, v{cs+8+r}, vcc')
        k.I(f'v_cndmask_b32 v{sn+8+r}, 0, v{sn+8+r}, vcc')
    k.I(f'v_mul_f32 v{t8}, {fhex(1.0/16)}, v{fi}')
    k.I(f'v_mul_f32 v{t8+1}, v{fq4}, v{t8}')
    for j in range(4): k.I(f'v_fmamk_f32 v{tmp+4+j}, v{t8}, {fhex(float(j))}, v{t8+1}')
    for j in range(4):
        k.I(f'v_cos_f32 v{tmp+j}, v{tmp+4+j}')
        k.I(f'v_sin_f32 v{tmp+4+j}, v{tmp+4+j}')
    for p in range(2):
        k.I(f'v_cvt_pk_bf16_f32 v{f16+p}, v{tmp+4+2*p}, v{tmp+5+2*p}')
        k.I(f'v_cvt_pk_bf16_f32 v{f16+2+p}, v{tmp+2*p}, v{tmp+1+2*p}')
        k.I(f'v_cvt_pk_bf16_f32 v{f16+4+p}, -v{tmp+4+2*p}, -v{tmp+5+2*p}')
    k.srd(24, 4, 23 * 1024, TAB)
    for i in range(23):
        if i % 4 == 0: k.I(f's_mov_b32 s28, {1024*i}')
        k.I(f'buffer_store_dwordx4 {vr(c0+4*i,4)}, v{vo}, s[24:27], s28 offen offset:{1024*(i%4)}')

XNT = ' nt' if os.environ.get('XNT') == '1' else ''
_mark = mark
def mark(k, i):
    if not env('MF', 0): _mark(k, i)
def fm(k, i):
    if env('MF', 0) == 1: _mark(k, i)
def pm(k, i):
    if env('MF', 0) == 3: _mark(k, i)
def em(k, i):
    if env('MF', 0) == 2: _mark(k, i)
def pack6(k, base, cs, sn, alt):
    def op(r, j, neg):
        n = neg ^ (alt and (j & 1))
        return ('-' if n else '') + f'v{r+j}'
    for p in range(2):
        k.I(f'v_cvt_pk_bf16_f32 v{base+p}, {op(sn,2*p,True)}, {op(sn,2*p+1,True)}')
        k.I(f'v_cvt_pk_bf16_f32 v{base+2+p}, {op(cs,2*p,False)}, {op(cs,2*p+1,False)}')
        k.I(f'v_cvt_pk_bf16_f32 v{base+4+p}, {op(sn,2*p,False)}, {op(sn,2*p+1,False)}')
WIM, WRE = 0, 2
F0 = FLAGS + 8192
WGU_B = WGU + 64 * 30720
FW = F0 + 1024
YFL = ['sc1', 'sc1 nt', 'sc0 sc1', 'sc0 sc1 nt'][env('YFL', 0)]
def hm(k, i):
    if env('MF', 0) == 5: _mark(k, i)
def cm_(k, i):
    if env('MF', 0) == 4: _mark(k, i)

HALF = env('HALF', 0)
def gen_DEF10():
    k = Kernel('kd_kernel')
    PL = 2592
    HB = 0; XB = 10240; SB = 122880; XL = 32768; MLD = XL + 4 * 2560; TL = MLD + 8192; CL = 81920
    W_ST = env('W_ST', 4); W_A = env('W_A', 4)
    NB1 = env('NB1', 24); W_J1 = W_J1_ = env('W_J1', 8); W_J = env('W_J', 8)
    stamp_begin(k)
    k.I('s_cmp_ge_u32 s2, 256')
    k.I('s_cbranch_scc1 LD_exit')
    k.I(f's_load_dwordx2 s[4:5], s[0:1], {KA["ws"]}')
    k.I(f's_load_dwordx2 s[6:7], s[0:1], {KA["x"]}')
    k.I(f's_load_dwordx2 s[40:41], s[0:1], {KA["out"]}')
    k.I(f's_load_dwordx2 s[62:63], s[0:1], {KA["wd"]}')
    if HALF: k.I(f's_load_dwordx4 s[36:39], s[0:1], {KA["wg"]}')
    va = VAlloc(2)
    hs = va.get(2, 2); vl = va.get(); vo16 = va.get(); vW = va.get(); vi = va.get(); vq = va.get(); oh = va.get(); oh2 = va.get(); hr = va.get()
    keep = va.n
    so = va.get(); wu = va.get(); wv = va.get(); ra = va.get(); xo = va.get(); mo = va.get(); wh = va.get(3); wx = va.get(); g0 = va.get(); g2 = va.get()
    ch = va.get(12, 4); xr = va.get(12, 2); mg = va.get(12, 4); mc = va.get(12, 4); ms = va.get(12, 4)
    d1 = va.get(24, 4); d2 = va.get(24, 4); dat = va.get(12, 2); tmp = va.get(8, 2)
    f40 = va.get(92, 4); f16 = f40 + 62; cs = f40 + 68; sn = f40 + 80
    tv = VAlloc(d1, d1 + 48)
    ta = tv.get(4); tk = tv.get(); cb_ = tv.get(); tq = tv.get(); v8 = tv.get(); vcn = tv.get(); vma = tv.get(); vmk = tv.get(2, 2)
    k.I('v_lshrrev_b32 v1, 6, v0')
    k.I(f'v_and_b32 v{vl}, 63, v0')
    k.I('v_readfirstlane_b32 s22, v1')
    k.I(f'v_lshlrev_b32 v{vo16}, 4, v{vl}')
    k.I(f'v_and_b32 v{vi}, 15, v{vl}')
    k.I(f'v_lshrrev_b32 v{vq}, 4, v{vl}')
    def scalars():
        k.I('s_and_b32 s20, s2, 6')
        k.I('s_lshl_b32 s20, s20, 1')
        k.I('s_lshr_b32 s21, s2, 6')
        k.I('s_add_u32 s20, s20, s21')
        k.I('s_bfe_u32 s56, s2, 0x30003')
        k.I('s_and_b32 s57, s2, 1')
        k.I('s_lshl_b32 s21, s57, 3')
        k.I('s_add_u32 s21, s21, s56')
        k.I('s_lshl_b32 s25, s20, 4')
        k.I('s_add_u32 s3, s25, s21')
        k.I('s_lshr_b32 s25, s20, 2')
        k.I('s_lshl_b32 s25, s25, 12')
        k.I('s_lshl_b32 s24, s57, 11')
        k.I('s_add_u32 s25, s25, s24')
        k.I('s_and_b32 s24, s21, 1')
        k.I('s_lshl_b32 s24, s24, 10')
        k.I('s_add_u32 s25, s25, s24')
        k.I('s_and_b32 s24, s20, 3')
        k.I('s_lshl_b32 s24, s24, 8')
        k.I('s_add_u32 s25, s25, s24')
        k.I('s_and_b32 s24, s21, 6')
        k.I('s_lshl_b32 s24, s24, 5')
        k.I('s_add_u32 s25, s25, s24')
        k.I(f's_add_u32 s26, s25, {64*16384}')
        k.I(f's_add_u32 s27, s25, {128*16384}')
        k.I('s_lshl_b32 s23, s20, 7')
        k.I('s_lshl_b32 s24, s21, 1')
        k.I('s_add_u32 s23, s23, s24')
        k.I('s_and_b32 s24, s22, 1')
        k.I('s_lshl_b32 s24, s24, 6')
        k.I('s_add_u32 s23, s23, s24')
        k.I('s_lshr_b32 s24, s22, 1')
        k.I('s_add_u32 s23, s23, s24')
        k.I('s_mul_i32 s28, s23, 1280')
        k.I(f's_add_u32 s29, s28, {32*1280}')
        k.I(f's_mul_i32 s30, s22, 2560')
        k.I(f's_add_u32 s30, s30, {XL}')
        k.I('s_add_u32 s23, s30, 1280')
        k.I('s_lshl_b32 s31, s22, 11')
        k.I(f's_add_u32 s88, s31, {MLD}')
        k.I(f's_add_u32 s31, s31, {MODN + 2*2560}')
        k.I('s_lshl_b32 s32, s21, 2')
        k.I('s_add_u32 s32, s32, s22')
        k.I('s_mul_i32 s24, s32, 30720')
        k.I(f's_add_u32 s24, s24, {WGU}')
        k.I(f'v_add_u32 v{vW}, s24, v{vo16}')
        k.I(f's_mul_i32 s58, s20, {8*49152}')
        k.I('s_mul_i32 s24, s32, 768')
        k.I('s_add_u32 s58, s58, s24')
        k.I(f's_add_u32 s58, s58, {HH}')
        for i in range(1, 4): k.I(f's_add_u32 s{58+i}, s58, {2*i*49152}')
        k.I('s_mul_i32 s24, s22, 6144')
        k.I(f's_add_u32 s42, s24, {TL}')
        k.I(f's_add_u32 s43, s24, {TAB}')
        k.I('s_add_u32 s33, s42, 4096')
        k.I('s_add_u32 s55, s43, 4096')
        k.I('s_and_b32 s89, s2, 7')
        k.I('s_lshl_b32 s89, s89, 7')
        k.I(f's_add_u32 s89, s89, {F0}')
        k.srd(12, 4, WS_END6)
        k.srd(8, 6, S * D * 2)
        k.srd(16, 4, 161 * 16384, XT)
    def wload(n):
        m_ = n % 30
        g = [f'buffer_load_dwordx4 {ar(4*n,4)}, v{vW}, s[12:15], 0 offen offset:{1024*(m_%4)}{" sc1" if n >= 30 and HALF else ""}']
        if n == 29: g.append(f'v_add_u32 v{vW}, {WGU_B - WGU - 28672}, v{vW}')
        elif m_ % 4 == 3: g.append(f'v_add_u32 v{vW}, 0x1000, v{vW}')
        return g
    def bglist():
        o = []
        for i in range(6):
            g = [f'buffer_load_dwordx4 v{vo16}, s[12:15], s{43 if i < 4 else 55} offen offset:{1024*(i%4)} lds']
            if i % 4 == 0: g = [f's_mov_b32 m0, s{42 if i < 4 else 33}'] + g
            o.append(g)
        for c in range(2):
            o.append([f's_mov_b32 m0, s{23 if c else 30}', f'buffer_load_dwordx4 v{vo16}, s[8:11], s{28+c} offen{XNT} lds'])
            o.append(['s_mov_b64 exec, 0xffff', f'buffer_load_dwordx4 v{vo16}, s[8:11], s{28+c} offen offset:1024{XNT} lds', 's_mov_b64 exec, -1'])
        w = [wload(n) for n in range(60)]
        WF = env('W_FIRST', 8)
        global AUX_LAST
        AUX_LAST = WF + 10
        return w[:WF] + o + w[WF:]
    NBG = 70
    def topup():
        k.bg_every = 0
        k.emit_bg(max(0, NB1 - (NBG - len(k.bg))))
        assert NBG - len(k.bg) == NB1, (NBG - len(k.bg), NB1)
    k.I('s_cmp_ge_u32 s2, 161')
    st0 = k.save_state()
    k.I('s_cbranch_scc1 LWD')
    vc = VAlloc(keep)
    vo8 = vc.get(); yo = vc.get(); wa = vc.get(); vC = vc.get()
    fi = vc.get(); fq4 = vc.get(); fk = vc.get(); fw16 = vc.get(); cta = vc.get(2); sg2 = vc.get(2, 2)
    f64 = vc.get(24, 2); f32 = vc.get(24, 2)
    c1 = vc.get(8, 2); s1_ = vc.get(8, 2); c2 = vc.get(8, 2); s2_ = vc.get(8, 2)
    TK = []
    for X in range(2):
        TK.append(dict(wq=vc.get(8, 2), dat=vc.get(32, 4), acc=vc.get(16, 4), pk=vc.get(8, 4), tmp=vc.get(8, 2)))
    tc = TK[0]['tmp']; ts = tc + 4
    k.I(f'v_lshlrev_b32 v{vo8}, 3, v{vl}')
    k.I('s_lshl_b32 s48, s2, 14')
    k.I('s_lshl_b32 s49, s22, 10')
    k.I('s_add_u32 s49, s49, s48')
    k.I('s_lshl_b32 s24, s22, 11')
    k.I('s_add_u32 s48, s48, s24')
    k.I(f's_add_u32 s90, s24, {CL}')
    k.I('s_mov_b32 m0, s90')
    k.I('s_cmp_eq_u32 s2, 0')
    k.I('s_cselect_b32 s50, 0, 1.0')
    k.I('s_cmp_eq_u32 s2, 160')
    k.I('s_cselect_b32 s50, 0, s50')
    k.I('s_mov_b32 s52, 0x80008000')
    k.I(f'v_lshlrev_b32 v{sg2}, 31, v{vi}')
    k.I(f'v_or_b32 v{sg2}, 1.0, v{sg2}')
    k.I(f'v_cvt_f32_u32 v{fi}, v{vi}')
    k.I(f'v_lshlrev_b32 v{fq4}, 2, v{vq}')
    k.I(f'v_cvt_f32_u32 v{fq4}, v{fq4}')
    k.I(f'v_lshlrev_b32 v{fw16}, 4, v1')
    k.I(f'v_cvt_f32_u32 v{fw16}, v{fw16}')
    k.I(f'v_add_f32 v{fk}, v{fw16}, v{fi}')
    def angles(step_reg, scale, base_add, dst, q=None):
        k.I(f'v_mul_f32 v{cta}, {fhex(scale)}, v{step_reg}')
        k.I(f'v_mul_f32 v{cta+1}, v{fq4 if q is None else q}, v{cta}')
        for j in range(4): k.I(f'v_fmamk_f32 v{dst+j}, v{cta}, {fhex(float(base_add + j))}, v{cta+1}')
    def sincos(c, s_):
        for j in range(4):
            k.I(f'v_cos_f32 v{c+j}, v{s_+j}')
            k.I(f'v_sin_f32 v{s_+j}, v{s_+j}')
    def flip(c, s_):
        for p in (0, 2):
            k.I(f'v_pk_mul_f32 {vr(c+p,2)}, {vr(c+p,2)}, {vr(sg2,2)} op_sel_hi:[1,0]')
            k.I(f'v_pk_mul_f32 {vr(s_+p,2)}, {vr(s_+p,2)}, {vr(sg2,2)} op_sel_hi:[1,0]')
    def flip6(base): return [f'v_xor_b32 v{base+j}, s52, v{base+j}' for j in (0, 1, 4, 5)]
    for kap in range(2):
        angles(fk, 1.0/64, 16*kap, ts); sincos(tc, ts)
        pack6(k, f64+6*kap, tc, ts, False)
        flip(tc, ts)
        pack6(k, f64+6*(kap+2), tc, ts, False)
        if kap == 0:
            k.srd(36, 4, XT_SZ, XT)
            k.srd(44, 4, XT_SZ, WT)
            for X in range(2):
                if X:
                    k.I('s_add_u32 m0, s90, 8192')
                    k.I('s_add_u32 s48, s48, 8192')
                k.I(f'buffer_load_dwordx4 v{vo16}, s[36:39], s48 offen lds', tag=('x', X))
                k.I(f'buffer_load_dwordx4 v{vo16}, s[36:39], s48 offen offset:1024 lds', tag=('x', X))
            for X in range(2):
                for m_ in range(2):
                    for V in range(2):
                        k.I(f'buffer_load_dwordx2 {vr(TK[X]["wq"]+4*m_+2*V,2)}, v{vo8}, s[44:47], s49 offen offset:{512*V}')
                    k.I('s_add_u32 s49, s49, 4096')
            cm_(k, 1)
            scalars()
            k.I('s_lshl_b32 s53, s22, 12')
            k.I('s_lshl_b32 s24, s2, 14')
            k.I('s_add_u32 s53, s53, s24')
            zz = TK[1]['dat']
            for j in range(4): k.I(f'v_mov_b32 v{zz+j}, 0')
            k.I(f'v_lshlrev_b32 v{zz+4}, 4, v0')
            k.I('s_mul_i32 s51, s2, 205')
            k.I('s_lshr_b32 s51, s51, 10')
            k.I('s_mul_i32 s51, s51, 40960')
            k.I('s_lshl_b32 s24, s2, 13')
            k.I('s_add_u32 s51, s51, s24')
            k.I(f's_add_u32 s51, s51, {H2}')
            k.I('s_cmp_lt_u32 s2, 160')
            k.I('s_cselect_b32 s51, s51, 0x7f000000')
            k.I(f'buffer_store_dwordx4 {vr(zz,4)}, v{zz+4}, s[12:15], s51 offen sc1', tag='z')
            k.I('s_add_u32 s51, s51, 4096')
            k.I(f'buffer_store_dwordx4 {vr(zz,4)}, v{zz+4}, s[12:15], s51 offen sc1', tag='z')
            k.bg = bglist(); k.bg_every = env('BGC1', 30)
    for N in range(2):
        angles(fk, 1.0/2048, 16*N, s1_+4*N); sincos(c1+4*N, s1_+4*N)
    angles(fi, 1.0/32, 0, ts); sincos(tc, ts)
    pack6(k, f32+0, tc, ts, False)
    pack6(k, f32+12, tc, ts, True)
    flip(tc, ts)
    pack6(k, f32+6, tc, ts, False)
    pack6(k, f32+18, tc, ts, True)
    k.I(f'v_add_f32 v{fw16}, v{fw16}, v{fq4}')
    for N in range(2):
        if N: k.I(f'v_add_f32 v{fi}, {fhex(16.0)}, v{fi}')
        angles(fi, 1.0/2048, 0, s2_+4*N, q=fw16); sincos(c2+4*N, s2_+4*N)
    k.I(f'v_add_u32 v{vC}, {CL}, v{vo16}')
    k.I(f'v_add_u32 v{wa}, s90, v{vo16}')
    k.I(f'v_and_b32 v{cta}, 2, v{vi}')
    k.I(f'v_mul_u32_u24 v{yo}, {(8192 + 32 - 32) // 2}, v{cta}')
    k.I(f'v_add_u32 v{yo}, v{yo}, v{vC}')
    k.I(f'v_cmp_eq_u32 vcc, 0, v{cta}')
    k.I(f'v_mov_b32 v{fk}, s50')
    k.I(f'v_cndmask_b32 v{fk}, 1.0, v{fk}, vcc')
    k.emit_bg(env('W_C0', 0))
    cm_(k, 2)
    k.wait_tag(('x', 1))
    k.I('s_barrier')
    cm_(k, 3)
    k.bg_every = env('BGC2', 18)
    def rd(X, base): return [f'ds_read_b128 {vr(TK[X]["dat"]+(2*kap+N)*4,4)}, v{vC} offset:{base+8192*X+2048*kap+1024*N}' for N in range(2) for kap in range(4)]
    def st1(X, inv):
        o = []; t = TK[X]
        for N in range(2):
            for kap in range(4):
                for c in range(2):
                    dd = vr(t['acc']+(2*N+c)*4, 4); da = vr(t['dat']+(2*kap+N)*4, 4); co = vr(f64+6*kap+(WIM if c else WRE), 4)
                    o.append(f'{MF16} {dd}, {co if inv else da}, {da if inv else co}, {dd if kap else 0}')
        return o
    def st3(X):
        o = []; t = TK[X]
        for N in range(2):
            for V in range(2):
                for c in range(2):
                    dd = vr(t['dat']+(2*V+c)*4, 4)
                    o.append(f'{MF16} {dd}, {vr(f32+(2*V+N)*6+(WIM if c else WRE),4)}, {vr(t["pk"]+4*N,4)}, {dd if N else 0}')
        return o
    def st4(X):
        o = []; t = TK[X]
        for V in range(2):
            for N in range(2):
                for c in range(2):
                    dd = vr(t['acc']+(2*N+c)*4, 4)
                    o.append(f'{MF16} {dd}, {vr(t["dat"]+16+4*V,4)}, {vr(f32+(2*N+V)*6+(WIM if c else WRE),4)}, {dd if V else 0}')
        return o
    def cmx(X, src, cc, ss, dst, conj):
        o = []
        for h_ in range(2): o += rec(cmul4, src+8*h_, src+8*h_+4, cc+4*h_, ss+4*h_, dst+4*h_, TK[X]['tmp'], conj)
        if env('C_SCALAR', 0):
            o2_ = []
            for t in o:
                if 'neg_lo' in t:
                    r4 = [int(x) for x in _re.findall(r'v\[(\d+):\d+\]', t)]
                    o2_ += [f'v_fma_f32 v{r4[0]+j}, v{r4[1]+j}, -v{r4[2]+j}, v{r4[3]+j}' for j in range(2)]
                else: o2_ += unpk(t)
            o = o2_
        return o
    def wun(X):
        t = TK[X]; o = []
        for j in range(8):
            o.append(f'v_lshlrev_b32 v{t["acc"]+2*j}, 16, v{t["wq"]+j}')
            o.append(f'v_and_b32 v{t["acc"]+2*j+1}, 0xffff0000, v{t["wq"]+j}')
        return o
    def outs(X):
        t = TK[X]; o = []; fl_ = f'v{fk}'
        for N in range(2):
            re = t['acc']+8*N; im = re+4; tm = t['tmp']
            for p in range(2):
                a_, b_ = 2*p, 2*p+1
                o.append(f'v_fma_f32 v{tm+4*p+0}, -v{im+b_}, {fl_}, v{re+a_}')
                o.append(f'v_fma_f32 v{tm+4*p+1}, v{im+a_}, {fl_}, v{re+b_}')
                o.append(f'v_fma_f32 v{tm+4*p+2}, v{im+b_}, {fl_}, v{re+a_}')
                o.append(f'v_fma_f32 v{tm+4*p+3}, -v{im+a_}, {fl_}, v{re+b_}')
            for j in range(4): o.append(f'v_cvt_pk_bf16_f32 v{t["pk"]+4*N+j}, v{tm+2*j}, v{tm+2*j+1}')
        return o
    def mg_(main, fill, per):
        for t in merge(k, main, fill, per): k.I(t)
    A_, B_ = TK
    PER = env('C_PER', 2); P3 = env('C_P3', 3)
    for t in rd(0, 0): k.I(t)
    mg_(st1(0, False), rd(1, 0), 1)
    mg_(st1(1, False)[:4], [], 0)
    mg_(st1(1, False)[4:], cmx(0, A_['acc'], c1, s1_, A_['pk'], False), PER)
    mg_(st3(0), wun(0) + cmx(1, B_['acc'], c1, s1_, B_['pk'], False), P3)
    cm_(k, 4)
    mg_(st3(1), wun(1) + cmx(0, A_['dat'], A_['acc'], A_['acc']+8, A_['dat']+16, True), P3)
    for w_ in range(4):
        for t in flip6(f32+6*w_): k.I(t)
    mg_(st4(0), cmx(1, B_['dat'], B_['acc'], B_['acc']+8, B_['dat']+16, True), P3)
    fl64 = []
    for kap in range(4): fl64 += flip6(f64+6*kap)
    ca = cmx(0, A_['acc'], c2, s2_, A_['pk'], True)
    mg_(st4(1), fl64[:8] + ca, P3)
    cm_(k, 5)
    for N in range(2): k.I(f'ds_write_b128 v{wa}, {vr(A_["pk"]+4*N,4)} offset:{16384+1024*N}')
    for t in cmx(1, B_['acc'], c2, s2_, B_['pk'], True): k.I(t)
    for N in range(2): k.I(f'ds_write_b128 v{wa}, {vr(B_["pk"]+4*N,4)} offset:{16384+8192+32+1024*N}')
    for t in fl64[8:]: k.I(t)
    k.wait_tag('z')
    k.barrier()
    cm_(k, 6)
    def rd2(e): return [f'ds_read_b128 {vr(TK[e]["dat"]+(2*kap+N)*4,4)}, v{yo} offset:{16384+32*e+2048*kap+1024*N}' for N in range(2) for kap in range(4)]
    def ost(e):
        o = outs(e); r_ = []
        for N in range(2):
            r_ += o[12*N:12*N+12] + [f'v_or_b32 v{TK[e]["pk"]+4*N}, 1, v{TK[e]["pk"]+4*N}',
                  (f'buffer_store_dwordx4 {vr(TK[e]["pk"]+4*N,4)}, v{vo16}, s[16:19], s53 offen offset:{2048*N+1024*e} sc1', 'y')]
        return r_
    def em_(t):
        if isinstance(t, tuple): k.I(t[0], tag=t[1])
        else: k.I(t)
    for t in rd2(0): k.I(t)
    mg_(st1(0, True), rd2(1), 1)
    topup()
    fill = ost(0)
    for j, m_ in enumerate(st1(1, True)):
        k.I(m_)
        for _ in range(PER):
            if fill: em_(fill.pop(0))
    for t in fill + ost(1): em_(t)
    cm_(k, 7)
    k.emit_bg(W_J1)
    def dpro():
        k.bg_every = 0
        k.I(f'v_lshrrev_b32 v{so}, 2, v0')
        k.I(f'v_lshlrev_b32 v{so}, 14, v{so}')
        k.I(f'v_and_b32 v{ta+1}, 3, v0')
        k.I(f'v_lshl_add_u32 v{so}, v{ta+1}, 4, v{so}')
        k.I(f'v_lshrrev_b32 v{ta+1}, 1, v0')
        k.I(f'v_cmp_ge_u32 s[34:35], 64, v{ta+1}')
        k.I(f'v_mov_b32 v{ch+8}, -1')
        k.I(f'v_add_u32 v{vma}, s88, v{vo16}')
        k.I(f'v_mov_b32 v{hs}, 0')
        k.I(f'v_mov_b32 v{hs+1}, 1')
        k.bg_every = 6
        nleft = len(k.bg); hold = k.bg[W_J:]; k.bg = k.bg[:W_J]
        addr = []
        A = addr.append
        A(f'v_lshrrev_b32 v{tq}, 1, v{vq}')
        A(f'v_mad_u32_u24 v{cb_}, v{vi}, 5, v{tq}')
        A(f'v_and_b32 v{tk}, 1, v{vq}')
        A(f'v_mul_u32_u24 v{oh}, 49152, v{tk}')
        A(f'v_lshlrev_b32 v{oh2}, 2, v{oh}')
        A(f'v_lshl_add_u32 v{oh}, v{tq}, 8, v{oh}')
        A(f'v_lshl_add_u32 v{oh}, v{vi}, 4, v{oh}')
        A(f'v_mul_u32_u24 v{tq}, 49152, v{tq}')
        A(f'v_add_u32 v{oh2}, v{oh2}, v{tq}')
        A(f'v_lshl_add_u32 v{oh2}, v{vi}, 4, v{oh2}')
        A(f'v_lshl_add_u32 v{tk}, v1, 1, v{tk}')
        for T in range(3):
            A(f'v_add_u32 v{tq}, {2*T}, v{cb_}')
            A(f'v_xor_b32 v{wh+T}, v{tq}, v{tk}')
            A(f'v_and_b32 v{wh+T}, 7, v{wh+T}')
            A(f'v_lshl_add_u32 v{wh+T}, v{tq}, 3, v{wh+T}')
            A(f'v_lshlrev_b32 v{wh+T}, 4, v{wh+T}')
            A(f'v_add_u32 v{wh+T}, {SB}, v{wh+T}')
        A(f'v_mul_u32_u24 v{wx}, 1280, v{tk}')
        A(f'v_lshl_add_u32 v{wx}, v{cb_}, 4, v{wx}')
        A(f'v_add_u32 v{wx}, {SB}, v{wx}')
        A(f'v_lshrrev_b32 v{tq}, 3, v0')
        A(f'v_xor_b32 v{g0}, v{tq}, v0')
        A(f'v_and_b32 v{g0}, 7, v{g0}')
        A(f'v_lshlrev_b32 v{g0}, 4, v{g0}')
        A(f'v_lshl_add_u32 v{g0}, v{tq}, 8, v{g0}')
        for t in addr: k.I(t)
        k.I(f'v_and_b32 v{ta}, 1, v0')
        k.I(f'v_mul_u32_u24 v{wu}, {2*PL}, v{ta}')
        k.I(f'v_sub_u32 v{wv}, 384, v{ta+1}')
        k.I(f'v_lshl_add_u32 v{wv}, v{wv}, 2, v{wu}')
        k.I(f'v_lshl_add_u32 v{wu}, v{ta+1}, 2, v{wu}')
        k.I(f's_mul_i32 s24, s22, {PL}')
        k.I(f'v_lshl_add_u32 v{ra}, v{vl}, 2, s24')
        k.I(f'v_mov_b32 v{dat+10}, 0'); k.I(f'v_mov_b32 v{dat+11}, 0')
        k.I(f'v_mul_u32_u24 v{xo}, 80, v{vi}')
        k.I(f'v_lshl_add_u32 v{xo}, v{vq}, 3, v{xo}')
        k.I(f'v_lshlrev_b32 v{mo}, 1, v{xo}')
        k.I(f'v_add_u32 v{xo}, s30, v{xo}')
        for j in range(8, 12): k.I(f'v_mov_b32 v{xr+j}, 0')
        k.emit_bg(99); k.bg_every = 0; k.bg = hold
    dpro()
    if env('Y_ACK', 0): k.wait_tag('y')
    k.label('LJOIN')
    def yloads():
        k.I('s_mov_b32 m0, s88')
        k.I(f'buffer_load_dwordx4 v{vo16}, s[12:15], s31 offen sc1 lds')
        k.I(f'buffer_load_dwordx4 v{vo16}, s[12:15], s31 offen offset:1024 sc1 lds')
        for rho in range(3):
            if rho == 2: k.I('s_mov_b64 exec, s[34:35]')
            k.I(f'buffer_load_dwordx4 {vr(ch+4*rho,4)}, v{so}, s[16:19], s{25+rho} offen {YFL}')
        k.I('s_mov_b64 exec, -1')
    def ycheck():
        k.I(f'v_and_b32 v{tq}, v{ch}, v{ch+4}')
        k.I(f'ds_read2st64_b32 {vr(vmk,2)}, v{vma} offset0:0 offset1:4')
        k.I(f'v_and_b32 v{tq}, v{tq}, v{ch+8}')
        k.I(f'v_and_b32 v{tq}, 1, v{tq}')
        k.I(f'v_add_u32 v{tq}, -1, v{tq}')
        k.I(f'v_max3_u32 v{tq}, v{tq}, v{vmk}, v{vmk+1}')
        k.I(f'v_cmp_eq_u32 s[62:63], -1, v{tq}')
        k.I('s_cmp_lg_u64 s[62:63], 0')
    yloads()
    if HALF: k.I(f'buffer_load_dword v{hr}, v{hs}, s[12:15], s89 offen offset:1024 sc1')
    W_Y = env('W_Y', 0)
    k.emit_bg(W_Y)
    mark(k, 1)
    tb_ = g2
    k.I(f'v_add_u32 v{tb_}, {TL}, v{vo16}')
    k.I('s_mov_b32 s50, 0')
    assert NB1 + W_J1 + W_J >= AUX_LAST
    nyoung = 5 + HALF + W_Y + (NB1 + W_J1 + W_J - AUX_LAST)
    if len(k.vm) > nyoung: k.waitcnt(vm=nyoung)
    k.I('s_barrier')
    tl = [f'ds_read_b128 {vr(f40+4*i,4)}, v{tb_} offset:{1024*i}' for i in range(23)]
    for t in tl: k.I(t)
    cm_(k, 8)
    ycheck()
    k.I('s_cbranch_scc1 LY_slow')
    k.label('LY_ok')
    mark(k, 2); cm_(k, 9)
    for rho in range(3):
        if rho == 2: k.I('s_mov_b64 exec, s[34:35]')
        for pr in range(2):
            k.I(f'ds_write_b32 v{wu}, v{ch+4*rho+2*pr} offset:{pr*PL+512*rho}')
            k.I(f'ds_write_b32 v{wv}, v{ch+4*rho+2*pr+1} offset:{pr*PL+512*(2-rho)}')
    k.I('s_mov_b64 exec, -1')
    k.I(f'v_lshlrev_b32 v{so}, 4, v0')
    k.I(f'v_add_u32 v{so}, {SB}, v{so}')
    def gochk():
        k.I(f'v_readfirstlane_b32 s24, v{hr}')
        k.I('s_cmp_lg_u32 s24, 1')
        k.I('s_cbranch_scc1 LF0_slow')
        k.label('LF0_ok')
    if HALF: gochk()
    k.barrier()
    mark(k, 3)
    for p in range(5):
        k.I(f'ds_read2st64_b32 {vr(dat+2*p,2)}, v{ra} offset0:{2*p} offset1:{2*p+1}')
    def s1(T):
        o = []
        for kap in range(3):
            for c in range(2):
                dd = vr(d1 + (2*T+c)*4, 4)
                o.append(f'{MF16} {dd}, {vr(dat+4*kap,4)}, {vr(f40+(2*T+c)*10+4*kap,4)}, {dd if kap else 0}')
        return o
    k.bg_every = env('BG2', 12)
    rest = merge(k, s1(0) + s1(1), [], 1)
    for t in rest: k.I(t)
    k.bg_every = 0
    for T in range(3): k.I(f'ds_read_b128 {vr(mg+4*T,4)}, v{mo} offset:{MLD+64*T}')
    a2 = ch; xf = f40
    cm = [rec(cmul4, d1+8*T, d1+8*T+4, cs+4*T, sn+4*T, a2+4*T, tmp, True) for T in range(3)]
    def s2(T): return [f'{MF16} {vr(d2+(2*T+c)*4,4)}, {vr(a2+4*T,4)}, {vr(f16+(0 if c else 2),4)}, 0' for c in range(2)]
    rest = merge(k, s1(2), cm[0], 2)
    for t in rest: k.I(t)
    for T in range(3):
        if T == 2: k.I('s_mov_b32 exec_hi, 0')
        for c in range(2):
            k.I(f'ds_read_b64 {vr(xr+(2*T+c)*2,2)}, v{xo} offset:{1280*c+32*T}')
    k.I('s_mov_b64 exec, -1')
    k.bg_every = env('BG2', 12)
    for t in s2(0) + cm[1] + s2(1) + cm[2] + s2(2): k.I(t)
    for T in range(3):
        k.I(f'ds_read_b128 {vr(ms+4*T,4)}, v{mo} offset:{MLD+2560+64*T}')
        k.I(f'ds_read_b128 {vr(mc+4*T,4)}, v{mo} offset:{MLD+5120+64*T}')
    st_ = f40 + 24
    for T in range(3):
        for i in range(4*T, 4*T+4):
            k.I(f'v_lshlrev_b32 v{xf+2*i}, 16, v{xr+i}')
            k.I(f'v_and_b32 v{xf+2*i+1}, 0xffff0000, v{xr+i}')
        for c in range(2):
            for p in (0, 2):
                r = (2*T+c)*4+p
                k.I(f'v_pk_fma_f32 {vr(xf+r,2)}, {vr(d2+r,2)}, {vr(mg+4*T+p,2)}, {vr(xf+r,2)}')
        for c in range(2):
            r = xf+(2*T+c)*4
            if T == 0:
                k.I(f'v_pk_add_f32 {vr(st_+2*c,2)}, {vr(r,2)}, {vr(r+2,2)}')
                k.I(f'v_pk_mul_f32 {vr(st_+4+2*c,2)}, {vr(r,2)}, {vr(r,2)}')
            else:
                k.I(f'v_pk_add_f32 {vr(st_+2*c,2)}, {vr(st_+2*c,2)}, {vr(r,2)}')
                k.I(f'v_pk_fma_f32 {vr(st_+4+2*c,2)}, {vr(r,2)}, {vr(r,2)}, {vr(st_+4+2*c,2)}')
        for c in range(2):
            r = xf+(2*T+c)*4+2
            if T: k.I(f'v_pk_add_f32 {vr(st_+2*c,2)}, {vr(st_+2*c,2)}, {vr(r,2)}')
            k.I(f'v_pk_fma_f32 {vr(st_+4+2*c,2)}, {vr(r,2)}, {vr(r,2)}, {vr(st_+4+2*c,2)}')
    for i in range(4): k.I(f'v_add_f32 v{st_+2*i}, v{st_+2*i}, v{st_+2*i+1}')
    wave_reduce_to_sgpr(k, [st_, st_+2, st_+4, st_+6], [46, 47, 48, 49])
    po = d1; ph = d1 + 12; hn = d2
    rr = f40 + 32; nmr = f40 + 34
    ln_scalars(k, 46, 48, rr, nmr, tmp)
    k.I(f'v_mov_b32 v{rr+4}, v{rr+1}')
    k.I(f'v_mov_b32 v{nmr+4}, v{nmr+1}')
    for T in range(3):
        for c in range(2):
            for p in (0, 2):
                r = (2*T+c)*4+p
                k.I(f'v_pk_fma_f32 {vr(hn+r,2)}, {vr(xf+r,2)}, {vr(rr+4*c,2)}, {vr(nmr+4*c,2)} op_sel_hi:[1,0,0]')
        for c in range(2):
            for p in (0, 2):
                r = hn+(2*T+c)*4+p
                k.I(f'v_pk_fma_f32 {vr(r,2)}, {vr(r,2)}, {vr(mc+4*T+p,2)}, {vr(ms+4*T+p,2)}')
        for j in range(4):
            k.I(f'v_cvt_pk_bf16_f32 v{ph+4*T+j}, v{hn+8*T+2*j}, v{hn+8*T+2*j+1}')
        if T:
            k.I(f'v_permlane16_swap_b32 v{ph+4*T-4}, v{ph+4*T-2}')
            k.I(f'v_permlane16_swap_b32 v{ph+4*T-3}, v{ph+4*T-1}')
            k.I(f'v_or_b32 v{ph+4*T-4}, 1, v{ph+4*T-4}')
            k.I(f'ds_write_b128 v{wh+T-1}, {vr(ph+4*T-4,4)} offset:{HB}')
    k.bg_every = 0
    for j in range(2): k.I(f'v_cvt_pk_bf16_f32 v{po+j}, v{xf+2*j}, v{xf+2*j+1}')
    k.I(f'v_permlane16_swap_b32 v{ph+8}, v{ph+10}')
    k.I(f'v_permlane16_swap_b32 v{ph+9}, v{ph+11}')
    k.I(f'v_or_b32 v{ph+8}, 1, v{ph+8}')
    k.I('s_mov_b32 exec_hi, 0')
    k.I(f'ds_write_b128 v{wh+2}, {vr(ph+8,4)} offset:{HB}')
    k.I('s_mov_b64 exec, -1')
    k.I('s_lshr_b32 s42, s3, 1')
    k.I('s_mul_i32 s42, s42, 20480')
    k.I('s_and_b32 s24, s21, 1')
    k.I('s_lshl_b32 s24, s24, 7')
    k.I('s_add_u32 s42, s42, s24')
    k.I(f's_add_u32 s42, s42, {H2}')
    k.I('s_add_u32 s44, s42, 8192')
    k.I('s_add_u32 s45, s42, 16384')
    if not HALF: k.I(f'buffer_load_dword v{hr}, v{hs}, s[12:15], s89 offen offset:1024 sc1')
    k.barrier()
    mark(k, 4); hm(k, 1)
    sd = mg
    for rho in range(3):
        k.I(f'ds_read_b128 {vr(sd+4*rho,4)}, v{so} offset:{HB+4096*rho}')
    for j in range(2, 12): k.I(f'v_cvt_pk_bf16_f32 v{po+j}, v{xf+2*j}, v{xf+2*j+1}')
    k.I(f'buffer_store_dwordx4 {vr(sd,4)}, v{g0}, s[12:15], s42 offen sc1', tag='h2')
    k.I(f'buffer_store_dwordx4 {vr(sd+4,4)}, v{g0}, s[12:15], s44 offen sc1', tag='h2')
    k.I('s_cmp_lt_u32 s22, 2')
    k.I('s_cselect_b64 exec, -1, 0')
    k.I(f'buffer_store_dwordx4 {vr(sd+8,4)}, v{g0}, s[12:15], s45 offen sc1', tag='h2')
    k.I('s_mov_b64 exec, -1')
    hm(k, 2)
    for T in range(3):
        k.I(f'v_permlane16_swap_b32 v{po+4*T}, v{po+4*T+2}')
        k.I(f'v_permlane16_swap_b32 v{po+4*T+1}, v{po+4*T+3}')
    for T in range(3):
        if T == 2: k.I('s_mov_b32 exec_hi, 0')
        k.I(f'ds_write_b128 v{wx}, {vr(po+4*T,4)} offset:{XB+32*T}')
    k.I('s_mov_b64 exec, -1')
    k.I(f's_add_u32 s24, s30, {SB + XB - XL}')
    k.I(f'v_add_u32 v{g2}, s24, v{vo16}')
    k.I('s_mul_i32 s43, s3, 10240')
    k.I(f's_add_u32 s43, s43, s30')
    k.I(f's_add_u32 s29, s43, {X1 - XL}')
    k.waitcnt(lgkm=0)
    sx = 244
    for i in range(3): k.I(f'ds_read_b128 {vr(sx+4*i,4)}, v{g2} offset:{1024*i}')
    def x1st():
        for i in range(3):
            if i == 2: k.I('s_mov_b32 exec_hi, 0')
            k.I(f'buffer_store_dwordx4 {vr(sx+4*i,4)}, v{vo16}, s[12:15], s43 offen offset:{1024*i} sc1')
        k.I('s_mov_b64 exec, -1')
    k.I('s_mul_i32 s24, s20, 163840')
    k.I(f's_add_u32 s24, s24, {H2}')
    k.I('s_add_u32 s16, s4, s24')
    k.I('s_addc_u32 s17, s5, 0')
    k.I('s_mov_b32 s18, 163840')
    k.I('s_mov_b32 s19, 0x00020000')
    k.I('s_and_b32 s52, s22, 2')
    k.I('s_add_u32 s52, s52, s22')
    k.I('s_mul_i32 s52, s52, 20480')
    k.I('s_add_u32 s53, s52, 40960')
    k.I('s_lshl_b32 s54, s20, 8')
    k.I(f's_add_u32 s54, s54, {FLAGS}')
    k.I('s_add_u32 s55, s54, 4096')
    k.I('s_add_u32 s51, s54, 128')
    k.srd(36, 40, S * D * 2)
    hm(k, 3)
    k.emit_bg(W_ST)
    hm(k, 4)
    va = VAlloc(keep)
    rb = [va.get(), va.get()]; vD = va.get()
    oo = va.get(); ox = va.get(); lw = va.get(); lr = va.get(); t0 = va.get(); t1 = va.get()
    act = va.get(32, 4); accs = [va.get(48, 4), va.get(48, 4)]; pk = va.get(12, 4)
    gb = va.get(8, 4); x1r = va.get(16, 4)
    NV = (256 - va.n) // 4
    wdv = va.get(4 * NV, 4)
    def wdreg(n): return vr(wdv + 4*n, 4) if n < NV else ar(4*(n - NV), 4)
    def emit(grp):
        for t in grp:
            if isinstance(t, tuple): k.I(t[0], tag=t[1])
            else: k.I(t)
    def dma(ps, g):
        out = []
        for j in range(4):
            gr = [(f'buffer_load_dwordx4 v{vo16}, s[16:19], m0 offen offset:{1024*j} sc1 lds', ('a', ps, g, j // 2))]
            if j == 0: gr = [f's_add_u32 m0, s{52+ps}, {4096*g}'] + gr
            out.append(gr)
        return out
    NPRE = 2
    if env('H1_FLAG', 0):
        k.wait_tag('h2')
        signal(k, 'H1', 54, hs)
        k.emit_bg(env('W_PL', 6))
        poll(k, 'H1p', 54, hs, hr)
    if env('H_ACK', 1): k.wait_tag('h2')
    hm(k, 5)
    for g in range(NPRE):
        for grp in dma(0, g): emit(grp)
    k.emit_bg(W_A)
    if not HALF: gochk()
    hm(k, 6)
    late = list(k.bg); k.bg = []
    print('late weight loads', len(late), 'NV', NV)
    k.I(f'v_mov_b32 v{rb[0]}, v{vo16}')
    k.I(f'v_add_u32 v{rb[1]}, {4*20480}, v{vo16}')
    def aread(ps, i, kap):
        off = ((i & 1) + 2*ps) * 20480 + 1024*kap
        base = rb[i >> 1]
        return f'ds_read_b128 {vr(act+16*(kap&1)+4*i,4)}, v{base} offset:{off - (40960 if ps else 0)}'
    k.I('s_lshl_b32 s24, s56, 2')
    k.I('s_add_u32 s24, s24, s22')
    k.I('s_mul_i32 s24, s24, 61440' if not env('W_SAME', 0) & 2 else 's_mul_i32 s24, s22, 61440')
    k.I(f's_add_u32 s24, s24, {WD}')
    k.I(f'v_add_u32 v{vD}, s24, v{vo16}')
    def dload(n):
        if env('NO_WD', 0): return [f'v_add_u32 v{vD}, 0, v{vD}']
        g = [f'buffer_load_dwordx4 {wdreg(n)}, v{vD}, s[12:15], 0 offen offset:{1024*(n%4)} sc1']
        if n % 4 == 3: g.append(f'v_add_u32 v{vD}, 0x1000, v{vD}')
        return g
    RS = 336; PT = 16 * RS
    k.I('s_lshl_b32 s24, s20, 1')
    k.I('s_add_u32 s24, s24, s57')
    k.I('s_lshl_b32 s24, s24, 2')
    k.I(f's_mul_i32 s33, s22, {12*1024}')
    k.I(f's_add_u32 s33, s33, {HH}')
    k.I('s_mul_i32 s42, s24, 49152')
    k.I('s_add_u32 s42, s42, s33')
    for i in range(1, 4): k.I(f's_add_u32 s{42+i}, s42, {49152*i}')
    k.I(f'v_mul_u32_u24 v{t0}, 26, v{vl}')
    k.I(f'v_lshrrev_b32 v{t0}, 8, v{t0}')
    k.I(f'v_mul_u32_u24 v{t1}, 10, v{t0}')
    k.I(f'v_sub_u32 v{t1}, v{vl}, v{t1}')
    k.I(f'v_mul_u32_u24 v{lr}, {RS}, v{t0}')
    k.I(f'v_lshl_add_u32 v{lr}, v{t1}, 4, v{lr}')
    k.I(f's_mul_i32 s25, s22, {4*RS}')
    k.I(f'v_add_u32 v{lr}, s25, v{lr}')
    k.I(f'v_mul_u32_u24 v{ox}, 1280, v{t0}')
    k.I(f'v_lshl_add_u32 v{ox}, v{t1}, 4, v{ox}')
    k.I(f'v_mul_u32_u24 v{oo}, {32*1280}, v{t0}')
    k.I(f'v_lshl_add_u32 v{oo}, v{t1}, 4, v{oo}')
    k.I(f'v_lshlrev_b32 v{t1}, 5, v{t1}')
    k.I(f'v_mul_u32_u24 v{lw}, {RS}, v{vi}')
    k.I(f's_mul_i32 s25, s22, {PT}')
    k.I(f'v_add_u32 v{lw}, s25, v{lw}')
    lw2 = t0
    k.I(f'v_mul_u32_u24 v{hr}, 5, v{vq}')
    k.I(f'v_add_u32 v{lw2}, 1, v{hr}')
    k.I(f'v_lshrrev_b32 v{lw2}, 1, v{lw2}')
    k.I(f'v_lshl_add_u32 v{lw2}, v{lw2}, 4, v{lw}')
    k.I(f'v_lshrrev_b32 v{hr}, 1, v{hr}')
    k.I(f'v_lshl_add_u32 v{lw}, v{hr}, 4, v{lw}')
    k.I(f'v_and_b32 v{hr}, 1, v{vq}')
    k.I(f'v_mul_u32_u24 v{hr}, 160, v{hr}')
    k.I(f'v_add_u32 v{lw}, v{lw}, v{hr}')
    k.I(f'v_sub_u32 v{lw2}, v{lw2}, v{hr}')
    k.I(f'v_add_u32 v{lw2}, 160, v{lw2}')
    k.I('s_mul_i32 s30, s56, 160')
    k.I('s_lshl_b32 s25, s24, 2')
    k.I('s_add_u32 s25, s25, s22')
    k.I(f's_mul_i32 s46, s25, {4*1280}')
    k.I('s_add_u32 s46, s46, s30')
    k.I(f's_add_u32 s46, s46, {X1}')
    for i in range(1, 4): k.I(f's_add_u32 s{46+i}, s46, {16*1280*i}')
    k.I('s_lshl_b32 s25, s20, 7')
    k.I('s_lshl_b32 s26, s57, 4')
    k.I('s_add_u32 s25, s25, s26')
    k.I('s_add_u32 s25, s25, s22')
    k.I('s_mul_i32 s25, s25, 1280')
    k.I('s_add_u32 s25, s25, s30')
    for i in range(1, 4): k.I(f's_add_u32 s{25+i}, s25, {4*1280*i}')
    k.I('s_lshl_b32 s30, s30, 1')
    k.I(f's_add_u32 s30, s30, {5*2560}')
    vx3 = x1r + 14
    k.I(f'v_cmp_gt_u32 vcc, 32, v{vl}')
    k.I(f'v_mov_b32 v{vx3}, 0x7ff00000')
    k.I(f'v_cndmask_b32 v{vx3}, v{vx3}, v{vo16}, vcc')
    k.I('s_mov_b32 s34, -1')
    k.I('s_mov_b32 s35, 0xff')
    vck = x1r; vad = x1r + 15
    k.I(f'v_add_u32 v{vad}, s52, v{vo16}')
    slow = []
    def validate(name, groups):
        o = []; n = 0
        for g in groups:
            for j in range(2):
                o.append([f'ds_read2st64_b32 {vr(vck+n,2)}, v{vad} offset0:{16*g+8*j} offset1:{16*g+8*j+4}']); n += 2
        i = 1
        while i < n:
            if i + 1 < n: o.append([f'v_bitop3_b32 v{vck}, v{vck}, v{vck+i}, v{vck+i+1} bitop3:0x80']); i += 2
            else: o.append([f'v_bitop3_b32 v{vck}, v{vck}, v{vck+i}, 1 bitop3:0x80']); i += 1
        o.append([f'v_cmp_eq_u32 s[62:63], 0, v{vck}'])
        o.append(['s_nop 0'])
        o.append(['s_cmp_lg_u64 s[62:63], 0', ('BR', f's_cbranch_scc1 L{name}_slow', f'L{name}_ok')])
        slow.append((name, groups))
        return o
    _emit = emit
    def emit(grp):
        for t in grp:
            if isinstance(t, tuple) and t[0] == 'GRP': emit(t[1])
            elif isinstance(t, tuple) and t[0] == 'BR':
                k.I(t[1], noflush=True); k.raw(t[2] + ':')
            else: _emit([t])
    V0 = [0] if env('V0_ONE', 1) else [0, 1]
    mark(k, 5); hm(k, 7)
    k.wait_tag('h2')
    k.wait_tag(('a', 0, V0[-1], 1))
    mark(k, 6); hm(k, 8)
    for g in validate('V0', V0): emit(g)
    if env('H1_FLAG', 0): k.I('s_barrier')
    else: signal(k, 'H1', 54, hs)
    mark(k, 7); hm(k, 9)
    for kp_ in range(2):
        for i in range(4): k.I(aread(0, i, kp_))
    def epi(ps):
        acc = accs[ps]; o = []
        for pr in range(2):
            for j in range(2):
                i = 2*pr + j
                g_ = acc + i*4; u_ = acc + (4+i)*4
                for p in (0, 2): o.append(f'v_pk_mul_f32 {vr(g_+p,2)}, {vr(g_+p,2)}, {vr(u_+p,2)}')
            a_ = acc + (8+2*pr)*4; b_ = a_ + 4
            for r in range(4): o.append(f'v_permlane32_swap_b32 v{a_+r}, v{b_+r}')
            for j in range(2):
                g_ = acc + (2*pr+j)*4
                for p in (0, 2): o.append(f'v_cvt_pk_bf16_f32 v{pk+4*pr+2*j+p//2}, v{g_+p}, v{g_+p+1}')
            for p in (0, 2): o.append(f'v_pk_mul_f32 {vr(a_+p,2)}, {vr(a_+p,2)}, {vr(b_+p,2)}')
            o.append(f'v_permlane16_swap_b32 v{pk+4*pr}, v{pk+4*pr+2}')
            o.append(f'v_permlane16_swap_b32 v{pk+4*pr+1}, v{pk+4*pr+3}')
            for p in (0, 2): o.append(f'v_cvt_pk_bf16_f32 v{pk+8+2*pr+p//2}, v{a_+p}, v{a_+p+1}')
            o.append((f'buffer_store_dwordx4 {vr(pk+4*pr,4)}, v{oh}, s[12:15], s{58+2*pr+ps} offen sc1', ('h', ps)))
        o.append(f'v_permlane16_swap_b32 v{pk+8}, v{pk+10}')
        o.append(f'v_permlane16_swap_b32 v{pk+9}, v{pk+11}')
        o.append((f'buffer_store_dwordx4 {vr(pk+8,4)}, v{oh2}, s[12:15], s{58+ps} offen offset:512 sc1', ('h', ps)))
        return o
    slots_h = [vr(accs[0] + 4*i, 4) for i in range(12)] + [ar(240 + 4*i, 4) for i in range(4)] + [ar(4*i, 4) for i in range(60 - NV, 60)]
    NH = len(slots_h)
    horder = [(t, kp) for kp in range(12) for t in (0, 1)] + [(t, kp) for t in (2, 3) for kp in range(12)]
    def hload(n):
        t, kp = horder[n]
        if env('NO_H', 0): return [f's_add_u32 s{42+t}, s{42+t}, {n}']
        g = [f'buffer_load_dwordx4 {slots_h[n % NH]}, v{vo16}, s[12:15], s{42+t} offen offset:{1024*(kp%4)} sc1']
        if kp % 4 == 3: g.append(f's_add_u32 s{42+t}, s{42+t}, 4096')
        return g
    def check(name, cnt):
        k.I(f'v_readfirstlane_b32 s33, v{hr}')
        k.I('s_cmp_ge_u32 s33, 16')
        k.I(f's_cbranch_scc0 L{name}_spin', noflush=True)
        k.raw(f'L{name}_ok:')
        spins.append((name, cnt))
    spins = []
    q1 = []
    for g in range(NPRE, 5): q1 += dma(0, g)
    xs_ = []
    for i in range(3):
        xs_.append([f'buffer_store_dwordx4 {vr(sx+4*i,4)}, v{vo16 if i < 2 else vx3}, s[12:15], s29 offen offset:{1024*i} sc1'])
    q1 += late[:-6] + [[f'buffer_load_dword v{hr}, v{hs}, s[12:15], s54 offen sc1']] + late[-6:] + xs_ + [['CHECK']]
    for g in range(5): q1 += dma(1, g)
    q1 += [[f'buffer_load_dwordx4 {vr(gb+4*j,4)}, v{t1}, s[12:15], s30 offen offset:{16*j} sc1'] for j in range(2)]
    nd = 0; nh = 0
    bars = {(0, 6): ('a', 0, 2, 1), (0, 10): ('a', 0, 4, 1), (0, 18): ('a', 1, 1, 1), (1, 6): ('a', 1, 4, 1), (1, env('K_SA', 9)): None}
    if len(V0) == 1: bars[(0, 2)] = ('a', 0, 1, 1)
    VRATE = env('VRATE', 25) / 120.0
    credit = 1.0
    KA_, KC_ = env('K_A', 14), env('K_C', 17)
    ep = []; vq_ = []
    fl = []
    since = 99
    def isvm(t): return (t[0] if isinstance(t, tuple) else t).startswith('buffer_')
    for ps in range(2):
        for kap in range(20):
            pend = list(fl) + [t for g in q1 for t in g]
            if ps == 0 and kap in (env('V2_AT', 4), env('V3_AT', 7)): assert not any(isinstance(t, tuple) and t[0] != 'GRP' and t[1] <= ('a', 0, 2 if kap == env('V2_AT', 4) else 4, 1) for t in pend), 'val early'
            for mt in range(3):
                assert ps or not any(isinstance(t, str) and t.startswith(f'buffer_load_dwordx4 {ar((3*kap+mt)*4,4)},') for t in pend), ('weight late', kap)
            if (ps, kap) in bars:
                while vq_: emit(vq_.pop(0))
                if bars[(ps, kap)]:
                    assert not any(isinstance(t, tuple) and t[0] != 'GRP' and t[1] <= bars[(ps, kap)] for t in pend), ('dma late', ps, kap)
                    k.wait_tag(bars[(ps, kap)])
                if not bars[(ps, kap)]:
                    assert not ep
                    em(k, 3)
                    k.wait_tag(('h', 0))
                    signal(k, 'HA', 55, hs, noflush=True)
                    em(k, 4)
                else: k.I('s_barrier')
            if ps == 0 and kap == 1 and len(V0) == 1: k.wait_tag(('a', 0, 1, 1)); vq_ = validate('V1', [1])
            if ps == 0 and kap == env('V2_AT', 4): k.wait_tag(('a', 0, 2, 1)); vq_ = validate('V2', [2])
            if ps == 0 and kap == env('V3_AT', 7): k.wait_tag(('a', 0, 4, 1)); vq_ = validate('V3', [3, 4])
            if ps == 0 and kap == 18:
                k.I(f'v_add_u32 v{rb[0]}, 40960, v{rb[0]}')
                k.I(f'v_add_u32 v{rb[1]}, 40960, v{rb[1]}')
            if ps == 1 and kap == 1:
                if env('EP_SERIAL', 1):
                    em(k, 1)
                    for t in epi(0): emit([t])
                    em(k, 2)
                else: ep = pairs(epi(0))
            if ps == 1 and kap == KA_: fl.insert(0 if not fl or isvm(fl[0]) else 1, f'buffer_load_dword v{hr}, v{hs}, s[12:15], s55 offen sc1') if False else k.I(f'buffer_load_dword v{hr}, v{hs}, s[12:15], s55 offen sc1')
            if ps == 1 and kap == KC_: em(k, 5); check('HA', 55); em(k, 6)
            for j in range(12):
                i, mt = divmod(j, 3)
                dd = vr(accs[ps]+(mt*4+i)*4, 4)
                k.I(f'{MF16} {dd}, {ar((3*kap+mt)*4,4)}, {vr(act+16*(kap&1)+4*i,4)}, {dd if kap else 0}')
                since += 1; credit = min(credit + VRATE, 1.6)
                rd = None
                if mt == 2:
                    if kap < 18: rd = aread(ps, i, kap + 2)
                    elif ps == 0: rd = aread(1, i, kap - 18)
                if rd: k.I(rd); continue
                if j == 10 and len(k.lg) > 3: k.waitcnt(lgkm=3); continue
                if j == 10 and ps == 1 and kap == 18: k.waitcnt(lgkm=0); continue
                if not fl:
                    free = NV + (3 * kap if ps else 0)
                    if q1 and q1[0] == ['CHECK']: q1.pop(0); check('H1', 54); continue
                    if q1: fl = list(q1.pop(0))
                    elif ps == 1 and kap >= KC_ and nh < 16 and (nh // 2) * 5 < nd: fl = list(hload(nh)); nh += 1
                    elif nd < min(free, 60): fl = list(dload(nd)); nd += 1
                if ep and isvm(ep[0][0]):
                    emit(ep.pop(0)); since = 0; credit -= 1.0
                elif fl and (not isvm(fl[0]) or (since >= 3 and credit >= 1.0)):
                    t = fl.pop(0)
                    if isvm(t): since = 0; credit -= 1.0
                    emit([t])
                elif vq_: emit(vq_.pop(0))
                elif ep:
                    g_ = ep.pop(0); emit(g_)
                    if ep and len(g_) == 1 and len(ep[0]) == 1 and not isvm(ep[0][0]): emit(ep.pop(0))
        if ps == 0 and not env('MD', 0): mark(k, 2)
    for t in fl: emit([t])
    assert not q1
    print('after E: wd loaded', nd, 'h loaded', nh)
    NHE = nh
    mark(k, 8); fm(k, 1); em(k, 7); pm(k, 1)
    fq = []
    def need_order():
        o = []; d = nd; h = nh
        for kp in range(12):
            while d < 5*(kp+1): o.append(dload(d)); d += 1
            while h < 2*(kp+1): o.append(hload(h)); h += 1
        return o
    fq = need_order()
    full = list(fq)
    def sorted_q(a_, b_):
        rest = [g for g in b_ if g not in full]
        return [g for g in full if g in a_ or g in b_] + rest
    fq += [['s_mov_b64 exec, s[34:35]', f'buffer_load_dwordx4 {vr(x1r+4*t,4)}, v{ox}, s[12:15], s{46+t} offen sc1', 's_mov_b64 exec, -1'] for t in range(4)]
    for t in epi(1): emit([t])
    fm(k, 2)
    if KC_ >= 20: check('HA', 55)
    fm(k, 3)
    for _ in range(env('F_PRE1', 0)):
        if fq: emit(fq.pop(0))
    mark(k, 9); fm(k, 4)
    fa = accs[1]
    SL = [0, 4*PT, 8*PT, 0]
    def pwrite(t, a): return [f'ds_write_b128 v{lw2 if dt & 1 else lw}, {vr(a+4*dt,4)} offset:{SL[t]+16*(dt//2)}' for dt in range(5)]
    def fin_reads(t, r): return [f'ds_read_b128 {vr(r+8*src+4*h_,4)}, v{lr} offset:{SL[t]+PT*src+160*h_}' for src in range(4) for h_ in range(2)]
    def fin_valu(t, r, xf):
        o = []
        for j in range(4):
            o.append(f'v_lshlrev_b32 v{xf+2*j}, 16, v{x1r+4*t+j}')
            o.append(f'v_and_b32 v{xf+2*j+1}, 0xffff0000, v{x1r+4*t+j}')
        for p in range(4): o.append(f'v_pk_add_f32 {vr(r+2*p,2)}, {vr(r+2*p,2)}, {vr(r+8+2*p,2)}')
        for p in range(4): o.append(f'v_pk_add_f32 {vr(r+16+2*p,2)}, {vr(r+16+2*p,2)}, {vr(r+24+2*p,2)}')
        for p in range(4): o.append(f'v_pk_add_f32 {vr(r+2*p,2)}, {vr(r+2*p,2)}, {vr(r+16+2*p,2)}')
        for p in range(4): o.append(f'v_pk_fma_f32 {vr(xf+2*p,2)}, {vr(r+2*p,2)}, {vr(gb+2*p,2)}, {vr(xf+2*p,2)}')
        for p in range(4): o.append(f'v_cvt_pk_bf16_f32 v{x1r+4*t+p}, v{xf+2*p}, v{xf+2*p+1}')
        return o
    OST = os.environ.get('OUT_ST', '')
    def fin_store(t): return ['s_mov_b64 exec, s[34:35]', f'buffer_store_dwordx4 {vr(x1r+4*t,4)}, v{oo}, s[36:39], s{25+t} offen{OST}', 's_mov_b64 exec, -1']
    KB_ = env('K_B', 3)
    fl = []
    def gap(pool):
        nonlocal fl
        if not fl and pool:
            g = pool.pop(0)
            if isinstance(g[0], str) and g[0].startswith('s_mov_b64 exec'): emit(g); return
            fl = list(g)
        if fl: emit([fl.pop(0)])
    FG = env('F_GAP', 5)
    KBL, KBC = env('K_BL', 8), env('K_BC', 11)
    since = 99; nh = 24
    hq = [hload(n) for n in range(24, 48)]
    for kp in range(12):
        if kp % 2 == 0: pm(k, 2 + kp // 2)
        if kp == KB_:
            k.wait_tag(('h', 1))
            signal(k, 'HB', 51, hs, noflush=True)
            fm(k, 5)
        if kp == KBL: fq.insert(0, [f'buffer_load_dword v{hr}, v{hs}, s[12:15], s51 offen sc1'])
        if kp == KBC:
            while fq or fl: gap(fq)
            check('HB', 51); fm(k, 7)
            fq = hq
        for t in range(2):
            need = [wdreg(5*kp+dt) for dt in range(5)] + [slots_h[(2*kp+t) % NH]]
            while fq is not hq and any(g[0].startswith(f'buffer_load_dwordx4 {r},') for g in fq for r in need): gap(fq)
            for dt in range(5):
                dd = vr(fa+20*t+4*dt, 4)
                k.I(f'{MF16} {dd}, {wdreg(5*kp+dt)}, {slots_h[(2*kp+t) % NH]}, {dd if kp else 0}')
                since += 1
                if dt == 4: continue
                if fl: gap(fq)
                elif since >= (env('F_GAP2', 5) if fq is hq else env('F_GAP1', 2)) and fq: gap(fq); since = 0
    pm(k, 8)
    while fl: gap(fq)
    if KBC >= 12:
        while fq: gap(fq)
    if not env('MD', 0): mark(k, 3)
    fm(k, 6); em(k, 8); pm(k, 9)
    def sprinkle(lst, every):
        for j, v_ in enumerate(lst):
            k.I(v_)
            if j % every == every - 1 and hq: emit(hq.pop(0))
    if KBC == 12: check('HB', 51); fm(k, 7)
    sprinkle(pwrite(0, fa) + pwrite(1, fa + 20), env('SPR', 2) if KBC <= 12 else 99)
    k.barrier()
    if KBC == 13:
        check('HB', 51); fm(k, 7)
        for _ in range(4): emit(hq.pop(0))
    em(k, 9)
    xfA = pk
    sprinkle(fin_reads(0, fa) + fin_reads(1, act), env('SPR2', 8))
    sprinkle(fin_valu(0, fa, pk), env('SPR3', 14))
    if not env('MD', 0): mark(k, 4)
    late_st = [fin_store(0), fin_store(1)]
    extra0 = pairs(fin_valu(1, act, fa + 40))
    rB = act
    extra = extra0
    hq = hq + late_st
    since = 99
    for t in (2, 3):
        a = fa + 20*(t - 2)
        if t == 3:
            assert not extra
            extra = [[w_] for w_ in pwrite(2, fa)]
        for kp in range(12):
            n = 24 + 12*(t-2) + kp
            if n == 25: fm(k, 8)
            assert not any(g[0].startswith(f'buffer_load_dwordx4 {slots_h[n % NH]},') for g in hq)
            for dt in range(5):
                dd = vr(a+4*dt, 4)
                k.I(f'{MF16} {dd}, {wdreg(5*kp+dt)}, {slots_h[n % NH]}, {dd if kp else 0}')
                since += 1
                if dt == 4 and n < 46: continue
                if fl: gap(hq)
                elif hq and since >= FG and not (extra is extra0 and extra and hq[0] is late_st[1]): gap(hq); since = 0
                elif (kp >= 1 or t == 2) and extra: emit(extra.pop(0))
            if t == 3 and kp == 3:
                assert not extra
                k.barrier()
                extra = [[r_] for r_ in fin_reads(2, wdv)] + pairs(fin_valu(2, wdv, xfA)) + [fin_store(2)]
    fm(k, 9)
    while extra: emit(extra.pop(0))
    for w_ in pwrite(3, fa + 20): k.I(w_)
    xl = fin_valu(3, wdv + 32, act)
    for v_ in xl[:8]: k.I(v_)
    k.barrier()
    for r_ in fin_reads(3, wdv + 32): k.I(r_)
    for v_ in xl[8:]: k.I(v_)
    emit(fin_store(3))
    if gen.STAMPS and not env('MF', 0): k.I('s_add_u32 s66, s50, s64')
    stamp_end(k, 3, 4)
    k.label('LD_exit')
    k.I('s_endpgm')
    k.label('LY_slow', fresh=True); k.vm = []; k.lg = []
    k.I('s_mov_b32 s24, 0x40000')
    k.label('LY_loop')
    k.I('s_add_u32 s50, s50, 1')
    k.I(f's_sleep {env("Y_SLEEP", 2)}')
    yloads()
    k.waitcnt(vm=0)
    k.I('s_sub_u32 s24, s24, 1')
    k.I('s_cbranch_scc1 LY_ok')
    ycheck()
    k.I('s_cbranch_scc1 LY_loop')
    k.I('s_branch LY_ok')
    k.label('LF0_slow', fresh=True); k.vm = []; k.lg = []
    k.I('s_mov_b32 s33, 0x40000')
    k.label('LF0_loop')
    k.I('s_sleep 4')
    k.I(f'buffer_load_dword v{hr}, v{hs}, s[12:15], s89 offen offset:1024 sc1')
    k.waitcnt(vm=0)
    k.I('s_sub_u32 s33, s33, 1')
    k.I('s_cbranch_scc1 LF0_ok')
    k.I(f'v_readfirstlane_b32 s24, v{hr}')
    k.I('s_cmp_lg_u32 s24, 1')
    k.I('s_cbranch_scc1 LF0_loop')
    k.I('s_branch LF0_ok')
    k.label('LWD', fresh=True); k.restore_state(st0)
    vc = VAlloc(keep)
    t0_ = vc.get(); t1_ = vc.get(); ra_ = vc.get(); so_ = vc.get(5); o_ = vc.get(20, 4)
    for p in range(5):
        k.I(f'v_add_u32 v{t0_}, {64*p}, v{vl}')
        k.I(f'v_mul_u32_u24 v{t1_}, 205, v{t0_}')
        k.I(f'v_lshrrev_b32 v{t1_}, 13, v{t1_}')
        k.I(f'v_mul_u32_u24 v{t1_}, 640, v{t1_}')
        k.I(f'v_add_u32 v{so_+p}, v{t1_}, v{vo16}')
    k.I(f'v_bfe_u32 v{t1_}, v{vl}, 2, 2')
    k.I(f'v_lshl_add_u32 v{t0_}, v{vq}, 3, v{t1_}')
    k.I(f'v_mul_u32_u24 v{ra_}, 640, v{t0_}')
    k.I(f'v_and_b32 v{t0_}, 3, v{vl}')
    k.I(f'v_mul_u32_u24 v{t0_}, 40, v{t0_}')
    k.I('s_mul_i32 s24, s22, 160')
    k.I(f's_add_u32 s24, s24, {CL}')
    k.I(f'v_add3_u32 v{ra_}, v{ra_}, v{t0_}, s24')
    k.I('s_mul_i32 s90, s22, 5120')
    k.I(f's_add_u32 s90, s90, {CL}')
    k.I('s_sub_u32 s48, s2, 161')
    if HALF:
        GL = CL + 20480
        wo_ = vc.get(3); rg_ = vc.get(); r2_ = vc.get(); og_ = vc.get(24, 4)
        for p in range(3):
            k.I(f'v_add_u32 v{t0_}, {64*p}, v{vl}')
            k.I(f'v_mul_u32_u24 v{t1_}, 171, v{t0_}')
            k.I(f'v_lshrrev_b32 v{t1_}, 12, v{t1_}')
            k.I(f'v_mul_u32_u24 v{t1_}, 2688, v{t1_}')
            k.I(f'v_add_u32 v{wo_+p}, v{t1_}, v{vo16}')
        k.srd(8, 36, D * F * 2)
        k.srd(16, 38, D * F * 2)
        k.I('s_sub_u32 s48, s2, 161')
        k.I('s_and_b32 s49, s48, 7')
        k.I('s_lshr_b32 s50, s48, 3')
        k.I('s_add_u32 s50, s50, 10')
        k.I('s_lshl_b32 s51, s50, 2')
        k.I('s_add_u32 s51, s51, s22')
        k.I(f's_mul_i32 s51, s51, {8*3072}')
        k.I('s_mul_i32 s24, s49, 384')
        k.I('s_add_u32 s51, s51, s24')
        k.I('s_mul_i32 s24, s22, 3072')
        k.I(f's_add_u32 m0, s24, {GL}')
        for p in range(3): k.I(f'buffer_load_dwordx4 v{wo_+p}, s[8:11], s51 offen offset:{1024*p} nt lds')
        k.I(f's_add_u32 m0, s24, {GL+12288}')
        for p in range(3): k.I(f'buffer_load_dwordx4 v{wo_+p}, s[16:19], s51 offen offset:{1024*p} nt lds')
        k.I('s_lshl_b32 s54, s49, 3')
        k.I('s_add_u32 s54, s54, s22')
        k.I('s_mul_i32 s54, s54, 10')
        k.I('s_add_u32 s54, s54, s50')
        k.I('s_mul_i32 s54, s54, 3072')
        k.I(f's_add_u32 s54, s54, {WGU_B - 30720}')
        k.I('s_cmp_lt_u32 s48, 80')
        k.I('s_cselect_b32 s54, s54, 0x7f000000')
        k.I(f's_add_u32 s34, s54, {4*10*3072}')
        k.I(f'v_bfe_u32 v{t1_}, v{vl}, 2, 2')
        k.I(f'v_lshl_add_u32 v{t0_}, v{vq}, 3, v{t1_}')
        k.I(f'v_mul_u32_u24 v{rg_}, 384, v{t0_}')
        k.I('s_mul_i32 s24, s22, 48')
        k.I(f's_add_u32 s24, s24, {GL}')
        k.I(f'v_add_u32 v{rg_}, s24, v{rg_}')
        k.I(f'v_and_b32 v{t0_}, 1, v{vl}')
        k.I(f'v_lshl_add_u32 v{r2_}, v{t0_}, 3, v{rg_}')
        k.I(f'v_bfe_u32 v{t0_}, v{vl}, 1, 1')
        k.I(f'v_mul_u32_u24 v{t0_}, 12288, v{t0_}')
        k.I(f'v_add_u32 v{r2_}, v{r2_}, v{t0_}')
        k.I(f'v_and_b32 v{t0_}, 3, v{vl}')
        k.I(f'v_lshl_add_u32 v{rg_}, v{t0_}, 3, v{rg_}')
    k.srd(36, 62, F * D * 2)
    k.srd(44, 4, F * D * 2, WD)
    def wd_in(sj):
        k.I(f's_and_b32 s49, s{sj}, 1')
        k.I(f's_lshr_b32 s50, s{sj}, 1')
        k.I('s_lshl_b32 s51, s50, 2')
        k.I('s_add_u32 s51, s51, s22')
        k.I('s_mul_i32 s51, s51, 10240')
        k.I('s_mul_i32 s24, s49, 640')
        k.I('s_add_u32 s51, s51, s24')
        k.I('s_mov_b32 m0, s90')
        for p in range(4): k.I(f'buffer_load_dwordx4 v{so_+p}, s[36:39], s51 offen offset:{1024*p} nt lds', tag='r')
        k.I('s_add_u32 m0, s90, 4096')
        k.I('s_add_u32 s51, s51, 4096')
        k.I(f'buffer_load_dwordx4 v{so_+4}, s[36:39], s51 offen nt lds', tag='r')
        k.I('s_lshl_b32 s52, s49, 2')
        k.I('s_add_u32 s52, s52, s22')
        k.I('s_mul_i32 s52, s52, 48')
        k.I('s_add_u32 s52, s52, s50')
        k.I('s_mul_i32 s52, s52, 5120')
        k.I('s_add_u32 s53, s52, 4096')
    def wd_out():
        k.wait_tag('r')
        k.I('s_barrier')
        cm_(k, 3)
        for j in range(2 if HALF else 0):
            for mt in range(3):
                for hf in range(2):
                    off = 4*hf*384 + 192*j + (12288 if mt == 1 else 0) + (32 if mt == 2 else 0)
                    k.I(f'ds_read_b64_tr_b16 {vr(og_+(3*j+mt)*4+2*hf,2)}, v{r2_ if mt == 2 else rg_} offset:{off}')
        for j in range(2 if HALF else 0):
            for mt in range(3):
                k.I(f'buffer_store_dwordx4 {vr(og_+(3*j+mt)*4,4)}, v{vo16}, s[12:15], s{34 if j else 54} offen offset:{1024*mt} sc1', tag='y')
        for dt in range(5):
            for hf in range(2): k.I(f'ds_read_b64_tr_b16 {vr(o_+dt*4+2*hf,2)}, v{ra_} offset:{4*hf*640+8*dt}')
        for dt in range(5):
            k.I(f'buffer_store_dwordx4 {vr(o_+dt*4,4)}, v{vo16}, s[44:47], s{52+(dt//4)} offen offset:{1024*(dt%4)} sc1', tag='y')
    wd_in(48)
    stW = k.save_state()
    k.I('s_sub_u32 s48, s2, 162')
    k.I('s_cmp_ge_u32 s48, 3')
    k.I('s_cbranch_scc1 LWD0')
    m0_ = 100
    k.I('s_lshl_b32 s48, s48, 8')
    k.I(f'v_add_u32 v{m0_}, s48, v0')
    k.I(f'v_lshlrev_b32 v{m0_+1}, 4, v{m0_}')
    k.srd(8, 4, 4 * 960 * 16, GR)
    for p in range(4):
        k.I(f's_mov_b32 s49, {960*16*p + 320*16}')
        k.I(f'buffer_load_dwordx4 {vr(m0_+4+4*p,4)}, v{m0_+1}, s[8:11], s49 offen')
    k.srd(12, 4, 4 * D * 4, MODN + 2 * D * 4)
    k.I('s_mov_b32 s50, 0x04000c0c')
    k.I('s_mov_b32 s51, 0x0706000c')
    k.I(f'v_mov_b32 v{m0_+22}, {fhex(1.0 / (2.0 * S * D))}')
    k.I(f'v_cmp_gt_u32 vcc, 0xa0, v{m0_}')
    k.I(f'v_cndmask_b32 v{m0_+22}, 1.0, v{m0_+22}, vcc')
    k.I(f'v_subrev_u32 v{m0_+21}, 0x140, v{m0_}')
    k.I(f'v_cmp_gt_u32 vcc, 0xa0, v{m0_+21}')
    k.I(f'v_mov_b32 v{m0_+23}, 1.0')
    k.I(f'v_cndmask_b32 v{m0_+23}, 0, v{m0_+23}, vcc')
    g_ = m0_ + 4
    for p in range(4): unpack_gran(k, g_+4*p, m0_+21, 50, 51)
    for p in (0, 2):
        k.I(f'v_pk_add_f32 {vr(g_+p,2)}, {vr(g_+p,2)}, {vr(g_+4+p,2)}')
        k.I(f'v_pk_add_f32 {vr(g_+8+p,2)}, {vr(g_+8+p,2)}, {vr(g_+12+p,2)}')
    for p in (0, 2): k.I(f'v_pk_add_f32 {vr(g_+p,2)}, {vr(g_+p,2)}, {vr(g_+8+p,2)}')
    for j in range(4): k.I(f'v_cvt_pk_bf16_f32 v{g_+j}, v{g_+j}, v{g_+j}')
    for j in range(4): k.I(f'v_and_b32 v{g_+j}, 0xffff0000, v{g_+j}')
    for j in range(4): k.I(f'v_add_f32 v{g_+j}, v{m0_+23}, v{g_+j}')
    for j in range(4): k.I(f'v_cvt_pk_bf16_f32 v{g_+j}, v{g_+j}, v{g_+j}')
    for j in range(4): k.I(f'v_and_b32 v{g_+j}, 0xffff0000, v{g_+j}')
    for j in range(4): k.I(f'v_mul_f32 v{g_+j}, v{m0_+22}, v{g_+j}')
    k.I(f'buffer_store_dwordx4 {vr(g_,4)}, v{m0_+1}, s[12:15], 0 offen sc1')
    k.label('LWD0')
    k.restore_state(stW)
    k.I('s_sub_u32 s48, s2, 161')
    scalars()
    k.I(f'v_mov_b32 v{hs}, 0')
    k.I(f'v_mov_b32 v{hs+1}, 1')
    cm_(k, 1)
    k.bg = bglist(); k.emit_bg(env('WD_B0', 14))
    cm_(k, 2)
    wd_out()
    cm_(k, 4)
    k.emit_bg(env('WD_B1', 10))
    k.wait_tag('y')
    cm_(k, 5)
    k.I('s_barrier')
    stS = k.save_state()
    k.I('s_cmp_lg_u32 s22, 0')
    k.I('s_cbranch_scc1 LFW_s')
    k.I(f'v_mov_b32 v{t0_}, 1')
    k.I(f'v_lshlrev_b32 v{t1_}, 7, v{vl}')
    k.I(f's_mov_b32 s35, {FW + 1024}')
    k.I('s_mov_b64 exec, 1')
    k.I(f'buffer_atomic_add v{t0_}, v{hs}, s[12:15], s35 offen sc0 sc1')
    k.I(f'v_readfirstlane_b32 s35, v{t0_}')
    k.I('s_cmp_eq_u32 s35, 94')
    k.I('s_cselect_b64 exec, 0xff, 0')
    k.I(f's_mov_b32 s35, {FW}')
    k.I(f'buffer_store_dword v{hs+1}, v{t1_}, s[12:15], s35 offen sc1')
    k.I('s_mov_b64 exec, -1')
    k.label('LFW_s')
    topup()
    k.emit_bg(W_J1_)
    dpro()
    t0_ = v8; t1_ = vcn
    cm_(k, 6)
    if env('CANARY', 1):
        k.I('s_lshl_b32 s48, s48, 14')
        k.I('s_add_u32 s48, s48, s25')
        k.I(f'v_mov_b32 v{t0_}, 0')
        k.I('s_mov_b32 s24, 0x400')
        k.I('s_cmp_lg_u32 s22, 0')
        k.I('s_cbranch_scc1 LCAN_o')
        k.label('LCAN')
        k.I('s_sleep 4')
        k.I(f'buffer_load_dword v{t1_}, v{t0_}, s[16:19], s48 offen sc1')
        k.waitcnt(vm=0)
        k.I(f'v_readfirstlane_b32 s49, v{t1_}')
        k.I('s_sub_u32 s24, s24, 1')
        k.I('s_cbranch_scc1 LCAN_o')
        k.I('s_bitcmp0_b32 s49, 0')
        k.I('s_cbranch_scc1 LCAN')
        k.label('LCAN_o')
        if env('CAN_SLEEP', 0): k.I(f's_sleep {env("CAN_SLEEP", 0)}')
        k.I('s_barrier')
    cm_(k, 7)
    k.I('s_branch LJOIN')
    for name, groups in slow:
        k.label(f'L{name}_slow', fresh=True); k.vm = []; k.lg = []
        k.I('s_mov_b32 s32, m0')
        k.I('s_mov_b32 s24, 0x40000')
        k.label(f'L{name}_loop')
        k.I('s_add_u32 s50, s50, 1')
        for g in groups:
            for grp in dma(0, g): _emit(grp)
        k.I('s_mov_b32 m0, s32')
        k.waitcnt(vm=0)
        k.I('s_sub_u32 s24, s24, 1')
        k.I(f's_cbranch_scc1 L{name}_ok')
        sl_ = list(slow)
        for g in validate(name + 'r', groups)[:-1]: _emit(g)
        slow[:] = sl_
        k.I('s_cmp_lg_u64 s[62:63], 0')
        k.I(f's_cbranch_scc1 L{name}_loop')
        k.I(f's_branch L{name}_ok')
    for name, cnt in spins:
        k.label(f'L{name}_spin', fresh=True); k.vm = []; k.lg = []
        k.I('s_mov_b32 s24, 0x100000')
        k.label(f'L{name}_loop')
        k.I(f's_sleep {env("SPIN_SLEEP", 2)}')
        k.I(f'buffer_load_dword v{hr}, v{hs}, s[12:15], s{cnt} offen sc1')
        k.waitcnt(vm=0)
        k.I(f'v_readfirstlane_b32 s33, v{hr}')
        k.I('s_sub_u32 s24, s24, 1')
        k.I(f's_cbranch_scc1 L{name}_ok')
        k.I('s_cmp_lt_u32 s33, 16')
        k.I(f's_cbranch_scc1 L{name}_loop')
        k.I(f's_branch L{name}_ok')
    return k, (256, 256, 163840)
```

```python
import os, math
import gen
from gen import *
from gen2 import *
from gen4 import YT, YT_ST, WS_END4, GR, unpack_gran
from gen import mark, stamp_begin, stamp_end

class Rec:
    def __init__(self): self.l = []
    def I(self, t, **kw): self.l.append(t)
def rec(fn, *a):
    r = Rec(); fn(r, *a); return r.l
def merge(k, main, fill, per):
    fill = list(fill)
    for m in main:
        k.I(m)
        for _ in range(per):
            if fill: k.I(fill.pop(0))
    return fill

import re as _re
def unpk(t):
    if isinstance(t, tuple) or not t.startswith('v_pk_'): return [t]
    m = _re.match(r'v_pk_(\w+)_f32 (.*)$', t)
    regs = [int(x) for x in _re.findall(r'v\[(\d+):\d+\]', m.group(2))]
    if m.group(1) == 'fma' and regs[0] == regs[3]: return [f'v_fmac_f32 v{regs[0]+j}, v{regs[1]+j}, v{regs[2]+j}' for j in range(2)]
    if m.group(1) == 'fma': return [f'v_fma_f32 v{regs[0]+j}, v{regs[1]+j}, v{regs[2]+j}, v{regs[3]+j}' for j in range(2)]
    return [f'v_{m.group(1)}_f32 v{regs[0]+j}, v{regs[1]+j}, v{regs[2]+j}' for j in range(2)]
def pairs(lst):
    out = []
    for t in lst:
        u = unpk(t)
        if len(u) == 2 and 'v_fma_' in u[0]: out += [[u[0]], [u[1]]]
        else: out.append(u)
    return out
def signal(k, name, cnt_sgpr, vtmp, noflush=False):
    k.I('s_barrier')
    st = k.save_state()
    k.I('s_cmp_lg_u32 s22, 0')
    k.I(f's_cbranch_scc1 L{name}_sig', noflush=noflush)
    k.I('s_mov_b64 exec, 1')
    k.I(f'buffer_atomic_add v{vtmp+1}, v{vtmp}, s[12:15], s{cnt_sgpr} offen sc1')
    k.I('s_mov_b64 exec, -1')
    if noflush: k.raw(f'L{name}_sig:')
    else: k.label(f'L{name}_sig')
    k.restore_state(st)
    k.vm.append((set(), None)) if False else None
def poll(k, name, cnt_sgpr, vtmp, vres):
    st = k.save_state()
    k.I('s_cmp_lg_u32 s22, 3')
    k.I(f's_cbranch_scc1 L{name}_done')
    k.I('s_mov_b32 s24, 0x100000')
    k.label(f'L{name}_poll')
    k.I(f'buffer_load_dword v{vres}, v{vtmp}, s[12:15], s{cnt_sgpr} offen sc1')
    k.waitcnt(vm=0)
    k.I(f'v_readfirstlane_b32 s33, v{vres}')
    k.I('s_sub_u32 s24, s24, 1')
    k.I(f's_cbranch_scc1 L{name}_done')
    k.I('s_cmp_lt_u32 s33, 16')
    k.I(f's_cbranch_scc1 L{name}_poll')
    k.label(f'L{name}_done')
    k.restore_state(st)
    k.I('s_barrier')

TAB = WS_END4
WS_END6 = TAB + 24 * 1024
class Fix:
    def __init__(self, seq): self.seq = list(seq)
    def get(self, *a): return self.seq.pop(0)
def role_tab(k):
    c0 = 24; f40 = c0; f16 = c0 + 62; cs = c0 + 68; sn = c0 + 80
    vi, vq, fi, fq, fq4, vo, t8, tmp = 2, 3, 4, 5, 6, 7, 8, 16
    k.I(f'v_and_b32 v{vi}, 15, v0')
    k.I(f'v_lshrrev_b32 v{vq}, 4, v0')
    k.I(f'v_cvt_f32_u32 v{fi}, v{vi}')
    k.I(f'v_cvt_f32_u32 v{fq}, v{vq}')
    k.I(f'v_mul_f32 v{fq4}, 4.0, v{fq}')
    k.I(f'v_lshlrev_b32 v{vo}, 4, v0')
    gen_f40(k, Fix([f40, t8, t8+4, t8+6]), fi, fq, True)
    gen_tw640(k, Fix([cs, sn, t8]), fi, fq4)
    k.I(f'v_cmp_gt_u32 vcc, 8, v{vi}')
    for r in range(4):
        k.I(f'v_cndmask_b32 v{cs+8+r}, 0, v{cs+8+r}, vcc')
        k.I(f'v_cndmask_b32 v{sn+8+r}, 0, v{sn+8+r}, vcc')
    k.I(f'v_mul_f32 v{t8}, {fhex(1.0/16)}, v{fi}')
    k.I(f'v_mul_f32 v{t8+1}, v{fq4}, v{t8}')
    for j in range(4): k.I(f'v_fmamk_f32 v{tmp+4+j}, v{t8}, {fhex(float(j))}, v{t8+1}')
    for j in range(4):
        k.I(f'v_cos_f32 v{tmp+j}, v{tmp+4+j}')
        k.I(f'v_sin_f32 v{tmp+4+j}, v{tmp+4+j}')
    for p in range(2):
        k.I(f'v_cvt_pk_bf16_f32 v{f16+p}, v{tmp+4+2*p}, v{tmp+5+2*p}')
        k.I(f'v_cvt_pk_bf16_f32 v{f16+2+p}, v{tmp+2*p}, v{tmp+1+2*p}')
        k.I(f'v_cvt_pk_bf16_f32 v{f16+4+p}, -v{tmp+4+2*p}, -v{tmp+5+2*p}')
    k.srd(24, 4, 23 * 1024, TAB)
    for i in range(23):
        if i % 4 == 0: k.I(f's_mov_b32 s28, {1024*i}')
        k.I(f'buffer_store_dwordx4 {vr(c0+4*i,4)}, v{vo}, s[24:27], s28 offen offset:{1024*(i%4)}')

XNT = ' nt' if os.environ.get('XNT') == '1' else ''
_mark = mark
def mark(k, i):
    if not env('MF', 0): _mark(k, i)
def fm(k, i):
    if env('MF', 0) == 1: _mark(k, i)
def pm(k, i):
    if env('MF', 0) == 3: _mark(k, i)
def em(k, i):
    if env('MF', 0) == 2: _mark(k, i)
def pack6(k, base, cs, sn, alt):
    def op(r, j, neg):
        n = neg ^ (alt and (j & 1))
        return ('-' if n else '') + f'v{r+j}'
    for p in range(2):
        k.I(f'v_cvt_pk_bf16_f32 v{base+p}, {op(sn,2*p,True)}, {op(sn,2*p+1,True)}')
        k.I(f'v_cvt_pk_bf16_f32 v{base+2+p}, {op(cs,2*p,False)}, {op(cs,2*p+1,False)}')
        k.I(f'v_cvt_pk_bf16_f32 v{base+4+p}, {op(sn,2*p,False)}, {op(sn,2*p+1,False)}')
WIM, WRE = 0, 2
F0 = FLAGS + 8192
WGU_B = WGU + 64 * 30720
FW = F0 + 1024
YFL = ['sc1', 'sc1 nt', 'sc0 sc1', 'sc0 sc1 nt'][env('YFL', 0)]
def hm(k, i):
    if env('MF', 0) == 5: _mark(k, i)
def cm_(k, i):
    if env('MF', 0) == 4: _mark(k, i)

HALF = env('HALF', 0)
def gen_DEF10():
    k = Kernel('kd_kernel')
    PL = 2592
    HB = 0; XB = 10240; SB = 122880; XL = 32768; MLD = XL + 4 * 2560; TL = MLD + 8192; CL = 81920
    W_ST = env('W_ST', 4); W_A = env('W_A', 4)
    NB1 = env('NB1', 24); W_J1 = W_J1_ = env('W_J1', 8); W_J = env('W_J', 8)
    stamp_begin(k)
    k.I('s_cmp_ge_u32 s2, 256')
    k.I('s_cbranch_scc1 LD_exit')
    k.I(f's_load_dwordx2 s[4:5], s[0:1], {KA["ws"]}')
    k.I(f's_load_dwordx2 s[6:7], s[0:1], {KA["x"]}')
    k.I(f's_load_dwordx2 s[40:41], s[0:1], {KA["out"]}')
    k.I(f's_load_dwordx2 s[62:63], s[0:1], {KA["wd"]}')
    if HALF: k.I(f's_load_dwordx4 s[36:39], s[0:1], {KA["wg"]}')
    va = VAlloc(2)
    hs = va.get(2, 2); vl = va.get(); vo16 = va.get(); vW = va.get(); vi = va.get(); vq = va.get(); oh = va.get(); oh2 = va.get(); hr = va.get()
    keep = va.n
    so = va.get(); wu = va.get(); wv = va.get(); ra = va.get(); xo = va.get(); mo = va.get(); wh = va.get(3); wx = va.get(); g0 = va.get(); g2 = va.get()
    ch = va.get(12, 4); xr = va.get(12, 2); mg = va.get(12, 4); mc = va.get(12, 4); ms = va.get(12, 4)
    d1 = va.get(24, 4); d2 = va.get(24, 4); dat = va.get(12, 2); tmp = va.get(8, 2)
    f40 = va.get(92, 4); f16 = f40 + 62; cs = f40 + 68; sn = f40 + 80
    tv = VAlloc(d1, d1 + 48)
    ta = tv.get(4); tk = tv.get(); cb_ = tv.get(); tq = tv.get(); v8 = tv.get(); vcn = tv.get(); vma = tv.get(); vmk = tv.get(2, 2)
    k.I('v_lshrrev_b32 v1, 6, v0')
    k.I(f'v_and_b32 v{vl}, 63, v0')
    k.I('v_readfirstlane_b32 s22, v1')
    k.I(f'v_lshlrev_b32 v{vo16}, 4, v{vl}')
    k.I(f'v_and_b32 v{vi}, 15, v{vl}')
    k.I(f'v_lshrrev_b32 v{vq}, 4, v{vl}')
    def scalars():
        k.I('s_and_b32 s20, s2, 6')
        k.I('s_lshl_b32 s20, s20, 1')
        k.I('s_lshr_b32 s21, s2, 6')
        k.I('s_add_u32 s20, s20, s21')
        k.I('s_bfe_u32 s56, s2, 0x30003')
        k.I('s_and_b32 s57, s2, 1')
        k.I('s_lshl_b32 s21, s57, 3')
        k.I('s_add_u32 s21, s21, s56')
        k.I('s_lshl_b32 s25, s20, 4')
        k.I('s_add_u32 s3, s25, s21')
        k.I('s_lshr_b32 s25, s20, 2')
        k.I('s_lshl_b32 s25, s25, 12')
        k.I('s_lshl_b32 s24, s57, 11')
        k.I('s_add_u32 s25, s25, s24')
        k.I('s_and_b32 s24, s21, 1')
        k.I('s_lshl_b32 s24, s24, 10')
        k.I('s_add_u32 s25, s25, s24')
        k.I('s_and_b32 s24, s20, 3')
        k.I('s_lshl_b32 s24, s24, 8')
        k.I('s_add_u32 s25, s25, s24')
        k.I('s_and_b32 s24, s21, 6')
        k.I('s_lshl_b32 s24, s24, 5')
        k.I('s_add_u32 s25, s25, s24')
        k.I(f's_add_u32 s26, s25, {64*16384}')
        k.I(f's_add_u32 s27, s25, {128*16384}')
        k.I('s_lshl_b32 s23, s20, 7')
        k.I('s_lshl_b32 s24, s21, 1')
        k.I('s_add_u32 s23, s23, s24')
        k.I('s_and_b32 s24, s22, 1')
        k.I('s_lshl_b32 s24, s24, 6')
        k.I('s_add_u32 s23, s23, s24')
        k.I('s_lshr_b32 s24, s22, 1')
        k.I('s_add_u32 s23, s23, s24')
        k.I('s_mul_i32 s28, s23, 1280')
        k.I(f's_add_u32 s29, s28, {32*1280}')
        k.I(f's_mul_i32 s30, s22, 2560')
        k.I(f's_add_u32 s30, s30, {XL}')
        k.I('s_add_u32 s23, s30, 1280')
        k.I('s_lshl_b32 s31, s22, 11')
        k.I(f's_add_u32 s88, s31, {MLD}')
        k.I(f's_add_u32 s31, s31, {MODN + 2*2560}')
        k.I('s_lshl_b32 s32, s21, 2')
        k.I('s_add_u32 s32, s32, s22')
        k.I('s_mul_i32 s24, s32, 30720')
        k.I(f's_add_u32 s24, s24, {WGU}')
        k.I(f'v_add_u32 v{vW}, s24, v{vo16}')
        k.I(f's_mul_i32 s58, s20, {8*49152}')
        k.I('s_mul_i32 s24, s32, 768')
        k.I('s_add_u32 s58, s58, s24')
        k.I(f's_add_u32 s58, s58, {HH}')
        for i in range(1, 4): k.I(f's_add_u32 s{58+i}, s58, {2*i*49152}')
        k.I('s_mul_i32 s24, s22, 6144')
        k.I(f's_add_u32 s42, s24, {TL}')
        k.I(f's_add_u32 s43, s24, {TAB}')
        k.I('s_add_u32 s33, s42, 4096')
        k.I('s_add_u32 s55, s43, 4096')
        k.I('s_and_b32 s89, s2, 7')
        k.I('s_lshl_b32 s89, s89, 7')
        k.I(f's_add_u32 s89, s89, {F0}')
        k.srd(12, 4, WS_END6)
        k.srd(8, 6, S * D * 2)
        k.srd(16, 4, 161 * 16384, XT)
    def wload(n):
        m_ = n % 30
        g = [f'buffer_load_dwordx4 {ar(4*n,4)}, v{vW}, s[12:15], 0 offen offset:{1024*(m_%4)}{" sc1" if n >= 30 and HALF else ""}']
        if n == 29: g.append(f'v_add_u32 v{vW}, {WGU_B - WGU - 28672}, v{vW}')
        elif m_ % 4 == 3: g.append(f'v_add_u32 v{vW}, 0x1000, v{vW}')
        return g
    def bglist():
        o = []
        for i in range(6):
            g = [f'buffer_load_dwordx4 v{vo16}, s[12:15], s{43 if i < 4 else 55} offen offset:{1024*(i%4)} lds']
            if i % 4 == 0: g = [f's_mov_b32 m0, s{42 if i < 4 else 33}'] + g
            o.append(g)
        for c in range(2):
            o.append([f's_mov_b32 m0, s{23 if c else 30}', f'buffer_load_dwordx4 v{vo16}, s[8:11], s{28+c} offen{XNT} lds'])
            o.append(['s_mov_b64 exec, 0xffff', f'buffer_load_dwordx4 v{vo16}, s[8:11], s{28+c} offen offset:1024{XNT} lds', 's_mov_b64 exec, -1'])
        w = [wload(n) for n in range(60)]
        WF = env('W_FIRST', 8)
        global AUX_LAST
        AUX_LAST = WF + 10
        return w[:WF] + o + w[WF:]
    NBG = 70
    def topup():
        k.bg_every = 0
        k.emit_bg(max(0, NB1 - (NBG - len(k.bg))))
        assert NBG - len(k.bg) == NB1, (NBG - len(k.bg), NB1)
    k.I('s_cmp_ge_u32 s2, 161')
    st0 = k.save_state()
    k.I('s_cbranch_scc1 LWD')
    vc = VAlloc(keep)
    vo8 = vc.get(); yo = vc.get(); wa = vc.get(); vC = vc.get()
    fi = vc.get(); fq4 = vc.get(); fk = vc.get(); fw16 = vc.get(); cta = vc.get(2); sg2 = vc.get(2, 2)
    f64 = vc.get(24, 2); f32 = vc.get(24, 2)
    c1 = vc.get(8, 2); s1_ = vc.get(8, 2); c2 = vc.get(8, 2); s2_ = vc.get(8, 2)
    TK = []
    for X in range(2):
        TK.append(dict(wq=vc.get(8, 2), dat=vc.get(32, 4), acc=vc.get(16, 4), pk=vc.get(8, 4), tmp=vc.get(8, 2)))
    tc = TK[0]['tmp']; ts = tc + 4
    k.I(f'v_lshlrev_b32 v{vo8}, 3, v{vl}')
    k.I('s_lshl_b32 s48, s2, 14')
    k.I('s_lshl_b32 s49, s22, 10')
    k.I('s_add_u32 s49, s49, s48')
    k.I('s_lshl_b32 s24, s22, 11')
    k.I('s_add_u32 s48, s48, s24')
    k.I(f's_add_u32 s90, s24, {CL}')
    k.I('s_mov_b32 m0, s90')
    k.I('s_cmp_eq_u32 s2, 0')
    k.I('s_cselect_b32 s50, 0, 1.0')
    k.I('s_cmp_eq_u32 s2, 160')
    k.I('s_cselect_b32 s50, 0, s50')
    k.I('s_mov_b32 s52, 0x80008000')
    k.I(f'v_lshlrev_b32 v{sg2}, 31, v{vi}')
    k.I(f'v_or_b32 v{sg2}, 1.0, v{sg2}')
    k.I(f'v_cvt_f32_u32 v{fi}, v{vi}')
    k.I(f'v_lshlrev_b32 v{fq4}, 2, v{vq}')
    k.I(f'v_cvt_f32_u32 v{fq4}, v{fq4}')
    k.I(f'v_lshlrev_b32 v{fw16}, 4, v1')
    k.I(f'v_cvt_f32_u32 v{fw16}, v{fw16}')
    k.I(f'v_add_f32 v{fk}, v{fw16}, v{fi}')
    def angles(step_reg, scale, base_add, dst, q=None):
        k.I(f'v_mul_f32 v{cta}, {fhex(scale)}, v{step_reg}')
        k.I(f'v_mul_f32 v{cta+1}, v{fq4 if q is None else q}, v{cta}')
        for j in range(4): k.I(f'v_fmamk_f32 v{dst+j}, v{cta}, {fhex(float(base_add + j))}, v{cta+1}')
    def sincos(c, s_):
        for j in range(4):
            k.I(f'v_cos_f32 v{c+j}, v{s_+j}')
            k.I(f'v_sin_f32 v{s_+j}, v{s_+j}')
    def flip(c, s_):
        for p in (0, 2):
            k.I(f'v_pk_mul_f32 {vr(c+p,2)}, {vr(c+p,2)}, {vr(sg2,2)} op_sel_hi:[1,0]')
            k.I(f'v_pk_mul_f32 {vr(s_+p,2)}, {vr(s_+p,2)}, {vr(sg2,2)} op_sel_hi:[1,0]')
    def flip6(base): return [f'v_xor_b32 v{base+j}, s52, v{base+j}' for j in (0, 1, 4, 5)]
    for kap in range(2):
        angles(fk, 1.0/64, 16*kap, ts); sincos(tc, ts)
        pack6(k, f64+6*kap, tc, ts, False)
        flip(tc, ts)
        pack6(k, f64+6*(kap+2), tc, ts, False)
        if kap == 0:
            k.srd(36, 4, XT_SZ, XT)
            k.srd(44, 4, XT_SZ, WT)
            for X in range(2):
                if X:
                    k.I('s_add_u32 m0, s90, 8192')
                    k.I('s_add_u32 s48, s48, 8192')
                k.I(f'buffer_load_dwordx4 v{vo16}, s[36:39], s48 offen lds', tag=('x', X))
                k.I(f'buffer_load_dwordx4 v{vo16}, s[36:39], s48 offen offset:1024 lds', tag=('x', X))
            for X in range(2):
                for m_ in range(2):
                    for V in range(2):
                        k.I(f'buffer_load_dwordx2 {vr(TK[X]["wq"]+4*m_+2*V,2)}, v{vo8}, s[44:47], s49 offen offset:{512*V}')
                    k.I('s_add_u32 s49, s49, 4096')
            cm_(k, 1)
            scalars()
            k.I('s_lshl_b32 s53, s22, 12')
            k.I('s_lshl_b32 s24, s2, 14')
            k.I('s_add_u32 s53, s53, s24')
            zz = TK[1]['dat']
            for j in range(4): k.I(f'v_mov_b32 v{zz+j}, 0')
            k.I(f'v_lshlrev_b32 v{zz+4}, 4, v0')
            k.I('s_mul_i32 s51, s2, 205')
            k.I('s_lshr_b32 s51, s51, 10')
            k.I('s_mul_i32 s51, s51, 40960')
            k.I('s_lshl_b32 s24, s2, 13')
            k.I('s_add_u32 s51, s51, s24')
            k.I(f's_add_u32 s51, s51, {H2}')
            k.I('s_cmp_lt_u32 s2, 160')
            k.I('s_cselect_b32 s51, s51, 0x7f000000')
            k.I(f'buffer_store_dwordx4 {vr(zz,4)}, v{zz+4}, s[12:15], s51 offen sc1', tag='z')
            k.I('s_add_u32 s51, s51, 4096')
            k.I(f'buffer_store_dwordx4 {vr(zz,4)}, v{zz+4}, s[12:15], s51 offen sc1', tag='z')
            k.bg = bglist(); k.bg_every = env('BGC1', 30)
    for N in range(2):
        angles(fk, 1.0/2048, 16*N, s1_+4*N); sincos(c1+4*N, s1_+4*N)
    angles(fi, 1.0/32, 0, ts); sincos(tc, ts)
    pack6(k, f32+0, tc, ts, False)
    pack6(k, f32+12, tc, ts, True)
    flip(tc, ts)
    pack6(k, f32+6, tc, ts, False)
    pack6(k, f32+18, tc, ts, True)
    k.I(f'v_add_f32 v{fw16}, v{fw16}, v{fq4}')
    for N in range(2):
        if N: k.I(f'v_add_f32 v{fi}, {fhex(16.0)}, v{fi}')
        angles(fi, 1.0/2048, 0, s2_+4*N, q=fw16); sincos(c2+4*N, s2_+4*N)
    k.I(f'v_add_u32 v{vC}, {CL}, v{vo16}')
    k.I(f'v_add_u32 v{wa}, s90, v{vo16}')
    k.I(f'v_and_b32 v{cta}, 2, v{vi}')
    k.I(f'v_mul_u32_u24 v{yo}, {(8192 + 32 - 32) // 2}, v{cta}')
    k.I(f'v_add_u32 v{yo}, v{yo}, v{vC}')
    k.I(f'v_cmp_eq_u32 vcc, 0, v{cta}')
    k.I(f'v_mov_b32 v{fk}, s50')
    k.I(f'v_cndmask_b32 v{fk}, 1.0, v{fk}, vcc')
    k.emit_bg(env('W_C0', 0))
    cm_(k, 2)
    k.wait_tag(('x', 1))
    k.I('s_barrier')
    cm_(k, 3)
    k.bg_every = env('BGC2', 18)
    def rd(X, base): return [f'ds_read_b128 {vr(TK[X]["dat"]+(2*kap+N)*4,4)}, v{vC} offset:{base+8192*X+2048*kap+1024*N}' for N in range(2) for kap in range(4)]
    def st1(X, inv):
        o = []; t = TK[X]
        for N in range(2):
            for kap in range(4):
                for c in range(2):
                    dd = vr(t['acc']+(2*N+c)*4, 4); da = vr(t['dat']+(2*kap+N)*4, 4); co = vr(f64+6*kap+(WIM if c else WRE), 4)
                    o.append(f'{MF16} {dd}, {co if inv else da}, {da if inv else co}, {dd if kap else 0}')
        return o
    def st3(X):
        o = []; t = TK[X]
        for N in range(2):
            for V in range(2):
                for c in range(2):
                    dd = vr(t['dat']+(2*V+c)*4, 4)
                    o.append(f'{MF16} {dd}, {vr(f32+(2*V+N)*6+(WIM if c else WRE),4)}, {vr(t["pk"]+4*N,4)}, {dd if N else 0}')
        return o
    def st4(X):
        o = []; t = TK[X]
        for V in range(2):
            for N in range(2):
                for c in range(2):
                    dd = vr(t['acc']+(2*N+c)*4, 4)
                    o.append(f'{MF16} {dd}, {vr(t["dat"]+16+4*V,4)}, {vr(f32+(2*N+V)*6+(WIM if c else WRE),4)}, {dd if V else 0}')
        return o
    def cmx(X, src, cc, ss, dst, conj):
        o = []
        for h_ in range(2): o += rec(cmul4, src+8*h_, src+8*h_+4, cc+4*h_, ss+4*h_, dst+4*h_, TK[X]['tmp'], conj)
        if env('C_SCALAR', 0):
            o2_ = []
            for t in o:
                if 'neg_lo' in t:
                    r4 = [int(x) for x in _re.findall(r'v\[(\d+):\d+\]', t)]
                    o2_ += [f'v_fma_f32 v{r4[0]+j}, v{r4[1]+j}, -v{r4[2]+j}, v{r4[3]+j}' for j in range(2)]
                else: o2_ += unpk(t)
            o = o2_
        return o
    def wun(X):
        t = TK[X]; o = []
        for j in range(8):
            o.append(f'v_lshlrev_b32 v{t["acc"]+2*j}, 16, v{t["wq"]+j}')
            o.append(f'v_and_b32 v{t["acc"]+2*j+1}, 0xffff0000, v{t["wq"]+j}')
        return o
    def outs(X):
        t = TK[X]; o = []; fl_ = f'v{fk}'
        for N in range(2):
            re = t['acc']+8*N; im = re+4; tm = t['tmp']
            for p in range(2):
                a_, b_ = 2*p, 2*p+1
                o.append(f'v_fma_f32 v{tm+4*p+0}, -v{im+b_}, {fl_}, v{re+a_}')
                o.append(f'v_fma_f32 v{tm+4*p+1}, v{im+a_}, {fl_}, v{re+b_}')
                o.append(f'v_fma_f32 v{tm+4*p+2}, v{im+b_}, {fl_}, v{re+a_}')
                o.append(f'v_fma_f32 v{tm+4*p+3}, -v{im+a_}, {fl_}, v{re+b_}')
            for j in range(4): o.append(f'v_cvt_pk_bf16_f32 v{t["pk"]+4*N+j}, v{tm+2*j}, v{tm+2*j+1}')
        return o
    def mg_(main, fill, per):
        for t in merge(k, main, fill, per): k.I(t)
    A_, B_ = TK
    PER = env('C_PER', 2); P3 = env('C_P3', 3)
    for t in rd(0, 0): k.I(t)
    mg_(st1(0, False), rd(1, 0), 1)
    mg_(st1(1, False)[:4], [], 0)
    mg_(st1(1, False)[4:], cmx(0, A_['acc'], c1, s1_, A_['pk'], False), PER)
    mg_(st3(0), wun(0) + cmx(1, B_['acc'], c1, s1_, B_['pk'], False), P3)
    cm_(k, 4)
    mg_(st3(1), wun(1) + cmx(0, A_['dat'], A_['acc'], A_['acc']+8, A_['dat']+16, True), P3)
    for w_ in range(4):
        for t in flip6(f32+6*w_): k.I(t)
    mg_(st4(0), cmx(1, B_['dat'], B_['acc'], B_['acc']+8, B_['dat']+16, True), P3)
    fl64 = []
    for kap in range(4): fl64 += flip6(f64+6*kap)
    ca = cmx(0, A_['acc'], c2, s2_, A_['pk'], True)
    mg_(st4(1), fl64[:8] + ca, P3)
    cm_(k, 5)
    for N in range(2): k.I(f'ds_write_b128 v{wa}, {vr(A_["pk"]+4*N,4)} offset:{16384+1024*N}')
    for t in cmx(1, B_['acc'], c2, s2_, B_['pk'], True): k.I(t)
    for N in range(2): k.I(f'ds_write_b128 v{wa}, {vr(B_["pk"]+4*N,4)} offset:{16384+8192+32+1024*N}')
    for t in fl64[8:]: k.I(t)
    k.wait_tag('z')
    k.barrier()
    cm_(k, 6)
    def rd2(e): return [f'ds_read_b128 {vr(TK[e]["dat"]+(2*kap+N)*4,4)}, v{yo} offset:{16384+32*e+2048*kap+1024*N}' for N in range(2) for kap in range(4)]
    def ost(e):
        o = outs(e); r_ = []
        for N in range(2):
            r_ += o[12*N:12*N+12] + [f'v_or_b32 v{TK[e]["pk"]+4*N}, 1, v{TK[e]["pk"]+4*N}',
                  (f'buffer_store_dwordx4 {vr(TK[e]["pk"]+4*N,4)}, v{vo16}, s[16:19], s53 offen offset:{2048*N+1024*e} sc1', 'y')]
        return r_
    def em_(t):
        if isinstance(t, tuple): k.I(t[0], tag=t[1])
        else: k.I(t)
    for t in rd2(0): k.I(t)
    mg_(st1(0, True), rd2(1), 1)
    topup()
    fill = ost(0)
    for j, m_ in enumerate(st1(1, True)):
        k.I(m_)
        for _ in range(PER):
            if fill: em_(fill.pop(0))
    for t in fill + ost(1): em_(t)
    cm_(k, 7)
    k.emit_bg(W_J1)
    def dpro():
        k.bg_every = 0
        k.I(f'v_lshrrev_b32 v{so}, 2, v0')
        k.I(f'v_lshlrev_b32 v{so}, 14, v{so}')
        k.I(f'v_and_b32 v{ta+1}, 3, v0')
        k.I(f'v_lshl_add_u32 v{so}, v{ta+1}, 4, v{so}')
        k.I(f'v_lshrrev_b32 v{ta+1}, 1, v0')
        k.I(f'v_cmp_ge_u32 s[34:35], 64, v{ta+1}')
        k.I(f'v_mov_b32 v{ch+8}, -1')
        k.I(f'v_add_u32 v{vma}, s88, v{vo16}')
        k.I(f'v_mov_b32 v{hs}, 0')
        k.I(f'v_mov_b32 v{hs+1}, 1')
        k.bg_every = 6
        nleft = len(k.bg); hold = k.bg[W_J:]; k.bg = k.bg[:W_J]
        addr = []
        A = addr.append
        A(f'v_lshrrev_b32 v{tq}, 1, v{vq}')
        A(f'v_mad_u32_u24 v{cb_}, v{vi}, 5, v{tq}')
        A(f'v_and_b32 v{tk}, 1, v{vq}')
        A(f'v_mul_u32_u24 v{oh}, 49152, v{tk}')
        A(f'v_lshlrev_b32 v{oh2}, 2, v{oh}')
        A(f'v_lshl_add_u32 v{oh}, v{tq}, 8, v{oh}')
        A(f'v_lshl_add_u32 v{oh}, v{vi}, 4, v{oh}')
        A(f'v_mul_u32_u24 v{tq}, 49152, v{tq}')
        A(f'v_add_u32 v{oh2}, v{oh2}, v{tq}')
        A(f'v_lshl_add_u32 v{oh2}, v{vi}, 4, v{oh2}')
        A(f'v_lshl_add_u32 v{tk}, v1, 1, v{tk}')
        for T in range(3):
            A(f'v_add_u32 v{tq}, {2*T}, v{cb_}')
            A(f'v_xor_b32 v{wh+T}, v{tq}, v{tk}')
            A(f'v_and_b32 v{wh+T}, 7, v{wh+T}')
            A(f'v_lshl_add_u32 v{wh+T}, v{tq}, 3, v{wh+T}')
            A(f'v_lshlrev_b32 v{wh+T}, 4, v{wh+T}')
            A(f'v_add_u32 v{wh+T}, {SB}, v{wh+T}')
        A(f'v_mul_u32_u24 v{wx}, 1280, v{tk}')
        A(f'v_lshl_add_u32 v{wx}, v{cb_}, 4, v{wx}')
        A(f'v_add_u32 v{wx}, {SB}, v{wx}')
        A(f'v_lshrrev_b32 v{tq}, 3, v0')
        A(f'v_xor_b32 v{g0}, v{tq}, v0')
        A(f'v_and_b32 v{g0}, 7, v{g0}')
        A(f'v_lshlrev_b32 v{g0}, 4, v{g0}')
        A(f'v_lshl_add_u32 v{g0}, v{tq}, 8, v{g0}')
        for t in addr: k.I(t)
        k.I(f'v_and_b32 v{ta}, 1, v0')
        k.I(f'v_mul_u32_u24 v{wu}, {2*PL}, v{ta}')
        k.I(f'v_sub_u32 v{wv}, 384, v{ta+1}')
        k.I(f'v_lshl_add_u32 v{wv}, v{wv}, 2, v{wu}')
        k.I(f'v_lshl_add_u32 v{wu}, v{ta+1}, 2, v{wu}')
        k.I(f's_mul_i32 s24, s22, {PL}')
        k.I(f'v_lshl_add_u32 v{ra}, v{vl}, 2, s24')
        k.I(f'v_mov_b32 v{dat+10}, 0'); k.I(f'v_mov_b32 v{dat+11}, 0')
        k.I(f'v_mul_u32_u24 v{xo}, 80, v{vi}')
        k.I(f'v_lshl_add_u32 v{xo}, v{vq}, 3, v{xo}')
        k.I(f'v_lshlrev_b32 v{mo}, 1, v{xo}')
        k.I(f'v_add_u32 v{xo}, s30, v{xo}')
        for j in range(8, 12): k.I(f'v_mov_b32 v{xr+j}, 0')
        k.emit_bg(99); k.bg_every = 0; k.bg = hold
    dpro()
    if env('Y_ACK', 0): k.wait_tag('y')
    k.label('LJOIN')
    def yloads():
        k.I('s_mov_b32 m0, s88')
        k.I(f'buffer_load_dwordx4 v{vo16}, s[12:15], s31 offen sc1 lds')
        k.I(f'buffer_load_dwordx4 v{vo16}, s[12:15], s31 offen offset:1024 sc1 lds')
        for rho in range(3):
            if rho == 2: k.I('s_mov_b64 exec, s[34:35]')
            k.I(f'buffer_load_dwordx4 {vr(ch+4*rho,4)}, v{so}, s[16:19], s{25+rho} offen {YFL}')
        k.I('s_mov_b64 exec, -1')
    def ycheck():
        k.I(f'v_and_b32 v{tq}, v{ch}, v{ch+4}')
        k.I(f'ds_read2st64_b32 {vr(vmk,2)}, v{vma} offset0:0 offset1:4')
        k.I(f'v_and_b32 v{tq}, v{tq}, v{ch+8}')
        k.I(f'v_and_b32 v{tq}, 1, v{tq}')
        k.I(f'v_add_u32 v{tq}, -1, v{tq}')
        k.I(f'v_max3_u32 v{tq}, v{tq}, v{vmk}, v{vmk+1}')
        k.I(f'v_cmp_eq_u32 s[62:63], -1, v{tq}')
        k.I('s_cmp_lg_u64 s[62:63], 0')
    yloads()
    if HALF: k.I(f'buffer_load_dword v{hr}, v{hs}, s[12:15], s89 offen offset:1024 sc1')
    W_Y = env('W_Y', 0)
    k.emit_bg(W_Y)
    mark(k, 1)
    tb_ = g2
    k.I(f'v_add_u32 v{tb_}, {TL}, v{vo16}')
    k.I('s_mov_b32 s50, 0')
    assert NB1 + W_J1 + W_J >= AUX_LAST
    nyoung = 5 + HALF + W_Y + (NB1 + W_J1 + W_J - AUX_LAST)
    if len(k.vm) > nyoung: k.waitcnt(vm=nyoung)
    k.I('s_barrier')
    tl = [f'ds_read_b128 {vr(f40+4*i,4)}, v{tb_} offset:{1024*i}' for i in range(23)]
    for t in tl: k.I(t)
    cm_(k, 8)
    ycheck()
    k.I('s_cbranch_scc1 LY_slow')
    k.label('LY_ok')
    mark(k, 2); cm_(k, 9)
    for rho in range(3):
        if rho == 2: k.I('s_mov_b64 exec, s[34:35]')
        for pr in range(2):
            k.I(f'ds_write_b32 v{wu}, v{ch+4*rho+2*pr} offset:{pr*PL+512*rho}')
            k.I(f'ds_write_b32 v{wv}, v{ch+4*rho+2*pr+1} offset:{pr*PL+512*(2-rho)}')
    k.I('s_mov_b64 exec, -1')
    k.I(f'v_lshlrev_b32 v{so}, 4, v0')
    k.I(f'v_add_u32 v{so}, {SB}, v{so}')
    def gochk():
        k.I(f'v_readfirstlane_b32 s24, v{hr}')
        k.I('s_cmp_lg_u32 s24, 1')
        k.I('s_cbranch_scc1 LF0_slow')
        k.label('LF0_ok')
    if HALF: gochk()
    k.barrier()
    mark(k, 3)
    for p in range(5):
        k.I(f'ds_read2st64_b32 {vr(dat+2*p,2)}, v{ra} offset0:{2*p} offset1:{2*p+1}')
    def s1(T):
        o = []
        for kap in range(3):
            for c in range(2):
                dd = vr(d1 + (2*T+c)*4, 4)
                o.append(f'{MF16} {dd}, {vr(dat+4*kap,4)}, {vr(f40+(2*T+c)*10+4*kap,4)}, {dd if kap else 0}')
        return o
    k.bg_every = env('BG2', 12)
    rest = merge(k, s1(0) + s1(1), [], 1)
    for t in rest: k.I(t)
    k.bg_every = 0
    for T in range(3): k.I(f'ds_read_b128 {vr(mg+4*T,4)}, v{mo} offset:{MLD+64*T}')
    a2 = ch; xf = f40
    cm = [rec(cmul4, d1+8*T, d1+8*T+4, cs+4*T, sn+4*T, a2+4*T, tmp, True) for T in range(3)]
    def s2(T): return [f'{MF16} {vr(d2+(2*T+c)*4,4)}, {vr(a2+4*T,4)}, {vr(f16+(0 if c else 2),4)}, 0' for c in range(2)]
    rest = merge(k, s1(2), cm[0], 2)
    for t in rest: k.I(t)
    for T in range(3):
        if T == 2: k.I('s_mov_b32 exec_hi, 0')
        for c in range(2):
            k.I(f'ds_read_b64 {vr(xr+(2*T+c)*2,2)}, v{xo} offset:{1280*c+32*T}')
    k.I('s_mov_b64 exec, -1')
    k.bg_every = env('BG2', 12)
    for t in s2(0) + cm[1] + s2(1) + cm[2] + s2(2): k.I(t)
    for T in range(3):
        k.I(f'ds_read_b128 {vr(ms+4*T,4)}, v{mo} offset:{MLD+2560+64*T}')
        k.I(f'ds_read_b128 {vr(mc+4*T,4)}, v{mo} offset:{MLD+5120+64*T}')
    st_ = f40 + 24
    for T in range(3):
        for i in range(4*T, 4*T+4):
            k.I(f'v_lshlrev_b32 v{xf+2*i}, 16, v{xr+i}')
            k.I(f'v_and_b32 v{xf+2*i+1}, 0xffff0000, v{xr+i}')
        for c in range(2):
            for p in (0, 2):
                r = (2*T+c)*4+p
                k.I(f'v_pk_fma_f32 {vr(xf+r,2)}, {vr(d2+r,2)}, {vr(mg+4*T+p,2)}, {vr(xf+r,2)}')
        for c in range(2):
            r = xf+(2*T+c)*4
            if T == 0:
                k.I(f'v_pk_add_f32 {vr(st_+2*c,2)}, {vr(r,2)}, {vr(r+2,2)}')
                k.I(f'v_pk_mul_f32 {vr(st_+4+2*c,2)}, {vr(r,2)}, {vr(r,2)}')
            else:
                k.I(f'v_pk_add_f32 {vr(st_+2*c,2)}, {vr(st_+2*c,2)}, {vr(r,2)}')
                k.I(f'v_pk_fma_f32 {vr(st_+4+2*c,2)}, {vr(r,2)}, {vr(r,2)}, {vr(st_+4+2*c,2)}')
        for c in range(2):
            r = xf+(2*T+c)*4+2
            if T: k.I(f'v_pk_add_f32 {vr(st_+2*c,2)}, {vr(st_+2*c,2)}, {vr(r,2)}')
            k.I(f'v_pk_fma_f32 {vr(st_+4+2*c,2)}, {vr(r,2)}, {vr(r,2)}, {vr(st_+4+2*c,2)}')
    for i in range(4): k.I(f'v_add_f32 v{st_+2*i}, v{st_+2*i}, v{st_+2*i+1}')
    wave_reduce_to_sgpr(k, [st_, st_+2, st_+4, st_+6], [46, 47, 48, 49])
    po = d1; ph = d1 + 12; hn = d2
    rr = f40 + 32; nmr = f40 + 34
    ln_scalars(k, 46, 48, rr, nmr, tmp)
    k.I(f'v_mov_b32 v{rr+4}, v{rr+1}')
    k.I(f'v_mov_b32 v{nmr+4}, v{nmr+1}')
    for T in range(3):
        for c in range(2):
            for p in (0, 2):
                r = (2*T+c)*4+p
                k.I(f'v_pk_fma_f32 {vr(hn+r,2)}, {vr(xf+r,2)}, {vr(rr+4*c,2)}, {vr(nmr+4*c,2)} op_sel_hi:[1,0,0]')
        for c in range(2):
            for p in (0, 2):
                r = hn+(2*T+c)*4+p
                k.I(f'v_pk_fma_f32 {vr(r,2)}, {vr(r,2)}, {vr(mc+4*T+p,2)}, {vr(ms+4*T+p,2)}')
        for j in range(4):
            k.I(f'v_cvt_pk_bf16_f32 v{ph+4*T+j}, v{hn+8*T+2*j}, v{hn+8*T+2*j+1}')
        if T:
            k.I(f'v_permlane16_swap_b32 v{ph+4*T-4}, v{ph+4*T-2}')
            k.I(f'v_permlane16_swap_b32 v{ph+4*T-3}, v{ph+4*T-1}')
            k.I(f'v_or_b32 v{ph+4*T-4}, 1, v{ph+4*T-4}')
            k.I(f'ds_write_b128 v{wh+T-1}, {vr(ph+4*T-4,4)} offset:{HB}')
    k.bg_every = 0
    for j in range(2): k.I(f'v_cvt_pk_bf16_f32 v{po+j}, v{xf+2*j}, v{xf+2*j+1}')
    k.I(f'v_permlane16_swap_b32 v{ph+8}, v{ph+10}')
    k.I(f'v_permlane16_swap_b32 v{ph+9}, v{ph+11}')
    k.I(f'v_or_b32 v{ph+8}, 1, v{ph+8}')
    k.I('s_mov_b32 exec_hi, 0')
    k.I(f'ds_write_b128 v{wh+2}, {vr(ph+8,4)} offset:{HB}')
    k.I('s_mov_b64 exec, -1')
    k.I('s_lshr_b32 s42, s3, 1')
    k.I('s_mul_i32 s42, s42, 20480')
    k.I('s_and_b32 s24, s21, 1')
    k.I('s_lshl_b32 s24, s24, 7')
    k.I('s_add_u32 s42, s42, s24')
    k.I(f's_add_u32 s42, s42, {H2}')
    k.I('s_add_u32 s44, s42, 8192')
    k.I('s_add_u32 s45, s42, 16384')
    if not HALF: k.I(f'buffer_load_dword v{hr}, v{hs}, s[12:15], s89 offen offset:1024 sc1')
    k.barrier()
    mark(k, 4); hm(k, 1)
    sd = mg
    for rho in range(3):
        k.I(f'ds_read_b128 {vr(sd+4*rho,4)}, v{so} offset:{HB+4096*rho}')
    for j in range(2, 12): k.I(f'v_cvt_pk_bf16_f32 v{po+j}, v{xf+2*j}, v{xf+2*j+1}')
    k.I(f'buffer_store_dwordx4 {vr(sd,4)}, v{g0}, s[12:15], s42 offen sc1', tag='h2')
    k.I(f'buffer_store_dwordx4 {vr(sd+4,4)}, v{g0}, s[12:15], s44 offen sc1', tag='h2')
    k.I('s_cmp_lt_u32 s22, 2')
    k.I('s_cselect_b64 exec, -1, 0')
    k.I(f'buffer_store_dwordx4 {vr(sd+8,4)}, v{g0}, s[12:15], s45 offen sc1', tag='h2')
    k.I('s_mov_b64 exec, -1')
    hm(k, 2)
    for T in range(3):
        k.I(f'v_permlane16_swap_b32 v{po+4*T}, v{po+4*T+2}')
        k.I(f'v_permlane16_swap_b32 v{po+4*T+1}, v{po+4*T+3}')
    for T in range(3):
        if T == 2: k.I('s_mov_b32 exec_hi, 0')
        k.I(f'ds_write_b128 v{wx}, {vr(po+4*T,4)} offset:{XB+32*T}')
    k.I('s_mov_b64 exec, -1')
    k.I(f's_add_u32 s24, s30, {SB + XB - XL}')
    k.I(f'v_add_u32 v{g2}, s24, v{vo16}')
    k.I('s_mul_i32 s43, s3, 10240')
    k.I(f's_add_u32 s43, s43, s30')
    k.I(f's_add_u32 s29, s43, {X1 - XL}')
    k.waitcnt(lgkm=0)
    sx = 244
    for i in range(3): k.I(f'ds_read_b128 {vr(sx+4*i,4)}, v{g2} offset:{1024*i}')
    def x1st():
        for i in range(3):
            if i == 2: k.I('s_mov_b32 exec_hi, 0')
            k.I(f'buffer_store_dwordx4 {vr(sx+4*i,4)}, v{vo16}, s[12:15], s43 offen offset:{1024*i} sc1')
        k.I('s_mov_b64 exec, -1')
    k.I('s_mul_i32 s24, s20, 163840')
    k.I(f's_add_u32 s24, s24, {H2}')
    k.I('s_add_u32 s16, s4, s24')
    k.I('s_addc_u32 s17, s5, 0')
    k.I('s_mov_b32 s18, 163840')
    k.I('s_mov_b32 s19, 0x00020000')
    k.I('s_and_b32 s52, s22, 2')
    k.I('s_add_u32 s52, s52, s22')
    k.I('s_mul_i32 s52, s52, 20480')
    k.I('s_add_u32 s53, s52, 40960')
    k.I('s_lshl_b32 s54, s20, 8')
    k.I(f's_add_u32 s54, s54, {FLAGS}')
    k.I('s_add_u32 s55, s54, 4096')
    k.I('s_add_u32 s51, s54, 128')
    k.srd(36, 40, S * D * 2)
    hm(k, 3)
    k.emit_bg(W_ST)
    hm(k, 4)
    va = VAlloc(keep)
    rb = [va.get(), va.get()]; vD = va.get()
    oo = va.get(); ox = va.get(); lw = va.get(); lr = va.get(); t0 = va.get(); t1 = va.get()
    act = va.get(32, 4); accs = [va.get(48, 4), va.get(48, 4)]; pk = va.get(12, 4)
    gb = va.get(8, 4); x1r = va.get(16, 4)
    NV = (256 - va.n) // 4
    wdv = va.get(4 * NV, 4)
    def wdreg(n): return vr(wdv + 4*n, 4) if n < NV else ar(4*(n - NV), 4)
    def emit(grp):
        for t in grp:
            if isinstance(t, tuple): k.I(t[0], tag=t[1])
            else: k.I(t)
    def dma(ps, g):
        out = []
        for j in range(4):
            gr = [(f'buffer_load_dwordx4 v{vo16}, s[16:19], m0 offen offset:{1024*j} sc1 lds', ('a', ps, g, j // 2))]
            if j == 0: gr = [f's_add_u32 m0, s{52+ps}, {4096*g}'] + gr
            out.append(gr)
        return out
    NPRE = 2
    if env('H1_FLAG', 0):
        k.wait_tag('h2')
        signal(k, 'H1', 54, hs)
        k.emit_bg(env('W_PL', 6))
        poll(k, 'H1p', 54, hs, hr)
    if env('H_ACK', 1): k.wait_tag('h2')
    hm(k, 5)
    for g in range(NPRE):
        for grp in dma(0, g): emit(grp)
    k.emit_bg(W_A)
    if not HALF: gochk()
    hm(k, 6)
    late = list(k.bg); k.bg = []
    print('late weight loads', len(late), 'NV', NV)
    k.I(f'v_mov_b32 v{rb[0]}, v{vo16}')
    k.I(f'v_add_u32 v{rb[1]}, {4*20480}, v{vo16}')
    def aread(ps, i, kap):
        off = ((i & 1) + 2*ps) * 20480 + 1024*kap
        base = rb[i >> 1]
        return f'ds_read_b128 {vr(act+16*(kap&1)+4*i,4)}, v{base} offset:{off - (40960 if ps else 0)}'
    k.I('s_lshl_b32 s24, s56, 2')
    k.I('s_add_u32 s24, s24, s22')
    k.I('s_mul_i32 s24, s24, 61440' if not env('W_SAME', 0) & 2 else 's_mul_i32 s24, s22, 61440')
    k.I(f's_add_u32 s24, s24, {WD}')
    k.I(f'v_add_u32 v{vD}, s24, v{vo16}')
    def dload(n):
        if env('NO_WD', 0): return [f'v_add_u32 v{vD}, 0, v{vD}']
        g = [f'buffer_load_dwordx4 {wdreg(n)}, v{vD}, s[12:15], 0 offen offset:{1024*(n%4)} sc1']
        if n % 4 == 3: g.append(f'v_add_u32 v{vD}, 0x1000, v{vD}')
        return g
    RS = 336; PT = 16 * RS
    k.I('s_lshl_b32 s24, s20, 1')
    k.I('s_add_u32 s24, s24, s57')
    k.I('s_lshl_b32 s24, s24, 2')
    k.I(f's_mul_i32 s33, s22, {12*1024}')
    k.I(f's_add_u32 s33, s33, {HH}')
    k.I('s_mul_i32 s42, s24, 49152')
    k.I('s_add_u32 s42, s42, s33')
    for i in range(1, 4): k.I(f's_add_u32 s{42+i}, s42, {49152*i}')
    k.I(f'v_mul_u32_u24 v{t0}, 26, v{vl}')
    k.I(f'v_lshrrev_b32 v{t0}, 8, v{t0}')
    k.I(f'v_mul_u32_u24 v{t1}, 10, v{t0}')
    k.I(f'v_sub_u32 v{t1}, v{vl}, v{t1}')
    k.I(f'v_mul_u32_u24 v{lr}, {RS}, v{t0}')
    k.I(f'v_lshl_add_u32 v{lr}, v{t1}, 4, v{lr}')
    k.I(f's_mul_i32 s25, s22, {4*RS}')
    k.I(f'v_add_u32 v{lr}, s25, v{lr}')
    k.I(f'v_mul_u32_u24 v{ox}, 1280, v{t0}')
    k.I(f'v_lshl_add_u32 v{ox}, v{t1}, 4, v{ox}')
    k.I(f'v_mul_u32_u24 v{oo}, {32*1280}, v{t0}')
    k.I(f'v_lshl_add_u32 v{oo}, v{t1}, 4, v{oo}')
    k.I(f'v_lshlrev_b32 v{t1}, 5, v{t1}')
    k.I(f'v_mul_u32_u24 v{lw}, {RS}, v{vi}')
    k.I(f's_mul_i32 s25, s22, {PT}')
    k.I(f'v_add_u32 v{lw}, s25, v{lw}')
    lw2 = t0
    k.I(f'v_mul_u32_u24 v{hr}, 5, v{vq}')
    k.I(f'v_add_u32 v{lw2}, 1, v{hr}')
    k.I(f'v_lshrrev_b32 v{lw2}, 1, v{lw2}')
    k.I(f'v_lshl_add_u32 v{lw2}, v{lw2}, 4, v{lw}')
    k.I(f'v_lshrrev_b32 v{hr}, 1, v{hr}')
    k.I(f'v_lshl_add_u32 v{lw}, v{hr}, 4, v{lw}')
    k.I(f'v_and_b32 v{hr}, 1, v{vq}')
    k.I(f'v_mul_u32_u24 v{hr}, 160, v{hr}')
    k.I(f'v_add_u32 v{lw}, v{lw}, v{hr}')
    k.I(f'v_sub_u32 v{lw2}, v{lw2}, v{hr}')
    k.I(f'v_add_u32 v{lw2}, 160, v{lw2}')
    k.I('s_mul_i32 s30, s56, 160')
    k.I('s_lshl_b32 s25, s24, 2')
    k.I('s_add_u32 s25, s25, s22')
    k.I(f's_mul_i32 s46, s25, {4*1280}')
    k.I('s_add_u32 s46, s46, s30')
    k.I(f's_add_u32 s46, s46, {X1}')
    for i in range(1, 4): k.I(f's_add_u32 s{46+i}, s46, {16*1280*i}')
    k.I('s_lshl_b32 s25, s20, 7')
    k.I('s_lshl_b32 s26, s57, 4')
    k.I('s_add_u32 s25, s25, s26')
    k.I('s_add_u32 s25, s25, s22')
    k.I('s_mul_i32 s25, s25, 1280')
    k.I('s_add_u32 s25, s25, s30')
    for i in range(1, 4): k.I(f's_add_u32 s{25+i}, s25, {4*1280*i}')
    k.I('s_lshl_b32 s30, s30, 1')
    k.I(f's_add_u32 s30, s30, {5*2560}')
    vx3 = x1r + 14
    k.I(f'v_cmp_gt_u32 vcc, 32, v{vl}')
    k.I(f'v_mov_b32 v{vx3}, 0x7ff00000')
    k.I(f'v_cndmask_b32 v{vx3}, v{vx3}, v{vo16}, vcc')
    k.I('s_mov_b32 s34, -1')
    k.I('s_mov_b32 s35, 0xff')
    vck = x1r; vad = x1r + 15
    k.I(f'v_add_u32 v{vad}, s52, v{vo16}')
    slow = []
    def validate(name, groups):
        o = []; n = 0
        for g in groups:
            for j in range(2):
                o.append([f'ds_read2st64_b32 {vr(vck+n,2)}, v{vad} offset0:{16*g+8*j} offset1:{16*g+8*j+4}']); n += 2
        i = 1
        while i < n:
            if i + 1 < n: o.append([f'v_bitop3_b32 v{vck}, v{vck}, v{vck+i}, v{vck+i+1} bitop3:0x80']); i += 2
            else: o.append([f'v_bitop3_b32 v{vck}, v{vck}, v{vck+i}, 1 bitop3:0x80']); i += 1
        o.append([f'v_cmp_eq_u32 s[62:63], 0, v{vck}'])
        o.append(['s_nop 0'])
        o.append(['s_cmp_lg_u64 s[62:63], 0', ('BR', f's_cbranch_scc1 L{name}_slow', f'L{name}_ok')])
        slow.append((name, groups))
        return o
    _emit = emit
    def emit(grp):
        for t in grp:
            if isinstance(t, tuple) and t[0] == 'GRP': emit(t[1])
            elif isinstance(t, tuple) and t[0] == 'BR':
                k.I(t[1], noflush=True); k.raw(t[2] + ':')
            else: _emit([t])
    V0 = [0] if env('V0_ONE', 1) else [0, 1]
    mark(k, 5); hm(k, 7)
    k.wait_tag('h2')
    k.wait_tag(('a', 0, V0[-1], 1))
    mark(k, 6); hm(k, 8)
    for g in validate('V0', V0): emit(g)
    if env('H1_FLAG', 0): k.I('s_barrier')
    else: signal(k, 'H1', 54, hs)
    mark(k, 7); hm(k, 9)
    for kp_ in range(2):
        for i in range(4): k.I(aread(0, i, kp_))
    def epi(ps):
        acc = accs[ps]; o = []
        for pr in range(2):
            for j in range(2):
                i = 2*pr + j
                g_ = acc + i*4; u_ = acc + (4+i)*4
                for p in (0, 2): o.append(f'v_pk_mul_f32 {vr(g_+p,2)}, {vr(g_+p,2)}, {vr(u_+p,2)}')
            a_ = acc + (8+2*pr)*4; b_ = a_ + 4
            for r in range(4): o.append(f'v_permlane32_swap_b32 v{a_+r}, v{b_+r}')
            for j in range(2):
                g_ = acc + (2*pr+j)*4
                for p in (0, 2): o.append(f'v_cvt_pk_bf16_f32 v{pk+4*pr+2*j+p//2}, v{g_+p}, v{g_+p+1}')
            for p in (0, 2): o.append(f'v_pk_mul_f32 {vr(a_+p,2)}, {vr(a_+p,2)}, {vr(b_+p,2)}')
            o.append(f'v_permlane16_swap_b32 v{pk+4*pr}, v{pk+4*pr+2}')
            o.append(f'v_permlane16_swap_b32 v{pk+4*pr+1}, v{pk+4*pr+3}')
            for p in (0, 2): o.append(f'v_cvt_pk_bf16_f32 v{pk+8+2*pr+p//2}, v{a_+p}, v{a_+p+1}')
            o.append((f'buffer_store_dwordx4 {vr(pk+4*pr,4)}, v{oh}, s[12:15], s{58+2*pr+ps} offen sc1', ('h', ps)))
        o.append(f'v_permlane16_swap_b32 v{pk+8}, v{pk+10}')
        o.append(f'v_permlane16_swap_b32 v{pk+9}, v{pk+11}')
        o.append((f'buffer_store_dwordx4 {vr(pk+8,4)}, v{oh2}, s[12:15], s{58+ps} offen offset:512 sc1', ('h', ps)))
        return o
    slots_h = [vr(accs[0] + 4*i, 4) for i in range(12)] + [ar(240 + 4*i, 4) for i in range(4)] + [ar(4*i, 4) for i in range(60 - NV, 60)]
    NH = len(slots_h)
    horder = [(t, kp) for kp in range(12) for t in (0, 1)] + [(t, kp) for t in (2, 3) for kp in range(12)]
    def hload(n):
        t, kp = horder[n]
        if env('NO_H', 0): return [f's_add_u32 s{42+t}, s{42+t}, {n}']
        g = [f'buffer_load_dwordx4 {slots_h[n % NH]}, v{vo16}, s[12:15], s{42+t} offen offset:{1024*(kp%4)} sc1']
        if kp % 4 == 3: g.append(f's_add_u32 s{42+t}, s{42+t}, 4096')
        return g
    def check(name, cnt):
        k.I(f'v_readfirstlane_b32 s33, v{hr}')
        k.I('s_cmp_ge_u32 s33, 16')
        k.I(f's_cbranch_scc0 L{name}_spin', noflush=True)
        k.raw(f'L{name}_ok:')
        spins.append((name, cnt))
    spins = []
    q1 = []
    for g in range(NPRE, 5): q1 += dma(0, g)
    xs_ = []
    for i in range(3):
        xs_.append([f'buffer_store_dwordx4 {vr(sx+4*i,4)}, v{vo16 if i < 2 else vx3}, s[12:15], s29 offen offset:{1024*i} sc1'])
    q1 += late[:-6] + [[f'buffer_load_dword v{hr}, v{hs}, s[12:15], s54 offen sc1']] + late[-6:] + xs_ + [['CHECK']]
    for g in range(5): q1 += dma(1, g)
    q1 += [[f'buffer_load_dwordx4 {vr(gb+4*j,4)}, v{t1}, s[12:15], s30 offen offset:{16*j} sc1'] for j in range(2)]
    nd = 0; nh = 0
    bars = {(0, 6): ('a', 0, 2, 1), (0, 10): ('a', 0, 4, 1), (0, 18): ('a', 1, 1, 1), (1, 6): ('a', 1, 4, 1), (1, env('K_SA', 9)): None}
    if len(V0) == 1: bars[(0, 2)] = ('a', 0, 1, 1)
    VRATE = env('VRATE', 25) / 120.0
    credit = 1.0
    KA_, KC_ = env('K_A', 14), env('K_C', 17)
    ep = []; vq_ = []
    fl = []
    since = 99
    def isvm(t): return (t[0] if isinstance(t, tuple) else t).startswith('buffer_')
    for ps in range(2):
        for kap in range(20):
            pend = list(fl) + [t for g in q1 for t in g]
            if ps == 0 and kap in (env('V2_AT', 4), env('V3_AT', 7)): assert not any(isinstance(t, tuple) and t[0] != 'GRP' and t[1] <= ('a', 0, 2 if kap == env('V2_AT', 4) else 4, 1) for t in pend), 'val early'
            for mt in range(3):
                assert ps or not any(isinstance(t, str) and t.startswith(f'buffer_load_dwordx4 {ar((3*kap+mt)*4,4)},') for t in pend), ('weight late', kap)
            if (ps, kap) in bars:
                while vq_: emit(vq_.pop(0))
                if bars[(ps, kap)]:
                    assert not any(isinstance(t, tuple) and t[0] != 'GRP' and t[1] <= bars[(ps, kap)] for t in pend), ('dma late', ps, kap)
                    k.wait_tag(bars[(ps, kap)])
                if not bars[(ps, kap)]:
                    assert not ep
                    em(k, 3)
                    k.wait_tag(('h', 0))
                    signal(k, 'HA', 55, hs, noflush=True)
                    em(k, 4)
                else: k.I('s_barrier')
            if ps == 0 and kap == 1 and len(V0) == 1: k.wait_tag(('a', 0, 1, 1)); vq_ = validate('V1', [1])
            if ps == 0 and kap == env('V2_AT', 4): k.wait_tag(('a', 0, 2, 1)); vq_ = validate('V2', [2])
            if ps == 0 and kap == env('V3_AT', 7): k.wait_tag(('a', 0, 4, 1)); vq_ = validate('V3', [3, 4])
            if ps == 0 and kap == 18:
                k.I(f'v_add_u32 v{rb[0]}, 40960, v{rb[0]}')
                k.I(f'v_add_u32 v{rb[1]}, 40960, v{rb[1]}')
            if ps == 1 and kap == 1:
                if env('EP_SERIAL', 1):
                    em(k, 1)
                    for t in epi(0): emit([t])
                    em(k, 2)
                else: ep = pairs(epi(0))
            if ps == 1 and kap == KA_: fl.insert(0 if not fl or isvm(fl[0]) else 1, f'buffer_load_dword v{hr}, v{hs}, s[12:15], s55 offen sc1') if False else k.I(f'buffer_load_dword v{hr}, v{hs}, s[12:15], s55 offen sc1')
            if ps == 1 and kap == KC_: em(k, 5); check('HA', 55); em(k, 6)
            for j in range(12):
                i, mt = divmod(j, 3)
                dd = vr(accs[ps]+(mt*4+i)*4, 4)
                k.I(f'{MF16} {dd}, {ar((3*kap+mt)*4,4)}, {vr(act+16*(kap&1)+4*i,4)}, {dd if kap else 0}')
                since += 1; credit = min(credit + VRATE, 1.6)
                rd = None
                if mt == 2:
                    if kap < 18: rd = aread(ps, i, kap + 2)
                    elif ps == 0: rd = aread(1, i, kap - 18)
                if rd: k.I(rd); continue
                if j == 10 and len(k.lg) > 3: k.waitcnt(lgkm=3); continue
                if j == 10 and ps == 1 and kap == 18: k.waitcnt(lgkm=0); continue
                if not fl:
                    free = NV + (3 * kap if ps else 0)
                    if q1 and q1[0] == ['CHECK']: q1.pop(0); check('H1', 54); continue
                    if q1: fl = list(q1.pop(0))
                    elif ps == 1 and kap >= KC_ and nh < 16 and (nh // 2) * 5 < nd: fl = list(hload(nh)); nh += 1
                    elif nd < min(free, 60): fl = list(dload(nd)); nd += 1
                if ep and isvm(ep[0][0]):
                    emit(ep.pop(0)); since = 0; credit -= 1.0
                elif fl and (not isvm(fl[0]) or (since >= 3 and credit >= 1.0)):
                    t = fl.pop(0)
                    if isvm(t): since = 0; credit -= 1.0
                    emit([t])
                elif vq_: emit(vq_.pop(0))
                elif ep:
                    g_ = ep.pop(0); emit(g_)
                    if ep and len(g_) == 1 and len(ep[0]) == 1 and not isvm(ep[0][0]): emit(ep.pop(0))
        if ps == 0 and not env('MD', 0): mark(k, 2)
    for t in fl: emit([t])
    assert not q1
    print('after E: wd loaded', nd, 'h loaded', nh)
    NHE = nh
    mark(k, 8); fm(k, 1); em(k, 7); pm(k, 1)
    fq = []
    def need_order():
        o = []; d = nd; h = nh
        for kp in range(12):
            while d < 5*(kp+1): o.append(dload(d)); d += 1
            while h < 2*(kp+1): o.append(hload(h)); h += 1
        return o
    fq = need_order()
    full = list(fq)
    def sorted_q(a_, b_):
        rest = [g for g in b_ if g not in full]
        return [g for g in full if g in a_ or g in b_] + rest
    fq += [['s_mov_b64 exec, s[34:35]', f'buffer_load_dwordx4 {vr(x1r+4*t,4)}, v{ox}, s[12:15], s{46+t} offen sc1', 's_mov_b64 exec, -1'] for t in range(4)]
    for t in epi(1): emit([t])
    fm(k, 2)
    if KC_ >= 20: check('HA', 55)
    fm(k, 3)
    for _ in range(env('F_PRE1', 0)):
        if fq: emit(fq.pop(0))
    mark(k, 9); fm(k, 4)
    fa = accs[1]
    SL = [0, 4*PT, 8*PT, 0]
    def pwrite(t, a): return [f'ds_write_b128 v{lw2 if dt & 1 else lw}, {vr(a+4*dt,4)} offset:{SL[t]+16*(dt//2)}' for dt in range(5)]
    def fin_reads(t, r): return [f'ds_read_b128 {vr(r+8*src+4*h_,4)}, v{lr} offset:{SL[t]+PT*src+160*h_}' for src in range(4) for h_ in range(2)]
    def fin_valu(t, r, xf):
        o = []
        for j in range(4):
            o.append(f'v_lshlrev_b32 v{xf+2*j}, 16, v{x1r+4*t+j}')
            o.append(f'v_and_b32 v{xf+2*j+1}, 0xffff0000, v{x1r+4*t+j}')
        for p in range(4): o.append(f'v_pk_add_f32 {vr(r+2*p,2)}, {vr(r+2*p,2)}, {vr(r+8+2*p,2)}')
        for p in range(4): o.append(f'v_pk_add_f32 {vr(r+16+2*p,2)}, {vr(r+16+2*p,2)}, {vr(r+24+2*p,2)}')
        for p in range(4): o.append(f'v_pk_add_f32 {vr(r+2*p,2)}, {vr(r+2*p,2)}, {vr(r+16+2*p,2)}')
        for p in range(4): o.append(f'v_pk_fma_f32 {vr(xf+2*p,2)}, {vr(r+2*p,2)}, {vr(gb+2*p,2)}, {vr(xf+2*p,2)}')
        for p in range(4): o.append(f'v_cvt_pk_bf16_f32 v{x1r+4*t+p}, v{xf+2*p}, v{xf+2*p+1}')
        return o
    OST = os.environ.get('OUT_ST', '')
    def fin_store(t): return ['s_mov_b64 exec, s[34:35]', f'buffer_store_dwordx4 {vr(x1r+4*t,4)}, v{oo}, s[36:39], s{25+t} offen{OST}', 's_mov_b64 exec, -1']
    KB_ = env('K_B', 3)
    fl = []
    def gap(pool):
        nonlocal fl
        if not fl and pool:
            g = pool.pop(0)
            if isinstance(g[0], str) and g[0].startswith('s_mov_b64 exec'): emit(g); return
            fl = list(g)
        if fl: emit([fl.pop(0)])
    FG = env('F_GAP', 5)
    KBL, KBC = env('K_BL', 8), env('K_BC', 11)
    since = 99; nh = 24
    hq = [hload(n) for n in range(24, 48)]
    for kp in range(12):
        if kp % 2 == 0: pm(k, 2 + kp // 2)
        if kp == KB_:
            k.wait_tag(('h', 1))
            signal(k, 'HB', 51, hs, noflush=True)
            fm(k, 5)
        if kp == KBL: fq.insert(0, [f'buffer_load_dword v{hr}, v{hs}, s[12:15], s51 offen sc1'])
        if kp == KBC:
            while fq or fl: gap(fq)
            check('HB', 51); fm(k, 7)
            fq = hq
        for t in range(2):
            need = [wdreg(5*kp+dt) for dt in range(5)] + [slots_h[(2*kp+t) % NH]]
            while fq is not hq and any(g[0].startswith(f'buffer_load_dwordx4 {r},') for g in fq for r in need): gap(fq)
            for dt in range(5):
                dd = vr(fa+20*t+4*dt, 4)
                k.I(f'{MF16} {dd}, {wdreg(5*kp+dt)}, {slots_h[(2*kp+t) % NH]}, {dd if kp else 0}')
                since += 1
                if dt == 4: continue
                if fl: gap(fq)
                elif since >= (env('F_GAP2', 5) if fq is hq else env('F_GAP1', 2)) and fq: gap(fq); since = 0
    pm(k, 8)
    while fl: gap(fq)
    if KBC >= 12:
        while fq: gap(fq)
    if not env('MD', 0): mark(k, 3)
    fm(k, 6); em(k, 8); pm(k, 9)
    def sprinkle(lst, every):
        for j, v_ in enumerate(lst):
            k.I(v_)
            if j % every == every - 1 and hq: emit(hq.pop(0))
    if KBC == 12: check('HB', 51); fm(k, 7)
    sprinkle(pwrite(0, fa) + pwrite(1, fa + 20), env('SPR', 2) if KBC <= 12 else 99)
    k.barrier()
    if KBC == 13:
        check('HB', 51); fm(k, 7)
        for _ in range(4): emit(hq.pop(0))
    em(k, 9)
    xfA = pk
    sprinkle(fin_reads(0, fa) + fin_reads(1, act), env('SPR2', 8))
    sprinkle(fin_valu(0, fa, pk), env('SPR3', 14))
    if not env('MD', 0): mark(k, 4)
    late_st = [fin_store(0), fin_store(1)]
    extra0 = pairs(fin_valu(1, act, fa + 40))
    rB = act
    extra = extra0
    hq = hq + late_st
    since = 99
    for t in (2, 3):
        a = fa + 20*(t - 2)
        if t == 3:
            assert not extra
            extra = [[w_] for w_ in pwrite(2, fa)]
        for kp in range(12):
            n = 24 + 12*(t-2) + kp
            if n == 25: fm(k, 8)
            assert not any(g[0].startswith(f'buffer_load_dwordx4 {slots_h[n % NH]},') for g in hq)
            for dt in range(5):
                dd = vr(a+4*dt, 4)
                k.I(f'{MF16} {dd}, {wdreg(5*kp+dt)}, {slots_h[n % NH]}, {dd if kp else 0}')
                since += 1
                if dt == 4 and n < 46: continue
                if fl: gap(hq)
                elif hq and since >= FG and not (extra is extra0 and extra and hq[0] is late_st[1]): gap(hq); since = 0
                elif (kp >= 1 or t == 2) and extra: emit(extra.pop(0))
            if t == 3 and kp == 3:
                assert not extra
                k.barrier()
                extra = [[r_] for r_ in fin_reads(2, wdv)] + pairs(fin_valu(2, wdv, xfA)) + [fin_store(2)]
    fm(k, 9)
    while extra: emit(extra.pop(0))
    for w_ in pwrite(3, fa + 20): k.I(w_)
    xl = fin_valu(3, wdv + 32, act)
    for v_ in xl[:8]: k.I(v_)
    k.barrier()
    for r_ in fin_reads(3, wdv + 32): k.I(r_)
    for v_ in xl[8:]: k.I(v_)
    emit(fin_store(3))
    if gen.STAMPS and not env('MF', 0): k.I('s_add_u32 s66, s50, s64')
    stamp_end(k, 3, 4)
    k.label('LD_exit')
    k.I('s_endpgm')
    k.label('LY_slow', fresh=True); k.vm = []; k.lg = []
    k.I('s_mov_b32 s24, 0x40000')
    k.label('LY_loop')
    k.I('s_add_u32 s50, s50, 1')
    k.I(f's_sleep {env("Y_SLEEP", 2)}')
    yloads()
    k.waitcnt(vm=0)
    k.I('s_sub_u32 s24, s24, 1')
    k.I('s_cbranch_scc1 LY_ok')
    ycheck()
    k.I('s_cbranch_scc1 LY_loop')
    k.I('s_branch LY_ok')
    k.label('LF0_slow', fresh=True); k.vm = []; k.lg = []
    k.I('s_mov_b32 s33, 0x40000')
    k.label('LF0_loop')
    k.I('s_sleep 4')
    k.I(f'buffer_load_dword v{hr}, v{hs}, s[12:15], s89 offen offset:1024 sc1')
    k.waitcnt(vm=0)
    k.I('s_sub_u32 s33, s33, 1')
    k.I('s_cbranch_scc1 LF0_ok')
    k.I(f'v_readfirstlane_b32 s24, v{hr}')
    k.I('s_cmp_lg_u32 s24, 1')
    k.I('s_cbranch_scc1 LF0_loop')
    k.I('s_branch LF0_ok')
    k.label('LWD', fresh=True); k.restore_state(st0)
    vc = VAlloc(keep)
    t0_ = vc.get(); t1_ = vc.get(); ra_ = vc.get(); so_ = vc.get(5); o_ = vc.get(20, 4)
    for p in range(5):
        k.I(f'v_add_u32 v{t0_}, {64*p}, v{vl}')
        k.I(f'v_mul_u32_u24 v{t1_}, 205, v{t0_}')
        k.I(f'v_lshrrev_b32 v{t1_}, 13, v{t1_}')
        k.I(f'v_mul_u32_u24 v{t1_}, 640, v{t1_}')
        k.I(f'v_add_u32 v{so_+p}, v{t1_}, v{vo16}')
    k.I(f'v_bfe_u32 v{t1_}, v{vl}, 2, 2')
    k.I(f'v_lshl_add_u32 v{t0_}, v{vq}, 3, v{t1_}')
    k.I(f'v_mul_u32_u24 v{ra_}, 640, v{t0_}')
    k.I(f'v_and_b32 v{t0_}, 3, v{vl}')
    k.I(f'v_mul_u32_u24 v{t0_}, 40, v{t0_}')
    k.I('s_mul_i32 s24, s22, 160')
    k.I(f's_add_u32 s24, s24, {CL}')
    k.I(f'v_add3_u32 v{ra_}, v{ra_}, v{t0_}, s24')
    k.I('s_mul_i32 s90, s22, 5120')
    k.I(f's_add_u32 s90, s90, {CL}')
    k.I('s_sub_u32 s48, s2, 161')
    if HALF:
        GL = CL + 20480
        wo_ = vc.get(3); rg_ = vc.get(); r2_ = vc.get(); og_ = vc.get(24, 4)
        for p in range(3):
            k.I(f'v_add_u32 v{t0_}, {64*p}, v{vl}')
            k.I(f'v_mul_u32_u24 v{t1_}, 171, v{t0_}')
            k.I(f'v_lshrrev_b32 v{t1_}, 12, v{t1_}')
            k.I(f'v_mul_u32_u24 v{t1_}, 2688, v{t1_}')
            k.I(f'v_add_u32 v{wo_+p}, v{t1_}, v{vo16}')
        k.srd(8, 36, D * F * 2)
        k.srd(16, 38, D * F * 2)
        k.I('s_sub_u32 s48, s2, 161')
        k.I('s_and_b32 s49, s48, 7')
        k.I('s_lshr_b32 s50, s48, 3')
        k.I('s_add_u32 s50, s50, 10')
        k.I('s_lshl_b32 s51, s50, 2')
        k.I('s_add_u32 s51, s51, s22')
        k.I(f's_mul_i32 s51, s51, {8*3072}')
        k.I('s_mul_i32 s24, s49, 384')
        k.I('s_add_u32 s51, s51, s24')
        k.I('s_mul_i32 s24, s22, 3072')
        k.I(f's_add_u32 m0, s24, {GL}')
        for p in range(3): k.I(f'buffer_load_dwordx4 v{wo_+p}, s[8:11], s51 offen offset:{1024*p} nt lds')
        k.I(f's_add_u32 m0, s24, {GL+12288}')
        for p in range(3): k.I(f'buffer_load_dwordx4 v{wo_+p}, s[16:19], s51 offen offset:{1024*p} nt lds')
        k.I('s_lshl_b32 s54, s49, 3')
        k.I('s_add_u32 s54, s54, s22')
        k.I('s_mul_i32 s54, s54, 10')
        k.I('s_add_u32 s54, s54, s50')
        k.I('s_mul_i32 s54, s54, 3072')
        k.I(f's_add_u32 s54, s54, {WGU_B - 30720}')
        k.I('s_cmp_lt_u32 s48, 80')
        k.I('s_cselect_b32 s54, s54, 0x7f000000')
        k.I(f's_add_u32 s34, s54, {4*10*3072}')
        k.I(f'v_bfe_u32 v{t1_}, v{vl}, 2, 2')
        k.I(f'v_lshl_add_u32 v{t0_}, v{vq}, 3, v{t1_}')
        k.I(f'v_mul_u32_u24 v{rg_}, 384, v{t0_}')
        k.I('s_mul_i32 s24, s22, 48')
        k.I(f's_add_u32 s24, s24, {GL}')
        k.I(f'v_add_u32 v{rg_}, s24, v{rg_}')
        k.I(f'v_and_b32 v{t0_}, 1, v{vl}')
        k.I(f'v_lshl_add_u32 v{r2_}, v{t0_}, 3, v{rg_}')
        k.I(f'v_bfe_u32 v{t0_}, v{vl}, 1, 1')
        k.I(f'v_mul_u32_u24 v{t0_}, 12288, v{t0_}')
        k.I(f'v_add_u32 v{r2_}, v{r2_}, v{t0_}')
        k.I(f'v_and_b32 v{t0_}, 3, v{vl}')
        k.I(f'v_lshl_add_u32 v{rg_}, v{t0_}, 3, v{rg_}')
    k.srd(36, 62, F * D * 2)
    k.srd(44, 4, F * D * 2, WD)
    def wd_in(sj):
        k.I(f's_and_b32 s49, s{sj}, 1')
        k.I(f's_lshr_b32 s50, s{sj}, 1')
        k.I('s_lshl_b32 s51, s50, 2')
        k.I('s_add_u32 s51, s51, s22')
        k.I('s_mul_i32 s51, s51, 10240')
        k.I('s_mul_i32 s24, s49, 640')
        k.I('s_add_u32 s51, s51, s24')
        k.I('s_mov_b32 m0, s90')
        for p in range(4): k.I(f'buffer_load_dwordx4 v{so_+p}, s[36:39], s51 offen offset:{1024*p} nt lds', tag='r')
        k.I('s_add_u32 m0, s90, 4096')
        k.I('s_add_u32 s51, s51, 4096')
        k.I(f'buffer_load_dwordx4 v{so_+4}, s[36:39], s51 offen nt lds', tag='r')
        k.I('s_lshl_b32 s52, s49, 2')
        k.I('s_add_u32 s52, s52, s22')
        k.I('s_mul_i32 s52, s52, 48')
        k.I('s_add_u32 s52, s52, s50')
        k.I('s_mul_i32 s52, s52, 5120')
        k.I('s_add_u32 s53, s52, 4096')
    def wd_out():
        k.wait_tag('r')
        k.I('s_barrier')
        cm_(k, 3)
        for j in range(2 if HALF else 0):
            for mt in range(3):
                for hf in range(2):
                    off = 4*hf*384 + 192*j + (12288 if mt == 1 else 0) + (32 if mt == 2 else 0)
                    k.I(f'ds_read_b64_tr_b16 {vr(og_+(3*j+mt)*4+2*hf,2)}, v{r2_ if mt == 2 else rg_} offset:{off}')
        for j in range(2 if HALF else 0):
            for mt in range(3):
                k.I(f'buffer_store_dwordx4 {vr(og_+(3*j+mt)*4,4)}, v{vo16}, s[12:15], s{34 if j else 54} offen offset:{1024*mt} sc1', tag='y')
        for dt in range(5):
            for hf in range(2): k.I(f'ds_read_b64_tr_b16 {vr(o_+dt*4+2*hf,2)}, v{ra_} offset:{4*hf*640+8*dt}')
        for dt in range(5):
            k.I(f'buffer_store_dwordx4 {vr(o_+dt*4,4)}, v{vo16}, s[44:47], s{52+(dt//4)} offen offset:{1024*(dt%4)} sc1', tag='y')
    wd_in(48)
    stW = k.save_state()
    k.I('s_sub_u32 s48, s2, 162')
    k.I('s_cmp_ge_u32 s48, 3')
    k.I('s_cbranch_scc1 LWD0')
    m0_ = 100
    k.I('s_lshl_b32 s48, s48, 8')
    k.I(f'v_add_u32 v{m0_}, s48, v0')
    k.I(f'v_lshlrev_b32 v{m0_+1}, 4, v{m0_}')
    k.srd(8, 4, 4 * 960 * 16, GR)
    for p in range(4):
        k.I(f's_mov_b32 s49, {960*16*p + 320*16}')
        k.I(f'buffer_load_dwordx4 {vr(m0_+4+4*p,4)}, v{m0_+1}, s[8:11], s49 offen')
    k.srd(12, 4, 4 * D * 4, MODN + 2 * D * 4)
    k.I('s_mov_b32 s50, 0x04000c0c')
    k.I('s_mov_b32 s51, 0x0706000c')
    k.I(f'v_mov_b32 v{m0_+22}, {fhex(1.0 / (2.0 * S * D))}')
    k.I(f'v_cmp_gt_u32 vcc, 0xa0, v{m0_}')
    k.I(f'v_cndmask_b32 v{m0_+22}, 1.0, v{m0_+22}, vcc')
    k.I(f'v_subrev_u32 v{m0_+21}, 0x140, v{m0_}')
    k.I(f'v_cmp_gt_u32 vcc, 0xa0, v{m0_+21}')
    k.I(f'v_mov_b32 v{m0_+23}, 1.0')
    k.I(f'v_cndmask_b32 v{m0_+23}, 0, v{m0_+23}, vcc')
    g_ = m0_ + 4
    for p in range(4): unpack_gran(k, g_+4*p, m0_+21, 50, 51)
    for p in (0, 2):
        k.I(f'v_pk_add_f32 {vr(g_+p,2)}, {vr(g_+p,2)}, {vr(g_+4+p,2)}')
        k.I(f'v_pk_add_f32 {vr(g_+8+p,2)}, {vr(g_+8+p,2)}, {vr(g_+12+p,2)}')
    for p in (0, 2): k.I(f'v_pk_add_f32 {vr(g_+p,2)}, {vr(g_+p,2)}, {vr(g_+8+p,2)}')
    for j in range(4): k.I(f'v_cvt_pk_bf16_f32 v{g_+j}, v{g_+j}, v{g_+j}')
    for j in range(4): k.I(f'v_and_b32 v{g_+j}, 0xffff0000, v{g_+j}')
    for j in range(4): k.I(f'v_add_f32 v{g_+j}, v{m0_+23}, v{g_+j}')
    for j in range(4): k.I(f'v_cvt_pk_bf16_f32 v{g_+j}, v{g_+j}, v{g_+j}')
    for j in range(4): k.I(f'v_and_b32 v{g_+j}, 0xffff0000, v{g_+j}')
    for j in range(4): k.I(f'v_mul_f32 v{g_+j}, v{m0_+22}, v{g_+j}')
    k.I(f'buffer_store_dwordx4 {vr(g_,4)}, v{m0_+1}, s[12:15], 0 offen sc1')
    k.label('LWD0')
    k.restore_state(stW)
    k.I('s_sub_u32 s48, s2, 161')
    scalars()
    k.I(f'v_mov_b32 v{hs}, 0')
    k.I(f'v_mov_b32 v{hs+1}, 1')
    cm_(k, 1)
    k.bg = bglist(); k.emit_bg(env('WD_B0', 14))
    cm_(k, 2)
    wd_out()
    cm_(k, 4)
    k.emit_bg(env('WD_B1', 10))
    k.wait_tag('y')
    cm_(k, 5)
    k.I('s_barrier')
    stS = k.save_state()
    k.I('s_cmp_lg_u32 s22, 0')
    k.I('s_cbranch_scc1 LFW_s')
    k.I(f'v_mov_b32 v{t0_}, 1')
    k.I(f'v_lshlrev_b32 v{t1_}, 7, v{vl}')
    k.I(f's_mov_b32 s35, {FW + 1024}')
    k.I('s_mov_b64 exec, 1')
    k.I(f'buffer_atomic_add v{t0_}, v{hs}, s[12:15], s35 offen sc0 sc1')
    k.I(f'v_readfirstlane_b32 s35, v{t0_}')
    k.I('s_cmp_eq_u32 s35, 94')
    k.I('s_cselect_b64 exec, 0xff, 0')
    k.I(f's_mov_b32 s35, {FW}')
    k.I(f'buffer_store_dword v{hs+1}, v{t1_}, s[12:15], s35 offen sc1')
    k.I('s_mov_b64 exec, -1')
    k.label('LFW_s')
    topup()
    k.emit_bg(W_J1_)
    dpro()
    t0_ = v8; t1_ = vcn
    if env('MD_WARM', 1):
        k.I('s_mov_b32 m0, s88')
        k.I(f'buffer_load_dwordx4 v{vo16}, s[12:15], s31 offen sc1 lds')
        k.I(f'buffer_load_dwordx4 v{vo16}, s[12:15], s31 offen offset:1024 sc1 lds')
    cm_(k, 6)
    if env('CANARY', 1):
        k.I('s_lshl_b32 s48, s48, 14')
        k.I('s_add_u32 s48, s48, s25')
        k.I(f'v_mov_b32 v{t0_}, 0')
        k.I('s_mov_b32 s24, 0x400')
        k.I('s_cmp_lg_u32 s22, 0')
        k.I('s_cbranch_scc1 LCAN_o')
        k.label('LCAN')
        k.I('s_sleep 4')
        k.I(f'buffer_load_dword v{t1_}, v{t0_}, s[16:19], s48 offen sc1')
        k.waitcnt(vm=0)
        k.I(f'v_readfirstlane_b32 s49, v{t1_}')
        k.I('s_sub_u32 s24, s24, 1')
        k.I('s_cbranch_scc1 LCAN_o')
        k.I('s_bitcmp0_b32 s49, 0')
        k.I('s_cbranch_scc1 LCAN')
        k.label('LCAN_o')
        if env('CAN_SLEEP', 0): k.I(f's_sleep {env("CAN_SLEEP", 0)}')
        k.I('s_barrier')
    cm_(k, 7)
    k.I('s_branch LJOIN')
    for name, groups in slow:
        k.label(f'L{name}_slow', fresh=True); k.vm = []; k.lg = []
        k.I('s_mov_b32 s32, m0')
        k.I('s_mov_b32 s24, 0x40000')
        k.label(f'L{name}_loop')
        k.I('s_add_u32 s50, s50, 1')
        for g in groups:
            for grp in dma(0, g): _emit(grp)
        k.I('s_mov_b32 m0, s32')
        k.waitcnt(vm=0)
        k.I('s_sub_u32 s24, s24, 1')
        k.I(f's_cbranch_scc1 L{name}_ok')
        sl_ = list(slow)
        for g in validate(name + 'r', groups)[:-1]: _emit(g)
        slow[:] = sl_
        k.I('s_cmp_lg_u64 s[62:63], 0')
        k.I(f's_cbranch_scc1 L{name}_loop')
        k.I(f's_branch L{name}_ok')
    for name, cnt in spins:
        k.label(f'L{name}_spin', fresh=True); k.vm = []; k.lg = []
        k.I('s_mov_b32 s24, 0x100000')
        k.label(f'L{name}_loop')
        k.I(f's_sleep {env("SPIN_SLEEP", 2)}')
        k.I(f'buffer_load_dword v{hr}, v{hs}, s[12:15], s{cnt} offen sc1')
        k.waitcnt(vm=0)
        k.I(f'v_readfirstlane_b32 s33, v{hr}')
        k.I('s_sub_u32 s24, s24, 1')
        k.I(f's_cbranch_scc1 L{name}_ok')
        k.I('s_cmp_lt_u32 s33, 16')
        k.I(f's_cbranch_scc1 L{name}_loop')
        k.I(f's_branch L{name}_ok')
    return k, (256, 256, 163840)
```

```python
import sys, math, os
import gen, gen2
from gen import *
from gen2 import *
from gen import mark, stamp_begin, stamp_end

GR = WS_END2
YT = GR + 0x10000
YT_ST = 10496
WS_END4 = YT + 256 * YT_ST
EPOCH = 0x8000
NREP = env('NREP', 8)
GRR = YT
NPF = 9
XNT = ' nt' if os.environ.get('XNT') == '1' else ''

def tag_issue(k, srd, vz, vt, off=0):
    k.I(f'buffer_load_dwordx2 {vr(vt,2)}, v{vz}, s[{srd}:{srd+3}], 0 offen offset:{off} sc1')
def tag_check(k, name, srd, vz, vt, s_tag, off=0):
    k.I('s_mov_b32 s3, 0x40000')
    k.waitcnt(vm=0)
    k.label(f'L{name}')
    k.I(f'v_readfirstlane_b32 s{s_tag+1}, v{vt+1}')
    k.I(f'v_readfirstlane_b32 s{s_tag}, v{vt}')
    k.I(f's_cmp_eq_u32 s{s_tag+1}, 1')
    k.I(f's_cbranch_scc1 L{name}_o')
    k.I('s_sub_u32 s3, s3, 1')
    k.I(f's_cbranch_scc1 L{name}_o')
    k.I('s_sleep 4')
    tag_issue(k, srd, vz, vt, off)
    k.waitcnt(vm=0)
    k.I(f's_branch L{name}')
    k.label(f'L{name}_o')

def role_mod4(k, lexit):
    va = VAlloc(1)
    vrw = va.get(); voff = va.get(); vc = va.get(5); vw = va.get(20, 4); acc = va.get(8, 4); t0 = va.get(); t1 = va.get(); vco = va.get()
    vz = va.get(); vt = va.get(2, 2)
    k.I(f'v_lshrrev_b32 v{vrw}, 3, v0')
    k.I(f'v_mul_u32_u24 v{voff}, 7680, v{vrw}')
    k.I(f'v_and_b32 v{t0}, 7, v0')
    k.I(f'v_lshl_add_u32 v{voff}, v{t0}, 4, v{voff}')
    k.I(f'v_lshlrev_b32 v{vco}, 1, v{vrw}')
    k.I(f'v_mov_b32 v{vz}, 0')
    k.I('s_lshl_b32 s23, s20, 7')
    k.I(f's_mul_i32 s22, s21, {160*7680}')
    k.I('s_add_u32 s23, s23, s22')
    k.I('s_mul_i32 s22, s21, 320')
    k.srd(24, 10, D * 6 * D * 2)
    k.srd(28, 8, D * 2)
    mark(k, 1)
    for i in range(5):
        k.I(f'buffer_load_dwordx4 {vr(vw+4*i,4)}, v{voff}, s[24:27], s23 offen nt')
        if i < 4: k.I(f's_add_u32 s23, s23, {32*7680}')
        if i == 0:
            for j in range(5): k.I(f'buffer_load_ushort v{vc+j}, v{vco}, s[28:31], s22 offen offset:{64*j}')
    mark(k, 2)
    k.srd(32, 4, 4 * 960 * 16, GR)
    k.srd(52, 56, 256)
    up = va.get(8, 2)
    tt = va.get(5)
    R = range(5)
    for i in R: k.I(f'v_lshlrev_b32 v{vc+i}, 16, v{vc+i}')
    def tagld():
        k.I('v_readfirstlane_b32 s38, v0')
        k.I(f'v_mov_b32 v{vt+1}, 1')
        k.I('s_add_u32 s39, s38, s20')
        k.I('s_cmp_lt_u32 s39, 20')
        k.I('s_cselect_b64 exec, 1, 0')
        tag_issue(k, 52, vz, vt)
        k.I('s_mov_b64 exec, -1')
    TAT = env('TAG_AT', 1)
    if TAT == 0: tagld()
    mark(k, 3)
    for i in R: k.I(f'v_mul_f32 v{tt+i}, {fhex(-math.log2(math.e))}, v{vc+i}')
    for i in R: k.I(f'v_exp_f32 v{tt+i}, v{tt+i}')
    for i in R: k.I(f'v_add_f32 v{tt+i}, 1.0, v{tt+i}')
    for i in R: k.I(f'v_rcp_f32 v{tt+i}, v{tt+i}')
    for i in R: k.I(f'v_mul_f32 v{vc+i}, v{vc+i}, v{tt+i}')
    for i in R: k.I(f'v_cvt_pk_bf16_f32 v{vc+i}, v{vc+i}, v{vc+i}')
    sv = va.get(10, 2)
    for i in R: k.I(f'v_and_b32 v{sv+2*i}, 0xffff0000, v{vc+i}')
    if TAT == 1: tagld()
    for i in R:
        for j in range(4):
            k.I(f'v_lshlrev_b32 v{up+2*j}, 16, v{vw+4*i+j}')
            k.I(f'v_and_b32 v{up+2*j+1}, 0xffff0000, v{vw+4*i+j}')
        for j in range(4):
            if i == 0: k.I(f'v_pk_mul_f32 {vr(acc+2*j,2)}, {vr(up+2*j,2)}, {vr(sv,2)} op_sel_hi:[1,0]')
            else: k.I(f'v_pk_fma_f32 {vr(acc+2*j,2)}, {vr(up+2*j,2)}, {vr(sv+2*i,2)}, {vr(acc+2*j,2)} op_sel_hi:[1,0,1]')
    if TAT == 2: tagld()
    for j in range(8): k.I(f'v_add_f32_dpp v{acc+j}, v{acc+j}, v{acc+j} row_ror:8 row_mask:0xf bank_mask:0xf')
    k.I(f'v_lshrrev_b32 v{t1}, 4, v0')
    k.I(f'v_lshlrev_b32 v{t1}, 8, v{t1}')
    k.I(f'v_lshl_add_u32 v{t1}, v{t0}, 5, v{t1}')
    k.I('s_mov_b32 exec_lo, 0x00ff00ff')
    k.I('s_mov_b32 exec_hi, 0x00ff00ff')
    k.I(f'ds_write_b128 v{t1}, {vr(acc,4)}')
    k.I(f'ds_write_b128 v{t1}, {vr(acc+4,4)} offset:16')
    k.I('s_mov_b64 exec, -1')
    k.I('v_readfirstlane_b32 s38, v0')
    k.I(f'v_lshlrev_b32 v{t0}, 2, v0')
    k.barrier()
    mark(k, 4)
    k.I('s_cmp_lg_u32 s38, 0')
    k.I(f's_cbranch_scc1 {lexit}')
    for j in range(8):
        k.I(f'ds_read2st64_b32 {vr(vw+2*j,2)}, v{t0} offset0:{2*j} offset1:{2*j+1}')
    k.I('s_sub_u32 s39, s20, 10')
    k.I('s_cmp_lt_u32 s39, 10')
    k.I('s_cselect_b32 s41, 1.0, 0')
    k.I('s_cmp_eq_u32 s21, 0')
    k.I('s_cselect_b32 s41, s41, 0')
    k.I(f's_mul_i32 s45, s21, {960*16}')
    k.I('s_lshl_b32 s44, s20, 8')
    k.I('s_add_u32 s45, s45, s44')
    k.I('s_mov_b32 s40, 0x07060503')
    k.I('s_mov_b32 s42, 0x07060502')
    k.I('s_mov_b32 s43, 0x07060501')
    for j in range(4): k.I(f'v_pk_add_f32 {vr(vw+2*j,2)}, {vr(vw+2*j,2)}, {vr(vw+8+2*j,2)}')
    for j in range(2): k.I(f'v_pk_add_f32 {vr(vw+2*j,2)}, {vr(vw+2*j,2)}, {vr(vw+4+2*j,2)}')
    k.I(f'v_pk_add_f32 {vr(vw,2)}, {vr(vw,2)}, {vr(vw+2,2)}')
    k.I(f'v_add_f32 v{vw}, v{vw}, v{vw+1}')
    k.I(f'v_add_f32 v{vw}, s41, v{vw}')
    for j in range(1, 4): k.I(f'v_mov_b32_dpp v{vw+j}, v{vw} quad_perm:[{j},{j},{j},{j}] row_mask:0xf bank_mask:0xf')
    if NREP > 1: k.I(f'v_mov_b32_dpp v{vw}, v{vw} quad_perm:[0,0,0,0] row_mask:0xf bank_mask:0xf')
    for j, sel in enumerate((40, 42, 43)): k.I(f'v_perm_b32 v{vw+j}, v{vw+j}, v{vw+3}, s{sel}')
    if NREP > 1:
        k.I(f'v_and_b32 v{t1}, 3, v0')
        k.I(f'v_mul_u32_u24 v{t1}, {20480 - 4}, v{t1}')
        k.I(f'v_add_u32 v{t1}, v{t1}, v{t0}')
        k.srd(48, 4, NREP * 20480, GRR)
        k.I('s_mul_i32 s46, s21, 5120')
        k.I('s_add_u32 s46, s46, s44')
    mark(k, 5)
    tag_check(k, 'A_tag', 52, vz, vt, 58)
    mark(k, 6)
    k.I(f'v_mov_b32 v{vw+3}, s58')
    if NREP > 1:
        k.I('s_cmp_ge_u32 s20, 20')
        k.I('s_cbranch_scc1 LA_one')
        for r in range(NREP // 4):
            k.I(f'buffer_store_dwordx4 {vr(vw,4)}, v{t1}, s[48:51], s46 offen sc1')
            k.I(f's_add_u32 s46, s46, {4*20480}')
        k.I(f's_branch {lexit}')
        k.label('LA_one')
    k.I('s_mov_b32 exec_lo, 0x11111111')
    k.I('s_mov_b32 exec_hi, 0x11111111')
    k.I(f'buffer_store_dwordx4 {vr(vw,4)}, v{t0}, s[32:35], s45 offen sc1')

def unpack_gran(k, g, t, s1, s2):
    k.I(f'v_perm_b32 v{t}, v{g}, v{g+1}, s{s1}')
    k.I(f'v_perm_b32 v{g+3}, v{t}, v{g+2}, s{s2}')

class Rec:
    def __init__(self): self.l = []
    def I(self, t, **kw): self.l.append(t)
def rec(fn, *a):
    r = Rec(); fn(r, *a); return r.l
def merge(k, main, fill, per):
    fill = list(fill)
    for m in main:
        k.I(m)
        for _ in range(per):
            if fill: k.I(fill.pop(0))
    for t in fill: k.I(t)

def role_B4(k, boff):
    PL = 5184; ML = 4 * PL
    if boff is None:
        k.I('s_mov_b32 s39, s2')
        k.I('s_mov_b32 s2, s20')
    else: k.I(f's_sub_u32 s2, s2, {boff}')
    va = VAlloc(2)
    vl = va.get(); xs = va.get(20, 4); md = va.get(20, 4); vo = va.get()
    for i in range(20): k.I(f'v_mov_b32 v{xs+i}, 0')
    ids2(k, vl)
    k.I('s_mul_i32 s28, s23, 1280')
    k.I(f's_add_u32 s29, s28, {32*1280}')
    k.I(f'v_lshlrev_b32 v{vo}, 1, v{vl}')
    XD = env('XDMA', 1)
    def xloads():
        k.srd(40, 6, S * D * 2)
        if XD:
            k.I(f'v_lshlrev_b32 v{md+8}, 4, v{vl}')
            k.I(f's_mul_i32 s30, s22, {PL}')
            for c in range(2):
                k.I(f's_add_u32 m0, s30, {1280*c}')
                k.I(f'buffer_load_dwordx4 v{md+8}, s[40:43], s{28+c} offen{XNT} lds', tag='xx')
                k.I('s_mov_b64 exec, 0xffff')
                k.I(f'buffer_load_dwordx4 v{md+8}, s[40:43], s{28+c} offen offset:1024{XNT} lds', tag='xx')
                k.I('s_mov_b64 exec, -1')
            k.I(f'v_add_u32 v{md+9}, s30, v{vo}')
            return
        for e in range(10):
            k.I(f'buffer_load_short_d16_hi v{xs+2*e}, v{vo}, s[40:43], s28 offen offset:{128*e}{XNT}')
            k.I(f'buffer_load_short_d16_hi v{xs+2*e+1}, v{vo}, s[40:43], s29 offen offset:{128*e}{XNT}')
    fi = va.get(); fq = va.get(); fq4 = va.get(); vi = va.get(); vq = va.get()
    k.I(f'v_and_b32 v{vi}, 15, v{vl}')
    k.I(f'v_lshrrev_b32 v{vq}, 4, v{vl}')
    k.I(f'v_cvt_f32_u32 v{fi}, v{vi}')
    k.I(f'v_cvt_f32_u32 v{fq}, v{vq}')
    k.I(f'v_mul_f32 v{fq4}, 4.0, v{fq}')
    va.n = (va.n + 3) // 4 * 4
    r_ = Rec(); f40 = gen_f40(r_, va, fi, fq, False)
    XA = env('X_AT', 160)
    def poison():
        if PAR or not env('POISON', 1) or (G6 and env('P_MODR', 1)): return
        for j in range(4): k.I(f'v_mov_b32 v{md+j}, -1')
        k.I(f'v_lshlrev_b32 v{md+4}, 4, v0')
        k.I('s_lshr_b32 s30, s21, 2')
        k.I('s_and_b32 s31, s30, 2')
        k.I('s_add_u32 s30, s30, s31')
        k.I('s_lshl_b32 s31, s20, 3')
        k.I('s_add_u32 s30, s30, s31')
        k.I('s_lshl_b32 s30, s30, 2')
        k.I('s_and_b32 s31, s21, 3')
        k.I('s_add_u32 s30, s30, s31')
        k.I('s_mul_i32 s30, s30, 5120')
        k.I(f's_add_u32 s30, s30, {H2}')
        k.I('s_add_u32 s40, s4, s30')
        k.I('s_addc_u32 s41, s5, 0')
        k.I('s_mov_b32 s42, 5120')
        k.I('s_mov_b32 s43, 0x00020000')
        k.I('s_movk_i32 s30, 0x1000')
        PST = ' sc1' if env('P_SC1', 1) else ''
        k.I(f'buffer_store_dwordx4 {vr(md,4)}, v{md+4}, s[40:43], 0 offen{PST}')
        k.I(f'buffer_store_dwordx4 {vr(md,4)}, v{md+4}, s[40:43], s30 offen{PST}')
        if G6:
            k.I('s_lshl_b32 s31, s20, 4')
            k.I('s_add_u32 s31, s31, s21')
            k.I('s_mul_i32 s31, s31, 10304')
            k.I(f's_add_u32 s31, s31, {YT}')
            k.I('s_add_u32 s40, s4, s31')
            k.I('s_addc_u32 s41, s5, 0')
            k.I('s_mov_b32 s42, 10304')
            k.I('s_mov_b32 s43, 0x00020000')
            k.I('s_movk_i32 s31, 0x2000')
            for so_ in ('0', 's30', 's31'): k.I(f'buffer_store_dwordx4 {vr(md,4)}, v{md+4}, s[40:43], {so_} offen{PST}')
    PA = env('P_AT', 20)
    for t in r_.l[:min(PA, XA)]: k.I(t)
    if PA <= XA: poison()
    for t in r_.l[min(PA, XA):XA]: k.I(t)
    xloads()
    for t in r_.l[XA:]: k.I(t)
    va.n = f40 + 62
    mark(k, 1)
    k.srd(44, 4, XT_SZ, XT)
    if NREP > 1:
        k.I(f's_and_b32 s30, s2, {NREP - 1}')
        k.I('s_mul_i32 s30, s30, 20480')
        k.I(f's_add_u32 s30, s30, {GRR}')
        k.I('s_add_u32 s48, s4, s30')
        k.I('s_addc_u32 s49, s5, 0')
        k.I('s_mov_b32 s50, 20480')
        k.I('s_mov_b32 s51, 0x00020000')
    else: k.srd(48, 4, 4 * 960 * 16, GR)
    PST_ = 5120 if NREP > 1 else 960 * 16
    k.srd(52, 56, 256)
    cs, sn = gen_tw640(k, va, fi, fq4)
    va.n = sn + 12
    f16 = va.get(8, 2); tmp = va.get(8, 2); ta = md
    dat = va.get(12, 2)
    k.I(f'v_mov_b32 v{dat+10}, 0'); k.I(f'v_mov_b32 v{dat+11}, 0')
    k.I('s_mov_b64 exec, 1')
    tag_issue(k, 52, dat + 10, dat, 128)
    k.I('s_mov_b64 exec, -1')
    k.I(f'v_lshrrev_b32 v{ta}, 1, v{vi}')
    k.I(f'v_cvt_f32_u32 v{ta}, v{ta}')
    k.I(f'v_and_b32 v{ta+1}, 1, v{vi}')
    k.I(f'v_cvt_f32_u32 v{ta+1}, v{ta+1}')
    k.I(f'v_mul_f32 v{ta+1}, 0x3e800000, v{ta+1}')
    for U in range(2):
        k.I(f'v_add_f32 v{ta+2}, {fhex(8.0*U)}, v{ta}')
        k.I(f'v_mul_f32 v{ta+2}, {fhex(1.0/16)}, v{ta+2}')
        k.I(f'v_fma_f32 v{ta+3}, v{fq4}, v{ta+2}, v{ta+1}')
        for j in range(4): k.I(f'v_fmamk_f32 v{tmp+4+j}, v{ta+2}, {fhex(float(j))}, v{ta+3}')
        for j in range(4):
            k.I(f'v_cos_f32 v{tmp+j}, v{tmp+4+j}')
            k.I(f'v_sin_f32 v{tmp+4+j}, v{tmp+4+j}')
        for j in range(4): k.I(f'v_cvt_pk_bf16_f32 v{f16+4*U+j}, v{tmp+2*j}, v{tmp+2*j+1}')
    wa = fi; ru = fq; rv = fq4; so = vo
    k.I(f'v_mul_u32_u24 v{wa}, 80, v{vq}')
    k.I(f'v_add_lshl_u32 v{wa}, v{wa}, v{vi}, 3')
    k.I(f's_mul_i32 s31, s22, {PL}')
    k.I(f'v_add_u32 v{wa}, s31, v{wa}')
    k.I(f'v_and_b32 v{ta}, 1, v0')
    k.I(f'v_lshrrev_b32 v{ta+1}, 1, v0')
    k.I(f'v_mul_u32_u24 v{ru}, {2*PL}, v{ta}')
    k.I(f'v_sub_u32 v{rv}, 384, v{ta+1}')
    k.I(f'v_lshl_add_u32 v{rv}, v{rv}, 3, v{ru}')
    k.I(f'v_lshl_add_u32 v{ru}, v{ta+1}, 3, v{ru}')
    k.I(f'v_lshlrev_b32 v{so}, 13, v{ta+1}')
    k.I(f'v_lshl_add_u32 v{so}, v{ta}, 4, v{so}')
    gA = 1; gB = vq; lB = vi; rm = vl
    k.I('s_mul_i32 s31, s22, 1280')
    k.I(f'v_lshl_add_u32 v{gA}, v{vl}, 4, s31')
    k.I('s_add_u32 s31, s31, 1024')
    k.I(f'v_lshl_add_u32 v{lB}, v{vi}, 4, s31')
    k.I(f'v_mul_u32_u24 v{gB}, {PST_}, v{vq}')
    k.I(f'v_add_u32 v{gB}, v{gB}, v{lB}')
    k.I(f'v_lshlrev_b32 v{rm}, 2, v{vl}')
    k.I(f'v_add_u32 v{rm}, {ML}, v{rm}')
    for p in range(1, 4): k.I(f's_mov_b32 s{35+p}, {PST_*p}')
    k.I('s_mov_b32 s60, 0x04000c0c')
    k.I('s_mov_b32 s61, 0x0706000c')
    mark(k, 2)
    if XD:
        k.wait_tag('xx')
        for e in range(10):
            for c in range(2): k.I(f'ds_read_u16_d16_hi v{xs+2*e+c}, v{md+9} offset:{128*e+1280*c}')
    sm = md; sq = md + 2; rr = md + 4; nmr = md + 6
    k.I(f'v_pk_add_f32 {vr(sm,2)}, {vr(xs,2)}, {vr(xs+2,2)}')
    k.I(f'v_pk_mul_f32 {vr(sq,2)}, {vr(xs,2)}, {vr(xs,2)}')
    k.I(f'v_pk_fma_f32 {vr(sq,2)}, {vr(xs+2,2)}, {vr(xs+2,2)}, {vr(sq,2)}')
    for e in range(2, 10):
        k.I(f'v_pk_add_f32 {vr(sm,2)}, {vr(sm,2)}, {vr(xs+2*e,2)}')
        k.I(f'v_pk_fma_f32 {vr(sq,2)}, {vr(xs+2*e,2)}, {vr(xs+2*e,2)}, {vr(sq,2)}')
    wave_reduce_to_sgpr(k, [sm, sm+1, sq, sq+1], [32, 33, 34, 35])
    ln_scalars(k, 32, 34, rr, nmr, tmp)
    for e in range(10):
        k.I(f'v_pk_fma_f32 {vr(xs+2*e,2)}, {vr(xs+2*e,2)}, {vr(rr,2)}, {vr(nmr,2)}')
    mark(k, 3)
    tag_check(k, 'B_tag', 52, dat + 10, dat, 58, 128)
    mark(k, 4)
    tx = tmp
    k.I('s_mov_b32 s3, 0x40000')
    CAN = env('B_CAN', 1)
    if CAN:
        k.I('s_mov_b32 exec_lo, 0x00010001')
        k.I('s_mov_b32 exec_hi, 0x00010001')
        k.label('LB_can')
        k.I(f'buffer_load_dword v{tx}, v{gB}, s[48:51], 0 offen offset:12 sc1')
        k.I(f'v_cmp_ne_u32 vcc, s58, v{tx}')
        k.I('s_cbranch_vccz LB_can_o')
        k.I(f's_sleep {env("CAN_SL", 3)}')
        k.I('s_sub_u32 s3, s3, 1')
        k.I('s_cbranch_scc0 LB_can')
        k.label('LB_can_o')
        k.I('s_mov_b64 exec, -1')
        k.I('s_mov_b32 s3, 0x40000')
    k.label('LB_poll')
    for p in range(4):
        k.I(f'buffer_load_dwordx4 {vr(md+4*p,4)}, v{gA}, s[48:51], {"s%d" % (35+p) if p else 0} offen sc1')
    k.I(f'buffer_load_dwordx4 {vr(md+16,4)}, v{gB}, s[48:51], 0 offen sc1')
    for p in range(5): k.I(f'v_xor_b32 v{tx+p}, s58, v{md+4*p+3}')
    k.I(f'v_or3_b32 v{tx}, v{tx}, v{tx+1}, v{tx+2}')
    k.I(f'v_or3_b32 v{tx}, v{tx}, v{tx+3}, v{tx+4}')
    k.I(f'v_cmp_ne_u32 vcc, 0, v{tx}')
    for p in (4, 0, 1, 2, 3): unpack_gran(k, md+4*p, tx+1+p, 60, 61)
    k.I('s_cbranch_vccz LB_go')
    k.I(f's_sleep {env("SLEEP", 2)}')
    k.I('s_sub_u32 s3, s3, 1')
    k.I('s_cbranch_scc0 LB_poll')
    k.label('LB_go')
    mark(k, 5)
    b_ = md + 16
    for j in range(4): k.I(f'v_mov_b32 v{tx+j}, v{b_+j}')
    for p in (0, 2):
        k.I(f'v_pk_add_f32 {vr(md+p,2)}, {vr(md+p,2)}, {vr(md+4+p,2)}')
        k.I(f'v_pk_add_f32 {vr(md+8+p,2)}, {vr(md+8+p,2)}, {vr(md+12+p,2)}')
    for j in range(4): k.I(f'v_permlane32_swap_b32 v{tx+j}, v{b_+j}')
    for p in (0, 2): k.I(f'v_pk_add_f32 {vr(md+p,2)}, {vr(md+p,2)}, {vr(md+8+p,2)}')
    for p in (0, 2): k.I(f'v_pk_add_f32 {vr(b_+p,2)}, {vr(b_+p,2)}, {vr(tx+p,2)}')
    k.I(f'ds_write_b128 v{gA}, {vr(md,4)} offset:{ML}')
    for j in range(4): k.I(f'v_mov_b32 v{tx+j}, v{b_+j}')
    for j in range(4): k.I(f'v_permlane16_swap_b32 v{tx+j}, v{b_+j}')
    for p in (0, 2): k.I(f'v_pk_add_f32 {vr(b_+p,2)}, {vr(b_+p,2)}, {vr(tx+p,2)}')
    k.I(f'ds_write_b128 v{lB}, {vr(b_,4)} offset:{ML}')
    k.barrier()
    mark(k, 6)
    for p in range(5):
        k.I(f'ds_read2st64_b32 {vr(md+4*p,2)}, v{rm} offset0:{10+2*p} offset1:{11+2*p}')
        k.I(f'ds_read2st64_b32 {vr(md+4*p+2,2)}, v{rm} offset0:{2*p} offset1:{2*p+1}')
    for e in range(10):
        h_ = e & 1; p = e // 2
        if h_ == 0: k.I(f'v_pk_fma_f32 {vr(xs+2*e,2)}, {vr(xs+2*e,2)}, {vr(md+4*p,2)}, {vr(md+4*p+2,2)} op_sel_hi:[1,0,0]')
        else:
            for j in range(2): k.I(f'v_fma_f32 v{xs+2*e+j}, v{xs+2*e+j}, v{md+4*p+1}, v{md+4*p+3}')
        if e >= 1: k.I(f'v_cvt_pk_bf16_f32 v{dat+e-1}, v{xs+2*e-2}, v{xs+2*e-1}')
    k.I(f'v_cvt_pk_bf16_f32 v{dat+9}, v{xs+18}, v{xs+19}')
    d1 = xs; b2 = xs + 24; d2 = f40
    def s1(T):
        o = []
        for kap in range(3):
            for c in range(2):
                dd = vr(d1 + (2*T+c)*4, 4)
                o.append(f'{MF16} {dd}, {vr(dat+4*kap,4)}, {vr(f40+(2*T+c)*10+4*kap,4)}, {dd if kap else 0}')
        return o
    cm = [rec(cmul4, d1+8*T, d1+8*T+4, cs+4*T, sn+4*T, b2+4*T, tmp, False) for T in range(3)]
    def s2(T): return [f'{MF16} {vr(d2+(2*T+U)*4,4)}, {vr(f16+4*U,4)}, {vr(b2+4*T,4)}, 0' for U in range(2)]
    def wr(T): return [f'ds_write_b64 v{wa}, {vr(d2+(2*T+U)*4+2*h,2)} offset:{(16*T+320*U+40*h)*8}' for U in range(2) for h in range(2)]
    for t in s1(0) + s1(1) + s1(2) + cm[0] + s2(0) + cm[1] + s2(1) + wr(0) + cm[2] + s2(2) + wr(1): k.I(t)
    mark(k, 7)
    k.I('s_mov_b64 exec, 1')
    k.I(f'ds_write_b64 v{wa}, {vr(d2,2)} offset:5120')
    k.I('s_mov_b32 exec_lo, 0x00ff00ff')
    k.I('s_mov_b32 exec_hi, 0x00ff00ff')
    for t in wr(2): k.I(t)
    k.I('s_mov_b64 exec, -1')
    k.barrier()
    mark(k, 8)
    rd = d1; oc = b2
    for rho in range(3):
        for pr in range(2):
            k.I(f'ds_read_b64 {vr(rd+8*rho+4*pr,2)}, v{ru} offset:{pr*PL+1024*rho}')
            k.I(f'ds_read_b64 {vr(rd+8*rho+4*pr+2,2)}, v{rv} offset:{pr*PL+1024*(2-rho)}')
    for rho in range(3):
        for pr in range(2):
            u = rd+8*rho+4*pr; v = u+2
            k.I(f'v_pk_add_f32 {vr(tmp+4*pr,2)}, {vr(u,2)}, {vr(v,2)}')
            k.I(f'v_pk_add_f32 {vr(tmp+4*pr+2,2)}, {vr(u,2)}, {vr(v,2)} neg_lo:[0,1] neg_hi:[0,1]')
        for pr in range(2):
            k.I(f'v_cvt_pk_bf16_f32 v{oc+4*rho+pr}, v{tmp+4*pr}, v{tmp+4*pr+1}')
            k.I(f'v_cvt_pk_bf16_f32 v{oc+4*rho+2+pr}, v{tmp+4*pr+3}, -v{tmp+4*pr+2}')
        if PAR: k.I(f'v_and_b32 v{oc+4*rho}, -2, v{oc+4*rho}')
        k.I(f'buffer_store_dwordx4 {vr(oc+4*rho,4)}, v{so}, s[44:47], s{25+rho} offen{" sc1" if env("XT_SC1", 0) else ""}')
    if PA > XA:
        md = f40
        poison()
    if gen.STAMPS: k.I(f's_add_u32 s2, s2, {boff}' if boff is not None else 's_mov_b32 s2, s39')

G6 = env('GEN6', 0)
PAR = env('PARITY', 0)
OLDM = env('OLD_MODR', 0)
LOOPM = env('LOOPM', 1) if G6 else 0
CNT = dict(wd1=1, modr=80 if (OLDM or LOOPM) else 160, wt=N_WT, wgu=N_WGU, wd=N_WD)
K1_SIDE = os.environ.get('K1_SIDE', 'wt,modr').split(',')
C_SIDE = [r for r in ('wgu', 'wd') if r not in K1_SIDE]

MISC_EXTRA = []
def gen_K1():
    k = Kernel('ka_kernel')
    EPF = env('EPF', 8)
    if EPF:
        k.I('s_sub_u32 s28, s2, 1')
        k.I(f's_cmp_ge_u32 s28, {EPF}')
        k.I('s_cbranch_scc1 LA_e0')
        k.I('s_getpc_b64 s[28:29]')
        k.raw('LA_pc0:')
        k.I('v_lshlrev_b32 v70, 6, v0')
        k.I('v_mov_b32 v73, s29')
        for i in range(3):
            if i:
                k.I('v_add_u32 v70, 0x4000, v70')
                k.I('v_min_u32 v70, Lcode_end-LA_pc0-4, v70')
            k.I('v_add_co_u32 v74, vcc, s28, v70')
            k.I('v_addc_co_u32 v75, vcc, 0, v73, vcc')
            k.I(f'global_load_dword v{76+i}, v[74:75], off')
        k.label('LA_e0')
        k.vm = []
    stamp_begin(k)
    k.I(f's_load_dwordx4 s[56:59], s[0:1], {KA["dbg"]}')
    k.I(f's_load_dwordx4 s[8:11], s[0:1], {KA["c"]}')
    k.I(f's_load_dwordx2 s[4:5], s[0:1], {KA["ws"]}')
    k.I(f's_load_dwordx2 s[6:7], s[0:1], {KA["x"]}')
    k.I(f's_load_dwordx4 s[12:15], s[0:1], {KA["wr"]}')
    if 'wgu' in K1_SIDE or env('RAW_PF', 0): k.I(f's_load_dwordx4 s[16:19], s[0:1], {KA["wg"]}')
    if 'wd' in K1_SIDE or 'wd1' in K1_SIDE or env('RAW_PF', 0): k.I(f's_load_dwordx2 s[62:63], s[0:1], {KA["wd"]}')
    boff = 88; n = boff + 256; lo = {}
    for r in K1_SIDE:
        lo[r] = n; n += CNT[r]
    total = n
    ISO = env('ISO', 0)
    if ISO:
        TABLE = [(256, 128, 'B', 0), (512, 128, 'B', 128), (128, 128, 'wgu', 0), (384, 128, 'wt', 0), (640, 32, 'wgu', 128),
                 (672, 60, 'mod', 120), (732, 1, 'wd1', 0), (0, 8, 'misc', 0)]
        total = 733
        if ISO == 2:
            TABLE = [(256, 128, 'B', 0), (512, 128, 'B', 128), (128, 128, 'wgu', 0), (384, 128, 'wt', 0), (640, 32, 'wgu', 128),
                     (673, 120, 'mod', 120), (672, 1, 'wd1', 0), (0, 8, 'misc', 0)]
            total = 793
        if ISO == 3:
            TABLE = [(256, 128, 'B', 0), (512, 128, 'B', 128), (128, 128, 'wt', 0), (384, 128, 'wgu', 0), (640, 32, 'wgu', 128),
                     (673, 120, 'mod', 120), (672, 1, 'wd1', 0), (0, 8, 'misc', 0)]
            total = 793
    st = k.save_state()
    k.I('s_cmp_lg_u32 s2, 0')
    k.I('s_cbranch_scc1 LA_n0')
    if env('CLK_TAG', 0):
        k.I('s_memrealtime s[30:31]')
        k.I('v_lshlrev_b32 v2, 7, v0')
        k.I('v_mov_b32 v5, 1')
        k.srd(52, 56, 256)
        k.I('v_mov_b32 v4, s30')
        k.I('v_cmp_gt_u32 vcc, 2, v0')
        k.I('s_and_b64 exec, exec, vcc')
        k.I('s_cbranch_execz LA_misc')
        k.I('buffer_store_dwordx2 v[4:5], v2, s[52:55], 0 offen sc1')
    else:
        k.I('v_mov_b32 v2, 0')
        k.I(f'v_mov_b32 v3, {EPOCH}')
        k.I('v_mov_b32 v5, 1')
        k.I(f's_load_dword s30, s[58:59], {EPOCH}')
        k.srd(24, 58, 0x10000)
        k.srd(52, 56, 256)
        k.I('v_cmp_eq_u32 vcc, 0, v0')
        k.I('s_and_b64 exec, exec, vcc')
        k.I('s_cbranch_execz LA_misc')
        k.I('s_add_u32 s30, s30, 1')
        k.I('v_mov_b32 v4, s30')
        k.I('buffer_store_dwordx2 v[4:5], v2, s[52:55], 0 offen sc1')
        k.I('buffer_store_dwordx2 v[4:5], v2, s[52:55], 0 offen offset:128 sc1')
        k.I('buffer_store_dword v4, v3, s[24:27], 0 offen sc1')
    k.I('s_branch LA_misc')
    k.label('LA_n0', fresh=True); k.restore_state(st)
    k.I('s_sub_u32 s20, s2, 8')
    k.I(f's_cmp_lt_u32 s20, {120 if ISO else 80}')
    k.I('s_cbranch_scc0 LA_disp')
    k.raw('LA_mod:')
    k.I('s_mov_b32 s61, s20')
    k.I('s_and_b32 s21, s20, 3')
    k.I('s_lshr_b32 s20, s20, 2')
    def poison_modr():
        k.I('s_mov_b64 exec, -1')
        k.I('s_sub_u32 s46, s61, 80')
        k.I('s_cmp_ge_u32 s46, 160')
        k.I('s_cbranch_scc1 LA_np')
        for j in range(4): k.I(f'v_mov_b32 v{100+j}, -1')
        k.I('v_lshlrev_b32 v104, 4, v0')
        k.srd(48, 4, WS_END4)
        k.I('s_lshl_b32 s47, s46, 14')
        k.I(f's_add_u32 s47, s47, {YT}')
        for j in range(4):
            k.I('buffer_store_dwordx4 v[100:103], v104, s[48:51], s47 offen sc1')
            k.I('s_add_u32 s47, s47, 4096')
        k.I('s_mul_i32 s47, s46, 205')
        k.I('s_lshr_b32 s47, s47, 10')
        k.I('s_mul_i32 s47, s47, 40960')
        k.I('s_lshl_b32 s46, s46, 13')
        k.I('s_add_u32 s47, s47, s46')
        k.I(f's_add_u32 s47, s47, {H2}')
        for j in range(2):
            k.I('buffer_store_dwordx4 v[100:103], v104, s[48:51], s47 offen sc1')
            k.I('s_add_u32 s47, s47, 4096')
        k.label('LA_np')
    PM = env('P_MODR', 1) if G6 and not PAR else 0
    if PM == 2: poison_modr()
    role_mod4(k, 'LA_end')
    k.label('LA_end')
    if LOOPM and ISO < 2:
        k.I('s_mov_b64 exec, -1')
        k.I(f's_sub_u32 s20, s61, {120 if ISO else 0}')
        k.I(f's_cmp_ge_u32 s20, {60 if ISO else 80}')
        k.I('s_cbranch_scc1 LA_end1')
        k.I(f's_add_u32 s20, s61, {60 if ISO else 160}')
        k.barrier(vm=None)
        k.I('s_branch LA_mod')
        k.label('LA_end1')
    if PM == 1: poison_modr()
    stamp_end(k, 0, 4)
    k.label('LA_exit')
    k.I('s_endpgm')
    k.label('LA_disp', fresh=True); k.restore_state(st)
    if ISO:
        for (lo_, n_, role, base) in TABLE:
            k.I(f's_sub_u32 s20, s2, {lo_ - base}')
            k.I(f's_sub_u32 s21, s2, {lo_}')
            k.I(f's_cmp_lt_u32 s21, {n_}')
            k.I(f's_cbranch_scc1 LA_{role}')
        k.I('s_endpgm')
    else:
        k.I('s_cmp_lt_u32 s2, 8')
        k.I('s_cbranch_scc1 LA_misc')
        k.I(f's_sub_u32 s20, s2, {boff}')
        k.I('s_cmp_lt_u32 s20, 256')
        k.I('s_cbranch_scc1 LA_B')
        for r in K1_SIDE:
            if r == 'modr' and not OLDM: continue
            k.I(f's_sub_u32 s20, s2, {lo[r]}')
            k.I(f's_cmp_lt_u32 s20, {CNT[r]}')
            k.I(f's_cbranch_scc1 LA_{r}')
        k.I(f's_cmp_ge_u32 s2, {total}')
        k.I('s_cbranch_scc1 LA_exit')
        k.I(f's_sub_u32 s20, s2, {lo["modr"] - 80}')
        k.I('s_branch LA_mod')
    k.label('LA_B', fresh=True); k.restore_state(st)
    role_B4(k, None if ISO else boff)
    stamp_end(k, 0, 4)
    k.I('s_endpgm')
    def modr6():
        k.I('s_and_b32 s21, s20, 7')
        k.I('s_lshl_b32 s21, s21, 1')
        k.I('s_bfe_u32 s22, s20, 0x10003')
        k.I('s_add_u32 s21, s21, s22')
        k.I('s_and_b32 s20, s20, 0x70')
        k.I('s_add_u32 s20, s20, s21')
        k.I('s_add_u32 s20, s20, 40')
        vw, t0, t1 = role_mod(k, 8, 10, 'LA_mr_end')
        k.I('s_lshl_b32 s45, s20, 7')
        k.I(f'v_lshl_add_u32 v{t0}, v0, 2, s45')
        k.I('s_mov_b32 exec_hi, 0')
        k.I(f'buffer_store_dword v{vw}, v{t0}, s[32:35], 0 offen')
        k.label('LA_mr_end')
    fns = dict(wd=lambda: role_wd(k, 62), wgu=lambda: role_wgu(k, 16, 18), wt=lambda: role_wt(k, 12, 14), modr=modr6,
               wd1=lambda: (k.I('s_movk_i32 s20, 95'), role_wd(k, 62)))
    for r in K1_SIDE:
        if r == 'modr' and not OLDM: continue
        k.label(f'LA_{r}', fresh=True); k.restore_state(st)
        fns[r]()
        if r == 'wt' and env('RAW_PF', 0):
            k.I('s_mov_b64 exec, -1')
            k.I(f's_sub_u32 s20, s2, {lo["wt"]}')
            k.I('s_cmp_ge_u32 s20, 96')
            k.I('s_cbranch_scc1 LA_wt2')
            role_wd(k, 62, pf=True)
            k.label('LA_wt2')
        stamp_end(k, 0, 4)
        k.I('s_endpgm')
    k.label('LA_misc', fresh=True); k.restore_state(st)
    k.I('s_mov_b64 exec, -1')
    if G6:
        k.srd(24, 4, 88 * 128, FLAGS)
        k.I('v_lshlrev_b32 v3, 7, v0')
        k.I('v_mov_b32 v2, 0')
        k.I('buffer_store_dword v2, v3, s[24:27], 0 offen')
        k.srd(32, 4, 4 * D * 4, MODN + 2 * D * 4)
        for j in range(4): k.I(f'v_mov_b32 v{48+j}, -1')
        k.I('v_lshlrev_b32 v3, 4, v0')
        k.I('s_lshl_b32 s30, s2, 12')
        k.I('buffer_store_dwordx4 v[48:51], v3, s[32:35], s30 offen sc1')
        if PAR:
            for j in range(4): k.I(f'v_mov_b32 v{52+j}, 0')
            k.srd(32, 4, 8192, XT + XT_SZ)
            k.I('buffer_store_dwordx4 v[52:55], v3, s[32:35], s30 offen')
        else:
            k.srd(32, 4, 16384, YT + 160 * 16384)
            k.I('buffer_store_dwordx4 v[48:51], v3, s[32:35], s30 offen sc1')
    k.I('s_getpc_b64 s[28:29]')
    k.raw('LA_pc:')
    k.I('s_sub_u32 s28, s28, LA_pc-ka_kernel')
    k.I('s_subb_u32 s29, s29, 0')
    k.I('v_lshlrev_b32 v60, 4, v0')
    k.I('v_mov_b32 v61, s29')
    for i in range(0 if EPF else NPF):
        k.I('v_min_u32 v6, Lcode_end-ka_kernel-16, v60')
        k.I('v_add_co_u32 v6, vcc, s28, v6')
        k.I('v_addc_co_u32 v7, vcc, 0, v61, vcc')
        k.I(f'global_load_dwordx4 {vr(8+4*i,4)}, v[6:7], off')
        k.I('v_add_u32 v60, 0x1000, v60')
    k.waitcnt(vm=0, lgkm=0)
    if MISC_EXTRA:
        k.I('v_readfirstlane_b32 s30, v0')
        k.I('s_lshl_b32 s31, s2, 8')
        k.I('s_add_u32 s30, s30, s31')
        k.I('s_cmp_lg_u32 s30, 0x100')
        k.I('s_cbranch_scc1 LA_mend')
        MISC_EXTRA[0](k)
        k.label('LA_mend')
    stamp_end(k, 0, 4)
    k.I('s_endpgm')
    print('K1 roles', lo, total)
    return k, (total, 256, 40960 if 'wd' in K1_SIDE else 26112)

def role_modfin(k):
    k.I('s_lshl_b32 s20, s20, 8')
    k.I('v_add_u32 v1, s20, v0')
    k.I('v_lshlrev_b32 v2, 4, v1')
    k.srd(24, 4, 4 * 960 * 16, GR)
    for p in range(4):
        k.I(f's_mov_b32 s21, {960*16*p + 320*16}')
        k.I(f'buffer_load_dwordx4 {vr(4+4*p,4)}, v2, s[24:27], s21 offen')
    k.srd(28, 4, 32 * 256, FLAGS)
    k.I('v_lshlrev_b32 v3, 7, v1')
    k.I('v_mov_b32 v20, 0')
    k.I('buffer_store_dword v20, v3, s[28:31], 0 offen')
    k.srd(32, 4, 4 * D * 4, MODN + 2 * D * 4)
    k.I('s_mov_b32 s60, 0x04000c0c')
    k.I('s_mov_b32 s61, 0x0706000c')
    k.I(f'v_mov_b32 v22, {fhex(1.0 / (2.0 * S * D))}')
    k.I('v_cmp_gt_u32 vcc, 0xa0, v1')
    k.I('v_cndmask_b32 v22, 1.0, v22, vcc')
    k.I('v_subrev_u32 v21, 0x140, v1')
    k.I('v_cmp_gt_u32 vcc, 0xa0, v21')
    k.I('v_mov_b32 v23, 1.0')
    k.I('v_cndmask_b32 v23, 0, v23, vcc')
    for p in range(4): unpack_gran(k, 4+4*p, 21, 60, 61)
    for p in (0, 2):
        k.I(f'v_pk_add_f32 {vr(4+p,2)}, {vr(4+p,2)}, {vr(8+p,2)}')
        k.I(f'v_pk_add_f32 {vr(12+p,2)}, {vr(12+p,2)}, {vr(16+p,2)}')
    for p in (0, 2): k.I(f'v_pk_add_f32 {vr(4+p,2)}, {vr(4+p,2)}, {vr(12+p,2)}')
    for j in range(4): k.I(f'v_cvt_pk_bf16_f32 v{4+j}, v{4+j}, v{4+j}')
    for j in range(4): k.I(f'v_and_b32 v{4+j}, 0xffff0000, v{4+j}')
    for j in range(4): k.I(f'v_add_f32 v{4+j}, v23, v{4+j}')
    for j in range(4): k.I(f'v_cvt_pk_bf16_f32 v{4+j}, v{4+j}, v{4+j}')
    for j in range(4): k.I(f'v_and_b32 v{4+j}, 0xffff0000, v{4+j}')
    for j in range(4): k.I(f'v_mul_f32 v{4+j}, v22, v{4+j}')
    k.I('buffer_store_dwordx4 v[4:7], v2, s[32:35], 0 offen')

def gen_C4():
    k, (g, b, l) = gen_C()
    assert k.out[-2] == 'LC_exit:'
    k.out.pop(); k.out.pop()
    k.I('s_endpgm')
    k.label('LC_exit', fresh=True); k.vm = []; k.lg = []
    k.I(f's_load_dwordx2 s[4:5], s[0:1], {KA["ws"]}')
    k.I(f's_load_dwordx4 s[16:19], s[0:1], {KA["wg"]}')
    k.I(f's_load_dwordx2 s[62:63], s[0:1], {KA["wd"]}')
    st = k.save_state()
    n = 328; lo = {}
    for r in C_SIDE:
        lo[r] = n; n += CNT[r]
        k.I(f's_sub_u32 s20, s2, {lo[r]}')
        k.I(f's_cmp_lt_u32 s20, {CNT[r]}')
        k.I(f's_cbranch_scc1 LC_{r}')
    k.I('s_sub_u32 s20, s2, 321')
    k.I('s_cmp_ge_u32 s20, 3')
    k.I('s_cbranch_scc1 LC_x')
    role_modfin(k)
    k.label('LC_x')
    k.I('s_endpgm')
    fns = dict(wd=lambda: role_wd(k, 62), wgu=lambda: role_wgu(k, 16, 18))
    for r in C_SIDE:
        k.label(f'LC_{r}', fresh=True); k.restore_state(st)
        fns[r]()
        stamp_end(k, 2, 4)
        k.I('s_endpgm')
    print('C roles', lo, n)
    return k, (n if C_SIDE else 324, b, 40960 if 'wd' in C_SIDE else max(l, 24576))

KERNELS = (gen_K1, gen_C4, gen_DEF)
if __name__ == '__main__':
    out = sys.argv[1] if len(sys.argv) > 1 else 'adaLN_cond__spectral_gfnet__glu_gated_bilinear__prompt.s'
    if len(sys.argv) > 2 and sys.argv[2] == 'stamps': gen.STAMPS = True
    build(out, KERNELS)
```

```python
import os, math
import gen
from gen import *
from gen2 import *
from gen4 import YT, YT_ST, WS_END4, GR, unpack_gran
from gen import mark, stamp_begin, stamp_end

class Rec:
    def __init__(self): self.l = []
    def I(self, t, **kw): self.l.append(t)
def rec(fn, *a):
    r = Rec(); fn(r, *a); return r.l
def merge(k, main, fill, per):
    fill = list(fill)
    for m in main:
        k.I(m)
        for _ in range(per):
            if fill: k.I(fill.pop(0))
    return fill

import re as _re
def unpk(t):
    if isinstance(t, tuple) or not t.startswith('v_pk_'): return [t]
    m = _re.match(r'v_pk_(\w+)_f32 (.*)$', t)
    regs = [int(x) for x in _re.findall(r'v\[(\d+):\d+\]', m.group(2))]
    if m.group(1) == 'fma' and regs[0] == regs[3]: return [f'v_fmac_f32 v{regs[0]+j}, v{regs[1]+j}, v{regs[2]+j}' for j in range(2)]
    if m.group(1) == 'fma': return [f'v_fma_f32 v{regs[0]+j}, v{regs[1]+j}, v{regs[2]+j}, v{regs[3]+j}' for j in range(2)]
    return [f'v_{m.group(1)}_f32 v{regs[0]+j}, v{regs[1]+j}, v{regs[2]+j}' for j in range(2)]
def pairs(lst):
    out = []
    for t in lst:
        u = unpk(t)
        if len(u) == 2 and 'v_fma_' in u[0]: out += [[u[0]], [u[1]]]
        else: out.append(u)
    return out
def signal(k, name, cnt_sgpr, vtmp, noflush=False):
    k.I('s_barrier')
    st = k.save_state()
    k.I('s_cmp_lg_u32 s22, 0')
    k.I(f's_cbranch_scc1 L{name}_sig', noflush=noflush)
    k.I('s_mov_b64 exec, 1')
    k.I(f'buffer_atomic_add v{vtmp+1}, v{vtmp}, s[12:15], s{cnt_sgpr} offen sc1')
    k.I('s_mov_b64 exec, -1')
    if noflush: k.raw(f'L{name}_sig:')
    else: k.label(f'L{name}_sig')
    k.restore_state(st)
    k.vm.append((set(), None)) if False else None
def poll(k, name, cnt_sgpr, vtmp, vres):
    st = k.save_state()
    k.I('s_cmp_lg_u32 s22, 3')
    k.I(f's_cbranch_scc1 L{name}_done')
    k.I('s_mov_b32 s24, 0x100000')
    k.label(f'L{name}_poll')
    k.I(f'buffer_load_dword v{vres}, v{vtmp}, s[12:15], s{cnt_sgpr} offen sc1')
    k.waitcnt(vm=0)
    k.I(f'v_readfirstlane_b32 s33, v{vres}')
    k.I('s_sub_u32 s24, s24, 1')
    k.I(f's_cbranch_scc1 L{name}_done')
    k.I('s_cmp_lt_u32 s33, 16')
    k.I(f's_cbranch_scc1 L{name}_poll')
    k.label(f'L{name}_done')
    k.restore_state(st)
    k.I('s_barrier')

TAB = WS_END4
WS_END6 = TAB + 24 * 1024
class Fix:
    def __init__(self, seq): self.seq = list(seq)
    def get(self, *a): return self.seq.pop(0)
def role_tab(k):
    c0 = 24; f40 = c0; f16 = c0 + 62; cs = c0 + 68; sn = c0 + 80
    vi, vq, fi, fq, fq4, vo, t8, tmp = 2, 3, 4, 5, 6, 7, 8, 16
    k.I(f'v_and_b32 v{vi}, 15, v0')
    k.I(f'v_lshrrev_b32 v{vq}, 4, v0')
    k.I(f'v_cvt_f32_u32 v{fi}, v{vi}')
    k.I(f'v_cvt_f32_u32 v{fq}, v{vq}')
    k.I(f'v_mul_f32 v{fq4}, 4.0, v{fq}')
    k.I(f'v_lshlrev_b32 v{vo}, 4, v0')
    gen_f40(k, Fix([f40, t8, t8+4, t8+6]), fi, fq, True)
    gen_tw640(k, Fix([cs, sn, t8]), fi, fq4)
    k.I(f'v_cmp_gt_u32 vcc, 8, v{vi}')
    for r in range(4):
        k.I(f'v_cndmask_b32 v{cs+8+r}, 0, v{cs+8+r}, vcc')
        k.I(f'v_cndmask_b32 v{sn+8+r}, 0, v{sn+8+r}, vcc')
    k.I(f'v_mul_f32 v{t8}, {fhex(1.0/16)}, v{fi}')
    k.I(f'v_mul_f32 v{t8+1}, v{fq4}, v{t8}')
    for j in range(4): k.I(f'v_fmamk_f32 v{tmp+4+j}, v{t8}, {fhex(float(j))}, v{t8+1}')
    for j in range(4):
        k.I(f'v_cos_f32 v{tmp+j}, v{tmp+4+j}')
        k.I(f'v_sin_f32 v{tmp+4+j}, v{tmp+4+j}')
    for p in range(2):
        k.I(f'v_cvt_pk_bf16_f32 v{f16+p}, v{tmp+4+2*p}, v{tmp+5+2*p}')
        k.I(f'v_cvt_pk_bf16_f32 v{f16+2+p}, v{tmp+2*p}, v{tmp+1+2*p}')
        k.I(f'v_cvt_pk_bf16_f32 v{f16+4+p}, -v{tmp+4+2*p}, -v{tmp+5+2*p}')
    k.srd(24, 4, 23 * 1024, TAB)
    for i in range(23):
        if i % 4 == 0: k.I(f's_mov_b32 s28, {1024*i}')
        k.I(f'buffer_store_dwordx4 {vr(c0+4*i,4)}, v{vo}, s[24:27], s28 offen offset:{1024*(i%4)}')

XNT = ' nt' if os.environ.get('XNT') == '1' else ''
_mark = mark
def mark(k, i):
    if not env('MF', 0): _mark(k, i)
def fm(k, i):
    if env('MF', 0) == 1: _mark(k, i)
def pm(k, i):
    if env('MF', 0) == 3: _mark(k, i)
def em(k, i):
    if env('MF', 0) == 2: _mark(k, i)
def pack6(k, base, cs, sn, alt):
    def op(r, j, neg):
        n = neg ^ (alt and (j & 1))
        return ('-' if n else '') + f'v{r+j}'
    for p in range(2):
        k.I(f'v_cvt_pk_bf16_f32 v{base+p}, {op(sn,2*p,True)}, {op(sn,2*p+1,True)}')
        k.I(f'v_cvt_pk_bf16_f32 v{base+2+p}, {op(cs,2*p,False)}, {op(cs,2*p+1,False)}')
        k.I(f'v_cvt_pk_bf16_f32 v{base+4+p}, {op(sn,2*p,False)}, {op(sn,2*p+1,False)}')
WIM, WRE = 0, 2
F0 = FLAGS + 8192
WGU_B = WGU + 64 * 30720
FW = F0 + 1024
YFL = ['sc1', 'sc1 nt', 'sc0 sc1', 'sc0 sc1 nt'][env('YFL', 0)]
def hm(k, i):
    if env('MF', 0) == 5: _mark(k, i)
def cm_(k, i):
    if env('MF', 0) == 4: _mark(k, i)

HALF = env('HALF', 0)
def gen_DEF10():
    k = Kernel('kd_kernel')
    PL = 2592
    HB = 0; XB = 10240; SB = 122880; XL = 32768; MLD = XL + 4 * 2560; TL = MLD + 8192; CL = 81920
    W_ST = env('W_ST', 4); W_A = env('W_A', 4)
    NB1 = env('NB1', 24); W_J1 = W_J1_ = env('W_J1', 8); W_J = env('W_J', 8)
    stamp_begin(k)
    k.I('s_cmp_ge_u32 s2, 256')
    k.I('s_cbranch_scc1 LD_exit')
    k.I(f's_load_dwordx2 s[4:5], s[0:1], {KA["ws"]}')
    k.I(f's_load_dwordx2 s[6:7], s[0:1], {KA["x"]}')
    k.I(f's_load_dwordx2 s[40:41], s[0:1], {KA["out"]}')
    k.I(f's_load_dwordx2 s[62:63], s[0:1], {KA["wd"]}')
    if HALF: k.I(f's_load_dwordx4 s[36:39], s[0:1], {KA["wg"]}')
    va = VAlloc(2)
    hs = va.get(2, 2); vl = va.get(); vo16 = va.get(); vW = va.get(); vi = va.get(); vq = va.get(); oh = va.get(); oh2 = va.get(); hr = va.get()
    keep = va.n
    so = va.get(); wu = va.get(); wv = va.get(); ra = va.get(); xo = va.get(); mo = va.get(); wh = va.get(3); wx = va.get(); g0 = va.get(); g2 = va.get()
    ch = va.get(12, 4); xr = va.get(12, 2); mg = va.get(12, 4); mc = va.get(12, 4); ms = va.get(12, 4)
    d1 = va.get(24, 4); d2 = va.get(24, 4); dat = va.get(12, 2); tmp = va.get(8, 2)
    f40 = va.get(92, 4); f16 = f40 + 62; cs = f40 + 68; sn = f40 + 80
    tv = VAlloc(d1, d1 + 48)
    ta = tv.get(4); tk = tv.get(); cb_ = tv.get(); tq = tv.get(); v8 = tv.get(); vcn = tv.get(); vma = tv.get(); vmk = tv.get(2, 2)
    k.I('v_lshrrev_b32 v1, 6, v0')
    k.I(f'v_and_b32 v{vl}, 63, v0')
    k.I('v_readfirstlane_b32 s22, v1')
    k.I(f'v_lshlrev_b32 v{vo16}, 4, v{vl}')
    k.I(f'v_and_b32 v{vi}, 15, v{vl}')
    k.I(f'v_lshrrev_b32 v{vq}, 4, v{vl}')
    def scalars():
        k.I('s_and_b32 s20, s2, 6')
        k.I('s_lshl_b32 s20, s20, 1')
        k.I('s_lshr_b32 s21, s2, 6')
        k.I('s_add_u32 s20, s20, s21')
        k.I('s_bfe_u32 s56, s2, 0x30003')
        k.I('s_and_b32 s57, s2, 1')
        k.I('s_lshl_b32 s21, s57, 3')
        k.I('s_add_u32 s21, s21, s56')
        k.I('s_lshl_b32 s25, s20, 4')
        k.I('s_add_u32 s3, s25, s21')
        k.I('s_lshr_b32 s25, s20, 2')
        k.I('s_lshl_b32 s25, s25, 12')
        k.I('s_lshl_b32 s24, s57, 11')
        k.I('s_add_u32 s25, s25, s24')
        k.I('s_and_b32 s24, s21, 1')
        k.I('s_lshl_b32 s24, s24, 10')
        k.I('s_add_u32 s25, s25, s24')
        k.I('s_and_b32 s24, s20, 3')
        k.I('s_lshl_b32 s24, s24, 8')
        k.I('s_add_u32 s25, s25, s24')
        k.I('s_and_b32 s24, s21, 6')
        k.I('s_lshl_b32 s24, s24, 5')
        k.I('s_add_u32 s25, s25, s24')
        k.I(f's_add_u32 s26, s25, {64*16384}')
        k.I(f's_add_u32 s27, s25, {128*16384}')
        k.I('s_lshl_b32 s23, s20, 7')
        k.I('s_lshl_b32 s24, s21, 1')
        k.I('s_add_u32 s23, s23, s24')
        k.I('s_and_b32 s24, s22, 1')
        k.I('s_lshl_b32 s24, s24, 6')
        k.I('s_add_u32 s23, s23, s24')
        k.I('s_lshr_b32 s24, s22, 1')
        k.I('s_add_u32 s23, s23, s24')
        k.I('s_mul_i32 s28, s23, 1280')
        k.I(f's_add_u32 s29, s28, {32*1280}')
        k.I(f's_mul_i32 s30, s22, 2560')
        k.I(f's_add_u32 s30, s30, {XL}')
        k.I('s_add_u32 s23, s30, 1280')
        k.I('s_lshl_b32 s31, s22, 11')
        k.I(f's_add_u32 s88, s31, {MLD}')
        k.I(f's_add_u32 s31, s31, {MODN + 2*2560}')
        k.I('s_lshl_b32 s32, s21, 2')
        k.I('s_add_u32 s32, s32, s22')
        k.I('s_mul_i32 s24, s32, 30720')
        k.I(f's_add_u32 s24, s24, {WGU}')
        k.I(f'v_add_u32 v{vW}, s24, v{vo16}')
        k.I(f's_mul_i32 s58, s20, {8*49152}')
        k.I('s_mul_i32 s24, s32, 768')
        k.I('s_add_u32 s58, s58, s24')
        k.I(f's_add_u32 s58, s58, {HH}')
        for i in range(1, 4): k.I(f's_add_u32 s{58+i}, s58, {2*i*49152}')
        k.I('s_mul_i32 s24, s22, 6144')
        k.I(f's_add_u32 s42, s24, {TL}')
        k.I(f's_add_u32 s43, s24, {TAB}')
        k.I('s_add_u32 s33, s42, 4096')
        k.I('s_add_u32 s55, s43, 4096')
        k.I('s_and_b32 s89, s2, 7')
        k.I('s_lshl_b32 s89, s89, 7')
        k.I(f's_add_u32 s89, s89, {F0}')
        k.srd(12, 4, WS_END6)
        k.srd(8, 6, S * D * 2)
        k.srd(16, 4, 161 * 16384, XT)
    def wload(n):
        m_ = n % 30
        g = [f'buffer_load_dwordx4 {ar(4*n,4)}, v{vW}, s[12:15], 0 offen offset:{1024*(m_%4)}{" sc1" if n >= 30 and HALF else ""}']
        if n == 29: g.append(f'v_add_u32 v{vW}, {WGU_B - WGU - 28672}, v{vW}')
        elif m_ % 4 == 3: g.append(f'v_add_u32 v{vW}, 0x1000, v{vW}')
        return g
    def bglist():
        o = []
        for i in range(6):
            g = [f'buffer_load_dwordx4 v{vo16}, s[12:15], s{43 if i < 4 else 55} offen offset:{1024*(i%4)} lds']
            if i % 4 == 0: g = [f's_mov_b32 m0, s{42 if i < 4 else 33}'] + g
            o.append(g)
        for c in range(2):
            o.append([f's_mov_b32 m0, s{23 if c else 30}', f'buffer_load_dwordx4 v{vo16}, s[8:11], s{28+c} offen{XNT} lds'])
            o.append(['s_mov_b64 exec, 0xffff', f'buffer_load_dwordx4 v{vo16}, s[8:11], s{28+c} offen offset:1024{XNT} lds', 's_mov_b64 exec, -1'])
        w = [wload(n) for n in range(60)]
        WF = env('W_FIRST', 8)
        global AUX_LAST
        AUX_LAST = WF + 10
        return w[:WF] + o + w[WF:]
    NBG = 70
    def topup():
        k.bg_every = 0
        k.emit_bg(max(0, NB1 - (NBG - len(k.bg))))
        assert NBG - len(k.bg) == NB1, (NBG - len(k.bg), NB1)
    k.I('s_cmp_ge_u32 s2, 161')
    st0 = k.save_state()
    k.I('s_cbranch_scc1 LWD')
    vc = VAlloc(keep)
    vo8 = vc.get(); yo = vc.get(); wa = vc.get(); vC = vc.get()
    fi = vc.get(); fq4 = vc.get(); fk = vc.get(); fw16 = vc.get(); cta = vc.get(2); sg2 = vc.get(2, 2)
    f64 = vc.get(24, 2); f32 = vc.get(24, 2)
    c1 = vc.get(8, 2); s1_ = vc.get(8, 2); c2 = vc.get(8, 2); s2_ = vc.get(8, 2)
    TK = []
    for X in range(2):
        TK.append(dict(wq=vc.get(8, 2), dat=vc.get(32, 4), acc=vc.get(16, 4), pk=vc.get(8, 4), tmp=vc.get(8, 2)))
    tc = TK[0]['tmp']; ts = tc + 4
    k.I(f'v_lshlrev_b32 v{vo8}, 3, v{vl}')
    k.I('s_lshl_b32 s48, s2, 14')
    k.I('s_lshl_b32 s49, s22, 10')
    k.I('s_add_u32 s49, s49, s48')
    k.I('s_lshl_b32 s24, s22, 11')
    k.I('s_add_u32 s48, s48, s24')
    k.I(f's_add_u32 s90, s24, {CL}')
    k.I('s_mov_b32 m0, s90')
    k.I('s_cmp_eq_u32 s2, 0')
    k.I('s_cselect_b32 s50, 0, 1.0')
    k.I('s_cmp_eq_u32 s2, 160')
    k.I('s_cselect_b32 s50, 0, s50')
    k.I('s_mov_b32 s52, 0x80008000')
    k.I(f'v_lshlrev_b32 v{sg2}, 31, v{vi}')
    k.I(f'v_or_b32 v{sg2}, 1.0, v{sg2}')
    k.I(f'v_cvt_f32_u32 v{fi}, v{vi}')
    k.I(f'v_lshlrev_b32 v{fq4}, 2, v{vq}')
    k.I(f'v_cvt_f32_u32 v{fq4}, v{fq4}')
    k.I(f'v_lshlrev_b32 v{fw16}, 4, v1')
    k.I(f'v_cvt_f32_u32 v{fw16}, v{fw16}')
    k.I(f'v_add_f32 v{fk}, v{fw16}, v{fi}')
    def angles(step_reg, scale, base_add, dst, q=None):
        k.I(f'v_mul_f32 v{cta}, {fhex(scale)}, v{step_reg}')
        k.I(f'v_mul_f32 v{cta+1}, v{fq4 if q is None else q}, v{cta}')
        for j in range(4): k.I(f'v_fmamk_f32 v{dst+j}, v{cta}, {fhex(float(base_add + j))}, v{cta+1}')
    def sincos(c, s_):
        for j in range(4):
            k.I(f'v_cos_f32 v{c+j}, v{s_+j}')
            k.I(f'v_sin_f32 v{s_+j}, v{s_+j}')
    def flip(c, s_):
        for p in (0, 2):
            k.I(f'v_pk_mul_f32 {vr(c+p,2)}, {vr(c+p,2)}, {vr(sg2,2)} op_sel_hi:[1,0]')
            k.I(f'v_pk_mul_f32 {vr(s_+p,2)}, {vr(s_+p,2)}, {vr(sg2,2)} op_sel_hi:[1,0]')
    def flip6(base): return [f'v_xor_b32 v{base+j}, s52, v{base+j}' for j in (0, 1, 4, 5)]
    for kap in range(2):
        angles(fk, 1.0/64, 16*kap, ts); sincos(tc, ts)
        pack6(k, f64+6*kap, tc, ts, False)
        flip(tc, ts)
        pack6(k, f64+6*(kap+2), tc, ts, False)
        if kap == 0:
            k.srd(36, 4, XT_SZ, XT)
            k.srd(44, 4, XT_SZ, WT)
            for X in range(2):
                if X:
                    k.I('s_add_u32 m0, s90, 8192')
                    k.I('s_add_u32 s48, s48, 8192')
                k.I(f'buffer_load_dwordx4 v{vo16}, s[36:39], s48 offen lds', tag=('x', X))
                k.I(f'buffer_load_dwordx4 v{vo16}, s[36:39], s48 offen offset:1024 lds', tag=('x', X))
            for X in range(2):
                for m_ in range(2):
                    for V in range(2):
                        k.I(f'buffer_load_dwordx2 {vr(TK[X]["wq"]+4*m_+2*V,2)}, v{vo8}, s[44:47], s49 offen offset:{512*V}')
                    k.I('s_add_u32 s49, s49, 4096')
            cm_(k, 1)
            scalars()
            k.I('s_lshl_b32 s53, s22, 12')
            k.I('s_lshl_b32 s24, s2, 14')
            k.I('s_add_u32 s53, s53, s24')
            zz = TK[1]['dat']
            for j in range(4): k.I(f'v_mov_b32 v{zz+j}, 0')
            k.I(f'v_lshlrev_b32 v{zz+4}, 4, v0')
            k.I('s_mul_i32 s51, s2, 205')
            k.I('s_lshr_b32 s51, s51, 10')
            k.I('s_mul_i32 s51, s51, 40960')
            k.I('s_lshl_b32 s24, s2, 13')
            k.I('s_add_u32 s51, s51, s24')
            k.I(f's_add_u32 s51, s51, {H2}')
            k.I('s_cmp_lt_u32 s2, 160')
            k.I('s_cselect_b32 s51, s51, 0x7f000000')
            k.I(f'buffer_store_dwordx4 {vr(zz,4)}, v{zz+4}, s[12:15], s51 offen sc1', tag='z')
            k.I('s_add_u32 s51, s51, 4096')
            k.I(f'buffer_store_dwordx4 {vr(zz,4)}, v{zz+4}, s[12:15], s51 offen sc1', tag='z')
            k.bg = bglist(); k.bg_every = env('BGC1', 30)
    for N in range(2):
        angles(fk, 1.0/2048, 16*N, s1_+4*N); sincos(c1+4*N, s1_+4*N)
    angles(fi, 1.0/32, 0, ts); sincos(tc, ts)
    pack6(k, f32+0, tc, ts, False)
    pack6(k, f32+12, tc, ts, True)
    flip(tc, ts)
    pack6(k, f32+6, tc, ts, False)
    pack6(k, f32+18, tc, ts, True)
    k.I(f'v_add_f32 v{fw16}, v{fw16}, v{fq4}')
    for N in range(2):
        if N: k.I(f'v_add_f32 v{fi}, {fhex(16.0)}, v{fi}')
        angles(fi, 1.0/2048, 0, s2_+4*N, q=fw16); sincos(c2+4*N, s2_+4*N)
    k.I(f'v_add_u32 v{vC}, {CL}, v{vo16}')
    k.I(f'v_add_u32 v{wa}, s90, v{vo16}')
    k.I(f'v_and_b32 v{cta}, 2, v{vi}')
    k.I(f'v_mul_u32_u24 v{yo}, {(8192 + 32 - 32) // 2}, v{cta}')
    k.I(f'v_add_u32 v{yo}, v{yo}, v{vC}')
    k.I(f'v_cmp_eq_u32 vcc, 0, v{cta}')
    k.I(f'v_mov_b32 v{fk}, s50')
    k.I(f'v_cndmask_b32 v{fk}, 1.0, v{fk}, vcc')
    k.emit_bg(env('W_C0', 0))
    cm_(k, 2)
    k.wait_tag(('x', 1))
    k.I('s_barrier')
    cm_(k, 3)
    k.bg_every = env('BGC2', 18)
    def rd(X, base): return [f'ds_read_b128 {vr(TK[X]["dat"]+(2*kap+N)*4,4)}, v{vC} offset:{base+8192*X+2048*kap+1024*N}' for N in range(2) for kap in range(4)]
    def st1(X, inv):
        o = []; t = TK[X]
        for N in range(2):
            for kap in range(4):
                for c in range(2):
                    dd = vr(t['acc']+(2*N+c)*4, 4); da = vr(t['dat']+(2*kap+N)*4, 4); co = vr(f64+6*kap+(WIM if c else WRE), 4)
                    o.append(f'{MF16} {dd}, {co if inv else da}, {da if inv else co}, {dd if kap else 0}')
        return o
    def st3(X):
        o = []; t = TK[X]
        for N in range(2):
            for V in range(2):
                for c in range(2):
                    dd = vr(t['dat']+(2*V+c)*4, 4)
                    o.append(f'{MF16} {dd}, {vr(f32+(2*V+N)*6+(WIM if c else WRE),4)}, {vr(t["pk"]+4*N,4)}, {dd if N else 0}')
        return o
    def st4(X):
        o = []; t = TK[X]
        for V in range(2):
            for N in range(2):
                for c in range(2):
                    dd = vr(t['acc']+(2*N+c)*4, 4)
                    o.append(f'{MF16} {dd}, {vr(t["dat"]+16+4*V,4)}, {vr(f32+(2*N+V)*6+(WIM if c else WRE),4)}, {dd if V else 0}')
        return o
    def cmx(X, src, cc, ss, dst, conj):
        o = []
        for h_ in range(2): o += rec(cmul4, src+8*h_, src+8*h_+4, cc+4*h_, ss+4*h_, dst+4*h_, TK[X]['tmp'], conj)
        if env('C_SCALAR', 0):
            o2_ = []
            for t in o:
                if 'neg_lo' in t:
                    r4 = [int(x) for x in _re.findall(r'v\[(\d+):\d+\]', t)]
                    o2_ += [f'v_fma_f32 v{r4[0]+j}, v{r4[1]+j}, -v{r4[2]+j}, v{r4[3]+j}' for j in range(2)]
                else: o2_ += unpk(t)
            o = o2_
        return o
    def wun(X):
        t = TK[X]; o = []
        for j in range(8):
            o.append(f'v_lshlrev_b32 v{t["acc"]+2*j}, 16, v{t["wq"]+j}')
            o.append(f'v_and_b32 v{t["acc"]+2*j+1}, 0xffff0000, v{t["wq"]+j}')
        return o
    def outs(X):
        t = TK[X]; o = []; fl_ = f'v{fk}'
        for N in range(2):
            re = t['acc']+8*N; im = re+4; tm = t['tmp']
            for p in range(2):
                a_, b_ = 2*p, 2*p+1
                o.append(f'v_fma_f32 v{tm+4*p+0}, -v{im+b_}, {fl_}, v{re+a_}')
                o.append(f'v_fma_f32 v{tm+4*p+1}, v{im+a_}, {fl_}, v{re+b_}')
                o.append(f'v_fma_f32 v{tm+4*p+2}, v{im+b_}, {fl_}, v{re+a_}')
                o.append(f'v_fma_f32 v{tm+4*p+3}, -v{im+a_}, {fl_}, v{re+b_}')
            for j in range(4): o.append(f'v_cvt_pk_bf16_f32 v{t["pk"]+4*N+j}, v{tm+2*j}, v{tm+2*j+1}')
        return o
    def mg_(main, fill, per):
        for t in merge(k, main, fill, per): k.I(t)
    A_, B_ = TK
    PER = env('C_PER', 2); P3 = env('C_P3', 3)
    for t in rd(0, 0): k.I(t)
    mg_(st1(0, False), rd(1, 0), 1)
    mg_(st1(1, False)[:4], [], 0)
    mg_(st1(1, False)[4:], cmx(0, A_['acc'], c1, s1_, A_['pk'], False), PER)
    mg_(st3(0), wun(0) + cmx(1, B_['acc'], c1, s1_, B_['pk'], False), P3)
    cm_(k, 4)
    mg_(st3(1), wun(1) + cmx(0, A_['dat'], A_['acc'], A_['acc']+8, A_['dat']+16, True), P3)
    for w_ in range(4):
        for t in flip6(f32+6*w_): k.I(t)
    mg_(st4(0), cmx(1, B_['dat'], B_['acc'], B_['acc']+8, B_['dat']+16, True), P3)
    fl64 = []
    for kap in range(4): fl64 += flip6(f64+6*kap)
    ca = cmx(0, A_['acc'], c2, s2_, A_['pk'], True)
    mg_(st4(1), fl64[:8] + ca, P3)
    cm_(k, 5)
    for N in range(2): k.I(f'ds_write_b128 v{wa}, {vr(A_["pk"]+4*N,4)} offset:{16384+1024*N}')
    for t in cmx(1, B_['acc'], c2, s2_, B_['pk'], True): k.I(t)
    for N in range(2): k.I(f'ds_write_b128 v{wa}, {vr(B_["pk"]+4*N,4)} offset:{16384+8192+32+1024*N}')
    for t in fl64[8:]: k.I(t)
    k.wait_tag('z')
    k.barrier()
    cm_(k, 6)
    def rd2(e): return [f'ds_read_b128 {vr(TK[e]["dat"]+(2*kap+N)*4,4)}, v{yo} offset:{16384+32*e+2048*kap+1024*N}' for N in range(2) for kap in range(4)]
    def ost(e):
        o = outs(e); r_ = []
        for N in range(2):
            r_ += o[12*N:12*N+12] + [f'v_or_b32 v{TK[e]["pk"]+4*N}, 1, v{TK[e]["pk"]+4*N}',
                  (f'buffer_store_dwordx4 {vr(TK[e]["pk"]+4*N,4)}, v{vo16}, s[16:19], s53 offen offset:{2048*N+1024*e} sc1', 'y')]
        return r_
    def em_(t):
        if isinstance(t, tuple): k.I(t[0], tag=t[1])
        else: k.I(t)
    for t in rd2(0): k.I(t)
    mg_(st1(0, True), rd2(1), 1)
    topup()
    fill = ost(0)
    for j, m_ in enumerate(st1(1, True)):
        k.I(m_)
        for _ in range(PER):
            if fill: em_(fill.pop(0))
    for t in fill + ost(1): em_(t)
    cm_(k, 7)
    k.emit_bg(W_J1)
    def dpro():
        k.bg_every = 0
        k.I(f'v_lshrrev_b32 v{so}, 2, v0')
        k.I(f'v_lshlrev_b32 v{so}, 14, v{so}')
        k.I(f'v_and_b32 v{ta+1}, 3, v0')
        k.I(f'v_lshl_add_u32 v{so}, v{ta+1}, 4, v{so}')
        k.I(f'v_lshrrev_b32 v{ta+1}, 1, v0')
        k.I(f'v_cmp_ge_u32 s[34:35], 64, v{ta+1}')
        k.I(f'v_mov_b32 v{ch+8}, -1')
        k.I(f'v_add_u32 v{vma}, s88, v{vo16}')
        k.I(f'v_mov_b32 v{hs}, 0')
        k.I(f'v_mov_b32 v{hs+1}, 1')
        k.bg_every = 6
        nleft = len(k.bg); hold = k.bg[W_J:]; k.bg = k.bg[:W_J]
        addr = []
        A = addr.append
        A(f'v_lshrrev_b32 v{tq}, 1, v{vq}')
        A(f'v_mad_u32_u24 v{cb_}, v{vi}, 5, v{tq}')
        A(f'v_and_b32 v{tk}, 1, v{vq}')
        A(f'v_mul_u32_u24 v{oh}, 49152, v{tk}')
        A(f'v_lshlrev_b32 v{oh2}, 2, v{oh}')
        A(f'v_lshl_add_u32 v{oh}, v{tq}, 8, v{oh}')
        A(f'v_lshl_add_u32 v{oh}, v{vi}, 4, v{oh}')
        A(f'v_mul_u32_u24 v{tq}, 49152, v{tq}')
        A(f'v_add_u32 v{oh2}, v{oh2}, v{tq}')
        A(f'v_lshl_add_u32 v{oh2}, v{vi}, 4, v{oh2}')
        A(f'v_lshl_add_u32 v{tk}, v1, 1, v{tk}')
        for T in range(3):
            A(f'v_add_u32 v{tq}, {2*T}, v{cb_}')
            A(f'v_xor_b32 v{wh+T}, v{tq}, v{tk}')
            A(f'v_and_b32 v{wh+T}, 7, v{wh+T}')
            A(f'v_lshl_add_u32 v{wh+T}, v{tq}, 3, v{wh+T}')
            A(f'v_lshlrev_b32 v{wh+T}, 4, v{wh+T}')
            A(f'v_add_u32 v{wh+T}, {SB}, v{wh+T}')
        A(f'v_mul_u32_u24 v{wx}, 1280, v{tk}')
        A(f'v_lshl_add_u32 v{wx}, v{cb_}, 4, v{wx}')
        A(f'v_add_u32 v{wx}, {SB}, v{wx}')
        A(f'v_lshrrev_b32 v{tq}, 3, v0')
        A(f'v_xor_b32 v{g0}, v{tq}, v0')
        A(f'v_and_b32 v{g0}, 7, v{g0}')
        A(f'v_lshlrev_b32 v{g0}, 4, v{g0}')
        A(f'v_lshl_add_u32 v{g0}, v{tq}, 8, v{g0}')
        for t in addr: k.I(t)
        k.I(f'v_and_b32 v{ta}, 1, v0')
        k.I(f'v_mul_u32_u24 v{wu}, {2*PL}, v{ta}')
        k.I(f'v_sub_u32 v{wv}, 384, v{ta+1}')
        k.I(f'v_lshl_add_u32 v{wv}, v{wv}, 2, v{wu}')
        k.I(f'v_lshl_add_u32 v{wu}, v{ta+1}, 2, v{wu}')
        k.I(f's_mul_i32 s24, s22, {PL}')
        k.I(f'v_lshl_add_u32 v{ra}, v{vl}, 2, s24')
        k.I(f'v_mov_b32 v{dat+10}, 0'); k.I(f'v_mov_b32 v{dat+11}, 0')
        k.I(f'v_mul_u32_u24 v{xo}, 80, v{vi}')
        k.I(f'v_lshl_add_u32 v{xo}, v{vq}, 3, v{xo}')
        k.I(f'v_lshlrev_b32 v{mo}, 1, v{xo}')
        k.I(f'v_add_u32 v{xo}, s30, v{xo}')
        for j in range(8, 12): k.I(f'v_mov_b32 v{xr+j}, 0')
        k.emit_bg(99); k.bg_every = 0; k.bg = hold
    dpro()
    if env('Y_ACK', 0): k.wait_tag('y')
    k.label('LJOIN')
    def yloads():
        k.I('s_mov_b32 m0, s88')
        k.I(f'buffer_load_dwordx4 v{vo16}, s[12:15], s31 offen sc1 lds')
        k.I(f'buffer_load_dwordx4 v{vo16}, s[12:15], s31 offen offset:1024 sc1 lds')
        for rho in range(3):
            if rho == 2: k.I('s_mov_b64 exec, s[34:35]')
            k.I(f'buffer_load_dwordx4 {vr(ch+4*rho,4)}, v{so}, s[16:19], s{25+rho} offen {YFL}')
        k.I('s_mov_b64 exec, -1')
    def ycheck():
        k.I(f'v_and_b32 v{tq}, v{ch}, v{ch+4}')
        k.I(f'ds_read2st64_b32 {vr(vmk,2)}, v{vma} offset0:0 offset1:4')
        k.I(f'v_and_b32 v{tq}, v{tq}, v{ch+8}')
        k.I(f'v_and_b32 v{tq}, 1, v{tq}')
        k.I(f'v_add_u32 v{tq}, -1, v{tq}')
        k.I(f'v_max3_u32 v{tq}, v{tq}, v{vmk}, v{vmk+1}')
        k.I(f'v_cmp_eq_u32 s[62:63], -1, v{tq}')
        k.I('s_cmp_lg_u64 s[62:63], 0')
    yloads()
    if HALF: k.I(f'buffer_load_dword v{hr}, v{hs}, s[12:15], s89 offen offset:1024 sc1')
    W_Y = env('W_Y', 0)
    k.emit_bg(W_Y)
    mark(k, 1)
    tb_ = g2
    k.I(f'v_add_u32 v{tb_}, {TL}, v{vo16}')
    k.I('s_mov_b32 s50, 0')
    assert NB1 + W_J1 + W_J >= AUX_LAST
    nyoung = 5 + HALF + W_Y + (NB1 + W_J1 + W_J - AUX_LAST)
    if len(k.vm) > nyoung: k.waitcnt(vm=nyoung)
    k.I('s_barrier')
    tl = [f'ds_read_b128 {vr(f40+4*i,4)}, v{tb_} offset:{1024*i}' for i in range(23)]
    for t in tl: k.I(t)
    cm_(k, 8)
    ycheck()
    k.I('s_cbranch_scc1 LY_slow')
    k.label('LY_ok')
    mark(k, 2); cm_(k, 9)
    for rho in range(3):
        if rho == 2: k.I('s_mov_b64 exec, s[34:35]')
        for pr in range(2):
            k.I(f'ds_write_b32 v{wu}, v{ch+4*rho+2*pr} offset:{pr*PL+512*rho}')
            k.I(f'ds_write_b32 v{wv}, v{ch+4*rho+2*pr+1} offset:{pr*PL+512*(2-rho)}')
    k.I('s_mov_b64 exec, -1')
    k.I(f'v_lshlrev_b32 v{so}, 4, v0')
    k.I(f'v_add_u32 v{so}, {SB}, v{so}')
    def gochk():
        k.I(f'v_readfirstlane_b32 s24, v{hr}')
        k.I('s_cmp_lg_u32 s24, 1')
        k.I('s_cbranch_scc1 LF0_slow')
        k.label('LF0_ok')
    if HALF: gochk()
    k.barrier()
    mark(k, 3)
    for p in range(5):
        k.I(f'ds_read2st64_b32 {vr(dat+2*p,2)}, v{ra} offset0:{2*p} offset1:{2*p+1}')
    def s1(T):
        o = []
        for kap in range(3):
            for c in range(2):
                dd = vr(d1 + (2*T+c)*4, 4)
                o.append(f'{MF16} {dd}, {vr(dat+4*kap,4)}, {vr(f40+(2*T+c)*10+4*kap,4)}, {dd if kap else 0}')
        return o
    k.bg_every = env('BG2', 12)
    rest = merge(k, s1(0) + s1(1), [], 1)
    for t in rest: k.I(t)
    k.bg_every = 0
    for T in range(3): k.I(f'ds_read_b128 {vr(mg+4*T,4)}, v{mo} offset:{MLD+64*T}')
    a2 = ch; xf = f40
    cm = [rec(cmul4, d1+8*T, d1+8*T+4, cs+4*T, sn+4*T, a2+4*T, tmp, True) for T in range(3)]
    def s2(T): return [f'{MF16} {vr(d2+(2*T+c)*4,4)}, {vr(a2+4*T,4)}, {vr(f16+(0 if c else 2),4)}, 0' for c in range(2)]
    rest = merge(k, s1(2), cm[0], 2)
    for t in rest: k.I(t)
    for T in range(3):
        if T == 2: k.I('s_mov_b32 exec_hi, 0')
        for c in range(2):
            k.I(f'ds_read_b64 {vr(xr+(2*T+c)*2,2)}, v{xo} offset:{1280*c+32*T}')
    k.I('s_mov_b64 exec, -1')
    k.bg_every = env('BG2', 12)
    for t in s2(0) + cm[1] + s2(1) + cm[2] + s2(2): k.I(t)
    for T in range(3):
        k.I(f'ds_read_b128 {vr(ms+4*T,4)}, v{mo} offset:{MLD+2560+64*T}')
        k.I(f'ds_read_b128 {vr(mc+4*T,4)}, v{mo} offset:{MLD+5120+64*T}')
    st_ = f40 + 24
    for T in range(3):
        for i in range(4*T, 4*T+4):
            k.I(f'v_lshlrev_b32 v{xf+2*i}, 16, v{xr+i}')
            k.I(f'v_and_b32 v{xf+2*i+1}, 0xffff0000, v{xr+i}')
        for c in range(2):
            for p in (0, 2):
                r = (2*T+c)*4+p
                k.I(f'v_pk_fma_f32 {vr(xf+r,2)}, {vr(d2+r,2)}, {vr(mg+4*T+p,2)}, {vr(xf+r,2)}')
        for c in range(2):
            r = xf+(2*T+c)*4
            if T == 0:
                k.I(f'v_pk_add_f32 {vr(st_+2*c,2)}, {vr(r,2)}, {vr(r+2,2)}')
                k.I(f'v_pk_mul_f32 {vr(st_+4+2*c,2)}, {vr(r,2)}, {vr(r,2)}')
            else:
                k.I(f'v_pk_add_f32 {vr(st_+2*c,2)}, {vr(st_+2*c,2)}, {vr(r,2)}')
                k.I(f'v_pk_fma_f32 {vr(st_+4+2*c,2)}, {vr(r,2)}, {vr(r,2)}, {vr(st_+4+2*c,2)}')
        for c in range(2):
            r = xf+(2*T+c)*4+2
            if T: k.I(f'v_pk_add_f32 {vr(st_+2*c,2)}, {vr(st_+2*c,2)}, {vr(r,2)}')
            k.I(f'v_pk_fma_f32 {vr(st_+4+2*c,2)}, {vr(r,2)}, {vr(r,2)}, {vr(st_+4+2*c,2)}')
    for i in range(4): k.I(f'v_add_f32 v{st_+2*i}, v{st_+2*i}, v{st_+2*i+1}')
    wave_reduce_to_sgpr(k, [st_, st_+2, st_+4, st_+6], [46, 47, 48, 49])
    po = d1; ph = d1 + 12; hn = d2
    rr = f40 + 32; nmr = f40 + 34
    ln_scalars(k, 46, 48, rr, nmr, tmp)
    k.I(f'v_mov_b32 v{rr+4}, v{rr+1}')
    k.I(f'v_mov_b32 v{nmr+4}, v{nmr+1}')
    for T in range(3):
        for c in range(2):
            for p in (0, 2):
                r = (2*T+c)*4+p
                k.I(f'v_pk_fma_f32 {vr(hn+r,2)}, {vr(xf+r,2)}, {vr(rr+4*c,2)}, {vr(nmr+4*c,2)} op_sel_hi:[1,0,0]')
        for c in range(2):
            for p in (0, 2):
                r = hn+(2*T+c)*4+p
                k.I(f'v_pk_fma_f32 {vr(r,2)}, {vr(r,2)}, {vr(mc+4*T+p,2)}, {vr(ms+4*T+p,2)}')
        for j in range(4):
            k.I(f'v_cvt_pk_bf16_f32 v{ph+4*T+j}, v{hn+8*T+2*j}, v{hn+8*T+2*j+1}')
        if T:
            k.I(f'v_permlane16_swap_b32 v{ph+4*T-4}, v{ph+4*T-2}')
            k.I(f'v_permlane16_swap_b32 v{ph+4*T-3}, v{ph+4*T-1}')
            k.I(f'v_or_b32 v{ph+4*T-4}, 1, v{ph+4*T-4}')
            k.I(f'ds_write_b128 v{wh+T-1}, {vr(ph+4*T-4,4)} offset:{HB}')
    k.bg_every = 0
    for j in range(2): k.I(f'v_cvt_pk_bf16_f32 v{po+j}, v{xf+2*j}, v{xf+2*j+1}')
    k.I(f'v_permlane16_swap_b32 v{ph+8}, v{ph+10}')
    k.I(f'v_permlane16_swap_b32 v{ph+9}, v{ph+11}')
    k.I(f'v_or_b32 v{ph+8}, 1, v{ph+8}')
    k.I('s_mov_b32 exec_hi, 0')
    k.I(f'ds_write_b128 v{wh+2}, {vr(ph+8,4)} offset:{HB}')
    k.I('s_mov_b64 exec, -1')
    k.I('s_lshr_b32 s42, s3, 1')
    k.I('s_mul_i32 s42, s42, 20480')
    k.I('s_and_b32 s24, s21, 1')
    k.I('s_lshl_b32 s24, s24, 7')
    k.I('s_add_u32 s42, s42, s24')
    k.I(f's_add_u32 s42, s42, {H2}')
    k.I('s_add_u32 s44, s42, 8192')
    k.I('s_add_u32 s45, s42, 16384')
    if not HALF: k.I(f'buffer_load_dword v{hr}, v{hs}, s[12:15], s89 offen offset:1024 sc1')
    k.barrier()
    mark(k, 4); hm(k, 1)
    sd = mg
    for rho in range(3):
        k.I(f'ds_read_b128 {vr(sd+4*rho,4)}, v{so} offset:{HB+4096*rho}')
    for j in range(2, 12): k.I(f'v_cvt_pk_bf16_f32 v{po+j}, v{xf+2*j}, v{xf+2*j+1}')
    k.I(f'buffer_store_dwordx4 {vr(sd,4)}, v{g0}, s[12:15], s42 offen sc1', tag='h2')
    k.I(f'buffer_store_dwordx4 {vr(sd+4,4)}, v{g0}, s[12:15], s44 offen sc1', tag='h2')
    k.I('s_cmp_lt_u32 s22, 2')
    k.I('s_cselect_b64 exec, -1, 0')
    k.I(f'buffer_store_dwordx4 {vr(sd+8,4)}, v{g0}, s[12:15], s45 offen sc1', tag='h2')
    k.I('s_mov_b64 exec, -1')
    hm(k, 2)
    for T in range(3):
        k.I(f'v_permlane16_swap_b32 v{po+4*T}, v{po+4*T+2}')
        k.I(f'v_permlane16_swap_b32 v{po+4*T+1}, v{po+4*T+3}')
    for T in range(3):
        if T == 2: k.I('s_mov_b32 exec_hi, 0')
        k.I(f'ds_write_b128 v{wx}, {vr(po+4*T,4)} offset:{XB+32*T}')
    k.I('s_mov_b64 exec, -1')
    k.I(f's_add_u32 s24, s30, {SB + XB - XL}')
    k.I(f'v_add_u32 v{g2}, s24, v{vo16}')
    k.I('s_mul_i32 s43, s3, 10240')
    k.I(f's_add_u32 s43, s43, s30')
    k.I(f's_add_u32 s29, s43, {X1 - XL}')
    k.waitcnt(lgkm=0)
    sx = 244
    for i in range(3): k.I(f'ds_read_b128 {vr(sx+4*i,4)}, v{g2} offset:{1024*i}')
    def x1st():
        for i in range(3):
            if i == 2: k.I('s_mov_b32 exec_hi, 0')
            k.I(f'buffer_store_dwordx4 {vr(sx+4*i,4)}, v{vo16}, s[12:15], s43 offen offset:{1024*i} sc1')
        k.I('s_mov_b64 exec, -1')
    k.I('s_mul_i32 s24, s20, 163840')
    k.I(f's_add_u32 s24, s24, {H2}')
    k.I('s_add_u32 s16, s4, s24')
    k.I('s_addc_u32 s17, s5, 0')
    k.I('s_mov_b32 s18, 163840')
    k.I('s_mov_b32 s19, 0x00020000')
    k.I('s_and_b32 s52, s22, 2')
    k.I('s_add_u32 s52, s52, s22')
    k.I('s_mul_i32 s52, s52, 20480')
    k.I('s_add_u32 s53, s52, 40960')
    k.I('s_lshl_b32 s54, s20, 8')
    k.I(f's_add_u32 s54, s54, {FLAGS}')
    k.I('s_add_u32 s55, s54, 4096')
    k.I('s_add_u32 s51, s54, 128')
    k.srd(36, 40, S * D * 2)
    hm(k, 3)
    k.emit_bg(W_ST)
    hm(k, 4)
    va = VAlloc(keep)
    rb = [va.get(), va.get()]; vD = va.get()
    oo = va.get(); ox = va.get(); lw = va.get(); lr = va.get(); t0 = va.get(); t1 = va.get()
    act = va.get(32, 4); accs = [va.get(48, 4), va.get(48, 4)]; pk = va.get(12, 4)
    gb = va.get(8, 4); x1r = va.get(16, 4)
    NV = (256 - va.n) // 4
    wdv = va.get(4 * NV, 4)
    def wdreg(n): return vr(wdv + 4*n, 4) if n < NV else ar(4*(n - NV), 4)
    def emit(grp):
        for t in grp:
            if isinstance(t, tuple): k.I(t[0], tag=t[1])
            else: k.I(t)
    def dma(ps, g):
        out = []
        for j in range(4):
            gr = [(f'buffer_load_dwordx4 v{vo16}, s[16:19], m0 offen offset:{1024*j} sc1 lds', ('a', ps, g, j // 2))]
            if j == 0: gr = [f's_add_u32 m0, s{52+ps}, {4096*g}'] + gr
            out.append(gr)
        return out
    NPRE = 2
    if env('H1_FLAG', 0):
        k.wait_tag('h2')
        signal(k, 'H1', 54, hs)
        k.emit_bg(env('W_PL', 6))
        poll(k, 'H1p', 54, hs, hr)
    if env('H_ACK', 1): k.wait_tag('h2')
    hm(k, 5)
    for g in range(NPRE):
        for grp in dma(0, g): emit(grp)
    k.emit_bg(W_A)
    if not HALF: gochk()
    hm(k, 6)
    late = list(k.bg); k.bg = []
    print('late weight loads', len(late), 'NV', NV)
    k.I(f'v_mov_b32 v{rb[0]}, v{vo16}')
    k.I(f'v_add_u32 v{rb[1]}, {4*20480}, v{vo16}')
    def aread(ps, i, kap):
        off = ((i & 1) + 2*ps) * 20480 + 1024*kap
        base = rb[i >> 1]
        return f'ds_read_b128 {vr(act+16*(kap&1)+4*i,4)}, v{base} offset:{off - (40960 if ps else 0)}'
    k.I('s_lshl_b32 s24, s56, 2')
    k.I('s_add_u32 s24, s24, s22')
    k.I('s_mul_i32 s24, s24, 61440' if not env('W_SAME', 0) & 2 else 's_mul_i32 s24, s22, 61440')
    k.I(f's_add_u32 s24, s24, {WD}')
    k.I(f'v_add_u32 v{vD}, s24, v{vo16}')
    def dload(n):
        if env('NO_WD', 0): return [f'v_add_u32 v{vD}, 0, v{vD}']
        g = [f'buffer_load_dwordx4 {wdreg(n)}, v{vD}, s[12:15], 0 offen offset:{1024*(n%4)} sc1']
        if n % 4 == 3: g.append(f'v_add_u32 v{vD}, 0x1000, v{vD}')
        return g
    ND0 = env('WD_EARLY', 0)
    assert wdv + 4 * ND0 <= sx
    for n in range(ND0): emit(dload(n))
    RS = 336; PT = 16 * RS
    k.I('s_lshl_b32 s24, s20, 1')
    k.I('s_add_u32 s24, s24, s57')
    k.I('s_lshl_b32 s24, s24, 2')
    k.I(f's_mul_i32 s33, s22, {12*1024}')
    k.I(f's_add_u32 s33, s33, {HH}')
    k.I('s_mul_i32 s42, s24, 49152')
    k.I('s_add_u32 s42, s42, s33')
    for i in range(1, 4): k.I(f's_add_u32 s{42+i}, s42, {49152*i}')
    k.I(f'v_mul_u32_u24 v{t0}, 26, v{vl}')
    k.I(f'v_lshrrev_b32 v{t0}, 8, v{t0}')
    k.I(f'v_mul_u32_u24 v{t1}, 10, v{t0}')
    k.I(f'v_sub_u32 v{t1}, v{vl}, v{t1}')
    k.I(f'v_mul_u32_u24 v{lr}, {RS}, v{t0}')
    k.I(f'v_lshl_add_u32 v{lr}, v{t1}, 4, v{lr}')
    k.I(f's_mul_i32 s25, s22, {4*RS}')
    k.I(f'v_add_u32 v{lr}, s25, v{lr}')
    k.I(f'v_mul_u32_u24 v{ox}, 1280, v{t0}')
    k.I(f'v_lshl_add_u32 v{ox}, v{t1}, 4, v{ox}')
    k.I(f'v_mul_u32_u24 v{oo}, {32*1280}, v{t0}')
    k.I(f'v_lshl_add_u32 v{oo}, v{t1}, 4, v{oo}')
    k.I(f'v_lshlrev_b32 v{t1}, 5, v{t1}')
    k.I(f'v_mul_u32_u24 v{lw}, {RS}, v{vi}')
    k.I(f's_mul_i32 s25, s22, {PT}')
    k.I(f'v_add_u32 v{lw}, s25, v{lw}')
    lw2 = t0
    k.I(f'v_mul_u32_u24 v{hr}, 5, v{vq}')
    k.I(f'v_add_u32 v{lw2}, 1, v{hr}')
    k.I(f'v_lshrrev_b32 v{lw2}, 1, v{lw2}')
    k.I(f'v_lshl_add_u32 v{lw2}, v{lw2}, 4, v{lw}')
    k.I(f'v_lshrrev_b32 v{hr}, 1, v{hr}')
    k.I(f'v_lshl_add_u32 v{lw}, v{hr}, 4, v{lw}')
    k.I(f'v_and_b32 v{hr}, 1, v{vq}')
    k.I(f'v_mul_u32_u24 v{hr}, 160, v{hr}')
    k.I(f'v_add_u32 v{lw}, v{lw}, v{hr}')
    k.I(f'v_sub_u32 v{lw2}, v{lw2}, v{hr}')
    k.I(f'v_add_u32 v{lw2}, 160, v{lw2}')
    k.I('s_mul_i32 s30, s56, 160')
    k.I('s_lshl_b32 s25, s24, 2')
    k.I('s_add_u32 s25, s25, s22')
    k.I(f's_mul_i32 s46, s25, {4*1280}')
    k.I('s_add_u32 s46, s46, s30')
    k.I(f's_add_u32 s46, s46, {X1}')
    for i in range(1, 4): k.I(f's_add_u32 s{46+i}, s46, {16*1280*i}')
    k.I('s_lshl_b32 s25, s20, 7')
    k.I('s_lshl_b32 s26, s57, 4')
    k.I('s_add_u32 s25, s25, s26')
    k.I('s_add_u32 s25, s25, s22')
    k.I('s_mul_i32 s25, s25, 1280')
    k.I('s_add_u32 s25, s25, s30')
    for i in range(1, 4): k.I(f's_add_u32 s{25+i}, s25, {4*1280*i}')
    k.I('s_lshl_b32 s30, s30, 1')
    k.I(f's_add_u32 s30, s30, {5*2560}')
    vx3 = x1r + 14
    k.I(f'v_cmp_gt_u32 vcc, 32, v{vl}')
    k.I(f'v_mov_b32 v{vx3}, 0x7ff00000')
    k.I(f'v_cndmask_b32 v{vx3}, v{vx3}, v{vo16}, vcc')
    k.I('s_mov_b32 s34, -1')
    k.I('s_mov_b32 s35, 0xff')
    vck = x1r; vad = x1r + 15
    k.I(f'v_add_u32 v{vad}, s52, v{vo16}')
    slow = []
    def validate(name, groups):
        o = []; n = 0
        for g in groups:
            for j in range(2):
                o.append([f'ds_read2st64_b32 {vr(vck+n,2)}, v{vad} offset0:{16*g+8*j} offset1:{16*g+8*j+4}']); n += 2
        i = 1
        while i < n:
            if i + 1 < n: o.append([f'v_bitop3_b32 v{vck}, v{vck}, v{vck+i}, v{vck+i+1} bitop3:0x80']); i += 2
            else: o.append([f'v_bitop3_b32 v{vck}, v{vck}, v{vck+i}, 1 bitop3:0x80']); i += 1
        o.append([f'v_cmp_eq_u32 s[62:63], 0, v{vck}'])
        o.append(['s_nop 0'])
        o.append(['s_cmp_lg_u64 s[62:63], 0', ('BR', f's_cbranch_scc1 L{name}_slow', f'L{name}_ok')])
        slow.append((name, groups))
        return o
    _emit = emit
    def emit(grp):
        for t in grp:
            if isinstance(t, tuple) and t[0] == 'GRP': emit(t[1])
            elif isinstance(t, tuple) and t[0] == 'BR':
                k.I(t[1], noflush=True); k.raw(t[2] + ':')
            else: _emit([t])
    V0 = [0] if env('V0_ONE', 1) else [0, 1]
    mark(k, 5); hm(k, 7)
    k.wait_tag('h2')
    k.wait_tag(('a', 0, V0[-1], 1))
    mark(k, 6); hm(k, 8)
    for g in validate('V0', V0): emit(g)
    if env('H1_FLAG', 0): k.I('s_barrier')
    else: signal(k, 'H1', 54, hs)
    mark(k, 7); hm(k, 9)
    for kp_ in range(2):
        for i in range(4): k.I(aread(0, i, kp_))
    def epi(ps):
        acc = accs[ps]; o = []
        for pr in range(2):
            for j in range(2):
                i = 2*pr + j
                g_ = acc + i*4; u_ = acc + (4+i)*4
                for p in (0, 2): o.append(f'v_pk_mul_f32 {vr(g_+p,2)}, {vr(g_+p,2)}, {vr(u_+p,2)}')
            a_ = acc + (8+2*pr)*4; b_ = a_ + 4
            for r in range(4): o.append(f'v_permlane32_swap_b32 v{a_+r}, v{b_+r}')
            for j in range(2):
                g_ = acc + (2*pr+j)*4
                for p in (0, 2): o.append(f'v_cvt_pk_bf16_f32 v{pk+4*pr+2*j+p//2}, v{g_+p}, v{g_+p+1}')
            for p in (0, 2): o.append(f'v_pk_mul_f32 {vr(a_+p,2)}, {vr(a_+p,2)}, {vr(b_+p,2)}')
            o.append(f'v_permlane16_swap_b32 v{pk+4*pr}, v{pk+4*pr+2}')
            o.append(f'v_permlane16_swap_b32 v{pk+4*pr+1}, v{pk+4*pr+3}')
            for p in (0, 2): o.append(f'v_cvt_pk_bf16_f32 v{pk+8+2*pr+p//2}, v{a_+p}, v{a_+p+1}')
            o.append((f'buffer_store_dwordx4 {vr(pk+4*pr,4)}, v{oh}, s[12:15], s{58+2*pr+ps} offen sc1', ('h', ps)))
        o.append(f'v_permlane16_swap_b32 v{pk+8}, v{pk+10}')
        o.append(f'v_permlane16_swap_b32 v{pk+9}, v{pk+11}')
        o.append((f'buffer_store_dwordx4 {vr(pk+8,4)}, v{oh2}, s[12:15], s{58+ps} offen offset:512 sc1', ('h', ps)))
        return o
    slots_h = [vr(accs[0] + 4*i, 4) for i in range(12)] + [ar(240 + 4*i, 4) for i in range(4)] + [ar(4*i, 4) for i in range(60 - NV, 60)]
    NH = len(slots_h)
    horder = [(t, kp) for kp in range(12) for t in (0, 1)] + [(t, kp) for t in (2, 3) for kp in range(12)]
    def hload(n):
        t, kp = horder[n]
        if env('NO_H', 0): return [f's_add_u32 s{42+t}, s{42+t}, {n}']
        g = [f'buffer_load_dwordx4 {slots_h[n % NH]}, v{vo16}, s[12:15], s{42+t} offen offset:{1024*(kp%4)} sc1']
        if kp % 4 == 3: g.append(f's_add_u32 s{42+t}, s{42+t}, 4096')
        return g
    def check(name, cnt):
        k.I(f'v_readfirstlane_b32 s33, v{hr}')
        k.I('s_cmp_ge_u32 s33, 16')
        k.I(f's_cbranch_scc0 L{name}_spin', noflush=True)
        k.raw(f'L{name}_ok:')
        spins.append((name, cnt))
    spins = []
    q1 = []
    for g in range(NPRE, 5): q1 += dma(0, g)
    xs_ = []
    for i in range(3):
        xs_.append([f'buffer_store_dwordx4 {vr(sx+4*i,4)}, v{vo16 if i < 2 else vx3}, s[12:15], s29 offen offset:{1024*i} sc1'])
    q1 += late[:-6] + [[f'buffer_load_dword v{hr}, v{hs}, s[12:15], s54 offen sc1']] + late[-6:] + xs_ + [['CHECK']]
    for g in range(5): q1 += dma(1, g)
    q1 += [[f'buffer_load_dwordx4 {vr(gb+4*j,4)}, v{t1}, s[12:15], s30 offen offset:{16*j} sc1'] for j in range(2)]
    nd = ND0; nh = 0
    bars = {(0, 6): ('a', 0, 2, 1), (0, 10): ('a', 0, 4, 1), (0, 18): ('a', 1, 1, 1), (1, 6): ('a', 1, 4, 1), (1, env('K_SA', 9)): None}
    if len(V0) == 1: bars[(0, 2)] = ('a', 0, 1, 1)
    VRATE = env('VRATE', 25) / 120.0
    credit = 1.0
    KA_, KC_ = env('K_A', 14), env('K_C', 17)
    ep = []; vq_ = []
    fl = []
    since = 99
    def isvm(t): return (t[0] if isinstance(t, tuple) else t).startswith('buffer_')
    for ps in range(2):
        for kap in range(20):
            pend = list(fl) + [t for g in q1 for t in g]
            if ps == 0 and kap in (env('V2_AT', 4), env('V3_AT', 7)): assert not any(isinstance(t, tuple) and t[0] != 'GRP' and t[1] <= ('a', 0, 2 if kap == env('V2_AT', 4) else 4, 1) for t in pend), 'val early'
            for mt in range(3):
                assert ps or not any(isinstance(t, str) and t.startswith(f'buffer_load_dwordx4 {ar((3*kap+mt)*4,4)},') for t in pend), ('weight late', kap)
            if (ps, kap) in bars:
                while vq_: emit(vq_.pop(0))
                if bars[(ps, kap)]:
                    assert not any(isinstance(t, tuple) and t[0] != 'GRP' and t[1] <= bars[(ps, kap)] for t in pend), ('dma late', ps, kap)
                    k.wait_tag(bars[(ps, kap)])
                if not bars[(ps, kap)]:
                    assert not ep
                    em(k, 3)
                    k.wait_tag(('h', 0))
                    signal(k, 'HA', 55, hs, noflush=True)
                    em(k, 4)
                else: k.I('s_barrier')
            if ps == 0 and kap == 1 and len(V0) == 1: k.wait_tag(('a', 0, 1, 1)); vq_ = validate('V1', [1])
            if ps == 0 and kap == env('V2_AT', 4): k.wait_tag(('a', 0, 2, 1)); vq_ = validate('V2', [2])
            if ps == 0 and kap == env('V3_AT', 7): k.wait_tag(('a', 0, 4, 1)); vq_ = validate('V3', [3, 4])
            if ps == 0 and kap == 18:
                k.I(f'v_add_u32 v{rb[0]}, 40960, v{rb[0]}')
                k.I(f'v_add_u32 v{rb[1]}, 40960, v{rb[1]}')
            if ps == 1 and kap == 1:
                if env('EP_SERIAL', 1):
                    em(k, 1)
                    for t in epi(0): emit([t])
                    em(k, 2)
                else: ep = pairs(epi(0))
            if ps == 1 and kap == KA_: fl.insert(0 if not fl or isvm(fl[0]) else 1, f'buffer_load_dword v{hr}, v{hs}, s[12:15], s55 offen sc1') if False else k.I(f'buffer_load_dword v{hr}, v{hs}, s[12:15], s55 offen sc1')
            if ps == 1 and kap == KC_: em(k, 5); check('HA', 55); em(k, 6)
            for j in range(12):
                i, mt = divmod(j, 3)
                dd = vr(accs[ps]+(mt*4+i)*4, 4)
                k.I(f'{MF16} {dd}, {ar((3*kap+mt)*4,4)}, {vr(act+16*(kap&1)+4*i,4)}, {dd if kap else 0}')
                since += 1; credit = min(credit + VRATE, 1.6)
                rd = None
                if mt == 2:
                    if kap < 18: rd = aread(ps, i, kap + 2)
                    elif ps == 0: rd = aread(1, i, kap - 18)
                if rd: k.I(rd); continue
                if j == 10 and len(k.lg) > 3: k.waitcnt(lgkm=3); continue
                if j == 10 and ps == 1 and kap == 18: k.waitcnt(lgkm=0); continue
                if not fl:
                    free = NV + (3 * kap if ps else 0)
                    if q1 and q1[0] == ['CHECK']: q1.pop(0); check('H1', 54); continue
                    if q1: fl = list(q1.pop(0))
                    elif ps == 1 and kap >= KC_ and nh < 16 and (nh // 2) * 5 < nd: fl = list(hload(nh)); nh += 1
                    elif nd < min(free, 60): fl = list(dload(nd)); nd += 1
                if ep and isvm(ep[0][0]):
                    emit(ep.pop(0)); since = 0; credit -= 1.0
                elif fl and (not isvm(fl[0]) or (since >= 3 and credit >= 1.0)):
                    t = fl.pop(0)
                    if isvm(t): since = 0; credit -= 1.0
                    emit([t])
                elif vq_: emit(vq_.pop(0))
                elif ep:
                    g_ = ep.pop(0); emit(g_)
                    if ep and len(g_) == 1 and len(ep[0]) == 1 and not isvm(ep[0][0]): emit(ep.pop(0))
        if ps == 0 and not env('MD', 0): mark(k, 2)
    for t in fl: emit([t])
    assert not q1
    print('after E: wd loaded', nd, 'h loaded', nh)
    NHE = nh
    mark(k, 8); fm(k, 1); em(k, 7); pm(k, 1)
    fq = []
    def need_order():
        o = []; d = nd; h = nh
        for kp in range(12):
            while d < 5*(kp+1): o.append(dload(d)); d += 1
            while h < 2*(kp+1): o.append(hload(h)); h += 1
        return o
    fq = need_order()
    full = list(fq)
    def sorted_q(a_, b_):
        rest = [g for g in b_ if g not in full]
        return [g for g in full if g in a_ or g in b_] + rest
    fq += [['s_mov_b64 exec, s[34:35]', f'buffer_load_dwordx4 {vr(x1r+4*t,4)}, v{ox}, s[12:15], s{46+t} offen sc1', 's_mov_b64 exec, -1'] for t in range(4)]
    for t in epi(1): emit([t])
    fm(k, 2)
    if KC_ >= 20: check('HA', 55)
    fm(k, 3)
    for _ in range(env('F_PRE1', 0)):
        if fq: emit(fq.pop(0))
    mark(k, 9); fm(k, 4)
    fa = accs[1]
    SL = [0, 4*PT, 8*PT, 0]
    def pwrite(t, a): return [f'ds_write_b128 v{lw2 if dt & 1 else lw}, {vr(a+4*dt,4)} offset:{SL[t]+16*(dt//2)}' for dt in range(5)]
    def fin_reads(t, r): return [f'ds_read_b128 {vr(r+8*src+4*h_,4)}, v{lr} offset:{SL[t]+PT*src+160*h_}' for src in range(4) for h_ in range(2)]
    def fin_valu(t, r, xf):
        o = []
        for j in range(4):
            o.append(f'v_lshlrev_b32 v{xf+2*j}, 16, v{x1r+4*t+j}')
            o.append(f'v_and_b32 v{xf+2*j+1}, 0xffff0000, v{x1r+4*t+j}')
        for p in range(4): o.append(f'v_pk_add_f32 {vr(r+2*p,2)}, {vr(r+2*p,2)}, {vr(r+8+2*p,2)}')
        for p in range(4): o.append(f'v_pk_add_f32 {vr(r+16+2*p,2)}, {vr(r+16+2*p,2)}, {vr(r+24+2*p,2)}')
        for p in range(4): o.append(f'v_pk_add_f32 {vr(r+2*p,2)}, {vr(r+2*p,2)}, {vr(r+16+2*p,2)}')
        for p in range(4): o.append(f'v_pk_fma_f32 {vr(xf+2*p,2)}, {vr(r+2*p,2)}, {vr(gb+2*p,2)}, {vr(xf+2*p,2)}')
        for p in range(4): o.append(f'v_cvt_pk_bf16_f32 v{x1r+4*t+p}, v{xf+2*p}, v{xf+2*p+1}')
        return o
    OST = os.environ.get('OUT_ST', '')
    def fin_store(t): return ['s_mov_b64 exec, s[34:35]', f'buffer_store_dwordx4 {vr(x1r+4*t,4)}, v{oo}, s[36:39], s{25+t} offen{OST}', 's_mov_b64 exec, -1']
    KB_ = env('K_B', 3)
    fl = []
    def gap(pool):
        nonlocal fl
        if not fl and pool:
            g = pool.pop(0)
            if isinstance(g[0], str) and g[0].startswith('s_mov_b64 exec'): emit(g); return
            fl = list(g)
        if fl: emit([fl.pop(0)])
    FG = env('F_GAP', 5)
    KBL, KBC = env('K_BL', 8), env('K_BC', 11)
    since = 99; nh = 24
    hq = [hload(n) for n in range(24, 48)]
    for kp in range(12):
        if kp % 2 == 0: pm(k, 2 + kp // 2)
        if kp == KB_:
            k.wait_tag(('h', 1))
            signal(k, 'HB', 51, hs, noflush=True)
            fm(k, 5)
        if kp == KBL: fq.insert(0, [f'buffer_load_dword v{hr}, v{hs}, s[12:15], s51 offen sc1'])
        if kp == KBC:
            while fq or fl: gap(fq)
            check('HB', 51); fm(k, 7)
            fq = hq
        for t in range(2):
            need = [wdreg(5*kp+dt) for dt in range(5)] + [slots_h[(2*kp+t) % NH]]
            while fq is not hq and any(g[0].startswith(f'buffer_load_dwordx4 {r},') for g in fq for r in need): gap(fq)
            for dt in range(5):
                dd = vr(fa+20*t+4*dt, 4)
                k.I(f'{MF16} {dd}, {wdreg(5*kp+dt)}, {slots_h[(2*kp+t) % NH]}, {dd if kp else 0}')
                since += 1
                if dt == 4: continue
                if fl: gap(fq)
                elif since >= (env('F_GAP2', 5) if fq is hq else env('F_GAP1', 2)) and fq: gap(fq); since = 0
    pm(k, 8)
    while fl: gap(fq)
    if KBC >= 12:
        while fq: gap(fq)
    if not env('MD', 0): mark(k, 3)
    fm(k, 6); em(k, 8); pm(k, 9)
    def sprinkle(lst, every):
        for j, v_ in enumerate(lst):
            k.I(v_)
            if j % every == every - 1 and hq: emit(hq.pop(0))
    if KBC == 12: check('HB', 51); fm(k, 7)
    sprinkle(pwrite(0, fa) + pwrite(1, fa + 20), env('SPR', 2) if KBC <= 12 else 99)
    k.barrier()
    if KBC == 13:
        check('HB', 51); fm(k, 7)
        for _ in range(4): emit(hq.pop(0))
    em(k, 9)
    xfA = pk
    sprinkle(fin_reads(0, fa) + fin_reads(1, act), env('SPR2', 8))
    sprinkle(fin_valu(0, fa, pk), env('SPR3', 14))
    if not env('MD', 0): mark(k, 4)
    late_st = [fin_store(0), fin_store(1)]
    extra0 = pairs(fin_valu(1, act, fa + 40))
    rB = act
    extra = extra0
    hq = hq + late_st
    since = 99
    for t in (2, 3):
        a = fa + 20*(t - 2)
        if t == 3:
            assert not extra
            extra = [[w_] for w_ in pwrite(2, fa)]
        for kp in range(12):
            n = 24 + 12*(t-2) + kp
            if n == 25: fm(k, 8)
            assert not any(g[0].startswith(f'buffer_load_dwordx4 {slots_h[n % NH]},') for g in hq)
            for dt in range(5):
                dd = vr(a+4*dt, 4)
                k.I(f'{MF16} {dd}, {wdreg(5*kp+dt)}, {slots_h[n % NH]}, {dd if kp else 0}')
                since += 1
                if dt == 4 and n < 46: continue
                if fl: gap(hq)
                elif hq and since >= FG and not (extra is extra0 and extra and hq[0] is late_st[1]): gap(hq); since = 0
                elif (kp >= 1 or t == 2) and extra: emit(extra.pop(0))
            if t == 3 and kp == 3:
                assert not extra
                k.barrier()
                extra = [[r_] for r_ in fin_reads(2, wdv)] + pairs(fin_valu(2, wdv, xfA)) + [fin_store(2)]
    fm(k, 9)
    while extra: emit(extra.pop(0))
    for w_ in pwrite(3, fa + 20): k.I(w_)
    xl = fin_valu(3, wdv + 32, act)
    for v_ in xl[:8]: k.I(v_)
    k.barrier()
    for r_ in fin_reads(3, wdv + 32): k.I(r_)
    for v_ in xl[8:]: k.I(v_)
    emit(fin_store(3))
    if gen.STAMPS and not env('MF', 0): k.I('s_add_u32 s66, s50, s64')
    stamp_end(k, 3, 4)
    k.label('LD_exit')
    k.I('s_endpgm')
    k.label('LY_slow', fresh=True); k.vm = []; k.lg = []
    k.I('s_mov_b32 s24, 0x40000')
    k.label('LY_loop')
    k.I('s_add_u32 s50, s50, 1')
    k.I(f's_sleep {env("Y_SLEEP", 2)}')
    yloads()
    k.waitcnt(vm=0)
    k.I('s_sub_u32 s24, s24, 1')
    k.I('s_cbranch_scc1 LY_ok')
    ycheck()
    k.I('s_cbranch_scc1 LY_loop')
    k.I('s_branch LY_ok')
    k.label('LF0_slow', fresh=True); k.vm = []; k.lg = []
    k.I('s_mov_b32 s33, 0x40000')
    k.label('LF0_loop')
    k.I('s_sleep 4')
    k.I(f'buffer_load_dword v{hr}, v{hs}, s[12:15], s89 offen offset:1024 sc1')
    k.waitcnt(vm=0)
    k.I('s_sub_u32 s33, s33, 1')
    k.I('s_cbranch_scc1 LF0_ok')
    k.I(f'v_readfirstlane_b32 s24, v{hr}')
    k.I('s_cmp_lg_u32 s24, 1')
    k.I('s_cbranch_scc1 LF0_loop')
    k.I('s_branch LF0_ok')
    k.label('LWD', fresh=True); k.restore_state(st0)
    vc = VAlloc(keep)
    t0_ = vc.get(); t1_ = vc.get(); ra_ = vc.get(); so_ = vc.get(5); o_ = vc.get(20, 4)
    for p in range(5):
        k.I(f'v_add_u32 v{t0_}, {64*p}, v{vl}')
        k.I(f'v_mul_u32_u24 v{t1_}, 205, v{t0_}')
        k.I(f'v_lshrrev_b32 v{t1_}, 13, v{t1_}')
        k.I(f'v_mul_u32_u24 v{t1_}, 640, v{t1_}')
        k.I(f'v_add_u32 v{so_+p}, v{t1_}, v{vo16}')
    k.I(f'v_bfe_u32 v{t1_}, v{vl}, 2, 2')
    k.I(f'v_lshl_add_u32 v{t0_}, v{vq}, 3, v{t1_}')
    k.I(f'v_mul_u32_u24 v{ra_}, 640, v{t0_}')
    k.I(f'v_and_b32 v{t0_}, 3, v{vl}')
    k.I(f'v_mul_u32_u24 v{t0_}, 40, v{t0_}')
    k.I('s_mul_i32 s24, s22, 160')
    k.I(f's_add_u32 s24, s24, {CL}')
    k.I(f'v_add3_u32 v{ra_}, v{ra_}, v{t0_}, s24')
    k.I('s_mul_i32 s90, s22, 5120')
    k.I(f's_add_u32 s90, s90, {CL}')
    k.I('s_sub_u32 s48, s2, 161')
    if HALF:
        GL = CL + 20480
        wo_ = vc.get(3); rg_ = vc.get(); r2_ = vc.get(); og_ = vc.get(24, 4)
        for p in range(3):
            k.I(f'v_add_u32 v{t0_}, {64*p}, v{vl}')
            k.I(f'v_mul_u32_u24 v{t1_}, 171, v{t0_}')
            k.I(f'v_lshrrev_b32 v{t1_}, 12, v{t1_}')
            k.I(f'v_mul_u32_u24 v{t1_}, 2688, v{t1_}')
            k.I(f'v_add_u32 v{wo_+p}, v{t1_}, v{vo16}')
        k.srd(8, 36, D * F * 2)
        k.srd(16, 38, D * F * 2)
        k.I('s_sub_u32 s48, s2, 161')
        k.I('s_and_b32 s49, s48, 7')
        k.I('s_lshr_b32 s50, s48, 3')
        k.I('s_add_u32 s50, s50, 10')
        k.I('s_lshl_b32 s51, s50, 2')
        k.I('s_add_u32 s51, s51, s22')
        k.I(f's_mul_i32 s51, s51, {8*3072}')
        k.I('s_mul_i32 s24, s49, 384')
        k.I('s_add_u32 s51, s51, s24')
        k.I('s_mul_i32 s24, s22, 3072')
        k.I(f's_add_u32 m0, s24, {GL}')
        for p in range(3): k.I(f'buffer_load_dwordx4 v{wo_+p}, s[8:11], s51 offen offset:{1024*p} nt lds')
        k.I(f's_add_u32 m0, s24, {GL+12288}')
        for p in range(3): k.I(f'buffer_load_dwordx4 v{wo_+p}, s[16:19], s51 offen offset:{1024*p} nt lds')
        k.I('s_lshl_b32 s54, s49, 3')
        k.I('s_add_u32 s54, s54, s22')
        k.I('s_mul_i32 s54, s54, 10')
        k.I('s_add_u32 s54, s54, s50')
        k.I('s_mul_i32 s54, s54, 3072')
        k.I(f's_add_u32 s54, s54, {WGU_B - 30720}')
        k.I('s_cmp_lt_u32 s48, 80')
        k.I('s_cselect_b32 s54, s54, 0x7f000000')
        k.I(f's_add_u32 s34, s54, {4*10*3072}')
        k.I(f'v_bfe_u32 v{t1_}, v{vl}, 2, 2')
        k.I(f'v_lshl_add_u32 v{t0_}, v{vq}, 3, v{t1_}')
        k.I(f'v_mul_u32_u24 v{rg_}, 384, v{t0_}')
        k.I('s_mul_i32 s24, s22, 48')
        k.I(f's_add_u32 s24, s24, {GL}')
        k.I(f'v_add_u32 v{rg_}, s24, v{rg_}')
        k.I(f'v_and_b32 v{t0_}, 1, v{vl}')
        k.I(f'v_lshl_add_u32 v{r2_}, v{t0_}, 3, v{rg_}')
        k.I(f'v_bfe_u32 v{t0_}, v{vl}, 1, 1')
        k.I(f'v_mul_u32_u24 v{t0_}, 12288, v{t0_}')
        k.I(f'v_add_u32 v{r2_}, v{r2_}, v{t0_}')
        k.I(f'v_and_b32 v{t0_}, 3, v{vl}')
        k.I(f'v_lshl_add_u32 v{rg_}, v{t0_}, 3, v{rg_}')
    k.srd(36, 62, F * D * 2)
    k.srd(44, 4, F * D * 2, WD)
    def wd_in(sj):
        k.I(f's_and_b32 s49, s{sj}, 1')
        k.I(f's_lshr_b32 s50, s{sj}, 1')
        k.I('s_lshl_b32 s51, s50, 2')
        k.I('s_add_u32 s51, s51, s22')
        k.I('s_mul_i32 s51, s51, 10240')
        k.I('s_mul_i32 s24, s49, 640')
        k.I('s_add_u32 s51, s51, s24')
        k.I('s_mov_b32 m0, s90')
        for p in range(4): k.I(f'buffer_load_dwordx4 v{so_+p}, s[36:39], s51 offen offset:{1024*p} nt lds', tag='r')
        k.I('s_add_u32 m0, s90, 4096')
        k.I('s_add_u32 s51, s51, 4096')
        k.I(f'buffer_load_dwordx4 v{so_+4}, s[36:39], s51 offen nt lds', tag='r')
        k.I('s_lshl_b32 s52, s49, 2')
        k.I('s_add_u32 s52, s52, s22')
        k.I('s_mul_i32 s52, s52, 48')
        k.I('s_add_u32 s52, s52, s50')
        k.I('s_mul_i32 s52, s52, 5120')
        k.I('s_add_u32 s53, s52, 4096')
    def wd_out():
        k.wait_tag('r')
        k.I('s_barrier')
        cm_(k, 3)
        for j in range(2 if HALF else 0):
            for mt in range(3):
                for hf in range(2):
                    off = 4*hf*384 + 192*j + (12288 if mt == 1 else 0) + (32 if mt == 2 else 0)
                    k.I(f'ds_read_b64_tr_b16 {vr(og_+(3*j+mt)*4+2*hf,2)}, v{r2_ if mt == 2 else rg_} offset:{off}')
        for j in range(2 if HALF else 0):
            for mt in range(3):
                k.I(f'buffer_store_dwordx4 {vr(og_+(3*j+mt)*4,4)}, v{vo16}, s[12:15], s{34 if j else 54} offen offset:{1024*mt} sc1', tag='y')
        for dt in range(5):
            for hf in range(2): k.I(f'ds_read_b64_tr_b16 {vr(o_+dt*4+2*hf,2)}, v{ra_} offset:{4*hf*640+8*dt}')
        for dt in range(5):
            k.I(f'buffer_store_dwordx4 {vr(o_+dt*4,4)}, v{vo16}, s[44:47], s{52+(dt//4)} offen offset:{1024*(dt%4)} sc1', tag='y')
    wd_in(48)
    stW = k.save_state()
    k.I('s_sub_u32 s48, s2, 162')
    k.I('s_cmp_ge_u32 s48, 3')
    k.I('s_cbranch_scc1 LWD0')
    m0_ = 100
    k.I('s_lshl_b32 s48, s48, 8')
    k.I(f'v_add_u32 v{m0_}, s48, v0')
    k.I(f'v_lshlrev_b32 v{m0_+1}, 4, v{m0_}')
    k.srd(8, 4, 4 * 960 * 16, GR)
    for p in range(4):
        k.I(f's_mov_b32 s49, {960*16*p + 320*16}')
        k.I(f'buffer_load_dwordx4 {vr(m0_+4+4*p,4)}, v{m0_+1}, s[8:11], s49 offen')
    k.srd(12, 4, 4 * D * 4, MODN + 2 * D * 4)
    k.I('s_mov_b32 s50, 0x04000c0c')
    k.I('s_mov_b32 s51, 0x0706000c')
    k.I(f'v_mov_b32 v{m0_+22}, {fhex(1.0 / (2.0 * S * D))}')
    k.I(f'v_cmp_gt_u32 vcc, 0xa0, v{m0_}')
    k.I(f'v_cndmask_b32 v{m0_+22}, 1.0, v{m0_+22}, vcc')
    k.I(f'v_subrev_u32 v{m0_+21}, 0x140, v{m0_}')
    k.I(f'v_cmp_gt_u32 vcc, 0xa0, v{m0_+21}')
    k.I(f'v_mov_b32 v{m0_+23}, 1.0')
    k.I(f'v_cndmask_b32 v{m0_+23}, 0, v{m0_+23}, vcc')
    g_ = m0_ + 4
    for p in range(4): unpack_gran(k, g_+4*p, m0_+21, 50, 51)
    for p in (0, 2):
        k.I(f'v_pk_add_f32 {vr(g_+p,2)}, {vr(g_+p,2)}, {vr(g_+4+p,2)}')
        k.I(f'v_pk_add_f32 {vr(g_+8+p,2)}, {vr(g_+8+p,2)}, {vr(g_+12+p,2)}')
    for p in (0, 2): k.I(f'v_pk_add_f32 {vr(g_+p,2)}, {vr(g_+p,2)}, {vr(g_+8+p,2)}')
    for j in range(4): k.I(f'v_cvt_pk_bf16_f32 v{g_+j}, v{g_+j}, v{g_+j}')
    for j in range(4): k.I(f'v_and_b32 v{g_+j}, 0xffff0000, v{g_+j}')
    for j in range(4): k.I(f'v_add_f32 v{g_+j}, v{m0_+23}, v{g_+j}')
    for j in range(4): k.I(f'v_cvt_pk_bf16_f32 v{g_+j}, v{g_+j}, v{g_+j}')
    for j in range(4): k.I(f'v_and_b32 v{g_+j}, 0xffff0000, v{g_+j}')
    for j in range(4): k.I(f'v_mul_f32 v{g_+j}, v{m0_+22}, v{g_+j}')
    k.I(f'buffer_store_dwordx4 {vr(g_,4)}, v{m0_+1}, s[12:15], 0 offen sc1')
    k.label('LWD0')
    k.restore_state(stW)
    k.I('s_sub_u32 s48, s2, 161')
    scalars()
    k.I(f'v_mov_b32 v{hs}, 0')
    k.I(f'v_mov_b32 v{hs+1}, 1')
    cm_(k, 1)
    k.bg = bglist(); k.emit_bg(env('WD_B0', 14))
    cm_(k, 2)
    wd_out()
    cm_(k, 4)
    k.emit_bg(env('WD_B1', 10))
    k.wait_tag('y')
    cm_(k, 5)
    k.I('s_barrier')
    stS = k.save_state()
    k.I('s_cmp_lg_u32 s22, 0')
    k.I('s_cbranch_scc1 LFW_s')
    k.I(f'v_mov_b32 v{t0_}, 1')
    k.I(f'v_lshlrev_b32 v{t1_}, 7, v{vl}')
    k.I(f's_mov_b32 s35, {FW + 1024}')
    k.I('s_mov_b64 exec, 1')
    k.I(f'buffer_atomic_add v{t0_}, v{hs}, s[12:15], s35 offen sc0 sc1')
    k.I(f'v_readfirstlane_b32 s35, v{t0_}')
    k.I('s_cmp_eq_u32 s35, 94')
    k.I('s_cselect_b64 exec, 0xff, 0')
    k.I(f's_mov_b32 s35, {FW}')
    k.I(f'buffer_store_dword v{hs+1}, v{t1_}, s[12:15], s35 offen sc1')
    k.I('s_mov_b64 exec, -1')
    k.label('LFW_s')
    topup()
    k.emit_bg(W_J1_)
    dpro()
    t0_ = v8; t1_ = vcn
    if env('MD_WARM', 1):
        k.I('s_mov_b32 m0, s88')
        k.I(f'buffer_load_dwordx4 v{vo16}, s[12:15], s31 offen sc1 lds')
        k.I(f'buffer_load_dwordx4 v{vo16}, s[12:15], s31 offen offset:1024 sc1 lds')
    cm_(k, 6)
    if env('CANARY', 1):
        k.I('s_lshl_b32 s48, s48, 14')
        k.I('s_add_u32 s48, s48, s25')
        k.I(f'v_mov_b32 v{t0_}, 0')
        k.I('s_mov_b32 s24, 0x400')
        k.I('s_cmp_lg_u32 s22, 0')
        k.I('s_cbranch_scc1 LCAN_o')
        k.label('LCAN')
        k.I('s_sleep 4')
        k.I(f'buffer_load_dword v{t1_}, v{t0_}, s[16:19], s48 offen sc1')
        k.waitcnt(vm=0)
        k.I(f'v_readfirstlane_b32 s49, v{t1_}')
        k.I('s_sub_u32 s24, s24, 1')
        k.I('s_cbranch_scc1 LCAN_o')
        k.I('s_bitcmp0_b32 s49, 0')
        k.I('s_cbranch_scc1 LCAN')
        k.label('LCAN_o')
        if env('CAN_SLEEP', 0): k.I(f's_sleep {env("CAN_SLEEP", 0)}')
        k.I('s_barrier')
    cm_(k, 7)
    k.I('s_branch LJOIN')
    for name, groups in slow:
        k.label(f'L{name}_slow', fresh=True); k.vm = []; k.lg = []
        k.I('s_mov_b32 s32, m0')
        k.I('s_mov_b32 s24, 0x40000')
        k.label(f'L{name}_loop')
        k.I('s_add_u32 s50, s50, 1')
        for g in groups:
            for grp in dma(0, g): _emit(grp)
        k.I('s_mov_b32 m0, s32')
        k.waitcnt(vm=0)
        k.I('s_sub_u32 s24, s24, 1')
        k.I(f's_cbranch_scc1 L{name}_ok')
        sl_ = list(slow)
        for g in validate(name + 'r', groups)[:-1]: _emit(g)
        slow[:] = sl_
        k.I('s_cmp_lg_u64 s[62:63], 0')
        k.I(f's_cbranch_scc1 L{name}_loop')
        k.I(f's_branch L{name}_ok')
    for name, cnt in spins:
        k.label(f'L{name}_spin', fresh=True); k.vm = []; k.lg = []
        k.I('s_mov_b32 s24, 0x100000')
        k.label(f'L{name}_loop')
        k.I(f's_sleep {env("SPIN_SLEEP", 2)}')
        k.I(f'buffer_load_dword v{hr}, v{hs}, s[12:15], s{cnt} offen sc1')
        k.waitcnt(vm=0)
        k.I(f'v_readfirstlane_b32 s33, v{hr}')
        k.I('s_sub_u32 s24, s24, 1')
        k.I(f's_cbranch_scc1 L{name}_ok')
        k.I('s_cmp_lt_u32 s33, 16')
        k.I(f's_cbranch_scc1 L{name}_loop')
        k.I(f's_branch L{name}_ok')
    return k, (256, 256, 163840)
```

```python
import os, math
import gen
from gen import *
from gen2 import *
from gen4 import YT, YT_ST, WS_END4, GR, unpack_gran
from gen import mark, stamp_begin, stamp_end

class Rec:
    def __init__(self): self.l = []
    def I(self, t, **kw): self.l.append(t)
def rec(fn, *a):
    r = Rec(); fn(r, *a); return r.l
def merge(k, main, fill, per):
    fill = list(fill)
    for m in main:
        k.I(m)
        for _ in range(per):
            if fill: k.I(fill.pop(0))
    return fill

import re as _re
def unpk(t):
    if isinstance(t, tuple) or not t.startswith('v_pk_'): return [t]
    m = _re.match(r'v_pk_(\w+)_f32 (.*)$', t)
    regs = [int(x) for x in _re.findall(r'v\[(\d+):\d+\]', m.group(2))]
    if m.group(1) == 'fma' and regs[0] == regs[3]: return [f'v_fmac_f32 v{regs[0]+j}, v{regs[1]+j}, v{regs[2]+j}' for j in range(2)]
    if m.group(1) == 'fma': return [f'v_fma_f32 v{regs[0]+j}, v{regs[1]+j}, v{regs[2]+j}, v{regs[3]+j}' for j in range(2)]
    return [f'v_{m.group(1)}_f32 v{regs[0]+j}, v{regs[1]+j}, v{regs[2]+j}' for j in range(2)]
def pairs(lst):
    out = []
    for t in lst:
        u = unpk(t)
        if len(u) == 2 and 'v_fma_' in u[0]: out += [[u[0]], [u[1]]]
        else: out.append(u)
    return out
def signal(k, name, cnt_sgpr, vtmp, noflush=False):
    k.I('s_barrier')
    st = k.save_state()
    k.I('s_cmp_lg_u32 s22, 0')
    k.I(f's_cbranch_scc1 L{name}_sig', noflush=noflush)
    k.I('s_mov_b64 exec, 1')
    k.I(f'buffer_atomic_add v{vtmp+1}, v{vtmp}, s[12:15], s{cnt_sgpr} offen sc1')
    k.I('s_mov_b64 exec, -1')
    if noflush: k.raw(f'L{name}_sig:')
    else: k.label(f'L{name}_sig')
    k.restore_state(st)
    k.vm.append((set(), None)) if False else None
def poll(k, name, cnt_sgpr, vtmp, vres):
    st = k.save_state()
    k.I('s_cmp_lg_u32 s22, 3')
    k.I(f's_cbranch_scc1 L{name}_done')
    k.I('s_mov_b32 s24, 0x100000')
    k.label(f'L{name}_poll')
    k.I(f'buffer_load_dword v{vres}, v{vtmp}, s[12:15], s{cnt_sgpr} offen sc1')
    k.waitcnt(vm=0)
    k.I(f'v_readfirstlane_b32 s33, v{vres}')
    k.I('s_sub_u32 s24, s24, 1')
    k.I(f's_cbranch_scc1 L{name}_done')
    k.I('s_cmp_lt_u32 s33, 16')
    k.I(f's_cbranch_scc1 L{name}_poll')
    k.label(f'L{name}_done')
    k.restore_state(st)
    k.I('s_barrier')

TAB = WS_END4
WS_END6 = TAB + 24 * 1024
class Fix:
    def __init__(self, seq): self.seq = list(seq)
    def get(self, *a): return self.seq.pop(0)
def role_tab(k):
    c0 = 24; f40 = c0; f16 = c0 + 62; cs = c0 + 68; sn = c0 + 80
    vi, vq, fi, fq, fq4, vo, t8, tmp = 2, 3, 4, 5, 6, 7, 8, 16
    k.I(f'v_and_b32 v{vi}, 15, v0')
    k.I(f'v_lshrrev_b32 v{vq}, 4, v0')
    k.I(f'v_cvt_f32_u32 v{fi}, v{vi}')
    k.I(f'v_cvt_f32_u32 v{fq}, v{vq}')
    k.I(f'v_mul_f32 v{fq4}, 4.0, v{fq}')
    k.I(f'v_lshlrev_b32 v{vo}, 4, v0')
    gen_f40(k, Fix([f40, t8, t8+4, t8+6]), fi, fq, True)
    gen_tw640(k, Fix([cs, sn, t8]), fi, fq4)
    k.I(f'v_cmp_gt_u32 vcc, 8, v{vi}')
    for r in range(4):
        k.I(f'v_cndmask_b32 v{cs+8+r}, 0, v{cs+8+r}, vcc')
        k.I(f'v_cndmask_b32 v{sn+8+r}, 0, v{sn+8+r}, vcc')
    k.I(f'v_mul_f32 v{t8}, {fhex(1.0/16)}, v{fi}')
    k.I(f'v_mul_f32 v{t8+1}, v{fq4}, v{t8}')
    for j in range(4): k.I(f'v_fmamk_f32 v{tmp+4+j}, v{t8}, {fhex(float(j))}, v{t8+1}')
    for j in range(4):
        k.I(f'v_cos_f32 v{tmp+j}, v{tmp+4+j}')
        k.I(f'v_sin_f32 v{tmp+4+j}, v{tmp+4+j}')
    for p in range(2):
        k.I(f'v_cvt_pk_bf16_f32 v{f16+p}, v{tmp+4+2*p}, v{tmp+5+2*p}')
        k.I(f'v_cvt_pk_bf16_f32 v{f16+2+p}, v{tmp+2*p}, v{tmp+1+2*p}')
        k.I(f'v_cvt_pk_bf16_f32 v{f16+4+p}, -v{tmp+4+2*p}, -v{tmp+5+2*p}')
    k.srd(24, 4, 23 * 1024, TAB)
    for i in range(23):
        if i % 4 == 0: k.I(f's_mov_b32 s28, {1024*i}')
        k.I(f'buffer_store_dwordx4 {vr(c0+4*i,4)}, v{vo}, s[24:27], s28 offen offset:{1024*(i%4)}')

XNT = ' nt' if os.environ.get('XNT') == '1' else ''
_mark = mark
def mark(k, i):
    if not env('MF', 0): _mark(k, i)
def fm(k, i):
    if env('MF', 0) == 1: _mark(k, i)
def pm(k, i):
    if env('MF', 0) == 3: _mark(k, i)
def em(k, i):
    if env('MF', 0) == 2: _mark(k, i)
def pack6(k, base, cs, sn, alt):
    def op(r, j, neg):
        n = neg ^ (alt and (j & 1))
        return ('-' if n else '') + f'v{r+j}'
    for p in range(2):
        k.I(f'v_cvt_pk_bf16_f32 v{base+p}, {op(sn,2*p,True)}, {op(sn,2*p+1,True)}')
        k.I(f'v_cvt_pk_bf16_f32 v{base+2+p}, {op(cs,2*p,False)}, {op(cs,2*p+1,False)}')
        k.I(f'v_cvt_pk_bf16_f32 v{base+4+p}, {op(sn,2*p,False)}, {op(sn,2*p+1,False)}')
WIM, WRE = 0, 2
F0 = FLAGS + 8192
WGU_B = WGU + 64 * 30720
FW = F0 + 1024
YFL = ['sc1', 'sc1 nt', 'sc0 sc1', 'sc0 sc1 nt'][env('YFL', 0)]
def hm(k, i):
    if env('MF', 0) == 5: _mark(k, i)
def cm_(k, i):
    if env('MF', 0) == 4: _mark(k, i)

HALF = env('HALF', 0)
def gen_DEF10():
    k = Kernel('kd_kernel')
    PL = 2592
    HB = 0; XB = 10240; SB = 122880; XL = 32768; MLD = XL + 4 * 2560; TL = MLD + 8192; CL = 81920
    W_ST = env('W_ST', 4); W_A = env('W_A', 4)
    NB1 = env('NB1', 24); W_J1 = W_J1_ = env('W_J1', 8); W_J = env('W_J', 8)
    stamp_begin(k)
    k.I('s_cmp_ge_u32 s2, 256')
    k.I('s_cbranch_scc1 LD_exit')
    k.I(f's_load_dwordx2 s[4:5], s[0:1], {KA["ws"]}')
    k.I(f's_load_dwordx2 s[6:7], s[0:1], {KA["x"]}')
    k.I(f's_load_dwordx2 s[40:41], s[0:1], {KA["out"]}')
    k.I(f's_load_dwordx2 s[62:63], s[0:1], {KA["wd"]}')
    if HALF: k.I(f's_load_dwordx4 s[36:39], s[0:1], {KA["wg"]}')
    va = VAlloc(2)
    hs = va.get(2, 2); vl = va.get(); vo16 = va.get(); vW = va.get(); vi = va.get(); vq = va.get(); oh = va.get(); oh2 = va.get(); hr = va.get()
    keep = va.n
    so = va.get(); wu = va.get(); wv = va.get(); ra = va.get(); xo = va.get(); mo = va.get(); wh = va.get(3); wx = va.get(); g0 = va.get(); g2 = va.get()
    ch = va.get(12, 4); xr = va.get(12, 2); mg = va.get(12, 4); mc = va.get(12, 4); ms = va.get(12, 4)
    d1 = va.get(24, 4); d2 = va.get(24, 4); dat = va.get(12, 2); tmp = va.get(8, 2)
    f40 = va.get(92, 4); f16 = f40 + 62; cs = f40 + 68; sn = f40 + 80
    tv = VAlloc(d1, d1 + 48)
    ta = tv.get(4); tk = tv.get(); cb_ = tv.get(); tq = tv.get(); v8 = tv.get(); vcn = tv.get(); vma = tv.get(); vmk = tv.get(2, 2)
    k.I('v_lshrrev_b32 v1, 6, v0')
    k.I(f'v_and_b32 v{vl}, 63, v0')
    k.I('v_readfirstlane_b32 s22, v1')
    k.I(f'v_lshlrev_b32 v{vo16}, 4, v{vl}')
    k.I(f'v_and_b32 v{vi}, 15, v{vl}')
    k.I(f'v_lshrrev_b32 v{vq}, 4, v{vl}')
    def scalars():
        k.I('s_and_b32 s20, s2, 6')
        k.I('s_lshl_b32 s20, s20, 1')
        k.I('s_lshr_b32 s21, s2, 6')
        k.I('s_add_u32 s20, s20, s21')
        k.I('s_bfe_u32 s56, s2, 0x30003')
        k.I('s_and_b32 s57, s2, 1')
        k.I('s_lshl_b32 s21, s57, 3')
        k.I('s_add_u32 s21, s21, s56')
        k.I('s_lshl_b32 s25, s20, 4')
        k.I('s_add_u32 s3, s25, s21')
        k.I('s_lshr_b32 s25, s20, 2')
        k.I('s_lshl_b32 s25, s25, 12')
        k.I('s_lshl_b32 s24, s57, 11')
        k.I('s_add_u32 s25, s25, s24')
        k.I('s_and_b32 s24, s21, 1')
        k.I('s_lshl_b32 s24, s24, 10')
        k.I('s_add_u32 s25, s25, s24')
        k.I('s_and_b32 s24, s20, 3')
        k.I('s_lshl_b32 s24, s24, 8')
        k.I('s_add_u32 s25, s25, s24')
        k.I('s_and_b32 s24, s21, 6')
        k.I('s_lshl_b32 s24, s24, 5')
        k.I('s_add_u32 s25, s25, s24')
        k.I(f's_add_u32 s26, s25, {64*16384}')
        k.I(f's_add_u32 s27, s25, {128*16384}')
        k.I('s_lshl_b32 s23, s20, 7')
        k.I('s_lshl_b32 s24, s21, 1')
        k.I('s_add_u32 s23, s23, s24')
        k.I('s_and_b32 s24, s22, 1')
        k.I('s_lshl_b32 s24, s24, 6')
        k.I('s_add_u32 s23, s23, s24')
        k.I('s_lshr_b32 s24, s22, 1')
        k.I('s_add_u32 s23, s23, s24')
        k.I('s_mul_i32 s28, s23, 1280')
        k.I(f's_add_u32 s29, s28, {32*1280}')
        k.I(f's_mul_i32 s30, s22, 2560')
        k.I(f's_add_u32 s30, s30, {XL}')
        k.I('s_add_u32 s23, s30, 1280')
        k.I('s_lshl_b32 s31, s22, 11')
        k.I(f's_add_u32 s88, s31, {MLD}')
        k.I(f's_add_u32 s31, s31, {MODN + 2*2560}')
        k.I('s_lshl_b32 s32, s21, 2')
        k.I('s_add_u32 s32, s32, s22')
        k.I('s_mul_i32 s24, s32, 30720')
        k.I(f's_add_u32 s24, s24, {WGU}')
        k.I(f'v_add_u32 v{vW}, s24, v{vo16}')
        k.I(f's_mul_i32 s58, s20, {8*49152}')
        k.I('s_mul_i32 s24, s32, 768')
        k.I('s_add_u32 s58, s58, s24')
        k.I(f's_add_u32 s58, s58, {HH}')
        for i in range(1, 4): k.I(f's_add_u32 s{58+i}, s58, {2*i*49152}')
        k.I('s_mul_i32 s24, s22, 6144')
        k.I(f's_add_u32 s42, s24, {TL}')
        k.I(f's_add_u32 s43, s24, {TAB}')
        k.I('s_add_u32 s33, s42, 4096')
        k.I('s_add_u32 s55, s43, 4096')
        k.I('s_and_b32 s89, s2, 7')
        k.I('s_lshl_b32 s89, s89, 7')
        k.I(f's_add_u32 s89, s89, {F0}')
        k.srd(12, 4, WS_END6)
        k.srd(8, 6, S * D * 2)
        k.srd(16, 4, 161 * 16384, XT)
    def wload(n):
        m_ = n % 30
        g = [f'buffer_load_dwordx4 {ar(4*n,4)}, v{vW}, s[12:15], 0 offen offset:{1024*(m_%4)}{" sc1" if n >= 30 and HALF else ""}']
        if n == 29: g.append(f'v_add_u32 v{vW}, {WGU_B - WGU - 28672}, v{vW}')
        elif m_ % 4 == 3: g.append(f'v_add_u32 v{vW}, 0x1000, v{vW}')
        return g
    def bglist():
        o = []
        for i in range(6):
            g = [f'buffer_load_dwordx4 v{vo16}, s[12:15], s{43 if i < 4 else 55} offen offset:{1024*(i%4)} lds']
            if i % 4 == 0: g = [f's_mov_b32 m0, s{42 if i < 4 else 33}'] + g
            o.append(g)
        for c in range(2):
            o.append([f's_mov_b32 m0, s{23 if c else 30}', f'buffer_load_dwordx4 v{vo16}, s[8:11], s{28+c} offen{XNT} lds'])
            o.append(['s_mov_b64 exec, 0xffff', f'buffer_load_dwordx4 v{vo16}, s[8:11], s{28+c} offen offset:1024{XNT} lds', 's_mov_b64 exec, -1'])
        w = [wload(n) for n in range(60)]
        WF = env('W_FIRST', 8)
        global AUX_LAST
        AUX_LAST = WF + 10
        return w[:WF] + o + w[WF:]
    NBG = 70
    def topup():
        k.bg_every = 0
        k.emit_bg(max(0, NB1 - (NBG - len(k.bg))))
        assert NBG - len(k.bg) == NB1, (NBG - len(k.bg), NB1)
    k.I('s_cmp_ge_u32 s2, 161')
    st0 = k.save_state()
    k.I('s_cbranch_scc1 LWD')
    vc = VAlloc(keep)
    vo8 = vc.get(); yo = vc.get(); wa = vc.get(); vC = vc.get()
    fi = vc.get(); fq4 = vc.get(); fk = vc.get(); fw16 = vc.get(); cta = vc.get(2); sg2 = vc.get(2, 2)
    f64 = vc.get(24, 2); f32 = vc.get(24, 2)
    c1 = vc.get(8, 2); s1_ = vc.get(8, 2); c2 = vc.get(8, 2); s2_ = vc.get(8, 2)
    TK = []
    for X in range(2):
        TK.append(dict(wq=vc.get(8, 2), dat=vc.get(32, 4), acc=vc.get(16, 4), pk=vc.get(8, 4), tmp=vc.get(8, 2)))
    tc = TK[0]['tmp']; ts = tc + 4
    k.I(f'v_lshlrev_b32 v{vo8}, 3, v{vl}')
    k.I('s_lshl_b32 s48, s2, 14')
    k.I('s_lshl_b32 s49, s22, 10')
    k.I('s_add_u32 s49, s49, s48')
    k.I('s_lshl_b32 s24, s22, 11')
    k.I('s_add_u32 s48, s48, s24')
    k.I(f's_add_u32 s90, s24, {CL}')
    k.I('s_mov_b32 m0, s90')
    k.I('s_cmp_eq_u32 s2, 0')
    k.I('s_cselect_b32 s50, 0, 1.0')
    k.I('s_cmp_eq_u32 s2, 160')
    k.I('s_cselect_b32 s50, 0, s50')
    k.I('s_mov_b32 s52, 0x80008000')
    k.I(f'v_lshlrev_b32 v{sg2}, 31, v{vi}')
    k.I(f'v_or_b32 v{sg2}, 1.0, v{sg2}')
    k.I(f'v_cvt_f32_u32 v{fi}, v{vi}')
    k.I(f'v_lshlrev_b32 v{fq4}, 2, v{vq}')
    k.I(f'v_cvt_f32_u32 v{fq4}, v{fq4}')
    k.I(f'v_lshlrev_b32 v{fw16}, 4, v1')
    k.I(f'v_cvt_f32_u32 v{fw16}, v{fw16}')
    k.I(f'v_add_f32 v{fk}, v{fw16}, v{fi}')
    def angles(step_reg, scale, base_add, dst, q=None):
        k.I(f'v_mul_f32 v{cta}, {fhex(scale)}, v{step_reg}')
        k.I(f'v_mul_f32 v{cta+1}, v{fq4 if q is None else q}, v{cta}')
        for j in range(4): k.I(f'v_fmamk_f32 v{dst+j}, v{cta}, {fhex(float(base_add + j))}, v{cta+1}')
    def sincos(c, s_):
        for j in range(4):
            k.I(f'v_cos_f32 v{c+j}, v{s_+j}')
            k.I(f'v_sin_f32 v{s_+j}, v{s_+j}')
    def flip(c, s_):
        for p in (0, 2):
            k.I(f'v_pk_mul_f32 {vr(c+p,2)}, {vr(c+p,2)}, {vr(sg2,2)} op_sel_hi:[1,0]')
            k.I(f'v_pk_mul_f32 {vr(s_+p,2)}, {vr(s_+p,2)}, {vr(sg2,2)} op_sel_hi:[1,0]')
    def flip6(base): return [f'v_xor_b32 v{base+j}, s52, v{base+j}' for j in (0, 1, 4, 5)]
    for kap in range(2):
        angles(fk, 1.0/64, 16*kap, ts); sincos(tc, ts)
        pack6(k, f64+6*kap, tc, ts, False)
        flip(tc, ts)
        pack6(k, f64+6*(kap+2), tc, ts, False)
        if kap == 0:
            k.srd(36, 4, XT_SZ, XT)
            k.srd(44, 4, XT_SZ, WT)
            for X in range(2):
                if X:
                    k.I('s_add_u32 m0, s90, 8192')
                    k.I('s_add_u32 s48, s48, 8192')
                k.I(f'buffer_load_dwordx4 v{vo16}, s[36:39], s48 offen lds', tag=('x', X))
                k.I(f'buffer_load_dwordx4 v{vo16}, s[36:39], s48 offen offset:1024 lds', tag=('x', X))
            for X in range(2):
                for m_ in range(2):
                    for V in range(2):
                        k.I(f'buffer_load_dwordx2 {vr(TK[X]["wq"]+4*m_+2*V,2)}, v{vo8}, s[44:47], s49 offen offset:{512*V}')
                    k.I('s_add_u32 s49, s49, 4096')
            cm_(k, 1)
            scalars()
            k.I('s_lshl_b32 s53, s22, 12')
            k.I('s_lshl_b32 s24, s2, 14')
            k.I('s_add_u32 s53, s53, s24')
            zz = TK[1]['dat']
            for j in range(4): k.I(f'v_mov_b32 v{zz+j}, 0')
            k.I(f'v_lshlrev_b32 v{zz+4}, 4, v0')
            k.I('s_mul_i32 s51, s2, 205')
            k.I('s_lshr_b32 s51, s51, 10')
            k.I('s_mul_i32 s51, s51, 40960')
            k.I('s_lshl_b32 s24, s2, 13')
            k.I('s_add_u32 s51, s51, s24')
            k.I(f's_add_u32 s51, s51, {H2}')
            k.I('s_cmp_lt_u32 s2, 160')
            k.I('s_cselect_b32 s51, s51, 0x7f000000')
            k.I(f'buffer_store_dwordx4 {vr(zz,4)}, v{zz+4}, s[12:15], s51 offen sc1', tag='z')
            k.I('s_add_u32 s51, s51, 4096')
            k.I(f'buffer_store_dwordx4 {vr(zz,4)}, v{zz+4}, s[12:15], s51 offen sc1', tag='z')
            k.bg = bglist(); k.bg_every = env('BGC1', 30)
    for N in range(2):
        angles(fk, 1.0/2048, 16*N, s1_+4*N); sincos(c1+4*N, s1_+4*N)
    kreal = k; LATEC = env('C_LATE', 0)
    if LATEC:
        k = Rec(); tc = TK[1]['tmp']; ts = tc + 4
    angles(fi, 1.0/32, 0, ts); sincos(tc, ts)
    pack6(k, f32+0, tc, ts, False)
    pack6(k, f32+12, tc, ts, True)
    flip(tc, ts)
    pack6(k, f32+6, tc, ts, False)
    pack6(k, f32+18, tc, ts, True)
    k.I(f'v_add_f32 v{fw16}, v{fw16}, v{fq4}')
    for N in range(2):
        if N: k.I(f'v_add_f32 v{fi}, {fhex(16.0)}, v{fi}')
        angles(fi, 1.0/2048, 0, s2_+4*N, q=fw16); sincos(c2+4*N, s2_+4*N)
    latec = []
    if LATEC:
        for t in k.l: latec += [t] if 'op_sel' not in t else [f'v_mul_f32 v{int(x)+j}, v{int(x)+j}, v{sg2}' for x in _re.findall(r'v\[(\d+):', t)[:1] for j in range(2)]
        k = kreal
    k.I(f'v_add_u32 v{vC}, {CL}, v{vo16}')
    k.I(f'v_add_u32 v{wa}, s90, v{vo16}')
    k.I(f'v_and_b32 v{vo8}, 2, v{vi}')
    k.I(f'v_mul_u32_u24 v{yo}, {(8192 + 32 - 32) // 2}, v{vo8}')
    k.I(f'v_add_u32 v{yo}, v{yo}, v{vC}')
    k.I(f'v_cmp_eq_u32 vcc, 0, v{vo8}')
    k.I(f'v_mov_b32 v{fk}, s50')
    k.I(f'v_cndmask_b32 v{fk}, 1.0, v{fk}, vcc')
    k.emit_bg(env('W_C0', 0))
    cm_(k, 2)
    k.wait_tag(('x', 1))
    k.I('s_barrier')
    cm_(k, 3)
    k.bg_every = env('BGC2', 18)
    def rd(X, base): return [f'ds_read_b128 {vr(TK[X]["dat"]+(2*kap+N)*4,4)}, v{vC} offset:{base+8192*X+2048*kap+1024*N}' for N in range(2) for kap in range(4)]
    def st1(X, inv):
        o = []; t = TK[X]
        for N in range(2):
            for kap in range(4):
                for c in range(2):
                    dd = vr(t['acc']+(2*N+c)*4, 4); da = vr(t['dat']+(2*kap+N)*4, 4); co = vr(f64+6*kap+(WIM if c else WRE), 4)
                    o.append(f'{MF16} {dd}, {co if inv else da}, {da if inv else co}, {dd if kap else 0}')
        return o
    def st3(X):
        o = []; t = TK[X]
        for N in range(2):
            for V in range(2):
                for c in range(2):
                    dd = vr(t['dat']+(2*V+c)*4, 4)
                    o.append(f'{MF16} {dd}, {vr(f32+(2*V+N)*6+(WIM if c else WRE),4)}, {vr(t["pk"]+4*N,4)}, {dd if N else 0}')
        return o
    def st4(X):
        o = []; t = TK[X]
        for V in range(2):
            for N in range(2):
                for c in range(2):
                    dd = vr(t['acc']+(2*N+c)*4, 4)
                    o.append(f'{MF16} {dd}, {vr(t["dat"]+16+4*V,4)}, {vr(f32+(2*N+V)*6+(WIM if c else WRE),4)}, {dd if V else 0}')
        return o
    def cmx(X, src, cc, ss, dst, conj):
        o = []
        for h_ in range(2): o += rec(cmul4, src+8*h_, src+8*h_+4, cc+4*h_, ss+4*h_, dst+4*h_, TK[X]['tmp'], conj)
        if env('C_SCALAR', 0):
            o2_ = []
            for t in o:
                if 'neg_lo' in t:
                    r4 = [int(x) for x in _re.findall(r'v\[(\d+):\d+\]', t)]
                    o2_ += [f'v_fma_f32 v{r4[0]+j}, v{r4[1]+j}, -v{r4[2]+j}, v{r4[3]+j}' for j in range(2)]
                else: o2_ += unpk(t)
            o = o2_
        return o
    def wun(X):
        t = TK[X]; o = []
        for j in range(8):
            o.append(f'v_lshlrev_b32 v{t["acc"]+2*j}, 16, v{t["wq"]+j}')
            o.append(f'v_and_b32 v{t["acc"]+2*j+1}, 0xffff0000, v{t["wq"]+j}')
        return o
    def outs(X):
        t = TK[X]; o = []; fl_ = f'v{fk}'
        for N in range(2):
            re = t['acc']+8*N; im = re+4; tm = t['tmp']
            for p in range(2):
                a_, b_ = 2*p, 2*p+1
                o.append(f'v_fma_f32 v{tm+4*p+0}, -v{im+b_}, {fl_}, v{re+a_}')
                o.append(f'v_fma_f32 v{tm+4*p+1}, v{im+a_}, {fl_}, v{re+b_}')
                o.append(f'v_fma_f32 v{tm+4*p+2}, v{im+b_}, {fl_}, v{re+a_}')
                o.append(f'v_fma_f32 v{tm+4*p+3}, -v{im+a_}, {fl_}, v{re+b_}')
            for j in range(4): o.append(f'v_cvt_pk_bf16_f32 v{t["pk"]+4*N+j}, v{tm+2*j}, v{tm+2*j+1}')
        return o
    def mg_(main, fill, per):
        for t in merge(k, main, fill, per): k.I(t)
    A_, B_ = TK
    PER = env('C_PER', 2); P3 = env('C_P3', 3)
    NL0 = env('C_L0', 22)
    for t in rd(0, 0) + rd(1, 0)[:7]: k.I(t)
    for t in latec[:NL0]: k.I(t)
    mg_(st1(0, False) + st1(1, False)[:4], rd(1, 0)[7:] + latec[NL0:], env('C_LP', 2))
    mg_(st1(1, False)[4:], cmx(0, A_['acc'], c1, s1_, A_['pk'], False), PER)
    mg_(st3(0), wun(0) + cmx(1, B_['acc'], c1, s1_, B_['pk'], False), P3)
    cm_(k, 4)
    mg_(st3(1), wun(1) + cmx(0, A_['dat'], A_['acc'], A_['acc']+8, A_['dat']+16, True), P3)
    for w_ in range(4):
        for t in flip6(f32+6*w_): k.I(t)
    mg_(st4(0), cmx(1, B_['dat'], B_['acc'], B_['acc']+8, B_['dat']+16, True), P3)
    fl64 = []
    for kap in range(4): fl64 += flip6(f64+6*kap)
    ca = cmx(0, A_['acc'], c2, s2_, A_['pk'], True)
    mg_(st4(1), fl64[:8] + ca, P3)
    cm_(k, 5)
    for N in range(2): k.I(f'ds_write_b128 v{wa}, {vr(A_["pk"]+4*N,4)} offset:{16384+1024*N}')
    for t in cmx(1, B_['acc'], c2, s2_, B_['pk'], True): k.I(t)
    for N in range(2): k.I(f'ds_write_b128 v{wa}, {vr(B_["pk"]+4*N,4)} offset:{16384+8192+32+1024*N}')
    for t in fl64[8:]: k.I(t)
    k.wait_tag('z')
    k.barrier()
    cm_(k, 6)
    def rd2(e): return [f'ds_read_b128 {vr(TK[e]["dat"]+(2*kap+N)*4,4)}, v{yo} offset:{16384+32*e+2048*kap+1024*N}' for N in range(2) for kap in range(4)]
    def ost(e):
        o = outs(e); r_ = []
        for N in range(2):
            r_ += o[12*N:12*N+12] + [f'v_or_b32 v{TK[e]["pk"]+4*N}, 1, v{TK[e]["pk"]+4*N}',
                  (f'buffer_store_dwordx4 {vr(TK[e]["pk"]+4*N,4)}, v{vo16}, s[16:19], s53 offen offset:{2048*N+1024*e} sc1', 'y')]
        return r_
    def em_(t):
        if isinstance(t, tuple): k.I(t[0], tag=t[1])
        else: k.I(t)
    for t in rd2(0): k.I(t)
    mg_(st1(0, True), rd2(1), 1)
    topup()
    fill = ost(0)
    for j, m_ in enumerate(st1(1, True)):
        k.I(m_)
        for _ in range(PER):
            if fill: em_(fill.pop(0))
    for t in fill + ost(1): em_(t)
    cm_(k, 7)
    k.emit_bg(W_J1)
    def dpro():
        k.bg_every = 0
        k.I(f'v_lshrrev_b32 v{so}, 2, v0')
        k.I(f'v_lshlrev_b32 v{so}, 14, v{so}')
        k.I(f'v_and_b32 v{ta+1}, 3, v0')
        k.I(f'v_lshl_add_u32 v{so}, v{ta+1}, 4, v{so}')
        k.I(f'v_lshrrev_b32 v{ta+1}, 1, v0')
        k.I(f'v_cmp_ge_u32 s[34:35], 64, v{ta+1}')
        k.I(f'v_mov_b32 v{ch+8}, -1')
        k.I(f'v_add_u32 v{vma}, s88, v{vo16}')
        k.I(f'v_mov_b32 v{hs}, 0')
        k.I(f'v_mov_b32 v{hs+1}, 1')
        k.bg_every = 6
        nleft = len(k.bg); hold = k.bg[W_J:]; k.bg = k.bg[:W_J]
        addr = []
        A = addr.append
        A(f'v_lshrrev_b32 v{tq}, 1, v{vq}')
        A(f'v_mad_u32_u24 v{cb_}, v{vi}, 5, v{tq}')
        A(f'v_and_b32 v{tk}, 1, v{vq}')
        A(f'v_mul_u32_u24 v{oh}, 49152, v{tk}')
        A(f'v_lshlrev_b32 v{oh2}, 2, v{oh}')
        A(f'v_lshl_add_u32 v{oh}, v{tq}, 8, v{oh}')
        A(f'v_lshl_add_u32 v{oh}, v{vi}, 4, v{oh}')
        A(f'v_mul_u32_u24 v{tq}, 49152, v{tq}')
        A(f'v_add_u32 v{oh2}, v{oh2}, v{tq}')
        A(f'v_lshl_add_u32 v{oh2}, v{vi}, 4, v{oh2}')
        A(f'v_lshl_add_u32 v{tk}, v1, 1, v{tk}')
        for T in range(3):
            A(f'v_add_u32 v{tq}, {2*T}, v{cb_}')
            A(f'v_xor_b32 v{wh+T}, v{tq}, v{tk}')
            A(f'v_and_b32 v{wh+T}, 7, v{wh+T}')
            A(f'v_lshl_add_u32 v{wh+T}, v{tq}, 3, v{wh+T}')
            A(f'v_lshlrev_b32 v{wh+T}, 4, v{wh+T}')
            A(f'v_add_u32 v{wh+T}, {SB}, v{wh+T}')
        A(f'v_mul_u32_u24 v{wx}, 1280, v{tk}')
        A(f'v_lshl_add_u32 v{wx}, v{cb_}, 4, v{wx}')
        A(f'v_add_u32 v{wx}, {SB}, v{wx}')
        A(f'v_lshrrev_b32 v{tq}, 3, v0')
        A(f'v_xor_b32 v{g0}, v{tq}, v0')
        A(f'v_and_b32 v{g0}, 7, v{g0}')
        A(f'v_lshlrev_b32 v{g0}, 4, v{g0}')
        A(f'v_lshl_add_u32 v{g0}, v{tq}, 8, v{g0}')
        for t in addr: k.I(t)
        k.I(f'v_and_b32 v{ta}, 1, v0')
        k.I(f'v_mul_u32_u24 v{wu}, {2*PL}, v{ta}')
        k.I(f'v_sub_u32 v{wv}, 384, v{ta+1}')
        k.I(f'v_lshl_add_u32 v{wv}, v{wv}, 2, v{wu}')
        k.I(f'v_lshl_add_u32 v{wu}, v{ta+1}, 2, v{wu}')
        k.I(f's_mul_i32 s24, s22, {PL}')
        k.I(f'v_lshl_add_u32 v{ra}, v{vl}, 2, s24')
        k.I(f'v_mov_b32 v{dat+10}, 0'); k.I(f'v_mov_b32 v{dat+11}, 0')
        k.I(f'v_mul_u32_u24 v{xo}, 80, v{vi}')
        k.I(f'v_lshl_add_u32 v{xo}, v{vq}, 3, v{xo}')
        k.I(f'v_lshlrev_b32 v{mo}, 1, v{xo}')
        k.I(f'v_add_u32 v{xo}, s30, v{xo}')
        for j in range(8, 12): k.I(f'v_mov_b32 v{xr+j}, 0')
        k.emit_bg(99); k.bg_every = 0; k.bg = hold
    dpro()
    if env('Y_ACK', 0): k.wait_tag('y')
    k.label('LJOIN')
    def yloads():
        k.I('s_mov_b32 m0, s88')
        k.I(f'buffer_load_dwordx4 v{vo16}, s[12:15], s31 offen sc1 lds')
        k.I(f'buffer_load_dwordx4 v{vo16}, s[12:15], s31 offen offset:1024 sc1 lds')
        for rho in range(3):
            if rho == 2: k.I('s_mov_b64 exec, s[34:35]')
            k.I(f'buffer_load_dwordx4 {vr(ch+4*rho,4)}, v{so}, s[16:19], s{25+rho} offen {YFL}')
        k.I('s_mov_b64 exec, -1')
    def ycheck():
        k.I(f'v_and_b32 v{tq}, v{ch}, v{ch+4}')
        k.I(f'ds_read2st64_b32 {vr(vmk,2)}, v{vma} offset0:0 offset1:4')
        k.I(f'v_and_b32 v{tq}, v{tq}, v{ch+8}')
        k.I(f'v_and_b32 v{tq}, 1, v{tq}')
        k.I(f'v_add_u32 v{tq}, -1, v{tq}')
        k.I(f'v_max3_u32 v{tq}, v{tq}, v{vmk}, v{vmk+1}')
        k.I(f'v_cmp_eq_u32 s[62:63], -1, v{tq}')
        k.I('s_cmp_lg_u64 s[62:63], 0')
    yloads()
    if HALF: k.I(f'buffer_load_dword v{hr}, v{hs}, s[12:15], s89 offen offset:1024 sc1')
    W_Y = env('W_Y', 0)
    k.emit_bg(W_Y)
    mark(k, 1)
    tb_ = g2
    k.I(f'v_add_u32 v{tb_}, {TL}, v{vo16}')
    k.I('s_mov_b32 s50, 0')
    assert NB1 + W_J1 + W_J >= AUX_LAST
    nyoung = 5 + HALF + W_Y + (NB1 + W_J1 + W_J - AUX_LAST)
    if len(k.vm) > nyoung: k.waitcnt(vm=nyoung)
    k.I('s_barrier')
    tl = [f'ds_read_b128 {vr(f40+4*i,4)}, v{tb_} offset:{1024*i}' for i in range(23)]
    for T in range(3):
        if T == 2: k.I('s_mov_b32 exec_hi, 0')
        for c in range(2):
            k.I(f'ds_read_b64 {vr(xr+(2*T+c)*2,2)}, v{xo} offset:{1280*c+32*T}')
    k.I('s_mov_b64 exec, -1')
    for t in tl[:8]: k.I(t)
    xf = d2
    assert tv.n <= d2
    for i in range(12):
        k.I(f'v_lshlrev_b32 v{xf+2*i}, 16, v{xr+i}')
        k.I(f'v_and_b32 v{xf+2*i+1}, 0xffff0000, v{xr+i}')
        k.I(tl[8 + i])
    for t in tl[20:]: k.I(t)
    d2 = f40
    cm_(k, 8)
    ycheck()
    k.I('s_cbranch_scc1 LY_slow')
    k.label('LY_ok')
    mark(k, 2); cm_(k, 9)
    for rho in range(3):
        if rho == 2: k.I('s_mov_b64 exec, s[34:35]')
        for pr in range(2):
            k.I(f'ds_write_b32 v{wu}, v{ch+4*rho+2*pr} offset:{pr*PL+512*rho}')
            k.I(f'ds_write_b32 v{wv}, v{ch+4*rho+2*pr+1} offset:{pr*PL+512*(2-rho)}')
    k.I('s_mov_b64 exec, -1')
    k.I(f'v_lshlrev_b32 v{so}, 4, v0')
    k.I(f'v_add_u32 v{so}, {SB}, v{so}')
    def gochk():
        k.I(f'v_readfirstlane_b32 s24, v{hr}')
        k.I('s_cmp_lg_u32 s24, 1')
        k.I('s_cbranch_scc1 LF0_slow')
        k.label('LF0_ok')
    if HALF: gochk()
    k.barrier()
    mark(k, 3)
    for p in range(5):
        k.I(f'ds_read2st64_b32 {vr(dat+2*p,2)}, v{ra} offset0:{2*p} offset1:{2*p+1}')
    def s1(T):
        o = []
        for kap in range(3):
            for c in range(2):
                dd = vr(d1 + (2*T+c)*4, 4)
                o.append(f'{MF16} {dd}, {vr(dat+4*kap,4)}, {vr(f40+(2*T+c)*10+4*kap,4)}, {dd if kap else 0}')
        return o
    k.bg_every = env('BG2', 12)
    mr = [f'ds_read_b128 {vr(mg+4*T,4)}, v{mo} offset:{MLD+64*T}' for T in range(3)]
    mr += [f'ds_read_b128 {vr(ms+4*T,4)}, v{mo} offset:{MLD+2560+64*T}' for T in range(3)]
    mr += [f'ds_read_b128 {vr(mc+4*T,4)}, v{mo} offset:{MLD+5120+64*T}' for T in range(3)]
    for t in s1(0)[:6]: k.I(t)
    rest = merge(k, s1(1), mr, 2)
    for t in rest: k.I(t)
    a2 = ch
    cm = [rec(cmul4, d1+8*T, d1+8*T+4, cs+4*T, sn+4*T, a2+4*T, tmp, True) for T in range(3)]
    def s2(T): return [f'{MF16} {vr(d2+(2*T+c)*4,4)}, {vr(a2+4*T,4)}, {vr(f16+(0 if c else 2),4)}, 0' for c in range(2)]
    for t in s1(2) + cm[0] + s2(0) + cm[1] + s2(1) + cm[2] + s2(2): k.I(t)
    st_ = f40 + 24
    for T in range(3):
        for c in range(2):
            for p in (0, 2):
                r = (2*T+c)*4+p
                k.I(f'v_pk_fma_f32 {vr(xf+r,2)}, {vr(d2+r,2)}, {vr(mg+4*T+p,2)}, {vr(xf+r,2)}')
        for c in range(2):
            r = xf+(2*T+c)*4
            if T == 0:
                k.I(f'v_pk_add_f32 {vr(st_+2*c,2)}, {vr(r,2)}, {vr(r+2,2)}')
                k.I(f'v_pk_mul_f32 {vr(st_+4+2*c,2)}, {vr(r,2)}, {vr(r,2)}')
            else:
                k.I(f'v_pk_add_f32 {vr(st_+2*c,2)}, {vr(st_+2*c,2)}, {vr(r,2)}')
                k.I(f'v_pk_fma_f32 {vr(st_+4+2*c,2)}, {vr(r,2)}, {vr(r,2)}, {vr(st_+4+2*c,2)}')
        for c in range(2):
            r = xf+(2*T+c)*4+2
            if T: k.I(f'v_pk_add_f32 {vr(st_+2*c,2)}, {vr(st_+2*c,2)}, {vr(r,2)}')
            k.I(f'v_pk_fma_f32 {vr(st_+4+2*c,2)}, {vr(r,2)}, {vr(r,2)}, {vr(st_+4+2*c,2)}')
    for i in range(4): k.I(f'v_add_f32 v{st_+2*i}, v{st_+2*i}, v{st_+2*i+1}')
    wave_reduce_to_sgpr(k, [st_, st_+2, st_+4, st_+6], [46, 47, 48, 49])
    po = d1; ph = d1 + 12; hn = d2
    rr = f40 + 32; nmr = f40 + 34
    ln_scalars(k, 46, 48, rr, nmr, tmp)
    k.I(f'v_mov_b32 v{rr+4}, v{rr+1}')
    k.I(f'v_mov_b32 v{nmr+4}, v{nmr+1}')
    for T in range(3):
        for c in range(2):
            for p in (0, 2):
                r = (2*T+c)*4+p
                k.I(f'v_pk_fma_f32 {vr(hn+r,2)}, {vr(xf+r,2)}, {vr(rr+4*c,2)}, {vr(nmr+4*c,2)} op_sel_hi:[1,0,0]')
        for c in range(2):
            for p in (0, 2):
                r = hn+(2*T+c)*4+p
                k.I(f'v_pk_fma_f32 {vr(r,2)}, {vr(r,2)}, {vr(mc+4*T+p,2)}, {vr(ms+4*T+p,2)}')
        for j in range(4):
            k.I(f'v_cvt_pk_bf16_f32 v{ph+4*T+j}, v{hn+8*T+2*j}, v{hn+8*T+2*j+1}')
        if T:
            k.I(f'v_permlane16_swap_b32 v{ph+4*T-4}, v{ph+4*T-2}')
            k.I(f'v_permlane16_swap_b32 v{ph+4*T-3}, v{ph+4*T-1}')
            k.I(f'v_or_b32 v{ph+4*T-4}, 1, v{ph+4*T-4}')
            k.I(f'ds_write_b128 v{wh+T-1}, {vr(ph+4*T-4,4)} offset:{HB}')
    k.bg_every = 0
    for j in range(2): k.I(f'v_cvt_pk_bf16_f32 v{po+j}, v{xf+2*j}, v{xf+2*j+1}')
    k.I(f'v_permlane16_swap_b32 v{ph+8}, v{ph+10}')
    k.I(f'v_permlane16_swap_b32 v{ph+9}, v{ph+11}')
    k.I(f'v_or_b32 v{ph+8}, 1, v{ph+8}')
    k.I('s_mov_b32 exec_hi, 0')
    k.I(f'ds_write_b128 v{wh+2}, {vr(ph+8,4)} offset:{HB}')
    k.I('s_mov_b64 exec, -1')
    k.I('s_lshr_b32 s42, s3, 1')
    k.I('s_mul_i32 s42, s42, 20480')
    k.I('s_and_b32 s24, s21, 1')
    k.I('s_lshl_b32 s24, s24, 7')
    k.I('s_add_u32 s42, s42, s24')
    k.I(f's_add_u32 s42, s42, {H2}')
    k.I('s_add_u32 s44, s42, 8192')
    k.I('s_add_u32 s45, s42, 16384')
    if not HALF: k.I(f'buffer_load_dword v{hr}, v{hs}, s[12:15], s89 offen offset:1024 sc1')
    k.barrier()
    mark(k, 4); hm(k, 1)
    sd = mg
    for rho in range(3):
        k.I(f'ds_read_b128 {vr(sd+4*rho,4)}, v{so} offset:{HB+4096*rho}')
    for j in range(2, 12): k.I(f'v_cvt_pk_bf16_f32 v{po+j}, v{xf+2*j}, v{xf+2*j+1}')
    k.I(f'buffer_store_dwordx4 {vr(sd,4)}, v{g0}, s[12:15], s42 offen sc1', tag='h2')
    k.I(f'buffer_store_dwordx4 {vr(sd+4,4)}, v{g0}, s[12:15], s44 offen sc1', tag='h2')
    k.I('s_cmp_lt_u32 s22, 2')
    k.I('s_cselect_b64 exec, -1, 0')
    k.I(f'buffer_store_dwordx4 {vr(sd+8,4)}, v{g0}, s[12:15], s45 offen sc1', tag='h2')
    k.I('s_mov_b64 exec, -1')
    hm(k, 2)
    for T in range(3):
        k.I(f'v_permlane16_swap_b32 v{po+4*T}, v{po+4*T+2}')
        k.I(f'v_permlane16_swap_b32 v{po+4*T+1}, v{po+4*T+3}')
    for T in range(3):
        if T == 2: k.I('s_mov_b32 exec_hi, 0')
        k.I(f'ds_write_b128 v{wx}, {vr(po+4*T,4)} offset:{XB+32*T}')
    k.I('s_mov_b64 exec, -1')
    k.I(f's_add_u32 s24, s30, {SB + XB - XL}')
    k.I(f'v_add_u32 v{g2}, s24, v{vo16}')
    k.I('s_mul_i32 s43, s3, 10240')
    k.I(f's_add_u32 s43, s43, s30')
    k.I(f's_add_u32 s29, s43, {X1 - XL}')
    k.waitcnt(lgkm=0)
    sx = 244
    for i in range(3): k.I(f'ds_read_b128 {vr(sx+4*i,4)}, v{g2} offset:{1024*i}')
    def x1st():
        for i in range(3):
            if i == 2: k.I('s_mov_b32 exec_hi, 0')
            k.I(f'buffer_store_dwordx4 {vr(sx+4*i,4)}, v{vo16}, s[12:15], s43 offen offset:{1024*i} sc1')
        k.I('s_mov_b64 exec, -1')
    k.I('s_mul_i32 s24, s20, 163840')
    k.I(f's_add_u32 s24, s24, {H2}')
    k.I('s_add_u32 s16, s4, s24')
    k.I('s_addc_u32 s17, s5, 0')
    k.I('s_mov_b32 s18, 163840')
    k.I('s_mov_b32 s19, 0x00020000')
    k.I('s_and_b32 s52, s22, 2')
    k.I('s_add_u32 s52, s52, s22')
    k.I('s_mul_i32 s52, s52, 20480')
    k.I('s_add_u32 s53, s52, 40960')
    k.I('s_lshl_b32 s54, s20, 8')
    k.I(f's_add_u32 s54, s54, {FLAGS}')
    k.I('s_add_u32 s55, s54, 4096')
    k.I('s_add_u32 s51, s54, 128')
    k.srd(36, 40, S * D * 2)
    hm(k, 3)
    k.emit_bg(W_ST)
    hm(k, 4)
    va = VAlloc(keep)
    rb = [va.get(), va.get()]; vD = va.get()
    oo = va.get(); ox = va.get(); lw = va.get(); lr = va.get(); t0 = va.get(); t1 = va.get()
    act = va.get(32, 4); accs = [va.get(48, 4), va.get(48, 4)]; pk = va.get(12, 4)
    gb = va.get(8, 4); x1r = va.get(16, 4)
    NV = (256 - va.n) // 4
    wdv = va.get(4 * NV, 4)
    def wdreg(n): return vr(wdv + 4*n, 4) if n < NV else ar(4*(n - NV), 4)
    def emit(grp):
        for t in grp:
            if isinstance(t, tuple): k.I(t[0], tag=t[1])
            else: k.I(t)
    def dma(ps, g):
        out = []
        for j in range(4):
            gr = [(f'buffer_load_dwordx4 v{vo16}, s[16:19], m0 offen offset:{1024*j} sc1 lds', ('a', ps, g, j // 2))]
            if j == 0: gr = [f's_add_u32 m0, s{52+ps}, {4096*g}'] + gr
            out.append(gr)
        return out
    NPRE = 2
    if env('H1_FLAG', 0):
        k.wait_tag('h2')
        signal(k, 'H1', 54, hs)
        k.emit_bg(env('W_PL', 6))
        poll(k, 'H1p', 54, hs, hr)
    if env('H_ACK', 1): k.wait_tag('h2')
    k.emit_bg(env('W_H', 0))
    hm(k, 5)
    for g in range(NPRE):
        for grp in dma(0, g): emit(grp)
    k.emit_bg(W_A)
    if not HALF: gochk()
    hm(k, 6)
    late = list(k.bg); k.bg = []
    print('late weight loads', len(late), 'NV', NV)
    k.I(f'v_mov_b32 v{rb[0]}, v{vo16}')
    k.I(f'v_add_u32 v{rb[1]}, {4*20480}, v{vo16}')
    def aread(ps, i, kap):
        off = ((i & 1) + 2*ps) * 20480 + 1024*kap
        base = rb[i >> 1]
        return f'ds_read_b128 {vr(act+16*(kap&1)+4*i,4)}, v{base} offset:{off - (40960 if ps else 0)}'
    k.I('s_lshl_b32 s24, s56, 2')
    k.I('s_add_u32 s24, s24, s22')
    k.I('s_mul_i32 s24, s24, 61440' if not env('W_SAME', 0) & 2 else 's_mul_i32 s24, s22, 61440')
    k.I(f's_add_u32 s24, s24, {WD}')
    k.I(f'v_add_u32 v{vD}, s24, v{vo16}')
    def dload(n):
        if env('NO_WD', 0): return [f'v_add_u32 v{vD}, 0, v{vD}']
        g = [f'buffer_load_dwordx4 {wdreg(n)}, v{vD}, s[12:15], 0 offen offset:{1024*(n%4)} sc1']
        if n % 4 == 3: g.append(f'v_add_u32 v{vD}, 0x1000, v{vD}')
        return g
    ND0 = env('WD_EARLY', 0)
    assert wdv + 4 * ND0 <= sx
    for n in range(ND0): emit(dload(n))
    RS = 336; PT = 16 * RS
    k.I('s_lshl_b32 s24, s20, 1')
    k.I('s_add_u32 s24, s24, s57')
    k.I('s_lshl_b32 s24, s24, 2')
    k.I(f's_mul_i32 s33, s22, {12*1024}')
    k.I(f's_add_u32 s33, s33, {HH}')
    k.I('s_mul_i32 s42, s24, 49152')
    k.I('s_add_u32 s42, s42, s33')
    for i in range(1, 4): k.I(f's_add_u32 s{42+i}, s42, {49152*i}')
    k.I(f'v_mul_u32_u24 v{t0}, 26, v{vl}')
    k.I(f'v_lshrrev_b32 v{t0}, 8, v{t0}')
    k.I(f'v_mul_u32_u24 v{t1}, 10, v{t0}')
    k.I(f'v_sub_u32 v{t1}, v{vl}, v{t1}')
    k.I(f'v_mul_u32_u24 v{lr}, {RS}, v{t0}')
    k.I(f'v_lshl_add_u32 v{lr}, v{t1}, 4, v{lr}')
    k.I(f's_mul_i32 s25, s22, {4*RS}')
    k.I(f'v_add_u32 v{lr}, s25, v{lr}')
    k.I(f'v_mul_u32_u24 v{ox}, 1280, v{t0}')
    k.I(f'v_lshl_add_u32 v{ox}, v{t1}, 4, v{ox}')
    k.I(f'v_mul_u32_u24 v{oo}, {32*1280}, v{t0}')
    k.I(f'v_lshl_add_u32 v{oo}, v{t1}, 4, v{oo}')
    k.I(f'v_lshlrev_b32 v{t1}, 5, v{t1}')
    k.I(f'v_mul_u32_u24 v{lw}, {RS}, v{vi}')
    k.I(f's_mul_i32 s25, s22, {PT}')
    k.I(f'v_add_u32 v{lw}, s25, v{lw}')
    lw2 = t0
    k.I(f'v_mul_u32_u24 v{hr}, 5, v{vq}')
    k.I(f'v_add_u32 v{lw2}, 1, v{hr}')
    k.I(f'v_lshrrev_b32 v{lw2}, 1, v{lw2}')
    k.I(f'v_lshl_add_u32 v{lw2}, v{lw2}, 4, v{lw}')
    k.I(f'v_lshrrev_b32 v{hr}, 1, v{hr}')
    k.I(f'v_lshl_add_u32 v{lw}, v{hr}, 4, v{lw}')
    k.I(f'v_and_b32 v{hr}, 1, v{vq}')
    k.I(f'v_mul_u32_u24 v{hr}, 160, v{hr}')
    k.I(f'v_add_u32 v{lw}, v{lw}, v{hr}')
    k.I(f'v_sub_u32 v{lw2}, v{lw2}, v{hr}')
    k.I(f'v_add_u32 v{lw2}, 160, v{lw2}')
    k.I('s_mul_i32 s30, s56, 160')
    k.I('s_lshl_b32 s25, s24, 2')
    k.I('s_add_u32 s25, s25, s22')
    k.I(f's_mul_i32 s46, s25, {4*1280}')
    k.I('s_add_u32 s46, s46, s30')
    k.I(f's_add_u32 s46, s46, {X1}')
    for i in range(1, 4): k.I(f's_add_u32 s{46+i}, s46, {16*1280*i}')
    k.I('s_lshl_b32 s25, s20, 7')
    k.I('s_lshl_b32 s26, s57, 4')
    k.I('s_add_u32 s25, s25, s26')
    k.I('s_add_u32 s25, s25, s22')
    k.I('s_mul_i32 s25, s25, 1280')
    k.I('s_add_u32 s25, s25, s30')
    for i in range(1, 4): k.I(f's_add_u32 s{25+i}, s25, {4*1280*i}')
    k.I('s_lshl_b32 s30, s30, 1')
    k.I(f's_add_u32 s30, s30, {5*2560}')
    vx3 = x1r + 14
    k.I(f'v_cmp_gt_u32 vcc, 32, v{vl}')
    k.I(f'v_mov_b32 v{vx3}, 0x7ff00000')
    k.I(f'v_cndmask_b32 v{vx3}, v{vx3}, v{vo16}, vcc')
    k.I('s_mov_b32 s34, -1')
    k.I('s_mov_b32 s35, 0xff')
    vck = x1r; vad = x1r + 15
    k.I(f'v_add_u32 v{vad}, s52, v{vo16}')
    slow = []
    def validate(name, groups):
        o = []; n = 0
        for g in groups:
            for j in range(2):
                o.append([f'ds_read2st64_b32 {vr(vck+n,2)}, v{vad} offset0:{16*g+8*j} offset1:{16*g+8*j+4}']); n += 2
        i = 1
        while i < n:
            if i + 1 < n: o.append([f'v_bitop3_b32 v{vck}, v{vck}, v{vck+i}, v{vck+i+1} bitop3:0x80']); i += 2
            else: o.append([f'v_bitop3_b32 v{vck}, v{vck}, v{vck+i}, 1 bitop3:0x80']); i += 1
        o.append([f'v_cmp_eq_u32 s[62:63], 0, v{vck}'])
        o.append(['s_nop 0'])
        o.append(['s_cmp_lg_u64 s[62:63], 0', ('BR', f's_cbranch_scc1 L{name}_slow', f'L{name}_ok')])
        slow.append((name, groups))
        return o
    _emit = emit
    def emit(grp):
        for t in grp:
            if isinstance(t, tuple) and t[0] == 'GRP': emit(t[1])
            elif isinstance(t, tuple) and t[0] == 'BR':
                k.I(t[1], noflush=True); k.raw(t[2] + ':')
            else: _emit([t])
    V0 = [0] if env('V0_ONE', 1) else [0, 1]
    mark(k, 5); hm(k, 7)
    k.wait_tag('h2')
    k.wait_tag(('a', 0, V0[-1], 1))
    mark(k, 6); hm(k, 8)
    for g in validate('V0', V0): emit(g)
    if env('H1_FLAG', 0): k.I('s_barrier')
    else: signal(k, 'H1', 54, hs)
    mark(k, 7); hm(k, 9)
    for kp_ in range(2):
        for i in range(4): k.I(aread(0, i, kp_))
    def epi(ps):
        acc = accs[ps]; o = []
        for pr in range(2):
            for j in range(2):
                i = 2*pr + j
                g_ = acc + i*4; u_ = acc + (4+i)*4
                for p in (0, 2): o.append(f'v_pk_mul_f32 {vr(g_+p,2)}, {vr(g_+p,2)}, {vr(u_+p,2)}')
            a_ = acc + (8+2*pr)*4; b_ = a_ + 4
            for r in range(4): o.append(f'v_permlane32_swap_b32 v{a_+r}, v{b_+r}')
            for j in range(2):
                g_ = acc + (2*pr+j)*4
                for p in (0, 2): o.append(f'v_cvt_pk_bf16_f32 v{pk+4*pr+2*j+p//2}, v{g_+p}, v{g_+p+1}')
            for p in (0, 2): o.append(f'v_pk_mul_f32 {vr(a_+p,2)}, {vr(a_+p,2)}, {vr(b_+p,2)}')
            o.append(f'v_permlane16_swap_b32 v{pk+4*pr}, v{pk+4*pr+2}')
            o.append(f'v_permlane16_swap_b32 v{pk+4*pr+1}, v{pk+4*pr+3}')
            for p in (0, 2): o.append(f'v_cvt_pk_bf16_f32 v{pk+8+2*pr+p//2}, v{a_+p}, v{a_+p+1}')
            o.append((f'buffer_store_dwordx4 {vr(pk+4*pr,4)}, v{oh}, s[12:15], s{58+2*pr+ps} offen sc1', ('h', ps)))
        o.append(f'v_permlane16_swap_b32 v{pk+8}, v{pk+10}')
        o.append(f'v_permlane16_swap_b32 v{pk+9}, v{pk+11}')
        o.append((f'buffer_store_dwordx4 {vr(pk+8,4)}, v{oh2}, s[12:15], s{58+ps} offen offset:512 sc1', ('h', ps)))
        return o
    slots_h = [vr(accs[0] + 4*i, 4) for i in range(12)] + [ar(240 + 4*i, 4) for i in range(4)] + [ar(4*i, 4) for i in range(60 - NV, 60)]
    NH = len(slots_h)
    horder = [(t, kp) for kp in range(12) for t in (0, 1)] + [(t, kp) for t in (2, 3) for kp in range(12)]
    def hload(n):
        t, kp = horder[n]
        if env('NO_H', 0): return [f's_add_u32 s{42+t}, s{42+t}, {n}']
        g = [f'buffer_load_dwordx4 {slots_h[n % NH]}, v{vo16}, s[12:15], s{42+t} offen offset:{1024*(kp%4)} sc1']
        if kp % 4 == 3: g.append(f's_add_u32 s{42+t}, s{42+t}, 4096')
        return g
    def check(name, cnt):
        k.I(f'v_readfirstlane_b32 s33, v{hr}')
        k.I('s_cmp_ge_u32 s33, 16')
        k.I(f's_cbranch_scc0 L{name}_spin', noflush=True)
        k.raw(f'L{name}_ok:')
        spins.append((name, cnt))
    spins = []
    q1 = []
    for g in range(NPRE, 5): q1 += dma(0, g)
    xs_ = []
    for i in range(3):
        xs_.append([f'buffer_store_dwordx4 {vr(sx+4*i,4)}, v{vo16 if i < 2 else vx3}, s[12:15], s29 offen offset:{1024*i} sc1'])
    q1 += late[:-6] + [[f'buffer_load_dword v{hr}, v{hs}, s[12:15], s54 offen sc1']] + late[-6:] + xs_ + [['CHECK']]
    for g in range(5): q1 += dma(1, g)
    q1 += [[f'buffer_load_dwordx4 {vr(gb+4*j,4)}, v{t1}, s[12:15], s30 offen offset:{16*j} sc1'] for j in range(2)]
    nd = ND0; nh = 0
    bars = {(0, 6): ('a', 0, 2, 1), (0, 10): ('a', 0, 4, 1), (0, 18): ('a', 1, 1, 1), (1, 6): ('a', 1, 4, 1), (1, env('K_SA', 9)): None}
    if len(V0) == 1: bars[(0, 2)] = ('a', 0, 1, 1)
    VRATE = env('VRATE', 25) / 120.0
    credit = 1.0
    KA_, KC_ = env('K_A', 14), env('K_C', 17)
    ep = []; vq_ = []
    fl = []
    since = 99
    def isvm(t): return (t[0] if isinstance(t, tuple) else t).startswith('buffer_')
    for ps in range(2):
        for kap in range(20):
            pend = list(fl) + [t for g in q1 for t in g]
            if ps == 0 and kap in (env('V2_AT', 4), env('V3_AT', 7)): assert not any(isinstance(t, tuple) and t[0] != 'GRP' and t[1] <= ('a', 0, 2 if kap == env('V2_AT', 4) else 4, 1) for t in pend), 'val early'
            for mt in range(3):
                assert ps or not any(isinstance(t, str) and t.startswith(f'buffer_load_dwordx4 {ar((3*kap+mt)*4,4)},') for t in pend), ('weight late', kap)
            if (ps, kap) in bars:
                while vq_: emit(vq_.pop(0))
                if bars[(ps, kap)]:
                    assert not any(isinstance(t, tuple) and t[0] != 'GRP' and t[1] <= bars[(ps, kap)] for t in pend), ('dma late', ps, kap)
                    k.wait_tag(bars[(ps, kap)])
                if not bars[(ps, kap)]:
                    assert not ep
                    em(k, 3)
                    k.wait_tag(('h', 0))
                    signal(k, 'HA', 55, hs, noflush=True)
                    em(k, 4)
                else: k.I('s_barrier')
            if ps == 0 and kap == 1 and len(V0) == 1: k.wait_tag(('a', 0, 1, 1)); vq_ = validate('V1', [1])
            if ps == 0 and kap == env('V2_AT', 4): k.wait_tag(('a', 0, 2, 1)); vq_ = validate('V2', [2])
            if ps == 0 and kap == env('V3_AT', 7): k.wait_tag(('a', 0, 4, 1)); vq_ = validate('V3', [3, 4])
            if ps == 0 and kap == 18:
                k.I(f'v_add_u32 v{rb[0]}, 40960, v{rb[0]}')
                k.I(f'v_add_u32 v{rb[1]}, 40960, v{rb[1]}')
            if ps == 1 and kap == 1:
                if env('EP_SERIAL', 1):
                    em(k, 1)
                    for t in epi(0): emit([t])
                    em(k, 2)
                else: ep = pairs(epi(0))
            if ps == 1 and kap == KA_: fl.insert(0 if not fl or isvm(fl[0]) else 1, f'buffer_load_dword v{hr}, v{hs}, s[12:15], s55 offen sc1') if False else k.I(f'buffer_load_dword v{hr}, v{hs}, s[12:15], s55 offen sc1')
            if ps == 1 and kap == KC_: em(k, 5); check('HA', 55); em(k, 6)
            for j in range(12):
                i, mt = divmod(j, 3)
                dd = vr(accs[ps]+(mt*4+i)*4, 4)
                k.I(f'{MF16} {dd}, {ar((3*kap+mt)*4,4)}, {vr(act+16*(kap&1)+4*i,4)}, {dd if kap else 0}')
                since += 1; credit = min(credit + VRATE, 1.6)
                rd = None
                if mt == 2:
                    if kap < 18: rd = aread(ps, i, kap + 2)
                    elif ps == 0: rd = aread(1, i, kap - 18)
                if rd: k.I(rd); continue
                if j == 10 and len(k.lg) > 3: k.waitcnt(lgkm=3); continue
                if j == 10 and ps == 1 and kap == 18: k.waitcnt(lgkm=0); continue
                if not fl:
                    free = NV + (3 * kap if ps else 0)
                    if q1 and q1[0] == ['CHECK']: q1.pop(0); check('H1', 54); continue
                    if q1: fl = list(q1.pop(0))
                    elif ps == 1 and kap >= KC_ and nh < 16 and (nh // 2) * 5 < nd: fl = list(hload(nh)); nh += 1
                    elif nd < min(free, 60): fl = list(dload(nd)); nd += 1
                if ep and isvm(ep[0][0]):
                    emit(ep.pop(0)); since = 0; credit -= 1.0
                elif fl and (not isvm(fl[0]) or (since >= 3 and credit >= 1.0)):
                    t = fl.pop(0)
                    if isvm(t): since = 0; credit -= 1.0
                    emit([t])
                elif vq_: emit(vq_.pop(0))
                elif ep:
                    g_ = ep.pop(0); emit(g_)
                    if ep and len(g_) == 1 and len(ep[0]) == 1 and not isvm(ep[0][0]): emit(ep.pop(0))
        if ps == 0 and not env('MD', 0): mark(k, 2)
    for t in fl: emit([t])
    assert not q1
    print('after E: wd loaded', nd, 'h loaded', nh)
    NHE = nh
    mark(k, 8); fm(k, 1); em(k, 7); pm(k, 1)
    fq = []
    def need_order():
        o = []; d = nd; h = nh
        for kp in range(12):
            while d < 5*(kp+1): o.append(dload(d)); d += 1
            while h < 2*(kp+1): o.append(hload(h)); h += 1
        return o
    fq = need_order()
    full = list(fq)
    def sorted_q(a_, b_):
        rest = [g for g in b_ if g not in full]
        return [g for g in full if g in a_ or g in b_] + rest
    fq += [['s_mov_b64 exec, s[34:35]', f'buffer_load_dwordx4 {vr(x1r+4*t,4)}, v{ox}, s[12:15], s{46+t} offen sc1', 's_mov_b64 exec, -1'] for t in range(4)]
    for t in epi(1): emit([t])
    fm(k, 2)
    if KC_ >= 20: check('HA', 55)
    fm(k, 3)
    for _ in range(env('F_PRE1', 0)):
        if fq: emit(fq.pop(0))
    mark(k, 9); fm(k, 4)
    fa = accs[1]
    SL = [0, 4*PT, 8*PT, 0]
    def pwrite(t, a): return [f'ds_write_b128 v{lw2 if dt & 1 else lw}, {vr(a+4*dt,4)} offset:{SL[t]+16*(dt//2)}' for dt in range(5)]
    def fin_reads(t, r): return [f'ds_read_b128 {vr(r+8*src+4*h_,4)}, v{lr} offset:{SL[t]+PT*src+160*h_}' for src in range(4) for h_ in range(2)]
    def fin_valu(t, r, xf):
        o = []
        for j in range(4):
            o.append(f'v_lshlrev_b32 v{xf+2*j}, 16, v{x1r+4*t+j}')
            o.append(f'v_and_b32 v{xf+2*j+1}, 0xffff0000, v{x1r+4*t+j}')
        for p in range(4): o.append(f'v_pk_add_f32 {vr(r+2*p,2)}, {vr(r+2*p,2)}, {vr(r+8+2*p,2)}')
        for p in range(4): o.append(f'v_pk_add_f32 {vr(r+16+2*p,2)}, {vr(r+16+2*p,2)}, {vr(r+24+2*p,2)}')
        for p in range(4): o.append(f'v_pk_add_f32 {vr(r+2*p,2)}, {vr(r+2*p,2)}, {vr(r+16+2*p,2)}')
        for p in range(4): o.append(f'v_pk_fma_f32 {vr(xf+2*p,2)}, {vr(r+2*p,2)}, {vr(gb+2*p,2)}, {vr(xf+2*p,2)}')
        for p in range(4): o.append(f'v_cvt_pk_bf16_f32 v{x1r+4*t+p}, v{xf+2*p}, v{xf+2*p+1}')
        return o
    OST = os.environ.get('OUT_ST', '')
    def fin_store(t): return ['s_mov_b64 exec, s[34:35]', f'buffer_store_dwordx4 {vr(x1r+4*t,4)}, v{oo}, s[36:39], s{25+t} offen{OST}', 's_mov_b64 exec, -1']
    KB_ = env('K_B', 3)
    fl = []
    def gap(pool):
        nonlocal fl
        if not fl and pool:
            g = pool.pop(0)
            if isinstance(g[0], str) and g[0].startswith('s_mov_b64 exec'): emit(g); return
            fl = list(g)
        if fl: emit([fl.pop(0)])
    FG = env('F_GAP', 5)
    KBL, KBC = env('K_BL', 8), env('K_BC', 11)
    since = 99; nh = 24
    hq = [hload(n) for n in range(24, 48)]
    for kp in range(12):
        if kp % 2 == 0: pm(k, 2 + kp // 2)
        if kp == KB_:
            k.wait_tag(('h', 1))
            signal(k, 'HB', 51, hs, noflush=True)
            fm(k, 5)
        if kp == KBL: fq.insert(0, [f'buffer_load_dword v{hr}, v{hs}, s[12:15], s51 offen sc1'])
        if kp == KBC:
            while fq or fl: gap(fq)
            check('HB', 51); fm(k, 7)
            fq = hq
        for t in range(2):
            need = [wdreg(5*kp+dt) for dt in range(5)] + [slots_h[(2*kp+t) % NH]]
            while fq is not hq and any(g[0].startswith(f'buffer_load_dwordx4 {r},') for g in fq for r in need): gap(fq)
            for dt in range(5):
                dd = vr(fa+20*t+4*dt, 4)
                k.I(f'{MF16} {dd}, {wdreg(5*kp+dt)}, {slots_h[(2*kp+t) % NH]}, {dd if kp else 0}')
                since += 1
                if dt == 4: continue
                if fl: gap(fq)
                elif since >= (env('F_GAP2', 5) if fq is hq else env('F_GAP1', 3)) and fq: gap(fq); since = 0
    pm(k, 8)
    while fl: gap(fq)
    if KBC >= 12:
        while fq: gap(fq)
    if not env('MD', 0): mark(k, 3)
    fm(k, 6); em(k, 8); pm(k, 9)
    def sprinkle(lst, every):
        for j, v_ in enumerate(lst):
            k.I(v_)
            if j % every == every - 1 and hq: emit(hq.pop(0))
    if KBC == 12: check('HB', 51); fm(k, 7)
    sprinkle(pwrite(0, fa) + pwrite(1, fa + 20), env('SPR', 2) if KBC <= 12 else 99)
    k.barrier()
    if KBC == 13:
        check('HB', 51); fm(k, 7)
        for _ in range(4): emit(hq.pop(0))
    em(k, 9)
    xfA = pk
    sprinkle(fin_reads(0, fa) + fin_reads(1, act), env('SPR2', 8))
    sprinkle(fin_valu(0, fa, pk), env('SPR3', 14))
    if not env('MD', 0): mark(k, 4)
    late_st = [fin_store(0), fin_store(1)]
    extra0 = pairs(fin_valu(1, act, fa + 40))
    rB = act
    extra = extra0
    hq = hq + late_st
    since = 99
    for t in (2, 3):
        a = fa + 20*(t - 2)
        if t == 3:
            assert not extra
            extra = [[w_] for w_ in pwrite(2, fa)]
        for kp in range(12):
            n = 24 + 12*(t-2) + kp
            if n == 25: fm(k, 8)
            assert not any(g[0].startswith(f'buffer_load_dwordx4 {slots_h[n % NH]},') for g in hq)
            for dt in range(5):
                dd = vr(a+4*dt, 4)
                k.I(f'{MF16} {dd}, {wdreg(5*kp+dt)}, {slots_h[n % NH]}, {dd if kp else 0}')
                since += 1
                if dt == 4 and n < 46: continue
                if fl: gap(hq)
                elif hq and since >= FG and not (extra is extra0 and extra and hq[0] is late_st[1]): gap(hq); since = 0
                elif (kp >= 1 or t == 2) and extra: emit(extra.pop(0))
            if t == 3 and kp == 3:
                assert not extra
                k.barrier()
                extra = [[r_] for r_ in fin_reads(2, wdv)] + pairs(fin_valu(2, wdv, xfA)) + [fin_store(2)]
    fm(k, 9)
    while extra: emit(extra.pop(0))
    for w_ in pwrite(3, fa + 20): k.I(w_)
    xl = fin_valu(3, wdv + 32, act)
    for v_ in xl[:8]: k.I(v_)
    k.barrier()
    for r_ in fin_reads(3, wdv + 32): k.I(r_)
    for v_ in xl[8:]: k.I(v_)
    emit(fin_store(3))
    if gen.STAMPS and not env('MF', 0): k.I('s_add_u32 s66, s50, s64')
    stamp_end(k, 3, 4)
    k.label('LD_exit')
    k.I('s_endpgm')
    k.label('LY_slow', fresh=True); k.vm = []; k.lg = []
    k.I('s_mov_b32 s24, 0x40000')
    k.label('LY_loop')
    k.I('s_add_u32 s50, s50, 1')
    k.I(f's_sleep {env("Y_SLEEP", 2)}')
    yloads()
    k.waitcnt(vm=0)
    k.I('s_sub_u32 s24, s24, 1')
    k.I('s_cbranch_scc1 LY_ok')
    ycheck()
    k.I('s_cbranch_scc1 LY_loop')
    k.I('s_branch LY_ok')
    k.label('LF0_slow', fresh=True); k.vm = []; k.lg = []
    k.I('s_mov_b32 s33, 0x40000')
    k.label('LF0_loop')
    k.I('s_sleep 4')
    k.I(f'buffer_load_dword v{hr}, v{hs}, s[12:15], s89 offen offset:1024 sc1')
    k.waitcnt(vm=0)
    k.I('s_sub_u32 s33, s33, 1')
    k.I('s_cbranch_scc1 LF0_ok')
    k.I(f'v_readfirstlane_b32 s24, v{hr}')
    k.I('s_cmp_lg_u32 s24, 1')
    k.I('s_cbranch_scc1 LF0_loop')
    k.I('s_branch LF0_ok')
    k.label('LWD', fresh=True); k.restore_state(st0)
    vc = VAlloc(keep)
    t0_ = vc.get(); t1_ = vc.get(); ra_ = vc.get(); so_ = vc.get(5); o_ = vc.get(20, 4)
    for p in range(5):
        k.I(f'v_add_u32 v{t0_}, {64*p}, v{vl}')
        k.I(f'v_mul_u32_u24 v{t1_}, 205, v{t0_}')
        k.I(f'v_lshrrev_b32 v{t1_}, 13, v{t1_}')
        k.I(f'v_mul_u32_u24 v{t1_}, 640, v{t1_}')
        k.I(f'v_add_u32 v{so_+p}, v{t1_}, v{vo16}')
    k.I(f'v_bfe_u32 v{t1_}, v{vl}, 2, 2')
    k.I(f'v_lshl_add_u32 v{t0_}, v{vq}, 3, v{t1_}')
    k.I(f'v_mul_u32_u24 v{ra_}, 640, v{t0_}')
    k.I(f'v_and_b32 v{t0_}, 3, v{vl}')
    k.I(f'v_mul_u32_u24 v{t0_}, 40, v{t0_}')
    k.I('s_mul_i32 s24, s22, 160')
    k.I(f's_add_u32 s24, s24, {CL}')
    k.I(f'v_add3_u32 v{ra_}, v{ra_}, v{t0_}, s24')
    k.I('s_mul_i32 s90, s22, 5120')
    k.I(f's_add_u32 s90, s90, {CL}')
    k.I('s_sub_u32 s48, s2, 161')
    if HALF:
        GL = CL + 20480
        wo_ = vc.get(3); rg_ = vc.get(); r2_ = vc.get(); og_ = vc.get(24, 4)
        for p in range(3):
            k.I(f'v_add_u32 v{t0_}, {64*p}, v{vl}')
            k.I(f'v_mul_u32_u24 v{t1_}, 171, v{t0_}')
            k.I(f'v_lshrrev_b32 v{t1_}, 12, v{t1_}')
            k.I(f'v_mul_u32_u24 v{t1_}, 2688, v{t1_}')
            k.I(f'v_add_u32 v{wo_+p}, v{t1_}, v{vo16}')
        k.srd(8, 36, D * F * 2)
        k.srd(16, 38, D * F * 2)
        k.I('s_sub_u32 s48, s2, 161')
        k.I('s_and_b32 s49, s48, 7')
        k.I('s_lshr_b32 s50, s48, 3')
        k.I('s_add_u32 s50, s50, 10')
        k.I('s_lshl_b32 s51, s50, 2')
        k.I('s_add_u32 s51, s51, s22')
        k.I(f's_mul_i32 s51, s51, {8*3072}')
        k.I('s_mul_i32 s24, s49, 384')
        k.I('s_add_u32 s51, s51, s24')
        k.I('s_mul_i32 s24, s22, 3072')
        k.I(f's_add_u32 m0, s24, {GL}')
        for p in range(3): k.I(f'buffer_load_dwordx4 v{wo_+p}, s[8:11], s51 offen offset:{1024*p} nt lds')
        k.I(f's_add_u32 m0, s24, {GL+12288}')
        for p in range(3): k.I(f'buffer_load_dwordx4 v{wo_+p}, s[16:19], s51 offen offset:{1024*p} nt lds')
        k.I('s_lshl_b32 s54, s49, 3')
        k.I('s_add_u32 s54, s54, s22')
        k.I('s_mul_i32 s54, s54, 10')
        k.I('s_add_u32 s54, s54, s50')
        k.I('s_mul_i32 s54, s54, 3072')
        k.I(f's_add_u32 s54, s54, {WGU_B - 30720}')
        k.I('s_cmp_lt_u32 s48, 80')
        k.I('s_cselect_b32 s54, s54, 0x7f000000')
        k.I(f's_add_u32 s34, s54, {4*10*3072}')
        k.I(f'v_bfe_u32 v{t1_}, v{vl}, 2, 2')
        k.I(f'v_lshl_add_u32 v{t0_}, v{vq}, 3, v{t1_}')
        k.I(f'v_mul_u32_u24 v{rg_}, 384, v{t0_}')
        k.I('s_mul_i32 s24, s22, 48')
        k.I(f's_add_u32 s24, s24, {GL}')
        k.I(f'v_add_u32 v{rg_}, s24, v{rg_}')
        k.I(f'v_and_b32 v{t0_}, 1, v{vl}')
        k.I(f'v_lshl_add_u32 v{r2_}, v{t0_}, 3, v{rg_}')
        k.I(f'v_bfe_u32 v{t0_}, v{vl}, 1, 1')
        k.I(f'v_mul_u32_u24 v{t0_}, 12288, v{t0_}')
        k.I(f'v_add_u32 v{r2_}, v{r2_}, v{t0_}')
        k.I(f'v_and_b32 v{t0_}, 3, v{vl}')
        k.I(f'v_lshl_add_u32 v{rg_}, v{t0_}, 3, v{rg_}')
    k.srd(36, 62, F * D * 2)
    k.srd(44, 4, F * D * 2, WD)
    def wd_in(sj):
        k.I(f's_and_b32 s49, s{sj}, 1')
        k.I(f's_lshr_b32 s50, s{sj}, 1')
        k.I('s_lshl_b32 s51, s50, 2')
        k.I('s_add_u32 s51, s51, s22')
        k.I('s_mul_i32 s51, s51, 10240')
        k.I('s_mul_i32 s24, s49, 640')
        k.I('s_add_u32 s51, s51, s24')
        k.I('s_mov_b32 m0, s90')
        for p in range(4): k.I(f'buffer_load_dwordx4 v{so_+p}, s[36:39], s51 offen offset:{1024*p} nt lds', tag='r')
        k.I('s_add_u32 m0, s90, 4096')
        k.I('s_add_u32 s51, s51, 4096')
        k.I(f'buffer_load_dwordx4 v{so_+4}, s[36:39], s51 offen nt lds', tag='r')
        k.I('s_lshl_b32 s52, s49, 2')
        k.I('s_add_u32 s52, s52, s22')
        k.I('s_mul_i32 s52, s52, 48')
        k.I('s_add_u32 s52, s52, s50')
        k.I('s_mul_i32 s52, s52, 5120')
        k.I('s_add_u32 s53, s52, 4096')
    def wd_out():
        k.wait_tag('r')
        k.I('s_barrier')
        cm_(k, 3)
        for j in range(2 if HALF else 0):
            for mt in range(3):
                for hf in range(2):
                    off = 4*hf*384 + 192*j + (12288 if mt == 1 else 0) + (32 if mt == 2 else 0)
                    k.I(f'ds_read_b64_tr_b16 {vr(og_+(3*j+mt)*4+2*hf,2)}, v{r2_ if mt == 2 else rg_} offset:{off}')
        for j in range(2 if HALF else 0):
            for mt in range(3):
                k.I(f'buffer_store_dwordx4 {vr(og_+(3*j+mt)*4,4)}, v{vo16}, s[12:15], s{34 if j else 54} offen offset:{1024*mt} sc1', tag='y')
        for dt in range(5):
            for hf in range(2): k.I(f'ds_read_b64_tr_b16 {vr(o_+dt*4+2*hf,2)}, v{ra_} offset:{4*hf*640+8*dt}')
        for dt in range(5):
            k.I(f'buffer_store_dwordx4 {vr(o_+dt*4,4)}, v{vo16}, s[44:47], s{52+(dt//4)} offen offset:{1024*(dt%4)} sc1', tag='y')
    wd_in(48)
    stW = k.save_state()
    k.I('s_sub_u32 s48, s2, 162')
    k.I('s_cmp_ge_u32 s48, 3')
    k.I('s_cbranch_scc1 LWD0')
    m0_ = 100
    k.I('s_lshl_b32 s48, s48, 8')
    k.I(f'v_add_u32 v{m0_}, s48, v0')
    k.I(f'v_lshlrev_b32 v{m0_+1}, 4, v{m0_}')
    k.srd(8, 4, 4 * 960 * 16, GR)
    for p in range(4):
        k.I(f's_mov_b32 s49, {960*16*p + 320*16}')
        k.I(f'buffer_load_dwordx4 {vr(m0_+4+4*p,4)}, v{m0_+1}, s[8:11], s49 offen')
    k.srd(12, 4, 4 * D * 4, MODN + 2 * D * 4)
    k.I('s_mov_b32 s50, 0x04000c0c')
    k.I('s_mov_b32 s51, 0x0706000c')
    k.I(f'v_mov_b32 v{m0_+22}, {fhex(1.0 / (2.0 * S * D))}')
    k.I(f'v_cmp_gt_u32 vcc, 0xa0, v{m0_}')
    k.I(f'v_cndmask_b32 v{m0_+22}, 1.0, v{m0_+22}, vcc')
    k.I(f'v_subrev_u32 v{m0_+21}, 0x140, v{m0_}')
    k.I(f'v_cmp_gt_u32 vcc, 0xa0, v{m0_+21}')
    k.I(f'v_mov_b32 v{m0_+23}, 1.0')
    k.I(f'v_cndmask_b32 v{m0_+23}, 0, v{m0_+23}, vcc')
    g_ = m0_ + 4
    for p in range(4): unpack_gran(k, g_+4*p, m0_+21, 50, 51)
    for p in (0, 2):
        k.I(f'v_pk_add_f32 {vr(g_+p,2)}, {vr(g_+p,2)}, {vr(g_+4+p,2)}')
        k.I(f'v_pk_add_f32 {vr(g_+8+p,2)}, {vr(g_+8+p,2)}, {vr(g_+12+p,2)}')
    for p in (0, 2): k.I(f'v_pk_add_f32 {vr(g_+p,2)}, {vr(g_+p,2)}, {vr(g_+8+p,2)}')
    for j in range(4): k.I(f'v_cvt_pk_bf16_f32 v{g_+j}, v{g_+j}, v{g_+j}')
    for j in range(4): k.I(f'v_and_b32 v{g_+j}, 0xffff0000, v{g_+j}')
    for j in range(4): k.I(f'v_add_f32 v{g_+j}, v{m0_+23}, v{g_+j}')
    for j in range(4): k.I(f'v_cvt_pk_bf16_f32 v{g_+j}, v{g_+j}, v{g_+j}')
    for j in range(4): k.I(f'v_and_b32 v{g_+j}, 0xffff0000, v{g_+j}')
    for j in range(4): k.I(f'v_mul_f32 v{g_+j}, v{m0_+22}, v{g_+j}')
    k.I(f'buffer_store_dwordx4 {vr(g_,4)}, v{m0_+1}, s[12:15], 0 offen sc1')
    k.label('LWD0')
    k.restore_state(stW)
    k.I('s_sub_u32 s48, s2, 161')
    scalars()
    k.I(f'v_mov_b32 v{hs}, 0')
    k.I(f'v_mov_b32 v{hs+1}, 1')
    cm_(k, 1)
    k.bg = bglist(); k.emit_bg(env('WD_B0', 14))
    cm_(k, 2)
    wd_out()
    cm_(k, 4)
    k.emit_bg(env('WD_B1', 10))
    k.wait_tag('y')
    cm_(k, 5)
    k.I('s_barrier')
    stS = k.save_state()
    k.I('s_cmp_lg_u32 s22, 0')
    k.I('s_cbranch_scc1 LFW_s')
    k.I(f'v_mov_b32 v{t0_}, 1')
    k.I(f'v_lshlrev_b32 v{t1_}, 7, v{vl}')
    k.I(f's_mov_b32 s35, {FW + 1024}')
    k.I('s_mov_b64 exec, 1')
    k.I(f'buffer_atomic_add v{t0_}, v{hs}, s[12:15], s35 offen sc0 sc1')
    k.I(f'v_readfirstlane_b32 s35, v{t0_}')
    k.I('s_cmp_eq_u32 s35, 94')
    k.I('s_cselect_b64 exec, 0xff, 0')
    k.I(f's_mov_b32 s35, {FW}')
    k.I(f'buffer_store_dword v{hs+1}, v{t1_}, s[12:15], s35 offen sc1')
    k.I('s_mov_b64 exec, -1')
    k.label('LFW_s')
    topup()
    k.emit_bg(W_J1_)
    dpro()
    t0_ = v8; t1_ = vcn
    if env('MD_WARM', 1):
        k.I('s_mov_b32 m0, s88')
        k.I(f'buffer_load_dwordx4 v{vo16}, s[12:15], s31 offen sc1 lds')
        k.I(f'buffer_load_dwordx4 v{vo16}, s[12:15], s31 offen offset:1024 sc1 lds')
    cm_(k, 6)
    if env('CANARY', 1):
        k.I('s_lshl_b32 s48, s48, 14')
        k.I('s_add_u32 s48, s48, s25')
        k.I(f'v_mov_b32 v{t0_}, 0')
        k.I('s_mov_b32 s24, 0x400')
        k.I('s_cmp_lg_u32 s22, 0')
        k.I('s_cbranch_scc1 LCAN_o')
        k.label('LCAN')
        k.I('s_sleep 4')
        k.I(f'buffer_load_dword v{t1_}, v{t0_}, s[16:19], s48 offen sc1')
        k.waitcnt(vm=0)
        k.I(f'v_readfirstlane_b32 s49, v{t1_}')
        k.I('s_sub_u32 s24, s24, 1')
        k.I('s_cbranch_scc1 LCAN_o')
        k.I('s_bitcmp0_b32 s49, 0')
        k.I('s_cbranch_scc1 LCAN')
        k.label('LCAN_o')
        if env('CAN_SLEEP', 0): k.I(f's_sleep {env("CAN_SLEEP", 0)}')
        k.I('s_barrier')
    cm_(k, 7)
    k.I('s_branch LJOIN')
    for name, groups in slow:
        k.label(f'L{name}_slow', fresh=True); k.vm = []; k.lg = []
        k.I('s_mov_b32 s32, m0')
        k.I('s_mov_b32 s24, 0x40000')
        k.label(f'L{name}_loop')
        k.I(f's_add_u32 s50, s50, {16 if name == "V0" else 256}')
        for g in groups:
            for grp in dma(0, g): _emit(grp)
        k.I('s_mov_b32 m0, s32')
        k.waitcnt(vm=0)
        k.I('s_sub_u32 s24, s24, 1')
        k.I(f's_cbranch_scc1 L{name}_ok')
        sl_ = list(slow)
        for g in validate(name + 'r', groups)[:-1]: _emit(g)
        slow[:] = sl_
        k.I('s_cmp_lg_u64 s[62:63], 0')
        k.I(f's_cbranch_scc1 L{name}_loop')
        k.I(f's_branch L{name}_ok')
    for name, cnt in spins:
        k.label(f'L{name}_spin', fresh=True); k.vm = []; k.lg = []
        k.I('s_mov_b32 s24, 0x100000')
        k.label(f'L{name}_loop')
        k.I(f's_sleep {env("SPIN_SLEEP", 2)}')
        k.I(f'buffer_load_dword v{hr}, v{hs}, s[12:15], s{cnt} offen sc1')
        k.waitcnt(vm=0)
        k.I(f'v_readfirstlane_b32 s33, v{hr}')
        k.I('s_sub_u32 s24, s24, 1')
        k.I(f's_cbranch_scc1 L{name}_ok')
        k.I('s_cmp_lt_u32 s33, 16')
        k.I(f's_cbranch_scc1 L{name}_loop')
        k.I(f's_branch L{name}_ok')
    return k, (256, 256, 163840)
```

```python
import os, math
import gen
from gen import *
from gen2 import *
from gen4 import YT, YT_ST, WS_END4, GR, unpack_gran
from gen import mark, stamp_begin, stamp_end

class Rec:
    def __init__(self): self.l = []
    def I(self, t, **kw): self.l.append(t)
def rec(fn, *a):
    r = Rec(); fn(r, *a); return r.l
def merge(k, main, fill, per):
    fill = list(fill)
    for m in main:
        k.I(m)
        for _ in range(per):
            if fill: k.I(fill.pop(0))
    return fill

import re as _re
def unpk(t):
    if isinstance(t, tuple) or not t.startswith('v_pk_'): return [t]
    m = _re.match(r'v_pk_(\w+)_f32 (.*)$', t)
    regs = [int(x) for x in _re.findall(r'v\[(\d+):\d+\]', m.group(2))]
    if m.group(1) == 'fma' and regs[0] == regs[3]: return [f'v_fmac_f32 v{regs[0]+j}, v{regs[1]+j}, v{regs[2]+j}' for j in range(2)]
    if m.group(1) == 'fma': return [f'v_fma_f32 v{regs[0]+j}, v{regs[1]+j}, v{regs[2]+j}, v{regs[3]+j}' for j in range(2)]
    return [f'v_{m.group(1)}_f32 v{regs[0]+j}, v{regs[1]+j}, v{regs[2]+j}' for j in range(2)]
def pairs(lst):
    out = []
    for t in lst:
        u = unpk(t)
        if len(u) == 2 and 'v_fma_' in u[0]: out += [[u[0]], [u[1]]]
        else: out.append(u)
    return out
def signal(k, name, cnt_sgpr, vtmp, noflush=False):
    k.I('s_barrier')
    st = k.save_state()
    k.I('s_cmp_lg_u32 s22, 0')
    k.I(f's_cbranch_scc1 L{name}_sig', noflush=noflush)
    k.I('s_mov_b64 exec, 1')
    k.I(f'buffer_atomic_add v{vtmp+1}, v{vtmp}, s[12:15], s{cnt_sgpr} offen sc1')
    k.I('s_mov_b64 exec, -1')
    if noflush: k.raw(f'L{name}_sig:')
    else: k.label(f'L{name}_sig')
    k.restore_state(st)
    k.vm.append((set(), None)) if False else None
def poll(k, name, cnt_sgpr, vtmp, vres):
    st = k.save_state()
    k.I('s_cmp_lg_u32 s22, 3')
    k.I(f's_cbranch_scc1 L{name}_done')
    k.I('s_mov_b32 s24, 0x100000')
    k.label(f'L{name}_poll')
    k.I(f'buffer_load_dword v{vres}, v{vtmp}, s[12:15], s{cnt_sgpr} offen sc1')
    k.waitcnt(vm=0)
    k.I(f'v_readfirstlane_b32 s33, v{vres}')
    k.I('s_sub_u32 s24, s24, 1')
    k.I(f's_cbranch_scc1 L{name}_done')
    k.I('s_cmp_lt_u32 s33, 16')
    k.I(f's_cbranch_scc1 L{name}_poll')
    k.label(f'L{name}_done')
    k.restore_state(st)
    k.I('s_barrier')

TAB = WS_END4
WS_END6 = TAB + 24 * 1024
class Fix:
    def __init__(self, seq): self.seq = list(seq)
    def get(self, *a): return self.seq.pop(0)
def role_tab(k):
    c0 = 24; f40 = c0; f16 = c0 + 62; cs = c0 + 68; sn = c0 + 80
    vi, vq, fi, fq, fq4, vo, t8, tmp = 2, 3, 4, 5, 6, 7, 8, 16
    k.I(f'v_and_b32 v{vi}, 15, v0')
    k.I(f'v_lshrrev_b32 v{vq}, 4, v0')
    k.I(f'v_cvt_f32_u32 v{fi}, v{vi}')
    k.I(f'v_cvt_f32_u32 v{fq}, v{vq}')
    k.I(f'v_mul_f32 v{fq4}, 4.0, v{fq}')
    k.I(f'v_lshlrev_b32 v{vo}, 4, v0')
    gen_f40(k, Fix([f40, t8, t8+4, t8+6]), fi, fq, True)
    gen_tw640(k, Fix([cs, sn, t8]), fi, fq4)
    k.I(f'v_cmp_gt_u32 vcc, 8, v{vi}')
    for r in range(4):
        k.I(f'v_cndmask_b32 v{cs+8+r}, 0, v{cs+8+r}, vcc')
        k.I(f'v_cndmask_b32 v{sn+8+r}, 0, v{sn+8+r}, vcc')
    k.I(f'v_mul_f32 v{t8}, {fhex(1.0/16)}, v{fi}')
    k.I(f'v_mul_f32 v{t8+1}, v{fq4}, v{t8}')
    for j in range(4): k.I(f'v_fmamk_f32 v{tmp+4+j}, v{t8}, {fhex(float(j))}, v{t8+1}')
    for j in range(4):
        k.I(f'v_cos_f32 v{tmp+j}, v{tmp+4+j}')
        k.I(f'v_sin_f32 v{tmp+4+j}, v{tmp+4+j}')
    for p in range(2):
        k.I(f'v_cvt_pk_bf16_f32 v{f16+p}, v{tmp+4+2*p}, v{tmp+5+2*p}')
        k.I(f'v_cvt_pk_bf16_f32 v{f16+2+p}, v{tmp+2*p}, v{tmp+1+2*p}')
        k.I(f'v_cvt_pk_bf16_f32 v{f16+4+p}, -v{tmp+4+2*p}, -v{tmp+5+2*p}')
    k.srd(24, 4, 23 * 1024, TAB)
    for i in range(23):
        if i % 4 == 0: k.I(f's_mov_b32 s28, {1024*i}')
        k.I(f'buffer_store_dwordx4 {vr(c0+4*i,4)}, v{vo}, s[24:27], s28 offen offset:{1024*(i%4)}')

XNT = ' nt' if os.environ.get('XNT') == '1' else ''
_mark = mark
def mark(k, i):
    if not env('MF', 0): _mark(k, i)
def fm(k, i):
    if env('MF', 0) == 1: _mark(k, i)
def pm(k, i):
    if env('MF', 0) == 3: _mark(k, i)
def em(k, i):
    if env('MF', 0) == 2: _mark(k, i)
def pack6(k, base, cs, sn, alt):
    def op(r, j, neg):
        n = neg ^ (alt and (j & 1))
        return ('-' if n else '') + f'v{r+j}'
    for p in range(2):
        k.I(f'v_cvt_pk_bf16_f32 v{base+p}, {op(sn,2*p,True)}, {op(sn,2*p+1,True)}')
        k.I(f'v_cvt_pk_bf16_f32 v{base+2+p}, {op(cs,2*p,False)}, {op(cs,2*p+1,False)}')
        k.I(f'v_cvt_pk_bf16_f32 v{base+4+p}, {op(sn,2*p,False)}, {op(sn,2*p+1,False)}')
WIM, WRE = 0, 2
F0 = FLAGS + 8192
WGU_B = WGU + 64 * 30720
FW = F0 + 1024
YFL = ['sc1', 'sc1 nt', 'sc0 sc1', 'sc0 sc1 nt'][env('YFL', 0)]
def hm(k, i):
    if env('MF', 0) == 5: _mark(k, i)
def cm_(k, i):
    if env('MF', 0) == 4: _mark(k, i)

HALF = env('HALF', 0)
X64 = env('X64', 1)
W128 = env('W128', 2)
def gen_DEF10():
    k = Kernel('kd_kernel')
    PL = 2592
    HB = 0; XB = 10240; SB = 122880; XL = 32768; MLD = XL + 4 * 2560; TL = MLD + 8192; CL = 81920
    W_ST = env('W_ST', 4); W_A = env('W_A', 4)
    NB1 = env('NB1', 24); W_J1 = W_J1_ = env('W_J1', 8); W_J = env('W_J', 8)
    stamp_begin(k)
    k.I('s_cmp_ge_u32 s2, 256')
    k.I('s_cbranch_scc1 LD_exit')
    k.I(f's_load_dwordx2 s[4:5], s[0:1], {KA["ws"]}')
    k.I(f's_load_dwordx2 s[6:7], s[0:1], {KA["x"]}')
    k.I(f's_load_dwordx2 s[40:41], s[0:1], {KA["out"]}')
    k.I(f's_load_dwordx2 s[62:63], s[0:1], {KA["wd"]}')
    if HALF: k.I(f's_load_dwordx4 s[36:39], s[0:1], {KA["wg"]}')
    va = VAlloc(2)
    hs = va.get(2, 2); vl = va.get(); vo16 = va.get(); vW = va.get(); vi = va.get(); vq = va.get(); oh = va.get(); oh2 = va.get(); hr = va.get()
    keep = va.n
    so = va.get(); wu = va.get(); wv = va.get(); ra = va.get(); xo = va.get(); mo = va.get(); wh = va.get(3); wx = va.get(); g0 = va.get(); g2 = va.get()
    ch = va.get(12, 4); xr = va.get(12, 2); mg = va.get(12, 4); mc = va.get(12, 4); ms = va.get(12, 4)
    d1 = va.get(24, 4); d2 = va.get(24, 4); dat = va.get(12, 2); tmp = va.get(8, 2)
    f40 = va.get(92, 4); f16 = f40 + 62; cs = f40 + 68; sn = f40 + 80
    tv = VAlloc(d1, d1 + 48)
    ta = tv.get(4); tk = tv.get(); cb_ = tv.get(); tq = tv.get(); v8 = tv.get(); vcn = tv.get(); vma = tv.get(); vmk = tv.get(2, 2)
    k.I('v_lshrrev_b32 v1, 6, v0')
    k.I(f'v_and_b32 v{vl}, 63, v0')
    k.I('v_readfirstlane_b32 s22, v1')
    k.I(f'v_lshlrev_b32 v{vo16}, 4, v{vl}')
    k.I(f'v_and_b32 v{vi}, 15, v{vl}')
    k.I(f'v_lshrrev_b32 v{vq}, 4, v{vl}')
    def scalars():
        k.I('s_and_b32 s20, s2, 6')
        k.I('s_lshl_b32 s20, s20, 1')
        k.I('s_lshr_b32 s21, s2, 6')
        k.I('s_add_u32 s20, s20, s21')
        k.I('s_bfe_u32 s56, s2, 0x30003')
        k.I('s_and_b32 s57, s2, 1')
        k.I('s_lshl_b32 s21, s57, 3')
        k.I('s_add_u32 s21, s21, s56')
        k.I('s_lshl_b32 s25, s20, 4')
        k.I('s_add_u32 s3, s25, s21')
        k.I('s_lshr_b32 s25, s20, 2')
        k.I('s_lshl_b32 s25, s25, 12')
        k.I('s_lshl_b32 s24, s57, 11')
        k.I('s_add_u32 s25, s25, s24')
        k.I('s_and_b32 s24, s21, 1')
        k.I('s_lshl_b32 s24, s24, 10')
        k.I('s_add_u32 s25, s25, s24')
        k.I('s_and_b32 s24, s20, 3')
        k.I('s_lshl_b32 s24, s24, 8')
        k.I('s_add_u32 s25, s25, s24')
        k.I('s_and_b32 s24, s21, 6')
        k.I('s_lshl_b32 s24, s24, 5')
        k.I('s_add_u32 s25, s25, s24')
        k.I(f's_add_u32 s26, s25, {64*16384}')
        k.I(f's_add_u32 s27, s25, {128*16384}')
        k.I('s_lshl_b32 s23, s20, 7')
        k.I('s_lshl_b32 s24, s21, 1')
        k.I('s_add_u32 s23, s23, s24')
        k.I('s_and_b32 s24, s22, 1')
        k.I('s_lshl_b32 s24, s24, 6')
        k.I('s_add_u32 s23, s23, s24')
        k.I('s_lshr_b32 s24, s22, 1')
        k.I('s_add_u32 s23, s23, s24')
        k.I('s_mul_i32 s28, s23, 1280')
        k.I(f's_add_u32 s29, s28, {32*1280}')
        k.I(f's_mul_i32 s30, s22, 2560')
        k.I(f's_add_u32 s30, s30, {XL}')
        k.I('s_add_u32 s23, s30, 1280')
        k.I('s_lshl_b32 s31, s22, 11')
        k.I(f's_add_u32 s88, s31, {MLD}')
        k.I(f's_add_u32 s31, s31, {MODN + 2*2560}')
        k.I('s_lshl_b32 s32, s21, 2')
        k.I('s_add_u32 s32, s32, s22')
        k.I('s_mul_i32 s24, s32, 30720')
        k.I(f's_add_u32 s24, s24, {WGU}')
        k.I(f'v_add_u32 v{vW}, s24, v{vo16}')
        k.I(f's_mul_i32 s58, s20, {8*49152}')
        k.I('s_mul_i32 s24, s32, 768')
        k.I('s_add_u32 s58, s58, s24')
        k.I(f's_add_u32 s58, s58, {HH}')
        for i in range(1, 4): k.I(f's_add_u32 s{58+i}, s58, {2*i*49152}')
        k.I('s_mul_i32 s24, s22, 6144')
        k.I(f's_add_u32 s42, s24, {TL}')
        k.I(f's_add_u32 s43, s24, {TAB}')
        k.I('s_add_u32 s33, s42, 4096')
        k.I('s_add_u32 s55, s43, 4096')
        k.I('s_and_b32 s89, s2, 7')
        k.I('s_lshl_b32 s89, s89, 7')
        k.I(f's_add_u32 s89, s89, {F0}')
        k.srd(12, 4, WS_END6)
        k.srd(8, 6, S * D * 2)
        k.srd(16, 4, 161 * 16384, XT)
    def wload(n):
        m_ = n % 30
        g = [f'buffer_load_dwordx4 {ar(4*n,4)}, v{vW}, s[12:15], 0 offen offset:{1024*(m_%4)}{" sc1" if n >= 30 and HALF else ""}']
        if n == 29: g.append(f'v_add_u32 v{vW}, {WGU_B - WGU - 28672}, v{vW}')
        elif m_ % 4 == 3: g.append(f'v_add_u32 v{vW}, 0x1000, v{vW}')
        return g
    def bglist():
        o = []
        for i in range(6):
            g = [f'buffer_load_dwordx4 v{vo16}, s[12:15], s{43 if i < 4 else 55} offen offset:{1024*(i%4)} lds']
            if i % 4 == 0: g = [f's_mov_b32 m0, s{42 if i < 4 else 33}'] + g
            o.append(g)
        for c in range(2):
            o.append([f's_mov_b32 m0, s{23 if c else 30}', f'buffer_load_dwordx4 v{vo16}, s[8:11], s{28+c} offen{XNT} lds'])
            o.append(['s_mov_b64 exec, 0xffff', f'buffer_load_dwordx4 v{vo16}, s[8:11], s{28+c} offen offset:1024{XNT} lds', 's_mov_b64 exec, -1'])
        w = [wload(n) for n in range(60)]
        WF = env('W_FIRST', 8)
        global AUX_LAST
        AUX_LAST = WF + 10
        return w[:WF] + o + w[WF:]
    NBG = 70
    def topup():
        k.bg_every = 0
        k.emit_bg(max(0, NB1 - (NBG - len(k.bg))))
        assert NBG - len(k.bg) == NB1, (NBG - len(k.bg), NB1)
    k.I('s_cmp_ge_u32 s2, 161')
    st0 = k.save_state()
    k.I('s_cbranch_scc1 LWD')
    vc = VAlloc(keep)
    vo8 = vc.get(); yo = vc.get(); wa = vc.get(); vC = vc.get()
    fi = vc.get(); fq4 = vc.get(); fk = vc.get(); fw16 = vc.get(); cta = vc.get(2); sg2 = vc.get(2, 2)
    f64 = vc.get(24, 2); f32 = vc.get(24, 2)
    c1 = vc.get(8, 2); s1_ = vc.get(8, 2); c2 = vc.get(8, 2); s2_ = vc.get(8, 2)
    TK = []
    wq2 = vc.get(16, 4)
    for X in range(2):
        TK.append(dict(wq=wq2 + 8*X, dat=vc.get(32, 4), acc=vc.get(16, 4), pk=vc.get(8, 4), tmp=vc.get(8, 2)))
    tc = TK[0]['tmp']; ts = tc + 4
    k.I(f'v_lshlrev_b32 v{vo8}, 3, v{vl}')
    if W128 == 1:
        k.I(f'v_and_b32 v{yo}, 0x1c0, v{vo8}')
        k.I(f'v_add_u32 v{vo8}, v{vo8}, v{yo}')
    k.I('s_lshl_b32 s48, s2, 14')
    k.I(f's_lshl_b32 s49, s22, {11 if W128 else 10}')
    k.I('s_add_u32 s49, s49, s48')
    k.I('s_lshl_b32 s24, s22, 11')
    k.I('s_add_u32 s48, s48, s24')
    k.I(f's_add_u32 s90, s24, {CL}')
    k.I('s_mov_b32 m0, s90')
    k.I('s_cmp_eq_u32 s2, 0')
    k.I('s_cselect_b32 s50, 0, 1.0')
    k.I('s_cmp_eq_u32 s2, 160')
    k.I('s_cselect_b32 s50, 0, s50')
    k.I('s_mov_b32 s52, 0x80008000')
    k.I(f'v_lshlrev_b32 v{sg2}, 31, v{vi}')
    k.I(f'v_or_b32 v{sg2}, 1.0, v{sg2}')
    k.I(f'v_cvt_f32_u32 v{fi}, v{vi}')
    k.I(f'v_lshlrev_b32 v{fq4}, 2, v{vq}')
    k.I(f'v_cvt_f32_u32 v{fq4}, v{fq4}')
    k.I(f'v_lshlrev_b32 v{fw16}, 4, v1')
    k.I(f'v_cvt_f32_u32 v{fw16}, v{fw16}')
    k.I(f'v_add_f32 v{fk}, v{fw16}, v{fi}')
    def angles(step_reg, scale, base_add, dst, q=None):
        k.I(f'v_mul_f32 v{cta}, {fhex(scale)}, v{step_reg}')
        k.I(f'v_mul_f32 v{cta+1}, v{fq4 if q is None else q}, v{cta}')
        for j in range(4): k.I(f'v_fmamk_f32 v{dst+j}, v{cta}, {fhex(float(base_add + j))}, v{cta+1}')
    def sincos(c, s_):
        for j in range(4):
            k.I(f'v_cos_f32 v{c+j}, v{s_+j}')
            k.I(f'v_sin_f32 v{s_+j}, v{s_+j}')
    def flip(c, s_):
        for p in (0, 2):
            k.I(f'v_pk_mul_f32 {vr(c+p,2)}, {vr(c+p,2)}, {vr(sg2,2)} op_sel_hi:[1,0]')
            k.I(f'v_pk_mul_f32 {vr(s_+p,2)}, {vr(s_+p,2)}, {vr(sg2,2)} op_sel_hi:[1,0]')
    def flip6(base): return [f'v_xor_b32 v{base+j}, s52, v{base+j}' for j in (0, 1, 4, 5)]
    for kap in range(2):
        angles(fk, 1.0/64, 16*kap, ts); sincos(tc, ts)
        pack6(k, f64+6*kap, tc, ts, False)
        flip(tc, ts)
        pack6(k, f64+6*(kap+2), tc, ts, False)
        if kap == 0:
            k.srd(36, 4, 161 * 16384 if X64 else XT_SZ, XT)
            k.srd(44, 4, 161 * 16384 if W128 else XT_SZ, WT)
            if X64:
                k.I('s_add_u32 m0, s90, s24')
                k.I('s_add_u32 s48, s48, s24')
                for j in range(4): k.I(f'buffer_load_dwordx4 v{vo16}, s[36:39], s48 offen offset:{1024*j} lds', tag=('x', 1))
            for X in range(0 if X64 else 2):
                if X:
                    k.I('s_add_u32 m0, s90, 8192')
                    k.I('s_add_u32 s48, s48, 8192')
                k.I(f'buffer_load_dwordx4 v{vo16}, s[36:39], s48 offen lds', tag=('x', X))
                k.I(f'buffer_load_dwordx4 v{vo16}, s[36:39], s48 offen offset:1024 lds', tag=('x', X))
            for m_ in range(2 if W128 else 0):
                for V in range(2):
                    if W128 == 2: k.I(f'buffer_load_dwordx4 {vr(wq2+8*m_+4*V,4)}, v{vo16}, s[44:47], s49 offen offset:{1024*V}')
                    for X in range(0 if W128 == 2 else 2):
                        k.I(f'buffer_load_dwordx2 {vr(TK[X]["wq"]+4*m_+2*V,2)}, v{vo8}, s[44:47], s49 offen offset:{1024*V+64*X}')
                k.I('s_add_u32 s49, s49, 8192')
            for X in range(0 if W128 else 2):
                for m_ in range(2):
                    for V in range(2):
                        k.I(f'buffer_load_dwordx2 {vr(TK[X]["wq"]+4*m_+2*V,2)}, v{vo8}, s[44:47], s49 offen offset:{512*V}')
                    k.I('s_add_u32 s49, s49, 4096')
            cm_(k, 1)
            scalars()
            k.I('s_lshl_b32 s53, s22, 12')
            k.I('s_lshl_b32 s24, s2, 14')
            k.I('s_add_u32 s53, s53, s24')
            zz = TK[1]['dat']
            for j in range(4): k.I(f'v_mov_b32 v{zz+j}, 0')
            k.I(f'v_lshlrev_b32 v{zz+4}, 4, v0')
            k.I('s_mul_i32 s51, s2, 205')
            k.I('s_lshr_b32 s51, s51, 10')
            k.I('s_mul_i32 s51, s51, 40960')
            k.I('s_lshl_b32 s24, s2, 13')
            k.I('s_add_u32 s51, s51, s24')
            k.I(f's_add_u32 s51, s51, {H2}')
            k.I('s_cmp_lt_u32 s2, 160')
            k.I('s_cselect_b32 s51, s51, 0x7f000000')
            k.I(f'buffer_store_dwordx4 {vr(zz,4)}, v{zz+4}, s[12:15], s51 offen sc1', tag='z')
            k.I('s_add_u32 s51, s51, 4096')
            k.I(f'buffer_store_dwordx4 {vr(zz,4)}, v{zz+4}, s[12:15], s51 offen sc1', tag='z')
            k.bg = bglist(); k.bg_every = env('BGC1', 30)
    for N in range(2):
        angles(fk, 1.0/2048, 16*N, s1_+4*N); sincos(c1+4*N, s1_+4*N)
    kreal = k; LATEC = env('C_LATE', 0)
    if LATEC:
        k = Rec(); tc = TK[1]['tmp']; ts = tc + 4
    angles(fi, 1.0/32, 0, ts); sincos(tc, ts)
    pack6(k, f32+0, tc, ts, False)
    pack6(k, f32+12, tc, ts, True)
    flip(tc, ts)
    pack6(k, f32+6, tc, ts, False)
    pack6(k, f32+18, tc, ts, True)
    k.I(f'v_add_f32 v{fw16}, v{fw16}, v{fq4}')
    for N in range(2):
        if N: k.I(f'v_add_f32 v{fi}, {fhex(16.0)}, v{fi}')
        angles(fi, 1.0/2048, 0, s2_+4*N, q=fw16); sincos(c2+4*N, s2_+4*N)
    latec = []
    if LATEC:
        for t in k.l: latec += [t] if 'op_sel' not in t else [f'v_mul_f32 v{int(x)+j}, v{int(x)+j}, v{sg2}' for x in _re.findall(r'v\[(\d+):', t)[:1] for j in range(2)]
        k = kreal
    k.I(f'v_add_u32 v{vC}, {CL}, v{vo16}')
    k.I(f'v_add_u32 v{wa}, s90, v{vo16}')
    vX = hr
    k.I(f'v_and_b32 v{vX}, 0x3e0, v{vo16}')
    k.I(f'v_add_u32 v{vX}, v{vX}, v{vC}')
    k.I(f'v_and_b32 v{vo8}, 2, v{vi}')
    k.I(f'v_mul_u32_u24 v{yo}, {(8192 + 32 - 32) // 2}, v{vo8}')
    k.I(f'v_add_u32 v{yo}, v{yo}, v{vC}')
    k.I(f'v_cmp_eq_u32 vcc, 0, v{vo8}')
    k.I(f'v_mov_b32 v{fk}, s50')
    k.I(f'v_cndmask_b32 v{fk}, 1.0, v{fk}, vcc')
    k.emit_bg(env('W_C0', 0))
    cm_(k, 2)
    k.wait_tag(('x', 1))
    k.I('s_barrier')
    cm_(k, 3)
    k.bg_every = env('BGC2', 18)
    def rd(X, base): return [f'ds_read_b128 {vr(TK[X]["dat"]+(2*kap+N)*4,4)}, v{vX if X64 else vC} offset:{4096*kap+2048*N+32*X if X64 else base+8192*X+2048*kap+1024*N}' for N in range(2) for kap in range(4)]
    def st1(X, inv):
        o = []; t = TK[X]
        for N in range(2):
            for kap in range(4):
                for c in range(2):
                    dd = vr(t['acc']+(2*N+c)*4, 4); da = vr(t['dat']+(2*kap+N)*4, 4); co = vr(f64+6*kap+(WIM if c else WRE), 4)
                    o.append(f'{MF16} {dd}, {co if inv else da}, {da if inv else co}, {dd if kap else 0}')
        return o
    def st3(X):
        o = []; t = TK[X]
        for N in range(2):
            for V in range(2):
                for c in range(2):
                    dd = vr(t['dat']+(2*V+c)*4, 4)
                    o.append(f'{MF16} {dd}, {vr(f32+(2*V+N)*6+(WIM if c else WRE),4)}, {vr(t["pk"]+4*N,4)}, {dd if N else 0}')
        return o
    def st4(X):
        o = []; t = TK[X]
        for V in range(2):
            for N in range(2):
                for c in range(2):
                    dd = vr(t['acc']+(2*N+c)*4, 4)
                    o.append(f'{MF16} {dd}, {vr(t["dat"]+16+4*V,4)}, {vr(f32+(2*N+V)*6+(WIM if c else WRE),4)}, {dd if V else 0}')
        return o
    def cmx(X, src, cc, ss, dst, conj):
        o = []
        for h_ in range(2): o += rec(cmul4, src+8*h_, src+8*h_+4, cc+4*h_, ss+4*h_, dst+4*h_, TK[X]['tmp'], conj)
        if env('C_SCALAR', 0):
            o2_ = []
            for t in o:
                if 'neg_lo' in t:
                    r4 = [int(x) for x in _re.findall(r'v\[(\d+):\d+\]', t)]
                    o2_ += [f'v_fma_f32 v{r4[0]+j}, v{r4[1]+j}, -v{r4[2]+j}, v{r4[3]+j}' for j in range(2)]
                else: o2_ += unpk(t)
            o = o2_
        return o
    def wun(X):
        t = TK[X]; o = []
        for j in range(8):
            w_ = wq2 + 4*(j//2) + 2*X + (j & 1) if W128 == 2 else t["wq"] + j
            o.append(f'v_lshlrev_b32 v{t["acc"]+2*j}, 16, v{w_}')
            o.append(f'v_and_b32 v{t["acc"]+2*j+1}, 0xffff0000, v{w_}')
        return o
    def outs(X):
        t = TK[X]; o = []; fl_ = f'v{fk}'
        for N in range(2):
            re = t['acc']+8*N; im = re+4; tm = t['tmp']
            for p in range(2):
                a_, b_ = 2*p, 2*p+1
                o.append(f'v_fma_f32 v{tm+4*p+0}, -v{im+b_}, {fl_}, v{re+a_}')
                o.append(f'v_fma_f32 v{tm+4*p+1}, v{im+a_}, {fl_}, v{re+b_}')
                o.append(f'v_fma_f32 v{tm+4*p+2}, v{im+b_}, {fl_}, v{re+a_}')
                o.append(f'v_fma_f32 v{tm+4*p+3}, -v{im+a_}, {fl_}, v{re+b_}')
            for j in range(4): o.append(f'v_cvt_pk_bf16_f32 v{t["pk"]+4*N+j}, v{tm+2*j}, v{tm+2*j+1}')
        return o
    def mg_(main, fill, per):
        for t in merge(k, main, fill, per): k.I(t)
    A_, B_ = TK
    PER = env('C_PER', 2); P3 = env('C_P3', 3)
    NL0 = env('C_L0', 22)
    for t in rd(0, 0) + rd(1, 0)[:7]: k.I(t)
    for t in latec[:NL0]: k.I(t)
    mg_(st1(0, False) + st1(1, False)[:4], rd(1, 0)[7:] + latec[NL0:], env('C_LP', 2))
    mg_(st1(1, False)[4:], cmx(0, A_['acc'], c1, s1_, A_['pk'], False), PER)
    mg_(st3(0), wun(0) + cmx(1, B_['acc'], c1, s1_, B_['pk'], False), P3)
    cm_(k, 4)
    mg_(st3(1), wun(1) + cmx(0, A_['dat'], A_['acc'], A_['acc']+8, A_['dat']+16, True), P3)
    for w_ in range(4):
        for t in flip6(f32+6*w_): k.I(t)
    mg_(st4(0), cmx(1, B_['dat'], B_['acc'], B_['acc']+8, B_['dat']+16, True), P3)
    fl64 = []
    for kap in range(4): fl64 += flip6(f64+6*kap)
    ca = cmx(0, A_['acc'], c2, s2_, A_['pk'], True)
    mg_(st4(1), fl64[:8] + ca, P3)
    cm_(k, 5)
    for N in range(2): k.I(f'ds_write_b128 v{wa}, {vr(A_["pk"]+4*N,4)} offset:{16384+1024*N}')
    for t in cmx(1, B_['acc'], c2, s2_, B_['pk'], True): k.I(t)
    for N in range(2): k.I(f'ds_write_b128 v{wa}, {vr(B_["pk"]+4*N,4)} offset:{16384+8192+32+1024*N}')
    for t in fl64[8:]: k.I(t)
    k.wait_tag('z')
    k.barrier()
    cm_(k, 6)
    def rd2(e): return [f'ds_read_b128 {vr(TK[e]["dat"]+(2*kap+N)*4,4)}, v{yo} offset:{16384+32*e+2048*kap+1024*N}' for N in range(2) for kap in range(4)]
    def ost(e):
        o = outs(e); r_ = []
        for N in range(2):
            r_ += o[12*N:12*N+12] + [f'v_or_b32 v{TK[e]["pk"]+4*N}, 1, v{TK[e]["pk"]+4*N}',
                  (f'buffer_store_dwordx4 {vr(TK[e]["pk"]+4*N,4)}, v{vo16}, s[16:19], s53 offen offset:{2048*N+1024*e} sc1', 'y')]
        return r_
    def em_(t):
        if isinstance(t, tuple): k.I(t[0], tag=t[1])
        else: k.I(t)
    for t in rd2(0): k.I(t)
    mg_(st1(0, True), rd2(1), 1)
    topup()
    fill = ost(0)
    for j, m_ in enumerate(st1(1, True)):
        k.I(m_)
        for _ in range(PER):
            if fill: em_(fill.pop(0))
    for t in fill + ost(1): em_(t)
    cm_(k, 7)
    k.emit_bg(W_J1)
    def dpro():
        k.bg_every = 0
        k.I(f'v_lshrrev_b32 v{so}, 2, v0')
        k.I(f'v_lshlrev_b32 v{so}, 14, v{so}')
        k.I(f'v_and_b32 v{ta+1}, 3, v0')
        k.I(f'v_lshl_add_u32 v{so}, v{ta+1}, 4, v{so}')
        k.I(f'v_lshrrev_b32 v{ta+1}, 1, v0')
        k.I(f'v_cmp_ge_u32 s[34:35], 64, v{ta+1}')
        k.I(f'v_mov_b32 v{ch+8}, -1')
        k.I(f'v_add_u32 v{vma}, s88, v{vo16}')
        k.I(f'v_mov_b32 v{hs}, 0')
        k.I(f'v_mov_b32 v{hs+1}, 1')
        k.bg_every = 6
        nleft = len(k.bg); hold = k.bg[W_J:]; k.bg = k.bg[:W_J]
        addr = []
        A = addr.append
        A(f'v_lshrrev_b32 v{tq}, 1, v{vq}')
        A(f'v_mad_u32_u24 v{cb_}, v{vi}, 5, v{tq}')
        A(f'v_and_b32 v{tk}, 1, v{vq}')
        A(f'v_mul_u32_u24 v{oh}, 49152, v{tk}')
        A(f'v_lshlrev_b32 v{oh2}, 2, v{oh}')
        A(f'v_lshl_add_u32 v{oh}, v{tq}, 8, v{oh}')
        A(f'v_lshl_add_u32 v{oh}, v{vi}, 4, v{oh}')
        A(f'v_mul_u32_u24 v{tq}, 49152, v{tq}')
        A(f'v_add_u32 v{oh2}, v{oh2}, v{tq}')
        A(f'v_lshl_add_u32 v{oh2}, v{vi}, 4, v{oh2}')
        A(f'v_lshl_add_u32 v{tk}, v1, 1, v{tk}')
        for T in range(3):
            A(f'v_add_u32 v{tq}, {2*T}, v{cb_}')
            A(f'v_xor_b32 v{wh+T}, v{tq}, v{tk}')
            A(f'v_and_b32 v{wh+T}, 7, v{wh+T}')
            A(f'v_lshl_add_u32 v{wh+T}, v{tq}, 3, v{wh+T}')
            A(f'v_lshlrev_b32 v{wh+T}, 4, v{wh+T}')
            A(f'v_add_u32 v{wh+T}, {SB}, v{wh+T}')
        A(f'v_mul_u32_u24 v{wx}, 1280, v{tk}')
        A(f'v_lshl_add_u32 v{wx}, v{cb_}, 4, v{wx}')
        A(f'v_add_u32 v{wx}, {SB}, v{wx}')
        A(f'v_lshrrev_b32 v{tq}, 3, v0')
        A(f'v_xor_b32 v{g0}, v{tq}, v0')
        A(f'v_and_b32 v{g0}, 7, v{g0}')
        A(f'v_lshlrev_b32 v{g0}, 4, v{g0}')
        A(f'v_lshl_add_u32 v{g0}, v{tq}, 8, v{g0}')
        for t in addr: k.I(t)
        k.I(f'v_and_b32 v{ta}, 1, v0')
        k.I(f'v_mul_u32_u24 v{wu}, {2*PL}, v{ta}')
        k.I(f'v_sub_u32 v{wv}, 384, v{ta+1}')
        k.I(f'v_lshl_add_u32 v{wv}, v{wv}, 2, v{wu}')
        k.I(f'v_lshl_add_u32 v{wu}, v{ta+1}, 2, v{wu}')
        k.I(f's_mul_i32 s24, s22, {PL}')
        k.I(f'v_lshl_add_u32 v{ra}, v{vl}, 2, s24')
        k.I(f'v_mov_b32 v{dat+10}, 0'); k.I(f'v_mov_b32 v{dat+11}, 0')
        k.I(f'v_mul_u32_u24 v{xo}, 80, v{vi}')
        k.I(f'v_lshl_add_u32 v{xo}, v{vq}, 3, v{xo}')
        k.I(f'v_lshlrev_b32 v{mo}, 1, v{xo}')
        k.I(f'v_add_u32 v{xo}, s30, v{xo}')
        for j in range(8, 12): k.I(f'v_mov_b32 v{xr+j}, 0')
        k.emit_bg(99); k.bg_every = 0; k.bg = hold
    dpro()
    if env('Y_ACK', 0): k.wait_tag('y')
    k.label('LJOIN')
    def yloads():
        k.I('s_mov_b32 m0, s88')
        k.I(f'buffer_load_dwordx4 v{vo16}, s[12:15], s31 offen sc1 lds')
        k.I(f'buffer_load_dwordx4 v{vo16}, s[12:15], s31 offen offset:1024 sc1 lds')
        for rho in range(3):
            if rho == 2: k.I('s_mov_b64 exec, s[34:35]')
            k.I(f'buffer_load_dwordx4 {vr(ch+4*rho,4)}, v{so}, s[16:19], s{25+rho} offen {YFL}')
        k.I('s_mov_b64 exec, -1')
    def ycheck():
        k.I(f'v_and_b32 v{tq}, v{ch}, v{ch+4}')
        k.I(f'ds_read2st64_b32 {vr(vmk,2)}, v{vma} offset0:0 offset1:4')
        k.I(f'v_and_b32 v{tq}, v{tq}, v{ch+8}')
        k.I(f'v_and_b32 v{tq}, 1, v{tq}')
        k.I(f'v_add_u32 v{tq}, -1, v{tq}')
        k.I(f'v_max3_u32 v{tq}, v{tq}, v{vmk}, v{vmk+1}')
        k.I(f'v_cmp_eq_u32 s[62:63], -1, v{tq}')
        k.I('s_cmp_lg_u64 s[62:63], 0')
    yloads()
    if HALF: k.I(f'buffer_load_dword v{hr}, v{hs}, s[12:15], s89 offen offset:1024 sc1')
    W_Y = env('W_Y', 0)
    k.emit_bg(W_Y)
    mark(k, 1)
    tb_ = g2
    k.I(f'v_add_u32 v{tb_}, {TL}, v{vo16}')
    k.I('s_mov_b32 s50, 0')
    assert NB1 + W_J1 + W_J >= AUX_LAST
    nyoung = 5 + HALF + W_Y + (NB1 + W_J1 + W_J - AUX_LAST)
    if len(k.vm) > nyoung: k.waitcnt(vm=nyoung)
    k.I('s_barrier')
    tl = [f'ds_read_b128 {vr(f40+4*i,4)}, v{tb_} offset:{1024*i}' for i in range(23)]
    for T in range(3):
        if T == 2: k.I('s_mov_b32 exec_hi, 0')
        for c in range(2):
            k.I(f'ds_read_b64 {vr(xr+(2*T+c)*2,2)}, v{xo} offset:{1280*c+32*T}')
    k.I('s_mov_b64 exec, -1')
    for t in tl[:8]: k.I(t)
    xf = d2
    assert tv.n <= d2
    for i in range(12):
        k.I(f'v_lshlrev_b32 v{xf+2*i}, 16, v{xr+i}')
        k.I(f'v_and_b32 v{xf+2*i+1}, 0xffff0000, v{xr+i}')
        k.I(tl[8 + i])
    for t in tl[20:]: k.I(t)
    d2 = f40
    cm_(k, 8)
    ycheck()
    k.I('s_cbranch_scc1 LY_slow')
    k.label('LY_ok')
    mark(k, 2); cm_(k, 9)
    for rho in range(3):
        if rho == 2: k.I('s_mov_b64 exec, s[34:35]')
        for pr in range(2):
            k.I(f'ds_write_b32 v{wu}, v{ch+4*rho+2*pr} offset:{pr*PL+512*rho}')
            k.I(f'ds_write_b32 v{wv}, v{ch+4*rho+2*pr+1} offset:{pr*PL+512*(2-rho)}')
    k.I('s_mov_b64 exec, -1')
    k.I(f'v_lshlrev_b32 v{so}, 4, v0')
    k.I(f'v_add_u32 v{so}, {SB}, v{so}')
    def gochk():
        k.I(f'v_readfirstlane_b32 s24, v{hr}')
        k.I('s_cmp_lg_u32 s24, 1')
        k.I('s_cbranch_scc1 LF0_slow')
        k.label('LF0_ok')
    if HALF: gochk()
    k.barrier()
    mark(k, 3)
    for p in range(5):
        k.I(f'ds_read2st64_b32 {vr(dat+2*p,2)}, v{ra} offset0:{2*p} offset1:{2*p+1}')
    def s1(T):
        o = []
        for kap in range(3):
            for c in range(2):
                dd = vr(d1 + (2*T+c)*4, 4)
                o.append(f'{MF16} {dd}, {vr(dat+4*kap,4)}, {vr(f40+(2*T+c)*10+4*kap,4)}, {dd if kap else 0}')
        return o
    k.bg_every = env('BG2', 12)
    mr = [f'ds_read_b128 {vr(mg+4*T,4)}, v{mo} offset:{MLD+64*T}' for T in range(3)]
    mr += [f'ds_read_b128 {vr(ms+4*T,4)}, v{mo} offset:{MLD+2560+64*T}' for T in range(3)]
    mr += [f'ds_read_b128 {vr(mc+4*T,4)}, v{mo} offset:{MLD+5120+64*T}' for T in range(3)]
    for t in s1(0)[:6]: k.I(t)
    rest = merge(k, s1(1), mr, 2)
    for t in rest: k.I(t)
    a2 = ch
    cm = [rec(cmul4, d1+8*T, d1+8*T+4, cs+4*T, sn+4*T, a2+4*T, tmp, True) for T in range(3)]
    def s2(T): return [f'{MF16} {vr(d2+(2*T+c)*4,4)}, {vr(a2+4*T,4)}, {vr(f16+(0 if c else 2),4)}, 0' for c in range(2)]
    for t in s1(2) + cm[0] + s2(0) + cm[1] + s2(1) + cm[2] + s2(2): k.I(t)
    st_ = f40 + 24
    for T in range(3):
        for c in range(2):
            for p in (0, 2):
                r = (2*T+c)*4+p
                k.I(f'v_pk_fma_f32 {vr(xf+r,2)}, {vr(d2+r,2)}, {vr(mg+4*T+p,2)}, {vr(xf+r,2)}')
        for c in range(2):
            r = xf+(2*T+c)*4
            if T == 0:
                k.I(f'v_pk_add_f32 {vr(st_+2*c,2)}, {vr(r,2)}, {vr(r+2,2)}')
                k.I(f'v_pk_mul_f32 {vr(st_+4+2*c,2)}, {vr(r,2)}, {vr(r,2)}')
            else:
                k.I(f'v_pk_add_f32 {vr(st_+2*c,2)}, {vr(st_+2*c,2)}, {vr(r,2)}')
                k.I(f'v_pk_fma_f32 {vr(st_+4+2*c,2)}, {vr(r,2)}, {vr(r,2)}, {vr(st_+4+2*c,2)}')
        for c in range(2):
            r = xf+(2*T+c)*4+2
            if T: k.I(f'v_pk_add_f32 {vr(st_+2*c,2)}, {vr(st_+2*c,2)}, {vr(r,2)}')
            k.I(f'v_pk_fma_f32 {vr(st_+4+2*c,2)}, {vr(r,2)}, {vr(r,2)}, {vr(st_+4+2*c,2)}')
    for i in range(4): k.I(f'v_add_f32 v{st_+2*i}, v{st_+2*i}, v{st_+2*i+1}')
    wave_reduce_to_sgpr(k, [st_, st_+2, st_+4, st_+6], [46, 47, 48, 49])
    po = d1; ph = d1 + 12; hn = d2
    rr = f40 + 32; nmr = f40 + 34
    ln_scalars(k, 46, 48, rr, nmr, tmp)
    k.I(f'v_mov_b32 v{rr+4}, v{rr+1}')
    k.I(f'v_mov_b32 v{nmr+4}, v{nmr+1}')
    for T in range(3):
        for c in range(2):
            for p in (0, 2):
                r = (2*T+c)*4+p
                k.I(f'v_pk_fma_f32 {vr(hn+r,2)}, {vr(xf+r,2)}, {vr(rr+4*c,2)}, {vr(nmr+4*c,2)} op_sel_hi:[1,0,0]')
        for c in range(2):
            for p in (0, 2):
                r = hn+(2*T+c)*4+p
                k.I(f'v_pk_fma_f32 {vr(r,2)}, {vr(r,2)}, {vr(mc+4*T+p,2)}, {vr(ms+4*T+p,2)}')
        for j in range(4):
            k.I(f'v_cvt_pk_bf16_f32 v{ph+4*T+j}, v{hn+8*T+2*j}, v{hn+8*T+2*j+1}')
        if T:
            k.I(f'v_permlane16_swap_b32 v{ph+4*T-4}, v{ph+4*T-2}')
            k.I(f'v_permlane16_swap_b32 v{ph+4*T-3}, v{ph+4*T-1}')
            k.I(f'v_or_b32 v{ph+4*T-4}, 1, v{ph+4*T-4}')
            k.I(f'ds_write_b128 v{wh+T-1}, {vr(ph+4*T-4,4)} offset:{HB}')
    k.bg_every = 0
    for j in range(2): k.I(f'v_cvt_pk_bf16_f32 v{po+j}, v{xf+2*j}, v{xf+2*j+1}')
    k.I(f'v_permlane16_swap_b32 v{ph+8}, v{ph+10}')
    k.I(f'v_permlane16_swap_b32 v{ph+9}, v{ph+11}')
    k.I(f'v_or_b32 v{ph+8}, 1, v{ph+8}')
    k.I('s_mov_b32 exec_hi, 0')
    k.I(f'ds_write_b128 v{wh+2}, {vr(ph+8,4)} offset:{HB}')
    k.I('s_mov_b64 exec, -1')
    k.I('s_lshr_b32 s42, s3, 1')
    k.I('s_mul_i32 s42, s42, 20480')
    k.I('s_and_b32 s24, s21, 1')
    k.I('s_lshl_b32 s24, s24, 7')
    k.I('s_add_u32 s42, s42, s24')
    k.I(f's_add_u32 s42, s42, {H2}')
    k.I('s_add_u32 s44, s42, 8192')
    k.I('s_add_u32 s45, s42, 16384')
    if not HALF: k.I(f'buffer_load_dword v{hr}, v{hs}, s[12:15], s89 offen offset:1024 sc1')
    k.barrier()
    mark(k, 4); hm(k, 1)
    sd = mg
    for rho in range(3):
        k.I(f'ds_read_b128 {vr(sd+4*rho,4)}, v{so} offset:{HB+4096*rho}')
    for j in range(2, 12): k.I(f'v_cvt_pk_bf16_f32 v{po+j}, v{xf+2*j}, v{xf+2*j+1}')
    k.I(f'buffer_store_dwordx4 {vr(sd,4)}, v{g0}, s[12:15], s42 offen sc1', tag='h2')
    k.I(f'buffer_store_dwordx4 {vr(sd+4,4)}, v{g0}, s[12:15], s44 offen sc1', tag='h2')
    k.I('s_cmp_lt_u32 s22, 2')
    k.I('s_cselect_b64 exec, -1, 0')
    k.I(f'buffer_store_dwordx4 {vr(sd+8,4)}, v{g0}, s[12:15], s45 offen sc1', tag='h2')
    k.I('s_mov_b64 exec, -1')
    hm(k, 2)
    for T in range(3):
        k.I(f'v_permlane16_swap_b32 v{po+4*T}, v{po+4*T+2}')
        k.I(f'v_permlane16_swap_b32 v{po+4*T+1}, v{po+4*T+3}')
    for T in range(3):
        if T == 2: k.I('s_mov_b32 exec_hi, 0')
        k.I(f'ds_write_b128 v{wx}, {vr(po+4*T,4)} offset:{XB+32*T}')
    k.I('s_mov_b64 exec, -1')
    k.I(f's_add_u32 s24, s30, {SB + XB - XL}')
    k.I(f'v_add_u32 v{g2}, s24, v{vo16}')
    k.I('s_mul_i32 s43, s3, 10240')
    k.I(f's_add_u32 s43, s43, s30')
    k.I(f's_add_u32 s29, s43, {X1 - XL}')
    k.waitcnt(lgkm=0)
    sx = 244
    for i in range(3): k.I(f'ds_read_b128 {vr(sx+4*i,4)}, v{g2} offset:{1024*i}')
    def x1st():
        for i in range(3):
            if i == 2: k.I('s_mov_b32 exec_hi, 0')
            k.I(f'buffer_store_dwordx4 {vr(sx+4*i,4)}, v{vo16}, s[12:15], s43 offen offset:{1024*i} sc1')
        k.I('s_mov_b64 exec, -1')
    k.I('s_mul_i32 s24, s20, 163840')
    k.I(f's_add_u32 s24, s24, {H2}')
    k.I('s_add_u32 s16, s4, s24')
    k.I('s_addc_u32 s17, s5, 0')
    k.I('s_mov_b32 s18, 163840')
    k.I('s_mov_b32 s19, 0x00020000')
    k.I('s_and_b32 s52, s22, 2')
    k.I('s_add_u32 s52, s52, s22')
    k.I('s_mul_i32 s52, s52, 20480')
    k.I('s_add_u32 s53, s52, 40960')
    k.I('s_lshl_b32 s54, s20, 8')
    k.I(f's_add_u32 s54, s54, {FLAGS}')
    k.I('s_add_u32 s55, s54, 4096')
    k.I('s_add_u32 s51, s54, 128')
    k.srd(36, 40, S * D * 2)
    hm(k, 3)
    k.emit_bg(W_ST)
    hm(k, 4)
    va = VAlloc(keep)
    rb = [va.get(), va.get()]; vD = va.get()
    oo = va.get(); ox = va.get(); lw = va.get(); lr = va.get(); t0 = va.get(); t1 = va.get()
    act = va.get(32, 4); accs = [va.get(48, 4), va.get(48, 4)]; pk = va.get(12, 4)
    gb = va.get(8, 4); x1r = va.get(16, 4)
    NV = (256 - va.n) // 4
    wdv = va.get(4 * NV, 4)
    def wdreg(n): return vr(wdv + 4*n, 4) if n < NV else ar(4*(n - NV), 4)
    def emit(grp):
        for t in grp:
            if isinstance(t, tuple): k.I(t[0], tag=t[1])
            else: k.I(t)
    def dma(ps, g):
        out = []
        for j in range(4):
            gr = [(f'buffer_load_dwordx4 v{vo16}, s[16:19], m0 offen offset:{1024*j} sc1 lds', ('a', ps, g, j // 2))]
            if j == 0: gr = [f's_add_u32 m0, s{52+ps}, {4096*g}'] + gr
            out.append(gr)
        return out
    NPRE = 2
    if env('H1_FLAG', 0):
        k.wait_tag('h2')
        signal(k, 'H1', 54, hs)
        k.emit_bg(env('W_PL', 6))
        poll(k, 'H1p', 54, hs, hr)
    if env('H_ACK', 1): k.wait_tag('h2')
    k.emit_bg(env('W_H', 0))
    hm(k, 5)
    for g in range(NPRE):
        for grp in dma(0, g): emit(grp)
    k.emit_bg(W_A)
    if not HALF: gochk()
    hm(k, 6)
    late = list(k.bg); k.bg = []
    print('late weight loads', len(late), 'NV', NV)
    k.I(f'v_mov_b32 v{rb[0]}, v{vo16}')
    k.I(f'v_add_u32 v{rb[1]}, {4*20480}, v{vo16}')
    def aread(ps, i, kap):
        off = ((i & 1) + 2*ps) * 20480 + 1024*kap
        base = rb[i >> 1]
        return f'ds_read_b128 {vr(act+16*(kap&1)+4*i,4)}, v{base} offset:{off - (40960 if ps else 0)}'
    k.I('s_lshl_b32 s24, s56, 2')
    k.I('s_add_u32 s24, s24, s22')
    k.I('s_mul_i32 s24, s24, 61440' if not env('W_SAME', 0) & 2 else 's_mul_i32 s24, s22, 61440')
    k.I(f's_add_u32 s24, s24, {WD}')
    k.I(f'v_add_u32 v{vD}, s24, v{vo16}')
    def dload(n):
        if env('NO_WD', 0): return [f'v_add_u32 v{vD}, 0, v{vD}']
        g = [f'buffer_load_dwordx4 {wdreg(n)}, v{vD}, s[12:15], 0 offen offset:{1024*(n%4)} sc1']
        if n % 4 == 3: g.append(f'v_add_u32 v{vD}, 0x1000, v{vD}')
        return g
    ND0 = env('WD_EARLY', 0)
    assert wdv + 4 * ND0 <= sx
    for n in range(ND0): emit(dload(n))
    RS = 336; PT = 16 * RS
    k.I('s_lshl_b32 s24, s20, 1')
    k.I('s_add_u32 s24, s24, s57')
    k.I('s_lshl_b32 s24, s24, 2')
    k.I(f's_mul_i32 s33, s22, {12*1024}')
    k.I(f's_add_u32 s33, s33, {HH}')
    k.I('s_mul_i32 s42, s24, 49152')
    k.I('s_add_u32 s42, s42, s33')
    for i in range(1, 4): k.I(f's_add_u32 s{42+i}, s42, {49152*i}')
    k.I(f'v_mul_u32_u24 v{t0}, 26, v{vl}')
    k.I(f'v_lshrrev_b32 v{t0}, 8, v{t0}')
    k.I(f'v_mul_u32_u24 v{t1}, 10, v{t0}')
    k.I(f'v_sub_u32 v{t1}, v{vl}, v{t1}')
    k.I(f'v_mul_u32_u24 v{lr}, {RS}, v{t0}')
    k.I(f'v_lshl_add_u32 v{lr}, v{t1}, 4, v{lr}')
    k.I(f's_mul_i32 s25, s22, {4*RS}')
    k.I(f'v_add_u32 v{lr}, s25, v{lr}')
    k.I(f'v_mul_u32_u24 v{ox}, 1280, v{t0}')
    k.I(f'v_lshl_add_u32 v{ox}, v{t1}, 4, v{ox}')
    k.I(f'v_mul_u32_u24 v{oo}, {32*1280}, v{t0}')
    k.I(f'v_lshl_add_u32 v{oo}, v{t1}, 4, v{oo}')
    k.I(f'v_lshlrev_b32 v{t1}, 5, v{t1}')
    k.I(f'v_mul_u32_u24 v{lw}, {RS}, v{vi}')
    k.I(f's_mul_i32 s25, s22, {PT}')
    k.I(f'v_add_u32 v{lw}, s25, v{lw}')
    lw2 = t0
    k.I(f'v_mul_u32_u24 v{hr}, 5, v{vq}')
    k.I(f'v_add_u32 v{lw2}, 1, v{hr}')
    k.I(f'v_lshrrev_b32 v{lw2}, 1, v{lw2}')
    k.I(f'v_lshl_add_u32 v{lw2}, v{lw2}, 4, v{lw}')
    k.I(f'v_lshrrev_b32 v{hr}, 1, v{hr}')
    k.I(f'v_lshl_add_u32 v{lw}, v{hr}, 4, v{lw}')
    k.I(f'v_and_b32 v{hr}, 1, v{vq}')
    k.I(f'v_mul_u32_u24 v{hr}, 160, v{hr}')
    k.I(f'v_add_u32 v{lw}, v{lw}, v{hr}')
    k.I(f'v_sub_u32 v{lw2}, v{lw2}, v{hr}')
    k.I(f'v_add_u32 v{lw2}, 160, v{lw2}')
    k.I('s_mul_i32 s30, s56, 160')
    k.I('s_lshl_b32 s25, s24, 2')
    k.I('s_add_u32 s25, s25, s22')
    k.I(f's_mul_i32 s46, s25, {4*1280}')
    k.I('s_add_u32 s46, s46, s30')
    k.I(f's_add_u32 s46, s46, {X1}')
    for i in range(1, 4): k.I(f's_add_u32 s{46+i}, s46, {16*1280*i}')
    k.I('s_lshl_b32 s25, s20, 7')
    k.I('s_lshl_b32 s26, s57, 4')
    k.I('s_add_u32 s25, s25, s26')
    k.I('s_add_u32 s25, s25, s22')
    k.I('s_mul_i32 s25, s25, 1280')
    k.I('s_add_u32 s25, s25, s30')
    for i in range(1, 4): k.I(f's_add_u32 s{25+i}, s25, {4*1280*i}')
    k.I('s_lshl_b32 s30, s30, 1')
    k.I(f's_add_u32 s30, s30, {5*2560}')
    vx3 = x1r + 14
    k.I(f'v_cmp_gt_u32 vcc, 32, v{vl}')
    k.I(f'v_mov_b32 v{vx3}, 0x7ff00000')
    k.I(f'v_cndmask_b32 v{vx3}, v{vx3}, v{vo16}, vcc')
    k.I('s_mov_b32 s34, -1')
    k.I('s_mov_b32 s35, 0xff')
    vck = x1r; vad = x1r + 15
    k.I(f'v_add_u32 v{vad}, s52, v{vo16}')
    slow = []
    def validate(name, groups):
        o = []; n = 0
        for g in groups:
            for j in range(2):
                o.append([f'ds_read2st64_b32 {vr(vck+n,2)}, v{vad} offset0:{16*g+8*j} offset1:{16*g+8*j+4}']); n += 2
        i = 1
        while i < n:
            if i + 1 < n: o.append([f'v_bitop3_b32 v{vck}, v{vck}, v{vck+i}, v{vck+i+1} bitop3:0x80']); i += 2
            else: o.append([f'v_bitop3_b32 v{vck}, v{vck}, v{vck+i}, 1 bitop3:0x80']); i += 1
        o.append([f'v_cmp_eq_u32 s[62:63], 0, v{vck}'])
        o.append(['s_nop 0'])
        o.append(['s_cmp_lg_u64 s[62:63], 0', ('BR', f's_cbranch_scc1 L{name}_slow', f'L{name}_ok')])
        slow.append((name, groups))
        return o
    _emit = emit
    def emit(grp):
        for t in grp:
            if isinstance(t, tuple) and t[0] == 'GRP': emit(t[1])
            elif isinstance(t, tuple) and t[0] == 'BR':
                k.I(t[1], noflush=True); k.raw(t[2] + ':')
            else: _emit([t])
    V0 = [0] if env('V0_ONE', 1) else [0, 1]
    mark(k, 5); hm(k, 7)
    k.wait_tag('h2')
    k.wait_tag(('a', 0, V0[-1], 1))
    mark(k, 6); hm(k, 8)
    for g in validate('V0', V0): emit(g)
    if env('H1_FLAG', 0): k.I('s_barrier')
    else: signal(k, 'H1', 54, hs)
    mark(k, 7); hm(k, 9)
    for kp_ in range(2):
        for i in range(4): k.I(aread(0, i, kp_))
    def epi(ps):
        acc = accs[ps]; o = []
        for pr in range(2):
            for j in range(2):
                i = 2*pr + j
                g_ = acc + i*4; u_ = acc + (4+i)*4
                for p in (0, 2): o.append(f'v_pk_mul_f32 {vr(g_+p,2)}, {vr(g_+p,2)}, {vr(u_+p,2)}')
            a_ = acc + (8+2*pr)*4; b_ = a_ + 4
            for r in range(4): o.append(f'v_permlane32_swap_b32 v{a_+r}, v{b_+r}')
            for j in range(2):
                g_ = acc + (2*pr+j)*4
                for p in (0, 2): o.append(f'v_cvt_pk_bf16_f32 v{pk+4*pr+2*j+p//2}, v{g_+p}, v{g_+p+1}')
            for p in (0, 2): o.append(f'v_pk_mul_f32 {vr(a_+p,2)}, {vr(a_+p,2)}, {vr(b_+p,2)}')
            o.append(f'v_permlane16_swap_b32 v{pk+4*pr}, v{pk+4*pr+2}')
            o.append(f'v_permlane16_swap_b32 v{pk+4*pr+1}, v{pk+4*pr+3}')
            for p in (0, 2): o.append(f'v_cvt_pk_bf16_f32 v{pk+8+2*pr+p//2}, v{a_+p}, v{a_+p+1}')
            o.append((f'buffer_store_dwordx4 {vr(pk+4*pr,4)}, v{oh}, s[12:15], s{58+2*pr+ps} offen sc1', ('h', ps)))
        o.append(f'v_permlane16_swap_b32 v{pk+8}, v{pk+10}')
        o.append(f'v_permlane16_swap_b32 v{pk+9}, v{pk+11}')
        o.append((f'buffer_store_dwordx4 {vr(pk+8,4)}, v{oh2}, s[12:15], s{58+ps} offen offset:512 sc1', ('h', ps)))
        return o
    slots_h = [vr(accs[0] + 4*i, 4) for i in range(12)] + [ar(240 + 4*i, 4) for i in range(4)] + [ar(4*i, 4) for i in range(60 - NV, 60)]
    NH = len(slots_h)
    horder = [(t, kp) for kp in range(12) for t in (0, 1)] + [(t, kp) for t in (2, 3) for kp in range(12)]
    def hload(n):
        t, kp = horder[n]
        if env('NO_H', 0): return [f's_add_u32 s{42+t}, s{42+t}, {n}']
        g = [f'buffer_load_dwordx4 {slots_h[n % NH]}, v{vo16}, s[12:15], s{42+t} offen offset:{1024*(kp%4)} sc1']
        if kp % 4 == 3: g.append(f's_add_u32 s{42+t}, s{42+t}, 4096')
        return g
    def check(name, cnt):
        k.I(f'v_readfirstlane_b32 s33, v{hr}')
        k.I('s_cmp_ge_u32 s33, 16')
        k.I(f's_cbranch_scc0 L{name}_spin', noflush=True)
        k.raw(f'L{name}_ok:')
        spins.append((name, cnt))
    spins = []
    q1 = []
    for g in range(NPRE, 5): q1 += dma(0, g)
    xs_ = []
    for i in range(3):
        xs_.append([f'buffer_store_dwordx4 {vr(sx+4*i,4)}, v{vo16 if i < 2 else vx3}, s[12:15], s29 offen offset:{1024*i} sc1'])
    q1 += late[:-6] + [[f'buffer_load_dword v{hr}, v{hs}, s[12:15], s54 offen sc1']] + late[-6:] + xs_ + [['CHECK']]
    for g in range(5): q1 += dma(1, g)
    q1 += [[f'buffer_load_dwordx4 {vr(gb+4*j,4)}, v{t1}, s[12:15], s30 offen offset:{16*j} sc1'] for j in range(2)]
    nd = ND0; nh = 0
    bars = {(0, 6): ('a', 0, 2, 1), (0, 10): ('a', 0, 4, 1), (0, 18): ('a', 1, 1, 1), (1, 6): ('a', 1, 4, 1), (1, env('K_SA', 9)): None}
    if len(V0) == 1: bars[(0, 2)] = ('a', 0, 1, 1)
    VRATE = env('VRATE', 25) / 120.0
    credit = 1.0
    KA_, KC_ = env('K_A', 14), env('K_C', 17)
    ep = []; vq_ = []
    fl = []
    since = 99
    def isvm(t): return (t[0] if isinstance(t, tuple) else t).startswith('buffer_')
    for ps in range(2):
        for kap in range(20):
            pend = list(fl) + [t for g in q1 for t in g]
            if ps == 0 and kap in (env('V2_AT', 4), env('V3_AT', 7)): assert not any(isinstance(t, tuple) and t[0] != 'GRP' and t[1] <= ('a', 0, 2 if kap == env('V2_AT', 4) else 4, 1) for t in pend), 'val early'
            for mt in range(3):
                assert ps or not any(isinstance(t, str) and t.startswith(f'buffer_load_dwordx4 {ar((3*kap+mt)*4,4)},') for t in pend), ('weight late', kap)
            if (ps, kap) in bars:
                while vq_: emit(vq_.pop(0))
                if bars[(ps, kap)]:
                    assert not any(isinstance(t, tuple) and t[0] != 'GRP' and t[1] <= bars[(ps, kap)] for t in pend), ('dma late', ps, kap)
                    k.wait_tag(bars[(ps, kap)])
                if not bars[(ps, kap)]:
                    assert not ep
                    em(k, 3)
                    k.wait_tag(('h', 0))
                    signal(k, 'HA', 55, hs, noflush=True)
                    em(k, 4)
                else: k.I('s_barrier')
            if ps == 0 and kap == 1 and len(V0) == 1: k.wait_tag(('a', 0, 1, 1)); vq_ = validate('V1', [1])
            if ps == 0 and kap == env('V2_AT', 4): k.wait_tag(('a', 0, 2, 1)); vq_ = validate('V2', [2])
            if ps == 0 and kap == env('V3_AT', 7): k.wait_tag(('a', 0, 4, 1)); vq_ = validate('V3', [3, 4])
            if ps == 0 and kap == 18:
                k.I(f'v_add_u32 v{rb[0]}, 40960, v{rb[0]}')
                k.I(f'v_add_u32 v{rb[1]}, 40960, v{rb[1]}')
            if ps == 1 and kap == 1:
                if env('EP_SERIAL', 1):
                    em(k, 1)
                    for t in epi(0): emit([t])
                    em(k, 2)
                else: ep = pairs(epi(0))
            if ps == 1 and kap == KA_: fl.insert(0 if not fl or isvm(fl[0]) else 1, f'buffer_load_dword v{hr}, v{hs}, s[12:15], s55 offen sc1') if False else k.I(f'buffer_load_dword v{hr}, v{hs}, s[12:15], s55 offen sc1')
            if ps == 1 and kap == KC_: em(k, 5); check('HA', 55); em(k, 6)
            for j in range(12):
                i, mt = divmod(j, 3)
                dd = vr(accs[ps]+(mt*4+i)*4, 4)
                k.I(f'{MF16} {dd}, {ar((3*kap+mt)*4,4)}, {vr(act+16*(kap&1)+4*i,4)}, {dd if kap else 0}')
                since += 1; credit = min(credit + VRATE, 1.6)
                rd = None
                if mt == 2:
                    if kap < 18: rd = aread(ps, i, kap + 2)
                    elif ps == 0: rd = aread(1, i, kap - 18)
                if rd: k.I(rd); continue
                if j == 10 and len(k.lg) > 3: k.waitcnt(lgkm=3); continue
                if j == 10 and ps == 1 and kap == 18: k.waitcnt(lgkm=0); continue
                if not fl:
                    free = NV + (3 * kap if ps else 0)
                    if q1 and q1[0] == ['CHECK']: q1.pop(0); check('H1', 54); continue
                    if q1: fl = list(q1.pop(0))
                    elif ps == 1 and kap >= KC_ and nh < 16 and (nh // 2) * 5 < nd: fl = list(hload(nh)); nh += 1
                    elif nd < min(free, 60): fl = list(dload(nd)); nd += 1
                if ep and isvm(ep[0][0]):
                    emit(ep.pop(0)); since = 0; credit -= 1.0
                elif fl and (not isvm(fl[0]) or (since >= 3 and credit >= 1.0)):
                    t = fl.pop(0)
                    if isvm(t): since = 0; credit -= 1.0
                    emit([t])
                elif vq_: emit(vq_.pop(0))
                elif ep:
                    g_ = ep.pop(0); emit(g_)
                    if ep and len(g_) == 1 and len(ep[0]) == 1 and not isvm(ep[0][0]): emit(ep.pop(0))
        if ps == 0 and not env('MD', 0): mark(k, 2)
    for t in fl: emit([t])
    assert not q1
    print('after E: wd loaded', nd, 'h loaded', nh)
    NHE = nh
    mark(k, 8); fm(k, 1); em(k, 7); pm(k, 1)
    fq = []
    def need_order():
        o = []; d = nd; h = nh
        for kp in range(12):
            while d < 5*(kp+1): o.append(dload(d)); d += 1
            while h < 2*(kp+1): o.append(hload(h)); h += 1
        return o
    fq = need_order()
    full = list(fq)
    def sorted_q(a_, b_):
        rest = [g for g in b_ if g not in full]
        return [g for g in full if g in a_ or g in b_] + rest
    fq += [['s_mov_b64 exec, s[34:35]', f'buffer_load_dwordx4 {vr(x1r+4*t,4)}, v{ox}, s[12:15], s{46+t} offen sc1', 's_mov_b64 exec, -1'] for t in range(4)]
    for t in epi(1): emit([t])
    fm(k, 2)
    if KC_ >= 20: check('HA', 55)
    fm(k, 3)
    for _ in range(env('F_PRE1', 0)):
        if fq: emit(fq.pop(0))
    mark(k, 9); fm(k, 4)
    fa = accs[1]
    SL = [0, 4*PT, 8*PT, 0]
    def pwrite(t, a): return [f'ds_write_b128 v{lw2 if dt & 1 else lw}, {vr(a+4*dt,4)} offset:{SL[t]+16*(dt//2)}' for dt in range(5)]
    def fin_reads(t, r): return [f'ds_read_b128 {vr(r+8*src+4*h_,4)}, v{lr} offset:{SL[t]+PT*src+160*h_}' for src in range(4) for h_ in range(2)]
    def fin_valu(t, r, xf):
        o = []
        for j in range(4):
            o.append(f'v_lshlrev_b32 v{xf+2*j}, 16, v{x1r+4*t+j}')
            o.append(f'v_and_b32 v{xf+2*j+1}, 0xffff0000, v{x1r+4*t+j}')
        for p in range(4): o.append(f'v_pk_add_f32 {vr(r+2*p,2)}, {vr(r+2*p,2)}, {vr(r+8+2*p,2)}')
        for p in range(4): o.append(f'v_pk_add_f32 {vr(r+16+2*p,2)}, {vr(r+16+2*p,2)}, {vr(r+24+2*p,2)}')
        for p in range(4): o.append(f'v_pk_add_f32 {vr(r+2*p,2)}, {vr(r+2*p,2)}, {vr(r+16+2*p,2)}')
        for p in range(4): o.append(f'v_pk_fma_f32 {vr(xf+2*p,2)}, {vr(r+2*p,2)}, {vr(gb+2*p,2)}, {vr(xf+2*p,2)}')
        for p in range(4): o.append(f'v_cvt_pk_bf16_f32 v{x1r+4*t+p}, v{xf+2*p}, v{xf+2*p+1}')
        return o
    OST = os.environ.get('OUT_ST', '')
    def fin_store(t): return ['s_mov_b64 exec, s[34:35]', f'buffer_store_dwordx4 {vr(x1r+4*t,4)}, v{oo}, s[36:39], s{25+t} offen{OST}', 's_mov_b64 exec, -1']
    KB_ = env('K_B', 3)
    fl = []
    def gap(pool):
        nonlocal fl
        if not fl and pool:
            g = pool.pop(0)
            if isinstance(g[0], str) and g[0].startswith('s_mov_b64 exec'): emit(g); return
            fl = list(g)
        if fl: emit([fl.pop(0)])
    FG = env('F_GAP', 5)
    KBL, KBC = env('K_BL', 8), env('K_BC', 11)
    since = 99; nh = 24
    hq = [hload(n) for n in range(24, 48)]
    for kp in range(12):
        if kp % 2 == 0: pm(k, 2 + kp // 2)
        if kp == KB_:
            k.wait_tag(('h', 1))
            signal(k, 'HB', 51, hs, noflush=True)
            fm(k, 5)
        if kp == KBL: fq.insert(0, [f'buffer_load_dword v{hr}, v{hs}, s[12:15], s51 offen sc1'])
        if kp == KBC:
            while fq or fl: gap(fq)
            check('HB', 51); fm(k, 7)
            fq = hq
        for t in range(2):
            need = [wdreg(5*kp+dt) for dt in range(5)] + [slots_h[(2*kp+t) % NH]]
            while fq is not hq and any(g[0].startswith(f'buffer_load_dwordx4 {r},') for g in fq for r in need): gap(fq)
            for dt in range(5):
                dd = vr(fa+20*t+4*dt, 4)
                k.I(f'{MF16} {dd}, {wdreg(5*kp+dt)}, {slots_h[(2*kp+t) % NH]}, {dd if kp else 0}')
                since += 1
                if dt == 4: continue
                if fl: gap(fq)
                elif since >= (env('F_GAP2', 5) if fq is hq else env('F_GAP1', 3)) and fq: gap(fq); since = 0
    pm(k, 8)
    while fl: gap(fq)
    if KBC >= 12:
        while fq: gap(fq)
    if not env('MD', 0): mark(k, 3)
    fm(k, 6); em(k, 8); pm(k, 9)
    def sprinkle(lst, every):
        for j, v_ in enumerate(lst):
            k.I(v_)
            if j % every == every - 1 and hq: emit(hq.pop(0))
    if KBC == 12: check('HB', 51); fm(k, 7)
    sprinkle(pwrite(0, fa) + pwrite(1, fa + 20), env('SPR', 2) if KBC <= 12 else 99)
    k.barrier()
    if KBC == 13:
        check('HB', 51); fm(k, 7)
        for _ in range(4): emit(hq.pop(0))
    em(k, 9)
    xfA = pk
    sprinkle(fin_reads(0, fa) + fin_reads(1, act), env('SPR2', 8))
    sprinkle(fin_valu(0, fa, pk), env('SPR3', 14))
    if not env('MD', 0): mark(k, 4)
    late_st = [fin_store(0), fin_store(1)]
    extra0 = pairs(fin_valu(1, act, fa + 40))
    rB = act
    extra = extra0
    hq = hq + late_st
    since = 99
    for t in (2, 3):
        a = fa + 20*(t - 2)
        if t == 3:
            assert not extra
            extra = [[w_] for w_ in pwrite(2, fa)]
        for kp in range(12):
            n = 24 + 12*(t-2) + kp
            if n == 25: fm(k, 8)
            assert not any(g[0].startswith(f'buffer_load_dwordx4 {slots_h[n % NH]},') for g in hq)
            for dt in range(5):
                dd = vr(a+4*dt, 4)
                k.I(f'{MF16} {dd}, {wdreg(5*kp+dt)}, {slots_h[n % NH]}, {dd if kp else 0}')
                since += 1
                if dt == 4 and n < 46: continue
                if fl: gap(hq)
                elif hq and since >= FG and not (extra is extra0 and extra and hq[0] is late_st[1]): gap(hq); since = 0
                elif (kp >= 1 or t == 2) and extra: emit(extra.pop(0))
            if t == 3 and kp == 3:
                assert not extra
                k.barrier()
                extra = [[r_] for r_ in fin_reads(2, wdv)] + pairs(fin_valu(2, wdv, xfA)) + [fin_store(2)]
    fm(k, 9)
    while extra: emit(extra.pop(0))
    for w_ in pwrite(3, fa + 20): k.I(w_)
    xl = fin_valu(3, wdv + 32, act)
    for v_ in xl[:8]: k.I(v_)
    k.barrier()
    for r_ in fin_reads(3, wdv + 32): k.I(r_)
    for v_ in xl[8:]: k.I(v_)
    emit(fin_store(3))
    if gen.STAMPS and not env('MF', 0): k.I('s_add_u32 s66, s50, s64')
    stamp_end(k, 3, 4)
    k.label('LD_exit')
    k.I('s_endpgm')
    k.label('LY_slow', fresh=True); k.vm = []; k.lg = []
    k.I('s_mov_b32 s24, 0x40000')
    k.label('LY_loop')
    k.I('s_add_u32 s50, s50, 1')
    k.I(f's_sleep {env("Y_SLEEP", 2)}')
    yloads()
    k.waitcnt(vm=0)
    k.I('s_sub_u32 s24, s24, 1')
    k.I('s_cbranch_scc1 LY_ok')
    ycheck()
    k.I('s_cbranch_scc1 LY_loop')
    k.I('s_branch LY_ok')
    k.label('LF0_slow', fresh=True); k.vm = []; k.lg = []
    k.I('s_mov_b32 s33, 0x40000')
    k.label('LF0_loop')
    k.I('s_sleep 4')
    k.I(f'buffer_load_dword v{hr}, v{hs}, s[12:15], s89 offen offset:1024 sc1')
    k.waitcnt(vm=0)
    k.I('s_sub_u32 s33, s33, 1')
    k.I('s_cbranch_scc1 LF0_ok')
    k.I(f'v_readfirstlane_b32 s24, v{hr}')
    k.I('s_cmp_lg_u32 s24, 1')
    k.I('s_cbranch_scc1 LF0_loop')
    k.I('s_branch LF0_ok')
    k.label('LWD', fresh=True); k.restore_state(st0)
    vc = VAlloc(keep)
    t0_ = vc.get(); t1_ = vc.get(); ra_ = vc.get(); so_ = vc.get(5); o_ = vc.get(20, 4)
    for p in range(5):
        k.I(f'v_add_u32 v{t0_}, {64*p}, v{vl}')
        k.I(f'v_mul_u32_u24 v{t1_}, 205, v{t0_}')
        k.I(f'v_lshrrev_b32 v{t1_}, 13, v{t1_}')
        k.I(f'v_mul_u32_u24 v{t1_}, 640, v{t1_}')
        k.I(f'v_add_u32 v{so_+p}, v{t1_}, v{vo16}')
    k.I(f'v_bfe_u32 v{t1_}, v{vl}, 2, 2')
    k.I(f'v_lshl_add_u32 v{t0_}, v{vq}, 3, v{t1_}')
    k.I(f'v_mul_u32_u24 v{ra_}, 640, v{t0_}')
    k.I(f'v_and_b32 v{t0_}, 3, v{vl}')
    k.I(f'v_mul_u32_u24 v{t0_}, 40, v{t0_}')
    k.I('s_mul_i32 s24, s22, 160')
    k.I(f's_add_u32 s24, s24, {CL}')
    k.I(f'v_add3_u32 v{ra_}, v{ra_}, v{t0_}, s24')
    k.I('s_mul_i32 s90, s22, 5120')
    k.I(f's_add_u32 s90, s90, {CL}')
    k.I('s_sub_u32 s48, s2, 161')
    if HALF:
        GL = CL + 20480
        wo_ = vc.get(3); rg_ = vc.get(); r2_ = vc.get(); og_ = vc.get(24, 4)
        for p in range(3):
            k.I(f'v_add_u32 v{t0_}, {64*p}, v{vl}')
            k.I(f'v_mul_u32_u24 v{t1_}, 171, v{t0_}')
            k.I(f'v_lshrrev_b32 v{t1_}, 12, v{t1_}')
            k.I(f'v_mul_u32_u24 v{t1_}, 2688, v{t1_}')
            k.I(f'v_add_u32 v{wo_+p}, v{t1_}, v{vo16}')
        k.srd(8, 36, D * F * 2)
        k.srd(16, 38, D * F * 2)
        k.I('s_sub_u32 s48, s2, 161')
        k.I('s_and_b32 s49, s48, 7')
        k.I('s_lshr_b32 s50, s48, 3')
        k.I('s_add_u32 s50, s50, 10')
        k.I('s_lshl_b32 s51, s50, 2')
        k.I('s_add_u32 s51, s51, s22')
        k.I(f's_mul_i32 s51, s51, {8*3072}')
        k.I('s_mul_i32 s24, s49, 384')
        k.I('s_add_u32 s51, s51, s24')
        k.I('s_mul_i32 s24, s22, 3072')
        k.I(f's_add_u32 m0, s24, {GL}')
        for p in range(3): k.I(f'buffer_load_dwordx4 v{wo_+p}, s[8:11], s51 offen offset:{1024*p} nt lds')
        k.I(f's_add_u32 m0, s24, {GL+12288}')
        for p in range(3): k.I(f'buffer_load_dwordx4 v{wo_+p}, s[16:19], s51 offen offset:{1024*p} nt lds')
        k.I('s_lshl_b32 s54, s49, 3')
        k.I('s_add_u32 s54, s54, s22')
        k.I('s_mul_i32 s54, s54, 10')
        k.I('s_add_u32 s54, s54, s50')
        k.I('s_mul_i32 s54, s54, 3072')
        k.I(f's_add_u32 s54, s54, {WGU_B - 30720}')
        k.I('s_cmp_lt_u32 s48, 80')
        k.I('s_cselect_b32 s54, s54, 0x7f000000')
        k.I(f's_add_u32 s34, s54, {4*10*3072}')
        k.I(f'v_bfe_u32 v{t1_}, v{vl}, 2, 2')
        k.I(f'v_lshl_add_u32 v{t0_}, v{vq}, 3, v{t1_}')
        k.I(f'v_mul_u32_u24 v{rg_}, 384, v{t0_}')
        k.I('s_mul_i32 s24, s22, 48')
        k.I(f's_add_u32 s24, s24, {GL}')
        k.I(f'v_add_u32 v{rg_}, s24, v{rg_}')
        k.I(f'v_and_b32 v{t0_}, 1, v{vl}')
        k.I(f'v_lshl_add_u32 v{r2_}, v{t0_}, 3, v{rg_}')
        k.I(f'v_bfe_u32 v{t0_}, v{vl}, 1, 1')
        k.I(f'v_mul_u32_u24 v{t0_}, 12288, v{t0_}')
        k.I(f'v_add_u32 v{r2_}, v{r2_}, v{t0_}')
        k.I(f'v_and_b32 v{t0_}, 3, v{vl}')
        k.I(f'v_lshl_add_u32 v{rg_}, v{t0_}, 3, v{rg_}')
    k.srd(36, 62, F * D * 2)
    k.srd(44, 4, F * D * 2, WD)
    def wd_in(sj):
        k.I(f's_and_b32 s49, s{sj}, 1')
        k.I(f's_lshr_b32 s50, s{sj}, 1')
        k.I('s_lshl_b32 s51, s50, 2')
        k.I('s_add_u32 s51, s51, s22')
        k.I('s_mul_i32 s51, s51, 10240')
        k.I('s_mul_i32 s24, s49, 640')
        k.I('s_add_u32 s51, s51, s24')
        k.I('s_mov_b32 m0, s90')
        for p in range(4): k.I(f'buffer_load_dwordx4 v{so_+p}, s[36:39], s51 offen offset:{1024*p} nt lds', tag='r')
        k.I('s_add_u32 m0, s90, 4096')
        k.I('s_add_u32 s51, s51, 4096')
        k.I(f'buffer_load_dwordx4 v{so_+4}, s[36:39], s51 offen nt lds', tag='r')
        k.I('s_lshl_b32 s52, s49, 2')
        k.I('s_add_u32 s52, s52, s22')
        k.I('s_mul_i32 s52, s52, 48')
        k.I('s_add_u32 s52, s52, s50')
        k.I('s_mul_i32 s52, s52, 5120')
        k.I('s_add_u32 s53, s52, 4096')
    def wd_out():
        k.wait_tag('r')
        k.I('s_barrier')
        cm_(k, 3)
        for j in range(2 if HALF else 0):
            for mt in range(3):
                for hf in range(2):
                    off = 4*hf*384 + 192*j + (12288 if mt == 1 else 0) + (32 if mt == 2 else 0)
                    k.I(f'ds_read_b64_tr_b16 {vr(og_+(3*j+mt)*4+2*hf,2)}, v{r2_ if mt == 2 else rg_} offset:{off}')
        for j in range(2 if HALF else 0):
            for mt in range(3):
                k.I(f'buffer_store_dwordx4 {vr(og_+(3*j+mt)*4,4)}, v{vo16}, s[12:15], s{34 if j else 54} offen offset:{1024*mt} sc1', tag='y')
        for dt in range(5):
            for hf in range(2): k.I(f'ds_read_b64_tr_b16 {vr(o_+dt*4+2*hf,2)}, v{ra_} offset:{4*hf*640+8*dt}')
        for dt in range(5):
            k.I(f'buffer_store_dwordx4 {vr(o_+dt*4,4)}, v{vo16}, s[44:47], s{52+(dt//4)} offen offset:{1024*(dt%4)} sc1', tag='y')
    wd_in(48)
    stW = k.save_state()
    k.I('s_sub_u32 s48, s2, 162')
    k.I('s_cmp_ge_u32 s48, 3')
    k.I('s_cbranch_scc1 LWD0')
    m0_ = 100
    k.I('s_lshl_b32 s48, s48, 8')
    k.I(f'v_add_u32 v{m0_}, s48, v0')
    k.I(f'v_lshlrev_b32 v{m0_+1}, 4, v{m0_}')
    k.srd(8, 4, 4 * 960 * 16, GR)
    for p in range(4):
        k.I(f's_mov_b32 s49, {960*16*p + 320*16}')
        k.I(f'buffer_load_dwordx4 {vr(m0_+4+4*p,4)}, v{m0_+1}, s[8:11], s49 offen')
    k.srd(12, 4, 4 * D * 4, MODN + 2 * D * 4)
    k.I('s_mov_b32 s50, 0x04000c0c')
    k.I('s_mov_b32 s51, 0x0706000c')
    k.I(f'v_mov_b32 v{m0_+22}, {fhex(1.0 / (2.0 * S * D))}')
    k.I(f'v_cmp_gt_u32 vcc, 0xa0, v{m0_}')
    k.I(f'v_cndmask_b32 v{m0_+22}, 1.0, v{m0_+22}, vcc')
    k.I(f'v_subrev_u32 v{m0_+21}, 0x140, v{m0_}')
    k.I(f'v_cmp_gt_u32 vcc, 0xa0, v{m0_+21}')
    k.I(f'v_mov_b32 v{m0_+23}, 1.0')
    k.I(f'v_cndmask_b32 v{m0_+23}, 0, v{m0_+23}, vcc')
    g_ = m0_ + 4
    for p in range(4): unpack_gran(k, g_+4*p, m0_+21, 50, 51)
    for p in (0, 2):
        k.I(f'v_pk_add_f32 {vr(g_+p,2)}, {vr(g_+p,2)}, {vr(g_+4+p,2)}')
        k.I(f'v_pk_add_f32 {vr(g_+8+p,2)}, {vr(g_+8+p,2)}, {vr(g_+12+p,2)}')
    for p in (0, 2): k.I(f'v_pk_add_f32 {vr(g_+p,2)}, {vr(g_+p,2)}, {vr(g_+8+p,2)}')
    for j in range(4): k.I(f'v_cvt_pk_bf16_f32 v{g_+j}, v{g_+j}, v{g_+j}')
    for j in range(4): k.I(f'v_and_b32 v{g_+j}, 0xffff0000, v{g_+j}')
    for j in range(4): k.I(f'v_add_f32 v{g_+j}, v{m0_+23}, v{g_+j}')
    for j in range(4): k.I(f'v_cvt_pk_bf16_f32 v{g_+j}, v{g_+j}, v{g_+j}')
    for j in range(4): k.I(f'v_and_b32 v{g_+j}, 0xffff0000, v{g_+j}')
    for j in range(4): k.I(f'v_mul_f32 v{g_+j}, v{m0_+22}, v{g_+j}')
    k.I(f'buffer_store_dwordx4 {vr(g_,4)}, v{m0_+1}, s[12:15], 0 offen sc1')
    k.label('LWD0')
    k.restore_state(stW)
    k.I('s_sub_u32 s48, s2, 161')
    scalars()
    k.I(f'v_mov_b32 v{hs}, 0')
    k.I(f'v_mov_b32 v{hs+1}, 1')
    cm_(k, 1)
    k.bg = bglist(); k.emit_bg(env('WD_B0', 14))
    cm_(k, 2)
    wd_out()
    cm_(k, 4)
    k.emit_bg(env('WD_B1', 10))
    k.wait_tag('y')
    cm_(k, 5)
    k.I('s_barrier')
    stS = k.save_state()
    k.I('s_cmp_lg_u32 s22, 0')
    k.I('s_cbranch_scc1 LFW_s')
    k.I(f'v_mov_b32 v{t0_}, 1')
    k.I(f'v_lshlrev_b32 v{t1_}, 7, v{vl}')
    k.I(f's_mov_b32 s35, {FW + 1024}')
    k.I('s_mov_b64 exec, 1')
    k.I(f'buffer_atomic_add v{t0_}, v{hs}, s[12:15], s35 offen sc0 sc1')
    k.I(f'v_readfirstlane_b32 s35, v{t0_}')
    k.I('s_cmp_eq_u32 s35, 94')
    k.I('s_cselect_b64 exec, 0xff, 0')
    k.I(f's_mov_b32 s35, {FW}')
    k.I(f'buffer_store_dword v{hs+1}, v{t1_}, s[12:15], s35 offen sc1')
    k.I('s_mov_b64 exec, -1')
    k.label('LFW_s')
    topup()
    k.emit_bg(W_J1_)
    dpro()
    t0_ = v8; t1_ = vcn
    if env('MD_WARM', 1):
        k.I('s_mov_b32 m0, s88')
        k.I(f'buffer_load_dwordx4 v{vo16}, s[12:15], s31 offen sc1 lds')
        k.I(f'buffer_load_dwordx4 v{vo16}, s[12:15], s31 offen offset:1024 sc1 lds')
    cm_(k, 6)
    if env('CANARY', 1):
        k.I('s_lshl_b32 s48, s48, 14')
        k.I('s_add_u32 s48, s48, s25')
        k.I(f'v_mov_b32 v{t0_}, 0')
        k.I('s_mov_b32 s24, 0x400')
        k.I('s_cmp_lg_u32 s22, 0')
        k.I('s_cbranch_scc1 LCAN_o')
        k.label('LCAN')
        k.I('s_sleep 4')
        k.I(f'buffer_load_dword v{t1_}, v{t0_}, s[16:19], s48 offen sc1')
        k.waitcnt(vm=0)
        k.I(f'v_readfirstlane_b32 s49, v{t1_}')
        k.I('s_sub_u32 s24, s24, 1')
        k.I('s_cbranch_scc1 LCAN_o')
        k.I('s_bitcmp0_b32 s49, 0')
        k.I('s_cbranch_scc1 LCAN')
        k.label('LCAN_o')
        if env('CAN_SLEEP', 0): k.I(f's_sleep {env("CAN_SLEEP", 0)}')
        k.I('s_barrier')
    cm_(k, 7)
    k.I('s_branch LJOIN')
    for name, groups in slow:
        k.label(f'L{name}_slow', fresh=True); k.vm = []; k.lg = []
        k.I('s_mov_b32 s32, m0')
        k.I('s_mov_b32 s24, 0x40000')
        k.label(f'L{name}_loop')
        k.I(f's_add_u32 s50, s50, {16 if name == "V0" else 256}')
        for g in groups:
            for grp in dma(0, g): _emit(grp)
        k.I('s_mov_b32 m0, s32')
        k.waitcnt(vm=0)
        k.I('s_sub_u32 s24, s24, 1')
        k.I(f's_cbranch_scc1 L{name}_ok')
        sl_ = list(slow)
        for g in validate(name + 'r', groups)[:-1]: _emit(g)
        slow[:] = sl_
        k.I('s_cmp_lg_u64 s[62:63], 0')
        k.I(f's_cbranch_scc1 L{name}_loop')
        k.I(f's_branch L{name}_ok')
    for name, cnt in spins:
        k.label(f'L{name}_spin', fresh=True); k.vm = []; k.lg = []
        k.I('s_mov_b32 s24, 0x100000')
        k.label(f'L{name}_loop')
        k.I(f's_sleep {env("SPIN_SLEEP", 2)}')
        k.I(f'buffer_load_dword v{hr}, v{hs}, s[12:15], s{cnt} offen sc1')
        k.waitcnt(vm=0)
        k.I(f'v_readfirstlane_b32 s33, v{hr}')
        k.I('s_sub_u32 s24, s24, 1')
        k.I(f's_cbranch_scc1 L{name}_ok')
        k.I('s_cmp_lt_u32 s33, 16')
        k.I(f's_cbranch_scc1 L{name}_loop')
        k.I(f's_branch L{name}_ok')
    return k, (256, 256, 163840)
```

```python
import sys, math, os
import gen, gen2
from gen import *
from gen2 import *
from gen import mark, stamp_begin, stamp_end

GR = WS_END2
YT = GR + 0x10000
YT_ST = 10496
WS_END4 = YT + 256 * YT_ST
EPOCH = 0x8000
NREP = env('NREP', 8)
GRR = YT
NPF = 9
XNT = ' nt' if os.environ.get('XNT') == '1' else ''

def tag_issue(k, srd, vz, vt, off=0):
    k.I(f'buffer_load_dwordx2 {vr(vt,2)}, v{vz}, s[{srd}:{srd+3}], 0 offen offset:{off} sc1')
def tag_check(k, name, srd, vz, vt, s_tag, off=0):
    k.I('s_mov_b32 s3, 0x40000')
    k.waitcnt(vm=0)
    k.label(f'L{name}')
    k.I(f'v_readfirstlane_b32 s{s_tag+1}, v{vt+1}')
    k.I(f'v_readfirstlane_b32 s{s_tag}, v{vt}')
    k.I(f's_cmp_eq_u32 s{s_tag+1}, 1')
    k.I(f's_cbranch_scc1 L{name}_o')
    k.I('s_sub_u32 s3, s3, 1')
    k.I(f's_cbranch_scc1 L{name}_o')
    k.I('s_sleep 4')
    tag_issue(k, srd, vz, vt, off)
    k.waitcnt(vm=0)
    k.I(f's_branch L{name}')
    k.label(f'L{name}_o')

def role_mod4(k, lexit):
    va = VAlloc(1)
    vrw = va.get(); voff = va.get(); vc = va.get(5); vw = va.get(20, 4); acc = va.get(8, 4); t0 = va.get(); t1 = va.get(); vco = va.get()
    vz = va.get(); vt = va.get(2, 2)
    k.I(f'v_lshrrev_b32 v{vrw}, 3, v0')
    k.I(f'v_mul_u32_u24 v{voff}, 7680, v{vrw}')
    k.I(f'v_and_b32 v{t0}, 7, v0')
    k.I(f'v_lshl_add_u32 v{voff}, v{t0}, 4, v{voff}')
    k.I(f'v_lshlrev_b32 v{vco}, 1, v{vrw}')
    k.I(f'v_mov_b32 v{vz}, 0')
    k.I('s_lshl_b32 s23, s20, 7')
    k.I(f's_mul_i32 s22, s21, {160*7680}')
    k.I('s_add_u32 s23, s23, s22')
    k.I('s_mul_i32 s22, s21, 320')
    k.srd(24, 10, D * 6 * D * 2)
    k.srd(28, 8, D * 2)
    mark(k, 1)
    for i in range(5):
        k.I(f'buffer_load_dwordx4 {vr(vw+4*i,4)}, v{voff}, s[24:27], s23 offen nt')
        if i < 4: k.I(f's_add_u32 s23, s23, {32*7680}')
        if i == 0:
            for j in range(5): k.I(f'buffer_load_ushort v{vc+j}, v{vco}, s[28:31], s22 offen offset:{64*j}')
    mark(k, 2)
    k.srd(32, 4, 4 * 960 * 16, GR)
    k.srd(52, 56, 256)
    up = va.get(8, 2)
    tt = va.get(5)
    R = range(5)
    for i in R: k.I(f'v_lshlrev_b32 v{vc+i}, 16, v{vc+i}')
    def tagld():
        k.I('v_readfirstlane_b32 s38, v0')
        k.I(f'v_mov_b32 v{vt+1}, 1')
        k.I('s_add_u32 s39, s38, s20')
        k.I('s_cmp_lt_u32 s39, 20')
        k.I('s_cselect_b64 exec, 1, 0')
        tag_issue(k, 52, vz, vt)
        k.I('s_mov_b64 exec, -1')
    TAT = env('TAG_AT', 1)
    if TAT == 0: tagld()
    mark(k, 3)
    for i in R: k.I(f'v_mul_f32 v{tt+i}, {fhex(-math.log2(math.e))}, v{vc+i}')
    for i in R: k.I(f'v_exp_f32 v{tt+i}, v{tt+i}')
    for i in R: k.I(f'v_add_f32 v{tt+i}, 1.0, v{tt+i}')
    for i in R: k.I(f'v_rcp_f32 v{tt+i}, v{tt+i}')
    for i in R: k.I(f'v_mul_f32 v{vc+i}, v{vc+i}, v{tt+i}')
    for i in R: k.I(f'v_cvt_pk_bf16_f32 v{vc+i}, v{vc+i}, v{vc+i}')
    sv = va.get(10, 2)
    for i in R: k.I(f'v_and_b32 v{sv+2*i}, 0xffff0000, v{vc+i}')
    if TAT == 1: tagld()
    for i in R:
        for j in range(4):
            k.I(f'v_lshlrev_b32 v{up+2*j}, 16, v{vw+4*i+j}')
            k.I(f'v_and_b32 v{up+2*j+1}, 0xffff0000, v{vw+4*i+j}')
        for j in range(4):
            if i == 0: k.I(f'v_pk_mul_f32 {vr(acc+2*j,2)}, {vr(up+2*j,2)}, {vr(sv,2)} op_sel_hi:[1,0]')
            else: k.I(f'v_pk_fma_f32 {vr(acc+2*j,2)}, {vr(up+2*j,2)}, {vr(sv+2*i,2)}, {vr(acc+2*j,2)} op_sel_hi:[1,0,1]')
    if TAT == 2: tagld()
    for j in range(8): k.I(f'v_add_f32_dpp v{acc+j}, v{acc+j}, v{acc+j} row_ror:8 row_mask:0xf bank_mask:0xf')
    k.I(f'v_lshrrev_b32 v{t1}, 4, v0')
    k.I(f'v_lshlrev_b32 v{t1}, 8, v{t1}')
    k.I(f'v_lshl_add_u32 v{t1}, v{t0}, 5, v{t1}')
    k.I('s_mov_b32 exec_lo, 0x00ff00ff')
    k.I('s_mov_b32 exec_hi, 0x00ff00ff')
    k.I(f'ds_write_b128 v{t1}, {vr(acc,4)}')
    k.I(f'ds_write_b128 v{t1}, {vr(acc+4,4)} offset:16')
    k.I('s_mov_b64 exec, -1')
    k.I('v_readfirstlane_b32 s38, v0')
    k.I(f'v_lshlrev_b32 v{t0}, 2, v0')
    k.barrier()
    mark(k, 4)
    k.I('s_cmp_lg_u32 s38, 0')
    k.I(f's_cbranch_scc1 {lexit}')
    for j in range(8):
        k.I(f'ds_read2st64_b32 {vr(vw+2*j,2)}, v{t0} offset0:{2*j} offset1:{2*j+1}')
    k.I('s_sub_u32 s39, s20, 10')
    k.I('s_cmp_lt_u32 s39, 10')
    k.I('s_cselect_b32 s41, 1.0, 0')
    k.I('s_cmp_eq_u32 s21, 0')
    k.I('s_cselect_b32 s41, s41, 0')
    k.I(f's_mul_i32 s45, s21, {960*16}')
    k.I('s_lshl_b32 s44, s20, 8')
    k.I('s_add_u32 s45, s45, s44')
    k.I('s_mov_b32 s40, 0x07060503')
    k.I('s_mov_b32 s42, 0x07060502')
    k.I('s_mov_b32 s43, 0x07060501')
    for j in range(4): k.I(f'v_pk_add_f32 {vr(vw+2*j,2)}, {vr(vw+2*j,2)}, {vr(vw+8+2*j,2)}')
    for j in range(2): k.I(f'v_pk_add_f32 {vr(vw+2*j,2)}, {vr(vw+2*j,2)}, {vr(vw+4+2*j,2)}')
    k.I(f'v_pk_add_f32 {vr(vw,2)}, {vr(vw,2)}, {vr(vw+2,2)}')
    k.I(f'v_add_f32 v{vw}, v{vw}, v{vw+1}')
    k.I(f'v_add_f32 v{vw}, s41, v{vw}')
    for j in range(1, 4): k.I(f'v_mov_b32_dpp v{vw+j}, v{vw} quad_perm:[{j},{j},{j},{j}] row_mask:0xf bank_mask:0xf')
    if NREP > 1: k.I(f'v_mov_b32_dpp v{vw}, v{vw} quad_perm:[0,0,0,0] row_mask:0xf bank_mask:0xf')
    for j, sel in enumerate((40, 42, 43)): k.I(f'v_perm_b32 v{vw+j}, v{vw+j}, v{vw+3}, s{sel}')
    if NREP > 1:
        k.I(f'v_and_b32 v{t1}, 3, v0')
        k.I(f'v_mul_u32_u24 v{t1}, {20480 - 4}, v{t1}')
        k.I(f'v_add_u32 v{t1}, v{t1}, v{t0}')
        k.srd(48, 4, NREP * 20480, GRR)
        k.I('s_mul_i32 s46, s21, 5120')
        k.I('s_add_u32 s46, s46, s44')
    mark(k, 5)
    tag_check(k, 'A_tag', 52, vz, vt, 58)
    mark(k, 6)
    k.I(f'v_mov_b32 v{vw+3}, s58')
    if NREP > 1:
        k.I('s_cmp_ge_u32 s20, 20')
        k.I('s_cbranch_scc1 LA_one')
        for r in range(NREP // 4):
            k.I(f'buffer_store_dwordx4 {vr(vw,4)}, v{t1}, s[48:51], s46 offen sc1')
            k.I(f's_add_u32 s46, s46, {4*20480}')
        k.I(f's_branch {lexit}')
        k.label('LA_one')
    k.I('s_mov_b32 exec_lo, 0x11111111')
    k.I('s_mov_b32 exec_hi, 0x11111111')
    k.I(f'buffer_store_dwordx4 {vr(vw,4)}, v{t0}, s[32:35], s45 offen sc1')

def unpack_gran(k, g, t, s1, s2):
    k.I(f'v_perm_b32 v{t}, v{g}, v{g+1}, s{s1}')
    k.I(f'v_perm_b32 v{g+3}, v{t}, v{g+2}, s{s2}')

class Rec:
    def __init__(self): self.l = []
    def I(self, t, **kw): self.l.append(t)
def rec(fn, *a):
    r = Rec(); fn(r, *a); return r.l
def merge(k, main, fill, per):
    fill = list(fill)
    for m in main:
        k.I(m)
        for _ in range(per):
            if fill: k.I(fill.pop(0))
    for t in fill: k.I(t)

def role_B4(k, boff):
    PL = 5184; ML = 4 * PL
    if boff is None:
        k.I('s_mov_b32 s39, s2')
        k.I('s_mov_b32 s2, s20')
    else: k.I(f's_sub_u32 s2, s2, {boff}')
    va = VAlloc(2)
    vl = va.get(); xs = va.get(20, 4); md = va.get(20, 4); vo = va.get()
    for i in range(20): k.I(f'v_mov_b32 v{xs+i}, 0')
    ids2(k, vl)
    k.I('s_mul_i32 s28, s23, 1280')
    k.I(f's_add_u32 s29, s28, {32*1280}')
    k.I(f'v_lshlrev_b32 v{vo}, 1, v{vl}')
    XD = env('XDMA', 1)
    def xloads():
        k.srd(40, 6, S * D * 2)
        if XD:
            k.I(f'v_lshlrev_b32 v{md+8}, 4, v{vl}')
            k.I(f's_mul_i32 s30, s22, {PL}')
            for c in range(2):
                k.I(f's_add_u32 m0, s30, {1280*c}')
                k.I(f'buffer_load_dwordx4 v{md+8}, s[40:43], s{28+c} offen{XNT} lds', tag='xx')
                k.I('s_mov_b64 exec, 0xffff')
                k.I(f'buffer_load_dwordx4 v{md+8}, s[40:43], s{28+c} offen offset:1024{XNT} lds', tag='xx')
                k.I('s_mov_b64 exec, -1')
            k.I(f'v_add_u32 v{md+9}, s30, v{vo}')
            return
        for e in range(10):
            k.I(f'buffer_load_short_d16_hi v{xs+2*e}, v{vo}, s[40:43], s28 offen offset:{128*e}{XNT}')
            k.I(f'buffer_load_short_d16_hi v{xs+2*e+1}, v{vo}, s[40:43], s29 offen offset:{128*e}{XNT}')
    fi = va.get(); fq = va.get(); fq4 = va.get(); vi = va.get(); vq = va.get()
    k.I(f'v_and_b32 v{vi}, 15, v{vl}')
    k.I(f'v_lshrrev_b32 v{vq}, 4, v{vl}')
    k.I(f'v_cvt_f32_u32 v{fi}, v{vi}')
    k.I(f'v_cvt_f32_u32 v{fq}, v{vq}')
    k.I(f'v_mul_f32 v{fq4}, 4.0, v{fq}')
    va.n = (va.n + 3) // 4 * 4
    r_ = Rec(); f40 = gen_f40(r_, va, fi, fq, False)
    XA = env('X_AT', 160)
    def poison():
        if PAR or not env('POISON', 1) or (G6 and env('P_MODR', 1)): return
        for j in range(4): k.I(f'v_mov_b32 v{md+j}, -1')
        k.I(f'v_lshlrev_b32 v{md+4}, 4, v0')
        k.I('s_lshr_b32 s30, s21, 2')
        k.I('s_and_b32 s31, s30, 2')
        k.I('s_add_u32 s30, s30, s31')
        k.I('s_lshl_b32 s31, s20, 3')
        k.I('s_add_u32 s30, s30, s31')
        k.I('s_lshl_b32 s30, s30, 2')
        k.I('s_and_b32 s31, s21, 3')
        k.I('s_add_u32 s30, s30, s31')
        k.I('s_mul_i32 s30, s30, 5120')
        k.I(f's_add_u32 s30, s30, {H2}')
        k.I('s_add_u32 s40, s4, s30')
        k.I('s_addc_u32 s41, s5, 0')
        k.I('s_mov_b32 s42, 5120')
        k.I('s_mov_b32 s43, 0x00020000')
        k.I('s_movk_i32 s30, 0x1000')
        PST = ' sc1' if env('P_SC1', 1) else ''
        k.I(f'buffer_store_dwordx4 {vr(md,4)}, v{md+4}, s[40:43], 0 offen{PST}')
        k.I(f'buffer_store_dwordx4 {vr(md,4)}, v{md+4}, s[40:43], s30 offen{PST}')
        if G6:
            k.I('s_lshl_b32 s31, s20, 4')
            k.I('s_add_u32 s31, s31, s21')
            k.I('s_mul_i32 s31, s31, 10304')
            k.I(f's_add_u32 s31, s31, {YT}')
            k.I('s_add_u32 s40, s4, s31')
            k.I('s_addc_u32 s41, s5, 0')
            k.I('s_mov_b32 s42, 10304')
            k.I('s_mov_b32 s43, 0x00020000')
            k.I('s_movk_i32 s31, 0x2000')
            for so_ in ('0', 's30', 's31'): k.I(f'buffer_store_dwordx4 {vr(md,4)}, v{md+4}, s[40:43], {so_} offen{PST}')
    PA = env('P_AT', 20)
    for t in r_.l[:min(PA, XA)]: k.I(t)
    if PA <= XA: poison()
    for t in r_.l[min(PA, XA):XA]: k.I(t)
    xloads()
    for t in r_.l[XA:]: k.I(t)
    va.n = f40 + 62
    mark(k, 1)
    k.srd(44, 4, 161 * 16384 if X64 else XT_SZ, XT)
    if NREP > 1:
        k.I(f's_and_b32 s30, s2, {NREP - 1}')
        k.I('s_mul_i32 s30, s30, 20480')
        k.I(f's_add_u32 s30, s30, {GRR}')
        k.I('s_add_u32 s48, s4, s30')
        k.I('s_addc_u32 s49, s5, 0')
        k.I('s_mov_b32 s50, 20480')
        k.I('s_mov_b32 s51, 0x00020000')
    else: k.srd(48, 4, 4 * 960 * 16, GR)
    PST_ = 5120 if NREP > 1 else 960 * 16
    k.srd(52, 56, 256)
    cs, sn = gen_tw640(k, va, fi, fq4)
    va.n = sn + 12
    f16 = va.get(8, 2); tmp = va.get(8, 2); ta = md
    dat = va.get(12, 2)
    k.I(f'v_mov_b32 v{dat+10}, 0'); k.I(f'v_mov_b32 v{dat+11}, 0')
    k.I('s_mov_b64 exec, 1')
    tag_issue(k, 52, dat + 10, dat, 128)
    k.I('s_mov_b64 exec, -1')
    k.I(f'v_lshrrev_b32 v{ta}, 1, v{vi}')
    k.I(f'v_cvt_f32_u32 v{ta}, v{ta}')
    k.I(f'v_and_b32 v{ta+1}, 1, v{vi}')
    k.I(f'v_cvt_f32_u32 v{ta+1}, v{ta+1}')
    k.I(f'v_mul_f32 v{ta+1}, 0x3e800000, v{ta+1}')
    for U in range(2):
        k.I(f'v_add_f32 v{ta+2}, {fhex(8.0*U)}, v{ta}')
        k.I(f'v_mul_f32 v{ta+2}, {fhex(1.0/16)}, v{ta+2}')
        k.I(f'v_fma_f32 v{ta+3}, v{fq4}, v{ta+2}, v{ta+1}')
        for j in range(4): k.I(f'v_fmamk_f32 v{tmp+4+j}, v{ta+2}, {fhex(float(j))}, v{ta+3}')
        for j in range(4):
            k.I(f'v_cos_f32 v{tmp+j}, v{tmp+4+j}')
            k.I(f'v_sin_f32 v{tmp+4+j}, v{tmp+4+j}')
        for j in range(4): k.I(f'v_cvt_pk_bf16_f32 v{f16+4*U+j}, v{tmp+2*j}, v{tmp+2*j+1}')
    wa = fi; ru = fq; rv = fq4; so = vo
    k.I(f'v_mul_u32_u24 v{wa}, 80, v{vq}')
    k.I(f'v_add_lshl_u32 v{wa}, v{wa}, v{vi}, 3')
    k.I(f's_mul_i32 s31, s22, {PL}')
    k.I(f'v_add_u32 v{wa}, s31, v{wa}')
    k.I(f'v_and_b32 v{ta}, 1, v0')
    k.I(f'v_lshrrev_b32 v{ta+1}, 1, v0')
    k.I(f'v_mul_u32_u24 v{ru}, {2*PL}, v{ta}')
    k.I(f'v_sub_u32 v{rv}, 384, v{ta+1}')
    k.I(f'v_lshl_add_u32 v{rv}, v{rv}, 3, v{ru}')
    k.I(f'v_lshl_add_u32 v{ru}, v{ta+1}, 3, v{ru}')
    if X64:
        k.I(f'v_lshrrev_b32 v{so}, 2, v0')
        k.I(f'v_lshlrev_b32 v{so}, 14, v{so}')
        k.I(f'v_and_b32 v{ta}, 3, v0')
        k.I(f'v_lshl_add_u32 v{so}, v{ta}, 4, v{so}')
        k.I('s_lshl_b32 s25, s25, 1')
        k.I(f's_add_u32 s26, s25, {64*16384}')
        k.I(f's_add_u32 s27, s25, {128*16384}')
    else:
        k.I(f'v_lshlrev_b32 v{so}, 13, v{ta+1}')
        k.I(f'v_lshl_add_u32 v{so}, v{ta}, 4, v{so}')
    gA = 1; gB = vq; lB = vi; rm = vl
    k.I('s_mul_i32 s31, s22, 1280')
    k.I(f'v_lshl_add_u32 v{gA}, v{vl}, 4, s31')
    k.I('s_add_u32 s31, s31, 1024')
    k.I(f'v_lshl_add_u32 v{lB}, v{vi}, 4, s31')
    k.I(f'v_mul_u32_u24 v{gB}, {PST_}, v{vq}')
    k.I(f'v_add_u32 v{gB}, v{gB}, v{lB}')
    k.I(f'v_lshlrev_b32 v{rm}, 2, v{vl}')
    k.I(f'v_add_u32 v{rm}, {ML}, v{rm}')
    for p in range(1, 4): k.I(f's_mov_b32 s{35+p}, {PST_*p}')
    k.I('s_mov_b32 s60, 0x04000c0c')
    k.I('s_mov_b32 s61, 0x0706000c')
    mark(k, 2)
    if XD:
        k.wait_tag('xx')
        for e in range(10):
            for c in range(2): k.I(f'ds_read_u16_d16_hi v{xs+2*e+c}, v{md+9} offset:{128*e+1280*c}')
    sm = md; sq = md + 2; rr = md + 4; nmr = md + 6
    k.I(f'v_pk_add_f32 {vr(sm,2)}, {vr(xs,2)}, {vr(xs+2,2)}')
    k.I(f'v_pk_mul_f32 {vr(sq,2)}, {vr(xs,2)}, {vr(xs,2)}')
    k.I(f'v_pk_fma_f32 {vr(sq,2)}, {vr(xs+2,2)}, {vr(xs+2,2)}, {vr(sq,2)}')
    for e in range(2, 10):
        k.I(f'v_pk_add_f32 {vr(sm,2)}, {vr(sm,2)}, {vr(xs+2*e,2)}')
        k.I(f'v_pk_fma_f32 {vr(sq,2)}, {vr(xs+2*e,2)}, {vr(xs+2*e,2)}, {vr(sq,2)}')
    wave_reduce_to_sgpr(k, [sm, sm+1, sq, sq+1], [32, 33, 34, 35])
    ln_scalars(k, 32, 34, rr, nmr, tmp)
    for e in range(10):
        k.I(f'v_pk_fma_f32 {vr(xs+2*e,2)}, {vr(xs+2*e,2)}, {vr(rr,2)}, {vr(nmr,2)}')
    mark(k, 3)
    tag_check(k, 'B_tag', 52, dat + 10, dat, 58, 128)
    mark(k, 4)
    tx = tmp
    k.I('s_mov_b32 s3, 0x40000')
    CAN = env('B_CAN', 1)
    if CAN:
        k.I('s_mov_b32 exec_lo, 0x00010001')
        k.I('s_mov_b32 exec_hi, 0x00010001')
        k.label('LB_can')
        k.I(f'buffer_load_dword v{tx}, v{gB}, s[48:51], 0 offen offset:12 sc1')
        k.I(f'v_cmp_ne_u32 vcc, s58, v{tx}')
        k.I('s_cbranch_vccz LB_can_o')
        k.I(f's_sleep {env("CAN_SL", 3)}')
        k.I('s_sub_u32 s3, s3, 1')
        k.I('s_cbranch_scc0 LB_can')
        k.label('LB_can_o')
        k.I('s_mov_b64 exec, -1')
        k.I('s_mov_b32 s3, 0x40000')
    k.label('LB_poll')
    for p in range(4):
        k.I(f'buffer_load_dwordx4 {vr(md+4*p,4)}, v{gA}, s[48:51], {"s%d" % (35+p) if p else 0} offen sc1')
    k.I(f'buffer_load_dwordx4 {vr(md+16,4)}, v{gB}, s[48:51], 0 offen sc1')
    for p in range(5): k.I(f'v_xor_b32 v{tx+p}, s58, v{md+4*p+3}')
    k.I(f'v_or3_b32 v{tx}, v{tx}, v{tx+1}, v{tx+2}')
    k.I(f'v_or3_b32 v{tx}, v{tx}, v{tx+3}, v{tx+4}')
    k.I(f'v_cmp_ne_u32 vcc, 0, v{tx}')
    for p in (4, 0, 1, 2, 3): unpack_gran(k, md+4*p, tx+1+p, 60, 61)
    k.I('s_cbranch_vccz LB_go')
    k.I(f's_sleep {env("SLEEP", 2)}')
    k.I('s_sub_u32 s3, s3, 1')
    k.I('s_cbranch_scc0 LB_poll')
    k.label('LB_go')
    mark(k, 5)
    b_ = md + 16
    for j in range(4): k.I(f'v_mov_b32 v{tx+j}, v{b_+j}')
    for p in (0, 2):
        k.I(f'v_pk_add_f32 {vr(md+p,2)}, {vr(md+p,2)}, {vr(md+4+p,2)}')
        k.I(f'v_pk_add_f32 {vr(md+8+p,2)}, {vr(md+8+p,2)}, {vr(md+12+p,2)}')
    for j in range(4): k.I(f'v_permlane32_swap_b32 v{tx+j}, v{b_+j}')
    for p in (0, 2): k.I(f'v_pk_add_f32 {vr(md+p,2)}, {vr(md+p,2)}, {vr(md+8+p,2)}')
    for p in (0, 2): k.I(f'v_pk_add_f32 {vr(b_+p,2)}, {vr(b_+p,2)}, {vr(tx+p,2)}')
    k.I(f'ds_write_b128 v{gA}, {vr(md,4)} offset:{ML}')
    for j in range(4): k.I(f'v_mov_b32 v{tx+j}, v{b_+j}')
    for j in range(4): k.I(f'v_permlane16_swap_b32 v{tx+j}, v{b_+j}')
    for p in (0, 2): k.I(f'v_pk_add_f32 {vr(b_+p,2)}, {vr(b_+p,2)}, {vr(tx+p,2)}')
    k.I(f'ds_write_b128 v{lB}, {vr(b_,4)} offset:{ML}')
    k.barrier()
    mark(k, 6)
    for p in range(5):
        k.I(f'ds_read2st64_b32 {vr(md+4*p,2)}, v{rm} offset0:{10+2*p} offset1:{11+2*p}')
        k.I(f'ds_read2st64_b32 {vr(md+4*p+2,2)}, v{rm} offset0:{2*p} offset1:{2*p+1}')
    for e in range(10):
        h_ = e & 1; p = e // 2
        if h_ == 0: k.I(f'v_pk_fma_f32 {vr(xs+2*e,2)}, {vr(xs+2*e,2)}, {vr(md+4*p,2)}, {vr(md+4*p+2,2)} op_sel_hi:[1,0,0]')
        else:
            for j in range(2): k.I(f'v_fma_f32 v{xs+2*e+j}, v{xs+2*e+j}, v{md+4*p+1}, v{md+4*p+3}')
        if e >= 1: k.I(f'v_cvt_pk_bf16_f32 v{dat+e-1}, v{xs+2*e-2}, v{xs+2*e-1}')
    k.I(f'v_cvt_pk_bf16_f32 v{dat+9}, v{xs+18}, v{xs+19}')
    d1 = xs; b2 = xs + 24; d2 = f40
    def s1(T):
        o = []
        for kap in range(3):
            for c in range(2):
                dd = vr(d1 + (2*T+c)*4, 4)
                o.append(f'{MF16} {dd}, {vr(dat+4*kap,4)}, {vr(f40+(2*T+c)*10+4*kap,4)}, {dd if kap else 0}')
        return o
    cm = [rec(cmul4, d1+8*T, d1+8*T+4, cs+4*T, sn+4*T, b2+4*T, tmp, False) for T in range(3)]
    def s2(T): return [f'{MF16} {vr(d2+(2*T+U)*4,4)}, {vr(f16+4*U,4)}, {vr(b2+4*T,4)}, 0' for U in range(2)]
    def wr(T): return [f'ds_write_b64 v{wa}, {vr(d2+(2*T+U)*4+2*h,2)} offset:{(16*T+320*U+40*h)*8}' for U in range(2) for h in range(2)]
    for t in s1(0) + s1(1) + s1(2) + cm[0] + s2(0) + cm[1] + s2(1) + wr(0) + cm[2] + s2(2) + wr(1): k.I(t)
    mark(k, 7)
    k.I('s_mov_b64 exec, 1')
    k.I(f'ds_write_b64 v{wa}, {vr(d2,2)} offset:5120')
    k.I('s_mov_b32 exec_lo, 0x00ff00ff')
    k.I('s_mov_b32 exec_hi, 0x00ff00ff')
    for t in wr(2): k.I(t)
    k.I('s_mov_b64 exec, -1')
    k.barrier()
    mark(k, 8)
    rd = d1; oc = b2
    for rho in range(3):
        for pr in range(2):
            k.I(f'ds_read_b64 {vr(rd+8*rho+4*pr,2)}, v{ru} offset:{pr*PL+1024*rho}')
            k.I(f'ds_read_b64 {vr(rd+8*rho+4*pr+2,2)}, v{rv} offset:{pr*PL+1024*(2-rho)}')
    for rho in range(3):
        for pr in range(2):
            u = rd+8*rho+4*pr; v = u+2
            k.I(f'v_pk_add_f32 {vr(tmp+4*pr,2)}, {vr(u,2)}, {vr(v,2)}')
            k.I(f'v_pk_add_f32 {vr(tmp+4*pr+2,2)}, {vr(u,2)}, {vr(v,2)} neg_lo:[0,1] neg_hi:[0,1]')
        for pr in range(2):
            k.I(f'v_cvt_pk_bf16_f32 v{oc+4*rho+pr}, v{tmp+4*pr}, v{tmp+4*pr+1}')
            k.I(f'v_cvt_pk_bf16_f32 v{oc+4*rho+2+pr}, v{tmp+4*pr+3}, -v{tmp+4*pr+2}')
        if PAR: k.I(f'v_and_b32 v{oc+4*rho}, -2, v{oc+4*rho}')
        k.I(f'buffer_store_dwordx4 {vr(oc+4*rho,4)}, v{so}, s[44:47], s{25+rho} offen{" sc1" if env("XT_SC1", 0) else ""}')
    if PA > XA:
        md = f40
        poison()
    if gen.STAMPS: k.I(f's_add_u32 s2, s2, {boff}' if boff is not None else 's_mov_b32 s2, s39')

G6 = env('GEN6', 0)
PAR = env('PARITY', 0)
X64 = env('X64', 1) if PAR else 0
OLDM = env('OLD_MODR', 0)
LOOPM = env('LOOPM', 1) if G6 else 0
CNT = dict(wd1=1, modr=80 if (OLDM or LOOPM) else 160, wt=N_WT, wgu=N_WGU, wd=N_WD)
K1_SIDE = os.environ.get('K1_SIDE', 'wt,modr').split(',')
C_SIDE = [r for r in ('wgu', 'wd') if r not in K1_SIDE]

MISC_EXTRA = []
def gen_K1():
    k = Kernel('ka_kernel')
    EPF = env('EPF', 8)
    if EPF:
        k.I('s_sub_u32 s28, s2, 1')
        k.I(f's_cmp_ge_u32 s28, {EPF}')
        k.I('s_cbranch_scc1 LA_e0')
        k.I('s_getpc_b64 s[28:29]')
        k.raw('LA_pc0:')
        k.I('v_lshlrev_b32 v70, 6, v0')
        k.I('v_mov_b32 v73, s29')
        for i in range(3):
            if i:
                k.I('v_add_u32 v70, 0x4000, v70')
                k.I('v_min_u32 v70, Lcode_end-LA_pc0-4, v70')
            k.I('v_add_co_u32 v74, vcc, s28, v70')
            k.I('v_addc_co_u32 v75, vcc, 0, v73, vcc')
            k.I(f'global_load_dword v{76+i}, v[74:75], off')
        k.label('LA_e0')
        k.vm = []
    stamp_begin(k)
    k.I(f's_load_dwordx4 s[56:59], s[0:1], {KA["dbg"]}')
    k.I(f's_load_dwordx4 s[8:11], s[0:1], {KA["c"]}')
    k.I(f's_load_dwordx2 s[4:5], s[0:1], {KA["ws"]}')
    k.I(f's_load_dwordx2 s[6:7], s[0:1], {KA["x"]}')
    k.I(f's_load_dwordx4 s[12:15], s[0:1], {KA["wr"]}')
    if 'wgu' in K1_SIDE or env('RAW_PF', 0): k.I(f's_load_dwordx4 s[16:19], s[0:1], {KA["wg"]}')
    if 'wd' in K1_SIDE or 'wd1' in K1_SIDE or env('RAW_PF', 0): k.I(f's_load_dwordx2 s[62:63], s[0:1], {KA["wd"]}')
    boff = 88; n = boff + 256; lo = {}
    for r in K1_SIDE:
        lo[r] = n; n += CNT[r]
    total = n
    ISO = env('ISO', 0)
    if ISO:
        TABLE = [(256, 128, 'B', 0), (512, 128, 'B', 128), (128, 128, 'wgu', 0), (384, 128, 'wt', 0), (640, 32, 'wgu', 128),
                 (672, 60, 'mod', 120), (732, 1, 'wd1', 0), (0, 8, 'misc', 0)]
        total = 733
        if ISO == 2:
            TABLE = [(256, 128, 'B', 0), (512, 128, 'B', 128), (128, 128, 'wgu', 0), (384, 128, 'wt', 0), (640, 32, 'wgu', 128),
                     (673, 120, 'mod', 120), (672, 1, 'wd1', 0), (0, 8, 'misc', 0)]
            total = 793
        if ISO == 3:
            TABLE = [(256, 128, 'B', 0), (512, 128, 'B', 128), (128, 128, 'wt', 0), (384, 128, 'wgu', 0), (640, 32, 'wgu', 128),
                     (673, 120, 'mod', 120), (672, 1, 'wd1', 0), (0, 8, 'misc', 0)]
            total = 793
    st = k.save_state()
    k.I('s_cmp_lg_u32 s2, 0')
    k.I('s_cbranch_scc1 LA_n0')
    if env('CLK_TAG', 0):
        k.I('s_memrealtime s[30:31]')
        k.I('v_lshlrev_b32 v2, 7, v0')
        k.I('v_mov_b32 v5, 1')
        k.srd(52, 56, 256)
        k.I('v_mov_b32 v4, s30')
        k.I('v_cmp_gt_u32 vcc, 2, v0')
        k.I('s_and_b64 exec, exec, vcc')
        k.I('s_cbranch_execz LA_misc')
        k.I('buffer_store_dwordx2 v[4:5], v2, s[52:55], 0 offen sc1')
    else:
        k.I('v_mov_b32 v2, 0')
        k.I(f'v_mov_b32 v3, {EPOCH}')
        k.I('v_mov_b32 v5, 1')
        k.I(f's_load_dword s30, s[58:59], {EPOCH}')
        k.srd(24, 58, 0x10000)
        k.srd(52, 56, 256)
        k.I('v_cmp_eq_u32 vcc, 0, v0')
        k.I('s_and_b64 exec, exec, vcc')
        k.I('s_cbranch_execz LA_misc')
        k.I('s_add_u32 s30, s30, 1')
        k.I('v_mov_b32 v4, s30')
        k.I('buffer_store_dwordx2 v[4:5], v2, s[52:55], 0 offen sc1')
        k.I('buffer_store_dwordx2 v[4:5], v2, s[52:55], 0 offen offset:128 sc1')
        k.I('buffer_store_dword v4, v3, s[24:27], 0 offen sc1')
    k.I('s_branch LA_misc')
    k.label('LA_n0', fresh=True); k.restore_state(st)
    k.I('s_sub_u32 s20, s2, 8')
    k.I(f's_cmp_lt_u32 s20, {120 if ISO else 80}')
    k.I('s_cbranch_scc0 LA_disp')
    k.raw('LA_mod:')
    k.I('s_mov_b32 s61, s20')
    k.I('s_and_b32 s21, s20, 3')
    k.I('s_lshr_b32 s20, s20, 2')
    def poison_modr():
        k.I('s_mov_b64 exec, -1')
        k.I('s_sub_u32 s46, s61, 80')
        k.I('s_cmp_ge_u32 s46, 160')
        k.I('s_cbranch_scc1 LA_np')
        for j in range(4): k.I(f'v_mov_b32 v{100+j}, -1')
        k.I('v_lshlrev_b32 v104, 4, v0')
        k.srd(48, 4, WS_END4)
        k.I('s_lshl_b32 s47, s46, 14')
        k.I(f's_add_u32 s47, s47, {YT}')
        for j in range(4):
            k.I('buffer_store_dwordx4 v[100:103], v104, s[48:51], s47 offen sc1')
            k.I('s_add_u32 s47, s47, 4096')
        k.I('s_mul_i32 s47, s46, 205')
        k.I('s_lshr_b32 s47, s47, 10')
        k.I('s_mul_i32 s47, s47, 40960')
        k.I('s_lshl_b32 s46, s46, 13')
        k.I('s_add_u32 s47, s47, s46')
        k.I(f's_add_u32 s47, s47, {H2}')
        for j in range(2):
            k.I('buffer_store_dwordx4 v[100:103], v104, s[48:51], s47 offen sc1')
            k.I('s_add_u32 s47, s47, 4096')
        k.label('LA_np')
    PM = env('P_MODR', 1) if G6 and not PAR else 0
    if PM == 2: poison_modr()
    role_mod4(k, 'LA_end')
    k.label('LA_end')
    if LOOPM and ISO < 2:
        k.I('s_mov_b64 exec, -1')
        k.I(f's_sub_u32 s20, s61, {120 if ISO else 0}')
        k.I(f's_cmp_ge_u32 s20, {60 if ISO else 80}')
        k.I('s_cbranch_scc1 LA_end1')
        k.I(f's_add_u32 s20, s61, {60 if ISO else 160}')
        k.barrier(vm=None)
        k.I('s_branch LA_mod')
        k.label('LA_end1')
    if PM == 1: poison_modr()
    stamp_end(k, 0, 4)
    k.label('LA_exit')
    k.I('s_endpgm')
    k.label('LA_disp', fresh=True); k.restore_state(st)
    if ISO:
        for (lo_, n_, role, base) in TABLE:
            k.I(f's_sub_u32 s20, s2, {lo_ - base}')
            k.I(f's_sub_u32 s21, s2, {lo_}')
            k.I(f's_cmp_lt_u32 s21, {n_}')
            k.I(f's_cbranch_scc1 LA_{role}')
        k.I('s_endpgm')
    else:
        k.I('s_cmp_lt_u32 s2, 8')
        k.I('s_cbranch_scc1 LA_misc')
        k.I(f's_sub_u32 s20, s2, {boff}')
        k.I('s_cmp_lt_u32 s20, 256')
        k.I('s_cbranch_scc1 LA_B')
        for r in K1_SIDE:
            if r == 'modr' and not OLDM: continue
            k.I(f's_sub_u32 s20, s2, {lo[r]}')
            k.I(f's_cmp_lt_u32 s20, {CNT[r]}')
            k.I(f's_cbranch_scc1 LA_{r}')
        k.I(f's_cmp_ge_u32 s2, {total}')
        k.I('s_cbranch_scc1 LA_exit')
        k.I(f's_sub_u32 s20, s2, {lo["modr"] - 80}')
        k.I('s_branch LA_mod')
    k.label('LA_B', fresh=True); k.restore_state(st)
    role_B4(k, None if ISO else boff)
    stamp_end(k, 0, 4)
    k.I('s_endpgm')
    def modr6():
        k.I('s_and_b32 s21, s20, 7')
        k.I('s_lshl_b32 s21, s21, 1')
        k.I('s_bfe_u32 s22, s20, 0x10003')
        k.I('s_add_u32 s21, s21, s22')
        k.I('s_and_b32 s20, s20, 0x70')
        k.I('s_add_u32 s20, s20, s21')
        k.I('s_add_u32 s20, s20, 40')
        vw, t0, t1 = role_mod(k, 8, 10, 'LA_mr_end')
        k.I('s_lshl_b32 s45, s20, 7')
        k.I(f'v_lshl_add_u32 v{t0}, v0, 2, s45')
        k.I('s_mov_b32 exec_hi, 0')
        k.I(f'buffer_store_dword v{vw}, v{t0}, s[32:35], 0 offen')
        k.label('LA_mr_end')
    fns = dict(wd=lambda: role_wd(k, 62), wgu=lambda: role_wgu(k, 16, 18), wt=lambda: role_wt(k, 12, 14), modr=modr6,
               wd1=lambda: (k.I('s_movk_i32 s20, 95'), role_wd(k, 62)))
    for r in K1_SIDE:
        if r == 'modr' and not OLDM: continue
        k.label(f'LA_{r}', fresh=True); k.restore_state(st)
        fns[r]()
        if r == 'wt' and env('RAW_PF', 0):
            k.I('s_mov_b64 exec, -1')
            k.I(f's_sub_u32 s20, s2, {lo["wt"]}')
            k.I('s_cmp_ge_u32 s20, 96')
            k.I('s_cbranch_scc1 LA_wt2')
            role_wd(k, 62, pf=True)
            k.label('LA_wt2')
        stamp_end(k, 0, 4)
        k.I('s_endpgm')
    k.label('LA_misc', fresh=True); k.restore_state(st)
    k.I('s_mov_b64 exec, -1')
    if G6:
        k.srd(24, 4, 88 * 128, FLAGS)
        k.I('v_lshlrev_b32 v3, 7, v0')
        k.I('v_mov_b32 v2, 0')
        k.I('buffer_store_dword v2, v3, s[24:27], 0 offen')
        k.srd(32, 4, 4 * D * 4, MODN + 2 * D * 4)
        for j in range(4): k.I(f'v_mov_b32 v{48+j}, -1')
        k.I('v_lshlrev_b32 v3, 4, v0')
        k.I('s_lshl_b32 s30, s2, 12')
        k.I('buffer_store_dwordx4 v[48:51], v3, s[32:35], s30 offen sc1')
        if X64: pass
        elif PAR:
            for j in range(4): k.I(f'v_mov_b32 v{52+j}, 0')
            k.srd(32, 4, 8192, XT + XT_SZ)
            k.I('buffer_store_dwordx4 v[52:55], v3, s[32:35], s30 offen')
        else:
            k.srd(32, 4, 16384, YT + 160 * 16384)
            k.I('buffer_store_dwordx4 v[48:51], v3, s[32:35], s30 offen sc1')
    k.I('s_getpc_b64 s[28:29]')
    k.raw('LA_pc:')
    k.I('s_sub_u32 s28, s28, LA_pc-ka_kernel')
    k.I('s_subb_u32 s29, s29, 0')
    k.I('v_lshlrev_b32 v60, 4, v0')
    k.I('v_mov_b32 v61, s29')
    for i in range(0 if EPF else NPF):
        k.I('v_min_u32 v6, Lcode_end-ka_kernel-16, v60')
        k.I('v_add_co_u32 v6, vcc, s28, v6')
        k.I('v_addc_co_u32 v7, vcc, 0, v61, vcc')
        k.I(f'global_load_dwordx4 {vr(8+4*i,4)}, v[6:7], off')
        k.I('v_add_u32 v60, 0x1000, v60')
    k.waitcnt(vm=0, lgkm=0)
    if MISC_EXTRA:
        k.I('v_readfirstlane_b32 s30, v0')
        k.I('s_lshl_b32 s31, s2, 8')
        k.I('s_add_u32 s30, s30, s31')
        k.I('s_cmp_lg_u32 s30, 0x100')
        k.I('s_cbranch_scc1 LA_mend')
        MISC_EXTRA[0](k)
        k.label('LA_mend')
    stamp_end(k, 0, 4)
    k.I('s_endpgm')
    print('K1 roles', lo, total)
    return k, (total, 256, 40960 if 'wd' in K1_SIDE else 26112)

def role_modfin(k):
    k.I('s_lshl_b32 s20, s20, 8')
    k.I('v_add_u32 v1, s20, v0')
    k.I('v_lshlrev_b32 v2, 4, v1')
    k.srd(24, 4, 4 * 960 * 16, GR)
    for p in range(4):
        k.I(f's_mov_b32 s21, {960*16*p + 320*16}')
        k.I(f'buffer_load_dwordx4 {vr(4+4*p,4)}, v2, s[24:27], s21 offen')
    k.srd(28, 4, 32 * 256, FLAGS)
    k.I('v_lshlrev_b32 v3, 7, v1')
    k.I('v_mov_b32 v20, 0')
    k.I('buffer_store_dword v20, v3, s[28:31], 0 offen')
    k.srd(32, 4, 4 * D * 4, MODN + 2 * D * 4)
    k.I('s_mov_b32 s60, 0x04000c0c')
    k.I('s_mov_b32 s61, 0x0706000c')
    k.I(f'v_mov_b32 v22, {fhex(1.0 / (2.0 * S * D))}')
    k.I('v_cmp_gt_u32 vcc, 0xa0, v1')
    k.I('v_cndmask_b32 v22, 1.0, v22, vcc')
    k.I('v_subrev_u32 v21, 0x140, v1')
    k.I('v_cmp_gt_u32 vcc, 0xa0, v21')
    k.I('v_mov_b32 v23, 1.0')
    k.I('v_cndmask_b32 v23, 0, v23, vcc')
    for p in range(4): unpack_gran(k, 4+4*p, 21, 60, 61)
    for p in (0, 2):
        k.I(f'v_pk_add_f32 {vr(4+p,2)}, {vr(4+p,2)}, {vr(8+p,2)}')
        k.I(f'v_pk_add_f32 {vr(12+p,2)}, {vr(12+p,2)}, {vr(16+p,2)}')
    for p in (0, 2): k.I(f'v_pk_add_f32 {vr(4+p,2)}, {vr(4+p,2)}, {vr(12+p,2)}')
    for j in range(4): k.I(f'v_cvt_pk_bf16_f32 v{4+j}, v{4+j}, v{4+j}')
    for j in range(4): k.I(f'v_and_b32 v{4+j}, 0xffff0000, v{4+j}')
    for j in range(4): k.I(f'v_add_f32 v{4+j}, v23, v{4+j}')
    for j in range(4): k.I(f'v_cvt_pk_bf16_f32 v{4+j}, v{4+j}, v{4+j}')
    for j in range(4): k.I(f'v_and_b32 v{4+j}, 0xffff0000, v{4+j}')
    for j in range(4): k.I(f'v_mul_f32 v{4+j}, v22, v{4+j}')
    k.I('buffer_store_dwordx4 v[4:7], v2, s[32:35], 0 offen')

def gen_C4():
    k, (g, b, l) = gen_C()
    assert k.out[-2] == 'LC_exit:'
    k.out.pop(); k.out.pop()
    k.I('s_endpgm')
    k.label('LC_exit', fresh=True); k.vm = []; k.lg = []
    k.I(f's_load_dwordx2 s[4:5], s[0:1], {KA["ws"]}')
    k.I(f's_load_dwordx4 s[16:19], s[0:1], {KA["wg"]}')
    k.I(f's_load_dwordx2 s[62:63], s[0:1], {KA["wd"]}')
    st = k.save_state()
    n = 328; lo = {}
    for r in C_SIDE:
        lo[r] = n; n += CNT[r]
        k.I(f's_sub_u32 s20, s2, {lo[r]}')
        k.I(f's_cmp_lt_u32 s20, {CNT[r]}')
        k.I(f's_cbranch_scc1 LC_{r}')
    k.I('s_sub_u32 s20, s2, 321')
    k.I('s_cmp_ge_u32 s20, 3')
    k.I('s_cbranch_scc1 LC_x')
    role_modfin(k)
    k.label('LC_x')
    k.I('s_endpgm')
    fns = dict(wd=lambda: role_wd(k, 62), wgu=lambda: role_wgu(k, 16, 18))
    for r in C_SIDE:
        k.label(f'LC_{r}', fresh=True); k.restore_state(st)
        fns[r]()
        stamp_end(k, 2, 4)
        k.I('s_endpgm')
    print('C roles', lo, n)
    return k, (n if C_SIDE else 324, b, 40960 if 'wd' in C_SIDE else max(l, 24576))

KERNELS = (gen_K1, gen_C4, gen_DEF)
if __name__ == '__main__':
    out = sys.argv[1] if len(sys.argv) > 1 else 'adaLN_cond__spectral_gfnet__glu_gated_bilinear__prompt.s'
    if len(sys.argv) > 2 and sys.argv[2] == 'stamps': gen.STAMPS = True
    build(out, KERNELS)
```

```python
import sys, math, os
import gen, gen2, gen4
from gen import *
from gen2 import *
from gen4 import *
from gen import mark, stamp_begin, stamp_end

N_WT5 = 128
def role_wt5(k, s_wr, s_wi):
    BS = 5136
    va = VAlloc(1)
    vl = va.get(); vo = va.get(); ra = va.get(); dst = va.get(); t0 = va.get()
    lo = va.get(24, 4); hi = va.get(24, 4)
    k.I('v_lshrrev_b32 v1, 6, v0')
    k.I('v_readfirstlane_b32 s22, v1')
    k.I(f'v_and_b32 v{vl}, 63, v0')
    k.I(f'v_lshlrev_b32 v{vo}, 4, v{vl}')
    k.I('s_and_b32 s21, s20, 7')
    k.I('s_bfe_u32 s23, s20, 0x10003')
    k.I('s_bfe_u32 s24, s20, 0x20004')
    k.I('s_lshr_b32 s25, s20, 6')
    k.I('s_lshl_b32 s26, s21, 2')
    k.I('s_add_u32 s26, s26, s22')
    k.I('s_lshl_b32 s26, s26, 3')
    k.I('s_lshl_b32 s27, s24, 1')
    k.I('s_add_u32 s26, s26, s27')
    k.I('s_add_u32 s26, s26, s23')
    k.I(f's_mul_i32 s26, s26, {BS}')
    k.I(f's_mul_i32 s27, s22, {BS}')
    k.I('s_mov_b32 m0, s27')
    k.I('s_cmp_eq_u32 s25, 0')
    k.I(f's_cselect_b32 s28, s{s_wr}, s{s_wi}')
    k.I(f's_cselect_b32 s29, s{s_wr+1}, s{s_wi+1}')
    k.I(f's_mov_b32 s30, {S * 321 * 2}')
    k.I('s_mov_b32 s31, 0x00020000')
    for i in range(4): k.I(f'buffer_load_dwordx4 v{vo}, s[28:31], s26 offen offset:{1024*i} nt lds')
    k.I('s_add_u32 m0, s27, 4096')
    k.I('s_add_u32 s26, s26, 4096')
    k.I(f'buffer_load_dwordx4 v{vo}, s[28:31], s26 offen nt lds')
    k.I('s_mov_b64 exec, 1')
    k.I(f'buffer_load_dwordx4 v{vo}, s[28:31], s26 offen offset:1024 nt lds')
    k.I('s_mov_b64 exec, -1')
    k.I(f'v_and_b32 v{t0}, 3, v0')
    k.I(f'v_mul_u32_u24 v{ra}, 1284, v{t0}')
    k.I(f'v_lshlrev_b32 v{dst}, 4, v{t0}')
    k.I(f'v_lshrrev_b32 v{t0}, 2, v0')
    k.I(f'v_lshl_add_u32 v{ra}, v{t0}, 1, v{ra}')
    W128 = env('W128', 2) if env('PARITY', 0) else 0
    if W128:
        k.I(f'v_and_b32 v{dst}, 7, v0')
        k.I(f'v_lshlrev_b32 v{dst}, 4, v{dst}')
        k.I(f'v_lshrrev_b32 v{t0}, 3, v0')
        k.I(f'v_lshl_add_u32 v{dst}, v{t0}, 14, v{dst}')
        if W128 == 2:
            k.I(f'v_and_b32 v{ra}, 7, v0')
            k.I(f'v_mul_u32_u24 v{ra}, 642, v{ra}')
            k.I(f'v_lshl_add_u32 v{ra}, v{t0}, 2, v{ra}')
    else: k.I(f'v_lshl_add_u32 v{dst}, v{t0}, 13, v{dst}')
    k.srd(32, 4, 161 * 16384 if W128 else XT_SZ, WT)
    k.I('s_lshl_b32 s36, s25, 12')
    k.I('s_lshl_b32 s37, s24, 10')
    k.I('s_add_u32 s36, s36, s37')
    k.I('s_lshl_b32 s37, s21, 7')
    k.I('s_add_u32 s36, s36, s37')
    k.I('s_lshl_b32 s37, s23, 6')
    k.I('s_add_u32 s36, s36, s37')
    if W128: k.I('s_lshl_b32 s36, s36, 1')
    k.barrier(vm=0)
    def rnd(rho):
        for ii in range(2):
            for rp in range(2):
                j = 4*rho + 2*ii + rp
                k.I(f'ds_read_u16 v{lo+j}, v{ra} offset:{(2*rp)*BS + (2 if W128 == 2 else 642)*ii + 128*rho}')
                k.I(f'ds_read_u16 v{hi+j}, v{ra} offset:{(2*rp+1)*BS + (2 if W128 == 2 else 642)*ii + 128*rho}')
    def fin(rho):
        for j in range(4): k.I(f'v_lshl_or_b32 v{lo+4*rho+j}, v{hi+4*rho+j}, 16, v{lo+4*rho+j}')
        k.I(f'buffer_store_dwordx4 {vr(lo+4*rho,4)}, v{dst}, s[32:35], s36 offen{WT_ST}')
        k.I(f's_add_u32 s36, s36, {64*8192}')
    rnd(0)
    for rho in range(5):
        if rho < 4: rnd(rho + 1)
        fin(rho)
    k.nlab = getattr(k, 'nlab', 0) + 1
    k.I('s_cmp_lg_u32 s22, 0')
    k.I('s_cbranch_scc1 Lwt_done')
    k.I(f's_mov_b64 exec, {0xff if W128 == 2 else 15}')
    rnd(5); fin(5)
    k.label('Lwt_done')

N_WD5 = 96
def role_wd5(k, s_wd, pf=False):
    va = VAlloc(100 if pf else 1)
    vl = va.get(); t0 = va.get(); t1 = va.get(); ra = va.get(); vo = va.get(); so = va.get(5)
    o = va.get(20, 4)
    k.I(f'v_lshrrev_b32 v{t0}, 6, v0')
    k.I(f'v_and_b32 v{vl}, 63, v0')
    k.I(f'v_readfirstlane_b32 s22, v{t0}')
    k.I(f'v_lshlrev_b32 v{vo}, 4, v{vl}')
    k.I('s_and_b32 s21, s20, 1')
    k.I('s_lshr_b32 s20, s20, 1')
    for p in range(5):
        k.I(f'v_add_u32 v{t0}, {64*p}, v{vl}')
        k.I(f'v_mul_u32_u24 v{t1}, 205, v{t0}')
        k.I(f'v_lshrrev_b32 v{t1}, 13, v{t1}')
        k.I(f'v_mul_u32_u24 v{t1}, 640, v{t1}')
        k.I(f'v_add_u32 v{so+p}, v{t1}, v{vo}')
    k.I('s_lshl_b32 s23, s20, 2')
    k.I('s_add_u32 s23, s23, s22')
    k.I('s_mul_i32 s23, s23, 10240')
    k.I('s_mul_i32 s24, s21, 640')
    k.I('s_add_u32 s23, s23, s24')
    k.I('s_mul_i32 s24, s22, 5120')
    k.I('s_mov_b32 m0, s24')
    k.srd(28, s_wd, F * D * 2)
    if pf:
        for p in range(4): k.I(f'buffer_load_dwordx4 {vr(o+4*p,4)}, v{so+p}, s[28:31], s23 offen offset:{1024*p}')
        k.I('s_add_u32 s23, s23, 4096')
        k.I(f'buffer_load_dwordx4 {vr(o+16,4)}, v{so+4}, s[28:31], s23 offen')
        return
    for p in range(4): k.I(f'buffer_load_dwordx4 v{so+p}, s[28:31], s23 offen offset:{1024*p}{RAW_NT} lds')
    k.I('s_add_u32 m0, s24, 4096')
    k.I('s_add_u32 s23, s23, 4096')
    k.I(f'buffer_load_dwordx4 v{so+4}, s[28:31], s23 offen{RAW_NT} lds')
    k.I(f'v_lshrrev_b32 v{t0}, 4, v{vl}')
    k.I(f'v_bfe_u32 v{t1}, v{vl}, 2, 2')
    k.I(f'v_lshl_add_u32 v{t0}, v{t0}, 3, v{t1}')
    k.I(f'v_mul_u32_u24 v{ra}, 640, v{t0}')
    k.I(f'v_and_b32 v{t0}, 3, v{vl}')
    k.I(f'v_mul_u32_u24 v{t0}, 40, v{t0}')
    k.I('s_mul_i32 s25, s22, 160')
    k.I(f'v_add3_u32 v{ra}, v{ra}, v{t0}, s25')
    k.srd(36, 4, F * D * 2, WD)
    k.I('s_lshl_b32 s26, s21, 2')
    k.I('s_add_u32 s26, s26, s22')
    k.I('s_mul_i32 s26, s26, 48')
    k.I('s_add_u32 s26, s26, s20')
    k.I('s_mul_i32 s40, s26, 5120')
    k.I('s_add_u32 s41, s40, 4096')
    k.barrier(vm=0)
    for dt in range(5):
        for hf in range(2):
            k.I(f'ds_read_b64_tr_b16 {vr(o+dt*4+2*hf,2)}, v{ra} offset:{4*hf*640+8*dt}')
    for dt in range(5):
        k.I(f'buffer_store_dwordx4 {vr(o+dt*4,4)}, v{vo}, s[36:39], s{40+(dt//4)} offen offset:{1024*(dt%4)}{SIDE_ST}')

RAW_NT = '' if env('RAW_PF', 0) else ' nt'
def role_wgu5(k, s_wg, s_wu, pf=False):
    va = VAlloc(100 if pf else 1)
    vl = va.get(); wo = va.get(3); t0 = va.get(); t1 = va.get(); t2 = va.get(); ra = va.get(); r2 = va.get(); vo = va.get()
    o = va.get(24, 4)
    k.I(f'v_lshrrev_b32 v{t0}, 6, v0')
    k.I(f'v_and_b32 v{vl}, 63, v0')
    k.I(f'v_readfirstlane_b32 s22, v{t0}')
    k.I('s_and_b32 s21, s20, 7')
    k.I('s_lshr_b32 s20, s20, 3')
    for p in range(3):
        k.I(f'v_add_u32 v{t0}, {64*p}, v{vl}')
        k.I(f'v_mul_u32_u24 v{t1}, 171, v{t0}')
        k.I(f'v_lshrrev_b32 v{t1}, 12, v{t1}')
        k.I(f'v_mul_u32_u24 v{t1}, 2688, v{t1}')
        k.I(f'v_lshl_add_u32 v{wo+p}, v{vl}, 4, v{t1}')
    k.I('s_lshl_b32 s23, s20, 2')
    k.I('s_add_u32 s23, s23, s22')
    k.I(f's_mul_i32 s23, s23, {8*3072}')
    k.I('s_mul_i32 s24, s21, 384')
    k.I('s_add_u32 s23, s23, s24')
    k.srd(28, s_wg, D * F * 2)
    k.srd(32, s_wu, D * F * 2)
    if pf:
        for p in range(3): k.I(f'buffer_load_dwordx4 {vr(o+4*p,4)}, v{wo+p}, s[28:31], s23 offen offset:{1024*p}')
        for p in range(3): k.I(f'buffer_load_dwordx4 {vr(o+12+4*p,4)}, v{wo+p}, s[32:35], s23 offen offset:{1024*p}')
        return
    k.I('s_mul_i32 s24, s22, 3072')
    k.I('s_mov_b32 m0, s24')
    for p in range(3): k.I(f'buffer_load_dwordx4 v{wo+p}, s[28:31], s23 offen offset:{1024*p}{RAW_NT} lds')
    k.I('s_add_u32 m0, s24, 12288')
    for p in range(3): k.I(f'buffer_load_dwordx4 v{wo+p}, s[32:35], s23 offen offset:{1024*p}{RAW_NT} lds')
    k.I(f'v_lshrrev_b32 v{t0}, 4, v{vl}')
    k.I(f'v_bfe_u32 v{t1}, v{vl}, 2, 2')
    k.I(f'v_lshl_add_u32 v{t0}, v{t0}, 3, v{t1}')
    k.I(f'v_mul_u32_u24 v{ra}, 384, v{t0}')
    k.I('s_mul_i32 s25, s22, 48')
    k.I(f'v_add_u32 v{ra}, s25, v{ra}')
    k.I(f'v_and_b32 v{t0}, 1, v{vl}')
    k.I(f'v_lshl_add_u32 v{r2}, v{t0}, 3, v{ra}')
    k.I(f'v_bfe_u32 v{t0}, v{vl}, 1, 1')
    k.I(f'v_mul_u32_u24 v{t0}, 12288, v{t0}')
    k.I(f'v_add_u32 v{r2}, v{r2}, v{t0}')
    k.I(f'v_and_b32 v{t0}, 3, v{vl}')
    k.I(f'v_lshl_add_u32 v{ra}, v{t0}, 3, v{ra}')
    k.I(f'v_lshlrev_b32 v{vo}, 4, v{vl}')
    k.srd(36, 4, D * 2 * F * 2, WGU)
    k.I('s_lshl_b32 s26, s21, 3')
    k.I('s_add_u32 s26, s26, s22')
    NK = 10 if env('GEN6', 0) else 20
    k.I(f's_mul_i32 s26, s26, {NK}')
    k.I('s_add_u32 s26, s26, s20')
    k.I('s_mul_i32 s26, s26, 3072')
    if NK == 10:
        k.I('s_cmp_ge_u32 s20, 10')
        k.I(f's_cselect_b32 s27, {63*30720}, 0')
        k.I('s_add_u32 s26, s26, s27')
    k.I(f's_add_u32 s27, s26, {4*NK*3072}')
    k.barrier(vm=0)
    for j in range(2):
        for mt in range(3):
            for hf in range(2):
                off = 4*hf*384 + 192*j + (12288 if mt == 1 else 0) + (32 if mt == 2 else 0)
                k.I(f'ds_read_b64_tr_b16 {vr(o+(3*j+mt)*4+2*hf,2)}, v{r2 if mt == 2 else ra} offset:{off}')
    for j in range(2):
        for mt in range(3):
            k.I(f'buffer_store_dwordx4 {vr(o+(3*j+mt)*4,4)}, v{vo}, s[36:39], s{26+j} offen offset:{1024*mt}{SIDE_ST}')
gen4.role_wgu = role_wgu5

gen4.role_wt = role_wt5; gen4.role_wd = role_wd5
gen4.CNT.update(wt=N_WT5, wd=N_WD5)
for _r in ('modr', 'wgu', 'wt'):
    if os.environ.get('CNT_' + _r): gen4.CNT[_r] = int(os.environ['CNT_' + _r])

def pack6(k, base, cs, sn, alt):
    def op(r, j, neg):
        n = neg ^ (alt and (j & 1))
        return ('-' if n else '') + f'v{r+j}'
    for p in range(2):
        k.I(f'v_cvt_pk_bf16_f32 v{base+p}, {op(sn,2*p,True)}, {op(sn,2*p+1,True)}')
        k.I(f'v_cvt_pk_bf16_f32 v{base+2+p}, {op(cs,2*p,False)}, {op(cs,2*p+1,False)}')
        k.I(f'v_cvt_pk_bf16_f32 v{base+4+p}, {op(sn,2*p,False)}, {op(sn,2*p+1,False)}')
def flip6(base): return [f'v_xor_b32 v{base+j}, s26, v{base+j}' for j in (0, 1, 4, 5)]
WIM, WRE = 0, 2

def zipemit(k, main, fill, per):
    fill = list(fill)
    for m in main:
        k.I(m)
        for _ in range(per):
            if fill: k.I(fill.pop(0))
    for f in fill: k.I(f)

def gen_C5main():
    k = Kernel('kc_kernel')
    stamp_begin(k)
    k.I('s_cmp_ge_u32 s2, 321')
    k.I('s_cbranch_scc1 LC_exit')
    k.I(f's_load_dwordx2 s[4:5], s[0:1], {KA["ws"]}')
    va = VAlloc(2)
    vl = va.get(); vo16 = va.get(); vo8 = va.get(); yo = va.get(); wq = va.get(8, 2)
    k.I('v_lshrrev_b32 v1, 6, v0')
    k.I(f'v_and_b32 v{vl}, 63, v0')
    k.I('v_readfirstlane_b32 s22, v1')
    k.I(f'v_lshlrev_b32 v{vo16}, 4, v{vl}')
    k.I(f'v_lshlrev_b32 v{vo8}, 3, v{vl}')
    k.I('s_and_b32 s20, s2, 7')
    k.I('s_lshl_b32 s20, s20, 2')
    k.I('s_bfe_u32 s21, s2, 0x20003')
    k.I('s_add_u32 s20, s20, s21')
    k.I('s_and_b32 s21, s2, 0x1e0')
    k.I('s_add_u32 s20, s20, s21')
    k.I('s_lshl_b32 s23, s22, 11')
    k.I('s_lshl_b32 s24, s20, 13')
    k.I('s_lshl_b32 s27, s22, 10')
    k.I('s_add_u32 s27, s27, s24')
    k.I('s_add_u32 s28, s27, 4096')
    k.I('s_add_u32 s24, s24, s23')
    k.I('s_mov_b32 m0, s23')
    k.I('s_cmp_eq_u32 s20, 0')
    k.I('s_cselect_b32 s25, 0, 1.0')
    k.I('s_cmp_eq_u32 s20, 320')
    k.I('s_cselect_b32 s25, 0, s25')
    k.I('s_mov_b32 s26, 0x80008000')
    fi = va.get(); fq4 = va.get(); fk = va.get(); fw16 = va.get()
    ta = va.get(2); sg2 = va.get(2, 2); tmp = va.get(8, 2); tc = tmp; ts = tmp + 4
    k.I(f'v_and_b32 v{fi}, 15, v{vl}')
    k.I(f'v_lshrrev_b32 v{yo}, 1, v{fi}')
    k.I(f'v_and_b32 v{fq4}, 0x30, v{vl}')
    k.I(f'v_add_u32 v{yo}, v{yo}, v{fq4}')
    k.I(f'v_mul_u32_u24 v{yo}, {YT_ST}, v{yo}')
    k.I(f'v_and_b32 v{ta}, 1, v{fi}')
    k.I(f'v_lshl_add_u32 v{yo}, v{ta}, 4, v{yo}')
    k.I(f's_mul_i32 s29, s22, {64*YT_ST}')
    k.I('s_lshl_b32 s30, s20, 5')
    k.I('s_add_u32 s29, s29, s30')
    k.I(f's_add_u32 s30, s29, {8*YT_ST}')
    k.I(f'v_lshlrev_b32 v{sg2}, 31, v{fi}')
    k.I(f'v_or_b32 v{sg2}, 1.0, v{sg2}')
    k.I(f'v_cvt_f32_u32 v{fi}, v{fi}')
    k.I(f'v_lshrrev_b32 v{fq4}, 2, v{fq4}')
    k.I(f'v_cvt_f32_u32 v{fq4}, v{fq4}')
    k.I(f'v_lshlrev_b32 v{fw16}, 4, v1')
    k.I(f'v_cvt_f32_u32 v{fw16}, v{fw16}')
    k.I(f'v_add_f32 v{fk}, v{fw16}, v{fi}')
    def angles(step_reg, scale, base_add, dst, q=None):
        k.I(f'v_mul_f32 v{ta}, {fhex(scale)}, v{step_reg}')
        k.I(f'v_mul_f32 v{ta+1}, v{fq4 if q is None else q}, v{ta}')
        for j in range(4): k.I(f'v_fmamk_f32 v{dst+j}, v{ta}, {fhex(float(base_add + j))}, v{ta+1}')
    def sincos(c, s):
        for j in range(4):
            k.I(f'v_cos_f32 v{c+j}, v{s+j}')
            k.I(f'v_sin_f32 v{s+j}, v{s+j}')
    def flip(c, s):
        for p in (0, 2):
            k.I(f'v_pk_mul_f32 {vr(c+p,2)}, {vr(c+p,2)}, {vr(sg2,2)} op_sel_hi:[1,0]')
            k.I(f'v_pk_mul_f32 {vr(s+p,2)}, {vr(s+p,2)}, {vr(sg2,2)} op_sel_hi:[1,0]')
    f64 = va.get(24, 2); f32 = va.get(24, 2)
    c1 = va.get(8, 2); s1 = va.get(8, 2); c2 = va.get(8, 2); s2 = va.get(8, 2)
    for kap in range(2):
        angles(fk, 1.0/64, 16*kap, ts); sincos(tc, ts)
        pack6(k, f64+6*kap, tc, ts, False)
        flip(tc, ts)
        pack6(k, f64+6*(kap+2), tc, ts, False)
        if kap == 0:
            k.srd(8, 4, XT_SZ, XT)
            k.srd(12, 4, XT_SZ, WT)
            k.I(f'buffer_load_dwordx4 v{vo16}, s[8:11], s24 offen lds', tag='x')
            k.I(f'buffer_load_dwordx4 v{vo16}, s[8:11], s24 offen offset:1024 lds', tag='x')
            for V in range(2):
                k.I(f'buffer_load_dwordx2 {vr(wq+2*V,2)}, v{vo8}, s[12:15], s27 offen offset:{512*V}')
                k.I(f'buffer_load_dwordx2 {vr(wq+4+2*V,2)}, v{vo8}, s[12:15], s28 offen offset:{512*V}')
            k.srd(16, 4, 256 * YT_ST, YT)
            mark(k, 1)
    for N in range(2):
        angles(fk, 1.0/2048, 16*N, s1+4*N); sincos(c1+4*N, s1+4*N)
    angles(fi, 1.0/32, 0, ts); sincos(tc, ts)
    pack6(k, f32+0, tc, ts, False)
    pack6(k, f32+12, tc, ts, True)
    flip(tc, ts)
    pack6(k, f32+6, tc, ts, False)
    pack6(k, f32+18, tc, ts, True)
    k.I(f'v_add_f32 v{fw16}, v{fw16}, v{fq4}')
    for N in range(2):
        if N: k.I(f'v_add_f32 v{fi}, {fhex(16.0)}, v{fi}')
        angles(fi, 1.0/2048, 0, s2+4*N, q=fw16); sincos(c2+4*N, s2+4*N)
    wa = fk
    k.I(f'v_add_u32 v{wa}, s23, v{vo16}')
    mark(k, 2)
    k.wait_tag('x')
    k.I('s_barrier')
    mark(k, 3)
    dat = va.get(32, 4); acc = va.get(16, 4); pk = va.get(8, 4)
    acc2 = dat; pk2 = dat + 16
    for N in range(2):
        for kap in range(4):
            k.I(f'ds_read_b128 {vr(dat+(2*kap+N)*4,4)}, v{vo16} offset:{2048*kap+1024*N}')
    for N in range(2):
        for kap in range(4):
            for c in range(2):
                dd = vr(acc+(2*N+c)*4, 4)
                k.I(f'{MF16} {dd}, {vr(dat+(2*kap+N)*4,4)}, {vr(f64+6*kap+(WIM if c else WRE),4)}, {dd if kap else 0}')
    for N in range(2):
        cmul4(k, acc+8*N, acc+8*N+4, c1+4*N, s1+4*N, pk+4*N, tmp, False)
        if N == 0: continue
    ms = []
    for N in range(2):
        for V in range(2):
            for c in range(2):
                dd = vr(acc2+(2*V+c)*4, 4)
                ms.append(f'{MF16} {dd}, {vr(f32+(2*V+N)*6+(WIM if c else WRE),4)}, {vr(pk+4*N,4)}, {dd if N else 0}')
    wr_ = c1; wi_ = s1
    fl = []
    for j in range(4):
        fl.append(f'v_lshlrev_b32 v{wr_+2*j}, 16, v{wq+j}')
        fl.append(f'v_and_b32 v{wr_+2*j+1}, 0xffff0000, v{wq+j}')
        fl.append(f'v_lshlrev_b32 v{wi_+2*j}, 16, v{wq+4+j}')
        fl.append(f'v_and_b32 v{wi_+2*j+1}, 0xffff0000, v{wq+4+j}')
    zipemit(k, ms, fl, 2)
    mark(k, 4)
    for w_ in range(4):
        for f in flip6(f32+6*w_)[:2 if w_ >= 2 else 4]: k.I(f)
    for V in range(2):
        cmul4(k, acc2+8*V, acc2+8*V+4, wr_+4*V, wi_+4*V, pk2+4*V, tmp, True)
        if V == 0:
            for w_ in (2, 3):
                for f in flip6(f32+6*w_)[2:]: k.I(f)
    ms = []
    for V in range(2):
        for N in range(2):
            for c in range(2):
                dd = vr(acc+(2*N+c)*4, 4)
                ms.append(f'{MF16} {dd}, {vr(pk2+4*V,4)}, {vr(f32+(2*N+V)*6+(WIM if c else WRE),4)}, {dd if V else 0}')
    fl = []
    for kap in range(4): fl += flip6(f64+6*kap)
    zipemit(k, ms, fl, 2)
    mark(k, 5)
    for N in range(2):
        cmul4(k, acc+8*N, acc+8*N+4, c2+4*N, s2+4*N, pk+4*N, tmp, True)
        k.I(f'ds_write_b128 v{wa}, {vr(pk+4*N,4)} offset:{8192+1024*N}')
    k.barrier()
    mark(k, 6)
    for N in range(2):
        for kap in range(4):
            k.I(f'ds_read_b128 {vr(dat+(2*kap+N)*4,4)}, v{vo16} offset:{8192+2048*kap+1024*N}')
    for N in range(2):
        for kap in range(4):
            for c in range(2):
                dd = vr(acc+(2*N+c)*4, 4)
                k.I(f'{MF16} {dd}, {vr(f64+6*kap+(WIM if c else WRE),4)}, {vr(dat+(2*kap+N)*4,4)}, {dd if kap else 0}')
    for N in range(2):
        re = acc+8*N; im = re+4
        for p in range(2):
            a, b = 2*p, 2*p+1
            k.I(f'v_fma_f32 v{tmp+4*p+0}, -s25, v{im+b}, v{re+a}')
            k.I(f'v_fma_f32 v{tmp+4*p+1}, s25, v{im+a}, v{re+b}')
            k.I(f'v_fma_f32 v{tmp+4*p+2}, s25, v{im+b}, v{re+a}')
            k.I(f'v_fma_f32 v{tmp+4*p+3}, -s25, v{im+a}, v{re+b}')
        for j in range(4):
            k.I(f'v_cvt_pk_bf16_f32 v{pk+4*N+j}, v{tmp+2*j}, v{tmp+2*j+1}')
        k.I(f'buffer_store_dwordx4 {vr(pk+4*N,4)}, v{yo}, s[16:19], s{29+N} offen{" sc1" if env("YT_SC1", 0) else ""}')
    stamp_end(k, 2, 4)
    k.label('LC_exit')
    k.I('s_endpgm')
    return k, (321, 256, 16384)
gen4.gen_C = gen_C5main
def gen_C5():
    k, (g, b, l) = gen4.gen_C4()
    return k, (g, b, 24576)
def gen_K15():
    k, (g, b, l) = gen4.gen_K1()
    return k, (g, b, env('K1_LDS', 26112))

from def5 import gen_DEF5
from def7 import gen_DEF7, role_tab
from def8 import gen_DEF8
gen4.MISC_EXTRA.append(role_tab)
KERNELS = (gen_K15, gen_C5, gen_DEF8 if env('POISON', 1) else gen_DEF7)
if __name__ == '__main__':
    out = sys.argv[1] if len(sys.argv) > 1 else 'adaLN_cond__spectral_gfnet__glu_gated_bilinear__prompt.s'
    if len(sys.argv) > 2 and sys.argv[2] == 'stamps': gen.STAMPS = True
    build(out, KERNELS)
```

```python
import os, math
import gen
from gen import *
from gen2 import *
from gen4 import YT, YT_ST, WS_END4, GR, unpack_gran
from gen import mark, stamp_begin, stamp_end

class Rec:
    def __init__(self): self.l = []
    def I(self, t, **kw): self.l.append(t)
def rec(fn, *a):
    r = Rec(); fn(r, *a); return r.l
def merge(k, main, fill, per):
    fill = list(fill)
    for m in main:
        k.I(m)
        for _ in range(per):
            if fill: k.I(fill.pop(0))
    return fill

import re as _re
def unpk(t):
    if isinstance(t, tuple) or not t.startswith('v_pk_'): return [t]
    m = _re.match(r'v_pk_(\w+)_f32 (.*)$', t)
    regs = [int(x) for x in _re.findall(r'v\[(\d+):\d+\]', m.group(2))]
    if m.group(1) == 'fma' and regs[0] == regs[3]: return [f'v_fmac_f32 v{regs[0]+j}, v{regs[1]+j}, v{regs[2]+j}' for j in range(2)]
    if m.group(1) == 'fma': return [f'v_fma_f32 v{regs[0]+j}, v{regs[1]+j}, v{regs[2]+j}, v{regs[3]+j}' for j in range(2)]
    return [f'v_{m.group(1)}_f32 v{regs[0]+j}, v{regs[1]+j}, v{regs[2]+j}' for j in range(2)]
def pairs(lst):
    out = []
    for t in lst:
        u = unpk(t)
        if len(u) == 2 and 'v_fma_' in u[0]: out += [[u[0]], [u[1]]]
        else: out.append(u)
    return out
def signal(k, name, cnt_sgpr, vtmp, noflush=False):
    k.I('s_barrier')
    st = k.save_state()
    k.I('s_cmp_lg_u32 s22, 0')
    k.I(f's_cbranch_scc1 L{name}_sig', noflush=noflush)
    k.I('s_mov_b64 exec, 1')
    k.I(f'buffer_atomic_add v{vtmp+1}, v{vtmp}, s[12:15], s{cnt_sgpr} offen sc1')
    k.I('s_mov_b64 exec, -1')
    if noflush: k.raw(f'L{name}_sig:')
    else: k.label(f'L{name}_sig')
    k.restore_state(st)
    k.vm.append((set(), None)) if False else None
def poll(k, name, cnt_sgpr, vtmp, vres):
    st = k.save_state()
    k.I('s_cmp_lg_u32 s22, 3')
    k.I(f's_cbranch_scc1 L{name}_done')
    k.I('s_mov_b32 s24, 0x100000')
    k.label(f'L{name}_poll')
    k.I(f'buffer_load_dword v{vres}, v{vtmp}, s[12:15], s{cnt_sgpr} offen sc1')
    k.waitcnt(vm=0)
    k.I(f'v_readfirstlane_b32 s33, v{vres}')
    k.I('s_sub_u32 s24, s24, 1')
    k.I(f's_cbranch_scc1 L{name}_done')
    k.I('s_cmp_lt_u32 s33, 16')
    k.I(f's_cbranch_scc1 L{name}_poll')
    k.label(f'L{name}_done')
    k.restore_state(st)
    k.I('s_barrier')

TAB = WS_END4
WS_END6 = TAB + 24 * 1024
class Fix:
    def __init__(self, seq): self.seq = list(seq)
    def get(self, *a): return self.seq.pop(0)
def role_tab(k):
    c0 = 24; f40 = c0; f16 = c0 + 62; cs = c0 + 68; sn = c0 + 80
    vi, vq, fi, fq, fq4, vo, t8, tmp = 2, 3, 4, 5, 6, 7, 8, 16
    k.I(f'v_and_b32 v{vi}, 15, v0')
    k.I(f'v_lshrrev_b32 v{vq}, 4, v0')
    k.I(f'v_cvt_f32_u32 v{fi}, v{vi}')
    k.I(f'v_cvt_f32_u32 v{fq}, v{vq}')
    k.I(f'v_mul_f32 v{fq4}, 4.0, v{fq}')
    k.I(f'v_lshlrev_b32 v{vo}, 4, v0')
    gen_f40(k, Fix([f40, t8, t8+4, t8+6]), fi, fq, True)
    gen_tw640(k, Fix([cs, sn, t8]), fi, fq4)
    k.I(f'v_cmp_gt_u32 vcc, 8, v{vi}')
    for r in range(4):
        k.I(f'v_cndmask_b32 v{cs+8+r}, 0, v{cs+8+r}, vcc')
        k.I(f'v_cndmask_b32 v{sn+8+r}, 0, v{sn+8+r}, vcc')
    k.I(f'v_mul_f32 v{t8}, {fhex(1.0/16)}, v{fi}')
    k.I(f'v_mul_f32 v{t8+1}, v{fq4}, v{t8}')
    for j in range(4): k.I(f'v_fmamk_f32 v{tmp+4+j}, v{t8}, {fhex(float(j))}, v{t8+1}')
    for j in range(4):
        k.I(f'v_cos_f32 v{tmp+j}, v{tmp+4+j}')
        k.I(f'v_sin_f32 v{tmp+4+j}, v{tmp+4+j}')
    for p in range(2):
        k.I(f'v_cvt_pk_bf16_f32 v{f16+p}, v{tmp+4+2*p}, v{tmp+5+2*p}')
        k.I(f'v_cvt_pk_bf16_f32 v{f16+2+p}, v{tmp+2*p}, v{tmp+1+2*p}')
        k.I(f'v_cvt_pk_bf16_f32 v{f16+4+p}, -v{tmp+4+2*p}, -v{tmp+5+2*p}')
    k.srd(24, 4, 23 * 1024, TAB)
    for i in range(23):
        if i % 4 == 0: k.I(f's_mov_b32 s28, {1024*i}')
        k.I(f'buffer_store_dwordx4 {vr(c0+4*i,4)}, v{vo}, s[24:27], s28 offen offset:{1024*(i%4)}')

XNT = ' nt' if os.environ.get('XNT') == '1' else ''
_mark = mark
def mark(k, i):
    if not env('MF', 0): _mark(k, i)
def fm(k, i):
    if env('MF', 0) == 1: _mark(k, i)
def pm(k, i):
    if env('MF', 0) == 3: _mark(k, i)
def em(k, i):
    if env('MF', 0) == 2: _mark(k, i)
def pack6(k, base, cs, sn, alt):
    def op(r, j, neg):
        n = neg ^ (alt and (j & 1))
        return ('-' if n else '') + f'v{r+j}'
    for p in range(2):
        k.I(f'v_cvt_pk_bf16_f32 v{base+p}, {op(sn,2*p,True)}, {op(sn,2*p+1,True)}')
        k.I(f'v_cvt_pk_bf16_f32 v{base+2+p}, {op(cs,2*p,False)}, {op(cs,2*p+1,False)}')
        k.I(f'v_cvt_pk_bf16_f32 v{base+4+p}, {op(sn,2*p,False)}, {op(sn,2*p+1,False)}')
WIM, WRE = 0, 2
F0 = FLAGS + 8192
WGU_B = WGU + 64 * 30720
FW = F0 + 1024
YFL = ['sc1', 'sc1 nt', 'sc0 sc1', 'sc0 sc1 nt'][env('YFL', 0)]
def hm(k, i):
    if env('MF', 0) == 5: _mark(k, i)
def cm_(k, i):
    if env('MF', 0) == 4: _mark(k, i)

HALF = env('HALF', 0)
X64 = env('X64', 1)
W128 = env('W128', 2)
def gen_DEF10():
    k = Kernel('kd_kernel')
    PL = 2592
    HB = 0; XB = 10240; SB = 122880; XL = 32768; MLD = XL + 4 * 2560; TL = MLD + 8192; CL = 81920
    W_ST = env('W_ST', 4); W_A = env('W_A', 4)
    NB1 = env('NB1', 24); W_J1 = W_J1_ = env('W_J1', 8); W_J = env('W_J', 8)
    stamp_begin(k)
    k.I('s_cmp_ge_u32 s2, 256')
    k.I('s_cbranch_scc1 LD_exit')
    k.I(f's_load_dwordx2 s[4:5], s[0:1], {KA["ws"]}')
    k.I(f's_load_dwordx2 s[6:7], s[0:1], {KA["x"]}')
    k.I(f's_load_dwordx2 s[40:41], s[0:1], {KA["out"]}')
    k.I(f's_load_dwordx2 s[62:63], s[0:1], {KA["wd"]}')
    if HALF: k.I(f's_load_dwordx4 s[36:39], s[0:1], {KA["wg"]}')
    va = VAlloc(2)
    hs = va.get(2, 2); vl = va.get(); vo16 = va.get(); vW = va.get(); vi = va.get(); vq = va.get(); oh = va.get(); oh2 = va.get(); hr = va.get()
    keep = va.n
    so = va.get(); wu = va.get(); wv = va.get(); ra = va.get(); xo = va.get(); mo = va.get(); wh = va.get(3); wx = va.get(); g0 = va.get(); g2 = va.get()
    ch = va.get(12, 4); xr = va.get(12, 2); mg = va.get(12, 4); mc = va.get(12, 4); ms = va.get(12, 4)
    d1 = va.get(24, 4); d2 = va.get(24, 4); dat = va.get(12, 2); tmp = va.get(8, 2)
    f40 = va.get(92, 4); f16 = f40 + 62; cs = f40 + 68; sn = f40 + 80
    tv = VAlloc(d1, d1 + 48)
    ta = tv.get(4); tk = tv.get(); cb_ = tv.get(); tq = tv.get(); v8 = tv.get(); vcn = tv.get(); vma = tv.get(); vmk = tv.get(2, 2)
    k.I('v_lshrrev_b32 v1, 6, v0')
    k.I(f'v_and_b32 v{vl}, 63, v0')
    k.I('v_readfirstlane_b32 s22, v1')
    k.I(f'v_lshlrev_b32 v{vo16}, 4, v{vl}')
    k.I(f'v_and_b32 v{vi}, 15, v{vl}')
    k.I(f'v_lshrrev_b32 v{vq}, 4, v{vl}')
    def scalars():
        MAP = env('MAP', 2)
        if MAP == 1:
            k.I('s_and_b32 s20, s2, 7')
            k.I('s_lshl_b32 s20, s20, 1')
            k.I('s_lshr_b32 s21, s2, 7')
            k.I('s_add_u32 s20, s20, s21')
            k.I('s_bfe_u32 s56, s2, 0x30003')
            k.I('s_bfe_u32 s57, s2, 0x10006')
        elif MAP == 4:
            k.I('s_and_b32 s20, s2, 4')
            k.I('s_lshl_b32 s20, s20, 1')
            k.I('s_lshr_b32 s21, s2, 5')
            k.I('s_add_u32 s20, s20, s21')
            k.I('s_bfe_u32 s56, s2, 0x20003')
            k.I('s_and_b32 s21, s2, 2')
            k.I('s_lshl_b32 s21, s21, 1')
            k.I('s_add_u32 s56, s56, s21')
            k.I('s_and_b32 s57, s2, 1')
        else:
            k.I('s_and_b32 s20, s2, 6')
            k.I('s_lshl_b32 s20, s20, 1')
            k.I('s_lshr_b32 s21, s2, 6')
            k.I('s_add_u32 s20, s20, s21')
            k.I('s_bfe_u32 s56, s2, 0x30003')
            k.I('s_and_b32 s57, s2, 1')
        k.I('s_lshl_b32 s21, s57, 3')
        k.I('s_add_u32 s21, s21, s56')
        k.I('s_lshl_b32 s25, s20, 4')
        k.I('s_add_u32 s3, s25, s21')
        k.I('s_lshr_b32 s25, s20, 2')
        k.I('s_lshl_b32 s25, s25, 12')
        k.I('s_lshl_b32 s24, s57, 11')
        k.I('s_add_u32 s25, s25, s24')
        k.I('s_and_b32 s24, s21, 1')
        k.I('s_lshl_b32 s24, s24, 10')
        k.I('s_add_u32 s25, s25, s24')
        k.I('s_and_b32 s24, s20, 3')
        k.I('s_lshl_b32 s24, s24, 8')
        k.I('s_add_u32 s25, s25, s24')
        k.I('s_and_b32 s24, s21, 6')
        k.I('s_lshl_b32 s24, s24, 5')
        k.I('s_add_u32 s25, s25, s24')
        k.I(f's_add_u32 s26, s25, {64*16384}')
        k.I(f's_add_u32 s27, s25, {128*16384}')
        k.I('s_lshl_b32 s23, s20, 7')
        k.I('s_lshl_b32 s24, s21, 1')
        k.I('s_add_u32 s23, s23, s24')
        k.I('s_and_b32 s24, s22, 1')
        k.I('s_lshl_b32 s24, s24, 6')
        k.I('s_add_u32 s23, s23, s24')
        k.I('s_lshr_b32 s24, s22, 1')
        k.I('s_add_u32 s23, s23, s24')
        k.I('s_mul_i32 s28, s23, 1280')
        k.I(f's_add_u32 s29, s28, {32*1280}')
        k.I(f's_mul_i32 s30, s22, 2560')
        k.I(f's_add_u32 s30, s30, {XL}')
        k.I('s_add_u32 s23, s30, 1280')
        k.I('s_lshl_b32 s31, s22, 11')
        k.I(f's_add_u32 s88, s31, {MLD}')
        k.I(f's_add_u32 s31, s31, {MODN + 2*2560}')
        k.I('s_lshl_b32 s32, s21, 2')
        k.I('s_add_u32 s32, s32, s22')
        k.I('s_mul_i32 s24, s32, 30720')
        k.I(f's_add_u32 s24, s24, {WGU}')
        k.I(f'v_add_u32 v{vW}, s24, v{vo16}')
        k.I(f's_mul_i32 s58, s20, {8*49152}')
        k.I('s_mul_i32 s24, s32, 768')
        k.I('s_add_u32 s58, s58, s24')
        k.I(f's_add_u32 s58, s58, {HH}')
        for i in range(1, 4): k.I(f's_add_u32 s{58+i}, s58, {2*i*49152}')
        k.I('s_mul_i32 s24, s22, 6144')
        k.I(f's_add_u32 s42, s24, {TL}')
        k.I(f's_add_u32 s43, s24, {TAB}')
        k.I('s_add_u32 s33, s42, 4096')
        k.I('s_add_u32 s55, s43, 4096')
        k.I('s_and_b32 s89, s2, 7')
        k.I('s_lshl_b32 s89, s89, 7')
        k.I(f's_add_u32 s89, s89, {F0}')
        k.srd(12, 4, WS_END6)
        k.srd(8, 6, S * D * 2)
        k.srd(16, 4, 161 * 16384, XT)
    def wload(n):
        m_ = n % 30
        g = [f'buffer_load_dwordx4 {ar(4*n,4)}, v{vW}, s[12:15], 0 offen offset:{1024*(m_%4)}{" sc1" if n >= 30 and HALF else ""}']
        if n == 29: g.append(f'v_add_u32 v{vW}, {WGU_B - WGU - 28672}, v{vW}')
        elif m_ % 4 == 3: g.append(f'v_add_u32 v{vW}, 0x1000, v{vW}')
        return g
    def bglist():
        o = []
        for i in range(6):
            g = [f'buffer_load_dwordx4 v{vo16}, s[12:15], s{43 if i < 4 else 55} offen offset:{1024*(i%4)} lds']
            if i % 4 == 0: g = [f's_mov_b32 m0, s{42 if i < 4 else 33}'] + g
            o.append(g)
        for c in range(2):
            o.append([f's_mov_b32 m0, s{23 if c else 30}', f'buffer_load_dwordx4 v{vo16}, s[8:11], s{28+c} offen{XNT} lds'])
            o.append(['s_mov_b64 exec, 0xffff', f'buffer_load_dwordx4 v{vo16}, s[8:11], s{28+c} offen offset:1024{XNT} lds', 's_mov_b64 exec, -1'])
        w = [wload(n) for n in range(60)]
        WF = env('W_FIRST', 8)
        global AUX_LAST
        AUX_LAST = WF + 10
        return w[:WF] + o + w[WF:]
    NBG = 70
    def topup():
        k.bg_every = 0
        k.emit_bg(max(0, NB1 - (NBG - len(k.bg))))
        assert NBG - len(k.bg) == NB1, (NBG - len(k.bg), NB1)
    k.I('s_cmp_ge_u32 s2, 161')
    st0 = k.save_state()
    k.I('s_cbranch_scc1 LWD')
    vc = VAlloc(keep)
    vo8 = vc.get(); yo = vc.get(); wa = vc.get(); vC = vc.get()
    fi = vc.get(); fq4 = vc.get(); fk = vc.get(); fw16 = vc.get(); cta = vc.get(2); sg2 = vc.get(2, 2)
    f64 = vc.get(24, 2); f32 = vc.get(24, 2)
    c1 = vc.get(8, 2); s1_ = vc.get(8, 2); c2 = vc.get(8, 2); s2_ = vc.get(8, 2)
    TK = []
    wq2 = vc.get(16, 4)
    for X in range(2):
        TK.append(dict(wq=wq2 + 8*X, dat=vc.get(32, 4), acc=vc.get(16, 4), pk=vc.get(8, 4), tmp=vc.get(8, 2)))
    tc = TK[0]['tmp']; ts = tc + 4
    k.I(f'v_lshlrev_b32 v{vo8}, 3, v{vl}')
    if W128 == 1:
        k.I(f'v_and_b32 v{yo}, 0x1c0, v{vo8}')
        k.I(f'v_add_u32 v{vo8}, v{vo8}, v{yo}')
    k.I('s_lshl_b32 s48, s2, 14')
    k.I(f's_lshl_b32 s49, s22, {11 if W128 else 10}')
    k.I('s_add_u32 s49, s49, s48')
    k.I('s_lshl_b32 s24, s22, 11')
    k.I('s_add_u32 s48, s48, s24')
    k.I(f's_add_u32 s90, s24, {CL}')
    k.I('s_mov_b32 m0, s90')
    k.I('s_cmp_eq_u32 s2, 0')
    k.I('s_cselect_b32 s50, 0, 1.0')
    k.I('s_cmp_eq_u32 s2, 160')
    k.I('s_cselect_b32 s50, 0, s50')
    k.I('s_mov_b32 s52, 0x80008000')
    k.I(f'v_lshlrev_b32 v{sg2}, 31, v{vi}')
    k.I(f'v_or_b32 v{sg2}, 1.0, v{sg2}')
    k.I(f'v_cvt_f32_u32 v{fi}, v{vi}')
    k.I(f'v_lshlrev_b32 v{fq4}, 2, v{vq}')
    k.I(f'v_cvt_f32_u32 v{fq4}, v{fq4}')
    k.I(f'v_lshlrev_b32 v{fw16}, 4, v1')
    k.I(f'v_cvt_f32_u32 v{fw16}, v{fw16}')
    k.I(f'v_add_f32 v{fk}, v{fw16}, v{fi}')
    def angles(step_reg, scale, base_add, dst, q=None):
        k.I(f'v_mul_f32 v{cta}, {fhex(scale)}, v{step_reg}')
        k.I(f'v_mul_f32 v{cta+1}, v{fq4 if q is None else q}, v{cta}')
        for j in range(4): k.I(f'v_fmamk_f32 v{dst+j}, v{cta}, {fhex(float(base_add + j))}, v{cta+1}')
    def sincos(c, s_):
        for j in range(4):
            k.I(f'v_cos_f32 v{c+j}, v{s_+j}')
            k.I(f'v_sin_f32 v{s_+j}, v{s_+j}')
    def flip(c, s_):
        for p in (0, 2):
            k.I(f'v_pk_mul_f32 {vr(c+p,2)}, {vr(c+p,2)}, {vr(sg2,2)} op_sel_hi:[1,0]')
            k.I(f'v_pk_mul_f32 {vr(s_+p,2)}, {vr(s_+p,2)}, {vr(sg2,2)} op_sel_hi:[1,0]')
    def flip6(base): return [f'v_xor_b32 v{base+j}, s52, v{base+j}' for j in (0, 1, 4, 5)]
    for kap in range(2):
        angles(fk, 1.0/64, 16*kap, ts); sincos(tc, ts)
        pack6(k, f64+6*kap, tc, ts, False)
        flip(tc, ts)
        pack6(k, f64+6*(kap+2), tc, ts, False)
        if kap == 0:
            k.srd(36, 4, 161 * 16384 if X64 else XT_SZ, XT)
            k.srd(44, 4, 161 * 16384 if W128 else XT_SZ, WT)
            if X64:
                k.I('s_add_u32 m0, s90, s24')
                k.I('s_add_u32 s48, s48, s24')
                for j in range(4): k.I(f'buffer_load_dwordx4 v{vo16}, s[36:39], s48 offen offset:{1024*j} lds', tag=('x', 1))
            for X in range(0 if X64 else 2):
                if X:
                    k.I('s_add_u32 m0, s90, 8192')
                    k.I('s_add_u32 s48, s48, 8192')
                k.I(f'buffer_load_dwordx4 v{vo16}, s[36:39], s48 offen lds', tag=('x', X))
                k.I(f'buffer_load_dwordx4 v{vo16}, s[36:39], s48 offen offset:1024 lds', tag=('x', X))
            for m_ in range(2 if W128 else 0):
                for V in range(2):
                    if W128 == 2: k.I(f'buffer_load_dwordx4 {vr(wq2+8*m_+4*V,4)}, v{vo16}, s[44:47], s49 offen offset:{1024*V}')
                    for X in range(0 if W128 == 2 else 2):
                        k.I(f'buffer_load_dwordx2 {vr(TK[X]["wq"]+4*m_+2*V,2)}, v{vo8}, s[44:47], s49 offen offset:{1024*V+64*X}')
                k.I('s_add_u32 s49, s49, 8192')
            for X in range(0 if W128 else 2):
                for m_ in range(2):
                    for V in range(2):
                        k.I(f'buffer_load_dwordx2 {vr(TK[X]["wq"]+4*m_+2*V,2)}, v{vo8}, s[44:47], s49 offen offset:{512*V}')
                    k.I('s_add_u32 s49, s49, 4096')
            cm_(k, 1)
            scalars()
            k.I('s_lshl_b32 s53, s22, 12')
            k.I('s_lshl_b32 s24, s2, 14')
            k.I('s_add_u32 s53, s53, s24')
            zz = TK[1]['dat']
            for j in range(4): k.I(f'v_mov_b32 v{zz+j}, 0')
            k.I(f'v_lshlrev_b32 v{zz+4}, 4, v0')
            k.I('s_mul_i32 s51, s2, 205')
            k.I('s_lshr_b32 s51, s51, 10')
            k.I('s_mul_i32 s51, s51, 40960')
            k.I('s_lshl_b32 s24, s2, 13')
            k.I('s_add_u32 s51, s51, s24')
            k.I(f's_add_u32 s51, s51, {H2}')
            k.I('s_cmp_lt_u32 s2, 160')
            k.I('s_cselect_b32 s51, s51, 0x7f000000')
            k.I(f'buffer_store_dwordx4 {vr(zz,4)}, v{zz+4}, s[12:15], s51 offen sc1', tag='z')
            k.I('s_add_u32 s51, s51, 4096')
            k.I(f'buffer_store_dwordx4 {vr(zz,4)}, v{zz+4}, s[12:15], s51 offen sc1', tag='z')
            k.bg = bglist(); k.bg_every = env('BGC1', 30)
    for N in range(2):
        angles(fk, 1.0/2048, 16*N, s1_+4*N); sincos(c1+4*N, s1_+4*N)
    kreal = k; LATEC = env('C_LATE', 0)
    if LATEC:
        k = Rec(); tc = TK[1]['tmp']; ts = tc + 4
    angles(fi, 1.0/32, 0, ts); sincos(tc, ts)
    pack6(k, f32+0, tc, ts, False)
    pack6(k, f32+12, tc, ts, True)
    flip(tc, ts)
    pack6(k, f32+6, tc, ts, False)
    pack6(k, f32+18, tc, ts, True)
    k.I(f'v_add_f32 v{fw16}, v{fw16}, v{fq4}')
    for N in range(2):
        if N: k.I(f'v_add_f32 v{fi}, {fhex(16.0)}, v{fi}')
        angles(fi, 1.0/2048, 0, s2_+4*N, q=fw16); sincos(c2+4*N, s2_+4*N)
    latec = []
    if LATEC:
        for t in k.l: latec += [t] if 'op_sel' not in t else [f'v_mul_f32 v{int(x)+j}, v{int(x)+j}, v{sg2}' for x in _re.findall(r'v\[(\d+):', t)[:1] for j in range(2)]
        k = kreal
    k.I(f'v_add_u32 v{vC}, {CL}, v{vo16}')
    k.I(f'v_add_u32 v{wa}, s90, v{vo16}')
    vX = hr
    k.I(f'v_and_b32 v{vX}, 0x3e0, v{vo16}')
    k.I(f'v_add_u32 v{vX}, v{vX}, v{vC}')
    k.I(f'v_and_b32 v{vo8}, 2, v{vi}')
    k.I(f'v_mul_u32_u24 v{yo}, {(8192 + 32 - 32) // 2}, v{vo8}')
    k.I(f'v_add_u32 v{yo}, v{yo}, v{vC}')
    k.I(f'v_cmp_eq_u32 vcc, 0, v{vo8}')
    k.I(f'v_mov_b32 v{fk}, s50')
    k.I(f'v_cndmask_b32 v{fk}, 1.0, v{fk}, vcc')
    k.emit_bg(env('W_C0', 0))
    cm_(k, 2)
    k.wait_tag(('x', 1))
    k.I('s_barrier')
    cm_(k, 3)
    k.bg_every = env('BGC2', 18)
    def rd(X, base): return [f'ds_read_b128 {vr(TK[X]["dat"]+(2*kap+N)*4,4)}, v{vX if X64 else vC} offset:{4096*kap+2048*N+32*X if X64 else base+8192*X+2048*kap+1024*N}' for N in range(2) for kap in range(4)]
    def st1(X, inv):
        o = []; t = TK[X]
        for N in range(2):
            for kap in range(4):
                for c in range(2):
                    dd = vr(t['acc']+(2*N+c)*4, 4); da = vr(t['dat']+(2*kap+N)*4, 4); co = vr(f64+6*kap+(WIM if c else WRE), 4)
                    o.append(f'{MF16} {dd}, {co if inv else da}, {da if inv else co}, {dd if kap else 0}')
        return o
    def st3(X):
        o = []; t = TK[X]
        for N in range(2):
            for V in range(2):
                for c in range(2):
                    dd = vr(t['dat']+(2*V+c)*4, 4)
                    o.append(f'{MF16} {dd}, {vr(f32+(2*V+N)*6+(WIM if c else WRE),4)}, {vr(t["pk"]+4*N,4)}, {dd if N else 0}')
        return o
    def st4(X):
        o = []; t = TK[X]
        for V in range(2):
            for N in range(2):
                for c in range(2):
                    dd = vr(t['acc']+(2*N+c)*4, 4)
                    o.append(f'{MF16} {dd}, {vr(t["dat"]+16+4*V,4)}, {vr(f32+(2*N+V)*6+(WIM if c else WRE),4)}, {dd if V else 0}')
        return o
    def cmx(X, src, cc, ss, dst, conj):
        o = []
        for h_ in range(2): o += rec(cmul4, src+8*h_, src+8*h_+4, cc+4*h_, ss+4*h_, dst+4*h_, TK[X]['tmp'], conj)
        if env('C_SCALAR', 0):
            o2_ = []
            for t in o:
                if 'neg_lo' in t:
                    r4 = [int(x) for x in _re.findall(r'v\[(\d+):\d+\]', t)]
                    o2_ += [f'v_fma_f32 v{r4[0]+j}, v{r4[1]+j}, -v{r4[2]+j}, v{r4[3]+j}' for j in range(2)]
                else: o2_ += unpk(t)
            o = o2_
        return o
    def wun(X):
        t = TK[X]; o = []
        for j in range(8):
            w_ = wq2 + 4*(j//2) + 2*X + (j & 1) if W128 == 2 else t["wq"] + j
            o.append(f'v_lshlrev_b32 v{t["acc"]+2*j}, 16, v{w_}')
            o.append(f'v_and_b32 v{t["acc"]+2*j+1}, 0xffff0000, v{w_}')
        return o
    def outs(X):
        t = TK[X]; o = []; fl_ = f'v{fk}'
        for N in range(2):
            re = t['acc']+8*N; im = re+4; tm = t['tmp']
            for p in range(2):
                a_, b_ = 2*p, 2*p+1
                o.append(f'v_fma_f32 v{tm+4*p+0}, -v{im+b_}, {fl_}, v{re+a_}')
                o.append(f'v_fma_f32 v{tm+4*p+1}, v{im+a_}, {fl_}, v{re+b_}')
                o.append(f'v_fma_f32 v{tm+4*p+2}, v{im+b_}, {fl_}, v{re+a_}')
                o.append(f'v_fma_f32 v{tm+4*p+3}, -v{im+a_}, {fl_}, v{re+b_}')
            for j in range(4): o.append(f'v_cvt_pk_bf16_f32 v{t["pk"]+4*N+j}, v{tm+2*j}, v{tm+2*j+1}')
        return o
    def mg_(main, fill, per):
        for t in merge(k, main, fill, per): k.I(t)
    A_, B_ = TK
    PER = env('C_PER', 2); P3 = env('C_P3', 3)
    NL0 = env('C_L0', 22)
    for t in rd(0, 0) + rd(1, 0)[:7]: k.I(t)
    for t in latec[:NL0]: k.I(t)
    mg_(st1(0, False) + st1(1, False)[:4], rd(1, 0)[7:] + latec[NL0:], env('C_LP', 2))
    mg_(st1(1, False)[4:], cmx(0, A_['acc'], c1, s1_, A_['pk'], False), PER)
    mg_(st3(0), wun(0) + cmx(1, B_['acc'], c1, s1_, B_['pk'], False), P3)
    cm_(k, 4)
    mg_(st3(1), wun(1) + cmx(0, A_['dat'], A_['acc'], A_['acc']+8, A_['dat']+16, True), P3)
    for w_ in range(4):
        for t in flip6(f32+6*w_): k.I(t)
    mg_(st4(0), cmx(1, B_['dat'], B_['acc'], B_['acc']+8, B_['dat']+16, True), P3)
    fl64 = []
    for kap in range(4): fl64 += flip6(f64+6*kap)
    ca = cmx(0, A_['acc'], c2, s2_, A_['pk'], True)
    mg_(st4(1), fl64[:8] + ca, P3)
    cm_(k, 5)
    for N in range(2): k.I(f'ds_write_b128 v{wa}, {vr(A_["pk"]+4*N,4)} offset:{16384+1024*N}')
    for t in cmx(1, B_['acc'], c2, s2_, B_['pk'], True): k.I(t)
    for N in range(2): k.I(f'ds_write_b128 v{wa}, {vr(B_["pk"]+4*N,4)} offset:{16384+8192+32+1024*N}')
    for t in fl64[8:]: k.I(t)
    k.wait_tag('z')
    k.barrier()
    cm_(k, 6)
    def rd2(e): return [f'ds_read_b128 {vr(TK[e]["dat"]+(2*kap+N)*4,4)}, v{yo} offset:{16384+32*e+2048*kap+1024*N}' for N in range(2) for kap in range(4)]
    def ost(e):
        o = outs(e); r_ = []
        for N in range(2):
            r_ += o[12*N:12*N+12] + [f'v_or_b32 v{TK[e]["pk"]+4*N}, 1, v{TK[e]["pk"]+4*N}',
                  (f'buffer_store_dwordx4 {vr(TK[e]["pk"]+4*N,4)}, v{vo16}, s[16:19], s53 offen offset:{2048*N+1024*e} sc1', 'y')]
        return r_
    def em_(t):
        if isinstance(t, tuple): k.I(t[0], tag=t[1])
        else: k.I(t)
    for t in rd2(0): k.I(t)
    mg_(st1(0, True), rd2(1), 1)
    topup()
    fill = ost(0)
    for j, m_ in enumerate(st1(1, True)):
        k.I(m_)
        for _ in range(PER):
            if fill: em_(fill.pop(0))
    for t in fill + ost(1): em_(t)
    cm_(k, 7)
    k.emit_bg(W_J1)
    def dpro():
        k.bg_every = 0
        k.I(f'v_lshrrev_b32 v{so}, 2, v0')
        k.I(f'v_lshlrev_b32 v{so}, 14, v{so}')
        k.I(f'v_and_b32 v{ta+1}, 3, v0')
        k.I(f'v_lshl_add_u32 v{so}, v{ta+1}, 4, v{so}')
        k.I(f'v_lshrrev_b32 v{ta+1}, 1, v0')
        k.I(f'v_cmp_ge_u32 s[34:35], 64, v{ta+1}')
        k.I(f'v_mov_b32 v{ch+8}, -1')
        k.I(f'v_add_u32 v{vma}, s88, v{vo16}')
        k.I(f'v_mov_b32 v{hs}, 0')
        k.I(f'v_mov_b32 v{hs+1}, 1')
        k.bg_every = 6
        nleft = len(k.bg); hold = k.bg[W_J:]; k.bg = k.bg[:W_J]
        addr = []
        A = addr.append
        A(f'v_lshrrev_b32 v{tq}, 1, v{vq}')
        A(f'v_mad_u32_u24 v{cb_}, v{vi}, 5, v{tq}')
        A(f'v_and_b32 v{tk}, 1, v{vq}')
        A(f'v_mul_u32_u24 v{oh}, 49152, v{tk}')
        A(f'v_lshlrev_b32 v{oh2}, 2, v{oh}')
        A(f'v_lshl_add_u32 v{oh}, v{tq}, 8, v{oh}')
        A(f'v_lshl_add_u32 v{oh}, v{vi}, 4, v{oh}')
        A(f'v_mul_u32_u24 v{tq}, 49152, v{tq}')
        A(f'v_add_u32 v{oh2}, v{oh2}, v{tq}')
        A(f'v_lshl_add_u32 v{oh2}, v{vi}, 4, v{oh2}')
        A(f'v_lshl_add_u32 v{tk}, v1, 1, v{tk}')
        for T in range(3):
            A(f'v_add_u32 v{tq}, {2*T}, v{cb_}')
            A(f'v_xor_b32 v{wh+T}, v{tq}, v{tk}')
            A(f'v_and_b32 v{wh+T}, 7, v{wh+T}')
            A(f'v_lshl_add_u32 v{wh+T}, v{tq}, 3, v{wh+T}')
            A(f'v_lshlrev_b32 v{wh+T}, 4, v{wh+T}')
            A(f'v_add_u32 v{wh+T}, {SB}, v{wh+T}')
        A(f'v_mul_u32_u24 v{wx}, 1280, v{tk}')
        A(f'v_lshl_add_u32 v{wx}, v{cb_}, 4, v{wx}')
        A(f'v_add_u32 v{wx}, {SB}, v{wx}')
        A(f'v_lshrrev_b32 v{tq}, 3, v0')
        A(f'v_xor_b32 v{g0}, v{tq}, v0')
        A(f'v_and_b32 v{g0}, 7, v{g0}')
        A(f'v_lshlrev_b32 v{g0}, 4, v{g0}')
        A(f'v_lshl_add_u32 v{g0}, v{tq}, 8, v{g0}')
        for t in addr: k.I(t)
        k.I(f'v_and_b32 v{ta}, 1, v0')
        k.I(f'v_mul_u32_u24 v{wu}, {2*PL}, v{ta}')
        k.I(f'v_sub_u32 v{wv}, 384, v{ta+1}')
        k.I(f'v_lshl_add_u32 v{wv}, v{wv}, 2, v{wu}')
        k.I(f'v_lshl_add_u32 v{wu}, v{ta+1}, 2, v{wu}')
        k.I(f's_mul_i32 s24, s22, {PL}')
        k.I(f'v_lshl_add_u32 v{ra}, v{vl}, 2, s24')
        k.I(f'v_mov_b32 v{dat+10}, 0'); k.I(f'v_mov_b32 v{dat+11}, 0')
        k.I(f'v_mul_u32_u24 v{xo}, 80, v{vi}')
        k.I(f'v_lshl_add_u32 v{xo}, v{vq}, 3, v{xo}')
        k.I(f'v_lshlrev_b32 v{mo}, 1, v{xo}')
        k.I(f'v_add_u32 v{xo}, s30, v{xo}')
        for j in range(8, 12): k.I(f'v_mov_b32 v{xr+j}, 0')
        k.emit_bg(99); k.bg_every = 0; k.bg = hold
    dpro()
    if env('Y_ACK', 0): k.wait_tag('y')
    k.label('LJOIN')
    def yloads():
        k.I('s_mov_b32 m0, s88')
        k.I(f'buffer_load_dwordx4 v{vo16}, s[12:15], s31 offen sc1 lds')
        k.I(f'buffer_load_dwordx4 v{vo16}, s[12:15], s31 offen offset:1024 sc1 lds')
        for rho in range(3):
            if rho == 2: k.I('s_mov_b64 exec, s[34:35]')
            k.I(f'buffer_load_dwordx4 {vr(ch+4*rho,4)}, v{so}, s[16:19], s{25+rho} offen {YFL}')
        k.I('s_mov_b64 exec, -1')
    def ycheck():
        k.I(f'v_and_b32 v{tq}, v{ch}, v{ch+4}')
        k.I(f'ds_read2st64_b32 {vr(vmk,2)}, v{vma} offset0:0 offset1:4')
        k.I(f'v_and_b32 v{tq}, v{tq}, v{ch+8}')
        k.I(f'v_and_b32 v{tq}, 1, v{tq}')
        k.I(f'v_add_u32 v{tq}, -1, v{tq}')
        k.I(f'v_max3_u32 v{tq}, v{tq}, v{vmk}, v{vmk+1}')
        k.I(f'v_cmp_eq_u32 s[62:63], -1, v{tq}')
        k.I('s_cmp_lg_u64 s[62:63], 0')
    yloads()
    if HALF: k.I(f'buffer_load_dword v{hr}, v{hs}, s[12:15], s89 offen offset:1024 sc1')
    W_Y = env('W_Y', 0)
    k.emit_bg(W_Y)
    mark(k, 1)
    tb_ = g2
    k.I(f'v_add_u32 v{tb_}, {TL}, v{vo16}')
    k.I('s_mov_b32 s50, 0')
    assert NB1 + W_J1 + W_J >= AUX_LAST
    nyoung = 5 + HALF + W_Y + (NB1 + W_J1 + W_J - AUX_LAST)
    if len(k.vm) > nyoung: k.waitcnt(vm=nyoung)
    k.I('s_barrier')
    tl = [f'ds_read_b128 {vr(f40+4*i,4)}, v{tb_} offset:{1024*i}' for i in range(23)]
    for T in range(3):
        if T == 2: k.I('s_mov_b32 exec_hi, 0')
        for c in range(2):
            k.I(f'ds_read_b64 {vr(xr+(2*T+c)*2,2)}, v{xo} offset:{1280*c+32*T}')
    k.I('s_mov_b64 exec, -1')
    for t in tl[:8]: k.I(t)
    xf = d2
    assert tv.n <= d2
    for i in range(12):
        k.I(f'v_lshlrev_b32 v{xf+2*i}, 16, v{xr+i}')
        k.I(f'v_and_b32 v{xf+2*i+1}, 0xffff0000, v{xr+i}')
        k.I(tl[8 + i])
    for t in tl[20:]: k.I(t)
    d2 = f40
    cm_(k, 8)
    ycheck()
    k.I('s_cbranch_scc1 LY_slow')
    k.label('LY_ok')
    mark(k, 2); cm_(k, 9)
    for rho in range(3):
        if rho == 2: k.I('s_mov_b64 exec, s[34:35]')
        for pr in range(2):
            k.I(f'ds_write_b32 v{wu}, v{ch+4*rho+2*pr} offset:{pr*PL+512*rho}')
            k.I(f'ds_write_b32 v{wv}, v{ch+4*rho+2*pr+1} offset:{pr*PL+512*(2-rho)}')
    k.I('s_mov_b64 exec, -1')
    k.I(f'v_lshlrev_b32 v{so}, 4, v0')
    k.I(f'v_add_u32 v{so}, {SB}, v{so}')
    def gochk():
        k.I(f'v_readfirstlane_b32 s24, v{hr}')
        k.I('s_cmp_lg_u32 s24, 1')
        k.I('s_cbranch_scc1 LF0_slow')
        k.label('LF0_ok')
    if HALF: gochk()
    k.barrier()
    mark(k, 3)
    for p in range(5):
        k.I(f'ds_read2st64_b32 {vr(dat+2*p,2)}, v{ra} offset0:{2*p} offset1:{2*p+1}')
    def s1(T):
        o = []
        for kap in range(3):
            for c in range(2):
                dd = vr(d1 + (2*T+c)*4, 4)
                o.append(f'{MF16} {dd}, {vr(dat+4*kap,4)}, {vr(f40+(2*T+c)*10+4*kap,4)}, {dd if kap else 0}')
        return o
    k.bg_every = env('BG2', 12)
    mr = [f'ds_read_b128 {vr(mg+4*T,4)}, v{mo} offset:{MLD+64*T}' for T in range(3)]
    mr += [f'ds_read_b128 {vr(ms+4*T,4)}, v{mo} offset:{MLD+2560+64*T}' for T in range(3)]
    mr += [f'ds_read_b128 {vr(mc+4*T,4)}, v{mo} offset:{MLD+5120+64*T}' for T in range(3)]
    for t in s1(0)[:6]: k.I(t)
    rest = merge(k, s1(1), mr, 2)
    for t in rest: k.I(t)
    a2 = ch
    cm = [rec(cmul4, d1+8*T, d1+8*T+4, cs+4*T, sn+4*T, a2+4*T, tmp, True) for T in range(3)]
    def s2(T): return [f'{MF16} {vr(d2+(2*T+c)*4,4)}, {vr(a2+4*T,4)}, {vr(f16+(0 if c else 2),4)}, 0' for c in range(2)]
    for t in s1(2) + cm[0] + s2(0) + cm[1] + s2(1) + cm[2] + s2(2): k.I(t)
    st_ = f40 + 24
    for T in range(3):
        for c in range(2):
            for p in (0, 2):
                r = (2*T+c)*4+p
                k.I(f'v_pk_fma_f32 {vr(xf+r,2)}, {vr(d2+r,2)}, {vr(mg+4*T+p,2)}, {vr(xf+r,2)}')
        for c in range(2):
            r = xf+(2*T+c)*4
            if T == 0:
                k.I(f'v_pk_add_f32 {vr(st_+2*c,2)}, {vr(r,2)}, {vr(r+2,2)}')
                k.I(f'v_pk_mul_f32 {vr(st_+4+2*c,2)}, {vr(r,2)}, {vr(r,2)}')
            else:
                k.I(f'v_pk_add_f32 {vr(st_+2*c,2)}, {vr(st_+2*c,2)}, {vr(r,2)}')
                k.I(f'v_pk_fma_f32 {vr(st_+4+2*c,2)}, {vr(r,2)}, {vr(r,2)}, {vr(st_+4+2*c,2)}')
        for c in range(2):
            r = xf+(2*T+c)*4+2
            if T: k.I(f'v_pk_add_f32 {vr(st_+2*c,2)}, {vr(st_+2*c,2)}, {vr(r,2)}')
            k.I(f'v_pk_fma_f32 {vr(st_+4+2*c,2)}, {vr(r,2)}, {vr(r,2)}, {vr(st_+4+2*c,2)}')
    for i in range(4): k.I(f'v_add_f32 v{st_+2*i}, v{st_+2*i}, v{st_+2*i+1}')
    wave_reduce_to_sgpr(k, [st_, st_+2, st_+4, st_+6], [46, 47, 48, 49])
    po = d1; ph = d1 + 12; hn = d2
    rr = f40 + 32; nmr = f40 + 34
    ln_scalars(k, 46, 48, rr, nmr, tmp)
    k.I(f'v_mov_b32 v{rr+4}, v{rr+1}')
    k.I(f'v_mov_b32 v{nmr+4}, v{nmr+1}')
    for T in range(3):
        for c in range(2):
            for p in (0, 2):
                r = (2*T+c)*4+p
                k.I(f'v_pk_fma_f32 {vr(hn+r,2)}, {vr(xf+r,2)}, {vr(rr+4*c,2)}, {vr(nmr+4*c,2)} op_sel_hi:[1,0,0]')
        for c in range(2):
            for p in (0, 2):
                r = hn+(2*T+c)*4+p
                k.I(f'v_pk_fma_f32 {vr(r,2)}, {vr(r,2)}, {vr(mc+4*T+p,2)}, {vr(ms+4*T+p,2)}')
        for j in range(4):
            k.I(f'v_cvt_pk_bf16_f32 v{ph+4*T+j}, v{hn+8*T+2*j}, v{hn+8*T+2*j+1}')
        if T:
            k.I(f'v_permlane16_swap_b32 v{ph+4*T-4}, v{ph+4*T-2}')
            k.I(f'v_permlane16_swap_b32 v{ph+4*T-3}, v{ph+4*T-1}')
            k.I(f'v_or_b32 v{ph+4*T-4}, 1, v{ph+4*T-4}')
            k.I(f'ds_write_b128 v{wh+T-1}, {vr(ph+4*T-4,4)} offset:{HB}')
    k.bg_every = 0
    for j in range(2): k.I(f'v_cvt_pk_bf16_f32 v{po+j}, v{xf+2*j}, v{xf+2*j+1}')
    k.I(f'v_permlane16_swap_b32 v{ph+8}, v{ph+10}')
    k.I(f'v_permlane16_swap_b32 v{ph+9}, v{ph+11}')
    k.I(f'v_or_b32 v{ph+8}, 1, v{ph+8}')
    k.I('s_mov_b32 exec_hi, 0')
    k.I(f'ds_write_b128 v{wh+2}, {vr(ph+8,4)} offset:{HB}')
    k.I('s_mov_b64 exec, -1')
    k.I('s_lshr_b32 s42, s3, 1')
    k.I('s_mul_i32 s42, s42, 20480')
    k.I('s_and_b32 s24, s21, 1')
    k.I('s_lshl_b32 s24, s24, 7')
    k.I('s_add_u32 s42, s42, s24')
    k.I(f's_add_u32 s42, s42, {H2}')
    k.I('s_add_u32 s44, s42, 8192')
    k.I('s_add_u32 s45, s42, 16384')
    if not HALF: k.I(f'buffer_load_dword v{hr}, v{hs}, s[12:15], s89 offen offset:1024 sc1')
    k.barrier()
    mark(k, 4); hm(k, 1)
    sd = mg
    for rho in range(3):
        k.I(f'ds_read_b128 {vr(sd+4*rho,4)}, v{so} offset:{HB+4096*rho}')
    for j in range(2, 12): k.I(f'v_cvt_pk_bf16_f32 v{po+j}, v{xf+2*j}, v{xf+2*j+1}')
    k.I(f'buffer_store_dwordx4 {vr(sd,4)}, v{g0}, s[12:15], s42 offen sc1', tag='h2')
    k.I(f'buffer_store_dwordx4 {vr(sd+4,4)}, v{g0}, s[12:15], s44 offen sc1', tag='h2')
    k.I('s_cmp_lt_u32 s22, 2')
    k.I('s_cselect_b64 exec, -1, 0')
    k.I(f'buffer_store_dwordx4 {vr(sd+8,4)}, v{g0}, s[12:15], s45 offen sc1', tag='h2')
    k.I('s_mov_b64 exec, -1')
    hm(k, 2)
    for T in range(3):
        k.I(f'v_permlane16_swap_b32 v{po+4*T}, v{po+4*T+2}')
        k.I(f'v_permlane16_swap_b32 v{po+4*T+1}, v{po+4*T+3}')
    for T in range(3):
        if T == 2: k.I('s_mov_b32 exec_hi, 0')
        k.I(f'ds_write_b128 v{wx}, {vr(po+4*T,4)} offset:{XB+32*T}')
    k.I('s_mov_b64 exec, -1')
    k.I(f's_add_u32 s24, s30, {SB + XB - XL}')
    k.I(f'v_add_u32 v{g2}, s24, v{vo16}')
    k.I('s_mul_i32 s43, s3, 10240')
    k.I(f's_add_u32 s43, s43, s30')
    k.I(f's_add_u32 s29, s43, {X1 - XL}')
    k.waitcnt(lgkm=0)
    sx = 244
    for i in range(3): k.I(f'ds_read_b128 {vr(sx+4*i,4)}, v{g2} offset:{1024*i}')
    def x1st():
        for i in range(3):
            if i == 2: k.I('s_mov_b32 exec_hi, 0')
            k.I(f'buffer_store_dwordx4 {vr(sx+4*i,4)}, v{vo16}, s[12:15], s43 offen offset:{1024*i} sc1')
        k.I('s_mov_b64 exec, -1')
    k.I('s_mul_i32 s24, s20, 163840')
    k.I(f's_add_u32 s24, s24, {H2}')
    k.I('s_add_u32 s16, s4, s24')
    k.I('s_addc_u32 s17, s5, 0')
    k.I('s_mov_b32 s18, 163840')
    k.I('s_mov_b32 s19, 0x00020000')
    k.I('s_and_b32 s52, s22, 2')
    k.I('s_add_u32 s52, s52, s22')
    k.I('s_mul_i32 s52, s52, 20480')
    k.I('s_add_u32 s53, s52, 40960')
    k.I('s_lshl_b32 s54, s20, 8')
    k.I(f's_add_u32 s54, s54, {FLAGS}')
    k.I('s_add_u32 s55, s54, 4096')
    k.I('s_add_u32 s51, s54, 128')
    k.srd(36, 40, S * D * 2)
    hm(k, 3)
    k.emit_bg(W_ST)
    hm(k, 4)
    va = VAlloc(keep)
    rb = [va.get(), va.get()]; vD = va.get()
    oo = va.get(); ox = va.get(); lw = va.get(); lr = va.get(); t0 = va.get(); t1 = va.get()
    act = va.get(32, 4); accs = [va.get(48, 4), va.get(48, 4)]; pk = va.get(12, 4)
    gb = va.get(8, 4); x1r = va.get(16, 4)
    NV = (256 - va.n) // 4
    wdv = va.get(4 * NV, 4)
    def wdreg(n): return vr(wdv + 4*n, 4) if n < NV else ar(4*(n - NV), 4)
    def emit(grp):
        for t in grp:
            if isinstance(t, tuple): k.I(t[0], tag=t[1])
            else: k.I(t)
    def dma(ps, g):
        out = []
        for j in range(4):
            gr = [(f'buffer_load_dwordx4 v{vo16}, s[16:19], m0 offen offset:{1024*j} sc1 lds', ('a', ps, g, j // 2))]
            if j == 0: gr = [f's_add_u32 m0, s{52+ps}, {4096*g}'] + gr
            out.append(gr)
        return out
    NPRE = 2
    if env('H1_FLAG', 0):
        k.wait_tag('h2')
        signal(k, 'H1', 54, hs)
        k.emit_bg(env('W_PL', 6))
        poll(k, 'H1p', 54, hs, hr)
    if env('H_ACK', 1): k.wait_tag('h2')
    k.emit_bg(env('W_H', 0))
    hm(k, 5)
    for g in range(NPRE):
        for grp in dma(0, g): emit(grp)
    k.emit_bg(W_A)
    if not HALF: gochk()
    hm(k, 6)
    late = list(k.bg); k.bg = []
    print('late weight loads', len(late), 'NV', NV)
    k.I(f'v_mov_b32 v{rb[0]}, v{vo16}')
    k.I(f'v_add_u32 v{rb[1]}, {4*20480}, v{vo16}')
    def aread(ps, i, kap):
        off = ((i & 1) + 2*ps) * 20480 + 1024*kap
        base = rb[i >> 1]
        return f'ds_read_b128 {vr(act+16*(kap&1)+4*i,4)}, v{base} offset:{off - (40960 if ps else 0)}'
    k.I('s_lshl_b32 s24, s56, 2')
    k.I('s_add_u32 s24, s24, s22')
    k.I('s_mul_i32 s24, s24, 61440' if not env('W_SAME', 0) & 2 else 's_mul_i32 s24, s22, 61440')
    k.I(f's_add_u32 s24, s24, {WD}')
    k.I(f'v_add_u32 v{vD}, s24, v{vo16}')
    def dload(n):
        if env('NO_WD', 0): return [f'v_add_u32 v{vD}, 0, v{vD}']
        g = [f'buffer_load_dwordx4 {wdreg(n)}, v{vD}, s[12:15], 0 offen offset:{1024*(n%4)} sc1']
        if n % 4 == 3: g.append(f'v_add_u32 v{vD}, 0x1000, v{vD}')
        return g
    ND0 = env('WD_EARLY', 0)
    assert wdv + 4 * ND0 <= sx
    for n in range(ND0): emit(dload(n))
    RS = 336; PT = 16 * RS
    k.I('s_lshl_b32 s24, s20, 1')
    k.I('s_add_u32 s24, s24, s57')
    k.I('s_lshl_b32 s24, s24, 2')
    k.I(f's_mul_i32 s33, s22, {12*1024}')
    k.I(f's_add_u32 s33, s33, {HH}')
    k.I('s_mul_i32 s42, s24, 49152')
    k.I('s_add_u32 s42, s42, s33')
    for i in range(1, 4): k.I(f's_add_u32 s{42+i}, s42, {49152*i}')
    k.I(f'v_mul_u32_u24 v{t0}, 26, v{vl}')
    k.I(f'v_lshrrev_b32 v{t0}, 8, v{t0}')
    k.I(f'v_mul_u32_u24 v{t1}, 10, v{t0}')
    k.I(f'v_sub_u32 v{t1}, v{vl}, v{t1}')
    k.I(f'v_mul_u32_u24 v{lr}, {RS}, v{t0}')
    k.I(f'v_lshl_add_u32 v{lr}, v{t1}, 4, v{lr}')
    k.I(f's_mul_i32 s25, s22, {4*RS}')
    k.I(f'v_add_u32 v{lr}, s25, v{lr}')
    k.I(f'v_mul_u32_u24 v{ox}, 1280, v{t0}')
    k.I(f'v_lshl_add_u32 v{ox}, v{t1}, 4, v{ox}')
    k.I(f'v_mul_u32_u24 v{oo}, {32*1280}, v{t0}')
    k.I(f'v_lshl_add_u32 v{oo}, v{t1}, 4, v{oo}')
    k.I(f'v_lshlrev_b32 v{t1}, 5, v{t1}')
    k.I(f'v_mul_u32_u24 v{lw}, {RS}, v{vi}')
    k.I(f's_mul_i32 s25, s22, {PT}')
    k.I(f'v_add_u32 v{lw}, s25, v{lw}')
    lw2 = t0
    k.I(f'v_mul_u32_u24 v{hr}, 5, v{vq}')
    k.I(f'v_add_u32 v{lw2}, 1, v{hr}')
    k.I(f'v_lshrrev_b32 v{lw2}, 1, v{lw2}')
    k.I(f'v_lshl_add_u32 v{lw2}, v{lw2}, 4, v{lw}')
    k.I(f'v_lshrrev_b32 v{hr}, 1, v{hr}')
    k.I(f'v_lshl_add_u32 v{lw}, v{hr}, 4, v{lw}')
    k.I(f'v_and_b32 v{hr}, 1, v{vq}')
    k.I(f'v_mul_u32_u24 v{hr}, 160, v{hr}')
    k.I(f'v_add_u32 v{lw}, v{lw}, v{hr}')
    k.I(f'v_sub_u32 v{lw2}, v{lw2}, v{hr}')
    k.I(f'v_add_u32 v{lw2}, 160, v{lw2}')
    k.I('s_mul_i32 s30, s56, 160')
    k.I('s_lshl_b32 s25, s24, 2')
    k.I('s_add_u32 s25, s25, s22')
    k.I(f's_mul_i32 s46, s25, {4*1280}')
    k.I('s_add_u32 s46, s46, s30')
    k.I(f's_add_u32 s46, s46, {X1}')
    for i in range(1, 4): k.I(f's_add_u32 s{46+i}, s46, {16*1280*i}')
    k.I('s_lshl_b32 s25, s20, 7')
    k.I('s_lshl_b32 s26, s57, 4')
    k.I('s_add_u32 s25, s25, s26')
    k.I('s_add_u32 s25, s25, s22')
    k.I('s_mul_i32 s25, s25, 1280')
    k.I('s_add_u32 s25, s25, s30')
    for i in range(1, 4): k.I(f's_add_u32 s{25+i}, s25, {4*1280*i}')
    k.I('s_lshl_b32 s30, s30, 1')
    k.I(f's_add_u32 s30, s30, {5*2560}')
    vx3 = x1r + 14
    k.I(f'v_cmp_gt_u32 vcc, 32, v{vl}')
    k.I(f'v_mov_b32 v{vx3}, 0x7ff00000')
    k.I(f'v_cndmask_b32 v{vx3}, v{vx3}, v{vo16}, vcc')
    k.I('s_mov_b32 s34, -1')
    k.I('s_mov_b32 s35, 0xff')
    vck = x1r; vad = x1r + 15
    k.I(f'v_add_u32 v{vad}, s52, v{vo16}')
    slow = []
    def validate(name, groups):
        o = []; n = 0
        for g in groups:
            for j in range(2):
                o.append([f'ds_read2st64_b32 {vr(vck+n,2)}, v{vad} offset0:{16*g+8*j} offset1:{16*g+8*j+4}']); n += 2
        i = 1
        while i < n:
            if i + 1 < n: o.append([f'v_bitop3_b32 v{vck}, v{vck}, v{vck+i}, v{vck+i+1} bitop3:0x80']); i += 2
            else: o.append([f'v_bitop3_b32 v{vck}, v{vck}, v{vck+i}, 1 bitop3:0x80']); i += 1
        o.append([f'v_cmp_eq_u32 s[62:63], 0, v{vck}'])
        o.append(['s_nop 0'])
        o.append(['s_cmp_lg_u64 s[62:63], 0', ('BR', f's_cbranch_scc1 L{name}_slow', f'L{name}_ok')])
        slow.append((name, groups))
        return o
    _emit = emit
    def emit(grp):
        for t in grp:
            if isinstance(t, tuple) and t[0] == 'GRP': emit(t[1])
            elif isinstance(t, tuple) and t[0] == 'BR':
                k.I(t[1], noflush=True); k.raw(t[2] + ':')
            else: _emit([t])
    V0 = [0] if env('V0_ONE', 1) else [0, 1]
    mark(k, 5); hm(k, 7)
    k.wait_tag('h2')
    k.wait_tag(('a', 0, V0[-1], 1))
    mark(k, 6); hm(k, 8)
    for g in validate('V0', V0): emit(g)
    if env('H1_FLAG', 0): k.I('s_barrier')
    else: signal(k, 'H1', 54, hs)
    mark(k, 7); hm(k, 9)
    for kp_ in range(2):
        for i in range(4): k.I(aread(0, i, kp_))
    def epi(ps):
        acc = accs[ps]; o = []
        for pr in range(2):
            for j in range(2):
                i = 2*pr + j
                g_ = acc + i*4; u_ = acc + (4+i)*4
                for p in (0, 2): o.append(f'v_pk_mul_f32 {vr(g_+p,2)}, {vr(g_+p,2)}, {vr(u_+p,2)}')
            a_ = acc + (8+2*pr)*4; b_ = a_ + 4
            for r in range(4): o.append(f'v_permlane32_swap_b32 v{a_+r}, v{b_+r}')
            for j in range(2):
                g_ = acc + (2*pr+j)*4
                for p in (0, 2): o.append(f'v_cvt_pk_bf16_f32 v{pk+4*pr+2*j+p//2}, v{g_+p}, v{g_+p+1}')
            for p in (0, 2): o.append(f'v_pk_mul_f32 {vr(a_+p,2)}, {vr(a_+p,2)}, {vr(b_+p,2)}')
            o.append(f'v_permlane16_swap_b32 v{pk+4*pr}, v{pk+4*pr+2}')
            o.append(f'v_permlane16_swap_b32 v{pk+4*pr+1}, v{pk+4*pr+3}')
            for p in (0, 2): o.append(f'v_cvt_pk_bf16_f32 v{pk+8+2*pr+p//2}, v{a_+p}, v{a_+p+1}')
            o.append((f'buffer_store_dwordx4 {vr(pk+4*pr,4)}, v{oh}, s[12:15], s{58+2*pr+ps} offen sc1', ('h', ps)))
        o.append(f'v_permlane16_swap_b32 v{pk+8}, v{pk+10}')
        o.append(f'v_permlane16_swap_b32 v{pk+9}, v{pk+11}')
        o.append((f'buffer_store_dwordx4 {vr(pk+8,4)}, v{oh2}, s[12:15], s{58+ps} offen offset:512 sc1', ('h', ps)))
        return o
    slots_h = [vr(accs[0] + 4*i, 4) for i in range(12)] + [ar(240 + 4*i, 4) for i in range(4)] + [ar(4*i, 4) for i in range(60 - NV, 60)]
    NH = len(slots_h)
    horder = [(t, kp) for kp in range(12) for t in (0, 1)] + [(t, kp) for t in (2, 3) for kp in range(12)]
    def hload(n):
        t, kp = horder[n]
        if env('NO_H', 0): return [f's_add_u32 s{42+t}, s{42+t}, {n}']
        g = [f'buffer_load_dwordx4 {slots_h[n % NH]}, v{vo16}, s[12:15], s{42+t} offen offset:{1024*(kp%4)} sc1']
        if kp % 4 == 3: g.append(f's_add_u32 s{42+t}, s{42+t}, 4096')
        return g
    def check(name, cnt):
        k.I(f'v_readfirstlane_b32 s33, v{hr}')
        k.I('s_cmp_ge_u32 s33, 16')
        k.I(f's_cbranch_scc0 L{name}_spin', noflush=True)
        k.raw(f'L{name}_ok:')
        spins.append((name, cnt))
    spins = []
    q1 = []
    for g in range(NPRE, 5): q1 += dma(0, g)
    xs_ = []
    for i in range(3):
        xs_.append([f'buffer_store_dwordx4 {vr(sx+4*i,4)}, v{vo16 if i < 2 else vx3}, s[12:15], s29 offen offset:{1024*i} sc1'])
    q1 += late[:-6] + [[f'buffer_load_dword v{hr}, v{hs}, s[12:15], s54 offen sc1']] + late[-6:] + xs_ + [['CHECK']]
    for g in range(5): q1 += dma(1, g)
    q1 += [[f'buffer_load_dwordx4 {vr(gb+4*j,4)}, v{t1}, s[12:15], s30 offen offset:{16*j} sc1'] for j in range(2)]
    nd = ND0; nh = 0
    bars = {(0, 6): ('a', 0, 2, 1), (0, 10): ('a', 0, 4, 1), (0, 18): ('a', 1, 1, 1), (1, 6): ('a', 1, 4, 1), (1, env('K_SA', 9)): None}
    if len(V0) == 1: bars[(0, 2)] = ('a', 0, 1, 1)
    VRATE = env('VRATE', 25) / 120.0
    credit = 1.0
    KA_, KC_ = env('K_A', 14), env('K_C', 17)
    ep = []; vq_ = []
    fl = []
    since = 99
    def isvm(t): return (t[0] if isinstance(t, tuple) else t).startswith('buffer_')
    for ps in range(2):
        for kap in range(20):
            pend = list(fl) + [t for g in q1 for t in g]
            if ps == 0 and kap in (env('V2_AT', 4), env('V3_AT', 7)): assert not any(isinstance(t, tuple) and t[0] != 'GRP' and t[1] <= ('a', 0, 2 if kap == env('V2_AT', 4) else 4, 1) for t in pend), 'val early'
            for mt in range(3):
                assert ps or not any(isinstance(t, str) and t.startswith(f'buffer_load_dwordx4 {ar((3*kap+mt)*4,4)},') for t in pend), ('weight late', kap)
            if (ps, kap) in bars:
                while vq_: emit(vq_.pop(0))
                if bars[(ps, kap)]:
                    assert not any(isinstance(t, tuple) and t[0] != 'GRP' and t[1] <= bars[(ps, kap)] for t in pend), ('dma late', ps, kap)
                    k.wait_tag(bars[(ps, kap)])
                if not bars[(ps, kap)]:
                    assert not ep
                    em(k, 3)
                    k.wait_tag(('h', 0))
                    signal(k, 'HA', 55, hs, noflush=True)
                    em(k, 4)
                else: k.I('s_barrier')
            if ps == 0 and kap == 1 and len(V0) == 1: k.wait_tag(('a', 0, 1, 1)); vq_ = validate('V1', [1])
            if ps == 0 and kap == env('V2_AT', 4): k.wait_tag(('a', 0, 2, 1)); vq_ = validate('V2', [2])
            if ps == 0 and kap == env('V3_AT', 7): k.wait_tag(('a', 0, 4, 1)); vq_ = validate('V3', [3, 4])
            if ps == 0 and kap == 18:
                k.I(f'v_add_u32 v{rb[0]}, 40960, v{rb[0]}')
                k.I(f'v_add_u32 v{rb[1]}, 40960, v{rb[1]}')
            if ps == 1 and kap == 1:
                if env('EP_SERIAL', 1):
                    em(k, 1)
                    for t in epi(0): emit([t])
                    em(k, 2)
                else: ep = pairs(epi(0))
            if ps == 1 and kap == KA_: fl.insert(0 if not fl or isvm(fl[0]) else 1, f'buffer_load_dword v{hr}, v{hs}, s[12:15], s55 offen sc1') if False else k.I(f'buffer_load_dword v{hr}, v{hs}, s[12:15], s55 offen sc1')
            if ps == 1 and kap == KC_: em(k, 5); check('HA', 55); em(k, 6)
            for j in range(12):
                i, mt = divmod(j, 3)
                dd = vr(accs[ps]+(mt*4+i)*4, 4)
                k.I(f'{MF16} {dd}, {ar((3*kap+mt)*4,4)}, {vr(act+16*(kap&1)+4*i,4)}, {dd if kap else 0}')
                since += 1; credit = min(credit + VRATE, 1.6)
                rd = None
                if mt == 2:
                    if kap < 18: rd = aread(ps, i, kap + 2)
                    elif ps == 0: rd = aread(1, i, kap - 18)
                if rd: k.I(rd); continue
                if j == 10 and len(k.lg) > 3: k.waitcnt(lgkm=3); continue
                if j == 10 and ps == 1 and kap == 18: k.waitcnt(lgkm=0); continue
                if not fl:
                    free = NV + (3 * kap if ps else 0)
                    if q1 and q1[0] == ['CHECK']: q1.pop(0); check('H1', 54); continue
                    if q1: fl = list(q1.pop(0))
                    elif ps == 1 and kap >= KC_ and nh < 16 and (nh // 2) * 5 < nd: fl = list(hload(nh)); nh += 1
                    elif nd < min(free, 60): fl = list(dload(nd)); nd += 1
                if ep and isvm(ep[0][0]):
                    emit(ep.pop(0)); since = 0; credit -= 1.0
                elif fl and (not isvm(fl[0]) or (since >= 3 and credit >= 1.0)):
                    t = fl.pop(0)
                    if isvm(t): since = 0; credit -= 1.0
                    emit([t])
                elif vq_: emit(vq_.pop(0))
                elif ep:
                    g_ = ep.pop(0); emit(g_)
                    if ep and len(g_) == 1 and len(ep[0]) == 1 and not isvm(ep[0][0]): emit(ep.pop(0))
        if ps == 0 and not env('MD', 0): mark(k, 2)
    for t in fl: emit([t])
    assert not q1
    print('after E: wd loaded', nd, 'h loaded', nh)
    NHE = nh
    mark(k, 8); fm(k, 1); em(k, 7); pm(k, 1)
    fq = []
    def need_order():
        o = []; d = nd; h = nh
        for kp in range(12):
            while d < 5*(kp+1): o.append(dload(d)); d += 1
            while h < 2*(kp+1): o.append(hload(h)); h += 1
        return o
    fq = need_order()
    full = list(fq)
    def sorted_q(a_, b_):
        rest = [g for g in b_ if g not in full]
        return [g for g in full if g in a_ or g in b_] + rest
    fq += [['s_mov_b64 exec, s[34:35]', f'buffer_load_dwordx4 {vr(x1r+4*t,4)}, v{ox}, s[12:15], s{46+t} offen sc1', 's_mov_b64 exec, -1'] for t in range(4)]
    for t in epi(1): emit([t])
    fm(k, 2)
    if KC_ >= 20: check('HA', 55)
    fm(k, 3)
    for _ in range(env('F_PRE1', 0)):
        if fq: emit(fq.pop(0))
    mark(k, 9); fm(k, 4)
    fa = accs[1]
    SL = [0, 4*PT, 8*PT, 0]
    def pwrite(t, a): return [f'ds_write_b128 v{lw2 if dt & 1 else lw}, {vr(a+4*dt,4)} offset:{SL[t]+16*(dt//2)}' for dt in range(5)]
    def fin_reads(t, r): return [f'ds_read_b128 {vr(r+8*src+4*h_,4)}, v{lr} offset:{SL[t]+PT*src+160*h_}' for src in range(4) for h_ in range(2)]
    def fin_valu(t, r, xf):
        o = []
        for j in range(4):
            o.append(f'v_lshlrev_b32 v{xf+2*j}, 16, v{x1r+4*t+j}')
            o.append(f'v_and_b32 v{xf+2*j+1}, 0xffff0000, v{x1r+4*t+j}')
        for p in range(4): o.append(f'v_pk_add_f32 {vr(r+2*p,2)}, {vr(r+2*p,2)}, {vr(r+8+2*p,2)}')
        for p in range(4): o.append(f'v_pk_add_f32 {vr(r+16+2*p,2)}, {vr(r+16+2*p,2)}, {vr(r+24+2*p,2)}')
        for p in range(4): o.append(f'v_pk_add_f32 {vr(r+2*p,2)}, {vr(r+2*p,2)}, {vr(r+16+2*p,2)}')
        for p in range(4): o.append(f'v_pk_fma_f32 {vr(xf+2*p,2)}, {vr(r+2*p,2)}, {vr(gb+2*p,2)}, {vr(xf+2*p,2)}')
        for p in range(4): o.append(f'v_cvt_pk_bf16_f32 v{x1r+4*t+p}, v{xf+2*p}, v{xf+2*p+1}')
        return o
    OST = os.environ.get('OUT_ST', '')
    def fin_store(t): return ['s_mov_b64 exec, s[34:35]', f'buffer_store_dwordx4 {vr(x1r+4*t,4)}, v{oo}, s[36:39], s{25+t} offen{OST}', 's_mov_b64 exec, -1']
    KB_ = env('K_B', 3)
    fl = []
    def gap(pool):
        nonlocal fl
        if not fl and pool:
            g = pool.pop(0)
            if isinstance(g[0], str) and g[0].startswith('s_mov_b64 exec'): emit(g); return
            fl = list(g)
        if fl: emit([fl.pop(0)])
    FG = env('F_GAP', 5)
    KBL, KBC = env('K_BL', 8), env('K_BC', 11)
    since = 99; nh = 24
    hq = [hload(n) for n in range(24, 48)]
    for kp in range(12):
        if kp % 2 == 0: pm(k, 2 + kp // 2)
        if kp == KB_:
            k.wait_tag(('h', 1))
            signal(k, 'HB', 51, hs, noflush=True)
            fm(k, 5)
        if kp == KBL: fq.insert(0, [f'buffer_load_dword v{hr}, v{hs}, s[12:15], s51 offen sc1'])
        if kp == KBC:
            while fq or fl: gap(fq)
            check('HB', 51); fm(k, 7)
            fq = hq
        for t in range(2):
            need = [wdreg(5*kp+dt) for dt in range(5)] + [slots_h[(2*kp+t) % NH]]
            while fq is not hq and any(g[0].startswith(f'buffer_load_dwordx4 {r},') for g in fq for r in need): gap(fq)
            for dt in range(5):
                dd = vr(fa+20*t+4*dt, 4)
                k.I(f'{MF16} {dd}, {wdreg(5*kp+dt)}, {slots_h[(2*kp+t) % NH]}, {dd if kp else 0}')
                since += 1
                if dt == 4: continue
                if fl: gap(fq)
                elif since >= (env('F_GAP2', 5) if fq is hq else env('F_GAP1', 3)) and fq: gap(fq); since = 0
    pm(k, 8)
    while fl: gap(fq)
    if KBC >= 12:
        while fq: gap(fq)
    if not env('MD', 0): mark(k, 3)
    fm(k, 6); em(k, 8); pm(k, 9)
    def sprinkle(lst, every):
        for j, v_ in enumerate(lst):
            k.I(v_)
            if j % every == every - 1 and hq: emit(hq.pop(0))
    if KBC == 12: check('HB', 51); fm(k, 7)
    sprinkle(pwrite(0, fa) + pwrite(1, fa + 20), env('SPR', 2) if KBC <= 12 else 99)
    k.barrier()
    if KBC == 13:
        check('HB', 51); fm(k, 7)
        for _ in range(4): emit(hq.pop(0))
    em(k, 9)
    xfA = pk
    sprinkle(fin_reads(0, fa) + fin_reads(1, act), env('SPR2', 8))
    sprinkle(fin_valu(0, fa, pk), env('SPR3', 14))
    if not env('MD', 0): mark(k, 4)
    late_st = [fin_store(0), fin_store(1)]
    extra0 = pairs(fin_valu(1, act, fa + 40))
    rB = act
    extra = extra0
    hq = hq + late_st
    since = 99
    for t in (2, 3):
        a = fa + 20*(t - 2)
        if t == 3:
            assert not extra
            extra = [[w_] for w_ in pwrite(2, fa)]
        for kp in range(12):
            n = 24 + 12*(t-2) + kp
            if n == 25: fm(k, 8)
            assert not any(g[0].startswith(f'buffer_load_dwordx4 {slots_h[n % NH]},') for g in hq)
            for dt in range(5):
                dd = vr(a+4*dt, 4)
                k.I(f'{MF16} {dd}, {wdreg(5*kp+dt)}, {slots_h[n % NH]}, {dd if kp else 0}')
                since += 1
                if dt == 4 and n < 46: continue
                if fl: gap(hq)
                elif hq and since >= FG and not (extra is extra0 and extra and hq[0] is late_st[1]): gap(hq); since = 0
                elif (kp >= 1 or t == 2) and extra: emit(extra.pop(0))
            if t == 3 and kp == 3:
                assert not extra
                k.barrier()
                extra = [[r_] for r_ in fin_reads(2, wdv)] + pairs(fin_valu(2, wdv, xfA)) + [fin_store(2)]
    fm(k, 9)
    while extra: emit(extra.pop(0))
    for w_ in pwrite(3, fa + 20): k.I(w_)
    xl = fin_valu(3, wdv + 32, act)
    for v_ in xl[:8]: k.I(v_)
    k.barrier()
    for r_ in fin_reads(3, wdv + 32): k.I(r_)
    for v_ in xl[8:]: k.I(v_)
    emit(fin_store(3))
    if gen.STAMPS and not env('MF', 0): k.I('s_add_u32 s66, s50, s64')
    stamp_end(k, 3, 4)
    k.label('LD_exit')
    k.I('s_endpgm')
    k.label('LY_slow', fresh=True); k.vm = []; k.lg = []
    k.I('s_mov_b32 s24, 0x40000')
    k.label('LY_loop')
    k.I('s_add_u32 s50, s50, 1')
    k.I(f's_sleep {env("Y_SLEEP", 2)}')
    yloads()
    k.waitcnt(vm=0)
    k.I('s_sub_u32 s24, s24, 1')
    k.I('s_cbranch_scc1 LY_ok')
    ycheck()
    k.I('s_cbranch_scc1 LY_loop')
    k.I('s_branch LY_ok')
    k.label('LF0_slow', fresh=True); k.vm = []; k.lg = []
    k.I('s_mov_b32 s33, 0x40000')
    k.label('LF0_loop')
    k.I('s_sleep 4')
    k.I(f'buffer_load_dword v{hr}, v{hs}, s[12:15], s89 offen offset:1024 sc1')
    k.waitcnt(vm=0)
    k.I('s_sub_u32 s33, s33, 1')
    k.I('s_cbranch_scc1 LF0_ok')
    k.I(f'v_readfirstlane_b32 s24, v{hr}')
    k.I('s_cmp_lg_u32 s24, 1')
    k.I('s_cbranch_scc1 LF0_loop')
    k.I('s_branch LF0_ok')
    k.label('LWD', fresh=True); k.restore_state(st0)
    vc = VAlloc(keep)
    t0_ = vc.get(); t1_ = vc.get(); ra_ = vc.get(); so_ = vc.get(5); o_ = vc.get(20, 4)
    for p in range(5):
        k.I(f'v_add_u32 v{t0_}, {64*p}, v{vl}')
        k.I(f'v_mul_u32_u24 v{t1_}, 205, v{t0_}')
        k.I(f'v_lshrrev_b32 v{t1_}, 13, v{t1_}')
        k.I(f'v_mul_u32_u24 v{t1_}, 640, v{t1_}')
        k.I(f'v_add_u32 v{so_+p}, v{t1_}, v{vo16}')
    k.I(f'v_bfe_u32 v{t1_}, v{vl}, 2, 2')
    k.I(f'v_lshl_add_u32 v{t0_}, v{vq}, 3, v{t1_}')
    k.I(f'v_mul_u32_u24 v{ra_}, 640, v{t0_}')
    k.I(f'v_and_b32 v{t0_}, 3, v{vl}')
    k.I(f'v_mul_u32_u24 v{t0_}, 40, v{t0_}')
    k.I('s_mul_i32 s24, s22, 160')
    k.I(f's_add_u32 s24, s24, {CL}')
    k.I(f'v_add3_u32 v{ra_}, v{ra_}, v{t0_}, s24')
    k.I('s_mul_i32 s90, s22, 5120')
    k.I(f's_add_u32 s90, s90, {CL}')
    k.I('s_sub_u32 s48, s2, 161')
    if HALF:
        GL = CL + 20480
        wo_ = vc.get(3); rg_ = vc.get(); r2_ = vc.get(); og_ = vc.get(24, 4)
        for p in range(3):
            k.I(f'v_add_u32 v{t0_}, {64*p}, v{vl}')
            k.I(f'v_mul_u32_u24 v{t1_}, 171, v{t0_}')
            k.I(f'v_lshrrev_b32 v{t1_}, 12, v{t1_}')
            k.I(f'v_mul_u32_u24 v{t1_}, 2688, v{t1_}')
            k.I(f'v_add_u32 v{wo_+p}, v{t1_}, v{vo16}')
        k.srd(8, 36, D * F * 2)
        k.srd(16, 38, D * F * 2)
        k.I('s_sub_u32 s48, s2, 161')
        k.I('s_and_b32 s49, s48, 7')
        k.I('s_lshr_b32 s50, s48, 3')
        k.I('s_add_u32 s50, s50, 10')
        k.I('s_lshl_b32 s51, s50, 2')
        k.I('s_add_u32 s51, s51, s22')
        k.I(f's_mul_i32 s51, s51, {8*3072}')
        k.I('s_mul_i32 s24, s49, 384')
        k.I('s_add_u32 s51, s51, s24')
        k.I('s_mul_i32 s24, s22, 3072')
        k.I(f's_add_u32 m0, s24, {GL}')
        for p in range(3): k.I(f'buffer_load_dwordx4 v{wo_+p}, s[8:11], s51 offen offset:{1024*p} nt lds')
        k.I(f's_add_u32 m0, s24, {GL+12288}')
        for p in range(3): k.I(f'buffer_load_dwordx4 v{wo_+p}, s[16:19], s51 offen offset:{1024*p} nt lds')
        k.I('s_lshl_b32 s54, s49, 3')
        k.I('s_add_u32 s54, s54, s22')
        k.I('s_mul_i32 s54, s54, 10')
        k.I('s_add_u32 s54, s54, s50')
        k.I('s_mul_i32 s54, s54, 3072')
        k.I(f's_add_u32 s54, s54, {WGU_B - 30720}')
        k.I('s_cmp_lt_u32 s48, 80')
        k.I('s_cselect_b32 s54, s54, 0x7f000000')
        k.I(f's_add_u32 s34, s54, {4*10*3072}')
        k.I(f'v_bfe_u32 v{t1_}, v{vl}, 2, 2')
        k.I(f'v_lshl_add_u32 v{t0_}, v{vq}, 3, v{t1_}')
        k.I(f'v_mul_u32_u24 v{rg_}, 384, v{t0_}')
        k.I('s_mul_i32 s24, s22, 48')
        k.I(f's_add_u32 s24, s24, {GL}')
        k.I(f'v_add_u32 v{rg_}, s24, v{rg_}')
        k.I(f'v_and_b32 v{t0_}, 1, v{vl}')
        k.I(f'v_lshl_add_u32 v{r2_}, v{t0_}, 3, v{rg_}')
        k.I(f'v_bfe_u32 v{t0_}, v{vl}, 1, 1')
        k.I(f'v_mul_u32_u24 v{t0_}, 12288, v{t0_}')
        k.I(f'v_add_u32 v{r2_}, v{r2_}, v{t0_}')
        k.I(f'v_and_b32 v{t0_}, 3, v{vl}')
        k.I(f'v_lshl_add_u32 v{rg_}, v{t0_}, 3, v{rg_}')
    k.srd(36, 62, F * D * 2)
    k.srd(44, 4, F * D * 2, WD)
    def wd_in(sj):
        k.I(f's_and_b32 s49, s{sj}, 1')
        k.I(f's_lshr_b32 s50, s{sj}, 1')
        k.I('s_lshl_b32 s51, s50, 2')
        k.I('s_add_u32 s51, s51, s22')
        k.I('s_mul_i32 s51, s51, 10240')
        k.I('s_mul_i32 s24, s49, 640')
        k.I('s_add_u32 s51, s51, s24')
        k.I('s_mov_b32 m0, s90')
        for p in range(4): k.I(f'buffer_load_dwordx4 v{so_+p}, s[36:39], s51 offen offset:{1024*p} nt lds', tag='r')
        k.I('s_add_u32 m0, s90, 4096')
        k.I('s_add_u32 s51, s51, 4096')
        k.I(f'buffer_load_dwordx4 v{so_+4}, s[36:39], s51 offen nt lds', tag='r')
        k.I('s_lshl_b32 s52, s49, 2')
        k.I('s_add_u32 s52, s52, s22')
        k.I('s_mul_i32 s52, s52, 48')
        k.I('s_add_u32 s52, s52, s50')
        k.I('s_mul_i32 s52, s52, 5120')
        k.I('s_add_u32 s53, s52, 4096')
    def wd_out():
        k.wait_tag('r')
        k.I('s_barrier')
        cm_(k, 3)
        for j in range(2 if HALF else 0):
            for mt in range(3):
                for hf in range(2):
                    off = 4*hf*384 + 192*j + (12288 if mt == 1 else 0) + (32 if mt == 2 else 0)
                    k.I(f'ds_read_b64_tr_b16 {vr(og_+(3*j+mt)*4+2*hf,2)}, v{r2_ if mt == 2 else rg_} offset:{off}')
        for j in range(2 if HALF else 0):
            for mt in range(3):
                k.I(f'buffer_store_dwordx4 {vr(og_+(3*j+mt)*4,4)}, v{vo16}, s[12:15], s{34 if j else 54} offen offset:{1024*mt} sc1', tag='y')
        for dt in range(5):
            for hf in range(2): k.I(f'ds_read_b64_tr_b16 {vr(o_+dt*4+2*hf,2)}, v{ra_} offset:{4*hf*640+8*dt}')
        for dt in range(5):
            k.I(f'buffer_store_dwordx4 {vr(o_+dt*4,4)}, v{vo16}, s[44:47], s{52+(dt//4)} offen offset:{1024*(dt%4)} sc1', tag='y')
    wd_in(48)
    stW = k.save_state()
    k.I('s_sub_u32 s48, s2, 162')
    k.I('s_cmp_ge_u32 s48, 3')
    k.I('s_cbranch_scc1 LWD0')
    m0_ = 100
    k.I('s_lshl_b32 s48, s48, 8')
    k.I(f'v_add_u32 v{m0_}, s48, v0')
    k.I(f'v_lshlrev_b32 v{m0_+1}, 4, v{m0_}')
    k.srd(8, 4, 4 * 960 * 16, GR)
    for p in range(4):
        k.I(f's_mov_b32 s49, {960*16*p + 320*16}')
        k.I(f'buffer_load_dwordx4 {vr(m0_+4+4*p,4)}, v{m0_+1}, s[8:11], s49 offen')
    k.srd(12, 4, 4 * D * 4, MODN + 2 * D * 4)
    k.I('s_mov_b32 s50, 0x04000c0c')
    k.I('s_mov_b32 s51, 0x0706000c')
    k.I(f'v_mov_b32 v{m0_+22}, {fhex(1.0 / (2.0 * S * D))}')
    k.I(f'v_cmp_gt_u32 vcc, 0xa0, v{m0_}')
    k.I(f'v_cndmask_b32 v{m0_+22}, 1.0, v{m0_+22}, vcc')
    k.I(f'v_subrev_u32 v{m0_+21}, 0x140, v{m0_}')
    k.I(f'v_cmp_gt_u32 vcc, 0xa0, v{m0_+21}')
    k.I(f'v_mov_b32 v{m0_+23}, 1.0')
    k.I(f'v_cndmask_b32 v{m0_+23}, 0, v{m0_+23}, vcc')
    g_ = m0_ + 4
    for p in range(4): unpack_gran(k, g_+4*p, m0_+21, 50, 51)
    for p in (0, 2):
        k.I(f'v_pk_add_f32 {vr(g_+p,2)}, {vr(g_+p,2)}, {vr(g_+4+p,2)}')
        k.I(f'v_pk_add_f32 {vr(g_+8+p,2)}, {vr(g_+8+p,2)}, {vr(g_+12+p,2)}')
    for p in (0, 2): k.I(f'v_pk_add_f32 {vr(g_+p,2)}, {vr(g_+p,2)}, {vr(g_+8+p,2)}')
    for j in range(4): k.I(f'v_cvt_pk_bf16_f32 v{g_+j}, v{g_+j}, v{g_+j}')
    for j in range(4): k.I(f'v_and_b32 v{g_+j}, 0xffff0000, v{g_+j}')
    for j in range(4): k.I(f'v_add_f32 v{g_+j}, v{m0_+23}, v{g_+j}')
    for j in range(4): k.I(f'v_cvt_pk_bf16_f32 v{g_+j}, v{g_+j}, v{g_+j}')
    for j in range(4): k.I(f'v_and_b32 v{g_+j}, 0xffff0000, v{g_+j}')
    for j in range(4): k.I(f'v_mul_f32 v{g_+j}, v{m0_+22}, v{g_+j}')
    k.I(f'buffer_store_dwordx4 {vr(g_,4)}, v{m0_+1}, s[12:15], 0 offen sc1')
    k.label('LWD0')
    k.restore_state(stW)
    k.I('s_sub_u32 s48, s2, 161')
    scalars()
    k.I(f'v_mov_b32 v{hs}, 0')
    k.I(f'v_mov_b32 v{hs+1}, 1')
    cm_(k, 1)
    k.bg = bglist(); k.emit_bg(env('WD_B0', 14))
    cm_(k, 2)
    wd_out()
    cm_(k, 4)
    k.emit_bg(env('WD_B1', 10))
    k.wait_tag('y')
    cm_(k, 5)
    k.I('s_barrier')
    stS = k.save_state()
    k.I('s_cmp_lg_u32 s22, 0')
    k.I('s_cbranch_scc1 LFW_s')
    k.I(f'v_mov_b32 v{t0_}, 1')
    k.I(f'v_lshlrev_b32 v{t1_}, 7, v{vl}')
    k.I(f's_mov_b32 s35, {FW + 1024}')
    k.I('s_mov_b64 exec, 1')
    k.I(f'buffer_atomic_add v{t0_}, v{hs}, s[12:15], s35 offen sc0 sc1')
    k.I(f'v_readfirstlane_b32 s35, v{t0_}')
    k.I('s_cmp_eq_u32 s35, 94')
    k.I('s_cselect_b64 exec, 0xff, 0')
    k.I(f's_mov_b32 s35, {FW}')
    k.I(f'buffer_store_dword v{hs+1}, v{t1_}, s[12:15], s35 offen sc1')
    k.I('s_mov_b64 exec, -1')
    k.label('LFW_s')
    topup()
    k.emit_bg(W_J1_)
    dpro()
    t0_ = v8; t1_ = vcn
    if env('MD_WARM', 1):
        k.I('s_mov_b32 m0, s88')
        k.I(f'buffer_load_dwordx4 v{vo16}, s[12:15], s31 offen sc1 lds')
        k.I(f'buffer_load_dwordx4 v{vo16}, s[12:15], s31 offen offset:1024 sc1 lds')
    cm_(k, 6)
    if env('CANARY', 1):
        k.I('s_lshl_b32 s48, s48, 14')
        k.I('s_add_u32 s48, s48, s25')
        k.I(f'v_mov_b32 v{t0_}, 0')
        k.I('s_mov_b32 s24, 0x400')
        k.I('s_cmp_lg_u32 s22, 0')
        k.I('s_cbranch_scc1 LCAN_o')
        k.label('LCAN')
        k.I('s_sleep 4')
        k.I(f'buffer_load_dword v{t1_}, v{t0_}, s[16:19], s48 offen sc1')
        k.waitcnt(vm=0)
        k.I(f'v_readfirstlane_b32 s49, v{t1_}')
        k.I('s_sub_u32 s24, s24, 1')
        k.I('s_cbranch_scc1 LCAN_o')
        k.I('s_bitcmp0_b32 s49, 0')
        k.I('s_cbranch_scc1 LCAN')
        k.label('LCAN_o')
        if env('CAN_SLEEP', 0): k.I(f's_sleep {env("CAN_SLEEP", 0)}')
        k.I('s_barrier')
    cm_(k, 7)
    k.I('s_branch LJOIN')
    for name, groups in slow:
        k.label(f'L{name}_slow', fresh=True); k.vm = []; k.lg = []
        k.I('s_mov_b32 s32, m0')
        k.I('s_mov_b32 s24, 0x40000')
        k.label(f'L{name}_loop')
        k.I(f's_add_u32 s50, s50, {16 if name == "V0" else 256}')
        for g in groups:
            for grp in dma(0, g): _emit(grp)
        k.I('s_mov_b32 m0, s32')
        k.waitcnt(vm=0)
        k.I('s_sub_u32 s24, s24, 1')
        k.I(f's_cbranch_scc1 L{name}_ok')
        sl_ = list(slow)
        for g in validate(name + 'r', groups)[:-1]: _emit(g)
        slow[:] = sl_
        k.I('s_cmp_lg_u64 s[62:63], 0')
        k.I(f's_cbranch_scc1 L{name}_loop')
        k.I(f's_branch L{name}_ok')
    for name, cnt in spins:
        k.label(f'L{name}_spin', fresh=True); k.vm = []; k.lg = []
        k.I('s_mov_b32 s24, 0x100000')
        k.label(f'L{name}_loop')
        k.I(f's_sleep {env("SPIN_SLEEP", 2)}')
        k.I(f'buffer_load_dword v{hr}, v{hs}, s[12:15], s{cnt} offen sc1')
        k.waitcnt(vm=0)
        k.I(f'v_readfirstlane_b32 s33, v{hr}')
        k.I('s_sub_u32 s24, s24, 1')
        k.I(f's_cbranch_scc1 L{name}_ok')
        k.I('s_cmp_lt_u32 s33, 16')
        k.I(f's_cbranch_scc1 L{name}_loop')
        k.I(f's_branch L{name}_ok')
    return k, (256, 256, 163840)
```

```python
import sys, math, os
import gen, gen2, gen4
from gen import *
from gen2 import *
from gen4 import *
from gen import mark, stamp_begin, stamp_end

N_WT5 = 128
def role_wt5(k, s_wr, s_wi):
    BS = 5136
    va = VAlloc(1)
    vl = va.get(); vo = va.get(); ra = va.get(); dst = va.get(); t0 = va.get()
    lo = va.get(24, 4); hi = va.get(24, 4)
    k.I('v_lshrrev_b32 v1, 6, v0')
    k.I('v_readfirstlane_b32 s22, v1')
    k.I(f'v_and_b32 v{vl}, 63, v0')
    k.I(f'v_lshlrev_b32 v{vo}, 4, v{vl}')
    k.I('s_and_b32 s21, s20, 7')
    k.I('s_bfe_u32 s23, s20, 0x10003')
    k.I('s_bfe_u32 s24, s20, 0x20004')
    k.I('s_lshr_b32 s25, s20, 6')
    k.I('s_lshl_b32 s26, s21, 2')
    k.I('s_add_u32 s26, s26, s22')
    k.I('s_lshl_b32 s26, s26, 3')
    k.I('s_lshl_b32 s27, s24, 1')
    k.I('s_add_u32 s26, s26, s27')
    k.I('s_add_u32 s26, s26, s23')
    k.I(f's_mul_i32 s26, s26, {BS}')
    k.I(f's_mul_i32 s27, s22, {BS}')
    k.I('s_mov_b32 m0, s27')
    k.I('s_cmp_eq_u32 s25, 0')
    k.I(f's_cselect_b32 s28, s{s_wr}, s{s_wi}')
    k.I(f's_cselect_b32 s29, s{s_wr+1}, s{s_wi+1}')
    k.I(f's_mov_b32 s30, {S * 321 * 2}')
    k.I('s_mov_b32 s31, 0x00020000')
    for i in range(4): k.I(f'buffer_load_dwordx4 v{vo}, s[28:31], s26 offen offset:{1024*i} nt lds')
    k.I('s_add_u32 m0, s27, 4096')
    k.I('s_add_u32 s26, s26, 4096')
    k.I(f'buffer_load_dwordx4 v{vo}, s[28:31], s26 offen nt lds')
    k.I('s_mov_b64 exec, 1')
    k.I(f'buffer_load_dwordx4 v{vo}, s[28:31], s26 offen offset:1024 nt lds')
    k.I('s_mov_b64 exec, -1')
    k.I(f'v_and_b32 v{t0}, 3, v0')
    k.I(f'v_mul_u32_u24 v{ra}, 1284, v{t0}')
    k.I(f'v_lshlrev_b32 v{dst}, 4, v{t0}')
    k.I(f'v_lshrrev_b32 v{t0}, 2, v0')
    k.I(f'v_lshl_add_u32 v{ra}, v{t0}, 1, v{ra}')
    W128 = env('W128', 2) if env('PARITY', 0) else 0
    if W128:
        k.I(f'v_and_b32 v{dst}, 7, v0')
        k.I(f'v_lshlrev_b32 v{dst}, 4, v{dst}')
        k.I(f'v_lshrrev_b32 v{t0}, 3, v0')
        k.I(f'v_lshl_add_u32 v{dst}, v{t0}, 14, v{dst}')
        if W128 == 2:
            k.I(f'v_and_b32 v{ra}, 7, v0')
            k.I(f'v_mul_u32_u24 v{ra}, 642, v{ra}')
            k.I(f'v_lshl_add_u32 v{ra}, v{t0}, 2, v{ra}')
    else: k.I(f'v_lshl_add_u32 v{dst}, v{t0}, 13, v{dst}')
    k.srd(32, 4, 161 * 16384 if W128 else XT_SZ, WT)
    k.I('s_lshl_b32 s36, s25, 12')
    k.I('s_lshl_b32 s37, s24, 10')
    k.I('s_add_u32 s36, s36, s37')
    k.I('s_lshl_b32 s37, s21, 7')
    k.I('s_add_u32 s36, s36, s37')
    k.I('s_lshl_b32 s37, s23, 6')
    k.I('s_add_u32 s36, s36, s37')
    if W128: k.I('s_lshl_b32 s36, s36, 1')
    k.barrier(vm=0)
    def rnd(rho):
        for ii in range(2):
            for rp in range(2):
                j = 4*rho + 2*ii + rp
                k.I(f'ds_read_u16 v{lo+j}, v{ra} offset:{(2*rp)*BS + (2 if W128 == 2 else 642)*ii + 128*rho}')
                k.I(f'ds_read_u16 v{hi+j}, v{ra} offset:{(2*rp+1)*BS + (2 if W128 == 2 else 642)*ii + 128*rho}')
    def fin(rho):
        for j in range(4): k.I(f'v_lshl_or_b32 v{lo+4*rho+j}, v{hi+4*rho+j}, 16, v{lo+4*rho+j}')
        k.I(f'buffer_store_dwordx4 {vr(lo+4*rho,4)}, v{dst}, s[32:35], s36 offen{WT_ST}')
        k.I(f's_add_u32 s36, s36, {64*8192}')
    rnd(0)
    for rho in range(5):
        if rho < 4: rnd(rho + 1)
        fin(rho)
    k.nlab = getattr(k, 'nlab', 0) + 1
    k.I('s_cmp_lg_u32 s22, 0')
    k.I('s_cbranch_scc1 Lwt_done')
    k.I(f's_mov_b64 exec, {0xff if W128 == 2 else 15}')
    rnd(5); fin(5)
    k.label('Lwt_done')

N_WD5 = 96
def role_wd5(k, s_wd, pf=False):
    va = VAlloc(100 if pf else 1)
    vl = va.get(); t0 = va.get(); t1 = va.get(); ra = va.get(); vo = va.get(); so = va.get(5)
    o = va.get(20, 4)
    k.I(f'v_lshrrev_b32 v{t0}, 6, v0')
    k.I(f'v_and_b32 v{vl}, 63, v0')
    k.I(f'v_readfirstlane_b32 s22, v{t0}')
    k.I(f'v_lshlrev_b32 v{vo}, 4, v{vl}')
    k.I('s_and_b32 s21, s20, 1')
    k.I('s_lshr_b32 s20, s20, 1')
    for p in range(5):
        k.I(f'v_add_u32 v{t0}, {64*p}, v{vl}')
        k.I(f'v_mul_u32_u24 v{t1}, 205, v{t0}')
        k.I(f'v_lshrrev_b32 v{t1}, 13, v{t1}')
        k.I(f'v_mul_u32_u24 v{t1}, 640, v{t1}')
        k.I(f'v_add_u32 v{so+p}, v{t1}, v{vo}')
    k.I('s_lshl_b32 s23, s20, 2')
    k.I('s_add_u32 s23, s23, s22')
    k.I('s_mul_i32 s23, s23, 10240')
    k.I('s_mul_i32 s24, s21, 640')
    k.I('s_add_u32 s23, s23, s24')
    k.I('s_mul_i32 s24, s22, 5120')
    k.I('s_mov_b32 m0, s24')
    k.srd(28, s_wd, F * D * 2)
    if pf:
        for p in range(4): k.I(f'buffer_load_dwordx4 {vr(o+4*p,4)}, v{so+p}, s[28:31], s23 offen offset:{1024*p}')
        k.I('s_add_u32 s23, s23, 4096')
        k.I(f'buffer_load_dwordx4 {vr(o+16,4)}, v{so+4}, s[28:31], s23 offen')
        return
    for p in range(4): k.I(f'buffer_load_dwordx4 v{so+p}, s[28:31], s23 offen offset:{1024*p}{RAW_NT} lds')
    k.I('s_add_u32 m0, s24, 4096')
    k.I('s_add_u32 s23, s23, 4096')
    k.I(f'buffer_load_dwordx4 v{so+4}, s[28:31], s23 offen{RAW_NT} lds')
    k.I(f'v_lshrrev_b32 v{t0}, 4, v{vl}')
    k.I(f'v_bfe_u32 v{t1}, v{vl}, 2, 2')
    k.I(f'v_lshl_add_u32 v{t0}, v{t0}, 3, v{t1}')
    k.I(f'v_mul_u32_u24 v{ra}, 640, v{t0}')
    k.I(f'v_and_b32 v{t0}, 3, v{vl}')
    k.I(f'v_mul_u32_u24 v{t0}, 40, v{t0}')
    k.I('s_mul_i32 s25, s22, 160')
    k.I(f'v_add3_u32 v{ra}, v{ra}, v{t0}, s25')
    k.srd(36, 4, F * D * 2, WD)
    k.I('s_lshl_b32 s26, s21, 2')
    k.I('s_add_u32 s26, s26, s22')
    k.I('s_mul_i32 s26, s26, 48')
    k.I('s_add_u32 s26, s26, s20')
    k.I('s_mul_i32 s40, s26, 5120')
    k.I('s_add_u32 s41, s40, 4096')
    k.barrier(vm=0)
    for dt in range(5):
        for hf in range(2):
            k.I(f'ds_read_b64_tr_b16 {vr(o+dt*4+2*hf,2)}, v{ra} offset:{4*hf*640+8*dt}')
    for dt in range(5):
        k.I(f'buffer_store_dwordx4 {vr(o+dt*4,4)}, v{vo}, s[36:39], s{40+(dt//4)} offen offset:{1024*(dt%4)}{SIDE_ST}')

RAW_NT = '' if env('RAW_PF', 0) else ' nt'
def role_wgu5(k, s_wg, s_wu, pf=False):
    va = VAlloc(100 if pf else 1)
    vl = va.get(); wo = va.get(3); t0 = va.get(); t1 = va.get(); t2 = va.get(); ra = va.get(); r2 = va.get(); vo = va.get()
    o = va.get(24, 4)
    k.I(f'v_lshrrev_b32 v{t0}, 6, v0')
    k.I(f'v_and_b32 v{vl}, 63, v0')
    k.I(f'v_readfirstlane_b32 s22, v{t0}')
    k.I('s_and_b32 s21, s20, 7')
    k.I('s_lshr_b32 s20, s20, 3')
    for p in range(3):
        k.I(f'v_add_u32 v{t0}, {64*p}, v{vl}')
        k.I(f'v_mul_u32_u24 v{t1}, 171, v{t0}')
        k.I(f'v_lshrrev_b32 v{t1}, 12, v{t1}')
        k.I(f'v_mul_u32_u24 v{t1}, 2688, v{t1}')
        k.I(f'v_lshl_add_u32 v{wo+p}, v{vl}, 4, v{t1}')
    k.I('s_lshl_b32 s23, s20, 2')
    k.I('s_add_u32 s23, s23, s22')
    k.I(f's_mul_i32 s23, s23, {8*3072}')
    k.I('s_mul_i32 s24, s21, 384')
    k.I('s_add_u32 s23, s23, s24')
    k.srd(28, s_wg, D * F * 2)
    k.srd(32, s_wu, D * F * 2)
    if pf:
        for p in range(3): k.I(f'buffer_load_dwordx4 {vr(o+4*p,4)}, v{wo+p}, s[28:31], s23 offen offset:{1024*p}')
        for p in range(3): k.I(f'buffer_load_dwordx4 {vr(o+12+4*p,4)}, v{wo+p}, s[32:35], s23 offen offset:{1024*p}')
        return
    k.I('s_mul_i32 s24, s22, 3072')
    k.I('s_mov_b32 m0, s24')
    for p in range(3): k.I(f'buffer_load_dwordx4 v{wo+p}, s[28:31], s23 offen offset:{1024*p}{RAW_NT} lds')
    k.I('s_add_u32 m0, s24, 12288')
    for p in range(3): k.I(f'buffer_load_dwordx4 v{wo+p}, s[32:35], s23 offen offset:{1024*p}{RAW_NT} lds')
    k.I(f'v_lshrrev_b32 v{t0}, 4, v{vl}')
    k.I(f'v_bfe_u32 v{t1}, v{vl}, 2, 2')
    k.I(f'v_lshl_add_u32 v{t0}, v{t0}, 3, v{t1}')
    k.I(f'v_mul_u32_u24 v{ra}, 384, v{t0}')
    k.I('s_mul_i32 s25, s22, 48')
    k.I(f'v_add_u32 v{ra}, s25, v{ra}')
    k.I(f'v_and_b32 v{t0}, 1, v{vl}')
    k.I(f'v_lshl_add_u32 v{r2}, v{t0}, 3, v{ra}')
    k.I(f'v_bfe_u32 v{t0}, v{vl}, 1, 1')
    k.I(f'v_mul_u32_u24 v{t0}, 12288, v{t0}')
    k.I(f'v_add_u32 v{r2}, v{r2}, v{t0}')
    k.I(f'v_and_b32 v{t0}, 3, v{vl}')
    k.I(f'v_lshl_add_u32 v{ra}, v{t0}, 3, v{ra}')
    k.I(f'v_lshlrev_b32 v{vo}, 4, v{vl}')
    k.srd(36, 4, D * 2 * F * 2, WGU)
    k.I('s_lshl_b32 s26, s21, 3')
    k.I('s_add_u32 s26, s26, s22')
    NK = 10 if env('GEN6', 0) else 20
    k.I(f's_mul_i32 s26, s26, {NK}')
    k.I('s_add_u32 s26, s26, s20')
    k.I('s_mul_i32 s26, s26, 3072')
    if NK == 10:
        k.I('s_cmp_ge_u32 s20, 10')
        k.I(f's_cselect_b32 s27, {63*30720}, 0')
        k.I('s_add_u32 s26, s26, s27')
    k.I(f's_add_u32 s27, s26, {4*NK*3072}')
    if env('WGU_GATE', 0):
        k.I('s_cmp_lg_u32 s22, 0')
        k.I('s_cbranch_scc1 Lwg_go')
        k.srd(52, 56, 256)
        k.srd(48, 4, gen4.NREP * 20480, gen4.GRR)
        k.I('s_mul_i32 s40, s21, 20480')
        k.I('s_lshl_b32 s41, s20, 8')
        k.I('s_add_u32 s40, s40, s41')
        k.I(f'v_mov_b32 v{t0}, 0')
        k.I('s_mov_b32 s3, 0x1000')
        k.I('s_mov_b64 exec, 1')
        k.label('Lwg_poll')
        k.I(f'buffer_load_dwordx2 {vr(o,2)}, v{t0}, s[52:55], 0 offen offset:128 sc1')
        k.I(f'buffer_load_dword v{o+2}, v{t0}, s[48:51], s40 offen offset:12 sc1')
        k.waitcnt(vm=0)
        k.I(f'v_readfirstlane_b32 s41, v{o}')
        k.I(f'v_readfirstlane_b32 s42, v{o+2}')
        k.I('s_sub_u32 s3, s3, 1')
        k.I('s_cbranch_scc1 Lwg_out')
        k.I('s_sleep 4')
        k.I('s_cmp_lg_u32 s41, s42')
        k.I('s_cbranch_scc1 Lwg_poll')
        k.label('Lwg_out')
        if env('WGU_GATE', 0) > 1: k.I(f's_sleep {env("WGU_GATE", 0)}')
        k.I('s_mov_b64 exec, -1')
        k.label('Lwg_go')
    k.barrier(vm=0)
    for j in range(2):
        for mt in range(3):
            for hf in range(2):
                off = 4*hf*384 + 192*j + (12288 if mt == 1 else 0) + (32 if mt == 2 else 0)
                k.I(f'ds_read_b64_tr_b16 {vr(o+(3*j+mt)*4+2*hf,2)}, v{r2 if mt == 2 else ra} offset:{off}')
    for j in range(2):
        for mt in range(3):
            k.I(f'buffer_store_dwordx4 {vr(o+(3*j+mt)*4,4)}, v{vo}, s[36:39], s{26+j} offen offset:{1024*mt}{SIDE_ST}')
gen4.role_wgu = role_wgu5

gen4.role_wt = role_wt5; gen4.role_wd = role_wd5
gen4.CNT.update(wt=N_WT5, wd=N_WD5)
for _r in ('modr', 'wgu', 'wt'):
    if os.environ.get('CNT_' + _r): gen4.CNT[_r] = int(os.environ['CNT_' + _r])

def pack6(k, base, cs, sn, alt):
    def op(r, j, neg):
        n = neg ^ (alt and (j & 1))
        return ('-' if n else '') + f'v{r+j}'
    for p in range(2):
        k.I(f'v_cvt_pk_bf16_f32 v{base+p}, {op(sn,2*p,True)}, {op(sn,2*p+1,True)}')
        k.I(f'v_cvt_pk_bf16_f32 v{base+2+p}, {op(cs,2*p,False)}, {op(cs,2*p+1,False)}')
        k.I(f'v_cvt_pk_bf16_f32 v{base+4+p}, {op(sn,2*p,False)}, {op(sn,2*p+1,False)}')
def flip6(base): return [f'v_xor_b32 v{base+j}, s26, v{base+j}' for j in (0, 1, 4, 5)]
WIM, WRE = 0, 2

def zipemit(k, main, fill, per):
    fill = list(fill)
    for m in main:
        k.I(m)
        for _ in range(per):
            if fill: k.I(fill.pop(0))
    for f in fill: k.I(f)

def gen_C5main():
    k = Kernel('kc_kernel')
    stamp_begin(k)
    k.I('s_cmp_ge_u32 s2, 321')
    k.I('s_cbranch_scc1 LC_exit')
    k.I(f's_load_dwordx2 s[4:5], s[0:1], {KA["ws"]}')
    va = VAlloc(2)
    vl = va.get(); vo16 = va.get(); vo8 = va.get(); yo = va.get(); wq = va.get(8, 2)
    k.I('v_lshrrev_b32 v1, 6, v0')
    k.I(f'v_and_b32 v{vl}, 63, v0')
    k.I('v_readfirstlane_b32 s22, v1')
    k.I(f'v_lshlrev_b32 v{vo16}, 4, v{vl}')
    k.I(f'v_lshlrev_b32 v{vo8}, 3, v{vl}')
    k.I('s_and_b32 s20, s2, 7')
    k.I('s_lshl_b32 s20, s20, 2')
    k.I('s_bfe_u32 s21, s2, 0x20003')
    k.I('s_add_u32 s20, s20, s21')
    k.I('s_and_b32 s21, s2, 0x1e0')
    k.I('s_add_u32 s20, s20, s21')
    k.I('s_lshl_b32 s23, s22, 11')
    k.I('s_lshl_b32 s24, s20, 13')
    k.I('s_lshl_b32 s27, s22, 10')
    k.I('s_add_u32 s27, s27, s24')
    k.I('s_add_u32 s28, s27, 4096')
    k.I('s_add_u32 s24, s24, s23')
    k.I('s_mov_b32 m0, s23')
    k.I('s_cmp_eq_u32 s20, 0')
    k.I('s_cselect_b32 s25, 0, 1.0')
    k.I('s_cmp_eq_u32 s20, 320')
    k.I('s_cselect_b32 s25, 0, s25')
    k.I('s_mov_b32 s26, 0x80008000')
    fi = va.get(); fq4 = va.get(); fk = va.get(); fw16 = va.get()
    ta = va.get(2); sg2 = va.get(2, 2); tmp = va.get(8, 2); tc = tmp; ts = tmp + 4
    k.I(f'v_and_b32 v{fi}, 15, v{vl}')
    k.I(f'v_lshrrev_b32 v{yo}, 1, v{fi}')
    k.I(f'v_and_b32 v{fq4}, 0x30, v{vl}')
    k.I(f'v_add_u32 v{yo}, v{yo}, v{fq4}')
    k.I(f'v_mul_u32_u24 v{yo}, {YT_ST}, v{yo}')
    k.I(f'v_and_b32 v{ta}, 1, v{fi}')
    k.I(f'v_lshl_add_u32 v{yo}, v{ta}, 4, v{yo}')
    k.I(f's_mul_i32 s29, s22, {64*YT_ST}')
    k.I('s_lshl_b32 s30, s20, 5')
    k.I('s_add_u32 s29, s29, s30')
    k.I(f's_add_u32 s30, s29, {8*YT_ST}')
    k.I(f'v_lshlrev_b32 v{sg2}, 31, v{fi}')
    k.I(f'v_or_b32 v{sg2}, 1.0, v{sg2}')
    k.I(f'v_cvt_f32_u32 v{fi}, v{fi}')
    k.I(f'v_lshrrev_b32 v{fq4}, 2, v{fq4}')
    k.I(f'v_cvt_f32_u32 v{fq4}, v{fq4}')
    k.I(f'v_lshlrev_b32 v{fw16}, 4, v1')
    k.I(f'v_cvt_f32_u32 v{fw16}, v{fw16}')
    k.I(f'v_add_f32 v{fk}, v{fw16}, v{fi}')
    def angles(step_reg, scale, base_add, dst, q=None):
        k.I(f'v_mul_f32 v{ta}, {fhex(scale)}, v{step_reg}')
        k.I(f'v_mul_f32 v{ta+1}, v{fq4 if q is None else q}, v{ta}')
        for j in range(4): k.I(f'v_fmamk_f32 v{dst+j}, v{ta}, {fhex(float(base_add + j))}, v{ta+1}')
    def sincos(c, s):
        for j in range(4):
            k.I(f'v_cos_f32 v{c+j}, v{s+j}')
            k.I(f'v_sin_f32 v{s+j}, v{s+j}')
    def flip(c, s):
        for p in (0, 2):
            k.I(f'v_pk_mul_f32 {vr(c+p,2)}, {vr(c+p,2)}, {vr(sg2,2)} op_sel_hi:[1,0]')
            k.I(f'v_pk_mul_f32 {vr(s+p,2)}, {vr(s+p,2)}, {vr(sg2,2)} op_sel_hi:[1,0]')
    f64 = va.get(24, 2); f32 = va.get(24, 2)
    c1 = va.get(8, 2); s1 = va.get(8, 2); c2 = va.get(8, 2); s2 = va.get(8, 2)
    for kap in range(2):
        angles(fk, 1.0/64, 16*kap, ts); sincos(tc, ts)
        pack6(k, f64+6*kap, tc, ts, False)
        flip(tc, ts)
        pack6(k, f64+6*(kap+2), tc, ts, False)
        if kap == 0:
            k.srd(8, 4, XT_SZ, XT)
            k.srd(12, 4, XT_SZ, WT)
            k.I(f'buffer_load_dwordx4 v{vo16}, s[8:11], s24 offen lds', tag='x')
            k.I(f'buffer_load_dwordx4 v{vo16}, s[8:11], s24 offen offset:1024 lds', tag='x')
            for V in range(2):
                k.I(f'buffer_load_dwordx2 {vr(wq+2*V,2)}, v{vo8}, s[12:15], s27 offen offset:{512*V}')
                k.I(f'buffer_load_dwordx2 {vr(wq+4+2*V,2)}, v{vo8}, s[12:15], s28 offen offset:{512*V}')
            k.srd(16, 4, 256 * YT_ST, YT)
            mark(k, 1)
    for N in range(2):
        angles(fk, 1.0/2048, 16*N, s1+4*N); sincos(c1+4*N, s1+4*N)
    angles(fi, 1.0/32, 0, ts); sincos(tc, ts)
    pack6(k, f32+0, tc, ts, False)
    pack6(k, f32+12, tc, ts, True)
    flip(tc, ts)
    pack6(k, f32+6, tc, ts, False)
    pack6(k, f32+18, tc, ts, True)
    k.I(f'v_add_f32 v{fw16}, v{fw16}, v{fq4}')
    for N in range(2):
        if N: k.I(f'v_add_f32 v{fi}, {fhex(16.0)}, v{fi}')
        angles(fi, 1.0/2048, 0, s2+4*N, q=fw16); sincos(c2+4*N, s2+4*N)
    wa = fk
    k.I(f'v_add_u32 v{wa}, s23, v{vo16}')
    mark(k, 2)
    k.wait_tag('x')
    k.I('s_barrier')
    mark(k, 3)
    dat = va.get(32, 4); acc = va.get(16, 4); pk = va.get(8, 4)
    acc2 = dat; pk2 = dat + 16
    for N in range(2):
        for kap in range(4):
            k.I(f'ds_read_b128 {vr(dat+(2*kap+N)*4,4)}, v{vo16} offset:{2048*kap+1024*N}')
    for N in range(2):
        for kap in range(4):
            for c in range(2):
                dd = vr(acc+(2*N+c)*4, 4)
                k.I(f'{MF16} {dd}, {vr(dat+(2*kap+N)*4,4)}, {vr(f64+6*kap+(WIM if c else WRE),4)}, {dd if kap else 0}')
    for N in range(2):
        cmul4(k, acc+8*N, acc+8*N+4, c1+4*N, s1+4*N, pk+4*N, tmp, False)
        if N == 0: continue
    ms = []
    for N in range(2):
        for V in range(2):
            for c in range(2):
                dd = vr(acc2+(2*V+c)*4, 4)
                ms.append(f'{MF16} {dd}, {vr(f32+(2*V+N)*6+(WIM if c else WRE),4)}, {vr(pk+4*N,4)}, {dd if N else 0}')
    wr_ = c1; wi_ = s1
    fl = []
    for j in range(4):
        fl.append(f'v_lshlrev_b32 v{wr_+2*j}, 16, v{wq+j}')
        fl.append(f'v_and_b32 v{wr_+2*j+1}, 0xffff0000, v{wq+j}')
        fl.append(f'v_lshlrev_b32 v{wi_+2*j}, 16, v{wq+4+j}')
        fl.append(f'v_and_b32 v{wi_+2*j+1}, 0xffff0000, v{wq+4+j}')
    zipemit(k, ms, fl, 2)
    mark(k, 4)
    for w_ in range(4):
        for f in flip6(f32+6*w_)[:2 if w_ >= 2 else 4]: k.I(f)
    for V in range(2):
        cmul4(k, acc2+8*V, acc2+8*V+4, wr_+4*V, wi_+4*V, pk2+4*V, tmp, True)
        if V == 0:
            for w_ in (2, 3):
                for f in flip6(f32+6*w_)[2:]: k.I(f)
    ms = []
    for V in range(2):
        for N in range(2):
            for c in range(2):
                dd = vr(acc+(2*N+c)*4, 4)
                ms.append(f'{MF16} {dd}, {vr(pk2+4*V,4)}, {vr(f32+(2*N+V)*6+(WIM if c else WRE),4)}, {dd if V else 0}')
    fl = []
    for kap in range(4): fl += flip6(f64+6*kap)
    zipemit(k, ms, fl, 2)
    mark(k, 5)
    for N in range(2):
        cmul4(k, acc+8*N, acc+8*N+4, c2+4*N, s2+4*N, pk+4*N, tmp, True)
        k.I(f'ds_write_b128 v{wa}, {vr(pk+4*N,4)} offset:{8192+1024*N}')
    k.barrier()
    mark(k, 6)
    for N in range(2):
        for kap in range(4):
            k.I(f'ds_read_b128 {vr(dat+(2*kap+N)*4,4)}, v{vo16} offset:{8192+2048*kap+1024*N}')
    for N in range(2):
        for kap in range(4):
            for c in range(2):
                dd = vr(acc+(2*N+c)*4, 4)
                k.I(f'{MF16} {dd}, {vr(f64+6*kap+(WIM if c else WRE),4)}, {vr(dat+(2*kap+N)*4,4)}, {dd if kap else 0}')
    for N in range(2):
        re = acc+8*N; im = re+4
        for p in range(2):
            a, b = 2*p, 2*p+1
            k.I(f'v_fma_f32 v{tmp+4*p+0}, -s25, v{im+b}, v{re+a}')
            k.I(f'v_fma_f32 v{tmp+4*p+1}, s25, v{im+a}, v{re+b}')
            k.I(f'v_fma_f32 v{tmp+4*p+2}, s25, v{im+b}, v{re+a}')
            k.I(f'v_fma_f32 v{tmp+4*p+3}, -s25, v{im+a}, v{re+b}')
        for j in range(4):
            k.I(f'v_cvt_pk_bf16_f32 v{pk+4*N+j}, v{tmp+2*j}, v{tmp+2*j+1}')
        k.I(f'buffer_store_dwordx4 {vr(pk+4*N,4)}, v{yo}, s[16:19], s{29+N} offen{" sc1" if env("YT_SC1", 0) else ""}')
    stamp_end(k, 2, 4)
    k.label('LC_exit')
    k.I('s_endpgm')
    return k, (321, 256, 16384)
gen4.gen_C = gen_C5main
def gen_C5():
    k, (g, b, l) = gen4.gen_C4()
    return k, (g, b, 24576)
def gen_K15():
    k, (g, b, l) = gen4.gen_K1()
    return k, (g, b, env('K1_LDS', 26112))

from def5 import gen_DEF5
from def7 import gen_DEF7, role_tab
from def8 import gen_DEF8
gen4.MISC_EXTRA.append(role_tab)
KERNELS = (gen_K15, gen_C5, gen_DEF8 if env('POISON', 1) else gen_DEF7)
if __name__ == '__main__':
    out = sys.argv[1] if len(sys.argv) > 1 else 'adaLN_cond__spectral_gfnet__glu_gated_bilinear__prompt.s'
    if len(sys.argv) > 2 and sys.argv[2] == 'stamps': gen.STAMPS = True
    build(out, KERNELS)
```

```python
import sys, os, gen7, gen, gen2, gen4, gen5, def7, def10
from gen import *
K = os.environ['SPIN_K']; T = int(os.environ['SPIN_T']); M = int(os.environ['SPIN_M']); NTH = int(os.environ.get('SPIN_N', 0))
cnt = [0]
def spin(k):
    k.nl = getattr(k, 'nl', 0) + 1
    lab = f'Lsp_{k.name}_{k.nl}'
    k.waitcnt(lgkm=0)
    if os.environ.get('SPIN_SOME'):
        k.I('s_and_b32 s98, s2, 31')
        k.I('s_cmp_lg_u32 s98, 5')
        k.I(f's_cbranch_scc1 {lab}_o')
    k.label(lab)
    k.I('s_memrealtime s[98:99]')
    k.waitcnt(lgkm=0)
    k.I('s_sub_u32 s98, s98, s96')
    k.I(f's_cmp_lt_u32 s98, {T}')
    k.I(f's_cbranch_scc1 {lab}')
    k.label(lab + '_o')
def sb(k):
    if k.name.startswith(K): k.I('s_memrealtime s[96:97]')
def mk(k, i, wait=True):
    if k.name.startswith(K) and i == M:
        if cnt[0] == NTH: spin(k)
        cnt[0] += 1
def se(k, idx, ws): mk(k, 99)
for m in (gen, gen2, gen4, gen5, def7, def10):
    m.stamp_begin = sb; m.stamp_end = se
for m in (gen, gen2, gen4, gen5): m.mark = mk
def10._mark = mk
build(sys.argv[1], gen7.KERNELS)
```

```python
import os, math
import gen
from gen import *
from gen2 import *
from gen4 import YT, GR, EPOCH, unpack_gran, Rec, rec
XS = YT; XS_ST = 10368
A0 = FLAGS + 0x3000; A1 = A0 + 0x400; A2 = A0 + 0x800; GO = A0 + 0xC00
TAG = 100
class Fix:
    def __init__(self, seq): self.seq = list(seq)
    def get(self, *a): return self.seq.pop(0)

def phase1(k, R, um, WS_END, XL, TL):
    vl, vo16, vi, vq = R['vl'], R['vo16'], R['vi'], R['vq']
    PL = 5184; ML = 4 * PL; MP = 26112; TLD = 81920; GL = TLD + 20736; BS = 5136; BL = 5136 + env('T_PAD', 16)
    OOB = '0x7f000000'
    k.I(f's_load_dwordx2 s[58:59], s[0:1], {KA["ws"]}')
    k.I(f's_load_dwordx4 s[8:11], s[0:1], {KA["c"]}')
    k.I(f's_load_dwordx2 s[6:7], s[0:1], {KA["x"]}')
    k.I(f's_load_dwordx4 s[60:63], s[0:1], {KA["wr"]}')
    k.I(f's_load_dwordx4 s[92:95], s[0:1], {KA["wg"]}')
    k.I('s_getpc_b64 s[28:29]')
    k.raw('LU_pc0:')
    k.I('s_lshr_b32 s30, s2, 3')
    k.I('s_lshl_b32 s30, s30, 6')
    k.I('v_lshlrev_b32 v250, 11, v0')
    k.I('v_add_u32 v250, s30, v250')
    k.I('v_min_u32 v250, Lcode_end-LU_pc0-4, v250')
    k.I('v_mov_b32 v251, s29')
    k.I('v_add_co_u32 v252, vcc, s28, v250')
    k.I('v_addc_co_u32 v253, vcc, 0, v251, vcc')
    k.I('v_cmp_gt_u32 vcc, 20, v0')
    k.I('s_and_b64 exec, exec, vcc')
    k.I('s_cbranch_execz LU_e0')
    k.I('global_load_dword v255, v[252:253], off')
    k.vm = []
    k.label('LU_e0')
    k.I('s_mov_b64 exec, -1')
    va = VAlloc(R['keep'], 250)
    wa = va.get(); ru = va.get(); rv = va.get(); so = va.get(); gA = va.get(); gB = va.get(); lB = va.get(); rm = va.get()
    wo = va.get(3); rg = va.get(); r2 = va.get(); rT = va.get(); dT = va.get(); vz = va.get()
    xs = va.get(20, 4); md = va.get(20, 4); f40 = va.get(100, 4); f16i = f40 + 62; cs = f40 + 68; sn = f40 + 80; f16 = f40 + 92
    tmp = va.get(8, 2); dat = va.get(12, 2)
    og = va.get(24, 4); lo = va.get(24, 4); ex = va.get(14, 2)
    mv = VAlloc(og, ex + 14)
    vw = mv.get(20, 4); acc = mv.get(8, 4); up = mv.get(8, 2); sv = mv.get(10, 2); vc = mv.get(10, 2); tt = vc + 5; voff = mv.get(); vco = mv.get(); t0 = mv.get(); t1 = mv.get(); vt = mv.get(2, 2)
    zr = dat
    k.I('v_lshrrev_b32 v1, 6, v0')
    k.I(f'v_and_b32 v{vl}, 63, v0')
    k.I('v_readfirstlane_b32 s22, v1')
    k.I(f'v_lshlrev_b32 v{vo16}, 4, v{vl}')
    k.I(f'v_mov_b32 v{vz}, 0')
    k.I(f'v_lshrrev_b32 v{t1}, 3, v0')
    k.I(f'v_mul_u32_u24 v{voff}, 7680, v{t1}')
    k.I(f'v_and_b32 v{t0}, 7, v0')
    k.I(f'v_lshl_add_u32 v{voff}, v{t0}, 4, v{voff}')
    k.I(f'v_lshlrev_b32 v{vco}, 1, v{t1}')
    k.I('s_and_b32 s21, s2, 3')
    k.I('s_lshr_b32 s20, s2, 2')
    k.I('s_lshl_b32 s23, s20, 7')
    k.I(f's_mul_i32 s3, s21, {160*7680}')
    k.I('s_add_u32 s23, s23, s3')
    k.I('s_cmp_lt_u32 s2, 240')
    k.I(f's_cselect_b32 s23, s23, {OOB}')
    k.I('s_mul_i32 s3, s21, 320')
    k.srd(24, 10, D * 6 * D * 2)
    k.I(f's_load_dword s{TAG}, s[58:59], {EPOCH}')
    k.srd(28, 8, D * 2)
    for i in range(5):
        k.I(f'buffer_load_dwordx4 {vr(vw+4*i,4)}, v{voff}, s[24:27], s23 offen nt')
        if i < 4: k.I(f's_add_u32 s23, s23, {32*7680}')
        if i == 0:
            for j in range(5): k.I(f'buffer_load_ushort v{vc+j}, v{vco}, s[28:31], s3 offen offset:{64*j}')
    um(k, 1)
    k.srd(12, 58, WS_END)
    k.srd(8, 6, S * D * 2)
    k.I(f'v_and_b32 v{vi}, 15, v{vl}')
    k.I(f'v_lshrrev_b32 v{vq}, 4, v{vl}')
    k.I('s_and_b32 s32, s2, 6')
    k.I('s_lshl_b32 s32, s32, 1')
    k.I('s_lshr_b32 s33, s2, 6')
    k.I('s_add_u32 s32, s32, s33')
    k.I('s_bfe_u32 s33, s2, 0x30003')
    k.I('s_and_b32 s3, s2, 1')
    k.I('s_lshl_b32 s3, s3, 3')
    k.I('s_add_u32 s33, s33, s3')
    k.I('s_lshl_b32 s34, s32, 7')
    k.I('s_lshl_b32 s3, s33, 1')
    k.I('s_add_u32 s34, s34, s3')
    k.I('s_and_b32 s3, s22, 1')
    k.I('s_lshl_b32 s3, s3, 6')
    k.I('s_add_u32 s34, s34, s3')
    k.I('s_lshr_b32 s3, s22, 1')
    k.I('s_add_u32 s34, s34, s3')
    k.I('s_mul_i32 s34, s34, 1280')
    k.I(f's_add_u32 s35, s34, {32*1280}')
    k.I('s_mul_i32 s36, s22, 2560')
    k.I(f's_add_u32 s36, s36, {XL}')
    k.I('s_add_u32 s37, s36, 1280')
    k.I('s_lshl_b32 s3, s32, 4')
    k.I('s_add_u32 s3, s3, s33')
    k.I(f's_mul_i32 s3, s3, {XS_ST}')
    k.I(f's_add_u32 s3, s3, {XS}')
    k.I('s_add_u32 s40, s58, s3')
    k.I('s_addc_u32 s41, s59, 0')
    k.I('s_mov_b32 s42, 10304')
    k.I('s_mov_b32 s43, 0x00020000')
    k.I('s_movk_i32 s38, 0x1000')
    k.I('s_movk_i32 s39, 0x2000')
    k.I(f'v_lshlrev_b32 v{so}, 4, v0')
    for j in range(4): k.I(f'v_mov_b32 v{zr+j}, 0')
    k.I('s_sub_u32 s44, s2, 128')
    k.I('s_lshr_b32 s45, s2, 7')
    k.I('s_and_b32 s49, s44, 7')
    k.I('s_lshl_b32 s46, s49, 2')
    k.I('s_add_u32 s46, s46, s22')
    k.I('s_lshl_b32 s46, s46, 3')
    k.I('s_bfe_u32 s3, s44, 0x30003')
    k.I('s_add_u32 s46, s46, s3')
    k.I(f's_mul_i32 s46, s46, {BS}')
    k.I('s_cmp_eq_u32 s45, 1')
    k.I(f's_cselect_b32 s46, s46, {OOB}')
    k.I('s_add_u32 s47, s46, 4096')
    k.I('s_bitcmp0_b32 s44, 6')
    k.I('s_cselect_b32 s16, s60, s62')
    k.I('s_cselect_b32 s17, s61, s63')
    k.I(f's_mov_b32 s18, {S * 321 * 2}')
    k.I('s_mov_b32 s19, 0x00020000')
    k.I(f's_mul_i32 s48, s22, {BL}')
    k.I(f's_add_u32 s48, s48, {TLD}')
    k.I('s_add_u32 s7, s48, 4096')
    k.I('s_lshr_b32 s6, s44, 4')
    k.I('s_lshl_b32 s6, s6, 11')
    k.I('s_lshl_b32 s3, s49, 8')
    k.I('s_add_u32 s6, s6, s3')
    k.I('s_and_b32 s3, s44, 8')
    k.I('s_lshl_b32 s3, s3, 4')
    k.I('s_add_u32 s6, s6, s3')
    k.I(f's_add_u32 s6, s6, {WT}')
    k.I('s_cmp_eq_u32 s45, 1')
    k.I(f's_cselect_b32 s6, s6, {OOB}')
    tg = [(['s_mov_b32 m0, s48'] if i == 0 else []) + [(f'buffer_load_dwordx4 v{vo16}, s[16:19], s46 offen offset:{1024*i} nt lds', 't')] for i in range(4)]
    tg.append(['s_mov_b32 m0, s7', (f'buffer_load_dwordx4 v{vo16}, s[16:19], s47 offen nt lds', 't')])
    tg.append(['s_mov_b64 exec, 1', (f'buffer_load_dwordx4 v{vo16}, s[16:19], s47 offen offset:1024 nt lds', 't'), 's_mov_b64 exec, -1'])
    k.I('s_cselect_b64 s[32:33], -1, 0')
    tg = [['s_mov_b64 exec, s[32:33]'] + [t for g_ in tg[:5] for t in g_] + ['s_and_b64 exec, exec, 1'] + tg[5][1:]]
    bg = []
    for c in range(2):
        bg.append([f's_mov_b32 m0, s{36+c}', (f'buffer_load_dwordx4 v{vo16}, s[8:11], s{34+c} offen lds', 'xx')])
        bg.append(['s_mov_b64 exec, 0xffff', (f'buffer_load_dwordx4 v{vo16}, s[8:11], s{34+c} offen offset:1024 lds', 'xx'), 's_mov_b64 exec, -1'])
    zs = [[(f'buffer_store_dwordx4 {vr(zr,4)}, v{so}, s[40:43], {o_} offen sc1', 'z1')] for o_ in ('0', 's38', 's39')]
    fi = md; fq = md + 1; fq4 = md + 2; ta = md + 4; t8 = md + 8
    k.I(f'v_cvt_f32_u32 v{fi}, v{vi}')
    k.I(f'v_cvt_f32_u32 v{fq}, v{vq}')
    k.I(f'v_mul_f32 v{fq4}, 4.0, v{fq}')
    ZE = env('Z_EARLY', 1)
    k.bg = bg + zs + tg; k.emit_bg(99)
    if env('TLBW', 0):
        k.I(f'v_lshlrev_b32 v{ru}, {env("TLB_SH", 21)}, v{vl}')
        k.I('s_cmp_eq_u32 s22, 3')
        k.I('s_cselect_b64 exec, -1, 0')
        k.I(f'buffer_load_dword v254, v{ru}, s[12:15], 0 offen')
        k.I(f'buffer_load_dword v253, v{ru}, s[52:55], 0 offen offset:64')
        k.I('s_mov_b64 exec, -1')
        k.vm = k.vm[:-2] + [(set(), None), (set(), None)]
    cw = f40
    k.I(f'v_add_u32 v{wa}, {TL}, v{vo16}')
    k.I('s_cmp_eq_u32 s22, 3')
    k.I('s_cbranch_scc1 LU_c3')
    k.I(f'v_lshl_add_u32 v{ta}, v1, 4, v{vi}')
    k.I(f'v_cmp_gt_u32 vcc, 40, v{ta}')
    k.I(f'v_cvt_f32_u32 v{ta}, v{ta}')
    k.I(f'v_mul_f32 v{ta+1}, {fhex(1.0/40)}, v{ta}')
    k.I(f'v_mul_f32 v{ta+2}, v{fq}, v{ta+1}')
    for e in range(10): k.I(f'v_fmamk_f32 v{cw+30+e}, v{ta+1}, {fhex(4.0*e)}, v{ta+2}')
    k.I(f'v_mul_f32 v{ta+1}, {fhex(1.0/640)}, v{ta}')
    k.I(f'v_mul_f32 v{ta+2}, v{fq4}, v{ta+1}')
    for r in range(4): k.I(f'v_fmamk_f32 v{cw+44+r}, v{ta+1}, {fhex(float(r))}, v{ta+2}')
    for e in range(10):
        k.I(f'v_cos_f32 v{cw+20+e}, v{cw+30+e}')
        k.I(f'v_sin_f32 v{cw+30+e}, v{cw+30+e}')
    for r in range(4):
        k.I(f'v_cos_f32 v{cw+40+r}, v{cw+44+r}')
        k.I(f'v_sin_f32 v{cw+44+r}, v{cw+44+r}')
    for e in range(10):
        k.I(f'v_cvt_pk_bf16_f32 v{cw+e}, v{cw+20+e}, v{cw+30+e}')
        k.I(f'v_cvt_pk_bf16_f32 v{cw+10+e}, -v{cw+30+e}, v{cw+20+e}')
    for r in range(8): k.I(f'v_cndmask_b32 v{cw+40+r}, 0, v{cw+40+r}, vcc')
    k.I(f'v_lshl_add_u32 v{ru}, v1, 10, v{wa}')
    k.I(f'v_lshl_add_u32 v{rv}, v1, 12, v{ru}')
    for r in range(5): k.I(f'ds_write_b128 v{rv}, {vr(cw+4*r,4)} offset:{1024*r}')
    k.I(f'ds_write_b128 v{ru}, {vr(cw+40,4)} offset:{17*1024}')
    k.I(f'ds_write_b128 v{ru}, {vr(cw+44,4)} offset:{20*1024}')
    k.I('s_branch LU_c4')
    k.label('LU_c3', fresh=True)
    k.I(f'v_lshrrev_b32 v{ta}, 1, v{vi}')
    k.I(f'v_cvt_f32_u32 v{ta}, v{ta}')
    k.I(f'v_and_b32 v{ta+1}, 1, v{vi}')
    k.I(f'v_cvt_f32_u32 v{ta+1}, v{ta+1}')
    k.I(f'v_mul_f32 v{ta+1}, 0x3e800000, v{ta+1}')
    for U in range(2):
        k.I(f'v_add_f32 v{ta+2}, {fhex(8.0*U)}, v{ta}')
        k.I(f'v_mul_f32 v{ta+2}, {fhex(1.0/16)}, v{ta+2}')
        k.I(f'v_fma_f32 v{ta+3}, v{fq4}, v{ta+2}, v{ta+1}')
        for j in range(4): k.I(f'v_fmamk_f32 v{tmp+4+j}, v{ta+2}, {fhex(float(j))}, v{ta+3}')
        for j in range(4):
            k.I(f'v_cos_f32 v{tmp+j}, v{tmp+4+j}')
            k.I(f'v_sin_f32 v{tmp+4+j}, v{tmp+4+j}')
        for j in range(4): k.I(f'v_cvt_pk_bf16_f32 v{f16+4*U+j}, v{tmp+2*j}, v{tmp+2*j+1}')
    k.I(f'v_mul_f32 v{ta+2}, {fhex(1.0/16)}, v{fi}')
    k.I(f'v_mul_f32 v{ta+3}, v{fq4}, v{ta+2}')
    for j in range(4): k.I(f'v_fmamk_f32 v{tmp+4+j}, v{ta+2}, {fhex(float(j))}, v{ta+3}')
    for j in range(4):
        k.I(f'v_cos_f32 v{tmp+j}, v{tmp+4+j}')
        k.I(f'v_sin_f32 v{tmp+4+j}, v{tmp+4+j}')
    for p in range(2):
        k.I(f'v_cvt_pk_bf16_f32 v{f16i+p}, v{tmp+4+2*p}, v{tmp+5+2*p}')
        k.I(f'v_cvt_pk_bf16_f32 v{f16i+2+p}, v{tmp+2*p}, v{tmp+1+2*p}')
        k.I(f'v_cvt_pk_bf16_f32 v{f16i+4+p}, -v{tmp+4+2*p}, -v{tmp+5+2*p}')
    k.I(f'v_mov_b32 v{f40+60}, 0'); k.I(f'v_mov_b32 v{f40+61}, 0')
    for r in (15, 16, 23, 24): k.I(f'ds_write_b128 v{wa}, {vr(f40+4*r,4)} offset:{1024*r}')
    k.label('LU_c4')
    um(k, 2)
    R5 = range(5)
    for i in R5: k.I(f'v_lshlrev_b32 v{vc+i}, 16, v{vc+i}')
    for i in R5: k.I(f'v_mul_f32 v{tt+i}, {fhex(-math.log2(math.e))}, v{vc+i}')
    for i in R5: k.I(f'v_exp_f32 v{tt+i}, v{tt+i}')
    for i in R5: k.I(f'v_add_f32 v{tt+i}, 1.0, v{tt+i}')
    for i in R5: k.I(f'v_rcp_f32 v{tt+i}, v{tt+i}')
    for i in R5: k.I(f'v_mul_f32 v{vc+i}, v{vc+i}, v{tt+i}')
    for i in R5: k.I(f'v_cvt_pk_bf16_f32 v{vc+i}, v{vc+i}, v{vc+i}')
    for i in R5: k.I(f'v_and_b32 v{sv+2*i}, 0xffff0000, v{vc+i}')
    for i in R5:
        for j in range(4):
            k.I(f'v_lshlrev_b32 v{up+2*j}, 16, v{vw+4*i+j}')
            k.I(f'v_and_b32 v{up+2*j+1}, 0xffff0000, v{vw+4*i+j}')
        for j in range(4):
            if i == 0: k.I(f'v_pk_mul_f32 {vr(acc+2*j,2)}, {vr(up+2*j,2)}, {vr(sv,2)} op_sel_hi:[1,0]')
            else: k.I(f'v_pk_fma_f32 {vr(acc+2*j,2)}, {vr(up+2*j,2)}, {vr(sv+2*i,2)}, {vr(acc+2*j,2)} op_sel_hi:[1,0,1]')
    for j in range(8): k.I(f'v_add_f32_dpp v{acc+j}, v{acc+j}, v{acc+j} row_ror:8 row_mask:0xf bank_mask:0xf')
    k.I(f'v_lshrrev_b32 v{t1}, 4, v0')
    k.I(f'v_lshlrev_b32 v{t1}, 8, v{t1}')
    k.I(f'v_lshl_add_u32 v{t1}, v{t0}, 5, v{t1}')
    k.I('s_mov_b32 exec_lo, 0x00ff00ff')
    k.I('s_mov_b32 exec_hi, 0x00ff00ff')
    k.I(f'ds_write_b128 v{t1}, {vr(acc,4)} offset:{MP}')
    k.I(f'ds_write_b128 v{t1}, {vr(acc+4,4)} offset:{MP+16}')
    k.I('s_mov_b64 exec, -1')
    k.I(f'v_lshlrev_b32 v{t0}, 2, v{vl}')
    k.I(f'v_add_u32 v{t1}, {MP}, v{t0}')
    k.wait_tag('z1')
    k.barrier()
    k.I(f's_add_u32 s{TAG}, s{TAG}, 1')
    k.I(f'v_mov_b32 v{vt}, s{TAG}')
    k.I('s_lshl_b32 s3, s2, 2')
    k.I(f's_add_u32 s3, s3, {A0}')
    k.I('s_cmp_eq_u32 s22, 3')
    k.I('s_cselect_b64 exec, 1, 0')
    k.I(f'buffer_store_dword v{vt}, v{vz}, s[12:15], s3 offen sc1')
    k.I('s_mov_b64 exec, -1')
    um(k, 3)
    k.I('s_cmp_lg_u32 s22, 0')
    k.I('s_cbranch_scc1 LU_m1')
    for j in range(8): k.I(f'ds_read2st64_b32 {vr(vw+2*j,2)}, v{t1} offset0:{2*j} offset1:{2*j+1}')
    k.I('s_sub_u32 s3, s20, 10')
    k.I('s_cmp_lt_u32 s3, 10')
    k.I('s_cselect_b32 s23, 1.0, 0')
    k.I('s_cmp_eq_u32 s21, 0')
    k.I('s_cselect_b32 s23, s23, 0')
    k.I(f's_mul_i32 s50, s21, {960*16}')
    k.I('s_lshl_b32 s3, s20, 8')
    k.I('s_add_u32 s50, s50, s3')
    k.I(f's_add_u32 s50, s50, {GR}')
    k.I('s_cmp_lt_u32 s2, 240')
    k.I(f's_cselect_b32 s50, s50, {OOB}')
    k.I('s_mov_b32 s4, 0x07060503')
    k.I('s_mov_b32 s5, 0x07060502')
    k.I('s_mov_b32 s51, 0x07060501')
    for j in range(4): k.I(f'v_pk_add_f32 {vr(vw+2*j,2)}, {vr(vw+2*j,2)}, {vr(vw+8+2*j,2)}')
    for j in range(2): k.I(f'v_pk_add_f32 {vr(vw+2*j,2)}, {vr(vw+2*j,2)}, {vr(vw+4+2*j,2)}')
    k.I(f'v_pk_add_f32 {vr(vw,2)}, {vr(vw,2)}, {vr(vw+2,2)}')
    k.I(f'v_add_f32 v{vw}, v{vw}, v{vw+1}')
    k.I(f'v_add_f32 v{vw}, s23, v{vw}')
    for j in range(1, 4): k.I(f'v_mov_b32_dpp v{vw+j}, v{vw} quad_perm:[{j},{j},{j},{j}] row_mask:0xf bank_mask:0xf')
    for j, sel in enumerate((4, 5, 51)): k.I(f'v_perm_b32 v{vw+j}, v{vw+j}, v{vw+3}, s{sel}')
    k.I(f'v_mov_b32 v{vw+3}, s{TAG}')
    k.I('s_mov_b32 exec_lo, 0x11111111')
    k.I('s_mov_b32 exec_hi, 0x11111111')
    k.I(f'buffer_store_dwordx4 {vr(vw,4)}, v{t0}, s[12:15], s50 offen sc1', tag='zt')
    k.I('s_mov_b64 exec, -1')
    k.label('LU_m1')
    um(k, 4)
    k.I('s_lshl_b32 s49, s2, 14')
    k.I('s_lshl_b32 s3, s22, 12')
    k.I('s_add_u32 s49, s49, s3')
    k.I(f's_add_u32 s49, s49, {XT}')
    k.I('s_cmp_lt_u32 s2, 161')
    k.I(f's_cselect_b32 s49, s49, {OOB}')
    k.I('s_cselect_b64 s[90:91], -1, 0')
    zy = [['s_mov_b64 exec, s[90:91]', (f'buffer_store_dwordx4 {vr(ex+10,4)}, v{vo16}, s[12:15], s49 offen offset:{1024*j} sc1', 'zt'), 's_mov_b64 exec, -1'] for j in range(4)]
    k.I('s_sub_u32 s89, s2, 84')
    k.I('s_cmp_ge_u32 s89, 4')
    k.I('s_cbranch_scc1 LU_r0')
    k.I(f'v_lshlrev_b32 v{t8}, 7, v0')
    k.I(f'v_min_u32 v{t8}, {87*128}, v{t8}')
    k.I(f's_mov_b32 s3, {FLAGS}')
    k.I(f'buffer_store_dword v{zr}, v{t8}, s[12:15], s3 offen sc1', tag='zt')
    for j in range(4): k.I(f'v_mov_b32 v{tmp+j}, -1')
    k.I('s_mul_i32 s3, s89, 2560')
    k.I(f's_add_u32 s3, s3, {MODN + 2*2560}')
    k.I(f'v_min_u32 v{t8}, 2544, v{so}')
    k.I(f'buffer_store_dwordx4 {vr(tmp,4)}, v{t8}, s[12:15], s3 offen sc1', tag='zt')
    k.label('LU_r0')
    gw = wo
    for p in range(3):
        k.I(f'v_add_u32 v{gw+p}, {64*p}, v{vl}')
        k.I(f'v_mul_u32_u24 v{gw+p}, 171, v{gw+p}')
        k.I(f'v_lshrrev_b32 v{gw+p}, 12, v{gw+p}')
        k.I(f'v_mul_u32_u24 v{gw+p}, 2688, v{gw+p}')
        k.I(f'v_add_u32 v{gw+p}, v{gw+p}, v{vo16}')
    k.srd(24, 92, D * F * 2)
    k.srd(28, 94, D * F * 2)
    k.I('s_lshr_b32 s50, s2, 3')
    k.I('s_lshl_b32 s50, s50, 2')
    k.I('s_add_u32 s50, s50, s22')
    k.I(f's_mul_i32 s50, s50, {8*3072}')
    k.I('s_and_b32 s3, s2, 7')
    k.I('s_mul_i32 s3, s3, 384')
    k.I('s_add_u32 s50, s50, s3')
    k.I('s_not_b64 s[62:63], s[32:33]')
    k.I('s_mul_i32 s20, s22, 3072')
    k.I(f's_add_u32 s20, s20, {GL}')
    k.I('s_add_u32 s21, s20, 12288')
    gq = []
    for m_ in range(2):
        for p in range(3):
            gq.append(([f's_mov_b32 m0, s{20+m_}'] if p == 0 else []) + [(f'buffer_load_dwordx4 v{gw+p}, s[{24+4*m_}:{27+4*m_}], s50 offen offset:{1024*p} nt lds', 'g')])
    gq = [['s_mov_b64 exec, s[62:63]'] + g_ + ['s_mov_b64 exec, -1'] for g_ in gq]
    mix = gq
    k.bg = mix; k.bg_every = env('U_BG2', 4); gq = []
    for i in range(20): k.I(f'v_mov_b32 v{xs+i}, 0')
    k.I(f'v_lshl_add_u32 v{ta}, v{vl}, 1, s36')
    k.wait_tag('xx')
    for e in range(10):
        for c in range(2): k.I(f'ds_read_u16_d16_hi v{xs+2*e+c}, v{ta} offset:{128*e+1280*c}')
    for r in list(range(16)) + list(range(17, 25)): k.I(f'ds_read_b128 {vr(f40+4*r,4)}, v{wa} offset:{1024*r}')
    k.I(f'v_mul_u32_u24 v{ru}, 80, v{vq}')
    k.I(f'v_add_lshl_u32 v{wa}, v{ru}, v{vi}, 3')
    k.I(f's_mul_i32 s3, s22, {PL}')
    k.I(f'v_add_u32 v{wa}, s3, v{wa}')
    k.I(f'v_and_b32 v{ta+1}, 1, v0')
    k.I(f'v_lshrrev_b32 v{ta+2}, 1, v0')
    k.I(f'v_mul_u32_u24 v{ru}, {2*PL}, v{ta+1}')
    k.I(f'v_sub_u32 v{rv}, 384, v{ta+2}')
    k.I(f'v_lshl_add_u32 v{rv}, v{rv}, 3, v{ru}')
    k.I(f'v_lshl_add_u32 v{ru}, v{ta+2}, 3, v{ru}')
    k.I('s_mul_i32 s3, s22, 1280')
    k.I(f'v_lshl_add_u32 v{gA}, v{vl}, 4, s3')
    k.I('s_add_u32 s3, s3, 1024')
    k.I(f'v_lshl_add_u32 v{lB}, v{vi}, 4, s3')
    k.I(f'v_mul_u32_u24 v{gB}, {960*16}, v{vq}')
    k.I(f'v_add_u32 v{gB}, v{gB}, v{lB}')
    k.I(f'v_lshlrev_b32 v{rm}, 2, v{vl}')
    k.I(f'v_add_u32 v{rm}, {ML}, v{rm}')
    k.I(f'v_mov_b32 v{dat+10}, 0'); k.I(f'v_mov_b32 v{dat+11}, 0')
    sm = og; sq = og + 2; rr = og + 4; nmr = og + 6
    k.I(f'v_pk_add_f32 {vr(sm,2)}, {vr(xs,2)}, {vr(xs+2,2)}')
    k.I(f'v_pk_mul_f32 {vr(sq,2)}, {vr(xs,2)}, {vr(xs,2)}')
    k.I(f'v_pk_fma_f32 {vr(sq,2)}, {vr(xs+2,2)}, {vr(xs+2,2)}, {vr(sq,2)}')
    for e in range(2, 10):
        k.I(f'v_pk_add_f32 {vr(sm,2)}, {vr(sm,2)}, {vr(xs+2*e,2)}')
        k.I(f'v_pk_fma_f32 {vr(sq,2)}, {vr(xs+2*e,2)}, {vr(xs+2*e,2)}, {vr(sq,2)}')
    for p in range(4): k.I(f's_mov_b32 s{52+p}, {GR + 960*16*p}')
    k.I('s_mov_b32 s60, 0x04000c0c')
    k.I('s_mov_b32 s61, 0x0706000c')
    def gloads():
        for p in range(4): k.I(f'buffer_load_dwordx4 {vr(md+4*p,4)}, v{gA}, s[12:15], s{52+p} offen sc1')
        k.I(f'buffer_load_dwordx4 {vr(md+16,4)}, v{gB}, s[12:15], s52 offen sc1')
    PA = env('POLL_AT', 1)
    if PA == 0: k.bg_every = 0; k.emit_bg(99); gloads()
    wave_reduce_to_sgpr(k, [sm, sm+1, sq, sq+1], [8, 9, 10, 11])
    ln_scalars(k, 8, 10, rr, nmr, tmp)
    for e in range(10): k.I(f'v_pk_fma_f32 {vr(xs+2*e,2)}, {vr(xs+2*e,2)}, {vr(rr,2)}, {vr(nmr,2)}')
    k.bg_every = 0; k.emit_bg(99)
    if PA == 1: gloads()
    um(k, 5)
    k.wait_tag('t'); k.wait_tag('g')
    k.barrier()
    um(k, 6)
    if PA == 2: gloads()
    k.I('s_cmp_eq_u32 s45, 1')
    k.I('s_cbranch_scc1 LU_g1')
    k.I(f'v_bfe_u32 v{r2}, v{vl}, 2, 2')
    k.I(f'v_lshl_add_u32 v{rg}, v{vq}, 3, v{r2}')
    k.I(f'v_mul_u32_u24 v{rg}, 384, v{rg}')
    k.I('s_mul_i32 s3, s22, 48')
    k.I(f's_add_u32 s3, s3, {GL}')
    k.I(f'v_add_u32 v{rg}, s3, v{rg}')
    k.I(f'v_and_b32 v{wo}, 1, v{vl}')
    k.I(f'v_lshl_add_u32 v{r2}, v{wo}, 3, v{rg}')
    k.I(f'v_bfe_u32 v{wo}, v{vl}, 1, 1')
    k.I(f'v_mul_u32_u24 v{wo}, 12288, v{wo}')
    k.I(f'v_add_u32 v{r2}, v{r2}, v{wo}')
    k.I(f'v_and_b32 v{wo}, 3, v{vl}')
    k.I(f'v_lshl_add_u32 v{rg}, v{wo}, 3, v{rg}')
    for j in range(2):
        for mt in range(3):
            for hf in range(2):
                off = 4*hf*384 + 192*j + (12288 if mt == 1 else 0) + (32 if mt == 2 else 0)
                k.I(f'ds_read_b64_tr_b16 {vr(og+(3*j+mt)*4+2*hf,2)}, v{r2 if mt == 2 else rg} offset:{off}')
    k.label('LU_g1')
    k.I('s_and_b32 s47, s2, 7')
    k.I('s_lshl_b32 s47, s47, 3')
    k.I('s_add_u32 s47, s47, s22')
    k.I('s_mul_i32 s47, s47, 10')
    k.I('s_lshr_b32 s46, s2, 3')
    k.I('s_add_u32 s47, s47, s46')
    k.I('s_mul_i32 s47, s47, 3072')
    k.I('s_cmp_ge_u32 s46, 10')
    k.I(f's_cselect_b32 s3, {63*30720}, 0')
    k.I('s_add_u32 s47, s47, s3')
    k.I(f's_add_u32 s47, s47, {WGU}')
    k.I(f's_add_u32 s48, s47, {4*10*3072}')
    k.I(f'v_and_b32 v{rT}, 7, v0')
    k.I(f'v_lshlrev_b32 v{dT}, 4, v{rT}')
    k.I(f'v_mul_u32_u24 v{rT}, 642, v{rT}')
    k.I(f'v_lshrrev_b32 v{wo}, 3, v0')
    k.I(f'v_mul_u32_u24 v{wo}, 5, v{wo}')
    k.I(f'v_lshl_add_u32 v{rT}, v{wo}, 2, v{rT}')
    k.I(f'v_add_u32 v{rT}, {TLD}, v{rT}')
    k.I(f'v_lshl_add_u32 v{dT}, v{wo}, 14, v{dT}')
    k.I('s_cmp_lg_u32 s45, 1')
    k.I('s_cbranch_scc1 LU_t1')
    hi = ex + 2
    def rnd(rho):
        for ii in range(2):
            for rp in range(2):
                j = 2*ii + rp
                k.I(f'ds_read_u16 v{lo+4*rho+j}, v{rT} offset:{(2*rp)*BL + 2*ii + (4*rho if rho < 5 else 640)}')
                k.I(f'ds_read_u16 v{hi+4*(rho&1)+j}, v{rT} offset:{(2*rp+1)*BL + 2*ii + (4*rho if rho < 5 else 640)}')
    rnd(0)
    for rho in range(6):
        if rho < 5: rnd(rho + 1)
        for j in range(4): k.I(f'v_lshl_or_b32 v{lo+4*rho+j}, v{hi+4*(rho&1)+j}, 16, v{lo+4*rho+j}')
    k.label('LU_t1')
    um(k, 7)
    sb = []
    for rho in range(6):
        g = ['s_mov_b64 exec, s[32:33]', (f'buffer_store_dwordx4 {vr(lo+4*rho,4)}, v{dT}, s[12:15], s6 offen sc1', 'zt'), 's_mov_b64 exec, s[62:63]',
             (f'buffer_store_dwordx4 {vr(og+4*rho,4)}, v{vo16}, s[12:15], s{47+rho//3} offen offset:{1024*(rho%3)} sc1', 'zt'), 's_mov_b64 exec, -1']
        if rho < 5: g.append(f'v_add_u32 v{dT}, {16384 if rho < 4 else 156*16384}, v{dT}')
        if rho == 4: g += [f'v_mov_b32 v{wo+1}, {OOB}', f'v_cndmask_b32 v{dT}, v{wo+1}, v{dT}, s[28:29]']
        sb.append(g)
    k.I('v_cmp_gt_u32 s[28:29], 8, v0')
    for j in range(4): k.I(f'v_mov_b32 v{ex+10+j}, 0')
    tx = tmp
    k.I('s_mov_b32 s3, 0x40000')
    for p in range(5): k.I(f'v_xor_b32 v{tx+p}, s{TAG}, v{md+4*p+3}')
    st = k.save_state()
    k.label('LU_poll')
    k.I(f'v_or3_b32 v{tx}, v{tx}, v{tx+1}, v{tx+2}')
    k.I(f'v_or3_b32 v{tx}, v{tx}, v{tx+3}, v{tx+4}')
    k.I(f'v_cmp_ne_u32 vcc, 0, v{tx}')
    for p in (4, 0, 1, 2, 3): unpack_gran(k, md+4*p, tx+1+p, 60, 61)
    k.I('s_cbranch_vccz LU_go')
    k.I('s_sub_u32 s3, s3, 1')
    k.I('s_cbranch_scc1 LU_go')
    k.I('s_sleep 2')
    gloads()
    for p in range(5): k.I(f'v_xor_b32 v{tx+p}, s{TAG}, v{md+4*p+3}')
    k.I('s_branch LU_poll')
    k.label('LU_go')
    um(k, 8)
    k.bg = sb + zy; k.bg_every = env('U_BG3', 12)
    b_ = md + 16
    for j in range(4): k.I(f'v_mov_b32 v{tx+j}, v{b_+j}')
    for p in (0, 2):
        k.I(f'v_pk_add_f32 {vr(md+p,2)}, {vr(md+p,2)}, {vr(md+4+p,2)}')
        k.I(f'v_pk_add_f32 {vr(md+8+p,2)}, {vr(md+8+p,2)}, {vr(md+12+p,2)}')
    for j in range(4): k.I(f'v_permlane32_swap_b32 v{tx+j}, v{b_+j}')
    for p in (0, 2): k.I(f'v_pk_add_f32 {vr(md+p,2)}, {vr(md+p,2)}, {vr(md+8+p,2)}')
    for p in (0, 2): k.I(f'v_pk_add_f32 {vr(b_+p,2)}, {vr(b_+p,2)}, {vr(tx+p,2)}')
    k.I(f'ds_write_b128 v{gA}, {vr(md,4)} offset:{ML}')
    for j in range(4): k.I(f'v_mov_b32 v{tx+j}, v{b_+j}')
    for j in range(4): k.I(f'v_permlane16_swap_b32 v{tx+j}, v{b_+j}')
    for p in (0, 2): k.I(f'v_pk_add_f32 {vr(b_+p,2)}, {vr(b_+p,2)}, {vr(tx+p,2)}')
    k.I(f'ds_write_b128 v{lB}, {vr(b_,4)} offset:{ML}')
    k.barrier()
    for p in range(5):
        k.I(f'ds_read2st64_b32 {vr(md+4*p,2)}, v{rm} offset0:{10+2*p} offset1:{11+2*p}')
        k.I(f'ds_read2st64_b32 {vr(md+4*p+2,2)}, v{rm} offset0:{2*p} offset1:{2*p+1}')
    for e in range(10):
        h_ = e & 1; p = e // 2
        if h_ == 0: k.I(f'v_pk_fma_f32 {vr(xs+2*e,2)}, {vr(xs+2*e,2)}, {vr(md+4*p,2)}, {vr(md+4*p+2,2)} op_sel_hi:[1,0,0]')
        else:
            for j in range(2): k.I(f'v_fma_f32 v{xs+2*e+j}, v{xs+2*e+j}, v{md+4*p+1}, v{md+4*p+3}')
        if e >= 1: k.I(f'v_cvt_pk_bf16_f32 v{dat+e-1}, v{xs+2*e-2}, v{xs+2*e-1}')
    k.I(f'v_cvt_pk_bf16_f32 v{dat+9}, v{xs+18}, v{xs+19}')
    d1 = xs; b2 = xs + 24; d2 = f40
    def s1(T):
        o = []
        for kap in range(3):
            for c in range(2):
                dd = vr(d1 + (2*T+c)*4, 4)
                o.append(f'{MF16} {dd}, {vr(dat+4*kap,4)}, {vr(f40+(2*T+c)*10+4*kap,4)}, {dd if kap else 0}')
        return o
    cm = [rec(cmul4, d1+8*T, d1+8*T+4, cs+4*T, sn+4*T, b2+4*T, tmp, False) for T in range(3)]
    def s2(T): return [f'{MF16} {vr(d2+(2*T+U)*4,4)}, {vr(f16+4*U,4)}, {vr(b2+4*T,4)}, 0' for U in range(2)]
    def wr(T): return [f'ds_write_b64 v{wa}, {vr(d2+(2*T+U)*4+2*h,2)} offset:{(16*T+320*U+40*h)*8}' for U in range(2) for h in range(2)]
    for t in s1(0) + s1(1) + s1(2) + cm[0] + s2(0) + cm[1] + s2(1) + wr(0) + cm[2] + s2(2) + wr(1): k.I(t)
    k.bg_every = 0
    k.I('s_mov_b64 exec, 1')
    k.I(f'ds_write_b64 v{wa}, {vr(d2,2)} offset:5120')
    k.I('s_mov_b32 exec_lo, 0x00ff00ff')
    k.I('s_mov_b32 exec_hi, 0x00ff00ff')
    for t in wr(2): k.I(t)
    k.I('s_mov_b64 exec, -1')
    k.barrier()
    k.I(f's_mov_b32 s11, {A0}')
    k.I(f'buffer_load_dwordx4 v[252:255], v{vo16}, s[12:15], s11 offen sc1')
    rd = d1; oc = b2
    for rho in range(3):
        for pr in range(2):
            k.I(f'ds_read_b64 {vr(rd+8*rho+4*pr,2)}, v{ru} offset:{pr*PL+1024*rho}')
            k.I(f'ds_read_b64 {vr(rd+8*rho+4*pr+2,2)}, v{rv} offset:{pr*PL+1024*(2-rho)}')
    for rho in range(3):
        for pr in range(2):
            u = rd+8*rho+4*pr; v = u+2
            k.I(f'v_pk_add_f32 {vr(tmp+4*pr,2)}, {vr(u,2)}, {vr(v,2)}')
            k.I(f'v_pk_add_f32 {vr(tmp+4*pr+2,2)}, {vr(u,2)}, {vr(v,2)} neg_lo:[0,1] neg_hi:[0,1]')
        for pr in range(2):
            k.I(f'v_cvt_pk_bf16_f32 v{oc+4*rho+pr}, v{tmp+4*pr}, v{tmp+4*pr+1}')
            k.I(f'v_cvt_pk_bf16_f32 v{oc+4*rho+2+pr}, v{tmp+4*pr+3}, -v{tmp+4*pr+2}')
        k.I(f'v_or_b32 v{oc+4*rho}, 1, v{oc+4*rho}')
        k.I(f'buffer_store_dwordx4 {vr(oc+4*rho,4)}, v{so}, s[40:43], {("0", "s38", "s39")[rho]} offen sc1')
    um(k, 9)
    k.emit_bg(99)
```

```python
import os, math
import gen
from gen import *
from gen2 import *
from gen4 import YT, YT_ST, WS_END4, GR, unpack_gran, EPOCH
from gen import mark, stamp_begin, stamp_end

class Rec:
    def __init__(self): self.l = []
    def I(self, t, **kw): self.l.append(t)
def rec(fn, *a):
    r = Rec(); fn(r, *a); return r.l
def merge(k, main, fill, per):
    fill = list(fill)
    for m in main:
        k.I(m)
        for _ in range(per):
            if fill: k.I(fill.pop(0))
    return fill

import re as _re
def unpk(t):
    if isinstance(t, tuple) or not t.startswith('v_pk_'): return [t]
    m = _re.match(r'v_pk_(\w+)_f32 (.*)$', t)
    regs = [int(x) for x in _re.findall(r'v\[(\d+):\d+\]', m.group(2))]
    if m.group(1) == 'fma' and regs[0] == regs[3]: return [f'v_fmac_f32 v{regs[0]+j}, v{regs[1]+j}, v{regs[2]+j}' for j in range(2)]
    if m.group(1) == 'fma': return [f'v_fma_f32 v{regs[0]+j}, v{regs[1]+j}, v{regs[2]+j}, v{regs[3]+j}' for j in range(2)]
    return [f'v_{m.group(1)}_f32 v{regs[0]+j}, v{regs[1]+j}, v{regs[2]+j}' for j in range(2)]
def pairs(lst):
    out = []
    for t in lst:
        u = unpk(t)
        if len(u) == 2 and 'v_fma_' in u[0]: out += [[u[0]], [u[1]]]
        else: out.append(u)
    return out
def signal(k, name, cnt_sgpr, vtmp, noflush=False):
    k.I('s_barrier')
    st = k.save_state()
    k.I('s_cmp_lg_u32 s22, 0')
    k.I(f's_cbranch_scc1 L{name}_sig', noflush=noflush)
    k.I('s_mov_b64 exec, 1')
    k.I(f'buffer_atomic_add v{vtmp+1}, v{vtmp}, s[12:15], s{cnt_sgpr} offen sc1')
    k.I('s_mov_b64 exec, -1')
    if noflush: k.raw(f'L{name}_sig:')
    else: k.label(f'L{name}_sig')
    k.restore_state(st)
    k.vm.append((set(), None)) if False else None
def poll(k, name, cnt_sgpr, vtmp, vres):
    st = k.save_state()
    k.I('s_cmp_lg_u32 s22, 3')
    k.I(f's_cbranch_scc1 L{name}_done')
    k.I('s_mov_b32 s24, 0x100000')
    k.label(f'L{name}_poll')
    k.I(f'buffer_load_dword v{vres}, v{vtmp}, s[12:15], s{cnt_sgpr} offen sc1')
    k.waitcnt(vm=0)
    k.I(f'v_readfirstlane_b32 s33, v{vres}')
    k.I('s_sub_u32 s24, s24, 1')
    k.I(f's_cbranch_scc1 L{name}_done')
    k.I('s_cmp_lt_u32 s33, 16')
    k.I(f's_cbranch_scc1 L{name}_poll')
    k.label(f'L{name}_done')
    k.restore_state(st)
    k.I('s_barrier')

TAB = WS_END4
WS_END6 = TAB + 24 * 1024
class Fix:
    def __init__(self, seq): self.seq = list(seq)
    def get(self, *a): return self.seq.pop(0)
def role_tab(k):
    c0 = 24; f40 = c0; f16 = c0 + 62; cs = c0 + 68; sn = c0 + 80
    vi, vq, fi, fq, fq4, vo, t8, tmp = 2, 3, 4, 5, 6, 7, 8, 16
    k.I(f'v_and_b32 v{vi}, 15, v0')
    k.I(f'v_lshrrev_b32 v{vq}, 4, v0')
    k.I(f'v_cvt_f32_u32 v{fi}, v{vi}')
    k.I(f'v_cvt_f32_u32 v{fq}, v{vq}')
    k.I(f'v_mul_f32 v{fq4}, 4.0, v{fq}')
    k.I(f'v_lshlrev_b32 v{vo}, 4, v0')
    gen_f40(k, Fix([f40, t8, t8+4, t8+6]), fi, fq, True)
    gen_tw640(k, Fix([cs, sn, t8]), fi, fq4)
    k.I(f'v_cmp_gt_u32 vcc, 8, v{vi}')
    for r in range(4):
        k.I(f'v_cndmask_b32 v{cs+8+r}, 0, v{cs+8+r}, vcc')
        k.I(f'v_cndmask_b32 v{sn+8+r}, 0, v{sn+8+r}, vcc')
    k.I(f'v_mul_f32 v{t8}, {fhex(1.0/16)}, v{fi}')
    k.I(f'v_mul_f32 v{t8+1}, v{fq4}, v{t8}')
    for j in range(4): k.I(f'v_fmamk_f32 v{tmp+4+j}, v{t8}, {fhex(float(j))}, v{t8+1}')
    for j in range(4):
        k.I(f'v_cos_f32 v{tmp+j}, v{tmp+4+j}')
        k.I(f'v_sin_f32 v{tmp+4+j}, v{tmp+4+j}')
    for p in range(2):
        k.I(f'v_cvt_pk_bf16_f32 v{f16+p}, v{tmp+4+2*p}, v{tmp+5+2*p}')
        k.I(f'v_cvt_pk_bf16_f32 v{f16+2+p}, v{tmp+2*p}, v{tmp+1+2*p}')
        k.I(f'v_cvt_pk_bf16_f32 v{f16+4+p}, -v{tmp+4+2*p}, -v{tmp+5+2*p}')
    k.srd(24, 4, 23 * 1024, TAB)
    for i in range(23):
        if i % 4 == 0: k.I(f's_mov_b32 s28, {1024*i}')
        k.I(f'buffer_store_dwordx4 {vr(c0+4*i,4)}, v{vo}, s[24:27], s28 offen offset:{1024*(i%4)}')

XNT = ' nt' if os.environ.get('XNT') == '1' else ''
_mark = mark
def mark(k, i):
    if not env('MF', 0): _mark(k, i)
def fm(k, i):
    if env('MF', 0) == 1: _mark(k, i)
def pm(k, i):
    if env('MF', 0) == 3: _mark(k, i)
def em(k, i):
    if env('MF', 0) == 2: _mark(k, i)
def pack6(k, base, cs, sn, alt):
    def op(r, j, neg):
        n = neg ^ (alt and (j & 1))
        return ('-' if n else '') + f'v{r+j}'
    for p in range(2):
        k.I(f'v_cvt_pk_bf16_f32 v{base+p}, {op(sn,2*p,True)}, {op(sn,2*p+1,True)}')
        k.I(f'v_cvt_pk_bf16_f32 v{base+2+p}, {op(cs,2*p,False)}, {op(cs,2*p+1,False)}')
        k.I(f'v_cvt_pk_bf16_f32 v{base+4+p}, {op(sn,2*p,False)}, {op(sn,2*p+1,False)}')
WIM, WRE = 0, 2
F0 = FLAGS + 8192
WGU_B = WGU + 64 * 30720
FW = F0 + 1024
YFL = ['sc1', 'sc1 nt', 'sc0 sc1', 'sc0 sc1 nt'][env('YFL', 0)]
def hm(k, i):
    if env('MF', 0) == 5: _mark(k, i)
def cm_(k, i):
    if env('MF', 0) == 4: _mark(k, i)

HALF = env('HALF', 0)
X64 = env('X64', 1)
W128 = env('W128', 2)
from ph1 import phase1, XS, XS_ST, A0, A1, A2, GO, TAG
def um(k, i):
    if env('MF', 0) == 6: _mark(k, i)
def gen_UNI():
    k = Kernel(os.environ.get('KNAME', 'kd_kernel'))
    PL = 2592
    HB = 0; XB = 10240; SB = 122880; XL = 32768; MLD = XL + 4 * 2560; TL = MLD + 8192; CL = 81920
    W_ST = env('W_ST', 4); W_A = env('W_A', 4)
    NB1 = env('NB1', 16); W_J1 = W_J1_ = env('W_J1', 8); W_J = env('W_J', 8)
    stamp_begin(k)
    k.I('s_cmp_ge_u32 s2, 256')
    k.I('s_cbranch_scc1 LD_exit')
    va = VAlloc(2)
    hs = va.get(2, 2); vl = va.get(); vo16 = va.get(); vW = va.get(); vi = va.get(); vq = va.get(); oh = va.get(); oh2 = va.get(); hr = va.get()
    keep = va.n
    so = va.get(); wu = va.get(); wv = va.get(); ra = va.get(); xo = va.get(); mo = va.get(); wh = va.get(3); wx = va.get(); g0 = va.get(); g2 = va.get()
    ch = va.get(12, 4); xr = va.get(12, 2); mg = va.get(12, 4); mc = va.get(12, 4); ms = va.get(12, 4)
    d1 = va.get(24, 4); d2 = va.get(24, 4); dat = va.get(12, 2); tmp = va.get(8, 2)
    f40 = va.get(92, 4); f16 = f40 + 62; cs = f40 + 68; sn = f40 + 80
    tv = VAlloc(d1, d1 + 48)
    ta = tv.get(4); tk = tv.get(); cb_ = tv.get(); tq = tv.get(); v8 = tv.get(); vcn = tv.get(); vma = tv.get(); vmk = tv.get(2, 2)
    phase1(k, dict(vl=vl, vo16=vo16, vi=vi, vq=vq, keep=keep), um, WS_END6, XL, TL)
    k.I(f's_load_dwordx2 s[4:5], s[0:1], {KA["ws"]}')
    k.I(f's_load_dwordx2 s[40:41], s[0:1], {KA["out"]}')
    k.I(f's_load_dwordx2 s[62:63], s[0:1], {KA["wd"]}')
    av = 252; gv = 249
    aslow = []
    def aload(base):
        k.I(f's_mov_b32 s{TAG+1}, {base}')
        k.I(f'buffer_load_dwordx4 {vr(av,4)}, v{vo16}, s[12:15], s{TAG+1} offen sc1')
    def atest():
        for j in range(4): k.I(f'v_xor_b32 v{av+j}, s{TAG}, v{av+j}')
        k.I(f'v_or3_b32 v{av}, v{av}, v{av+1}, v{av+2}')
        k.I(f'v_or_b32 v{av}, v{av}, v{av+3}')
        k.I(f'v_cmp_ne_u32 s[98:99], 0, v{av}')
        k.I('s_cmp_lg_u64 s[98:99], 0')
    def acheck(name, base):
        atest()
        k.I(f's_cbranch_scc1 L{name}_slow')
        k.label(f'L{name}_ok')
        aslow.append((name, base))
    gslow = []
    def gload(i):
        k.I('v_mov_b32 v251, 0')
        k.I(f's_and_b32 s{TAG+1}, s2, 7')
        k.I(f's_lshl_b32 s{TAG+1}, s{TAG+1}, 7')
        k.I(f's_add_u32 s{TAG+1}, s{TAG+1}, {GO + 1024*i}')
        k.I(f'buffer_load_dword v{gv}, v251, s[12:15], s{TAG+1} offen sc1')
    def gcheck(name, i):
        k.I(f'v_readfirstlane_b32 s98, v{gv}')
        k.I(f's_cmp_lg_u32 s98, s{TAG}')
        k.I(f's_cbranch_scc1 L{name}_slow')
        k.label(f'L{name}_ok')
        gslow.append((name, i))
    def apost(base=A2, tag='z2'):
        k.wait_tag(tag)
        k.I('s_barrier')
        k.I(f'v_mov_b32 v250, s{TAG}')
        k.I(f'v_mov_b32 v251, 0')
        k.I('s_lshl_b32 s98, s2, 2')
        k.I(f's_add_u32 s98, s98, {base}')
        k.I('s_cmp_eq_u32 s22, 3')
        k.I('s_cselect_b64 exec, 1, 0')
        k.I(f'buffer_store_dword v250, v251, s[12:15], s98 offen sc1')
        k.I('s_mov_b64 exec, -1')
    def scalars():
        MAP = env('MAP', 2)
        if MAP == 1:
            k.I('s_and_b32 s20, s2, 7')
            k.I('s_lshl_b32 s20, s20, 1')
            k.I('s_lshr_b32 s21, s2, 7')
            k.I('s_add_u32 s20, s20, s21')
            k.I('s_bfe_u32 s56, s2, 0x30003')
            k.I('s_bfe_u32 s57, s2, 0x10006')
        elif MAP == 4:
            k.I('s_and_b32 s20, s2, 4')
            k.I('s_lshl_b32 s20, s20, 1')
            k.I('s_lshr_b32 s21, s2, 5')
            k.I('s_add_u32 s20, s20, s21')
            k.I('s_bfe_u32 s56, s2, 0x20003')
            k.I('s_and_b32 s21, s2, 2')
            k.I('s_lshl_b32 s21, s21, 1')
            k.I('s_add_u32 s56, s56, s21')
            k.I('s_and_b32 s57, s2, 1')
        else:
            k.I('s_and_b32 s20, s2, 6')
            k.I('s_lshl_b32 s20, s20, 1')
            k.I('s_lshr_b32 s21, s2, 6')
            k.I('s_add_u32 s20, s20, s21')
            k.I('s_bfe_u32 s56, s2, 0x30003')
            k.I('s_and_b32 s57, s2, 1')
        k.I('s_lshl_b32 s21, s57, 3')
        k.I('s_add_u32 s21, s21, s56')
        k.I('s_lshl_b32 s25, s20, 4')
        k.I('s_add_u32 s3, s25, s21')
        k.I('s_lshr_b32 s25, s20, 2')
        k.I('s_lshl_b32 s25, s25, 12')
        k.I('s_lshl_b32 s24, s57, 11')
        k.I('s_add_u32 s25, s25, s24')
        k.I('s_and_b32 s24, s21, 1')
        k.I('s_lshl_b32 s24, s24, 10')
        k.I('s_add_u32 s25, s25, s24')
        k.I('s_and_b32 s24, s20, 3')
        k.I('s_lshl_b32 s24, s24, 8')
        k.I('s_add_u32 s25, s25, s24')
        k.I('s_and_b32 s24, s21, 6')
        k.I('s_lshl_b32 s24, s24, 5')
        k.I('s_add_u32 s25, s25, s24')
        k.I(f's_add_u32 s26, s25, {64*16384}')
        k.I(f's_add_u32 s27, s25, {128*16384}')
        k.I(f's_mul_i32 s30, s22, 2560')
        k.I(f's_add_u32 s30, s30, {XL}')
        k.I('s_lshl_b32 s31, s22, 11')
        k.I(f's_add_u32 s88, s31, {MLD}')
        k.I(f's_add_u32 s31, s31, {MODN + 2*2560}')
        k.I('s_lshl_b32 s32, s21, 2')
        k.I('s_add_u32 s32, s32, s22')
        k.I('s_mul_i32 s24, s32, 30720')
        k.I(f's_add_u32 s24, s24, {WGU}')
        k.I(f'v_add_u32 v{vW}, s24, v{vo16}')
        k.I(f's_mul_i32 s58, s20, {8*49152}')
        k.I('s_mul_i32 s24, s32, 768')
        k.I('s_add_u32 s58, s58, s24')
        k.I(f's_add_u32 s58, s58, {HH}')
        for i in range(1, 4): k.I(f's_add_u32 s{58+i}, s58, {2*i*49152}')
        k.I('s_and_b32 s89, s2, 7')
        k.I('s_lshl_b32 s89, s89, 7')
        k.I(f's_add_u32 s89, s89, {F0}')
        k.srd(12, 4, WS_END6)
        k.srd(16, 4, 161 * 16384, XT)
    def wload(n):
        m_ = n % 30
        g = [f'buffer_load_dwordx4 {ar(4*n,4)}, v{vW}, s[12:15], 0 offen offset:{1024*(m_%4)} sc1']
        if n == 29: g.append(f'v_add_u32 v{vW}, {WGU_B - WGU - 28672}, v{vW}')
        elif m_ % 4 == 3: g.append(f'v_add_u32 v{vW}, 0x1000, v{vW}')
        return g
    def bglist(): return [wload(n) for n in range(48)]
    NBG = 48
    def topup():
        k.bg_every = 0
        k.emit_bg(max(0, NB1 - (NBG - len(k.bg))))
        assert NBG - len(k.bg) == NB1, (NBG - len(k.bg), NB1)
    k.I('s_cmp_ge_u32 s2, 161')
    st0 = k.save_state()
    k.I('s_cbranch_scc1 LWD')
    vc = VAlloc(keep)
    vo8 = vc.get(); yo = vc.get(); wa = vc.get(); vC = vc.get()
    fi = vc.get(); fq4 = vc.get(); fk = vc.get(); fw16 = vc.get(); cta = vc.get(2); sg2 = vc.get(2, 2)
    f64 = vc.get(24, 2); f32 = vc.get(24, 2)
    c1 = vc.get(8, 2); s1_ = vc.get(8, 2); c2 = vc.get(8, 2); s2_ = vc.get(8, 2)
    TK = []
    wq2 = vc.get(16, 4)
    for X in range(2):
        TK.append(dict(wq=wq2 + 8*X, dat=vc.get(32, 4), acc=vc.get(16, 4), pk=vc.get(8, 4), tmp=vc.get(8, 2)))
    tc = TK[0]['tmp']; ts = tc + 4
    k.I(f'v_lshlrev_b32 v{vo8}, 3, v{vl}')
    if W128 == 1:
        k.I(f'v_and_b32 v{yo}, 0x1c0, v{vo8}')
        k.I(f'v_add_u32 v{vo8}, v{vo8}, v{yo}')
    k.I('s_lshl_b32 s48, s2, 14')
    k.I(f's_lshl_b32 s49, s22, {11 if W128 else 10}')
    k.I('s_add_u32 s49, s49, s48')
    k.I('s_lshl_b32 s24, s22, 11')
    k.I('s_add_u32 s48, s48, s24')
    k.I(f's_add_u32 s90, s24, {CL}')
    k.I('s_mov_b32 m0, s90')
    k.I('s_cmp_eq_u32 s2, 0')
    k.I('s_cselect_b32 s50, 0, 1.0')
    k.I('s_cmp_eq_u32 s2, 160')
    k.I('s_cselect_b32 s50, 0, s50')
    k.I('s_mov_b32 s52, 0x80008000')
    k.I(f'v_lshlrev_b32 v{sg2}, 31, v{vi}')
    k.I(f'v_or_b32 v{sg2}, 1.0, v{sg2}')
    k.I(f'v_cvt_f32_u32 v{fi}, v{vi}')
    k.I(f'v_lshlrev_b32 v{fq4}, 2, v{vq}')
    k.I(f'v_cvt_f32_u32 v{fq4}, v{fq4}')
    k.I(f'v_lshlrev_b32 v{fw16}, 4, v1')
    k.I(f'v_cvt_f32_u32 v{fw16}, v{fw16}')
    k.I(f'v_add_f32 v{fk}, v{fw16}, v{fi}')
    def angles(step_reg, scale, base_add, dst, q=None):
        k.I(f'v_mul_f32 v{cta}, {fhex(scale)}, v{step_reg}')
        k.I(f'v_mul_f32 v{cta+1}, v{fq4 if q is None else q}, v{cta}')
        for j in range(4): k.I(f'v_fmamk_f32 v{dst+j}, v{cta}, {fhex(float(base_add + j))}, v{cta+1}')
    def sincos(c, s_):
        for j in range(4):
            k.I(f'v_cos_f32 v{c+j}, v{s_+j}')
            k.I(f'v_sin_f32 v{s_+j}, v{s_+j}')
    def flip(c, s_):
        for p in (0, 2):
            k.I(f'v_pk_mul_f32 {vr(c+p,2)}, {vr(c+p,2)}, {vr(sg2,2)} op_sel_hi:[1,0]')
            k.I(f'v_pk_mul_f32 {vr(s_+p,2)}, {vr(s_+p,2)}, {vr(sg2,2)} op_sel_hi:[1,0]')
    def flip6(base): return [f'v_xor_b32 v{base+j}, s52, v{base+j}' for j in (0, 1, 4, 5)]
    for kap in range(2):
        angles(fk, 1.0/64, 16*kap, ts); sincos(tc, ts)
        pack6(k, f64+6*kap, tc, ts, False)
        flip(tc, ts)
        pack6(k, f64+6*(kap+2), tc, ts, False)
        if kap == 0:
            k.srd(44, 4, 161 * 16384, WT)
            if env('U_POST', 0) == 0: apost(A1, 'zt')
            cm_(k, 1)
            scalars()
            k.I('s_lshl_b32 s53, s22, 12')
            k.I('s_lshl_b32 s24, s2, 14')
            k.I('s_add_u32 s53, s53, s24')
    for N in range(2):
        angles(fk, 1.0/2048, 16*N, s1_+4*N); sincos(c1+4*N, s1_+4*N)
    if env('U_POST', 0) == 1: apost(A1, 'zt')
    kreal = k; LATEC = 0
    if LATEC:
        k = Rec(); tc = TK[1]['tmp']; ts = tc + 4
    angles(fi, 1.0/32, 0, ts); sincos(tc, ts)
    pack6(k, f32+0, tc, ts, False)
    pack6(k, f32+12, tc, ts, True)
    flip(tc, ts)
    pack6(k, f32+6, tc, ts, False)
    pack6(k, f32+18, tc, ts, True)
    k.I(f'v_add_f32 v{fw16}, v{fw16}, v{fq4}')
    for N in range(2):
        if N: k.I(f'v_add_f32 v{fi}, {fhex(16.0)}, v{fi}')
        angles(fi, 1.0/2048, 0, s2_+4*N, q=fw16); sincos(c2+4*N, s2_+4*N)
    latec = []
    if LATEC:
        for t in k.l: latec += [t] if 'op_sel' not in t else [f'v_mul_f32 v{int(x)+j}, v{int(x)+j}, v{sg2}' for x in _re.findall(r'v\[(\d+):', t)[:1] for j in range(2)]
        k = kreal
    k.I(f'v_add_u32 v{vC}, {CL}, v{vo16}')
    k.I(f'v_add_u32 v{wa}, s90, v{vo16}')
    vX = hr
    k.I(f'v_and_b32 v{vX}, 0x3e0, v{vo16}')
    k.I(f'v_add_u32 v{vX}, v{vX}, v{vC}')
    k.I(f'v_and_b32 v{vo8}, 2, v{vi}')
    k.I(f'v_mul_u32_u24 v{yo}, {(8192 + 32 - 32) // 2}, v{vo8}')
    k.I(f'v_add_u32 v{yo}, v{yo}, v{vC}')
    k.I(f'v_cmp_eq_u32 vcc, 0, v{vo8}')
    k.I(f'v_mov_b32 v{fk}, s50')
    k.I(f'v_cndmask_b32 v{fk}, 1.0, v{fk}, vcc')
    gx = TK[1]['pk']; gk = gx + 2
    k.I(f'v_lshrrev_b32 v{gx}, 5, v{vl}')
    k.I(f'v_bfe_u32 v{gx+1}, v{vl}, 2, 3')
    k.I(f'v_lshl_add_u32 v{gx}, v{gx}, 4, v{gx+1}')
    k.I(f'v_mul_u32_u24 v{gx}, {XS_ST}, v{gx}')
    k.I(f'v_and_b32 v{gx+1}, 3, v{vl}')
    k.I(f'v_lshl_add_u32 v{gx}, v{gx+1}, 4, v{gx}')
    k.I(f's_mul_i32 s36, s22, {64*XS_ST}')
    k.I('s_lshl_b32 s24, s2, 6')
    k.I('s_add_u32 s36, s36, s24')
    k.I(f's_add_u32 s36, s36, {XS}')
    for j in range(1, 4): k.I(f's_add_u32 s{36+j}, s36, {(32*(j&1) + 8*(j>>1))*XS_ST - 1024*j}')
    k.I('s_lshl_b32 s48, s22, 12')
    k.I(f's_add_u32 s48, s48, {CL}')
    k.I(f'v_add_u32 v{gx+1}, s48, v{vo16}')
    def xg():
        k.I('s_mov_b32 m0, s48')
        for j in range(4): k.I(f'buffer_load_dwordx4 v{gx}, s[12:15], s{36+j} offen offset:{1024*j} sc1 lds', tag='xg')
    def xtest():
        k.I(f'ds_read2st64_b32 {vr(gk,2)}, v{gx+1} offset0:0 offset1:4')
        k.I(f'ds_read2st64_b32 {vr(gk+2,2)}, v{gx+1} offset0:8 offset1:12')
        k.I(f'v_bitop3_b32 v{gk}, v{gk}, v{gk+1}, v{gk+2} bitop3:0x80')
        k.I(f'v_bitop3_b32 v{gk}, v{gk}, v{gk+3}, 1 bitop3:0x80')
        k.I(f'v_cmp_eq_u32 s[98:99], 0, v{gk}')
        k.I('s_cmp_lg_u64 s[98:99], 0')
    acheck('A0c', A0)
    cm_(k, 2)
    xg()
    k.wait_tag('xg')
    xtest()
    k.I('s_cbranch_scc1 LXG_slow')
    k.label('LXG_ok')
    gload(0)
    k.I('s_barrier')
    cm_(k, 3)
    def rd(X, base): return [f'ds_read_b128 {vr(TK[X]["dat"]+(2*kap+N)*4,4)}, v{vX if X64 else vC} offset:{4096*kap+2048*N+32*X if X64 else base+8192*X+2048*kap+1024*N}' for N in range(2) for kap in range(4)]
    def st1(X, inv):
        o = []; t = TK[X]
        for N in range(2):
            for kap in range(4):
                for c in range(2):
                    dd = vr(t['acc']+(2*N+c)*4, 4); da = vr(t['dat']+(2*kap+N)*4, 4); co = vr(f64+6*kap+(WIM if c else WRE), 4)
                    o.append(f'{MF16} {dd}, {co if inv else da}, {da if inv else co}, {dd if kap else 0}')
        return o
    def st3(X):
        o = []; t = TK[X]
        for N in range(2):
            for V in range(2):
                for c in range(2):
                    dd = vr(t['dat']+(2*V+c)*4, 4)
                    o.append(f'{MF16} {dd}, {vr(f32+(2*V+N)*6+(WIM if c else WRE),4)}, {vr(t["pk"]+4*N,4)}, {dd if N else 0}')
        return o
    def st4(X):
        o = []; t = TK[X]
        for V in range(2):
            for N in range(2):
                for c in range(2):
                    dd = vr(t['acc']+(2*N+c)*4, 4)
                    o.append(f'{MF16} {dd}, {vr(t["dat"]+16+4*V,4)}, {vr(f32+(2*N+V)*6+(WIM if c else WRE),4)}, {dd if V else 0}')
        return o
    def cmx(X, src, cc, ss, dst, conj):
        o = []
        for h_ in range(2): o += rec(cmul4, src+8*h_, src+8*h_+4, cc+4*h_, ss+4*h_, dst+4*h_, TK[X]['tmp'], conj)
        if env('C_SCALAR', 0):
            o2_ = []
            for t in o:
                if 'neg_lo' in t:
                    r4 = [int(x) for x in _re.findall(r'v\[(\d+):\d+\]', t)]
                    o2_ += [f'v_fma_f32 v{r4[0]+j}, v{r4[1]+j}, -v{r4[2]+j}, v{r4[3]+j}' for j in range(2)]
                else: o2_ += unpk(t)
            o = o2_
        return o
    def wun(X):
        t = TK[X]; o = []
        for j in range(8):
            w_ = wq2 + 4*(j//2) + 2*X + (j & 1) if W128 == 2 else t["wq"] + j
            o.append(f'v_lshlrev_b32 v{t["acc"]+2*j}, 16, v{w_}')
            o.append(f'v_and_b32 v{t["acc"]+2*j+1}, 0xffff0000, v{w_}')
        return o
    def outs(X):
        t = TK[X]; o = []; fl_ = f'v{fk}'
        for N in range(2):
            re = t['acc']+8*N; im = re+4; tm = t['tmp']
            for p in range(2):
                a_, b_ = 2*p, 2*p+1
                o.append(f'v_fma_f32 v{tm+4*p+0}, -v{im+b_}, {fl_}, v{re+a_}')
                o.append(f'v_fma_f32 v{tm+4*p+1}, v{im+a_}, {fl_}, v{re+b_}')
                o.append(f'v_fma_f32 v{tm+4*p+2}, v{im+b_}, {fl_}, v{re+a_}')
                o.append(f'v_fma_f32 v{tm+4*p+3}, -v{im+a_}, {fl_}, v{re+b_}')
            for j in range(4): o.append(f'v_cvt_pk_bf16_f32 v{t["pk"]+4*N+j}, v{tm+2*j}, v{tm+2*j+1}')
        return o
    def mg_(main, fill, per):
        for t in merge(k, main, fill, per): k.I(t)
    A_, B_ = TK
    PER = env('C_PER', 2); P3 = env('C_P3', 3)
    NL0 = env('C_L0', 22)
    for t in rd(0, 0) + rd(1, 0)[:7]: k.I(t)
    for t in latec[:NL0]: k.I(t)
    mg_(st1(0, False) + st1(1, False)[:4], rd(1, 0)[7:] + latec[NL0:], env('C_LP', 2))
    gcheck('G1c', 0)
    for m_ in range(2):
        for V in range(2): k.I(f'buffer_load_dwordx4 {vr(wq2+8*m_+4*V,4)}, v{vo16}, s[44:47], s49 offen offset:{1024*V} sc1')
        k.I('s_add_u32 s49, s49, 8192')
    zz = 244 + 8
    for j in range(4): k.I(f'v_mov_b32 v{zz+j}, 0')
    k.I(f'v_lshlrev_b32 v248, 4, v0')
    k.I('s_mul_i32 s51, s2, 205')
    k.I('s_lshr_b32 s51, s51, 10')
    k.I('s_mul_i32 s51, s51, 40960')
    k.I('s_lshl_b32 s24, s2, 13')
    k.I('s_add_u32 s51, s51, s24')
    k.I(f's_add_u32 s51, s51, {H2}')
    k.I('s_cmp_lt_u32 s2, 160')
    k.I('s_cselect_b32 s51, s51, 0x7f000000')
    k.I(f'buffer_store_dwordx4 {vr(zz,4)}, v248, s[12:15], s51 offen sc1', tag='z')
    k.I('s_add_u32 s51, s51, 4096')
    k.I(f'buffer_store_dwordx4 {vr(zz,4)}, v248, s[12:15], s51 offen sc1', tag='z')
    k.bg = bglist(); k.bg_every = env('BGC2', 18)
    mg_(st1(1, False)[4:], cmx(0, A_['acc'], c1, s1_, A_['pk'], False), PER)
    mg_(st3(0), cmx(1, B_['acc'], c1, s1_, B_['pk'], False), P3)
    cm_(k, 4)
    mg_(st3(1), wun(0) + wun(1) + cmx(0, A_['dat'], A_['acc'], A_['acc']+8, A_['dat']+16, True), P3)
    G2L = 0
    for w_ in range(4):
        for t in flip6(f32+6*w_): k.I(t)
    mg_(st4(0), cmx(1, B_['dat'], B_['acc'], B_['acc']+8, B_['dat']+16, True), P3)
    fl64 = []
    for kap in range(4): fl64 += flip6(f64+6*kap)
    ca = cmx(0, A_['acc'], c2, s2_, A_['pk'], True)
    mg_(st4(1), fl64[:8] + ca, P3)
    cm_(k, 5)
    for N in range(2): k.I(f'ds_write_b128 v{wa}, {vr(A_["pk"]+4*N,4)} offset:{16384+1024*N}')
    for t in cmx(1, B_['acc'], c2, s2_, B_['pk'], True): k.I(t)
    for N in range(2): k.I(f'ds_write_b128 v{wa}, {vr(B_["pk"]+4*N,4)} offset:{16384+8192+32+1024*N}')
    for t in fl64[8:]: k.I(t)
    k.wait_tag('z')
    k.barrier()
    cm_(k, 6)
    def rd2(e): return [f'ds_read_b128 {vr(TK[e]["dat"]+(2*kap+N)*4,4)}, v{yo} offset:{16384+32*e+2048*kap+1024*N}' for N in range(2) for kap in range(4)]
    def ost(e):
        o = outs(e); r_ = []
        for N in range(2):
            r_ += o[12*N:12*N+12] + [f'v_or_b32 v{TK[e]["pk"]+4*N}, 1, v{TK[e]["pk"]+4*N}',
                  (f'buffer_store_dwordx4 {vr(TK[e]["pk"]+4*N,4)}, v{vo16}, s[16:19], s53 offen offset:{2048*N+1024*e} sc1', 'y')]
        return r_
    def em_(t):
        if isinstance(t, tuple): k.I(t[0], tag=t[1])
        else: k.I(t)
    if G2L: gload(1)
    for t in rd2(0): k.I(t)
    mg_(st1(0, True), rd2(1), 1)
    if not G2L: topup()
    fill = ost(0)
    for j, m_ in enumerate(st1(1, True)):
        k.I(m_)
        for _ in range(PER):
            if fill: em_(fill.pop(0))
    for t in fill + ost(1): em_(t)
    cm_(k, 7)
    if G2L: gcheck('G2c', 1); topup()
    k.emit_bg(W_J1)
    def dpro():
        k.bg_every = 0
        k.I(f'v_lshrrev_b32 v{so}, 2, v0')
        k.I(f'v_lshlrev_b32 v{so}, 14, v{so}')
        k.I(f'v_and_b32 v{ta+1}, 3, v0')
        k.I(f'v_lshl_add_u32 v{so}, v{ta+1}, 4, v{so}')
        k.I(f'v_lshrrev_b32 v{ta+1}, 1, v0')
        k.I(f'v_cmp_ge_u32 s[34:35], 64, v{ta+1}')
        k.I(f'v_mov_b32 v{ch+8}, -1')
        k.I(f'v_add_u32 v{vma}, s88, v{vo16}')
        k.I(f'v_mov_b32 v{hs}, 0')
        k.I(f'v_mov_b32 v{hs+1}, 1')
        k.bg_every = 6
        nleft = len(k.bg); hold = k.bg[W_J:]; k.bg = k.bg[:W_J]
        addr = []
        A = addr.append
        A(f'v_lshrrev_b32 v{tq}, 1, v{vq}')
        A(f'v_mad_u32_u24 v{cb_}, v{vi}, 5, v{tq}')
        A(f'v_and_b32 v{tk}, 1, v{vq}')
        A(f'v_mul_u32_u24 v{oh}, 49152, v{tk}')
        A(f'v_lshlrev_b32 v{oh2}, 2, v{oh}')
        A(f'v_lshl_add_u32 v{oh}, v{tq}, 8, v{oh}')
        A(f'v_lshl_add_u32 v{oh}, v{vi}, 4, v{oh}')
        A(f'v_mul_u32_u24 v{tq}, 49152, v{tq}')
        A(f'v_add_u32 v{oh2}, v{oh2}, v{tq}')
        A(f'v_lshl_add_u32 v{oh2}, v{vi}, 4, v{oh2}')
        A(f'v_lshl_add_u32 v{tk}, v1, 1, v{tk}')
        for T in range(3):
            A(f'v_add_u32 v{tq}, {2*T}, v{cb_}')
            A(f'v_xor_b32 v{wh+T}, v{tq}, v{tk}')
            A(f'v_and_b32 v{wh+T}, 7, v{wh+T}')
            A(f'v_lshl_add_u32 v{wh+T}, v{tq}, 3, v{wh+T}')
            A(f'v_lshlrev_b32 v{wh+T}, 4, v{wh+T}')
            A(f'v_add_u32 v{wh+T}, {SB}, v{wh+T}')
        A(f'v_mul_u32_u24 v{wx}, 1280, v{tk}')
        A(f'v_lshl_add_u32 v{wx}, v{cb_}, 4, v{wx}')
        A(f'v_add_u32 v{wx}, {SB}, v{wx}')
        A(f'v_lshrrev_b32 v{tq}, 3, v0')
        A(f'v_xor_b32 v{g0}, v{tq}, v0')
        A(f'v_and_b32 v{g0}, 7, v{g0}')
        A(f'v_lshlrev_b32 v{g0}, 4, v{g0}')
        A(f'v_lshl_add_u32 v{g0}, v{tq}, 8, v{g0}')
        for t in addr: k.I(t)
        k.I(f'v_and_b32 v{ta}, 1, v0')
        k.I(f'v_mul_u32_u24 v{wu}, {2*PL}, v{ta}')
        k.I(f'v_sub_u32 v{wv}, 384, v{ta+1}')
        k.I(f'v_lshl_add_u32 v{wv}, v{wv}, 2, v{wu}')
        k.I(f'v_lshl_add_u32 v{wu}, v{ta+1}, 2, v{wu}')
        k.I(f's_mul_i32 s24, s22, {PL}')
        k.I(f'v_lshl_add_u32 v{ra}, v{vl}, 2, s24')
        k.I(f'v_mov_b32 v{dat+10}, 0'); k.I(f'v_mov_b32 v{dat+11}, 0')
        k.I(f'v_mul_u32_u24 v{xo}, 80, v{vi}')
        k.I(f'v_lshl_add_u32 v{xo}, v{vq}, 3, v{xo}')
        k.I(f'v_lshlrev_b32 v{mo}, 1, v{xo}')
        k.I(f'v_add_u32 v{xo}, s30, v{xo}')
        for j in range(8, 12): k.I(f'v_mov_b32 v{xr+j}, 0')
        k.emit_bg(99); k.bg_every = 0; k.bg = hold
    dpro()
    if env('Y_ACK', 0): k.wait_tag('y')
    k.label('LJOIN')
    def yloads():
        k.I('s_mov_b32 m0, s88')
        k.I(f'buffer_load_dwordx4 v{vo16}, s[12:15], s31 offen sc1 lds')
        k.I(f'buffer_load_dwordx4 v{vo16}, s[12:15], s31 offen offset:1024 sc1 lds')
        for rho in range(3):
            if rho == 2: k.I('s_mov_b64 exec, s[34:35]')
            k.I(f'buffer_load_dwordx4 {vr(ch+4*rho,4)}, v{so}, s[16:19], s{25+rho} offen {YFL}')
        k.I('s_mov_b64 exec, -1')
    def ycheck():
        k.I(f'v_and_b32 v{tq}, v{ch}, v{ch+4}')
        k.I(f'ds_read2st64_b32 {vr(vmk,2)}, v{vma} offset0:0 offset1:4')
        k.I(f'v_and_b32 v{tq}, v{tq}, v{ch+8}')
        k.I(f'v_and_b32 v{tq}, 1, v{tq}')
        k.I(f'v_add_u32 v{tq}, -1, v{tq}')
        k.I(f'v_max3_u32 v{tq}, v{tq}, v{vmk}, v{vmk+1}')
        k.I(f'v_cmp_eq_u32 s[62:63], -1, v{tq}')
        k.I('s_cmp_lg_u64 s[62:63], 0')
    yloads()
    if HALF: k.I(f'buffer_load_dword v{hr}, v{hs}, s[12:15], s89 offen offset:1024 sc1')
    W_Y = env('W_Y', 0)
    k.emit_bg(W_Y)
    mark(k, 1)
    tb_ = g2
    k.I(f'v_add_u32 v{tb_}, {TL}, v{vo16}')
    k.I('s_mov_b32 s50, 0')
    tl = [f'ds_read_b128 {vr(f40+4*i,4)}, v{tb_} offset:{1024*i}' for i in range(23)]
    for T in range(3):
        if T == 2: k.I('s_mov_b32 exec_hi, 0')
        for c in range(2):
            k.I(f'ds_read_b64 {vr(xr+(2*T+c)*2,2)}, v{xo} offset:{1280*c+32*T}')
    k.I('s_mov_b64 exec, -1')
    for t in tl[:8]: k.I(t)
    xf = d2
    assert tv.n <= d2
    for i in range(12):
        k.I(f'v_lshlrev_b32 v{xf+2*i}, 16, v{xr+i}')
        k.I(f'v_and_b32 v{xf+2*i+1}, 0xffff0000, v{xr+i}')
        k.I(tl[8 + i])
    for t in tl[20:]: k.I(t)
    k.I('s_mov_b32 s98, 0x80000000')
    k.I('s_mov_b32 s99, 0x00008000')
    for j in range(60): k.I(f'v_xor_b32 v{f40+j}, s{98 + ((j//10) & 1)}, v{f40+j}')
    d2 = f40
    cm_(k, 8)
    ycheck()
    k.I('s_cbranch_scc1 LY_slow')
    k.label('LY_ok')
    mark(k, 2); cm_(k, 9)
    for rho in range(3):
        if rho == 2: k.I('s_mov_b64 exec, s[34:35]')
        for pr in range(2):
            k.I(f'ds_write_b32 v{wu}, v{ch+4*rho+2*pr} offset:{pr*PL+512*rho}')
            k.I(f'ds_write_b32 v{wv}, v{ch+4*rho+2*pr+1} offset:{pr*PL+512*(2-rho)}')
    k.I('s_mov_b64 exec, -1')
    k.I(f'v_lshlrev_b32 v{so}, 4, v0')
    k.I(f'v_add_u32 v{so}, {SB}, v{so}')
    def gochk():
        k.I(f'v_readfirstlane_b32 s24, v{hr}')
        k.I('s_cmp_lg_u32 s24, 1')
        k.I('s_cbranch_scc1 LF0_slow')
        k.label('LF0_ok')
    if HALF: gochk()
    k.barrier()
    mark(k, 3)
    for p in range(5):
        k.I(f'ds_read2st64_b32 {vr(dat+2*p,2)}, v{ra} offset0:{2*p} offset1:{2*p+1}')
    def s1(T):
        o = []
        for kap in range(3):
            for c in range(2):
                dd = vr(d1 + (2*T+c)*4, 4)
                o.append(f'{MF16} {dd}, {vr(dat+4*kap,4)}, {vr(f40+(2*T+c)*10+4*kap,4)}, {dd if kap else 0}')
        return o
    k.bg_every = env('BG2', 12)
    mr = [f'ds_read_b128 {vr(mg+4*T,4)}, v{mo} offset:{MLD+64*T}' for T in range(3)]
    mr += [f'ds_read_b128 {vr(ms+4*T,4)}, v{mo} offset:{MLD+2560+64*T}' for T in range(3)]
    mr += [f'ds_read_b128 {vr(mc+4*T,4)}, v{mo} offset:{MLD+5120+64*T}' for T in range(3)]
    for t in s1(0)[:6]: k.I(t)
    rest = merge(k, s1(1), mr, 2)
    for t in rest: k.I(t)
    a2 = ch
    cm = [rec(cmul4, d1+8*T, d1+8*T+4, cs+4*T, sn+4*T, a2+4*T, tmp, True) for T in range(3)]
    def s2(T): return [f'{MF16} {vr(d2+(2*T+c)*4,4)}, {vr(a2+4*T,4)}, {vr(f16+(0 if c else 2),4)}, 0' for c in range(2)]
    for t in s1(2) + cm[0] + s2(0) + cm[1] + s2(1) + cm[2] + s2(2): k.I(t)
    st_ = f40 + 24
    for T in range(3):
        for c in range(2):
            for p in (0, 2):
                r = (2*T+c)*4+p
                k.I(f'v_pk_fma_f32 {vr(xf+r,2)}, {vr(d2+r,2)}, {vr(mg+4*T+p,2)}, {vr(xf+r,2)}')
        for c in range(2):
            r = xf+(2*T+c)*4
            if T == 0:
                k.I(f'v_pk_add_f32 {vr(st_+2*c,2)}, {vr(r,2)}, {vr(r+2,2)}')
                k.I(f'v_pk_mul_f32 {vr(st_+4+2*c,2)}, {vr(r,2)}, {vr(r,2)}')
            else:
                k.I(f'v_pk_add_f32 {vr(st_+2*c,2)}, {vr(st_+2*c,2)}, {vr(r,2)}')
                k.I(f'v_pk_fma_f32 {vr(st_+4+2*c,2)}, {vr(r,2)}, {vr(r,2)}, {vr(st_+4+2*c,2)}')
        for c in range(2):
            r = xf+(2*T+c)*4+2
            if T: k.I(f'v_pk_add_f32 {vr(st_+2*c,2)}, {vr(st_+2*c,2)}, {vr(r,2)}')
            k.I(f'v_pk_fma_f32 {vr(st_+4+2*c,2)}, {vr(r,2)}, {vr(r,2)}, {vr(st_+4+2*c,2)}')
    for i in range(4): k.I(f'v_add_f32 v{st_+2*i}, v{st_+2*i}, v{st_+2*i+1}')
    wave_reduce_to_sgpr(k, [st_, st_+2, st_+4, st_+6], [46, 47, 48, 49])
    po = d1; ph = d1 + 12; hn = d2
    rr = f40 + 32; nmr = f40 + 34
    ln_scalars(k, 46, 48, rr, nmr, tmp)
    k.I(f'v_mov_b32 v{rr+4}, v{rr+1}')
    k.I(f'v_mov_b32 v{nmr+4}, v{nmr+1}')
    for T in range(3):
        for c in range(2):
            for p in (0, 2):
                r = (2*T+c)*4+p
                k.I(f'v_pk_fma_f32 {vr(hn+r,2)}, {vr(xf+r,2)}, {vr(rr+4*c,2)}, {vr(nmr+4*c,2)} op_sel_hi:[1,0,0]')
        for c in range(2):
            for p in (0, 2):
                r = hn+(2*T+c)*4+p
                k.I(f'v_pk_fma_f32 {vr(r,2)}, {vr(r,2)}, {vr(mc+4*T+p,2)}, {vr(ms+4*T+p,2)}')
        for j in range(4):
            k.I(f'v_cvt_pk_bf16_f32 v{ph+4*T+j}, v{hn+8*T+2*j}, v{hn+8*T+2*j+1}')
        if T:
            k.I(f'v_permlane16_swap_b32 v{ph+4*T-4}, v{ph+4*T-2}')
            k.I(f'v_permlane16_swap_b32 v{ph+4*T-3}, v{ph+4*T-1}')
            k.I(f'v_or_b32 v{ph+4*T-4}, 1, v{ph+4*T-4}')
            k.I(f'ds_write_b128 v{wh+T-1}, {vr(ph+4*T-4,4)} offset:{HB}')
    k.bg_every = 0
    for j in range(2): k.I(f'v_cvt_pk_bf16_f32 v{po+j}, v{xf+2*j}, v{xf+2*j+1}')
    k.I(f'v_permlane16_swap_b32 v{ph+8}, v{ph+10}')
    k.I(f'v_permlane16_swap_b32 v{ph+9}, v{ph+11}')
    k.I(f'v_or_b32 v{ph+8}, 1, v{ph+8}')
    k.I('s_mov_b32 exec_hi, 0')
    k.I(f'ds_write_b128 v{wh+2}, {vr(ph+8,4)} offset:{HB}')
    k.I('s_mov_b64 exec, -1')
    k.I('s_lshr_b32 s42, s3, 1')
    k.I('s_mul_i32 s42, s42, 20480')
    k.I('s_and_b32 s24, s21, 1')
    k.I('s_lshl_b32 s24, s24, 7')
    k.I('s_add_u32 s42, s42, s24')
    k.I(f's_add_u32 s42, s42, {H2}')
    k.I('s_add_u32 s44, s42, 8192')
    k.I('s_add_u32 s45, s42, 16384')
    if not HALF: k.I(f'buffer_load_dword v{hr}, v{hs}, s[12:15], s89 offen offset:1024 sc1')
    k.barrier()
    mark(k, 4); hm(k, 1)
    sd = mg
    for rho in range(3):
        k.I(f'ds_read_b128 {vr(sd+4*rho,4)}, v{so} offset:{HB+4096*rho}')
    for j in range(2, 12): k.I(f'v_cvt_pk_bf16_f32 v{po+j}, v{xf+2*j}, v{xf+2*j+1}')
    k.I(f'buffer_store_dwordx4 {vr(sd,4)}, v{g0}, s[12:15], s42 offen sc1', tag='h2')
    k.I(f'buffer_store_dwordx4 {vr(sd+4,4)}, v{g0}, s[12:15], s44 offen sc1', tag='h2')
    k.I('s_cmp_lt_u32 s22, 2')
    k.I('s_cselect_b64 exec, -1, 0')
    k.I(f'buffer_store_dwordx4 {vr(sd+8,4)}, v{g0}, s[12:15], s45 offen sc1', tag='h2')
    k.I('s_mov_b64 exec, -1')
    hm(k, 2)
    for T in range(3):
        k.I(f'v_permlane16_swap_b32 v{po+4*T}, v{po+4*T+2}')
        k.I(f'v_permlane16_swap_b32 v{po+4*T+1}, v{po+4*T+3}')
    for T in range(3):
        if T == 2: k.I('s_mov_b32 exec_hi, 0')
        k.I(f'ds_write_b128 v{wx}, {vr(po+4*T,4)} offset:{XB+32*T}')
    k.I('s_mov_b64 exec, -1')
    k.I(f's_add_u32 s24, s30, {SB + XB - XL}')
    k.I(f'v_add_u32 v{g2}, s24, v{vo16}')
    k.I('s_mul_i32 s43, s3, 10240')
    k.I(f's_add_u32 s43, s43, s30')
    k.I(f's_add_u32 s29, s43, {X1 - XL}')
    k.waitcnt(lgkm=0)
    sx = 244
    for i in range(3): k.I(f'ds_read_b128 {vr(sx+4*i,4)}, v{g2} offset:{1024*i}')
    def x1st():
        for i in range(3):
            if i == 2: k.I('s_mov_b32 exec_hi, 0')
            k.I(f'buffer_store_dwordx4 {vr(sx+4*i,4)}, v{vo16}, s[12:15], s43 offen offset:{1024*i} sc1')
        k.I('s_mov_b64 exec, -1')
    k.I('s_mul_i32 s24, s20, 163840')
    k.I(f's_add_u32 s24, s24, {H2}')
    k.I('s_add_u32 s16, s4, s24')
    k.I('s_addc_u32 s17, s5, 0')
    k.I('s_mov_b32 s18, 163840')
    k.I('s_mov_b32 s19, 0x00020000')
    k.I('s_and_b32 s52, s22, 2')
    k.I('s_add_u32 s52, s52, s22')
    k.I('s_mul_i32 s52, s52, 20480')
    k.I('s_add_u32 s53, s52, 40960')
    k.I('s_lshl_b32 s54, s20, 8')
    k.I(f's_add_u32 s54, s54, {FLAGS}')
    k.I('s_add_u32 s55, s54, 4096')
    k.I('s_add_u32 s51, s54, 128')
    k.srd(36, 40, S * D * 2)
    hm(k, 3)
    k.emit_bg(W_ST)
    hm(k, 4)
    va = VAlloc(keep)
    rb = [va.get(), va.get()]; vD = va.get()
    oo = va.get(); ox = va.get(); lw = va.get(); lr = va.get(); t0 = va.get(); t1 = va.get()
    act = va.get(32, 4); accs = [va.get(48, 4), va.get(48, 4)]; pk = va.get(12, 4)
    gb = va.get(8, 4); x1r = va.get(16, 4)
    NV = (256 - va.n) // 4
    wdv = va.get(4 * NV, 4)
    def wdreg(n): return vr(wdv + 4*n, 4) if n < NV else ar(4*(n - NV), 4)
    def emit(grp):
        for t in grp:
            if isinstance(t, tuple): k.I(t[0], tag=t[1])
            else: k.I(t)
    def dma(ps, g):
        out = []
        for j in range(4):
            gr = [(f'buffer_load_dwordx4 v{vo16}, s[16:19], m0 offen offset:{1024*j} sc1 lds', ('a', ps, g, j // 2))]
            if j == 0: gr = [f's_add_u32 m0, s{52+ps}, {4096*g}'] + gr
            out.append(gr)
        return out
    NPRE = 2
    if env('H1_FLAG', 0):
        k.wait_tag('h2')
        signal(k, 'H1', 54, hs)
        k.emit_bg(env('W_PL', 6))
        poll(k, 'H1p', 54, hs, hr)
    if env('H_ACK', 1): k.wait_tag('h2')
    k.emit_bg(env('W_H', 0))
    hm(k, 5)
    for g in range(NPRE):
        for grp in dma(0, g): emit(grp)
    gochk()
    k.bg += [wload(n) for n in range(48, 60)]
    k.emit_bg(W_A)
    hm(k, 6)
    late = list(k.bg); k.bg = []
    print('late weight loads', len(late), 'NV', NV)
    k.I(f'v_mov_b32 v{rb[0]}, v{vo16}')
    k.I(f'v_add_u32 v{rb[1]}, {4*20480}, v{vo16}')
    def aread(ps, i, kap):
        off = ((i & 1) + 2*ps) * 20480 + 1024*kap
        base = rb[i >> 1]
        return f'ds_read_b128 {vr(act+16*(kap&1)+4*i,4)}, v{base} offset:{off - (40960 if ps else 0)}'
    k.I('s_lshl_b32 s24, s56, 2')
    k.I('s_add_u32 s24, s24, s22')
    k.I('s_mul_i32 s24, s24, 61440' if not env('W_SAME', 0) & 2 else 's_mul_i32 s24, s22, 61440')
    k.I(f's_add_u32 s24, s24, {WD}')
    k.I(f'v_add_u32 v{vD}, s24, v{vo16}')
    def dload(n):
        if env('NO_WD', 0): return [f'v_add_u32 v{vD}, 0, v{vD}']
        g = [f'buffer_load_dwordx4 {wdreg(n)}, v{vD}, s[12:15], 0 offen offset:{1024*(n%4)} sc1']
        if n % 4 == 3: g.append(f'v_add_u32 v{vD}, 0x1000, v{vD}')
        return g
    ND0 = env('WD_EARLY', 0)
    assert wdv + 4 * ND0 <= sx
    for n in range(ND0): emit(dload(n))
    RS = 336; PT = 16 * RS
    k.I('s_lshl_b32 s24, s20, 1')
    k.I('s_add_u32 s24, s24, s57')
    k.I('s_lshl_b32 s24, s24, 2')
    k.I(f's_mul_i32 s33, s22, {12*1024}')
    k.I(f's_add_u32 s33, s33, {HH}')
    k.I('s_mul_i32 s42, s24, 49152')
    k.I('s_add_u32 s42, s42, s33')
    for i in range(1, 4): k.I(f's_add_u32 s{42+i}, s42, {49152*i}')
    k.I(f'v_mul_u32_u24 v{t0}, 26, v{vl}')
    k.I(f'v_lshrrev_b32 v{t0}, 8, v{t0}')
    k.I(f'v_mul_u32_u24 v{t1}, 10, v{t0}')
    k.I(f'v_sub_u32 v{t1}, v{vl}, v{t1}')
    k.I(f'v_mul_u32_u24 v{lr}, {RS}, v{t0}')
    k.I(f'v_lshl_add_u32 v{lr}, v{t1}, 4, v{lr}')
    k.I(f's_mul_i32 s25, s22, {4*RS}')
    k.I(f'v_add_u32 v{lr}, s25, v{lr}')
    k.I(f'v_mul_u32_u24 v{ox}, 1280, v{t0}')
    k.I(f'v_lshl_add_u32 v{ox}, v{t1}, 4, v{ox}')
    k.I(f'v_mul_u32_u24 v{oo}, {32*1280}, v{t0}')
    k.I(f'v_lshl_add_u32 v{oo}, v{t1}, 4, v{oo}')
    k.I(f'v_lshlrev_b32 v{t1}, 5, v{t1}')
    k.I(f'v_mul_u32_u24 v{lw}, {RS}, v{vi}')
    k.I(f's_mul_i32 s25, s22, {PT}')
    k.I(f'v_add_u32 v{lw}, s25, v{lw}')
    lw2 = t0
    k.I(f'v_mul_u32_u24 v{hr}, 5, v{vq}')
    k.I(f'v_add_u32 v{lw2}, 1, v{hr}')
    k.I(f'v_lshrrev_b32 v{lw2}, 1, v{lw2}')
    k.I(f'v_lshl_add_u32 v{lw2}, v{lw2}, 4, v{lw}')
    k.I(f'v_lshrrev_b32 v{hr}, 1, v{hr}')
    k.I(f'v_lshl_add_u32 v{lw}, v{hr}, 4, v{lw}')
    k.I(f'v_and_b32 v{hr}, 1, v{vq}')
    k.I(f'v_mul_u32_u24 v{hr}, 160, v{hr}')
    k.I(f'v_add_u32 v{lw}, v{lw}, v{hr}')
    k.I(f'v_sub_u32 v{lw2}, v{lw2}, v{hr}')
    k.I(f'v_add_u32 v{lw2}, 160, v{lw2}')
    k.I('s_mul_i32 s30, s56, 160')
    k.I('s_lshl_b32 s25, s24, 2')
    k.I('s_add_u32 s25, s25, s22')
    k.I(f's_mul_i32 s46, s25, {4*1280}')
    k.I('s_add_u32 s46, s46, s30')
    k.I(f's_add_u32 s46, s46, {X1}')
    for i in range(1, 4): k.I(f's_add_u32 s{46+i}, s46, {16*1280*i}')
    k.I('s_lshl_b32 s25, s20, 7')
    k.I('s_lshl_b32 s26, s57, 4')
    k.I('s_add_u32 s25, s25, s26')
    k.I('s_add_u32 s25, s25, s22')
    k.I('s_mul_i32 s25, s25, 1280')
    k.I('s_add_u32 s25, s25, s30')
    for i in range(1, 4): k.I(f's_add_u32 s{25+i}, s25, {4*1280*i}')
    k.I('s_lshl_b32 s30, s30, 1')
    k.I(f's_add_u32 s30, s30, {5*2560}')
    vx3 = x1r + 14
    k.I(f'v_cmp_gt_u32 vcc, 32, v{vl}')
    k.I(f'v_mov_b32 v{vx3}, 0x7ff00000')
    k.I(f'v_cndmask_b32 v{vx3}, v{vx3}, v{vo16}, vcc')
    k.I('s_mov_b32 s34, -1')
    k.I('s_mov_b32 s35, 0xff')
    vck = x1r; vad = x1r + 15
    k.I(f'v_add_u32 v{vad}, s52, v{vo16}')
    slow = []
    def validate(name, groups):
        o = []; n = 0
        for g in groups:
            for j in range(2):
                o.append([f'ds_read2st64_b32 {vr(vck+n,2)}, v{vad} offset0:{16*g+8*j} offset1:{16*g+8*j+4}']); n += 2
        i = 1
        while i < n:
            if i + 1 < n: o.append([f'v_bitop3_b32 v{vck}, v{vck}, v{vck+i}, v{vck+i+1} bitop3:0x80']); i += 2
            else: o.append([f'v_bitop3_b32 v{vck}, v{vck}, v{vck+i}, 1 bitop3:0x80']); i += 1
        o.append([f'v_cmp_eq_u32 s[62:63], 0, v{vck}'])
        o.append(['s_nop 0'])
        o.append(['s_cmp_lg_u64 s[62:63], 0', ('BR', f's_cbranch_scc1 L{name}_slow', f'L{name}_ok')])
        slow.append((name, groups))
        return o
    _emit = emit
    def emit(grp):
        for t in grp:
            if isinstance(t, tuple) and t[0] == 'GRP': emit(t[1])
            elif isinstance(t, tuple) and t[0] == 'BR':
                k.I(t[1], noflush=True); k.raw(t[2] + ':')
            else: _emit([t])
    V0 = [0] if env('V0_ONE', 1) else [0, 1]
    mark(k, 5); hm(k, 7)
    k.wait_tag('h2')
    k.wait_tag(('a', 0, V0[-1], 1))
    mark(k, 6); hm(k, 8)
    for g in validate('V0', V0): emit(g)
    if env('H1_FLAG', 0): k.I('s_barrier')
    else: signal(k, 'H1', 54, hs)
    mark(k, 7); hm(k, 9)
    for kp_ in range(2):
        for i in range(4): k.I(aread(0, i, kp_))
    def epi(ps):
        acc = accs[ps]; o = []
        for pr in range(2):
            for j in range(2):
                i = 2*pr + j
                g_ = acc + i*4; u_ = acc + (4+i)*4
                for p in (0, 2): o.append(f'v_pk_mul_f32 {vr(g_+p,2)}, {vr(g_+p,2)}, {vr(u_+p,2)}')
            a_ = acc + (8+2*pr)*4; b_ = a_ + 4
            for r in range(4): o.append(f'v_permlane32_swap_b32 v{a_+r}, v{b_+r}')
            for j in range(2):
                g_ = acc + (2*pr+j)*4
                for p in (0, 2): o.append(f'v_cvt_pk_bf16_f32 v{pk+4*pr+2*j+p//2}, v{g_+p}, v{g_+p+1}')
            for p in (0, 2): o.append(f'v_pk_mul_f32 {vr(a_+p,2)}, {vr(a_+p,2)}, {vr(b_+p,2)}')
            o.append(f'v_permlane16_swap_b32 v{pk+4*pr}, v{pk+4*pr+2}')
            o.append(f'v_permlane16_swap_b32 v{pk+4*pr+1}, v{pk+4*pr+3}')
            for p in (0, 2): o.append(f'v_cvt_pk_bf16_f32 v{pk+8+2*pr+p//2}, v{a_+p}, v{a_+p+1}')
            o.append((f'buffer_store_dwordx4 {vr(pk+4*pr,4)}, v{oh}, s[12:15], s{58+2*pr+ps} offen sc1', ('h', ps)))
        o.append(f'v_permlane16_swap_b32 v{pk+8}, v{pk+10}')
        o.append(f'v_permlane16_swap_b32 v{pk+9}, v{pk+11}')
        o.append((f'buffer_store_dwordx4 {vr(pk+8,4)}, v{oh2}, s[12:15], s{58+ps} offen offset:512 sc1', ('h', ps)))
        return o
    slots_h = [vr(accs[0] + 4*i, 4) for i in range(12)] + [ar(240 + 4*i, 4) for i in range(4)] + [ar(4*i, 4) for i in range(60 - NV, 60)]
    NH = len(slots_h)
    horder = [(t, kp) for kp in range(12) for t in (0, 1)] + [(t, kp) for t in (2, 3) for kp in range(12)]
    def hload(n):
        t, kp = horder[n]
        if env('NO_H', 0): return [f's_add_u32 s{42+t}, s{42+t}, {n}']
        g = [f'buffer_load_dwordx4 {slots_h[n % NH]}, v{vo16}, s[12:15], s{42+t} offen offset:{1024*(kp%4)} sc1']
        if kp % 4 == 3: g.append(f's_add_u32 s{42+t}, s{42+t}, 4096')
        return g
    def check(name, cnt):
        k.I(f'v_readfirstlane_b32 s33, v{hr}')
        k.I('s_cmp_ge_u32 s33, 16')
        k.I(f's_cbranch_scc0 L{name}_spin', noflush=True)
        k.raw(f'L{name}_ok:')
        spins.append((name, cnt))
    spins = []
    q1 = []
    for g in range(NPRE, 5): q1 += dma(0, g)
    xs_ = []
    for i in range(3):
        xs_.append([f'buffer_store_dwordx4 {vr(sx+4*i,4)}, v{vo16 if i < 2 else vx3}, s[12:15], s29 offen offset:{1024*i} sc1'])
    q1 += late[:-6] + [[f'buffer_load_dword v{hr}, v{hs}, s[12:15], s54 offen sc1']] + late[-6:] + xs_ + [['CHECK']]
    for g in range(5): q1 += dma(1, g)
    q1 += [[f'buffer_load_dwordx4 {vr(gb+4*j,4)}, v{t1}, s[12:15], s30 offen offset:{16*j} sc1'] for j in range(2)]
    nd = ND0; nh = 0
    bars = {(0, 6): ('a', 0, 2, 1), (0, 10): ('a', 0, 4, 1), (0, 18): ('a', 1, 1, 1), (1, 6): ('a', 1, 4, 1), (1, env('K_SA', 9)): None}
    if len(V0) == 1: bars[(0, 2)] = ('a', 0, 1, 1)
    VRATE = env('VRATE', 25) / 120.0
    credit = 1.0
    KA_, KC_ = env('K_A', 14), env('K_C', 17)
    ep = []; vq_ = []
    fl = []
    since = 99
    def isvm(t): return (t[0] if isinstance(t, tuple) else t).startswith('buffer_')
    for ps in range(2):
        for kap in range(20):
            pend = list(fl) + [t for g in q1 for t in g]
            if ps == 0 and kap in (env('V2_AT', 4), env('V3_AT', 7)): assert not any(isinstance(t, tuple) and t[0] != 'GRP' and t[1] <= ('a', 0, 2 if kap == env('V2_AT', 4) else 4, 1) for t in pend), 'val early'
            for mt in range(3):
                assert ps or not any(isinstance(t, str) and t.startswith(f'buffer_load_dwordx4 {ar((3*kap+mt)*4,4)},') for t in pend), ('weight late', kap)
            if (ps, kap) in bars:
                while vq_: emit(vq_.pop(0))
                if bars[(ps, kap)]:
                    assert not any(isinstance(t, tuple) and t[0] != 'GRP' and t[1] <= bars[(ps, kap)] for t in pend), ('dma late', ps, kap)
                    k.wait_tag(bars[(ps, kap)])
                if not bars[(ps, kap)]:
                    assert not ep
                    em(k, 3)
                    k.wait_tag(('h', 0))
                    signal(k, 'HA', 55, hs, noflush=True)
                    em(k, 4)
                else: k.I('s_barrier')
            if ps == 0 and kap == 1 and len(V0) == 1: k.wait_tag(('a', 0, 1, 1)); vq_ = validate('V1', [1])
            if ps == 0 and kap == env('V2_AT', 4): k.wait_tag(('a', 0, 2, 1)); vq_ = validate('V2', [2])
            if ps == 0 and kap == env('V3_AT', 7): k.wait_tag(('a', 0, 4, 1)); vq_ = validate('V3', [3, 4])
            if ps == 0 and kap == 18:
                k.I(f'v_add_u32 v{rb[0]}, 40960, v{rb[0]}')
                k.I(f'v_add_u32 v{rb[1]}, 40960, v{rb[1]}')
            if ps == 1 and kap == 1:
                if env('EP_SERIAL', 1):
                    em(k, 1)
                    for t in epi(0): emit([t])
                    em(k, 2)
                else: ep = pairs(epi(0))
            if ps == 1 and kap == KA_: fl.insert(0 if not fl or isvm(fl[0]) else 1, f'buffer_load_dword v{hr}, v{hs}, s[12:15], s55 offen sc1') if False else k.I(f'buffer_load_dword v{hr}, v{hs}, s[12:15], s55 offen sc1')
            if ps == 1 and kap == KC_: em(k, 5); check('HA', 55); em(k, 6)
            for j in range(12):
                i, mt = divmod(j, 3)
                if env('MT_MAJOR', 0): mt, i = divmod(j, 4)
                dd = vr(accs[ps]+(mt*4+i)*4, 4)
                k.I(f'{MF16} {dd}, {ar((3*kap+mt)*4,4)}, {vr(act+16*(kap&1)+4*i,4)}, {dd if kap else 0}')
                since += 1; credit = min(credit + VRATE, env('CCAP', 16) / 10.0)
                rd = None
                if mt == 2:
                    if kap < 18: rd = aread(ps, i, kap + 2)
                    elif ps == 0: rd = aread(1, i, kap - 18)
                if rd: k.I(rd); continue
                if env('MT_MAJOR', 0):
                    if j == 7 and k.lg: k.waitcnt(lgkm=0); continue
                else:
                    if j == 10 and len(k.lg) > 3: k.waitcnt(lgkm=3); continue
                    if j == 10 and ps == 1 and kap == 18: k.waitcnt(lgkm=0); continue
                if not fl:
                    free = NV + (3 * kap if ps else 0)
                    if q1 and q1[0] == ['CHECK']: q1.pop(0); check('H1', 54); continue
                    if q1: fl = list(q1.pop(0))
                    elif ps == 1 and kap >= KC_ and nh < 16 and (nh // 2) * 5 < nd: fl = list(hload(nh)); nh += 1
                    elif nd < min(free, 60): fl = list(dload(nd)); nd += 1
                if ep and isvm(ep[0][0]):
                    emit(ep.pop(0)); since = 0; credit -= 1.0
                elif fl and (not isvm(fl[0]) or (since >= 3 and credit >= 1.0)):
                    t = fl.pop(0)
                    if isvm(t): since = 0; credit -= 1.0
                    emit([t])
                elif vq_: emit(vq_.pop(0))
                elif ep:
                    g_ = ep.pop(0); emit(g_)
                    if ep and len(g_) == 1 and len(ep[0]) == 1 and not isvm(ep[0][0]): emit(ep.pop(0))
        if ps == 0 and not env('MD', 0): mark(k, 2)
    for t in fl: emit([t])
    assert not q1
    print('after E: wd loaded', nd, 'h loaded', nh)
    NHE = nh
    mark(k, 8); fm(k, 1); em(k, 7); pm(k, 1)
    fq = []
    def need_order():
        o = []; d = nd; h = nh
        for kp in range(12):
            while d < 5*(kp+1): o.append(dload(d)); d += 1
            while h < 2*(kp+1): o.append(hload(h)); h += 1
        return o
    fq = need_order()
    full = list(fq)
    def sorted_q(a_, b_):
        rest = [g for g in b_ if g not in full]
        return [g for g in full if g in a_ or g in b_] + rest
    fq += [['s_mov_b64 exec, s[34:35]', f'buffer_load_dwordx4 {vr(x1r+4*t,4)}, v{ox}, s[12:15], s{46+t} offen sc1', 's_mov_b64 exec, -1'] for t in range(4)]
    for t in epi(1): emit([t])
    fm(k, 2)
    if KC_ >= 20: check('HA', 55)
    fm(k, 3)
    for _ in range(env('F_PRE1', 0)):
        if fq: emit(fq.pop(0))
    mark(k, 9); fm(k, 4)
    fa = accs[1]
    SL = [0, 4*PT, 8*PT, 0]
    def pwrite(t, a): return [f'ds_write_b128 v{lw2 if dt & 1 else lw}, {vr(a+4*dt,4)} offset:{SL[t]+16*(dt//2)}' for dt in range(5)]
    def fin_reads(t, r): return [f'ds_read_b128 {vr(r+8*src+4*h_,4)}, v{lr} offset:{SL[t]+PT*src+160*h_}' for src in range(4) for h_ in range(2)]
    def fin_valu(t, r, xf):
        o = []
        for j in range(4):
            o.append(f'v_lshlrev_b32 v{xf+2*j}, 16, v{x1r+4*t+j}')
            o.append(f'v_and_b32 v{xf+2*j+1}, 0xffff0000, v{x1r+4*t+j}')
        for p in range(4): o.append(f'v_pk_add_f32 {vr(r+2*p,2)}, {vr(r+2*p,2)}, {vr(r+8+2*p,2)}')
        for p in range(4): o.append(f'v_pk_add_f32 {vr(r+16+2*p,2)}, {vr(r+16+2*p,2)}, {vr(r+24+2*p,2)}')
        for p in range(4): o.append(f'v_pk_add_f32 {vr(r+2*p,2)}, {vr(r+2*p,2)}, {vr(r+16+2*p,2)}')
        for p in range(4): o.append(f'v_pk_fma_f32 {vr(xf+2*p,2)}, {vr(r+2*p,2)}, {vr(gb+2*p,2)}, {vr(xf+2*p,2)}')
        for p in range(4): o.append(f'v_cvt_pk_bf16_f32 v{x1r+4*t+p}, v{xf+2*p}, v{xf+2*p+1}')
        return o
    OST = os.environ.get('OUT_ST', '')
    def fin_store(t): return ['s_mov_b64 exec, s[34:35]', f'buffer_store_dwordx4 {vr(x1r+4*t,4)}, v{oo}, s[36:39], s{25+t} offen{OST}', 's_mov_b64 exec, -1']
    KB_ = env('K_B', 3)
    fl = []
    def gap(pool):
        nonlocal fl
        if not fl and pool:
            g = pool.pop(0)
            if isinstance(g[0], str) and g[0].startswith('s_mov_b64 exec'): emit(g); return
            fl = list(g)
        if fl: emit([fl.pop(0)])
    FG = env('F_GAP', 5)
    KBL, KBC = env('K_BL', 8), env('K_BC', 11)
    since = 99; nh = 24
    hq = [hload(n) for n in range(24, 48)]
    for kp in range(12):
        if kp % 2 == 0: pm(k, 2 + kp // 2)
        if kp == KB_:
            k.wait_tag(('h', 1))
            signal(k, 'HB', 51, hs, noflush=True)
            fm(k, 5)
        if kp == KBL: fq.insert(0, [f'buffer_load_dword v{hr}, v{hs}, s[12:15], s51 offen sc1'])
        if kp == KBC:
            while fq or fl: gap(fq)
            check('HB', 51); fm(k, 7)
            fq = hq
        for t in range(2):
            need = [wdreg(5*kp+dt) for dt in range(5)] + [slots_h[(2*kp+t) % NH]]
            while fq is not hq and any(g[0].startswith(f'buffer_load_dwordx4 {r},') for g in fq for r in need): gap(fq)
            for dt in range(5):
                dd = vr(fa+20*t+4*dt, 4)
                k.I(f'{MF16} {dd}, {wdreg(5*kp+dt)}, {slots_h[(2*kp+t) % NH]}, {dd if kp else 0}')
                since += 1
                if dt == 4: continue
                if fl: gap(fq)
                elif since >= (env('F_GAP2', 5) if fq is hq else env('F_GAP1', 3)) and fq: gap(fq); since = 0
    pm(k, 8)
    while fl: gap(fq)
    if KBC >= 12:
        while fq: gap(fq)
    if not env('MD', 0): mark(k, 3)
    fm(k, 6); em(k, 8); pm(k, 9)
    def sprinkle(lst, every):
        for j, v_ in enumerate(lst):
            k.I(v_)
            if j % every == every - 1 and hq: emit(hq.pop(0))
    if KBC == 12: check('HB', 51); fm(k, 7)
    sprinkle(pwrite(0, fa) + pwrite(1, fa + 20), env('SPR', 2) if KBC <= 12 else 99)
    k.barrier()
    if KBC == 13:
        check('HB', 51); fm(k, 7)
        for _ in range(4): emit(hq.pop(0))
    em(k, 9)
    xfA = pk
    sprinkle(fin_reads(0, fa) + fin_reads(1, act), env('SPR2', 8))
    sprinkle(fin_valu(0, fa, pk), env('SPR3', 14))
    if not env('MD', 0): mark(k, 4)
    late_st = [fin_store(0), fin_store(1)]
    extra0 = pairs(fin_valu(1, act, fa + 40))
    rB = act
    extra = extra0
    hq = hq + late_st
    since = 99
    for t in (2, 3):
        a = fa + 20*(t - 2)
        if t == 3:
            assert not extra
            extra = [[w_] for w_ in pwrite(2, fa)]
        for kp in range(12):
            n = 24 + 12*(t-2) + kp
            if n == 25: fm(k, 8)
            assert not any(g[0].startswith(f'buffer_load_dwordx4 {slots_h[n % NH]},') for g in hq)
            for dt in range(5):
                dd = vr(a+4*dt, 4)
                k.I(f'{MF16} {dd}, {wdreg(5*kp+dt)}, {slots_h[n % NH]}, {dd if kp else 0}')
                since += 1
                if dt == 4 and n < 46: continue
                if fl: gap(hq)
                elif hq and since >= FG and not (extra is extra0 and extra and hq[0] is late_st[1]): gap(hq); since = 0
                elif (kp >= 1 or t == 2) and extra: emit(extra.pop(0))
            if t == 3 and kp == 3:
                assert not extra
                k.barrier()
                extra = [[r_] for r_ in fin_reads(2, wdv)] + pairs(fin_valu(2, wdv, xfA)) + [fin_store(2)]
    fm(k, 9)
    while extra: emit(extra.pop(0))
    for w_ in pwrite(3, fa + 20): k.I(w_)
    xl = fin_valu(3, wdv + 32, act)
    for v_ in xl[:8]: k.I(v_)
    k.barrier()
    for r_ in fin_reads(3, wdv + 32): k.I(r_)
    for v_ in xl[8:]: k.I(v_)
    emit(fin_store(3))
    if gen.STAMPS and not env('MF', 0): k.I('s_add_u32 s66, s50, s64')
    stamp_end(k, 3, 4)
    k.label('LD_exit')
    k.I('s_endpgm')
    k.label('LXG_slow', fresh=True); k.vm = []; k.lg = []
    k.I('s_mov_b32 s24, 0x40000')
    k.label('LXG_loop')
    k.I('s_sleep 2')
    xg()
    k.waitcnt(vm=0)
    k.I('s_sub_u32 s24, s24, 1')
    k.I('s_cbranch_scc1 LXG_ok')
    xtest()
    k.I('s_cbranch_scc1 LXG_loop')
    k.I('s_branch LXG_ok')
    k.label('LY_slow', fresh=True); k.vm = []; k.lg = []
    k.I('s_mov_b32 s24, 0x40000')
    k.label('LY_loop')
    k.I('s_add_u32 s50, s50, 1')
    k.I(f's_sleep {env("Y_SLEEP", 2)}')
    yloads()
    k.waitcnt(vm=0)
    k.I('s_sub_u32 s24, s24, 1')
    k.I('s_cbranch_scc1 LY_ok')
    ycheck()
    k.I('s_cbranch_scc1 LY_loop')
    k.I('s_branch LY_ok')
    k.label('LF0_slow', fresh=True); k.vm = []; k.lg = []
    k.I('s_mov_b32 s33, 0x40000')
    k.label('LF0_loop')
    k.I('s_sleep 4')
    k.I(f'buffer_load_dword v{hr}, v{hs}, s[12:15], s89 offen offset:1024 sc1')
    k.waitcnt(vm=0)
    k.I('s_sub_u32 s33, s33, 1')
    k.I('s_cbranch_scc1 LF0_ok')
    k.I(f'v_readfirstlane_b32 s24, v{hr}')
    k.I('s_cmp_lg_u32 s24, 1')
    k.I('s_cbranch_scc1 LF0_loop')
    k.I('s_branch LF0_ok')
    k.label('LWD', fresh=True); k.restore_state(st0)
    vc = VAlloc(keep)
    t0_ = vc.get(); t1_ = vc.get(); ra_ = vc.get(); so_ = vc.get(5); o_ = vc.get(20, 4)
    for p in range(5):
        k.I(f'v_add_u32 v{t0_}, {64*p}, v{vl}')
        k.I(f'v_mul_u32_u24 v{t1_}, 205, v{t0_}')
        k.I(f'v_lshrrev_b32 v{t1_}, 13, v{t1_}')
        k.I(f'v_mul_u32_u24 v{t1_}, 640, v{t1_}')
        k.I(f'v_add_u32 v{so_+p}, v{t1_}, v{vo16}')
    k.I(f'v_bfe_u32 v{t1_}, v{vl}, 2, 2')
    k.I(f'v_lshl_add_u32 v{t0_}, v{vq}, 3, v{t1_}')
    k.I(f'v_mul_u32_u24 v{ra_}, 640, v{t0_}')
    k.I(f'v_and_b32 v{t0_}, 3, v{vl}')
    k.I(f'v_mul_u32_u24 v{t0_}, 40, v{t0_}')
    k.I('s_mul_i32 s24, s22, 160')
    k.I(f's_add_u32 s24, s24, {CL}')
    k.I(f'v_add3_u32 v{ra_}, v{ra_}, v{t0_}, s24')
    k.I('s_mul_i32 s90, s22, 5120')
    k.I(f's_add_u32 s90, s90, {CL}')
    k.I('s_sub_u32 s48, s2, 161')
    GL = CL + 20736
    wo_ = vc.get(3); rg_ = vc.get(); r2_ = vc.get(); og_ = vc.get(48, 4)
    apost(A1, 'zt')
    for p in range(3):
        k.I(f'v_add_u32 v{t0_}, {64*p}, v{vl}')
        k.I(f'v_mul_u32_u24 v{t1_}, 171, v{t0_}')
        k.I(f'v_lshrrev_b32 v{t1_}, 12, v{t1_}')
        k.I(f'v_mul_u32_u24 v{t1_}, 2688, v{t1_}')
        k.I(f'v_add_u32 v{wo_+p}, v{t1_}, v{vo16}')
    k.srd(8, 92, D * F * 2)
    k.srd(16, 94, D * F * 2)
    k.I('s_and_b32 s49, s48, 7')
    k.I('s_lshr_b32 s50, s48, 3')
    k.I('s_add_u32 s50, s50, 16')
    k.I('s_lshl_b32 s51, s50, 2')
    k.I('s_add_u32 s51, s51, s22')
    k.I(f's_mul_i32 s51, s51, {8*3072}')
    k.I('s_mul_i32 s24, s49, 384')
    k.I('s_add_u32 s51, s51, s24')
    k.I('s_cmp_lt_u32 s48, 32')
    k.I('s_cselect_b64 exec, -1, 0')
    k.I('s_mul_i32 s24, s22, 3072')
    k.I(f's_add_u32 m0, s24, {GL}')
    for p in range(3): k.I(f'buffer_load_dwordx4 v{wo_+p}, s[8:11], s51 offen offset:{1024*p} nt lds', tag='g')
    k.I(f's_add_u32 m0, s24, {GL + 12288}')
    for p in range(3): k.I(f'buffer_load_dwordx4 v{wo_+p}, s[16:19], s51 offen offset:{1024*p} nt lds', tag='g')
    k.I('s_mov_b64 exec, -1')
    k.I('s_lshl_b32 s54, s49, 3')
    k.I('s_add_u32 s54, s54, s22')
    k.I('s_mul_i32 s54, s54, 10')
    k.I('s_add_u32 s54, s54, s50')
    k.I('s_mul_i32 s54, s54, 3072')
    k.I(f's_add_u32 s54, s54, {WGU_B - 30720}')
    k.I('s_cmp_lt_u32 s48, 32')
    k.I('s_cselect_b32 s54, s54, 0x7f000000')
    k.I(f'v_bfe_u32 v{t1_}, v{vl}, 2, 2')
    k.I(f'v_lshl_add_u32 v{t0_}, v{vq}, 3, v{t1_}')
    k.I(f'v_mul_u32_u24 v{rg_}, 384, v{t0_}')
    k.I('s_mul_i32 s24, s22, 48')
    k.I(f's_add_u32 s24, s24, {GL}')
    k.I(f'v_add_u32 v{rg_}, s24, v{rg_}')
    k.I(f'v_and_b32 v{t0_}, 1, v{vl}')
    k.I(f'v_lshl_add_u32 v{r2_}, v{t0_}, 3, v{rg_}')
    k.I(f'v_bfe_u32 v{t0_}, v{vl}, 1, 1')
    k.I(f'v_mul_u32_u24 v{t0_}, 12288, v{t0_}')
    k.I(f'v_add_u32 v{r2_}, v{r2_}, v{t0_}')
    k.I(f'v_and_b32 v{t0_}, 3, v{vl}')
    k.I(f'v_lshl_add_u32 v{rg_}, v{t0_}, 3, v{rg_}')
    k.srd(36, 62, F * D * 2)
    k.srd(44, 4, F * D * 2, WD)
    def wd_in(sj):
        k.I(f's_and_b32 s49, s{sj}, 1')
        k.I(f's_lshr_b32 s50, s{sj}, 1')
        k.I('s_lshl_b32 s51, s50, 2')
        k.I('s_add_u32 s51, s51, s22')
        k.I('s_mul_i32 s51, s51, 10240')
        k.I('s_mul_i32 s24, s49, 640')
        k.I('s_add_u32 s51, s51, s24')
        k.I('s_mov_b32 m0, s90')
        for p in range(4): k.I(f'buffer_load_dwordx4 v{so_+p}, s[36:39], s51 offen offset:{1024*p} nt lds', tag='r')
        k.I('s_add_u32 m0, s90, 4096')
        k.I('s_add_u32 s51, s51, 4096')
        k.I(f'buffer_load_dwordx4 v{so_+4}, s[36:39], s51 offen nt lds', tag='r')
        k.I('s_lshl_b32 s52, s49, 2')
        k.I('s_add_u32 s52, s52, s22')
        k.I('s_mul_i32 s52, s52, 48')
        k.I('s_add_u32 s52, s52, s50')
        k.I('s_mul_i32 s52, s52, 5120')
        k.I('s_add_u32 s53, s52, 4096')
    def wd_out():
        k.wait_tag('r')
        k.I('s_barrier')
        cm_(k, 3)
        for j in range(2 if HALF else 0):
            for mt in range(3):
                for hf in range(2):
                    off = 4*hf*384 + 192*j + (12288 if mt == 1 else 0) + (32 if mt == 2 else 0)
                    k.I(f'ds_read_b64_tr_b16 {vr(og_+(3*j+mt)*4+2*hf,2)}, v{r2_ if mt == 2 else rg_} offset:{off}')
        for j in range(2 if HALF else 0):
            for mt in range(3):
                k.I(f'buffer_store_dwordx4 {vr(og_+(3*j+mt)*4,4)}, v{vo16}, s[12:15], s{34 if j else 54} offen offset:{1024*mt} sc1', tag='y')
        for dt in range(5):
            for hf in range(2): k.I(f'ds_read_b64_tr_b16 {vr(o_+dt*4+2*hf,2)}, v{ra_} offset:{4*hf*640+8*dt}')
        for dt in range(5):
            k.I(f'buffer_store_dwordx4 {vr(o_+dt*4,4)}, v{vo16}, s[44:47], s{52+(dt//4)} offen offset:{1024*(dt%4)} sc1', tag='y')
    wd_in(48)
    def aggregate(name, base, i):
        k.I('s_lshl_b32 s98, s22, 8')
        k.I('s_add_u32 s98, s98, s2')
        k.I('s_cmp_lg_u32 s98, 255')
        k.I(f's_cbranch_scc1 L{name}_x')
        if i == 1: k.I('s_mov_b32 exec_lo, 0'); k.I('s_mov_b32 exec_hi, 0xffffff00')
        aload(base)
        acheck(name, base)
        k.I('s_mov_b64 exec, -1')
        k.I(f'v_mov_b32 v250, s{TAG}')
        k.I(f'v_lshlrev_b32 v251, 7, v{vl}')
        k.I(f's_mov_b32 s98, {GO + 1024*i}')
        k.I('s_mov_b64 exec, 0xff')
        k.I('buffer_store_dword v250, v251, s[12:15], s98 offen sc1')
        if i == 0:
            k.I(f's_mov_b32 s98, {EPOCH}')
            k.I('s_mov_b64 exec, 1')
            k.I('buffer_store_dword v250, v251, s[12:15], s98 offen sc1')
        k.I('s_mov_b64 exec, -1')
        k.label(f'L{name}_x')
    aggregate('AG1', A1, 0)
    wd_out()
    for j in range(2):
        for mt in range(3):
            for hf in range(2):
                off = 4*hf*384 + 192*j + (12288 if mt == 1 else 0) + (32 if mt == 2 else 0)
                k.I(f'ds_read_b64_tr_b16 {vr(og_+(3*j+mt)*4+2*hf,2)}, v{r2_ if mt == 2 else rg_} offset:{off}')
    for j in range(2):
        k.I(f's_add_u32 s34, s54, {4*10*3072*j}')
        for mt in range(3):
            k.I(f'buffer_store_dwordx4 {vr(og_+(3*j+mt)*4,4)}, v{vo16}, s[12:15], s34 offen offset:{1024*mt} sc1', tag='y')
    cm_(k, 2)
    k.I('s_cmp_lg_u32 s2, 250')
    k.I('s_cbranch_scc1 LWD1')
    k.I('s_movk_i32 s48, 95')
    k.barrier()
    wd_in(48); wd_out()
    k.label('LWD1')
    gload(0)
    gcheck('G1w', 0)
    k.I('s_sub_u32 s48, s2, 244')
    k.I('s_cmp_ge_u32 s48, 3')
    k.I('s_cbranch_scc1 LWD0')
    m0_ = 120
    k.I('s_lshl_b32 s48, s48, 8')
    k.I(f'v_add_u32 v{m0_}, s48, v0')
    k.I(f'v_lshlrev_b32 v{m0_+1}, 4, v{m0_}')
    k.srd(8, 4, 4 * 960 * 16, GR)
    for p in range(4):
        k.I(f's_mov_b32 s49, {960*16*p + 320*16}')
        k.I(f'buffer_load_dwordx4 {vr(m0_+4+4*p,4)}, v{m0_+1}, s[8:11], s49 offen sc1')
    k.srd(12, 4, 4 * D * 4, MODN + 2 * D * 4)
    k.I('s_mov_b32 s50, 0x04000c0c')
    k.I('s_mov_b32 s51, 0x0706000c')
    k.I(f'v_mov_b32 v{m0_+22}, {fhex(1.0 / (2.0 * S * D))}')
    k.I(f'v_cmp_gt_u32 vcc, 0xa0, v{m0_}')
    k.I(f'v_cndmask_b32 v{m0_+22}, 1.0, v{m0_+22}, vcc')
    k.I(f'v_subrev_u32 v{m0_+21}, 0x140, v{m0_}')
    k.I(f'v_cmp_gt_u32 vcc, 0xa0, v{m0_+21}')
    k.I(f'v_mov_b32 v{m0_+23}, 1.0')
    k.I(f'v_cndmask_b32 v{m0_+23}, 0, v{m0_+23}, vcc')
    g_ = m0_ + 4
    for p in range(4): unpack_gran(k, g_+4*p, m0_+21, 50, 51)
    for p in (0, 2):
        k.I(f'v_pk_add_f32 {vr(g_+p,2)}, {vr(g_+p,2)}, {vr(g_+4+p,2)}')
        k.I(f'v_pk_add_f32 {vr(g_+8+p,2)}, {vr(g_+8+p,2)}, {vr(g_+12+p,2)}')
    for p in (0, 2): k.I(f'v_pk_add_f32 {vr(g_+p,2)}, {vr(g_+p,2)}, {vr(g_+8+p,2)}')
    for j in range(4): k.I(f'v_cvt_pk_bf16_f32 v{g_+j}, v{g_+j}, v{g_+j}')
    for j in range(4): k.I(f'v_and_b32 v{g_+j}, 0xffff0000, v{g_+j}')
    for j in range(4): k.I(f'v_add_f32 v{g_+j}, v{m0_+23}, v{g_+j}')
    for j in range(4): k.I(f'v_cvt_pk_bf16_f32 v{g_+j}, v{g_+j}, v{g_+j}')
    for j in range(4): k.I(f'v_and_b32 v{g_+j}, 0xffff0000, v{g_+j}')
    for j in range(4): k.I(f'v_mul_f32 v{g_+j}, v{m0_+22}, v{g_+j}')
    k.I(f'buffer_store_dwordx4 {vr(g_,4)}, v{m0_+1}, s[12:15], 0 offen sc1', tag='y')
    k.label('LWD0')
    k.I('s_sub_u32 s48, s2, 161')
    scalars()
    k.I(f'v_mov_b32 v{hs}, 0')
    k.I(f'v_mov_b32 v{hs+1}, 1')
    cm_(k, 1)
    k.bg = bglist(); k.emit_bg(env('WD_B1', 4))
    k.wait_tag('y')
    cm_(k, 5)
    k.I('s_barrier')
    stS = k.save_state()
    k.I('s_cmp_lg_u32 s22, 0')
    k.I('s_cbranch_scc1 LFW_s')
    k.I(f'v_mov_b32 v{t0_}, 1')
    k.I(f'v_lshlrev_b32 v{t1_}, 7, v{vl}')
    k.I(f's_mov_b32 s35, {FW + 1024}')
    k.I('s_mov_b64 exec, 1')
    k.I(f'buffer_atomic_add v{t0_}, v{hs}, s[12:15], s35 offen sc0 sc1')
    k.I(f'v_readfirstlane_b32 s35, v{t0_}')
    k.I('s_cmp_eq_u32 s35, 94')
    k.I('s_cselect_b64 exec, 0xff, 0')
    k.I(f's_mov_b32 s35, {FW}')
    k.I(f'buffer_store_dword v{hs+1}, v{t1_}, s[12:15], s35 offen sc1')
    k.I('s_mov_b64 exec, -1')
    k.label('LFW_s')
    topup()
    k.emit_bg(W_J1_)
    dpro()
    t0_ = v8; t1_ = vcn
    if env('MD_WARM', 1):
        k.I('s_mov_b32 m0, s88')
        k.I(f'buffer_load_dwordx4 v{vo16}, s[12:15], s31 offen sc1 lds')
        k.I(f'buffer_load_dwordx4 v{vo16}, s[12:15], s31 offen offset:1024 sc1 lds')
    cm_(k, 6)
    if env('CANARY', 1):
        k.I('s_lshl_b32 s48, s48, 14')
        k.I('s_add_u32 s48, s48, s25')
        k.I(f'v_mov_b32 v{t0_}, 0')
        k.I('s_mov_b32 s24, 0x400')
        k.I('s_cmp_lg_u32 s22, 0')
        k.I('s_cbranch_scc1 LCAN_o')
        k.label('LCAN')
        k.I('s_sleep 4')
        k.I(f'buffer_load_dword v{t1_}, v{t0_}, s[16:19], s48 offen sc1')
        k.waitcnt(vm=0)
        k.I(f'v_readfirstlane_b32 s49, v{t1_}')
        k.I('s_sub_u32 s24, s24, 1')
        k.I('s_cbranch_scc1 LCAN_o')
        k.I('s_bitcmp0_b32 s49, 0')
        k.I('s_cbranch_scc1 LCAN')
        k.label('LCAN_o')
        if env('CAN_SLEEP', 0): k.I(f's_sleep {env("CAN_SLEEP", 0)}')
        k.I('s_barrier')
    cm_(k, 7)
    k.I('s_branch LJOIN')
    for name, groups in slow:
        k.label(f'L{name}_slow', fresh=True); k.vm = []; k.lg = []
        k.I('s_mov_b32 s32, m0')
        k.I('s_mov_b32 s24, 0x40000')
        k.label(f'L{name}_loop')
        k.I(f's_add_u32 s50, s50, {16 if name == "V0" else 256}')
        for g in groups:
            for grp in dma(0, g): _emit(grp)
        k.I('s_mov_b32 m0, s32')
        k.waitcnt(vm=0)
        k.I('s_sub_u32 s24, s24, 1')
        k.I(f's_cbranch_scc1 L{name}_ok')
        sl_ = list(slow)
        for g in validate(name + 'r', groups)[:-1]: _emit(g)
        slow[:] = sl_
        k.I('s_cmp_lg_u64 s[62:63], 0')
        k.I(f's_cbranch_scc1 L{name}_loop')
        k.I(f's_branch L{name}_ok')
    for name, i in gslow:
        k.label(f'L{name}_slow', fresh=True); k.vm = []; k.lg = []
        k.I('s_mov_b32 s91, 0x40000')
        k.label(f'L{name}_loop')
        k.I('s_sleep 3')
        gload(i)
        k.waitcnt(vm=0)
        k.I('s_sub_u32 s91, s91, 1')
        k.I(f's_cbranch_scc1 L{name}_ok')
        k.I(f'v_readfirstlane_b32 s98, v{gv}')
        k.I(f's_cmp_lg_u32 s98, s{TAG}')
        k.I(f's_cbranch_scc1 L{name}_loop')
        k.I(f's_branch L{name}_ok')
    for name, base in aslow:
        k.label(f'L{name}_slow', fresh=True); k.vm = []; k.lg = []
        k.I('s_mov_b32 s91, 0x40000')
        k.label(f'L{name}_loop')
        k.I(f's_sleep {env("A_SLEEP", 6) if name.startswith("AG") else 24}')
        aload(base)
        k.waitcnt(vm=0)
        k.I('s_sub_u32 s91, s91, 1')
        k.I(f's_cbranch_scc1 L{name}_ok')
        atest()
        k.I(f's_cbranch_scc1 L{name}_loop')
        k.I(f's_branch L{name}_ok')
    for name, cnt in spins:
        k.label(f'L{name}_spin', fresh=True); k.vm = []; k.lg = []
        k.I('s_mov_b32 s24, 0x100000')
        k.label(f'L{name}_loop')
        k.I(f's_sleep {env("SPIN_SLEEP", 2)}')
        k.I(f'buffer_load_dword v{hr}, v{hs}, s[12:15], s{cnt} offen sc1')
        k.waitcnt(vm=0)
        k.I(f'v_readfirstlane_b32 s33, v{hr}')
        k.I('s_sub_u32 s24, s24, 1')
        k.I(f's_cbranch_scc1 L{name}_ok')
        k.I('s_cmp_lt_u32 s33, 16')
        k.I(f's_cbranch_scc1 L{name}_loop')
        k.I(f's_branch L{name}_ok')
    return k, (256, 256, 163840)
```

```python
import sys, os
os.environ['GEN6'] = '1'; os.environ['PARITY'] = '1'
import gen
from gen import *
from uni import gen_UNI
KERNELS = (gen_UNI,)
if __name__ == '__main__':
    out = sys.argv[1]
    if len(sys.argv) > 2 and sys.argv[2] == 'stamps': gen.STAMPS = True
    build(out, KERNELS)
```

```python
import os, math
import gen
from gen import *
from gen2 import *
from gen4 import YT, GR, EPOCH, unpack_gran, Rec, rec
XS = YT; XS_ST = 10368
A0 = FLAGS + 0x3000; A1 = A0 + 0x400; A2 = A0 + 0x800; GO = A0 + 0xC00
NM = env('NM', 240)
TAG = 100
class Fix:
    def __init__(self, seq): self.seq = list(seq)
    def get(self, *a): return self.seq.pop(0)

def phase1(k, R, um, WS_END, XL, TL):
    vl, vo16, vi, vq = R['vl'], R['vo16'], R['vi'], R['vq']
    PL = 5184; ML = 4 * PL; MP = 26112; TLD = 81920; GL = TLD + 20736; BS = 5136; BL = 5136 + env('T_PAD', 16)
    OOB = '0x7f000000'
    k.I(f's_load_dwordx2 s[58:59], s[0:1], {KA["ws"]}')
    k.I(f's_load_dwordx4 s[8:11], s[0:1], {KA["c"]}')
    k.I(f's_load_dwordx2 s[6:7], s[0:1], {KA["x"]}')
    k.I(f's_load_dwordx4 s[60:63], s[0:1], {KA["wr"]}')
    k.I(f's_load_dwordx4 s[92:95], s[0:1], {KA["wg"]}')
    def prefetch():
        k.I('s_getpc_b64 s[98:99]')
        k.raw('LU_pc0:')
        k.I('s_lshr_b32 s101, s2, 3')
        k.I('s_lshl_b32 s101, s101, 6')
        k.I('v_lshlrev_b32 v250, 11, v0')
        k.I('v_add_u32 v250, s101, v250')
        k.I('v_min_u32 v250, Lcode_end-LU_pc0-4, v250')
        k.I('v_mov_b32 v251, s99')
        k.I('v_add_co_u32 v252, vcc, s98, v250')
        k.I('v_addc_co_u32 v253, vcc, 0, v251, vcc')
        k.I('v_cmp_gt_u32 vcc, 20, v0')
        k.I('s_and_b64 exec, exec, vcc')
        k.I('s_cbranch_execz LU_e0')
        k.I('global_load_dword v255, v[252:253], off')
        k.vm[-1] = (set(), None)
        k.label('LU_e0')
        k.I('s_mov_b64 exec, -1')
    if not env('PF_LATE', 0): prefetch()
    va = VAlloc(R['keep'], 250)
    wa = va.get(); ru = va.get(); rv = va.get(); so = va.get(); gA = va.get(); gB = va.get(); lB = va.get(); rm = va.get()
    wo = va.get(3); rg = va.get(); r2 = va.get(); rT = va.get(); dT = va.get(); vz = va.get()
    xs = va.get(20, 4); md = va.get(20, 4); f40 = va.get(100, 4); f16i = f40 + 62; cs = f40 + 68; sn = f40 + 80; f16 = f40 + 92
    tmp = va.get(8, 2); dat = va.get(12, 2)
    og = va.get(24, 4); lo = va.get(24, 4); ex = va.get(14, 2)
    mv = VAlloc(og, ex + 14)
    vw = mv.get(20, 4); acc = mv.get(8, 4); up = mv.get(8, 2); sv = mv.get(10, 2); vc = mv.get(10, 2); tt = vc + 5; voff = mv.get(); vco = mv.get(); t0 = mv.get(); t1 = mv.get(); vt = mv.get(2, 2)
    zr = dat
    k.I('v_lshrrev_b32 v1, 6, v0')
    k.I(f'v_and_b32 v{vl}, 63, v0')
    k.I('v_readfirstlane_b32 s22, v1')
    k.I(f'v_lshlrev_b32 v{vo16}, 4, v{vl}')
    k.I(f'v_mov_b32 v{vz}, 0')
    k.I(f'v_and_b32 v{vi}, 15, v{vl}')
    k.I(f'v_lshrrev_b32 v{vq}, 4, v{vl}')
    fi = md; fq = md + 1; fq4 = md + 2; ta = md + 4; t8 = md + 8
    k.I(f'v_cvt_f32_u32 v{fi}, v{vi}')
    k.I(f'v_cvt_f32_u32 v{fq}, v{vq}')
    k.I(f'v_mul_f32 v{fq4}, 4.0, v{fq}')
    def consts():
        cw = f40
        k.I(f'v_add_u32 v{wa}, {TL}, v{vo16}')
        k.I('s_cmp_eq_u32 s22, 3')
        k.I('s_cbranch_scc1 LU_c3')
        k.I(f'v_lshl_add_u32 v{ta}, v1, 4, v{vi}')
        k.I(f'v_cmp_gt_u32 vcc, 40, v{ta}')
        k.I(f'v_cvt_f32_u32 v{ta}, v{ta}')
        k.I(f'v_mul_f32 v{ta+1}, {fhex(1.0/40)}, v{ta}')
        k.I(f'v_mul_f32 v{ta+2}, v{fq}, v{ta+1}')
        for e in range(10): k.I(f'v_fmamk_f32 v{cw+30+e}, v{ta+1}, {fhex(4.0*e)}, v{ta+2}')
        k.I(f'v_mul_f32 v{ta+1}, {fhex(1.0/640)}, v{ta}')
        k.I(f'v_mul_f32 v{ta+2}, v{fq4}, v{ta+1}')
        for r in range(4): k.I(f'v_fmamk_f32 v{cw+44+r}, v{ta+1}, {fhex(float(r))}, v{ta+2}')
        for e in range(10):
            k.I(f'v_cos_f32 v{cw+20+e}, v{cw+30+e}')
            k.I(f'v_sin_f32 v{cw+30+e}, v{cw+30+e}')
        for r in range(4):
            k.I(f'v_cos_f32 v{cw+40+r}, v{cw+44+r}')
            k.I(f'v_sin_f32 v{cw+44+r}, v{cw+44+r}')
        for e in range(10):
            k.I(f'v_cvt_pk_bf16_f32 v{cw+e}, v{cw+20+e}, v{cw+30+e}')
            k.I(f'v_cvt_pk_bf16_f32 v{cw+10+e}, -v{cw+30+e}, v{cw+20+e}')
        for r in range(8): k.I(f'v_cndmask_b32 v{cw+40+r}, 0, v{cw+40+r}, vcc')
        k.I(f'v_lshl_add_u32 v{ru}, v1, 10, v{wa}')
        k.I(f'v_lshl_add_u32 v{rv}, v1, 12, v{ru}')
        for r in range(5): k.I(f'ds_write_b128 v{rv}, {vr(cw+4*r,4)} offset:{1024*r}')
        k.I(f'ds_write_b128 v{ru}, {vr(cw+40,4)} offset:{17*1024}')
        k.I(f'ds_write_b128 v{ru}, {vr(cw+44,4)} offset:{20*1024}')
        k.I('s_branch LU_c4')
        k.label('LU_c3', fresh=True)
        k.I(f'v_lshrrev_b32 v{ta}, 1, v{vi}')
        k.I(f'v_cvt_f32_u32 v{ta}, v{ta}')
        k.I(f'v_and_b32 v{ta+1}, 1, v{vi}')
        k.I(f'v_cvt_f32_u32 v{ta+1}, v{ta+1}')
        k.I(f'v_mul_f32 v{ta+1}, 0x3e800000, v{ta+1}')
        for U in range(2):
            k.I(f'v_add_f32 v{ta+2}, {fhex(8.0*U)}, v{ta}')
            k.I(f'v_mul_f32 v{ta+2}, {fhex(1.0/16)}, v{ta+2}')
            k.I(f'v_fma_f32 v{ta+3}, v{fq4}, v{ta+2}, v{ta+1}')
            for j in range(4): k.I(f'v_fmamk_f32 v{tmp+4+j}, v{ta+2}, {fhex(float(j))}, v{ta+3}')
            for j in range(4):
                k.I(f'v_cos_f32 v{tmp+j}, v{tmp+4+j}')
                k.I(f'v_sin_f32 v{tmp+4+j}, v{tmp+4+j}')
            for j in range(4): k.I(f'v_cvt_pk_bf16_f32 v{f16+4*U+j}, v{tmp+2*j}, v{tmp+2*j+1}')
        k.I(f'v_mul_f32 v{ta+2}, {fhex(1.0/16)}, v{fi}')
        k.I(f'v_mul_f32 v{ta+3}, v{fq4}, v{ta+2}')
        for j in range(4): k.I(f'v_fmamk_f32 v{tmp+4+j}, v{ta+2}, {fhex(float(j))}, v{ta+3}')
        for j in range(4):
            k.I(f'v_cos_f32 v{tmp+j}, v{tmp+4+j}')
            k.I(f'v_sin_f32 v{tmp+4+j}, v{tmp+4+j}')
        for p in range(2):
            k.I(f'v_cvt_pk_bf16_f32 v{f16i+p}, v{tmp+4+2*p}, v{tmp+5+2*p}')
            k.I(f'v_cvt_pk_bf16_f32 v{f16i+2+p}, v{tmp+2*p}, v{tmp+1+2*p}')
            k.I(f'v_cvt_pk_bf16_f32 v{f16i+4+p}, -v{tmp+4+2*p}, -v{tmp+5+2*p}')
        k.I(f'v_mov_b32 v{f40+60}, 0'); k.I(f'v_mov_b32 v{f40+61}, 0')
        for r in (15, 16, 23, 24): k.I(f'ds_write_b128 v{wa}, {vr(f40+4*r,4)} offset:{1024*r}')
        k.label('LU_c4')
    CF = env('C_FIRST', 1)
    if CF: consts()
    k.I(f'v_lshrrev_b32 v{t1}, 3, v0')
    k.I(f'v_mul_u32_u24 v{voff}, 7680, v{t1}')
    k.I(f'v_and_b32 v{t0}, 7, v0')
    k.I(f'v_lshl_add_u32 v{voff}, v{t0}, 4, v{voff}')
    k.I(f'v_lshlrev_b32 v{vco}, 1, v{t1}')
    k.I('s_and_b32 s21, s2, 3')
    k.I('s_lshr_b32 s20, s2, 2')
    k.I('s_lshl_b32 s23, s20, 7')
    k.I(f's_mul_i32 s3, s21, {160*7680}')
    k.I('s_add_u32 s23, s23, s3')
    k.I('s_mul_i32 s3, s21, 320')
    k.srd(24, 10, D * 6 * D * 2)
    k.I(f's_load_dword s{TAG}, s[58:59], {EPOCH}')
    k.srd(28, 8, D * 2)
    def tlbw():
        k.I(f'v_lshlrev_b32 v{wa}, 20, v{vl}')
        k.I('s_lshl_b32 s32, s2, 8')
        k.I(f's_cmp_eq_u32 s22, {env("TLB_W", 3)}')
        k.I('s_cselect_b64 exec, -1, 0')
        for j, (ptr, sz) in enumerate(((58, WS_END), (6, S * D * 2), (60, S * 642), (62, S * 642), (92, D * F * 2), (94, D * F * 2))):
            k.srd(12, ptr, sz)
            k.I(f'buffer_load_dword v{xs+j}, v{wa}, s[12:15], s32 offen')
        k.I('s_mov_b64 exec, -1')
    if env('TLBW', 0) == 1: tlbw()
    k.I(f's_cmp_lt_u32 s2, {NM}')
    k.I('s_cselect_b64 exec, -1, 0')
    for i in range(5):
        k.I(f'buffer_load_dwordx4 {vr(vw+4*i,4)}, v{voff}, s[24:27], s23 offen nt')
        if i < 4: k.I(f's_add_u32 s23, s23, {32*7680}')
        if i == env('C_AT', 4):
            for j in range(5): k.I(f'buffer_load_ushort v{vc+j}, v{vco}, s[28:31], s3 offen offset:{64*j}')
    k.I('s_mov_b64 exec, -1')
    um(k, 1)
    if env('PF_LATE', 0): prefetch()
    k.srd(12, 58, WS_END)
    k.srd(8, 6, S * D * 2)
    k.I('s_and_b32 s32, s2, 6')
    k.I('s_lshl_b32 s32, s32, 1')
    k.I('s_lshr_b32 s33, s2, 6')
    k.I('s_add_u32 s32, s32, s33')
    k.I('s_bfe_u32 s33, s2, 0x30003')
    k.I('s_and_b32 s3, s2, 1')
    k.I('s_lshl_b32 s3, s3, 3')
    k.I('s_add_u32 s33, s33, s3')
    k.I('s_lshl_b32 s34, s32, 7')
    k.I('s_lshl_b32 s3, s33, 1')
    k.I('s_add_u32 s34, s34, s3')
    k.I('s_and_b32 s3, s22, 1')
    k.I('s_lshl_b32 s3, s3, 6')
    k.I('s_add_u32 s34, s34, s3')
    k.I('s_lshr_b32 s3, s22, 1')
    k.I('s_add_u32 s34, s34, s3')
    k.I('s_mul_i32 s34, s34, 1280')
    k.I(f's_add_u32 s35, s34, {32*1280}')
    k.I('s_mul_i32 s36, s22, 2560')
    k.I(f's_add_u32 s36, s36, {XL}')
    k.I('s_add_u32 s37, s36, 1280')
    k.I('s_lshl_b32 s3, s32, 4')
    k.I('s_add_u32 s3, s3, s33')
    k.I(f's_mul_i32 s3, s3, {XS_ST}')
    k.I(f's_add_u32 s3, s3, {XS}')
    k.I('s_add_u32 s40, s58, s3')
    k.I('s_addc_u32 s41, s59, 0')
    k.I('s_mov_b32 s42, 10304')
    k.I('s_mov_b32 s43, 0x00020000')
    k.I('s_movk_i32 s38, 0x1000')
    k.I('s_movk_i32 s39, 0x2000')
    k.I(f'v_lshlrev_b32 v{so}, 4, v0')
    for j in range(4): k.I(f'v_mov_b32 v{zr+j}, 0')
    k.I('s_sub_u32 s44, s2, 128')
    k.I('s_lshr_b32 s45, s2, 7')
    k.I('s_and_b32 s49, s44, 7')
    k.I('s_lshl_b32 s46, s49, 2')
    k.I('s_add_u32 s46, s46, s22')
    k.I('s_lshl_b32 s46, s46, 3')
    k.I('s_bfe_u32 s3, s44, 0x30003')
    k.I('s_add_u32 s46, s46, s3')
    k.I(f's_mul_i32 s46, s46, {BS}')
    k.I('s_cmp_eq_u32 s45, 1')
    k.I(f's_cselect_b32 s46, s46, {OOB}')
    k.I('s_add_u32 s47, s46, 4096')
    k.I('s_bitcmp0_b32 s44, 6')
    k.I('s_cselect_b32 s16, s60, s62')
    k.I('s_cselect_b32 s17, s61, s63')
    k.I(f's_mov_b32 s18, {S * 321 * 2}')
    k.I('s_mov_b32 s19, 0x00020000')
    k.I(f's_mul_i32 s48, s22, {BL}')
    k.I(f's_add_u32 s48, s48, {TLD}')
    k.I('s_add_u32 s7, s48, 4096')
    k.I('s_lshr_b32 s6, s44, 4')
    k.I('s_lshl_b32 s6, s6, 11')
    k.I('s_lshl_b32 s3, s49, 8')
    k.I('s_add_u32 s6, s6, s3')
    k.I('s_and_b32 s3, s44, 8')
    k.I('s_lshl_b32 s3, s3, 4')
    k.I('s_add_u32 s6, s6, s3')
    k.I(f's_add_u32 s6, s6, {WT}')
    k.I('s_cmp_eq_u32 s45, 1')
    k.I(f's_cselect_b32 s6, s6, {OOB}')
    tg = [(['s_mov_b32 m0, s48'] if i == 0 else []) + [(f'buffer_load_dwordx4 v{vo16}, s[16:19], s46 offen offset:{1024*i} nt lds', 't')] for i in range(4)]
    tg.append(['s_mov_b32 m0, s7', (f'buffer_load_dwordx4 v{vo16}, s[16:19], s47 offen nt lds', 't')])
    tg.append(['s_mov_b64 exec, 1', (f'buffer_load_dwordx4 v{vo16}, s[16:19], s47 offen offset:1024 nt lds', 't'), 's_mov_b64 exec, -1'])
    k.I('s_cselect_b64 s[32:33], -1, 0')
    k.I('s_and_b64 s[56:57], s[32:33], 1')
    tgl = [['s_mov_b64 exec, s[32:33]'] + g_ + ['s_mov_b64 exec, -1'] for g_ in tg[:5]] + [['s_mov_b64 exec, s[56:57]'] + tg[5][1:]]
    bg = []
    for c in range(2):
        bg.append([f's_mov_b32 m0, s{36+c}', (f'buffer_load_dwordx4 v{vo16}, s[8:11], s{34+c} offen lds', 'xx')])
        bg.append(['s_mov_b64 exec, 0xffff', (f'buffer_load_dwordx4 v{vo16}, s[8:11], s{34+c} offen offset:1024 lds', 'xx'), 's_mov_b64 exec, -1'])
    zs = [[(f'buffer_store_dwordx4 {vr(zr,4)}, v{so}, s[40:43], {o_} offen sc1', 'z1')] for o_ in ('0', 's38', 's39')]
    ZE = env('Z_EARLY', 1)
    gq = []; zy = []
    def gblock():
        nonlocal gq
        gw = wo
        for p in range(3):
            k.I(f'v_add_u32 v{gw+p}, {64*p}, v{vl}')
            k.I(f'v_mul_u32_u24 v{gw+p}, 171, v{gw+p}')
            k.I(f'v_lshrrev_b32 v{gw+p}, 12, v{gw+p}')
            k.I(f'v_mul_u32_u24 v{gw+p}, 2688, v{gw+p}')
            k.I(f'v_add_u32 v{gw+p}, v{gw+p}, v{vo16}')
        k.srd(24, 92, D * F * 2)
        k.srd(28, 94, D * F * 2)
        k.I('s_lshr_b32 s23, s2, 3')
        k.I('s_lshl_b32 s23, s23, 2')
        k.I('s_add_u32 s23, s23, s22')
        k.I(f's_mul_i32 s23, s23, {8*3072}')
        k.I('s_and_b32 s3, s2, 7')
        k.I('s_mul_i32 s3, s3, 384')
        k.I('s_add_u32 s23, s23, s3')
        k.I('s_not_b64 s[62:63], s[32:33]')
        k.I('s_mul_i32 s4, s22, 3072')
        k.I(f's_add_u32 s4, s4, {GL}')
        k.I('s_add_u32 s5, s4, 12288')
        gq = []
        for m_ in range(2):
            for p in range(3):
                gq.append(([f's_mov_b32 m0, s{4+m_}'] if p == 0 else []) + [(f'buffer_load_dwordx4 v{gw+p}, s[{24+4*m_}:{27+4*m_}], s23 offen offset:{1024*p} nt lds', 'g')])
        gq = [['s_mov_b64 exec, s[62:63]'] + g_ + ['s_mov_b64 exec, -1'] for g_ in gq]
    GE = env('G_EARLY', 0); ZS = env('ZS_AT', 0)
    if GE:
        gblock(); tgl = tgl + gq; gq = []
    early = bg + (zs if ZS == 0 else []) + tgl
    if CF == 0: consts()
    k.bg = early; k.emit_bg(99)
    def misc():
        nonlocal zy
        for r in list(range(16)) + list(range(17, 25)): k.I(f'ds_read_b128 {vr(f40+4*r,4)}, v{wa} offset:{1024*r}')
        k.I(f'v_mul_u32_u24 v{ru}, 80, v{vq}')
        k.I(f'v_add_lshl_u32 v{wa}, v{ru}, v{vi}, 3')
        k.I(f's_mul_i32 s3, s22, {PL}')
        k.I(f'v_add_u32 v{wa}, s3, v{wa}')
        k.I(f'v_and_b32 v{ta+1}, 1, v0')
        k.I(f'v_lshrrev_b32 v{ta+2}, 1, v0')
        k.I(f'v_mul_u32_u24 v{ru}, {2*PL}, v{ta+1}')
        k.I(f'v_sub_u32 v{rv}, 384, v{ta+2}')
        k.I(f'v_lshl_add_u32 v{rv}, v{rv}, 3, v{ru}')
        k.I(f'v_lshl_add_u32 v{ru}, v{ta+2}, 3, v{ru}')
        k.I('s_mul_i32 s3, s22, 1280')
        k.I(f'v_lshl_add_u32 v{gA}, v{vl}, 4, s3')
        k.I('s_add_u32 s3, s3, 1024')
        k.I(f'v_lshl_add_u32 v{lB}, v{vi}, 4, s3')
        k.I(f'v_mul_u32_u24 v{gB}, {960*16}, v{vq}')
        k.I(f'v_add_u32 v{gB}, v{gB}, v{lB}')
        k.I(f'v_lshlrev_b32 v{rm}, 2, v{vl}')
        k.I(f'v_add_u32 v{rm}, {ML}, v{rm}')
        k.I(f'v_mov_b32 v{dat+10}, 0'); k.I(f'v_mov_b32 v{dat+11}, 0')
        for i in range(20): k.I(f'v_mov_b32 v{xs+i}, 0')
        k.I(f'v_lshl_add_u32 v{ta}, v{vl}, 1, s36')
        k.I('s_lshl_b32 s49, s2, 14')
        k.I('s_lshl_b32 s3, s22, 12')
        k.I('s_add_u32 s49, s49, s3')
        k.I(f's_add_u32 s49, s49, {XT}')
        k.I('s_cmp_lt_u32 s2, 161')
        k.I(f's_cselect_b32 s49, s49, {OOB}')
        k.I('s_cselect_b64 s[90:91], -1, 0')
        zy = [['s_mov_b64 exec, s[90:91]', (f'buffer_store_dwordx4 {vr(ex+10,4)}, v{vo16}, s[12:15], s49 offen offset:{1024*j} sc1', 'zt'), 's_mov_b64 exec, -1'] for j in range(4)]
        if not GE: gblock()
    MF_ = env('M_FIRST', 1)
    if not MF_:
        k.barrier()
        k.I(f's_add_u32 s{TAG}, s{TAG}, 1')
        misc()
    um(k, 2)
    k.I(f's_cmp_ge_u32 s2, {NM}')
    k.I('s_cbranch_scc1 LU_m0' if MF_ else 's_cbranch_scc1 LU_m1')
    R5 = range(5)
    for i in R5: k.I(f'v_lshlrev_b32 v{vc+i}, 16, v{vc+i}')
    for i in R5: k.I(f'v_mul_f32 v{tt+i}, {fhex(-math.log2(math.e))}, v{vc+i}')
    for i in R5: k.I(f'v_exp_f32 v{tt+i}, v{tt+i}')
    for i in R5: k.I(f'v_add_f32 v{tt+i}, 1.0, v{tt+i}')
    for i in R5: k.I(f'v_rcp_f32 v{tt+i}, v{tt+i}')
    for i in R5: k.I(f'v_mul_f32 v{vc+i}, v{vc+i}, v{tt+i}')
    for i in R5: k.I(f'v_cvt_pk_bf16_f32 v{vc+i}, v{vc+i}, v{vc+i}')
    for i in R5: k.I(f'v_and_b32 v{sv+2*i}, 0xffff0000, v{vc+i}')
    for i in R5:
        for j in range(4):
            k.I(f'v_lshlrev_b32 v{up+2*j}, 16, v{vw+4*i+j}')
            k.I(f'v_and_b32 v{up+2*j+1}, 0xffff0000, v{vw+4*i+j}')
        for j in range(4):
            if i == 0: k.I(f'v_pk_mul_f32 {vr(acc+2*j,2)}, {vr(up+2*j,2)}, {vr(sv,2)} op_sel_hi:[1,0]')
            else: k.I(f'v_pk_fma_f32 {vr(acc+2*j,2)}, {vr(up+2*j,2)}, {vr(sv+2*i,2)}, {vr(acc+2*j,2)} op_sel_hi:[1,0,1]')
    for j in range(8): k.I(f'v_add_f32_dpp v{acc+j}, v{acc+j}, v{acc+j} row_ror:8 row_mask:0xf bank_mask:0xf')
    k.I(f'v_lshrrev_b32 v{t1}, 4, v0')
    k.I(f'v_lshlrev_b32 v{t1}, 8, v{t1}')
    k.I(f'v_lshl_add_u32 v{t1}, v{t0}, 5, v{t1}')
    k.I('s_mov_b32 exec_lo, 0x00ff00ff')
    k.I('s_mov_b32 exec_hi, 0x00ff00ff')
    k.I(f'ds_write_b128 v{t1}, {vr(acc,4)} offset:{MP}')
    k.I(f'ds_write_b128 v{t1}, {vr(acc+4,4)} offset:{MP+16}')
    k.I('s_mov_b64 exec, -1')
    k.I(f'v_lshlrev_b32 v{t0}, 2, v{vl}')
    k.I(f'v_add_u32 v{t1}, {MP}, v{t0}')
    def a0post():
        k.I(f'v_mov_b32 v{vt}, s{TAG}')
        k.I('s_lshl_b32 s3, s2, 2')
        k.I(f's_add_u32 s3, s3, {A0}')
        k.I('s_cmp_eq_u32 s22, 3')
        k.I('s_cselect_b64 exec, 1, 0')
        k.I(f'buffer_store_dword v{vt}, v{vz}, s[12:15], s3 offen sc1')
        k.I('s_mov_b64 exec, -1')
    APOS = env('A0_AT', 0)
    if MF_:
        k.label('LU_m0')
        if APOS == -1: k.wait_tag('z1')
    k.barrier()
    if MF_:
        k.I(f's_add_u32 s{TAG}, s{TAG}, 1')
        if APOS == -1: a0post()
    um(k, 3)
    k.I('s_lshl_b32 s3, s22, 8')
    k.I('s_add_u32 s3, s3, s2')
    k.I(f's_cmp_ge_u32 s3, {NM}')
    k.I('s_cbranch_scc1 LU_m1')
    for j in range(8): k.I(f'ds_read2st64_b32 {vr(vw+2*j,2)}, v{t1} offset0:{2*j} offset1:{2*j+1}')
    k.I('s_sub_u32 s3, s20, 10')
    k.I('s_cmp_lt_u32 s3, 10')
    k.I('s_cselect_b32 s44, 1.0, 0')
    k.I('s_cmp_eq_u32 s21, 0')
    k.I('s_cselect_b32 s44, s44, 0')
    k.I(f's_mul_i32 s50, s21, {960*16}')
    k.I('s_lshl_b32 s3, s20, 8')
    k.I('s_add_u32 s50, s50, s3')
    k.I(f's_add_u32 s50, s50, {GR}')
    k.I('s_mov_b32 s46, 0x07060503')
    k.I('s_mov_b32 s47, 0x07060502')
    k.I('s_mov_b32 s51, 0x07060501')
    for j in range(4): k.I(f'v_pk_add_f32 {vr(vw+2*j,2)}, {vr(vw+2*j,2)}, {vr(vw+8+2*j,2)}')
    for j in range(2): k.I(f'v_pk_add_f32 {vr(vw+2*j,2)}, {vr(vw+2*j,2)}, {vr(vw+4+2*j,2)}')
    k.I(f'v_pk_add_f32 {vr(vw,2)}, {vr(vw,2)}, {vr(vw+2,2)}')
    k.I(f'v_add_f32 v{vw}, v{vw}, v{vw+1}')
    k.I(f'v_add_f32 v{vw}, s44, v{vw}')
    for j in range(1, 4): k.I(f'v_mov_b32_dpp v{vw+j}, v{vw} quad_perm:[{j},{j},{j},{j}] row_mask:0xf bank_mask:0xf')
    for j, sel in enumerate((46, 47, 51)): k.I(f'v_perm_b32 v{vw+j}, v{vw+j}, v{vw+3}, s{sel}')
    k.I(f'v_mov_b32 v{vw+3}, s{TAG}')
    k.I('s_mov_b32 exec_lo, 0x11111111')
    k.I('s_mov_b32 exec_hi, 0x11111111')
    k.I(f'buffer_store_dwordx4 {vr(vw,4)}, v{t0}, s[12:15], s50 offen sc1', tag='zt')
    k.I('s_mov_b64 exec, -1')
    k.label('LU_m1')
    um(k, 4)
    if MF_:
        if not GE:
            gblock(); k.bg = gq; gq = []; k.emit_bg(99); GE = 1
        misc()
    k.I('s_sub_u32 s89, s2, 84')
    k.I('s_cmp_ge_u32 s89, 4')
    k.I('s_cbranch_scc1 LU_r0')
    k.I(f'v_lshlrev_b32 v{t8}, 7, v0')
    k.I(f'v_min_u32 v{t8}, {87*128}, v{t8}')
    k.I(f's_mov_b32 s3, {FLAGS}')
    k.I(f'buffer_store_dword v{zr}, v{t8}, s[12:15], s3 offen sc1', tag='zt')
    for j in range(4): k.I(f'v_mov_b32 v{tmp+j}, -1')
    k.I('s_mul_i32 s3, s89, 2560')
    k.I(f's_add_u32 s3, s3, {MODN + 2*2560}')
    k.I(f'v_min_u32 v{t8}, 2544, v{so}')
    k.I(f'buffer_store_dwordx4 {vr(tmp,4)}, v{t8}, s[12:15], s3 offen sc1', tag='zt')
    k.label('LU_r0')
    ZY = env('ZY_AT', 1)
    if ZY == 0:
        for j in range(4): k.I(f'v_mov_b32 v{ex+10+j}, 0')
    mix = gq + (zs if ZS else []) + (zy if ZY == 0 else [])
    k.bg = mix; k.bg_every = env('U_BG2', 1); gq = []
    k.wait_tag('xx')
    for e in range(10):
        for c in range(2): k.I(f'ds_read_u16_d16_hi v{xs+2*e+c}, v{ta} offset:{128*e+1280*c}')
    sm = og; sq = og + 2; rr = og + 4; nmr = og + 6
    k.I(f'v_pk_add_f32 {vr(sm,2)}, {vr(xs,2)}, {vr(xs+2,2)}')
    k.I(f'v_pk_mul_f32 {vr(sq,2)}, {vr(xs,2)}, {vr(xs,2)}')
    k.I(f'v_pk_fma_f32 {vr(sq,2)}, {vr(xs+2,2)}, {vr(xs+2,2)}, {vr(sq,2)}')
    for e in range(2, 10):
        k.I(f'v_pk_add_f32 {vr(sm,2)}, {vr(sm,2)}, {vr(xs+2*e,2)}')
        k.I(f'v_pk_fma_f32 {vr(sq,2)}, {vr(xs+2*e,2)}, {vr(xs+2*e,2)}, {vr(sq,2)}')
    for p in range(4): k.I(f's_mov_b32 s{52+p}, {GR + 960*16*p}')
    k.I('s_mov_b32 s60, 0x04000c0c')
    k.I('s_mov_b32 s61, 0x0706000c')
    def gloads():
        for p in range(4): k.I(f'buffer_load_dwordx4 {vr(md+4*p,4)}, v{gA}, s[12:15], s{52+p} offen sc1')
        k.I(f'buffer_load_dwordx4 {vr(md+16,4)}, v{gB}, s[12:15], s52 offen sc1')
    PA = env('POLL_AT', 1)
    if PA == 0: k.bg_every = 0; k.emit_bg(99); gloads()
    wave_reduce_to_sgpr(k, [sm, sm+1, sq, sq+1], [8, 9, 10, 11])
    ln_scalars(k, 8, 10, rr, nmr, tmp)
    for e in range(10): k.I(f'v_pk_fma_f32 {vr(xs+2*e,2)}, {vr(xs+2*e,2)}, {vr(rr,2)}, {vr(nmr,2)}')
    k.bg_every = 0; k.emit_bg(99)
    if PA == 1: gloads()
    um(k, 5)
    k.wait_tag('t'); k.wait_tag('g')
    if APOS == 0: k.wait_tag('z1')
    k.barrier()
    um(k, 6)
    if PA == 2: gloads()
    if APOS == 0: a0post()
    k.I('s_cmp_eq_u32 s45, 1')
    k.I('s_cbranch_scc1 LU_g1')
    k.I(f'v_bfe_u32 v{r2}, v{vl}, 2, 2')
    k.I(f'v_lshl_add_u32 v{rg}, v{vq}, 3, v{r2}')
    k.I(f'v_mul_u32_u24 v{rg}, 384, v{rg}')
    k.I('s_mul_i32 s3, s22, 48')
    k.I(f's_add_u32 s3, s3, {GL}')
    k.I(f'v_add_u32 v{rg}, s3, v{rg}')
    k.I(f'v_and_b32 v{wo}, 1, v{vl}')
    k.I(f'v_lshl_add_u32 v{r2}, v{wo}, 3, v{rg}')
    k.I(f'v_bfe_u32 v{wo}, v{vl}, 1, 1')
    k.I(f'v_mul_u32_u24 v{wo}, 12288, v{wo}')
    k.I(f'v_add_u32 v{r2}, v{r2}, v{wo}')
    k.I(f'v_and_b32 v{wo}, 3, v{vl}')
    k.I(f'v_lshl_add_u32 v{rg}, v{wo}, 3, v{rg}')
    for j in range(2):
        for mt in range(3):
            for hf in range(2):
                off = 4*hf*384 + 192*j + (12288 if mt == 1 else 0) + (32 if mt == 2 else 0)
                k.I(f'ds_read_b64_tr_b16 {vr(og+(3*j+mt)*4+2*hf,2)}, v{r2 if mt == 2 else rg} offset:{off}')
    k.label('LU_g1')
    k.I('s_and_b32 s47, s2, 7')
    k.I('s_lshl_b32 s47, s47, 3')
    k.I('s_add_u32 s47, s47, s22')
    k.I('s_mul_i32 s47, s47, 10')
    k.I('s_lshr_b32 s46, s2, 3')
    k.I('s_add_u32 s47, s47, s46')
    k.I('s_mul_i32 s47, s47, 3072')
    k.I('s_cmp_ge_u32 s46, 10')
    k.I(f's_cselect_b32 s3, {63*30720}, 0')
    k.I('s_add_u32 s47, s47, s3')
    k.I(f's_add_u32 s47, s47, {WGU}')
    k.I(f's_add_u32 s48, s47, {4*10*3072}')
    k.I(f'v_and_b32 v{rT}, 7, v0')
    k.I(f'v_lshlrev_b32 v{dT}, 4, v{rT}')
    k.I(f'v_mul_u32_u24 v{rT}, 642, v{rT}')
    k.I(f'v_lshrrev_b32 v{wo}, 3, v0')
    k.I(f'v_mul_u32_u24 v{wo}, 5, v{wo}')
    k.I(f'v_lshl_add_u32 v{rT}, v{wo}, 2, v{rT}')
    k.I(f'v_add_u32 v{rT}, {TLD}, v{rT}')
    k.I(f'v_lshl_add_u32 v{dT}, v{wo}, 14, v{dT}')
    k.I('s_cmp_lg_u32 s45, 1')
    k.I('s_cbranch_scc1 LU_t1')
    hi = ex + 2
    def rnd(rho):
        for ii in range(2):
            for rp in range(2):
                j = 2*ii + rp
                k.I(f'ds_read_u16 v{lo+4*rho+j}, v{rT} offset:{(2*rp)*BL + 2*ii + (4*rho if rho < 5 else 640)}')
                k.I(f'ds_read_u16 v{hi+4*(rho&1)+j}, v{rT} offset:{(2*rp+1)*BL + 2*ii + (4*rho if rho < 5 else 640)}')
    rnd(0)
    for rho in range(6):
        if rho < 5: rnd(rho + 1)
        for j in range(4): k.I(f'v_lshl_or_b32 v{lo+4*rho+j}, v{hi+4*(rho&1)+j}, 16, v{lo+4*rho+j}')
    k.label('LU_t1')
    um(k, 7)
    sb = []
    for rho in range(6):
        g = ['s_mov_b64 exec, s[32:33]', (f'buffer_store_dwordx4 {vr(lo+4*rho,4)}, v{dT}, s[12:15], s6 offen sc1', 'zt'), 's_mov_b64 exec, s[62:63]',
             (f'buffer_store_dwordx4 {vr(og+4*rho,4)}, v{vo16}, s[12:15], s{47+rho//3} offen offset:{1024*(rho%3)} sc1', 'zt'), 's_mov_b64 exec, -1']
        if rho < 5: g.append(f'v_add_u32 v{dT}, {16384 if rho < 4 else 156*16384}, v{dT}')
        if rho == 4: g += [f'v_mov_b32 v{wo+1}, {OOB}', f'v_cndmask_b32 v{dT}, v{wo+1}, v{dT}, s[28:29]']
        sb.append(g)
    k.I('v_cmp_gt_u32 s[28:29], 8, v0')
    for j in range(4): k.I(f'v_mov_b32 v{ex+10+j}, 0')
    tx = tmp
    k.I('s_mov_b32 s3, 0x40000')
    for p in range(5): k.I(f'v_xor_b32 v{tx+p}, s{TAG}, v{md+4*p+3}')
    st = k.save_state()
    k.label('LU_poll')
    k.I(f'v_or3_b32 v{tx}, v{tx}, v{tx+1}, v{tx+2}')
    k.I(f'v_or3_b32 v{tx}, v{tx}, v{tx+3}, v{tx+4}')
    k.I(f'v_cmp_ne_u32 vcc, 0, v{tx}')
    for p in (4, 0, 1, 2, 3): unpack_gran(k, md+4*p, tx+1+p, 60, 61)
    k.I('s_cbranch_vccz LU_go')
    k.I('s_sub_u32 s3, s3, 1')
    k.I('s_cbranch_scc1 LU_go')
    k.I('s_sleep 2')
    gloads()
    for p in range(5): k.I(f'v_xor_b32 v{tx+p}, s{TAG}, v{md+4*p+3}')
    k.I('s_branch LU_poll')
    k.label('LU_go')
    um(k, 8)
    k.bg = sb + (zy if ZY == 1 else []); k.bg_every = env('U_BG3', 12)
    b_ = md + 16
    for j in range(4): k.I(f'v_mov_b32 v{tx+j}, v{b_+j}')
    for p in (0, 2):
        k.I(f'v_pk_add_f32 {vr(md+p,2)}, {vr(md+p,2)}, {vr(md+4+p,2)}')
        k.I(f'v_pk_add_f32 {vr(md+8+p,2)}, {vr(md+8+p,2)}, {vr(md+12+p,2)}')
    for j in range(4): k.I(f'v_permlane32_swap_b32 v{tx+j}, v{b_+j}')
    for p in (0, 2): k.I(f'v_pk_add_f32 {vr(md+p,2)}, {vr(md+p,2)}, {vr(md+8+p,2)}')
    for p in (0, 2): k.I(f'v_pk_add_f32 {vr(b_+p,2)}, {vr(b_+p,2)}, {vr(tx+p,2)}')
    k.I(f'ds_write_b128 v{gA}, {vr(md,4)} offset:{ML}')
    for j in range(4): k.I(f'v_mov_b32 v{tx+j}, v{b_+j}')
    for j in range(4): k.I(f'v_permlane16_swap_b32 v{tx+j}, v{b_+j}')
    for p in (0, 2): k.I(f'v_pk_add_f32 {vr(b_+p,2)}, {vr(b_+p,2)}, {vr(tx+p,2)}')
    k.I(f'ds_write_b128 v{lB}, {vr(b_,4)} offset:{ML}')
    be = k.bg_every; k.bg_every = 0
    k.wait_tag('z1')
    k.barrier()
    if APOS == 1: a0post()
    k.bg_every = be
    for p in range(5):
        k.I(f'ds_read2st64_b32 {vr(md+4*p,2)}, v{rm} offset0:{10+2*p} offset1:{11+2*p}')
        k.I(f'ds_read2st64_b32 {vr(md+4*p+2,2)}, v{rm} offset0:{2*p} offset1:{2*p+1}')
    for e in range(10):
        h_ = e & 1; p = e // 2
        if h_ == 0: k.I(f'v_pk_fma_f32 {vr(xs+2*e,2)}, {vr(xs+2*e,2)}, {vr(md+4*p,2)}, {vr(md+4*p+2,2)} op_sel_hi:[1,0,0]')
        else:
            for j in range(2): k.I(f'v_fma_f32 v{xs+2*e+j}, v{xs+2*e+j}, v{md+4*p+1}, v{md+4*p+3}')
        if e >= 1: k.I(f'v_cvt_pk_bf16_f32 v{dat+e-1}, v{xs+2*e-2}, v{xs+2*e-1}')
    k.I(f'v_cvt_pk_bf16_f32 v{dat+9}, v{xs+18}, v{xs+19}')
    d1 = xs; b2 = xs + 24; d2 = f40
    def s1(T):
        o = []
        for kap in range(3):
            for c in range(2):
                dd = vr(d1 + (2*T+c)*4, 4)
                o.append(f'{MF16} {dd}, {vr(dat+4*kap,4)}, {vr(f40+(2*T+c)*10+4*kap,4)}, {dd if kap else 0}')
        return o
    cm = [rec(cmul4, d1+8*T, d1+8*T+4, cs+4*T, sn+4*T, b2+4*T, tmp, False) for T in range(3)]
    def s2(T): return [f'{MF16} {vr(d2+(2*T+U)*4,4)}, {vr(f16+4*U,4)}, {vr(b2+4*T,4)}, 0' for U in range(2)]
    def wr(T): return [f'ds_write_b64 v{wa}, {vr(d2+(2*T+U)*4+2*h,2)} offset:{(16*T+320*U+40*h)*8}' for U in range(2) for h in range(2)]
    for t in s1(0) + s1(1) + s1(2) + cm[0] + s2(0) + cm[1] + s2(1) + wr(0) + cm[2] + s2(2) + wr(1): k.I(t)
    k.bg_every = 0
    k.I('s_mov_b64 exec, 1')
    k.I(f'ds_write_b64 v{wa}, {vr(d2,2)} offset:5120')
    k.I('s_mov_b32 exec_lo, 0x00ff00ff')
    k.I('s_mov_b32 exec_hi, 0x00ff00ff')
    for t in wr(2): k.I(t)
    k.I('s_mov_b64 exec, -1')
    k.barrier()
    k.I(f's_mov_b32 s11, {A0}')
    k.I(f'buffer_load_dwordx4 v[252:255], v{vo16}, s[12:15], s11 offen sc1')
    rd = d1; oc = b2
    for rho in range(3):
        for pr in range(2):
            k.I(f'ds_read_b64 {vr(rd+8*rho+4*pr,2)}, v{ru} offset:{pr*PL+1024*rho}')
            k.I(f'ds_read_b64 {vr(rd+8*rho+4*pr+2,2)}, v{rv} offset:{pr*PL+1024*(2-rho)}')
    for rho in range(3):
        for pr in range(2):
            u = rd+8*rho+4*pr; v = u+2
            k.I(f'v_pk_add_f32 {vr(tmp+4*pr,2)}, {vr(u,2)}, {vr(v,2)}')
            k.I(f'v_pk_add_f32 {vr(tmp+4*pr+2,2)}, {vr(u,2)}, {vr(v,2)} neg_lo:[0,1] neg_hi:[0,1]')
        for pr in range(2):
            k.I(f'v_cvt_pk_bf16_f32 v{oc+4*rho+pr}, v{tmp+4*pr}, v{tmp+4*pr+1}')
            k.I(f'v_cvt_pk_bf16_f32 v{oc+4*rho+2+pr}, v{tmp+4*pr+3}, -v{tmp+4*pr+2}')
        k.I(f'v_or_b32 v{oc+4*rho}, 1, v{oc+4*rho}')
        k.I(f'buffer_store_dwordx4 {vr(oc+4*rho,4)}, v{so}, s[40:43], {("0", "s38", "s39")[rho]} offen sc1')
    um(k, 9)
    if ZY == 2: k.bg += zy
    k.emit_bg(99)


def modr_in(k, v0_, sj):
    mv = VAlloc(v0_)
    M = dict(vw=mv.get(40, 4), acc=mv.get(16, 4), up=mv.get(8, 2), sv=mv.get(10, 2), vc=mv.get(10, 2), voff=mv.get(), vco=mv.get(), t0=mv.get(), t1=mv.get())
    vw, vc, voff, vco, t0, t1 = M['vw'], M['vc'], M['voff'], M['vco'], M['t0'], M['t1']
    k.I(f's_load_dwordx4 s[28:31], s[0:1], {KA["c"]}')
    k.I(f'v_lshrrev_b32 v{t1}, 3, v0')
    k.I(f'v_mul_u32_u24 v{voff}, 7680, v{t1}')
    k.I(f'v_and_b32 v{t0}, 7, v0')
    k.I(f'v_lshl_add_u32 v{voff}, v{t0}, 4, v{voff}')
    k.I(f'v_lshlrev_b32 v{vco}, 1, v{t1}')
    k.I(f's_and_b32 s21, s{sj}, 3')
    k.I(f's_lshr_b32 s20, s{sj}, 2')
    k.I('s_add_u32 s20, s20, 20')
    k.I('s_lshl_b32 s23, s20, 7')
    k.I(f's_mul_i32 s3, s21, {160*7680}')
    k.I('s_add_u32 s23, s23, s3')
    k.I('s_mul_i32 s3, s21, 320')
    k.srd(8, 30, D * 6 * D * 2)
    k.srd(16, 28, D * 2)
    k.I(f's_cmp_lt_u32 s{sj}, 80')
    k.I('s_cselect_b64 exec, -1, 0')
    for i in range(5):
        for b in range(2): k.I(f'buffer_load_dwordx4 {vr(vw+20*b+4*i,4)}, v{voff}, s[8:11], s23 offen offset:{2560*b} nt')
        if i < 4: k.I(f's_add_u32 s23, s23, {32*7680}')
    for j in range(5): k.I(f'buffer_load_ushort v{vc+j}, v{vco}, s[16:19], s3 offen offset:{64*j}')
    k.I('s_mov_b64 exec, -1')
    return M

def modr_out(k, M, sj, vl, MP):
    vw, acc, up, sv, vc, t0, t1 = M['vw'], M['acc'], M['up'], M['sv'], M['vc'], M['t0'], M['t1']
    tt = vc + 5; R5 = range(5)
    k.I(f's_cmp_ge_u32 s{sj}, 80')
    k.I('s_cbranch_scc1 LMR_x')
    for i in R5: k.I(f'v_lshlrev_b32 v{vc+i}, 16, v{vc+i}')
    for i in R5: k.I(f'v_mul_f32 v{tt+i}, {fhex(-math.log2(math.e))}, v{vc+i}')
    for i in R5: k.I(f'v_exp_f32 v{tt+i}, v{tt+i}')
    for i in R5: k.I(f'v_add_f32 v{tt+i}, 1.0, v{tt+i}')
    for i in R5: k.I(f'v_rcp_f32 v{tt+i}, v{tt+i}')
    for i in R5: k.I(f'v_mul_f32 v{vc+i}, v{vc+i}, v{tt+i}')
    for i in R5: k.I(f'v_cvt_pk_bf16_f32 v{vc+i}, v{vc+i}, v{vc+i}')
    for i in R5: k.I(f'v_and_b32 v{sv+2*i}, 0xffff0000, v{vc+i}')
    for b in range(2):
        for i in R5:
            for j in range(4):
                k.I(f'v_lshlrev_b32 v{up+2*j}, 16, v{vw+20*b+4*i+j}')
                k.I(f'v_and_b32 v{up+2*j+1}, 0xffff0000, v{vw+20*b+4*i+j}')
            for j in range(4):
                a_ = vr(acc+8*b+2*j, 2)
                if i == 0: k.I(f'v_pk_mul_f32 {a_}, {vr(up+2*j,2)}, {vr(sv,2)} op_sel_hi:[1,0]')
                else: k.I(f'v_pk_fma_f32 {a_}, {vr(up+2*j,2)}, {vr(sv+2*i,2)}, {a_} op_sel_hi:[1,0,1]')
    for j in range(16): k.I(f'v_add_f32_dpp v{acc+j}, v{acc+j}, v{acc+j} row_ror:8 row_mask:0xf bank_mask:0xf')
    k.I(f'v_lshrrev_b32 v{t1}, 4, v0')
    k.I(f'v_lshlrev_b32 v{t1}, 8, v{t1}')
    k.I(f'v_lshl_add_u32 v{t1}, v{t0}, 5, v{t1}')
    k.I('s_mov_b32 exec_lo, 0x00ff00ff')
    k.I('s_mov_b32 exec_hi, 0x00ff00ff')
    for b in range(2):
        k.I(f'ds_write_b128 v{t1}, {vr(acc+8*b,4)} offset:{MP+4096*b}')
        k.I(f'ds_write_b128 v{t1}, {vr(acc+8*b+4,4)} offset:{MP+4096*b+16}')
    k.I('s_mov_b64 exec, -1')
    k.I(f'v_lshlrev_b32 v{t0}, 2, v{vl}')
    k.I('s_lshl_b32 s3, s22, 12')
    k.I(f's_add_u32 s3, s3, {MP}')
    k.I(f'v_add_u32 v{t1}, s3, v{t0}')
    k.barrier()
    k.I('s_cmp_ge_u32 s22, 2')
    k.I('s_cbranch_scc1 LMR_x')
    for j in range(8): k.I(f'ds_read2st64_b32 {vr(vw+2*j,2)}, v{t1} offset0:{2*j} offset1:{2*j+1}')
    k.I(f's_mul_i32 s23, s21, {960*16}')
    k.I('s_mul_i32 s3, s22, 20')
    k.I('s_add_u32 s3, s3, s20')
    k.I('s_lshl_b32 s3, s3, 8')
    k.I('s_add_u32 s23, s23, s3')
    k.I(f's_add_u32 s23, s23, {GR}')
    k.I('s_mov_b32 s28, 0x07060503')
    k.I('s_mov_b32 s29, 0x07060502')
    k.I('s_mov_b32 s30, 0x07060501')
    for j in range(4): k.I(f'v_pk_add_f32 {vr(vw+2*j,2)}, {vr(vw+2*j,2)}, {vr(vw+8+2*j,2)}')
    for j in range(2): k.I(f'v_pk_add_f32 {vr(vw+2*j,2)}, {vr(vw+2*j,2)}, {vr(vw+4+2*j,2)}')
    k.I(f'v_pk_add_f32 {vr(vw,2)}, {vr(vw,2)}, {vr(vw+2,2)}')
    k.I(f'v_add_f32 v{vw}, v{vw}, v{vw+1}')
    for j in range(1, 4): k.I(f'v_mov_b32_dpp v{vw+j}, v{vw} quad_perm:[{j},{j},{j},{j}] row_mask:0xf bank_mask:0xf')
    for j in range(3): k.I(f'v_perm_b32 v{vw+j}, v{vw+j}, v{vw+3}, s{28+j}')
    k.I(f'v_mov_b32 v{vw+3}, s{TAG}')
    k.I('s_mov_b32 exec_lo, 0x11111111')
    k.I('s_mov_b32 exec_hi, 0x11111111')
    k.I(f'buffer_store_dwordx4 {vr(vw,4)}, v{t0}, s[12:15], s23 offen sc1')
    k.I('s_mov_b64 exec, -1')
    k.label('LMR_x')
```

```python
import os, math
import gen
from gen import *
from gen2 import *
from gen4 import YT, YT_ST, WS_END4, GR, unpack_gran, EPOCH
from gen import mark, stamp_begin, stamp_end

class Rec:
    def __init__(self): self.l = []
    def I(self, t, **kw): self.l.append(t)
def rec(fn, *a):
    r = Rec(); fn(r, *a); return r.l
def merge(k, main, fill, per):
    fill = list(fill)
    for m in main:
        k.I(m)
        for _ in range(per):
            if fill: k.I(fill.pop(0))
    return fill

import re as _re
def unpk(t):
    if isinstance(t, tuple) or not t.startswith('v_pk_'): return [t]
    m = _re.match(r'v_pk_(\w+)_f32 (.*)$', t)
    regs = [int(x) for x in _re.findall(r'v\[(\d+):\d+\]', m.group(2))]
    if m.group(1) == 'fma' and regs[0] == regs[3]: return [f'v_fmac_f32 v{regs[0]+j}, v{regs[1]+j}, v{regs[2]+j}' for j in range(2)]
    if m.group(1) == 'fma': return [f'v_fma_f32 v{regs[0]+j}, v{regs[1]+j}, v{regs[2]+j}, v{regs[3]+j}' for j in range(2)]
    return [f'v_{m.group(1)}_f32 v{regs[0]+j}, v{regs[1]+j}, v{regs[2]+j}' for j in range(2)]
def pairs(lst):
    out = []
    for t in lst:
        u = unpk(t)
        if len(u) == 2 and 'v_fma_' in u[0]: out += [[u[0]], [u[1]]]
        else: out.append(u)
    return out
def signal(k, name, cnt_sgpr, vtmp, noflush=False):
    k.I('s_barrier')
    st = k.save_state()
    k.I('s_cmp_lg_u32 s22, 0')
    k.I(f's_cbranch_scc1 L{name}_sig', noflush=noflush)
    k.I('s_mov_b64 exec, 1')
    k.I(f'buffer_atomic_add v{vtmp+1}, v{vtmp}, s[12:15], s{cnt_sgpr} offen sc1')
    k.I('s_mov_b64 exec, -1')
    if noflush: k.raw(f'L{name}_sig:')
    else: k.label(f'L{name}_sig')
    k.restore_state(st)
    k.vm.append((set(), None)) if False else None
def poll(k, name, cnt_sgpr, vtmp, vres):
    st = k.save_state()
    k.I('s_cmp_lg_u32 s22, 3')
    k.I(f's_cbranch_scc1 L{name}_done')
    k.I('s_mov_b32 s24, 0x100000')
    k.label(f'L{name}_poll')
    k.I(f'buffer_load_dword v{vres}, v{vtmp}, s[12:15], s{cnt_sgpr} offen sc1')
    k.waitcnt(vm=0)
    k.I(f'v_readfirstlane_b32 s33, v{vres}')
    k.I('s_sub_u32 s24, s24, 1')
    k.I(f's_cbranch_scc1 L{name}_done')
    k.I('s_cmp_lt_u32 s33, 16')
    k.I(f's_cbranch_scc1 L{name}_poll')
    k.label(f'L{name}_done')
    k.restore_state(st)
    k.I('s_barrier')

TAB = WS_END4
WS_END6 = TAB + 24 * 1024
class Fix:
    def __init__(self, seq): self.seq = list(seq)
    def get(self, *a): return self.seq.pop(0)
def role_tab(k):
    c0 = 24; f40 = c0; f16 = c0 + 62; cs = c0 + 68; sn = c0 + 80
    vi, vq, fi, fq, fq4, vo, t8, tmp = 2, 3, 4, 5, 6, 7, 8, 16
    k.I(f'v_and_b32 v{vi}, 15, v0')
    k.I(f'v_lshrrev_b32 v{vq}, 4, v0')
    k.I(f'v_cvt_f32_u32 v{fi}, v{vi}')
    k.I(f'v_cvt_f32_u32 v{fq}, v{vq}')
    k.I(f'v_mul_f32 v{fq4}, 4.0, v{fq}')
    k.I(f'v_lshlrev_b32 v{vo}, 4, v0')
    gen_f40(k, Fix([f40, t8, t8+4, t8+6]), fi, fq, True)
    gen_tw640(k, Fix([cs, sn, t8]), fi, fq4)
    k.I(f'v_cmp_gt_u32 vcc, 8, v{vi}')
    for r in range(4):
        k.I(f'v_cndmask_b32 v{cs+8+r}, 0, v{cs+8+r}, vcc')
        k.I(f'v_cndmask_b32 v{sn+8+r}, 0, v{sn+8+r}, vcc')
    k.I(f'v_mul_f32 v{t8}, {fhex(1.0/16)}, v{fi}')
    k.I(f'v_mul_f32 v{t8+1}, v{fq4}, v{t8}')
    for j in range(4): k.I(f'v_fmamk_f32 v{tmp+4+j}, v{t8}, {fhex(float(j))}, v{t8+1}')
    for j in range(4):
        k.I(f'v_cos_f32 v{tmp+j}, v{tmp+4+j}')
        k.I(f'v_sin_f32 v{tmp+4+j}, v{tmp+4+j}')
    for p in range(2):
        k.I(f'v_cvt_pk_bf16_f32 v{f16+p}, v{tmp+4+2*p}, v{tmp+5+2*p}')
        k.I(f'v_cvt_pk_bf16_f32 v{f16+2+p}, v{tmp+2*p}, v{tmp+1+2*p}')
        k.I(f'v_cvt_pk_bf16_f32 v{f16+4+p}, -v{tmp+4+2*p}, -v{tmp+5+2*p}')
    k.srd(24, 4, 23 * 1024, TAB)
    for i in range(23):
        if i % 4 == 0: k.I(f's_mov_b32 s28, {1024*i}')
        k.I(f'buffer_store_dwordx4 {vr(c0+4*i,4)}, v{vo}, s[24:27], s28 offen offset:{1024*(i%4)}')

XNT = ' nt' if os.environ.get('XNT') == '1' else ''
_mark = mark
def mark(k, i):
    if not env('MF', 0): _mark(k, i)
def fm(k, i):
    if env('MF', 0) == 1: _mark(k, i)
def pm(k, i):
    if env('MF', 0) == 3: _mark(k, i)
def em(k, i):
    if env('MF', 0) == 2: _mark(k, i)
def pack6(k, base, cs, sn, alt):
    def op(r, j, neg):
        n = neg ^ (alt and (j & 1))
        return ('-' if n else '') + f'v{r+j}'
    for p in range(2):
        k.I(f'v_cvt_pk_bf16_f32 v{base+p}, {op(sn,2*p,True)}, {op(sn,2*p+1,True)}')
        k.I(f'v_cvt_pk_bf16_f32 v{base+2+p}, {op(cs,2*p,False)}, {op(cs,2*p+1,False)}')
        k.I(f'v_cvt_pk_bf16_f32 v{base+4+p}, {op(sn,2*p,False)}, {op(sn,2*p+1,False)}')
WIM, WRE = 0, 2
F0 = FLAGS + 8192
WGU_B = WGU + 64 * 30720
FW = F0 + 1024
YFL = ['sc1', 'sc1 nt', 'sc0 sc1', 'sc0 sc1 nt'][env('YFL', 0)]
def hm(k, i):
    if env('MF', 0) == 5: _mark(k, i)
def cm_(k, i):
    if env('MF', 0) == 4: _mark(k, i)

HALF = env('HALF', 0)
X64 = env('X64', 1)
W128 = env('W128', 2)
from ph1 import NM, modr_in, modr_out, phase1, XS, XS_ST, A0, A1, A2, GO, TAG
def um(k, i):
    if env('MF', 0) == 6: _mark(k, i)
def gen_UNI():
    k = Kernel(os.environ.get('KNAME', 'kd_kernel'))
    PL = 2592
    HB = 0; XB = 10240; SB = 122880; XL = 32768; MLD = XL + 4 * 2560; TL = MLD + 8192; CL = 81920
    W_ST = env('W_ST', 4); W_A = env('W_A', 4)
    NB1 = env('NB1', 16); W_J1 = W_J1_ = env('W_J1', 8); W_J = env('W_J', 8)
    stamp_begin(k)
    k.I('s_cmp_ge_u32 s2, 256')
    k.I('s_cbranch_scc1 LD_exit')
    va = VAlloc(2)
    hs = va.get(2, 2); vl = va.get(); vo16 = va.get(); vW = va.get(); vi = va.get(); vq = va.get(); oh = va.get(); oh2 = va.get(); hr = va.get()
    keep = va.n
    so = va.get(); wu = va.get(); wv = va.get(); ra = va.get(); xo = va.get(); mo = va.get(); wh = va.get(3); wx = va.get(); g0 = va.get(); g2 = va.get()
    ch = va.get(12, 4); xr = va.get(12, 2); mg = va.get(12, 4); mc = va.get(12, 4); ms = va.get(12, 4)
    d1 = va.get(24, 4); d2 = va.get(24, 4); dat = va.get(12, 2); tmp = va.get(8, 2)
    f40 = va.get(92, 4); f16 = f40 + 62; cs = f40 + 68; sn = f40 + 80
    tv = VAlloc(d1, d1 + 48)
    ta = tv.get(4); tk = tv.get(); cb_ = tv.get(); tq = tv.get(); v8 = tv.get(); vcn = tv.get(); vma = tv.get(); vmk = tv.get(2, 2)
    phase1(k, dict(vl=vl, vo16=vo16, vi=vi, vq=vq, keep=keep), um, WS_END6, XL, TL)
    k.I(f's_load_dwordx2 s[4:5], s[0:1], {KA["ws"]}')
    k.I(f's_load_dwordx2 s[40:41], s[0:1], {KA["out"]}')
    k.I(f's_load_dwordx2 s[62:63], s[0:1], {KA["wd"]}')
    av = 252; gv = 249
    aslow = []
    def aload(base):
        k.I(f's_mov_b32 s{TAG+1}, {base}')
        k.I(f'buffer_load_dwordx4 {vr(av,4)}, v{vo16}, s[12:15], s{TAG+1} offen sc1')
    def atest():
        for j in range(4): k.I(f'v_xor_b32 v{av+j}, s{TAG}, v{av+j}')
        k.I(f'v_or3_b32 v{av}, v{av}, v{av+1}, v{av+2}')
        k.I(f'v_or_b32 v{av}, v{av}, v{av+3}')
        k.I(f'v_cmp_ne_u32 s[98:99], 0, v{av}')
        k.I('s_cmp_lg_u64 s[98:99], 0')
    def acheck(name, base):
        atest()
        k.I(f's_cbranch_scc1 L{name}_slow')
        k.label(f'L{name}_ok')
        aslow.append((name, base))
    gslow = []
    def gload(i):
        k.I('v_mov_b32 v251, 0')
        k.I(f's_and_b32 s{TAG+1}, s2, 7')
        k.I(f's_lshl_b32 s{TAG+1}, s{TAG+1}, 7')
        k.I(f's_add_u32 s{TAG+1}, s{TAG+1}, {GO + 1024*i}')
        k.I(f'buffer_load_dword v{gv}, v251, s[12:15], s{TAG+1} offen sc1')
    def gcheck(name, i):
        k.I(f'v_readfirstlane_b32 s98, v{gv}')
        k.I(f's_cmp_lg_u32 s98, s{TAG}')
        k.I(f's_cbranch_scc1 L{name}_slow')
        k.label(f'L{name}_ok')
        gslow.append((name, i))
    def apost(base=A2, tag='z2'):
        k.wait_tag(tag)
        k.I('s_barrier')
        k.I(f'v_mov_b32 v250, s{TAG}')
        k.I(f'v_mov_b32 v251, 0')
        k.I('s_lshl_b32 s98, s2, 2')
        k.I(f's_add_u32 s98, s98, {base}')
        k.I('s_cmp_eq_u32 s22, 3')
        k.I('s_cselect_b64 exec, 1, 0')
        k.I(f'buffer_store_dword v250, v251, s[12:15], s98 offen sc1')
        k.I('s_mov_b64 exec, -1')
    def scalars():
        MAP = env('MAP', 2)
        if MAP == 1:
            k.I('s_and_b32 s20, s2, 7')
            k.I('s_lshl_b32 s20, s20, 1')
            k.I('s_lshr_b32 s21, s2, 7')
            k.I('s_add_u32 s20, s20, s21')
            k.I('s_bfe_u32 s56, s2, 0x30003')
            k.I('s_bfe_u32 s57, s2, 0x10006')
        elif MAP == 4:
            k.I('s_and_b32 s20, s2, 4')
            k.I('s_lshl_b32 s20, s20, 1')
            k.I('s_lshr_b32 s21, s2, 5')
            k.I('s_add_u32 s20, s20, s21')
            k.I('s_bfe_u32 s56, s2, 0x20003')
            k.I('s_and_b32 s21, s2, 2')
            k.I('s_lshl_b32 s21, s21, 1')
            k.I('s_add_u32 s56, s56, s21')
            k.I('s_and_b32 s57, s2, 1')
        else:
            k.I('s_and_b32 s20, s2, 6')
            k.I('s_lshl_b32 s20, s20, 1')
            k.I('s_lshr_b32 s21, s2, 6')
            k.I('s_add_u32 s20, s20, s21')
            k.I('s_bfe_u32 s56, s2, 0x30003')
            k.I('s_and_b32 s57, s2, 1')
        k.I('s_lshl_b32 s21, s57, 3')
        k.I('s_add_u32 s21, s21, s56')
        k.I('s_lshl_b32 s25, s20, 4')
        k.I('s_add_u32 s3, s25, s21')
        k.I('s_lshr_b32 s25, s20, 2')
        k.I('s_lshl_b32 s25, s25, 12')
        k.I('s_lshl_b32 s24, s57, 11')
        k.I('s_add_u32 s25, s25, s24')
        k.I('s_and_b32 s24, s21, 1')
        k.I('s_lshl_b32 s24, s24, 10')
        k.I('s_add_u32 s25, s25, s24')
        k.I('s_and_b32 s24, s20, 3')
        k.I('s_lshl_b32 s24, s24, 8')
        k.I('s_add_u32 s25, s25, s24')
        k.I('s_and_b32 s24, s21, 6')
        k.I('s_lshl_b32 s24, s24, 5')
        k.I('s_add_u32 s25, s25, s24')
        k.I(f's_add_u32 s26, s25, {64*16384}')
        k.I(f's_add_u32 s27, s25, {128*16384}')
        k.I(f's_mul_i32 s30, s22, 2560')
        k.I(f's_add_u32 s30, s30, {XL}')
        k.I('s_lshl_b32 s31, s22, 11')
        k.I(f's_add_u32 s88, s31, {MLD}')
        k.I(f's_add_u32 s31, s31, {MODN + 2*2560}')
        k.I('s_lshl_b32 s32, s21, 2')
        k.I('s_add_u32 s32, s32, s22')
        k.I('s_mul_i32 s24, s32, 30720')
        k.I(f's_add_u32 s24, s24, {WGU}')
        k.I(f'v_add_u32 v{vW}, s24, v{vo16}')
        k.I(f's_mul_i32 s58, s20, {8*49152}')
        k.I('s_mul_i32 s24, s32, 768')
        k.I('s_add_u32 s58, s58, s24')
        k.I(f's_add_u32 s58, s58, {HH}')
        for i in range(1, 4): k.I(f's_add_u32 s{58+i}, s58, {2*i*49152}')
        k.I('s_and_b32 s89, s2, 7')
        k.I('s_lshl_b32 s89, s89, 7')
        k.I(f's_add_u32 s89, s89, {F0}')
        k.srd(12, 4, WS_END6)
        k.srd(16, 4, 161 * 16384, XT)
    def wload(n):
        m_ = n % 30
        g = [f'buffer_load_dwordx4 {ar(4*n,4)}, v{vW}, s[12:15], 0 offen offset:{1024*(m_%4)} sc1']
        if n == 29: g.append(f'v_add_u32 v{vW}, {WGU_B - WGU - 28672}, v{vW}')
        elif m_ % 4 == 3: g.append(f'v_add_u32 v{vW}, 0x1000, v{vW}')
        return g
    def bglist(): return [wload(n) for n in range(48)]
    NBG = 48
    def topup():
        k.bg_every = 0
        k.emit_bg(max(0, NB1 - (NBG - len(k.bg))))
        assert NBG - len(k.bg) == NB1, (NBG - len(k.bg), NB1)
    k.I('s_cmp_ge_u32 s2, 161')
    st0 = k.save_state()
    k.I('s_cbranch_scc1 LWD')
    vc = VAlloc(keep)
    vo8 = vc.get(); yo = vc.get(); wa = vc.get(); vC = vc.get()
    fi = vc.get(); fq4 = vc.get(); fk = vc.get(); fw16 = vc.get(); cta = vc.get(2); sg2 = vc.get(2, 2)
    f64 = vc.get(24, 2); f32 = vc.get(24, 2)
    c1 = vc.get(8, 2); s1_ = vc.get(8, 2); c2 = vc.get(8, 2); s2_ = vc.get(8, 2)
    TK = []
    wq2 = vc.get(16, 4)
    for X in range(2):
        TK.append(dict(wq=wq2 + 8*X, dat=vc.get(32, 4), acc=vc.get(16, 4), pk=vc.get(8, 4), tmp=vc.get(8, 2)))
    tc = TK[0]['tmp']; ts = tc + 4
    k.I(f'v_lshlrev_b32 v{vo8}, 3, v{vl}')
    if W128 == 1:
        k.I(f'v_and_b32 v{yo}, 0x1c0, v{vo8}')
        k.I(f'v_add_u32 v{vo8}, v{vo8}, v{yo}')
    k.I('s_lshl_b32 s48, s2, 14')
    k.I(f's_lshl_b32 s49, s22, {11 if W128 else 10}')
    k.I('s_add_u32 s49, s49, s48')
    k.I('s_lshl_b32 s24, s22, 11')
    k.I('s_add_u32 s48, s48, s24')
    k.I(f's_add_u32 s90, s24, {CL}')
    k.I('s_mov_b32 m0, s90')
    k.I('s_cmp_eq_u32 s2, 0')
    k.I('s_cselect_b32 s50, 0, 1.0')
    k.I('s_cmp_eq_u32 s2, 160')
    k.I('s_cselect_b32 s50, 0, s50')
    k.I('s_mov_b32 s52, 0x80008000')
    k.I(f'v_lshlrev_b32 v{sg2}, 31, v{vi}')
    k.I(f'v_or_b32 v{sg2}, 1.0, v{sg2}')
    k.I(f'v_cvt_f32_u32 v{fi}, v{vi}')
    k.I(f'v_lshlrev_b32 v{fq4}, 2, v{vq}')
    k.I(f'v_cvt_f32_u32 v{fq4}, v{fq4}')
    k.I(f'v_lshlrev_b32 v{fw16}, 4, v1')
    k.I(f'v_cvt_f32_u32 v{fw16}, v{fw16}')
    k.I(f'v_add_f32 v{fk}, v{fw16}, v{fi}')
    def angles(step_reg, scale, base_add, dst, q=None):
        k.I(f'v_mul_f32 v{cta}, {fhex(scale)}, v{step_reg}')
        k.I(f'v_mul_f32 v{cta+1}, v{fq4 if q is None else q}, v{cta}')
        for j in range(4): k.I(f'v_fmamk_f32 v{dst+j}, v{cta}, {fhex(float(base_add + j))}, v{cta+1}')
    def sincos(c, s_):
        for j in range(4):
            k.I(f'v_cos_f32 v{c+j}, v{s_+j}')
            k.I(f'v_sin_f32 v{s_+j}, v{s_+j}')
    def flip(c, s_):
        for p in (0, 2):
            k.I(f'v_pk_mul_f32 {vr(c+p,2)}, {vr(c+p,2)}, {vr(sg2,2)} op_sel_hi:[1,0]')
            k.I(f'v_pk_mul_f32 {vr(s_+p,2)}, {vr(s_+p,2)}, {vr(sg2,2)} op_sel_hi:[1,0]')
    def flip6(base): return [f'v_xor_b32 v{base+j}, s52, v{base+j}' for j in (0, 1, 4, 5)]
    for kap in range(2):
        angles(fk, 1.0/64, 16*kap, ts); sincos(tc, ts)
        pack6(k, f64+6*kap, tc, ts, False)
        flip(tc, ts)
        pack6(k, f64+6*(kap+2), tc, ts, False)
        if kap == 0:
            k.srd(44, 4, 161 * 16384, WT)
            if env('U_POST', 0) == 0: apost(A1, 'zt')
            cm_(k, 1)
            scalars()
            k.I('s_lshl_b32 s53, s22, 12')
            k.I('s_lshl_b32 s24, s2, 14')
            k.I('s_add_u32 s53, s53, s24')
    for N in range(2):
        angles(fk, 1.0/2048, 16*N, s1_+4*N); sincos(c1+4*N, s1_+4*N)
    if env('U_POST', 0) == 1: apost(A1, 'zt')
    kreal = k; LATEC = 0
    if LATEC:
        k = Rec(); tc = TK[1]['tmp']; ts = tc + 4
    angles(fi, 1.0/32, 0, ts); sincos(tc, ts)
    pack6(k, f32+0, tc, ts, False)
    pack6(k, f32+12, tc, ts, True)
    flip(tc, ts)
    pack6(k, f32+6, tc, ts, False)
    pack6(k, f32+18, tc, ts, True)
    k.I(f'v_add_f32 v{fw16}, v{fw16}, v{fq4}')
    for N in range(2):
        if N: k.I(f'v_add_f32 v{fi}, {fhex(16.0)}, v{fi}')
        angles(fi, 1.0/2048, 0, s2_+4*N, q=fw16); sincos(c2+4*N, s2_+4*N)
    latec = []
    if LATEC:
        for t in k.l: latec += [t] if 'op_sel' not in t else [f'v_mul_f32 v{int(x)+j}, v{int(x)+j}, v{sg2}' for x in _re.findall(r'v\[(\d+):', t)[:1] for j in range(2)]
        k = kreal
    k.I(f'v_add_u32 v{vC}, {CL}, v{vo16}')
    k.I(f'v_add_u32 v{wa}, s90, v{vo16}')
    vX = hr
    k.I(f'v_and_b32 v{vX}, 0x3e0, v{vo16}')
    k.I(f'v_add_u32 v{vX}, v{vX}, v{vC}')
    k.I(f'v_and_b32 v{vo8}, 2, v{vi}')
    k.I(f'v_mul_u32_u24 v{yo}, {(8192 + 32 - 32) // 2}, v{vo8}')
    k.I(f'v_add_u32 v{yo}, v{yo}, v{vC}')
    k.I(f'v_cmp_eq_u32 vcc, 0, v{vo8}')
    k.I(f'v_mov_b32 v{fk}, s50')
    k.I(f'v_cndmask_b32 v{fk}, 1.0, v{fk}, vcc')
    gx = TK[1]['pk']; gk = gx + 2
    k.I(f'v_lshrrev_b32 v{gx}, 5, v{vl}')
    k.I(f'v_bfe_u32 v{gx+1}, v{vl}, 2, 3')
    k.I(f'v_lshl_add_u32 v{gx}, v{gx}, 4, v{gx+1}')
    k.I(f'v_mul_u32_u24 v{gx}, {XS_ST}, v{gx}')
    k.I(f'v_and_b32 v{gx+1}, 3, v{vl}')
    k.I(f'v_lshl_add_u32 v{gx}, v{gx+1}, 4, v{gx}')
    k.I(f's_mul_i32 s36, s22, {64*XS_ST}')
    k.I('s_lshl_b32 s24, s2, 6')
    k.I('s_add_u32 s36, s36, s24')
    k.I(f's_add_u32 s36, s36, {XS}')
    for j in range(1, 4): k.I(f's_add_u32 s{36+j}, s36, {(32*(j&1) + 8*(j>>1))*XS_ST - 1024*j}')
    k.I('s_lshl_b32 s48, s22, 12')
    k.I(f's_add_u32 s48, s48, {CL}')
    k.I(f'v_add_u32 v{gx+1}, s48, v{vo16}')
    def xg():
        k.I('s_mov_b32 m0, s48')
        for j in range(4): k.I(f'buffer_load_dwordx4 v{gx}, s[12:15], s{36+j} offen offset:{1024*j} sc1 lds', tag='xg')
    def xtest():
        k.I(f'ds_read2st64_b32 {vr(gk,2)}, v{gx+1} offset0:0 offset1:4')
        k.I(f'ds_read2st64_b32 {vr(gk+2,2)}, v{gx+1} offset0:8 offset1:12')
        k.I(f'v_bitop3_b32 v{gk}, v{gk}, v{gk+1}, v{gk+2} bitop3:0x80')
        k.I(f'v_bitop3_b32 v{gk}, v{gk}, v{gk+3}, 1 bitop3:0x80')
        k.I(f'v_cmp_eq_u32 s[98:99], 0, v{gk}')
        k.I('s_cmp_lg_u64 s[98:99], 0')
    acheck('A0c', A0)
    cm_(k, 2)
    xg()
    k.wait_tag('xg')
    xtest()
    k.I('s_cbranch_scc1 LXG_slow')
    k.label('LXG_ok')
    gload(0)
    k.I('s_barrier')
    cm_(k, 3)
    def rd(X, base): return [f'ds_read_b128 {vr(TK[X]["dat"]+(2*kap+N)*4,4)}, v{vX if X64 else vC} offset:{4096*kap+2048*N+32*X if X64 else base+8192*X+2048*kap+1024*N}' for N in range(2) for kap in range(4)]
    def st1(X, inv):
        o = []; t = TK[X]
        for N in range(2):
            for kap in range(4):
                for c in range(2):
                    dd = vr(t['acc']+(2*N+c)*4, 4); da = vr(t['dat']+(2*kap+N)*4, 4); co = vr(f64+6*kap+(WIM if c else WRE), 4)
                    o.append(f'{MF16} {dd}, {co if inv else da}, {da if inv else co}, {dd if kap else 0}')
        return o
    def st3(X):
        o = []; t = TK[X]
        for N in range(2):
            for V in range(2):
                for c in range(2):
                    dd = vr(t['dat']+(2*V+c)*4, 4)
                    o.append(f'{MF16} {dd}, {vr(f32+(2*V+N)*6+(WIM if c else WRE),4)}, {vr(t["pk"]+4*N,4)}, {dd if N else 0}')
        return o
    def st4(X):
        o = []; t = TK[X]
        for V in range(2):
            for N in range(2):
                for c in range(2):
                    dd = vr(t['acc']+(2*N+c)*4, 4)
                    o.append(f'{MF16} {dd}, {vr(t["dat"]+16+4*V,4)}, {vr(f32+(2*N+V)*6+(WIM if c else WRE),4)}, {dd if V else 0}')
        return o
    def cmx(X, src, cc, ss, dst, conj):
        o = []
        for h_ in range(2): o += rec(cmul4, src+8*h_, src+8*h_+4, cc+4*h_, ss+4*h_, dst+4*h_, TK[X]['tmp'], conj)
        if env('C_SCALAR', 0):
            o2_ = []
            for t in o:
                if 'neg_lo' in t:
                    r4 = [int(x) for x in _re.findall(r'v\[(\d+):\d+\]', t)]
                    o2_ += [f'v_fma_f32 v{r4[0]+j}, v{r4[1]+j}, -v{r4[2]+j}, v{r4[3]+j}' for j in range(2)]
                else: o2_ += unpk(t)
            o = o2_
        return o
    def wun(X):
        t = TK[X]; o = []
        for j in range(8):
            w_ = wq2 + 4*(j//2) + 2*X + (j & 1) if W128 == 2 else t["wq"] + j
            o.append(f'v_lshlrev_b32 v{t["acc"]+2*j}, 16, v{w_}')
            o.append(f'v_and_b32 v{t["acc"]+2*j+1}, 0xffff0000, v{w_}')
        return o
    def outs(X):
        t = TK[X]; o = []; fl_ = f'v{fk}'
        for N in range(2):
            re = t['acc']+8*N; im = re+4; tm = t['tmp']
            for p in range(2):
                a_, b_ = 2*p, 2*p+1
                o.append(f'v_fma_f32 v{tm+4*p+0}, -v{im+b_}, {fl_}, v{re+a_}')
                o.append(f'v_fma_f32 v{tm+4*p+1}, v{im+a_}, {fl_}, v{re+b_}')
                o.append(f'v_fma_f32 v{tm+4*p+2}, v{im+b_}, {fl_}, v{re+a_}')
                o.append(f'v_fma_f32 v{tm+4*p+3}, -v{im+a_}, {fl_}, v{re+b_}')
            for j in range(4): o.append(f'v_cvt_pk_bf16_f32 v{t["pk"]+4*N+j}, v{tm+2*j}, v{tm+2*j+1}')
        return o
    def mg_(main, fill, per):
        for t in merge(k, main, fill, per): k.I(t)
    A_, B_ = TK
    PER = env('C_PER', 2); P3 = env('C_P3', 3)
    NL0 = env('C_L0', 22)
    for t in rd(0, 0) + rd(1, 0)[:7]: k.I(t)
    for t in latec[:NL0]: k.I(t)
    mg_(st1(0, False) + st1(1, False)[:4], rd(1, 0)[7:] + latec[NL0:], env('C_LP', 2))
    gcheck('G1c', 0)
    for m_ in range(2):
        for V in range(2): k.I(f'buffer_load_dwordx4 {vr(wq2+8*m_+4*V,4)}, v{vo16}, s[44:47], s49 offen offset:{1024*V} sc1')
        k.I('s_add_u32 s49, s49, 8192')
    zz = 244 + 8
    for j in range(4): k.I(f'v_mov_b32 v{zz+j}, 0')
    k.I(f'v_lshlrev_b32 v248, 4, v0')
    k.I('s_mul_i32 s51, s2, 205')
    k.I('s_lshr_b32 s51, s51, 10')
    k.I('s_mul_i32 s51, s51, 40960')
    k.I('s_lshl_b32 s24, s2, 13')
    k.I('s_add_u32 s51, s51, s24')
    k.I(f's_add_u32 s51, s51, {H2}')
    k.I('s_cmp_lt_u32 s2, 160')
    k.I('s_cselect_b32 s51, s51, 0x7f000000')
    k.I(f'buffer_store_dwordx4 {vr(zz,4)}, v248, s[12:15], s51 offen sc1', tag='z')
    k.I('s_add_u32 s51, s51, 4096')
    k.I(f'buffer_store_dwordx4 {vr(zz,4)}, v248, s[12:15], s51 offen sc1', tag='z')
    k.bg = bglist(); k.bg_every = env('BGC2', 18)
    mg_(st1(1, False)[4:], cmx(0, A_['acc'], c1, s1_, A_['pk'], False), PER)
    mg_(st3(0), cmx(1, B_['acc'], c1, s1_, B_['pk'], False), P3)
    cm_(k, 4)
    mg_(st3(1), wun(0) + wun(1) + cmx(0, A_['dat'], A_['acc'], A_['acc']+8, A_['dat']+16, True), P3)
    G2L = 0
    for w_ in range(4):
        for t in flip6(f32+6*w_): k.I(t)
    mg_(st4(0), cmx(1, B_['dat'], B_['acc'], B_['acc']+8, B_['dat']+16, True), P3)
    fl64 = []
    for kap in range(4): fl64 += flip6(f64+6*kap)
    ca = cmx(0, A_['acc'], c2, s2_, A_['pk'], True)
    mg_(st4(1), fl64[:8] + ca, P3)
    cm_(k, 5)
    for N in range(2): k.I(f'ds_write_b128 v{wa}, {vr(A_["pk"]+4*N,4)} offset:{16384+1024*N}')
    for t in cmx(1, B_['acc'], c2, s2_, B_['pk'], True): k.I(t)
    for N in range(2): k.I(f'ds_write_b128 v{wa}, {vr(B_["pk"]+4*N,4)} offset:{16384+8192+32+1024*N}')
    for t in fl64[8:]: k.I(t)
    k.wait_tag('z')
    k.barrier()
    cm_(k, 6)
    def rd2(e): return [f'ds_read_b128 {vr(TK[e]["dat"]+(2*kap+N)*4,4)}, v{yo} offset:{16384+32*e+2048*kap+1024*N}' for N in range(2) for kap in range(4)]
    def ost(e):
        o = outs(e); r_ = []
        for N in range(2):
            r_ += o[12*N:12*N+12] + [f'v_or_b32 v{TK[e]["pk"]+4*N}, 1, v{TK[e]["pk"]+4*N}',
                  (f'buffer_store_dwordx4 {vr(TK[e]["pk"]+4*N,4)}, v{vo16}, s[16:19], s53 offen offset:{2048*N+1024*e} sc1', 'y')]
        return r_
    def em_(t):
        if isinstance(t, tuple): k.I(t[0], tag=t[1])
        else: k.I(t)
    if G2L: gload(1)
    for t in rd2(0): k.I(t)
    mg_(st1(0, True), rd2(1), 1)
    if not G2L: topup()
    fill = ost(0)
    for j, m_ in enumerate(st1(1, True)):
        k.I(m_)
        for _ in range(PER):
            if fill: em_(fill.pop(0))
    for t in fill + ost(1): em_(t)
    cm_(k, 7)
    if G2L: gcheck('G2c', 1); topup()
    k.emit_bg(W_J1)
    def dpro():
        k.bg_every = 0
        k.I(f'v_lshrrev_b32 v{so}, 2, v0')
        k.I(f'v_lshlrev_b32 v{so}, 14, v{so}')
        k.I(f'v_and_b32 v{ta+1}, 3, v0')
        k.I(f'v_lshl_add_u32 v{so}, v{ta+1}, 4, v{so}')
        k.I(f'v_lshrrev_b32 v{ta+1}, 1, v0')
        k.I(f'v_cmp_ge_u32 s[34:35], 64, v{ta+1}')
        k.I(f'v_mov_b32 v{ch+8}, -1')
        k.I(f'v_add_u32 v{vma}, s88, v{vo16}')
        k.I(f'v_mov_b32 v{hs}, 0')
        k.I(f'v_mov_b32 v{hs+1}, 1')
        k.bg_every = 6
        nleft = len(k.bg); hold = k.bg[W_J:]; k.bg = k.bg[:W_J]
        addr = []
        A = addr.append
        A(f'v_lshrrev_b32 v{tq}, 1, v{vq}')
        A(f'v_mad_u32_u24 v{cb_}, v{vi}, 5, v{tq}')
        A(f'v_and_b32 v{tk}, 1, v{vq}')
        A(f'v_mul_u32_u24 v{oh}, 49152, v{tk}')
        A(f'v_lshlrev_b32 v{oh2}, 2, v{oh}')
        A(f'v_lshl_add_u32 v{oh}, v{tq}, 8, v{oh}')
        A(f'v_lshl_add_u32 v{oh}, v{vi}, 4, v{oh}')
        A(f'v_mul_u32_u24 v{tq}, 49152, v{tq}')
        A(f'v_add_u32 v{oh2}, v{oh2}, v{tq}')
        A(f'v_lshl_add_u32 v{oh2}, v{vi}, 4, v{oh2}')
        A(f'v_lshl_add_u32 v{tk}, v1, 1, v{tk}')
        for T in range(3):
            A(f'v_add_u32 v{tq}, {2*T}, v{cb_}')
            A(f'v_xor_b32 v{wh+T}, v{tq}, v{tk}')
            A(f'v_and_b32 v{wh+T}, 7, v{wh+T}')
            A(f'v_lshl_add_u32 v{wh+T}, v{tq}, 3, v{wh+T}')
            A(f'v_lshlrev_b32 v{wh+T}, 4, v{wh+T}')
            A(f'v_add_u32 v{wh+T}, {SB}, v{wh+T}')
        A(f'v_mul_u32_u24 v{wx}, 1280, v{tk}')
        A(f'v_lshl_add_u32 v{wx}, v{cb_}, 4, v{wx}')
        A(f'v_add_u32 v{wx}, {SB}, v{wx}')
        A(f'v_lshrrev_b32 v{tq}, 3, v0')
        A(f'v_xor_b32 v{g0}, v{tq}, v0')
        A(f'v_and_b32 v{g0}, 7, v{g0}')
        A(f'v_lshlrev_b32 v{g0}, 4, v{g0}')
        A(f'v_lshl_add_u32 v{g0}, v{tq}, 8, v{g0}')
        for t in addr: k.I(t)
        k.I(f'v_and_b32 v{ta}, 1, v0')
        k.I(f'v_mul_u32_u24 v{wu}, {2*PL}, v{ta}')
        k.I(f'v_sub_u32 v{wv}, 384, v{ta+1}')
        k.I(f'v_lshl_add_u32 v{wv}, v{wv}, 2, v{wu}')
        k.I(f'v_lshl_add_u32 v{wu}, v{ta+1}, 2, v{wu}')
        k.I(f's_mul_i32 s24, s22, {PL}')
        k.I(f'v_lshl_add_u32 v{ra}, v{vl}, 2, s24')
        k.I(f'v_mov_b32 v{dat+10}, 0'); k.I(f'v_mov_b32 v{dat+11}, 0')
        k.I(f'v_mul_u32_u24 v{xo}, 80, v{vi}')
        k.I(f'v_lshl_add_u32 v{xo}, v{vq}, 3, v{xo}')
        k.I(f'v_lshlrev_b32 v{mo}, 1, v{xo}')
        k.I(f'v_add_u32 v{xo}, s30, v{xo}')
        for j in range(8, 12): k.I(f'v_mov_b32 v{xr+j}, 0')
        k.emit_bg(99); k.bg_every = 0; k.bg = hold
    dpro()
    if env('Y_ACK', 0): k.wait_tag('y')
    k.label('LJOIN')
    def yloads():
        k.I('s_mov_b32 m0, s88')
        k.I(f'buffer_load_dwordx4 v{vo16}, s[12:15], s31 offen sc1 lds')
        k.I(f'buffer_load_dwordx4 v{vo16}, s[12:15], s31 offen offset:1024 sc1 lds')
        for rho in range(3):
            if rho == 2: k.I('s_mov_b64 exec, s[34:35]')
            k.I(f'buffer_load_dwordx4 {vr(ch+4*rho,4)}, v{so}, s[16:19], s{25+rho} offen {YFL}')
        k.I('s_mov_b64 exec, -1')
    def ycheck():
        k.I(f'v_and_b32 v{tq}, v{ch}, v{ch+4}')
        k.I(f'ds_read2st64_b32 {vr(vmk,2)}, v{vma} offset0:0 offset1:4')
        k.I(f'v_and_b32 v{tq}, v{tq}, v{ch+8}')
        k.I(f'v_and_b32 v{tq}, 1, v{tq}')
        k.I(f'v_add_u32 v{tq}, -1, v{tq}')
        k.I(f'v_max3_u32 v{tq}, v{tq}, v{vmk}, v{vmk+1}')
        k.I(f'v_cmp_eq_u32 s[62:63], -1, v{tq}')
        k.I('s_cmp_lg_u64 s[62:63], 0')
    yloads()
    if HALF: k.I(f'buffer_load_dword v{hr}, v{hs}, s[12:15], s89 offen offset:1024 sc1')
    W_Y = env('W_Y', 0)
    k.emit_bg(W_Y)
    mark(k, 1)
    tb_ = g2
    k.I(f'v_add_u32 v{tb_}, {TL}, v{vo16}')
    k.I('s_mov_b32 s50, 0')
    tl = [f'ds_read_b128 {vr(f40+4*i,4)}, v{tb_} offset:{1024*i}' for i in range(23)]
    for T in range(3):
        if T == 2: k.I('s_mov_b32 exec_hi, 0')
        for c in range(2):
            k.I(f'ds_read_b64 {vr(xr+(2*T+c)*2,2)}, v{xo} offset:{1280*c+32*T}')
    k.I('s_mov_b64 exec, -1')
    for t in tl[:8]: k.I(t)
    xf = d2
    assert tv.n <= d2
    for i in range(12):
        k.I(f'v_lshlrev_b32 v{xf+2*i}, 16, v{xr+i}')
        k.I(f'v_and_b32 v{xf+2*i+1}, 0xffff0000, v{xr+i}')
        k.I(tl[8 + i])
    for t in tl[20:]: k.I(t)
    k.I('s_mov_b32 s98, 0x80000000')
    k.I('s_mov_b32 s99, 0x00008000')
    for j in range(60): k.I(f'v_xor_b32 v{f40+j}, s{98 + ((j//10) & 1)}, v{f40+j}')
    d2 = f40
    cm_(k, 8)
    ycheck()
    k.I('s_cbranch_scc1 LY_slow')
    k.label('LY_ok')
    mark(k, 2); cm_(k, 9)
    for rho in range(3):
        if rho == 2: k.I('s_mov_b64 exec, s[34:35]')
        for pr in range(2):
            k.I(f'ds_write_b32 v{wu}, v{ch+4*rho+2*pr} offset:{pr*PL+512*rho}')
            k.I(f'ds_write_b32 v{wv}, v{ch+4*rho+2*pr+1} offset:{pr*PL+512*(2-rho)}')
    k.I('s_mov_b64 exec, -1')
    k.I(f'v_lshlrev_b32 v{so}, 4, v0')
    k.I(f'v_add_u32 v{so}, {SB}, v{so}')
    def gochk():
        k.I(f'v_readfirstlane_b32 s24, v{hr}')
        k.I('s_cmp_lg_u32 s24, 1')
        k.I('s_cbranch_scc1 LF0_slow')
        k.label('LF0_ok')
    if HALF: gochk()
    k.barrier()
    mark(k, 3)
    for p in range(5):
        k.I(f'ds_read2st64_b32 {vr(dat+2*p,2)}, v{ra} offset0:{2*p} offset1:{2*p+1}')
    def s1(T):
        o = []
        for kap in range(3):
            for c in range(2):
                dd = vr(d1 + (2*T+c)*4, 4)
                o.append(f'{MF16} {dd}, {vr(dat+4*kap,4)}, {vr(f40+(2*T+c)*10+4*kap,4)}, {dd if kap else 0}')
        return o
    k.bg_every = env('BG2', 12)
    mr = [f'ds_read_b128 {vr(mg+4*T,4)}, v{mo} offset:{MLD+64*T}' for T in range(3)]
    mr += [f'ds_read_b128 {vr(ms+4*T,4)}, v{mo} offset:{MLD+2560+64*T}' for T in range(3)]
    mr += [f'ds_read_b128 {vr(mc+4*T,4)}, v{mo} offset:{MLD+5120+64*T}' for T in range(3)]
    for t in s1(0)[:6]: k.I(t)
    rest = merge(k, s1(1), mr, 2)
    for t in rest: k.I(t)
    a2 = ch
    cm = [rec(cmul4, d1+8*T, d1+8*T+4, cs+4*T, sn+4*T, a2+4*T, tmp, True) for T in range(3)]
    def s2(T): return [f'{MF16} {vr(d2+(2*T+c)*4,4)}, {vr(a2+4*T,4)}, {vr(f16+(0 if c else 2),4)}, 0' for c in range(2)]
    for t in s1(2) + cm[0] + s2(0) + cm[1] + s2(1) + cm[2] + s2(2): k.I(t)
    st_ = f40 + 24
    for T in range(3):
        for c in range(2):
            for p in (0, 2):
                r = (2*T+c)*4+p
                k.I(f'v_pk_fma_f32 {vr(xf+r,2)}, {vr(d2+r,2)}, {vr(mg+4*T+p,2)}, {vr(xf+r,2)}')
        for c in range(2):
            r = xf+(2*T+c)*4
            if T == 0:
                k.I(f'v_pk_add_f32 {vr(st_+2*c,2)}, {vr(r,2)}, {vr(r+2,2)}')
                k.I(f'v_pk_mul_f32 {vr(st_+4+2*c,2)}, {vr(r,2)}, {vr(r,2)}')
            else:
                k.I(f'v_pk_add_f32 {vr(st_+2*c,2)}, {vr(st_+2*c,2)}, {vr(r,2)}')
                k.I(f'v_pk_fma_f32 {vr(st_+4+2*c,2)}, {vr(r,2)}, {vr(r,2)}, {vr(st_+4+2*c,2)}')
        for c in range(2):
            r = xf+(2*T+c)*4+2
            if T: k.I(f'v_pk_add_f32 {vr(st_+2*c,2)}, {vr(st_+2*c,2)}, {vr(r,2)}')
            k.I(f'v_pk_fma_f32 {vr(st_+4+2*c,2)}, {vr(r,2)}, {vr(r,2)}, {vr(st_+4+2*c,2)}')
    for i in range(4): k.I(f'v_add_f32 v{st_+2*i}, v{st_+2*i}, v{st_+2*i+1}')
    wave_reduce_to_sgpr(k, [st_, st_+2, st_+4, st_+6], [46, 47, 48, 49])
    po = d1; ph = d1 + 12; hn = d2
    rr = f40 + 32; nmr = f40 + 34
    ln_scalars(k, 46, 48, rr, nmr, tmp)
    k.I(f'v_mov_b32 v{rr+4}, v{rr+1}')
    k.I(f'v_mov_b32 v{nmr+4}, v{nmr+1}')
    for T in range(3):
        for c in range(2):
            for p in (0, 2):
                r = (2*T+c)*4+p
                k.I(f'v_pk_fma_f32 {vr(hn+r,2)}, {vr(xf+r,2)}, {vr(rr+4*c,2)}, {vr(nmr+4*c,2)} op_sel_hi:[1,0,0]')
        for c in range(2):
            for p in (0, 2):
                r = hn+(2*T+c)*4+p
                k.I(f'v_pk_fma_f32 {vr(r,2)}, {vr(r,2)}, {vr(mc+4*T+p,2)}, {vr(ms+4*T+p,2)}')
        for j in range(4):
            k.I(f'v_cvt_pk_bf16_f32 v{ph+4*T+j}, v{hn+8*T+2*j}, v{hn+8*T+2*j+1}')
        if T:
            k.I(f'v_permlane16_swap_b32 v{ph+4*T-4}, v{ph+4*T-2}')
            k.I(f'v_permlane16_swap_b32 v{ph+4*T-3}, v{ph+4*T-1}')
            k.I(f'v_or_b32 v{ph+4*T-4}, 1, v{ph+4*T-4}')
            k.I(f'ds_write_b128 v{wh+T-1}, {vr(ph+4*T-4,4)} offset:{HB}')
    k.bg_every = 0
    for j in range(2): k.I(f'v_cvt_pk_bf16_f32 v{po+j}, v{xf+2*j}, v{xf+2*j+1}')
    k.I(f'v_permlane16_swap_b32 v{ph+8}, v{ph+10}')
    k.I(f'v_permlane16_swap_b32 v{ph+9}, v{ph+11}')
    k.I(f'v_or_b32 v{ph+8}, 1, v{ph+8}')
    k.I('s_mov_b32 exec_hi, 0')
    k.I(f'ds_write_b128 v{wh+2}, {vr(ph+8,4)} offset:{HB}')
    k.I('s_mov_b64 exec, -1')
    k.I('s_lshr_b32 s42, s3, 1')
    k.I('s_mul_i32 s42, s42, 20480')
    k.I('s_and_b32 s24, s21, 1')
    k.I('s_lshl_b32 s24, s24, 7')
    k.I('s_add_u32 s42, s42, s24')
    k.I(f's_add_u32 s42, s42, {H2}')
    k.I('s_add_u32 s44, s42, 8192')
    k.I('s_add_u32 s45, s42, 16384')
    if not HALF: k.I(f'buffer_load_dword v{hr}, v{hs}, s[12:15], s89 offen offset:1024 sc1')
    k.barrier()
    mark(k, 4); hm(k, 1)
    sd = mg
    for rho in range(3):
        k.I(f'ds_read_b128 {vr(sd+4*rho,4)}, v{so} offset:{HB+4096*rho}')
    for j in range(2, 12): k.I(f'v_cvt_pk_bf16_f32 v{po+j}, v{xf+2*j}, v{xf+2*j+1}')
    k.I(f'buffer_store_dwordx4 {vr(sd,4)}, v{g0}, s[12:15], s42 offen sc1', tag='h2')
    k.I(f'buffer_store_dwordx4 {vr(sd+4,4)}, v{g0}, s[12:15], s44 offen sc1', tag='h2')
    k.I('s_cmp_lt_u32 s22, 2')
    k.I('s_cselect_b64 exec, -1, 0')
    k.I(f'buffer_store_dwordx4 {vr(sd+8,4)}, v{g0}, s[12:15], s45 offen sc1', tag='h2')
    k.I('s_mov_b64 exec, -1')
    hm(k, 2)
    for T in range(3):
        k.I(f'v_permlane16_swap_b32 v{po+4*T}, v{po+4*T+2}')
        k.I(f'v_permlane16_swap_b32 v{po+4*T+1}, v{po+4*T+3}')
    for T in range(3):
        if T == 2: k.I('s_mov_b32 exec_hi, 0')
        k.I(f'ds_write_b128 v{wx}, {vr(po+4*T,4)} offset:{XB+32*T}')
    k.I('s_mov_b64 exec, -1')
    k.I(f's_add_u32 s24, s30, {SB + XB - XL}')
    k.I(f'v_add_u32 v{g2}, s24, v{vo16}')
    k.I('s_mul_i32 s43, s3, 10240')
    k.I(f's_add_u32 s43, s43, s30')
    k.I(f's_add_u32 s29, s43, {X1 - XL}')
    k.waitcnt(lgkm=0)
    sx = 244
    for i in range(3): k.I(f'ds_read_b128 {vr(sx+4*i,4)}, v{g2} offset:{1024*i}')
    def x1st():
        for i in range(3):
            if i == 2: k.I('s_mov_b32 exec_hi, 0')
            k.I(f'buffer_store_dwordx4 {vr(sx+4*i,4)}, v{vo16}, s[12:15], s43 offen offset:{1024*i} sc1')
        k.I('s_mov_b64 exec, -1')
    k.I('s_mul_i32 s24, s20, 163840')
    k.I(f's_add_u32 s24, s24, {H2}')
    k.I('s_add_u32 s16, s4, s24')
    k.I('s_addc_u32 s17, s5, 0')
    k.I('s_mov_b32 s18, 163840')
    k.I('s_mov_b32 s19, 0x00020000')
    k.I('s_and_b32 s52, s22, 2')
    k.I('s_add_u32 s52, s52, s22')
    k.I('s_mul_i32 s52, s52, 20480')
    k.I('s_add_u32 s53, s52, 40960')
    k.I('s_lshl_b32 s54, s20, 8')
    k.I(f's_add_u32 s54, s54, {FLAGS}')
    k.I('s_add_u32 s55, s54, 4096')
    k.I('s_add_u32 s51, s54, 128')
    k.srd(36, 40, S * D * 2)
    hm(k, 3)
    k.emit_bg(W_ST)
    hm(k, 4)
    va = VAlloc(keep)
    rb = [va.get(), va.get()]; vD = va.get()
    oo = va.get(); ox = va.get(); lw = va.get(); lr = va.get(); t0 = va.get(); t1 = va.get()
    act = va.get(32, 4); accs = [va.get(48, 4), va.get(48, 4)]; pk = va.get(12, 4)
    gb = va.get(8, 4); x1r = va.get(16, 4)
    NV = (256 - va.n) // 4
    wdv = va.get(4 * NV, 4)
    def wdreg(n): return vr(wdv + 4*n, 4) if n < NV else ar(4*(n - NV), 4)
    def emit(grp):
        for t in grp:
            if isinstance(t, tuple): k.I(t[0], tag=t[1])
            else: k.I(t)
    def dma(ps, g):
        out = []
        for j in range(4):
            gr = [(f'buffer_load_dwordx4 v{vo16}, s[16:19], m0 offen offset:{1024*j} sc1 lds', ('a', ps, g, j // 2))]
            if j == 0: gr = [f's_add_u32 m0, s{52+ps}, {4096*g}'] + gr
            out.append(gr)
        return out
    NPRE = 2
    if env('H1_FLAG', 0):
        k.wait_tag('h2')
        signal(k, 'H1', 54, hs)
        k.emit_bg(env('W_PL', 6))
        poll(k, 'H1p', 54, hs, hr)
    if env('H_ACK', 1): k.wait_tag('h2')
    k.emit_bg(env('W_H', 0))
    hm(k, 5)
    for g in range(NPRE):
        for grp in dma(0, g): emit(grp)
    gochk()
    k.bg += [wload(n) for n in range(48, 60)]
    k.emit_bg(W_A)
    hm(k, 6)
    late = list(k.bg); k.bg = []
    print('late weight loads', len(late), 'NV', NV)
    k.I(f'v_mov_b32 v{rb[0]}, v{vo16}')
    k.I(f'v_add_u32 v{rb[1]}, {4*20480}, v{vo16}')
    def aread(ps, i, kap):
        off = ((i & 1) + 2*ps) * 20480 + 1024*kap
        base = rb[i >> 1]
        return f'ds_read_b128 {vr(act+16*(kap&1)+4*i,4)}, v{base} offset:{off - (40960 if ps else 0)}'
    k.I('s_lshl_b32 s24, s56, 2')
    k.I('s_add_u32 s24, s24, s22')
    k.I('s_mul_i32 s24, s24, 61440' if not env('W_SAME', 0) & 2 else 's_mul_i32 s24, s22, 61440')
    k.I(f's_add_u32 s24, s24, {WD}')
    k.I(f'v_add_u32 v{vD}, s24, v{vo16}')
    def dload(n):
        if env('NO_WD', 0): return [f'v_add_u32 v{vD}, 0, v{vD}']
        g = [f'buffer_load_dwordx4 {wdreg(n)}, v{vD}, s[12:15], 0 offen offset:{1024*(n%4)} sc1']
        if n % 4 == 3: g.append(f'v_add_u32 v{vD}, 0x1000, v{vD}')
        return g
    ND0 = env('WD_EARLY', 0)
    assert wdv + 4 * ND0 <= sx
    for n in range(ND0): emit(dload(n))
    RS = 336; PT = 16 * RS
    k.I('s_lshl_b32 s24, s20, 1')
    k.I('s_add_u32 s24, s24, s57')
    k.I('s_lshl_b32 s24, s24, 2')
    k.I(f's_mul_i32 s33, s22, {12*1024}')
    k.I(f's_add_u32 s33, s33, {HH}')
    k.I('s_mul_i32 s42, s24, 49152')
    k.I('s_add_u32 s42, s42, s33')
    for i in range(1, 4): k.I(f's_add_u32 s{42+i}, s42, {49152*i}')
    k.I(f'v_mul_u32_u24 v{t0}, 26, v{vl}')
    k.I(f'v_lshrrev_b32 v{t0}, 8, v{t0}')
    k.I(f'v_mul_u32_u24 v{t1}, 10, v{t0}')
    k.I(f'v_sub_u32 v{t1}, v{vl}, v{t1}')
    k.I(f'v_mul_u32_u24 v{lr}, {RS}, v{t0}')
    k.I(f'v_lshl_add_u32 v{lr}, v{t1}, 4, v{lr}')
    k.I(f's_mul_i32 s25, s22, {4*RS}')
    k.I(f'v_add_u32 v{lr}, s25, v{lr}')
    k.I(f'v_mul_u32_u24 v{ox}, 1280, v{t0}')
    k.I(f'v_lshl_add_u32 v{ox}, v{t1}, 4, v{ox}')
    k.I(f'v_mul_u32_u24 v{oo}, {32*1280}, v{t0}')
    k.I(f'v_lshl_add_u32 v{oo}, v{t1}, 4, v{oo}')
    k.I(f'v_lshlrev_b32 v{t1}, 5, v{t1}')
    k.I(f'v_mul_u32_u24 v{lw}, {RS}, v{vi}')
    k.I(f's_mul_i32 s25, s22, {PT}')
    k.I(f'v_add_u32 v{lw}, s25, v{lw}')
    lw2 = t0
    k.I(f'v_mul_u32_u24 v{hr}, 5, v{vq}')
    k.I(f'v_add_u32 v{lw2}, 1, v{hr}')
    k.I(f'v_lshrrev_b32 v{lw2}, 1, v{lw2}')
    k.I(f'v_lshl_add_u32 v{lw2}, v{lw2}, 4, v{lw}')
    k.I(f'v_lshrrev_b32 v{hr}, 1, v{hr}')
    k.I(f'v_lshl_add_u32 v{lw}, v{hr}, 4, v{lw}')
    k.I(f'v_and_b32 v{hr}, 1, v{vq}')
    k.I(f'v_mul_u32_u24 v{hr}, 160, v{hr}')
    k.I(f'v_add_u32 v{lw}, v{lw}, v{hr}')
    k.I(f'v_sub_u32 v{lw2}, v{lw2}, v{hr}')
    k.I(f'v_add_u32 v{lw2}, 160, v{lw2}')
    k.I('s_mul_i32 s30, s56, 160')
    k.I('s_lshl_b32 s25, s24, 2')
    k.I('s_add_u32 s25, s25, s22')
    k.I(f's_mul_i32 s46, s25, {4*1280}')
    k.I('s_add_u32 s46, s46, s30')
    k.I(f's_add_u32 s46, s46, {X1}')
    for i in range(1, 4): k.I(f's_add_u32 s{46+i}, s46, {16*1280*i}')
    k.I('s_lshl_b32 s25, s20, 7')
    k.I('s_lshl_b32 s26, s57, 4')
    k.I('s_add_u32 s25, s25, s26')
    k.I('s_add_u32 s25, s25, s22')
    k.I('s_mul_i32 s25, s25, 1280')
    k.I('s_add_u32 s25, s25, s30')
    for i in range(1, 4): k.I(f's_add_u32 s{25+i}, s25, {4*1280*i}')
    k.I('s_lshl_b32 s30, s30, 1')
    k.I(f's_add_u32 s30, s30, {5*2560}')
    vx3 = x1r + 14
    k.I(f'v_cmp_gt_u32 vcc, 32, v{vl}')
    k.I(f'v_mov_b32 v{vx3}, 0x7ff00000')
    k.I(f'v_cndmask_b32 v{vx3}, v{vx3}, v{vo16}, vcc')
    k.I('s_mov_b32 s34, -1')
    k.I('s_mov_b32 s35, 0xff')
    vck = x1r; vad = x1r + 15
    k.I(f'v_add_u32 v{vad}, s52, v{vo16}')
    slow = []
    def validate(name, groups):
        o = []; n = 0
        for g in groups:
            for j in range(2):
                o.append([f'ds_read2st64_b32 {vr(vck+n,2)}, v{vad} offset0:{16*g+8*j} offset1:{16*g+8*j+4}']); n += 2
        i = 1
        while i < n:
            if i + 1 < n: o.append([f'v_bitop3_b32 v{vck}, v{vck}, v{vck+i}, v{vck+i+1} bitop3:0x80']); i += 2
            else: o.append([f'v_bitop3_b32 v{vck}, v{vck}, v{vck+i}, 1 bitop3:0x80']); i += 1
        o.append([f'v_cmp_eq_u32 s[62:63], 0, v{vck}'])
        o.append(['s_nop 0'])
        o.append(['s_cmp_lg_u64 s[62:63], 0', ('BR', f's_cbranch_scc1 L{name}_slow', f'L{name}_ok')])
        slow.append((name, groups))
        return o
    _emit = emit
    def emit(grp):
        for t in grp:
            if isinstance(t, tuple) and t[0] == 'GRP': emit(t[1])
            elif isinstance(t, tuple) and t[0] == 'BR':
                k.I(t[1], noflush=True); k.raw(t[2] + ':')
            else: _emit([t])
    V0 = [0] if env('V0_ONE', 1) else [0, 1]
    mark(k, 5); hm(k, 7)
    k.wait_tag('h2')
    k.wait_tag(('a', 0, V0[-1], 1))
    mark(k, 6); hm(k, 8)
    for g in validate('V0', V0): emit(g)
    if env('H1_FLAG', 0): k.I('s_barrier')
    else: signal(k, 'H1', 54, hs)
    mark(k, 7); hm(k, 9)
    for kp_ in range(2):
        for i in range(4): k.I(aread(0, i, kp_))
    def epi(ps):
        acc = accs[ps]; o = []
        for pr in range(2):
            for j in range(2):
                i = 2*pr + j
                g_ = acc + i*4; u_ = acc + (4+i)*4
                for p in (0, 2): o.append(f'v_pk_mul_f32 {vr(g_+p,2)}, {vr(g_+p,2)}, {vr(u_+p,2)}')
            a_ = acc + (8+2*pr)*4; b_ = a_ + 4
            for r in range(4): o.append(f'v_permlane32_swap_b32 v{a_+r}, v{b_+r}')
            for j in range(2):
                g_ = acc + (2*pr+j)*4
                for p in (0, 2): o.append(f'v_cvt_pk_bf16_f32 v{pk+4*pr+2*j+p//2}, v{g_+p}, v{g_+p+1}')
            for p in (0, 2): o.append(f'v_pk_mul_f32 {vr(a_+p,2)}, {vr(a_+p,2)}, {vr(b_+p,2)}')
            o.append(f'v_permlane16_swap_b32 v{pk+4*pr}, v{pk+4*pr+2}')
            o.append(f'v_permlane16_swap_b32 v{pk+4*pr+1}, v{pk+4*pr+3}')
            for p in (0, 2): o.append(f'v_cvt_pk_bf16_f32 v{pk+8+2*pr+p//2}, v{a_+p}, v{a_+p+1}')
            o.append((f'buffer_store_dwordx4 {vr(pk+4*pr,4)}, v{oh}, s[12:15], s{58+2*pr+ps} offen sc1', ('h', ps)))
        o.append(f'v_permlane16_swap_b32 v{pk+8}, v{pk+10}')
        o.append(f'v_permlane16_swap_b32 v{pk+9}, v{pk+11}')
        o.append((f'buffer_store_dwordx4 {vr(pk+8,4)}, v{oh2}, s[12:15], s{58+ps} offen offset:512 sc1', ('h', ps)))
        return o
    slots_h = [vr(accs[0] + 4*i, 4) for i in range(12)] + [ar(240 + 4*i, 4) for i in range(4)] + [ar(4*i, 4) for i in range(60 - NV, 60)]
    NH = len(slots_h)
    horder = [(t, kp) for kp in range(12) for t in (0, 1)] + [(t, kp) for t in (2, 3) for kp in range(12)]
    def hload(n):
        t, kp = horder[n]
        if env('NO_H', 0): return [f's_add_u32 s{42+t}, s{42+t}, {n}']
        g = [f'buffer_load_dwordx4 {slots_h[n % NH]}, v{vo16}, s[12:15], s{42+t} offen offset:{1024*(kp%4)} sc1']
        if kp % 4 == 3: g.append(f's_add_u32 s{42+t}, s{42+t}, 4096')
        return g
    def check(name, cnt):
        k.I(f'v_readfirstlane_b32 s33, v{hr}')
        k.I('s_cmp_ge_u32 s33, 16')
        k.I(f's_cbranch_scc0 L{name}_spin', noflush=True)
        k.raw(f'L{name}_ok:')
        spins.append((name, cnt))
    spins = []
    q1 = []
    for g in range(NPRE, 5): q1 += dma(0, g)
    xs_ = []
    for i in range(3):
        xs_.append([f'buffer_store_dwordx4 {vr(sx+4*i,4)}, v{vo16 if i < 2 else vx3}, s[12:15], s29 offen offset:{1024*i} sc1'])
    q1 += late[:-6] + [[f'buffer_load_dword v{hr}, v{hs}, s[12:15], s54 offen sc1']] + late[-6:] + xs_ + [['CHECK']]
    for g in range(5): q1 += dma(1, g)
    q1 += [[f'buffer_load_dwordx4 {vr(gb+4*j,4)}, v{t1}, s[12:15], s30 offen offset:{16*j} sc1'] for j in range(2)]
    nd = ND0; nh = 0
    bars = {(0, 6): ('a', 0, 2, 1), (0, 10): ('a', 0, 4, 1), (0, 18): ('a', 1, 1, 1), (1, 6): ('a', 1, 4, 1), (1, env('K_SA', 9)): None}
    if len(V0) == 1: bars[(0, 2)] = ('a', 0, 1, 1)
    VRATE = env('VRATE', 25) / 120.0
    credit = 1.0
    KA_, KC_ = env('K_A', 14), env('K_C', 17)
    ep = []; vq_ = []
    fl = []
    since = 99
    def isvm(t): return (t[0] if isinstance(t, tuple) else t).startswith('buffer_')
    for ps in range(2):
        for kap in range(20):
            pend = list(fl) + [t for g in q1 for t in g]
            if ps == 0 and kap in (env('V2_AT', 4), env('V3_AT', 7)): assert not any(isinstance(t, tuple) and t[0] != 'GRP' and t[1] <= ('a', 0, 2 if kap == env('V2_AT', 4) else 4, 1) for t in pend), 'val early'
            for mt in range(3):
                assert ps or not any(isinstance(t, str) and t.startswith(f'buffer_load_dwordx4 {ar((3*kap+mt)*4,4)},') for t in pend), ('weight late', kap)
            if (ps, kap) in bars:
                while vq_: emit(vq_.pop(0))
                if bars[(ps, kap)]:
                    assert not any(isinstance(t, tuple) and t[0] != 'GRP' and t[1] <= bars[(ps, kap)] for t in pend), ('dma late', ps, kap)
                    k.wait_tag(bars[(ps, kap)])
                if not bars[(ps, kap)]:
                    assert not ep
                    em(k, 3)
                    k.wait_tag(('h', 0))
                    signal(k, 'HA', 55, hs, noflush=True)
                    em(k, 4)
                else: k.I('s_barrier')
            if ps == 0 and kap == 1 and len(V0) == 1: k.wait_tag(('a', 0, 1, 1)); vq_ = validate('V1', [1])
            if ps == 0 and kap == env('V2_AT', 4): k.wait_tag(('a', 0, 2, 1)); vq_ = validate('V2', [2])
            if ps == 0 and kap == env('V3_AT', 7): k.wait_tag(('a', 0, 4, 1)); vq_ = validate('V3', [3, 4])
            if ps == 0 and kap == 18:
                k.I(f'v_add_u32 v{rb[0]}, 40960, v{rb[0]}')
                k.I(f'v_add_u32 v{rb[1]}, 40960, v{rb[1]}')
            if ps == 1 and kap == 1:
                if env('EP_SERIAL', 1):
                    em(k, 1)
                    for t in epi(0): emit([t])
                    em(k, 2)
                else: ep = pairs(epi(0))
            if ps == 1 and kap == KA_: fl.insert(0 if not fl or isvm(fl[0]) else 1, f'buffer_load_dword v{hr}, v{hs}, s[12:15], s55 offen sc1') if False else k.I(f'buffer_load_dword v{hr}, v{hs}, s[12:15], s55 offen sc1')
            if ps == 1 and kap == KC_: em(k, 5); check('HA', 55); em(k, 6)
            for j in range(12):
                i, mt = divmod(j, 3)
                if env('MT_MAJOR', 0): mt, i = divmod(j, 4)
                dd = vr(accs[ps]+(mt*4+i)*4, 4)
                k.I(f'{MF16} {dd}, {ar((3*kap+mt)*4,4)}, {vr(act+16*(kap&1)+4*i,4)}, {dd if kap else 0}')
                since += 1; credit = min(credit + VRATE, env('CCAP', 16) / 10.0)
                rd = None
                if mt == 2:
                    if kap < 18: rd = aread(ps, i, kap + 2)
                    elif ps == 0: rd = aread(1, i, kap - 18)
                if rd: k.I(rd); continue
                if env('MT_MAJOR', 0):
                    if j == 7 and k.lg: k.waitcnt(lgkm=0); continue
                else:
                    if j == 10 and len(k.lg) > 3: k.waitcnt(lgkm=3); continue
                    if j == 10 and ps == 1 and kap == 18: k.waitcnt(lgkm=0); continue
                if not fl:
                    free = NV + (3 * kap if ps else 0)
                    if q1 and q1[0] == ['CHECK']: q1.pop(0); check('H1', 54); continue
                    if q1: fl = list(q1.pop(0))
                    elif ps == 1 and kap >= KC_ and nh < 16 and (nh // 2) * 5 < nd: fl = list(hload(nh)); nh += 1
                    elif nd < min(free, 60): fl = list(dload(nd)); nd += 1
                if ep and isvm(ep[0][0]):
                    emit(ep.pop(0)); since = 0; credit -= 1.0
                elif fl and (not isvm(fl[0]) or (since >= 3 and credit >= 1.0)):
                    t = fl.pop(0)
                    if isvm(t): since = 0; credit -= 1.0
                    emit([t])
                elif vq_: emit(vq_.pop(0))
                elif ep:
                    g_ = ep.pop(0); emit(g_)
                    if ep and len(g_) == 1 and len(ep[0]) == 1 and not isvm(ep[0][0]): emit(ep.pop(0))
        if ps == 0 and not env('MD', 0): mark(k, 2)
    for t in fl: emit([t])
    assert not q1
    print('after E: wd loaded', nd, 'h loaded', nh)
    NHE = nh
    mark(k, 8); fm(k, 1); em(k, 7); pm(k, 1)
    fq = []
    def need_order():
        o = []; d = nd; h = nh
        for kp in range(12):
            while d < 5*(kp+1): o.append(dload(d)); d += 1
            while h < 2*(kp+1): o.append(hload(h)); h += 1
        return o
    fq = need_order()
    full = list(fq)
    def sorted_q(a_, b_):
        rest = [g for g in b_ if g not in full]
        return [g for g in full if g in a_ or g in b_] + rest
    fq += [['s_mov_b64 exec, s[34:35]', f'buffer_load_dwordx4 {vr(x1r+4*t,4)}, v{ox}, s[12:15], s{46+t} offen sc1', 's_mov_b64 exec, -1'] for t in range(4)]
    for t in epi(1): emit([t])
    fm(k, 2)
    if KC_ >= 20: check('HA', 55)
    fm(k, 3)
    for _ in range(env('F_PRE1', 0)):
        if fq: emit(fq.pop(0))
    mark(k, 9); fm(k, 4)
    fa = accs[1]
    SL = [0, 4*PT, 8*PT, 0]
    def pwrite(t, a): return [f'ds_write_b128 v{lw2 if dt & 1 else lw}, {vr(a+4*dt,4)} offset:{SL[t]+16*(dt//2)}' for dt in range(5)]
    def fin_reads(t, r): return [f'ds_read_b128 {vr(r+8*src+4*h_,4)}, v{lr} offset:{SL[t]+PT*src+160*h_}' for src in range(4) for h_ in range(2)]
    def fin_valu(t, r, xf):
        o = []
        for j in range(4):
            o.append(f'v_lshlrev_b32 v{xf+2*j}, 16, v{x1r+4*t+j}')
            o.append(f'v_and_b32 v{xf+2*j+1}, 0xffff0000, v{x1r+4*t+j}')
        for p in range(4): o.append(f'v_pk_add_f32 {vr(r+2*p,2)}, {vr(r+2*p,2)}, {vr(r+8+2*p,2)}')
        for p in range(4): o.append(f'v_pk_add_f32 {vr(r+16+2*p,2)}, {vr(r+16+2*p,2)}, {vr(r+24+2*p,2)}')
        for p in range(4): o.append(f'v_pk_add_f32 {vr(r+2*p,2)}, {vr(r+2*p,2)}, {vr(r+16+2*p,2)}')
        for p in range(4): o.append(f'v_pk_fma_f32 {vr(xf+2*p,2)}, {vr(r+2*p,2)}, {vr(gb+2*p,2)}, {vr(xf+2*p,2)}')
        for p in range(4): o.append(f'v_cvt_pk_bf16_f32 v{x1r+4*t+p}, v{xf+2*p}, v{xf+2*p+1}')
        return o
    OST = os.environ.get('OUT_ST', '')
    def fin_store(t): return ['s_mov_b64 exec, s[34:35]', f'buffer_store_dwordx4 {vr(x1r+4*t,4)}, v{oo}, s[36:39], s{25+t} offen{OST}', 's_mov_b64 exec, -1']
    KB_ = env('K_B', 3)
    fl = []
    def gap(pool):
        nonlocal fl
        if not fl and pool:
            g = pool.pop(0)
            if isinstance(g[0], str) and g[0].startswith('s_mov_b64 exec'): emit(g); return
            fl = list(g)
        if fl: emit([fl.pop(0)])
    FG = env('F_GAP', 5)
    KBL, KBC = env('K_BL', 8), env('K_BC', 11)
    since = 99; nh = 24
    hq = [hload(n) for n in range(24, 48)]
    for kp in range(12):
        if kp % 2 == 0: pm(k, 2 + kp // 2)
        if kp == KB_:
            k.wait_tag(('h', 1))
            signal(k, 'HB', 51, hs, noflush=True)
            fm(k, 5)
        if kp == KBL: fq.insert(0, [f'buffer_load_dword v{hr}, v{hs}, s[12:15], s51 offen sc1'])
        if kp == KBC:
            while fq or fl: gap(fq)
            check('HB', 51); fm(k, 7)
            fq = hq
        for t in range(2):
            need = [wdreg(5*kp+dt) for dt in range(5)] + [slots_h[(2*kp+t) % NH]]
            while fq is not hq and any(g[0].startswith(f'buffer_load_dwordx4 {r},') for g in fq for r in need): gap(fq)
            for dt in range(5):
                dd = vr(fa+20*t+4*dt, 4)
                k.I(f'{MF16} {dd}, {wdreg(5*kp+dt)}, {slots_h[(2*kp+t) % NH]}, {dd if kp else 0}')
                since += 1
                if dt == 4: continue
                if fl: gap(fq)
                elif since >= (env('F_GAP2', 5) if fq is hq else env('F_GAP1', 3)) and fq: gap(fq); since = 0
    pm(k, 8)
    while fl: gap(fq)
    if KBC >= 12:
        while fq: gap(fq)
    if not env('MD', 0): mark(k, 3)
    fm(k, 6); em(k, 8); pm(k, 9)
    def sprinkle(lst, every):
        for j, v_ in enumerate(lst):
            k.I(v_)
            if j % every == every - 1 and hq: emit(hq.pop(0))
    if KBC == 12: check('HB', 51); fm(k, 7)
    sprinkle(pwrite(0, fa) + pwrite(1, fa + 20), env('SPR', 2) if KBC <= 12 else 99)
    k.barrier()
    if KBC == 13:
        check('HB', 51); fm(k, 7)
        for _ in range(4): emit(hq.pop(0))
    em(k, 9)
    xfA = pk
    sprinkle(fin_reads(0, fa) + fin_reads(1, act), env('SPR2', 8))
    sprinkle(fin_valu(0, fa, pk), env('SPR3', 14))
    if not env('MD', 0): mark(k, 4)
    late_st = [fin_store(0), fin_store(1)]
    extra0 = pairs(fin_valu(1, act, fa + 40))
    rB = act
    extra = extra0
    hq = hq + late_st
    since = 99
    for t in (2, 3):
        a = fa + 20*(t - 2)
        if t == 3:
            assert not extra
            extra = [[w_] for w_ in pwrite(2, fa)]
        for kp in range(12):
            n = 24 + 12*(t-2) + kp
            if n == 25: fm(k, 8)
            assert not any(g[0].startswith(f'buffer_load_dwordx4 {slots_h[n % NH]},') for g in hq)
            for dt in range(5):
                dd = vr(a+4*dt, 4)
                k.I(f'{MF16} {dd}, {wdreg(5*kp+dt)}, {slots_h[n % NH]}, {dd if kp else 0}')
                since += 1
                if dt == 4 and n < 46: continue
                if fl: gap(hq)
                elif hq and since >= FG and not (extra is extra0 and extra and hq[0] is late_st[1]): gap(hq); since = 0
                elif (kp >= 1 or t == 2) and extra: emit(extra.pop(0))
            if t == 3 and kp == 3:
                assert not extra
                k.barrier()
                extra = [[r_] for r_ in fin_reads(2, wdv)] + pairs(fin_valu(2, wdv, xfA)) + [fin_store(2)]
    fm(k, 9)
    while extra: emit(extra.pop(0))
    for w_ in pwrite(3, fa + 20): k.I(w_)
    xl = fin_valu(3, wdv + 32, act)
    for v_ in xl[:8]: k.I(v_)
    k.barrier()
    for r_ in fin_reads(3, wdv + 32): k.I(r_)
    for v_ in xl[8:]: k.I(v_)
    emit(fin_store(3))
    if gen.STAMPS and not env('MF', 0): k.I('s_add_u32 s66, s50, s64')
    stamp_end(k, 3, 4)
    k.label('LD_exit')
    k.I('s_endpgm')
    k.label('LXG_slow', fresh=True); k.vm = []; k.lg = []
    k.I('s_mov_b32 s24, 0x40000')
    k.label('LXG_loop')
    k.I('s_sleep 2')
    xg()
    k.waitcnt(vm=0)
    k.I('s_sub_u32 s24, s24, 1')
    k.I('s_cbranch_scc1 LXG_ok')
    xtest()
    k.I('s_cbranch_scc1 LXG_loop')
    k.I('s_branch LXG_ok')
    k.label('LY_slow', fresh=True); k.vm = []; k.lg = []
    k.I('s_mov_b32 s24, 0x40000')
    k.label('LY_loop')
    k.I('s_add_u32 s50, s50, 1')
    k.I(f's_sleep {env("Y_SLEEP", 2)}')
    yloads()
    k.waitcnt(vm=0)
    k.I('s_sub_u32 s24, s24, 1')
    k.I('s_cbranch_scc1 LY_ok')
    ycheck()
    k.I('s_cbranch_scc1 LY_loop')
    k.I('s_branch LY_ok')
    k.label('LF0_slow', fresh=True); k.vm = []; k.lg = []
    k.I('s_mov_b32 s33, 0x40000')
    k.label('LF0_loop')
    k.I('s_sleep 4')
    k.I(f'buffer_load_dword v{hr}, v{hs}, s[12:15], s89 offen offset:1024 sc1')
    k.waitcnt(vm=0)
    k.I('s_sub_u32 s33, s33, 1')
    k.I('s_cbranch_scc1 LF0_ok')
    k.I(f'v_readfirstlane_b32 s24, v{hr}')
    k.I('s_cmp_lg_u32 s24, 1')
    k.I('s_cbranch_scc1 LF0_loop')
    k.I('s_branch LF0_ok')
    k.label('LWD', fresh=True); k.restore_state(st0)
    vc = VAlloc(keep)
    t0_ = vc.get(); t1_ = vc.get(); ra_ = vc.get(); so_ = vc.get(5); o_ = vc.get(20, 4)
    for p in range(5):
        k.I(f'v_add_u32 v{t0_}, {64*p}, v{vl}')
        k.I(f'v_mul_u32_u24 v{t1_}, 205, v{t0_}')
        k.I(f'v_lshrrev_b32 v{t1_}, 13, v{t1_}')
        k.I(f'v_mul_u32_u24 v{t1_}, 640, v{t1_}')
        k.I(f'v_add_u32 v{so_+p}, v{t1_}, v{vo16}')
    k.I(f'v_bfe_u32 v{t1_}, v{vl}, 2, 2')
    k.I(f'v_lshl_add_u32 v{t0_}, v{vq}, 3, v{t1_}')
    k.I(f'v_mul_u32_u24 v{ra_}, 640, v{t0_}')
    k.I(f'v_and_b32 v{t0_}, 3, v{vl}')
    k.I(f'v_mul_u32_u24 v{t0_}, 40, v{t0_}')
    k.I('s_mul_i32 s24, s22, 160')
    k.I(f's_add_u32 s24, s24, {CL}')
    k.I(f'v_add3_u32 v{ra_}, v{ra_}, v{t0_}, s24')
    k.I('s_mul_i32 s90, s22, 5120')
    k.I(f's_add_u32 s90, s90, {CL}')
    k.I('s_sub_u32 s48, s2, 161')
    GL = CL + 20736
    wo_ = vc.get(3); rg_ = vc.get(); r2_ = vc.get(); og_ = vc.get(48, 4)
    apost(A1, 'zt')
    def aggregate(name, base, i):
        k.I('s_lshl_b32 s98, s22, 8')
        k.I('s_add_u32 s98, s98, s2')
        k.I('s_cmp_lg_u32 s98, 255')
        k.I(f's_cbranch_scc1 L{name}_x')
        if i == 1: k.I('s_mov_b32 exec_lo, 0'); k.I('s_mov_b32 exec_hi, 0xffffff00')
        aload(base)
        acheck(name, base)
        k.I('s_mov_b64 exec, -1')
        k.I(f'v_mov_b32 v250, s{TAG}')
        k.I(f'v_lshlrev_b32 v251, 7, v{vl}')
        k.I(f's_mov_b32 s98, {GO + 1024*i}')
        k.I('s_mov_b64 exec, 0xff')
        k.I('buffer_store_dword v250, v251, s[12:15], s98 offen sc1')
        if i == 0:
            k.I(f's_mov_b32 s98, {EPOCH}')
            k.I('s_mov_b64 exec, 1')
            k.I('buffer_store_dword v250, v251, s[12:15], s98 offen sc1')
        k.I('s_mov_b64 exec, -1')
        k.label(f'L{name}_x')
        k.I('s_cmp_lg_u32 s2, 255')
        k.I(f's_cbranch_scc1 L{name}_y')
        k.I('s_barrier')
        k.label(f'L{name}_y')
    aggregate('AG1', A1, 0)
    if NM == 80: MR = modr_in(k, 148, 48)
    for p in range(3):
        k.I(f'v_add_u32 v{t0_}, {64*p}, v{vl}')
        k.I(f'v_mul_u32_u24 v{t1_}, 171, v{t0_}')
        k.I(f'v_lshrrev_b32 v{t1_}, 12, v{t1_}')
        k.I(f'v_mul_u32_u24 v{t1_}, 2688, v{t1_}')
        k.I(f'v_add_u32 v{wo_+p}, v{t1_}, v{vo16}')
    k.srd(8, 92, D * F * 2)
    k.srd(16, 94, D * F * 2)
    k.I('s_sub_u32 s55, s48, 62')
    k.I('s_and_b32 s49, s55, 7')
    k.I('s_lshr_b32 s50, s55, 3')
    k.I('s_add_u32 s50, s50, 16')
    k.I('s_lshl_b32 s51, s50, 2')
    k.I('s_add_u32 s51, s51, s22')
    k.I(f's_mul_i32 s51, s51, {8*3072}')
    k.I('s_mul_i32 s24, s49, 384')
    k.I('s_add_u32 s51, s51, s24')
    k.I('s_cmp_lt_u32 s55, 32')
    k.I('s_cselect_b64 exec, -1, 0')
    k.I('s_mul_i32 s24, s22, 3072')
    k.I(f's_add_u32 m0, s24, {GL}')
    for p in range(3): k.I(f'buffer_load_dwordx4 v{wo_+p}, s[8:11], s51 offen offset:{1024*p} nt lds', tag='g')
    k.I(f's_add_u32 m0, s24, {GL + 12288}')
    for p in range(3): k.I(f'buffer_load_dwordx4 v{wo_+p}, s[16:19], s51 offen offset:{1024*p} nt lds', tag='g')
    k.I('s_mov_b64 exec, -1')
    k.I('s_lshl_b32 s54, s49, 3')
    k.I('s_add_u32 s54, s54, s22')
    k.I('s_mul_i32 s54, s54, 10')
    k.I('s_add_u32 s54, s54, s50')
    k.I('s_mul_i32 s54, s54, 3072')
    k.I(f's_add_u32 s54, s54, {WGU_B - 30720}')
    k.I('s_cmp_lt_u32 s55, 32')
    k.I('s_cselect_b32 s54, s54, 0x7f000000')
    k.I(f'v_bfe_u32 v{t1_}, v{vl}, 2, 2')
    k.I(f'v_lshl_add_u32 v{t0_}, v{vq}, 3, v{t1_}')
    k.I(f'v_mul_u32_u24 v{rg_}, 384, v{t0_}')
    k.I('s_mul_i32 s24, s22, 48')
    k.I(f's_add_u32 s24, s24, {GL}')
    k.I(f'v_add_u32 v{rg_}, s24, v{rg_}')
    k.I(f'v_and_b32 v{t0_}, 1, v{vl}')
    k.I(f'v_lshl_add_u32 v{r2_}, v{t0_}, 3, v{rg_}')
    k.I(f'v_bfe_u32 v{t0_}, v{vl}, 1, 1')
    k.I(f'v_mul_u32_u24 v{t0_}, 12288, v{t0_}')
    k.I(f'v_add_u32 v{r2_}, v{r2_}, v{t0_}')
    k.I(f'v_and_b32 v{t0_}, 3, v{vl}')
    k.I(f'v_lshl_add_u32 v{rg_}, v{t0_}, 3, v{rg_}')
    k.srd(36, 62, F * D * 2)
    k.srd(44, 4, F * D * 2, WD)
    def wd_in(sj):
        k.I(f's_and_b32 s49, s{sj}, 1')
        k.I(f's_lshr_b32 s50, s{sj}, 1')
        k.I('s_lshl_b32 s51, s50, 2')
        k.I('s_add_u32 s51, s51, s22')
        k.I('s_mul_i32 s51, s51, 10240')
        k.I('s_mul_i32 s24, s49, 640')
        k.I('s_add_u32 s51, s51, s24')
        k.I('s_mov_b32 m0, s90')
        for p in range(4): k.I(f'buffer_load_dwordx4 v{so_+p}, s[36:39], s51 offen offset:{1024*p} nt lds', tag='r')
        k.I('s_add_u32 m0, s90, 4096')
        k.I('s_add_u32 s51, s51, 4096')
        k.I(f'buffer_load_dwordx4 v{so_+4}, s[36:39], s51 offen nt lds', tag='r')
        k.I('s_lshl_b32 s52, s49, 2')
        k.I('s_add_u32 s52, s52, s22')
        k.I('s_mul_i32 s52, s52, 48')
        k.I('s_add_u32 s52, s52, s50')
        k.I('s_mul_i32 s52, s52, 5120')
        k.I('s_add_u32 s53, s52, 4096')
    def wd_out():
        k.wait_tag('r')
        k.I('s_barrier')
        cm_(k, 3)
        for j in range(2 if HALF else 0):
            for mt in range(3):
                for hf in range(2):
                    off = 4*hf*384 + 192*j + (12288 if mt == 1 else 0) + (32 if mt == 2 else 0)
                    k.I(f'ds_read_b64_tr_b16 {vr(og_+(3*j+mt)*4+2*hf,2)}, v{r2_ if mt == 2 else rg_} offset:{off}')
        for j in range(2 if HALF else 0):
            for mt in range(3):
                k.I(f'buffer_store_dwordx4 {vr(og_+(3*j+mt)*4,4)}, v{vo16}, s[12:15], s{34 if j else 54} offen offset:{1024*mt} sc1', tag='y')
        for dt in range(5):
            for hf in range(2): k.I(f'ds_read_b64_tr_b16 {vr(o_+dt*4+2*hf,2)}, v{ra_} offset:{4*hf*640+8*dt}')
        for dt in range(5):
            k.I(f'buffer_store_dwordx4 {vr(o_+dt*4,4)}, v{vo16}, s[44:47], s{52+(dt//4)} offen offset:{1024*(dt%4)} sc1', tag='y')
    wd_in(48)
    if NM == 80: modr_out(k, MR, 48, vl, 0)
    wd_out()
    for j in range(2):
        for mt in range(3):
            for hf in range(2):
                off = 4*hf*384 + 192*j + (12288 if mt == 1 else 0) + (32 if mt == 2 else 0)
                k.I(f'ds_read_b64_tr_b16 {vr(og_+(3*j+mt)*4+2*hf,2)}, v{r2_ if mt == 2 else rg_} offset:{off}')
    for j in range(2):
        k.I(f's_add_u32 s34, s54, {4*10*3072*j}')
        for mt in range(3):
            k.I(f'buffer_store_dwordx4 {vr(og_+(3*j+mt)*4,4)}, v{vo16}, s[12:15], s34 offen offset:{1024*mt} sc1', tag='y')
    cm_(k, 2)
    k.I('s_cmp_lg_u32 s2, 250')
    k.I('s_cbranch_scc1 LWD1')
    k.I('s_movk_i32 s48, 95')
    k.barrier()
    wd_in(48); wd_out()
    k.label('LWD1')
    gload(0)
    gcheck('G1w', 0)
    k.I('s_sub_u32 s48, s2, 244')
    k.I('s_cmp_ge_u32 s48, 3')
    k.I('s_cbranch_scc1 LWD0')
    m0_ = 120
    k.I('s_lshl_b32 s48, s48, 8')
    k.I(f'v_add_u32 v{m0_}, s48, v0')
    k.I(f'v_lshlrev_b32 v{m0_+1}, 4, v{m0_}')
    k.srd(8, 4, 4 * 960 * 16, GR)
    k.I(f'v_min_u32 v{m0_+2}, {639*16}, v{m0_+1}')
    k.I('s_mov_b32 s91, 0x40000')
    k.label('LFIN')
    for p in range(4):
        k.I(f's_mov_b32 s49, {960*16*p + 320*16}')
        k.I(f'buffer_load_dwordx4 {vr(m0_+4+4*p,4)}, v{m0_+2}, s[8:11], s49 offen sc1')
    for p in range(4): k.I(f'v_xor_b32 v{m0_+20+p}, s{TAG}, v{m0_+7+4*p}')
    k.I(f'v_or3_b32 v{m0_+20}, v{m0_+20}, v{m0_+21}, v{m0_+22}')
    k.I(f'v_or_b32 v{m0_+20}, v{m0_+20}, v{m0_+23}')
    k.I(f'v_cmp_ne_u32 vcc, 0, v{m0_+20}')
    k.I('s_cbranch_vccz LFIN_o')
    k.I('s_sleep 4')
    k.I('s_sub_u32 s91, s91, 1')
    k.I('s_cbranch_scc0 LFIN')
    k.label('LFIN_o')
    k.srd(12, 4, 4 * D * 4, MODN + 2 * D * 4)
    k.I('s_mov_b32 s50, 0x04000c0c')
    k.I('s_mov_b32 s51, 0x0706000c')
    k.I(f'v_mov_b32 v{m0_+22}, {fhex(1.0 / (2.0 * S * D))}')
    k.I(f'v_cmp_gt_u32 vcc, 0xa0, v{m0_}')
    k.I(f'v_cndmask_b32 v{m0_+22}, 1.0, v{m0_+22}, vcc')
    k.I(f'v_subrev_u32 v{m0_+21}, 0x140, v{m0_}')
    k.I(f'v_cmp_gt_u32 vcc, 0xa0, v{m0_+21}')
    k.I(f'v_mov_b32 v{m0_+23}, 1.0')
    k.I(f'v_cndmask_b32 v{m0_+23}, 0, v{m0_+23}, vcc')
    g_ = m0_ + 4
    for p in range(4): unpack_gran(k, g_+4*p, m0_+21, 50, 51)
    for p in (0, 2):
        k.I(f'v_pk_add_f32 {vr(g_+p,2)}, {vr(g_+p,2)}, {vr(g_+4+p,2)}')
        k.I(f'v_pk_add_f32 {vr(g_+8+p,2)}, {vr(g_+8+p,2)}, {vr(g_+12+p,2)}')
    for p in (0, 2): k.I(f'v_pk_add_f32 {vr(g_+p,2)}, {vr(g_+p,2)}, {vr(g_+8+p,2)}')
    for j in range(4): k.I(f'v_cvt_pk_bf16_f32 v{g_+j}, v{g_+j}, v{g_+j}')
    for j in range(4): k.I(f'v_and_b32 v{g_+j}, 0xffff0000, v{g_+j}')
    for j in range(4): k.I(f'v_add_f32 v{g_+j}, v{m0_+23}, v{g_+j}')
    for j in range(4): k.I(f'v_cvt_pk_bf16_f32 v{g_+j}, v{g_+j}, v{g_+j}')
    for j in range(4): k.I(f'v_and_b32 v{g_+j}, 0xffff0000, v{g_+j}')
    for j in range(4): k.I(f'v_mul_f32 v{g_+j}, v{m0_+22}, v{g_+j}')
    k.I(f'buffer_store_dwordx4 {vr(g_,4)}, v{m0_+1}, s[12:15], 0 offen sc1', tag='y')
    k.label('LWD0')
    k.I('s_sub_u32 s48, s2, 161')
    scalars()
    k.I(f'v_mov_b32 v{hs}, 0')
    k.I(f'v_mov_b32 v{hs+1}, 1')
    cm_(k, 1)
    k.bg = bglist(); k.emit_bg(env('WD_B1', 4))
    k.wait_tag('y')
    cm_(k, 5)
    k.I('s_barrier')
    stS = k.save_state()
    k.I('s_cmp_lg_u32 s22, 0')
    k.I('s_cbranch_scc1 LFW_s')
    k.I(f'v_mov_b32 v{t0_}, 1')
    k.I(f'v_lshlrev_b32 v{t1_}, 7, v{vl}')
    k.I(f's_mov_b32 s35, {FW + 1024}')
    k.I('s_mov_b64 exec, 1')
    k.I(f'buffer_atomic_add v{t0_}, v{hs}, s[12:15], s35 offen sc0 sc1')
    k.I(f'v_readfirstlane_b32 s35, v{t0_}')
    k.I('s_cmp_eq_u32 s35, 94')
    k.I('s_cselect_b64 exec, 0xff, 0')
    k.I(f's_mov_b32 s35, {FW}')
    k.I(f'buffer_store_dword v{hs+1}, v{t1_}, s[12:15], s35 offen sc1')
    k.I('s_mov_b64 exec, -1')
    k.label('LFW_s')
    topup()
    k.emit_bg(W_J1_)
    dpro()
    t0_ = v8; t1_ = vcn
    if env('MD_WARM', 1):
        k.I('s_mov_b32 m0, s88')
        k.I(f'buffer_load_dwordx4 v{vo16}, s[12:15], s31 offen sc1 lds')
        k.I(f'buffer_load_dwordx4 v{vo16}, s[12:15], s31 offen offset:1024 sc1 lds')
    cm_(k, 6)
    if env('CANARY', 1):
        k.I('s_lshl_b32 s48, s48, 14')
        k.I('s_add_u32 s48, s48, s25')
        k.I(f'v_mov_b32 v{t0_}, 0')
        k.I('s_mov_b32 s24, 0x400')
        k.I('s_cmp_lg_u32 s22, 0')
        k.I('s_cbranch_scc1 LCAN_o')
        k.label('LCAN')
        k.I('s_sleep 4')
        k.I(f'buffer_load_dword v{t1_}, v{t0_}, s[16:19], s48 offen sc1')
        k.waitcnt(vm=0)
        k.I(f'v_readfirstlane_b32 s49, v{t1_}')
        k.I('s_sub_u32 s24, s24, 1')
        k.I('s_cbranch_scc1 LCAN_o')
        k.I('s_bitcmp0_b32 s49, 0')
        k.I('s_cbranch_scc1 LCAN')
        k.label('LCAN_o')
        if env('CAN_SLEEP', 0): k.I(f's_sleep {env("CAN_SLEEP", 0)}')
        k.I('s_barrier')
    cm_(k, 7)
    k.I('s_branch LJOIN')
    for name, groups in slow:
        k.label(f'L{name}_slow', fresh=True); k.vm = []; k.lg = []
        k.I('s_mov_b32 s32, m0')
        k.I('s_mov_b32 s24, 0x40000')
        k.label(f'L{name}_loop')
        k.I(f's_add_u32 s50, s50, {16 if name == "V0" else 256}')
        for g in groups:
            for grp in dma(0, g): _emit(grp)
        k.I('s_mov_b32 m0, s32')
        k.waitcnt(vm=0)
        k.I('s_sub_u32 s24, s24, 1')
        k.I(f's_cbranch_scc1 L{name}_ok')
        sl_ = list(slow)
        for g in validate(name + 'r', groups)[:-1]: _emit(g)
        slow[:] = sl_
        k.I('s_cmp_lg_u64 s[62:63], 0')
        k.I(f's_cbranch_scc1 L{name}_loop')
        k.I(f's_branch L{name}_ok')
    for name, i in gslow:
        k.label(f'L{name}_slow', fresh=True); k.vm = []; k.lg = []
        k.I('s_mov_b32 s91, 0x40000')
        k.label(f'L{name}_loop')
        k.I('s_sleep 3')
        gload(i)
        k.waitcnt(vm=0)
        k.I('s_sub_u32 s91, s91, 1')
        k.I(f's_cbranch_scc1 L{name}_ok')
        k.I(f'v_readfirstlane_b32 s98, v{gv}')
        k.I(f's_cmp_lg_u32 s98, s{TAG}')
        k.I(f's_cbranch_scc1 L{name}_loop')
        k.I(f's_branch L{name}_ok')
    for name, base in aslow:
        k.label(f'L{name}_slow', fresh=True); k.vm = []; k.lg = []
        k.I('s_mov_b32 s91, 0x40000')
        k.label(f'L{name}_loop')
        k.I(f's_sleep {env("A_SLEEP", 1) if name.startswith("AG") else 24}')
        aload(base)
        k.waitcnt(vm=0)
        k.I('s_sub_u32 s91, s91, 1')
        k.I(f's_cbranch_scc1 L{name}_ok')
        atest()
        k.I(f's_cbranch_scc1 L{name}_loop')
        k.I(f's_branch L{name}_ok')
    for name, cnt in spins:
        k.label(f'L{name}_spin', fresh=True); k.vm = []; k.lg = []
        k.I('s_mov_b32 s24, 0x100000')
        k.label(f'L{name}_loop')
        k.I(f's_sleep {env("SPIN_SLEEP", 2)}')
        k.I(f'buffer_load_dword v{hr}, v{hs}, s[12:15], s{cnt} offen sc1')
        k.waitcnt(vm=0)
        k.I(f'v_readfirstlane_b32 s33, v{hr}')
        k.I('s_sub_u32 s24, s24, 1')
        k.I(f's_cbranch_scc1 L{name}_ok')
        k.I('s_cmp_lt_u32 s33, 16')
        k.I(f's_cbranch_scc1 L{name}_loop')
        k.I(f's_branch L{name}_ok')
    return k, (256, 256, 163840)
```
